```python
import torch

def _softmax(x, axis=-1):
    return torch.softmax(x, dim=axis)
def _gelu(x):
    return torch.nn.functional.gelu(x, approximate="tanh")
def _silu(x):
    return torch.nn.functional.silu(x)
def _sigmoid(x):
    return torch.sigmoid(x)
def _layernorm(x, axis=-1, eps=1e-5):
    m = x.mean(dim=axis, keepdim=True)
    v = x.var(dim=axis, keepdim=True, unbiased=False)
    return (x - m) / torch.sqrt(v + eps)
def _scatter_add(tgt, idx, src, axis=0):
    return tgt.clone().index_add_(axis, idx, src)
def _segment_sum(src, seg, n):
    out = torch.zeros((n,) + src.shape[1:], dtype=src.dtype)
    return out.index_add_(0, seg, src)
def _pad(x, pw):
    flat = tuple(v for pair in reversed(pw) for v in pair)
    return torch.nn.functional.pad(x, flat)

kernel_name = 'standalone__deep_cross_xdeepfm__recsys'

def setup_inputs():

    _w = (lambda a: (lambda t: t.to(torch.bfloat16) if t.is_floating_point() else t)(torch.as_tensor(a)))
    B, F, D, L = 4096, 26, 64, 3
    V = min(1000000, 100000)
    Din = F * D
    return {
        "idx": _w((lambda lo, hi, *s: torch.randint(lo, hi, s))(0, V, B, F).to(torch.int64)),
        "table": _w((lambda *s: torch.randn(*s, dtype=torch.bfloat16) * 0.8)(V, D)),
        "ws_cin": _w((lambda *s: torch.randn(*s, dtype=torch.bfloat16) * 0.2)(L, F, F, F) * (1.0 / F)),
        "w_cin_out": _w((lambda *s: torch.randn(*s, dtype=torch.bfloat16) * 0.2)(L * F) * ((L * F) ** -0.5)),
        "w_dnn1": _w((lambda *s: torch.randn(*s, dtype=torch.bfloat16) * 0.8)(Din, Din) * (Din ** -0.5)),
        "b_dnn1": _w((lambda *s: torch.randn(*s, dtype=torch.bfloat16) * 1.6)(Din) * 0.1),
        "w_dnn2": _w((lambda *s: torch.randn(*s, dtype=torch.bfloat16) * 0.2)(Din) * (Din ** -0.5)),
        "b_out": _w((lambda *s: torch.randn(*s, dtype=torch.bfloat16) * 0.2)(1)),
    }

def reference(idx, table, ws_cin, w_cin_out, w_dnn1, b_dnn1, w_dnn2, b_out):
    x0 = table[idx]
    B = x0.shape[0]
    L = ws_cin.shape[0]
    xk = x0
    pooled = []
    for l in range(L):
        xk = torch.einsum('bid,bjd,hij->bhd', xk, x0, ws_cin[l])
        pooled.append(xk.sum(axis=-1))
    p_plus = torch.stack(pooled, axis=1).reshape(B, -1)
    logit_cin = p_plus @ w_cin_out
    h = x0.reshape(B, -1)
    h = _gelu(h @ w_dnn1 + b_dnn1)
    logit_dnn = h @ w_dnn2
    return logit_cin + logit_dnn + b_out
```

```python
import re

_REG = re.compile(r'^(-?)(abs\(|\|)?([vsa])(\d+)[)|]?$')
_RNG = re.compile(r'^([vsa])\[(\d+):(\d+)\]$')


def regs_of(tok):
    tok = tok.strip()
    m = _REG.match(tok)
    if m:
        return [(m.group(3), int(m.group(4)))]
    m = _RNG.match(tok)
    if m:
        return [(m.group(1), i) for i in range(int(m.group(2)), int(m.group(3)) + 1)]
    if tok in ('vcc', 'exec', 'm0', 'scc', 'exec_hi', 'exec_lo', 'vcc_lo', 'vcc_hi'):
        base = tok.split('_')[0]
        return [(base, 0)]
    return []


TRANS = ('v_exp_f32', 'v_log_f32', 'v_rcp_f32', 'v_rsq_f32', 'v_sqrt_f32', 'v_sin_f32', 'v_cos_f32')


class I:
    __slots__ = ('text', 'mn', 'kind', 'rd', 'wr', 'nops', 'w_vm', 'w_lgkm', 'tag', 'need', 'passes',
                 'srcc', 'srcab', 'comment', 'isdpp', 'lds_dma', 'store_data')

    def __init__(self, text, tag=None):
        self.text = text
        self.nops = 0
        self.w_vm = None
        self.w_lgkm = None
        self.tag = tag
        self.need = None
        self.passes = 0
        self.srcc = []
        self.srcab = []
        self.lds_dma = False
        self.store_data = []
        t = text.split(';')[0].strip()
        if (t.endswith(':') and ' ' not in t) or t.startswith('.') or not t:
            self.mn = 'label'
            self.kind = 'label'
            self.rd = []
            self.wr = []
            self.isdpp = False
            return
        parts = t.split(None, 1)
        mn = parts[0]
        self.mn = mn
        rest = parts[1] if len(parts) > 1 else ''
        ops = [o.strip() for o in rest.split(',')] if rest else []
        mods = ''
        if ops:
            last = ops[-1].split(None, 1)
        rest2 = re.sub(r'\b(op_sel|op_sel_hi|neg_lo|neg_hi|quad_perm):\[[^\]]*\]', '', rest)
        ops = [o.strip() for o in rest2.split(',')] if rest2.strip() else []
        if ops:
            last = ops[-1].split(None, 1)
            ops[-1] = last[0]
            mods = last[1] if len(last) > 1 else ''
        self.isdpp = ('row_' in rest) or ('quad_perm' in rest) or ('wave_' in rest)
        rd, wr = [], []
        R = regs_of
        if mn.startswith('v_smfmac'):
            self.kind = 'mfma'
            wr = R(ops[0])
            self.srcab = R(ops[1]) + R(ops[2]) + R(ops[3])
            self.srcc = R(ops[0])
            rd = self.srcab + self.srcc
            self.passes = 4
        elif mn.startswith('v_mfma'):
            self.kind = 'mfma'
            wr = R(ops[0])
            self.srcab = R(ops[1]) + R(ops[2])
            self.srcc = R(ops[3])
            rd = self.srcab + self.srcc
            self.passes = 8 if '32x32x16' in mn else 4
        elif mn.startswith('v_cmp'):
            self.kind = 'valu'
            wr = R(ops[0])
            for o in ops[1:]:
                rd += R(o)
        elif mn.startswith('v_readfirstlane') or mn.startswith('v_readlane'):
            self.kind = 'valu'
            wr = R(ops[0])
            for o in ops[1:]:
                rd += R(o)
        elif mn.startswith('v_permlane'):
            self.kind = 'valu'
            wr = R(ops[0]) + R(ops[1])
            rd = list(wr)
        elif mn.startswith('v_'):
            self.kind = 'valu'
            wr = R(ops[0])
            k = 1
            if mn.startswith(('v_add_co', 'v_sub_co', 'v_addc_co', 'v_subb_co')):
                wr += R(ops[1])
                k = 2
            for o in ops[k:]:
                rd += R(o)
            if mn.startswith(('v_fmac', 'v_mac', 'v_writelane', 'v_dot2c')) or self.isdpp or 'UNUSED_PRESERVE' in rest:
                rd += R(ops[0])
            if mn.startswith('v_cndmask') and len(ops) == 3:
                rd += [('vcc', 0)]
        elif mn.startswith('ds_'):
            self.kind = 'ds'
            if mn.startswith(('ds_read', 'ds_bpermute', 'ds_permute', 'ds_swizzle')):
                wr = R(ops[0])
                for o in ops[1:]:
                    rd += R(o)
                if 'd16' in mn:
                    rd += R(ops[0])
            else:
                for o in ops:
                    rd += R(o)
        elif mn.startswith(('buffer_', 'global_')):
            self.kind = 'vmem'
            if ' lds' in (' ' + mods + ' ') or mods.endswith('lds') or '_lds_' in mn:
                self.lds_dma = True
                for o in ops:
                    rd += R(o)
                rd += [('m0', 0)]
            elif '_load' in mn:
                wr = R(ops[0])
                for o in ops[1:]:
                    rd += R(o)
                if 'd16' in mn:
                    rd += R(ops[0])
            elif '_atomic' in mn:
                for o in ops:
                    rd += R(o)
                if 'sc0' in mods:
                    wr = R(ops[0])
            elif mn.startswith('buffer_store'):
                for o in ops:
                    rd += R(o)
                if 'x3' in mn or 'x4' in mn:
                    self.store_data = R(ops[0])
            elif mn.startswith('global_store'):
                for o in ops:
                    rd += R(o)
                if 'x3' in mn or 'x4' in mn:
                    self.store_data = R(ops[1])
            else:
                for o in ops:
                    rd += R(o)
        elif mn.startswith(('s_load', 's_buffer_load')) or mn.startswith('s_memtime') or mn.startswith('s_memrealtime'):
            self.kind = 'smem'
            wr = R(ops[0])
            for o in ops[1:]:
                rd += R(o)
        elif mn in ('s_waitcnt',):
            self.kind = 'wait'
        elif mn in ('s_barrier',):
            self.kind = 'barrier'
        elif mn == 's_nop':
            self.kind = 'nop'
        elif mn.startswith(('s_cbranch', 's_branch', 's_endpgm', 's_setprio', 's_sleep', 's_set_gpr_idx')):
            self.kind = 'sctl'
        elif mn.startswith('s_cmp') or mn.startswith('s_bitcmp'):
            self.kind = 'salu'
            for o in ops:
                rd += R(o)
            wr = [('scc', 0)]
        elif mn.startswith('s_'):
            self.kind = 'salu'
            wr = R(ops[0])
            for o in ops[1:]:
                rd += R(o)
            if 'saveexec' in mn:
                wr += [('exec', 0)]
        else:
            raise ValueError('unknown instr ' + text)
        self.rd = rd
        self.wr = wr

    def slots(self):
        if self.kind == 'label':
            return 0
        if self.kind == 'nop':
            return int(self.text.split()[1]) + 1
        return 1


class WaitTag(I):
    def __init__(self, vm_tags=(), lgkm0=False, vm0=False, allbut=None):
        I.__init__(self, 's_waitcnt')
        self.need = (set(vm_tags), lgkm0, vm0, allbut)
        self.kind = 'waittag'


class Touch(I):
    def __init__(self, regs):
        I.__init__(self, 's_waitcnt')
        self.kind = 'touch'
        self.rd = regs_of(regs)


class Prog:
    def __init__(self):
        self.static = []

    def add(self, ins):
        if isinstance(ins, str):
            ins = I(ins)
        self.static.append(ins)
        return ins

    def emit(self):
        out = []
        for i in self.static:
            if i.kind == 'label':
                out.append(i.text)
                continue
            w = []
            if i.w_vm is not None:
                w.append(f'vmcnt({i.w_vm})')
            if i.w_lgkm is not None:
                w.append(f'lgkmcnt({i.w_lgkm})')
            n = i.nops
            if w:
                out.append('  s_waitcnt ' + ' '.join(w))
                n = max(0, n - 1) if i.kind not in ('waittag', 'touch') else n
            while n > 0:
                k = min(n, 16)
                out.append(f'  s_nop {k - 1}')
                n -= k
            if i.kind in ('waittag', 'touch'):
                continue
            out.append('  ' + i.text)
        return '\n'.join(out) + '\n'


def _minset(cur, v):
    return v if cur is None else min(cur, v)


def resolve_waits(trace):
    vm = []
    lg = []
    for ins in trace:
        if ins.kind == 'label':
            continue
        if ins.kind == 'wait':
            m = re.search(r'vmcnt\((\d+)\)', ins.text)
            if m:
                n = int(m.group(1))
                vm = vm[len(vm) - n:] if n < len(vm) else vm
                if n == 0:
                    vm = []
            m = re.search(r'lgkmcnt\((\d+)\)', ins.text)
            if m:
                n = int(m.group(1))
                lg = lg[len(lg) - n:] if n < len(lg) else lg
                if n == 0:
                    lg = []
            continue
        if ins.kind == 'waittag':
            tags, lgkm0, vm0, allbut = ins.need
            if vm0:
                ins.w_vm = 0
                vm = []
            else:
                last = -1
                for k, (r, t) in enumerate(vm):
                    if t in tags:
                        last = k
                if allbut is not None:
                    pos = [k for k, (r, t) in enumerate(vm) if t == allbut[0]]
                    if len(pos) > allbut[1]:
                        last = max(last, pos[len(pos) - allbut[1] - 1])
                if last >= 0:
                    n = min(len(vm) - 1 - last, 62)
                    ins.w_vm = _minset(ins.w_vm, n)
                    vm = vm[len(vm) - n:] if n else []
            if lgkm0:
                ins.w_lgkm = 0
                lg = []
            continue
        touched = set(ins.rd) | set(ins.wr)
        if ins.kind == 'ds' and 'v[248:' in ins.text.split(',')[0] and 'offset' in ins.text and getattr(resolve_waits, 'dbg', False):
            touched = set(ins.rd)
        for q, name, cap in ((vm, 'vm', 62), (lg, 'lg', 14)):
            last = -1
            for k, (r, t) in enumerate(q):
                if r & touched:
                    last = k
            if last >= 0:
                if name == 'lg' and any(t == '__smem' for (_, t) in q):
                    n = 0
                else:
                    n = min(len(q) - 1 - last, cap)
                if name == 'vm':
                    ins.w_vm = _minset(ins.w_vm, n)
                    vm = vm[len(vm) - n:] if n else []
                else:
                    ins.w_lgkm = _minset(ins.w_lgkm, n)
                    lg = lg[len(lg) - n:] if n else []
        if ins.kind == 'vmem':
            if '_store' in ins.mn or '_atomic' in ins.mn:
                assert not ins.wr or True
                continue
            vm.append((set(ins.wr), ins.tag))
        elif ins.kind == 'ds':
            lg.append((set(ins.wr), ins.tag))
        elif ins.kind == 'smem':
            lg.append((set(ins.wr), '__smem'))


def resolve_hazards(trace):
    hist = []
    pos = 0
    WINDOW = 24
    for ins in trace:
        if ins.kind == 'label':
            continue
        if ins.kind in ('waittag', 'touch'):
            if ins.w_vm is not None or ins.w_lgkm is not None:
                pos += 1
            continue
        need = 0
        rd = set(ins.rd)
        wr = set(ins.wr)
        isv = ins.kind == 'valu'
        for (p, ppos) in reversed(hist):
            dist = pos - ppos
            if dist > WINDOW:
                break
            req = 0
            pw = set(p.wr)
            if p.kind == 'valu':
                pv = {r for r in pw if r[0] == 'v'}
                ps = {r for r in pw if r[0] in ('s', 'vcc')}
                pe = ('exec', 0) in pw
                if ins.kind == 'mfma' and (pv & rd):
                    req = max(req, 2)
                if isv and ins.isdpp and (pv & rd):
                    req = max(req, 2)
                if isv and ins.mn.startswith('v_permlane') and (pv & rd):
                    req = max(req, 2)
                if isv and ins.mn.startswith(('v_readfirstlane', 'v_readlane')) and (pv & rd):
                    req = max(req, 1)
                if isv and (ps & rd):
                    req = max(req, 2)
                    if ins.mn.startswith(('v_readlane', 'v_writelane')):
                        req = max(req, 4)
                if ins.kind == 'vmem' and (ps & rd):
                    req = max(req, 5)
                if ins.kind in ('salu', 'sctl', 'smem') and (ps & rd):
                    req = max(req, 1)
                if p.mn in TRANS and isv and (pv & rd):
                    req = max(req, 1)
                if ('sdwa' in p.mn or 'op_sel' in p.text) and isv and (pv & (rd | wr)):
                    req = max(req, 1)
                if pe and (ins.kind == 'mfma' or ins.isdpp):
                    req = max(req, 5)
            elif p.kind == 'mfma':
                d = pw
                big = {4: 8, 8: 12}[p.passes]
                if ins.kind == 'mfma':
                    if d & set(ins.srcab):
                        req = max(req, big)
                    c = set(ins.srcc)
                    if c & d:
                        if c == d and ins.passes == p.passes:
                            pass
                        else:
                            req = max(req, {4: 6, 8: 10}[p.passes])
                    elif d & wr:
                        req = max(req, {4: 6, 8: 10}[p.passes])
                elif ins.kind in ('valu', 'vmem', 'ds'):
                    if d & (rd | wr):
                        req = max(req, big)
                    if ins.kind == 'valu' and (set(p.srcc) & wr):
                        req = max(req, {4: 3, 8: 7}[p.passes])
            elif p.kind == 'salu':
                if ('m0', 0) in pw and ins.kind == 'vmem' and ins.lds_dma:
                    req = max(req, 1)
            elif p.kind == 'vmem':
                if p.store_data and (set(p.store_data) & wr):
                    req = max(req, 2)
            if req > dist:
                need = max(need, req - dist)
        if need > ins.nops:
            ins.nops = need
        pos += max(ins.nops, 1 if (ins.w_vm is not None or ins.w_lgkm is not None) else 0)
        pos += ins.slots()
        hist.append((ins, pos))
        if len(hist) > 64:
            hist = hist[-40:]
```

```python
import random

NREG = 16
IMGROW = lambda f: f if f < 13 else f - 13 + 20


def design(al, be, p, q):
    h0 = lambda i: i
    h1 = lambda i: 13 + i
    A = [[h0(al[i]) for i in range(13)], [h1(be[i]) for i in range(13)], [h0(p[i]) for i in range(13)], [h0(p[12 - i]) for i in range(13)]]
    B = [[h0(al[i]) for i in range(13)], [h1(be[i]) for i in range(13)], [h1(q[i]) for i in range(13)], [h1(q[12 - i]) for i in range(13)]]
    lab = [[[None, None] for _ in range(NREG)] for _ in range(4)]
    for g in range(4):
        for m in range(6):
            lab[g][m] = [A[g][2 * m], A[g][2 * m + 1]]
            lab[g][6 + m] = [B[g][2 * m], B[g][2 * m + 1]]
        lab[g][12][0] = B[g][12]
    diag = {0: 0, 1: 2, 2: 4, 3: 7, 4: 9, 5: 11}
    ins = []
    for m in range(6):
        d = diag[m] & 1
        for n in range(m + 1, 6):
            ins.append((m, 6 + n, (0, 0), (0, 1)))
            ins.append((m, 6 + n, (1, 0), (1, 1)))
        ins.append((m, 6 + m, (0, 1), (d, d)))
        ins.append((m, 12, (0, 0), (1, 0)))
    assert len(ins) == 42
    cov = set()
    for g in range(4):
        for (a, b, s0, s1) in ins:
            for (ha, hb) in (s0, s1):
                pr = tuple(sorted((lab[g][a][ha], lab[g][b][hb])))
                if pr in cov:
                    return None
                cov.add(pr)
    for g in range(4):
        pr = (lab[g][12][0],) * 2
        if pr in cov:
            return None
        cov.add(pr)
    rest = [(j, k) for j in range(26) for k in range(j, 26) if (j, k) not in cov]
    assert len(rest) == 11, len(rest)
    sq = [r for r in rest if r[0] == r[1]]
    ot = [r for r in rest if r[0] != r[1]]
    return lab, ins, sq, ot


def finish(lab, ins, sq, ot, order):
    lab = [[list(x) for x in l] for l in lab]
    sq = [sq[i] for i in order]
    for g in range(4):
        lab[g][12][1] = sq[g][0]
        lab[g][13] = list(lab[g][12])
    free = sq[4:] + ot + [None]
    spare = None
    for g in range(4):
        for h in range(2):
            pr = free[2 * g + h]
            if pr is None:
                pr = free[2 * g]
                spare = (g, h)
            lab[g][14][h] = pr[0]
            lab[g][15][h] = pr[1]
    ins = ins + [(12, 12, (0, 0), (1, 1)), (14, 15, (0, 0), (1, 1))]
    return lab, ins, spare


def conflicts(lab):
    tot = 0
    for rp in range(8):
        for gp in range(2):
            rows = set()
            for g in (2 * gp, 2 * gp + 1):
                for r in (2 * rp, 2 * rp + 1):
                    for h in range(2):
                        rows.add(IMGROW(lab[g][r][h]))
            cnt = {}
            for r in rows:
                cnt[r % 8] = cnt.get(r % 8, 0) + 1
            tot += max(cnt.values()) - 1
    return tot


def _slot(lab, ins, spare, step, g, e):
    n = 4 * step + e // 2
    a, b, s0, s1 = ins[n]
    ha, hb = (s0, s1)[e & 1]
    if n == 43 and spare == (g, e & 1):
        return None
    return (FLD(lab[g][a][ha]), FLD(lab[g][b][hb]))


FLD = lambda l: 2 * l if l < 13 else 2 * (l - 13) + 1
SWZ = lambda row: ((row >> 1) & 3) * 2
ZROW = 676


def srows(sl):
    if sl is None:
        return [(ZROW, 0), (ZROW, 0)]
    j, k = sl
    return [(26 * j + k, SWZ(26 * j + k)), (ZROW, 0) if j == k else (26 * k + j, SWZ(26 * k + j))]


def _cyc(pieces):
    cnt = {}
    for (row, f) in set((r, f >> 2) for r, f in pieces):
        b = (row & 3) * 2 + f
        cnt[b] = cnt.get(b, 0) + 1
    return max(cnt.values())


def p2plan(lab, ins, spare):
    tot = 0
    flips = {}
    for u in range(22):
        for gp in range(2):
            sl = [srows(_slot(lab, ins, spare, u >> 1, g, 4 * (u & 1) + r)) for g in (2 * gp, 2 * gp + 1) for r in range(4)]
            best = None
            fixed = 0
            for mask in range(256 if fixed else 128):
                if mask & fixed:
                    continue
                c = _cyc([s[(mask >> i) & 1] for i, s in enumerate(sl)]) + _cyc([s[1 - ((mask >> i) & 1)] for i, s in enumerate(sl)])
                if best is None or c < best[0]:
                    best = (c, mask)
                    if c == 2:
                        break
            tot += best[0] - 2
            flips[(u, gp)] = best[1]
    return tot, flips


PARAMS = [[11, 10, 0, 1, 4, 7, 6, 5, 8, 9, 2, 3, 12], [3, 2, 8, 9, 7, 4, 6, 5, 10, 11, 0, 1, 12], [8, 9, 10, 5, 0, 1, 4, 2, 11, 12, 7, 6, 3],
          [9, 12, 5, 2, 1, 10, 4, 3, 8, 7, 6, 11, 0], [6, 1, 5, 2, 0, 8, 3, 4, 7, 9]]
LAB, INS, SPARE = finish(*design(*PARAMS[:4]), PARAMS[4])
assert conflicts(LAB) == 0
_FL = p2plan(LAB, INS, SPARE)[1]


def slot(step, g, e):
    sl = _slot(LAB, INS, SPARE, step, g, e)
    if sl is not None and (_FL[(2 * step + (e >> 2), g >> 1)] >> ((g & 1) * 4 + (e & 3))) & 1:
        sl = (sl[1], sl[0])
    return sl


def p2rows(u, g, r):
    x = srows(_slot(LAB, INS, SPARE, u >> 1, g, 4 * (u & 1) + r))
    return x[::-1] if (_FL[(u, g >> 1)] >> ((g & 1) * 4 + r)) & 1 else x


_all = [tuple(sorted(slot(s, g, e))) for s in range(11) for g in range(4) for e in range(8) if slot(s, g, e) is not None]
assert len(_all) == 351 and len(set(_all)) == 351
```

```python
import sys, os, struct, argparse
sys.path.insert(0, os.path.dirname(os.path.abspath(__file__)))
from asmlib import I, WaitTag, Touch, Prog, resolve_waits, resolve_hazards
import cin16, fixalign

KNAME = 'standalone__deep_cross_xdeepfm__recsys_kernel'
LDS_TOTAL = 163840

XSLOT = 320 * 128
WR = 3 * XSLOT
WSLOT = 32 * 256
L_BIAS = WR + 3 * WSLOT
L_W2 = L_BIAS + 256
RB = L_W2 + 256
WSP = 16640
assert RB + 2560 <= LDS_TOTAL

SSZ = 677 * 64
FRS = 0
V3OFF = 0
A1 = 6144
FR = A1
FRL = FR + 33 * 1024
A3 = FRL + 2048
SG = A3
A2 = SG + SSZ
SQ = A2
V2S = SQ + SSZ
L_WCO = V2S + 832
L_FLG = L_WCO + 192
L_MX = L_FLG + 16
RC = L_FLG + 64
XB = V2S + 2496
XPP = 1056
XBSZ = 3 * XPP + 7 * 128
IMG = A3
IMGP = 160
IMGSZ = 33 * IMGP
XB2 = IMG + 8 * IMGSZ
PART = XB2 + 8 * XBSZ
XOFF = lambda f: (f & 3) * XPP + (f >> 2) * 128
assert RC + 512 <= V2S + 1664
assert XB + 8 * XBSZ <= LDS_TOTAL and XB % 16 == 0 and A2 % 64 == 0 and A3 % 64 == 0 and L_WCO % 16 == 0 and V2S % 64 == 0
assert PART + 8 * 1536 <= V2S + 832 and IMGSZ % 32 == 0 and XB2 % 16 == 0

S_WAVE = 3
S_IDX, S_TAB, S_CIN, S_WCO, S_W1, S_B1, S_W2, S_BO, S_OUT, S_DBG, S_WS = 4, 6, 8, 10, 12, 14, 16, 18, 20, 22, 24
S_MB, S_R = 26, 27
SRD_IDX, SRD_TAB, SRD_CIN, SRD_WCO, SRD_W, SRD_B1, SRD_W2, SRD_OUT, SRD_WS, SRD_DBG = 28, 32, 36, 40, 44, 48, 52, 56, 60, 64
S_T0, S_T1, S_T2, S_T3 = 68, 69, 70, 71
S_LOOP, S_IDXOFF, S_WSOFF, S_WMB, S_XM0, S_N0, S_C0, S_CW, S_BOUT, S_TW = 72, 73, 74, 75, 76, 77, 78, 79, 80, 81
S_EX = 82
S_GRP, S_RC = 84, 85
S_ST = 86
S_M26, S_MASK = 90, 92
S_SAMP, S_STG, S_STG9, S_TGT = 94, 95, 96, 97
S_M26B = 98
S_GW = 100
S_TAGT = 0
S_TAG = 1
S_PW = 101
S_PX = 77
S_PXE = 73

GELU_C0 = -2.0 * 0.7978845608028654 * 1.4426950408889634
GELU_C1 = GELU_C0 * 0.044715


def f32hex(x):
    return '0x%08x' % struct.unpack('<I', struct.pack('<f', x))[0]


def vr(a, n):
    return f'v[{a}:{a + n - 1}]' if n > 1 else f'v{a}'


def srd(a):
    return f's[{a}:{a + 3}]'


def flat(gs):
    res = []
    for c in gs:
        if isinstance(c, (tuple, list)):
            res += flat(c)
        else:
            res.append(c)
    return res


def interleave(a, b):
    out = []
    ia = ib = 0
    na, nb = len(a), len(b)
    while ia < na or ib < nb:
        if ib >= nb or (ia < na and ia * nb <= ib * na):
            out.append(a[ia]); ia += 1
        else:
            out.append(b[ib]); ib += 1
    return out


SLOTS = []
for j in range(0, 26, 2):
    for s in range(0, 14 if j <= 12 else 13):
        SLOTS.append((j, (j + s) % 26))
assert len(SLOTS) == 176
DUP_SLOT = SLOTS.index((12, 25))
assert all((d * 2521) >> 16 == d // 26 for d in range(800))
assert all((d * 10923) >> 16 == d // 6 for d in range(64))
assert all((d * 5042) >> 16 == d // 13 for d in range(170))
assert all((d * 3277) >> 16 == d // 20 for d in range(264))


DOC = '''; ---------------------------------------------------------------------------------------------
;
;       U[i,j,k] = sum_h W2[h,i,j] V3[h,k]
; ---------------------------------------------------------------------------------------------
'''


class Gen:
    def __init__(self, opt):
        self.opt = opt
        self.P = Prog()

    def seq(self, lines):
        return [self.P.add(l) for l in flat(lines)]

    def build_srd(self, dst, ptr, size):
        return [f's_mov_b32 s{dst}, s{ptr}', f's_and_b32 s{dst + 1}, s{ptr + 1}, 0xffff',
                f's_mov_b32 s{dst + 2}, {size}', f's_mov_b32 s{dst + 3}, 0x20000']

    def stamp(self, slot):
        if not self.opt.stamps:
            return []
        return [f's_memtime s[{S_ST}:{S_ST + 1}]', f's_memrealtime s[{S_ST + 2}:{S_ST + 3}]', 's_waitcnt lgkmcnt(0)',
                f'v_writelane_b32 v252, s{S_ST}, {slot}', f'v_writelane_b32 v253, s{S_ST + 2}, {slot}']

    def probe(self, name, wave=4):
        if self.opt.probe != name:
            return []
        return [f's_cmp_lg_u32 s{S_WAVE}, {wave}', 's_cbranch_scc1 L_noprobe', 's_memrealtime s[86:87]', 's_lshl_b32 s88, s2, 7', 's_add_u32 s88, s88, 0x40008', 's_waitcnt lgkmcnt(0)',
                'v_mov_b32 v253, s86', 'v_mov_b32 v254, 0', 's_mov_b64 exec, 1', f'buffer_store_dword v253, v254, {srd(SRD_WS)}, s88 offen sc1', 's_mov_b64 exec, -1', 'L_noprobe:']

    def stamp_flush(self):
        if not self.opt.stamps:
            return []
        L = self.build_srd(SRD_WS, S_WS, 0x10000000)
        L += [f's_lshl_b32 s{S_C0}, s2, 3', f's_add_u32 s{S_C0}, s{S_C0}, s{S_WAVE}',
              f's_lshl_b32 s{S_C0}, s{S_C0}, 8', f's_add_u32 s{S_C0}, s{S_C0}, 0x100000',
              'v_lshlrev_b32 v254, 3, v0', 's_mov_b32 exec_hi, 0',
              f'buffer_store_dwordx2 v[252:253], v254, {srd(SRD_WS)}, s{S_C0} offen', 's_mov_b32 exec_hi, -1']
        return L

    def stamp0(self):
        if not self.opt.stamps:
            return []
        return ['v_mov_b32 v252, 0xcdcdcdcd', 'v_mov_b32 v253, 0xcdcdcdcd',
                f'v_writelane_b32 v252, s{S_ST}, 0', f'v_writelane_b32 v253, s{S_ST + 2}, 0'] + self.stamp(15)

    def tlb2(self, t):
        L = self.build_srd(SRD_WS, S_WS, 0x10000000) + self.build_srd(SRD_OUT, S_OUT, 8192) + self.build_srd(SRD_DBG, S_DBG, 256)
        L += [f's_load_dword s{S_BOUT}, s[{S_BO}:{S_BO + 1}], 0', f'v_mov_b32 v{t}, 0', 's_mov_b64 exec, 1',
              f's_mov_b32 s{S_TW}, 0x80000',
              f'buffer_load_dword v{t + 1}, v{t}, {srd(SRD_WS)}, s{S_TW} offen',
              f'buffer_load_dword v{t + 2}, v{t}, {srd(SRD_OUT)}, 0 offen',
              's_mov_b64 exec, -1']
        return L

    def tlb1(self, vtmp, vdst):
        if not self.opt.etlb:
            return self.build_srd(SRD_TAB, S_TAB, 100000 * 128)
        return self.build_srd(SRD_TAB, S_TAB, 100000 * 128) + [
            f'v_mov_b32 v{vtmp}, s{S_BOUT}', f'buffer_load_dword v{vdst}, v{vtmp}, {srd(SRD_TAB)}, 0 offen']

    def gettag(self, lab, t, VT):
        return [f's_cmp_lg_u32 s{S_WAVE}, 0', f's_cbranch_scc1 {lab}',
                f's_memrealtime s[{S_TAGT}:{S_TAGT + 1}]'] + self.build_srd(SRD_DBG, S_DBG, 256) + [
                f's_lshl_b32 s{S_TW}, s{S_MB}, 2', f'v_mov_b32 v{t}, s{S_TW}', 's_waitcnt lgkmcnt(0)',
                f's_or_b32 s{S_TAG}, s{S_TAGT}, 1', f'v_mov_b32 v{VT}, s{S_TAG}', f'v_mov_b32 v{VT + 1}, 0',
                's_mov_b64 exec, 1',
                f'buffer_atomic_cmpswap v[{VT}:{VT + 1}], v{t}, {srd(SRD_DBG)}, 0 offen offset:128 sc0',
                's_mov_b64 exec, -1', f'{lab}:']

    def prologue(self):
        L = []
        if self.opt.stamps:
            L += [f's_memtime s[{S_ST}:{S_ST + 1}]', f's_memrealtime s[{S_ST + 2}:{S_ST + 3}]']
        L += ['s_cmp_ge_u32 s2, 256', 's_cbranch_scc1 L_end',
              's_load_dwordx16 s[4:19], s[0:1], 0',
              's_load_dwordx4 s[20:23], s[0:1], 64',
              's_load_dwordx2 s[24:25], s[0:1], 80',
              'v_lshrrev_b32 v1, 6, v0']
        if self.opt.cpf:
            L += [f's_getpc_b64 s[{S_MASK}:{S_MASK + 1}]', 'L_pc:',
                  f's_and_b32 s{S_T0}, s2, 0xf8', f'v_add_u32 v2, s{S_T0}, v1', 'v_and_b32 v3, 32, v0', 'v_lshl_add_u32 v2, v3, 3, v2', 'v_lshlrev_b32 v2, 7, v2',
                  f'v_min_u32 v2, L_end-L_pc, v2',
                  f'v_mov_b32 v3, s{S_MASK + 1}',
                  f'v_add_co_u32 v2, vcc, s{S_MASK}, v2', 'v_addc_co_u32 v3, vcc, 0, v3, vcc',
                  'global_load_dword v251, v[2:3], off']
        if self.opt.skew:
            L += ['s_memrealtime s[86:87]', 's_waitcnt lgkmcnt(0)'] + self.build_srd(SRD_WS, S_WS, 0x10000000) + [
                  'v_mov_b32 v4, s86', 's_lshl_b32 s88, s2, 7', 's_add_u32 s88, s88, 0x40000', 'v_lshlrev_b32 v6, 28, v0', 'v_lshlrev_b32 v5, 29, v1', 'v_or_b32 v6, v6, v5', 's_mov_b64 exec, 1',
                  f'buffer_store_dword v4, v6, {srd(SRD_WS)}, s88 offen sc1'] + ([f'buffer_store_dword v4, v6, {srd(SRD_WS)}, s88 offen offset:4 sc1'] if True else []) + ['s_mov_b64 exec, -1']
        L += ['v_and_b32 v0, 63, v0',
              f'v_readfirstlane_b32 s{S_WAVE}, v1',
              f's_and_b32 s{S_T0}, s2, 7', f's_lshr_b32 s{S_T1}, s2, 3',
              f's_and_b32 s{S_BOUT}, s2, 0xf8', f's_add_u32 s{S_BOUT}, s{S_BOUT}, s{S_WAVE}', f's_lshl_b32 s{S_BOUT}, s{S_BOUT}, {self.opt.etlb}',
              f's_min_u32 s{S_T2}, s{S_T0}, 1', f's_add_u32 s{S_T3}, s{S_T1}, s{S_T2}',
              f's_cmp_ge_u32 s{S_T3}, 22', 's_cbranch_scc1 L_cin',
              f's_mul_i32 s{S_T0}, s{S_T0}, 21', f's_add_u32 s{S_T0}, s{S_T0}, s{S_T3}',
              f's_mul_i32 s{S_MB}, s{S_T0}, 5042', f's_lshr_b32 s{S_MB}, s{S_MB}, 16',
              f's_mul_i32 s{S_T1}, s{S_MB}, 13', f's_sub_u32 s{S_R}, s{S_T0}, s{S_T1}']
        return self.seq(L)

    def dnn(self):
        o = self.opt
        vW = [1, 2, 3, 4]
        vX = [[5, 6], [7, 8]]
        vPa, vPc = 9, 10
        WF, XA, ACC = 16, 48, 88
        W2F = WF
        KC0, KC1, KONE = 12, 14, 248
        SUMP, GT = 32, 52
        vIdxOff, vCh, vWD, vBL = 1, [2, 3], [4, 5], 11
        ST, VO = 16, 56
        T = 100
        g, i4, q = T + 16, T + 17, T + 18
        PI = T + 8

        def acc(tn, tm):
            return ACC + (tm * 4 + tn) * 4

        def small(srd_, dst):
            return [f's_mov_b32 m0, {dst}', 's_mov_b64 exec, 0xffff',
                    I(f'buffer_load_dwordx4 v{vBL}, {srd(srd_)}, s{S_N0} offen lds', tag='BIAS'), 's_mov_b64 exec, -1']
        L = [f's_lshl_b32 s{S_N0}, s{S_R}, 8', f's_mul_i32 s{S_T3}, s{S_MB}, 320',
             f'v_lshrrev_b32 v{g}, 4, v0', f'v_lshlrev_b32 v{vBL}, 4, v0', f's_and_b32 s{S_CW}, s{S_WAVE}, 3',
             f's_cmp_lt_u32 s{S_WAVE}, 4', 's_cbranch_scc1 L_cmp']
        c0 = self.seq(L)
        self.ldat = len(self.P.static)
        PI = T

        RG, CG = S_T0, S_T1
        L = ['L_cmp:', f's_mul_i32 s{S_T2}, s{S_WAVE}, 13', f'v_min_u32 v{q}, 12, v0', f'v_add_u32 v{q}, s{S_T2}, v{q}',
             f'v_lshrrev_b32 v{i4}, 1, v{q}', f'v_mul_u32_u24 v{i4}, 96, v{i4}', f'v_lshl_add_u32 v{q}, v{q}, 2, v{i4}',
             f's_mul_i32 s{S_C0}, s{S_R}, 25', f's_min_u32 s{S_C0}, s{S_C0}, 294',
             f's_add_u32 s{S_C0}, s{S_C0}, s{S_T3}', f's_mul_i32 s{S_C0}, s{S_C0}, 104', 's_waitcnt lgkmcnt(0)']
        ct = [int(x) for x in o.ct]
        L += self.build_srd(SRD_IDX, S_IDX, 4096 * 104)
        if ct:
            L += [f'buffer_load_dwordx4 {vr(PI, 4)}, v{q}, {srd(SRD_IDX)}, s{S_C0} offen']
        if ct and max(ct) > 3:
            L += [f'buffer_load_dwordx4 {vr(PI + 4, 4)}, v{q}, {srd(SRD_IDX)}, s{S_C0} offen offset:16']
        L += self.tlb1(T + 14, T + 15)
        touch = [x for k in ct for x in (f'v_lshlrev_b32 v{PI + k}, 7, v{PI + k}', f'buffer_load_dword v{XA + k}, v{PI + k}, {srd(SRD_TAB)}, 0 offen')]
        L += self.build_srd(SRD_B1, S_B1, 3328) + small(SRD_B1, L_BIAS) + self.stamp0()
        L += [f's_and_b32 s{RG}, s{S_WAVE}, 1', f's_lshr_b32 s{CG}, s{S_WAVE}, 1',
              f'v_bfe_u32 v{i4}, v0, 2, 2', f'v_lshl_add_u32 v{q}, v{g}, 3, v{i4}', f'v_lshlrev_b32 v{q}, 8, v{q}',
              f'v_bfe_u32 v{i4}, v0, 2, 3', f's_lshl_b32 s{S_T2}, s{CG}, 2', f'v_xor_b32 v{i4}, s{S_T2}, v{i4}',
              f'v_lshl_add_u32 v{q}, v{i4}, 5, v{q}', f'v_and_b32 v{i4}, 3, v0', f'v_lshl_add_u32 v{q}, v{i4}, 3, v{q}',
              f'v_add_u32 v{vW[0]}, {WR}, v{q}']
        L += [f'v_xor_b32 v{vW[tn]}, {32 * tn}, v{vW[0]}' for tn in range(1, 4)]
        L += [f's_lshl_b32 s{S_T2}, s{CG}, 7', f's_add_u32 s{S_T2}, s{S_T2}, {L_BIAS}', f'v_lshlrev_b32 v{q}, 3, v{g}', f'v_add_u32 v{vPa}, s{S_T2}, v{q}',
              f'v_and_b32 v{q}, 15, v0', f'v_lshlrev_b32 v{q}, 7, v{q}',
              f'v_bfe_u32 v{i4}, v0, 1, 3', f'v_xor_b32 v{i4}, v{i4}, v{g}', f'v_lshl_add_u32 v{q}, v{i4}, 4, v{q}',
              f's_mul_i32 s{S_T2}, s{RG}, 20480', f'v_add_u32 v{vX[0][0]}, s{S_T2}, v{q}', f'v_xor_b32 v{vX[1][0]}, 64, v{vX[0][0]}',
              f'v_add_u32 v{vX[0][1]}, {2 * XSLOT}, v{vX[0][0]}', f'v_add_u32 v{vX[1][1]}, {2 * XSLOT}, v{vX[1][0]}',
              f's_mul_i32 s{S_T2}, s{S_WAVE}, 640', f's_add_u32 s{S_T2}, s{S_T2}, {RB}',
              f'v_and_b32 v{q}, 15, v0', f'v_lshlrev_b32 v{q}, 2, v{q}', f'v_add_u32 v{q}, s{S_T2}, v{q}',
              f'v_lshrrev_b32 v{i4}, 5, v0', f'v_lshl_add_u32 v{q}, v{i4}, 6, v{q}', f'v_bfe_u32 v{i4}, v0, 4, 1', f'v_lshl_add_u32 v{vPc}, v{i4}, 7, v{q}',
              f's_mov_b32 s{S_LOOP}, 0',
              f'v_mov_b32 v{KC0}, {f32hex(GELU_C0)}', f'v_mov_b32 v{KC0 + 1}, {f32hex(GELU_C0)}',
              f'v_mov_b32 v{KC1}, {f32hex(GELU_C1)}', f'v_mov_b32 v{KC1 + 1}, {f32hex(GELU_C1)}',
              f'v_mov_b32 v{KONE}, 1.0', f'v_mov_b32 v{KONE + 1}, 1.0']

        def pkreads(off, dst):
            return [f'ds_read_b64 {vr(dst + 4 * tn + 2, 2)}, v{vPa} offset:{off + 32 * tn}' for tn in range(4)]

        def unp(dst):
            c = []
            for tn in range(4):
                r = dst + 4 * tn
                c += [f'v_lshlrev_b32 v{r}, 16, v{r + 2}', f'v_and_b32 v{r + 1}, 0xffff0000, v{r + 2}',
                      f'v_lshlrev_b32 v{r + 2}, 16, v{r + 3}', f'v_and_b32 v{r + 3}, 0xffff0000, v{r + 3}']
            return c
        L += touch + self.stamp(6)
        L += [WaitTag(vm_tags=['BIAS'])] + pkreads(0, WF) + unp(WF)
        L += [f'v_mov_b64 {vr(ACC + r, 2)}, {vr(WF + r % 16, 2)}' for r in range(0, 160, 2)]

        def rX(n, tm):
            xs = (n // 2) % 3
            return f'ds_read_b128 {vr(XA + 4 * tm, 4)}, v{vX[n % 2][xs // 2]} offset:{(xs % 2) * XSLOT + tm * 2048}'

        def rW(n):
            return [f'ds_read_b64_tr_b16 {vr(WF + 16 * (n % 2) + 4 * tn + 2 * rd, 2)}, v{vW[tn]} offset:{(n % 3) * WSLOT + rd * 1024}'
                    for tn in range(4) for rd in range(2)]
        L += self.stamp(1) + ['s_barrier'] + self.stamp(2) + [f's_setprio {o.cprio}']
        L += rW(0)[:2] + [rX(0, 0)] + rW(0)[2:] + [rX(0, tm) for tm in range(1, 10)]
        cpre = self.seq(L)

        def mf(tn, tm, par):
            a = acc(tn, tm)
            return f'v_mfma_f32_16x16x32_bf16 {vr(a, 4)}, {vr(WF + 16 * par + 4 * tn, 4)}, {vr(XA + 4 * tm, 4)}, {vr(a, 4)}'

        def cstep(n, last6=False):
            par = n % 2
            S = []
            BG = o.bgap
            pend = []
            wr = rW(n + 1) if n < 51 else []
            extra = []
            if n == 51:
                extra = pkreads(256, W2F)
            for gi in range(40):
                tm, tn = gi // 4, gi % 4
                S.append(mf(tn if tm % 2 == 0 else 3 - tn, tm, par))
                if tn == 3 and n < 51:
                    pend.append(rX(n + 1, tm))
                if gi == BG - 1 and n < 51:
                    S += ['s_waitcnt lgkmcnt(0)', 's_barrier']
                elif (gi >= BG and (gi % 2 == 1 or not o.rsp or gi > 30)) or n == 51:
                    if pend:
                        S.append(pend.pop(0))
                    elif wr:
                        S.append(wr.pop(0))
                    elif extra:
                        S.append(extra.pop(0))
                if n == 51 and 16 <= gi < 32:
                    S.append(unp(W2F)[gi - 16])
                if gi == 36 and n < 51:
                    S.append(Touch(vr(WF + 16 * (1 - par), 16)))
                if last6 and gi == 37:
                    S += [f's_add_u32 s{S_LOOP}, s{S_LOOP}, 1', f's_cmp_lt_u32 s{S_LOOP}, 8']
            assert not pend and not wr
            return S
        body = self.seq(['L_dnn_loop0:'])
        for n6 in range(6):
            S = cstep(n6, n6 == 5)
            if n6 == 5:
                if o.stamps and o.itst:
                    i_ = S.index('s_barrier')
                    S = S[:i_] + [f's_memtime s[{S_ST}:{S_ST + 1}]', f's_memrealtime s[{S_ST + 2}:{S_ST + 3}]', f's_add_u32 s{S_C0}, s{S_LOOP}, 20', 's_waitcnt lgkmcnt(0)',
                                  f's_mov_b32 m0, s{S_C0}', f'v_writelane_b32 v252, s{S_ST}, m0', f'v_writelane_b32 v253, s{S_ST + 2}, m0'] + S[i_:]
                S += ['s_cbranch_scc1 L_dnn_loop0']
            body += self.seq(S)
        tc = c0 + cpre + body * 3 + self.seq(['L_tail:'])
        for n in range(48, 52):
            tc += self.seq(cstep(n))
        if o.burn:
            bl = [f's_movk_i32 s{S_LOOP}, {o.burn}', 'L_burn:'] + [f'v_mfma_f32_16x16x32_bf16 {vr(XA + 32 + 4 * (k % 2), 4)}, {vr(WF + 16 + 4 * (k % 4), 4)}, {vr(XA + 4 * (k // 4), 4)}, 0' for k in range(32)]
            tc += self.seq(bl + [f's_sub_u32 s{S_LOOP}, s{S_LOOP}, 1', f's_cmp_lg_u32 s{S_LOOP}, 0', 's_cbranch_scc1 L_burn'])
        tc += self.seq(['L_epi:'] + self.stamp(3))

        p2 = lambda r: vr(r, 2)
        seen = set()

        def gelu(groups):
            L = []
            for k, vals in enumerate(groups):
                tb = GT + (k % 2) * 16
                V_ = [(x, w, s_, tb + 4 * i_, tb + 4 * i_ + 2) for i_, (x, w, s_) in enumerate(vals)]
                for (x, w, s_, t, u) in V_:
                    L.append(f'v_pk_mul_f32 {p2(t)}, {p2(x)}, {p2(x)}')
                for (x, w, s_, t, u) in V_:
                    L.append(f'v_pk_fma_f32 {p2(t)}, {p2(t)}, {p2(KC1)}, {p2(KC0)}')
                for (x, w, s_, t, u) in V_:
                    L.append(f'v_pk_mul_f32 {p2(t)}, {p2(t)}, {p2(x)}')
                for (x, w, s_, t, u) in V_:
                    L += [f'v_exp_f32 v{t}, v{t}', f'v_exp_f32 v{t + 1}, v{t + 1}']
                for (x, w, s_, t, u) in V_:
                    L.append(f'v_pk_mul_f32 {p2(u)}, {p2(x)}, {p2(w)}')
                for (x, w, s_, t, u) in V_:
                    L.append(f'v_pk_add_f32 {p2(t)}, {p2(t)}, {p2(KONE)}')
                for (x, w, s_, t, u) in V_:
                    L += [f'v_rcp_f32 v{t}, v{t}', f'v_rcp_f32 v{t + 1}, v{t + 1}']
                for (x, w, s_, t, u) in V_:
                    if s_ in seen:
                        L.append(f'v_pk_fma_f32 {p2(s_)}, {p2(t)}, {p2(u)}, {p2(s_)}')
                    else:
                        L.append(f'v_pk_mul_f32 {p2(s_)}, {p2(t)}, {p2(u)}')
                        seen.add(s_)
            return L
        el = lambda tn, tm, d: (acc(tn, tm) + 2 * d, W2F + 4 * tn + 2 * d, SUMP + 2 * tm)
        L = gelu([[el(tn, 2 * tp + a_, d) for d in range(2) for a_ in range(2)] for tp in range(5) for tn in range(4)])
        if o.walk:
            np_ = (800 + o.walk - 1) // o.walk
            L = [x for k in range(np_) for x in L[o.walk * k:o.walk * (k + 1)] + [f'L_wk{k}:', f's_cbranch_execz L_wk{k + 1}' if k + 1 < np_ else 's_cbranch_execz L_end']]
        sm = lambda tm: SUMP + 2 * tm
        L += [f'v_add_f32 v{sm(tm)}, v{sm(tm)}, v{sm(tm) + 1}' for tm in range(10)]
        L += [f'v_permlane32_swap_b32 v{sm(tm)}, v{sm(tm + 1)}' for tm in range(0, 10, 2)]
        L += [f'v_add_f32 v{sm(tm)}, v{sm(tm)}, v{sm(tm + 1)}' for tm in (8, 0, 2, 4, 6)]
        L += [f'v_mov_b32 v{sm(9)}, v{sm(8)}', f'v_permlane16_swap_b32 v{sm(0)}, v{sm(2)}', f'v_permlane16_swap_b32 v{sm(4)}, v{sm(6)}',
              f'v_permlane16_swap_b32 v{sm(8)}, v{sm(9)}',
              f'v_add_f32 v{sm(0)}, v{sm(0)}, v{sm(2)}', f'v_add_f32 v{sm(4)}, v{sm(4)}, v{sm(6)}', f'v_add_f32 v{sm(8)}, v{sm(8)}, v{sm(9)}',
              f'ds_write_b32 v{vPc}, v{sm(0)}', f'ds_write_b32 v{vPc}, v{sm(4)} offset:256',
              's_mov_b32 exec_lo, 0xffff', 's_mov_b32 exec_hi, 0xffff', f'ds_write_b32 v{vPc}, v{sm(8)} offset:512', 's_mov_b64 exec, -1']
        L += ['s_waitcnt lgkmcnt(0)'] + self.stamp(4) + self.stamp_flush() + ['s_barrier', 's_endpgm']
        tc += self.seq(L)

        def wstage(slot):
            c = []
            for u in range(2):
                c += [f's_add_u32 m0, s{S_WMB}, {WR + slot * WSLOT + u * 1024}',
                      I(f'buffer_load_dwordx4 v{vWD[u]}, {srd(SRD_W)}, s{S_WSOFF} offen lds', tag='W')]
            return c + [f's_add_u32 s{S_WSOFF}, s{S_WSOFF}, {32 * 3328}']

        Q, TM, BP = 16, 56, [12, 13]
        TI, vWT = 70, 76
        SP = [36, 37, 38, 39, 40, 41, 42, 43, 48, 49]
        SI = [94, 95, 96, 97, 98, 99, 100, 101, 82, 83]

        def xaddr(f, pcs):
            c = []
            for odd in range(2):
                p_ = f + 26 * odd
                for pc in pcs:
                    c.append(f'v_add_u32_dpp v{TM + pc}, v{Q + 4 * pc + p_ % 4}, v{vCh[pc & 1]} row_newbcast:{p_ >> 2} row_mask:0xf bank_mask:{(3, 12)[odd]:#x}')
            return c

        def xld(pc, slot, tag='X'):
            return [f's_add_u32 m0, s{SP[pc]}, {slot * XSLOT}',
                    I(f'buffer_load_dwordx4 v{TM + pc}, {srd(SRD_TAB)}, 0 offen lds', tag=tag)]
        idxl = [f'buffer_load_dwordx4 {vr(Q + 4 * pc, 4)}, v{BP[0]}, {srd(SRD_IDX)}, s{SI[pc]} offen' for pc in range(10)]
        LO, HI = range(5), range(5, 10)
        NR = (22 + o.tf - 1) // o.tf
        lw = S_CW
        self.mk0 = len(self.P.static)
        L = [f's_mul_i32 s{S_T0}, s{S_R}, {o.rot}', f's_lshr_b32 s{S_T0}, s{S_T0}, 4',
             f's_mul_i32 s{S_T1}, s{lw}, 10', f's_mul_i32 s{S_C0}, s{S_T3}, 104',
             f'v_mul_u32_u24 v{q}, 48, v{g}', f'v_sub_u32 v{BP[0]}, v{vBL}, v{q}']
        ptab = lambda pc: [f's_add_u32 s{S_T2}, s{S_T0}, {pc}', f's_sub_u32 s{S_TW}, s{S_T2}, 10', f's_min_u32 s{S_T2}, s{S_T2}, s{S_TW}', f's_add_u32 s{S_T2}, s{S_T2}, s{S_T1}',
                           f's_lshl_b32 s{SP[pc]}, s{S_T2}, 10', f's_mul_i32 s{S_T2}, s{S_T2}, 832', f's_add_u32 s{SI[pc]}, s{S_T2}, s{S_C0}']
        for pc in range(o.i0):
            L += ptab(pc)
        L += [f's_and_b32 s{S_T2}, s{lw}, 1', f's_lshl_b32 s{S_T2}, s{S_T2}, 3',
              f'v_lshlrev_b32 v{i4}, 1, v{g}', f'v_or_b32 v{i4}, s{S_T2}, v{i4}', f'v_xor_b32 v{i4}, v{i4}, v0', f'v_and_b32 v{i4}, 15, v{i4}',
              f'v_mul_u32_u24 v{vWD[0]}, 3328, v{g}', f'v_lshl_add_u32 v{vWD[0]}, v{i4}, 4, v{vWD[0]}', f'v_add_u32 v{vWD[1]}, {4 * 3328}, v{vWD[0]}',
              f's_mul_i32 s{S_WSOFF}, s{lw}, {8 * 3328}', f's_add_u32 s{S_WSOFF}, s{S_WSOFF}, s{S_N0}', f's_lshl_b32 s{S_WMB}, s{lw}, 11',
              's_waitcnt lgkmcnt(0)']
        L += self.build_srd(SRD_IDX, S_IDX, 4096 * 104) + idxl[:o.i0] + self.tlb1(T + 14, T + 15) + self.build_srd(SRD_W, S_W1, 1664 * 3328)
        for sl in range(o.w0):
            L += wstage(sl)
        L += self.stamp0()
        for pc in range(o.i0, 10):
            L += ptab(pc) + ([idxl[pc]] if pc < o.i1 else [])
        L += [f's_and_b32 s{S_T2}, s{S_T0}, 1', f's_lshl_b32 s{S_T2}, s{S_T2}, 6',
              f'v_and_b32 v{q}, 7, v0', f'v_xor_b32 v{q}, v{q}, v{g}', f'v_lshlrev_b32 v{q}, 4, v{q}', f'v_xor_b32 v{vCh[0]}, s{S_T2}, v{q}', f'v_xor_b32 v{vCh[1]}, 64, v{vCh[0]}',
              f's_mov_b32 s{S_LOOP}, 0',
              f's_mul_i32 s{S_T2}, s{lw}, 13', f's_add_u32 s{S_T2}, s{S_T2}, s{S_R}', f's_min_u32 s{S_T2}, s{S_T2}, 39', f's_lshl_b32 s{S_T2}, s{S_T2}, 3',
              f's_add_u32 s{S_T2}, s{S_T2}, s{S_T3}', f's_mul_i32 s{S_GRP}, s{S_T2}, 104',
              f'v_lshrrev_b32 v{q}, {o.tf.bit_length() - 1}, v0', f'v_min_u32 v{q}, 7, v{q}', f'v_mul_u32_u24 v{q}, 104, v{q}',
              f'v_and_b32 v{i4}, {o.tf - 1}, v0', f'v_lshl_add_u32 v7, v{i4}, 2, v{q}',
              f's_lshl_b32 s{S_T2}, s{S_MB}, 2', f's_add_u32 s{S_T2}, s{S_T2}, s{lw}', f's_add_u32 s{S_T2}, s{S_T2}, {o.tw0 * 32}', f's_mul_i32 s{S_RC}, s{S_T2}, 3328',
              f's_add_u32 s{S_RC}, s{S_RC}, s{S_N0}', f's_mov_b32 s{S_T2}, {52 * 3328}',
              f'v_lshrrev_b32 v{q}, 1, v0', f'v_mul_lo_u32 v{q}, s{S_T2}, v{q}', f'v_and_b32 v{i4}, 1, v0', f'v_lshl_add_u32 v{vWT}, v{i4}, 7, v{q}']
        L += self.build_srd(SRD_W2, S_W2, 3328)
        L += [f's_mul_i32 s{S_T2}, s{lw}, {o.lpf * 128}', f's_add_u32 s{S_T2}, s{S_T2}, L_tail-L_pc', f'v_lshlrev_b32 v8, 7, v0', f'v_add_u32 v8, s{S_T2}, v8',
              f'v_mov_b32 v9, s{S_MASK + 1}', f'v_add_co_u32 v8, vcc, s{S_MASK}, v8', 'v_addc_co_u32 v9, vcc, 0, v9, vcc']
        sh = lambda pc, c_: f'v_lshlrev_b32 v{Q + 4 * pc + c_}, 7, v{Q + 4 * pc + c_}'
        for pc in range(10):
            L += [sh(pc, 0), sh(pc, 2), sh(pc, 1), sh(pc, 3)] + xaddr(0, [pc]) + xld(pc, 0, 'X0')
            if pc == o.i0 - 1:
                L += idxl[o.i1:] + self.stamp(6)
                for sl in range(o.w0, 2):
                    L += wstage(sl)
        L += self.stamp(7)
        x1 = [x for pc in range(10) for x in xaddr(1, [pc]) + xld(pc, 1)]
        L += x1[:4 * o.x1n] + [WaitTag(vm_tags=['X0'])] + self.stamp(1) + ['s_barrier'] + self.probe('s0') + x1[4 * o.x1n:4 * o.x1m] + ['s_barrier'] + x1[4 * o.x1m:]
        L += xaddr(2, range(10)) + wstage(2)
        tex = (1 << (8 * o.tf)) - 1
        texec = [f's_mov_b32 exec_lo, {tex & 0xffffffff:#x}', f's_mov_b32 exec_hi, {tex >> 32:#x}']
        if o.tch:
            L += [f'buffer_load_dword v{TI + r}, v7, {srd(SRD_IDX)}, s{S_GRP} offen offset:{4 * min(4 + o.tf * r, 26 - o.tf)}' for r in range(NR)]
        for pc in LO:
            L += xld(pc, 2)
        lpre = self.seq(L + [f's_setprio {o.lprio}', 's_branch L_ld_in'])
        del self.P.static[self.mk0:]
        self.P.static[self.ldat:self.ldat] = lpre
        self.mk0 = len(self.P.static)

        def lstep(n, inloop):
            S = ['s_barrier'] + (['L_ld_in:'] if inloop and n == 0 else [])
            if inloop:
                f = (n + 5) // 2
                f2 = (n + 6) // 2
                nxt = HI if n % 2 else LO
                xa = xaddr(f2, nxt)
                dm = wstage(n % 3) + [x for pc in (LO if n % 2 else HI) for x in xld(pc, f % 3)]
                for x in dm:
                    if isinstance(x, I):
                        S.append(xa.pop(0))
                    S.append(x)
                S += xa
                if n >= 22:
                    S += [f'v_mov_b32_dpp v{Q + 4 * pc + c_}, v{Q + 4 * pc + c_} row_shl:3 row_mask:0xf bank_mask:0xf' for pc in nxt for c_ in range(4)]
                if n == 23:
                    S += [f's_add_u32 s{S_LOOP}, s{S_LOOP}, 1', f's_cmp_lt_u32 s{S_LOOP}, 2']
                S += [WaitTag(allbut=('W', 2))]
            elif n == 48:
                S += wstage(0) + small(SRD_W2, L_W2) + self.tlb2(T)
                S += ['s_mov_b64 exec, 1', f'buffer_load_dword v250, v{T}, {srd(SRD_DBG)}, 0 offen offset:240 sc1', 's_mov_b64 exec, -1', WaitTag(allbut=('W', 2))]
            elif n == 49:
                S += [WaitTag(vm0=True)]
            return S
        body = self.seq(['L_dnn_loop1:'])
        per = 2 * o.tf
        for n in range(24):
            if n == 15 and o.lpf:
                body += self.seq([f's_cmp_lg_u32 s{S_LOOP}, 1', 's_cbranch_scc1 L_nolpf'])
                self.seq([f's_mov_b64 exec, {(1 << o.lpf) - 1}', 'global_load_dword v10, v[8:9], off', 's_mov_b64 exec, -1'])
                body += self.seq(['L_nolpf:'])
            S = lstep(n, True)
            if o.tch and n % per == o.toff:
                t_ = [f'v_lshlrev_b32 v{T + 1}, 7, v{TI}'] + texec + [f'buffer_load_dword v{T + 2}, v{T + 1}, {srd(SRD_TAB)}, 0 offen', 's_mov_b64 exec, -1']
                t_ += [f'v_mov_b32 v{TI + r}, v{TI + r + 1}' for r in range(NR - 1)] + [f'v_mov_b32 v{TI + NR - 1}, 0xffffff']
                S = S[:-1] + t_ + S[-1:]
            if o.tch and n % 8 == 3:
                S = S[:-1] + ['s_mov_b64 exec, 0x3ff', f'buffer_load_dword v{T + 3}, v{vWT}, {srd(SRD_W)}, s{S_RC} offen', 's_mov_b64 exec, -1',
                              f's_add_u32 s{S_RC}, s{S_RC}, {260 * 3328}'] + S[-1:]
            body += self.seq(S + (['s_cbranch_scc1 L_dnn_loop1'] if n == 23 else []))
        tl = c0 + lpre + body * 2 + self.seq(['s_branch L_ld_tail'])
        self.ldblk = self.P.static[self.mk0:]
        del self.P.static[self.mk0:]
        tl += self.seq(['L_ld_tail:'])
        for n in range(48, 51):
            tl += self.seq(lstep(n, False))
        tl += self.seq(self.probe('s50'))
        if o.walk:
            tl += self.seq([f's_cmp_eq_u32 s{lw}, 0', 's_cbranch_scc1 L_wkd', 's_mov_b64 exec, 0', f's_cmp_eq_u32 s{lw}, 1', 's_cbranch_scc1 L_wk0',
                            f's_cmp_eq_u32 s{lw}, 2', f's_cbranch_scc1 L_wk{np_ // 3}', f's_branch L_wk{2 * np_ // 3}', 'L_wkd:'])
        A = 64
        L = [f's_cmp_lg_u32 s{S_WAVE}, 4', 's_cbranch_scc1 L_end',
             f'v_lshlrev_b32 v3, 4, v0', f'v_lshlrev_b32 v4, 2, v0', f'v_add_u32 v1, {RB}, v3', f'v_add_u32 v2, {RB + 1024}, v4', f'v_add_u32 v4, 1024, v4',
             'v_mov_b32 v5, 32', f'v_mov_b32 v7, s{S_MB}',
             f's_mul_i32 s{S_T0}, s{S_MB}, 1280', f's_mul_i32 s{S_T1}, s{S_R}, {WSP}', f's_add_u32 s{S_T1}, s{S_T1}, s{S_T0}', 's_setprio 3']
        L += self.stamp_flush() + ['s_barrier'] + self.probe('dend')
        L += [f'ds_read_b128 {vr(A, 4)}, v1', f'ds_read_b128 {vr(A + 8, 4)}, v1 offset:1280', f'ds_read2st64_b32 {vr(A + 4, 2)}, v2 offset0:0 offset1:5',
              f'v_pk_add_f32 {p2(A)}, {p2(A)}, {p2(A + 8)}', f'v_pk_add_f32 {p2(A + 2)}, {p2(A + 2)}, {p2(A + 10)}', f'v_add_f32 v{A + 4}, v{A + 4}, v{A + 5}']
        L += (self.stamp(16) if o.diag else [])
        L += [f'buffer_store_dwordx4 {vr(A, 4)}, v3, {srd(SRD_WS)}, s{S_T1} offen sc1',
              f'buffer_store_dword v{A + 4}, v4, {srd(SRD_WS)}, s{S_T1} offen sc1', 's_mov_b64 exec, 1']
        tl += self.seq(L)

        L = ['L_pub:', 'v_lshlrev_b32 v6, 4, v7', 'v_cmp_eq_u32 vcc, 12, v7', 'v_mov_b32 v8, 436', 'v_mov_b32 v9, 434', 'v_cndmask_b32 v8, v8, v9, vcc',
             'v_sub_u32 v8, v8, v5', 's_waitcnt vmcnt(0)',
             f'buffer_atomic_add v5, v6, {srd(SRD_DBG)}, 0 offen sc0',
             's_waitcnt vmcnt(0) lgkmcnt(0)'] + (self.stamp(18) if o.diag else []) + [
             f'v_cmp_eq_u32 s[{S_EX}:{S_EX + 1}], v5, v8', 's_mov_b64 exec, -1', f's_lshl_b32 s{S_BOUT}, s{S_BOUT}, 16',
             'L_fin:', f's_cmp_eq_u32 s{S_EX}, 0', 's_cbranch_scc1 L_done',
             f's_ff1_i32_b32 s{S_T2}, s{S_EX}', f's_bitset0_b32 s{S_EX}, s{S_T2}', f'v_readlane_b32 s{S_T3}, v7, s{S_T2}',
             f's_mul_i32 s{S_T0}, s{S_T3}, 1280', f's_mul_i32 s{S_T3}, s{S_T3}, 640']
        for qq in range(14):
            L += [f'buffer_load_dwordx4 {vr(A + 8 * qq, 4)}, v3, {srd(SRD_WS)}, s{S_T0} offen sc1',
                  f'buffer_load_dword v{A + 8 * qq + 4}, v4, {srd(SRD_WS)}, s{S_T0} offen sc1', f's_add_u32 s{S_T0}, s{S_T0}, {WSP}']
        L += ['v_lshrrev_b32 v1, 1, v3', 'v_lshrrev_b32 v2, 1, v4']
        for qq in range(1, 14):
            L += [f'v_pk_add_f32 {p2(A)}, {p2(A)}, {p2(A + 8 * qq)}', f'v_pk_add_f32 {p2(A + 2)}, {p2(A + 2)}, {p2(A + 8 * qq + 2)}',
                  f'v_add_f32 v{A + 4}, v{A + 4}, v{A + 8 * qq + 4}']
        L += [f'v_add_f32 v{A + k}, s{S_BOUT}, v{A + k}' for k in range(5)]
        L += [f'v_cvt_pk_bf16_f32 v10, v{A}, v{A + 1}', f'v_cvt_pk_bf16_f32 v11, v{A + 2}, v{A + 3}', f'v_cvt_pk_bf16_f32 v12, v{A + 4}, v{A + 4}',
              f'buffer_store_dwordx2 v[10:11], v1, {srd(SRD_OUT)}, s{S_T3} offen', f'buffer_store_short v12, v2, {srd(SRD_OUT)}, s{S_T3} offen']
        if o.skew:
            L += [f's_cmp_lg_u32 s{S_EX}, 0', 's_cbranch_scc1 L_fin', 'v_lshlrev_b32 v20, 7, v0', 's_mov_b32 s88, 0x40000']
            for k in range(4):
                L += [f'buffer_load_dwordx3 v[{32 + 4 * k}:{34 + 4 * k}], v20, {srd(SRD_WS)}, s88 offen sc1', 's_add_u32 s88, s88, 8192']
            L += ['s_waitcnt vmcnt(0)']
            for k in range(4):
                L += [f'v_sub_u32 v28, v{34 + 4 * k}, v{32 + 4 * k}', 'v_cmp_gt_u32 vcc, 10000, v28', f'v_cndmask_b32 v{33 + 4 * k}, v{32 + 4 * k}, v{34 + 4 * k}, vcc']
            L += ['v_max_u32 v26, v33, v37', 'v_max3_u32 v26, v26, v41, v45', 'v_min_u32 v27, v32, v36', 'v_min3_u32 v27, v27, v40, v44', 'v_not_b32 v27, v27']
            if o.probe == 'span':
                L += ['s_memrealtime s[86:87]', 's_waitcnt lgkmcnt(0)', 'v_mov_b32 v26, s86']
            for (ctl, rm) in (('row_shr:1', '0xf'), ('row_shr:2', '0xf'), ('row_shr:4', '0xf'), ('row_shr:8', '0xf'), ('row_bcast:15', '0xa'), ('row_bcast:31', '0xc')):
                L += [f'v_max_u32_dpp v{r}, v{r}, v{r} {ctl} row_mask:{rm} bank_mask:0xf' for r in (26, 27)]
            L += ['v_not_b32 v27, v27', 'v_sub_u32 v22, v26, v27', 's_memrealtime s[86:87]', 'v_readlane_b32 s88, v22, 63', 's_waitcnt lgkmcnt(0)',
                  's_min_u32 s88, s88, 5000', f's_mul_i32 s88, s88, {o.skew - 1}', 's_add_u32 s88, s88, s86',
                  'L_spin:', 's_memrealtime s[86:87]', 's_waitcnt lgkmcnt(0)', 's_sub_u32 s89, s88, s86', 's_cmp_gt_i32 s89, 0', 's_cbranch_scc1 L_spin']
        L += self.stamp(5) + self.stamp_flush() + ['s_branch L_fin', 'L_done:', 's_endpgm']
        self.pub = self.seq(L)
        return [tc, tl + self.pub]

    def pubsrd(self):
        return self.build_srd(SRD_WS, S_WS, 0x10000000) + self.build_srd(SRD_OUT, S_OUT, 8192) + self.build_srd(SRD_DBG, S_DBG, 256)

    def tables(self):
        OOB = 0x100000
        G = [[] for _ in range(11)]
        for l in range(64):
            half, i32, g, r, c = l >> 5, l & 31, l >> 4, (l >> 2) & 3, l & 3
            lin0 = g * 128 + r * XPP + c * 8
            G[0] += [lin0, lin0 + 512 if g < 3 else XOFF(27) + c * 8, (l >> 3) * 16, 0x3f803f80 if l < 32 else 0]
            G[1] += [(l & 7) * 16, 0xeeee if l & 1 else 0x4444, half * XPP + i32 * 4, IMG + half * 20 * IMGP + i32 * 4]
            tr = [IMG + cin16.IMGROW(cin16.LAB[g][2 * rp + (r >> 1)][r & 1]) * IMGP + c * 8 for rp in range(8)]
            G[2] += tr[:4]
            G[3] += tr[4:]
            row, col = 8 * half + r, (g & 1) * 32 + c * 8
            G[4] += [V3OFF + row * 64 + col, A1 + row * 1352 + col, A1 + min(row + 16, 25) * 1352 + col, A1 + min(row + 20, 25) * 1352 + col]
            t, gd, rr = (i32 >> 2) & 1, i32 >> 3, i32 & 3
            ig = 16 * t + 4 * rr + gd
            iq = 4 * rr + gd if t == 0 else 16 + ((4 * rr + gd + 4) & 15)
            pm = []
            for q in range(8):
                k0 = 16 * (q >> 2) + 8 * half + 2 * (q & 3)
                pm.append((0xffff if iq == k0 else 0xffff0000 if iq == k0 + 1 else 0) if iq < 26 else 0)
            G[5] += pm[:4]
            G[6] += pm[4:]
            ga = A2 + 52 * ig if ig < 26 else OOB
            rowp = ((l & 12) + 2 * (l & 1)) * 16 + (OOB if l & 2 else 0)
            G[7] += [ga + half * 8 * 1352, ga + half * OOB, rowp + half * 256 + (g & 1) * 8, rowp + g * 256]
            G[8] += [SG + i32 * 64 if i32 < 26 else V2S if i32 == 26 else OOB, 64 if i32 == 26 else 3328, (i32 >> 1) + 2 * half,
                     SQ + i32 * 64 + ((((i32 >> 1) & 3) ^ (2 * half)) << 4)]
            v2 = []
            for hf in range(2):
                j = 4 * g + 16 * hf + r
                v2.append(V2S + (j & 1) * 1664 + (j >> 1) * 64 + ((c ^ (((13 + j) & 3) * 2)) * 8) if j < 26 else SG + 676 * 64 + c * 8)
            wo = [L_WCO + 2 * (16 * tl_ + 4 * c + r) if 16 * tl_ + 4 * c + r < 26 else OOB for tl_ in range(2)]
            G[9] += v2 + wo
            G[10] += [L_WCO + 104 + 16 * half, L_WCO + 52 + 2 * l, V3OFF + 52 + 64 * l, SG + 676 * 64 + (l & 15) * 4]
        U = []
        for w in range(8):
            for e in range(16):
                for u in (w, w + 8, w + 16):
                    U += [SG + row * 64 + f * 8 for row, f in cin16.p2rows(u, e >> 2, e & 3)] if u < 22 else [0, 0]
        return [x for n in (4, 10, 2, 3, 0, 5, 6, 7, 8, 9, 1) for x in G[n]] + [0] * 256 + U + [0] * 256

    def cin(self):
        o = self.opt
        cw = S_CW
        vFa, vLin0, vLin1, vXi0, vXi1, vC16, vIDX, vXa, vIw, vPWL, vPXL, PXR, PFR = 1, 4, 5, 6, 7, 8, 9, 10, 11, 12, 13, 3, 14
        XI, vTR = 16, 20
        XR, P, Z, WF, D = 32, 60, 116, 164, 184
        vStg, vFR, vFw = vFa, 2, 59
        t3, t4, t5 = 29, 30, 31
        AV = [28, 58]
        PM = 216
        vA3, vBs0, vBs1a, vBs1b, vGa, vGb, vT3, vT3d = range(224, 232)
        G8, vV2r, vV2q, vWo, AD = 232, 236, 237, 238, 240
        WA = list(range(244, 250))
        vS, vMx = 250, 111
        UA, UX = 152, 158
        AFR = 112
        BALL, DALL = 60, 120
        S_F1, S_F2, S_G, S_LO, S_HI, S_CM, S_U0, S_U1, S_U2 = 74, 75, 95, 96, 97, 90, 98, 99, 100
        S_CG, S_IV = 0, 1
        OOB = 0x100000
        TA_, TB_, TC_ = SG + 35840, SQ + 35840, FRS + 2048
        GREG = [224, 240, 20, 24, 4, 216, 220, 228, 232, 236, 8]
        DPPS = (('row_shr:1', '0xf'), ('row_shr:2', '0xf'), ('row_shr:4', '0xf'), ('row_shr:8', '0xf'),
                ('row_bcast:15', '0xa'), ('row_bcast:31', '0xc'))

        K_W7, K_IMG, K_W2, K_W1, K_W12, K_H8, K_T3 = 44, 45, 46, 47, 92 - 10, 92 - 9, 101
        L = ['L_cin:', f'v_lshlrev_b32 v{vStg}, 4, v0', f's_and_b32 s{cw}, s{S_WAVE}, 3', f's_lshr_b32 s{S_GRP}, s{S_WAVE}, 2', f's_lshl_b32 s{S_STG}, s{cw}, 10',
             f's_mul_i32 s{S_MB}, s{S_T0}, 11', f's_add_u32 s{S_MB}, s{S_MB}, s{S_T1}', f's_sub_u32 s{S_MB}, s{S_MB}, 22',
             f's_cmp_eq_u32 s{S_MB}, 86', 's_cbranch_scc1 L_end', f's_cmp_eq_u32 s{S_GRP}, 0', 's_cbranch_scc1 L_sc']
        c0 = self.seq(L)
        L = ['s_setprio 2', f'v_add_u32 v2, L_tables-L_pc, v{vStg}', f'v_mov_b32 v3, s{S_MASK + 1}',
             f'v_add_co_u32 v2, vcc, s{S_MASK}, v2', 'v_addc_co_u32 v3, vcc, 0, v3, vcc',
             f'global_load_dwordx4 {vr(GREG[0], 4)}, v[2:3], off', f'global_load_dwordx4 {vr(GREG[1], 4)}, v[2:3], off offset:1024',
             f'v_add_co_u32 v2, vcc, s{S_STG}, v2', 'v_addc_co_u32 v3, vcc, 0, v3, vcc',
             f's_cmp_lt_u32 s{cw}, 2', f's_mov_b32 s{S_T2}, {TB_ - 2048}', f's_cselect_b32 s{S_T2}, {TA_ + 4096}, s{S_T2}']
        for m, dst in enumerate((TA_, None, TB_ + 2048, TC_)):
            L += [f's_add_u32 m0, s{S_STG}, {dst}' if dst is not None else f's_add_u32 m0, s{S_STG}, s{S_T2}', I('global_load_lds_dwordx4 v[2:3], off', tag='TAB')]
            if m < 3:
                L += ['v_add_co_u32 v2, vcc, 0x1000, v2', 'v_addc_co_u32 v3, vcc, 0, v3, vcc']
        g1t = self.seq(L)
        L = ['L_sc:', f's_mul_i32 s{S_RC}, s{S_GRP}, 20', f's_add_u32 s{S_RC}, s{S_RC}, s{S_WAVE}',
             f's_mul_i32 s{S_SAMP}, s{S_MB}, 48', f's_add_u32 s{S_SAMP}, s{S_SAMP}, s{S_RC}', f's_mul_i32 s{S_SAMP}, s{S_SAMP}, 104',
             f'v_lshrrev_b32 v{vXi0}, 3, v0', f'v_lshlrev_b32 v{vXi0}, 4, v{vXi0}', f'v_and_b32 v{vC16}, 0x70, v{vStg}',
             f's_mul_i32 s{S_XM0}, s{S_WAVE}, {XBSZ}', f's_add_u32 s{S_XM0}, s{S_XM0}, {XB}', f's_cmp_eq_u32 s{S_GRP}, 0', 's_cbranch_scc1 L_g0']
        csc = self.seq(L)
        SC2 = [f's_lshl_b32 s{S_RC}, s{S_RC}, 2', f's_add_u32 s{S_RC}, s{S_RC}, {RC}',
               f's_mul_i32 s{S_LOOP}, s{S_GRP}, 3', f's_sub_u32 s{S_LOOP}, 4, s{S_LOOP}', (f's_cmp_eq_u32 s{S_MB}, 85', f's_cselect_b32 s{S_LOOP}, s{S_LOOP}, 6'),
               f's_lshl_b32 s{K_W7}, s{S_WAVE}, 7', f's_mul_i32 s{K_IMG}, s{S_WAVE}, {IMGSZ}', f's_lshl_b32 s{K_W2}, s{S_WAVE}, 2', f's_lshl_b32 s{K_W1}, s{S_WAVE}, 1',
               f's_lshl_b32 s{K_W12}, s{S_WAVE}, 12',
               f's_and_b32 s{S_U0}, s{S_WAVE}, 1', f's_lshr_b32 s{S_U1}, s{S_WAVE}, 1',
               f's_mul_i32 s{S_T0}, s{S_U1}, 3072', f's_lshl_b32 s{K_H8}, s{S_U0}, 3', f's_add_u32 s{S_T0}, s{S_T0}, s{K_H8}', f'v_add_u32 v{vFw}, s{S_T0}, v{vStg}',
               f's_lshl_b32 s{S_T1}, s{S_U1}, 3', f's_lshr_b32 s{S_T1}, 0x05030200, s{S_T1}', f's_and_b32 s{S_T1}, s{S_T1}, 0xff',
               f's_lshl_b32 s{S_T1}, s{S_T1}, 9', f's_lshl_b32 s{S_T2}, s{S_U0}, 2', f's_add_u32 s{K_T3}, s{S_T1}, s{S_T2}',
               f's_mov_b32 s{S_U1}, 0x05040100', f's_mov_b32 s{S_U2}, 0x07060302',
               f'v_mov_b32 v{vFR}, {L_FLG}', 'v_mov_b32 v109, 0', 'v_mov_b32 v108, 0'] + [f'v_mov_b64 {vr(r, 2)}, 0' for r in range(XR, XR + 26, 2)]
        XJ = 104
        assert not (o.pfx or o.pfw)

        def pfw():
            return [f'buffer_load_dword v{PFR}, v{vPWL}, {srd(SRD_W)}, s{S_PW} offen',
                    f's_add_u32 s{S_PW}, s{S_PW}, {o.pfne * 688 * 128}']

        def pfx_a():
            return [f'buffer_load_dword v{PXR}, v{vPXL}, {srd(SRD_IDX)}, s{S_PX} offen',
                    f's_cmp_eq_u32 s{S_PX}, s{S_PXE}', f's_cselect_b32 s{S_PXE}, 0x7000000, s{S_PXE}',
                    f's_cselect_b32 s{S_PX}, 0x7000000, s{S_PX}',
                    f's_add_u32 s{S_PX}, s{S_PX}, 24', f's_min_u32 s{S_PX}, s{S_PX}, s{S_PXE}']

        def pfx_b():
            return [f'v_lshlrev_b32 v{PXR}, 7, v{PXR}', f'buffer_load_dword v{PFR + 1}, v{PXR}, {srd(SRD_TAB)}, 0 offen']

        def xidx(XI=XI):
            return [f'buffer_load_dwordx4 {vr(XI, 4)}, v{vXi0}, {srd(SRD_IDX)}, s{S_SAMP} offen', f's_add_u32 s{S_SAMP}, s{S_SAMP}, {4 * 104}']

        def xdma(XI=XI, off=0, tag='XB'):
            c = [f'v_lshl_add_u32 v{XI + u}, v{XI + u}, 7, v{vC16}' for u in range(4)]
            for u in range(4):
                c += [f's_add_u32 m0, s{S_XM0}, {u * XPP + off}']
                if u % 2 == 0:
                    c.append(f's_mov_b32 exec_hi, {0xffffff if u == 0 else 0xffff:#x}')
                c.append(I(f'buffer_load_dwordx4 v{XI + u}, {srd(SRD_TAB)}, 0 offen lds', tag=tag))
            return c + ['s_mov_b32 exec_hi, -1']

        def stage(dst, goff, tag):
            st = []
            for m in range(9):
                st.append((f's_add_u32 m0, s{S_STG}, {dst + m * 4096}', f's_add_u32 s{S_TW}, s{S_STG}, {goff + m * 4096}',
                           I(f'buffer_load_dwordx4 v{vStg}, {srd(SRD_CIN)}, s{S_TW} offen lds', tag=tag)))
            return st

        def pubmax(regs_offs):
            c = []
            for (ctl, rm) in DPPS:
                for r, _ in regs_offs:
                    c.append(f'v_max_u32_dpp v{r}, v{r}, v{r} {ctl} row_mask:{rm} bank_mask:0xf')
            c += ['s_mov_b32 exec_lo, 0', 's_mov_b32 exec_hi, 0x80000000']
            c += [f'ds_max_u32 v{vFR}, v{r} offset:{16 + 4 * k}' for r, k in regs_offs]
            return c + ['s_mov_b64 exec, -1']

        def mxop(src, n, mx, mn, first):
            c = []
            for r in range(0, n, 2):
                z = first and r == 0
                c += [f'v_pk_maximum3_f16 v{mx}, v{src + r}, v{src + r + 1}, {"0" if z else f"v{mx}"}', f'v_pk_minimum3_f16 v{mn}, v{src + r}, v{src + r + 1}, {"0" if z else f"v{mn}"}']
            return c

        def mxfin(mx, mn):
            return [f'v_and_b32 v{mn}, 0x7fff7fff, v{mn}', f'v_and_b32 v{mx}, 0x7fff7fff, v{mx}', f'v_pk_max_u16 v{mx}, v{mx}, v{mn}',
                    f'v_lshlrev_b32 v{mn}, 16, v{mx}', f'v_max_u32 v{mx}, v{mx}, v{mn}']

        def bread(m, off):
            b = BALL + m * 8
            return [f'ds_read_b64_tr_b16 {vr(b, 2)}, v{vBs0} offset:{off}',
                    f'ds_read_b64_tr_b16 {vr(b + 2, 2)}, v{vBs0} offset:{off + 4 * 1352}',
                    f'ds_read_b64_tr_b16 {vr(b + 4, 2)}, v{vBs1a} offset:{off}',
                    f'ds_read_b64_tr_b16 {vr(b + 6, 2)}, v{vBs1b} offset:{off}']

        def mm2(d, a, b):
            return [f'v_mfma_f32_32x32x16_bf16 {vr(d, 16)}, {vr(a, 4)}, {vr(b, 4)}, 0',
                    f'v_mfma_f32_32x32x16_bf16 {vr(d, 16)}, {vr(a + 4, 4)}, {vr(b + 4, 4)}, {vr(d, 16)}']

        tA, tB = 14, 15
        trd = lambda n: f'ds_read_b128 {vr(GREG[n], 4)}, v{tA if n < 6 else tB} offset:{(n if n < 6 else n - 6) * 1024}'
        vbs = [f'v_add_u32 v{r}, s{K_W7}, v{r}' for r in (vBs0, vBs1a, vBs1b)]

        def FX(g):
            R = [trd(n) for n in ((0,) if g == 0 else ()) + (7, 8, 4, 10, 2, 3, 5, 6, 9)]
            F = (vbs if g == 0 else []) + [f'v_add_u32 v{r}, s{K_W2}, v{r}' for r in (vGa, vGb)]
            F += [f'v_add_u32 v{vT3d}, s{K_H8}, v{vT3d}', f'v_add_u32 v{vT3}, s{K_T3}, v{vT3}']
            F += [f'v_mad_u32_u24 v{G8}, v{G8 + 1}, s{S_WAVE}, v{G8}', f'v_add_u32 v{G8 + 2}, s{K_W1}, v{G8 + 2}',
                  f'v_mad_u32_u24 v{G8 + 1}, v{G8 + 1}, 5, v{G8}', f'v_add_u32 v{WA[2]}, s{K_W12}, v{G8 + 3}', f'v_add_u32 v{WA[3]}, 2048, v{WA[2]}']
            for n_, (wa, bs) in enumerate(((WA[0], G8), (WA[1], G8), (WA[4], G8 + 1), (WA[5], G8 + 1))):
                F += [f'v_add_u32 v{t5}, {n_}, v{G8 + 2}', f'v_and_b32 v{t5}, 3, v{t5}', f'v_lshl_add_u32 v{wa}, v{t5}, 4, v{bs}']
                if n_ & 1:
                    F.append(f'v_add_u32 v{wa}, 1664, v{wa}')
            F += [f'v_add_u32 v{r}, s{S_XM0}, v{r}' for r in (vXa, vLin0, vLin1)] + [f'ds_write_b32 v{vXa}, v{vXi1} offset:{XOFF(26)}']
            F += [f'v_add_u32 v{r}, s{K_IMG}, v{r}' for r in [vIw] + list(range(vTR, vTR + 8))]
            return R, F
        SC2 += [f'v_add_u32 v{tA}, {TA_}, v{vStg}', f'v_add_u32 v{tB}, {TB_}, v{vStg}', f'v_lshrrev_b32 v3, 5, v0', f'v_lshl_add_u32 v3, v3, 2, v{vFR}']

        def pub2(r1, r2, off):
            c = [f'v_permlane32_swap_b32 v{r1}, v{r2}', f'v_max_u32 v{r1}, v{r1}, v{r2}']
            c += [f'v_max_u32_dpp v{r1}, v{r1}, v{r1} {ctl} row_mask:{rm} bank_mask:0xf' for ctl, rm in DPPS[:5]]
            return c + ['s_mov_b32 exec_lo, 0x80000000', 's_mov_b32 exec_hi, 0x80000000', f'ds_max_u32 v3, v{r1} offset:{16 + off}', 's_mov_b64 exec, -1']
        AV = [28, 58, 111]
        L = ['s_waitcnt lgkmcnt(0)'] + self.build_srd(SRD_WCO, S_WCO, 156) + [f's_mov_b32 m0, {L_WCO}', 's_mov_b64 exec, 0x7ff',
             I(f'buffer_load_dwordx4 v{vStg}, {srd(SRD_WCO)}, 0 offen lds', tag='WCO'), 's_mov_b64 exec, -1'] + self.stamp0() + SC2
        L += self.build_srd(SRD_IDX, S_IDX, 4096 * 104) + self.build_srd(SRD_TAB, S_TAB, 100000 * 128)
        L += [f'ds_write_b128 v{vFR}, {vr(XR, 4)} offset:16', f's_lshl_b32 s{S_T0}, s{cw}, 6', f'v_add_u32 v{t3}, s{S_T0}, v0']
        for p_ in range(3):
            L += [f'v_mul_u32_u24 v{t4}, 2521, v{t3}', f'v_lshrrev_b32 v{t4}, 16, v{t4}', f'v_mul_u32_u24 v{t4}, 12, v{t4}', f'v_lshl_add_u32 v{AV[p_]}, v{t3}, 1, v{t4}']
            L += [f'v_add_u32 v{t3}, 256, v{t3}'] if p_ < 2 else [f'v_cmp_gt_u32 vcc, 676, v{t3}', f's_mov_b64 s[{S_MASK}:{S_MASK + 1}], vcc']
        L += [f'v_lshlrev_b32 v{t3}, 3, v0', 's_mov_b32 exec_hi, 0xffff', f'ds_write_b64 v{t3}, {vr(XR, 2)} offset:{V3OFF + 26 * 64}', 's_mov_b32 exec_hi, -1',
              f'ds_write_b32 v{AD + 3}, v{XR}', f'ds_write_b32 v{AD + 3}, v{XR} offset:{SSZ}', WaitTag(vm_tags=['WCO'])]
        assert V3OFF == 0
        for s2 in range(2):
            for rd in range(2):
                L.append(f'ds_read_b64 {vr(AFR + 4 * s2 + 2 * rd, 2)}, v{AD} offset:{s2 * 32 + rd * 8}')
        L += [f'ds_read_u16 v110, v{AD + 1}',
              's_mov_b64 exec, 0x3ffffff', f'ds_write_b16 v{AD + 2}, v110', 'v_lshlrev_b32 v109, 17, v110', 'v_lshrrev_b32 v109, 1, v109', 's_mov_b64 exec, -1']
        L += vbs + [WaitTag(vm_tags=['TAB'], lgkm0=True), 's_barrier'] + self.stamp(2)
        vb = lambda m: A3 - A1 - 512 + (m >> 1) * 512 + (m & 1) * 64
        for m in range(3):
            L += bread(m, vb(m))
        for m in range(6):
            if m + 3 < 6:
                L += bread(m + 3, vb(m + 3))
            L += mm2(DALL + m * 16, AFR, BALL + m * 8)
            if m == 3:
                L += FX(1)[0]
        L += FX(1)[1]
        for p_ in range(3):
            L += ['s_mov_b32 exec_lo, 0', f'v_mov_b32 v{DALL + 32 * p_}, v{DALL + 32 * p_ + 16}', 's_mov_b32 exec_lo, -1',
                  f'v_cvt_pk_bf16_f32 v{BALL + p_}, 0, v{DALL + 32 * p_}']
            if p_ == 2:
                L += [f's_mov_b64 exec, s[{S_MASK}:{S_MASK + 1}]']
            L += [f'ds_write_b16_d16_hi v{AV[p_]}, v{BALL + p_}', f'v_max_f32 v108, |v{BALL + p_}|, v108']
        L += ['s_mov_b64 exec, -1'] + pub2(108, 109, 8) + self.stamp(13) + ['s_setprio 0', 's_barrier', 's_branch L_w2']
        v3 = self.seq(L)

        def stage3(dst, goff, tag, lab, mid=None, fill=()):
            st = stage(dst, goff, tag)
            a_ = st[:8] if mid is None else st[:mid[0]] + [tuple(mid[1])] + st[mid[0]:8]
            return (self.seq(interleave(a_, list(fill)) + [f's_cmp_eq_u32 s{cw}, 3', f's_cbranch_scc1 {lab}']), self.seq([st[8]]), self.seq([f'{lab}:']))
        g0 = [self.seq(['L_g0:', 's_waitcnt lgkmcnt(0)'] + self.build_srd(SRD_CIN, S_CIN, 105456))]
        g0.append(stage3(A3, 70304, 'W3', 'L_st3'))
        g0.append(self.seq(self.stamp0() + self.build_srd(SRD_IDX, S_IDX, 4096 * 104) + xidx() + xidx(XJ) + self.build_srd(SRD_TAB, S_TAB, 100000 * 128)))
        g0.append(stage3(A2, 35152, 'W2', 'L_st2', None, SC2))
        g0.append(stage3(A1, 0, 'W1', 'L_st1', (o.sigat, [WaitTag(vm_tags=['W3']), 's_barrier'] + self.stamp(2) + FX(0)[0])))
        g0.append(self.seq((xdma() + xdma(XJ, 4 * XBSZ) if o.xat == 0 else []) + FX(0)[1] + self.stamp(13) + [WaitTag(vm_tags=['W2']), 's_barrier']
                           + (xdma() + xdma(XJ, 4 * XBSZ) if o.xat == 1 else [])))

        def G0(w):
            r = []
            for x in g0:
                r += x if isinstance(x, list) else x[0] + (x[1] if w < 3 else []) + x[2]
            return r

        def gather(dst, off):
            c = []
            for s2 in range(2):
                for e in range(8):
                    base = vGb if (s2 == 1 and e >= 2) else vGa
                    c.append(f'ds_read_b32 v{dst + 8 * s2 + e}, v{base} offset:{(16 * s2 + e) * 1352 + off}')
            return c

        def perms(g_, aj):
            return [f'v_perm_b32 v{aj + 8 * jj + r}, v{g_ + 2 * r + 1}, v{g_ + 2 * r}, s{S_U1 + jj}' for jj in range(2) for r in range(8)]

        def sout(t):
            d, c_ = DALL + 16 * t, DALL + 16 * t
            c = [f'v_cvt_pk_f16_f32 v{c_ + r}, v{d + 2 * r}, v{d + 2 * r + 1}' for r in range(8)]
            return c[:4] + [f'ds_write_b128 v{WA[t]}, {vr(c_, 4)}', f'v_xor_b32 v{WA[t]}, 16, v{WA[t]}'] + c[4:] + [f'ds_write_b128 v{WA[t]}, {vr(c_ + 4, 4)}']
        M1, N1, M2, N2 = 111, 28, 110, 58
        L = ['L_w2:'] + self.stamp(14) + gather(BALL, 0) + [f's_cmp_lt_u32 s{S_WAVE}, 3', 's_cbranch_scc1 L_u0']
        cc = self.seq(L)
        P0 = lambda: mxop(BALL, 16, M2, N2, True) + perms(BALL, DALL + 64)
        bw1 = lambda: [WaitTag(vm_tags=['W1'], lgkm0=True), 's_barrier'] + bread(2, 0) + bread(3, 64)
        b1u = self.seq(interleave(gather(BALL + 32, 20), P0()) + bw1() + mxop(BALL + 32, 16, M2, N2, False) + perms(BALL + 32, BALL)
                       + mxop(BALL + 16, 16, M1, N1, True) + ['s_branch L_u1'])
        L = ['L_u0:'] + bw1() + bread(4, 1024) + bread(5, 1024 + 64) + P0() + mxop(BALL + 16, 32, M1, N1, True)
        L += [f'v_add_u32 v{WA[4]}, {512 * 64}, v{WA[2]}', f'v_add_u32 v{WA[5]}, {512 * 64}, v{WA[3]}',
              f's_cmp_lg_u32 s{S_WAVE}, 2', 's_cbranch_scc1 L_u1', 's_mov_b32 exec_lo, 0xfffffff0', 's_mov_b32 exec_hi, 0xfffffff0', f'v_mov_b32 v{WA[5]}, {OOB}', 's_mov_b64 exec, -1']
        b1q = self.seq(L)
        MXR = 108
        L = ['L_u1:']
        for s2 in range(2):
            for rd in range(2):
                L.append(f'ds_read_b64_tr_b16 {vr(AFR + 4 * s2 + 2 * rd, 2)}, v{vA3} offset:{s2 * 1024 + rd * 256}')
        L += interleave(mxfin(M1, N1), mxfin(M2, N2)) + pub2(M1, M2, 0) + self.stamp(1)
        L += [WaitTag(lgkm0=True), 's_barrier'] + self.stamp(5) + self.probe('b1')
        L += [f'ds_read_b128 {vr(MXR, 4)}, v{vFR} offset:16']
        L += [f'v_lshrrev_b32 v{MXR}, 23, v{MXR}', f'v_lshrrev_b32 v{MXR + 1}, 23, v{MXR + 1}', f'v_sub_u32 v{MXR}, 267, v{MXR}', f'v_lshrrev_b32 v{MXR + 2}, 23, v{MXR + 2}',
              f'v_min_u32 v{MXR}, 167, v{MXR}', f'v_lshrrev_b32 v{MXR + 3}, 23, v{MXR + 3}',
              f'v_readfirstlane_b32 s{S_F1}, v{MXR}', f'v_mul_u32_u24 v{MXR}, 0x800080, v{MXR}']
        L += [f'v_and_b32 v{PM + r}, v{PM + r}, v{MXR}' for r in range(8)]
        sc = ['s_mov_b32 vcc_lo, 0x4000000', 's_mov_b32 vcc_hi, 0x4000000', f'v_cndmask_b32 v{vS}, v{MXR + 2}, v{MXR + 3}, vcc',
              f'v_add_u32 v{vS}, v{vS}, v{MXR + 1}', f'v_sub_u32 v{vS}, 388, v{vS}', f's_movk_i32 s{S_U0}, 167', f'v_med3_i32 v{vS}, v{vS}, 1, s{S_U0}',
              f'v_subrev_u32 v{MXR + 2}, 127, v{vS}', f'v_lshlrev_b32 v{vS}, 23, v{vS}', f'v_cmp_gt_i32 vcc, 0, v{MXR + 2}',
              f'v_mul_u32_u24 v{MXR + 2}, 0x800080, v{MXR + 2}']
        L += interleave(mm2(DALL + 32, PM, BALL + 16) + mm2(DALL + 48, PM, BALL + 24), sc) + ['s_cbranch_vccnz L_sdown']
        L += [f'v_add_u32 v{AFR + r}, v{AFR + r}, v{MXR + 2}' for r in range(8)]
        u1a = self.seq(L)
        L = ['L_scaled:'] + interleave(mm2(DALL, DALL + 64, AFR) + mm2(DALL + 16, DALL + 72, AFR), sout(2) + sout(3))
        L += [f's_cmp_lt_u32 s{S_WAVE}, 3', 's_cbranch_scc1 L_u2']
        u1 = self.seq(L)
        u2u = self.seq(mm2(DALL + 64, BALL, AFR) + mm2(DALL + 80, BALL + 8, AFR) + ['s_branch L_u3'])
        u2q = self.seq(['L_u2:'] + mm2(DALL + 64, PM, BALL + 32) + mm2(DALL + 80, PM, BALL + 40))
        L = ['L_u3:'] + self.stamp(6)
        for t in (0, 1, 4, 5):
            L += sout(t)
        L += [f'v_readlane_b32 s{S_CG}, v{vS}, 0', f'v_readlane_b32 s{S_IV}, v{vS}, 26',
              f's_sub_u32 s{S_F2}, {254 << 23:#x}, s{S_CG}', f's_sub_u32 s{S_IV}, {254 << 23:#x}, s{S_IV}',
              f's_sub_u32 s{S_F1}, 254, s{S_F1}', f's_lshl_b32 s{S_F1}, s{S_F1}, 23',
              f's_mov_b32 s{S_MASK}, 0x88888888', f's_mov_b32 s{S_MASK + 1}, 0x88888888']
        L += [f's_mul_i32 s{S_T0}, s{S_WAVE}, 384', f'v_lshrrev_b32 v{t3}, 2, v0', f'v_mul_u32_u24 v{t3}, 24, v{t3}', f'v_add_u32 v{t3}, s{S_T0}, v{t3}',
              f'v_and_b32 v{t4}, 3, v0', f'v_lshlrev_b32 v{t4}, 3, v{t4}']
        L += [f'ds_read_b64 {vr(UA + 2 * n_, 2)}, v{t3} offset:{TC_ + 8 * n_}' for n_ in range(3)]
        L += xidx() + xidx(PM) + (pfx_b() + pfx_a() if o.pf1 and o.pfx else [])
        L += [x for n_ in range(6) for x in (f'v_xor_b32 v{UA + n_}, v{UA + n_}, v{t4}', f'v_xor_b32 v{UX + n_}, 32, v{UA + n_}')]

        def sigma(s_):
            t = (s_ - 1) // 2
            first = (s_ - 1) % 2 == 0
            return (0 if first else 1) if t % 2 == 0 else (1 if first else 0)
        for s_ in range(1, 11):
            assert ((s_ - 1) // 2) * 1024 + sigma(s_) * 512 - (s_ // 4) * 2048 == (-1024, 0, 512, 1536)[s_ % 4]

        def p2read(n_):
            b = BALL + 16 * n_
            c = []
            for x, (ar, off) in enumerate(((UA, 0), (UX, 0), (UA, SSZ), (UX, SSZ))):
                for y in range(2):
                    c.append(f'ds_read_b64_tr_b16 {vr(b + 4 * x + 2 * y, 2)}, v{ar + 2 * n_ + y} offset:{off}')
            return c

        def p2a(n_):
            b = BALL + 16 * n_
            c = []
            for x in range(4):
                c += [f'v_pk_add_f16 v{b + 4 * x + y}, v{b + 4 * x + y}, v{b + 4 * x + 2 + y}' for y in range(2)]
                if x in (0, 2):
                    c.append(f'ds_write_b64 v{vFw}, {vr(b + 4 * x, 2)} offset:{FR + n_ * 4 * 3072 + x * 1024}')
            c += [f'v_cndmask_b32 v{b + 4 + y}, v{b + 4 + y}, v{b + 12 + y}, s[{S_MASK}:{S_MASK + 1}]' for y in range(2)]
            c.append(f'ds_write_b64 v{vFw}, {vr(b + 4, 2)} offset:{FR + n_ * 4 * 3072 + 1024}')
            return c

        def p2s(n_):
            b = BALL + 16 * n_ + 12
            off = FRS + max(n_ * 2048 - 1024, 0)
            return ([f'v_subrev_u32 v{vT3}, 1024, v{vT3}'] if n_ == 0 else []) + [
                f'ds_write_b32 v{vT3}, v{b} offset:{off}', f'ds_write_b32 v{vT3}, v{b + 1} offset:{off + 16}']
        L += [WaitTag(lgkm0=True), 's_barrier'] + self.stamp(10)
        L += p2read(0) + p2read(1) + [f's_cmp_ge_u32 s{S_WAVE}, 6', 's_cbranch_scc1 L_lin']
        b2 = self.seq(L)
        p2c = self.seq(p2read(2) + p2a(2) + p2s(2) + ['s_branch L_p2'])
        LB = BALL + 32
        ZR4 = t5
        L = ['L_lin:', f's_and_b32 s{S_U0}, s{S_WAVE}, 1', f's_cselect_b64 vcc, -1, 0', f's_lshl_b32 s{S_U1}, s{S_U0}, 5', f'v_mov_b32 v{ZR4}, 0',
             f'v_xor_b32 v{vV2r}, s{S_U1}, v{vV2r}', f'v_xor_b32 v{vV2q}, s{S_U1}, v{vV2q}', f'v_cndmask_b32 v{vWo}, v{vWo}, v{vWo + 1}, vcc',
             f'ds_read_b64_tr_b16 {vr(LB, 2)}, v{vV2r}', f'ds_read_b64_tr_b16 {vr(LB + 2, 2)}, v{vV2q}',
             f'ds_read_u16_d16_hi v{ZR4}, v{vWo}',
             f's_lshl_b32 s{S_U0}, s{S_U0}, 10', f'v_add_u32 v{t3}, s{S_U0}, v{vStg}']
        for r in range(4):
            a_, b_ = LB + 4 + 2 * r, LB + 5 + 2 * r
            L += [f'v_cvt_f32_f16 v{a_}, v{LB + r}', f'v_cvt_f32_f16_sdwa v{b_}, v{LB + r} dst_sel:DWORD dst_unused:UNUSED_PAD src0_sel:WORD_1',
                  f'v_mul_f32 v{a_}, s{S_IV}, v{a_}', f'v_mul_f32 v{b_}, s{S_IV}, v{b_}']
            if r == 3:
                L += ['s_mov_b32 exec_lo, 0', 's_mov_b32 exec_hi, 0xffff', f'v_mov_b32 v{a_}, v{ZR4}', 's_mov_b64 exec, -1']
            L += [f'v_mul_f32 v{a_}, s{S_CG}, v{a_}', f'v_mul_f32 v{b_}, s{S_CG}, v{b_}', f'v_cvt_pk_bf16_f32 v{LB + r}, v{a_}, v{b_}']
        L += [f'ds_write_b128 v{t3}, {vr(LB, 4)} offset:{FRL}']
        lin = self.seq(L)
        p2 = self.seq(['L_p2:'] + p2a(1) + p2s(1) + p2a(0) + [f's_cmp_lt_u32 s{S_WAVE}, 2', 's_cbranch_scc1 L_p2d'])
        p2e = self.seq(p2s(0) + ['s_branch L_built'])
        p2d = self.seq(['L_p2d:', f'ds_write_b64 v{vT3d}, {vr(BALL + 12, 2)} offset:{FRS + 5 * 1024}'])

        L = ['L_sdown:']
        for r in range(8):
            L += [f'v_lshlrev_b32 v{MXR}, 16, v{AFR + r}', f'v_and_b32 v{MXR + 1}, 0xffff0000, v{AFR + r}',
                  f'v_mul_f32 v{MXR}, v{MXR}, v{vS}', f'v_mul_f32 v{MXR + 1}, v{MXR + 1}, v{vS}', f'v_cvt_pk_bf16_f32 v{AFR + r}, v{MXR}, v{MXR + 1}']
        self.sdown = L + ['s_branch L_scaled']

        def PRE(w, sd=None):
            grp = w >> 2
            return (c0 + (g1t if grp else []) + csc + (v3 if grp else G0(w)) + cc + (b1q if w < 3 else b1u)
                    + (u1a if sd is None else u1a[:-8] + sd) + u1 + (u2q if w < 3 else u2u) + b2
                    + (lin if w >= 6 else p2c) + p2 + (p2d if w < 2 else p2e))
        L = ['L_built:'] + self.stamp(11)
        L += [f's_mov_b32 s{S_CG}, s{S_F1}', f's_mov_b32 s{S_IV}, s{S_F2}', f's_mov_b32 s{S_LO}, {f32hex(0.125)}', f's_mov_b32 s{S_HI}, {f32hex(0.0 if o.slow else 128.0)}']
        CV, vM, S_XD = 28, 58, 81

        def ureads(j):
            return [f'ds_read_u16_d16_hi v{XR + 2 * j}, v{vXa} offset:{XOFF(2 * j)}',
                    f'ds_read_u16_d16_hi v{XR + 2 * j + 1}, v{vXa} offset:{XOFF(2 * j) + 2}']
        mx3 = lambda j: f'v_max3_f32 v{vM}, |v{XR + 2 * j}|, |v{XR + 2 * j + 1}|, {"0" if j == 0 else f"v{vM}"}'
        cvt = lambda j: f'v_cvt_pk_f16_f32 v{CV + j % 4}, v{XR + 2 * j}, v{XR + 2 * j + 1}'
        iwr = lambda j: f'ds_write_b32 v{vIw}, v{CV + j % 4} offset:{j * IMGP}'
        S_SKIP = 51
        pfr = lambda: (pfx_b() + pfx_a() if o.pfx else []) + (pfw() if o.pfw else [])
        conv = lambda tag='XB': ([WaitTag(vm_tags=[tag])] + [x for j in range(13) for x in ureads(j)]
                        + [x for j in range(13) for x in (mx3(j), f'v_cvt_pk_f16_f32 v{D + j}, v{XR + 2 * j}, v{XR + 2 * j + 1}')])
        L += [f's_mov_b32 s{S_SKIP}, 1', f's_mul_i32 s{S_U0}, s{S_WAVE}, 1536', f's_add_u32 s{S_U0}, s{S_U0}, {PART + OOB}', f's_mov_b32 s48, {-OOB}',
              f's_cmp_lg_u32 s{S_GRP}, 0', 's_cbranch_scc1 L_g1c']
        c2a = self.seq(L)
        c2g0 = self.seq([f's_sub_u32 s{S_SAMP}, s{S_SAMP}, {4 * 104}'] + conv() + [WaitTag(lgkm0=True), 's_barrier'] + self.stamp(8) + ['s_branch L_cin_go'])
        DX = XB2 - XB - 4 * XBSZ
        L = ['L_g1c:', WaitTag(vm_tags=['XB'], lgkm0=True), 's_barrier'] + self.stamp(8) + self.probe('b4')
        L += [f's_add_u32 s{S_XM0}, s{S_XM0}, {DX}'] + xdma(tag='XB0') + xdma(PM, 4 * XBSZ) + xidx() + pfr() + [f'v_add_u32 v{r}, {DX}, v{r}' for r in (vXa, vLin0, vLin1)]
        L += [f'ds_write_b32 v{vXa}, v{vXi1} offset:{XOFF(26)}', f'ds_write_b32 v{vXa}, v{vXi1} offset:{XOFF(26) + 4 * XBSZ}']
        L += [f's_cmp_lg_u32 s{S_WAVE}, 4', 's_cbranch_scc1 L_g1d']
        c2g1 = self.seq(L)
        L = self.tlb2(248) if o.tlb2 else []
        L += ['s_mov_b64 exec, 1', f'buffer_load_dword v59, v248, {srd(SRD_DBG)}, 0 offen offset:240 sc1', 's_mov_b64 exec, -1']
        if o.w2late:
            L += self.build_srd(SRD_W2, S_W2, 3328) + [f'v_lshlrev_b32 v248, 7, v0', f'buffer_load_dword v251, v248, {srd(SRD_W2)}, 0 offen']
        c2b = self.seq(L)
        c2g1d = self.seq(['L_g1d:'] + conv('XB0'))
        c2c = self.seq(['L_cin_go:'] + [f'ds_write_b32 v{vIw}, v{D + j} offset:{j * IMGP}' for j in range(13)]
                       + [f's_mov_b32 s{S_XD}, {4 * XBSZ}', f's_add_u32 s{S_XM0}, s{S_XM0}, {4 * XBSZ}',
                          f'v_lshlrev_b32 v{vXi1}, 2, v0', f'v_add_u32 v{vXi1}, s{S_U0}, v{vXi1}'])

        NWF = 5
        PF = o.cpfd
        zslot = lambda s_: 1 if s_ % 2 == 0 else (0 if ((s_ - 1) // 2) % 2 == 0 else 2)
        zr = lambda T, sl: Z + 12 * T + 4 * sl
        preg = lambda T, r: P + 14 * T + (r if r < 14 else r - 14)
        acc = lambda T, tile: D + 16 * T + 4 * tile
        jobs = [('l', 0, 0), ('l', 0, 1)]
        for s_ in range(11):
            jobs += [('d', s_, 2), ('d', s_, 0), ('d', s_, 1)]
            if s_ == 0:
                jobs.append(('d', 0, 3))
            elif s_ % 2 == 0:
                jobs.append(('s', s_, 3))
        NJ = len(jobs)
        assert NJ == 41

        def wread(n):
            kind, s_, tile = jobs[n]
            off = FRL + tile * 1024 if kind == 'l' else (FR + s_ * 3072 + tile * 1024 if tile < 3 else FRS + (5 if s_ == 0 else (s_ - 1) // 2) * 1024)
            return f'ds_read_b128 {vr(WF + 4 * (n % NWF), 4)}, v{vFa} offset:{off}'

        def mfma(n, T):
            kind, s_, tile = jobs[n]
            a = vr(WF + 4 * (n % NWF), 4)
            d = vr(acc(T, tile), 4)
            if kind == 'l':
                return f'v_mfma_f32_16x16x32_bf16 {d}, {a}, {vr(zr(T, 2), 4)}, 0'
            if kind == 's':
                lo = 0 if ((s_ - 1) // 2) % 2 == 0 else 1
                return f'v_smfmac_f32_16x16x64_f16 {d}, {a}, {vr(zr(T, lo), 8)}, v{vIDX}'
            return f'v_mfma_f32_16x16x32_f16 {d}, {a}, {vr(zr(T, zslot(s_)), 4)}, {"0" if (s_ == 0 and tile >= 2) else d}'

        def pk(T, n):
            a, b, s0, s1 = cin16.INS[n]
            return (f'v_pk_mul_f16 v{zr(T, zslot(n // 4)) + n % 4}, v{preg(T, a)}, v{preg(T, b)} '
                    f'op_sel:[{s0[0]},{s0[1]}] op_sel_hi:[{s1[0]},{s1[1]}]')

        def trp(T, rp):
            return f'ds_read_b64_tr_b16 {vr(preg(T, 2 * rp), 2)}, v{vTR + rp} offset:{32 * T}'

        LASTA = max(n for n, x in enumerate(cin16.INS) if x[0] < 2)
        S_A1, S_A2, S_PINC = 49, 50, 48
        fin = []
        for T in range(4):
            fin += [(acc(T, 0) + r, acc(T, 2) + r) for r in range(4)] + [(acc(T, 1), acc(T, 1) + 3)]
        for T in range(4):
            fin += [(acc(T, 1) + 1 + (r >> 1), acc(T, 3) + r) for r in range(4)]

        def final(f1, f2):
            c = []
            for k, (a, b) in enumerate(fin):
                d = Z + k % 4
                c.append(f'v_mul_f32 v{d}, v{a}, v{b}' if k < 4 else f'v_fmac_f32 v{d}, v{a}, v{b}')
            c += [f'v_add_f32 v{Z}, v{Z}, v{Z + 1}', f'v_add_f32 v{Z + 2}, v{Z + 2}, v{Z + 3}', f'v_add_f32 v{Z}, v{Z}, v{Z + 2}']
            c += [f'v_mul_f32 v{Z}, s{x}, v{Z}' for x in (f1, f2)]
            return c + [f'ds_write_b32 v{vXi1}, v{Z}']
        code = ['L_cin_loop:', f'v_cmp_le_f32 s[{S_CM}:{S_CM + 1}], s{S_HI}, v{vM}', f'v_cmp_le_f32 vcc, s{S_LO}, v{vM}',
                f's_mov_b32 s{S_A1}, s{S_F1}', f's_mov_b32 s{S_A2}, s{S_F2}',
                f's_cmp_lg_u64 s[{S_CM}:{S_CM + 1}], 0', 's_cbranch_scc1 L_cslow', 's_cbranch_vccz L_cslow']
        cA = self.seq(code)
        RD = []
        for rp in (0, 3, 4):
            RD += [trp(T, rp) for T in range(4)]
        for T in range(4):
            RD += [f'ds_read_b64_tr_b16 {vr(zr(T, 2), 2)}, v{vLin0} offset:{32 * T}', f'ds_read_b64_tr_b16 {vr(zr(T, 2) + 2, 2)}, v{vLin1} offset:{32 * T}']
        RD += [wread(k) for k in range(PF)]
        for rp in (5, 6, 1, 2):
            RD += [trp(T, rp) for T in range(4)]
        pfr = lambda: (pfx_b() + pfx_a() if o.pfx else []) + (pfw() if o.pfw else [])
        vm = xdma() + xidx() + pfr()
        VA = final(S_A1, S_A2) + [f'v_add_u32 v{vXi1}, s{S_PINC}, v{vXi1}', f's_movk_i32 s{S_PINC}, 256']
        PK0 = [pk(T, n) for T in range(4) for n in range(4)]
        TG = [f'v_add_u32 v{r}, s{S_XD}, v{r}' for r in (vXa, vLin0, vLin1)] + [f's_sub_u32 s{S_XM0}, s{S_XM0}, s{S_XD}', f's_sub_u32 s{S_XD}, 0, s{S_XD}', f's_mov_b32 s{S_SKIP}, 0']
        code = ['L_cconv:']
        code += interleave(RD, VA) + PK0 + [f's_cmp_lg_u32 s{S_SKIP}, 0', 's_cbranch_scc1 L_novm']
        cB0 = self.seq(code)
        cVM = self.seq(vm)
        code = ['L_novm:'] + TG
        LA = 1
        def lstamp(base):
            if not (o.stamps and o.cst):
                return []
            return [f's_memtime s[{S_ST}:{S_ST + 1}]', f's_memrealtime s[{S_ST + 2}:{S_ST + 3}]', f's_sub_u32 s{S_C0}, {base + 6}, s{S_LOOP}', 's_waitcnt lgkmcnt(0)',
                    f's_mov_b32 m0, s{S_C0}', f'v_writelane_b32 v252, s{S_ST}, m0', f'v_writelane_b32 v253, s{S_ST + 2}, m0']
        code += lstamp(19)
        code += [Touch(vr(WF, 4)), Touch(vr(zr(3, 2), 4))] + (['s_setprio 2', 's_barrier'] if o.cbar else ['s_setprio 1'])
        MS = [(n, T) for n in range(NJ) for T in range(4)]
        first_use, last_use = {}, {}
        for mi, (n, T) in enumerate(MS):
            kind, s_, tile = jobs[n]
            if kind == 'l':
                last_use[(T, 'lin')] = mi
                continue
            for su in ([s_] if kind == 'd' else [s_ - 1, s_]):
                first_use.setdefault((T, su), mi)
                last_use[(T, su)] = mi
        V = []
        for s_ in range(LA, 11):
            prev = [p_ for p_ in range(s_) if zslot(p_) == zslot(s_)]
            for T in range(4):
                rdy = last_use[(T, prev[-1])] + o.war if prev else (last_use[(T, 'lin')] if zslot(s_) == 2 else -1)
                for n in range(4 * s_, 4 * s_ + 4):
                    V.append((pk(T, n), rdy, first_use[(T, s_)], n, T))
        forced = 0
        late = []
        XL_ = [x for j in range(13) for x in ureads(j)]
        xrd = {}
        CVR = [preg(T, r) for r in (2, 3, 6, 7) for T in range(4)]
        cvrdy = max(n for n, x in enumerate(cin16.INS) if set(x[:2]) & {2, 3, 6, 7})
        cvt2 = lambda j: f'v_cvt_pk_f16_f32 v{CVR[j]}, v{XR + 2 * j}, v{XR + 2 * j + 1}'
        iwr2 = lambda j: f'ds_write_b32 v{vIw}, v{CVR[j]} offset:{j * IMGP}'
        nm = nc = nw = 0
        V.sort(key=lambda x: x[2])
        prev2 = 0
        for mi, (n, T) in enumerate(MS):
            while V and V[0][2] <= mi:
                assert V[0][1] < mi
                code.append(V.pop(0)[0]); forced += 1
            code.append(mfma(n, T))
            t = 4
            if o.cbar and mi == len(MS) - 1 - o.cbov:
                code += ['s_setprio 3', 's_barrier']; t += 8
            if not o.cbar and mi == 4 * o.hiat - 2:
                code.append('s_setprio 2'); t += 4
            if T == 3 and n + 1 < NJ:
                code.append(Touch(vr(WF + 4 * ((n + 1) % NWF), 4))); t += 4
            if T == 0 and n + PF < NJ:
                code.append(wread(n + PF)); t += 8
            elif T in (1, 2) and late:
                code.append(late.pop(0)); t += 8
            elif T in (1, 2) and mi >= o.x0 and XL_:
                if len(XL_) == 26:
                    code.append(WaitTag(vm_tags=['XB']))
                code.append(XL_.pop(0)); t += 8
                if len(XL_) % 2 == 0:
                    xrd[12 - len(XL_) // 2] = mi
            elif not V and nw < nc and t == 4:
                code.append(iwr2(nw)); nw += 1; t += 12
            t = max(t, 12 if jobs[n][0] == 's' else 8)
            k = 0
            while t < 16:
                urgent = any(V[q_][2] - 1 - mi < q_ + 1 for q_ in range(min(24, len(V))))
                if k == 1 and prev2 >= o.max2 and not urgent:
                    break
                cand = [x for x in V[:32] if x[1] <= mi]
                extra = None
                if nm < 13 and nm in xrd and xrd[nm] + o.xlat <= mi:
                    extra = 'm'
                elif nc < nm and all(x[3] > cvrdy for x in V):
                    extra = 'c'
                if cand and (k == 0 or urgent or not extra) and (k == 0 or urgent or o.eager):
                    x = cand[0]
                    V.remove(x)
                    code.append(x[0])
                    if x[3] <= LASTA and all(y[3] > LASTA for y in V if y[4] == x[4]):
                        late.append(trp(x[4], 7))
                elif extra == 'm':
                    code.append(mx3(nm)); nm += 1
                elif extra == 'c':
                    code.append(cvt2(nc)); nc += 1
                else:
                    break
                t += 4; k += 1
            prev2 = prev2 + 1 if k == 2 else 0
        assert not late and not XL_ and not V
        print('left', 13 - nm, 13 - nc, 13 - nw)
        tail = [mx3(j) for j in range(nm, 13)] + [cvt2(j) for j in range(nc, 13)] + [iwr2(j) for j in range(nw, 13)]
        print('forced VALU', forced)
        code += lstamp(25)
        code.append(f's_setprio {o.p0}')
        code += tail + [f's_sub_u32 s{S_LOOP}, s{S_LOOP}, 1', f's_cmp_lg_u32 s{S_LOOP}, 0', 's_cbranch_scc1 L_cin_loop']
        cB = self.seq(code + ['s_branch L_cin_done'])
        mark0 = len(self.P.static)
        bl = []
        if o.burn:
            bl = [f's_movk_i32 s{S_LOOP}, {o.burn // 2}', 'L_burn2:'] + [f'v_mfma_f32_16x16x32_f16 {vr(P + 4 * (k % 2), 4)}, {vr(WF + 4 * (k % 4), 4)}, {vr(Z + 4 * (k // 4), 4)}, 0' for k in range(32)]
            bl += [f's_sub_u32 s{S_LOOP}, s{S_LOOP}, 1', f's_cmp_lg_u32 s{S_LOOP}, 0', 's_cbranch_scc1 L_burn2']
        L = ['L_cin_done:'] + self.pubsrd() + bl + final(S_F1, S_F2) + ([f's_cmp_eq_u32 s{S_GRP}, 0', 's_cbranch_scc1 L_nob2', 's_barrier', 'L_nob2:'] if o.cbar else []) + [
             f's_mul_i32 s{S_U0}, s{S_WAVE}, 1536', f's_add_u32 s{S_U0}, s{S_U0}, {PART}',
             f'v_lshlrev_b32 v{Z}, 5, v0', f'v_add_u32 v{Z}, s{S_U0}, v{Z}',
             f'ds_read_b128 {vr(P, 4)}, v{Z}', f'ds_read_b128 {vr(P + 4, 4)}, v{Z} offset:16',
             f'v_lshrrev_b32 v{Z + 1}, 3, v0', f'v_cmp_gt_u32 vcc, 6, v{Z + 1}', f'v_lshlrev_b32 v{Z + 1}, 4, v{Z + 1}', f'v_add_u32 v{Z + 1}, s{S_RC}, v{Z + 1}',
             f'v_pk_add_f32 {vr(P, 2)}, {vr(P, 2)}, {vr(P + 2, 2)}', f'v_pk_add_f32 {vr(P + 4, 2)}, {vr(P + 4, 2)}, {vr(P + 6, 2)}',
             f'v_pk_add_f32 {vr(P, 2)}, {vr(P, 2)}, {vr(P + 4, 2)}', f'v_add_f32 v{P}, v{P}, v{P + 1}']
        for ctl in ('quad_perm:[1,0,3,2]', 'quad_perm:[2,3,0,1]', 'row_half_mirror'):
            L.append(f'v_add_f32_dpp v{P}, v{P}, v{P} {ctl} row_mask:0xf bank_mask:0xf')
        L += [f's_and_b64 exec, exec, vcc', f'ds_write_b32 v{Z + 1}, v{P}', 's_mov_b64 exec, -1']
        L += self.stamp(9) + self.stamp_flush() + self.probe('cend') + ['s_waitcnt lgkmcnt(0)', 's_barrier',
                                                  f's_cmp_lg_u32 s{S_WAVE}, 4', 's_cbranch_scc1 L_end',
                                                  'v_lshlrev_b32 v4, 2, v0', f'v_add_u32 v2, {RC}, v4', 'ds_read_b32 v64, v2',
                                                  f's_mul_i32 s{S_T1}, s{S_MB}, 192', f's_add_u32 s{S_T1}, s{S_T1}, {13 * WSP}',
                                                  f's_mul_i32 s{S_T0}, s{S_MB}, 3', f's_mul_i32 s{S_T2}, s{S_T0}, 3277', f's_lshr_b32 s{S_T2}, s{S_T2}, 16',
                                                  f'v_add_u32 v7, s{S_T2}, v0', f's_mul_i32 s{S_T2}, s{S_T2}, 20', f's_add_u32 s{S_T2}, s{S_T2}, 20',
                                                  f's_sub_u32 s{S_T2}, s{S_T2}, s{S_T0}', f's_min_u32 s{S_T2}, s{S_T2}, 3', f's_sub_u32 s{S_T0}, 3, s{S_T2}',
                                                  f'v_mov_b32 v5, s{S_T0}', f'v_writelane_b32 v5, s{S_T2}, 0',
                                                  f's_cmp_eq_u32 s{S_T0}, 0', f's_cselect_b32 s{S_T0}, 1, 3',
                                                  'v_lshlrev_b32 v3, 4, v0', 's_mov_b32 exec_hi, 0xffff']
        L += (self.stamp(16) if o.diag else [])
        L += [f'buffer_store_dword v64, v4, {srd(SRD_WS)}, s{S_T1} offen sc1', 's_mov_b32 exec_hi, -1', 'v_add_u32 v4, 1024, v4', f's_mov_b32 exec_lo, s{S_T0}', 's_mov_b32 exec_hi, 0', 's_branch L_pub']
        fin_ = self.seq(L)
        blk = self.P.static[mark0:]
        del self.P.static[mark0:]
        at = self.P.static.index(self.pub[-1]) + 1
        self.P.static[at:at] = blk + self.ldblk
        L = ['L_cslow:']
        for (ctl, rm) in (('row_shr:1', '0xf'), ('row_shr:2', '0xf'), ('row_shr:4', '0xf'), ('row_shr:8', '0xf'),
                          ('row_bcast:15', '0xa'), ('row_bcast:31', '0xc')):
            L.append(f'v_max_f32_dpp v{vM}, v{vM}, v{vM} {ctl} row_mask:{rm} bank_mask:0xf')
        L += [f'v_readlane_b32 s{S_U0}, v{vM}, 63', f's_mov_b32 s{S_HI}, 0',
              f's_lshr_b32 s{S_U0}, s{S_U0}, 23', f's_max_u32 s{S_U0}, s{S_U0}, {127 - 55}', f's_min_u32 s{S_U0}, s{S_U0}, {127 + 55}',
              f's_sub_u32 s{S_U1}, {127 + 4 + 127}, s{S_U0}',
              f's_lshl_b32 s{S_U2}, s{S_U1}, 1', f's_sub_u32 s{S_U2}, s{S_U2}, 127',
              f's_sub_u32 s{S_G}, 254, s{S_U2}', f's_lshl_b32 s{S_G}, s{S_G}, 23',
              f'v_mov_b32 v{P}, s{S_G}', f'v_mul_f32 v{P + 1}, s{S_CG}, v{P}', f'v_mul_f32 v{P}, s{S_IV}, v{P}',
              f'v_readfirstlane_b32 s{S_F1}, v{P + 1}', f'v_readfirstlane_b32 s{S_F2}, v{P}',
              f's_lshl_b32 s{S_U1}, s{S_U1}, 23', f's_lshl_b32 s{S_U2}, s{S_U2}, 23']
        TS = P
        for j in range(13):
            L += [f'v_mul_f32 v{TS}, s{S_U1}, v{XR + 2 * j}', f'v_mul_f32 v{TS + 1}, s{S_U1}, v{XR + 2 * j + 1}',
                  f'v_mul_f32 v{TS + 2}, s{S_U2}, v{XR + 2 * j}', f'v_mul_f32 v{TS + 3}, s{S_U2}, v{XR + 2 * j + 1}',
                  f'v_cvt_pk_f16_f32 v{TS + 20 + j}, v{TS}, v{TS + 1}', f'v_cvt_pk_bf16_f32 v{TS + 4 + j}, v{TS + 2}, v{TS + 3}',
                  f'ds_write_b32 v{vIw}, v{TS + 20 + j} offset:{j * IMGP}', f'ds_write_b32 v{vXa}, v{TS + 4 + j} offset:{XOFF(2 * j)}']
        L += [f'v_mov_b32 v{TS}, s{S_U2}', f'v_cvt_pk_bf16_f32 v{TS}, v{TS}, v{TS}',
              's_mov_b32 exec_hi, 0', f'ds_write_b32 v{vXa}, v{TS} offset:{XOFF(26)}', 's_mov_b32 exec_hi, -1',
              's_waitcnt lgkmcnt(0)', 's_branch L_cconv']
        slow = self.seq(L)
        sdown = self.seq(self.sdown)
        traces = []
        for w in range(8):
            grp = w >> 2
            c2 = c2a + (c2g1 + (c2b if w == 4 else []) + c2g1d if grp else c2g0) + c2c
            it = lambda sl, first: cA + (slow if sl else []) + cB0 + ([] if first else cVM) + cB
            traces.append(PRE(w) + c2 + it(0, 1) + it(0, 0) + it(0, 0) + fin_ + self.pub)
            if w in (0, 4):
                traces.append(PRE(w, sdown) + c2 + it(1, 1) + it(1, 0) + fin_ + self.pub)
        return traces

    def build(self):
        pro = self.prologue()
        d = self.dnn()
        cs = self.cin()
        self.seq(['L_end:', 's_endpgm'])
        traces = [pro + c for c in d + cs]
        for t in traces:
            resolve_waits(t)
        for _ in range(2):
            for t in traces:
                resolve_hazards(t)
        hdr = open(os.path.join(os.path.dirname(os.path.abspath(__file__)), 'header.txt')).read()
        txt = hdr + f'; @launch grid=(256,1,1) block=(512,1,1) lds={LDS_TOTAL}\n'
        txt += f'''.amdgcn_target "amdgcn-amd-amdhsa--gfx950"
{DOC}.text
.globl {KNAME}
.p2align 8
.type {KNAME},@function
{KNAME}:
'''
        body_ = self.P.emit()
        if self.opt.align:
            for lab in ('L_dnn_loop0:', 'L_dnn_loop1:', 'L_cin_loop:', 'L_epi:'):
                pad = '  s_nop 0\n' if self.opt.align > 100 else ''
                body_ = body_.replace(lab + '\n', f'.p2align {self.opt.align % 100}\n{pad}{lab}\n')
        if self.opt.fix:
            body_ = fixalign.fix(body_ + 'L_tables:\n', self.opt.fix)[:-len('L_tables:\n')]
        txt += body_
        tb = self.tables()
        assert len(tb) == 16 * 256
        txt += '.p2align 8\nL_tables:\n' + ''.join('.long ' + ', '.join(f'{x:#x}' for x in tb[i:i + 8]) + '\n' for i in range(0, len(tb), 8))
        txt += f'''.section .rodata,"a"
.p2align 6
.amdhsa_kernel {KNAME}
  .amdhsa_next_free_vgpr 256
  .amdhsa_next_free_sgpr 102
  .amdhsa_accum_offset 256
  .amdhsa_group_segment_fixed_size 0
  .amdhsa_kernarg_size 88
  .amdhsa_user_sgpr_count 2
  .amdhsa_user_sgpr_kernarg_segment_ptr 1
  .amdhsa_system_sgpr_workgroup_id_x 1
  .amdhsa_float_denorm_mode_32 {self.opt.denorm}
.end_amdhsa_kernel
'''
        return txt


def main():
    ap = argparse.ArgumentParser()
    ap.add_argument('-o', default='standalone__deep_cross_xdeepfm__recsys.s')
    ap.add_argument('--stamps', action='store_true')
    ap.add_argument('--nodma', action='store_true')
    ap.add_argument('--cpf', type=int, default=1)
    ap.add_argument('--coop', type=int, default=0)
    ap.add_argument('--coopw', type=int, default=2)
    ap.add_argument('--tbpos', type=int, default=0)
    ap.add_argument('--dbar3', type=int, default=1)
    ap.add_argument('--tlb', type=int, default=0)
    ap.add_argument('--tlb2', type=int, default=1)
    ap.add_argument('--itst', type=int, default=0)
    ap.add_argument('--diag', type=int, default=0)
    ap.add_argument('--dbg', default='')
    ap.add_argument('--lead3', type=int, default=1)
    ap.add_argument('--morder', type=int, default=0)
    ap.add_argument('--etlb', type=int, default=0)
    ap.add_argument('--lateb', type=int, default=0)
    ap.add_argument('--wfl', default='')
    ap.add_argument('--xfl', default='')
    ap.add_argument('--tag', type=int, default=0)
    ap.add_argument('--idxfirst', type=int, default=1)
    ap.add_argument('--bpos', type=int, default=2)
    ap.add_argument('--sigat', type=int, default=4)
    ap.add_argument('--epx', type=int, default=1)
    ap.add_argument('--denorm', type=int, default=3)
    ap.add_argument('--mprio', type=int, default=0)
    ap.add_argument('--swap', type=int, default=0)
    ap.add_argument('--bov', type=int, default=1)
    ap.add_argument('--rfirst', type=int, default=0)
    ap.add_argument('--g1x', type=int, default=0)
    ap.add_argument('--ldsred', type=int, default=0)
    ap.add_argument('--csnake', type=int, default=0)
    ap.add_argument('--cswap', type=int, default=0)
    ap.add_argument('--align', type=int, default=0)
    ap.add_argument('--c2', type=int, default=0)
    ap.add_argument('--d1', type=int, default=0)
    ap.add_argument('--cstr', type=int, default=3)
    ap.add_argument('--bearly', type=int, default=1)
    ap.add_argument('--w2late', type=int, default=1)
    ap.add_argument('--aov', type=int, default=5)
    ap.add_argument('--upos', type=int, default=1)
    ap.add_argument('--calt', type=int, default=1)
    ap.add_argument('--pfpos', type=int, default=1)
    ap.add_argument('--wlate', type=int, default=0)
    ap.add_argument('--dbar2', type=int, default=0)
    ap.add_argument('--dbar', type=int, default=0)
    ap.add_argument('--pfw', type=int, default=0)
    ap.add_argument('--pfx', type=int, default=0)
    ap.add_argument('--pfx0', type=int, default=4)
    ap.add_argument('--pfs', type=int, default=13)
    ap.add_argument('--dcoopx', type=int, default=1)
    ap.add_argument('--dcx0', type=int, default=0)
    ap.add_argument('--dcxpos', type=int, default=-1)
    ap.add_argument('--pfe0', type=int, default=2)
    ap.add_argument('--pfne', type=int, default=13)
    ap.add_argument('--prio47', type=int, default=0)
    ap.add_argument('--lookahead', type=int, default=5)
    ap.add_argument('--nz', type=int, default=6)
    ap.add_argument('--nwf', type=int, default=8)
    ap.add_argument('--hiat', type=int, default=4)
    ap.add_argument('--wmerge', type=int, default=0)
    ap.add_argument('--gapv', type=int, default=6)
    ap.add_argument('--slow', type=int, default=0)
    ap.add_argument('--probe', default='')
    ap.add_argument('--skew', type=int, default=0)
    ap.add_argument('--fix', type=int, default=64)
    ap.add_argument('--walk', type=int, default=0)
    ap.add_argument('--eal', type=int, default=3)
    ap.add_argument('--eoff', type=int, default=0)
    ap.add_argument('--ct', default='')
    ap.add_argument('--rot', type=int, default=13)
    ap.add_argument('--i0', type=int, default=1)
    ap.add_argument('--i1', type=int, default=10)
    ap.add_argument('--burn', type=int, default=0)
    ap.add_argument('--lord', type=int, default=1)
    ap.add_argument('--lprio', type=int, default=0)
    ap.add_argument('--rsp', type=int, default=0)
    ap.add_argument('--tch', type=int, default=0)
    ap.add_argument('--tf', type=int, default=4)
    ap.add_argument('--toff', type=int, default=0)
    ap.add_argument('--tw0', type=int, default=12)
    ap.add_argument('--xat', type=int, default=0)
    ap.add_argument('--pf1', type=int, default=1)
    ap.add_argument('--lpf', type=int, default=20)
    ap.add_argument('--lpfit', type=int, default=6)
    ap.add_argument('--x1m', type=int, default=7)
    ap.add_argument('--bgap', type=int, default=8)
    ap.add_argument('--cprio', type=int, default=1)
    ap.add_argument('--x1n', type=int, default=4)
    ap.add_argument('--w0', type=int, default=1)
    ap.add_argument('--dbar1', type=int, default=1)
    ap.add_argument('--aon', type=int, default=2)
    ap.add_argument('--cbar', type=int, default=0)
    ap.add_argument('--vmpos', type=int, default=2)
    ap.add_argument('--il2', type=int, default=0)
    ap.add_argument('--p1', type=int, default=0)
    ap.add_argument('--pm', type=int, default=2)
    ap.add_argument('--cbov', type=int, default=3)
    ap.add_argument('--p0', type=int, default=0)
    ap.add_argument('--max2', type=int, default=2)
    ap.add_argument('--eager', type=int, default=0)
    ap.add_argument('--cst', type=int, default=0)
    ap.add_argument('--x0', type=int, default=60)
    ap.add_argument('--xlat', type=int, default=18)
    ap.add_argument('--xper', type=int, default=3)
    ap.add_argument('--xc0', type=int, default=0)
    ap.add_argument('--n3', type=int, default=1)
    ap.add_argument('--xi0', type=int, default=1)
    ap.add_argument('--pfsat', type=int, default=0)
    ap.add_argument('--g1prio', type=int, default=0)
    ap.add_argument('--xearly', type=int, default=1)
    ap.add_argument('--cpfd', type=int, default=4)
    ap.add_argument('--cla', type=int, default=1)
    ap.add_argument('--war', type=int, default=1)
    opt = ap.parse_args()
    resolve_waits.dbg = 'dup' in opt.dbg
    g = Gen(opt)
    txt = g.build()
    open(opt.o, 'w').write(txt)
    print('wrote', opt.o, len(txt), 'bytes')


if __name__ == '__main__':
    main()
```

```python
import sys, os, struct, argparse
sys.path.insert(0, os.path.dirname(os.path.abspath(__file__)))
from asmlib import I, WaitTag, Touch, Prog, resolve_waits, resolve_hazards
import cin16, fixalign

KNAME = 'standalone__deep_cross_xdeepfm__recsys_kernel'
LDS_TOTAL = 163840

XSLOT = 320 * 128
WR = 3 * XSLOT
WSLOT = 32 * 256
L_BIAS = WR + 3 * WSLOT
L_W2 = L_BIAS + 256
RB = L_W2 + 256
WSP = 16640
assert RB + 2560 <= LDS_TOTAL

SSZ = 677 * 64
FRS = 0
V3OFF = 0
A1 = 6144
FR = A1
FRL = FR + 33 * 1024
A3 = FRL + 2048
SG = A3
A2 = SG + SSZ
SQ = A2
V2S = SQ + SSZ
L_WCO = V2S + 832
L_FLG = L_WCO + 192
L_MX = L_FLG + 16
RC = L_FLG + 64
XB = V2S + 2496
XPP = 1056
XBSZ = 3 * XPP + 7 * 128
IMG = A3
IMGP = 160
IMGSZ = 33 * IMGP
XB2 = IMG + 8 * IMGSZ
PART = XB2 + 8 * XBSZ
XOFF = lambda f: (f & 3) * XPP + (f >> 2) * 128
assert RC + 512 <= V2S + 1664
assert XB + 8 * XBSZ <= LDS_TOTAL and XB % 16 == 0 and A2 % 64 == 0 and A3 % 64 == 0 and L_WCO % 16 == 0 and V2S % 64 == 0
assert PART + 8 * 1536 <= V2S + 832 and IMGSZ % 32 == 0 and XB2 % 16 == 0

S_WAVE = 3
S_IDX, S_TAB, S_CIN, S_WCO, S_W1, S_B1, S_W2, S_BO, S_OUT, S_DBG, S_WS = 4, 6, 8, 10, 12, 14, 16, 18, 20, 22, 24
S_MB, S_R = 26, 27
SRD_IDX, SRD_TAB, SRD_CIN, SRD_WCO, SRD_W, SRD_B1, SRD_W2, SRD_OUT, SRD_WS, SRD_DBG = 28, 32, 36, 40, 44, 48, 52, 56, 60, 64
S_T0, S_T1, S_T2, S_T3 = 68, 69, 70, 71
S_LOOP, S_IDXOFF, S_WSOFF, S_WMB, S_XM0, S_N0, S_C0, S_CW, S_BOUT, S_TW = 72, 73, 74, 75, 76, 77, 78, 79, 80, 81
S_EX = 82
S_GRP, S_RC = 84, 85
S_ST = 86
S_M26, S_MASK = 90, 92
S_SAMP, S_STG, S_STG9, S_TGT = 94, 95, 96, 97
S_M26B = 98
S_GW = 100
S_TAGT = 0
S_TAG = 1
S_PW = 101
S_PX = 77
S_PXE = 73

GELU_C0 = -2.0 * 0.7978845608028654 * 1.4426950408889634
GELU_C1 = GELU_C0 * 0.044715


def f32hex(x):
    return '0x%08x' % struct.unpack('<I', struct.pack('<f', x))[0]


def vr(a, n):
    return f'v[{a}:{a + n - 1}]' if n > 1 else f'v{a}'


def srd(a):
    return f's[{a}:{a + 3}]'


def flat(gs):
    res = []
    for c in gs:
        if isinstance(c, (tuple, list)):
            res += flat(c)
        else:
            res.append(c)
    return res


def interleave(a, b):
    out = []
    ia = ib = 0
    na, nb = len(a), len(b)
    while ia < na or ib < nb:
        if ib >= nb or (ia < na and ia * nb <= ib * na):
            out.append(a[ia]); ia += 1
        else:
            out.append(b[ib]); ib += 1
    return out


SLOTS = []
for j in range(0, 26, 2):
    for s in range(0, 14 if j <= 12 else 13):
        SLOTS.append((j, (j + s) % 26))
assert len(SLOTS) == 176
DUP_SLOT = SLOTS.index((12, 25))
assert all((d * 2521) >> 16 == d // 26 for d in range(800))
assert all((d * 10923) >> 16 == d // 6 for d in range(64))
assert all((d * 5042) >> 16 == d // 13 for d in range(170))
assert all((d * 3277) >> 16 == d // 20 for d in range(264))


DOC = '''; ---------------------------------------------------------------------------------------------
;
;       U[i,j,k] = sum_h W2[h,i,j] V3[h,k]
; ---------------------------------------------------------------------------------------------
'''


class Gen:
    def __init__(self, opt):
        self.opt = opt
        self.P = Prog()

    def seq(self, lines):
        return [self.P.add(l) for l in flat(lines)]

    def build_srd(self, dst, ptr, size):
        return [f's_mov_b32 s{dst}, s{ptr}', f's_and_b32 s{dst + 1}, s{ptr + 1}, 0xffff',
                f's_mov_b32 s{dst + 2}, {size}', f's_mov_b32 s{dst + 3}, 0x20000']

    def stamp(self, slot):
        if not self.opt.stamps:
            return []
        return [f's_memtime s[{S_ST}:{S_ST + 1}]', f's_memrealtime s[{S_ST + 2}:{S_ST + 3}]', 's_waitcnt lgkmcnt(0)',
                f'v_writelane_b32 v252, s{S_ST}, {slot}', f'v_writelane_b32 v253, s{S_ST + 2}, {slot}']

    def probe(self, name, wave=4):
        if self.opt.probe != name:
            return []
        return ['s_memrealtime s[88:89]', 's_waitcnt lgkmcnt(0)']

    def stamp_flush(self):
        if not self.opt.stamps:
            return []
        L = self.build_srd(SRD_WS, S_WS, 0x10000000)
        L += [f's_lshl_b32 s{S_C0}, s2, 3', f's_add_u32 s{S_C0}, s{S_C0}, s{S_WAVE}',
              f's_lshl_b32 s{S_C0}, s{S_C0}, 8', f's_add_u32 s{S_C0}, s{S_C0}, 0x100000',
              'v_lshlrev_b32 v254, 3, v0', 's_mov_b32 exec_hi, 0',
              f'buffer_store_dwordx2 v[252:253], v254, {srd(SRD_WS)}, s{S_C0} offen', 's_mov_b32 exec_hi, -1']
        return L

    def stamp0(self):
        if not self.opt.stamps:
            return []
        return ['v_mov_b32 v252, 0xcdcdcdcd', 'v_mov_b32 v253, 0xcdcdcdcd',
                f'v_writelane_b32 v252, s{S_ST}, 0', f'v_writelane_b32 v253, s{S_ST + 2}, 0'] + self.stamp(15)

    def tlb2(self, t):
        L = self.build_srd(SRD_WS, S_WS, 0x10000000) + self.build_srd(SRD_OUT, S_OUT, 8192) + self.build_srd(SRD_DBG, S_DBG, 256)
        L += [f's_load_dword s{S_BOUT}, s[{S_BO}:{S_BO + 1}], 0', f'v_mov_b32 v{t}, 0', 's_mov_b64 exec, 1',
              f's_mov_b32 s{S_TW}, 0x80000',
              f'buffer_load_dword v{t + 1}, v{t}, {srd(SRD_WS)}, s{S_TW} offen',
              f'buffer_load_dword v{t + 2}, v{t}, {srd(SRD_OUT)}, 0 offen',
              's_mov_b64 exec, -1']
        return L

    def tlb1(self, vtmp, vdst):
        if not self.opt.etlb:
            return self.build_srd(SRD_TAB, S_TAB, 100000 * 128)
        return self.build_srd(SRD_TAB, S_TAB, 100000 * 128) + [
            f'v_mov_b32 v{vtmp}, s{S_BOUT}', f'buffer_load_dword v{vdst}, v{vtmp}, {srd(SRD_TAB)}, 0 offen']

    def gettag(self, lab, t, VT):
        return [f's_cmp_lg_u32 s{S_WAVE}, 0', f's_cbranch_scc1 {lab}',
                f's_memrealtime s[{S_TAGT}:{S_TAGT + 1}]'] + self.build_srd(SRD_DBG, S_DBG, 256) + [
                f's_lshl_b32 s{S_TW}, s{S_MB}, 2', f'v_mov_b32 v{t}, s{S_TW}', 's_waitcnt lgkmcnt(0)',
                f's_or_b32 s{S_TAG}, s{S_TAGT}, 1', f'v_mov_b32 v{VT}, s{S_TAG}', f'v_mov_b32 v{VT + 1}, 0',
                's_mov_b64 exec, 1',
                f'buffer_atomic_cmpswap v[{VT}:{VT + 1}], v{t}, {srd(SRD_DBG)}, 0 offen offset:128 sc0',
                's_mov_b64 exec, -1', f'{lab}:']

    def prologue(self):
        L = []
        if self.opt.stamps:
            L += [f's_memtime s[{S_ST}:{S_ST + 1}]', f's_memrealtime s[{S_ST + 2}:{S_ST + 3}]']
        L += ['s_cmp_ge_u32 s2, 256', 's_cbranch_scc1 L_end',
              's_load_dwordx16 s[4:19], s[0:1], 0',
              's_load_dwordx4 s[20:23], s[0:1], 64',
              's_load_dwordx2 s[24:25], s[0:1], 80',
              'v_lshrrev_b32 v1, 6, v0']
        if self.opt.cpf:
            L += [f's_getpc_b64 s[{S_MASK}:{S_MASK + 1}]', 'L_pc:',
                  f's_and_b32 s{S_T0}, s2, 0xf8', f'v_add_u32 v2, s{S_T0}, v1', 'v_and_b32 v3, 32, v0', 'v_lshl_add_u32 v2, v3, 3, v2', 'v_lshlrev_b32 v2, 7, v2',
                  f'v_min_u32 v2, L_end-L_pc, v2',
                  f'v_mov_b32 v3, s{S_MASK + 1}',
                  f'v_add_co_u32 v2, vcc, s{S_MASK}, v2', 'v_addc_co_u32 v3, vcc, 0, v3, vcc',
                  'global_load_dword v251, v[2:3], off']
        if self.opt.skew:
            L += ['s_memrealtime s[86:87]', 's_mov_b32 s88, 0']
        L += ['v_and_b32 v0, 63, v0',
              f'v_readfirstlane_b32 s{S_WAVE}, v1',
              f's_and_b32 s{S_T0}, s2, 7', f's_lshr_b32 s{S_T1}, s2, 3',
              f's_and_b32 s{S_BOUT}, s2, 0xf8', f's_add_u32 s{S_BOUT}, s{S_BOUT}, s{S_WAVE}', f's_lshl_b32 s{S_BOUT}, s{S_BOUT}, {self.opt.etlb}',
              f's_min_u32 s{S_T2}, s{S_T0}, 1', f's_add_u32 s{S_T3}, s{S_T1}, s{S_T2}',
              f's_cmp_ge_u32 s{S_T3}, 22', 's_cbranch_scc1 L_cin',
              f's_mul_i32 s{S_T0}, s{S_T0}, 21', f's_add_u32 s{S_T0}, s{S_T0}, s{S_T3}',
              f's_mul_i32 s{S_MB}, s{S_T0}, 5042', f's_lshr_b32 s{S_MB}, s{S_MB}, 16',
              f's_mul_i32 s{S_T1}, s{S_MB}, 13', f's_sub_u32 s{S_R}, s{S_T0}, s{S_T1}']
        return self.seq(L)

    def dnn(self):
        o = self.opt
        vW = [1, 2, 3, 4]
        vX = [[5, 6], [7, 8]]
        vPa, vPc = 9, 10
        WF, XA, ACC = 16, 48, 88
        W2F = WF
        KC0, KC1, KONE = 12, 14, 248
        SUMP, GT = 32, 52
        vIdxOff, vCh, vWD, vBL = 1, [2, 3], [4, 5], 11
        ST, VO = 16, 56
        T = 100
        g, i4, q = T + 16, T + 17, T + 18
        PI = T + 8

        def acc(tn, tm):
            return ACC + (tm * 4 + tn) * 4

        def small(srd_, dst):
            return [f's_mov_b32 m0, {dst}', 's_mov_b64 exec, 0xffff',
                    I(f'buffer_load_dwordx4 v{vBL}, {srd(srd_)}, s{S_N0} offen lds', tag='BIAS'), 's_mov_b64 exec, -1']
        L = [f's_lshl_b32 s{S_N0}, s{S_R}, 8', f's_mul_i32 s{S_T3}, s{S_MB}, 320',
             f'v_lshrrev_b32 v{g}, 4, v0', f'v_lshlrev_b32 v{vBL}, 4, v0', f's_and_b32 s{S_CW}, s{S_WAVE}, 3',
             f's_cmp_lt_u32 s{S_WAVE}, 4', 's_cbranch_scc1 L_cmp']
        c0 = self.seq(L)
        self.ldat = len(self.P.static)
        PI = T

        RG, CG = S_T0, S_T1
        L = ['L_cmp:', f's_mul_i32 s{S_T2}, s{S_WAVE}, 13', f'v_min_u32 v{q}, 12, v0', f'v_add_u32 v{q}, s{S_T2}, v{q}',
             f'v_lshrrev_b32 v{i4}, 1, v{q}', f'v_mul_u32_u24 v{i4}, 96, v{i4}', f'v_lshl_add_u32 v{q}, v{q}, 2, v{i4}',
             f's_mul_i32 s{S_C0}, s{S_R}, 25', f's_min_u32 s{S_C0}, s{S_C0}, 294',
             f's_add_u32 s{S_C0}, s{S_C0}, s{S_T3}', f's_mul_i32 s{S_C0}, s{S_C0}, 104', 's_waitcnt lgkmcnt(0)']
        ct = [int(x) for x in o.ct]
        L += self.build_srd(SRD_IDX, S_IDX, 4096 * 104)
        if ct:
            L += [f'buffer_load_dwordx4 {vr(PI, 4)}, v{q}, {srd(SRD_IDX)}, s{S_C0} offen']
        if ct and max(ct) > 3:
            L += [f'buffer_load_dwordx4 {vr(PI + 4, 4)}, v{q}, {srd(SRD_IDX)}, s{S_C0} offen offset:16']
        L += self.tlb1(T + 14, T + 15)
        touch = [x for k in ct for x in (f'v_lshlrev_b32 v{PI + k}, 7, v{PI + k}', f'buffer_load_dword v{XA + k}, v{PI + k}, {srd(SRD_TAB)}, 0 offen')]
        L += self.build_srd(SRD_B1, S_B1, 3328) + small(SRD_B1, L_BIAS) + self.stamp0()
        L += [f's_and_b32 s{RG}, s{S_WAVE}, 1', f's_lshr_b32 s{CG}, s{S_WAVE}, 1',
              f'v_bfe_u32 v{i4}, v0, 2, 2', f'v_lshl_add_u32 v{q}, v{g}, 3, v{i4}', f'v_lshlrev_b32 v{q}, 8, v{q}',
              f'v_bfe_u32 v{i4}, v0, 2, 3', f's_lshl_b32 s{S_T2}, s{CG}, 2', f'v_xor_b32 v{i4}, s{S_T2}, v{i4}',
              f'v_lshl_add_u32 v{q}, v{i4}, 5, v{q}', f'v_and_b32 v{i4}, 3, v0', f'v_lshl_add_u32 v{q}, v{i4}, 3, v{q}',
              f'v_add_u32 v{vW[0]}, {WR}, v{q}']
        L += [f'v_xor_b32 v{vW[tn]}, {32 * tn}, v{vW[0]}' for tn in range(1, 4)]
        L += [f's_lshl_b32 s{S_T2}, s{CG}, 7', f's_add_u32 s{S_T2}, s{S_T2}, {L_BIAS}', f'v_lshlrev_b32 v{q}, 3, v{g}', f'v_add_u32 v{vPa}, s{S_T2}, v{q}',
              f'v_and_b32 v{q}, 15, v0', f'v_lshlrev_b32 v{q}, 7, v{q}',
              f'v_bfe_u32 v{i4}, v0, 1, 3', f'v_xor_b32 v{i4}, v{i4}, v{g}', f'v_lshl_add_u32 v{q}, v{i4}, 4, v{q}',
              f's_mul_i32 s{S_T2}, s{RG}, 20480', f'v_add_u32 v{vX[0][0]}, s{S_T2}, v{q}', f'v_xor_b32 v{vX[1][0]}, 64, v{vX[0][0]}',
              f'v_add_u32 v{vX[0][1]}, {2 * XSLOT}, v{vX[0][0]}', f'v_add_u32 v{vX[1][1]}, {2 * XSLOT}, v{vX[1][0]}',
              f's_mul_i32 s{S_T2}, s{S_WAVE}, 640', f's_add_u32 s{S_T2}, s{S_T2}, {RB}',
              f'v_and_b32 v{q}, 15, v0', f'v_lshlrev_b32 v{q}, 2, v{q}', f'v_add_u32 v{q}, s{S_T2}, v{q}',
              f'v_lshrrev_b32 v{i4}, 5, v0', f'v_lshl_add_u32 v{q}, v{i4}, 6, v{q}', f'v_bfe_u32 v{i4}, v0, 4, 1', f'v_lshl_add_u32 v{vPc}, v{i4}, 7, v{q}',
              f's_mov_b32 s{S_LOOP}, 0',
              f'v_mov_b32 v{KC0}, {f32hex(GELU_C0)}', f'v_mov_b32 v{KC0 + 1}, {f32hex(GELU_C0)}',
              f'v_mov_b32 v{KC1}, {f32hex(GELU_C1)}', f'v_mov_b32 v{KC1 + 1}, {f32hex(GELU_C1)}',
              f'v_mov_b32 v{KONE}, 1.0', f'v_mov_b32 v{KONE + 1}, 1.0']

        def pkreads(off, dst):
            return [f'ds_read_b64 {vr(dst + 4 * tn + 2, 2)}, v{vPa} offset:{off + 32 * tn}' for tn in range(4)]

        def unp(dst):
            c = []
            for tn in range(4):
                r = dst + 4 * tn
                c += [f'v_lshlrev_b32 v{r}, 16, v{r + 2}', f'v_and_b32 v{r + 1}, 0xffff0000, v{r + 2}',
                      f'v_lshlrev_b32 v{r + 2}, 16, v{r + 3}', f'v_and_b32 v{r + 3}, 0xffff0000, v{r + 3}']
            return c
        L += touch + self.stamp(6)
        L += [WaitTag(vm_tags=['BIAS'])] + pkreads(0, WF) + unp(WF)
        L += [f'v_mov_b64 {vr(ACC + r, 2)}, {vr(WF + r % 16, 2)}' for r in range(0, 160, 2)]

        def rX(n, tm):
            xs = (n // 2) % 3
            return f'ds_read_b128 {vr(XA + 4 * tm, 4)}, v{vX[n % 2][xs // 2]} offset:{(xs % 2) * XSLOT + tm * 2048}'

        def rW(n):
            return [f'ds_read_b64_tr_b16 {vr(WF + 16 * (n % 2) + 4 * tn + 2 * rd, 2)}, v{vW[tn]} offset:{(n % 3) * WSLOT + rd * 1024}'
                    for tn in range(4) for rd in range(2)]
        L += self.stamp(1) + ['s_barrier'] + self.stamp(2) + [f's_setprio {o.cprio}']
        L += rW(0)[:2] + [rX(0, 0)] + rW(0)[2:] + [rX(0, tm) for tm in range(1, 10)]
        cpre = self.seq(L)

        def mf(tn, tm, par):
            a = acc(tn, tm)
            return f'v_mfma_f32_16x16x32_bf16 {vr(a, 4)}, {vr(WF + 16 * par + 4 * tn, 4)}, {vr(XA + 4 * tm, 4)}, {vr(a, 4)}'

        def cstep(n, last6=False):
            par = n % 2
            S = []
            BG = o.bgap
            pend = []
            wr = rW(n + 1) if n < 51 else []
            extra = []
            if n == 51:
                extra = pkreads(256, W2F)
            for gi in range(40):
                tm, tn = gi // 4, gi % 4
                S.append(mf(tn if tm % 2 == 0 else 3 - tn, tm, par))
                if tn == 3 and n < 51:
                    pend.append(rX(n + 1, tm))
                if gi == BG - 1 and n < 51:
                    S += ['s_waitcnt lgkmcnt(0)', 's_barrier']
                elif (gi >= BG and (gi % 2 == 1 or not o.rsp or gi > 30)) or n == 51:
                    if pend:
                        S.append(pend.pop(0))
                    elif wr:
                        S.append(wr.pop(0))
                    elif extra:
                        S.append(extra.pop(0))
                if n == 51 and 16 <= gi < 32:
                    S.append(unp(W2F)[gi - 16])
                if gi == 36 and n < 51:
                    S.append(Touch(vr(WF + 16 * (1 - par), 16)))
                if last6 and gi == 37:
                    S += [f's_add_u32 s{S_LOOP}, s{S_LOOP}, 1', f's_cmp_lt_u32 s{S_LOOP}, 8']
            assert not pend and not wr
            return S
        body = self.seq(['L_dnn_loop0:'])
        for n6 in range(6):
            S = cstep(n6, n6 == 5)
            if n6 == 5:
                if o.stamps and o.itst:
                    i_ = S.index('s_barrier')
                    S = S[:i_] + [f's_memtime s[{S_ST}:{S_ST + 1}]', f's_memrealtime s[{S_ST + 2}:{S_ST + 3}]', f's_add_u32 s{S_C0}, s{S_LOOP}, 20', 's_waitcnt lgkmcnt(0)',
                                  f's_mov_b32 m0, s{S_C0}', f'v_writelane_b32 v252, s{S_ST}, m0', f'v_writelane_b32 v253, s{S_ST + 2}, m0'] + S[i_:]
                S += ['s_cbranch_scc1 L_dnn_loop0']
            body += self.seq(S)
        tc = c0 + cpre + body * 3 + self.seq(['L_tail:'])
        for n in range(48, 52):
            tc += self.seq(cstep(n))
        if o.burn:
            bl = [f's_movk_i32 s{S_LOOP}, {o.burn}', 'L_burn:'] + [f'v_mfma_f32_16x16x32_bf16 {vr(XA + 32 + 4 * (k % 2), 4)}, {vr(WF + 16 + 4 * (k % 4), 4)}, {vr(XA + 4 * (k // 4), 4)}, 0' for k in range(32)]
            tc += self.seq(bl + [f's_sub_u32 s{S_LOOP}, s{S_LOOP}, 1', f's_cmp_lg_u32 s{S_LOOP}, 0', 's_cbranch_scc1 L_burn'])
        tc += self.seq(['L_epi:'] + self.stamp(3))

        p2 = lambda r: vr(r, 2)
        seen = set()

        def gelu(groups):
            L = []
            for k, vals in enumerate(groups):
                tb = GT + (k % 2) * 16
                V_ = [(x, w, s_, tb + 4 * i_, tb + 4 * i_ + 2) for i_, (x, w, s_) in enumerate(vals)]
                for (x, w, s_, t, u) in V_:
                    L.append(f'v_pk_mul_f32 {p2(t)}, {p2(x)}, {p2(x)}')
                for (x, w, s_, t, u) in V_:
                    L.append(f'v_pk_fma_f32 {p2(t)}, {p2(t)}, {p2(KC1)}, {p2(KC0)}')
                for (x, w, s_, t, u) in V_:
                    L.append(f'v_pk_mul_f32 {p2(t)}, {p2(t)}, {p2(x)}')
                for (x, w, s_, t, u) in V_:
                    L += [f'v_exp_f32 v{t}, v{t}', f'v_exp_f32 v{t + 1}, v{t + 1}']
                for (x, w, s_, t, u) in V_:
                    L.append(f'v_pk_mul_f32 {p2(u)}, {p2(x)}, {p2(w)}')
                for (x, w, s_, t, u) in V_:
                    L.append(f'v_pk_add_f32 {p2(t)}, {p2(t)}, {p2(KONE)}')
                for (x, w, s_, t, u) in V_:
                    L += [f'v_rcp_f32 v{t}, v{t}', f'v_rcp_f32 v{t + 1}, v{t + 1}']
                for (x, w, s_, t, u) in V_:
                    if s_ in seen:
                        L.append(f'v_pk_fma_f32 {p2(s_)}, {p2(t)}, {p2(u)}, {p2(s_)}')
                    else:
                        L.append(f'v_pk_mul_f32 {p2(s_)}, {p2(t)}, {p2(u)}')
                        seen.add(s_)
            return L
        el = lambda tn, tm, d: (acc(tn, tm) + 2 * d, W2F + 4 * tn + 2 * d, SUMP + 2 * tm)
        L = gelu([[el(tn, 2 * tp + a_, d) for d in range(2) for a_ in range(2)] for tp in range(5) for tn in range(4)])
        if o.walk:
            np_ = (800 + o.walk - 1) // o.walk
            L = [x for k in range(np_) for x in L[o.walk * k:o.walk * (k + 1)] + [f'L_wk{k}:', f's_cbranch_execz L_wk{k + 1}' if k + 1 < np_ else 's_cbranch_execz L_end']]
        sm = lambda tm: SUMP + 2 * tm
        L += [f'v_add_f32 v{sm(tm)}, v{sm(tm)}, v{sm(tm) + 1}' for tm in range(10)]
        L += [f'v_permlane32_swap_b32 v{sm(tm)}, v{sm(tm + 1)}' for tm in range(0, 10, 2)]
        L += [f'v_add_f32 v{sm(tm)}, v{sm(tm)}, v{sm(tm + 1)}' for tm in (8, 0, 2, 4, 6)]
        L += [f'v_mov_b32 v{sm(9)}, v{sm(8)}', f'v_permlane16_swap_b32 v{sm(0)}, v{sm(2)}', f'v_permlane16_swap_b32 v{sm(4)}, v{sm(6)}',
              f'v_permlane16_swap_b32 v{sm(8)}, v{sm(9)}',
              f'v_add_f32 v{sm(0)}, v{sm(0)}, v{sm(2)}', f'v_add_f32 v{sm(4)}, v{sm(4)}, v{sm(6)}', f'v_add_f32 v{sm(8)}, v{sm(8)}, v{sm(9)}',
              f'ds_write_b32 v{vPc}, v{sm(0)}', f'ds_write_b32 v{vPc}, v{sm(4)} offset:256',
              's_mov_b32 exec_lo, 0xffff', 's_mov_b32 exec_hi, 0xffff', f'ds_write_b32 v{vPc}, v{sm(8)} offset:512', 's_mov_b64 exec, -1']
        L += ['s_waitcnt lgkmcnt(0)'] + self.stamp(4) + self.stamp_flush() + ['s_barrier', 's_endpgm']
        tc += self.seq(L)

        def wstage(slot):
            c = []
            for u in range(2):
                c += [f's_add_u32 m0, s{S_WMB}, {WR + slot * WSLOT + u * 1024}',
                      I(f'buffer_load_dwordx4 v{vWD[u]}, {srd(SRD_W)}, s{S_WSOFF} offen lds', tag='W')]
            return c + [f's_add_u32 s{S_WSOFF}, s{S_WSOFF}, {32 * 3328}']

        Q, TM, BP = 16, 56, [12, 13]
        TI, vWT = 70, 76
        SP = [36, 37, 38, 39, 40, 41, 42, 43, 48, 49]
        SI = [94, 95, 96, 97, 98, 99, 100, 101, 82, 83]

        def xaddr(f, pcs):
            c = []
            for odd in range(2):
                p_ = f + 26 * odd
                for pc in pcs:
                    c.append(f'v_add_u32_dpp v{TM + pc}, v{Q + 4 * pc + p_ % 4}, v{vCh[pc & 1]} row_newbcast:{p_ >> 2} row_mask:0xf bank_mask:{(3, 12)[odd]:#x}')
            return c

        def xld(pc, slot, tag='X'):
            return [f's_add_u32 m0, s{SP[pc]}, {slot * XSLOT}',
                    I(f'buffer_load_dwordx4 v{TM + pc}, {srd(SRD_TAB)}, 0 offen lds', tag=tag)]
        idxl = [f'buffer_load_dwordx4 {vr(Q + 4 * pc, 4)}, v{BP[0]}, {srd(SRD_IDX)}, s{SI[pc]} offen' for pc in range(10)]
        LO, HI = range(5), range(5, 10)
        NR = (22 + o.tf - 1) // o.tf
        lw = S_CW
        self.mk0 = len(self.P.static)
        L = [f's_mul_i32 s{S_T0}, s{S_R}, {o.rot}', f's_lshr_b32 s{S_T0}, s{S_T0}, 4',
             f's_mul_i32 s{S_T1}, s{lw}, 10', f's_mul_i32 s{S_C0}, s{S_T3}, 104',
             f'v_mul_u32_u24 v{q}, 48, v{g}', f'v_sub_u32 v{BP[0]}, v{vBL}, v{q}']
        ptab = lambda pc: [f's_add_u32 s{S_T2}, s{S_T0}, {pc}', f's_sub_u32 s{S_TW}, s{S_T2}, 10', f's_min_u32 s{S_T2}, s{S_T2}, s{S_TW}', f's_add_u32 s{S_T2}, s{S_T2}, s{S_T1}',
                           f's_lshl_b32 s{SP[pc]}, s{S_T2}, 10', f's_mul_i32 s{S_T2}, s{S_T2}, 832', f's_add_u32 s{SI[pc]}, s{S_T2}, s{S_C0}']
        for pc in range(o.i0):
            L += ptab(pc)
        L += [f's_and_b32 s{S_T2}, s{lw}, 1', f's_lshl_b32 s{S_T2}, s{S_T2}, 3',
              f'v_lshlrev_b32 v{i4}, 1, v{g}', f'v_or_b32 v{i4}, s{S_T2}, v{i4}', f'v_xor_b32 v{i4}, v{i4}, v0', f'v_and_b32 v{i4}, 15, v{i4}',
              f'v_mul_u32_u24 v{vWD[0]}, 3328, v{g}', f'v_lshl_add_u32 v{vWD[0]}, v{i4}, 4, v{vWD[0]}', f'v_add_u32 v{vWD[1]}, {4 * 3328}, v{vWD[0]}',
              f's_mul_i32 s{S_WSOFF}, s{lw}, {8 * 3328}', f's_add_u32 s{S_WSOFF}, s{S_WSOFF}, s{S_N0}', f's_lshl_b32 s{S_WMB}, s{lw}, 11',
              's_waitcnt lgkmcnt(0)']
        L += self.build_srd(SRD_IDX, S_IDX, 4096 * 104) + idxl[:o.i0] + self.tlb1(T + 14, T + 15) + self.build_srd(SRD_W, S_W1, 1664 * 3328)
        for sl in range(o.w0):
            L += wstage(sl)
        L += self.stamp0()
        for pc in range(o.i0, 10):
            L += ptab(pc) + ([idxl[pc]] if pc < o.i1 else [])
        L += [f's_and_b32 s{S_T2}, s{S_T0}, 1', f's_lshl_b32 s{S_T2}, s{S_T2}, 6',
              f'v_and_b32 v{q}, 7, v0', f'v_xor_b32 v{q}, v{q}, v{g}', f'v_lshlrev_b32 v{q}, 4, v{q}', f'v_xor_b32 v{vCh[0]}, s{S_T2}, v{q}', f'v_xor_b32 v{vCh[1]}, 64, v{vCh[0]}',
              f's_mov_b32 s{S_LOOP}, 0',
              f's_mul_i32 s{S_T2}, s{lw}, 13', f's_add_u32 s{S_T2}, s{S_T2}, s{S_R}', f's_min_u32 s{S_T2}, s{S_T2}, 39', f's_lshl_b32 s{S_T2}, s{S_T2}, 3',
              f's_add_u32 s{S_T2}, s{S_T2}, s{S_T3}', f's_mul_i32 s{S_GRP}, s{S_T2}, 104',
              f'v_lshrrev_b32 v{q}, {o.tf.bit_length() - 1}, v0', f'v_min_u32 v{q}, 7, v{q}', f'v_mul_u32_u24 v{q}, 104, v{q}',
              f'v_and_b32 v{i4}, {o.tf - 1}, v0', f'v_lshl_add_u32 v7, v{i4}, 2, v{q}',
              f's_lshl_b32 s{S_T2}, s{S_MB}, 2', f's_add_u32 s{S_T2}, s{S_T2}, s{lw}', f's_add_u32 s{S_T2}, s{S_T2}, {o.tw0 * 32}', f's_mul_i32 s{S_RC}, s{S_T2}, 3328',
              f's_add_u32 s{S_RC}, s{S_RC}, s{S_N0}', f's_mov_b32 s{S_T2}, {52 * 3328}',
              f'v_lshrrev_b32 v{q}, 1, v0', f'v_mul_lo_u32 v{q}, s{S_T2}, v{q}', f'v_and_b32 v{i4}, 1, v0', f'v_lshl_add_u32 v{vWT}, v{i4}, 7, v{q}']
        L += self.build_srd(SRD_W2, S_W2, 3328)
        L += [f's_mul_i32 s{S_T2}, s{lw}, {o.lpf * 128}', f's_add_u32 s{S_T2}, s{S_T2}, L_tail-L_pc', f'v_lshlrev_b32 v8, 7, v0', f'v_add_u32 v8, s{S_T2}, v8',
              f'v_mov_b32 v9, s{S_MASK + 1}', f'v_add_co_u32 v8, vcc, s{S_MASK}, v8', 'v_addc_co_u32 v9, vcc, 0, v9, vcc']
        sh = lambda pc, c_: f'v_lshlrev_b32 v{Q + 4 * pc + c_}, 7, v{Q + 4 * pc + c_}'
        for pc in range(10):
            L += [sh(pc, 0), sh(pc, 2), sh(pc, 1), sh(pc, 3)] + xaddr(0, [pc]) + xld(pc, 0, 'X0')
            if pc == o.i0 - 1:
                L += idxl[o.i1:] + self.stamp(6)
                for sl in range(o.w0, 2):
                    L += wstage(sl)
        L += self.stamp(7)
        x1 = [x for pc in range(10) for x in xaddr(1, [pc]) + xld(pc, 1)]
        L += x1[:4 * o.x1n] + [WaitTag(vm_tags=['X0'])] + self.stamp(1) + ['s_barrier'] + self.probe('s0') + x1[4 * o.x1n:4 * o.x1m] + ['s_barrier'] + x1[4 * o.x1m:]
        L += xaddr(2, range(10)) + wstage(2)
        tex = (1 << (8 * o.tf)) - 1
        texec = [f's_mov_b32 exec_lo, {tex & 0xffffffff:#x}', f's_mov_b32 exec_hi, {tex >> 32:#x}']
        if o.tch:
            L += [f'buffer_load_dword v{TI + r}, v7, {srd(SRD_IDX)}, s{S_GRP} offen offset:{4 * min(4 + o.tf * r, 26 - o.tf)}' for r in range(NR)]
        for pc in LO:
            L += xld(pc, 2)
        lpre = self.seq(L + [f's_setprio {o.lprio}', 's_branch L_ld_in'])
        del self.P.static[self.mk0:]
        self.P.static[self.ldat:self.ldat] = lpre
        self.mk0 = len(self.P.static)

        def lstep(n, inloop):
            S = ['s_barrier'] + (['L_ld_in:'] if inloop and n == 0 else [])
            if inloop:
                f = (n + 5) // 2
                f2 = (n + 6) // 2
                nxt = HI if n % 2 else LO
                xa = xaddr(f2, nxt)
                dm = wstage(n % 3) + [x for pc in (LO if n % 2 else HI) for x in xld(pc, f % 3)]
                for x in dm:
                    if isinstance(x, I):
                        S.append(xa.pop(0))
                    S.append(x)
                S += xa
                if n >= 22:
                    S += [f'v_mov_b32_dpp v{Q + 4 * pc + c_}, v{Q + 4 * pc + c_} row_shl:3 row_mask:0xf bank_mask:0xf' for pc in nxt for c_ in range(4)]
                if n == 23:
                    S += [f's_add_u32 s{S_LOOP}, s{S_LOOP}, 1', f's_cmp_lt_u32 s{S_LOOP}, 2']
                S += [WaitTag(allbut=('W', 2))]
            elif n == 48:
                S += wstage(0) + small(SRD_W2, L_W2) + self.tlb2(T)
                S += ['s_mov_b64 exec, 1', f'buffer_load_dword v250, v{T}, {srd(SRD_DBG)}, 0 offen offset:240 sc1', 's_mov_b64 exec, -1', WaitTag(allbut=('W', 2))]
            elif n == 49:
                S += [WaitTag(vm0=True)]
            return S
        body = self.seq(['L_dnn_loop1:'])
        per = 2 * o.tf
        for n in range(24):
            if n == 15 and o.lpf:
                body += self.seq([f's_cmp_lg_u32 s{S_LOOP}, 1', 's_cbranch_scc1 L_nolpf'])
                self.seq([f's_mov_b64 exec, {(1 << o.lpf) - 1}', 'global_load_dword v10, v[8:9], off', 's_mov_b64 exec, -1'])
                body += self.seq(['L_nolpf:'])
            S = lstep(n, True)
            if o.tch and n % per == o.toff:
                t_ = [f'v_lshlrev_b32 v{T + 1}, 7, v{TI}'] + texec + [f'buffer_load_dword v{T + 2}, v{T + 1}, {srd(SRD_TAB)}, 0 offen', 's_mov_b64 exec, -1']
                t_ += [f'v_mov_b32 v{TI + r}, v{TI + r + 1}' for r in range(NR - 1)] + [f'v_mov_b32 v{TI + NR - 1}, 0xffffff']
                S = S[:-1] + t_ + S[-1:]
            if o.tch and n % 8 == 3:
                S = S[:-1] + ['s_mov_b64 exec, 0x3ff', f'buffer_load_dword v{T + 3}, v{vWT}, {srd(SRD_W)}, s{S_RC} offen', 's_mov_b64 exec, -1',
                              f's_add_u32 s{S_RC}, s{S_RC}, {260 * 3328}'] + S[-1:]
            body += self.seq(S + (['s_cbranch_scc1 L_dnn_loop1'] if n == 23 else []))
        tl = c0 + lpre + body * 2 + self.seq(['s_branch L_ld_tail'])
        self.ldblk = self.P.static[self.mk0:]
        del self.P.static[self.mk0:]
        tl += self.seq(['L_ld_tail:'])
        for n in range(48, 51):
            tl += self.seq(lstep(n, False))
        tl += self.seq(self.probe('s50'))
        if o.walk:
            tl += self.seq([f's_cmp_eq_u32 s{lw}, 0', 's_cbranch_scc1 L_wkd', 's_mov_b64 exec, 0', f's_cmp_eq_u32 s{lw}, 1', 's_cbranch_scc1 L_wk0',
                            f's_cmp_eq_u32 s{lw}, 2', f's_cbranch_scc1 L_wk{np_ // 3}', f's_branch L_wk{2 * np_ // 3}', 'L_wkd:'])
        A = 64
        L = [f's_cmp_lg_u32 s{S_WAVE}, 4', 's_cbranch_scc1 L_end',
             f'v_lshlrev_b32 v3, 4, v0', f'v_lshlrev_b32 v4, 2, v0', f'v_add_u32 v1, {RB}, v3', f'v_add_u32 v2, {RB + 1024}, v4', f'v_add_u32 v4, 1024, v4',
             'v_mov_b32 v5, 32', f'v_mov_b32 v7, s{S_MB}',
             f's_mul_i32 s{S_T0}, s{S_MB}, 1280', f's_mul_i32 s{S_T1}, s{S_R}, {WSP}', f's_add_u32 s{S_T1}, s{S_T1}, s{S_T0}', 's_setprio 3']
        L += self.stamp_flush() + ['s_barrier'] + self.probe('dend')
        L += [f'ds_read_b128 {vr(A, 4)}, v1', f'ds_read_b128 {vr(A + 8, 4)}, v1 offset:1280', f'ds_read2st64_b32 {vr(A + 4, 2)}, v2 offset0:0 offset1:5',
              f'v_pk_add_f32 {p2(A)}, {p2(A)}, {p2(A + 8)}', f'v_pk_add_f32 {p2(A + 2)}, {p2(A + 2)}, {p2(A + 10)}', f'v_add_f32 v{A + 4}, v{A + 4}, v{A + 5}']
        L += (self.stamp(16) if o.diag else [])
        L += [f'buffer_store_dwordx4 {vr(A, 4)}, v3, {srd(SRD_WS)}, s{S_T1} offen sc1',
              f'buffer_store_dword v{A + 4}, v4, {srd(SRD_WS)}, s{S_T1} offen sc1', 's_mov_b64 exec, 1']
        tl += self.seq(L)

        L = ['L_pub:']
        if o.skew:
            L += ['v_mov_b32 v20, s86', 'v_mov_b32 v21, s86', 'v_mov_b32 v22, s88', 's_lshl_b32 s89, s2, 7', 's_add_u32 s89, s89, 0x40000', 'v_lshlrev_b32 v23, 28, v0',
                  f'buffer_store_dwordx3 v[20:22], v23, {srd(SRD_WS)}, s89 offen sc1']
        L += ['v_lshlrev_b32 v6, 4, v7', 'v_cmp_eq_u32 vcc, 12, v7', 'v_mov_b32 v8, 436', 'v_mov_b32 v9, 434', 'v_cndmask_b32 v8, v8, v9, vcc',
             'v_sub_u32 v8, v8, v5', 's_waitcnt vmcnt(0)',
             f'buffer_atomic_add v5, v6, {srd(SRD_DBG)}, 0 offen sc0',
             's_waitcnt vmcnt(0) lgkmcnt(0)'] + (self.stamp(18) if o.diag else []) + [
             f'v_cmp_eq_u32 s[{S_EX}:{S_EX + 1}], v5, v8', 's_mov_b64 exec, -1', f's_lshl_b32 s{S_BOUT}, s{S_BOUT}, 16',
             'L_fin:', f's_cmp_eq_u32 s{S_EX}, 0', 's_cbranch_scc1 L_done',
             f's_ff1_i32_b32 s{S_T2}, s{S_EX}', f's_bitset0_b32 s{S_EX}, s{S_T2}', f'v_readlane_b32 s{S_T3}, v7, s{S_T2}',
             f's_mul_i32 s{S_T0}, s{S_T3}, 1280', f's_mul_i32 s{S_T3}, s{S_T3}, 640']
        for qq in range(14):
            L += [f'buffer_load_dwordx4 {vr(A + 8 * qq, 4)}, v3, {srd(SRD_WS)}, s{S_T0} offen sc1',
                  f'buffer_load_dword v{A + 8 * qq + 4}, v4, {srd(SRD_WS)}, s{S_T0} offen sc1', f's_add_u32 s{S_T0}, s{S_T0}, {WSP}']
        L += ['v_lshrrev_b32 v1, 1, v3', 'v_lshrrev_b32 v2, 1, v4']
        for qq in range(1, 14):
            L += [f'v_pk_add_f32 {p2(A)}, {p2(A)}, {p2(A + 8 * qq)}', f'v_pk_add_f32 {p2(A + 2)}, {p2(A + 2)}, {p2(A + 8 * qq + 2)}',
                  f'v_add_f32 v{A + 4}, v{A + 4}, v{A + 8 * qq + 4}']
        L += [f'v_add_f32 v{A + k}, s{S_BOUT}, v{A + k}' for k in range(5)]
        L += [f'v_cvt_pk_bf16_f32 v10, v{A}, v{A + 1}', f'v_cvt_pk_bf16_f32 v11, v{A + 2}, v{A + 3}', f'v_cvt_pk_bf16_f32 v12, v{A + 4}, v{A + 4}',
              f'buffer_store_dwordx2 v[10:11], v1, {srd(SRD_OUT)}, s{S_T3} offen', f'buffer_store_short v12, v2, {srd(SRD_OUT)}, s{S_T3} offen']
        if o.skew:
            L += [f's_cmp_lg_u32 s{S_EX}, 0', 's_cbranch_scc1 L_fin', 'v_lshlrev_b32 v20, 7, v0', 's_mov_b32 s88, 0x40000']
            for k in range(4):
                L += [f'buffer_load_dwordx3 v[{32 + 4 * k}:{34 + 4 * k}], v20, {srd(SRD_WS)}, s88 offen sc1', 's_add_u32 s88, s88, 8192']
            L += ['s_waitcnt vmcnt(0)']
            L += ['s_memrealtime s[88:89]', 's_waitcnt lgkmcnt(0)', 'v_mov_b32 v29, s86']
            for k in range(4):
                L += [f'v_sub_u32 v28, s88, v{32 + 4 * k}', 'v_cmp_gt_u32 vcc, 10000, v28', f'v_cndmask_b32 v{32 + 4 * k}, v29, v{32 + 4 * k}, vcc', f'v_cndmask_b32 v{34 + 4 * k}, 0, v{34 + 4 * k}, vcc']
            for k in range(4):
                L += [f'v_sub_u32 v28, v{34 + 4 * k}, v{32 + 4 * k}', 'v_cmp_gt_u32 vcc, 10000, v28', f'v_cndmask_b32 v{33 + 4 * k}, v{32 + 4 * k}, v{34 + 4 * k}, vcc']
            L += ['v_max_u32 v26, v33, v37', 'v_max3_u32 v26, v26, v41, v45', 'v_min_u32 v27, v32, v36', 'v_min3_u32 v27, v27, v40, v44', 'v_not_b32 v27, v27']
            if o.probe == 'span':
                L += ['s_memrealtime s[86:87]', 's_waitcnt lgkmcnt(0)', 'v_mov_b32 v26, s86']
            for (ctl, rm) in (('row_shr:1', '0xf'), ('row_shr:2', '0xf'), ('row_shr:4', '0xf'), ('row_shr:8', '0xf'), ('row_bcast:15', '0xa'), ('row_bcast:31', '0xc')):
                L += [f'v_max_u32_dpp v{r}, v{r}, v{r} {ctl} row_mask:{rm} bank_mask:0xf' for r in (26, 27)]
            L += ['v_not_b32 v27, v27', 'v_sub_u32 v22, v26, v27', 's_memrealtime s[86:87]', 'v_readlane_b32 s88, v22, 63', 's_waitcnt lgkmcnt(0)',
                  's_min_u32 s88, s88, 5000', f's_mul_i32 s88, s88, {o.skew - 1}', 's_add_u32 s88, s88, s86',
                  'L_spin:', 's_memrealtime s[86:87]', 's_waitcnt lgkmcnt(0)', 's_sub_u32 s89, s88, s86', 's_cmp_gt_i32 s89, 0', 's_cbranch_scc1 L_spin']
        L += self.stamp(5) + self.stamp_flush() + ['s_branch L_fin', 'L_done:', 's_endpgm']
        self.pub = self.seq(L)
        return [tc, tl + self.pub]

    def pubsrd(self):
        return self.build_srd(SRD_WS, S_WS, 0x10000000) + self.build_srd(SRD_OUT, S_OUT, 8192) + self.build_srd(SRD_DBG, S_DBG, 256)

    def tables(self):
        OOB = 0x100000
        G = [[] for _ in range(11)]
        for l in range(64):
            half, i32, g, r, c = l >> 5, l & 31, l >> 4, (l >> 2) & 3, l & 3
            lin0 = g * 128 + r * XPP + c * 8
            G[0] += [lin0, lin0 + 512 if g < 3 else XOFF(27) + c * 8, (l >> 3) * 16, 0x3f803f80 if l < 32 else 0]
            G[1] += [(l & 7) * 16, 0xeeee if l & 1 else 0x4444, half * XPP + i32 * 4, IMG + half * 20 * IMGP + i32 * 4]
            tr = [IMG + cin16.IMGROW(cin16.LAB[g][2 * rp + (r >> 1)][r & 1]) * IMGP + c * 8 for rp in range(8)]
            G[2] += tr[:4]
            G[3] += tr[4:]
            row, col = 8 * half + r, (g & 1) * 32 + c * 8
            G[4] += [V3OFF + row * 64 + col, A1 + row * 1352 + col, A1 + min(row + 16, 25) * 1352 + col, A1 + min(row + 20, 25) * 1352 + col]
            t, gd, rr = (i32 >> 2) & 1, i32 >> 3, i32 & 3
            ig = 16 * t + 4 * rr + gd
            iq = 4 * rr + gd if t == 0 else 16 + ((4 * rr + gd + 4) & 15)
            pm = []
            for q in range(8):
                k0 = 16 * (q >> 2) + 8 * half + 2 * (q & 3)
                pm.append((0xffff if iq == k0 else 0xffff0000 if iq == k0 + 1 else 0) if iq < 26 else 0)
            G[5] += pm[:4]
            G[6] += pm[4:]
            ga = A2 + 52 * ig if ig < 26 else OOB
            rowp = ((l & 12) + 2 * (l & 1)) * 16 + (OOB if l & 2 else 0)
            G[7] += [ga + half * 8 * 1352, ga + half * OOB, rowp + half * 256 + (g & 1) * 8, rowp + g * 256]
            G[8] += [SG + i32 * 64 if i32 < 26 else V2S if i32 == 26 else OOB, 64 if i32 == 26 else 3328, (i32 >> 1) + 2 * half,
                     SQ + i32 * 64 + ((((i32 >> 1) & 3) ^ (2 * half)) << 4)]
            v2 = []
            for hf in range(2):
                j = 4 * g + 16 * hf + r
                v2.append(V2S + (j & 1) * 1664 + (j >> 1) * 64 + ((c ^ (((13 + j) & 3) * 2)) * 8) if j < 26 else SG + 676 * 64 + c * 8)
            wo = [L_WCO + 2 * (16 * tl_ + 4 * c + r) if 16 * tl_ + 4 * c + r < 26 else OOB for tl_ in range(2)]
            G[9] += v2 + wo
            G[10] += [L_WCO + 104 + 16 * half, L_WCO + 52 + 2 * l, V3OFF + 52 + 64 * l, SG + 676 * 64 + (l & 15) * 4]
        U = []
        for w in range(8):
            for e in range(16):
                for u in (w, w + 8, w + 16):
                    U += [SG + row * 64 + f * 8 for row, f in cin16.p2rows(u, e >> 2, e & 3)] if u < 22 else [0, 0]
        return [x for n in (4, 10, 2, 3, 0, 5, 6, 7, 8, 9, 1) for x in G[n]] + [0] * 256 + U + [0] * 256

    def cin(self):
        o = self.opt
        cw = S_CW
        vFa, vLin0, vLin1, vXi0, vXi1, vC16, vIDX, vXa, vIw, vPWL, vPXL, PXR, PFR = 1, 4, 5, 6, 7, 8, 9, 10, 11, 12, 13, 3, 14
        XI, vTR = 16, 20
        XR, P, Z, WF, D = 32, 60, 116, 164, 184
        vStg, vFR, vFw = vFa, 2, 59
        t3, t4, t5 = 29, 30, 31
        AV = [28, 58]
        PM = 216
        vA3, vBs0, vBs1a, vBs1b, vGa, vGb, vT3, vT3d = range(224, 232)
        G8, vV2r, vV2q, vWo, AD = 232, 236, 237, 238, 240
        WA = list(range(244, 250))
        vS, vMx = 250, 111
        UA, UX = 152, 158
        AFR = 112
        BALL, DALL = 60, 120
        S_F1, S_F2, S_G, S_LO, S_HI, S_CM, S_U0, S_U1, S_U2 = 74, 75, 95, 96, 97, 90, 98, 99, 100
        S_CG, S_IV = 0, 1
        OOB = 0x100000
        TA_, TB_, TC_ = SG + 35840, SQ + 35840, FRS + 2048
        GREG = [224, 240, 20, 24, 4, 216, 220, 228, 232, 236, 8]
        DPPS = (('row_shr:1', '0xf'), ('row_shr:2', '0xf'), ('row_shr:4', '0xf'), ('row_shr:8', '0xf'),
                ('row_bcast:15', '0xa'), ('row_bcast:31', '0xc'))

        K_W7, K_IMG, K_W2, K_W1, K_W12, K_H8, K_T3 = 44, 45, 46, 47, 92 - 10, 92 - 9, 101
        L = ['L_cin:', f'v_lshlrev_b32 v{vStg}, 4, v0', f's_and_b32 s{cw}, s{S_WAVE}, 3', f's_lshr_b32 s{S_GRP}, s{S_WAVE}, 2', f's_lshl_b32 s{S_STG}, s{cw}, 10',
             f's_mul_i32 s{S_MB}, s{S_T0}, 11', f's_add_u32 s{S_MB}, s{S_MB}, s{S_T1}', f's_sub_u32 s{S_MB}, s{S_MB}, 22',
             f's_cmp_eq_u32 s{S_MB}, 86', 's_cbranch_scc1 L_end', f's_cmp_eq_u32 s{S_GRP}, 0', 's_cbranch_scc1 L_sc']
        c0 = self.seq(L)
        L = ['s_setprio 2', f'v_add_u32 v2, L_tables-L_pc, v{vStg}', f'v_mov_b32 v3, s{S_MASK + 1}',
             f'v_add_co_u32 v2, vcc, s{S_MASK}, v2', 'v_addc_co_u32 v3, vcc, 0, v3, vcc',
             f'global_load_dwordx4 {vr(GREG[0], 4)}, v[2:3], off', f'global_load_dwordx4 {vr(GREG[1], 4)}, v[2:3], off offset:1024',
             f'v_add_co_u32 v2, vcc, s{S_STG}, v2', 'v_addc_co_u32 v3, vcc, 0, v3, vcc',
             f's_cmp_lt_u32 s{cw}, 2', f's_mov_b32 s{S_T2}, {TB_ - 2048}', f's_cselect_b32 s{S_T2}, {TA_ + 4096}, s{S_T2}']
        for m, dst in enumerate((TA_, None, TB_ + 2048, TC_)):
            L += [f's_add_u32 m0, s{S_STG}, {dst}' if dst is not None else f's_add_u32 m0, s{S_STG}, s{S_T2}', I('global_load_lds_dwordx4 v[2:3], off', tag='TAB')]
            if m < 3:
                L += ['v_add_co_u32 v2, vcc, 0x1000, v2', 'v_addc_co_u32 v3, vcc, 0, v3, vcc']
        g1t = self.seq(L)
        L = ['L_sc:', f's_mul_i32 s{S_RC}, s{S_GRP}, 20', f's_add_u32 s{S_RC}, s{S_RC}, s{S_WAVE}',
             f's_mul_i32 s{S_SAMP}, s{S_MB}, 48', f's_add_u32 s{S_SAMP}, s{S_SAMP}, s{S_RC}', f's_mul_i32 s{S_SAMP}, s{S_SAMP}, 104',
             f'v_lshrrev_b32 v{vXi0}, 3, v0', f'v_lshlrev_b32 v{vXi0}, 4, v{vXi0}', f'v_and_b32 v{vC16}, 0x70, v{vStg}',
             f's_mul_i32 s{S_XM0}, s{S_WAVE}, {XBSZ}', f's_add_u32 s{S_XM0}, s{S_XM0}, {XB}', f's_cmp_eq_u32 s{S_GRP}, 0', 's_cbranch_scc1 L_g0']
        csc = self.seq(L)
        SC2 = [f's_lshl_b32 s{S_RC}, s{S_RC}, 2', f's_add_u32 s{S_RC}, s{S_RC}, {RC}',
               f's_mul_i32 s{S_LOOP}, s{S_GRP}, 3', f's_sub_u32 s{S_LOOP}, 4, s{S_LOOP}', (f's_cmp_eq_u32 s{S_MB}, 85', f's_cselect_b32 s{S_LOOP}, s{S_LOOP}, 6'),
               f's_lshl_b32 s{K_W7}, s{S_WAVE}, 7', f's_mul_i32 s{K_IMG}, s{S_WAVE}, {IMGSZ}', f's_lshl_b32 s{K_W2}, s{S_WAVE}, 2', f's_lshl_b32 s{K_W1}, s{S_WAVE}, 1',
               f's_lshl_b32 s{K_W12}, s{S_WAVE}, 12',
               f's_and_b32 s{S_U0}, s{S_WAVE}, 1', f's_lshr_b32 s{S_U1}, s{S_WAVE}, 1',
               f's_mul_i32 s{S_T0}, s{S_U1}, 3072', f's_lshl_b32 s{K_H8}, s{S_U0}, 3', f's_add_u32 s{S_T0}, s{S_T0}, s{K_H8}', f'v_add_u32 v{vFw}, s{S_T0}, v{vStg}',
               f's_lshl_b32 s{S_T1}, s{S_U1}, 3', f's_lshr_b32 s{S_T1}, 0x05030200, s{S_T1}', f's_and_b32 s{S_T1}, s{S_T1}, 0xff',
               f's_lshl_b32 s{S_T1}, s{S_T1}, 9', f's_lshl_b32 s{S_T2}, s{S_U0}, 2', f's_add_u32 s{K_T3}, s{S_T1}, s{S_T2}',
               f's_mov_b32 s{S_U1}, 0x05040100', f's_mov_b32 s{S_U2}, 0x07060302',
               f'v_mov_b32 v{vFR}, {L_FLG}', 'v_mov_b32 v109, 0', 'v_mov_b32 v108, 0'] + [f'v_mov_b64 {vr(r, 2)}, 0' for r in range(XR, XR + 26, 2)]
        XJ = 104
        assert not (o.pfx or o.pfw)

        def pfw():
            return [f'buffer_load_dword v{PFR}, v{vPWL}, {srd(SRD_W)}, s{S_PW} offen',
                    f's_add_u32 s{S_PW}, s{S_PW}, {o.pfne * 688 * 128}']

        def pfx_a():
            return [f'buffer_load_dword v{PXR}, v{vPXL}, {srd(SRD_IDX)}, s{S_PX} offen',
                    f's_cmp_eq_u32 s{S_PX}, s{S_PXE}', f's_cselect_b32 s{S_PXE}, 0x7000000, s{S_PXE}',
                    f's_cselect_b32 s{S_PX}, 0x7000000, s{S_PX}',
                    f's_add_u32 s{S_PX}, s{S_PX}, 24', f's_min_u32 s{S_PX}, s{S_PX}, s{S_PXE}']

        def pfx_b():
            return [f'v_lshlrev_b32 v{PXR}, 7, v{PXR}', f'buffer_load_dword v{PFR + 1}, v{PXR}, {srd(SRD_TAB)}, 0 offen']

        def xidx(XI=XI):
            return [f'buffer_load_dwordx4 {vr(XI, 4)}, v{vXi0}, {srd(SRD_IDX)}, s{S_SAMP} offen', f's_add_u32 s{S_SAMP}, s{S_SAMP}, {4 * 104}']

        def xdma(XI=XI, off=0, tag='XB'):
            c = [f'v_lshl_add_u32 v{XI + u}, v{XI + u}, 7, v{vC16}' for u in range(4)]
            for u in range(4):
                c += [f's_add_u32 m0, s{S_XM0}, {u * XPP + off}']
                if u % 2 == 0:
                    c.append(f's_mov_b32 exec_hi, {0xffffff if u == 0 else 0xffff:#x}')
                c.append(I(f'buffer_load_dwordx4 v{XI + u}, {srd(SRD_TAB)}, 0 offen lds', tag=tag))
            return c + ['s_mov_b32 exec_hi, -1']

        def stage(dst, goff, tag):
            st = []
            for m in range(9):
                st.append((f's_add_u32 m0, s{S_STG}, {dst + m * 4096}', f's_add_u32 s{S_TW}, s{S_STG}, {goff + m * 4096}',
                           I(f'buffer_load_dwordx4 v{vStg}, {srd(SRD_CIN)}, s{S_TW} offen lds', tag=tag)))
            return st

        def pubmax(regs_offs):
            c = []
            for (ctl, rm) in DPPS:
                for r, _ in regs_offs:
                    c.append(f'v_max_u32_dpp v{r}, v{r}, v{r} {ctl} row_mask:{rm} bank_mask:0xf')
            c += ['s_mov_b32 exec_lo, 0', 's_mov_b32 exec_hi, 0x80000000']
            c += [f'ds_max_u32 v{vFR}, v{r} offset:{16 + 4 * k}' for r, k in regs_offs]
            return c + ['s_mov_b64 exec, -1']

        def mxop(src, n, mx, mn, first):
            c = []
            for r in range(0, n, 2):
                z = first and r == 0
                c += [f'v_pk_maximum3_f16 v{mx}, v{src + r}, v{src + r + 1}, {"0" if z else f"v{mx}"}', f'v_pk_minimum3_f16 v{mn}, v{src + r}, v{src + r + 1}, {"0" if z else f"v{mn}"}']
            return c

        def mxfin(mx, mn):
            return [f'v_and_b32 v{mn}, 0x7fff7fff, v{mn}', f'v_and_b32 v{mx}, 0x7fff7fff, v{mx}', f'v_pk_max_u16 v{mx}, v{mx}, v{mn}',
                    f'v_lshlrev_b32 v{mn}, 16, v{mx}', f'v_max_u32 v{mx}, v{mx}, v{mn}']

        def bread(m, off):
            b = BALL + m * 8
            return [f'ds_read_b64_tr_b16 {vr(b, 2)}, v{vBs0} offset:{off}',
                    f'ds_read_b64_tr_b16 {vr(b + 2, 2)}, v{vBs0} offset:{off + 4 * 1352}',
                    f'ds_read_b64_tr_b16 {vr(b + 4, 2)}, v{vBs1a} offset:{off}',
                    f'ds_read_b64_tr_b16 {vr(b + 6, 2)}, v{vBs1b} offset:{off}']

        def mm2(d, a, b):
            return [f'v_mfma_f32_32x32x16_bf16 {vr(d, 16)}, {vr(a, 4)}, {vr(b, 4)}, 0',
                    f'v_mfma_f32_32x32x16_bf16 {vr(d, 16)}, {vr(a + 4, 4)}, {vr(b + 4, 4)}, {vr(d, 16)}']

        tA, tB = 14, 15
        trd = lambda n: f'ds_read_b128 {vr(GREG[n], 4)}, v{tA if n < 6 else tB} offset:{(n if n < 6 else n - 6) * 1024}'
        vbs = [f'v_add_u32 v{r}, s{K_W7}, v{r}' for r in (vBs0, vBs1a, vBs1b)]

        def FX(g):
            R = [trd(n) for n in ((0,) if g == 0 else ()) + (7, 8, 4, 10, 2, 3, 5, 6, 9)]
            F = (vbs if g == 0 else []) + [f'v_add_u32 v{r}, s{K_W2}, v{r}' for r in (vGa, vGb)]
            F += [f'v_add_u32 v{vT3d}, s{K_H8}, v{vT3d}', f'v_add_u32 v{vT3}, s{K_T3}, v{vT3}']
            F += [f'v_mad_u32_u24 v{G8}, v{G8 + 1}, s{S_WAVE}, v{G8}', f'v_add_u32 v{G8 + 2}, s{K_W1}, v{G8 + 2}',
                  f'v_mad_u32_u24 v{G8 + 1}, v{G8 + 1}, 5, v{G8}', f'v_add_u32 v{WA[2]}, s{K_W12}, v{G8 + 3}', f'v_add_u32 v{WA[3]}, 2048, v{WA[2]}']
            for n_, (wa, bs) in enumerate(((WA[0], G8), (WA[1], G8), (WA[4], G8 + 1), (WA[5], G8 + 1))):
                F += [f'v_add_u32 v{t5}, {n_}, v{G8 + 2}', f'v_and_b32 v{t5}, 3, v{t5}', f'v_lshl_add_u32 v{wa}, v{t5}, 4, v{bs}']
                if n_ & 1:
                    F.append(f'v_add_u32 v{wa}, 1664, v{wa}')
            F += [f'v_add_u32 v{r}, s{S_XM0}, v{r}' for r in (vXa, vLin0, vLin1)] + [f'ds_write_b32 v{vXa}, v{vXi1} offset:{XOFF(26)}']
            F += [f'v_add_u32 v{r}, s{K_IMG}, v{r}' for r in [vIw] + list(range(vTR, vTR + 8))]
            return R, F
        SC2 += [f'v_add_u32 v{tA}, {TA_}, v{vStg}', f'v_add_u32 v{tB}, {TB_}, v{vStg}', f'v_lshrrev_b32 v3, 5, v0', f'v_lshl_add_u32 v3, v3, 2, v{vFR}']

        def pub2(r1, r2, off):
            c = [f'v_permlane32_swap_b32 v{r1}, v{r2}', f'v_max_u32 v{r1}, v{r1}, v{r2}']
            c += [f'v_max_u32_dpp v{r1}, v{r1}, v{r1} {ctl} row_mask:{rm} bank_mask:0xf' for ctl, rm in DPPS[:5]]
            return c + ['s_mov_b32 exec_lo, 0x80000000', 's_mov_b32 exec_hi, 0x80000000', f'ds_max_u32 v3, v{r1} offset:{16 + off}', 's_mov_b64 exec, -1']
        AV = [28, 58, 111]
        L = ['s_waitcnt lgkmcnt(0)'] + self.build_srd(SRD_WCO, S_WCO, 156) + [f's_mov_b32 m0, {L_WCO}', 's_mov_b64 exec, 0x7ff',
             I(f'buffer_load_dwordx4 v{vStg}, {srd(SRD_WCO)}, 0 offen lds', tag='WCO'), 's_mov_b64 exec, -1'] + self.stamp0() + SC2
        L += self.build_srd(SRD_IDX, S_IDX, 4096 * 104) + self.build_srd(SRD_TAB, S_TAB, 100000 * 128)
        L += [f'ds_write_b128 v{vFR}, {vr(XR, 4)} offset:16', f's_lshl_b32 s{S_T0}, s{cw}, 6', f'v_add_u32 v{t3}, s{S_T0}, v0']
        for p_ in range(3):
            L += [f'v_mul_u32_u24 v{t4}, 2521, v{t3}', f'v_lshrrev_b32 v{t4}, 16, v{t4}', f'v_mul_u32_u24 v{t4}, 12, v{t4}', f'v_lshl_add_u32 v{AV[p_]}, v{t3}, 1, v{t4}']
            L += [f'v_add_u32 v{t3}, 256, v{t3}'] if p_ < 2 else [f'v_cmp_gt_u32 vcc, 676, v{t3}', f's_mov_b64 s[{S_MASK}:{S_MASK + 1}], vcc']
        L += [f'v_lshlrev_b32 v{t3}, 3, v0', 's_mov_b32 exec_hi, 0xffff', f'ds_write_b64 v{t3}, {vr(XR, 2)} offset:{V3OFF + 26 * 64}', 's_mov_b32 exec_hi, -1',
              f'ds_write_b32 v{AD + 3}, v{XR}', f'ds_write_b32 v{AD + 3}, v{XR} offset:{SSZ}', WaitTag(vm_tags=['WCO'])]
        assert V3OFF == 0
        for s2 in range(2):
            for rd in range(2):
                L.append(f'ds_read_b64 {vr(AFR + 4 * s2 + 2 * rd, 2)}, v{AD} offset:{s2 * 32 + rd * 8}')
        L += [f'ds_read_u16 v110, v{AD + 1}',
              's_mov_b64 exec, 0x3ffffff', f'ds_write_b16 v{AD + 2}, v110', 'v_lshlrev_b32 v109, 17, v110', 'v_lshrrev_b32 v109, 1, v109', 's_mov_b64 exec, -1']
        L += vbs + [WaitTag(vm_tags=['TAB'], lgkm0=True)] + self.probe('tab') + ['s_barrier'] + self.stamp(2) + self.probe('b0')
        vb = lambda m: A3 - A1 - 512 + (m >> 1) * 512 + (m & 1) * 64
        for m in range(3):
            L += bread(m, vb(m))
        for m in range(6):
            if m + 3 < 6:
                L += bread(m + 3, vb(m + 3))
            L += mm2(DALL + m * 16, AFR, BALL + m * 8)
            if m == 3:
                L += FX(1)[0]
        L += FX(1)[1]
        for p_ in range(3):
            L += ['s_mov_b32 exec_lo, 0', f'v_mov_b32 v{DALL + 32 * p_}, v{DALL + 32 * p_ + 16}', 's_mov_b32 exec_lo, -1',
                  f'v_cvt_pk_bf16_f32 v{BALL + p_}, 0, v{DALL + 32 * p_}']
            if p_ == 2:
                L += [f's_mov_b64 exec, s[{S_MASK}:{S_MASK + 1}]']
            L += [f'ds_write_b16_d16_hi v{AV[p_]}, v{BALL + p_}', f'v_max_f32 v108, |v{BALL + p_}|, v108']
        L += ['s_mov_b64 exec, -1'] + pub2(108, 109, 8) + self.stamp(13) + ['s_setprio 0', 's_barrier', 's_branch L_w2']
        v3 = self.seq(L)

        def stage3(dst, goff, tag, lab, mid=None, fill=()):
            st = stage(dst, goff, tag)
            a_ = st[:8] if mid is None else st[:mid[0]] + [tuple(mid[1])] + st[mid[0]:8]
            return (self.seq(interleave(a_, list(fill)) + [f's_cmp_eq_u32 s{cw}, 3', f's_cbranch_scc1 {lab}']), self.seq([st[8]]), self.seq([f'{lab}:']))
        g0 = [self.seq(['L_g0:', 's_waitcnt lgkmcnt(0)'] + self.build_srd(SRD_CIN, S_CIN, 105456))]
        g0.append(stage3(A3, 70304, 'W3', 'L_st3'))
        g0.append(self.seq(self.stamp0() + self.build_srd(SRD_IDX, S_IDX, 4096 * 104) + xidx() + xidx(XJ) + self.build_srd(SRD_TAB, S_TAB, 100000 * 128)))
        g0.append(stage3(A2, 35152, 'W2', 'L_st2', None, SC2))
        g0.append(stage3(A1, 0, 'W1', 'L_st1', (o.sigat, [WaitTag(vm_tags=['W3']), 's_barrier'] + self.stamp(2) + FX(0)[0])))
        g0.append(self.seq((xdma() + xdma(XJ, 4 * XBSZ) if o.xat == 0 else []) + FX(0)[1] + self.stamp(13) + [WaitTag(vm_tags=['W2']), 's_barrier']
                           + (xdma() + xdma(XJ, 4 * XBSZ) if o.xat == 1 else [])))

        def G0(w):
            r = []
            for x in g0:
                r += x if isinstance(x, list) else x[0] + (x[1] if w < 3 else []) + x[2]
            return r

        def gather(dst, off):
            c = []
            for s2 in range(2):
                for e in range(8):
                    base = vGb if (s2 == 1 and e >= 2) else vGa
                    c.append(f'ds_read_b32 v{dst + 8 * s2 + e}, v{base} offset:{(16 * s2 + e) * 1352 + off}')
            return c

        def perms(g_, aj):
            return [f'v_perm_b32 v{aj + 8 * jj + r}, v{g_ + 2 * r + 1}, v{g_ + 2 * r}, s{S_U1 + jj}' for jj in range(2) for r in range(8)]

        def sout(t):
            d, c_ = DALL + 16 * t, DALL + 16 * t
            c = [f'v_cvt_pk_f16_f32 v{c_ + r}, v{d + 2 * r}, v{d + 2 * r + 1}' for r in range(8)]
            return c[:4] + [f'ds_write_b128 v{WA[t]}, {vr(c_, 4)}', f'v_xor_b32 v{WA[t]}, 16, v{WA[t]}'] + c[4:] + [f'ds_write_b128 v{WA[t]}, {vr(c_ + 4, 4)}']
        M1, N1, M2, N2 = 111, 28, 110, 58
        L = ['L_w2:'] + self.stamp(14) + self.probe('bw2') + gather(BALL, 0) + [f's_cmp_lt_u32 s{S_WAVE}, 3', 's_cbranch_scc1 L_u0']
        cc = self.seq(L)
        P0 = lambda: mxop(BALL, 16, M2, N2, True) + perms(BALL, DALL + 64)
        bw1 = lambda: [WaitTag(vm_tags=['W1'], lgkm0=True), 's_barrier'] + bread(2, 0) + bread(3, 64)
        b1u = self.seq(interleave(gather(BALL + 32, 20), P0()) + bw1() + mxop(BALL + 32, 16, M2, N2, False) + perms(BALL + 32, BALL)
                       + mxop(BALL + 16, 16, M1, N1, True) + ['s_branch L_u1'])
        L = ['L_u0:'] + bw1() + bread(4, 1024) + bread(5, 1024 + 64) + P0() + mxop(BALL + 16, 32, M1, N1, True)
        L += [f'v_add_u32 v{WA[4]}, {512 * 64}, v{WA[2]}', f'v_add_u32 v{WA[5]}, {512 * 64}, v{WA[3]}',
              f's_cmp_lg_u32 s{S_WAVE}, 2', 's_cbranch_scc1 L_u1', 's_mov_b32 exec_lo, 0xfffffff0', 's_mov_b32 exec_hi, 0xfffffff0', f'v_mov_b32 v{WA[5]}, {OOB}', 's_mov_b64 exec, -1']
        b1q = self.seq(L)
        MXR = 108
        L = ['L_u1:']
        for s2 in range(2):
            for rd in range(2):
                L.append(f'ds_read_b64_tr_b16 {vr(AFR + 4 * s2 + 2 * rd, 2)}, v{vA3} offset:{s2 * 1024 + rd * 256}')
        L += interleave(mxfin(M1, N1), mxfin(M2, N2)) + pub2(M1, M2, 0) + self.stamp(1)
        L += [WaitTag(lgkm0=True), 's_barrier'] + self.stamp(5) + self.probe('b1')
        L += [f'ds_read_b128 {vr(MXR, 4)}, v{vFR} offset:16']
        L += [f'v_lshrrev_b32 v{MXR}, 23, v{MXR}', f'v_lshrrev_b32 v{MXR + 1}, 23, v{MXR + 1}', f'v_sub_u32 v{MXR}, 267, v{MXR}', f'v_lshrrev_b32 v{MXR + 2}, 23, v{MXR + 2}',
              f'v_min_u32 v{MXR}, 167, v{MXR}', f'v_lshrrev_b32 v{MXR + 3}, 23, v{MXR + 3}',
              f'v_readfirstlane_b32 s{S_F1}, v{MXR}', f'v_mul_u32_u24 v{MXR}, 0x800080, v{MXR}']
        L += [f'v_and_b32 v{PM + r}, v{PM + r}, v{MXR}' for r in range(8)]
        sc = ['s_mov_b32 vcc_lo, 0x4000000', 's_mov_b32 vcc_hi, 0x4000000', f'v_cndmask_b32 v{vS}, v{MXR + 2}, v{MXR + 3}, vcc',
              f'v_add_u32 v{vS}, v{vS}, v{MXR + 1}', f'v_sub_u32 v{vS}, 388, v{vS}', f's_movk_i32 s{S_U0}, 167', f'v_med3_i32 v{vS}, v{vS}, 1, s{S_U0}',
              f'v_subrev_u32 v{MXR + 2}, 127, v{vS}', f'v_lshlrev_b32 v{vS}, 23, v{vS}', f'v_cmp_gt_i32 vcc, 0, v{MXR + 2}',
              f'v_mul_u32_u24 v{MXR + 2}, 0x800080, v{MXR + 2}']
        L += interleave(mm2(DALL + 32, PM, BALL + 16) + mm2(DALL + 48, PM, BALL + 24), sc) + ['s_cbranch_vccnz L_sdown']
        L += [f'v_add_u32 v{AFR + r}, v{AFR + r}, v{MXR + 2}' for r in range(8)]
        u1a = self.seq(L)
        L = ['L_scaled:'] + interleave(mm2(DALL, DALL + 64, AFR) + mm2(DALL + 16, DALL + 72, AFR), sout(2) + sout(3))
        L += [f's_cmp_lt_u32 s{S_WAVE}, 3', 's_cbranch_scc1 L_u2']
        u1 = self.seq(L)
        u2u = self.seq(mm2(DALL + 64, BALL, AFR) + mm2(DALL + 80, BALL + 8, AFR) + ['s_branch L_u3'])
        u2q = self.seq(['L_u2:'] + mm2(DALL + 64, PM, BALL + 32) + mm2(DALL + 80, PM, BALL + 40))
        L = ['L_u3:'] + self.stamp(6)
        for t in (0, 1, 4, 5):
            L += sout(t)
        L += [f'v_readlane_b32 s{S_CG}, v{vS}, 0', f'v_readlane_b32 s{S_IV}, v{vS}, 26',
              f's_sub_u32 s{S_F2}, {254 << 23:#x}, s{S_CG}', f's_sub_u32 s{S_IV}, {254 << 23:#x}, s{S_IV}',
              f's_sub_u32 s{S_F1}, 254, s{S_F1}', f's_lshl_b32 s{S_F1}, s{S_F1}, 23',
              f's_mov_b32 s{S_MASK}, 0x88888888', f's_mov_b32 s{S_MASK + 1}, 0x88888888']
        L += [f's_mul_i32 s{S_T0}, s{S_WAVE}, 384', f'v_lshrrev_b32 v{t3}, 2, v0', f'v_mul_u32_u24 v{t3}, 24, v{t3}', f'v_add_u32 v{t3}, s{S_T0}, v{t3}',
              f'v_and_b32 v{t4}, 3, v0', f'v_lshlrev_b32 v{t4}, 3, v{t4}']
        L += [f'ds_read_b64 {vr(UA + 2 * n_, 2)}, v{t3} offset:{TC_ + 8 * n_}' for n_ in range(3)]
        L += xidx() + xidx(PM) + (pfx_b() + pfx_a() if o.pf1 and o.pfx else [])
        L += [x for n_ in range(6) for x in (f'v_xor_b32 v{UA + n_}, v{UA + n_}, v{t4}', f'v_xor_b32 v{UX + n_}, 32, v{UA + n_}')]

        def sigma(s_):
            t = (s_ - 1) // 2
            first = (s_ - 1) % 2 == 0
            return (0 if first else 1) if t % 2 == 0 else (1 if first else 0)
        for s_ in range(1, 11):
            assert ((s_ - 1) // 2) * 1024 + sigma(s_) * 512 - (s_ // 4) * 2048 == (-1024, 0, 512, 1536)[s_ % 4]

        def p2read(n_):
            b = BALL + 16 * n_
            c = []
            for x, (ar, off) in enumerate(((UA, 0), (UX, 0), (UA, SSZ), (UX, SSZ))):
                for y in range(2):
                    c.append(f'ds_read_b64_tr_b16 {vr(b + 4 * x + 2 * y, 2)}, v{ar + 2 * n_ + y} offset:{off}')
            return c

        def p2a(n_):
            b = BALL + 16 * n_
            c = []
            for x in range(4):
                c += [f'v_pk_add_f16 v{b + 4 * x + y}, v{b + 4 * x + y}, v{b + 4 * x + 2 + y}' for y in range(2)]
                if x in (0, 2):
                    c.append(f'ds_write_b64 v{vFw}, {vr(b + 4 * x, 2)} offset:{FR + n_ * 4 * 3072 + x * 1024}')
            c += [f'v_cndmask_b32 v{b + 4 + y}, v{b + 4 + y}, v{b + 12 + y}, s[{S_MASK}:{S_MASK + 1}]' for y in range(2)]
            c.append(f'ds_write_b64 v{vFw}, {vr(b + 4, 2)} offset:{FR + n_ * 4 * 3072 + 1024}')
            return c

        def p2s(n_):
            b = BALL + 16 * n_ + 12
            off = FRS + max(n_ * 2048 - 1024, 0)
            return ([f'v_subrev_u32 v{vT3}, 1024, v{vT3}'] if n_ == 0 else []) + [
                f'ds_write_b32 v{vT3}, v{b} offset:{off}', f'ds_write_b32 v{vT3}, v{b + 1} offset:{off + 16}']
        L += [WaitTag(lgkm0=True), 's_barrier'] + self.stamp(10)
        L += p2read(0) + p2read(1) + [f's_cmp_ge_u32 s{S_WAVE}, 6', 's_cbranch_scc1 L_lin']
        b2 = self.seq(L)
        p2c = self.seq(p2read(2) + p2a(2) + p2s(2) + ['s_branch L_p2'])
        LB = BALL + 32
        ZR4 = t5
        L = ['L_lin:', f's_and_b32 s{S_U0}, s{S_WAVE}, 1', f's_cselect_b64 vcc, -1, 0', f's_lshl_b32 s{S_U1}, s{S_U0}, 5', f'v_mov_b32 v{ZR4}, 0',
             f'v_xor_b32 v{vV2r}, s{S_U1}, v{vV2r}', f'v_xor_b32 v{vV2q}, s{S_U1}, v{vV2q}', f'v_cndmask_b32 v{vWo}, v{vWo}, v{vWo + 1}, vcc',
             f'ds_read_b64_tr_b16 {vr(LB, 2)}, v{vV2r}', f'ds_read_b64_tr_b16 {vr(LB + 2, 2)}, v{vV2q}',
             f'ds_read_u16_d16_hi v{ZR4}, v{vWo}',
             f's_lshl_b32 s{S_U0}, s{S_U0}, 10', f'v_add_u32 v{t3}, s{S_U0}, v{vStg}']
        for r in range(4):
            a_, b_ = LB + 4 + 2 * r, LB + 5 + 2 * r
            L += [f'v_cvt_f32_f16 v{a_}, v{LB + r}', f'v_cvt_f32_f16_sdwa v{b_}, v{LB + r} dst_sel:DWORD dst_unused:UNUSED_PAD src0_sel:WORD_1',
                  f'v_mul_f32 v{a_}, s{S_IV}, v{a_}', f'v_mul_f32 v{b_}, s{S_IV}, v{b_}']
            if r == 3:
                L += ['s_mov_b32 exec_lo, 0', 's_mov_b32 exec_hi, 0xffff', f'v_mov_b32 v{a_}, v{ZR4}', 's_mov_b64 exec, -1']
            L += [f'v_mul_f32 v{a_}, s{S_CG}, v{a_}', f'v_mul_f32 v{b_}, s{S_CG}, v{b_}', f'v_cvt_pk_bf16_f32 v{LB + r}, v{a_}, v{b_}']
        L += [f'ds_write_b128 v{t3}, {vr(LB, 4)} offset:{FRL}']
        lin = self.seq(L)
        p2 = self.seq(['L_p2:'] + p2a(1) + p2s(1) + p2a(0) + [f's_cmp_lt_u32 s{S_WAVE}, 2', 's_cbranch_scc1 L_p2d'])
        p2e = self.seq(p2s(0) + ['s_branch L_built'])
        p2d = self.seq(['L_p2d:', f'ds_write_b64 v{vT3d}, {vr(BALL + 12, 2)} offset:{FRS + 5 * 1024}'])

        L = ['L_sdown:']
        for r in range(8):
            L += [f'v_lshlrev_b32 v{MXR}, 16, v{AFR + r}', f'v_and_b32 v{MXR + 1}, 0xffff0000, v{AFR + r}',
                  f'v_mul_f32 v{MXR}, v{MXR}, v{vS}', f'v_mul_f32 v{MXR + 1}, v{MXR + 1}, v{vS}', f'v_cvt_pk_bf16_f32 v{AFR + r}, v{MXR}, v{MXR + 1}']
        self.sdown = L + ['s_branch L_scaled']

        def PRE(w, sd=None):
            grp = w >> 2
            return (c0 + (g1t if grp else []) + csc + (v3 if grp else G0(w)) + cc + (b1q if w < 3 else b1u)
                    + (u1a if sd is None else u1a[:-8] + sd) + u1 + (u2q if w < 3 else u2u) + b2
                    + (lin if w >= 6 else p2c) + p2 + (p2d if w < 2 else p2e))
        L = ['L_built:'] + self.stamp(11)
        L += [f's_mov_b32 s{S_CG}, s{S_F1}', f's_mov_b32 s{S_IV}, s{S_F2}', f's_mov_b32 s{S_LO}, {f32hex(0.125)}', f's_mov_b32 s{S_HI}, {f32hex(0.0 if o.slow else 128.0)}']
        CV, vM, S_XD = 28, 58, 81

        def ureads(j):
            return [f'ds_read_u16_d16_hi v{XR + 2 * j}, v{vXa} offset:{XOFF(2 * j)}',
                    f'ds_read_u16_d16_hi v{XR + 2 * j + 1}, v{vXa} offset:{XOFF(2 * j) + 2}']
        mx3 = lambda j: f'v_max3_f32 v{vM}, |v{XR + 2 * j}|, |v{XR + 2 * j + 1}|, {"0" if j == 0 else f"v{vM}"}'
        cvt = lambda j: f'v_cvt_pk_f16_f32 v{CV + j % 4}, v{XR + 2 * j}, v{XR + 2 * j + 1}'
        iwr = lambda j: f'ds_write_b32 v{vIw}, v{CV + j % 4} offset:{j * IMGP}'
        S_SKIP = 51
        pfr = lambda: (pfx_b() + pfx_a() if o.pfx else []) + (pfw() if o.pfw else [])
        conv = lambda tag='XB': ([WaitTag(vm_tags=[tag])] + [x for j in range(13) for x in ureads(j)]
                        + [x for j in range(13) for x in (mx3(j), f'v_cvt_pk_f16_f32 v{D + j}, v{XR + 2 * j}, v{XR + 2 * j + 1}')])
        L += [f's_mov_b32 s{S_SKIP}, 1', f's_mul_i32 s{S_U0}, s{S_WAVE}, 1536', f's_add_u32 s{S_U0}, s{S_U0}, {PART + OOB}', f's_mov_b32 s48, {-OOB}',
              f's_cmp_lg_u32 s{S_GRP}, 0', 's_cbranch_scc1 L_g1c']
        c2a = self.seq(L)
        c2g0 = self.seq([f's_sub_u32 s{S_SAMP}, s{S_SAMP}, {4 * 104}'] + conv() + [WaitTag(lgkm0=True), 's_barrier'] + self.stamp(8) + ['s_branch L_cin_go'])
        DX = XB2 - XB - 4 * XBSZ
        L = ['L_g1c:', WaitTag(vm_tags=['XB'], lgkm0=True), 's_barrier'] + self.stamp(8) + self.probe('b4')
        L += [f's_add_u32 s{S_XM0}, s{S_XM0}, {DX}'] + xdma(tag='XB0') + xdma(PM, 4 * XBSZ) + xidx() + pfr() + [f'v_add_u32 v{r}, {DX}, v{r}' for r in (vXa, vLin0, vLin1)]
        L += [f'ds_write_b32 v{vXa}, v{vXi1} offset:{XOFF(26)}', f'ds_write_b32 v{vXa}, v{vXi1} offset:{XOFF(26) + 4 * XBSZ}']
        L += [f's_cmp_lg_u32 s{S_WAVE}, 4', 's_cbranch_scc1 L_g1d']
        c2g1 = self.seq(L)
        L = self.tlb2(248) if o.tlb2 else []
        L += ['s_mov_b64 exec, 1', f'buffer_load_dword v59, v248, {srd(SRD_DBG)}, 0 offen offset:240 sc1', 's_mov_b64 exec, -1']
        if o.w2late:
            L += self.build_srd(SRD_W2, S_W2, 3328) + [f'v_lshlrev_b32 v248, 7, v0', f'buffer_load_dword v251, v248, {srd(SRD_W2)}, 0 offen']
        c2b = self.seq(L)
        c2g1d = self.seq(['L_g1d:'] + conv('XB0'))
        c2c = self.seq(['L_cin_go:'] + [f'ds_write_b32 v{vIw}, v{D + j} offset:{j * IMGP}' for j in range(13)]
                       + [f's_mov_b32 s{S_XD}, {4 * XBSZ}', f's_add_u32 s{S_XM0}, s{S_XM0}, {4 * XBSZ}',
                          f'v_lshlrev_b32 v{vXi1}, 2, v0', f'v_add_u32 v{vXi1}, s{S_U0}, v{vXi1}'])

        NWF = 5
        PF = o.cpfd
        zslot = lambda s_: 1 if s_ % 2 == 0 else (0 if ((s_ - 1) // 2) % 2 == 0 else 2)
        zr = lambda T, sl: Z + 12 * T + 4 * sl
        preg = lambda T, r: P + 14 * T + (r if r < 14 else r - 14)
        acc = lambda T, tile: D + 16 * T + 4 * tile
        jobs = [('l', 0, 0), ('l', 0, 1)]
        for s_ in range(11):
            jobs += [('d', s_, 2), ('d', s_, 0), ('d', s_, 1)]
            if s_ == 0:
                jobs.append(('d', 0, 3))
            elif s_ % 2 == 0:
                jobs.append(('s', s_, 3))
        NJ = len(jobs)
        assert NJ == 41

        def wread(n):
            kind, s_, tile = jobs[n]
            off = FRL + tile * 1024 if kind == 'l' else (FR + s_ * 3072 + tile * 1024 if tile < 3 else FRS + (5 if s_ == 0 else (s_ - 1) // 2) * 1024)
            return f'ds_read_b128 {vr(WF + 4 * (n % NWF), 4)}, v{vFa} offset:{off}'

        def mfma(n, T):
            kind, s_, tile = jobs[n]
            a = vr(WF + 4 * (n % NWF), 4)
            d = vr(acc(T, tile), 4)
            if kind == 'l':
                return f'v_mfma_f32_16x16x32_bf16 {d}, {a}, {vr(zr(T, 2), 4)}, 0'
            if kind == 's':
                lo = 0 if ((s_ - 1) // 2) % 2 == 0 else 1
                return f'v_smfmac_f32_16x16x64_f16 {d}, {a}, {vr(zr(T, lo), 8)}, v{vIDX}'
            return f'v_mfma_f32_16x16x32_f16 {d}, {a}, {vr(zr(T, zslot(s_)), 4)}, {"0" if (s_ == 0 and tile >= 2) else d}'

        def pk(T, n):
            a, b, s0, s1 = cin16.INS[n]
            return (f'v_pk_mul_f16 v{zr(T, zslot(n // 4)) + n % 4}, v{preg(T, a)}, v{preg(T, b)} '
                    f'op_sel:[{s0[0]},{s0[1]}] op_sel_hi:[{s1[0]},{s1[1]}]')

        def trp(T, rp):
            return f'ds_read_b64_tr_b16 {vr(preg(T, 2 * rp), 2)}, v{vTR + rp} offset:{32 * T}'

        LASTA = max(n for n, x in enumerate(cin16.INS) if x[0] < 2)
        S_A1, S_A2, S_PINC = 49, 50, 48
        fin = []
        for T in range(4):
            fin += [(acc(T, 0) + r, acc(T, 2) + r) for r in range(4)] + [(acc(T, 1), acc(T, 1) + 3)]
        for T in range(4):
            fin += [(acc(T, 1) + 1 + (r >> 1), acc(T, 3) + r) for r in range(4)]

        def final(f1, f2):
            c = []
            for k, (a, b) in enumerate(fin):
                d = Z + k % 4
                c.append(f'v_mul_f32 v{d}, v{a}, v{b}' if k < 4 else f'v_fmac_f32 v{d}, v{a}, v{b}')
            c += [f'v_add_f32 v{Z}, v{Z}, v{Z + 1}', f'v_add_f32 v{Z + 2}, v{Z + 2}, v{Z + 3}', f'v_add_f32 v{Z}, v{Z}, v{Z + 2}']
            c += [f'v_mul_f32 v{Z}, s{x}, v{Z}' for x in (f1, f2)]
            return c + [f'ds_write_b32 v{vXi1}, v{Z}']
        code = ['L_cin_loop:', f'v_cmp_le_f32 s[{S_CM}:{S_CM + 1}], s{S_HI}, v{vM}', f'v_cmp_le_f32 vcc, s{S_LO}, v{vM}',
                f's_mov_b32 s{S_A1}, s{S_F1}', f's_mov_b32 s{S_A2}, s{S_F2}',
                f's_cmp_lg_u64 s[{S_CM}:{S_CM + 1}], 0', 's_cbranch_scc1 L_cslow', 's_cbranch_vccz L_cslow']
        cA = self.seq(code)
        RD = []
        for rp in (0, 3, 4):
            RD += [trp(T, rp) for T in range(4)]
        for T in range(4):
            RD += [f'ds_read_b64_tr_b16 {vr(zr(T, 2), 2)}, v{vLin0} offset:{32 * T}', f'ds_read_b64_tr_b16 {vr(zr(T, 2) + 2, 2)}, v{vLin1} offset:{32 * T}']
        RD += [wread(k) for k in range(PF)]
        for rp in (5, 6, 1, 2):
            RD += [trp(T, rp) for T in range(4)]
        pfr = lambda: (pfx_b() + pfx_a() if o.pfx else []) + (pfw() if o.pfw else [])
        vm = xdma() + xidx() + pfr()
        VA = final(S_A1, S_A2) + [f'v_add_u32 v{vXi1}, s{S_PINC}, v{vXi1}', f's_movk_i32 s{S_PINC}, 256']
        PK0 = [pk(T, n) for T in range(4) for n in range(4)]
        TG = [f'v_add_u32 v{r}, s{S_XD}, v{r}' for r in (vXa, vLin0, vLin1)] + [f's_sub_u32 s{S_XM0}, s{S_XM0}, s{S_XD}', f's_sub_u32 s{S_XD}, 0, s{S_XD}', f's_mov_b32 s{S_SKIP}, 0']
        code = ['L_cconv:']
        code += interleave(RD, VA) + PK0 + [f's_cmp_lg_u32 s{S_SKIP}, 0', 's_cbranch_scc1 L_novm']
        cB0 = self.seq(code)
        cVM = self.seq(vm)
        code = ['L_novm:'] + TG
        LA = 1
        def lstamp(base):
            if not (o.stamps and o.cst):
                return []
            return [f's_memtime s[{S_ST}:{S_ST + 1}]', f's_memrealtime s[{S_ST + 2}:{S_ST + 3}]', f's_sub_u32 s{S_C0}, {base + 6}, s{S_LOOP}', 's_waitcnt lgkmcnt(0)',
                    f's_mov_b32 m0, s{S_C0}', f'v_writelane_b32 v252, s{S_ST}, m0', f'v_writelane_b32 v253, s{S_ST + 2}, m0']
        code += lstamp(19)
        code += [Touch(vr(WF, 4)), Touch(vr(zr(3, 2), 4))] + (['s_setprio 2', 's_barrier'] if o.cbar else ['s_setprio 1'])
        MS = [(n, T) for n in range(NJ) for T in range(4)]
        first_use, last_use = {}, {}
        for mi, (n, T) in enumerate(MS):
            kind, s_, tile = jobs[n]
            if kind == 'l':
                last_use[(T, 'lin')] = mi
                continue
            for su in ([s_] if kind == 'd' else [s_ - 1, s_]):
                first_use.setdefault((T, su), mi)
                last_use[(T, su)] = mi
        V = []
        for s_ in range(LA, 11):
            prev = [p_ for p_ in range(s_) if zslot(p_) == zslot(s_)]
            for T in range(4):
                rdy = last_use[(T, prev[-1])] + o.war if prev else (last_use[(T, 'lin')] if zslot(s_) == 2 else -1)
                for n in range(4 * s_, 4 * s_ + 4):
                    V.append((pk(T, n), rdy, first_use[(T, s_)], n, T))
        forced = 0
        late = []
        XL_ = [x for j in range(13) for x in ureads(j)]
        xrd = {}
        CVR = [preg(T, r) for r in (2, 3, 6, 7) for T in range(4)]
        cvrdy = max(n for n, x in enumerate(cin16.INS) if set(x[:2]) & {2, 3, 6, 7})
        cvt2 = lambda j: f'v_cvt_pk_f16_f32 v{CVR[j]}, v{XR + 2 * j}, v{XR + 2 * j + 1}'
        iwr2 = lambda j: f'ds_write_b32 v{vIw}, v{CVR[j]} offset:{j * IMGP}'
        nm = nc = nw = 0
        V.sort(key=lambda x: x[2])
        prev2 = 0
        for mi, (n, T) in enumerate(MS):
            while V and V[0][2] <= mi:
                assert V[0][1] < mi
                code.append(V.pop(0)[0]); forced += 1
            code.append(mfma(n, T))
            t = 4
            if o.cbar and mi == len(MS) - 1 - o.cbov:
                code += ['s_setprio 3', 's_barrier']; t += 8
            if not o.cbar and mi == 4 * o.hiat - 2:
                code.append('s_setprio 2'); t += 4
            if T == 3 and n + 1 < NJ:
                code.append(Touch(vr(WF + 4 * ((n + 1) % NWF), 4))); t += 4
            if T == 0 and n + PF < NJ:
                code.append(wread(n + PF)); t += 8
            elif T in (1, 2) and late:
                code.append(late.pop(0)); t += 8
            elif T in (1, 2) and mi >= o.x0 and XL_:
                if len(XL_) == 26:
                    code.append(WaitTag(vm_tags=['XB']))
                code.append(XL_.pop(0)); t += 8
                if len(XL_) % 2 == 0:
                    xrd[12 - len(XL_) // 2] = mi
            elif not V and nw < nc and t == 4:
                code.append(iwr2(nw)); nw += 1; t += 12
            t = max(t, 12 if jobs[n][0] == 's' else 8)
            k = 0
            while t < 16:
                urgent = any(V[q_][2] - 1 - mi < q_ + 1 for q_ in range(min(24, len(V))))
                if k == 1 and prev2 >= o.max2 and not urgent:
                    break
                cand = [x for x in V[:32] if x[1] <= mi]
                extra = None
                if nm < 13 and nm in xrd and xrd[nm] + o.xlat <= mi:
                    extra = 'm'
                elif nc < nm and all(x[3] > cvrdy for x in V):
                    extra = 'c'
                if cand and (k == 0 or urgent or not extra) and (k == 0 or urgent or o.eager):
                    x = cand[0]
                    V.remove(x)
                    code.append(x[0])
                    if x[3] <= LASTA and all(y[3] > LASTA for y in V if y[4] == x[4]):
                        late.append(trp(x[4], 7))
                elif extra == 'm':
                    code.append(mx3(nm)); nm += 1
                elif extra == 'c':
                    code.append(cvt2(nc)); nc += 1
                else:
                    break
                t += 4; k += 1
            prev2 = prev2 + 1 if k == 2 else 0
        assert not late and not XL_ and not V
        print('left', 13 - nm, 13 - nc, 13 - nw)
        tail = [mx3(j) for j in range(nm, 13)] + [cvt2(j) for j in range(nc, 13)] + [iwr2(j) for j in range(nw, 13)]
        print('forced VALU', forced)
        code += lstamp(25)
        code.append(f's_setprio {o.p0}')
        code += tail + [f's_sub_u32 s{S_LOOP}, s{S_LOOP}, 1', f's_cmp_lg_u32 s{S_LOOP}, 0', 's_cbranch_scc1 L_cin_loop']
        cB = self.seq(code + ['s_branch L_cin_done'])
        mark0 = len(self.P.static)
        bl = []
        if o.burn:
            bl = [f's_movk_i32 s{S_LOOP}, {o.burn // 2}', 'L_burn2:'] + [f'v_mfma_f32_16x16x32_f16 {vr(P + 4 * (k % 2), 4)}, {vr(WF + 4 * (k % 4), 4)}, {vr(Z + 4 * (k // 4), 4)}, 0' for k in range(32)]
            bl += [f's_sub_u32 s{S_LOOP}, s{S_LOOP}, 1', f's_cmp_lg_u32 s{S_LOOP}, 0', 's_cbranch_scc1 L_burn2']
        L = ['L_cin_done:'] + self.pubsrd() + bl + final(S_F1, S_F2) + ([f's_cmp_eq_u32 s{S_GRP}, 0', 's_cbranch_scc1 L_nob2', 's_barrier', 'L_nob2:'] if o.cbar else []) + [
             f's_mul_i32 s{S_U0}, s{S_WAVE}, 1536', f's_add_u32 s{S_U0}, s{S_U0}, {PART}',
             f'v_lshlrev_b32 v{Z}, 5, v0', f'v_add_u32 v{Z}, s{S_U0}, v{Z}',
             f'ds_read_b128 {vr(P, 4)}, v{Z}', f'ds_read_b128 {vr(P + 4, 4)}, v{Z} offset:16',
             f'v_lshrrev_b32 v{Z + 1}, 3, v0', f'v_cmp_gt_u32 vcc, 6, v{Z + 1}', f'v_lshlrev_b32 v{Z + 1}, 4, v{Z + 1}', f'v_add_u32 v{Z + 1}, s{S_RC}, v{Z + 1}',
             f'v_pk_add_f32 {vr(P, 2)}, {vr(P, 2)}, {vr(P + 2, 2)}', f'v_pk_add_f32 {vr(P + 4, 2)}, {vr(P + 4, 2)}, {vr(P + 6, 2)}',
             f'v_pk_add_f32 {vr(P, 2)}, {vr(P, 2)}, {vr(P + 4, 2)}', f'v_add_f32 v{P}, v{P}, v{P + 1}']
        for ctl in ('quad_perm:[1,0,3,2]', 'quad_perm:[2,3,0,1]', 'row_half_mirror'):
            L.append(f'v_add_f32_dpp v{P}, v{P}, v{P} {ctl} row_mask:0xf bank_mask:0xf')
        L += [f's_and_b64 exec, exec, vcc', f'ds_write_b32 v{Z + 1}, v{P}', 's_mov_b64 exec, -1']
        L += self.stamp(9) + self.stamp_flush() + self.probe('cend') + ['s_waitcnt lgkmcnt(0)', 's_barrier',
                                                  f's_cmp_lg_u32 s{S_WAVE}, 4', 's_cbranch_scc1 L_end',
                                                  'v_lshlrev_b32 v4, 2, v0', f'v_add_u32 v2, {RC}, v4', 'ds_read_b32 v64, v2',
                                                  f's_mul_i32 s{S_T1}, s{S_MB}, 192', f's_add_u32 s{S_T1}, s{S_T1}, {13 * WSP}',
                                                  f's_mul_i32 s{S_T0}, s{S_MB}, 3', f's_mul_i32 s{S_T2}, s{S_T0}, 3277', f's_lshr_b32 s{S_T2}, s{S_T2}, 16',
                                                  f'v_add_u32 v7, s{S_T2}, v0', f's_mul_i32 s{S_T2}, s{S_T2}, 20', f's_add_u32 s{S_T2}, s{S_T2}, 20',
                                                  f's_sub_u32 s{S_T2}, s{S_T2}, s{S_T0}', f's_min_u32 s{S_T2}, s{S_T2}, 3', f's_sub_u32 s{S_T0}, 3, s{S_T2}',
                                                  f'v_mov_b32 v5, s{S_T0}', f'v_writelane_b32 v5, s{S_T2}, 0',
                                                  f's_cmp_eq_u32 s{S_T0}, 0', f's_cselect_b32 s{S_T0}, 1, 3',
                                                  'v_lshlrev_b32 v3, 4, v0', 's_mov_b32 exec_hi, 0xffff']
        L += (self.stamp(16) if o.diag else [])
        L += [f'buffer_store_dword v64, v4, {srd(SRD_WS)}, s{S_T1} offen sc1', 's_mov_b32 exec_hi, -1', 'v_add_u32 v4, 1024, v4', f's_mov_b32 exec_lo, s{S_T0}', 's_mov_b32 exec_hi, 0', 's_branch L_pub']
        fin_ = self.seq(L)
        blk = self.P.static[mark0:]
        del self.P.static[mark0:]
        at = self.P.static.index(self.pub[-1]) + 1
        self.P.static[at:at] = blk + self.ldblk
        L = ['L_cslow:']
        for (ctl, rm) in (('row_shr:1', '0xf'), ('row_shr:2', '0xf'), ('row_shr:4', '0xf'), ('row_shr:8', '0xf'),
                          ('row_bcast:15', '0xa'), ('row_bcast:31', '0xc')):
            L.append(f'v_max_f32_dpp v{vM}, v{vM}, v{vM} {ctl} row_mask:{rm} bank_mask:0xf')
        L += [f'v_readlane_b32 s{S_U0}, v{vM}, 63', f's_mov_b32 s{S_HI}, 0',
              f's_lshr_b32 s{S_U0}, s{S_U0}, 23', f's_max_u32 s{S_U0}, s{S_U0}, {127 - 55}', f's_min_u32 s{S_U0}, s{S_U0}, {127 + 55}',
              f's_sub_u32 s{S_U1}, {127 + 4 + 127}, s{S_U0}',
              f's_lshl_b32 s{S_U2}, s{S_U1}, 1', f's_sub_u32 s{S_U2}, s{S_U2}, 127',
              f's_sub_u32 s{S_G}, 254, s{S_U2}', f's_lshl_b32 s{S_G}, s{S_G}, 23',
              f'v_mov_b32 v{P}, s{S_G}', f'v_mul_f32 v{P + 1}, s{S_CG}, v{P}', f'v_mul_f32 v{P}, s{S_IV}, v{P}',
              f'v_readfirstlane_b32 s{S_F1}, v{P + 1}', f'v_readfirstlane_b32 s{S_F2}, v{P}',
              f's_lshl_b32 s{S_U1}, s{S_U1}, 23', f's_lshl_b32 s{S_U2}, s{S_U2}, 23']
        TS = P
        for j in range(13):
            L += [f'v_mul_f32 v{TS}, s{S_U1}, v{XR + 2 * j}', f'v_mul_f32 v{TS + 1}, s{S_U1}, v{XR + 2 * j + 1}',
                  f'v_mul_f32 v{TS + 2}, s{S_U2}, v{XR + 2 * j}', f'v_mul_f32 v{TS + 3}, s{S_U2}, v{XR + 2 * j + 1}',
                  f'v_cvt_pk_f16_f32 v{TS + 20 + j}, v{TS}, v{TS + 1}', f'v_cvt_pk_bf16_f32 v{TS + 4 + j}, v{TS + 2}, v{TS + 3}',
                  f'ds_write_b32 v{vIw}, v{TS + 20 + j} offset:{j * IMGP}', f'ds_write_b32 v{vXa}, v{TS + 4 + j} offset:{XOFF(2 * j)}']
        L += [f'v_mov_b32 v{TS}, s{S_U2}', f'v_cvt_pk_bf16_f32 v{TS}, v{TS}, v{TS}',
              's_mov_b32 exec_hi, 0', f'ds_write_b32 v{vXa}, v{TS} offset:{XOFF(26)}', 's_mov_b32 exec_hi, -1',
              's_waitcnt lgkmcnt(0)', 's_branch L_cconv']
        slow = self.seq(L)
        sdown = self.seq(self.sdown)
        traces = []
        for w in range(8):
            grp = w >> 2
            c2 = c2a + (c2g1 + (c2b if w == 4 else []) + c2g1d if grp else c2g0) + c2c
            it = lambda sl, first: cA + (slow if sl else []) + cB0 + ([] if first else cVM) + cB
            traces.append(PRE(w) + c2 + it(0, 1) + it(0, 0) + it(0, 0) + fin_ + self.pub)
            if w in (0, 4):
                traces.append(PRE(w, sdown) + c2 + it(1, 1) + it(1, 0) + fin_ + self.pub)
        return traces

    def build(self):
        pro = self.prologue()
        d = self.dnn()
        cs = self.cin()
        self.seq(['L_end:', 's_endpgm'])
        traces = [pro + c for c in d + cs]
        for t in traces:
            resolve_waits(t)
        for _ in range(2):
            for t in traces:
                resolve_hazards(t)
        hdr = open(os.path.join(os.path.dirname(os.path.abspath(__file__)), 'header.txt')).read()
        txt = hdr + f'; @launch grid=(256,1,1) block=(512,1,1) lds={LDS_TOTAL}\n'
        txt += f'''.amdgcn_target "amdgcn-amd-amdhsa--gfx950"
{DOC}.text
.globl {KNAME}
.p2align 8
.type {KNAME},@function
{KNAME}:
'''
        body_ = self.P.emit()
        if self.opt.align:
            for lab in ('L_dnn_loop0:', 'L_dnn_loop1:', 'L_cin_loop:', 'L_epi:'):
                pad = '  s_nop 0\n' if self.opt.align > 100 else ''
                body_ = body_.replace(lab + '\n', f'.p2align {self.opt.align % 100}\n{pad}{lab}\n')
        if self.opt.fix:
            body_ = fixalign.fix(body_ + 'L_tables:\n', self.opt.fix)[:-len('L_tables:\n')]
        txt += body_
        tb = self.tables()
        assert len(tb) == 16 * 256
        txt += '.p2align 8\nL_tables:\n' + ''.join('.long ' + ', '.join(f'{x:#x}' for x in tb[i:i + 8]) + '\n' for i in range(0, len(tb), 8))
        txt += f'''.section .rodata,"a"
.p2align 6
.amdhsa_kernel {KNAME}
  .amdhsa_next_free_vgpr 256
  .amdhsa_next_free_sgpr 102
  .amdhsa_accum_offset 256
  .amdhsa_group_segment_fixed_size 0
  .amdhsa_kernarg_size 88
  .amdhsa_user_sgpr_count 2
  .amdhsa_user_sgpr_kernarg_segment_ptr 1
  .amdhsa_system_sgpr_workgroup_id_x 1
  .amdhsa_float_denorm_mode_32 {self.opt.denorm}
.end_amdhsa_kernel
'''
        return txt


def main():
    ap = argparse.ArgumentParser()
    ap.add_argument('-o', default='standalone__deep_cross_xdeepfm__recsys.s')
    ap.add_argument('--stamps', action='store_true')
    ap.add_argument('--nodma', action='store_true')
    ap.add_argument('--cpf', type=int, default=1)
    ap.add_argument('--coop', type=int, default=0)
    ap.add_argument('--coopw', type=int, default=2)
    ap.add_argument('--tbpos', type=int, default=0)
    ap.add_argument('--dbar3', type=int, default=1)
    ap.add_argument('--tlb', type=int, default=0)
    ap.add_argument('--tlb2', type=int, default=1)
    ap.add_argument('--itst', type=int, default=0)
    ap.add_argument('--diag', type=int, default=0)
    ap.add_argument('--dbg', default='')
    ap.add_argument('--lead3', type=int, default=1)
    ap.add_argument('--morder', type=int, default=0)
    ap.add_argument('--etlb', type=int, default=0)
    ap.add_argument('--lateb', type=int, default=0)
    ap.add_argument('--wfl', default='')
    ap.add_argument('--xfl', default='')
    ap.add_argument('--tag', type=int, default=0)
    ap.add_argument('--idxfirst', type=int, default=1)
    ap.add_argument('--bpos', type=int, default=2)
    ap.add_argument('--sigat', type=int, default=4)
    ap.add_argument('--epx', type=int, default=1)
    ap.add_argument('--denorm', type=int, default=3)
    ap.add_argument('--mprio', type=int, default=0)
    ap.add_argument('--swap', type=int, default=0)
    ap.add_argument('--bov', type=int, default=1)
    ap.add_argument('--rfirst', type=int, default=0)
    ap.add_argument('--g1x', type=int, default=0)
    ap.add_argument('--ldsred', type=int, default=0)
    ap.add_argument('--csnake', type=int, default=0)
    ap.add_argument('--cswap', type=int, default=0)
    ap.add_argument('--align', type=int, default=0)
    ap.add_argument('--c2', type=int, default=0)
    ap.add_argument('--d1', type=int, default=0)
    ap.add_argument('--cstr', type=int, default=3)
    ap.add_argument('--bearly', type=int, default=1)
    ap.add_argument('--w2late', type=int, default=1)
    ap.add_argument('--aov', type=int, default=5)
    ap.add_argument('--upos', type=int, default=1)
    ap.add_argument('--calt', type=int, default=1)
    ap.add_argument('--pfpos', type=int, default=1)
    ap.add_argument('--wlate', type=int, default=0)
    ap.add_argument('--dbar2', type=int, default=0)
    ap.add_argument('--dbar', type=int, default=0)
    ap.add_argument('--pfw', type=int, default=0)
    ap.add_argument('--pfx', type=int, default=0)
    ap.add_argument('--pfx0', type=int, default=4)
    ap.add_argument('--pfs', type=int, default=13)
    ap.add_argument('--dcoopx', type=int, default=1)
    ap.add_argument('--dcx0', type=int, default=0)
    ap.add_argument('--dcxpos', type=int, default=-1)
    ap.add_argument('--pfe0', type=int, default=2)
    ap.add_argument('--pfne', type=int, default=13)
    ap.add_argument('--prio47', type=int, default=0)
    ap.add_argument('--lookahead', type=int, default=5)
    ap.add_argument('--nz', type=int, default=6)
    ap.add_argument('--nwf', type=int, default=8)
    ap.add_argument('--hiat', type=int, default=4)
    ap.add_argument('--wmerge', type=int, default=0)
    ap.add_argument('--gapv', type=int, default=6)
    ap.add_argument('--slow', type=int, default=0)
    ap.add_argument('--probe', default='')
    ap.add_argument('--skew', type=int, default=0)
    ap.add_argument('--fix', type=int, default=64)
    ap.add_argument('--walk', type=int, default=0)
    ap.add_argument('--eal', type=int, default=3)
    ap.add_argument('--eoff', type=int, default=0)
    ap.add_argument('--ct', default='')
    ap.add_argument('--rot', type=int, default=13)
    ap.add_argument('--i0', type=int, default=1)
    ap.add_argument('--i1', type=int, default=10)
    ap.add_argument('--burn', type=int, default=0)
    ap.add_argument('--lord', type=int, default=1)
    ap.add_argument('--lprio', type=int, default=0)
    ap.add_argument('--rsp', type=int, default=0)
    ap.add_argument('--tch', type=int, default=0)
    ap.add_argument('--tf', type=int, default=4)
    ap.add_argument('--toff', type=int, default=0)
    ap.add_argument('--tw0', type=int, default=12)
    ap.add_argument('--xat', type=int, default=0)
    ap.add_argument('--pf1', type=int, default=1)
    ap.add_argument('--lpf', type=int, default=20)
    ap.add_argument('--lpfit', type=int, default=6)
    ap.add_argument('--x1m', type=int, default=7)
    ap.add_argument('--bgap', type=int, default=8)
    ap.add_argument('--cprio', type=int, default=1)
    ap.add_argument('--x1n', type=int, default=4)
    ap.add_argument('--w0', type=int, default=1)
    ap.add_argument('--dbar1', type=int, default=1)
    ap.add_argument('--aon', type=int, default=2)
    ap.add_argument('--cbar', type=int, default=0)
    ap.add_argument('--vmpos', type=int, default=2)
    ap.add_argument('--il2', type=int, default=0)
    ap.add_argument('--p1', type=int, default=0)
    ap.add_argument('--pm', type=int, default=2)
    ap.add_argument('--cbov', type=int, default=3)
    ap.add_argument('--p0', type=int, default=0)
    ap.add_argument('--max2', type=int, default=2)
    ap.add_argument('--eager', type=int, default=0)
    ap.add_argument('--cst', type=int, default=0)
    ap.add_argument('--x0', type=int, default=60)
    ap.add_argument('--xlat', type=int, default=18)
    ap.add_argument('--xper', type=int, default=3)
    ap.add_argument('--xc0', type=int, default=0)
    ap.add_argument('--n3', type=int, default=1)
    ap.add_argument('--xi0', type=int, default=1)
    ap.add_argument('--pfsat', type=int, default=0)
    ap.add_argument('--g1prio', type=int, default=0)
    ap.add_argument('--xearly', type=int, default=1)
    ap.add_argument('--cpfd', type=int, default=4)
    ap.add_argument('--cla', type=int, default=1)
    ap.add_argument('--war', type=int, default=1)
    opt = ap.parse_args()
    resolve_waits.dbg = 'dup' in opt.dbg
    g = Gen(opt)
    txt = g.build()
    open(opt.o, 'w').write(txt)
    print('wrote', opt.o, len(txt), 'bytes')


if __name__ == '__main__':
    main()
```

```python
import sys, os, struct, argparse
sys.path.insert(0, os.path.dirname(os.path.abspath(__file__)))
from asmlib import I, WaitTag, Touch, Prog, resolve_waits, resolve_hazards
import cin16, fixalign

KNAME = 'standalone__deep_cross_xdeepfm__recsys_kernel'
LDS_TOTAL = 163840

XSLOT = 320 * 128
WR = 3 * XSLOT
WSLOT = 32 * 256
L_BIAS = WR + 3 * WSLOT
L_W2 = L_BIAS + 256
RB = L_W2 + 256
WSP = 16640
assert RB + 2560 <= LDS_TOTAL

SSZ = 677 * 64
FRS = 0
V3OFF = 0
A1 = 6144
FR = A1
FRL = FR + 33 * 1024
A3 = FRL + 2048
SG = A3
A2 = SG + SSZ
SQ = A2
V2S = SQ + SSZ
L_WCO = V2S + 832
L_FLG = L_WCO + 192
L_MX = L_FLG + 16
RC = L_FLG + 64
XB = V2S + 2496
XPP = 1056
XBSZ = 3 * XPP + 7 * 128
IMG = A3
IMGP = 160
IMGSZ = 33 * IMGP
XB2 = IMG + 8 * IMGSZ
PART = XB2 + 8 * XBSZ
XOFF = lambda f: (f & 3) * XPP + (f >> 2) * 128
assert RC + 512 <= V2S + 1664
assert XB + 8 * XBSZ <= LDS_TOTAL and XB % 16 == 0 and A2 % 64 == 0 and A3 % 64 == 0 and L_WCO % 16 == 0 and V2S % 64 == 0
assert PART + 8 * 1536 <= V2S + 832 and IMGSZ % 32 == 0 and XB2 % 16 == 0

S_WAVE = 3
S_IDX, S_TAB, S_CIN, S_WCO, S_W1, S_B1, S_W2, S_BO, S_OUT, S_DBG, S_WS = 4, 6, 8, 10, 12, 14, 16, 18, 20, 22, 24
S_MB, S_R = 26, 27
SRD_IDX, SRD_TAB, SRD_CIN, SRD_WCO, SRD_W, SRD_B1, SRD_W2, SRD_OUT, SRD_WS, SRD_DBG = 28, 32, 36, 40, 44, 48, 52, 56, 60, 64
S_T0, S_T1, S_T2, S_T3 = 68, 69, 70, 71
S_LOOP, S_IDXOFF, S_WSOFF, S_WMB, S_XM0, S_N0, S_C0, S_CW, S_BOUT, S_TW = 72, 73, 74, 75, 76, 77, 78, 79, 80, 81
S_EX = 82
S_GRP, S_RC = 84, 85
S_ST = 86
S_M26, S_MASK = 90, 92
S_SAMP, S_STG, S_STG9, S_TGT = 94, 95, 96, 97
S_M26B = 98
S_GW = 100
S_TAGT = 0
S_TAG = 1
S_PW = 101
S_PX = 77
S_PXE = 73

GELU_C0 = -2.0 * 0.7978845608028654 * 1.4426950408889634
GELU_C1 = GELU_C0 * 0.044715


def f32hex(x):
    return '0x%08x' % struct.unpack('<I', struct.pack('<f', x))[0]


def vr(a, n):
    return f'v[{a}:{a + n - 1}]' if n > 1 else f'v{a}'


def srd(a):
    return f's[{a}:{a + 3}]'


def flat(gs):
    res = []
    for c in gs:
        if isinstance(c, (tuple, list)):
            res += flat(c)
        else:
            res.append(c)
    return res


def interleave(a, b):
    out = []
    ia = ib = 0
    na, nb = len(a), len(b)
    while ia < na or ib < nb:
        if ib >= nb or (ia < na and ia * nb <= ib * na):
            out.append(a[ia]); ia += 1
        else:
            out.append(b[ib]); ib += 1
    return out


SLOTS = []
for j in range(0, 26, 2):
    for s in range(0, 14 if j <= 12 else 13):
        SLOTS.append((j, (j + s) % 26))
assert len(SLOTS) == 176
DUP_SLOT = SLOTS.index((12, 25))
assert all((d * 2521) >> 16 == d // 26 for d in range(800))
assert all((d * 10923) >> 16 == d // 6 for d in range(64))
assert all((d * 5042) >> 16 == d // 13 for d in range(170))
assert all((d * 3277) >> 16 == d // 20 for d in range(264))


DOC = '''; ---------------------------------------------------------------------------------------------
;
;       U[i,j,k] = sum_h W2[h,i,j] V3[h,k]
; ---------------------------------------------------------------------------------------------
'''


class Gen:
    def __init__(self, opt):
        self.opt = opt
        self.P = Prog()

    def seq(self, lines):
        return [self.P.add(l) for l in flat(lines)]

    def build_srd(self, dst, ptr, size):
        return [f's_mov_b32 s{dst}, s{ptr}', f's_and_b32 s{dst + 1}, s{ptr + 1}, 0xffff',
                f's_mov_b32 s{dst + 2}, {size}', f's_mov_b32 s{dst + 3}, 0x20000']

    def stamp(self, slot):
        if not self.opt.stamps:
            return []
        return [f's_memtime s[{S_ST}:{S_ST + 1}]', f's_memrealtime s[{S_ST + 2}:{S_ST + 3}]', 's_waitcnt lgkmcnt(0)',
                f'v_writelane_b32 v252, s{S_ST}, {slot}', f'v_writelane_b32 v253, s{S_ST + 2}, {slot}']

    def probe(self, name, wave=4):
        if self.opt.probe != name:
            return []
        return ['s_memrealtime s[88:89]', 's_waitcnt lgkmcnt(0)']

    def stamp_flush(self):
        if not self.opt.stamps:
            return []
        L = self.build_srd(SRD_WS, S_WS, 0x10000000)
        L += [f's_lshl_b32 s{S_C0}, s2, 3', f's_add_u32 s{S_C0}, s{S_C0}, s{S_WAVE}',
              f's_lshl_b32 s{S_C0}, s{S_C0}, 8', f's_add_u32 s{S_C0}, s{S_C0}, 0x100000',
              'v_lshlrev_b32 v254, 3, v0', 's_mov_b32 exec_hi, 0',
              f'buffer_store_dwordx2 v[252:253], v254, {srd(SRD_WS)}, s{S_C0} offen', 's_mov_b32 exec_hi, -1']
        return L

    def stamp0(self):
        if not self.opt.stamps:
            return []
        return ['v_mov_b32 v252, 0xcdcdcdcd', 'v_mov_b32 v253, 0xcdcdcdcd',
                f'v_writelane_b32 v252, s{S_ST}, 0', f'v_writelane_b32 v253, s{S_ST + 2}, 0'] + self.stamp(15)

    def tlb2(self, t):
        L = self.build_srd(SRD_WS, S_WS, 0x10000000) + self.build_srd(SRD_OUT, S_OUT, 8192) + self.build_srd(SRD_DBG, S_DBG, 256)
        L += [f's_load_dword s{S_BOUT}, s[{S_BO}:{S_BO + 1}], 0', f'v_mov_b32 v{t}, 0', 's_mov_b64 exec, 1',
              f's_mov_b32 s{S_TW}, 0x80000',
              f'buffer_load_dword v{t + 1}, v{t}, {srd(SRD_WS)}, s{S_TW} offen',
              f'buffer_load_dword v{t + 2}, v{t}, {srd(SRD_OUT)}, 0 offen',
              's_mov_b64 exec, -1']
        return L

    def tlb1(self, vtmp, vdst):
        if not self.opt.etlb:
            return self.build_srd(SRD_TAB, S_TAB, 100000 * 128)
        return self.build_srd(SRD_TAB, S_TAB, 100000 * 128) + [
            f'v_mov_b32 v{vtmp}, s{S_BOUT}', f'buffer_load_dword v{vdst}, v{vtmp}, {srd(SRD_TAB)}, 0 offen']

    def gettag(self, lab, t, VT):
        return [f's_cmp_lg_u32 s{S_WAVE}, 0', f's_cbranch_scc1 {lab}',
                f's_memrealtime s[{S_TAGT}:{S_TAGT + 1}]'] + self.build_srd(SRD_DBG, S_DBG, 256) + [
                f's_lshl_b32 s{S_TW}, s{S_MB}, 2', f'v_mov_b32 v{t}, s{S_TW}', 's_waitcnt lgkmcnt(0)',
                f's_or_b32 s{S_TAG}, s{S_TAGT}, 1', f'v_mov_b32 v{VT}, s{S_TAG}', f'v_mov_b32 v{VT + 1}, 0',
                's_mov_b64 exec, 1',
                f'buffer_atomic_cmpswap v[{VT}:{VT + 1}], v{t}, {srd(SRD_DBG)}, 0 offen offset:128 sc0',
                's_mov_b64 exec, -1', f'{lab}:']

    def prologue(self):
        L = []
        if self.opt.stamps:
            L += [f's_memtime s[{S_ST}:{S_ST + 1}]', f's_memrealtime s[{S_ST + 2}:{S_ST + 3}]']
        L += ['s_cmp_ge_u32 s2, 256', 's_cbranch_scc1 L_end',
              's_load_dwordx16 s[4:19], s[0:1], 0',
              's_load_dwordx4 s[20:23], s[0:1], 64',
              's_load_dwordx2 s[24:25], s[0:1], 80',
              'v_lshrrev_b32 v1, 6, v0']
        if self.opt.cpf:
            L += [f's_getpc_b64 s[{S_MASK}:{S_MASK + 1}]', 'L_pc:',
                  f's_and_b32 s{S_T0}, s2, 0xf8', f'v_add_u32 v2, s{S_T0}, v1', 'v_and_b32 v3, 32, v0', 'v_lshl_add_u32 v2, v3, 3, v2', 'v_lshlrev_b32 v2, 7, v2',
                  f'v_min_u32 v2, L_end-L_pc, v2',
                  f'v_mov_b32 v3, s{S_MASK + 1}',
                  f'v_add_co_u32 v2, vcc, s{S_MASK}, v2', 'v_addc_co_u32 v3, vcc, 0, v3, vcc',
                  'global_load_dword v251, v[2:3], off']
        if self.opt.skew:
            L += ['s_memrealtime s[86:87]', 's_mov_b32 s88, 0']
        L += ['v_and_b32 v0, 63, v0',
              f'v_readfirstlane_b32 s{S_WAVE}, v1',
              f's_and_b32 s{S_T0}, s2, 7', f's_lshr_b32 s{S_T1}, s2, 3',
              f's_and_b32 s{S_BOUT}, s2, 0xf8', f's_add_u32 s{S_BOUT}, s{S_BOUT}, s{S_WAVE}', f's_lshl_b32 s{S_BOUT}, s{S_BOUT}, {self.opt.etlb}',
              f's_min_u32 s{S_T2}, s{S_T0}, 1', f's_add_u32 s{S_T3}, s{S_T1}, s{S_T2}',
              f's_cmp_ge_u32 s{S_T3}, 22', 's_cbranch_scc1 L_cin',
              f's_mul_i32 s{S_T0}, s{S_T0}, 21', f's_add_u32 s{S_T0}, s{S_T0}, s{S_T3}',
              f's_mul_i32 s{S_MB}, s{S_T0}, 5042', f's_lshr_b32 s{S_MB}, s{S_MB}, 16',
              f's_mul_i32 s{S_T1}, s{S_MB}, 13', f's_sub_u32 s{S_R}, s{S_T0}, s{S_T1}']
        return self.seq(L)

    def dnn(self):
        o = self.opt
        vW = [1, 2, 3, 4]
        vX = [[5, 6], [7, 8]]
        vPa, vPc = 9, 10
        WF, XA, ACC = 16, 48, 88
        W2F = WF
        KC0, KC1, KONE = 12, 14, 248
        SUMP, GT = 32, 52
        vIdxOff, vCh, vWD, vBL = 1, [2, 3], [4, 5], 11
        ST, VO = 16, 56
        T = 100
        g, i4, q = T + 16, T + 17, T + 18
        PI = T + 8

        def acc(tn, tm):
            return ACC + (tm * 4 + tn) * 4

        def small(srd_, dst):
            return [f's_mov_b32 m0, {dst}', 's_mov_b64 exec, 0xffff',
                    I(f'buffer_load_dwordx4 v{vBL}, {srd(srd_)}, s{S_N0} offen lds', tag='BIAS'), 's_mov_b64 exec, -1']
        L = [f's_lshl_b32 s{S_N0}, s{S_R}, 8', f's_mul_i32 s{S_T3}, s{S_MB}, 320',
             f'v_lshrrev_b32 v{g}, 4, v0', f'v_lshlrev_b32 v{vBL}, 4, v0', f's_and_b32 s{S_CW}, s{S_WAVE}, 3',
             f's_cmp_lt_u32 s{S_WAVE}, 4', 's_cbranch_scc1 L_cmp']
        c0 = self.seq(L)
        self.ldat = len(self.P.static)
        PI = T

        RG, CG = S_T0, S_T1
        L = ['L_cmp:', f's_mul_i32 s{S_T2}, s{S_WAVE}, 13', f'v_min_u32 v{q}, 12, v0', f'v_add_u32 v{q}, s{S_T2}, v{q}',
             f'v_lshrrev_b32 v{i4}, 1, v{q}', f'v_mul_u32_u24 v{i4}, 96, v{i4}', f'v_lshl_add_u32 v{q}, v{q}, 2, v{i4}',
             f's_mul_i32 s{S_C0}, s{S_R}, 25', f's_min_u32 s{S_C0}, s{S_C0}, 294',
             f's_add_u32 s{S_C0}, s{S_C0}, s{S_T3}', f's_mul_i32 s{S_C0}, s{S_C0}, 104', 's_waitcnt lgkmcnt(0)']
        ct = [int(x) for x in o.ct]
        L += self.build_srd(SRD_IDX, S_IDX, 4096 * 104)
        if ct:
            L += [f'buffer_load_dwordx4 {vr(PI, 4)}, v{q}, {srd(SRD_IDX)}, s{S_C0} offen']
        if ct and max(ct) > 3:
            L += [f'buffer_load_dwordx4 {vr(PI + 4, 4)}, v{q}, {srd(SRD_IDX)}, s{S_C0} offen offset:16']
        L += self.tlb1(T + 14, T + 15)
        touch = [x for k in ct for x in (f'v_lshlrev_b32 v{PI + k}, 7, v{PI + k}', f'buffer_load_dword v{XA + k}, v{PI + k}, {srd(SRD_TAB)}, 0 offen')]
        L += self.build_srd(SRD_B1, S_B1, 3328) + small(SRD_B1, L_BIAS) + self.stamp0()
        L += [f's_and_b32 s{RG}, s{S_WAVE}, 1', f's_lshr_b32 s{CG}, s{S_WAVE}, 1',
              f'v_bfe_u32 v{i4}, v0, 2, 2', f'v_lshl_add_u32 v{q}, v{g}, 3, v{i4}', f'v_lshlrev_b32 v{q}, 8, v{q}',
              f'v_bfe_u32 v{i4}, v0, 2, 3', f's_lshl_b32 s{S_T2}, s{CG}, 2', f'v_xor_b32 v{i4}, s{S_T2}, v{i4}',
              f'v_lshl_add_u32 v{q}, v{i4}, 5, v{q}', f'v_and_b32 v{i4}, 3, v0', f'v_lshl_add_u32 v{q}, v{i4}, 3, v{q}',
              f'v_add_u32 v{vW[0]}, {WR}, v{q}']
        L += [f'v_xor_b32 v{vW[tn]}, {32 * tn}, v{vW[0]}' for tn in range(1, 4)]
        L += [f's_lshl_b32 s{S_T2}, s{CG}, 7', f's_add_u32 s{S_T2}, s{S_T2}, {L_BIAS}', f'v_lshlrev_b32 v{q}, 3, v{g}', f'v_add_u32 v{vPa}, s{S_T2}, v{q}',
              f'v_and_b32 v{q}, 15, v0', f'v_lshlrev_b32 v{q}, 7, v{q}',
              f'v_bfe_u32 v{i4}, v0, 1, 3', f'v_xor_b32 v{i4}, v{i4}, v{g}', f'v_lshl_add_u32 v{q}, v{i4}, 4, v{q}',
              f's_mul_i32 s{S_T2}, s{RG}, 20480', f'v_add_u32 v{vX[0][0]}, s{S_T2}, v{q}', f'v_xor_b32 v{vX[1][0]}, 64, v{vX[0][0]}',
              f'v_add_u32 v{vX[0][1]}, {2 * XSLOT}, v{vX[0][0]}', f'v_add_u32 v{vX[1][1]}, {2 * XSLOT}, v{vX[1][0]}',
              f's_mul_i32 s{S_T2}, s{S_WAVE}, 640', f's_add_u32 s{S_T2}, s{S_T2}, {RB}',
              f'v_and_b32 v{q}, 15, v0', f'v_lshlrev_b32 v{q}, 2, v{q}', f'v_add_u32 v{q}, s{S_T2}, v{q}',
              f'v_lshrrev_b32 v{i4}, 5, v0', f'v_lshl_add_u32 v{q}, v{i4}, 6, v{q}', f'v_bfe_u32 v{i4}, v0, 4, 1', f'v_lshl_add_u32 v{vPc}, v{i4}, 7, v{q}',
              f's_mov_b32 s{S_LOOP}, 0',
              f'v_mov_b32 v{KC0}, {f32hex(GELU_C0)}', f'v_mov_b32 v{KC0 + 1}, {f32hex(GELU_C0)}',
              f'v_mov_b32 v{KC1}, {f32hex(GELU_C1)}', f'v_mov_b32 v{KC1 + 1}, {f32hex(GELU_C1)}',
              f'v_mov_b32 v{KONE}, 1.0', f'v_mov_b32 v{KONE + 1}, 1.0']

        def pkreads(off, dst):
            return [f'ds_read_b64 {vr(dst + 4 * tn + 2, 2)}, v{vPa} offset:{off + 32 * tn}' for tn in range(4)]

        def unp(dst):
            c = []
            for tn in range(4):
                r = dst + 4 * tn
                c += [f'v_lshlrev_b32 v{r}, 16, v{r + 2}', f'v_and_b32 v{r + 1}, 0xffff0000, v{r + 2}',
                      f'v_lshlrev_b32 v{r + 2}, 16, v{r + 3}', f'v_and_b32 v{r + 3}, 0xffff0000, v{r + 3}']
            return c
        L += touch + self.stamp(6)
        L += [WaitTag(vm_tags=['BIAS'])] + pkreads(0, WF) + unp(WF)
        L += [f'v_mov_b64 {vr(ACC + r, 2)}, {vr(WF + r % 16, 2)}' for r in range(0, 160, 2)]

        def rX(n, tm):
            xs = (n // 2) % 3
            return f'ds_read_b128 {vr(XA + 4 * tm, 4)}, v{vX[n % 2][xs // 2]} offset:{(xs % 2) * XSLOT + tm * 2048}'

        def rW(n):
            return [f'ds_read_b64_tr_b16 {vr(WF + 16 * (n % 2) + 4 * tn + 2 * rd, 2)}, v{vW[tn]} offset:{(n % 3) * WSLOT + rd * 1024}'
                    for tn in range(4) for rd in range(2)]
        L += self.stamp(1) + ['s_barrier'] + self.stamp(2) + [f's_setprio {o.cprio}']
        L += rW(0)[:2] + [rX(0, 0)] + rW(0)[2:] + [rX(0, tm) for tm in range(1, 10)]
        cpre = self.seq(L)

        def mf(tn, tm, par):
            a = acc(tn, tm)
            return f'v_mfma_f32_16x16x32_bf16 {vr(a, 4)}, {vr(WF + 16 * par + 4 * tn, 4)}, {vr(XA + 4 * tm, 4)}, {vr(a, 4)}'

        def cstep(n, last6=False):
            par = n % 2
            S = []
            BG = o.bgap
            pend = []
            wr = rW(n + 1) if n < 51 else []
            extra = []
            if n == 51:
                extra = pkreads(256, W2F)
            for gi in range(40):
                tm, tn = gi // 4, gi % 4
                S.append(mf(tn if tm % 2 == 0 else 3 - tn, tm, par))
                if tn == 3 and n < 51:
                    pend.append(rX(n + 1, tm))
                if gi == BG - 1 and n < 51:
                    S += ['s_waitcnt lgkmcnt(0)', 's_barrier']
                elif (gi >= BG and (gi % 2 == 1 or not o.rsp or gi > 30)) or n == 51:
                    if pend:
                        S.append(pend.pop(0))
                    elif wr:
                        S.append(wr.pop(0))
                    elif extra:
                        S.append(extra.pop(0))
                if n == 51 and 16 <= gi < 32:
                    S.append(unp(W2F)[gi - 16])
                if gi == 36 and n < 51:
                    S.append(Touch(vr(WF + 16 * (1 - par), 16)))
                if last6 and gi == 37:
                    S += [f's_add_u32 s{S_LOOP}, s{S_LOOP}, 1', f's_cmp_lt_u32 s{S_LOOP}, 8']
            assert not pend and not wr
            return S
        body = self.seq(['L_dnn_loop0:'])
        for n6 in range(6):
            S = cstep(n6, n6 == 5)
            if n6 == 5:
                if o.stamps and o.itst:
                    i_ = S.index('s_barrier')
                    S = S[:i_] + [f's_memtime s[{S_ST}:{S_ST + 1}]', f's_memrealtime s[{S_ST + 2}:{S_ST + 3}]', f's_add_u32 s{S_C0}, s{S_LOOP}, 20', 's_waitcnt lgkmcnt(0)',
                                  f's_mov_b32 m0, s{S_C0}', f'v_writelane_b32 v252, s{S_ST}, m0', f'v_writelane_b32 v253, s{S_ST + 2}, m0'] + S[i_:]
                S += ['s_cbranch_scc1 L_dnn_loop0']
            body += self.seq(S)
        tc = c0 + cpre + body * 3 + self.seq(['L_tail:'])
        for n in range(48, 52):
            tc += self.seq(cstep(n))
        if o.burn:
            bl = [f's_movk_i32 s{S_LOOP}, {o.burn}', 'L_burn:'] + [f'v_mfma_f32_16x16x32_bf16 {vr(XA + 32 + 4 * (k % 2), 4)}, {vr(WF + 16 + 4 * (k % 4), 4)}, {vr(XA + 4 * (k // 4), 4)}, 0' for k in range(32)]
            tc += self.seq(bl + [f's_sub_u32 s{S_LOOP}, s{S_LOOP}, 1', f's_cmp_lg_u32 s{S_LOOP}, 0', 's_cbranch_scc1 L_burn'])
        tc += self.seq(['L_epi:'] + self.stamp(3))

        p2 = lambda r: vr(r, 2)
        seen = set()

        def gelu(groups):
            L = []
            for k, vals in enumerate(groups):
                tb = GT + (k % 2) * 16
                V_ = [(x, w, s_, tb + 4 * i_, tb + 4 * i_ + 2) for i_, (x, w, s_) in enumerate(vals)]
                for (x, w, s_, t, u) in V_:
                    L.append(f'v_pk_mul_f32 {p2(t)}, {p2(x)}, {p2(x)}')
                for (x, w, s_, t, u) in V_:
                    L.append(f'v_pk_fma_f32 {p2(t)}, {p2(t)}, {p2(KC1)}, {p2(KC0)}')
                for (x, w, s_, t, u) in V_:
                    L.append(f'v_pk_mul_f32 {p2(t)}, {p2(t)}, {p2(x)}')
                for (x, w, s_, t, u) in V_:
                    L += [f'v_exp_f32 v{t}, v{t}', f'v_exp_f32 v{t + 1}, v{t + 1}']
                for (x, w, s_, t, u) in V_:
                    L.append(f'v_pk_mul_f32 {p2(u)}, {p2(x)}, {p2(w)}')
                for (x, w, s_, t, u) in V_:
                    L.append(f'v_pk_add_f32 {p2(t)}, {p2(t)}, {p2(KONE)}')
                for (x, w, s_, t, u) in V_:
                    L += [f'v_rcp_f32 v{t}, v{t}', f'v_rcp_f32 v{t + 1}, v{t + 1}']
                for (x, w, s_, t, u) in V_:
                    if s_ in seen:
                        L.append(f'v_pk_fma_f32 {p2(s_)}, {p2(t)}, {p2(u)}, {p2(s_)}')
                    else:
                        L.append(f'v_pk_mul_f32 {p2(s_)}, {p2(t)}, {p2(u)}')
                        seen.add(s_)
            return L
        el = lambda tn, tm, d: (acc(tn, tm) + 2 * d, W2F + 4 * tn + 2 * d, SUMP + 2 * tm)
        L = gelu([[el(tn, 2 * tp + a_, d) for d in range(2) for a_ in range(2)] for tp in range(5) for tn in range(4)])
        if o.walk:
            np_ = (800 + o.walk - 1) // o.walk
            L = [x for k in range(np_) for x in L[o.walk * k:o.walk * (k + 1)] + [f'L_wk{k}:', f's_cbranch_execz L_wk{k + 1}' if k + 1 < np_ else 's_cbranch_execz L_end']]
        sm = lambda tm: SUMP + 2 * tm
        L += [f'v_add_f32 v{sm(tm)}, v{sm(tm)}, v{sm(tm) + 1}' for tm in range(10)]
        L += [f'v_permlane32_swap_b32 v{sm(tm)}, v{sm(tm + 1)}' for tm in range(0, 10, 2)]
        L += [f'v_add_f32 v{sm(tm)}, v{sm(tm)}, v{sm(tm + 1)}' for tm in (8, 0, 2, 4, 6)]
        L += [f'v_mov_b32 v{sm(9)}, v{sm(8)}', f'v_permlane16_swap_b32 v{sm(0)}, v{sm(2)}', f'v_permlane16_swap_b32 v{sm(4)}, v{sm(6)}',
              f'v_permlane16_swap_b32 v{sm(8)}, v{sm(9)}',
              f'v_add_f32 v{sm(0)}, v{sm(0)}, v{sm(2)}', f'v_add_f32 v{sm(4)}, v{sm(4)}, v{sm(6)}', f'v_add_f32 v{sm(8)}, v{sm(8)}, v{sm(9)}',
              f'ds_write_b32 v{vPc}, v{sm(0)}', f'ds_write_b32 v{vPc}, v{sm(4)} offset:256',
              's_mov_b32 exec_lo, 0xffff', 's_mov_b32 exec_hi, 0xffff', f'ds_write_b32 v{vPc}, v{sm(8)} offset:512', 's_mov_b64 exec, -1']
        L += ['s_waitcnt lgkmcnt(0)'] + self.stamp(4) + self.stamp_flush() + ['s_barrier', 's_endpgm']
        tc += self.seq(L)

        def wstage(slot):
            c = []
            for u in range(2):
                c += [f's_add_u32 m0, s{S_WMB}, {WR + slot * WSLOT + u * 1024}',
                      I(f'buffer_load_dwordx4 v{vWD[u]}, {srd(SRD_W)}, s{S_WSOFF} offen lds', tag='W')]
            return c + [f's_add_u32 s{S_WSOFF}, s{S_WSOFF}, {32 * 3328}']

        Q, TM, BP = 16, 56, [12, 13]
        TI, vWT = 70, 76
        SP = [36, 37, 38, 39, 40, 41, 42, 43, 48, 49]
        SI = [94, 95, 96, 97, 98, 99, 100, 101, 82, 83]

        def xaddr(f, pcs):
            c = []
            for odd in range(2):
                p_ = f + 26 * odd
                for pc in pcs:
                    c.append(f'v_add_u32_dpp v{TM + pc}, v{Q + 4 * pc + p_ % 4}, v{vCh[pc & 1]} row_newbcast:{p_ >> 2} row_mask:0xf bank_mask:{(3, 12)[odd]:#x}')
            return c

        def xld(pc, slot, tag='X'):
            return [f's_add_u32 m0, s{SP[pc]}, {slot * XSLOT}',
                    I(f'buffer_load_dwordx4 v{TM + pc}, {srd(SRD_TAB)}, 0 offen lds', tag=tag)]
        idxl = [f'buffer_load_dwordx4 {vr(Q + 4 * pc, 4)}, v{BP[0]}, {srd(SRD_IDX)}, s{SI[pc]} offen' for pc in range(10)]
        LO, HI = range(5), range(5, 10)
        NR = (22 + o.tf - 1) // o.tf
        lw = S_CW
        self.mk0 = len(self.P.static)
        L = [f's_mul_i32 s{S_T0}, s{S_R}, {o.rot}', f's_lshr_b32 s{S_T0}, s{S_T0}, 4',
             f's_mul_i32 s{S_T1}, s{lw}, 10', f's_mul_i32 s{S_C0}, s{S_T3}, 104',
             f'v_mul_u32_u24 v{q}, 48, v{g}', f'v_sub_u32 v{BP[0]}, v{vBL}, v{q}']
        ptab = lambda pc: [f's_add_u32 s{S_T2}, s{S_T0}, {pc}', f's_sub_u32 s{S_TW}, s{S_T2}, 10', f's_min_u32 s{S_T2}, s{S_T2}, s{S_TW}', f's_add_u32 s{S_T2}, s{S_T2}, s{S_T1}',
                           f's_lshl_b32 s{SP[pc]}, s{S_T2}, 10', f's_mul_i32 s{S_T2}, s{S_T2}, 832', f's_add_u32 s{SI[pc]}, s{S_T2}, s{S_C0}']
        for pc in range(o.i0):
            L += ptab(pc)
        L += [f's_and_b32 s{S_T2}, s{lw}, 1', f's_lshl_b32 s{S_T2}, s{S_T2}, 3',
              f'v_lshlrev_b32 v{i4}, 1, v{g}', f'v_or_b32 v{i4}, s{S_T2}, v{i4}', f'v_xor_b32 v{i4}, v{i4}, v0', f'v_and_b32 v{i4}, 15, v{i4}',
              f'v_mul_u32_u24 v{vWD[0]}, 3328, v{g}', f'v_lshl_add_u32 v{vWD[0]}, v{i4}, 4, v{vWD[0]}', f'v_add_u32 v{vWD[1]}, {4 * 3328}, v{vWD[0]}',
              f's_mul_i32 s{S_WSOFF}, s{lw}, {8 * 3328}', f's_add_u32 s{S_WSOFF}, s{S_WSOFF}, s{S_N0}', f's_lshl_b32 s{S_WMB}, s{lw}, 11',
              's_waitcnt lgkmcnt(0)']
        L += self.build_srd(SRD_IDX, S_IDX, 4096 * 104) + idxl[:o.i0] + self.tlb1(T + 14, T + 15) + self.build_srd(SRD_W, S_W1, 1664 * 3328)
        for sl in range(o.w0):
            L += wstage(sl)
        L += self.stamp0()
        for pc in range(o.i0, 10):
            L += ptab(pc) + ([idxl[pc]] if pc < o.i1 else [])
        L += [f's_and_b32 s{S_T2}, s{S_T0}, 1', f's_lshl_b32 s{S_T2}, s{S_T2}, 6',
              f'v_and_b32 v{q}, 7, v0', f'v_xor_b32 v{q}, v{q}, v{g}', f'v_lshlrev_b32 v{q}, 4, v{q}', f'v_xor_b32 v{vCh[0]}, s{S_T2}, v{q}', f'v_xor_b32 v{vCh[1]}, 64, v{vCh[0]}',
              f's_mov_b32 s{S_LOOP}, 0',
              f's_mul_i32 s{S_T2}, s{lw}, 13', f's_add_u32 s{S_T2}, s{S_T2}, s{S_R}', f's_min_u32 s{S_T2}, s{S_T2}, 39', f's_lshl_b32 s{S_T2}, s{S_T2}, 3',
              f's_add_u32 s{S_T2}, s{S_T2}, s{S_T3}', f's_mul_i32 s{S_GRP}, s{S_T2}, 104',
              f'v_lshrrev_b32 v{q}, {o.tf.bit_length() - 1}, v0', f'v_min_u32 v{q}, 7, v{q}', f'v_mul_u32_u24 v{q}, 104, v{q}',
              f'v_and_b32 v{i4}, {o.tf - 1}, v0', f'v_lshl_add_u32 v7, v{i4}, 2, v{q}',
              f's_lshl_b32 s{S_T2}, s{S_MB}, 2', f's_add_u32 s{S_T2}, s{S_T2}, s{lw}', f's_add_u32 s{S_T2}, s{S_T2}, {o.tw0 * 32}', f's_mul_i32 s{S_RC}, s{S_T2}, 3328',
              f's_add_u32 s{S_RC}, s{S_RC}, s{S_N0}', f's_mov_b32 s{S_T2}, {52 * 3328}',
              f'v_lshrrev_b32 v{q}, 1, v0', f'v_mul_lo_u32 v{q}, s{S_T2}, v{q}', f'v_and_b32 v{i4}, 1, v0', f'v_lshl_add_u32 v{vWT}, v{i4}, 7, v{q}']
        L += self.build_srd(SRD_W2, S_W2, 3328)
        L += [f's_mul_i32 s{S_T2}, s{lw}, {o.lpf * 128}', f's_add_u32 s{S_T2}, s{S_T2}, L_tail-L_pc', f'v_lshlrev_b32 v8, 7, v0', f'v_add_u32 v8, s{S_T2}, v8',
              f'v_mov_b32 v9, s{S_MASK + 1}', f'v_add_co_u32 v8, vcc, s{S_MASK}, v8', 'v_addc_co_u32 v9, vcc, 0, v9, vcc']
        sh = lambda pc, c_: f'v_lshlrev_b32 v{Q + 4 * pc + c_}, 7, v{Q + 4 * pc + c_}'
        for pc in range(10):
            L += [sh(pc, 0), sh(pc, 2), sh(pc, 1), sh(pc, 3)] + xaddr(0, [pc]) + xld(pc, 0, 'X0')
            if pc == o.i0 - 1:
                L += idxl[o.i1:] + self.stamp(6)
                for sl in range(o.w0, 2):
                    L += wstage(sl)
        L += self.stamp(7)
        x1 = [x for pc in range(10) for x in xaddr(1, [pc]) + xld(pc, 1)]
        L += x1[:4 * o.x1n] + [WaitTag(vm_tags=['X0'])] + self.stamp(1) + ['s_barrier'] + self.probe('s0') + x1[4 * o.x1n:4 * o.x1m] + ['s_barrier'] + x1[4 * o.x1m:]
        L += xaddr(2, range(10)) + wstage(2)
        tex = (1 << (8 * o.tf)) - 1
        texec = [f's_mov_b32 exec_lo, {tex & 0xffffffff:#x}', f's_mov_b32 exec_hi, {tex >> 32:#x}']
        if o.tch:
            L += [f'buffer_load_dword v{TI + r}, v7, {srd(SRD_IDX)}, s{S_GRP} offen offset:{4 * min(4 + o.tf * r, 26 - o.tf)}' for r in range(NR)]
        for pc in LO:
            L += xld(pc, 2)
        lpre = self.seq(L + [f's_setprio {o.lprio}', 's_branch L_ld_in'])
        del self.P.static[self.mk0:]
        self.P.static[self.ldat:self.ldat] = lpre
        self.mk0 = len(self.P.static)

        def lstep(n, inloop):
            S = ['s_barrier'] + (['L_ld_in:'] if inloop and n == 0 else [])
            if inloop:
                f = (n + 5) // 2
                f2 = (n + 6) // 2
                nxt = HI if n % 2 else LO
                xa = xaddr(f2, nxt)
                dm = wstage(n % 3) + [x for pc in (LO if n % 2 else HI) for x in xld(pc, f % 3)]
                for x in dm:
                    if isinstance(x, I):
                        S.append(xa.pop(0))
                    S.append(x)
                S += xa
                if n >= 22:
                    S += [f'v_mov_b32_dpp v{Q + 4 * pc + c_}, v{Q + 4 * pc + c_} row_shl:3 row_mask:0xf bank_mask:0xf' for pc in nxt for c_ in range(4)]
                if n == 23:
                    S += [f's_add_u32 s{S_LOOP}, s{S_LOOP}, 1', f's_cmp_lt_u32 s{S_LOOP}, 2']
                S += [WaitTag(allbut=('W', 2))]
            elif n == 48:
                S += wstage(0) + small(SRD_W2, L_W2) + self.tlb2(T)
                S += ['s_mov_b64 exec, 1', f'buffer_load_dword v250, v{T}, {srd(SRD_DBG)}, 0 offen offset:240 sc1', 's_mov_b64 exec, -1', WaitTag(allbut=('W', 2))]
            elif n == 49:
                S += [WaitTag(vm0=True)]
            return S
        body = self.seq(['L_dnn_loop1:'])
        per = 2 * o.tf
        for n in range(24):
            if n == 15 and o.lpf:
                body += self.seq([f's_cmp_lg_u32 s{S_LOOP}, 1', 's_cbranch_scc1 L_nolpf'])
                self.seq([f's_mov_b64 exec, {(1 << o.lpf) - 1}', 'global_load_dword v10, v[8:9], off', 's_mov_b64 exec, -1'])
                body += self.seq(['L_nolpf:'])
            S = lstep(n, True)
            if o.tch and n % per == o.toff:
                t_ = [f'v_lshlrev_b32 v{T + 1}, 7, v{TI}'] + texec + [f'buffer_load_dword v{T + 2}, v{T + 1}, {srd(SRD_TAB)}, 0 offen', 's_mov_b64 exec, -1']
                t_ += [f'v_mov_b32 v{TI + r}, v{TI + r + 1}' for r in range(NR - 1)] + [f'v_mov_b32 v{TI + NR - 1}, 0xffffff']
                S = S[:-1] + t_ + S[-1:]
            if o.tch and n % 8 == 3:
                S = S[:-1] + ['s_mov_b64 exec, 0x3ff', f'buffer_load_dword v{T + 3}, v{vWT}, {srd(SRD_W)}, s{S_RC} offen', 's_mov_b64 exec, -1',
                              f's_add_u32 s{S_RC}, s{S_RC}, {260 * 3328}'] + S[-1:]
            body += self.seq(S + (['s_cbranch_scc1 L_dnn_loop1'] if n == 23 else []))
        tl = c0 + lpre + body * 2 + self.seq(['s_branch L_ld_tail'])
        self.ldblk = self.P.static[self.mk0:]
        del self.P.static[self.mk0:]
        tl += self.seq(['L_ld_tail:'])
        for n in range(48, 51):
            tl += self.seq(lstep(n, False))
        tl += self.seq(self.probe('s50'))
        if o.walk:
            tl += self.seq([f's_cmp_eq_u32 s{lw}, 0', 's_cbranch_scc1 L_wkd', 's_mov_b64 exec, 0', f's_cmp_eq_u32 s{lw}, 1', 's_cbranch_scc1 L_wk0',
                            f's_cmp_eq_u32 s{lw}, 2', f's_cbranch_scc1 L_wk{np_ // 3}', f's_branch L_wk{2 * np_ // 3}', 'L_wkd:'])
        A = 64
        L = [f's_cmp_lg_u32 s{S_WAVE}, 4', 's_cbranch_scc1 L_end',
             f'v_lshlrev_b32 v3, 4, v0', f'v_lshlrev_b32 v4, 2, v0', f'v_add_u32 v1, {RB}, v3', f'v_add_u32 v2, {RB + 1024}, v4', f'v_add_u32 v4, 1024, v4',
             'v_mov_b32 v5, 32', f'v_mov_b32 v7, s{S_MB}',
             f's_mul_i32 s{S_T0}, s{S_MB}, 1280', f's_mul_i32 s{S_T1}, s{S_R}, {WSP}', f's_add_u32 s{S_T1}, s{S_T1}, s{S_T0}', 's_setprio 3']
        L += self.stamp_flush() + ['s_barrier'] + self.probe('dend')
        L += [f'ds_read_b128 {vr(A, 4)}, v1', f'ds_read_b128 {vr(A + 8, 4)}, v1 offset:1280', f'ds_read2st64_b32 {vr(A + 4, 2)}, v2 offset0:0 offset1:5',
              f'v_pk_add_f32 {p2(A)}, {p2(A)}, {p2(A + 8)}', f'v_pk_add_f32 {p2(A + 2)}, {p2(A + 2)}, {p2(A + 10)}', f'v_add_f32 v{A + 4}, v{A + 4}, v{A + 5}']
        L += (self.stamp(16) if o.diag else [])
        L += [f'buffer_store_dwordx4 {vr(A, 4)}, v3, {srd(SRD_WS)}, s{S_T1} offen sc1',
              f'buffer_store_dword v{A + 4}, v4, {srd(SRD_WS)}, s{S_T1} offen sc1', 's_mov_b64 exec, 1']
        tl += self.seq(L)

        L = ['L_pub:']
        if o.skew:
            L += ['v_mov_b32 v20, s86', 'v_mov_b32 v21, s86', 'v_mov_b32 v22, s88', 's_lshl_b32 s89, s2, 7', 's_add_u32 s89, s89, 0x40000', 'v_lshlrev_b32 v23, 28, v0',
                  f'buffer_store_dwordx3 v[20:22], v23, {srd(SRD_WS)}, s89 offen sc1']
        L += ['v_lshlrev_b32 v6, 4, v7', 'v_cmp_eq_u32 vcc, 12, v7', 'v_mov_b32 v8, 436', 'v_mov_b32 v9, 434', 'v_cndmask_b32 v8, v8, v9, vcc',
             'v_sub_u32 v8, v8, v5', 's_waitcnt vmcnt(0)',
             f'buffer_atomic_add v5, v6, {srd(SRD_DBG)}, 0 offen sc0',
             's_waitcnt vmcnt(0) lgkmcnt(0)'] + (self.stamp(18) if o.diag else []) + [
             f'v_cmp_eq_u32 s[{S_EX}:{S_EX + 1}], v5, v8', 's_mov_b64 exec, -1', f's_lshl_b32 s{S_BOUT}, s{S_BOUT}, 16',
             'L_fin:', f's_cmp_eq_u32 s{S_EX}, 0', 's_cbranch_scc1 L_done',
             f's_ff1_i32_b32 s{S_T2}, s{S_EX}', f's_bitset0_b32 s{S_EX}, s{S_T2}', f'v_readlane_b32 s{S_T3}, v7, s{S_T2}',
             f's_mul_i32 s{S_T0}, s{S_T3}, 1280', f's_mul_i32 s{S_T3}, s{S_T3}, 640']
        for qq in range(14):
            L += [f'buffer_load_dwordx4 {vr(A + 8 * qq, 4)}, v3, {srd(SRD_WS)}, s{S_T0} offen sc1',
                  f'buffer_load_dword v{A + 8 * qq + 4}, v4, {srd(SRD_WS)}, s{S_T0} offen sc1', f's_add_u32 s{S_T0}, s{S_T0}, {WSP}']
        L += ['v_lshrrev_b32 v1, 1, v3', 'v_lshrrev_b32 v2, 1, v4']
        for qq in range(1, 14):
            L += [f'v_pk_add_f32 {p2(A)}, {p2(A)}, {p2(A + 8 * qq)}', f'v_pk_add_f32 {p2(A + 2)}, {p2(A + 2)}, {p2(A + 8 * qq + 2)}',
                  f'v_add_f32 v{A + 4}, v{A + 4}, v{A + 8 * qq + 4}']
        L += [f'v_add_f32 v{A + k}, s{S_BOUT}, v{A + k}' for k in range(5)]
        L += [f'v_cvt_pk_bf16_f32 v10, v{A}, v{A + 1}', f'v_cvt_pk_bf16_f32 v11, v{A + 2}, v{A + 3}', f'v_cvt_pk_bf16_f32 v12, v{A + 4}, v{A + 4}',
              f'buffer_store_dwordx2 v[10:11], v1, {srd(SRD_OUT)}, s{S_T3} offen', f'buffer_store_short v12, v2, {srd(SRD_OUT)}, s{S_T3} offen']
        if o.skew:
            L += [f's_cmp_lg_u32 s{S_EX}, 0', 's_cbranch_scc1 L_fin', 'v_lshlrev_b32 v20, 7, v0', 's_mov_b32 s88, 0x40000']
            for k in range(4):
                L += [f'buffer_load_dwordx3 v[{32 + 4 * k}:{34 + 4 * k}], v20, {srd(SRD_WS)}, s88 offen sc1', 's_add_u32 s88, s88, 8192']
            L += ['s_waitcnt vmcnt(0)']
            for k in range(4):
                L += [f'v_sub_u32 v28, v{34 + 4 * k}, v{32 + 4 * k}', 'v_cmp_gt_u32 vcc, 5000, v28', f'v_cndmask_b32 v28, 0, v28, vcc',
                      f'v_cmp_eq_u32 vcc, v{32 + 4 * k}, v{33 + 4 * k}', f'v_cndmask_b32 v{33 + 4 * k}, 0, v28, vcc']
            L += ['v_max_u32 v26, v33, v37', 'v_max3_u32 v26, v26, v41, v45', 'v_mov_b32 v27, -1']
            if o.probe == 'span':
                L += ['s_memrealtime s[86:87]', 's_waitcnt lgkmcnt(0)', 'v_mov_b32 v26, s86']
            for (ctl, rm) in (('row_shr:1', '0xf'), ('row_shr:2', '0xf'), ('row_shr:4', '0xf'), ('row_shr:8', '0xf'), ('row_bcast:15', '0xa'), ('row_bcast:31', '0xc')):
                L += [f'v_max_u32_dpp v{r}, v{r}, v{r} {ctl} row_mask:{rm} bank_mask:0xf' for r in (26, 27)]
            L += ['v_not_b32 v27, v27', 'v_sub_u32 v22, v26, v27', 's_memrealtime s[86:87]', 'v_readlane_b32 s88, v22, 63', 's_waitcnt lgkmcnt(0)',
                  's_min_u32 s88, s88, 5000', f's_mul_i32 s88, s88, {o.skew - 1}', 's_add_u32 s88, s88, s86',
                  'L_spin:', 's_memrealtime s[86:87]', 's_waitcnt lgkmcnt(0)', 's_sub_u32 s89, s88, s86', 's_cmp_gt_i32 s89, 0', 's_cbranch_scc1 L_spin']
        L += self.stamp(5) + self.stamp_flush() + ['s_branch L_fin', 'L_done:', 's_endpgm']
        self.pub = self.seq(L)
        return [tc, tl + self.pub]

    def pubsrd(self):
        return self.build_srd(SRD_WS, S_WS, 0x10000000) + self.build_srd(SRD_OUT, S_OUT, 8192) + self.build_srd(SRD_DBG, S_DBG, 256)

    def tables(self):
        OOB = 0x100000
        G = [[] for _ in range(11)]
        for l in range(64):
            half, i32, g, r, c = l >> 5, l & 31, l >> 4, (l >> 2) & 3, l & 3
            lin0 = g * 128 + r * XPP + c * 8
            G[0] += [lin0, lin0 + 512 if g < 3 else XOFF(27) + c * 8, (l >> 3) * 16, 0x3f803f80 if l < 32 else 0]
            G[1] += [(l & 7) * 16, 0xeeee if l & 1 else 0x4444, half * XPP + i32 * 4, IMG + half * 20 * IMGP + i32 * 4]
            tr = [IMG + cin16.IMGROW(cin16.LAB[g][2 * rp + (r >> 1)][r & 1]) * IMGP + c * 8 for rp in range(8)]
            G[2] += tr[:4]
            G[3] += tr[4:]
            row, col = 8 * half + r, (g & 1) * 32 + c * 8
            G[4] += [V3OFF + row * 64 + col, A1 + row * 1352 + col, A1 + min(row + 16, 25) * 1352 + col, A1 + min(row + 20, 25) * 1352 + col]
            t, gd, rr = (i32 >> 2) & 1, i32 >> 3, i32 & 3
            ig = 16 * t + 4 * rr + gd
            iq = 4 * rr + gd if t == 0 else 16 + ((4 * rr + gd + 4) & 15)
            pm = []
            for q in range(8):
                k0 = 16 * (q >> 2) + 8 * half + 2 * (q & 3)
                pm.append((0xffff if iq == k0 else 0xffff0000 if iq == k0 + 1 else 0) if iq < 26 else 0)
            G[5] += pm[:4]
            G[6] += pm[4:]
            ga = A2 + 52 * ig if ig < 26 else OOB
            rowp = ((l & 12) + 2 * (l & 1)) * 16 + (OOB if l & 2 else 0)
            G[7] += [ga + half * 8 * 1352, ga + half * OOB, rowp + half * 256 + (g & 1) * 8, rowp + g * 256]
            G[8] += [SG + i32 * 64 if i32 < 26 else V2S if i32 == 26 else OOB, 64 if i32 == 26 else 3328, (i32 >> 1) + 2 * half,
                     SQ + i32 * 64 + ((((i32 >> 1) & 3) ^ (2 * half)) << 4)]
            v2 = []
            for hf in range(2):
                j = 4 * g + 16 * hf + r
                v2.append(V2S + (j & 1) * 1664 + (j >> 1) * 64 + ((c ^ (((13 + j) & 3) * 2)) * 8) if j < 26 else SG + 676 * 64 + c * 8)
            wo = [L_WCO + 2 * (16 * tl_ + 4 * c + r) if 16 * tl_ + 4 * c + r < 26 else OOB for tl_ in range(2)]
            G[9] += v2 + wo
            G[10] += [L_WCO + 104 + 16 * half, L_WCO + 52 + 2 * l, V3OFF + 52 + 64 * l, SG + 676 * 64 + (l & 15) * 4]
        U = []
        for w in range(8):
            for e in range(16):
                for u in (w, w + 8, w + 16):
                    U += [SG + row * 64 + f * 8 for row, f in cin16.p2rows(u, e >> 2, e & 3)] if u < 22 else [0, 0]
        return [x for n in (4, 10, 2, 3, 0, 5, 6, 7, 8, 9, 1) for x in G[n]] + [0] * 256 + U + [0] * 256

    def cin(self):
        o = self.opt
        cw = S_CW
        vFa, vLin0, vLin1, vXi0, vXi1, vC16, vIDX, vXa, vIw, vPWL, vPXL, PXR, PFR = 1, 4, 5, 6, 7, 8, 9, 10, 11, 12, 13, 3, 14
        XI, vTR = 16, 20
        XR, P, Z, WF, D = 32, 60, 116, 164, 184
        vStg, vFR, vFw = vFa, 2, 59
        t3, t4, t5 = 29, 30, 31
        AV = [28, 58]
        PM = 216
        vA3, vBs0, vBs1a, vBs1b, vGa, vGb, vT3, vT3d = range(224, 232)
        G8, vV2r, vV2q, vWo, AD = 232, 236, 237, 238, 240
        WA = list(range(244, 250))
        vS, vMx = 250, 111
        UA, UX = 152, 158
        AFR = 112
        BALL, DALL = 60, 120
        S_F1, S_F2, S_G, S_LO, S_HI, S_CM, S_U0, S_U1, S_U2 = 74, 75, 95, 96, 97, 90, 98, 99, 100
        S_CG, S_IV = 0, 1
        OOB = 0x100000
        TA_, TB_, TC_ = SG + 35840, SQ + 35840, FRS + 2048
        GREG = [224, 240, 20, 24, 4, 216, 220, 228, 232, 236, 8]
        DPPS = (('row_shr:1', '0xf'), ('row_shr:2', '0xf'), ('row_shr:4', '0xf'), ('row_shr:8', '0xf'),
                ('row_bcast:15', '0xa'), ('row_bcast:31', '0xc'))

        K_W7, K_IMG, K_W2, K_W1, K_W12, K_H8, K_T3 = 44, 45, 46, 47, 92 - 10, 92 - 9, 101
        L = ['L_cin:', f'v_lshlrev_b32 v{vStg}, 4, v0', f's_and_b32 s{cw}, s{S_WAVE}, 3', f's_lshr_b32 s{S_GRP}, s{S_WAVE}, 2', f's_lshl_b32 s{S_STG}, s{cw}, 10',
             f's_mul_i32 s{S_MB}, s{S_T0}, 11', f's_add_u32 s{S_MB}, s{S_MB}, s{S_T1}', f's_sub_u32 s{S_MB}, s{S_MB}, 22',
             f's_cmp_eq_u32 s{S_MB}, 86', 's_cbranch_scc1 L_end', f's_cmp_eq_u32 s{S_GRP}, 0', 's_cbranch_scc1 L_sc']
        c0 = self.seq(L)
        L = ['s_setprio 2', f'v_add_u32 v2, L_tables-L_pc, v{vStg}', f'v_mov_b32 v3, s{S_MASK + 1}',
             f'v_add_co_u32 v2, vcc, s{S_MASK}, v2', 'v_addc_co_u32 v3, vcc, 0, v3, vcc',
             f'global_load_dwordx4 {vr(GREG[0], 4)}, v[2:3], off', f'global_load_dwordx4 {vr(GREG[1], 4)}, v[2:3], off offset:1024',
             f'v_add_co_u32 v2, vcc, s{S_STG}, v2', 'v_addc_co_u32 v3, vcc, 0, v3, vcc',
             f's_cmp_lt_u32 s{cw}, 2', f's_mov_b32 s{S_T2}, {TB_ - 2048}', f's_cselect_b32 s{S_T2}, {TA_ + 4096}, s{S_T2}']
        for m, dst in enumerate((TA_, None, TB_ + 2048, TC_)):
            L += [f's_add_u32 m0, s{S_STG}, {dst}' if dst is not None else f's_add_u32 m0, s{S_STG}, s{S_T2}', I('global_load_lds_dwordx4 v[2:3], off', tag='TAB')]
            if m < 3:
                L += ['v_add_co_u32 v2, vcc, 0x1000, v2', 'v_addc_co_u32 v3, vcc, 0, v3, vcc']
        g1t = self.seq(L)
        L = ['L_sc:', f's_mul_i32 s{S_RC}, s{S_GRP}, 20', f's_add_u32 s{S_RC}, s{S_RC}, s{S_WAVE}',
             f's_mul_i32 s{S_SAMP}, s{S_MB}, 48', f's_add_u32 s{S_SAMP}, s{S_SAMP}, s{S_RC}', f's_mul_i32 s{S_SAMP}, s{S_SAMP}, 104',
             f'v_lshrrev_b32 v{vXi0}, 3, v0', f'v_lshlrev_b32 v{vXi0}, 4, v{vXi0}', f'v_and_b32 v{vC16}, 0x70, v{vStg}',
             f's_mul_i32 s{S_XM0}, s{S_WAVE}, {XBSZ}', f's_add_u32 s{S_XM0}, s{S_XM0}, {XB}', f's_cmp_eq_u32 s{S_GRP}, 0', 's_cbranch_scc1 L_g0']
        csc = self.seq(L)
        SC2 = [f's_lshl_b32 s{S_RC}, s{S_RC}, 2', f's_add_u32 s{S_RC}, s{S_RC}, {RC}',
               f's_mul_i32 s{S_LOOP}, s{S_GRP}, 3', f's_sub_u32 s{S_LOOP}, 4, s{S_LOOP}', (f's_cmp_eq_u32 s{S_MB}, 85', f's_cselect_b32 s{S_LOOP}, s{S_LOOP}, 6'),
               f's_lshl_b32 s{K_W7}, s{S_WAVE}, 7', f's_mul_i32 s{K_IMG}, s{S_WAVE}, {IMGSZ}', f's_lshl_b32 s{K_W2}, s{S_WAVE}, 2', f's_lshl_b32 s{K_W1}, s{S_WAVE}, 1',
               f's_lshl_b32 s{K_W12}, s{S_WAVE}, 12',
               f's_and_b32 s{S_U0}, s{S_WAVE}, 1', f's_lshr_b32 s{S_U1}, s{S_WAVE}, 1',
               f's_mul_i32 s{S_T0}, s{S_U1}, 3072', f's_lshl_b32 s{K_H8}, s{S_U0}, 3', f's_add_u32 s{S_T0}, s{S_T0}, s{K_H8}', f'v_add_u32 v{vFw}, s{S_T0}, v{vStg}',
               f's_lshl_b32 s{S_T1}, s{S_U1}, 3', f's_lshr_b32 s{S_T1}, 0x05030200, s{S_T1}', f's_and_b32 s{S_T1}, s{S_T1}, 0xff',
               f's_lshl_b32 s{S_T1}, s{S_T1}, 9', f's_lshl_b32 s{S_T2}, s{S_U0}, 2', f's_add_u32 s{K_T3}, s{S_T1}, s{S_T2}',
               f's_mov_b32 s{S_U1}, 0x05040100', f's_mov_b32 s{S_U2}, 0x07060302',
               f'v_mov_b32 v{vFR}, {L_FLG}', 'v_mov_b32 v109, 0', 'v_mov_b32 v108, 0'] + [f'v_mov_b64 {vr(r, 2)}, 0' for r in range(XR, XR + 26, 2)]
        XJ = 104
        assert not (o.pfx or o.pfw)

        def pfw():
            return [f'buffer_load_dword v{PFR}, v{vPWL}, {srd(SRD_W)}, s{S_PW} offen',
                    f's_add_u32 s{S_PW}, s{S_PW}, {o.pfne * 688 * 128}']

        def pfx_a():
            return [f'buffer_load_dword v{PXR}, v{vPXL}, {srd(SRD_IDX)}, s{S_PX} offen',
                    f's_cmp_eq_u32 s{S_PX}, s{S_PXE}', f's_cselect_b32 s{S_PXE}, 0x7000000, s{S_PXE}',
                    f's_cselect_b32 s{S_PX}, 0x7000000, s{S_PX}',
                    f's_add_u32 s{S_PX}, s{S_PX}, 24', f's_min_u32 s{S_PX}, s{S_PX}, s{S_PXE}']

        def pfx_b():
            return [f'v_lshlrev_b32 v{PXR}, 7, v{PXR}', f'buffer_load_dword v{PFR + 1}, v{PXR}, {srd(SRD_TAB)}, 0 offen']

        def xidx(XI=XI):
            return [f'buffer_load_dwordx4 {vr(XI, 4)}, v{vXi0}, {srd(SRD_IDX)}, s{S_SAMP} offen', f's_add_u32 s{S_SAMP}, s{S_SAMP}, {4 * 104}']

        def xdma(XI=XI, off=0, tag='XB'):
            c = [f'v_lshl_add_u32 v{XI + u}, v{XI + u}, 7, v{vC16}' for u in range(4)]
            for u in range(4):
                c += [f's_add_u32 m0, s{S_XM0}, {u * XPP + off}']
                if u % 2 == 0:
                    c.append(f's_mov_b32 exec_hi, {0xffffff if u == 0 else 0xffff:#x}')
                c.append(I(f'buffer_load_dwordx4 v{XI + u}, {srd(SRD_TAB)}, 0 offen lds', tag=tag))
            return c + ['s_mov_b32 exec_hi, -1']

        def stage(dst, goff, tag):
            st = []
            for m in range(9):
                st.append((f's_add_u32 m0, s{S_STG}, {dst + m * 4096}', f's_add_u32 s{S_TW}, s{S_STG}, {goff + m * 4096}',
                           I(f'buffer_load_dwordx4 v{vStg}, {srd(SRD_CIN)}, s{S_TW} offen lds', tag=tag)))
            return st

        def pubmax(regs_offs):
            c = []
            for (ctl, rm) in DPPS:
                for r, _ in regs_offs:
                    c.append(f'v_max_u32_dpp v{r}, v{r}, v{r} {ctl} row_mask:{rm} bank_mask:0xf')
            c += ['s_mov_b32 exec_lo, 0', 's_mov_b32 exec_hi, 0x80000000']
            c += [f'ds_max_u32 v{vFR}, v{r} offset:{16 + 4 * k}' for r, k in regs_offs]
            return c + ['s_mov_b64 exec, -1']

        def mxop(src, n, mx, mn, first):
            c = []
            for r in range(0, n, 2):
                z = first and r == 0
                c += [f'v_pk_maximum3_f16 v{mx}, v{src + r}, v{src + r + 1}, {"0" if z else f"v{mx}"}', f'v_pk_minimum3_f16 v{mn}, v{src + r}, v{src + r + 1}, {"0" if z else f"v{mn}"}']
            return c

        def mxfin(mx, mn):
            return [f'v_and_b32 v{mn}, 0x7fff7fff, v{mn}', f'v_and_b32 v{mx}, 0x7fff7fff, v{mx}', f'v_pk_max_u16 v{mx}, v{mx}, v{mn}',
                    f'v_lshlrev_b32 v{mn}, 16, v{mx}', f'v_max_u32 v{mx}, v{mx}, v{mn}']

        def bread(m, off):
            b = BALL + m * 8
            return [f'ds_read_b64_tr_b16 {vr(b, 2)}, v{vBs0} offset:{off}',
                    f'ds_read_b64_tr_b16 {vr(b + 2, 2)}, v{vBs0} offset:{off + 4 * 1352}',
                    f'ds_read_b64_tr_b16 {vr(b + 4, 2)}, v{vBs1a} offset:{off}',
                    f'ds_read_b64_tr_b16 {vr(b + 6, 2)}, v{vBs1b} offset:{off}']

        def mm2(d, a, b):
            return [f'v_mfma_f32_32x32x16_bf16 {vr(d, 16)}, {vr(a, 4)}, {vr(b, 4)}, 0',
                    f'v_mfma_f32_32x32x16_bf16 {vr(d, 16)}, {vr(a + 4, 4)}, {vr(b + 4, 4)}, {vr(d, 16)}']

        tA, tB = 14, 15
        trd = lambda n: f'ds_read_b128 {vr(GREG[n], 4)}, v{tA if n < 6 else tB} offset:{(n if n < 6 else n - 6) * 1024}'
        vbs = [f'v_add_u32 v{r}, s{K_W7}, v{r}' for r in (vBs0, vBs1a, vBs1b)]

        def FX(g):
            R = [trd(n) for n in ((0,) if g == 0 else ()) + (7, 8, 4, 10, 2, 3, 5, 6, 9)]
            F = (vbs if g == 0 else []) + [f'v_add_u32 v{r}, s{K_W2}, v{r}' for r in (vGa, vGb)]
            F += [f'v_add_u32 v{vT3d}, s{K_H8}, v{vT3d}', f'v_add_u32 v{vT3}, s{K_T3}, v{vT3}']
            F += [f'v_mad_u32_u24 v{G8}, v{G8 + 1}, s{S_WAVE}, v{G8}', f'v_add_u32 v{G8 + 2}, s{K_W1}, v{G8 + 2}',
                  f'v_mad_u32_u24 v{G8 + 1}, v{G8 + 1}, 5, v{G8}', f'v_add_u32 v{WA[2]}, s{K_W12}, v{G8 + 3}', f'v_add_u32 v{WA[3]}, 2048, v{WA[2]}']
            for n_, (wa, bs) in enumerate(((WA[0], G8), (WA[1], G8), (WA[4], G8 + 1), (WA[5], G8 + 1))):
                F += [f'v_add_u32 v{t5}, {n_}, v{G8 + 2}', f'v_and_b32 v{t5}, 3, v{t5}', f'v_lshl_add_u32 v{wa}, v{t5}, 4, v{bs}']
                if n_ & 1:
                    F.append(f'v_add_u32 v{wa}, 1664, v{wa}')
            F += [f'v_add_u32 v{r}, s{S_XM0}, v{r}' for r in (vXa, vLin0, vLin1)] + [f'ds_write_b32 v{vXa}, v{vXi1} offset:{XOFF(26)}']
            F += [f'v_add_u32 v{r}, s{K_IMG}, v{r}' for r in [vIw] + list(range(vTR, vTR + 8))]
            return R, F
        SC2 += [f'v_add_u32 v{tA}, {TA_}, v{vStg}', f'v_add_u32 v{tB}, {TB_}, v{vStg}', f'v_lshrrev_b32 v3, 5, v0', f'v_lshl_add_u32 v3, v3, 2, v{vFR}']

        def pub2(r1, r2, off):
            c = [f'v_permlane32_swap_b32 v{r1}, v{r2}', f'v_max_u32 v{r1}, v{r1}, v{r2}']
            c += [f'v_max_u32_dpp v{r1}, v{r1}, v{r1} {ctl} row_mask:{rm} bank_mask:0xf' for ctl, rm in DPPS[:5]]
            return c + ['s_mov_b32 exec_lo, 0x80000000', 's_mov_b32 exec_hi, 0x80000000', f'ds_max_u32 v3, v{r1} offset:{16 + off}', 's_mov_b64 exec, -1']
        AV = [28, 58, 111]
        L = ['s_waitcnt lgkmcnt(0)'] + self.build_srd(SRD_WCO, S_WCO, 156) + [f's_mov_b32 m0, {L_WCO}', 's_mov_b64 exec, 0x7ff',
             I(f'buffer_load_dwordx4 v{vStg}, {srd(SRD_WCO)}, 0 offen lds', tag='WCO'), 's_mov_b64 exec, -1'] + self.stamp0() + SC2
        L += self.build_srd(SRD_IDX, S_IDX, 4096 * 104) + self.build_srd(SRD_TAB, S_TAB, 100000 * 128)
        L += [f'ds_write_b128 v{vFR}, {vr(XR, 4)} offset:16', f's_lshl_b32 s{S_T0}, s{cw}, 6', f'v_add_u32 v{t3}, s{S_T0}, v0']
        for p_ in range(3):
            L += [f'v_mul_u32_u24 v{t4}, 2521, v{t3}', f'v_lshrrev_b32 v{t4}, 16, v{t4}', f'v_mul_u32_u24 v{t4}, 12, v{t4}', f'v_lshl_add_u32 v{AV[p_]}, v{t3}, 1, v{t4}']
            L += [f'v_add_u32 v{t3}, 256, v{t3}'] if p_ < 2 else [f'v_cmp_gt_u32 vcc, 676, v{t3}', f's_mov_b64 s[{S_MASK}:{S_MASK + 1}], vcc']
        L += [f'v_lshlrev_b32 v{t3}, 3, v0', 's_mov_b32 exec_hi, 0xffff', f'ds_write_b64 v{t3}, {vr(XR, 2)} offset:{V3OFF + 26 * 64}', 's_mov_b32 exec_hi, -1',
              f'ds_write_b32 v{AD + 3}, v{XR}', f'ds_write_b32 v{AD + 3}, v{XR} offset:{SSZ}', WaitTag(vm_tags=['WCO'])]
        assert V3OFF == 0
        for s2 in range(2):
            for rd in range(2):
                L.append(f'ds_read_b64 {vr(AFR + 4 * s2 + 2 * rd, 2)}, v{AD} offset:{s2 * 32 + rd * 8}')
        L += [f'ds_read_u16 v110, v{AD + 1}',
              's_mov_b64 exec, 0x3ffffff', f'ds_write_b16 v{AD + 2}, v110', 'v_lshlrev_b32 v109, 17, v110', 'v_lshrrev_b32 v109, 1, v109', 's_mov_b64 exec, -1']
        L += vbs + [WaitTag(vm_tags=['TAB'], lgkm0=True)] + self.probe('tab') + ['s_barrier'] + self.stamp(2) + self.probe('b0')
        vb = lambda m: A3 - A1 - 512 + (m >> 1) * 512 + (m & 1) * 64
        for m in range(3):
            L += bread(m, vb(m))
        for m in range(6):
            if m + 3 < 6:
                L += bread(m + 3, vb(m + 3))
            L += mm2(DALL + m * 16, AFR, BALL + m * 8)
            if m == 3:
                L += FX(1)[0]
        L += FX(1)[1]
        for p_ in range(3):
            L += ['s_mov_b32 exec_lo, 0', f'v_mov_b32 v{DALL + 32 * p_}, v{DALL + 32 * p_ + 16}', 's_mov_b32 exec_lo, -1',
                  f'v_cvt_pk_bf16_f32 v{BALL + p_}, 0, v{DALL + 32 * p_}']
            if p_ == 2:
                L += [f's_mov_b64 exec, s[{S_MASK}:{S_MASK + 1}]']
            L += [f'ds_write_b16_d16_hi v{AV[p_]}, v{BALL + p_}', f'v_max_f32 v108, |v{BALL + p_}|, v108']
        L += ['s_mov_b64 exec, -1'] + pub2(108, 109, 8) + self.stamp(13) + ['s_setprio 0', 's_barrier', 's_branch L_w2']
        v3 = self.seq(L)

        def stage3(dst, goff, tag, lab, mid=None, fill=()):
            st = stage(dst, goff, tag)
            a_ = st[:8] if mid is None else st[:mid[0]] + [tuple(mid[1])] + st[mid[0]:8]
            return (self.seq(interleave(a_, list(fill)) + [f's_cmp_eq_u32 s{cw}, 3', f's_cbranch_scc1 {lab}']), self.seq([st[8]]), self.seq([f'{lab}:']))
        g0 = [self.seq(['L_g0:', 's_waitcnt lgkmcnt(0)'] + self.build_srd(SRD_CIN, S_CIN, 105456))]
        g0.append(stage3(A3, 70304, 'W3', 'L_st3'))
        g0.append(self.seq(self.stamp0() + self.build_srd(SRD_IDX, S_IDX, 4096 * 104) + xidx() + xidx(XJ) + self.build_srd(SRD_TAB, S_TAB, 100000 * 128)))
        g0.append(stage3(A2, 35152, 'W2', 'L_st2', None, SC2))
        g0.append(stage3(A1, 0, 'W1', 'L_st1', (o.sigat, [WaitTag(vm_tags=['W3']), 's_barrier'] + self.stamp(2) + FX(0)[0])))
        g0.append(self.seq((xdma() + xdma(XJ, 4 * XBSZ) if o.xat == 0 else []) + FX(0)[1] + self.stamp(13) + [WaitTag(vm_tags=['W2']), 's_barrier']
                           + (xdma() + xdma(XJ, 4 * XBSZ) if o.xat == 1 else [])))

        def G0(w):
            r = []
            for x in g0:
                r += x if isinstance(x, list) else x[0] + (x[1] if w < 3 else []) + x[2]
            return r

        def gather(dst, off):
            c = []
            for s2 in range(2):
                for e in range(8):
                    base = vGb if (s2 == 1 and e >= 2) else vGa
                    c.append(f'ds_read_b32 v{dst + 8 * s2 + e}, v{base} offset:{(16 * s2 + e) * 1352 + off}')
            return c

        def perms(g_, aj):
            return [f'v_perm_b32 v{aj + 8 * jj + r}, v{g_ + 2 * r + 1}, v{g_ + 2 * r}, s{S_U1 + jj}' for jj in range(2) for r in range(8)]

        def sout(t):
            d, c_ = DALL + 16 * t, DALL + 16 * t
            c = [f'v_cvt_pk_f16_f32 v{c_ + r}, v{d + 2 * r}, v{d + 2 * r + 1}' for r in range(8)]
            return c[:4] + [f'ds_write_b128 v{WA[t]}, {vr(c_, 4)}', f'v_xor_b32 v{WA[t]}, 16, v{WA[t]}'] + c[4:] + [f'ds_write_b128 v{WA[t]}, {vr(c_ + 4, 4)}']
        M1, N1, M2, N2 = 111, 28, 110, 58
        L = ['L_w2:'] + self.stamp(14) + self.probe('bw2') + gather(BALL, 0) + [f's_cmp_lt_u32 s{S_WAVE}, 3', 's_cbranch_scc1 L_u0']
        cc = self.seq(L)
        P0 = lambda: mxop(BALL, 16, M2, N2, True) + perms(BALL, DALL + 64)
        bw1 = lambda: [WaitTag(vm_tags=['W1'], lgkm0=True), 's_barrier'] + bread(2, 0) + bread(3, 64)
        b1u = self.seq(interleave(gather(BALL + 32, 20), P0()) + bw1() + mxop(BALL + 32, 16, M2, N2, False) + perms(BALL + 32, BALL)
                       + mxop(BALL + 16, 16, M1, N1, True) + ['s_branch L_u1'])
        L = ['L_u0:'] + bw1() + bread(4, 1024) + bread(5, 1024 + 64) + P0() + mxop(BALL + 16, 32, M1, N1, True)
        L += [f'v_add_u32 v{WA[4]}, {512 * 64}, v{WA[2]}', f'v_add_u32 v{WA[5]}, {512 * 64}, v{WA[3]}',
              f's_cmp_lg_u32 s{S_WAVE}, 2', 's_cbranch_scc1 L_u1', 's_mov_b32 exec_lo, 0xfffffff0', 's_mov_b32 exec_hi, 0xfffffff0', f'v_mov_b32 v{WA[5]}, {OOB}', 's_mov_b64 exec, -1']
        b1q = self.seq(L)
        MXR = 108
        L = ['L_u1:']
        for s2 in range(2):
            for rd in range(2):
                L.append(f'ds_read_b64_tr_b16 {vr(AFR + 4 * s2 + 2 * rd, 2)}, v{vA3} offset:{s2 * 1024 + rd * 256}')
        L += interleave(mxfin(M1, N1), mxfin(M2, N2)) + pub2(M1, M2, 0) + self.stamp(1)
        L += [WaitTag(lgkm0=True), 's_barrier'] + self.stamp(5) + self.probe('b1')
        L += [f'ds_read_b128 {vr(MXR, 4)}, v{vFR} offset:16']
        L += [f'v_lshrrev_b32 v{MXR}, 23, v{MXR}', f'v_lshrrev_b32 v{MXR + 1}, 23, v{MXR + 1}', f'v_sub_u32 v{MXR}, 267, v{MXR}', f'v_lshrrev_b32 v{MXR + 2}, 23, v{MXR + 2}',
              f'v_min_u32 v{MXR}, 167, v{MXR}', f'v_lshrrev_b32 v{MXR + 3}, 23, v{MXR + 3}',
              f'v_readfirstlane_b32 s{S_F1}, v{MXR}', f'v_mul_u32_u24 v{MXR}, 0x800080, v{MXR}']
        L += [f'v_and_b32 v{PM + r}, v{PM + r}, v{MXR}' for r in range(8)]
        sc = ['s_mov_b32 vcc_lo, 0x4000000', 's_mov_b32 vcc_hi, 0x4000000', f'v_cndmask_b32 v{vS}, v{MXR + 2}, v{MXR + 3}, vcc',
              f'v_add_u32 v{vS}, v{vS}, v{MXR + 1}', f'v_sub_u32 v{vS}, 388, v{vS}', f's_movk_i32 s{S_U0}, 167', f'v_med3_i32 v{vS}, v{vS}, 1, s{S_U0}',
              f'v_subrev_u32 v{MXR + 2}, 127, v{vS}', f'v_lshlrev_b32 v{vS}, 23, v{vS}', f'v_cmp_gt_i32 vcc, 0, v{MXR + 2}',
              f'v_mul_u32_u24 v{MXR + 2}, 0x800080, v{MXR + 2}']
        L += interleave(mm2(DALL + 32, PM, BALL + 16) + mm2(DALL + 48, PM, BALL + 24), sc) + ['s_cbranch_vccnz L_sdown']
        L += [f'v_add_u32 v{AFR + r}, v{AFR + r}, v{MXR + 2}' for r in range(8)]
        u1a = self.seq(L)
        L = ['L_scaled:'] + interleave(mm2(DALL, DALL + 64, AFR) + mm2(DALL + 16, DALL + 72, AFR), sout(2) + sout(3))
        L += [f's_cmp_lt_u32 s{S_WAVE}, 3', 's_cbranch_scc1 L_u2']
        u1 = self.seq(L)
        u2u = self.seq(mm2(DALL + 64, BALL, AFR) + mm2(DALL + 80, BALL + 8, AFR) + ['s_branch L_u3'])
        u2q = self.seq(['L_u2:'] + mm2(DALL + 64, PM, BALL + 32) + mm2(DALL + 80, PM, BALL + 40))
        L = ['L_u3:'] + self.stamp(6)
        for t in (0, 1, 4, 5):
            L += sout(t)
        L += [f'v_readlane_b32 s{S_CG}, v{vS}, 0', f'v_readlane_b32 s{S_IV}, v{vS}, 26',
              f's_sub_u32 s{S_F2}, {254 << 23:#x}, s{S_CG}', f's_sub_u32 s{S_IV}, {254 << 23:#x}, s{S_IV}',
              f's_sub_u32 s{S_F1}, 254, s{S_F1}', f's_lshl_b32 s{S_F1}, s{S_F1}, 23',
              f's_mov_b32 s{S_MASK}, 0x88888888', f's_mov_b32 s{S_MASK + 1}, 0x88888888']
        L += [f's_mul_i32 s{S_T0}, s{S_WAVE}, 384', f'v_lshrrev_b32 v{t3}, 2, v0', f'v_mul_u32_u24 v{t3}, 24, v{t3}', f'v_add_u32 v{t3}, s{S_T0}, v{t3}',
              f'v_and_b32 v{t4}, 3, v0', f'v_lshlrev_b32 v{t4}, 3, v{t4}']
        L += [f'ds_read_b64 {vr(UA + 2 * n_, 2)}, v{t3} offset:{TC_ + 8 * n_}' for n_ in range(3)]
        L += xidx() + xidx(PM) + (pfx_b() + pfx_a() if o.pf1 and o.pfx else [])
        L += [x for n_ in range(6) for x in (f'v_xor_b32 v{UA + n_}, v{UA + n_}, v{t4}', f'v_xor_b32 v{UX + n_}, 32, v{UA + n_}')]

        def sigma(s_):
            t = (s_ - 1) // 2
            first = (s_ - 1) % 2 == 0
            return (0 if first else 1) if t % 2 == 0 else (1 if first else 0)
        for s_ in range(1, 11):
            assert ((s_ - 1) // 2) * 1024 + sigma(s_) * 512 - (s_ // 4) * 2048 == (-1024, 0, 512, 1536)[s_ % 4]

        def p2read(n_):
            b = BALL + 16 * n_
            c = []
            for x, (ar, off) in enumerate(((UA, 0), (UX, 0), (UA, SSZ), (UX, SSZ))):
                for y in range(2):
                    c.append(f'ds_read_b64_tr_b16 {vr(b + 4 * x + 2 * y, 2)}, v{ar + 2 * n_ + y} offset:{off}')
            return c

        def p2a(n_):
            b = BALL + 16 * n_
            c = []
            for x in range(4):
                c += [f'v_pk_add_f16 v{b + 4 * x + y}, v{b + 4 * x + y}, v{b + 4 * x + 2 + y}' for y in range(2)]
                if x in (0, 2):
                    c.append(f'ds_write_b64 v{vFw}, {vr(b + 4 * x, 2)} offset:{FR + n_ * 4 * 3072 + x * 1024}')
            c += [f'v_cndmask_b32 v{b + 4 + y}, v{b + 4 + y}, v{b + 12 + y}, s[{S_MASK}:{S_MASK + 1}]' for y in range(2)]
            c.append(f'ds_write_b64 v{vFw}, {vr(b + 4, 2)} offset:{FR + n_ * 4 * 3072 + 1024}')
            return c

        def p2s(n_):
            b = BALL + 16 * n_ + 12
            off = FRS + max(n_ * 2048 - 1024, 0)
            return ([f'v_subrev_u32 v{vT3}, 1024, v{vT3}'] if n_ == 0 else []) + [
                f'ds_write_b32 v{vT3}, v{b} offset:{off}', f'ds_write_b32 v{vT3}, v{b + 1} offset:{off + 16}']
        L += [WaitTag(lgkm0=True), 's_barrier'] + self.stamp(10)
        L += p2read(0) + p2read(1) + [f's_cmp_ge_u32 s{S_WAVE}, 6', 's_cbranch_scc1 L_lin']
        b2 = self.seq(L)
        p2c = self.seq(p2read(2) + p2a(2) + p2s(2) + ['s_branch L_p2'])
        LB = BALL + 32
        ZR4 = t5
        L = ['L_lin:', f's_and_b32 s{S_U0}, s{S_WAVE}, 1', f's_cselect_b64 vcc, -1, 0', f's_lshl_b32 s{S_U1}, s{S_U0}, 5', f'v_mov_b32 v{ZR4}, 0',
             f'v_xor_b32 v{vV2r}, s{S_U1}, v{vV2r}', f'v_xor_b32 v{vV2q}, s{S_U1}, v{vV2q}', f'v_cndmask_b32 v{vWo}, v{vWo}, v{vWo + 1}, vcc',
             f'ds_read_b64_tr_b16 {vr(LB, 2)}, v{vV2r}', f'ds_read_b64_tr_b16 {vr(LB + 2, 2)}, v{vV2q}',
             f'ds_read_u16_d16_hi v{ZR4}, v{vWo}',
             f's_lshl_b32 s{S_U0}, s{S_U0}, 10', f'v_add_u32 v{t3}, s{S_U0}, v{vStg}']
        for r in range(4):
            a_, b_ = LB + 4 + 2 * r, LB + 5 + 2 * r
            L += [f'v_cvt_f32_f16 v{a_}, v{LB + r}', f'v_cvt_f32_f16_sdwa v{b_}, v{LB + r} dst_sel:DWORD dst_unused:UNUSED_PAD src0_sel:WORD_1',
                  f'v_mul_f32 v{a_}, s{S_IV}, v{a_}', f'v_mul_f32 v{b_}, s{S_IV}, v{b_}']
            if r == 3:
                L += ['s_mov_b32 exec_lo, 0', 's_mov_b32 exec_hi, 0xffff', f'v_mov_b32 v{a_}, v{ZR4}', 's_mov_b64 exec, -1']
            L += [f'v_mul_f32 v{a_}, s{S_CG}, v{a_}', f'v_mul_f32 v{b_}, s{S_CG}, v{b_}', f'v_cvt_pk_bf16_f32 v{LB + r}, v{a_}, v{b_}']
        L += [f'ds_write_b128 v{t3}, {vr(LB, 4)} offset:{FRL}']
        lin = self.seq(L)
        p2 = self.seq(['L_p2:'] + p2a(1) + p2s(1) + p2a(0) + [f's_cmp_lt_u32 s{S_WAVE}, 2', 's_cbranch_scc1 L_p2d'])
        p2e = self.seq(p2s(0) + ['s_branch L_built'])
        p2d = self.seq(['L_p2d:', f'ds_write_b64 v{vT3d}, {vr(BALL + 12, 2)} offset:{FRS + 5 * 1024}'])

        L = ['L_sdown:']
        for r in range(8):
            L += [f'v_lshlrev_b32 v{MXR}, 16, v{AFR + r}', f'v_and_b32 v{MXR + 1}, 0xffff0000, v{AFR + r}',
                  f'v_mul_f32 v{MXR}, v{MXR}, v{vS}', f'v_mul_f32 v{MXR + 1}, v{MXR + 1}, v{vS}', f'v_cvt_pk_bf16_f32 v{AFR + r}, v{MXR}, v{MXR + 1}']
        self.sdown = L + ['s_branch L_scaled']

        def PRE(w, sd=None):
            grp = w >> 2
            return (c0 + (g1t if grp else []) + csc + (v3 if grp else G0(w)) + cc + (b1q if w < 3 else b1u)
                    + (u1a if sd is None else u1a[:-8] + sd) + u1 + (u2q if w < 3 else u2u) + b2
                    + (lin if w >= 6 else p2c) + p2 + (p2d if w < 2 else p2e))
        L = ['L_built:'] + self.stamp(11)
        L += [f's_mov_b32 s{S_CG}, s{S_F1}', f's_mov_b32 s{S_IV}, s{S_F2}', f's_mov_b32 s{S_LO}, {f32hex(0.125)}', f's_mov_b32 s{S_HI}, {f32hex(0.0 if o.slow else 128.0)}']
        CV, vM, S_XD = 28, 58, 81

        def ureads(j):
            return [f'ds_read_u16_d16_hi v{XR + 2 * j}, v{vXa} offset:{XOFF(2 * j)}',
                    f'ds_read_u16_d16_hi v{XR + 2 * j + 1}, v{vXa} offset:{XOFF(2 * j) + 2}']
        mx3 = lambda j: f'v_max3_f32 v{vM}, |v{XR + 2 * j}|, |v{XR + 2 * j + 1}|, {"0" if j == 0 else f"v{vM}"}'
        cvt = lambda j: f'v_cvt_pk_f16_f32 v{CV + j % 4}, v{XR + 2 * j}, v{XR + 2 * j + 1}'
        iwr = lambda j: f'ds_write_b32 v{vIw}, v{CV + j % 4} offset:{j * IMGP}'
        S_SKIP = 51
        pfr = lambda: (pfx_b() + pfx_a() if o.pfx else []) + (pfw() if o.pfw else [])
        conv = lambda tag='XB': ([WaitTag(vm_tags=[tag])] + [x for j in range(13) for x in ureads(j)]
                        + [x for j in range(13) for x in (mx3(j), f'v_cvt_pk_f16_f32 v{D + j}, v{XR + 2 * j}, v{XR + 2 * j + 1}')])
        L += [f's_mov_b32 s{S_SKIP}, 1', f's_mul_i32 s{S_U0}, s{S_WAVE}, 1536', f's_add_u32 s{S_U0}, s{S_U0}, {PART + OOB}', f's_mov_b32 s48, {-OOB}',
              f's_cmp_lg_u32 s{S_GRP}, 0', 's_cbranch_scc1 L_g1c']
        c2a = self.seq(L)
        c2g0 = self.seq([f's_sub_u32 s{S_SAMP}, s{S_SAMP}, {4 * 104}'] + conv() + [WaitTag(lgkm0=True), 's_barrier'] + self.stamp(8) + ['s_branch L_cin_go'])
        DX = XB2 - XB - 4 * XBSZ
        L = ['L_g1c:', WaitTag(vm_tags=['XB'], lgkm0=True), 's_barrier'] + self.stamp(8) + self.probe('b4')
        L += [f's_add_u32 s{S_XM0}, s{S_XM0}, {DX}'] + xdma(tag='XB0') + xdma(PM, 4 * XBSZ) + xidx() + pfr() + [f'v_add_u32 v{r}, {DX}, v{r}' for r in (vXa, vLin0, vLin1)]
        L += [f'ds_write_b32 v{vXa}, v{vXi1} offset:{XOFF(26)}', f'ds_write_b32 v{vXa}, v{vXi1} offset:{XOFF(26) + 4 * XBSZ}']
        L += [f's_cmp_lg_u32 s{S_WAVE}, 4', 's_cbranch_scc1 L_g1d']
        c2g1 = self.seq(L)
        L = self.tlb2(248) if o.tlb2 else []
        L += ['s_mov_b64 exec, 1', f'buffer_load_dword v59, v248, {srd(SRD_DBG)}, 0 offen offset:240 sc1', 's_mov_b64 exec, -1']
        if o.w2late:
            L += self.build_srd(SRD_W2, S_W2, 3328) + [f'v_lshlrev_b32 v248, 7, v0', f'buffer_load_dword v251, v248, {srd(SRD_W2)}, 0 offen']
        c2b = self.seq(L)
        c2g1d = self.seq(['L_g1d:'] + conv('XB0'))
        c2c = self.seq(['L_cin_go:'] + [f'ds_write_b32 v{vIw}, v{D + j} offset:{j * IMGP}' for j in range(13)]
                       + [f's_mov_b32 s{S_XD}, {4 * XBSZ}', f's_add_u32 s{S_XM0}, s{S_XM0}, {4 * XBSZ}',
                          f'v_lshlrev_b32 v{vXi1}, 2, v0', f'v_add_u32 v{vXi1}, s{S_U0}, v{vXi1}'])

        NWF = 5
        PF = o.cpfd
        zslot = lambda s_: 1 if s_ % 2 == 0 else (0 if ((s_ - 1) // 2) % 2 == 0 else 2)
        zr = lambda T, sl: Z + 12 * T + 4 * sl
        preg = lambda T, r: P + 14 * T + (r if r < 14 else r - 14)
        acc = lambda T, tile: D + 16 * T + 4 * tile
        jobs = [('l', 0, 0), ('l', 0, 1)]
        for s_ in range(11):
            jobs += [('d', s_, 2), ('d', s_, 0), ('d', s_, 1)]
            if s_ == 0:
                jobs.append(('d', 0, 3))
            elif s_ % 2 == 0:
                jobs.append(('s', s_, 3))
        NJ = len(jobs)
        assert NJ == 41

        def wread(n):
            kind, s_, tile = jobs[n]
            off = FRL + tile * 1024 if kind == 'l' else (FR + s_ * 3072 + tile * 1024 if tile < 3 else FRS + (5 if s_ == 0 else (s_ - 1) // 2) * 1024)
            return f'ds_read_b128 {vr(WF + 4 * (n % NWF), 4)}, v{vFa} offset:{off}'

        def mfma(n, T):
            kind, s_, tile = jobs[n]
            a = vr(WF + 4 * (n % NWF), 4)
            d = vr(acc(T, tile), 4)
            if kind == 'l':
                return f'v_mfma_f32_16x16x32_bf16 {d}, {a}, {vr(zr(T, 2), 4)}, 0'
            if kind == 's':
                lo = 0 if ((s_ - 1) // 2) % 2 == 0 else 1
                return f'v_smfmac_f32_16x16x64_f16 {d}, {a}, {vr(zr(T, lo), 8)}, v{vIDX}'
            return f'v_mfma_f32_16x16x32_f16 {d}, {a}, {vr(zr(T, zslot(s_)), 4)}, {"0" if (s_ == 0 and tile >= 2) else d}'

        def pk(T, n):
            a, b, s0, s1 = cin16.INS[n]
            return (f'v_pk_mul_f16 v{zr(T, zslot(n // 4)) + n % 4}, v{preg(T, a)}, v{preg(T, b)} '
                    f'op_sel:[{s0[0]},{s0[1]}] op_sel_hi:[{s1[0]},{s1[1]}]')

        def trp(T, rp):
            return f'ds_read_b64_tr_b16 {vr(preg(T, 2 * rp), 2)}, v{vTR + rp} offset:{32 * T}'

        LASTA = max(n for n, x in enumerate(cin16.INS) if x[0] < 2)
        S_A1, S_A2, S_PINC = 49, 50, 48
        fin = []
        for T in range(4):
            fin += [(acc(T, 0) + r, acc(T, 2) + r) for r in range(4)] + [(acc(T, 1), acc(T, 1) + 3)]
        for T in range(4):
            fin += [(acc(T, 1) + 1 + (r >> 1), acc(T, 3) + r) for r in range(4)]

        def final(f1, f2):
            c = []
            for k, (a, b) in enumerate(fin):
                d = Z + k % 4
                c.append(f'v_mul_f32 v{d}, v{a}, v{b}' if k < 4 else f'v_fmac_f32 v{d}, v{a}, v{b}')
            c += [f'v_add_f32 v{Z}, v{Z}, v{Z + 1}', f'v_add_f32 v{Z + 2}, v{Z + 2}, v{Z + 3}', f'v_add_f32 v{Z}, v{Z}, v{Z + 2}']
            c += [f'v_mul_f32 v{Z}, s{x}, v{Z}' for x in (f1, f2)]
            return c + [f'ds_write_b32 v{vXi1}, v{Z}']
        code = ['L_cin_loop:', f'v_cmp_le_f32 s[{S_CM}:{S_CM + 1}], s{S_HI}, v{vM}', f'v_cmp_le_f32 vcc, s{S_LO}, v{vM}',
                f's_mov_b32 s{S_A1}, s{S_F1}', f's_mov_b32 s{S_A2}, s{S_F2}',
                f's_cmp_lg_u64 s[{S_CM}:{S_CM + 1}], 0', 's_cbranch_scc1 L_cslow', 's_cbranch_vccz L_cslow']
        cA = self.seq(code)
        RD = []
        for rp in (0, 3, 4):
            RD += [trp(T, rp) for T in range(4)]
        for T in range(4):
            RD += [f'ds_read_b64_tr_b16 {vr(zr(T, 2), 2)}, v{vLin0} offset:{32 * T}', f'ds_read_b64_tr_b16 {vr(zr(T, 2) + 2, 2)}, v{vLin1} offset:{32 * T}']
        RD += [wread(k) for k in range(PF)]
        for rp in (5, 6, 1, 2):
            RD += [trp(T, rp) for T in range(4)]
        pfr = lambda: (pfx_b() + pfx_a() if o.pfx else []) + (pfw() if o.pfw else [])
        vm = xdma() + xidx() + pfr()
        VA = final(S_A1, S_A2) + [f'v_add_u32 v{vXi1}, s{S_PINC}, v{vXi1}', f's_movk_i32 s{S_PINC}, 256']
        PK0 = [pk(T, n) for T in range(4) for n in range(4)]
        TG = [f'v_add_u32 v{r}, s{S_XD}, v{r}' for r in (vXa, vLin0, vLin1)] + [f's_sub_u32 s{S_XM0}, s{S_XM0}, s{S_XD}', f's_sub_u32 s{S_XD}, 0, s{S_XD}', f's_mov_b32 s{S_SKIP}, 0']
        code = ['L_cconv:']
        code += interleave(RD, VA) + PK0 + [f's_cmp_lg_u32 s{S_SKIP}, 0', 's_cbranch_scc1 L_novm']
        cB0 = self.seq(code)
        cVM = self.seq(vm)
        code = ['L_novm:'] + TG
        LA = 1
        def lstamp(base):
            if not (o.stamps and o.cst):
                return []
            return [f's_memtime s[{S_ST}:{S_ST + 1}]', f's_memrealtime s[{S_ST + 2}:{S_ST + 3}]', f's_sub_u32 s{S_C0}, {base + 6}, s{S_LOOP}', 's_waitcnt lgkmcnt(0)',
                    f's_mov_b32 m0, s{S_C0}', f'v_writelane_b32 v252, s{S_ST}, m0', f'v_writelane_b32 v253, s{S_ST + 2}, m0']
        code += lstamp(19)
        code += [Touch(vr(WF, 4)), Touch(vr(zr(3, 2), 4))] + (['s_setprio 2', 's_barrier'] if o.cbar else ['s_setprio 1'])
        MS = [(n, T) for n in range(NJ) for T in range(4)]
        first_use, last_use = {}, {}
        for mi, (n, T) in enumerate(MS):
            kind, s_, tile = jobs[n]
            if kind == 'l':
                last_use[(T, 'lin')] = mi
                continue
            for su in ([s_] if kind == 'd' else [s_ - 1, s_]):
                first_use.setdefault((T, su), mi)
                last_use[(T, su)] = mi
        V = []
        for s_ in range(LA, 11):
            prev = [p_ for p_ in range(s_) if zslot(p_) == zslot(s_)]
            for T in range(4):
                rdy = last_use[(T, prev[-1])] + o.war if prev else (last_use[(T, 'lin')] if zslot(s_) == 2 else -1)
                for n in range(4 * s_, 4 * s_ + 4):
                    V.append((pk(T, n), rdy, first_use[(T, s_)], n, T))
        forced = 0
        late = []
        XL_ = [x for j in range(13) for x in ureads(j)]
        xrd = {}
        CVR = [preg(T, r) for r in (2, 3, 6, 7) for T in range(4)]
        cvrdy = max(n for n, x in enumerate(cin16.INS) if set(x[:2]) & {2, 3, 6, 7})
        cvt2 = lambda j: f'v_cvt_pk_f16_f32 v{CVR[j]}, v{XR + 2 * j}, v{XR + 2 * j + 1}'
        iwr2 = lambda j: f'ds_write_b32 v{vIw}, v{CVR[j]} offset:{j * IMGP}'
        nm = nc = nw = 0
        V.sort(key=lambda x: x[2])
        prev2 = 0
        for mi, (n, T) in enumerate(MS):
            while V and V[0][2] <= mi:
                assert V[0][1] < mi
                code.append(V.pop(0)[0]); forced += 1
            code.append(mfma(n, T))
            t = 4
            if o.cbar and mi == len(MS) - 1 - o.cbov:
                code += ['s_setprio 3', 's_barrier']; t += 8
            if not o.cbar and mi == 4 * o.hiat - 2:
                code.append('s_setprio 2'); t += 4
            if T == 3 and n + 1 < NJ:
                code.append(Touch(vr(WF + 4 * ((n + 1) % NWF), 4))); t += 4
            if T == 0 and n + PF < NJ:
                code.append(wread(n + PF)); t += 8
            elif T in (1, 2) and late:
                code.append(late.pop(0)); t += 8
            elif T in (1, 2) and mi >= o.x0 and XL_:
                if len(XL_) == 26:
                    code.append(WaitTag(vm_tags=['XB']))
                code.append(XL_.pop(0)); t += 8
                if len(XL_) % 2 == 0:
                    xrd[12 - len(XL_) // 2] = mi
            elif not V and nw < nc and t == 4:
                code.append(iwr2(nw)); nw += 1; t += 12
            t = max(t, 12 if jobs[n][0] == 's' else 8)
            k = 0
            while t < 16:
                urgent = any(V[q_][2] - 1 - mi < q_ + 1 for q_ in range(min(24, len(V))))
                if k == 1 and prev2 >= o.max2 and not urgent:
                    break
                cand = [x for x in V[:32] if x[1] <= mi]
                extra = None
                if nm < 13 and nm in xrd and xrd[nm] + o.xlat <= mi:
                    extra = 'm'
                elif nc < nm and all(x[3] > cvrdy for x in V):
                    extra = 'c'
                if cand and (k == 0 or urgent or not extra) and (k == 0 or urgent or o.eager):
                    x = cand[0]
                    V.remove(x)
                    code.append(x[0])
                    if x[3] <= LASTA and all(y[3] > LASTA for y in V if y[4] == x[4]):
                        late.append(trp(x[4], 7))
                elif extra == 'm':
                    code.append(mx3(nm)); nm += 1
                elif extra == 'c':
                    code.append(cvt2(nc)); nc += 1
                else:
                    break
                t += 4; k += 1
            prev2 = prev2 + 1 if k == 2 else 0
        assert not late and not XL_ and not V
        print('left', 13 - nm, 13 - nc, 13 - nw)
        tail = [mx3(j) for j in range(nm, 13)] + [cvt2(j) for j in range(nc, 13)] + [iwr2(j) for j in range(nw, 13)]
        print('forced VALU', forced)
        code += lstamp(25)
        code.append(f's_setprio {o.p0}')
        code += tail + [f's_sub_u32 s{S_LOOP}, s{S_LOOP}, 1', f's_cmp_lg_u32 s{S_LOOP}, 0', 's_cbranch_scc1 L_cin_loop']
        cB = self.seq(code + ['s_branch L_cin_done'])
        mark0 = len(self.P.static)
        bl = []
        if o.burn:
            bl = [f's_movk_i32 s{S_LOOP}, {o.burn // 2}', 'L_burn2:'] + [f'v_mfma_f32_16x16x32_f16 {vr(P + 4 * (k % 2), 4)}, {vr(WF + 4 * (k % 4), 4)}, {vr(Z + 4 * (k // 4), 4)}, 0' for k in range(32)]
            bl += [f's_sub_u32 s{S_LOOP}, s{S_LOOP}, 1', f's_cmp_lg_u32 s{S_LOOP}, 0', 's_cbranch_scc1 L_burn2']
        L = ['L_cin_done:'] + self.pubsrd() + bl + final(S_F1, S_F2) + ([f's_cmp_eq_u32 s{S_GRP}, 0', 's_cbranch_scc1 L_nob2', 's_barrier', 'L_nob2:'] if o.cbar else []) + [
             f's_mul_i32 s{S_U0}, s{S_WAVE}, 1536', f's_add_u32 s{S_U0}, s{S_U0}, {PART}',
             f'v_lshlrev_b32 v{Z}, 5, v0', f'v_add_u32 v{Z}, s{S_U0}, v{Z}',
             f'ds_read_b128 {vr(P, 4)}, v{Z}', f'ds_read_b128 {vr(P + 4, 4)}, v{Z} offset:16',
             f'v_lshrrev_b32 v{Z + 1}, 3, v0', f'v_cmp_gt_u32 vcc, 6, v{Z + 1}', f'v_lshlrev_b32 v{Z + 1}, 4, v{Z + 1}', f'v_add_u32 v{Z + 1}, s{S_RC}, v{Z + 1}',
             f'v_pk_add_f32 {vr(P, 2)}, {vr(P, 2)}, {vr(P + 2, 2)}', f'v_pk_add_f32 {vr(P + 4, 2)}, {vr(P + 4, 2)}, {vr(P + 6, 2)}',
             f'v_pk_add_f32 {vr(P, 2)}, {vr(P, 2)}, {vr(P + 4, 2)}', f'v_add_f32 v{P}, v{P}, v{P + 1}']
        for ctl in ('quad_perm:[1,0,3,2]', 'quad_perm:[2,3,0,1]', 'row_half_mirror'):
            L.append(f'v_add_f32_dpp v{P}, v{P}, v{P} {ctl} row_mask:0xf bank_mask:0xf')
        L += [f's_and_b64 exec, exec, vcc', f'ds_write_b32 v{Z + 1}, v{P}', 's_mov_b64 exec, -1']
        L += self.stamp(9) + self.stamp_flush() + self.probe('cend') + ['s_waitcnt lgkmcnt(0)', 's_barrier',
                                                  f's_cmp_lg_u32 s{S_WAVE}, 4', 's_cbranch_scc1 L_end',
                                                  'v_lshlrev_b32 v4, 2, v0', f'v_add_u32 v2, {RC}, v4', 'ds_read_b32 v64, v2',
                                                  f's_mul_i32 s{S_T1}, s{S_MB}, 192', f's_add_u32 s{S_T1}, s{S_T1}, {13 * WSP}',
                                                  f's_mul_i32 s{S_T0}, s{S_MB}, 3', f's_mul_i32 s{S_T2}, s{S_T0}, 3277', f's_lshr_b32 s{S_T2}, s{S_T2}, 16',
                                                  f'v_add_u32 v7, s{S_T2}, v0', f's_mul_i32 s{S_T2}, s{S_T2}, 20', f's_add_u32 s{S_T2}, s{S_T2}, 20',
                                                  f's_sub_u32 s{S_T2}, s{S_T2}, s{S_T0}', f's_min_u32 s{S_T2}, s{S_T2}, 3', f's_sub_u32 s{S_T0}, 3, s{S_T2}',
                                                  f'v_mov_b32 v5, s{S_T0}', f'v_writelane_b32 v5, s{S_T2}, 0',
                                                  f's_cmp_eq_u32 s{S_T0}, 0', f's_cselect_b32 s{S_T0}, 1, 3',
                                                  'v_lshlrev_b32 v3, 4, v0', 's_mov_b32 exec_hi, 0xffff']
        L += (self.stamp(16) if o.diag else [])
        L += [f'buffer_store_dword v64, v4, {srd(SRD_WS)}, s{S_T1} offen sc1', 's_mov_b32 exec_hi, -1', 'v_add_u32 v4, 1024, v4', f's_mov_b32 exec_lo, s{S_T0}', 's_mov_b32 exec_hi, 0', 's_branch L_pub']
        fin_ = self.seq(L)
        blk = self.P.static[mark0:]
        del self.P.static[mark0:]
        at = self.P.static.index(self.pub[-1]) + 1
        self.P.static[at:at] = blk + self.ldblk
        L = ['L_cslow:']
        for (ctl, rm) in (('row_shr:1', '0xf'), ('row_shr:2', '0xf'), ('row_shr:4', '0xf'), ('row_shr:8', '0xf'),
                          ('row_bcast:15', '0xa'), ('row_bcast:31', '0xc')):
            L.append(f'v_max_f32_dpp v{vM}, v{vM}, v{vM} {ctl} row_mask:{rm} bank_mask:0xf')
        L += [f'v_readlane_b32 s{S_U0}, v{vM}, 63', f's_mov_b32 s{S_HI}, 0',
              f's_lshr_b32 s{S_U0}, s{S_U0}, 23', f's_max_u32 s{S_U0}, s{S_U0}, {127 - 55}', f's_min_u32 s{S_U0}, s{S_U0}, {127 + 55}',
              f's_sub_u32 s{S_U1}, {127 + 4 + 127}, s{S_U0}',
              f's_lshl_b32 s{S_U2}, s{S_U1}, 1', f's_sub_u32 s{S_U2}, s{S_U2}, 127',
              f's_sub_u32 s{S_G}, 254, s{S_U2}', f's_lshl_b32 s{S_G}, s{S_G}, 23',
              f'v_mov_b32 v{P}, s{S_G}', f'v_mul_f32 v{P + 1}, s{S_CG}, v{P}', f'v_mul_f32 v{P}, s{S_IV}, v{P}',
              f'v_readfirstlane_b32 s{S_F1}, v{P + 1}', f'v_readfirstlane_b32 s{S_F2}, v{P}',
              f's_lshl_b32 s{S_U1}, s{S_U1}, 23', f's_lshl_b32 s{S_U2}, s{S_U2}, 23']
        TS = P
        for j in range(13):
            L += [f'v_mul_f32 v{TS}, s{S_U1}, v{XR + 2 * j}', f'v_mul_f32 v{TS + 1}, s{S_U1}, v{XR + 2 * j + 1}',
                  f'v_mul_f32 v{TS + 2}, s{S_U2}, v{XR + 2 * j}', f'v_mul_f32 v{TS + 3}, s{S_U2}, v{XR + 2 * j + 1}',
                  f'v_cvt_pk_f16_f32 v{TS + 20 + j}, v{TS}, v{TS + 1}', f'v_cvt_pk_bf16_f32 v{TS + 4 + j}, v{TS + 2}, v{TS + 3}',
                  f'ds_write_b32 v{vIw}, v{TS + 20 + j} offset:{j * IMGP}', f'ds_write_b32 v{vXa}, v{TS + 4 + j} offset:{XOFF(2 * j)}']
        L += [f'v_mov_b32 v{TS}, s{S_U2}', f'v_cvt_pk_bf16_f32 v{TS}, v{TS}, v{TS}',
              's_mov_b32 exec_hi, 0', f'ds_write_b32 v{vXa}, v{TS} offset:{XOFF(26)}', 's_mov_b32 exec_hi, -1',
              's_waitcnt lgkmcnt(0)', 's_branch L_cconv']
        slow = self.seq(L)
        sdown = self.seq(self.sdown)
        traces = []
        for w in range(8):
            grp = w >> 2
            c2 = c2a + (c2g1 + (c2b if w == 4 else []) + c2g1d if grp else c2g0) + c2c
            it = lambda sl, first: cA + (slow if sl else []) + cB0 + ([] if first else cVM) + cB
            traces.append(PRE(w) + c2 + it(0, 1) + it(0, 0) + it(0, 0) + fin_ + self.pub)
            if w in (0, 4):
                traces.append(PRE(w, sdown) + c2 + it(1, 1) + it(1, 0) + fin_ + self.pub)
        return traces

    def build(self):
        pro = self.prologue()
        d = self.dnn()
        cs = self.cin()
        self.seq(['L_end:', 's_endpgm'])
        traces = [pro + c for c in d + cs]
        for t in traces:
            resolve_waits(t)
        for _ in range(2):
            for t in traces:
                resolve_hazards(t)
        hdr = open(os.path.join(os.path.dirname(os.path.abspath(__file__)), 'header.txt')).read()
        txt = hdr + f'; @launch grid=(256,1,1) block=(512,1,1) lds={LDS_TOTAL}\n'
        txt += f'''.amdgcn_target "amdgcn-amd-amdhsa--gfx950"
{DOC}.text
.globl {KNAME}
.p2align 8
.type {KNAME},@function
{KNAME}:
'''
        body_ = self.P.emit()
        if self.opt.align:
            for lab in ('L_dnn_loop0:', 'L_dnn_loop1:', 'L_cin_loop:', 'L_epi:'):
                pad = '  s_nop 0\n' if self.opt.align > 100 else ''
                body_ = body_.replace(lab + '\n', f'.p2align {self.opt.align % 100}\n{pad}{lab}\n')
        if self.opt.fix:
            body_ = fixalign.fix(body_ + 'L_tables:\n', self.opt.fix)[:-len('L_tables:\n')]
        txt += body_
        tb = self.tables()
        assert len(tb) == 16 * 256
        txt += '.p2align 8\nL_tables:\n' + ''.join('.long ' + ', '.join(f'{x:#x}' for x in tb[i:i + 8]) + '\n' for i in range(0, len(tb), 8))
        txt += f'''.section .rodata,"a"
.p2align 6
.amdhsa_kernel {KNAME}
  .amdhsa_next_free_vgpr 256
  .amdhsa_next_free_sgpr 102
  .amdhsa_accum_offset 256
  .amdhsa_group_segment_fixed_size 0
  .amdhsa_kernarg_size 88
  .amdhsa_user_sgpr_count 2
  .amdhsa_user_sgpr_kernarg_segment_ptr 1
  .amdhsa_system_sgpr_workgroup_id_x 1
  .amdhsa_float_denorm_mode_32 {self.opt.denorm}
.end_amdhsa_kernel
'''
        return txt


def main():
    ap = argparse.ArgumentParser()
    ap.add_argument('-o', default='standalone__deep_cross_xdeepfm__recsys.s')
    ap.add_argument('--stamps', action='store_true')
    ap.add_argument('--nodma', action='store_true')
    ap.add_argument('--cpf', type=int, default=1)
    ap.add_argument('--coop', type=int, default=0)
    ap.add_argument('--coopw', type=int, default=2)
    ap.add_argument('--tbpos', type=int, default=0)
    ap.add_argument('--dbar3', type=int, default=1)
    ap.add_argument('--tlb', type=int, default=0)
    ap.add_argument('--tlb2', type=int, default=1)
    ap.add_argument('--itst', type=int, default=0)
    ap.add_argument('--diag', type=int, default=0)
    ap.add_argument('--dbg', default='')
    ap.add_argument('--lead3', type=int, default=1)
    ap.add_argument('--morder', type=int, default=0)
    ap.add_argument('--etlb', type=int, default=0)
    ap.add_argument('--lateb', type=int, default=0)
    ap.add_argument('--wfl', default='')
    ap.add_argument('--xfl', default='')
    ap.add_argument('--tag', type=int, default=0)
    ap.add_argument('--idxfirst', type=int, default=1)
    ap.add_argument('--bpos', type=int, default=2)
    ap.add_argument('--sigat', type=int, default=4)
    ap.add_argument('--epx', type=int, default=1)
    ap.add_argument('--denorm', type=int, default=3)
    ap.add_argument('--mprio', type=int, default=0)
    ap.add_argument('--swap', type=int, default=0)
    ap.add_argument('--bov', type=int, default=1)
    ap.add_argument('--rfirst', type=int, default=0)
    ap.add_argument('--g1x', type=int, default=0)
    ap.add_argument('--ldsred', type=int, default=0)
    ap.add_argument('--csnake', type=int, default=0)
    ap.add_argument('--cswap', type=int, default=0)
    ap.add_argument('--align', type=int, default=0)
    ap.add_argument('--c2', type=int, default=0)
    ap.add_argument('--d1', type=int, default=0)
    ap.add_argument('--cstr', type=int, default=3)
    ap.add_argument('--bearly', type=int, default=1)
    ap.add_argument('--w2late', type=int, default=1)
    ap.add_argument('--aov', type=int, default=5)
    ap.add_argument('--upos', type=int, default=1)
    ap.add_argument('--calt', type=int, default=1)
    ap.add_argument('--pfpos', type=int, default=1)
    ap.add_argument('--wlate', type=int, default=0)
    ap.add_argument('--dbar2', type=int, default=0)
    ap.add_argument('--dbar', type=int, default=0)
    ap.add_argument('--pfw', type=int, default=0)
    ap.add_argument('--pfx', type=int, default=0)
    ap.add_argument('--pfx0', type=int, default=4)
    ap.add_argument('--pfs', type=int, default=13)
    ap.add_argument('--dcoopx', type=int, default=1)
    ap.add_argument('--dcx0', type=int, default=0)
    ap.add_argument('--dcxpos', type=int, default=-1)
    ap.add_argument('--pfe0', type=int, default=2)
    ap.add_argument('--pfne', type=int, default=13)
    ap.add_argument('--prio47', type=int, default=0)
    ap.add_argument('--lookahead', type=int, default=5)
    ap.add_argument('--nz', type=int, default=6)
    ap.add_argument('--nwf', type=int, default=8)
    ap.add_argument('--hiat', type=int, default=4)
    ap.add_argument('--wmerge', type=int, default=0)
    ap.add_argument('--gapv', type=int, default=6)
    ap.add_argument('--slow', type=int, default=0)
    ap.add_argument('--probe', default='')
    ap.add_argument('--skew', type=int, default=0)
    ap.add_argument('--fix', type=int, default=64)
    ap.add_argument('--walk', type=int, default=0)
    ap.add_argument('--eal', type=int, default=3)
    ap.add_argument('--eoff', type=int, default=0)
    ap.add_argument('--ct', default='')
    ap.add_argument('--rot', type=int, default=13)
    ap.add_argument('--i0', type=int, default=1)
    ap.add_argument('--i1', type=int, default=10)
    ap.add_argument('--burn', type=int, default=0)
    ap.add_argument('--lord', type=int, default=1)
    ap.add_argument('--lprio', type=int, default=0)
    ap.add_argument('--rsp', type=int, default=0)
    ap.add_argument('--tch', type=int, default=0)
    ap.add_argument('--tf', type=int, default=4)
    ap.add_argument('--toff', type=int, default=0)
    ap.add_argument('--tw0', type=int, default=12)
    ap.add_argument('--xat', type=int, default=0)
    ap.add_argument('--pf1', type=int, default=1)
    ap.add_argument('--lpf', type=int, default=20)
    ap.add_argument('--lpfit', type=int, default=6)
    ap.add_argument('--x1m', type=int, default=7)
    ap.add_argument('--bgap', type=int, default=8)
    ap.add_argument('--cprio', type=int, default=1)
    ap.add_argument('--x1n', type=int, default=4)
    ap.add_argument('--w0', type=int, default=1)
    ap.add_argument('--dbar1', type=int, default=1)
    ap.add_argument('--aon', type=int, default=2)
    ap.add_argument('--cbar', type=int, default=0)
    ap.add_argument('--vmpos', type=int, default=2)
    ap.add_argument('--il2', type=int, default=0)
    ap.add_argument('--p1', type=int, default=0)
    ap.add_argument('--pm', type=int, default=2)
    ap.add_argument('--cbov', type=int, default=3)
    ap.add_argument('--p0', type=int, default=0)
    ap.add_argument('--max2', type=int, default=2)
    ap.add_argument('--eager', type=int, default=0)
    ap.add_argument('--cst', type=int, default=0)
    ap.add_argument('--x0', type=int, default=60)
    ap.add_argument('--xlat', type=int, default=18)
    ap.add_argument('--xper', type=int, default=3)
    ap.add_argument('--xc0', type=int, default=0)
    ap.add_argument('--n3', type=int, default=1)
    ap.add_argument('--xi0', type=int, default=1)
    ap.add_argument('--pfsat', type=int, default=0)
    ap.add_argument('--g1prio', type=int, default=0)
    ap.add_argument('--xearly', type=int, default=1)
    ap.add_argument('--cpfd', type=int, default=4)
    ap.add_argument('--cla', type=int, default=1)
    ap.add_argument('--war', type=int, default=1)
    opt = ap.parse_args()
    resolve_waits.dbg = 'dup' in opt.dbg
    g = Gen(opt)
    txt = g.build()
    open(opt.o, 'w').write(txt)
    print('wrote', opt.o, len(txt), 'bytes')


if __name__ == '__main__':
    main()
```

```python
import sys, os, struct, argparse
sys.path.insert(0, os.path.dirname(os.path.abspath(__file__)))
from asmlib import I, WaitTag, Touch, Prog, resolve_waits, resolve_hazards
import cin16, fixalign

KNAME = 'standalone__deep_cross_xdeepfm__recsys_kernel'
LDS_TOTAL = 163840

XSLOT = 320 * 128
WR = 3 * XSLOT + 8192
WSLOT = 32 * 256
L_BIAS = 3 * XSLOT
L_W2 = L_BIAS + 256
RB = L_W2 + 256
assert WR % 32768 == 0 and WR + 4 * WSLOT <= LDS_TOTAL
WSP = 16640
assert RB + 2560 <= LDS_TOTAL

W2P = 1536
SSZ = 677 * 64
FRS = 0
V3OFF = 0
A1 = 6144
FR = A1
FRL = FR + 33 * 1024
A3 = FRL + 2048
SG = A3
A2 = SG + SSZ
SQ = A2
V2S = SQ + SSZ
L_WCO = V2S + 832
L_FLG = L_WCO + 192
L_MX = L_FLG + 16
RC = L_FLG + 64
XB = V2S + 2496
XPP = 1056
XBSZ = 3 * XPP + 7 * 128
IMG = A3
IMGP = 160
IMGSZ = 33 * IMGP
XB2 = IMG + 8 * IMGSZ
PART = XB2 + 8 * XBSZ
XOFF = lambda f: (f & 3) * XPP + (f >> 2) * 128
assert RC + 512 <= V2S + 1664
assert XB + 8 * XBSZ <= LDS_TOTAL and XB % 16 == 0 and A2 % 64 == 0 and A3 % 64 == 0 and L_WCO % 16 == 0 and V2S % 64 == 0
assert PART + 8 * 1536 <= V2S + 832 and IMGSZ % 32 == 0 and XB2 % 16 == 0

S_WAVE = 3
S_IDX, S_TAB, S_CIN, S_WCO, S_W1, S_B1, S_W2, S_BO, S_OUT, S_DBG, S_WS = 4, 6, 8, 10, 12, 14, 16, 18, 20, 22, 24
S_MB, S_R = 26, 27
SRD_IDX, SRD_TAB, SRD_CIN, SRD_WCO, SRD_W, SRD_B1, SRD_W2, SRD_OUT, SRD_WS, SRD_DBG = 28, 32, 36, 40, 44, 48, 52, 56, 60, 64
S_T0, S_T1, S_T2, S_T3 = 68, 69, 70, 71
S_LOOP, S_IDXOFF, S_WSOFF, S_WMB, S_XM0, S_N0, S_C0, S_CW, S_BOUT, S_TW = 72, 73, 74, 75, 76, 77, 78, 79, 80, 81
S_EX = 82
S_GRP, S_RC = 84, 85
S_ST = 86
S_M26, S_MASK = 90, 92
S_SAMP, S_STG, S_STG9, S_TGT = 94, 95, 96, 97
S_M26B = 98
S_GW = 100
S_TAGT = 0
S_TAG = 1
S_PW = 101
S_PX = 77
S_PXE = 73

GELU_C0 = -2.0 * 0.7978845608028654 * 1.4426950408889634
GELU_C1 = GELU_C0 * 0.044715


def f32hex(x):
    return '0x%08x' % struct.unpack('<I', struct.pack('<f', x))[0]


def vr(a, n):
    return f'v[{a}:{a + n - 1}]' if n > 1 else f'v{a}'


def srd(a):
    return f's[{a}:{a + 3}]'


def flat(gs):
    res = []
    for c in gs:
        if isinstance(c, (tuple, list)):
            res += flat(c)
        else:
            res.append(c)
    return res


def interleave(a, b):
    out = []
    ia = ib = 0
    na, nb = len(a), len(b)
    while ia < na or ib < nb:
        if ib >= nb or (ia < na and ia * nb <= ib * na):
            out.append(a[ia]); ia += 1
        else:
            out.append(b[ib]); ib += 1
    return out


SLOTS = []
for j in range(0, 26, 2):
    for s in range(0, 14 if j <= 12 else 13):
        SLOTS.append((j, (j + s) % 26))
assert len(SLOTS) == 176
DUP_SLOT = SLOTS.index((12, 25))
assert all((d * 2521) >> 16 == d // 26 for d in range(800))
assert all((d * 10923) >> 16 == d // 6 for d in range(64))
assert all((d * 5042) >> 16 == d // 13 for d in range(170))
assert all((d * 3277) >> 16 == d // 20 for d in range(264))


DOC = '''; ---------------------------------------------------------------------------------------------
;
;       U[i,j,k] = sum_h W2[h,i,j] V3[h,k]
;   evaluated by bf16 MFMA (fp32 accumulate).  V3/V2/U are recomputed from the inputs on every launch.
;   DNN branch: full GEMM + bias + tanh-GELU (x / (1 + exp(-2u))) + dot with w_dnn2.
;   the last arriver of a block adds them up and writes d_out.
; ---------------------------------------------------------------------------------------------
'''


class Gen:
    def __init__(self, opt):
        self.opt = opt
        self.P = Prog()

    def seq(self, lines):
        return [self.P.add(l) for l in flat(lines)]

    def build_srd(self, dst, ptr, size):
        return [f's_mov_b32 s{dst}, s{ptr}', f's_and_b32 s{dst + 1}, s{ptr + 1}, 0xffff',
                f's_mov_b32 s{dst + 2}, {size}', f's_mov_b32 s{dst + 3}, 0x20000']

    def stamp(self, slot):
        if not self.opt.stamps or (self.opt.few and slot not in [int(x) for x in self.opt.few.split(',')]):
            return []
        return [f's_memtime s[{S_ST}:{S_ST + 1}]', f's_memrealtime s[{S_ST + 2}:{S_ST + 3}]', 's_waitcnt lgkmcnt(0)',
                f'v_writelane_b32 v252, s{S_ST}, {slot}', f'v_writelane_b32 v253, s{S_ST + 2}, {slot}']

    def probe(self, name, wave=4):
        if self.opt.probe != name:
            return []
        return ['s_memrealtime s[88:89]', 's_waitcnt lgkmcnt(0)']

    def stamp_flush(self):
        if not self.opt.stamps:
            return []
        L = self.build_srd(SRD_WS, S_WS, 0x10000000)
        L += [f's_lshl_b32 s{S_C0}, s2, 3', f's_add_u32 s{S_C0}, s{S_C0}, s{S_WAVE}',
              f's_lshl_b32 s{S_C0}, s{S_C0}, 8', f's_add_u32 s{S_C0}, s{S_C0}, 0x100000',
              'v_lshlrev_b32 v254, 3, v0', 's_mov_b32 exec_hi, 0',
              f'buffer_store_dwordx2 v[252:253], v254, {srd(SRD_WS)}, s{S_C0} offen', 's_mov_b32 exec_hi, -1']
        return L

    def stamp0(self):
        if not self.opt.stamps:
            return []
        return ['v_mov_b32 v252, 0xcdcdcdcd', 'v_mov_b32 v253, 0xcdcdcdcd',
                f'v_writelane_b32 v252, s{S_ST}, 0', f'v_writelane_b32 v253, s{S_ST + 2}, 0'] + self.stamp(15)

    def tlb2(self, t):
        L = self.build_srd(SRD_WS, S_WS, 0x10000000) + self.build_srd(SRD_OUT, S_OUT, 8192) + self.build_srd(SRD_DBG, S_DBG, 256)
        L += [f's_load_dword s{S_BOUT}, s[{S_BO}:{S_BO + 1}], 0', f'v_mov_b32 v{t}, 0', 's_mov_b64 exec, 1',
              f's_mov_b32 s{S_TW}, 0x80000',
              f'buffer_load_dword v{t + 1}, v{t}, {srd(SRD_WS)}, s{S_TW} offen',
              f'buffer_load_dword v{t + 2}, v{t}, {srd(SRD_OUT)}, 0 offen',
              's_mov_b64 exec, -1']
        return L

    def tlb1(self, vtmp, vdst):
        if not self.opt.etlb:
            return self.build_srd(SRD_TAB, S_TAB, 100000 * 128)
        return self.build_srd(SRD_TAB, S_TAB, 100000 * 128) + [
            f'v_mov_b32 v{vtmp}, s{S_BOUT}', f'buffer_load_dword v{vdst}, v{vtmp}, {srd(SRD_TAB)}, 0 offen']

    def gettag(self, lab, t, VT):
        return [f's_cmp_lg_u32 s{S_WAVE}, 0', f's_cbranch_scc1 {lab}',
                f's_memrealtime s[{S_TAGT}:{S_TAGT + 1}]'] + self.build_srd(SRD_DBG, S_DBG, 256) + [
                f's_lshl_b32 s{S_TW}, s{S_MB}, 2', f'v_mov_b32 v{t}, s{S_TW}', 's_waitcnt lgkmcnt(0)',
                f's_or_b32 s{S_TAG}, s{S_TAGT}, 1', f'v_mov_b32 v{VT}, s{S_TAG}', f'v_mov_b32 v{VT + 1}, 0',
                's_mov_b64 exec, 1',
                f'buffer_atomic_cmpswap v[{VT}:{VT + 1}], v{t}, {srd(SRD_DBG)}, 0 offen offset:128 sc0',
                's_mov_b64 exec, -1', f'{lab}:']

    def prologue(self):
        L = []
        if self.opt.stamps:
            L += [f's_memtime s[{S_ST}:{S_ST + 1}]', f's_memrealtime s[{S_ST + 2}:{S_ST + 3}]']
        L += ['s_cmp_ge_u32 s2, 256', 's_cbranch_scc1 L_end',
              's_load_dwordx16 s[4:19], s[0:1], 0',
              's_load_dwordx4 s[20:23], s[0:1], 64',
              's_load_dwordx2 s[24:25], s[0:1], 80',
              'v_lshrrev_b32 v1, 6, v0']
        if self.opt.cpf:
            L += [f's_getpc_b64 s[{S_MASK}:{S_MASK + 1}]', 'L_pc:',
                  f's_and_b32 s{S_T0}, s2, 0xf8', f'v_add_u32 v2, s{S_T0}, v1', 'v_and_b32 v3, 32, v0', 'v_lshl_add_u32 v2, v3, 3, v2', 'v_lshlrev_b32 v2, 7, v2',
                  f'v_min_u32 v2, L_end-L_pc, v2',
                  f'v_mov_b32 v3, s{S_MASK + 1}',
                  f'v_add_co_u32 v2, vcc, s{S_MASK}, v2', 'v_addc_co_u32 v3, vcc, 0, v3, vcc',
                  'global_load_dword v251, v[2:3], off']
        if self.opt.skew:
            L += ['s_memrealtime s[86:87]', 's_mov_b32 s88, 0']
        L += ['v_and_b32 v0, 63, v0',
              f'v_readfirstlane_b32 s{S_WAVE}, v1',
              f's_and_b32 s{S_T0}, s2, 7', f's_lshr_b32 s{S_T1}, s2, 3',
              f's_and_b32 s{S_BOUT}, s2, 0xf8', f's_add_u32 s{S_BOUT}, s{S_BOUT}, s{S_WAVE}', f's_lshl_b32 s{S_BOUT}, s{S_BOUT}, {self.opt.etlb}',
              f's_min_u32 s{S_T2}, s{S_T0}, 1', f's_add_u32 s{S_T3}, s{S_T1}, s{S_T2}',
              f's_cmp_ge_u32 s{S_T3}, 22', 's_cbranch_scc1 L_cin',
              f's_mul_i32 s{S_T0}, s{S_T0}, 21', f's_add_u32 s{S_T0}, s{S_T0}, s{S_T3}',
              f's_mul_i32 s{S_MB}, s{S_T0}, 5042', f's_lshr_b32 s{S_MB}, s{S_MB}, 16',
              f's_mul_i32 s{S_T1}, s{S_MB}, 13', f's_sub_u32 s{S_R}, s{S_T0}, s{S_T1}']
        return self.seq(L)

    def dnn(self):
        o = self.opt
        vW = [1, 2, 3, 4]
        vX = [[5, 6], [7, 8]]
        vPa, vPc = 9, 10
        WF, XA, ACC = 16, 48, 88
        W2F = WF
        KC0, KC1, KONE = 12, 14, 248
        SUMP, GT = 32, 52
        vIdxOff, vCh, vWD, vBL = 1, [2, 3], [4, 5], 11
        ST, VO = 16, 56
        T = 100
        g, i4, q = T + 16, T + 17, T + 18
        PI = T + 8

        def acc(tn, tm):
            return ACC + (tm * 4 + tn) * 4

        def small(srd_, dst):
            return [f's_mov_b32 m0, {dst}', 's_mov_b64 exec, 0xffff',
                    I(f'buffer_load_dwordx4 v{vBL}, {srd(srd_)}, s{S_N0} offen lds', tag='BIAS'), 's_mov_b64 exec, -1']
        L = [f's_lshl_b32 s{S_N0}, s{S_R}, 8', f's_mul_i32 s{S_T3}, s{S_MB}, 320',
             f'v_lshrrev_b32 v{g}, 4, v0', f'v_lshlrev_b32 v{vBL}, 4, v0', f's_and_b32 s{S_CW}, s{S_WAVE}, 3',
             f's_cmp_lt_u32 s{S_WAVE}, 4', 's_cbranch_scc1 L_cmp']
        c0 = self.seq(L)
        self.ldat = len(self.P.static)
        PI = T

        RG, CG = S_T0, S_T1
        L = ['L_cmp:', f's_mul_i32 s{S_T2}, s{S_WAVE}, 13', f'v_min_u32 v{q}, 12, v0', f'v_add_u32 v{q}, s{S_T2}, v{q}',
             f'v_lshrrev_b32 v{i4}, 1, v{q}', f'v_mul_u32_u24 v{i4}, 96, v{i4}', f'v_lshl_add_u32 v{q}, v{q}, 2, v{i4}',
             f's_mul_i32 s{S_C0}, s{S_R}, 25', f's_min_u32 s{S_C0}, s{S_C0}, 294',
             f's_add_u32 s{S_C0}, s{S_C0}, s{S_T3}', f's_mul_i32 s{S_C0}, s{S_C0}, 104', 's_waitcnt lgkmcnt(0)']
        ct = [int(x) for x in o.ct]
        L += self.build_srd(SRD_IDX, S_IDX, 4096 * 104)
        if ct:
            L += [f'buffer_load_dwordx4 {vr(PI, 4)}, v{q}, {srd(SRD_IDX)}, s{S_C0} offen']
        if ct and max(ct) > 3:
            L += [f'buffer_load_dwordx4 {vr(PI + 4, 4)}, v{q}, {srd(SRD_IDX)}, s{S_C0} offen offset:16']
        L += self.tlb1(T + 14, T + 15)
        touch = [x for k in ct for x in (f'v_lshlrev_b32 v{PI + k}, 7, v{PI + k}', f'buffer_load_dword v{XA + k}, v{PI + k}, {srd(SRD_TAB)}, 0 offen')]
        L += self.build_srd(SRD_B1, S_B1, 3328) + small(SRD_B1, L_BIAS) + self.stamp0()
        L += [f's_and_b32 s{RG}, s{S_WAVE}, 1', f's_lshr_b32 s{CG}, s{S_WAVE}, 1',
              f'v_bfe_u32 v{i4}, v0, 2, 2', f'v_lshl_add_u32 v{q}, v{g}, 3, v{i4}', f'v_lshlrev_b32 v{q}, 8, v{q}',
              f'v_bfe_u32 v{i4}, v0, 2, 3', f's_lshl_b32 s{S_T2}, s{CG}, 2', f'v_xor_b32 v{i4}, s{S_T2}, v{i4}',
              f'v_lshl_add_u32 v{q}, v{i4}, 5, v{q}', f'v_and_b32 v{i4}, 3, v0', f'v_lshl_add_u32 v{q}, v{i4}, 3, v{q}',
              f'v_add_u32 v{vW[0]}, {WR}, v{q}']
        L += [f'v_xor_b32 v{vW[tn]}, {32 * tn}, v{vW[0]}' for tn in range(1, 4)]
        L += [f's_lshl_b32 s{S_T2}, s{CG}, 7', f's_add_u32 s{S_T2}, s{S_T2}, {L_BIAS}', f'v_lshlrev_b32 v{q}, 3, v{g}', f'v_add_u32 v{vPa}, s{S_T2}, v{q}',
              f'v_and_b32 v{q}, 15, v0', f'v_lshlrev_b32 v{q}, 7, v{q}',
              f'v_bfe_u32 v{i4}, v0, 1, 3', f'v_xor_b32 v{i4}, v{i4}, v{g}', f'v_lshl_add_u32 v{q}, v{i4}, 4, v{q}',
              f's_mul_i32 s{S_T2}, s{RG}, 20480', f'v_add_u32 v{vX[0][0]}, s{S_T2}, v{q}', f'v_xor_b32 v{vX[1][0]}, 64, v{vX[0][0]}',
              f'v_add_u32 v{vX[0][1]}, {2 * XSLOT}, v{vX[0][0]}', f'v_add_u32 v{vX[1][1]}, {2 * XSLOT}, v{vX[1][0]}',
              f's_mul_i32 s{S_T2}, s{S_WAVE}, 640', f's_add_u32 s{S_T2}, s{S_T2}, {RB}',
              f'v_and_b32 v{q}, 15, v0', f'v_lshlrev_b32 v{q}, 2, v{q}', f'v_add_u32 v{q}, s{S_T2}, v{q}',
              f'v_lshrrev_b32 v{i4}, 5, v0', f'v_lshl_add_u32 v{q}, v{i4}, 6, v{q}', f'v_bfe_u32 v{i4}, v0, 4, 1', f'v_lshl_add_u32 v{vPc}, v{i4}, 7, v{q}',
              f's_mov_b32 s{S_LOOP}, 0',
              f'v_mov_b32 v{KC0}, {f32hex(GELU_C0)}', f'v_mov_b32 v{KC0 + 1}, {f32hex(GELU_C0)}',
              f'v_mov_b32 v{KC1}, {f32hex(GELU_C1)}', f'v_mov_b32 v{KC1 + 1}, {f32hex(GELU_C1)}']

        def pkreads(off, dst):
            return [f'ds_read_b64 {vr(dst + 4 * tn + 2, 2)}, v{vPa} offset:{off + 32 * tn}' for tn in range(4)]

        def unp(dst):
            c = []
            for tn in range(4):
                r = dst + 4 * tn
                c += [f'v_lshlrev_b32 v{r}, 16, v{r + 2}', f'v_and_b32 v{r + 1}, 0xffff0000, v{r + 2}',
                      f'v_lshlrev_b32 v{r + 2}, 16, v{r + 3}', f'v_and_b32 v{r + 3}, 0xffff0000, v{r + 3}']
            return c
        L += touch + self.stamp(6)
        L += [WaitTag(vm_tags=['BIAS'])] + pkreads(0, WF) + unp(WF)
        L += [f'v_mov_b64 {vr(ACC + r, 2)}, {vr(WF + r % 16, 2)}' for r in range(0, 160, 2)]

        def rX(p, k):
            xs = p % 3
            return f'ds_read_b128 {vr(XA + 4 * (k % 10), 4)}, v{vX[k % 2][xs // 2]} offset:{(xs % 2) * XSLOT + (k // 2) * 2048}'

        def rW(tn):
            return [f'ds_read_b64_tr_b16 {vr(WF + 16 * par + 4 * tn + 2 * rd, 2)}, v{vW[tn]} offset:{par * WSLOT + rd * 1024}' for par in range(2) for rd in range(2)]
        tog = lambda tn: f'v_xor_b32 v{vW[tn]}, {2 * WSLOT}, v{vW[tn]}'

        def mf(gi):
            G, tn, a_, par = gi // 16, (gi // 4) % 4, (gi // 2) % 2, gi % 2
            d = acc(tn, 2 * G + a_)
            return f'v_mfma_f32_16x16x32_bf16 {vr(d, 4)}, {vr(WF + 16 * par + 4 * tn, 4)}, {vr(XA + 4 * ((4 * G + 2 * a_ + par) % 10), 4)}, {vr(d, 4)}'
        SH = [11, 248, 249, 250]
        nsh = o.nsh

        def shadow():
            c = []
            for b0 in range(0, nsh, 4):
                E = [(ACC + e, SH[e - b0]) for e in range(b0, min(b0 + 4, nsh))]
                for op in ('v_mul_f32 T, X, X', f'v_fma_f32 T, T, v{KC1}, v{KC0}', 'v_mul_f32 T, T, X', 'v_exp_f32 T, T', 'v_add_f32 T, 1.0, T', 'v_rcp_f32 T, T', 'v_mul_f32 X, X, T'):
                    c += [(op.replace('T', f'v{t}').replace('X', f'v{x}'), 8 if ('exp' in op or 'rcp' in op) else 4) for x, t in E]
            return c

        def cpair(p, kind, loopend=False):
            S = []
            ev = {}
            if kind == 'first':
                g_ = o.sbg + 1
                for k in range(2 * o.sa, 10):
                    ev[g_] = rX(p, k); g_ += 1
            else:
                for i_, x in enumerate(rW(3)[2:]):
                    ev[i_] = x
                for i_, k in enumerate(range(6, 10)):
                    ev[2 + i_] = rX(p, k)
            for k in range(10):
                g_ = 16 * (k // 4) + 12 + k % 4
                while g_ in ev or (kind == 'first' and g_ <= o.sbg):
                    g_ += 1
                ev[g_] = rX(p, k + 10)
            BG = 46 + o.bgap
            if kind != 'last':
                ev[BG], ev[BG + 1] = rX(p + 1, 0), rX(p + 1, 1)
                for k in range(2, 6):
                    ev[58 + k] = rX(p + 1, k)
                for tn in range(4):
                    for i_, x in enumerate(rW(tn)):
                        if 66 + 4 * tn + i_ < 80:
                            ev[66 + 4 * tn + i_] = x
            sh_ = shadow() if kind == 'last' else []
            for gi in range(80):
                S.append(mf(gi))
                t = 4
                if kind == 'first' and gi == o.sbg:
                    S.append('s_barrier')
                if kind != 'last' and gi == BG - 1:
                    S += ['s_waitcnt lgkmcnt(0)', 's_barrier']
                if gi in ev:
                    S.append(ev[gi]); t += 8
                if kind != 'last' and 8 <= gi < 12:
                    S.append(tog(gi - 8))
                if gi % 2 == 0 and gi + 2 < 80:
                    n_ = gi + 2
                    G, tn, a_ = n_ // 16, (n_ // 4) % 4, (n_ // 2) % 2
                    if tn == 0:
                        S.append(Touch(vr(XA + 4 * ((4 * G + 2 * a_ + 1) % 10), 4)))
                    if G == 0 and a_ == 0:
                        S.append(Touch(vr(WF + 16 + 4 * tn, 4)))
                if gi == 78 and kind != 'last':
                    S.append(Touch(vr(WF + 16, 4)))
                if loopend and gi == 48:
                    S += [f's_add_u32 s{S_LOOP}, s{S_LOOP}, 1', f's_cmp_lt_u32 s{S_LOOP}, 8']
                t = max(t, 8)
                while sh_ and gi >= o.sh0 and t + sh_[0][1] <= 16:
                    x, c_ = sh_.pop(0)
                    S.append(x); t += c_
            S += [x for x, _ in sh_]
            if kind == 'last':
                print('shadow left', len(sh_))
            return S
        L += self.stamp(1) + ['s_barrier'] + [x for tn in range(4) for x in rW(tn)] + ['s_waitcnt lgkmcnt(0)', f's_setprio {o.cprio}', 's_barrier'] + self.stamp(2)
        L += [rX(0, k) for k in range(2 * o.sa)] + cpair(0, 'first')
        cpre = self.seq(L)
        body = self.seq(['L_dnn_loop0:'])
        for p in range(1, 4):
            S = cpair(p, 'mid', p == 3)
            if p == 3:
                if o.stamps and o.itst == 1:
                    i_ = S.index('s_barrier')
                    S = S[:i_] + [f's_memtime s[{S_ST}:{S_ST + 1}]', f's_memrealtime s[{S_ST + 2}:{S_ST + 3}]', f's_or_b32 m0, s{S_LOOP}, 16', 's_waitcnt lgkmcnt(0)',
                                  f'v_writelane_b32 v252, s{S_ST}, m0', f'v_writelane_b32 v253, s{S_ST + 2}, m0', f's_cmp_lt_u32 s{S_LOOP}, 8'] + S[i_:]
                S += ['s_cbranch_scc1 L_dnn_loop0']
            body += self.seq(S)
        tc = c0 + cpre + body * 2 + self.seq(['L_tail:'])
        tc += self.seq(cpair(25, 'last') + pkreads(256, W2F) + [f'v_mov_b32 v{KONE}, 1.0', f'v_mov_b32 v{KONE + 1}, 1.0'])
        if o.burn:
            bl = [f's_movk_i32 s{S_LOOP}, {o.burn}', 'L_burn:'] + [f'v_mfma_f32_16x16x32_bf16 {vr(XA + 32 + 4 * (k % 2), 4)}, {vr(WF + 16 + 4 * (k % 4), 4)}, {vr(XA + 4 * (k // 4), 4)}, 0' for k in range(32)]
            tc += self.seq(bl + [f's_sub_u32 s{S_LOOP}, s{S_LOOP}, 1', f's_cmp_lg_u32 s{S_LOOP}, 0', 's_cbranch_scc1 L_burn'])
        tc += self.seq(['L_epi:'] + self.stamp(3))

        p2 = lambda r: vr(r, 2)
        seen = set()

        def gelu(groups):
            L = []
            for k, vals in enumerate(groups):
                tb = GT + (k % 2) * 16
                V_ = [(x, w, s_, tb + 4 * i_, tb + 4 * i_ + 2) for i_, (x, w, s_) in enumerate(vals)]
                for (x, w, s_, t, u) in V_:
                    L.append(f'v_pk_mul_f32 {p2(t)}, {p2(x)}, {p2(x)}')
                for (x, w, s_, t, u) in V_:
                    L.append(f'v_pk_fma_f32 {p2(t)}, {p2(t)}, {p2(KC1)}, {p2(KC0)}')
                for (x, w, s_, t, u) in V_:
                    L.append(f'v_pk_mul_f32 {p2(t)}, {p2(t)}, {p2(x)}')
                for (x, w, s_, t, u) in V_:
                    L += [f'v_exp_f32 v{t}, v{t}', f'v_exp_f32 v{t + 1}, v{t + 1}']
                for (x, w, s_, t, u) in V_:
                    L.append(f'v_pk_mul_f32 {p2(u)}, {p2(x)}, {p2(w)}')
                for (x, w, s_, t, u) in V_:
                    L.append(f'v_pk_add_f32 {p2(t)}, {p2(t)}, {p2(KONE)}')
                for (x, w, s_, t, u) in V_:
                    L += [f'v_rcp_f32 v{t}, v{t}', f'v_rcp_f32 v{t + 1}, v{t + 1}']
                for (x, w, s_, t, u) in V_:
                    if s_ in seen:
                        L.append(f'v_pk_fma_f32 {p2(s_)}, {p2(t)}, {p2(u)}, {p2(s_)}')
                    else:
                        L.append(f'v_pk_mul_f32 {p2(s_)}, {p2(t)}, {p2(u)}')
                        seen.add(s_)
            return L
        el = lambda tn, tm, d: (acc(tn, tm) + 2 * d, W2F + 4 * tn + 2 * d, SUMP + 2 * tm)
        allel = [el(tn, 2 * tp + a_, d) for tp in range(5) for tn in range(4) for d in range(2) for a_ in range(2)]
        rest = [e for e in allel if e[0] >= ACC + nsh]
        L = gelu([rest[i:i + 4] for i in range(0, len(rest), 4)])
        L = L[:20] + unp(W2F) + L[20:]
        for (x, w, s_) in allel:
            if x < ACC + nsh:
                L.append(f'v_pk_fma_f32 {p2(s_)}, {p2(x)}, {p2(w)}, {p2(s_)}' if s_ in seen else f'v_pk_mul_f32 {p2(s_)}, {p2(x)}, {p2(w)}')
                seen.add(s_)
        sm = lambda tm: SUMP + 2 * tm
        L += [f'v_add_f32 v{sm(tm)}, v{sm(tm)}, v{sm(tm) + 1}' for tm in range(10)]
        L += [f'v_permlane32_swap_b32 v{sm(tm)}, v{sm(tm + 1)}' for tm in range(0, 10, 2)]
        L += [f'v_add_f32 v{sm(tm)}, v{sm(tm)}, v{sm(tm + 1)}' for tm in (8, 0, 2, 4, 6)]
        L += [f'v_mov_b32 v{sm(9)}, v{sm(8)}', f'v_permlane16_swap_b32 v{sm(0)}, v{sm(2)}', f'v_permlane16_swap_b32 v{sm(4)}, v{sm(6)}',
              f'v_permlane16_swap_b32 v{sm(8)}, v{sm(9)}',
              f'v_add_f32 v{sm(0)}, v{sm(0)}, v{sm(2)}', f'v_add_f32 v{sm(4)}, v{sm(4)}, v{sm(6)}', f'v_add_f32 v{sm(8)}, v{sm(8)}, v{sm(9)}',
              f'ds_write_b32 v{vPc}, v{sm(0)}', f'ds_write_b32 v{vPc}, v{sm(4)} offset:256',
              's_mov_b32 exec_lo, 0xffff', 's_mov_b32 exec_hi, 0xffff', f'ds_write_b32 v{vPc}, v{sm(8)} offset:512', 's_mov_b64 exec, -1']
        L += ['s_waitcnt lgkmcnt(0)'] + self.stamp(4) + self.stamp_flush() + ['s_barrier', 's_endpgm']
        tc += self.seq(L)

        def wstage(slot):
            c = []
            for u in range(2):
                c += [f's_add_u32 m0, s{S_WMB}, {WR + slot * WSLOT + u * 1024}',
                      I(f'buffer_load_dwordx4 v{vWD[u]}, {srd(SRD_W)}, s{S_WSOFF} offen lds', tag='W')]
            return c + [f's_add_u32 s{S_WSOFF}, s{S_WSOFF}, {32 * 3328}']

        Q, TM, BP = 16, 56, [12, 13]
        TI, vWT = 70, 76
        SP = [36, 37, 38, 39, 40, 41, 42, 43, 48, 49]
        SI = [94, 95, 96, 97, 98, 99, 100, 101, 82, 83]

        def xaddr(f, pcs):
            c = []
            for odd in range(2):
                p_ = f + 26 * odd
                for pc in pcs:
                    c.append(f'v_add_u32_dpp v{TM + pc}, v{Q + 4 * pc + p_ % 4}, v{vCh[0]} row_newbcast:{p_ >> 2} row_mask:0xf bank_mask:{(3, 12)[odd]:#x}')
            return c

        def xld(pc, slot, tag='X'):
            return [f's_add_u32 m0, s{S_XM0}, {slot * XSLOT + pc * 2048}',
                    I(f'buffer_load_dwordx4 v{TM + pc}, {srd(SRD_TAB)}, 0 offen lds', tag=tag)]
        idxl = [f'buffer_load_dwordx4 {vr(Q + 4 * pc, 4)}, v{BP[0]}, {srd(SRD_IDX)}, s{SI[pc // 2]} offen offset:{(pc % 2) * 1664}' for pc in range(10)]
        LO, HI = range(5), range(5, 10)
        NR = (22 + o.tf - 1) // o.tf
        lw = S_CW
        self.mk0 = len(self.P.static)
        L = [f's_lshr_b32 s{S_T0}, s{lw}, 1', f's_mul_i32 s{S_T0}, s{S_T0}, 20', f's_and_b32 s{S_T1}, s{lw}, 1', f's_add_u32 s{S_T0}, s{S_T0}, s{S_T1}',
             f's_lshl_b32 s{S_XM0}, s{S_T0}, 10', f's_mul_i32 s{S_C0}, s{S_T3}, 104', f's_mul_i32 s{S_T0}, s{S_T0}, 832', f's_add_u32 s{SI[0]}, s{S_C0}, s{S_T0}',
             f'v_mul_u32_u24 v{q}, 48, v{g}', f'v_sub_u32 v{BP[0]}, v{vBL}, v{q}']
        L += [f's_add_u32 s{SI[k]}, s{SI[0]}, {k * 2 * 1664}' for k in range(1, 5)]
        L += [f's_and_b32 s{S_T2}, s{lw}, 1', f's_lshl_b32 s{S_T2}, s{S_T2}, 3',
              f'v_lshlrev_b32 v{i4}, 1, v{g}', f'v_or_b32 v{i4}, s{S_T2}, v{i4}', f'v_xor_b32 v{i4}, v{i4}, v0', f'v_and_b32 v{i4}, 15, v{i4}',
              f'v_mul_u32_u24 v{vWD[0]}, 3328, v{g}', f'v_lshl_add_u32 v{vWD[0]}, v{i4}, 4, v{vWD[0]}', f'v_add_u32 v{vWD[1]}, {4 * 3328}, v{vWD[0]}',
              f's_mul_i32 s{S_WSOFF}, s{lw}, {8 * 3328}', f's_add_u32 s{S_WSOFF}, s{S_WSOFF}, s{S_N0}', f's_lshl_b32 s{S_WMB}, s{lw}, 11',
              's_waitcnt lgkmcnt(0)']
        L += self.build_srd(SRD_IDX, S_IDX, 4096 * 104) + idxl[:o.i0] + self.tlb1(T + 14, T + 15) + self.build_srd(SRD_W, S_W1, 1664 * 3328)
        for sl in range(o.w0):
            L += wstage(sl)
        L += self.stamp0() + idxl[o.i0:]
        for sl in range(o.w0, 2):
            L += wstage(sl)
        L += [f's_lshl_b32 s{S_T2}, s{S_T1}, 6',
              f'v_and_b32 v{q}, 7, v0', f'v_xor_b32 v{q}, v{q}, v{g}', f'v_lshlrev_b32 v{q}, 4, v{q}', f'v_xor_b32 v{vCh[0]}, s{S_T2}, v{q}', f'v_xor_b32 v{vCh[1]}, 64, v{vCh[0]}',
              f's_mov_b32 s{S_LOOP}, 0',
              f's_mul_i32 s{S_T2}, s{lw}, 13', f's_add_u32 s{S_T2}, s{S_T2}, s{S_R}', f's_min_u32 s{S_T2}, s{S_T2}, 39', f's_lshl_b32 s{S_T2}, s{S_T2}, 3',
              f's_add_u32 s{S_T2}, s{S_T2}, s{S_T3}', f's_mul_i32 s{S_GRP}, s{S_T2}, 104',
              f'v_lshrrev_b32 v{q}, {o.tf.bit_length() - 1}, v0', f'v_min_u32 v{q}, 7, v{q}', f'v_mul_u32_u24 v{q}, 104, v{q}',
              f'v_and_b32 v{i4}, {o.tf - 1}, v0', f'v_lshl_add_u32 v7, v{i4}, 2, v{q}',
              f's_lshl_b32 s{S_T2}, s{S_MB}, 2', f's_add_u32 s{S_T2}, s{S_T2}, s{lw}', f's_add_u32 s{S_T2}, s{S_T2}, {o.tw0 * 32}', f's_mul_i32 s{S_RC}, s{S_T2}, 3328',
              f's_add_u32 s{S_RC}, s{S_RC}, s{S_N0}', f's_mov_b32 s{S_T2}, {52 * 3328}',
              f'v_lshrrev_b32 v{q}, 1, v0', f'v_mul_lo_u32 v{q}, s{S_T2}, v{q}', f'v_and_b32 v{i4}, 1, v0', f'v_lshl_add_u32 v{vWT}, v{i4}, 7, v{q}']
        L += self.build_srd(SRD_W2, S_W2, 3328)
        L += [f's_mul_i32 s{S_T2}, s{lw}, {o.lpf * 128}', f's_add_u32 s{S_T2}, s{S_T2}, L_tail-L_pc', f'v_lshlrev_b32 v8, 7, v0', f'v_add_u32 v8, s{S_T2}, v8',
              f'v_mov_b32 v9, s{S_MASK + 1}', f'v_add_co_u32 v8, vcc, s{S_MASK}, v8', 'v_addc_co_u32 v9, vcc, 0, v9, vcc']
        sh = lambda pc, c_: f'v_lshlrev_b32 v{Q + 4 * pc + c_}, 7, v{Q + 4 * pc + c_}'
        for pc in range(10):
            L += [sh(pc, 0), sh(pc, 2), sh(pc, 1), sh(pc, 3)] + xaddr(0, [pc]) + xld(pc, 0, 'X0a' if pc < o.sa else 'X0')
            if pc == 0:
                L += self.stamp(6)
            if pc == o.bwat:
                L += [WaitTag(vm_tags=['W']), 's_barrier']
        L += self.stamp(7)
        x1 = [x for pc in range(10) for x in xaddr(1, [pc]) + xld(pc, 1)]
        L += x1[:4 * o.x1n] + [WaitTag(vm_tags=['X0a'])] + self.stamp(1) + ['s_barrier'] + self.probe('s0') + x1[4 * o.x1n:4 * o.x1m]
        L += [WaitTag(vm_tags=['X0']), 's_barrier'] + x1[4 * o.x1m:] + wstage(2) + wstage(3) + xaddr(2, range(10))
        x2 = [x for pc in range(10) for x in xld(pc, 2)]
        L += x2[:2 * o.x2n] + [WaitTag(vm_tags=['W']), 's_barrier'] + x2[2 * o.x2n:] + xaddr(3, range(10))
        lpre = self.seq(L + [f's_setprio {o.lprio}', 's_branch L_ld_in'])
        del self.P.static[self.mk0:]
        self.P.static[self.ldat:self.ldat] = lpre
        self.mk0 = len(self.P.static)

        def lpair(p):
            S = ['s_barrier'] + (['L_ld_in:'] if p == 0 else []) + wstage(2 * (p % 2)) + wstage(2 * (p % 2) + 1)
            f2 = p + 4
            for pc in range(10):
                x = xld(pc, p % 3)
                S += [x[0]] + (xaddr(f2, [pc - 1])[:1] if pc else []) + [x[1]] + (xaddr(f2, [pc - 1])[1:] if pc else [])
            S += xaddr(f2, [9])
            if p >= 10:
                S += [f'v_mov_b32_dpp v{Q + 4 * pc + c_}, v{Q + 4 * pc + c_} row_shl:3 row_mask:0xf bank_mask:0xf' for pc in range(10) for c_ in ((0, 2) if p == 10 else (1, 3))]
            if p == 11:
                S += [f's_add_u32 s{S_LOOP}, s{S_LOOP}, 1', f's_cmp_lt_u32 s{S_LOOP}, 2']
            return S + [WaitTag(vm_tags=['W'])]
        body = self.seq(['L_dnn_loop1:'])
        for p in range(12):
            if p == 8 and o.lpf:
                body += self.seq([f's_cmp_lg_u32 s{S_LOOP}, 1', 's_cbranch_scc1 L_nolpf'])
                self.seq([f's_mov_b64 exec, {(1 << o.lpf) - 1}', 'global_load_dword v10, v[8:9], off', 's_mov_b64 exec, -1'] + small(SRD_W2, L_W2))
                body += self.seq(['L_nolpf:'])
            body += self.seq(lpair(p) + (['s_cbranch_scc1 L_dnn_loop1'] if p == 11 else []))
        tl = c0 + lpre + body * 2 + self.seq(['s_branch L_ld_tail'])
        self.ldblk = self.P.static[self.mk0:]
        del self.P.static[self.mk0:]
        tl += self.seq(['L_ld_tail:', 's_barrier'] + self.tlb2(T) + ['s_mov_b64 exec, 1', f'buffer_load_dword v250, v{T}, {srd(SRD_DBG)}, 0 offen offset:240 sc1', 's_mov_b64 exec, -1'])
        tl += self.seq(self.probe('s50'))
        if o.walk:
            tl += self.seq([f's_cmp_eq_u32 s{lw}, 0', 's_cbranch_scc1 L_wkd', 's_mov_b64 exec, 0', f's_cmp_eq_u32 s{lw}, 1', 's_cbranch_scc1 L_wk0',
                            f's_cmp_eq_u32 s{lw}, 2', f's_cbranch_scc1 L_wk{np_ // 3}', f's_branch L_wk{2 * np_ // 3}', 'L_wkd:'])
        A = 64
        L = [f's_cmp_lg_u32 s{S_WAVE}, 4', 's_cbranch_scc1 L_end',
             f'v_lshlrev_b32 v3, 4, v0', f'v_lshlrev_b32 v4, 2, v0', f'v_add_u32 v1, {RB}, v3', f'v_add_u32 v2, {RB + 1024}, v4', f'v_add_u32 v4, 1024, v4',
             'v_mov_b32 v5, 32', f'v_mov_b32 v7, s{S_MB}',
             f's_mul_i32 s{S_T0}, s{S_MB}, 1280', f's_mul_i32 s{S_T1}, s{S_R}, {WSP}', f's_add_u32 s{S_T1}, s{S_T1}, s{S_T0}', 's_setprio 3']
        if o.sent:
            L += [f'v_mov_b32 v{A + k}, -1' for k in range(4)] + [f'buffer_store_dwordx4 {vr(A, 4)}, v3, {srd(SRD_WS)}, s{S_T1} offen sc1',
                  f'buffer_store_dword v{A}, v4, {srd(SRD_WS)}, s{S_T1} offen sc1', 's_waitcnt vmcnt(0)']
        L += self.stamp_flush() + ['s_barrier'] + self.probe('dend')
        L += [f'ds_read_b128 {vr(A, 4)}, v1', f'ds_read_b128 {vr(A + 8, 4)}, v1 offset:1280', f'ds_read2st64_b32 {vr(A + 4, 2)}, v2 offset0:0 offset1:5',
              f'v_pk_add_f32 {p2(A)}, {p2(A)}, {p2(A + 8)}', f'v_pk_add_f32 {p2(A + 2)}, {p2(A + 2)}, {p2(A + 10)}', f'v_add_f32 v{A + 4}, v{A + 4}, v{A + 5}']
        if o.sent:
            L += [f'v_min_u32 v{A + k}, -2, v{A + k}' for k in range(5)]
        L += (self.stamp(16) if o.diag else [])
        L += [f'buffer_store_dwordx4 {vr(A, 4)}, v3, {srd(SRD_WS)}, s{S_T1} offen sc1',
              f'buffer_store_dword v{A + 4}, v4, {srd(SRD_WS)}, s{S_T1} offen sc1', 's_mov_b64 exec, 1']
        tl += self.seq(L)

        L = ['L_pub:']
        if o.skew:
            L += ['v_mov_b32 v20, s86', 'v_mov_b32 v21, s86', 'v_mov_b32 v22, s88', 's_lshl_b32 s89, s2, 7', 's_add_u32 s89, s89, 0x40000', 'v_lshlrev_b32 v23, 28, v0',
                  f'buffer_store_dwordx3 v[20:22], v23, {srd(SRD_WS)}, s89 offen sc1']
        def loads():
            c = [f's_mul_i32 s{S_T0}, s{S_T3}, 1280']
            for qq in range(14):
                c += [f'buffer_load_dwordx4 {vr(A + 8 * qq, 4)}, v3, {srd(SRD_WS)}, s{S_T0} offen sc1',
                      f'buffer_load_dword v{A + 8 * qq + 4}, v4, {srd(SRD_WS)}, s{S_T0} offen sc1', f's_add_u32 s{S_T0}, s{S_T0}, {WSP}']
            return c
        R_ = 56
        L += ['v_lshlrev_b32 v6, 4, v7'] + ([] if o.sent else ['s_waitcnt vmcnt(0)']) + ['v_mov_b32 v13, v5', f'buffer_atomic_add v5, v6, {srd(SRD_DBG)}, 0 offen sc0',
              'v_cmp_eq_u32 vcc, 12, v7', 'v_mov_b32 v8, 436', 'v_mov_b32 v9, 434', 'v_cndmask_b32 v8, v8, v9, vcc', 'v_sub_u32 v8, v8, v13']
        if o.spec:
            L += [f's_mov_b64 s[{S_MASK}:{S_MASK + 1}], exec', 's_mov_b64 exec, -1', f'v_readfirstlane_b32 s{S_T3}, v7'] + loads() + [f's_mov_b64 exec, s[{S_MASK}:{S_MASK + 1}]']
            L += ['s_waitcnt vmcnt(0) lgkmcnt(0)']
        else:
            L += ['s_waitcnt vmcnt(0) lgkmcnt(0)']
        L += (self.stamp(18) if o.diag else []) + [
             f'v_cmp_eq_u32 s[{S_EX}:{S_EX + 1}], v5, v8', 's_mov_b64 exec, -1', f's_lshl_b32 s{S_BOUT}, s{S_BOUT}, 16',
             'v_lshrrev_b32 v1, 1, v3', 'v_lshrrev_b32 v2, 1, v4']
        if o.spec:
            L += [f's_bitcmp1_b32 s{S_EX}, 0', f's_bitset0_b32 s{S_EX}, 0', 's_cbranch_scc1 L_sum']
        pa = self.seq(L)
        L = ['L_fin:', f's_cmp_eq_u32 s{S_EX}, 0', 's_cbranch_scc1 L_done',
             f's_ff1_i32_b32 s{S_T2}, s{S_EX}', f's_bitset0_b32 s{S_EX}, s{S_T2}', f'v_readlane_b32 s{S_T3}, v7, s{S_T2}', 's_waitcnt vmcnt(0)', 'L_again:'] + loads()
        pb = self.seq(L)
        L = ['L_sum:', f'v_pk_add_f32 {p2(R_)}, {p2(A)}, {p2(A + 8)}', f'v_pk_add_f32 {p2(R_ + 2)}, {p2(A + 2)}, {p2(A + 10)}', f'v_add_f32 v{R_ + 4}, v{A + 4}, v{A + 12}']
        for qq in range(2, 14):
            L += [f'v_pk_add_f32 {p2(R_)}, {p2(R_)}, {p2(A + 8 * qq)}', f'v_pk_add_f32 {p2(R_ + 2)}, {p2(R_ + 2)}, {p2(A + 8 * qq + 2)}',
                  f'v_add_f32 v{R_ + 4}, v{R_ + 4}, v{A + 8 * qq + 4}']
        if o.sent:
            L += [f'v_cmp_u_f32 vcc, v{R_}, v{R_ + 1}', f'v_cmp_u_f32 s[{S_MASK}:{S_MASK + 1}], v{R_ + 2}, v{R_ + 3}', f's_or_b64 s[{S_MASK}:{S_MASK + 1}], s[{S_MASK}:{S_MASK + 1}], vcc',
                  f'v_cmp_u_f32 vcc, v{R_ + 4}, v{R_ + 4}', f's_or_b64 vcc, s[{S_MASK}:{S_MASK + 1}], vcc', 's_cbranch_vccnz L_chk', 'L_ok:']
        L += [f's_mul_i32 s{S_T3}, s{S_T3}, 640']
        A0 = A
        A = R_
        L += [f'v_add_f32 v{A + k}, s{S_BOUT}, v{A + k}' for k in range(5)]
        L += [f'v_cvt_pk_bf16_f32 v10, v{A}, v{A + 1}', f'v_cvt_pk_bf16_f32 v11, v{A + 2}, v{A + 3}', f'v_cvt_pk_bf16_f32 v12, v{A + 4}, v{A + 4}',
              f'buffer_store_dwordx2 v[10:11], v1, {srd(SRD_OUT)}, s{S_T3} offen', f'buffer_store_short v12, v2, {srd(SRD_OUT)}, s{S_T3} offen']
        if o.skew:
            L += [f's_cmp_lg_u32 s{S_EX}, 0', 's_cbranch_scc1 L_fin', 'v_lshlrev_b32 v20, 7, v0', 's_mov_b32 s88, 0x40000']
            for k in range(4):
                L += [f'buffer_load_dwordx3 v[{32 + 4 * k}:{34 + 4 * k}], v20, {srd(SRD_WS)}, s88 offen sc1', 's_add_u32 s88, s88, 8192']
            L += ['s_waitcnt vmcnt(0)']
            for k in range(4):
                L += [f'v_sub_u32 v28, v{34 + 4 * k}, v{32 + 4 * k}', 'v_cmp_gt_u32 vcc, 5000, v28', f'v_cndmask_b32 v28, 0, v28, vcc',
                      f'v_cmp_eq_u32 vcc, v{32 + 4 * k}, v{33 + 4 * k}', f'v_cndmask_b32 v{33 + 4 * k}, 0, v28, vcc']
            L += ['v_max_u32 v26, v33, v37', 'v_max3_u32 v26, v26, v41, v45', 'v_mov_b32 v27, -1']
            if o.probe == 'span':
                L += ['s_memrealtime s[86:87]', 's_waitcnt lgkmcnt(0)', 'v_mov_b32 v26, s86']
            for (ctl, rm) in (('row_shr:1', '0xf'), ('row_shr:2', '0xf'), ('row_shr:4', '0xf'), ('row_shr:8', '0xf'), ('row_bcast:15', '0xa'), ('row_bcast:31', '0xc')):
                L += [f'v_max_u32_dpp v{r}, v{r}, v{r} {ctl} row_mask:{rm} bank_mask:0xf' for r in (26, 27)]
            L += ['v_not_b32 v27, v27', 'v_sub_u32 v22, v26, v27', 's_memrealtime s[86:87]', 'v_readlane_b32 s88, v22, 63', 's_waitcnt lgkmcnt(0)',
                  's_min_u32 s88, s88, 5000', f's_mul_i32 s88, s88, {o.skew - 1}', 's_add_u32 s88, s88, s86',
                  'L_spin:', 's_memrealtime s[86:87]', 's_waitcnt lgkmcnt(0)', 's_sub_u32 s89, s88, s86', 's_cmp_gt_i32 s89, 0', 's_cbranch_scc1 L_spin']
        L += self.stamp(5) + self.stamp_flush() + ['s_branch L_fin']
        pc_ = self.seq(L)
        if o.sent:
            L = ['L_chk:', 'v_mov_b32 v14, 0', 'v_mov_b32 v15, 0']
            for qq in range(14):
                L += [f'v_max3_u32 v14, v14, v{A0 + 8 * qq}, v{A0 + 8 * qq + 1}', f'v_max3_u32 v14, v14, v{A0 + 8 * qq + 2}, v{A0 + 8 * qq + 3}', f'v_max_u32 v15, v15, v{A0 + 8 * qq + 4}']
            L += [f's_cmp_eq_u32 s{S_T3}, 12', f's_cselect_b32 s{S_T0}, 0, -1', f'v_and_b32 v15, s{S_T0}, v15', 'v_max_u32 v14, v14, v15',
                  'v_cmp_eq_u32 vcc, -1, v14', 's_cbranch_vccnz L_again', 's_branch L_ok']
            self.chk = self.seq(L)
        pe = self.seq(['L_done:', 's_endpgm'])
        self.pub = pa + pb + pc_ + pe
        self.extra_traces = [pa + pc_ + pb + pc_] + ([pa + pb + pc_[:45] + self.chk + pb[7:] + pc_] if o.sent else [])
        return [tc, tl + self.pub]

    def pubsrd(self):
        return self.build_srd(SRD_WS, S_WS, 0x10000000) + self.build_srd(SRD_OUT, S_OUT, 8192) + self.build_srd(SRD_DBG, S_DBG, 256)

    def tables(self):
        OOB = 0x100000
        G = [[] for _ in range(11)]
        for l in range(64):
            half, i32, g, r, c = l >> 5, l & 31, l >> 4, (l >> 2) & 3, l & 3
            lin0 = g * 128 + r * XPP + c * 8
            G[0] += [lin0, lin0 + 512 if g < 3 else XOFF(27) + c * 8, (l >> 3) * 16, 0x3f803f80 if l < 32 else 0]
            G[1] += [(l & 7) * 16, 0xeeee if l & 1 else 0x4444, half * XPP + i32 * 4, IMG + half * 20 * IMGP + i32 * 4]
            tr = [IMG + cin16.IMGROW(cin16.LAB[g][2 * rp + (r >> 1)][r & 1]) * IMGP + c * 8 for rp in range(8)]
            G[2] += tr[:4]
            G[3] += tr[4:]
            row, col = 8 * half + r, (g & 1) * 32 + c * 8
            G[4] += [V3OFF + row * 64 + col, A1 + row * 1352 + col, A1 + min(row + 16, 25) * 1352 + col, A1 + min(row + 20, 25) * 1352 + col]
            t, gd, rr = (i32 >> 2) & 1, i32 >> 3, i32 & 3
            ig = 16 * t + 4 * rr + gd
            iq = 4 * rr + gd if t == 0 else 16 + ((4 * rr + gd + 4) & 15)
            pm = []
            for q in range(8):
                k0 = 16 * (q >> 2) + 8 * half + 2 * (q & 3)
                pm.append((0xffff if iq == k0 else 0xffff0000 if iq == k0 + 1 else 0) if iq < 26 else 0)
            G[5] += pm[:4]
            G[6] += pm[4:]
            ga = A2 + 52 * ig if ig < 26 else OOB
            rowp = ((l & 12) + 2 * (l & 1)) * 16 + (OOB if l & 2 else 0)
            G[7] += [ga + half * 8 * W2P, ga + half * OOB, rowp + half * 256 + (g & 1) * 8, rowp + g * 256]
            G[8] += [SG + i32 * 64 if i32 < 26 else V2S if i32 == 26 else OOB, 64 if i32 == 26 else 3328, (i32 >> 1) + 2 * half,
                     SQ + i32 * 64 + ((((i32 >> 1) & 3) ^ (2 * half)) << 4)]
            v2 = []
            for hf in range(2):
                j = 4 * g + 16 * hf + r
                v2.append(V2S + (j & 1) * 1664 + (j >> 1) * 64 + ((c ^ (((13 + j) & 3) * 2)) * 8) if j < 26 else SG + 676 * 64 + c * 8)
            wo = [L_WCO + 2 * (16 * tl_ + 4 * c + r) if 16 * tl_ + 4 * c + r < 26 else OOB for tl_ in range(2)]
            G[9] += v2 + wo
            G[10] += [L_WCO + 104 + 16 * half, L_WCO + 52 + 2 * l, V3OFF + 52 + 64 * l, SG + 676 * 64 + (l & 15) * 4]
        U = []
        for w in range(8):
            for e in range(16):
                for u in (w, w + 8, w + 16):
                    U += [SG + row * 64 + f * 8 for row, f in cin16.p2rows(u, e >> 2, e & 3)] if u < 22 else [0, 0]
        return [x for n in (4, 2, 3, 0, 5, 6, 7, 8, 9, 1, 10) for x in G[n]] + [0] * 256 + U + [0] * 256

    def cin(self):
        o = self.opt
        cw = S_CW
        vFa, vLin0, vLin1, vXi0, vXi1, vC16, vIDX, vXa, vIw, vPWL, vPXL, PXR, PFR = 1, 4, 5, 6, 7, 8, 9, 10, 11, 12, 13, 3, 14
        XI, vTR = 16, 20
        XR, P, Z, WF, D = 32, 60, 116, 164, 184
        vStg, vFR, vFw = vFa, 2, 59
        t3, t4, t5 = 29, 30, 31
        AV = [28, 58]
        PM = 216
        vA3, vBs0, vBs1a, vBs1b, vGa, vGb, vT3, vT3d = range(224, 232)
        G8, vV2r, vV2q, vWo, AD = 232, 236, 237, 238, 240
        WA = list(range(244, 250))
        vS, vMx = 250, 111
        UA, UX = 120, 126
        AFR = 112
        BALL, DALL = 60, 120
        S_F1, S_F2, S_G, S_LO, S_HI, S_CM, S_U0, S_U1, S_U2 = 74, 75, 95, 96, 97, 90, 98, 99, 100
        S_CG, S_IV = 0, 1
        OOB = 0x100000
        TA_, TB_, TC_ = SG + 35840, SQ + 26 * W2P, FRS + 2048
        GREG = [224, 20, 24, 4, 216, 220, 228, 232, 236, 8, 240]
        DPPS = (('row_shr:1', '0xf'), ('row_shr:2', '0xf'), ('row_shr:4', '0xf'), ('row_shr:8', '0xf'),
                ('row_bcast:15', '0xa'), ('row_bcast:31', '0xc'))

        K_W7, K_IMG, K_W2, K_W1, K_W12, K_H8, K_T3 = 44, 45, 46, 47, 92 - 10, 92 - 9, 101
        L = ['L_cin:', f'v_lshlrev_b32 v{vStg}, 4, v0', f's_and_b32 s{cw}, s{S_WAVE}, 3', f's_lshr_b32 s{S_GRP}, s{S_WAVE}, 2', f's_lshl_b32 s{S_STG}, s{cw}, 10',
             f's_mul_i32 s{S_MB}, s{S_T0}, 11', f's_add_u32 s{S_MB}, s{S_MB}, s{S_T1}', f's_sub_u32 s{S_MB}, s{S_MB}, 22',
             f's_cmp_eq_u32 s{S_MB}, 86', 's_cbranch_scc1 L_end', f's_cmp_eq_u32 s{S_GRP}, 0', 's_cbranch_scc1 L_sc']
        c0 = self.seq(L)
        L = ['s_setprio 2', f'v_add_u32 v2, L_tables-L_pc+4096, v{vStg}', f'v_mov_b32 v3, s{S_MASK + 1}',
             f'v_add_co_u32 v2, vcc, s{S_MASK}, v2', 'v_addc_co_u32 v3, vcc, 0, v3, vcc',
             f'v_add_co_u32 v{XR}, vcc, s{S_STG}, v2', f'v_addc_co_u32 v{XR + 1}, vcc, 0, v3, vcc',
             f'global_load_dwordx4 {vr(GREG[0], 4)}, v[2:3], off offset:-4096',
             'v_add_co_u32 v2, vcc, 0x1800, v2', 'v_addc_co_u32 v3, vcc, 0, v3, vcc', f'global_load_dwordx4 {vr(GREG[10], 4)}, v[2:3], off',
             f's_cmp_lt_u32 s{cw}, 3', f's_mov_b32 s{S_T2}, {TB_ - 3072}', f's_cselect_b32 s{S_T2}, {TA_ + 4096}, s{S_T2}']
        tdma = lambda off: I(f'global_load_lds_dwordx4 {vr(XR, 2)}, off offset:{off}', tag='TAB')
        L += [f's_add_u32 m0, s{S_STG}, {TA_ + 4096}', tdma(-4096), f's_add_u32 m0, s{S_STG}, s{S_T2}', tdma(0),
              f'v_add_co_u32 v{XR}, vcc, 0x2000, v{XR}', f'v_addc_co_u32 v{XR + 1}, vcc, 0, v{XR + 1}, vcc',
              f's_add_u32 m0, s{S_STG}, {TC_}', tdma(0), f's_add_u32 m0, s{S_STG}, {TB_ + 1024 + 4096}', f's_cmp_ge_u32 s{cw}, 2', 's_cbranch_scc1 L_sc']
        g1s = self.seq(L)
        L = [tdma(-4096)]
        g1t = self.seq(L)
        L = ['L_sc:', f's_mul_i32 s{S_RC}, s{S_GRP}, 20', f's_add_u32 s{S_RC}, s{S_RC}, s{S_WAVE}',
             f's_mul_i32 s{S_SAMP}, s{S_MB}, 48', f's_add_u32 s{S_SAMP}, s{S_SAMP}, s{S_RC}', f's_mul_i32 s{S_SAMP}, s{S_SAMP}, 104',
             f'v_lshrrev_b32 v{t4}, 3, v0', f'v_lshlrev_b32 v{t4}, 4, v{t4}', f'v_and_b32 v{t3}, 0x70, v{vStg}',
             f's_mul_i32 s{S_XM0}, s{S_WAVE}, {XBSZ}', f's_add_u32 s{S_XM0}, s{S_XM0}, {XB}', f's_cmp_eq_u32 s{S_GRP}, 0', 's_cbranch_scc1 L_g0']
        csc = self.seq(L)
        SC2 = [f's_lshl_b32 s{S_RC}, s{S_RC}, 2', f's_add_u32 s{S_RC}, s{S_RC}, {RC}',
               f's_mul_i32 s{S_LOOP}, s{S_GRP}, 3', f's_sub_u32 s{S_LOOP}, 4, s{S_LOOP}', (f's_cmp_eq_u32 s{S_MB}, 85', f's_cselect_b32 s{S_LOOP}, s{S_LOOP}, 6'),
               f's_lshl_b32 s{K_W7}, s{S_WAVE}, 7', f's_mul_i32 s{K_IMG}, s{S_WAVE}, {IMGSZ}', f's_lshl_b32 s{K_W2}, s{S_WAVE}, 2', f's_lshl_b32 s{K_W1}, s{S_WAVE}, 1',
               f's_lshl_b32 s{K_W12}, s{S_WAVE}, 12',
               f's_and_b32 s{S_U0}, s{S_WAVE}, 1', f's_lshr_b32 s{S_U1}, s{S_WAVE}, 1',
               f's_mul_i32 s{S_T0}, s{S_U1}, 3072', f's_lshl_b32 s{K_H8}, s{S_U0}, 3', f's_add_u32 s{S_T0}, s{S_T0}, s{K_H8}', f'v_add_u32 v{vFw}, s{S_T0}, v{vStg}',
               f's_lshl_b32 s{S_T1}, s{S_U1}, 3', f's_lshr_b32 s{S_T1}, 0x05030200, s{S_T1}', f's_and_b32 s{S_T1}, s{S_T1}, 0xff',
               f's_lshl_b32 s{S_T1}, s{S_T1}, 9', f's_lshl_b32 s{S_T2}, s{S_U0}, 2', f's_add_u32 s{K_T3}, s{S_T1}, s{S_T2}',
               f's_mov_b32 s{S_U1}, 0x05040100', f's_mov_b32 s{S_U2}, 0x07060302',
               f'v_mov_b32 v{vFR}, {L_FLG}', 'v_mov_b32 v109, 0', 'v_mov_b32 v108, 0'] + [f'v_mov_b64 {vr(r, 2)}, 0' for r in range(XR, XR + 26, 2)]
        XJ = 104
        assert not (o.pfx or o.pfw)

        def pfw():
            return [f'buffer_load_dword v{PFR}, v{vPWL}, {srd(SRD_W)}, s{S_PW} offen',
                    f's_add_u32 s{S_PW}, s{S_PW}, {o.pfne * 688 * 128}']

        def pfx_a():
            return [f'buffer_load_dword v{PXR}, v{vPXL}, {srd(SRD_IDX)}, s{S_PX} offen',
                    f's_cmp_eq_u32 s{S_PX}, s{S_PXE}', f's_cselect_b32 s{S_PXE}, 0x7000000, s{S_PXE}',
                    f's_cselect_b32 s{S_PX}, 0x7000000, s{S_PX}',
                    f's_add_u32 s{S_PX}, s{S_PX}, 24', f's_min_u32 s{S_PX}, s{S_PX}, s{S_PXE}']

        def pfx_b():
            return [f'v_lshlrev_b32 v{PXR}, 7, v{PXR}', f'buffer_load_dword v{PFR + 1}, v{PXR}, {srd(SRD_TAB)}, 0 offen']

        def xidx(XI=XI, vXi0=vXi0):
            return [f'buffer_load_dwordx4 {vr(XI, 4)}, v{vXi0}, {srd(SRD_IDX)}, s{S_SAMP} offen', f's_add_u32 s{S_SAMP}, s{S_SAMP}, {4 * 104}']

        def xdma(XI=XI, off=0, tag='XB', vC16=vC16):
            c = [f'v_lshl_add_u32 v{XI + u}, v{XI + u}, 7, v{vC16}' for u in range(4)]
            for u in range(4):
                c += [f's_add_u32 m0, s{S_XM0}, {u * XPP + off}']
                if u % 2 == 0:
                    c.append(f's_mov_b32 exec_hi, {0xffffff if u == 0 else 0xffff:#x}')
                c.append(I(f'buffer_load_dwordx4 v{XI + u}, {srd(SRD_TAB)}, 0 offen lds', tag=tag))
            return c + ['s_mov_b32 exec_hi, -1']

        def stage(dst, goff, tag):
            st = []
            for m in range(9):
                st.append((f's_add_u32 m0, s{S_STG}, {dst + m * 4096}', f's_add_u32 s{S_TW}, s{S_STG}, {goff + m * 4096}',
                           I(f'buffer_load_dwordx4 v{vStg}, {srd(SRD_CIN)}, s{S_TW} offen lds', tag=tag)))
            return st

        def pubmax(regs_offs):
            c = []
            for (ctl, rm) in DPPS:
                for r, _ in regs_offs:
                    c.append(f'v_max_u32_dpp v{r}, v{r}, v{r} {ctl} row_mask:{rm} bank_mask:0xf')
            c += ['s_mov_b32 exec_lo, 0', 's_mov_b32 exec_hi, 0x80000000']
            c += [f'ds_max_u32 v{vFR}, v{r} offset:{16 + 4 * k}' for r, k in regs_offs]
            return c + ['s_mov_b64 exec, -1']

        def mxop(src, n, mx, first):
            return [f'v_mfma_f32_16x16x32_bf16 {vr(mx, 4)}, {vr(src + r, 4)}, {vr(src + r, 4)}, {"0" if first and r == 0 else vr(mx, 4)}' for r in range(0, n, 4)]

        def mxfin(mx):
            return [f'v_max3_f32 v{mx}, v{mx}, v{mx + 1}, 0', f'v_max3_f32 v{mx}, v{mx}, v{mx + 2}, v{mx + 3}']

        def bread(m, off):
            b = BALL + m * 8
            return [f'ds_read_b64_tr_b16 {vr(b, 2)}, v{vBs0} offset:{off}',
                    f'ds_read_b64_tr_b16 {vr(b + 2, 2)}, v{vBs0} offset:{off + 4 * 1352}',
                    f'ds_read_b64_tr_b16 {vr(b + 4, 2)}, v{vBs1a} offset:{off}',
                    f'ds_read_b64_tr_b16 {vr(b + 6, 2)}, v{vBs1b} offset:{off}']

        def mm2(d, a, b):
            return [f'v_mfma_f32_32x32x16_bf16 {vr(d, 16)}, {vr(a, 4)}, {vr(b, 4)}, 0',
                    f'v_mfma_f32_32x32x16_bf16 {vr(d, 16)}, {vr(a + 4, 4)}, {vr(b + 4, 4)}, {vr(d, 16)}']

        tA, tB = 14, 15
        trd = lambda n: f'ds_read_b128 {vr(GREG[n], 4)}, v{tA if n < 7 else tB} offset:{(n if n < 7 else n - 7) * 1024}'
        vbs = [f'v_add_u32 v{r}, s{K_W7}, v{r}' for r in (vBs0, vBs1a, vBs1b)]

        def FX(g):
            R = [trd(n) for n in ((0,) if g == 0 else ()) + (6, 7, 3, 9, 1, 2, 4, 5, 8)]
            F = vbs + [f'v_add_u32 v{r}, s{K_W2}, v{r}' for r in (vGa, vGb)]
            F += [f'v_add_u32 v{vT3d}, s{K_H8}, v{vT3d}', f'v_add_u32 v{vT3}, s{K_T3}, v{vT3}']
            F += [f'v_mad_u32_u24 v{G8}, v{G8 + 1}, s{S_WAVE}, v{G8}', f'v_add_u32 v{G8 + 2}, s{K_W1}, v{G8 + 2}',
                  f'v_mad_u32_u24 v{G8 + 1}, v{G8 + 1}, 8, v{G8}', f'v_add_u32 v{WA[2]}, s{K_W12}, v{G8 + 3}', f'v_add_u32 v{WA[3]}, 2048, v{WA[2]}']
            for n_, (wa, bs) in enumerate(((WA[0], G8), (WA[1], G8), (WA[4], G8 + 1), (WA[5], G8 + 1))):
                F += [f'v_add_u32 v{t5}, {n_ & 1}, v{G8 + 2}', f'v_and_b32 v{t5}, 3, v{t5}', f'v_lshl_add_u32 v{wa}, v{t5}, 4, v{bs}']
                if n_ & 1:
                    F.append(f'v_add_u32 v{wa}, 1664, v{wa}')
            F += [f'v_add_u32 v{r}, s{S_XM0}, v{r}' for r in (vXa, vLin0, vLin1)] + [f'ds_write_b32 v{vXa}, v{vXi1} offset:{XOFF(26)}']
            F += [f'v_add_u32 v{r}, s{K_IMG}, v{r}' for r in [vIw] + list(range(vTR, vTR + 8))]
            return R, F
        SC2 += [f'v_add_u32 v{tA}, {TA_}, v{vStg}', f'v_add_u32 v{tB}, {TB_}, v{vStg}', f'v_lshrrev_b32 v3, 5, v0', f'v_lshl_add_u32 v3, v3, 2, v{vFR}']

        def pub2(r1, r2, off):
            c = [f'v_permlane32_swap_b32 v{r1}, v{r2}', f'v_max_u32 v{r1}, v{r1}, v{r2}']
            c += [f'v_max_u32_dpp v{r1}, v{r1}, v{r1} {ctl} row_mask:{rm} bank_mask:0xf' for ctl, rm in DPPS[:5]]
            return c + ['s_mov_b32 exec_lo, 0x80000000', 's_mov_b32 exec_hi, 0x80000000', f'ds_max_u32 v3, v{r1} offset:{16 + off}', 's_mov_b64 exec, -1']
        AV = [28, 58, 111]
        L = ['s_waitcnt lgkmcnt(0)'] + self.build_srd(SRD_WCO, S_WCO, 156) + [f's_mov_b32 m0, {L_WCO}', 's_mov_b64 exec, 0x7ff',
             I(f'buffer_load_dwordx4 v{vStg}, {srd(SRD_WCO)}, 0 offen lds', tag='WCO'), 's_mov_b64 exec, -1'] + self.stamp0() + SC2
        L += self.build_srd(SRD_IDX, S_IDX, 4096 * 104) + self.build_srd(SRD_TAB, S_TAB, 100000 * 128)
        L += [f'ds_write_b128 v{vFR}, {vr(XR, 4)} offset:16', f's_lshl_b32 s{S_T0}, s{cw}, 6', f'v_add_u32 v{t3}, s{S_T0}, v0']
        for p_ in range(3):
            L += [f'v_mul_u32_u24 v{t4}, 2521, v{t3}', f'v_lshrrev_b32 v{t4}, 16, v{t4}', f'v_mul_u32_u24 v{t4}, 12, v{t4}', f'v_lshl_add_u32 v{AV[p_]}, v{t3}, 1, v{t4}']
            L += [f'v_add_u32 v{t3}, 256, v{t3}'] if p_ < 2 else [f'v_cmp_gt_u32 vcc, 676, v{t3}', f's_mov_b64 s[{S_MASK}:{S_MASK + 1}], vcc']
        L += [f'v_lshlrev_b32 v{t3}, 3, v0', 's_mov_b32 exec_hi, 0xffff', f'ds_write_b64 v{t3}, {vr(XR, 2)} offset:{V3OFF + 26 * 64}', 's_mov_b32 exec_hi, -1',
              f'ds_write_b32 v{AD + 3}, v{XR}', f'ds_write_b32 v{AD + 3}, v{XR} offset:{SSZ}', WaitTag(vm_tags=['WCO'])]
        assert V3OFF == 0
        for s2 in range(2):
            for rd in range(2):
                L.append(f'ds_read_b64 {vr(AFR + 4 * s2 + 2 * rd, 2)}, v{AD} offset:{s2 * 32 + rd * 8}')
        L += [f'ds_read_u16 v110, v{AD + 1}',
              's_mov_b64 exec, 0x3ffffff', f'ds_write_b16 v{AD + 2}, v110', 'v_lshlrev_b32 v109, 17, v110', 'v_lshrrev_b32 v109, 1, v109', 's_mov_b64 exec, -1']
        if o.cwalk:
            L += ['s_mov_b64 exec, 0'] + [x for q_ in range(3) for x in (f's_cmp_eq_u32 s{cw}, {q_}', f's_cbranch_scc1 L_WENTRY{q_}')] + ['s_branch L_WENTRY3', 'L_wret:', 's_mov_b64 exec, -1']
        L += (FX(1)[1] if o.dirt else vbs) + [WaitTag(vm_tags=['TAB'], lgkm0=True)] + self.probe('tab')
        v3p = []
        L += ['s_barrier'] + self.stamp(2) + self.probe('b0')
        vb = lambda m: A3 - A1 - 512 + (m >> 1) * 512 + (m & 1) * 64
        for m in range(3):
            L += bread(m, vb(m))
        for m in range(6):
            if m + 3 < 6:
                L += bread(m + 3, vb(m + 3))
            L += mm2(DALL + m * 16, AFR, BALL + m * 8)
            if m == 3 and not o.dirt:
                L += FX(1)[0]
        if not o.dirt:
            L += FX(1)[1][3:]
        for p_ in range(3):
            L += ['s_mov_b32 exec_lo, 0', f'v_mov_b32 v{DALL + 32 * p_}, v{DALL + 32 * p_ + 16}', 's_mov_b32 exec_lo, -1',
                  f'v_cvt_pk_bf16_f32 v{BALL + p_}, 0, v{DALL + 32 * p_}']
            if p_ == 2:
                L += [f's_mov_b64 exec, s[{S_MASK}:{S_MASK + 1}]']
            L += [f'ds_write_b16_d16_hi v{AV[p_]}, v{BALL + p_}', f'v_max_f32 v108, |v{BALL + p_}|, v108']
        L += ['s_mov_b64 exec, -1'] + pub2(108, 109, 8) + self.stamp(13) + [f's_setprio {o.g1p}'] + ([] if o.mrg else ['s_barrier']) + ['s_branch L_w2']
        v3 = self.seq(L)

        def stage3(dst, goff, tag, lab, mid=None, fill=()):
            st = stage(dst, goff, tag)
            a_ = st[:8] if mid is None else st[:mid[0]] + [tuple(mid[1])] + st[mid[0]:8]
            return (self.seq(interleave(a_, list(fill)) + [f's_cmp_eq_u32 s{cw}, 3', f's_cbranch_scc1 {lab}']), self.seq([st[8]]), self.seq([f'{lab}:']))
        g0 = [self.seq(['L_g0:', 's_waitcnt lgkmcnt(0)'] + self.build_srd(SRD_CIN, S_CIN, 105456))]
        g0.append(stage3(A3, 70304, 'W3', 'L_st3'))
        g0.append(self.seq(self.stamp0() + self.build_srd(SRD_IDX, S_IDX, 4096 * 104) + xidx(XI, t4) + xidx(XJ, t4) + self.build_srd(SRD_TAB, S_TAB, 100000 * 128)))
        def w2grp(n):
            c = []
            for k, go in enumerate((0, 1024, 1864)):
                c.append((f's_add_u32 m0, s{S_STG9}, {A2 + n * 4 * 3072 + k * 1024}', f's_add_u32 s{S_TW}, s{S_TGT}, {35152 + n * 4 * 2704 + go}',
                          I(f'buffer_load_dwordx4 v{t5 if k == 1 else vStg}, {srd(SRD_CIN)}, s{S_TW} offen lds', tag='W2')))
            return c
        g0.append((self.seq([f's_mul_i32 s{S_STG9}, s{cw}, 3072', f's_mul_i32 s{S_TGT}, s{cw}, 2704', f'v_lshrrev_b32 v{t5}, 5, v0', f'v_mul_u32_u24 v{t5}, 184, v{t5}',
                             f'v_sub_u32 v{t5}, v{vStg}, v{t5}'] + interleave(w2grp(0) + w2grp(1) + w2grp(2), SC2) + [f's_cmp_lg_u32 s{cw}, 0', 's_cbranch_scc1 L_st2']),
                   self.seq(w2grp(3)), self.seq(['L_st2:']), 1))
        xx = xdma(vC16=t3, tag='XBa') + xdma(XJ, 4 * XBSZ, vC16=t3)
        g0.append(stage3(A1, 0, 'W1', 'L_st1', (o.sigat, [WaitTag(vm_tags=['W2' if o.mrg else 'W3']), 's_barrier'] + self.stamp(2) + FX(0)[0])))
        g0.append(self.seq(xx + FX(0)[1] + self.stamp(13) + ([] if o.mrg else [WaitTag(vm_tags=['W2']), 's_barrier'])))

        def G0(w):
            r = []
            for x in g0:
                r += x if isinstance(x, list) else x[0] + (x[1] if w < (3 if len(x) == 3 else x[3]) else []) + x[2]
            return r

        def gather(dst, off):
            c = [f'v_add_u32 v{r}, {off}, v{r}' for r in (vGa, vGb)] if off else []
            for s2 in range(2):
                for e in range(0, 8, 2):
                    base = vGb if (s2 == 1 and e >= 2) else vGa
                    h = 16 * s2 + e
                    c.append(f'ds_read2st64_b32 {vr(dst + 8 * s2 + e, 2)}, v{base} offset0:{6 * h} offset1:{6 * h + 6}')
            return c

        def perms(g_, aj):
            return [f'v_perm_b32 v{aj + 8 * jj + r}, v{g_ + 2 * r + 1}, v{g_ + 2 * r}, s{S_U1 + jj}' for jj in range(2) for r in range(8)]

        def sout(t):
            d, c_ = DALL + 16 * t, DALL + 16 * t
            c = [f'v_cvt_pk_f16_f32 v{c_ + r}, v{d + 2 * r}, v{d + 2 * r + 1}' for r in range(8)]
            return c[:4] + [f'ds_write_b128 v{WA[t]}, {vr(c_, 4)}', f'v_xor_b32 v{WA[t]}, 16, v{WA[t]}'] + c[4:] + [f'ds_write_b128 v{WA[t]}, {vr(c_ + 4, 4)}']
        M1, M2 = 28, 28

        def pub1(r, off):
            c = [f'v_max_u32_dpp v{r}, v{r}, v{r} {ctl} row_mask:{rm} bank_mask:0xf' for ctl, rm in DPPS]
            return c + [('s_mov_b32 exec_lo, 0', 's_mov_b32 exec_hi, 0x80000000', f'ds_max_u32 v{vFR}, v{r} offset:{16 + off}', 's_mov_b64 exec, -1')]
        L = ['L_w2:'] + self.stamp(14) + self.probe('bw2') + gather(BALL, 0) + [f's_cmp_ge_u32 s{S_WAVE}, 5', 's_cbranch_scc1 L_u0']
        cc = self.seq(L)
        b1u = self.seq(gather(BALL + 32, 32) + mxop(BALL, 16, M2, True) + perms(BALL, DALL + 32) + mxop(BALL + 32, 16, M2, False)
                       + perms(BALL + 32, DALL + 48)[:4] + interleave(mxfin(M2) + pub1(M2, 4), perms(BALL + 32, DALL + 48)[4:]) + ['s_branch L_u1'])
        L = ['L_u0:'] + mxop(BALL, 16, M2, True) + perms(BALL, DALL + 32)[:4] + interleave(mxfin(M2) + pub1(M2, 4), perms(BALL, DALL + 32)[4:])
        L += [f'v_add_u32 v{WA[4]}, {192 * 64}, v{WA[2]}', f'v_add_u32 v{WA[5]}, {192 * 64}, v{WA[3]}',
              f's_cmp_lg_u32 s{S_WAVE}, 7', 's_cbranch_scc1 L_u1', 's_mov_b32 exec_lo, 0xfffffff0', 's_mov_b32 exec_hi, 0xfffffff0', f'v_mov_b32 v{WA[5]}, {OOB}', 's_mov_b64 exec, -1']
        b1q = self.seq(L)
        MXR = 108
        vM = 58

        def ureads(j):
            return [f'ds_read_u16_d16_hi v{XR + 2 * j}, v{vXa} offset:{XOFF(2 * j)}',
                    f'ds_read_u16_d16_hi v{XR + 2 * j + 1}, v{vXa} offset:{XOFF(2 * j) + 2}']
        mx3 = lambda j: f'v_max3_f32 v{vM}, |v{XR + 2 * j}|, |v{XR + 2 * j + 1}|, {"0" if j == 0 else f"v{vM}"}'
        L = ['L_u1:'] + self.stamp(1) + [WaitTag(vm_tags=['W1'], lgkm0=True), 's_barrier'] + self.stamp(7) + self.probe('b1')
        L += [f'ds_read_b128 {vr(MXR, 4)}, v{vFR} offset:16']
        for s2 in range(2):
            for rd in range(2):
                L.append(f'ds_read_b64_tr_b16 {vr(AFR + 4 * s2 + 2 * rd, 2)}, v{vA3} offset:{s2 * 1024 + rd * 256}')
        sc = [f'v_add_u32 v{MXR + 1}, {127 << 23:#x}, v{MXR + 1}', f'v_lshrrev_b32 v{MXR + 1}, 24, v{MXR + 1}', f'v_lshrrev_b32 v{MXR + 2}, 23, v{MXR + 2}', f'v_lshrrev_b32 v{MXR + 3}, 23, v{MXR + 3}',
              's_mov_b32 vcc_lo, 0x4000000', 's_mov_b32 vcc_hi, 0x4000000', f'v_cndmask_b32 v{vS}, v{MXR + 2}, v{MXR + 3}, vcc',
              f'v_add_u32 v{vS}, v{vS}, v{MXR + 1}', f'v_sub_u32 v{vS}, 388, v{vS}', f's_movk_i32 s{S_U0}, 167', f'v_med3_i32 v{vS}, v{vS}, 1, s{S_U0}',
              f'v_subrev_u32 v{MXR + 2}, 127, v{vS}', f'v_lshlrev_b32 v{vS}, 23, v{vS}', f'v_cmp_gt_i32 vcc, 0, v{MXR + 2}',
              f'v_mul_u32_u24 v{MXR + 2}, 0x800080, v{MXR + 2}']
        L += bread(2, 0) + bread(3, 64) + sc + ['s_cbranch_vccnz L_sdown']
        L += [f'v_add_u32 v{AFR + r}, v{AFR + r}, v{MXR + 2}' for r in range(8)]
        u1a = self.seq(L)
        u1 = self.seq(['L_scaled:', f's_cmp_ge_u32 s{S_WAVE}, 5', 's_cbranch_scc1 L_u2'])
        mU0 = lambda: mm2(DALL, DALL + 32, AFR) + mm2(DALL + 16, DALL + 40, AFR)
        bq = lambda n, mid: [f's_waitcnt lgkmcnt({n})', 's_barrier'] + self.stamp(6) + [f'ds_read_b32 v{MXR}, v{vFR} offset:16'] + mid + [
            f'v_add_u32 v{MXR}, {127 << 23:#x}, v{MXR}', f'v_lshrrev_b32 v{MXR}, 24, v{MXR}', f'v_sub_u32 v{MXR}, 267, v{MXR}', f'v_min_u32 v{MXR}, 167, v{MXR}',
            f'v_readfirstlane_b32 s{S_F1}, v{MXR}', f'v_mul_u32_u24 v{MXR}, 0x800080, v{MXR}'] + [f'v_and_b32 v{PM + r}, v{PM + r}, v{MXR}' for r in range(8)]
        mQ = lambda: mm2(DALL + 32, PM, BALL + 16) + mm2(DALL + 48, PM, BALL + 24)
        mU2 = mm2(DALL + 64, DALL + 48, AFR) + mm2(DALL + 80, DALL + 56, AFR)
        pb = lambda: mxfin(M1) + pub1(M1, 0)
        u2u = self.seq(mU0()[:2] + mxop(BALL + 16, 16, M1, True) + interleave(mU0()[2:], sout(0)) + interleave(mU2, interleave(pb(), sout(1)[:10])) + [sout(1)[10]]
                       + bq(1, sout(4)) + interleave(mQ(), sout(5)) + ['s_branch L_u3'])
        u2q = self.seq(['L_u2:'] + bread(4, 384) + bread(5, 384 + 64) + mU0() + interleave(mxop(BALL + 16, 32, M1, True), sout(0)) + interleave(pb(), sout(1)[:10]) + [sout(1)[10]]
                       + bq(1, []) + mm2(DALL + 64, PM, BALL + 32) + mm2(DALL + 80, PM, BALL + 40) + interleave(mQ(), sout(4) + sout(5)))
        L = ['L_u3:'] + sout(2) + sout(3)
        L += [f'v_readlane_b32 s{S_CG}, v{vS}, 0', f'v_readlane_b32 s{S_IV}, v{vS}, 26',
              f's_sub_u32 s{S_F2}, {254 << 23:#x}, s{S_CG}', f's_sub_u32 s{S_IV}, {254 << 23:#x}, s{S_IV}',
              f's_sub_u32 s{S_F1}, 254, s{S_F1}', f's_lshl_b32 s{S_F1}, s{S_F1}, 23',
              f's_mov_b32 s{S_MASK}, 0x88888888', f's_mov_b32 s{S_MASK + 1}, 0x88888888']
        L += [f's_mul_i32 s{S_T0}, s{S_WAVE}, 384', f'v_lshrrev_b32 v{t3}, 2, v0', f'v_mul_u32_u24 v{t3}, 24, v{t3}', f'v_add_u32 v{t3}, s{S_T0}, v{t3}',
              f'v_and_b32 v{t4}, 3, v0', f'v_lshlrev_b32 v{t4}, 3, v{t4}']
        L += [f'ds_read_b64 {vr(UA + 2 * n_, 2)}, v{t3} offset:{TC_ + 8 * n_}' for n_ in range(3)]
        L += xidx() + xidx(PM) + (pfx_b() + pfx_a() if o.pf1 and o.pfx else [])
        L += [x for n_ in range(6) for x in (f'v_xor_b32 v{UA + n_}, v{UA + n_}, v{t4}', f'v_xor_b32 v{UX + n_}, 32, v{UA + n_}')]

        def sigma(s_):
            t = (s_ - 1) // 2
            first = (s_ - 1) % 2 == 0
            return (0 if first else 1) if t % 2 == 0 else (1 if first else 0)
        for s_ in range(1, 11):
            assert ((s_ - 1) // 2) * 1024 + sigma(s_) * 512 - (s_ // 4) * 2048 == (-1024, 0, 512, 1536)[s_ % 4]

        def p2read(n_):
            b = BALL + 16 * n_
            c = []
            for x, (ar, off) in enumerate(((UA, 0), (UX, 0), (UA, SSZ), (UX, SSZ))):
                for y in range(2):
                    c.append(f'ds_read_b64_tr_b16 {vr(b + 4 * x + 2 * y, 2)}, v{ar + 2 * n_ + y} offset:{off}')
            return c

        def p2a(n_):
            b = BALL + 16 * n_
            c = []
            for x in range(4):
                c += [f'v_pk_add_f16 v{b + 4 * x + y}, v{b + 4 * x + y}, v{b + 4 * x + 2 + y}' for y in range(2)]
                if x in (0, 2):
                    c.append(f'ds_write_b64 v{vFw}, {vr(b + 4 * x, 2)} offset:{FR + n_ * 4 * 3072 + x * 1024}')
            c += [f'v_cndmask_b32 v{b + 4 + y}, v{b + 4 + y}, v{b + 12 + y}, s[{S_MASK}:{S_MASK + 1}]' for y in range(2)]
            c.append(f'ds_write_b64 v{vFw}, {vr(b + 4, 2)} offset:{FR + n_ * 4 * 3072 + 1024}')
            return c

        def p2s(n_):
            b = BALL + 16 * n_ + 12
            off = FRS + max(n_ * 2048 - 1024, 0)
            return ([f'v_subrev_u32 v{vT3}, 1024, v{vT3}'] if n_ == 0 else []) + [
                f'ds_write_b32 v{vT3}, v{b} offset:{off}', f'ds_write_b32 v{vT3}, v{b + 1} offset:{off + 16}']
        ec = []
        if o.econv:
            L += [f's_cmp_lg_u32 s{S_GRP}, 0', 's_cbranch_scc1 L_noec']
            u3 = self.seq(L)
            ec = self.seq([WaitTag(vm_tags=['XBa'])] + [x for j in range(13) for x in ureads(j)])
            L = ['L_noec:']
        else:
            u3 = []
        L += [WaitTag(lgkm0=True), 's_barrier'] + self.stamp(10)
        L += p2read(0) + p2read(1) + [f's_cmp_ge_u32 s{S_WAVE}, 6', 's_cbranch_scc1 L_lin']
        b2 = self.seq(L)
        p2c = self.seq(p2read(2) + p2a(2) + p2s(2) + ['s_branch L_p2'])
        LB = BALL + 32
        ZR4 = t5
        L = ['L_lin:', f's_and_b32 s{S_U0}, s{S_WAVE}, 1', f's_cselect_b64 vcc, -1, 0', f's_lshl_b32 s{S_U1}, s{S_U0}, 5', f'v_mov_b32 v{ZR4}, 0',
             f'v_xor_b32 v{vV2r}, s{S_U1}, v{vV2r}', f'v_xor_b32 v{vV2q}, s{S_U1}, v{vV2q}', f'v_cndmask_b32 v{vWo}, v{vWo}, v{vWo + 1}, vcc',
             f'ds_read_b64_tr_b16 {vr(LB, 2)}, v{vV2r}', f'ds_read_b64_tr_b16 {vr(LB + 2, 2)}, v{vV2q}',
             f'ds_read_u16_d16_hi v{ZR4}, v{vWo}',
             f's_lshl_b32 s{S_U0}, s{S_U0}, 10', f'v_add_u32 v{t3}, s{S_U0}, v{vStg}']
        for r in range(4):
            a_, b_ = LB + 4 + 2 * r, LB + 5 + 2 * r
            L += [f'v_cvt_f32_f16 v{a_}, v{LB + r}', f'v_cvt_f32_f16_sdwa v{b_}, v{LB + r} dst_sel:DWORD dst_unused:UNUSED_PAD src0_sel:WORD_1',
                  f'v_mul_f32 v{a_}, s{S_IV}, v{a_}', f'v_mul_f32 v{b_}, s{S_IV}, v{b_}']
            if r == 3:
                L += ['s_mov_b32 exec_lo, 0', 's_mov_b32 exec_hi, 0xffff', f'v_mov_b32 v{a_}, v{ZR4}', 's_mov_b64 exec, -1']
            L += [f'v_mul_f32 v{a_}, s{S_CG}, v{a_}', f'v_mul_f32 v{b_}, s{S_CG}, v{b_}', f'v_cvt_pk_bf16_f32 v{LB + r}, v{a_}, v{b_}']
        L += [f'ds_write_b128 v{t3}, {vr(LB, 4)} offset:{FRL}']
        lin = self.seq(L)
        p2 = self.seq(['L_p2:'] + p2a(1) + p2s(1) + p2a(0) + [f's_cmp_lt_u32 s{S_WAVE}, 2', 's_cbranch_scc1 L_p2d'])
        p2e = self.seq(p2s(0) + ['s_branch L_built'])
        p2d = self.seq(['L_p2d:', f'ds_write_b64 v{vT3d}, {vr(BALL + 12, 2)} offset:{FRS + 5 * 1024}'])

        L = ['L_sdown:']
        for r in range(8):
            L += [f'v_lshlrev_b32 v{MXR}, 16, v{AFR + r}', f'v_and_b32 v{MXR + 1}, 0xffff0000, v{AFR + r}',
                  f'v_mul_f32 v{MXR}, v{MXR}, v{vS}', f'v_mul_f32 v{MXR + 1}, v{MXR + 1}, v{vS}', f'v_cvt_pk_bf16_f32 v{AFR + r}, v{MXR}, v{MXR + 1}']
        self.sdown = L + ['s_branch L_scaled']

        def PRE(w, sd=None):
            grp = w >> 2
            return (c0 + (g1s + (g1t if w < 6 else []) if grp else []) + csc + (v3p + v3 if grp else G0(w)) + cc + (b1q if w >= 5 else b1u)
                    + (u1a if sd is None else u1a[:-8] + sd) + u1 + (u2q if w >= 5 else u2u) + u3 + ([] if grp else ec) + b2
                    + (lin if w >= 6 else p2c) + p2 + (p2d if w < 2 else p2e))
        L = ['L_built:'] + self.stamp(11)
        L += [f's_mov_b32 s{S_CG}, s{S_F1}', f's_mov_b32 s{S_IV}, s{S_F2}', f's_mov_b32 s{S_LO}, {f32hex(0.125)}', f's_mov_b32 s{S_HI}, {f32hex(0.0 if o.slow else 128.0)}']
        CV, vM, S_XD = 28, 58, 81

        def ureads(j):
            return [f'ds_read_u16_d16_hi v{XR + 2 * j}, v{vXa} offset:{XOFF(2 * j)}',
                    f'ds_read_u16_d16_hi v{XR + 2 * j + 1}, v{vXa} offset:{XOFF(2 * j) + 2}']
        mx3 = lambda j: f'v_max3_f32 v{vM}, |v{XR + 2 * j}|, |v{XR + 2 * j + 1}|, {"0" if j == 0 else f"v{vM}"}'
        cvt = lambda j: f'v_cvt_pk_f16_f32 v{CV + j % 4}, v{XR + 2 * j}, v{XR + 2 * j + 1}'
        iwr = lambda j: f'ds_write_b32 v{vIw}, v{CV + j % 4} offset:{j * IMGP}'
        S_SKIP = 51
        pfr = lambda: (pfx_b() + pfx_a() if o.pfx else []) + (pfw() if o.pfw else [])
        conv = lambda tag='XB': ([WaitTag(vm_tags=[tag])] + [x for j in range(13) for x in ureads(j)]
                        + [x for j in range(13) for x in (mx3(j), f'v_cvt_pk_f16_f32 v{D + j}, v{XR + 2 * j}, v{XR + 2 * j + 1}')])
        L += [f's_mov_b32 s{S_SKIP}, 1', f's_mul_i32 s{S_U0}, s{S_WAVE}, 1536', f's_add_u32 s{S_U0}, s{S_U0}, {PART}',
              f's_cmp_lg_u32 s{S_GRP}, 0', 's_cbranch_scc1 L_g1c']
        c2a = self.seq(L)
        c2g0 = self.seq([f's_sub_u32 s{S_SAMP}, s{S_SAMP}, {4 * 104}', Touch(vr(PM, 4))] + (conv('XBa')[27:] if o.econv else conv('XBa')) + [WaitTag(lgkm0=True), 's_barrier'] + self.stamp(8) + ['s_branch L_cin_go'])
        DX = XB2 - XB - 4 * XBSZ
        L = ['L_g1c:', WaitTag(vm_tags=['XB'], lgkm0=True), 's_barrier'] + self.stamp(8) + self.probe('b4')
        L += [f's_add_u32 s{S_XM0}, s{S_XM0}, {DX}'] + xdma(tag='XB0') + xdma(PM, 4 * XBSZ) + xidx() + pfr() + [f'v_add_u32 v{r}, {DX}, v{r}' for r in (vXa, vLin0, vLin1)]
        L += [f'ds_write_b32 v{vXa}, v{vXi1} offset:{XOFF(26)}', f'ds_write_b32 v{vXa}, v{vXi1} offset:{XOFF(26) + 4 * XBSZ}']
        c2g1 = self.seq(L)
        c2b = []
        c2g1d = self.seq(['L_g1d:'] + conv('XB0'))
        c2c = self.seq(['L_cin_go:'] + [f'ds_write_b32 v{vIw}, v{D + j} offset:{j * IMGP}' for j in range(13)]
                       + [f's_mov_b32 s{S_XD}, {4 * XBSZ}', f's_add_u32 s{S_XM0}, s{S_XM0}, {4 * XBSZ}',
                          f'v_lshlrev_b32 v{vXi1}, 2, v0', f'v_add_u32 v{vXi1}, s{S_U0}, v{vXi1}'])

        NWF = 5
        PF = o.cpfd
        zslot = lambda s_: 1 if s_ % 2 == 0 else (0 if ((s_ - 1) // 2) % 2 == 0 else 2)
        zr = lambda T, sl: Z + 12 * T + 4 * sl
        preg = lambda T, r: P + 14 * T + (r if r < 14 else r - 14)
        acc = lambda T, tile: D + 16 * T + 4 * tile
        jobs = [('l', 0, 0), ('l', 0, 1)]
        for s_ in range(11):
            jobs += [('d', s_, 2), ('d', s_, 0), ('d', s_, 1)]
            if s_ == 0:
                jobs.append(('d', 0, 3))
            elif s_ % 2 == 0:
                jobs.append(('s', s_, 3))
        NJ = len(jobs)
        assert NJ == 41

        def wread(n):
            kind, s_, tile = jobs[n]
            off = FRL + tile * 1024 if kind == 'l' else (FR + s_ * 3072 + tile * 1024 if tile < 3 else FRS + (5 if s_ == 0 else (s_ - 1) // 2) * 1024)
            return f'ds_read_b128 {vr(WF + 4 * (n % NWF), 4)}, v{vFa} offset:{off}'

        def mfma(n, T):
            kind, s_, tile = jobs[n]
            a = vr(WF + 4 * (n % NWF), 4)
            d = vr(acc(T, tile), 4)
            if kind == 'l':
                return f'v_mfma_f32_16x16x32_bf16 {d}, {a}, {vr(zr(T, 2), 4)}, 0'
            if kind == 's':
                lo = 0 if ((s_ - 1) // 2) % 2 == 0 else 1
                return f'v_smfmac_f32_16x16x64_f16 {d}, {a}, {vr(zr(T, lo), 8)}, v{vIDX}'
            return f'v_mfma_f32_16x16x32_f16 {d}, {a}, {vr(zr(T, zslot(s_)), 4)}, {"0" if (s_ == 0 and tile >= 2) else d}'

        def pk(T, n):
            a, b, s0, s1 = cin16.INS[n]
            return (f'v_pk_mul_f16 v{zr(T, zslot(n // 4)) + n % 4}, v{preg(T, a)}, v{preg(T, b)} '
                    f'op_sel:[{s0[0]},{s0[1]}] op_sel_hi:[{s1[0]},{s1[1]}]')

        def trp(T, rp):
            return f'ds_read_b64_tr_b16 {vr(preg(T, 2 * rp), 2)}, v{vTR + rp} offset:{32 * T}'

        LASTA = max(n for n, x in enumerate(cin16.INS) if x[0] < 2)
        S_A1, S_A2, S_PINC = 49, 50, 48
        fin = []
        for T in range(4):
            fin += [(acc(T, 0) + r, acc(T, 2) + r) for r in range(4)] + [(acc(T, 1), acc(T, 1) + 3)]
        for T in range(4):
            fin += [(acc(T, 1) + 1 + (r >> 1), acc(T, 3) + r) for r in range(4)]

        def final(f1, f2):
            c = []
            for k, (a, b) in enumerate(fin):
                d = Z + k % 4
                c.append(f'v_mul_f32 v{d}, v{a}, v{b}' if k < 4 else f'v_fmac_f32 v{d}, v{a}, v{b}')
            c += [f'v_add_f32 v{Z}, v{Z}, v{Z + 1}', f'v_add_f32 v{Z + 2}, v{Z + 2}, v{Z + 3}', f'v_add_f32 v{Z}, v{Z}, v{Z + 2}']
            c += [f'v_mul_f32 v{Z}, s{x}, v{Z}' for x in (f1, f2)]
            return c + [f'ds_write_b32 v{vXi1}, v{Z}']
        code = ['L_cin_loop:', f'v_cmp_le_f32 s[{S_CM}:{S_CM + 1}], s{S_HI}, v{vM}', f'v_cmp_le_f32 vcc, s{S_LO}, v{vM}',
                f's_mov_b32 s{S_A1}, s{S_F1}', f's_mov_b32 s{S_A2}, s{S_F2}',
                f's_cmp_lg_u64 s[{S_CM}:{S_CM + 1}], 0', 's_cbranch_scc1 L_cslow', 's_cbranch_vccz L_cslow']
        cA = self.seq(code)
        RD = []
        for rp in (0, 3, 4):
            RD += [trp(T, rp) for T in range(4)]
        for T in range(4):
            RD += [f'ds_read_b64_tr_b16 {vr(zr(T, 2), 2)}, v{vLin0} offset:{32 * T}', f'ds_read_b64_tr_b16 {vr(zr(T, 2) + 2, 2)}, v{vLin1} offset:{32 * T}']
        RD += [wread(k) for k in range(PF)]
        for rp in (5, 6, 1, 2):
            RD += [trp(T, rp) for T in range(4)]
        pfr = lambda: (pfx_b() + pfx_a() if o.pfx else []) + (pfw() if o.pfw else [])
        vm = xdma() + xidx() + pfr()
        VA = final(S_A1, S_A2) + [f'v_add_u32 v{vXi1}, 256, v{vXi1}']
        PK0 = [pk(T, n) for T in range(4) for n in range(4)]
        TG = [f'v_add_u32 v{r}, s{S_XD}, v{r}' for r in (vXa, vLin0, vLin1)] + [f's_sub_u32 s{S_XM0}, s{S_XM0}, s{S_XD}', f's_sub_u32 s{S_XD}, 0, s{S_XD}', f's_mov_b32 s{S_SKIP}, 0']
        cB0 = self.seq(['L_cconv:', f's_cmp_lg_u32 s{S_SKIP}, 0', 's_cbranch_scc1 L_first'])
        cVM = self.seq(interleave(RD, VA) + PK0 + vm)
        self.first = ['L_first:'] + RD[:28] + interleave(RD[28:], PK0) + ['s_branch L_novm']
        code = ['L_novm:'] + TG
        LA = 1
        def lstamp(base):
            if not (o.stamps and o.cst):
                return []
            return [f's_memtime s[{S_ST}:{S_ST + 1}]', f's_memrealtime s[{S_ST + 2}:{S_ST + 3}]', f's_sub_u32 s{S_C0}, {base + 6}, s{S_LOOP}', 's_waitcnt lgkmcnt(0)',
                    f's_mov_b32 m0, s{S_C0}', f'v_writelane_b32 v252, s{S_ST}, m0', f'v_writelane_b32 v253, s{S_ST + 2}, m0']
        code += lstamp(19)
        code += [Touch(vr(WF, 4)), Touch(vr(zr(3, 2), 4))] + (['s_setprio 2', 's_barrier'] if o.cbar else ['s_setprio 1'])
        MS = [(n, T) for n in range(NJ) for T in range(4)]
        first_use, last_use = {}, {}
        for mi, (n, T) in enumerate(MS):
            kind, s_, tile = jobs[n]
            if kind == 'l':
                last_use[(T, 'lin')] = mi
                continue
            for su in ([s_] if kind == 'd' else [s_ - 1, s_]):
                first_use.setdefault((T, su), mi)
                last_use[(T, su)] = mi
        V = []
        for s_ in range(LA, 11):
            prev = [p_ for p_ in range(s_) if zslot(p_) == zslot(s_)]
            for T in range(4):
                rdy = last_use[(T, prev[-1])] + o.war if prev else (last_use[(T, 'lin')] if zslot(s_) == 2 else -1)
                for n in range(4 * s_, 4 * s_ + 4):
                    V.append((pk(T, n), rdy, first_use[(T, s_)], n, T))
        forced = 0
        late = []
        XL_ = [x for j in range(13) for x in ureads(j)]
        xrd = {}
        CVR = [preg(T, r) for r in (2, 3, 6, 7) for T in range(4)]
        cvrdy = max(n for n, x in enumerate(cin16.INS) if set(x[:2]) & {2, 3, 6, 7})
        cvt2 = lambda j: f'v_cvt_pk_f16_f32 v{CVR[j]}, v{XR + 2 * j}, v{XR + 2 * j + 1}'
        iwr2 = lambda j: f'ds_write_b32 v{vIw}, v{CVR[j]} offset:{j * IMGP}'
        nm = nc = nw = 0
        V.sort(key=lambda x: x[2])
        prev2 = 0
        for mi, (n, T) in enumerate(MS):
            while V and V[0][2] <= mi:
                assert V[0][1] < mi
                code.append(V.pop(0)[0]); forced += 1
            code.append(mfma(n, T))
            t = 4
            if o.cbar and mi == len(MS) - 1 - o.cbov:
                code += ['s_setprio 3', 's_barrier']; t += 8
            if not o.cbar and mi == 4 * o.hiat - 2:
                code.append('s_setprio 2'); t += 4
            if T == 3 and n + 1 < NJ:
                code.append(Touch(vr(WF + 4 * ((n + 1) % NWF), 4))); t += 4
            if T == 0 and n + PF < NJ:
                code.append(wread(n + PF)); t += 8
            elif T in (1, 2) and late:
                code.append(late.pop(0)); t += 8
            elif T in (1, 2) and mi >= o.x0 and XL_:
                if len(XL_) == 26:
                    code.append(WaitTag(vm_tags=['XB']))
                code.append(XL_.pop(0)); t += 8
                if len(XL_) % 2 == 0:
                    xrd[12 - len(XL_) // 2] = mi
            elif not V and nw < nc and t == 4:
                code.append(iwr2(nw)); nw += 1; t += 12
            t = max(t, 12 if jobs[n][0] == 's' else 8)
            k = 0
            while t < 16:
                urgent = any(V[q_][2] - 1 - mi < q_ + 1 for q_ in range(min(24, len(V))))
                if k == 1 and prev2 >= o.max2 and not urgent:
                    break
                cand = [x for x in V[:32] if x[1] <= mi]
                extra = None
                if nm < 13 and nm in xrd and xrd[nm] + o.xlat <= mi:
                    extra = 'm'
                elif nc < nm and all(x[3] > cvrdy for x in V):
                    extra = 'c'
                if cand and (k == 0 or urgent or not extra) and (k == 0 or urgent or o.eager):
                    x = cand[0]
                    V.remove(x)
                    code.append(x[0])
                    if x[3] <= LASTA and all(y[3] > LASTA for y in V if y[4] == x[4]):
                        late.append(trp(x[4], 7))
                elif extra == 'm':
                    code.append(mx3(nm)); nm += 1
                elif extra == 'c':
                    code.append(cvt2(nc)); nc += 1
                else:
                    break
                t += 4; k += 1
            prev2 = prev2 + 1 if k == 2 else 0
        assert not late and not XL_ and not V
        print('left', 13 - nm, 13 - nc, 13 - nw)
        tail = [mx3(j) for j in range(nm, 13)] + [cvt2(j) for j in range(nc, 13)] + [iwr2(j) for j in range(nw, 13)]
        print('forced VALU', forced)
        code += lstamp(25)
        code.append(f's_setprio {o.p0}')
        code += [f's_sub_u32 s{S_LOOP}, s{S_LOOP}, 1', f's_cmp_eq_u32 s{S_LOOP}, 0', 's_cbranch_scc1 L_cin_done'] + tail
        ntail = len(tail) + 1
        def keep(x):
            t_ = x.text if isinstance(x, I) else x
            if isinstance(t_, tuple):
                return True
            if 'nopk' in o.dbg and t_.startswith('v_pk_mul_f16'):
                return False
            if 'nowf' in o.dbg and t_.startswith('ds_read_b128'):
                return False
            if 'nosm' in o.dbg and t_.startswith('v_smfmac'):
                return False
            return True
        code = [x for x in code if keep(x)]
        if 'bf' in o.dbg:
            code = [x.replace('x32_f16', 'x32_bf16').replace('x64_f16', 'x64_bf16') if isinstance(x, str) else x for x in code]
        cB = self.seq(code + ['s_branch L_cin_loop'])
        mark0 = len(self.P.static)
        bl = []
        if o.burn:
            bl = [f's_movk_i32 s{S_LOOP}, {o.burn // 2}', 'L_burn2:'] + [f'v_mfma_f32_16x16x32_f16 {vr(P + 4 * (k % 2), 4)}, {vr(WF + 4 * (k % 4), 4)}, {vr(Z + 4 * (k // 4), 4)}, 0' for k in range(32)]
            bl += [f's_sub_u32 s{S_LOOP}, s{S_LOOP}, 1', f's_cmp_lg_u32 s{S_LOOP}, 0', 's_cbranch_scc1 L_burn2']
        L = ['L_cin_done:', f's_mul_i32 s{S_U0}, s{S_WAVE}, 1536', f's_add_u32 s{S_U0}, s{S_U0}, {PART}',
             f'v_lshlrev_b32 v{Z + 4}, 5, v0', f'v_add_u32 v{Z + 4}, s{S_U0}, v{Z + 4}',
             f'ds_read_b128 {vr(P, 4)}, v{Z + 4}', f'ds_read_b128 {vr(P + 4, 4)}, v{Z + 4} offset:16'] + bl + final(S_F1, S_F2)[:-1]
        E = [f'v_subrev_u32 v{Z + 6}, s{S_U0}, v{vXi1}', f'v_lshrrev_b32 v{Z + 6}, 8, v{Z + 6}', f'v_lshrrev_b32 v{Z + 5}, 3, v0', f'v_cmp_gt_u32 vcc, v{Z + 6}, v{Z + 5}',
             f'v_min_u32 v{Z + 5}, v{Z + 5}, v{Z + 6}', f'v_lshlrev_b32 v{Z + 5}, 4, v{Z + 5}', f'v_add_u32 v{Z + 5}, s{S_RC}, v{Z + 5}',
             ] + [f'v_add_f32 v{P + a_}, v{P + a_}, v{P + b_}' for a_, b_ in ((0, 1), (2, 3), (4, 5), (6, 7), (0, 2), (4, 6), (0, 4))]
        E += [f'v_add_f32_dpp v{P}, v{P}, v{P} {ctl} row_mask:0xf bank_mask:0xf' for ctl in ('quad_perm:[1,0,3,2]', 'quad_perm:[2,3,0,1]', 'row_half_mirror')]
        L += interleave([f'v_add_f32_dpp v{Z}, v{Z}, v{Z} {ctl} row_mask:{rm} bank_mask:0xf' for ctl, rm in DPPS], E)
        L += [f'v_cndmask_b32 v{P}, v{Z}, v{P}, vcc', 's_bitset1_b32 vcc_hi, 31', 's_mov_b64 exec, vcc', f'ds_write_b32 v{Z + 5}, v{P}', 's_mov_b64 exec, -1']
        L += self.stamp(9) + self.stamp_flush() + self.probe('cend') + [f's_cmp_eq_u32 s{S_WAVE}, 0', 's_cbranch_scc1 L_cpub', 's_waitcnt lgkmcnt(0)', 's_barrier', 's_endpgm',
              'L_cpub:', f's_load_dword s{S_BOUT}, s[{S_BO}:{S_BO + 1}], 0'] + self.pubsrd() + [
              'v_lshlrev_b32 v6, 2, v0', f'v_add_u32 v2, {RC}, v6', 'v_add_u32 v4, 1024, v6',
              f's_mul_i32 s{S_T1}, s{S_MB}, 192', f's_add_u32 s{S_T1}, s{S_T1}, {13 * WSP}',
              'v_mov_b32 v13, -1', 's_mov_b32 exec_hi, 0xffff', f'buffer_store_dword v13, v6, {srd(SRD_WS)}, s{S_T1} offen sc1', 's_mov_b64 exec, 1',
              f'buffer_load_dword v250, v6, {srd(SRD_OUT)}, 0 offen', f'buffer_load_dword v251, v6, {srd(SRD_DBG)}, 0 offen offset:240 sc1', 's_mov_b64 exec, -1',
              f's_mul_i32 s{S_T0}, s{S_MB}, 3', f's_mul_i32 s{S_T2}, s{S_T0}, 3277', f's_lshr_b32 s{S_T2}, s{S_T2}, 16',
              f'v_add_u32 v7, s{S_T2}, v0', f's_mul_i32 s{S_T2}, s{S_T2}, 20', f's_add_u32 s{S_T2}, s{S_T2}, 20',
              f's_sub_u32 s{S_T2}, s{S_T2}, s{S_T0}', f's_min_u32 s{S_T2}, s{S_T2}, 3', f's_sub_u32 s{S_T0}, 3, s{S_T2}',
              f'v_mov_b32 v5, s{S_T0}', f'v_writelane_b32 v5, s{S_T2}, 0',
              f's_cmp_eq_u32 s{S_T0}, 0', f's_cselect_b32 s{S_T0}, 1, 3',
              'v_lshlrev_b32 v3, 4, v0', 's_mov_b32 exec_hi, 0xffff', 's_waitcnt vmcnt(0) lgkmcnt(0)', 's_barrier', 'ds_read_b32 v64, v2']
        L += (self.stamp(16) if o.diag else [])
        L += ['v_min_u32 v64, -2, v64'] if o.sent else []
        L += [f'buffer_store_dword v64, v6, {srd(SRD_WS)}, s{S_T1} offen sc1', f's_mov_b32 exec_lo, s{S_T0}', 's_mov_b32 exec_hi, 0', 's_branch L_pub']
        fin_ = self.seq(L)
        blk = self.P.static[mark0:]
        del self.P.static[mark0:]
        at = self.P.static.index(self.pub[-1]) + 1
        self.P.static[at:at] = blk + self.ldblk
        L = ['L_cslow:']
        for (ctl, rm) in (('row_shr:1', '0xf'), ('row_shr:2', '0xf'), ('row_shr:4', '0xf'), ('row_shr:8', '0xf'),
                          ('row_bcast:15', '0xa'), ('row_bcast:31', '0xc')):
            L.append(f'v_max_f32_dpp v{vM}, v{vM}, v{vM} {ctl} row_mask:{rm} bank_mask:0xf')
        L += [f'v_readlane_b32 s{S_U0}, v{vM}, 63', f's_mov_b32 s{S_HI}, 0',
              f's_lshr_b32 s{S_U0}, s{S_U0}, 23', f's_max_u32 s{S_U0}, s{S_U0}, {127 - 55}', f's_min_u32 s{S_U0}, s{S_U0}, {127 + 55}',
              f's_sub_u32 s{S_U1}, {127 + 4 + 127}, s{S_U0}',
              f's_lshl_b32 s{S_U2}, s{S_U1}, 1', f's_sub_u32 s{S_U2}, s{S_U2}, 127',
              f's_sub_u32 s{S_G}, 254, s{S_U2}', f's_lshl_b32 s{S_G}, s{S_G}, 23',
              f'v_mov_b32 v{P}, s{S_G}', f'v_mul_f32 v{P + 1}, s{S_CG}, v{P}', f'v_mul_f32 v{P}, s{S_IV}, v{P}',
              f'v_readfirstlane_b32 s{S_F1}, v{P + 1}', f'v_readfirstlane_b32 s{S_F2}, v{P}',
              f's_lshl_b32 s{S_U1}, s{S_U1}, 23', f's_lshl_b32 s{S_U2}, s{S_U2}, 23']
        TS = P
        for j in range(13):
            L += [f'v_mul_f32 v{TS}, s{S_U1}, v{XR + 2 * j}', f'v_mul_f32 v{TS + 1}, s{S_U1}, v{XR + 2 * j + 1}',
                  f'v_mul_f32 v{TS + 2}, s{S_U2}, v{XR + 2 * j}', f'v_mul_f32 v{TS + 3}, s{S_U2}, v{XR + 2 * j + 1}',
                  f'v_cvt_pk_f16_f32 v{TS + 20 + j}, v{TS}, v{TS + 1}', f'v_cvt_pk_bf16_f32 v{TS + 4 + j}, v{TS + 2}, v{TS + 3}',
                  f'ds_write_b32 v{vIw}, v{TS + 20 + j} offset:{j * IMGP}', f'ds_write_b32 v{vXa}, v{TS + 4 + j} offset:{XOFF(2 * j)}']
        L += [f'v_mov_b32 v{TS}, s{S_U2}', f'v_cvt_pk_bf16_f32 v{TS}, v{TS}, v{TS}',
              's_mov_b32 exec_hi, 0', f'ds_write_b32 v{vXa}, v{TS} offset:{XOFF(26)}', 's_mov_b32 exec_hi, -1',
              's_waitcnt lgkmcnt(0)', 's_branch L_cconv']
        slow = self.seq(L)
        sdown = self.seq(self.sdown)
        cF = self.seq(self.first)
        traces = []
        for w in range(8):
            grp = w >> 2
            c2 = c2a + (c2g1 + (c2b if w == 4 else []) + c2g1d if grp else c2g0) + c2c
            it = lambda sl, first: cA + (slow if sl else []) + cB0 + (cF if first else cVM) + cB
            traces.append(PRE(w) + c2 + it(0, 1) + it(0, 0) + it(0, 0)[:-ntail] + fin_ + self.pub)
            if w in (0, 4):
                traces.append(PRE(w, sdown) + c2 + it(1, 1) + it(1, 0)[:-ntail] + fin_ + self.pub)
        return traces

    def build(self):
        pro = self.prologue()
        d = self.dnn()
        cs = self.cin()
        self.seq(['L_end:', 's_endpgm'])
        traces = [pro + c for c in d + cs] + self.extra_traces
        for t in traces:
            resolve_waits(t)
        for _ in range(2):
            for t in traces:
                resolve_hazards(t)
        hdr = open(os.path.join(os.path.dirname(os.path.abspath(__file__)), 'header.txt')).read()
        txt = hdr + f'; @launch grid=(256,1,1) block=(512,1,1) lds={LDS_TOTAL}\n'
        txt += f'''.amdgcn_target "amdgcn-amd-amdhsa--gfx950"
{DOC}.text
.globl {KNAME}
.p2align 8
.type {KNAME},@function
{KNAME}:
'''
        body_ = self.P.emit()
        if self.opt.align:
            for lab in ('L_dnn_loop0:', 'L_dnn_loop1:', 'L_cin_loop:', 'L_epi:'):
                pad = '  s_nop 0\n' if self.opt.align > 100 else ''
                body_ = body_.replace(lab + '\n', f'.p2align {self.opt.align % 100}\n{pad}{lab}\n')
        if self.opt.cwalk:
            lines = body_.split('\n')
            i0, i1 = lines.index('L_w2:'), lines.index('L_cslow:')
            out, k, cnt = lines[:i0], 0, 0
            seg = lines[i0:i1]
            prot = 0
            for n_, l in enumerate(seg):
                out.append(l)
                t = l.strip()
                cnt += 1
                inmain = 'L_novm:' in seg[:n_ + 1]
                nxt = seg[n_ + 1].strip() if n_ + 1 < len(seg) else ''
                ok = t.endswith(':') or (cnt >= self.opt.cwalk and ('mfma' in t and nxt.startswith('v_pk') if inmain else t.startswith(('ds_', 'v_perm', 'v_cvt_pk'))))
                if ok and t not in ('L_cin_loop:', 'L_cconv:', 'L_scaled:'):
                    out += [f'L_wp{k}:', f'  s_cbranch_execz L_wp{k + 1}']
                    k += 1; cnt = 0
            j = lines.index('L_first:')
            rest = lines[i1:j + 1] + [f'L_wp{k}:', '  s_cbranch_execz L_wret'] + lines[j + 1:]
            body_ = '\n'.join(out + rest)
            print('walk pads', k + 1)
            self.npads = k + 1
            for q_ in range(4):
                body_ = body_.replace(f'L_WENTRY{q_}', f'L_wp{q_ * (k + 1) // 4}')
        if self.opt.fix:
            body_ = fixalign.fix(body_ + 'L_tables:\n', self.opt.fix)[:-len('L_tables:\n')]
        txt += body_
        tb = self.tables()
        assert len(tb) == 16 * 256
        txt += '.p2align 8\nL_tables:\n' + ''.join('.long ' + ', '.join(f'{x:#x}' for x in tb[i:i + 8]) + '\n' for i in range(0, len(tb), 8))
        txt += f'''.section .rodata,"a"
.p2align 6
.amdhsa_kernel {KNAME}
  .amdhsa_next_free_vgpr 256
  .amdhsa_next_free_sgpr 102
  .amdhsa_accum_offset 256
  .amdhsa_group_segment_fixed_size 0
  .amdhsa_kernarg_size 88
  .amdhsa_user_sgpr_count 2
  .amdhsa_user_sgpr_kernarg_segment_ptr 1
  .amdhsa_system_sgpr_workgroup_id_x 1
  .amdhsa_float_denorm_mode_32 {self.opt.denorm}
.end_amdhsa_kernel
'''
        return txt


def main():
    ap = argparse.ArgumentParser()
    ap.add_argument('-o', default='standalone__deep_cross_xdeepfm__recsys.s')
    ap.add_argument('--stamps', action='store_true')
    ap.add_argument('--nodma', action='store_true')
    ap.add_argument('--cpf', type=int, default=1)
    ap.add_argument('--coop', type=int, default=0)
    ap.add_argument('--coopw', type=int, default=2)
    ap.add_argument('--tbpos', type=int, default=0)
    ap.add_argument('--dbar3', type=int, default=1)
    ap.add_argument('--tlb', type=int, default=0)
    ap.add_argument('--tlb2', type=int, default=1)
    ap.add_argument('--itst', type=int, default=0)
    ap.add_argument('--diag', type=int, default=0)
    ap.add_argument('--dbg', default='')
    ap.add_argument('--lead3', type=int, default=1)
    ap.add_argument('--morder', type=int, default=0)
    ap.add_argument('--etlb', type=int, default=0)
    ap.add_argument('--lateb', type=int, default=0)
    ap.add_argument('--wfl', default='')
    ap.add_argument('--xfl', default='')
    ap.add_argument('--tag', type=int, default=0)
    ap.add_argument('--idxfirst', type=int, default=1)
    ap.add_argument('--bpos', type=int, default=2)
    ap.add_argument('--sigat', type=int, default=4)
    ap.add_argument('--epx', type=int, default=1)
    ap.add_argument('--denorm', type=int, default=3)
    ap.add_argument('--mprio', type=int, default=0)
    ap.add_argument('--swap', type=int, default=0)
    ap.add_argument('--bov', type=int, default=1)
    ap.add_argument('--rfirst', type=int, default=0)
    ap.add_argument('--g1x', type=int, default=0)
    ap.add_argument('--ldsred', type=int, default=0)
    ap.add_argument('--csnake', type=int, default=0)
    ap.add_argument('--cswap', type=int, default=0)
    ap.add_argument('--align', type=int, default=0)
    ap.add_argument('--c2', type=int, default=0)
    ap.add_argument('--d1', type=int, default=0)
    ap.add_argument('--cstr', type=int, default=3)
    ap.add_argument('--bearly', type=int, default=1)
    ap.add_argument('--w2late', type=int, default=1)
    ap.add_argument('--aov', type=int, default=5)
    ap.add_argument('--upos', type=int, default=1)
    ap.add_argument('--calt', type=int, default=1)
    ap.add_argument('--pfpos', type=int, default=1)
    ap.add_argument('--wlate', type=int, default=0)
    ap.add_argument('--dbar2', type=int, default=0)
    ap.add_argument('--dbar', type=int, default=0)
    ap.add_argument('--pfw', type=int, default=0)
    ap.add_argument('--pfx', type=int, default=0)
    ap.add_argument('--pfx0', type=int, default=4)
    ap.add_argument('--pfs', type=int, default=13)
    ap.add_argument('--dcoopx', type=int, default=1)
    ap.add_argument('--dcx0', type=int, default=0)
    ap.add_argument('--dcxpos', type=int, default=-1)
    ap.add_argument('--pfe0', type=int, default=2)
    ap.add_argument('--pfne', type=int, default=13)
    ap.add_argument('--prio47', type=int, default=0)
    ap.add_argument('--lookahead', type=int, default=5)
    ap.add_argument('--nz', type=int, default=6)
    ap.add_argument('--nwf', type=int, default=8)
    ap.add_argument('--hiat', type=int, default=4)
    ap.add_argument('--wmerge', type=int, default=0)
    ap.add_argument('--gapv', type=int, default=6)
    ap.add_argument('--slow', type=int, default=0)
    ap.add_argument('--sjw', type=int, default=7)
    ap.add_argument('--cwalk', type=int, default=0)
    ap.add_argument('--few', default='')
    ap.add_argument('--econv', type=int, default=0)
    ap.add_argument('--nsh', type=int, default=16)
    ap.add_argument('--sh0', type=int, default=5)
    ap.add_argument('--dirt', type=int, default=0)
    ap.add_argument('--mrg', type=int, default=0)
    ap.add_argument('--g1p', type=int, default=0)
    ap.add_argument('--sa', type=int, default=4)
    ap.add_argument('--sbg', type=int, default=16)
    ap.add_argument('--bwat', type=int, default=0)
    ap.add_argument('--x2n', type=int, default=8)
    ap.add_argument('--sent', type=int, default=1)
    ap.add_argument('--spec', type=int, default=0)
    ap.add_argument('--probe', default='')
    ap.add_argument('--skew', type=int, default=0)
    ap.add_argument('--fix', type=int, default=64)
    ap.add_argument('--walk', type=int, default=0)
    ap.add_argument('--eal', type=int, default=3)
    ap.add_argument('--eoff', type=int, default=0)
    ap.add_argument('--ct', default='')
    ap.add_argument('--rot', type=int, default=13)
    ap.add_argument('--i0', type=int, default=1)
    ap.add_argument('--i1', type=int, default=10)
    ap.add_argument('--burn', type=int, default=0)
    ap.add_argument('--lord', type=int, default=1)
    ap.add_argument('--lprio', type=int, default=0)
    ap.add_argument('--rsp', type=int, default=0)
    ap.add_argument('--tch', type=int, default=0)
    ap.add_argument('--tf', type=int, default=4)
    ap.add_argument('--toff', type=int, default=0)
    ap.add_argument('--tw0', type=int, default=12)
    ap.add_argument('--xat', type=int, default=0)
    ap.add_argument('--pf1', type=int, default=1)
    ap.add_argument('--lpf', type=int, default=20)
    ap.add_argument('--lpfit', type=int, default=6)
    ap.add_argument('--x1m', type=int, default=10)
    ap.add_argument('--bgap', type=int, default=8)
    ap.add_argument('--cprio', type=int, default=1)
    ap.add_argument('--x1n', type=int, default=5)
    ap.add_argument('--w0', type=int, default=2)
    ap.add_argument('--dbar1', type=int, default=1)
    ap.add_argument('--aon', type=int, default=2)
    ap.add_argument('--cbar', type=int, default=0)
    ap.add_argument('--vmpos', type=int, default=2)
    ap.add_argument('--il2', type=int, default=0)
    ap.add_argument('--p1', type=int, default=0)
    ap.add_argument('--pm', type=int, default=2)
    ap.add_argument('--cbov', type=int, default=3)
    ap.add_argument('--p0', type=int, default=0)
    ap.add_argument('--max2', type=int, default=2)
    ap.add_argument('--eager', type=int, default=0)
    ap.add_argument('--cst', type=int, default=0)
    ap.add_argument('--x0', type=int, default=60)
    ap.add_argument('--xlat', type=int, default=18)
    ap.add_argument('--xper', type=int, default=3)
    ap.add_argument('--xc0', type=int, default=0)
    ap.add_argument('--n3', type=int, default=1)
    ap.add_argument('--xi0', type=int, default=1)
    ap.add_argument('--pfsat', type=int, default=0)
    ap.add_argument('--g1prio', type=int, default=0)
    ap.add_argument('--xearly', type=int, default=1)
    ap.add_argument('--cpfd', type=int, default=4)
    ap.add_argument('--cla', type=int, default=1)
    ap.add_argument('--war', type=int, default=1)
    opt = ap.parse_args()
    resolve_waits.dbg = 'dup' in opt.dbg
    g = Gen(opt)
    txt = g.build()
    open(opt.o, 'w').write(txt)
    print('wrote', opt.o, len(txt), 'bytes')


if __name__ == '__main__':
    main()
```

```python
import sys, os, struct, argparse
sys.path.insert(0, os.path.dirname(os.path.abspath(__file__)))
from asmlib import I, WaitTag, Touch, Prog, resolve_waits, resolve_hazards
import cin16, fixalign

KNAME = 'standalone__deep_cross_xdeepfm__recsys_kernel'
LDS_TOTAL = 163840

XSLOT = 320 * 128
WR = 3 * XSLOT + 8192
WSLOT = 32 * 256
L_BIAS = 3 * XSLOT
L_W2 = L_BIAS + 256
RB = L_W2 + 256
assert WR % 32768 == 0 and WR + 4 * WSLOT <= LDS_TOTAL
WSP = 16640
assert RB + 2560 <= LDS_TOTAL

W2P = 1536
SSZ = 677 * 64
FRS = 0
V3OFF = 0
A1 = 6144
FR = A1
FRL = FR + 33 * 1024
A3 = FRL + 2048
SG = A3
A2 = SG + SSZ
SQ = A2
V2S = SQ + SSZ
L_WCO = V2S + 832
L_FLG = L_WCO + 192
L_MX = L_FLG + 16
RC = L_FLG + 64
XB = V2S + 2496
XPP = 1056
XBSZ = 3 * XPP + 7 * 128
IMG = A3
IMGP = 160
IMGSZ = 33 * IMGP
XB2 = IMG + 8 * IMGSZ
PART = XB2 + 8 * XBSZ
XOFF = lambda f: (f & 3) * XPP + (f >> 2) * 128
assert RC + 512 <= V2S + 1664
assert XB + 8 * XBSZ <= LDS_TOTAL and XB % 16 == 0 and A2 % 64 == 0 and A3 % 64 == 0 and L_WCO % 16 == 0 and V2S % 64 == 0
assert PART + 8 * 1536 <= V2S + 832 and IMGSZ % 32 == 0 and XB2 % 16 == 0

S_WAVE = 3
S_IDX, S_TAB, S_CIN, S_WCO, S_W1, S_B1, S_W2, S_BO, S_OUT, S_DBG, S_WS = 4, 6, 8, 10, 12, 14, 16, 18, 20, 22, 24
S_MB, S_R = 26, 27
SRD_IDX, SRD_TAB, SRD_CIN, SRD_WCO, SRD_W, SRD_B1, SRD_W2, SRD_OUT, SRD_WS, SRD_DBG = 28, 32, 36, 40, 44, 48, 52, 56, 60, 64
S_T0, S_T1, S_T2, S_T3 = 68, 69, 70, 71
S_LOOP, S_IDXOFF, S_WSOFF, S_WMB, S_XM0, S_N0, S_C0, S_CW, S_BOUT, S_TW = 72, 73, 74, 75, 76, 77, 78, 79, 80, 81
S_EX = 82
S_GRP, S_RC = 84, 85
S_ST = 86
S_M26, S_MASK = 90, 92
S_SAMP, S_STG, S_STG9, S_TGT = 94, 95, 96, 97
S_M26B = 98
S_GW = 100
S_TAGT = 0
S_TAG = 1
S_PW = 101
S_PX = 77
S_PXE = 73

GELU_C0 = -2.0 * 0.7978845608028654 * 1.4426950408889634
GELU_C1 = GELU_C0 * 0.044715


def f32hex(x):
    return '0x%08x' % struct.unpack('<I', struct.pack('<f', x))[0]


def vr(a, n):
    return f'v[{a}:{a + n - 1}]' if n > 1 else f'v{a}'


def srd(a):
    return f's[{a}:{a + 3}]'


def flat(gs):
    res = []
    for c in gs:
        if isinstance(c, (tuple, list)):
            res += flat(c)
        else:
            res.append(c)
    return res


def interleave(a, b):
    out = []
    ia = ib = 0
    na, nb = len(a), len(b)
    while ia < na or ib < nb:
        if ib >= nb or (ia < na and ia * nb <= ib * na):
            out.append(a[ia]); ia += 1
        else:
            out.append(b[ib]); ib += 1
    return out


SLOTS = []
for j in range(0, 26, 2):
    for s in range(0, 14 if j <= 12 else 13):
        SLOTS.append((j, (j + s) % 26))
assert len(SLOTS) == 176
DUP_SLOT = SLOTS.index((12, 25))
assert all((d * 2521) >> 16 == d // 26 for d in range(800))
assert all((d * 10923) >> 16 == d // 6 for d in range(64))
assert all((d * 5042) >> 16 == d // 13 for d in range(170))
assert all((d * 3277) >> 16 == d // 20 for d in range(264))


DOC = '''; ---------------------------------------------------------------------------------------------
;
;       U[i,j,k] = sum_h W2[h,i,j] V3[h,k]
;   DNN branch: full bf16 GEMM + bias + tanh-GELU (x / (1 + exp(-2u))) + dot with w_dnn2.
;   their own producer) and counters in d_debug; the last arriver of a row block adds up and writes d_out.
; ---------------------------------------------------------------------------------------------
'''


class Gen:
    def __init__(self, opt):
        self.opt = opt
        self.P = Prog()

    def seq(self, lines):
        return [self.P.add(l) for l in flat(lines)]

    def build_srd(self, dst, ptr, size):
        return [f's_mov_b32 s{dst}, s{ptr}', f's_and_b32 s{dst + 1}, s{ptr + 1}, 0xffff',
                f's_mov_b32 s{dst + 2}, {size}', f's_mov_b32 s{dst + 3}, 0x20000']

    def stamp(self, slot):
        if not self.opt.stamps or (self.opt.few and slot not in [int(x) for x in self.opt.few.split(',')]):
            return []
        return [f's_memtime s[{S_ST}:{S_ST + 1}]', f's_memrealtime s[{S_ST + 2}:{S_ST + 3}]', 's_waitcnt lgkmcnt(0)',
                f'v_writelane_b32 v252, s{S_ST}, {slot}', f'v_writelane_b32 v253, s{S_ST + 2}, {slot}']

    def probe(self, name, wave=4):
        if self.opt.probe != name:
            return []
        return ['s_memrealtime s[88:89]', 's_waitcnt lgkmcnt(0)']

    def stamp_flush(self):
        if not self.opt.stamps:
            return []
        L = self.build_srd(SRD_WS, S_WS, 0x10000000)
        L += [f's_lshl_b32 s{S_C0}, s2, 3', f's_add_u32 s{S_C0}, s{S_C0}, s{S_WAVE}',
              f's_lshl_b32 s{S_C0}, s{S_C0}, 8', f's_add_u32 s{S_C0}, s{S_C0}, 0x100000',
              'v_lshlrev_b32 v254, 3, v0', 's_mov_b32 exec_hi, 0',
              f'buffer_store_dwordx2 v[252:253], v254, {srd(SRD_WS)}, s{S_C0} offen', 's_mov_b32 exec_hi, -1']
        return L

    def stamp0(self):
        if not self.opt.stamps:
            return []
        return ['v_mov_b32 v252, 0xcdcdcdcd', 'v_mov_b32 v253, 0xcdcdcdcd',
                f'v_writelane_b32 v252, s{S_ST}, 0', f'v_writelane_b32 v253, s{S_ST + 2}, 0'] + self.stamp(15)

    def tlb2(self, t):
        L = self.build_srd(SRD_WS, S_WS, 0x10000000) + self.build_srd(SRD_OUT, S_OUT, 8192) + self.build_srd(SRD_DBG, S_DBG, 256)
        L += [f's_load_dword s{S_BOUT}, s[{S_BO}:{S_BO + 1}], 0', f'v_mov_b32 v{t}, 0', 's_mov_b64 exec, 1',
              f's_mov_b32 s{S_TW}, 0x80000',
              f'buffer_load_dword v{t + 1}, v{t}, {srd(SRD_WS)}, s{S_TW} offen',
              f'buffer_load_dword v{t + 2}, v{t}, {srd(SRD_OUT)}, 0 offen',
              's_mov_b64 exec, -1']
        return L

    def tlb1(self, vtmp, vdst):
        if not self.opt.etlb:
            return self.build_srd(SRD_TAB, S_TAB, 100000 * 128)
        return self.build_srd(SRD_TAB, S_TAB, 100000 * 128) + [
            f'v_mov_b32 v{vtmp}, s{S_BOUT}', f'buffer_load_dword v{vdst}, v{vtmp}, {srd(SRD_TAB)}, 0 offen']

    def gettag(self, lab, t, VT):
        return [f's_cmp_lg_u32 s{S_WAVE}, 0', f's_cbranch_scc1 {lab}',
                f's_memrealtime s[{S_TAGT}:{S_TAGT + 1}]'] + self.build_srd(SRD_DBG, S_DBG, 256) + [
                f's_lshl_b32 s{S_TW}, s{S_MB}, 2', f'v_mov_b32 v{t}, s{S_TW}', 's_waitcnt lgkmcnt(0)',
                f's_or_b32 s{S_TAG}, s{S_TAGT}, 1', f'v_mov_b32 v{VT}, s{S_TAG}', f'v_mov_b32 v{VT + 1}, 0',
                's_mov_b64 exec, 1',
                f'buffer_atomic_cmpswap v[{VT}:{VT + 1}], v{t}, {srd(SRD_DBG)}, 0 offen offset:128 sc0',
                's_mov_b64 exec, -1', f'{lab}:']

    def prologue(self):
        L = []
        if self.opt.stamps:
            L += [f's_memtime s[{S_ST}:{S_ST + 1}]', f's_memrealtime s[{S_ST + 2}:{S_ST + 3}]']
        L += ['s_cmp_ge_u32 s2, 256', 's_cbranch_scc1 L_end',
              's_load_dwordx16 s[4:19], s[0:1], 0',
              's_load_dwordx4 s[20:23], s[0:1], 64',
              's_load_dwordx2 s[24:25], s[0:1], 80',
              'v_lshrrev_b32 v1, 6, v0']
        if self.opt.cpf:
            L += [f's_getpc_b64 s[{S_MASK}:{S_MASK + 1}]', 'L_pc:',
                  f's_and_b32 s{S_T0}, s2, 0xf8', f'v_add_u32 v2, s{S_T0}, v1', 'v_and_b32 v3, 32, v0', 'v_lshl_add_u32 v2, v3, 3, v2', 'v_lshlrev_b32 v2, 7, v2',
                  f'v_min_u32 v2, L_end-L_pc, v2',
                  f'v_mov_b32 v3, s{S_MASK + 1}',
                  f'v_add_co_u32 v2, vcc, s{S_MASK}, v2', 'v_addc_co_u32 v3, vcc, 0, v3, vcc',
                  'global_load_dword v251, v[2:3], off']
        if self.opt.skew:
            L += ['s_memrealtime s[86:87]', 's_mov_b32 s88, 0']
        L += ['v_and_b32 v0, 63, v0',
              f'v_readfirstlane_b32 s{S_WAVE}, v1',
              f's_and_b32 s{S_T0}, s2, 7', f's_lshr_b32 s{S_T1}, s2, 3', f's_xor_b32 s{S_T1}, s{S_T1}, {31 * self.opt.rev}',
              f's_and_b32 s{S_BOUT}, s2, 0xf8', f's_add_u32 s{S_BOUT}, s{S_BOUT}, s{S_WAVE}', f's_lshl_b32 s{S_BOUT}, s{S_BOUT}, {self.opt.etlb}',
              f's_min_u32 s{S_T2}, s{S_T0}, 1', f's_add_u32 s{S_T3}, s{S_T1}, s{S_T2}',
              f's_cmp_ge_u32 s{S_T3}, 22', 's_cbranch_scc1 L_cin',
              f's_mul_i32 s{S_T0}, s{S_T0}, 21', f's_add_u32 s{S_T0}, s{S_T0}, s{S_T3}',
              f's_mul_i32 s{S_MB}, s{S_T0}, 5042', f's_lshr_b32 s{S_MB}, s{S_MB}, 16',
              f's_mul_i32 s{S_T1}, s{S_MB}, 13', f's_sub_u32 s{S_R}, s{S_T0}, s{S_T1}']
        return self.seq(L)

    def dnn(self):
        o = self.opt
        vW = [1, 2, 3, 4]
        vX = [[5, 6], [7, 8]]
        vPa, vPc = 9, 10
        WF, XA, ACC = 16, 48, 88
        W2F = WF
        KC0, KC1, KONE = 12, 14, 248
        SUMP, GT = 32, 52
        vIdxOff, vCh, vWD, vBL = 1, [2, 3], [4, 5], 11
        ST, VO = 16, 56
        T = 100
        g, i4, q = T + 16, T + 17, T + 18
        PI = T + 8

        def acc(tn, tm):
            return ACC + (tm * 4 + tn) * 4

        def small(srd_, dst):
            return [f's_mov_b32 m0, {dst}', 's_mov_b64 exec, 0xffff',
                    I(f'buffer_load_dwordx4 v{vBL}, {srd(srd_)}, s{S_N0} offen lds', tag='BIAS'), 's_mov_b64 exec, -1']
        L = [f's_lshl_b32 s{S_N0}, s{S_R}, 8', f's_mul_i32 s{S_T3}, s{S_MB}, 320',
             f'v_lshrrev_b32 v{g}, 4, v0', f'v_lshlrev_b32 v{vBL}, 4, v0', f's_and_b32 s{S_CW}, s{S_WAVE}, 3',
             f's_cmp_lt_u32 s{S_WAVE}, 4', 's_cbranch_scc1 L_cmp']
        c0 = self.seq(L)
        self.ldat = len(self.P.static)
        PI = T

        RG, CG = S_T0, S_T1
        L = ['L_cmp:', f's_mul_i32 s{S_T2}, s{S_WAVE}, 13', f'v_min_u32 v{q}, 12, v0', f'v_add_u32 v{q}, s{S_T2}, v{q}',
             f'v_lshrrev_b32 v{i4}, 1, v{q}', f'v_mul_u32_u24 v{i4}, 96, v{i4}', f'v_lshl_add_u32 v{q}, v{q}, 2, v{i4}',
             f's_mul_i32 s{S_C0}, s{S_R}, 25', f's_min_u32 s{S_C0}, s{S_C0}, 294',
             f's_add_u32 s{S_C0}, s{S_C0}, s{S_T3}', f's_mul_i32 s{S_C0}, s{S_C0}, 104', 's_waitcnt lgkmcnt(0)']
        ct = [int(x) for x in o.ct]
        L += self.build_srd(SRD_IDX, S_IDX, 4096 * 104)
        if ct:
            L += [f'buffer_load_dwordx4 {vr(PI, 4)}, v{q}, {srd(SRD_IDX)}, s{S_C0} offen']
        if ct and max(ct) > 3:
            L += [f'buffer_load_dwordx4 {vr(PI + 4, 4)}, v{q}, {srd(SRD_IDX)}, s{S_C0} offen offset:16']
        L += self.tlb1(T + 14, T + 15)
        touch = [x for k in ct for x in (f'v_lshlrev_b32 v{PI + k}, 7, v{PI + k}', f'buffer_load_dword v{XA + k}, v{PI + k}, {srd(SRD_TAB)}, 0 offen')]
        L += self.build_srd(SRD_B1, S_B1, 3328) + small(SRD_B1, L_BIAS) + self.stamp0()
        L += [f's_and_b32 s{RG}, s{S_WAVE}, 1', f's_lshr_b32 s{CG}, s{S_WAVE}, 1',
              f'v_bfe_u32 v{i4}, v0, 2, 2', f'v_lshl_add_u32 v{q}, v{g}, 3, v{i4}', f'v_lshlrev_b32 v{q}, 8, v{q}',
              f'v_bfe_u32 v{i4}, v0, 2, 3', f's_lshl_b32 s{S_T2}, s{CG}, 2', f'v_xor_b32 v{i4}, s{S_T2}, v{i4}',
              f'v_lshl_add_u32 v{q}, v{i4}, 5, v{q}', f'v_and_b32 v{i4}, 3, v0', f'v_lshl_add_u32 v{q}, v{i4}, 3, v{q}',
              f'v_add_u32 v{vW[0]}, {WR}, v{q}']
        L += [f'v_xor_b32 v{vW[tn]}, {32 * tn}, v{vW[0]}' for tn in range(1, 4)]
        L += [f's_lshl_b32 s{S_T2}, s{CG}, 7', f's_add_u32 s{S_T2}, s{S_T2}, {L_BIAS}', f'v_lshlrev_b32 v{q}, 3, v{g}', f'v_add_u32 v{vPa}, s{S_T2}, v{q}',
              f'v_and_b32 v{q}, 15, v0', f'v_lshlrev_b32 v{q}, 7, v{q}',
              f'v_bfe_u32 v{i4}, v0, 1, 3', f'v_xor_b32 v{i4}, v{i4}, v{g}', f'v_lshl_add_u32 v{q}, v{i4}, 4, v{q}',
              f's_mul_i32 s{S_T2}, s{RG}, 20480', f'v_add_u32 v{vX[0][0]}, s{S_T2}, v{q}', f'v_xor_b32 v{vX[1][0]}, 64, v{vX[0][0]}',
              f'v_add_u32 v{vX[0][1]}, {2 * XSLOT}, v{vX[0][0]}', f'v_add_u32 v{vX[1][1]}, {2 * XSLOT}, v{vX[1][0]}',
              f's_mul_i32 s{S_T2}, s{S_WAVE}, 640', f's_add_u32 s{S_T2}, s{S_T2}, {RB}',
              f'v_and_b32 v{q}, 15, v0', f'v_lshlrev_b32 v{q}, 2, v{q}', f'v_add_u32 v{q}, s{S_T2}, v{q}',
              f'v_lshrrev_b32 v{i4}, 5, v0', f'v_lshl_add_u32 v{q}, v{i4}, 6, v{q}', f'v_bfe_u32 v{i4}, v0, 4, 1', f'v_lshl_add_u32 v{vPc}, v{i4}, 7, v{q}',
              f's_mov_b32 s{S_LOOP}, 0',
              f'v_mov_b32 v{KC0}, {f32hex(GELU_C0)}', f'v_mov_b32 v{KC0 + 1}, {f32hex(GELU_C0)}',
              f'v_mov_b32 v{KC1}, {f32hex(GELU_C1)}', f'v_mov_b32 v{KC1 + 1}, {f32hex(GELU_C1)}']

        def pkreads(off, dst):
            return [f'ds_read_b64 {vr(dst + 4 * tn + 2, 2)}, v{vPa} offset:{off + 32 * tn}' for tn in range(4)]

        def unp(dst):
            c = []
            for tn in range(4):
                r = dst + 4 * tn
                c += [f'v_lshlrev_b32 v{r}, 16, v{r + 2}', f'v_and_b32 v{r + 1}, 0xffff0000, v{r + 2}',
                      f'v_lshlrev_b32 v{r + 2}, 16, v{r + 3}', f'v_and_b32 v{r + 3}, 0xffff0000, v{r + 3}']
            return c
        L += touch + self.stamp(6)
        L += [WaitTag(vm_tags=['BIAS'])] + pkreads(0, WF) + unp(WF)
        L += [f'v_mov_b64 {vr(ACC + r, 2)}, {vr(WF + r % 16, 2)}' for r in range(0, 160, 2)]

        def rX(p, k):
            xs = p % 3
            return f'ds_read_b128 {vr(XA + 4 * (k % 10), 4)}, v{vX[k % 2][xs // 2]} offset:{(xs % 2) * XSLOT + (k // 2) * 2048}'

        def rW(tn):
            return [f'ds_read_b64_tr_b16 {vr(WF + 16 * par + 4 * tn + 2 * rd, 2)}, v{vW[tn]} offset:{par * WSLOT + rd * 1024}' for par in range(2) for rd in range(2)]
        tog = lambda tn: f'v_xor_b32 v{vW[tn]}, {2 * WSLOT}, v{vW[tn]}'

        def dec(gi):
            G, tn, a_, par = gi // 16, (gi // 4) % 4, (gi // 2) % 2, gi % 2
            if o.bou:
                par ^= a_ ^ (G == 4)
                a_ ^= tn & 1
            return G, tn, a_, par
        lastx = {4 * dec(gi)[0] + 2 * dec(gi)[2] + dec(gi)[3]: gi for gi in range(80)}

        def mf(gi):
            G, tn, a_, par = dec(gi)
            d = acc(tn, 2 * G + a_)
            return f'v_mfma_f32_16x16x32_bf16 {vr(d, 4)}, {vr(WF + 16 * par + 4 * tn, 4)}, {vr(XA + 4 * ((4 * G + 2 * a_ + par) % 10), 4)}, {vr(d, 4)}'
        SH = [11, 248, 249, 250]
        nsh = o.nsh

        def shadow():
            c = []
            for b0 in range(0, nsh, 4):
                E = [(ACC + e, SH[e - b0]) for e in range(b0, min(b0 + 4, nsh))]
                for op in ('v_mul_f32 T, X, X', f'v_fma_f32 T, T, v{KC1}, v{KC0}', 'v_mul_f32 T, T, X', 'v_exp_f32 T, T', 'v_add_f32 T, 1.0, T', 'v_rcp_f32 T, T', 'v_mul_f32 X, X, T'):
                    c += [(op.replace('T', f'v{t}').replace('X', f'v{x}'), 8 if ('exp' in op or 'rcp' in op) else 4) for x, t in E]
            return c

        def cpair(p, kind, loopend=False):
            S = []
            ev = {}
            if kind == 'first':
                g_ = o.sbg + 1
                for k in range(2 * o.sa, 10):
                    ev[g_] = rX(p, k); g_ += 1
            else:
                for i_, x in enumerate(rW(3)[2:]):
                    ev[i_] = x
                for i_, k in enumerate(range(6, 10)):
                    ev[2 + i_] = rX(p, k)
            for k in range(10):
                g_ = lastx[k]
                while g_ in ev or (kind == 'first' and g_ <= o.sbg):
                    g_ += 1
                ev[g_] = rX(p, k + 10)
            BG = 48 + o.bgap if o.bou else 46 + o.bgap
            if kind != 'last':
                ev[BG], ev[BG + 1] = rX(p + 1, 0), rX(p + 1, 1)
                for k in range(2, 6):
                    ev[lastx[10 + k]] = rX(p + 1, k)
                for tn in range(4):
                    for i_, x in enumerate(rW(tn)):
                        if 66 + 4 * tn + i_ < 80:
                            ev[66 + 4 * tn + i_] = x
            sh_ = shadow() if kind == 'last' else []
            for gi in range(80):
                S.append(mf(gi))
                t = 4
                if kind == 'first' and gi == o.sbg:
                    S.append('s_barrier')
                if kind != 'last' and gi == BG - 1:
                    S += ['s_waitcnt lgkmcnt(0)', 's_barrier']
                if gi in ev:
                    S.append(ev[gi]); t += 8
                if kind != 'last' and 8 <= gi < 12:
                    S.append(tog(gi - 8))
                if gi % 2 == 0 and gi + 2 < 80:
                    n_ = gi + 2
                    G, tn, a_ = n_ // 16, (n_ // 4) % 4, (n_ // 2) % 2
                    if tn == 0:
                        S.append(Touch(vr(XA + 4 * ((4 * G + 2 * a_) % 10), 8)))
                    if G == 0 and a_ == 0:
                        S.append(Touch(vr(WF + 16 + 4 * tn, 4)))
                if gi == 78 and kind != 'last':
                    S.append(Touch(vr(WF + 16, 4)))
                if loopend and gi == 48:
                    S += [f's_add_u32 s{S_LOOP}, s{S_LOOP}, 1', f's_cmp_lt_u32 s{S_LOOP}, 8']
                t = max(t, 8)
                while sh_ and gi >= o.sh0 and t + sh_[0][1] <= 16:
                    x, c_ = sh_.pop(0)
                    S.append(x); t += c_
            S += [x for x, _ in sh_]
            if kind == 'last':
                print('shadow left', len(sh_))
            return S
        L += self.stamp(1) + ['s_barrier'] + [x for tn in range(4) for x in rW(tn)] + ['s_waitcnt lgkmcnt(0)', f's_setprio {o.cprio}', 's_barrier'] + self.stamp(2)
        L += [rX(0, k) for k in range(2 * o.sa)] + cpair(0, 'first')
        cpre = self.seq(L)
        body = self.seq(['L_dnn_loop0:'])
        for p in range(1, 4):
            S = cpair(p, 'mid', p == 3)
            if p == 3:
                if o.stamps and o.itst == 1:
                    i_ = S.index('s_barrier')
                    S = S[:i_] + [f's_memtime s[{S_ST}:{S_ST + 1}]', f's_memrealtime s[{S_ST + 2}:{S_ST + 3}]', f's_or_b32 m0, s{S_LOOP}, 16', 's_waitcnt lgkmcnt(0)',
                                  f'v_writelane_b32 v252, s{S_ST}, m0', f'v_writelane_b32 v253, s{S_ST + 2}, m0', f's_cmp_lt_u32 s{S_LOOP}, 8'] + S[i_:]
                S += ['s_cbranch_scc1 L_dnn_loop0']
            body += self.seq(S)
        tc = c0 + cpre + body * 2 + self.seq(['L_tail:'])
        tc += self.seq(cpair(25, 'last') + pkreads(256, W2F) + [f'v_mov_b32 v{KONE}, 1.0', f'v_mov_b32 v{KONE + 1}, 1.0'])
        if o.burn:
            bl = [f's_movk_i32 s{S_LOOP}, {o.burn}', 'L_burn:'] + [f'v_mfma_f32_16x16x32_bf16 {vr(XA + 32 + 4 * (k % 2), 4)}, {vr(WF + 16 + 4 * (k % 4), 4)}, {vr(XA + 4 * (k // 4), 4)}, 0' for k in range(32)]
            tc += self.seq(bl + [f's_sub_u32 s{S_LOOP}, s{S_LOOP}, 1', f's_cmp_lg_u32 s{S_LOOP}, 0', 's_cbranch_scc1 L_burn'])
        tc += self.seq(['L_epi:'] + self.stamp(3))

        p2 = lambda r: vr(r, 2)
        seen = set()

        def gelu(groups):
            L = []
            for k, vals in enumerate(groups):
                tb = GT + (k % 2) * 16
                V_ = [(x, w, s_, tb + 4 * i_, tb + 4 * i_ + 2) for i_, (x, w, s_) in enumerate(vals)]
                for (x, w, s_, t, u) in V_:
                    L.append(f'v_pk_mul_f32 {p2(t)}, {p2(x)}, {p2(x)}')
                for (x, w, s_, t, u) in V_:
                    L.append(f'v_pk_fma_f32 {p2(t)}, {p2(t)}, {p2(KC1)}, {p2(KC0)}')
                for (x, w, s_, t, u) in V_:
                    L.append(f'v_pk_mul_f32 {p2(t)}, {p2(t)}, {p2(x)}')
                for (x, w, s_, t, u) in V_:
                    L += [f'v_exp_f32 v{t}, v{t}', f'v_exp_f32 v{t + 1}, v{t + 1}']
                for (x, w, s_, t, u) in V_:
                    L.append(f'v_pk_mul_f32 {p2(u)}, {p2(x)}, {p2(w)}')
                for (x, w, s_, t, u) in V_:
                    L.append(f'v_pk_add_f32 {p2(t)}, {p2(t)}, {p2(KONE)}')
                for (x, w, s_, t, u) in V_:
                    L += [f'v_rcp_f32 v{t}, v{t}', f'v_rcp_f32 v{t + 1}, v{t + 1}']
                for (x, w, s_, t, u) in V_:
                    if s_ in seen:
                        L.append(f'v_pk_fma_f32 {p2(s_)}, {p2(t)}, {p2(u)}, {p2(s_)}')
                    else:
                        L.append(f'v_pk_mul_f32 {p2(s_)}, {p2(t)}, {p2(u)}')
                        seen.add(s_)
            return L
        el = lambda tn, tm, d: (acc(tn, tm) + 2 * d, W2F + 4 * tn + 2 * d, SUMP + 2 * tm)
        allel = [el(tn, 2 * tp + a_, d) for tp in range(5) for tn in range(4) for d in range(2) for a_ in range(2)]
        rest = [e for e in allel if e[0] >= ACC + nsh]
        L = gelu([rest[i:i + 4] for i in range(0, len(rest), 4)])
        L = L[:20] + unp(W2F) + L[20:]
        for (x, w, s_) in allel:
            if x < ACC + nsh:
                L.append(f'v_pk_fma_f32 {p2(s_)}, {p2(x)}, {p2(w)}, {p2(s_)}' if s_ in seen else f'v_pk_mul_f32 {p2(s_)}, {p2(x)}, {p2(w)}')
                seen.add(s_)
        sm = lambda tm: SUMP + 2 * tm
        L += [f'v_add_f32 v{sm(tm)}, v{sm(tm)}, v{sm(tm) + 1}' for tm in range(10)]
        L += [f'v_permlane32_swap_b32 v{sm(tm)}, v{sm(tm + 1)}' for tm in range(0, 10, 2)]
        L += [f'v_add_f32 v{sm(tm)}, v{sm(tm)}, v{sm(tm + 1)}' for tm in (8, 0, 2, 4, 6)]
        L += [f'v_mov_b32 v{sm(9)}, v{sm(8)}', f'v_permlane16_swap_b32 v{sm(0)}, v{sm(2)}', f'v_permlane16_swap_b32 v{sm(4)}, v{sm(6)}',
              f'v_permlane16_swap_b32 v{sm(8)}, v{sm(9)}',
              f'v_add_f32 v{sm(0)}, v{sm(0)}, v{sm(2)}', f'v_add_f32 v{sm(4)}, v{sm(4)}, v{sm(6)}', f'v_add_f32 v{sm(8)}, v{sm(8)}, v{sm(9)}',
              f'ds_write_b32 v{vPc}, v{sm(0)}', f'ds_write_b32 v{vPc}, v{sm(4)} offset:256',
              's_mov_b32 exec_lo, 0xffff', 's_mov_b32 exec_hi, 0xffff', f'ds_write_b32 v{vPc}, v{sm(8)} offset:512', 's_mov_b64 exec, -1']
        L += ['s_waitcnt lgkmcnt(0)'] + self.stamp(4) + self.stamp_flush() + ['s_barrier', 's_endpgm']
        tc += self.seq(L)

        def wstage(slot):
            c = []
            for u in range(2):
                c += [f's_add_u32 m0, s{S_WMB}, {WR + slot * WSLOT + u * 1024}',
                      I(f'buffer_load_dwordx4 v{vWD[u]}, {srd(SRD_W)}, s{S_WSOFF} offen lds', tag='W')]
            return c + [f's_add_u32 s{S_WSOFF}, s{S_WSOFF}, {32 * 3328}']

        Q, TM, BP = 16, 56, [12, 13]
        TI, vWT = 70, 76
        SP = [36, 37, 38, 39, 40, 41, 42, 43, 48, 49]
        SI = [94, 95, 96, 97, 98, 99, 100, 101, 82, 83]

        def xaddr(f, pcs):
            c = []
            for odd in range(2):
                p_ = f + 26 * odd
                for pc in pcs:
                    c.append(f'v_add_u32_dpp v{TM + pc}, v{Q + 4 * pc + p_ % 4}, v{vCh[0]} row_newbcast:{p_ >> 2} row_mask:0xf bank_mask:{(3, 12)[odd]:#x}')
            return c

        def xld(pc, slot, tag='X'):
            return [f's_add_u32 m0, s{S_XM0}, {slot * XSLOT + pc * 2048}',
                    I(f'buffer_load_dwordx4 v{TM + pc}, {srd(SRD_TAB)}, 0 offen lds', tag=tag)]
        idxl = [f'buffer_load_dwordx4 {vr(Q + 4 * pc, 4)}, v{BP[0]}, {srd(SRD_IDX)}, s{SI[pc // 2]} offen offset:{(pc % 2) * 1664}' for pc in range(10)]
        LO, HI = range(5), range(5, 10)
        NR = (22 + o.tf - 1) // o.tf
        lw = S_CW
        self.mk0 = len(self.P.static)
        L = [f's_lshr_b32 s{S_T0}, s{lw}, 1', f's_mul_i32 s{S_T0}, s{S_T0}, 20', f's_and_b32 s{S_T1}, s{lw}, 1', f's_add_u32 s{S_T0}, s{S_T0}, s{S_T1}',
             f's_lshl_b32 s{S_XM0}, s{S_T0}, 10', f's_mul_i32 s{S_C0}, s{S_T3}, 104', f's_mul_i32 s{S_T0}, s{S_T0}, 832', f's_add_u32 s{SI[0]}, s{S_C0}, s{S_T0}',
             f'v_mul_u32_u24 v{q}, 48, v{g}', f'v_sub_u32 v{BP[0]}, v{vBL}, v{q}']
        L += [f's_add_u32 s{SI[k]}, s{SI[0]}, {k * 2 * 1664}' for k in range(1, 5)]
        L += [f's_and_b32 s{S_T2}, s{lw}, 1', f's_lshl_b32 s{S_T2}, s{S_T2}, 3',
              f'v_lshlrev_b32 v{i4}, 1, v{g}', f'v_or_b32 v{i4}, s{S_T2}, v{i4}', f'v_xor_b32 v{i4}, v{i4}, v0', f'v_and_b32 v{i4}, 15, v{i4}',
              f'v_mul_u32_u24 v{vWD[0]}, 3328, v{g}', f'v_lshl_add_u32 v{vWD[0]}, v{i4}, 4, v{vWD[0]}', f'v_add_u32 v{vWD[1]}, {4 * 3328}, v{vWD[0]}',
              f's_mul_i32 s{S_WSOFF}, s{lw}, {8 * 3328}', f's_add_u32 s{S_WSOFF}, s{S_WSOFF}, s{S_N0}', f's_lshl_b32 s{S_WMB}, s{lw}, 11',
              's_waitcnt lgkmcnt(0)']
        L += self.build_srd(SRD_IDX, S_IDX, 4096 * 104) + idxl[:o.i0] + self.tlb1(T + 14, T + 15) + self.build_srd(SRD_W, S_W1, 1664 * 3328)
        for sl in range(o.w0):
            L += wstage(sl)
        L += self.stamp0() + idxl[o.i0:]
        for sl in range(o.w0, 2):
            L += wstage(sl)
        L += [f's_lshl_b32 s{S_T2}, s{S_T1}, 6',
              f'v_and_b32 v{q}, 7, v0', f'v_xor_b32 v{q}, v{q}, v{g}', f'v_lshlrev_b32 v{q}, 4, v{q}', f'v_xor_b32 v{vCh[0]}, s{S_T2}, v{q}', f'v_xor_b32 v{vCh[1]}, 64, v{vCh[0]}',
              f's_mov_b32 s{S_LOOP}, 0',
              f's_mul_i32 s{S_T2}, s{lw}, 13', f's_add_u32 s{S_T2}, s{S_T2}, s{S_R}', f's_min_u32 s{S_T2}, s{S_T2}, 39', f's_lshl_b32 s{S_T2}, s{S_T2}, 3',
              f's_add_u32 s{S_T2}, s{S_T2}, s{S_T3}', f's_mul_i32 s{S_GRP}, s{S_T2}, 104',
              f'v_lshrrev_b32 v{q}, {o.tf.bit_length() - 1}, v0', f'v_min_u32 v{q}, 7, v{q}', f'v_mul_u32_u24 v{q}, 104, v{q}',
              f'v_and_b32 v{i4}, {o.tf - 1}, v0', f'v_lshl_add_u32 v7, v{i4}, 2, v{q}',
              f's_lshl_b32 s{S_T2}, s{S_MB}, 2', f's_add_u32 s{S_T2}, s{S_T2}, s{lw}', f's_add_u32 s{S_T2}, s{S_T2}, {o.tw0 * 32}', f's_mul_i32 s{S_RC}, s{S_T2}, 3328',
              f's_add_u32 s{S_RC}, s{S_RC}, s{S_N0}', f's_mov_b32 s{S_T2}, {52 * 3328}',
              f'v_lshrrev_b32 v{q}, 1, v0', f'v_mul_lo_u32 v{q}, s{S_T2}, v{q}', f'v_and_b32 v{i4}, 1, v0', f'v_lshl_add_u32 v{vWT}, v{i4}, 7, v{q}']
        L += self.build_srd(SRD_W2, S_W2, 3328)
        L += [f's_mul_i32 s{S_T2}, s{lw}, {o.lpf * 128}', f's_add_u32 s{S_T2}, s{S_T2}, L_tail-L_pc', f'v_lshlrev_b32 v8, 7, v0', f'v_add_u32 v8, s{S_T2}, v8',
              f'v_mov_b32 v9, s{S_MASK + 1}', f'v_add_co_u32 v8, vcc, s{S_MASK}, v8', 'v_addc_co_u32 v9, vcc, 0, v9, vcc']
        sh = lambda pc, c_: f'v_lshlrev_b32 v{Q + 4 * pc + c_}, 7, v{Q + 4 * pc + c_}'
        for pc in range(10):
            L += [sh(pc, 0), sh(pc, 2), sh(pc, 1), sh(pc, 3)] + xaddr(0, [pc]) + xld(pc, 0, 'X0a' if pc < o.sa else 'X0')
            if pc == 0:
                L += self.stamp(6)
            if pc == o.bwat:
                L += [WaitTag(vm_tags=['W']), 's_barrier']
        L += self.stamp(7)
        x1 = [x for pc in range(10) for x in xaddr(1, [pc]) + xld(pc, 1)]
        L += x1[:4 * o.x1n] + [WaitTag(vm_tags=['X0a'])] + self.stamp(1) + ['s_barrier'] + self.probe('s0') + x1[4 * o.x1n:4 * o.x1m]
        L += [WaitTag(vm_tags=['X0']), 's_barrier'] + x1[4 * o.x1m:] + wstage(2) + wstage(3) + xaddr(2, range(10))
        x2 = [x for pc in range(10) for x in xld(pc, 2)]
        L += x2[:2 * o.x2n] + [WaitTag(vm_tags=['W']), 's_barrier'] + x2[2 * o.x2n:] + xaddr(3, range(10))
        lpre = self.seq(L + [f's_setprio {o.lprio}', 's_branch L_ld_in'])
        del self.P.static[self.mk0:]
        self.P.static[self.ldat:self.ldat] = lpre
        self.mk0 = len(self.P.static)

        def lpair(p):
            S = ['s_barrier'] + (['L_ld_in:'] if p == 0 else []) + wstage(2 * (p % 2)) + wstage(2 * (p % 2) + 1)
            f2 = p + 4
            for pc in range(10):
                x = xld(pc, p % 3)
                S += [x[0]] + (xaddr(f2, [pc - 1])[:1] if pc else []) + [x[1]] + (xaddr(f2, [pc - 1])[1:] if pc else [])
            S += xaddr(f2, [9])
            if p >= 10:
                S += [f'v_mov_b32_dpp v{Q + 4 * pc + c_}, v{Q + 4 * pc + c_} row_shl:3 row_mask:0xf bank_mask:0xf' for pc in range(10) for c_ in ((0, 2) if p == 10 else (1, 3))]
            if p == 11:
                S += [f's_add_u32 s{S_LOOP}, s{S_LOOP}, 1', f's_cmp_lt_u32 s{S_LOOP}, 2']
            return S + [WaitTag(vm_tags=['W'])]
        body = self.seq(['L_dnn_loop1:'])
        for p in range(12):
            if p == 8 and o.lpf:
                body += self.seq([f's_cmp_lg_u32 s{S_LOOP}, 1', 's_cbranch_scc1 L_nolpf'])
                self.seq([f's_mov_b64 exec, {(1 << o.lpf) - 1}', 'global_load_dword v10, v[8:9], off', 's_mov_b64 exec, -1'] + small(SRD_W2, L_W2))
                body += self.seq(['L_nolpf:'])
            body += self.seq(lpair(p) + (['s_cbranch_scc1 L_dnn_loop1'] if p == 11 else []))
        tl = c0 + lpre + body * 2 + self.seq(['s_branch L_ld_tail'])
        self.ldblk = self.P.static[self.mk0:]
        del self.P.static[self.mk0:]
        tl += self.seq(['L_ld_tail:', 's_barrier'] + self.tlb2(T) + ['s_mov_b64 exec, 1', f'buffer_load_dword v250, v{T}, {srd(SRD_DBG)}, 0 offen offset:240 sc1', 's_mov_b64 exec, -1'])
        tl += self.seq(self.probe('s50'))
        if o.walk:
            tl += self.seq([f's_cmp_eq_u32 s{lw}, 0', 's_cbranch_scc1 L_wkd', 's_mov_b64 exec, 0', f's_cmp_eq_u32 s{lw}, 1', 's_cbranch_scc1 L_wk0',
                            f's_cmp_eq_u32 s{lw}, 2', f's_cbranch_scc1 L_wk{np_ // 3}', f's_branch L_wk{2 * np_ // 3}', 'L_wkd:'])
        A = 64
        L = [f's_cmp_lg_u32 s{S_WAVE}, 4', 's_cbranch_scc1 L_end',
             f'v_lshlrev_b32 v3, 4, v0', f'v_lshlrev_b32 v4, 2, v0', f'v_add_u32 v1, {RB}, v3', f'v_add_u32 v2, {RB + 1024}, v4', f'v_add_u32 v4, 1024, v4',
             'v_mov_b32 v5, 32', f'v_mov_b32 v7, s{S_MB}',
             f's_mul_i32 s{S_T0}, s{S_MB}, 1280', f's_mul_i32 s{S_T1}, s{S_R}, {WSP}', f's_add_u32 s{S_T1}, s{S_T1}, s{S_T0}', 's_setprio 3']
        if o.sent:
            L += [f'v_mov_b32 v{A + k}, -1' for k in range(4)] + [f'buffer_store_dwordx4 {vr(A, 4)}, v3, {srd(SRD_WS)}, s{S_T1} offen sc1',
                  f'buffer_store_dword v{A}, v4, {srd(SRD_WS)}, s{S_T1} offen sc1', 's_waitcnt vmcnt(0)']
        L += self.stamp_flush() + ['s_barrier'] + self.probe('dend')
        L += [f'ds_read_b128 {vr(A, 4)}, v1', f'ds_read_b128 {vr(A + 8, 4)}, v1 offset:1280', f'ds_read2st64_b32 {vr(A + 4, 2)}, v2 offset0:0 offset1:5',
              f'v_pk_add_f32 {p2(A)}, {p2(A)}, {p2(A + 8)}', f'v_pk_add_f32 {p2(A + 2)}, {p2(A + 2)}, {p2(A + 10)}', f'v_add_f32 v{A + 4}, v{A + 4}, v{A + 5}']
        if o.sent:
            L += [f'v_min_u32 v{A + k}, -2, v{A + k}' for k in range(5)]
        L += (self.stamp(16) if o.diag else [])
        L += [f'buffer_store_dwordx4 {vr(A, 4)}, v3, {srd(SRD_WS)}, s{S_T1} offen sc1',
              f'buffer_store_dword v{A + 4}, v4, {srd(SRD_WS)}, s{S_T1} offen sc1', 's_mov_b64 exec, 1']
        tl += self.seq(L)

        L = ['L_pub:']
        if o.skew:
            L += ['v_mov_b32 v20, s86', 'v_mov_b32 v21, s86', 'v_mov_b32 v22, s88', 's_lshl_b32 s89, s2, 7', 's_add_u32 s89, s89, 0x40000', 'v_lshlrev_b32 v23, 28, v0',
                  f'buffer_store_dwordx3 v[20:22], v23, {srd(SRD_WS)}, s89 offen sc1']
        def loads():
            c = [f's_mul_i32 s{S_T0}, s{S_T3}, 1280']
            for qq in range(14):
                c += [f'buffer_load_dwordx4 {vr(A + 8 * qq, 4)}, v3, {srd(SRD_WS)}, s{S_T0} offen sc1',
                      f'buffer_load_dword v{A + 8 * qq + 4}, v4, {srd(SRD_WS)}, s{S_T0} offen sc1', f's_add_u32 s{S_T0}, s{S_T0}, {WSP}']
            return c
        R_ = 56
        L += ['v_lshlrev_b32 v6, 4, v7'] + ([] if o.sent else ['s_waitcnt vmcnt(0)']) + ['v_mov_b32 v13, v5', f'buffer_atomic_add v5, v6, {srd(SRD_DBG)}, 0 offen sc0',
              'v_cmp_eq_u32 vcc, 12, v7', 'v_mov_b32 v8, 436', 'v_mov_b32 v9, 434', 'v_cndmask_b32 v8, v8, v9, vcc', 'v_sub_u32 v8, v8, v13']
        if o.spec:
            L += [f's_mov_b64 s[{S_MASK}:{S_MASK + 1}], exec', 's_mov_b64 exec, -1', f'v_readfirstlane_b32 s{S_T3}, v7'] + loads() + [f's_mov_b64 exec, s[{S_MASK}:{S_MASK + 1}]']
            L += ['s_waitcnt vmcnt(0) lgkmcnt(0)']
        else:
            L += ['s_waitcnt vmcnt(0) lgkmcnt(0)']
        L += (self.stamp(18) if o.diag else []) + [
             f'v_cmp_eq_u32 s[{S_EX}:{S_EX + 1}], v5, v8', 's_mov_b64 exec, -1', f's_lshl_b32 s{S_BOUT}, s{S_BOUT}, 16',
             'v_lshrrev_b32 v1, 1, v3', 'v_lshrrev_b32 v2, 1, v4']
        if o.spec:
            L += [f's_bitcmp1_b32 s{S_EX}, 0', f's_bitset0_b32 s{S_EX}, 0', 's_cbranch_scc1 L_sum']
        pa = self.seq(L)
        L = ['L_fin:', f's_cmp_eq_u32 s{S_EX}, 0', 's_cbranch_scc1 L_done',
             f's_ff1_i32_b32 s{S_T2}, s{S_EX}', f's_bitset0_b32 s{S_EX}, s{S_T2}', f'v_readlane_b32 s{S_T3}, v7, s{S_T2}', 's_waitcnt vmcnt(0)', 'L_again:'] + loads()
        pb = self.seq(L)
        L = ['L_sum:', f'v_pk_add_f32 {p2(R_)}, {p2(A)}, {p2(A + 8)}', f'v_pk_add_f32 {p2(R_ + 2)}, {p2(A + 2)}, {p2(A + 10)}', f'v_add_f32 v{R_ + 4}, v{A + 4}, v{A + 12}']
        for qq in range(2, 14):
            L += [f'v_pk_add_f32 {p2(R_)}, {p2(R_)}, {p2(A + 8 * qq)}', f'v_pk_add_f32 {p2(R_ + 2)}, {p2(R_ + 2)}, {p2(A + 8 * qq + 2)}',
                  f'v_add_f32 v{R_ + 4}, v{R_ + 4}, v{A + 8 * qq + 4}']
        if o.sent:
            L += [f'v_cmp_u_f32 vcc, v{R_}, v{R_ + 1}', f'v_cmp_u_f32 s[{S_MASK}:{S_MASK + 1}], v{R_ + 2}, v{R_ + 3}', f's_or_b64 s[{S_MASK}:{S_MASK + 1}], s[{S_MASK}:{S_MASK + 1}], vcc',
                  f'v_cmp_u_f32 vcc, v{R_ + 4}, v{R_ + 4}', f's_or_b64 vcc, s[{S_MASK}:{S_MASK + 1}], vcc', 's_cbranch_vccnz L_chk', 'L_ok:']
        L += [f's_mul_i32 s{S_T3}, s{S_T3}, 640']
        A0 = A
        A = R_
        L += [f'v_add_f32 v{A + k}, s{S_BOUT}, v{A + k}' for k in range(5)]
        L += [f'v_cvt_pk_bf16_f32 v10, v{A}, v{A + 1}', f'v_cvt_pk_bf16_f32 v11, v{A + 2}, v{A + 3}', f'v_cvt_pk_bf16_f32 v12, v{A + 4}, v{A + 4}',
              f'buffer_store_dwordx2 v[10:11], v1, {srd(SRD_OUT)}, s{S_T3} offen', f'buffer_store_short v12, v2, {srd(SRD_OUT)}, s{S_T3} offen']
        if o.skew:
            L += [f's_cmp_lg_u32 s{S_EX}, 0', 's_cbranch_scc1 L_fin', 'v_lshlrev_b32 v20, 7, v0', 's_mov_b32 s88, 0x40000']
            for k in range(4):
                L += [f'buffer_load_dwordx3 v[{32 + 4 * k}:{34 + 4 * k}], v20, {srd(SRD_WS)}, s88 offen sc1', 's_add_u32 s88, s88, 8192']
            L += ['s_waitcnt vmcnt(0)']
            for k in range(4):
                L += [f'v_sub_u32 v28, v{34 + 4 * k}, v{32 + 4 * k}', 'v_cmp_gt_u32 vcc, 5000, v28', f'v_cndmask_b32 v28, 0, v28, vcc',
                      f'v_cmp_eq_u32 vcc, v{32 + 4 * k}, v{33 + 4 * k}', f'v_cndmask_b32 v{33 + 4 * k}, 0, v28, vcc']
            L += ['v_max_u32 v26, v33, v37', 'v_max3_u32 v26, v26, v41, v45', 'v_mov_b32 v27, -1']
            if o.probe == 'span':
                L += ['s_memrealtime s[86:87]', 's_waitcnt lgkmcnt(0)', 'v_mov_b32 v26, s86']
            for (ctl, rm) in (('row_shr:1', '0xf'), ('row_shr:2', '0xf'), ('row_shr:4', '0xf'), ('row_shr:8', '0xf'), ('row_bcast:15', '0xa'), ('row_bcast:31', '0xc')):
                L += [f'v_max_u32_dpp v{r}, v{r}, v{r} {ctl} row_mask:{rm} bank_mask:0xf' for r in (26, 27)]
            L += ['v_not_b32 v27, v27', 'v_sub_u32 v22, v26, v27', 's_memrealtime s[86:87]', 'v_readlane_b32 s88, v22, 63', 's_waitcnt lgkmcnt(0)',
                  's_min_u32 s88, s88, 5000', f's_mul_i32 s88, s88, {o.skew - 1}', 's_add_u32 s88, s88, s86',
                  'L_spin:', 's_memrealtime s[86:87]', 's_waitcnt lgkmcnt(0)', 's_sub_u32 s89, s88, s86', 's_cmp_gt_i32 s89, 0', 's_cbranch_scc1 L_spin']
        L += self.stamp(5) + self.stamp_flush() + ['s_branch L_fin']
        pc_ = self.seq(L)
        if o.sent:
            L = ['L_chk:', 'v_mov_b32 v14, 0', 'v_mov_b32 v15, 0']
            for qq in range(14):
                L += [f'v_max3_u32 v14, v14, v{A0 + 8 * qq}, v{A0 + 8 * qq + 1}', f'v_max3_u32 v14, v14, v{A0 + 8 * qq + 2}, v{A0 + 8 * qq + 3}', f'v_max_u32 v15, v15, v{A0 + 8 * qq + 4}']
            L += [f's_cmp_eq_u32 s{S_T3}, 12', f's_cselect_b32 s{S_T0}, 0, -1', f'v_and_b32 v15, s{S_T0}, v15', 'v_max_u32 v14, v14, v15',
                  'v_cmp_eq_u32 vcc, -1, v14', 's_cbranch_vccnz L_again', 's_branch L_ok']
            self.chk = self.seq(L)
        pe = self.seq(['L_done:', 's_endpgm'])
        self.pub = pa + pb + pc_ + pe
        self.extra_traces = [pa + pc_ + pb + pc_] + ([pa + pb + pc_[:45] + self.chk + pb[7:] + pc_] if o.sent else [])
        return [tc, tl + self.pub]

    def pubsrd(self):
        return self.build_srd(SRD_WS, S_WS, 0x10000000) + self.build_srd(SRD_OUT, S_OUT, 8192) + self.build_srd(SRD_DBG, S_DBG, 256)

    def tables(self):
        OOB = 0x100000
        G = [[] for _ in range(11)]
        for l in range(64):
            half, i32, g, r, c = l >> 5, l & 31, l >> 4, (l >> 2) & 3, l & 3
            lin0 = g * 128 + r * XPP + c * 8
            G[0] += [lin0, lin0 + 512 if g < 3 else XOFF(27) + c * 8, (l >> 3) * 16, 0x3f803f80 if l < 32 else 0]
            G[1] += [(l & 7) * 16, 0xeeee if l & 1 else 0x4444, half * XPP + i32 * 4, IMG + half * 20 * IMGP + i32 * 4]
            tr = [IMG + cin16.IMGROW(cin16.LAB[g][2 * rp + (r >> 1)][r & 1]) * IMGP + c * 8 for rp in range(8)]
            G[2] += tr[:4]
            G[3] += tr[4:]
            row, col = 8 * half + r, (g & 1) * 32 + c * 8
            G[4] += [V3OFF + row * 64 + col, A1 + row * 1352 + col, A1 + min(row + 16, 25) * 1352 + col, A1 + min(row + 20, 25) * 1352 + col]
            t, gd, rr = (i32 >> 2) & 1, i32 >> 3, i32 & 3
            ig = 16 * t + 4 * rr + gd
            iq = 4 * rr + gd if t == 0 else 16 + ((4 * rr + gd + 4) & 15)
            pm = []
            for q in range(8):
                k0 = 16 * (q >> 2) + 8 * half + 2 * (q & 3)
                pm.append((0xffff if iq == k0 else 0xffff0000 if iq == k0 + 1 else 0) if iq < 26 else 0)
            G[5] += pm[:4]
            G[6] += pm[4:]
            ga = A2 + 52 * ig if ig < 26 else OOB
            rowp = ((l & 12) + 2 * (l & 1)) * 16 + (OOB if l & 2 else 0)
            G[7] += [ga + half * 8 * W2P, ga + half * OOB, rowp + half * 256 + (g & 1) * 8, rowp + g * 256]
            G[8] += [SG + i32 * 64 if i32 < 26 else V2S if i32 == 26 else OOB, 64 if i32 == 26 else 3328, (i32 >> 1) + 2 * half,
                     SQ + i32 * 64 + ((((i32 >> 1) & 3) ^ (2 * half)) << 4)]
            v2 = []
            for hf in range(2):
                j = 4 * g + 16 * hf + r
                v2.append(V2S + (j & 1) * 1664 + (j >> 1) * 64 + ((c ^ (((13 + j) & 3) * 2)) * 8) if j < 26 else SG + 676 * 64 + c * 8)
            wo = [L_WCO + 2 * (16 * tl_ + 4 * c + r) if 16 * tl_ + 4 * c + r < 26 else OOB for tl_ in range(2)]
            G[9] += v2 + wo
            G[10] += [L_WCO + 104 + 16 * half, L_WCO + 52 + 2 * l, V3OFF + 52 + 64 * l, SG + 676 * 64 + (l & 15) * 4]
        U = []
        for w in range(8):
            for e in range(16):
                for u in (w, w + 8, w + 16):
                    U += [SG + row * 64 + f * 8 for row, f in cin16.p2rows(u, e >> 2, e & 3)] if u < 22 else [0, 0]
        return [x for n in (4, 2, 3, 0, 5, 6, 7, 8, 9, 1, 10) for x in G[n]] + [0] * 256 + U + [0] * 256

    def cin(self):
        o = self.opt
        cw = S_CW
        vFa, vLin0, vLin1, vXi0, vXi1, vC16, vIDX, vXa, vIw, vPWL, vPXL, PXR, PFR = 1, 4, 5, 6, 7, 8, 9, 10, 11, 12, 13, 3, 14
        XI, vTR = 16, 20
        XR, P, Z, WF, D = 32, 60, 116, 164, 184
        vStg, vFR, vFw = vFa, 2, 59
        t3, t4, t5 = 29, 30, 31
        AV = [28, 58]
        PM = 216
        vA3, vBs0, vBs1a, vBs1b, vGa, vGb, vT3, vT3d = range(224, 232)
        G8, vV2r, vV2q, vWo, AD = 232, 236, 237, 238, 240
        WA = list(range(244, 250))
        vS, vMx = 250, 111
        UA, UX = 224, [232, 233, 234, 235, 240, 241]
        AFR = 112
        BALL, DALL = 60, 120
        S_F1, S_F2, S_G, S_LO, S_HI, S_CM, S_U0, S_U1, S_U2 = 74, 75, 95, 96, 97, 90, 98, 99, 100
        S_CG, S_IV = 0, 1
        OOB = 0x100000
        TA_, TB_, TC_ = SG + 35840, SQ + 26 * W2P, FRS + 2048
        GREG = [224, 20, 24, 4, 216, 220, 228, 232, 236, 8, 240]
        DPPS = (('row_shr:1', '0xf'), ('row_shr:2', '0xf'), ('row_shr:4', '0xf'), ('row_shr:8', '0xf'),
                ('row_bcast:15', '0xa'), ('row_bcast:31', '0xc'))

        K_W7, K_IMG, K_W2, K_W1, K_W12, K_H8, K_T3 = 44, 45, 46, 47, 92 - 10, 92 - 9, 101
        L = ['L_cin:', f'v_lshlrev_b32 v{vStg}, 4, v0', f's_and_b32 s{cw}, s{S_WAVE}, 3', f's_lshr_b32 s{S_GRP}, s{S_WAVE}, 2', f's_lshl_b32 s{S_STG}, s{cw}, 10',
             f's_mul_i32 s{S_MB}, s{S_T0}, 11', f's_add_u32 s{S_MB}, s{S_MB}, s{S_T1}', f's_sub_u32 s{S_MB}, s{S_MB}, 22',
             f's_cmp_eq_u32 s{S_MB}, 86', 's_cbranch_scc1 L_end', f's_cmp_eq_u32 s{S_GRP}, 0', 's_cbranch_scc1 L_sc']
        c0 = self.seq(L)
        L = ['s_setprio 2', f'v_add_u32 v2, L_tables-L_pc+4096, v{vStg}', f'v_mov_b32 v3, s{S_MASK + 1}',
             f'v_add_co_u32 v2, vcc, s{S_MASK}, v2', 'v_addc_co_u32 v3, vcc, 0, v3, vcc',
             f'v_add_co_u32 v{XR}, vcc, s{S_STG}, v2', f'v_addc_co_u32 v{XR + 1}, vcc, 0, v3, vcc',
             f'global_load_dwordx4 {vr(GREG[0], 4)}, v[2:3], off offset:-4096',
             'v_add_co_u32 v2, vcc, 0x1800, v2', 'v_addc_co_u32 v3, vcc, 0, v3, vcc', f'global_load_dwordx4 {vr(GREG[10], 4)}, v[2:3], off',
             f's_cmp_lt_u32 s{cw}, 3', f's_mov_b32 s{S_T2}, {TB_ - 3072}', f's_cselect_b32 s{S_T2}, {TA_ + 4096}, s{S_T2}']
        tdma = lambda off: I(f'global_load_lds_dwordx4 {vr(XR, 2)}, off offset:{off}', tag='TAB')
        L += [f's_add_u32 m0, s{S_STG}, {TA_ + 4096}', tdma(-4096), f's_add_u32 m0, s{S_STG}, s{S_T2}', tdma(0),
              f'v_add_co_u32 v{XR}, vcc, 0x2000, v{XR}', f'v_addc_co_u32 v{XR + 1}, vcc, 0, v{XR + 1}, vcc',
              f's_add_u32 m0, s{S_STG}, {TC_}', tdma(0), f's_add_u32 m0, s{S_STG}, {TB_ + 1024 + 4096}', f's_cmp_ge_u32 s{cw}, 2', 's_cbranch_scc1 L_sc']
        g1s = self.seq(L)
        L = [tdma(-4096)]
        g1t = self.seq(L)
        L = ['L_sc:', f's_mul_i32 s{S_RC}, s{S_GRP}, 20', f's_add_u32 s{S_RC}, s{S_RC}, s{S_WAVE}',
             f's_mul_i32 s{S_SAMP}, s{S_MB}, 48', f's_add_u32 s{S_SAMP}, s{S_SAMP}, s{S_RC}', f's_mul_i32 s{S_SAMP}, s{S_SAMP}, 104',
             f'v_lshrrev_b32 v{t4}, 3, v0', f'v_lshlrev_b32 v{t4}, 4, v{t4}', f'v_and_b32 v{t3}, 0x70, v{vStg}',
             f's_mul_i32 s{S_XM0}, s{S_WAVE}, {XBSZ}', f's_add_u32 s{S_XM0}, s{S_XM0}, {XB}', f's_cmp_eq_u32 s{S_GRP}, 0', 's_cbranch_scc1 L_g0']
        csc = self.seq(L)
        SC2 = [f's_lshl_b32 s{S_RC}, s{S_RC}, 2', f's_add_u32 s{S_RC}, s{S_RC}, {RC}',
               f's_mul_i32 s{S_LOOP}, s{S_GRP}, 3', f's_sub_u32 s{S_LOOP}, 4, s{S_LOOP}', (f's_cmp_eq_u32 s{S_MB}, 85', f's_cselect_b32 s{S_LOOP}, s{S_LOOP}, 6'),
               f's_lshl_b32 s{K_W7}, s{S_WAVE}, 7', f's_mul_i32 s{K_IMG}, s{S_WAVE}, {IMGSZ}', f's_lshl_b32 s{K_W2}, s{S_WAVE}, 2', f's_lshl_b32 s{K_W1}, s{S_WAVE}, 1',
               f's_lshl_b32 s{K_W12}, s{S_WAVE}, 12',
               f's_and_b32 s{S_U0}, s{S_WAVE}, 1', f's_lshr_b32 s{S_U1}, s{S_WAVE}, 1',
               f's_mul_i32 s{S_T0}, s{S_U1}, 3072', f's_lshl_b32 s{K_H8}, s{S_U0}, 3', f's_add_u32 s{S_T0}, s{S_T0}, s{K_H8}', f'v_add_u32 v{vFw}, s{S_T0}, v{vStg}',
               f's_lshl_b32 s{S_T1}, s{S_U1}, 3', f's_lshr_b32 s{S_T1}, 0x05030200, s{S_T1}', f's_and_b32 s{S_T1}, s{S_T1}, 0xff',
               f's_lshl_b32 s{S_T1}, s{S_T1}, 9', f's_lshl_b32 s{S_T2}, s{S_U0}, 2', f's_add_u32 s{K_T3}, s{S_T1}, s{S_T2}',
               f's_mov_b32 s{S_U1}, 0x05040100', f's_mov_b32 s{S_U2}, 0x07060302',
               f'v_mov_b32 v{vFR}, {L_FLG}', 'v_mov_b32 v109, 0', 'v_mov_b32 v108, 0'] + [f'v_mov_b64 {vr(r, 2)}, 0' for r in range(XR, XR + 26, 2)]
        XJ = 104
        assert not (o.pfx or o.pfw)

        def pfw():
            return [f'buffer_load_dword v{PFR}, v{vPWL}, {srd(SRD_W)}, s{S_PW} offen',
                    f's_add_u32 s{S_PW}, s{S_PW}, {o.pfne * 688 * 128}']

        def pfx_a():
            return [f'buffer_load_dword v{PXR}, v{vPXL}, {srd(SRD_IDX)}, s{S_PX} offen',
                    f's_cmp_eq_u32 s{S_PX}, s{S_PXE}', f's_cselect_b32 s{S_PXE}, 0x7000000, s{S_PXE}',
                    f's_cselect_b32 s{S_PX}, 0x7000000, s{S_PX}',
                    f's_add_u32 s{S_PX}, s{S_PX}, 24', f's_min_u32 s{S_PX}, s{S_PX}, s{S_PXE}']

        def pfx_b():
            return [f'v_lshlrev_b32 v{PXR}, 7, v{PXR}', f'buffer_load_dword v{PFR + 1}, v{PXR}, {srd(SRD_TAB)}, 0 offen']

        def xidx(XI=XI, vXi0=vXi0):
            return [f'buffer_load_dwordx4 {vr(XI, 4)}, v{vXi0}, {srd(SRD_IDX)}, s{S_SAMP} offen', f's_add_u32 s{S_SAMP}, s{S_SAMP}, {4 * 104}']

        def xdma(XI=XI, off=0, tag='XB', vC16=vC16):
            c = [f'v_lshl_add_u32 v{XI + u}, v{XI + u}, 7, v{vC16}' for u in range(4)]
            for u in range(4):
                c += [f's_add_u32 m0, s{S_XM0}, {u * XPP + off}']
                if u % 2 == 0:
                    c.append(f's_mov_b32 exec_hi, {0xffffff if u == 0 else 0xffff:#x}')
                c.append(I(f'buffer_load_dwordx4 v{XI + u}, {srd(SRD_TAB)}, 0 offen lds', tag=tag))
            return c + ['s_mov_b32 exec_hi, -1']

        def stage(dst, goff, tag):
            st = []
            for m in range(9):
                st.append((f's_add_u32 m0, s{S_STG}, {dst + m * 4096}', f's_add_u32 s{S_TW}, s{S_STG}, {goff + m * 4096}',
                           I(f'buffer_load_dwordx4 v{vStg}, {srd(SRD_CIN)}, s{S_TW} offen lds', tag=tag)))
            return st

        def pubmax(regs_offs):
            c = []
            for (ctl, rm) in DPPS:
                for r, _ in regs_offs:
                    c.append(f'v_max_u32_dpp v{r}, v{r}, v{r} {ctl} row_mask:{rm} bank_mask:0xf')
            c += ['s_mov_b32 exec_lo, 0', 's_mov_b32 exec_hi, 0x80000000']
            c += [f'ds_max_u32 v{vFR}, v{r} offset:{16 + 4 * k}' for r, k in regs_offs]
            return c + ['s_mov_b64 exec, -1']

        def mxop(src, n, mx, first):
            return [f'v_mfma_f32_16x16x32_bf16 {vr(mx, 4)}, {vr(src + r, 4)}, {vr(src + r, 4)}, {"0" if first and r == 0 else vr(mx, 4)}' for r in range(0, n, 4)]

        def mxfin(mx):
            return [f'v_max3_f32 v{mx}, v{mx}, v{mx + 1}, 0', f'v_max3_f32 v{mx}, v{mx}, v{mx + 2}, v{mx + 3}']

        def bread(m, off):
            b = BALL + m * 8
            return [f'ds_read_b64_tr_b16 {vr(b, 2)}, v{vBs0} offset:{off}',
                    f'ds_read_b64_tr_b16 {vr(b + 2, 2)}, v{vBs0} offset:{off + 4 * 1352}',
                    f'ds_read_b64_tr_b16 {vr(b + 4, 2)}, v{vBs1a} offset:{off}',
                    f'ds_read_b64_tr_b16 {vr(b + 6, 2)}, v{vBs1b} offset:{off}']

        def mm2(d, a, b):
            return [f'v_mfma_f32_32x32x16_bf16 {vr(d, 16)}, {vr(a, 4)}, {vr(b, 4)}, 0',
                    f'v_mfma_f32_32x32x16_bf16 {vr(d, 16)}, {vr(a + 4, 4)}, {vr(b + 4, 4)}, {vr(d, 16)}']

        tA, tB = 250, 251
        trd = lambda n: f'ds_read_b128 {vr(GREG[n], 4)}, v{tA if n < 7 else tB} offset:{(n if n < 7 else n - 7) * 1024}'
        vbs = [f'v_add_u32 v{r}, s{K_W7}, v{r}' for r in (vBs0, vBs1a, vBs1b)]

        def FX(g):
            R = [trd(n) for n in ((0,) if g == 0 else ()) + (6, 7, 3, 9, 1, 2, 4, 5, 8)]
            F = vbs + [f'v_add_u32 v{r}, s{K_W2}, v{r}' for r in (vGa, vGb)]
            F += [f'v_add_u32 v{vT3d}, s{K_H8}, v{vT3d}', f'v_add_u32 v{vT3}, s{K_T3}, v{vT3}']
            F += [f'v_mad_u32_u24 v{G8}, v{G8 + 1}, s{S_WAVE}, v{G8}', f'v_add_u32 v{G8 + 2}, s{K_W1}, v{G8 + 2}',
                  f'v_mad_u32_u24 v{G8 + 1}, v{G8 + 1}, 8, v{G8}', f'v_add_u32 v{WA[2]}, s{K_W12}, v{G8 + 3}', f'v_add_u32 v{WA[3]}, 2048, v{WA[2]}']
            for n_, (wa, bs) in enumerate(((WA[0], G8), (WA[1], G8), (WA[4], G8 + 1), (WA[5], G8 + 1))):
                F += [f'v_add_u32 v{t5}, {n_ & 1}, v{G8 + 2}', f'v_and_b32 v{t5}, 3, v{t5}', f'v_lshl_add_u32 v{wa}, v{t5}, 4, v{bs}']
                if n_ & 1:
                    F.append(f'v_add_u32 v{wa}, 1664, v{wa}')
            F += [f'v_add_u32 v{r}, s{S_XM0}, v{r}' for r in (vXa, vLin0, vLin1)] + [f'ds_write_b32 v{vXa}, v{vXi1} offset:{XOFF(26)}']
            F += [f'v_add_u32 v{r}, s{K_IMG}, v{r}' for r in [vIw] + list(range(vTR, vTR + 8))]
            return R, F
        SC2 += [f'v_add_u32 v{tA}, {TA_}, v{vStg}', f'v_add_u32 v{tB}, {TB_}, v{vStg}', f'v_lshrrev_b32 v3, 5, v0', f'v_lshl_add_u32 v3, v3, 2, v{vFR}']

        def pub2(r1, r2, off):
            c = [f'v_permlane32_swap_b32 v{r1}, v{r2}', f'v_max_u32 v{r1}, v{r1}, v{r2}']
            c += [f'v_max_u32_dpp v{r1}, v{r1}, v{r1} {ctl} row_mask:{rm} bank_mask:0xf' for ctl, rm in DPPS[:5]]
            return c + ['s_mov_b32 exec_lo, 0x80000000', 's_mov_b32 exec_hi, 0x80000000', f'ds_max_u32 v3, v{r1} offset:{16 + off}', 's_mov_b64 exec, -1']
        AV = [28, 58, 111]
        L = ['s_waitcnt lgkmcnt(0)'] + self.build_srd(SRD_WCO, S_WCO, 156) + [f's_mov_b32 m0, {L_WCO}', 's_mov_b64 exec, 0x7ff',
             I(f'buffer_load_dwordx4 v{vStg}, {srd(SRD_WCO)}, 0 offen lds', tag='WCO'), 's_mov_b64 exec, -1'] + self.stamp0() + SC2
        L += self.build_srd(SRD_IDX, S_IDX, 4096 * 104) + self.build_srd(SRD_TAB, S_TAB, 100000 * 128)
        XK = 252 - 4 if False else 12
        if o.xg1:
            L += [f's_sub_u32 s{S_T0}, s{S_SAMP}, {24 * 104}', f'buffer_load_dwordx4 {vr(XI, 4)}, v{t4}, {srd(SRD_IDX)}, s{S_T0} offen',
                  f'buffer_load_dwordx4 {vr(XK, 4)}, v{t4}, {srd(SRD_IDX)}, s{S_T0} offen offset:{4 * 104}']
        L += [f'ds_write_b128 v{vFR}, {vr(XR, 4)} offset:16', f's_lshl_b32 s{S_T0}, s{cw}, 6', f'v_add_u32 v{t3}, s{S_T0}, v0']
        for p_ in range(3):
            L += [f'v_mul_u32_u24 v{t4}, 2521, v{t3}', f'v_lshrrev_b32 v{t4}, 16, v{t4}', f'v_mul_u32_u24 v{t4}, 12, v{t4}', f'v_lshl_add_u32 v{AV[p_]}, v{t3}, 1, v{t4}']
            L += [f'v_add_u32 v{t3}, 256, v{t3}'] if p_ < 2 else [f'v_cmp_gt_u32 vcc, 676, v{t3}', f's_mov_b64 s[{S_MASK}:{S_MASK + 1}], vcc']
        L += [f'v_lshlrev_b32 v{t3}, 3, v0', 's_mov_b32 exec_hi, 0xffff', f'ds_write_b64 v{t3}, {vr(XR, 2)} offset:{V3OFF + 26 * 64}', 's_mov_b32 exec_hi, -1',
              f'ds_write_b32 v{AD + 3}, v{XR}', f'ds_write_b32 v{AD + 3}, v{XR} offset:{SSZ}', WaitTag(vm_tags=['WCO'])]
        assert V3OFF == 0
        for s2 in range(2):
            for rd in range(2):
                L.append(f'ds_read_b64 {vr(AFR + 4 * s2 + 2 * rd, 2)}, v{AD} offset:{s2 * 32 + rd * 8}')
        L += [f'ds_read_u16 v110, v{AD + 1}',
              's_mov_b64 exec, 0x3ffffff', f'ds_write_b16 v{AD + 2}, v110', 'v_lshlrev_b32 v109, 17, v110', 'v_lshrrev_b32 v109, 1, v109', 's_mov_b64 exec, -1']
        if o.cwalk:
            L += ['s_mov_b64 exec, 0'] + [x for q_ in range(3) for x in (f's_cmp_eq_u32 s{cw}, {q_}', f's_cbranch_scc1 L_WENTRY{q_}')] + ['s_branch L_WENTRY3', 'L_wret:', 's_mov_b64 exec, -1']
        L += (FX(1)[1] if o.dirt else vbs) + [WaitTag(vm_tags=['TAB'], lgkm0=True)] + self.probe('tab')
        v3p = []
        L += ['s_barrier'] + self.stamp(2) + self.probe('b0')
        vb = lambda m: A3 - A1 - 512 + (m >> 1) * 512 + (m & 1) * 64
        for m in range(3):
            L += bread(m, vb(m))
        for m in range(6):
            if m + 3 < 6:
                L += bread(m + 3, vb(m + 3))
            L += mm2(DALL + m * 16, AFR, BALL + m * 8)
            if m == 3 and not o.dirt:
                L += FX(1)[0]
        if not o.dirt:
            L += FX(1)[1][3:]
        for p_ in range(3):
            L += ['s_mov_b32 exec_lo, 0', f'v_mov_b32 v{DALL + 32 * p_}, v{DALL + 32 * p_ + 16}', 's_mov_b32 exec_lo, -1',
                  f'v_cvt_pk_bf16_f32 v{BALL + p_}, 0, v{DALL + 32 * p_}']
            if p_ == 2:
                L += [f's_mov_b64 exec, s[{S_MASK}:{S_MASK + 1}]']
            L += [f'ds_write_b16_d16_hi v{AV[p_]}, v{BALL + p_}', f'v_max_f32 v108, |v{BALL + p_}|, v108']
        L += ['s_mov_b64 exec, -1'] + pub2(108, 109, 8) + self.stamp(13) + [f's_setprio {o.g1p}', 's_waitcnt lgkmcnt(0)', 's_barrier', 's_branch L_w2']
        v3 = self.seq(L)

        def stage3(dst, goff, tag, lab, mid=None, fill=()):
            st = stage(dst, goff, tag)
            a_ = st[:8] if mid is None else st[:mid[0]] + [tuple(mid[1])] + st[mid[0]:8]
            return (self.seq(interleave(a_, list(fill)) + [f's_cmp_eq_u32 s{cw}, 3', f's_cbranch_scc1 {lab}']), self.seq([st[8]]), self.seq([f'{lab}:']))
        g0 = [self.seq(['L_g0:', 's_waitcnt lgkmcnt(0)'] + self.build_srd(SRD_CIN, S_CIN, 105456))]
        g0.append(stage3(A3, 70304, 'W3', 'L_st3'))
        g0.append(self.seq(self.stamp0() + self.build_srd(SRD_IDX, S_IDX, 4096 * 104) + ([f's_add_u32 s{S_SAMP}, s{S_SAMP}, {8 * 104}'] if o.xg1 else xidx(XI, t4) + xidx(XJ, t4)) + self.build_srd(SRD_TAB, S_TAB, 100000 * 128)))
        def w2grp(n):
            c = []
            for k, go in enumerate((0, 1024, 1864)):
                c.append((f's_add_u32 m0, s{S_STG9}, {A2 + n * 4 * 3072 + k * 1024}', f's_add_u32 s{S_TW}, s{S_TGT}, {35152 + n * 4 * 2704 + go}',
                          I(f'buffer_load_dwordx4 v{t5 if k == 1 else vStg}, {srd(SRD_CIN)}, s{S_TW} offen lds', tag='W2')))
            return c
        g0.append((self.seq([f's_mul_i32 s{S_STG9}, s{cw}, 3072', f's_mul_i32 s{S_TGT}, s{cw}, 2704', f'v_lshrrev_b32 v{t5}, 5, v0', f'v_mul_u32_u24 v{t5}, 184, v{t5}',
                             f'v_sub_u32 v{t5}, v{vStg}, v{t5}'] + interleave(w2grp(0) + w2grp(1) + w2grp(2), SC2) + [f's_cmp_lg_u32 s{cw}, 0', 's_cbranch_scc1 L_st2']),
                   self.seq(w2grp(3)), self.seq(['L_st2:']), 1))
        xx = xdma(vC16=t3, tag='XBa') + xdma(XJ, 4 * XBSZ, vC16=t3)
        g0.append(stage3(A1, 0, 'W1', 'L_st1', (o.sigat, [WaitTag(vm_tags=['W2' if o.mrg else 'W3']), 's_barrier'] + self.stamp(2) + FX(0)[0])))
        g0.append(self.seq(([] if o.xg1 else xx) + FX(0)[1] + self.stamp(13) + [WaitTag(vm_tags=['W1']), 's_barrier']))

        def G0(w):
            r = []
            for x in g0:
                r += x if isinstance(x, list) else x[0] + (x[1] if w < (3 if len(x) == 3 else x[3]) else []) + x[2]
            return r

        def gather(dst, off):
            c = [f'v_add_u32 v{r}, {off}, v{r}' for r in (vGa, vGb)] if off else []
            for s2 in range(2):
                for e in range(0, 8, 2):
                    base = vGb if (s2 == 1 and e >= 2) else vGa
                    h = 16 * s2 + e
                    c.append(f'ds_read2st64_b32 {vr(dst + 8 * s2 + e, 2)}, v{base} offset0:{6 * h} offset1:{6 * h + 6}')
            return c

        def perms(g_, aj):
            return [f'v_perm_b32 v{aj + 8 * jj + r}, v{g_ + 2 * r + 1}, v{g_ + 2 * r}, s{S_U1 + jj}' for jj in range(2) for r in range(8)]

        def sout(t):
            d, c_ = DALL + 16 * t, DALL + 16 * t
            c = [f'v_cvt_pk_f16_f32 v{c_ + r}, v{d + 2 * r}, v{d + 2 * r + 1}' for r in range(8)]
            return c[:4] + [f'ds_write_b128 v{WA[t]}, {vr(c_, 4)}', f'v_xor_b32 v{WA[t]}, 16, v{WA[t]}'] + c[4:] + [f'ds_write_b128 v{WA[t]}, {vr(c_ + 4, 4)}']
        M1, M2 = 28, 28

        def pub1(r, off):
            c = [f'v_max_u32_dpp v{r}, v{r}, v{r} {ctl} row_mask:{rm} bank_mask:0xf' for ctl, rm in DPPS]
            return c + [('s_mov_b32 exec_lo, 0', 's_mov_b32 exec_hi, 0x80000000', f'ds_max_u32 v{vFR}, v{r} offset:{16 + off}', 's_mov_b64 exec, -1')]
        L = ['L_w2:'] + self.stamp(14) + self.probe('bw2') + gather(BALL, 0)
        cx = []
        if o.xg1:
            cc0 = self.seq(L + [f's_cmp_eq_u32 s{S_GRP}, 0', 's_cbranch_scc1 L_nx1'])
            cx = self.seq(xdma(XI, -4 * XBSZ) + xdma(XK))
            L = ['L_nx1:']
        else:
            cc0 = []
        L += [f's_cmp_ge_u32 s{S_WAVE}, 5', 's_cbranch_scc1 L_u0']
        cc = self.seq(L)
        M1, M2 = 28, 108
        fin2 = lambda: interleave(mxfin(M1), mxfin(M2)) + [tuple(x) if isinstance(x, list) else x for x in pub2(M1, M2, 0)[:7] + [pub2(M1, M2, 0)[7:]]]
        afr = [f'ds_read_b64_tr_b16 {vr(AFR + 4 * s2 + 2 * rd, 2)}, v{vA3} offset:{s2 * 1024 + rd * 256}' for s2 in range(2) for rd in range(2)]
        b1u = self.seq(gather(BALL + 32, 32) + bread(2, 0) + bread(3, 64) + afr + mxop(BALL, 16, M2, True) + perms(BALL, DALL + 64)[:8] + mxop(BALL + 32, 16, M2, False)
                       + mxop(BALL + 16, 16, M1, True) + perms(BALL, DALL + 64)[8:] + interleave(fin2(), perms(BALL + 32, BALL)) + ['s_branch L_u1'])
        L = ['L_u0:'] + bread(2, 0) + bread(3, 64) + bread(4, 384) + bread(5, 384 + 64) + afr + mxop(BALL, 16, M2, True) + mxop(BALL + 16, 32, M1, True)
        L += perms(BALL, DALL + 64)[:4] + interleave(fin2(), perms(BALL, DALL + 64)[4:])
        L += [f'v_add_u32 v{WA[4]}, {192 * 64}, v{WA[2]}', f'v_add_u32 v{WA[5]}, {192 * 64}, v{WA[3]}',
              f's_cmp_lg_u32 s{S_WAVE}, 7', 's_cbranch_scc1 L_u1', 's_mov_b32 exec_lo, 0xfffffff0', 's_mov_b32 exec_hi, 0xfffffff0', f'v_mov_b32 v{WA[5]}, {OOB}', 's_mov_b64 exec, -1']
        b1q = self.seq(L)
        MXR = 108
        vM = 58

        def ureads(j):
            return [f'ds_read_u16_d16_hi v{XR + 2 * j}, v{vXa} offset:{XOFF(2 * j)}',
                    f'ds_read_u16_d16_hi v{XR + 2 * j + 1}, v{vXa} offset:{XOFF(2 * j) + 2}']
        mx3 = lambda j: f'v_max3_f32 v{vM}, |v{XR + 2 * j}|, |v{XR + 2 * j + 1}|, {"0" if j == 0 else f"v{vM}"}'
        L = ['L_u1:'] + self.stamp(1) + [WaitTag(lgkm0=True), 's_barrier'] + self.stamp(7) + self.probe('b1')
        L += [f'ds_read_b128 {vr(MXR, 4)}, v{vFR} offset:16']
        L += [f's_mul_i32 s{S_T0}, s{S_WAVE}, 384', f'v_lshrrev_b32 v{t3}, 2, v0', f'v_mul_u32_u24 v{t3}, 24, v{t3}', f'v_add_u32 v{t3}, s{S_T0}, v{t3}',
              f'v_and_b32 v{t4}, 3, v0', f'v_lshlrev_b32 v{t4}, 3, v{t4}']
        L += [f'ds_read_b64 {vr(UA + 2 * n_, 2)}, v{t3} offset:{TC_ + 8 * n_}' for n_ in range(3)]
        q1 = [f'v_add_u32 v{MXR}, {127 << 23:#x}, v{MXR}', f'v_lshrrev_b32 v{MXR}, 24, v{MXR}', f'v_sub_u32 v{MXR}, 267, v{MXR}', f'v_min_u32 v{MXR}, 167, v{MXR}',
              f'v_readfirstlane_b32 s{S_F1}, v{MXR}', f'v_mul_u32_u24 v{MXR}, 0x800080, v{MXR}']
        sc = [f'v_add_u32 v{MXR + 1}, {127 << 23:#x}, v{MXR + 1}', f'v_lshrrev_b32 v{MXR + 1}, 24, v{MXR + 1}',
              's_mov_b32 vcc_lo, 0x4000000', 's_mov_b32 vcc_hi, 0x4000000', f'v_cndmask_b32 v{vS}, v{MXR + 2}, v{MXR + 3}, vcc', f'v_lshrrev_b32 v{vS}, 23, v{vS}',
              f'v_add_u32 v{vS}, v{vS}, v{MXR + 1}', f'v_sub_u32 v{vS}, 388, v{vS}', f's_movk_i32 s{S_U0}, 167', f'v_med3_i32 v{vS}, v{vS}, 1, s{S_U0}',
              f'v_subrev_u32 v{MXR + 2}, 127, v{vS}', f'v_lshlrev_b32 v{vS}, 23, v{vS}', f'v_cmp_gt_i32 vcc, 0, v{MXR + 2}',
              f'v_mul_u32_u24 v{MXR + 2}, 0x800080, v{MXR + 2}']
        mq = mm2(DALL + 32, PM, BALL + 16) + mm2(DALL + 48, PM, BALL + 24)
        L += interleave(q1, sc[:6]) + [f'v_and_b32 v{PM + r}, v{PM + r}, v{MXR}' for r in range(8)] + interleave([mq[0], mq[2], mq[1], mq[3]], sc[6:]) + ['s_cbranch_vccnz L_sdown']
        L += [f'v_add_u32 v{AFR + r}, v{AFR + r}, v{MXR + 2}' for r in range(8)]
        u1a = self.seq(L)
        L = ['L_scaled:'] + interleave(mm2(DALL, DALL + 64, AFR) + mm2(DALL + 16, DALL + 72, AFR), sout(2) + sout(3))
        L += [f's_cmp_ge_u32 s{S_WAVE}, 5', 's_cbranch_scc1 L_u2']
        u1 = self.seq(L)
        u2u = self.seq(interleave(mm2(DALL + 64, BALL, AFR) + mm2(DALL + 80, BALL + 8, AFR), sout(0)) + ['s_branch L_u3'])
        u2q = self.seq(['L_u2:'] + interleave(mm2(DALL + 64, PM, BALL + 32) + mm2(DALL + 80, PM, BALL + 40), sout(0)))
        L = ['L_u3:'] + xidx() + xidx(12)
        L += interleave(sout(1) + sout(4) + sout(5), [x for n_ in range(6) for x in (f'v_xor_b32 v{UA + n_}, v{UA + n_}, v{t4}', f'v_xor_b32 v{UX[n_]}, 32, v{UA + n_}')])
        L += [f'v_readlane_b32 s{S_CG}, v{vS}, 0', f'v_readlane_b32 s{S_IV}, v{vS}, 26',
              f's_sub_u32 s{S_F2}, {254 << 23:#x}, s{S_CG}', f's_sub_u32 s{S_IV}, {254 << 23:#x}, s{S_IV}',
              f's_sub_u32 s{S_F1}, 254, s{S_F1}', f's_lshl_b32 s{S_F1}, s{S_F1}, 23',
              f's_mov_b32 s{S_MASK}, 0x88888888', f's_mov_b32 s{S_MASK + 1}, 0x88888888']

        def sigma(s_):
            t = (s_ - 1) // 2
            first = (s_ - 1) % 2 == 0
            return (0 if first else 1) if t % 2 == 0 else (1 if first else 0)
        for s_ in range(1, 11):
            assert ((s_ - 1) // 2) * 1024 + sigma(s_) * 512 - (s_ // 4) * 2048 == (-1024, 0, 512, 1536)[s_ % 4]

        def p2read(n_):
            b = BALL + 16 * n_
            c = []
            UAl = list(range(UA, UA + 6))
            for x, (ar, off) in enumerate(((UAl, 0), (UX, 0), (UAl, SSZ), (UX, SSZ))):
                for y in range(2):
                    c.append(f'ds_read_b64_tr_b16 {vr(b + 4 * x + 2 * y, 2)}, v{ar[2 * n_ + y]} offset:{off}')
            return c

        def p2a(n_):
            b = BALL + 16 * n_
            c = []
            for x in range(4):
                c += [f'v_pk_add_f16 v{b + 4 * x + y}, v{b + 4 * x + y}, v{b + 4 * x + 2 + y}' for y in range(2)]
                if x in (0, 2):
                    c.append(f'ds_write_b64 v{vFw}, {vr(b + 4 * x, 2)} offset:{FR + n_ * 4 * 3072 + x * 1024}')
            c += [f'v_cndmask_b32 v{b + 4 + y}, v{b + 4 + y}, v{b + 12 + y}, s[{S_MASK}:{S_MASK + 1}]' for y in range(2)]
            c.append(f'ds_write_b64 v{vFw}, {vr(b + 4, 2)} offset:{FR + n_ * 4 * 3072 + 1024}')
            return c

        def p2s(n_):
            b = BALL + 16 * n_ + 12
            off = FRS + max(n_ * 2048 - 1024, 0)
            return ([f'v_subrev_u32 v{vT3}, 1024, v{vT3}'] if n_ == 0 else []) + [
                f'ds_write_b32 v{vT3}, v{b} offset:{off}', f'ds_write_b32 v{vT3}, v{b + 1} offset:{off + 16}']
        ec = []
        if o.econv:
            L += [f's_cmp_lg_u32 s{S_GRP}, 0', 's_cbranch_scc1 L_noec']
            u3 = self.seq(L)
            ec = self.seq([WaitTag(vm_tags=['XBa'])] + [x for j in range(13) for x in ureads(j)])
            L = ['L_noec:']
        else:
            u3 = []
        L += [WaitTag(vm_tags=['XB'] if o.xg1 else [], lgkm0=True), 's_barrier'] + self.stamp(10)
        L += p2read(0) + p2read(1) + [f's_cmp_ge_u32 s{S_WAVE}, 6', 's_cbranch_scc1 L_lin']
        b2 = self.seq(L)
        p2c = self.seq(p2read(2) + p2a(2) + p2s(2) + ['s_branch L_p2'])
        LB = BALL + 32
        ZR4 = t5
        L = ['L_lin:', f's_and_b32 s{S_U0}, s{S_WAVE}, 1', f's_cselect_b64 vcc, -1, 0', f's_lshl_b32 s{S_U1}, s{S_U0}, 5', f'v_mov_b32 v{ZR4}, 0',
             f'v_xor_b32 v{vV2r}, s{S_U1}, v{vV2r}', f'v_xor_b32 v{vV2q}, s{S_U1}, v{vV2q}', f'v_cndmask_b32 v{vWo}, v{vWo}, v{vWo + 1}, vcc',
             f'ds_read_b64_tr_b16 {vr(LB, 2)}, v{vV2r}', f'ds_read_b64_tr_b16 {vr(LB + 2, 2)}, v{vV2q}',
             f'ds_read_u16_d16_hi v{ZR4}, v{vWo}',
             f's_lshl_b32 s{S_U0}, s{S_U0}, 10', f'v_add_u32 v{t3}, s{S_U0}, v{vStg}']
        for r in range(4):
            a_, b_ = LB + 4 + 2 * r, LB + 5 + 2 * r
            L += [f'v_cvt_f32_f16 v{a_}, v{LB + r}', f'v_cvt_f32_f16_sdwa v{b_}, v{LB + r} dst_sel:DWORD dst_unused:UNUSED_PAD src0_sel:WORD_1',
                  f'v_mul_f32 v{a_}, s{S_IV}, v{a_}', f'v_mul_f32 v{b_}, s{S_IV}, v{b_}']
            if r == 3:
                L += ['s_mov_b32 exec_lo, 0', 's_mov_b32 exec_hi, 0xffff', f'v_mov_b32 v{a_}, v{ZR4}', 's_mov_b64 exec, -1']
            L += [f'v_mul_f32 v{a_}, s{S_CG}, v{a_}', f'v_mul_f32 v{b_}, s{S_CG}, v{b_}', f'v_cvt_pk_bf16_f32 v{LB + r}, v{a_}, v{b_}']
        L += [f'ds_write_b128 v{t3}, {vr(LB, 4)} offset:{FRL}']
        lin = self.seq(L)
        p2 = self.seq(['L_p2:'] + p2a(1) + p2s(1) + p2a(0) + [f's_cmp_lt_u32 s{S_WAVE}, 2', 's_cbranch_scc1 L_p2d'])
        p2e = self.seq(p2s(0) + ['s_branch L_built'])
        p2d = self.seq(['L_p2d:', f'ds_write_b64 v{vT3d}, {vr(BALL + 12, 2)} offset:{FRS + 5 * 1024}'])

        L = ['L_sdown:']
        for r in range(8):
            L += [f'v_lshlrev_b32 v{MXR}, 16, v{AFR + r}', f'v_and_b32 v{MXR + 1}, 0xffff0000, v{AFR + r}',
                  f'v_mul_f32 v{MXR}, v{MXR}, v{vS}', f'v_mul_f32 v{MXR + 1}, v{MXR + 1}, v{vS}', f'v_cvt_pk_bf16_f32 v{AFR + r}, v{MXR}, v{MXR + 1}']
        self.sdown = L + ['s_branch L_scaled']

        def PRE(w, sd=None):
            grp = w >> 2
            return (c0 + (g1s + (g1t if w < 6 else []) if grp else []) + csc + (v3p + v3 if grp else G0(w)) + cc0 + (cx if grp else []) + cc + (b1q if w >= 5 else b1u)
                    + (u1a if sd is None else u1a[:-8] + sd) + u1 + (u2q if w >= 5 else u2u) + u3 + ([] if grp else ec) + b2
                    + (lin if w >= 6 else p2c) + p2 + (p2d if w < 2 else p2e))
        L = ['L_built:'] + self.stamp(11)
        L += [f's_mov_b32 s{S_CG}, s{S_F1}', f's_mov_b32 s{S_IV}, s{S_F2}', f's_mov_b32 s{S_LO}, {f32hex(0.125)}', f's_mov_b32 s{S_HI}, {f32hex(0.0 if o.slow else 128.0)}']
        CV, vM, S_XD = 28, 58, 81

        def ureads(j):
            return [f'ds_read_u16_d16_hi v{XR + 2 * j}, v{vXa} offset:{XOFF(2 * j)}',
                    f'ds_read_u16_d16_hi v{XR + 2 * j + 1}, v{vXa} offset:{XOFF(2 * j) + 2}']
        mx3 = lambda j: f'v_max3_f32 v{vM}, |v{XR + 2 * j}|, |v{XR + 2 * j + 1}|, {"0" if j == 0 else f"v{vM}"}'
        cvt = lambda j: f'v_cvt_pk_f16_f32 v{CV + j % 4}, v{XR + 2 * j}, v{XR + 2 * j + 1}'
        iwr = lambda j: f'ds_write_b32 v{vIw}, v{CV + j % 4} offset:{j * IMGP}'
        S_SKIP = 51
        pfr = lambda: (pfx_b() + pfx_a() if o.pfx else []) + (pfw() if o.pfw else [])
        conv = lambda tag='XB': ([WaitTag(vm_tags=[tag])] + [x for j in range(13) for x in ureads(j)]
                        + [x for j in range(13) for x in (mx3(j), f'v_cvt_pk_f16_f32 v{D + j}, v{XR + 2 * j}, v{XR + 2 * j + 1}')])
        L += [f's_mov_b32 s{S_SKIP}, 1', f's_mul_i32 s{S_U0}, s{S_WAVE}, 1536', f's_add_u32 s{S_U0}, s{S_U0}, {PART}',
              f's_cmp_lg_u32 s{S_GRP}, 0', 's_cbranch_scc1 L_g1c']
        c2a = self.seq(L)
        c2g0 = self.seq([f's_sub_u32 s{S_SAMP}, s{S_SAMP}, {4 * 104}'] + (conv('XBa')[27:] if o.econv else conv('XBa')) + [WaitTag(lgkm0=True), 's_barrier'] + self.stamp(8) + ['s_branch L_cin_go'])
        DX = XB2 - XB - 4 * XBSZ
        L = ['L_g1c:', WaitTag(vm_tags=['XB'], lgkm0=True), 's_barrier'] + self.stamp(8) + self.probe('b4')
        L += [f's_add_u32 s{S_XM0}, s{S_XM0}, {DX}'] + xdma(tag='XB0') + xdma(12, 4 * XBSZ) + xidx() + pfr() + [f'v_add_u32 v{r}, {DX}, v{r}' for r in (vXa, vLin0, vLin1)]
        L += [f'ds_write_b32 v{vXa}, v{vXi1} offset:{XOFF(26)}', f'ds_write_b32 v{vXa}, v{vXi1} offset:{XOFF(26) + 4 * XBSZ}']
        c2g1 = self.seq(L)
        c2b = []
        c2g1d = self.seq(['L_g1d:'] + conv('XB0'))
        c2c = self.seq(['L_cin_go:'] + [f'ds_write_b32 v{vIw}, v{D + j} offset:{j * IMGP}' for j in range(13)]
                       + [f's_mov_b32 s{S_XD}, {4 * XBSZ}', f's_add_u32 s{S_XM0}, s{S_XM0}, {4 * XBSZ}',
                          f'v_lshlrev_b32 v{vXi1}, 2, v0', f'v_add_u32 v{vXi1}, s{S_U0}, v{vXi1}'])

        NWF = 5
        PF = o.cpfd
        zslot = lambda s_: 1 if s_ % 2 == 0 else (0 if ((s_ - 1) // 2) % 2 == 0 else 2)
        zr = lambda T, sl: Z + 12 * T + 4 * sl
        preg = lambda T, r: P + 14 * T + (r if r < 14 else r - 14)
        acc = lambda T, tile: D + 16 * T + 4 * tile
        jobs = [('l', 0, 0), ('l', 0, 1)]
        for s_ in range(11):
            jobs += [('d', s_, 2), ('d', s_, 0), ('d', s_, 1)]
            if s_ == 0:
                jobs.append(('d', 0, 3))
            elif s_ % 2 == 0:
                jobs.append(('s', s_, 3))
        NJ = len(jobs)
        assert NJ == 41

        def wread(n):
            kind, s_, tile = jobs[n]
            off = FRL + tile * 1024 if kind == 'l' else (FR + s_ * 3072 + tile * 1024 if tile < 3 else FRS + (5 if s_ == 0 else (s_ - 1) // 2) * 1024)
            return f'ds_read_b128 {vr(WF + 4 * (n % NWF), 4)}, v{vFa} offset:{off}'

        def mfma(n, T):
            kind, s_, tile = jobs[n]
            a = vr(WF + 4 * (n % NWF), 4)
            d = vr(acc(T, tile), 4)
            if kind == 'l':
                return f'v_mfma_f32_16x16x32_bf16 {d}, {a}, {vr(zr(T, 2), 4)}, 0'
            if kind == 's':
                lo = 0 if ((s_ - 1) // 2) % 2 == 0 else 1
                return f'v_smfmac_f32_16x16x64_f16 {d}, {a}, {vr(zr(T, lo), 8)}, v{vIDX}'
            return f'v_mfma_f32_16x16x32_f16 {d}, {a}, {vr(zr(T, zslot(s_)), 4)}, {"0" if (s_ == 0 and tile >= 2) else d}'

        def pk(T, n):
            a, b, s0, s1 = cin16.INS[n]
            return (f'v_pk_mul_f16 v{zr(T, zslot(n // 4)) + n % 4}, v{preg(T, a)}, v{preg(T, b)} '
                    f'op_sel:[{s0[0]},{s0[1]}] op_sel_hi:[{s1[0]},{s1[1]}]')

        def trp(T, rp):
            return f'ds_read_b64_tr_b16 {vr(preg(T, 2 * rp), 2)}, v{vTR + rp} offset:{32 * T}'

        LASTA = max(n for n, x in enumerate(cin16.INS) if x[0] < 2)
        S_A1, S_A2, S_PINC = 49, 50, 48
        fin = []
        for T in range(4):
            fin += [(acc(T, 0) + r, acc(T, 2) + r) for r in range(4)] + [(acc(T, 1), acc(T, 1) + 3)]
        for T in range(4):
            fin += [(acc(T, 1) + 1 + (r >> 1), acc(T, 3) + r) for r in range(4)]

        def final(f1, f2):
            c = []
            for k, (a, b) in enumerate(fin):
                d = Z + k % 4
                c.append(f'v_mul_f32 v{d}, v{a}, v{b}' if k < 4 else f'v_fmac_f32 v{d}, v{a}, v{b}')
            c += [f'v_add_f32 v{Z}, v{Z}, v{Z + 1}', f'v_add_f32 v{Z + 2}, v{Z + 2}, v{Z + 3}', f'v_add_f32 v{Z}, v{Z}, v{Z + 2}']
            c += [f'v_mul_f32 v{Z}, s{x}, v{Z}' for x in (f1, f2)]
            return c + [f'ds_write_b32 v{vXi1}, v{Z}']
        code = ['L_cin_loop:', f'v_cmp_le_f32 s[{S_CM}:{S_CM + 1}], s{S_HI}, v{vM}', f'v_cmp_le_f32 vcc, s{S_LO}, v{vM}',
                f's_mov_b32 s{S_A1}, s{S_F1}', f's_mov_b32 s{S_A2}, s{S_F2}',
                f's_cmp_lg_u64 s[{S_CM}:{S_CM + 1}], 0', 's_cbranch_scc1 L_cslow', 's_cbranch_vccz L_cslow']
        cA = self.seq(code)
        RD = []
        for rp in (0, 3, 4):
            RD += [trp(T, rp) for T in range(4)]
        for T in range(4):
            RD += [f'ds_read_b64_tr_b16 {vr(zr(T, 2), 2)}, v{vLin0} offset:{32 * T}', f'ds_read_b64_tr_b16 {vr(zr(T, 2) + 2, 2)}, v{vLin1} offset:{32 * T}']
        RD += [wread(k) for k in range(PF)]
        for rp in (5, 6, 1, 2):
            RD += [trp(T, rp) for T in range(4)]
        pfr = lambda: (pfx_b() + pfx_a() if o.pfx else []) + (pfw() if o.pfw else [])
        vm = xdma() + xidx() + pfr()
        VA = final(S_A1, S_A2) + [f'v_add_u32 v{vXi1}, 256, v{vXi1}']
        PK0 = [pk(T, n) for T in range(4) for n in range(4)]
        TG = [f'v_add_u32 v{r}, s{S_XD}, v{r}' for r in (vXa, vLin0, vLin1)] + [f's_sub_u32 s{S_XM0}, s{S_XM0}, s{S_XD}', f's_sub_u32 s{S_XD}, 0, s{S_XD}', f's_mov_b32 s{S_SKIP}, 0']
        cB0 = self.seq(['L_cconv:', f's_cmp_lg_u32 s{S_SKIP}, 0', 's_cbranch_scc1 L_first'])
        cVM = self.seq(interleave(RD, VA) + PK0 + vm)
        self.first = ['L_first:'] + RD[:28] + interleave(RD[28:], PK0) + ['s_branch L_novm']
        code = ['L_novm:'] + TG
        LA = 1
        def lstamp(base):
            if not (o.stamps and o.cst):
                return []
            return [f's_memtime s[{S_ST}:{S_ST + 1}]', f's_memrealtime s[{S_ST + 2}:{S_ST + 3}]', f's_sub_u32 s{S_C0}, {base + 6}, s{S_LOOP}', 's_waitcnt lgkmcnt(0)',
                    f's_mov_b32 m0, s{S_C0}', f'v_writelane_b32 v252, s{S_ST}, m0', f'v_writelane_b32 v253, s{S_ST + 2}, m0']
        code += lstamp(19)
        code += [Touch(vr(WF, 4)), Touch(vr(zr(3, 2), 4))] + (['s_setprio 2', 's_barrier'] if o.cbar else ['s_setprio 1'])
        MS = [(n, T) for n in range(NJ) for T in range(4)]
        first_use, last_use = {}, {}
        for mi, (n, T) in enumerate(MS):
            kind, s_, tile = jobs[n]
            if kind == 'l':
                last_use[(T, 'lin')] = mi
                continue
            for su in ([s_] if kind == 'd' else [s_ - 1, s_]):
                first_use.setdefault((T, su), mi)
                last_use[(T, su)] = mi
        V = []
        for s_ in range(LA, 11):
            prev = [p_ for p_ in range(s_) if zslot(p_) == zslot(s_)]
            for T in range(4):
                rdy = last_use[(T, prev[-1])] + o.war if prev else (last_use[(T, 'lin')] if zslot(s_) == 2 else -1)
                for n in range(4 * s_, 4 * s_ + 4):
                    V.append((pk(T, n), rdy, first_use[(T, s_)], n, T))
        forced = 0
        late = []
        XL_ = [x for j in range(13) for x in ureads(j)]
        xrd = {}
        CVR = [preg(T, r) for r in (2, 3, 6, 7) for T in range(4)]
        cvrdy = max(n for n, x in enumerate(cin16.INS) if set(x[:2]) & {2, 3, 6, 7})
        cvt2 = lambda j: f'v_cvt_pk_f16_f32 v{CVR[j]}, v{XR + 2 * j}, v{XR + 2 * j + 1}'
        iwr2 = lambda j: f'ds_write_b32 v{vIw}, v{CVR[j]} offset:{j * IMGP}'
        nm = nc = nw = 0
        V.sort(key=lambda x: x[2])
        prev2 = 0
        for mi, (n, T) in enumerate(MS):
            while V and V[0][2] <= mi:
                assert V[0][1] < mi
                code.append(V.pop(0)[0]); forced += 1
            code.append(mfma(n, T))
            t = 4
            if o.cbar and mi == len(MS) - 1 - o.cbov:
                code += ['s_setprio 3', 's_barrier']; t += 8
            if not o.cbar and mi == 4 * o.hiat - 2:
                code.append('s_setprio 2'); t += 4
            if T == 3 and n + 1 < NJ:
                code.append(Touch(vr(WF + 4 * ((n + 1) % NWF), 4))); t += 4
            if T == 0 and n + PF < NJ:
                code.append(wread(n + PF)); t += 8
            elif T in (1, 2) and late:
                code.append(late.pop(0)); t += 8
            elif T in (1, 2) and mi >= o.x0 and XL_:
                if len(XL_) == 26:
                    code.append(WaitTag(vm_tags=['XB']))
                code.append(XL_.pop(0)); t += 8
                if len(XL_) % 2 == 0:
                    xrd[12 - len(XL_) // 2] = mi
            elif not V and nw < nc and t == 4:
                code.append(iwr2(nw)); nw += 1; t += 12
            t = max(t, 12 if jobs[n][0] == 's' else 8)
            k = 0
            while t < 16:
                urgent = any(V[q_][2] - 1 - mi < q_ + 1 for q_ in range(min(24, len(V))))
                if k == 1 and prev2 >= o.max2 and not urgent:
                    break
                cand = [x for x in V[:32] if x[1] <= mi]
                extra = None
                if nm < 13 and nm in xrd and xrd[nm] + o.xlat <= mi:
                    extra = 'm'
                elif nc < nm and all(x[3] > cvrdy for x in V):
                    extra = 'c'
                if cand and (k == 0 or urgent or not extra) and (k == 0 or urgent or o.eager):
                    x = cand[0]
                    V.remove(x)
                    code.append(x[0])
                    if x[3] <= LASTA and all(y[3] > LASTA for y in V if y[4] == x[4]):
                        late.append(trp(x[4], 7))
                elif extra == 'm':
                    code.append(mx3(nm)); nm += 1
                elif extra == 'c':
                    code.append(cvt2(nc)); nc += 1
                else:
                    break
                t += 4; k += 1
            prev2 = prev2 + 1 if k == 2 else 0
        assert not late and not XL_ and not V
        print('left', 13 - nm, 13 - nc, 13 - nw)
        tail = [mx3(j) for j in range(nm, 13)] + [cvt2(j) for j in range(nc, 13)] + [iwr2(j) for j in range(nw, 13)]
        print('forced VALU', forced)
        code += lstamp(25)
        code.append(f's_setprio {o.p0}')
        code += [f's_sub_u32 s{S_LOOP}, s{S_LOOP}, 1', f's_cmp_eq_u32 s{S_LOOP}, 0', 's_cbranch_scc1 L_cin_done'] + tail
        ntail = len(tail) + 1
        def keep(x):
            t_ = x.text if isinstance(x, I) else x
            if isinstance(t_, tuple):
                return True
            if 'nopk' in o.dbg and t_.startswith('v_pk_mul_f16'):
                return False
            if 'nowf' in o.dbg and t_.startswith('ds_read_b128'):
                return False
            if 'nosm' in o.dbg and t_.startswith('v_smfmac'):
                return False
            return True
        code = [x for x in code if keep(x)]
        if 'bf' in o.dbg:
            code = [x.replace('x32_f16', 'x32_bf16').replace('x64_f16', 'x64_bf16') if isinstance(x, str) else x for x in code]
        cB = self.seq(code + ['s_branch L_cin_loop'])
        mark0 = len(self.P.static)
        bl = []
        if o.burn:
            bl = [f's_movk_i32 s{S_LOOP}, {o.burn // 2}', 'L_burn2:'] + [f'v_mfma_f32_16x16x32_f16 {vr(P + 4 * (k % 2), 4)}, {vr(WF + 4 * (k % 4), 4)}, {vr(Z + 4 * (k // 4), 4)}, 0' for k in range(32)]
            bl += [f's_sub_u32 s{S_LOOP}, s{S_LOOP}, 1', f's_cmp_lg_u32 s{S_LOOP}, 0', 's_cbranch_scc1 L_burn2']
        L = ['L_cin_done:', f's_mul_i32 s{S_U0}, s{S_WAVE}, 1536', f's_add_u32 s{S_U0}, s{S_U0}, {PART}',
             f'v_lshlrev_b32 v{Z + 4}, 5, v0', f'v_add_u32 v{Z + 4}, s{S_U0}, v{Z + 4}',
             f'ds_read_b128 {vr(P, 4)}, v{Z + 4}', f'ds_read_b128 {vr(P + 4, 4)}, v{Z + 4} offset:16'] + bl + final(S_F1, S_F2)[:-1]
        E = [f'v_subrev_u32 v{Z + 6}, s{S_U0}, v{vXi1}', f'v_lshrrev_b32 v{Z + 6}, 8, v{Z + 6}', f'v_lshrrev_b32 v{Z + 5}, 3, v0', f'v_cmp_gt_u32 vcc, v{Z + 6}, v{Z + 5}',
             f'v_min_u32 v{Z + 5}, v{Z + 5}, v{Z + 6}', f'v_lshlrev_b32 v{Z + 5}, 4, v{Z + 5}', f'v_add_u32 v{Z + 5}, s{S_RC}, v{Z + 5}',
             ] + [f'v_add_f32 v{P + a_}, v{P + a_}, v{P + b_}' for a_, b_ in ((0, 1), (2, 3), (4, 5), (6, 7), (0, 2), (4, 6), (0, 4))]
        E += [f'v_add_f32_dpp v{P}, v{P}, v{P} {ctl} row_mask:0xf bank_mask:0xf' for ctl in ('quad_perm:[1,0,3,2]', 'quad_perm:[2,3,0,1]', 'row_half_mirror')]
        L += interleave([f'v_add_f32_dpp v{Z}, v{Z}, v{Z} {ctl} row_mask:{rm} bank_mask:0xf' for ctl, rm in DPPS], E)
        L += [f'v_cndmask_b32 v{P}, v{Z}, v{P}, vcc', 's_bitset1_b32 vcc_hi, 31', 's_mov_b64 exec, vcc', f'ds_write_b32 v{Z + 5}, v{P}', 's_mov_b64 exec, -1']
        L += self.stamp(9) + self.stamp_flush() + self.probe('cend') + [f's_cmp_eq_u32 s{S_WAVE}, 0', 's_cbranch_scc1 L_cpub', 's_waitcnt lgkmcnt(0)', 's_barrier', 's_endpgm',
              'L_cpub:', f's_load_dword s{S_BOUT}, s[{S_BO}:{S_BO + 1}], 0'] + self.pubsrd() + [
              'v_lshlrev_b32 v6, 2, v0', f'v_add_u32 v2, {RC}, v6', 'v_add_u32 v4, 1024, v6',
              f's_mul_i32 s{S_T1}, s{S_MB}, 192', f's_add_u32 s{S_T1}, s{S_T1}, {13 * WSP}',
              'v_mov_b32 v13, -1', 's_mov_b32 exec_hi, 0xffff', f'buffer_store_dword v13, v6, {srd(SRD_WS)}, s{S_T1} offen sc1', 's_mov_b64 exec, 1',
              f'buffer_load_dword v250, v6, {srd(SRD_OUT)}, 0 offen', f'buffer_load_dword v251, v6, {srd(SRD_DBG)}, 0 offen offset:240 sc1', 's_mov_b64 exec, -1',
              f's_mul_i32 s{S_T0}, s{S_MB}, 3', f's_mul_i32 s{S_T2}, s{S_T0}, 3277', f's_lshr_b32 s{S_T2}, s{S_T2}, 16',
              f'v_add_u32 v7, s{S_T2}, v0', f's_mul_i32 s{S_T2}, s{S_T2}, 20', f's_add_u32 s{S_T2}, s{S_T2}, 20',
              f's_sub_u32 s{S_T2}, s{S_T2}, s{S_T0}', f's_min_u32 s{S_T2}, s{S_T2}, 3', f's_sub_u32 s{S_T0}, 3, s{S_T2}',
              f'v_mov_b32 v5, s{S_T0}', f'v_writelane_b32 v5, s{S_T2}, 0',
              f's_cmp_eq_u32 s{S_T0}, 0', f's_cselect_b32 s{S_T0}, 1, 3',
              'v_lshlrev_b32 v3, 4, v0', 's_mov_b32 exec_hi, 0xffff', 's_waitcnt vmcnt(0) lgkmcnt(0)', 's_barrier', 'ds_read_b32 v64, v2']
        L += (self.stamp(16) if o.diag else [])
        L += ['v_min_u32 v64, -2, v64'] if o.sent else []
        L += [f'buffer_store_dword v64, v6, {srd(SRD_WS)}, s{S_T1} offen sc1', f's_mov_b32 exec_lo, s{S_T0}', 's_mov_b32 exec_hi, 0', 's_branch L_pub']
        fin_ = self.seq(L)
        blk = self.P.static[mark0:]
        del self.P.static[mark0:]
        at = self.P.static.index(self.pub[-1]) + 1
        self.P.static[at:at] = blk + self.ldblk
        L = ['L_cslow:']
        for (ctl, rm) in (('row_shr:1', '0xf'), ('row_shr:2', '0xf'), ('row_shr:4', '0xf'), ('row_shr:8', '0xf'),
                          ('row_bcast:15', '0xa'), ('row_bcast:31', '0xc')):
            L.append(f'v_max_f32_dpp v{vM}, v{vM}, v{vM} {ctl} row_mask:{rm} bank_mask:0xf')
        L += [f'v_readlane_b32 s{S_U0}, v{vM}, 63', f's_mov_b32 s{S_HI}, 0',
              f's_lshr_b32 s{S_U0}, s{S_U0}, 23', f's_min_u32 s{S_U0}, s{S_U0}, {127 + 55}',
              f's_lshr_b32 s{S_U1}, s{S_IV}, 23', f's_sub_u32 s{S_U1}, s{S_U1}, 47', f's_lshr_b32 s{S_U1}, s{S_U1}, 1', f's_min_u32 s{S_U1}, s{S_U1}, 59',
              f's_sub_u32 s{S_U1}, 131, s{S_U1}', f's_max_u32 s{S_U0}, s{S_U0}, s{S_U1}',
              f's_sub_u32 s{S_U1}, {127 + 4 + 127}, s{S_U0}',
              f's_lshl_b32 s{S_U2}, s{S_U1}, 1', f's_sub_u32 s{S_U2}, s{S_U2}, 127',
              f's_sub_u32 s{S_G}, 254, s{S_U2}', f's_lshl_b32 s{S_G}, s{S_G}, 23',
              f'v_mov_b32 v{P}, s{S_G}', f'v_mul_f32 v{P + 1}, s{S_CG}, v{P}', f'v_mul_f32 v{P}, s{S_IV}, v{P}',
              f'v_readfirstlane_b32 s{S_F1}, v{P + 1}', f'v_readfirstlane_b32 s{S_F2}, v{P}',
              f's_lshl_b32 s{S_U1}, s{S_U1}, 23', f's_lshl_b32 s{S_U2}, s{S_U2}, 23']
        TS = P
        for j in range(13):
            L += [f'v_mul_f32 v{TS}, s{S_U1}, v{XR + 2 * j}', f'v_mul_f32 v{TS + 1}, s{S_U1}, v{XR + 2 * j + 1}',
                  f'v_mul_f32 v{TS + 2}, s{S_U2}, v{XR + 2 * j}', f'v_mul_f32 v{TS + 3}, s{S_U2}, v{XR + 2 * j + 1}',
                  f'v_cvt_pk_f16_f32 v{TS + 20 + j}, v{TS}, v{TS + 1}', f'v_cvt_pk_bf16_f32 v{TS + 4 + j}, v{TS + 2}, v{TS + 3}',
                  f'ds_write_b32 v{vIw}, v{TS + 20 + j} offset:{j * IMGP}', f'ds_write_b32 v{vXa}, v{TS + 4 + j} offset:{XOFF(2 * j)}']
        L += [f'v_mov_b32 v{TS}, s{S_U2}', f'v_cvt_pk_bf16_f32 v{TS}, v{TS}, v{TS}',
              's_mov_b32 exec_hi, 0', f'ds_write_b32 v{vXa}, v{TS} offset:{XOFF(26)}', 's_mov_b32 exec_hi, -1',
              's_waitcnt lgkmcnt(0)', 's_branch L_cconv']
        slow = self.seq(L)
        sdown = self.seq(self.sdown)
        cF = self.seq(self.first)
        traces = []
        for w in range(8):
            grp = w >> 2
            c2 = c2a + (c2g1 + (c2b if w == 4 else []) + c2g1d if grp else c2g0) + c2c
            it = lambda sl, first: cA + (slow if sl else []) + cB0 + (cF if first else cVM) + cB
            traces.append(PRE(w) + c2 + it(0, 1) + it(0, 0) + it(0, 0)[:-ntail] + fin_ + self.pub)
            if w in (0, 4):
                traces.append(PRE(w, sdown) + c2 + it(1, 1) + it(1, 0)[:-ntail] + fin_ + self.pub)
        return traces

    def build(self):
        pro = self.prologue()
        d = self.dnn()
        cs = self.cin()
        self.seq(['L_end:', 's_endpgm'])
        traces = [pro + c for c in d + cs] + self.extra_traces
        for t in traces:
            resolve_waits(t)
        for _ in range(2):
            for t in traces:
                resolve_hazards(t)
        hdr = open(os.path.join(os.path.dirname(os.path.abspath(__file__)), 'header.txt')).read()
        txt = hdr + f'; @launch grid=(256,1,1) block=(512,1,1) lds={LDS_TOTAL}\n'
        txt += f'''.amdgcn_target "amdgcn-amd-amdhsa--gfx950"
{DOC}.text
.globl {KNAME}
.p2align 8
.type {KNAME},@function
{KNAME}:
'''
        body_ = self.P.emit()
        if self.opt.align:
            for lab in ('L_dnn_loop0:', 'L_dnn_loop1:', 'L_cin_loop:', 'L_epi:'):
                pad = '  s_nop 0\n' if self.opt.align > 100 else ''
                body_ = body_.replace(lab + '\n', f'.p2align {self.opt.align % 100}\n{pad}{lab}\n')
        if self.opt.cwalk:
            lines = body_.split('\n')
            i0, i1 = lines.index('L_w2:'), lines.index('L_cslow:')
            out, k, cnt = lines[:i0], 0, 0
            seg = lines[i0:i1]
            prot = 0
            for n_, l in enumerate(seg):
                out.append(l)
                t = l.strip()
                cnt += 1
                inmain = 'L_novm:' in seg[:n_ + 1]
                nxt = seg[n_ + 1].strip() if n_ + 1 < len(seg) else ''
                ok = t.endswith(':') or (cnt >= self.opt.cwalk and ('mfma' in t and nxt.startswith('v_pk') if inmain else t.startswith(('ds_', 'v_perm', 'v_cvt_pk'))))
                if ok and t not in ('L_cin_loop:', 'L_cconv:', 'L_scaled:'):
                    out += [f'L_wp{k}:', f'  s_cbranch_execz L_wp{k + 1}']
                    k += 1; cnt = 0
            j = lines.index('L_first:')
            rest = lines[i1:j + 1] + [f'L_wp{k}:', '  s_cbranch_execz L_wret'] + lines[j + 1:]
            body_ = '\n'.join(out + rest)
            print('walk pads', k + 1)
            self.npads = k + 1
            for q_ in range(4):
                body_ = body_.replace(f'L_WENTRY{q_}', f'L_wp{q_ * (k + 1) // 4}')
        if self.opt.fix:
            body_ = fixalign.fix(body_ + 'L_tables:\n', self.opt.fix)[:-len('L_tables:\n')]
        txt += body_
        tb = self.tables()
        assert len(tb) == 16 * 256
        txt += '.p2align 8\nL_tables:\n' + ''.join('.long ' + ', '.join(f'{x:#x}' for x in tb[i:i + 8]) + '\n' for i in range(0, len(tb), 8))
        txt += f'''.section .rodata,"a"
.p2align 6
.amdhsa_kernel {KNAME}
  .amdhsa_next_free_vgpr 256
  .amdhsa_next_free_sgpr 102
  .amdhsa_accum_offset 256
  .amdhsa_group_segment_fixed_size 0
  .amdhsa_kernarg_size 88
  .amdhsa_user_sgpr_count 2
  .amdhsa_user_sgpr_kernarg_segment_ptr 1
  .amdhsa_system_sgpr_workgroup_id_x 1
  .amdhsa_float_denorm_mode_32 {self.opt.denorm}
.end_amdhsa_kernel
'''
        return txt


def main():
    ap = argparse.ArgumentParser()
    ap.add_argument('-o', default='standalone__deep_cross_xdeepfm__recsys.s')
    ap.add_argument('--stamps', action='store_true')
    ap.add_argument('--nodma', action='store_true')
    ap.add_argument('--cpf', type=int, default=1)
    ap.add_argument('--coop', type=int, default=0)
    ap.add_argument('--coopw', type=int, default=2)
    ap.add_argument('--tbpos', type=int, default=0)
    ap.add_argument('--dbar3', type=int, default=1)
    ap.add_argument('--tlb', type=int, default=0)
    ap.add_argument('--tlb2', type=int, default=1)
    ap.add_argument('--itst', type=int, default=0)
    ap.add_argument('--diag', type=int, default=0)
    ap.add_argument('--dbg', default='')
    ap.add_argument('--lead3', type=int, default=1)
    ap.add_argument('--morder', type=int, default=0)
    ap.add_argument('--etlb', type=int, default=0)
    ap.add_argument('--lateb', type=int, default=0)
    ap.add_argument('--wfl', default='')
    ap.add_argument('--xfl', default='')
    ap.add_argument('--tag', type=int, default=0)
    ap.add_argument('--idxfirst', type=int, default=1)
    ap.add_argument('--bpos', type=int, default=2)
    ap.add_argument('--sigat', type=int, default=4)
    ap.add_argument('--epx', type=int, default=1)
    ap.add_argument('--denorm', type=int, default=3)
    ap.add_argument('--mprio', type=int, default=0)
    ap.add_argument('--swap', type=int, default=0)
    ap.add_argument('--bov', type=int, default=1)
    ap.add_argument('--rfirst', type=int, default=0)
    ap.add_argument('--g1x', type=int, default=0)
    ap.add_argument('--ldsred', type=int, default=0)
    ap.add_argument('--csnake', type=int, default=0)
    ap.add_argument('--cswap', type=int, default=0)
    ap.add_argument('--align', type=int, default=0)
    ap.add_argument('--c2', type=int, default=0)
    ap.add_argument('--d1', type=int, default=0)
    ap.add_argument('--cstr', type=int, default=3)
    ap.add_argument('--bearly', type=int, default=1)
    ap.add_argument('--w2late', type=int, default=1)
    ap.add_argument('--aov', type=int, default=5)
    ap.add_argument('--upos', type=int, default=1)
    ap.add_argument('--calt', type=int, default=1)
    ap.add_argument('--pfpos', type=int, default=1)
    ap.add_argument('--wlate', type=int, default=0)
    ap.add_argument('--dbar2', type=int, default=0)
    ap.add_argument('--dbar', type=int, default=0)
    ap.add_argument('--pfw', type=int, default=0)
    ap.add_argument('--pfx', type=int, default=0)
    ap.add_argument('--pfx0', type=int, default=4)
    ap.add_argument('--pfs', type=int, default=13)
    ap.add_argument('--dcoopx', type=int, default=1)
    ap.add_argument('--dcx0', type=int, default=0)
    ap.add_argument('--dcxpos', type=int, default=-1)
    ap.add_argument('--pfe0', type=int, default=2)
    ap.add_argument('--pfne', type=int, default=13)
    ap.add_argument('--prio47', type=int, default=0)
    ap.add_argument('--lookahead', type=int, default=5)
    ap.add_argument('--nz', type=int, default=6)
    ap.add_argument('--nwf', type=int, default=8)
    ap.add_argument('--hiat', type=int, default=4)
    ap.add_argument('--wmerge', type=int, default=0)
    ap.add_argument('--gapv', type=int, default=6)
    ap.add_argument('--slow', type=int, default=0)
    ap.add_argument('--rev', type=int, default=1)
    ap.add_argument('--xg1', type=int, default=0)
    ap.add_argument('--bou', type=int, default=1)
    ap.add_argument('--sjw', type=int, default=7)
    ap.add_argument('--cwalk', type=int, default=0)
    ap.add_argument('--few', default='')
    ap.add_argument('--econv', type=int, default=0)
    ap.add_argument('--nsh', type=int, default=16)
    ap.add_argument('--sh0', type=int, default=5)
    ap.add_argument('--dirt', type=int, default=0)
    ap.add_argument('--mrg', type=int, default=0)
    ap.add_argument('--g1p', type=int, default=0)
    ap.add_argument('--sa', type=int, default=4)
    ap.add_argument('--sbg', type=int, default=16)
    ap.add_argument('--bwat', type=int, default=0)
    ap.add_argument('--x2n', type=int, default=8)
    ap.add_argument('--sent', type=int, default=1)
    ap.add_argument('--spec', type=int, default=0)
    ap.add_argument('--probe', default='')
    ap.add_argument('--skew', type=int, default=0)
    ap.add_argument('--fix', type=int, default=64)
    ap.add_argument('--walk', type=int, default=0)
    ap.add_argument('--eal', type=int, default=3)
    ap.add_argument('--eoff', type=int, default=0)
    ap.add_argument('--ct', default='')
    ap.add_argument('--rot', type=int, default=13)
    ap.add_argument('--i0', type=int, default=1)
    ap.add_argument('--i1', type=int, default=10)
    ap.add_argument('--burn', type=int, default=0)
    ap.add_argument('--lord', type=int, default=1)
    ap.add_argument('--lprio', type=int, default=0)
    ap.add_argument('--rsp', type=int, default=0)
    ap.add_argument('--tch', type=int, default=0)
    ap.add_argument('--tf', type=int, default=4)
    ap.add_argument('--toff', type=int, default=0)
    ap.add_argument('--tw0', type=int, default=12)
    ap.add_argument('--xat', type=int, default=0)
    ap.add_argument('--pf1', type=int, default=1)
    ap.add_argument('--lpf', type=int, default=20)
    ap.add_argument('--lpfit', type=int, default=6)
    ap.add_argument('--x1m', type=int, default=10)
    ap.add_argument('--bgap', type=int, default=6)
    ap.add_argument('--cprio', type=int, default=1)
    ap.add_argument('--x1n', type=int, default=5)
    ap.add_argument('--w0', type=int, default=2)
    ap.add_argument('--dbar1', type=int, default=1)
    ap.add_argument('--aon', type=int, default=2)
    ap.add_argument('--cbar', type=int, default=0)
    ap.add_argument('--vmpos', type=int, default=2)
    ap.add_argument('--il2', type=int, default=0)
    ap.add_argument('--p1', type=int, default=0)
    ap.add_argument('--pm', type=int, default=2)
    ap.add_argument('--cbov', type=int, default=3)
    ap.add_argument('--p0', type=int, default=0)
    ap.add_argument('--max2', type=int, default=2)
    ap.add_argument('--eager', type=int, default=0)
    ap.add_argument('--cst', type=int, default=0)
    ap.add_argument('--x0', type=int, default=60)
    ap.add_argument('--xlat', type=int, default=18)
    ap.add_argument('--xper', type=int, default=3)
    ap.add_argument('--xc0', type=int, default=0)
    ap.add_argument('--n3', type=int, default=1)
    ap.add_argument('--xi0', type=int, default=1)
    ap.add_argument('--pfsat', type=int, default=0)
    ap.add_argument('--g1prio', type=int, default=0)
    ap.add_argument('--xearly', type=int, default=1)
    ap.add_argument('--cpfd', type=int, default=4)
    ap.add_argument('--cla', type=int, default=1)
    ap.add_argument('--war', type=int, default=1)
    opt = ap.parse_args()
    resolve_waits.dbg = 'dup' in opt.dbg
    g = Gen(opt)
    txt = g.build()
    open(opt.o, 'w').write(txt)
    print('wrote', opt.o, len(txt), 'bytes')


if __name__ == '__main__':
    main()
```

```python
import sys, os, struct, argparse
sys.path.insert(0, os.path.dirname(os.path.abspath(__file__)))
from asmlib import I, WaitTag, Touch, Prog, resolve_waits, resolve_hazards
import cin16, fixalign

KNAME = 'standalone__deep_cross_xdeepfm__recsys_kernel'
LDS_TOTAL = 163840

XSLOT = 320 * 128
WR = 3 * XSLOT + 8192
WSLOT = 32 * 256
L_BIAS = 3 * XSLOT
L_W2 = L_BIAS + 256
RB = L_W2 + 256
assert WR % 32768 == 0 and WR + 4 * WSLOT <= LDS_TOTAL
WSP = 16640
assert RB + 2560 <= LDS_TOTAL

W2P = 1536
SSZ = 677 * 64
FRS = 0
V3OFF = 0
A1 = 6144
FR = A1
FRL = FR + 33 * 1024
A3 = FRL + 2048
SG = A3
A2 = SG + SSZ
SQ = A2
V2S = SQ + SSZ
L_WCO = V2S + 832
L_FLG = L_WCO + 192
L_MX = L_FLG + 16
RC = L_FLG + 64
XB = V2S + 2496
XPP = 1056
XBSZ = 3 * XPP + 7 * 128
IMG = A3
IMGP = 160
IMGSZ = 33 * IMGP
XB2 = IMG + 8 * IMGSZ
PART = XB2 + 8 * XBSZ
XOFF = lambda f: (f & 3) * XPP + (f >> 2) * 128
assert RC + 512 <= V2S + 1664
assert XB + 8 * XBSZ <= LDS_TOTAL and XB % 16 == 0 and A2 % 64 == 0 and A3 % 64 == 0 and L_WCO % 16 == 0 and V2S % 64 == 0
assert PART + 8 * 1536 <= V2S + 832 and IMGSZ % 32 == 0 and XB2 % 16 == 0

S_WAVE = 3
S_IDX, S_TAB, S_CIN, S_WCO, S_W1, S_B1, S_W2, S_BO, S_OUT, S_DBG, S_WS = 4, 6, 8, 10, 12, 14, 16, 18, 20, 22, 24
S_MB, S_R = 26, 27
SRD_IDX, SRD_TAB, SRD_CIN, SRD_WCO, SRD_W, SRD_B1, SRD_W2, SRD_OUT, SRD_WS, SRD_DBG = 28, 32, 36, 40, 44, 48, 52, 56, 60, 64
S_T0, S_T1, S_T2, S_T3 = 68, 69, 70, 71
S_LOOP, S_IDXOFF, S_WSOFF, S_WMB, S_XM0, S_N0, S_C0, S_CW, S_BOUT, S_TW = 72, 73, 74, 75, 76, 77, 78, 79, 80, 81
S_EX = 82
S_GRP, S_RC = 84, 85
S_ST = 86
S_M26, S_MASK = 90, 92
S_SAMP, S_STG, S_STG9, S_TGT = 94, 95, 96, 97
S_M26B = 98
S_GW = 100
S_TAGT = 0
S_TAG = 1
S_PW = 101
S_PX = 77
S_PXE = 73

GELU_C0 = -2.0 * 0.7978845608028654 * 1.4426950408889634
GELU_C1 = GELU_C0 * 0.044715


def f32hex(x):
    return '0x%08x' % struct.unpack('<I', struct.pack('<f', x))[0]


def vr(a, n):
    return f'v[{a}:{a + n - 1}]' if n > 1 else f'v{a}'


def srd(a):
    return f's[{a}:{a + 3}]'


def flat(gs):
    res = []
    for c in gs:
        if isinstance(c, (tuple, list)):
            res += flat(c)
        else:
            res.append(c)
    return res


def interleave(a, b):
    out = []
    ia = ib = 0
    na, nb = len(a), len(b)
    while ia < na or ib < nb:
        if ib >= nb or (ia < na and ia * nb <= ib * na):
            out.append(a[ia]); ia += 1
        else:
            out.append(b[ib]); ib += 1
    return out


SLOTS = []
for j in range(0, 26, 2):
    for s in range(0, 14 if j <= 12 else 13):
        SLOTS.append((j, (j + s) % 26))
assert len(SLOTS) == 176
DUP_SLOT = SLOTS.index((12, 25))
assert all((d * 2521) >> 16 == d // 26 for d in range(800))
assert all((d * 10923) >> 16 == d // 6 for d in range(64))
assert all((d * 5042) >> 16 == d // 13 for d in range(170))
assert all((d * 3277) >> 16 == d // 20 for d in range(264))


DOC = '''; ---------------------------------------------------------------------------------------------
; Generated by tools/gen23.py (own generator; waits / hazard nops derived from instruction traces).
;
;       U[i,j,k] = sum_h W2[h,i,j] V3[h,k]
;   Both quadratic forms use the 351 distinct products x_j x_k (j<=k) with symmetrised weights, evaluated by
;   DNN branch: full bf16 GEMM + bias + tanh-GELU (x / (1 + exp(-2u))) + dot with w_dnn2.
;   their own producer) and counters in d_debug; the last arriver of a row block adds up and writes d_out.
;   L_tables holds constant per-lane LDS address tables (functions of the lane id only).
; ---------------------------------------------------------------------------------------------
'''


class Gen:
    def __init__(self, opt):
        self.opt = opt
        self.P = Prog()

    def seq(self, lines):
        return [self.P.add(l) for l in flat(lines)]

    def build_srd(self, dst, ptr, size):
        return [f's_mov_b32 s{dst}, s{ptr}', f's_and_b32 s{dst + 1}, s{ptr + 1}, 0xffff',
                f's_mov_b32 s{dst + 2}, {size}', f's_mov_b32 s{dst + 3}, 0x20000']

    def stamp(self, slot):
        if not self.opt.stamps or (self.opt.few and slot not in [int(x) for x in self.opt.few.split(',')]):
            return []
        return [f's_memtime s[{S_ST}:{S_ST + 1}]', f's_memrealtime s[{S_ST + 2}:{S_ST + 3}]', 's_waitcnt lgkmcnt(0)',
                f'v_writelane_b32 v252, s{S_ST}, {slot}', f'v_writelane_b32 v253, s{S_ST + 2}, {slot}']

    def probe(self, name, wave=4):
        if self.opt.probe != name:
            return []
        return ['s_memrealtime s[88:89]', 's_waitcnt lgkmcnt(0)']

    def stamp_flush(self):
        if not self.opt.stamps:
            return []
        L = self.build_srd(SRD_WS, S_WS, 0x10000000)
        L += [f's_lshl_b32 s{S_C0}, s2, 3', f's_add_u32 s{S_C0}, s{S_C0}, s{S_WAVE}',
              f's_lshl_b32 s{S_C0}, s{S_C0}, 8', f's_add_u32 s{S_C0}, s{S_C0}, 0x100000',
              'v_lshlrev_b32 v254, 3, v0', 's_mov_b32 exec_hi, 0',
              f'buffer_store_dwordx2 v[252:253], v254, {srd(SRD_WS)}, s{S_C0} offen', 's_mov_b32 exec_hi, -1']
        return L

    def stamp0(self):
        if not self.opt.stamps:
            return []
        return ['v_mov_b32 v252, 0xcdcdcdcd', 'v_mov_b32 v253, 0xcdcdcdcd',
                f'v_writelane_b32 v252, s{S_ST}, 0', f'v_writelane_b32 v253, s{S_ST + 2}, 0'] + self.stamp(15)

    def tlb2(self, t):
        L = self.build_srd(SRD_WS, S_WS, 0x10000000) + self.build_srd(SRD_OUT, S_OUT, 8192) + self.build_srd(SRD_DBG, S_DBG, 256)
        L += [f's_load_dword s{S_BOUT}, s[{S_BO}:{S_BO + 1}], 0', f'v_mov_b32 v{t}, 0', 's_mov_b64 exec, 1',
              f's_mov_b32 s{S_TW}, 0x80000',
              f'buffer_load_dword v{t + 1}, v{t}, {srd(SRD_WS)}, s{S_TW} offen',
              f'buffer_load_dword v{t + 2}, v{t}, {srd(SRD_OUT)}, 0 offen',
              's_mov_b64 exec, -1']
        return L

    def tlb1(self, vtmp, vdst):
        if not self.opt.etlb:
            return self.build_srd(SRD_TAB, S_TAB, 100000 * 128)
        return self.build_srd(SRD_TAB, S_TAB, 100000 * 128) + [
            f'v_mov_b32 v{vtmp}, s{S_BOUT}', f'buffer_load_dword v{vdst}, v{vtmp}, {srd(SRD_TAB)}, 0 offen']

    def gettag(self, lab, t, VT):
        return [f's_cmp_lg_u32 s{S_WAVE}, 0', f's_cbranch_scc1 {lab}',
                f's_memrealtime s[{S_TAGT}:{S_TAGT + 1}]'] + self.build_srd(SRD_DBG, S_DBG, 256) + [
                f's_lshl_b32 s{S_TW}, s{S_MB}, 2', f'v_mov_b32 v{t}, s{S_TW}', 's_waitcnt lgkmcnt(0)',
                f's_or_b32 s{S_TAG}, s{S_TAGT}, 1', f'v_mov_b32 v{VT}, s{S_TAG}', f'v_mov_b32 v{VT + 1}, 0',
                's_mov_b64 exec, 1',
                f'buffer_atomic_cmpswap v[{VT}:{VT + 1}], v{t}, {srd(SRD_DBG)}, 0 offen offset:128 sc0',
                's_mov_b64 exec, -1', f'{lab}:']

    def prologue(self):
        L = []
        if self.opt.stamps:
            L += [f's_memtime s[{S_ST}:{S_ST + 1}]', f's_memrealtime s[{S_ST + 2}:{S_ST + 3}]']
        L += ['s_cmp_ge_u32 s2, 256', 's_cbranch_scc1 L_end',
              's_load_dwordx16 s[4:19], s[0:1], 0',
              's_load_dwordx4 s[20:23], s[0:1], 64',
              's_load_dwordx2 s[24:25], s[0:1], 80',
              'v_lshrrev_b32 v1, 6, v0']
        if self.opt.cpf:
            L += [f's_getpc_b64 s[{S_MASK}:{S_MASK + 1}]', 'L_pc:',
                  f's_and_b32 s{S_T0}, s2, 0xf8', f'v_add_u32 v2, s{S_T0}, v1', 'v_and_b32 v3, 32, v0', 'v_lshl_add_u32 v2, v3, 3, v2', 'v_lshlrev_b32 v2, 7, v2',
                  f'v_min_u32 v2, L_end-L_pc, v2',
                  f'v_mov_b32 v3, s{S_MASK + 1}',
                  f'v_add_co_u32 v2, vcc, s{S_MASK}, v2', 'v_addc_co_u32 v3, vcc, 0, v3, vcc',
                  'global_load_dword v251, v[2:3], off']
        if self.opt.skew:
            L += ['s_memrealtime s[86:87]', 's_mov_b32 s88, 0']
        L += ['v_and_b32 v0, 63, v0',
              f'v_readfirstlane_b32 s{S_WAVE}, v1',
              f's_and_b32 s{S_T0}, s2, 7', f's_lshr_b32 s{S_T1}, s2, 3', f's_xor_b32 s{S_T1}, s{S_T1}, {31 * self.opt.rev}',
              f's_and_b32 s{S_BOUT}, s2, 0xf8', f's_add_u32 s{S_BOUT}, s{S_BOUT}, s{S_WAVE}', f's_lshl_b32 s{S_BOUT}, s{S_BOUT}, {self.opt.etlb}',
              f's_min_u32 s{S_T2}, s{S_T0}, 1', f's_add_u32 s{S_T3}, s{S_T1}, s{S_T2}',
              f's_cmp_ge_u32 s{S_T3}, 22', 's_cbranch_scc1 L_cin',
              f's_mul_i32 s{S_T0}, s{S_T0}, 21', f's_add_u32 s{S_T0}, s{S_T0}, s{S_T3}',
              f's_mul_i32 s{S_MB}, s{S_T0}, 5042', f's_lshr_b32 s{S_MB}, s{S_MB}, 16',
              f's_mul_i32 s{S_T1}, s{S_MB}, 13', f's_sub_u32 s{S_R}, s{S_T0}, s{S_T1}']
        return self.seq(L)

    def dnn(self):
        o = self.opt
        vW = [1, 2, 3, 4]
        vX = [[5, 6], [7, 8]]
        vPa, vPc = 9, 10
        WF, XA, ACC = 16, 48, 88
        W2F = WF
        KC0, KC1, KONE = 12, 14, 248
        SUMP, GT = 32, 52
        vIdxOff, vCh, vWD, vBL = 1, [2, 3], [4, 5], 11
        ST, VO = 16, 56
        T = 100
        g, i4, q = T + 16, T + 17, T + 18
        PI = T + 8

        def acc(tn, tm):
            return ACC + (tm * 4 + tn) * 4

        def small(srd_, dst):
            return [f's_mov_b32 m0, {dst}', 's_mov_b64 exec, 0xffff',
                    I(f'buffer_load_dwordx4 v{vBL}, {srd(srd_)}, s{S_N0} offen lds', tag='BIAS'), 's_mov_b64 exec, -1']
        L = [f's_lshl_b32 s{S_N0}, s{S_R}, 8', f's_mul_i32 s{S_T3}, s{S_MB}, 320',
             f'v_lshrrev_b32 v{g}, 4, v0', f'v_lshlrev_b32 v{vBL}, 4, v0', f's_and_b32 s{S_CW}, s{S_WAVE}, 3',
             f's_cmp_lt_u32 s{S_WAVE}, 4', 's_cbranch_scc1 L_cmp']
        c0 = self.seq(L)
        self.ldat = len(self.P.static)
        PI = T

        RG, CG = S_T0, S_T1
        L = ['L_cmp:', f's_mul_i32 s{S_T2}, s{S_WAVE}, 13', f'v_min_u32 v{q}, 12, v0', f'v_add_u32 v{q}, s{S_T2}, v{q}',
             f'v_lshrrev_b32 v{i4}, 1, v{q}', f'v_mul_u32_u24 v{i4}, 96, v{i4}', f'v_lshl_add_u32 v{q}, v{q}, 2, v{i4}',
             f's_mul_i32 s{S_C0}, s{S_R}, 25', f's_min_u32 s{S_C0}, s{S_C0}, 294',
             f's_add_u32 s{S_C0}, s{S_C0}, s{S_T3}', f's_mul_i32 s{S_C0}, s{S_C0}, 104', 's_waitcnt lgkmcnt(0)']
        ct = [int(x) for x in o.ct]
        L += self.build_srd(SRD_IDX, S_IDX, 4096 * 104)
        if ct:
            L += [f'buffer_load_dwordx4 {vr(PI, 4)}, v{q}, {srd(SRD_IDX)}, s{S_C0} offen']
        if ct and max(ct) > 3:
            L += [f'buffer_load_dwordx4 {vr(PI + 4, 4)}, v{q}, {srd(SRD_IDX)}, s{S_C0} offen offset:16']
        L += self.tlb1(T + 14, T + 15)
        touch = [x for k in ct for x in (f'v_lshlrev_b32 v{PI + k}, 7, v{PI + k}', f'buffer_load_dword v{XA + k}, v{PI + k}, {srd(SRD_TAB)}, 0 offen')]
        L += self.build_srd(SRD_B1, S_B1, 3328) + small(SRD_B1, L_BIAS) + self.stamp0()
        L += [f's_and_b32 s{RG}, s{S_WAVE}, 1', f's_lshr_b32 s{CG}, s{S_WAVE}, 1',
              f'v_bfe_u32 v{i4}, v0, 2, 2', f'v_lshl_add_u32 v{q}, v{g}, 3, v{i4}', f'v_lshlrev_b32 v{q}, 8, v{q}',
              f'v_bfe_u32 v{i4}, v0, 2, 3', f's_lshl_b32 s{S_T2}, s{CG}, 2', f'v_xor_b32 v{i4}, s{S_T2}, v{i4}',
              f'v_lshl_add_u32 v{q}, v{i4}, 5, v{q}', f'v_and_b32 v{i4}, 3, v0', f'v_lshl_add_u32 v{q}, v{i4}, 3, v{q}',
              f'v_add_u32 v{vW[0]}, {WR}, v{q}']
        L += [f'v_xor_b32 v{vW[tn]}, {32 * tn}, v{vW[0]}' for tn in range(1, 4)]
        L += [f's_lshl_b32 s{S_T2}, s{CG}, 7', f's_add_u32 s{S_T2}, s{S_T2}, {L_BIAS}', f'v_lshlrev_b32 v{q}, 3, v{g}', f'v_add_u32 v{vPa}, s{S_T2}, v{q}',
              f'v_and_b32 v{q}, 15, v0', f'v_lshlrev_b32 v{q}, 7, v{q}',
              f'v_bfe_u32 v{i4}, v0, 1, 3', f'v_xor_b32 v{i4}, v{i4}, v{g}', f'v_lshl_add_u32 v{q}, v{i4}, 4, v{q}',
              f's_mul_i32 s{S_T2}, s{RG}, 20480', f'v_add_u32 v{vX[0][0]}, s{S_T2}, v{q}', f'v_xor_b32 v{vX[1][0]}, 64, v{vX[0][0]}',
              f'v_add_u32 v{vX[0][1]}, {2 * XSLOT}, v{vX[0][0]}', f'v_add_u32 v{vX[1][1]}, {2 * XSLOT}, v{vX[1][0]}',
              f's_mul_i32 s{S_T2}, s{S_WAVE}, 640', f's_add_u32 s{S_T2}, s{S_T2}, {RB}',
              f'v_and_b32 v{q}, 15, v0', f'v_lshlrev_b32 v{q}, 2, v{q}', f'v_add_u32 v{q}, s{S_T2}, v{q}',
              f'v_lshrrev_b32 v{i4}, 5, v0', f'v_lshl_add_u32 v{q}, v{i4}, 6, v{q}', f'v_bfe_u32 v{i4}, v0, 4, 1', f'v_lshl_add_u32 v{vPc}, v{i4}, 7, v{q}',
              f's_mov_b32 s{S_LOOP}, 0',
              f'v_mov_b32 v{KC0}, {f32hex(GELU_C0)}', f'v_mov_b32 v{KC0 + 1}, {f32hex(GELU_C0)}',
              f'v_mov_b32 v{KC1}, {f32hex(GELU_C1)}', f'v_mov_b32 v{KC1 + 1}, {f32hex(GELU_C1)}']

        def pkreads(off, dst):
            return [f'ds_read_b64 {vr(dst + 4 * tn + 2, 2)}, v{vPa} offset:{off + 32 * tn}' for tn in range(4)]

        def unp(dst):
            c = []
            for tn in range(4):
                r = dst + 4 * tn
                c += [f'v_lshlrev_b32 v{r}, 16, v{r + 2}', f'v_and_b32 v{r + 1}, 0xffff0000, v{r + 2}',
                      f'v_lshlrev_b32 v{r + 2}, 16, v{r + 3}', f'v_and_b32 v{r + 3}, 0xffff0000, v{r + 3}']
            return c
        L += touch + self.stamp(6)
        L += [WaitTag(vm_tags=['BIAS'])] + pkreads(0, WF) + unp(WF)
        L += [f'v_mov_b64 {vr(ACC + r, 2)}, {vr(WF + r % 16, 2)}' for r in range(0, 160, 2)]

        def rX(p, k):
            xs = p % 3
            return f'ds_read_b128 {vr(XA + 4 * (k % 10), 4)}, v{vX[k % 2][xs // 2]} offset:{(xs % 2) * XSLOT + (k // 2) * 2048}'

        def rW(tn):
            return [f'ds_read_b64_tr_b16 {vr(WF + 16 * par + 4 * tn + 2 * rd, 2)}, v{vW[tn]} offset:{par * WSLOT + rd * 1024}' for par in range(2) for rd in range(2)]
        tog = lambda tn: f'v_xor_b32 v{vW[tn]}, {2 * WSLOT}, v{vW[tn]}'

        def dec(gi):
            G, tn, a_, par = gi // 16, (gi // 4) % 4, (gi // 2) % 2, gi % 2
            if o.bou:
                par ^= a_ ^ (G == 4)
                a_ ^= tn & 1
            return G, tn, a_, par
        lastx = {4 * dec(gi)[0] + 2 * dec(gi)[2] + dec(gi)[3]: gi for gi in range(80)}

        def mf(gi):
            G, tn, a_, par = dec(gi)
            d = acc(tn, 2 * G + a_)
            return f'v_mfma_f32_16x16x32_bf16 {vr(d, 4)}, {vr(WF + 16 * par + 4 * tn, 4)}, {vr(XA + 4 * ((4 * G + 2 * a_ + par) % 10), 4)}, {vr(d, 4)}'
        SH = [11, 248, 249, 250]
        nsh = o.nsh

        def shadow():
            c = []
            for b0 in range(0, nsh, 4):
                E = [(ACC + e, SH[e - b0]) for e in range(b0, min(b0 + 4, nsh))]
                for op in ('v_mul_f32 T, X, X', f'v_fma_f32 T, T, v{KC1}, v{KC0}', 'v_mul_f32 T, T, X', 'v_exp_f32 T, T', 'v_add_f32 T, 1.0, T', 'v_rcp_f32 T, T', 'v_mul_f32 X, X, T'):
                    c += [(op.replace('T', f'v{t}').replace('X', f'v{x}'), 8 if ('exp' in op or 'rcp' in op) else 4) for x, t in E]
            return c

        def cpair(p, kind, loopend=False):
            S = []
            ev = {}
            if kind == 'first':
                g_ = o.sbg + 1
                for k in range(2 * o.sa, 10):
                    ev[g_] = rX(p, k); g_ += 1
            else:
                for i_, x in enumerate(rW(3)[2:]):
                    ev[i_] = x
                for i_, k in enumerate(range(6, 10)):
                    ev[2 + i_] = rX(p, k)
            for k in range(10):
                g_ = lastx[k]
                while g_ in ev or (kind == 'first' and g_ <= o.sbg):
                    g_ += 1
                ev[g_] = rX(p, k + 10)
            BG = 48 + o.bgap if o.bou else 46 + o.bgap
            if kind != 'last':
                ev[BG], ev[BG + 1] = rX(p + 1, 0), rX(p + 1, 1)
                for k in range(2, 6):
                    ev[lastx[10 + k]] = rX(p + 1, k)
                for tn in range(4):
                    for i_, x in enumerate(rW(tn)):
                        if 66 + 4 * tn + i_ < 80:
                            ev[66 + 4 * tn + i_] = x
            sh_ = shadow() if kind == 'last' else []
            for gi in range(80):
                S.append(mf(gi))
                t = 4
                if kind == 'first' and gi == o.sbg:
                    S.append('s_barrier')
                if kind != 'last' and gi == BG - 1:
                    S += ['s_waitcnt lgkmcnt(0)', 's_barrier']
                if gi in ev:
                    S.append(ev[gi]); t += 8
                if kind != 'last' and 8 <= gi < 12:
                    S.append(tog(gi - 8))
                if gi % 2 == 0 and gi + 2 < 80:
                    n_ = gi + 2
                    G, tn, a_ = n_ // 16, (n_ // 4) % 4, (n_ // 2) % 2
                    if tn == 0:
                        S.append(Touch(vr(XA + 4 * ((4 * G + 2 * a_) % 10), 8)))
                    if G == 0 and a_ == 0:
                        S.append(Touch(vr(WF + 16 + 4 * tn, 4)))
                if gi == 78 and kind != 'last':
                    S.append(Touch(vr(WF + 16, 4)))
                if loopend and gi == 48:
                    S += [f's_add_u32 s{S_LOOP}, s{S_LOOP}, 1', f's_cmp_lt_u32 s{S_LOOP}, 8']
                t = max(t, 8)
                while sh_ and gi >= o.sh0 and t + sh_[0][1] <= 16:
                    x, c_ = sh_.pop(0)
                    S.append(x); t += c_
            S += [x for x, _ in sh_]
            if kind == 'last':
                print('shadow left', len(sh_))
            return S
        L += self.stamp(1) + ['s_barrier'] + [x for tn in range(4) for x in rW(tn)] + ['s_waitcnt lgkmcnt(0)', f's_setprio {o.cprio}', 's_barrier'] + self.stamp(2)
        L += [rX(0, k) for k in range(2 * o.sa)] + cpair(0, 'first')
        cpre = self.seq(L)
        body = self.seq(['L_dnn_loop0:'])
        for p in range(1, 4):
            S = cpair(p, 'mid', p == 3)
            if p == 3:
                if o.stamps and o.itst == 1:
                    i_ = S.index('s_barrier')
                    S = S[:i_] + [f's_memtime s[{S_ST}:{S_ST + 1}]', f's_memrealtime s[{S_ST + 2}:{S_ST + 3}]', f's_or_b32 m0, s{S_LOOP}, 16', 's_waitcnt lgkmcnt(0)',
                                  f'v_writelane_b32 v252, s{S_ST}, m0', f'v_writelane_b32 v253, s{S_ST + 2}, m0', f's_cmp_lt_u32 s{S_LOOP}, 8'] + S[i_:]
                S += ['s_cbranch_scc1 L_dnn_loop0']
            body += self.seq(S)
        tc = c0 + cpre + body * 2 + self.seq(['L_tail:'])
        tc += self.seq(cpair(25, 'last') + pkreads(256, W2F) + [f'v_mov_b32 v{KONE}, 1.0', f'v_mov_b32 v{KONE + 1}, 1.0'])
        if o.burn:
            bl = [f's_movk_i32 s{S_LOOP}, {o.burn}', 'L_burn:'] + [f'v_mfma_f32_16x16x32_bf16 {vr(XA + 32 + 4 * (k % 2), 4)}, {vr(WF + 16 + 4 * (k % 4), 4)}, {vr(XA + 4 * (k // 4), 4)}, 0' for k in range(32)]
            tc += self.seq(bl + [f's_sub_u32 s{S_LOOP}, s{S_LOOP}, 1', f's_cmp_lg_u32 s{S_LOOP}, 0', 's_cbranch_scc1 L_burn'])
        tc += self.seq(['L_epi:'] + self.stamp(3))

        p2 = lambda r: vr(r, 2)
        seen = set()

        def gelu(groups):
            L = []
            for k, vals in enumerate(groups):
                tb = GT + (k % 2) * 16
                V_ = [(x, w, s_, tb + 4 * i_, tb + 4 * i_ + 2) for i_, (x, w, s_) in enumerate(vals)]
                for (x, w, s_, t, u) in V_:
                    L.append(f'v_pk_mul_f32 {p2(t)}, {p2(x)}, {p2(x)}')
                for (x, w, s_, t, u) in V_:
                    L.append(f'v_pk_fma_f32 {p2(t)}, {p2(t)}, {p2(KC1)}, {p2(KC0)}')
                for (x, w, s_, t, u) in V_:
                    L.append(f'v_pk_mul_f32 {p2(t)}, {p2(t)}, {p2(x)}')
                for (x, w, s_, t, u) in V_:
                    L += [f'v_exp_f32 v{t}, v{t}', f'v_exp_f32 v{t + 1}, v{t + 1}']
                for (x, w, s_, t, u) in V_:
                    L.append(f'v_pk_mul_f32 {p2(u)}, {p2(x)}, {p2(w)}')
                for (x, w, s_, t, u) in V_:
                    L.append(f'v_pk_add_f32 {p2(t)}, {p2(t)}, {p2(KONE)}')
                for (x, w, s_, t, u) in V_:
                    L += [f'v_rcp_f32 v{t}, v{t}', f'v_rcp_f32 v{t + 1}, v{t + 1}']
                for (x, w, s_, t, u) in V_:
                    if s_ in seen:
                        L.append(f'v_pk_fma_f32 {p2(s_)}, {p2(t)}, {p2(u)}, {p2(s_)}')
                    else:
                        L.append(f'v_pk_mul_f32 {p2(s_)}, {p2(t)}, {p2(u)}')
                        seen.add(s_)
            return L
        el = lambda tn, tm, d: (acc(tn, tm) + 2 * d, W2F + 4 * tn + 2 * d, SUMP + 2 * tm)
        allel = [el(tn, 2 * tp + a_, d) for tp in range(5) for tn in range(4) for d in range(2) for a_ in range(2)]
        rest = [e for e in allel if e[0] >= ACC + nsh]
        L = gelu([rest[i:i + 4] for i in range(0, len(rest), 4)])
        L = L[:20] + unp(W2F) + L[20:]
        for (x, w, s_) in allel:
            if x < ACC + nsh:
                L.append(f'v_pk_fma_f32 {p2(s_)}, {p2(x)}, {p2(w)}, {p2(s_)}' if s_ in seen else f'v_pk_mul_f32 {p2(s_)}, {p2(x)}, {p2(w)}')
                seen.add(s_)
        sm = lambda tm: SUMP + 2 * tm
        L += [f'v_add_f32 v{sm(tm)}, v{sm(tm)}, v{sm(tm) + 1}' for tm in range(10)]
        L += [f'v_permlane32_swap_b32 v{sm(tm)}, v{sm(tm + 1)}' for tm in range(0, 10, 2)]
        L += [f'v_add_f32 v{sm(tm)}, v{sm(tm)}, v{sm(tm + 1)}' for tm in (8, 0, 2, 4, 6)]
        L += [f'v_mov_b32 v{sm(9)}, v{sm(8)}', f'v_permlane16_swap_b32 v{sm(0)}, v{sm(2)}', f'v_permlane16_swap_b32 v{sm(4)}, v{sm(6)}',
              f'v_permlane16_swap_b32 v{sm(8)}, v{sm(9)}',
              f'v_add_f32 v{sm(0)}, v{sm(0)}, v{sm(2)}', f'v_add_f32 v{sm(4)}, v{sm(4)}, v{sm(6)}', f'v_add_f32 v{sm(8)}, v{sm(8)}, v{sm(9)}',
              f'ds_write_b32 v{vPc}, v{sm(0)}', f'ds_write_b32 v{vPc}, v{sm(4)} offset:256',
              's_mov_b32 exec_lo, 0xffff', 's_mov_b32 exec_hi, 0xffff', f'ds_write_b32 v{vPc}, v{sm(8)} offset:512', 's_mov_b64 exec, -1']
        L += ['s_waitcnt lgkmcnt(0)'] + self.stamp(4) + self.stamp_flush() + ['s_barrier', 's_endpgm']
        tc += self.seq(L)

        def wstage(slot):
            c = []
            for u in range(2):
                c += [f's_add_u32 m0, s{S_WMB}, {WR + slot * WSLOT + u * 1024}',
                      I(f'buffer_load_dwordx4 v{vWD[u]}, {srd(SRD_W)}, s{S_WSOFF} offen lds', tag='W')]
            return c + [f's_add_u32 s{S_WSOFF}, s{S_WSOFF}, {32 * 3328}']

        Q, TM, BP = 16, 56, [12, 13]
        TI, vWT = 70, 76
        SP = [36, 37, 38, 39, 40, 41, 42, 43, 48, 49]
        SI = [94, 95, 96, 97, 98, 99, 100, 101, 82, 83]

        def xaddr(f, pcs):
            c = []
            for odd in range(2):
                p_ = f + 26 * odd
                for pc in pcs:
                    c.append(f'v_add_u32_dpp v{TM + pc}, v{Q + 4 * pc + p_ % 4}, v{vCh[0]} row_newbcast:{p_ >> 2} row_mask:0xf bank_mask:{(3, 12)[odd]:#x}')
            return c

        def xld(pc, slot, tag='X'):
            return [f's_add_u32 m0, s{S_XM0}, {slot * XSLOT + pc * 2048}',
                    I(f'buffer_load_dwordx4 v{TM + pc}, {srd(SRD_TAB)}, 0 offen lds', tag=tag)]
        idxl = [f'buffer_load_dwordx4 {vr(Q + 4 * pc, 4)}, v{BP[0]}, {srd(SRD_IDX)}, s{SI[pc // 2]} offen offset:{(pc % 2) * 1664}' for pc in range(10)]
        LO, HI = range(5), range(5, 10)
        NR = (22 + o.tf - 1) // o.tf
        lw = S_CW
        self.mk0 = len(self.P.static)
        L = [f's_lshr_b32 s{S_T0}, s{lw}, 1', f's_mul_i32 s{S_T0}, s{S_T0}, 20', f's_and_b32 s{S_T1}, s{lw}, 1', f's_add_u32 s{S_T0}, s{S_T0}, s{S_T1}',
             f's_lshl_b32 s{S_XM0}, s{S_T0}, 10', f's_mul_i32 s{S_C0}, s{S_T3}, 104', f's_mul_i32 s{S_T0}, s{S_T0}, 832', f's_add_u32 s{SI[0]}, s{S_C0}, s{S_T0}',
             f'v_mul_u32_u24 v{q}, 48, v{g}', f'v_sub_u32 v{BP[0]}, v{vBL}, v{q}']
        L += [f's_add_u32 s{SI[k]}, s{SI[0]}, {k * 2 * 1664}' for k in range(1, 5)]
        L += [f's_and_b32 s{S_T2}, s{lw}, 1', f's_lshl_b32 s{S_T2}, s{S_T2}, 3',
              f'v_lshlrev_b32 v{i4}, 1, v{g}', f'v_or_b32 v{i4}, s{S_T2}, v{i4}', f'v_xor_b32 v{i4}, v{i4}, v0', f'v_and_b32 v{i4}, 15, v{i4}',
              f'v_mul_u32_u24 v{vWD[0]}, 3328, v{g}', f'v_lshl_add_u32 v{vWD[0]}, v{i4}, 4, v{vWD[0]}', f'v_add_u32 v{vWD[1]}, {4 * 3328}, v{vWD[0]}',
              f's_mul_i32 s{S_WSOFF}, s{lw}, {8 * 3328}', f's_add_u32 s{S_WSOFF}, s{S_WSOFF}, s{S_N0}', f's_lshl_b32 s{S_WMB}, s{lw}, 11',
              's_waitcnt lgkmcnt(0)']
        L += self.build_srd(SRD_IDX, S_IDX, 4096 * 104) + idxl[:o.i0] + self.tlb1(T + 14, T + 15) + self.build_srd(SRD_W, S_W1, 1664 * 3328)
        for sl in range(o.w0):
            L += wstage(sl)
        L += self.stamp0() + idxl[o.i0:]
        for sl in range(o.w0, 2):
            L += wstage(sl)
        L += [f's_lshl_b32 s{S_T2}, s{S_T1}, 6',
              f'v_and_b32 v{q}, 7, v0', f'v_xor_b32 v{q}, v{q}, v{g}', f'v_lshlrev_b32 v{q}, 4, v{q}', f'v_xor_b32 v{vCh[0]}, s{S_T2}, v{q}', f'v_xor_b32 v{vCh[1]}, 64, v{vCh[0]}',
              f's_mov_b32 s{S_LOOP}, 0',
              f's_mul_i32 s{S_T2}, s{lw}, 13', f's_add_u32 s{S_T2}, s{S_T2}, s{S_R}', f's_min_u32 s{S_T2}, s{S_T2}, 39', f's_lshl_b32 s{S_T2}, s{S_T2}, 3',
              f's_add_u32 s{S_T2}, s{S_T2}, s{S_T3}', f's_mul_i32 s{S_GRP}, s{S_T2}, 104',
              f'v_lshrrev_b32 v{q}, {o.tf.bit_length() - 1}, v0', f'v_min_u32 v{q}, 7, v{q}', f'v_mul_u32_u24 v{q}, 104, v{q}',
              f'v_and_b32 v{i4}, {o.tf - 1}, v0', f'v_lshl_add_u32 v7, v{i4}, 2, v{q}',
              f's_lshl_b32 s{S_T2}, s{S_MB}, 2', f's_add_u32 s{S_T2}, s{S_T2}, s{lw}', f's_add_u32 s{S_T2}, s{S_T2}, {o.tw0 * 32}', f's_mul_i32 s{S_RC}, s{S_T2}, 3328',
              f's_add_u32 s{S_RC}, s{S_RC}, s{S_N0}', f's_mov_b32 s{S_T2}, {52 * 3328}',
              f'v_lshrrev_b32 v{q}, 1, v0', f'v_mul_lo_u32 v{q}, s{S_T2}, v{q}', f'v_and_b32 v{i4}, 1, v0', f'v_lshl_add_u32 v{vWT}, v{i4}, 7, v{q}']
        L += self.build_srd(SRD_W2, S_W2, 3328)
        L += [f's_mul_i32 s{S_T2}, s{lw}, {o.lpf * 128}', f's_add_u32 s{S_T2}, s{S_T2}, L_tail-L_pc', f'v_lshlrev_b32 v8, 7, v0', f'v_add_u32 v8, s{S_T2}, v8',
              f'v_mov_b32 v9, s{S_MASK + 1}', f'v_add_co_u32 v8, vcc, s{S_MASK}, v8', 'v_addc_co_u32 v9, vcc, 0, v9, vcc']
        sh = lambda pc, c_: f'v_lshlrev_b32 v{Q + 4 * pc + c_}, 7, v{Q + 4 * pc + c_}'
        for pc in range(10):
            L += [sh(pc, 0), sh(pc, 2), sh(pc, 1), sh(pc, 3)] + xaddr(0, [pc]) + xld(pc, 0, 'X0a' if pc < o.sa else 'X0')
            if pc == 0:
                L += self.stamp(6)
            if pc == o.bwat:
                L += [WaitTag(vm_tags=['W']), 's_barrier']
        L += self.stamp(7)
        x1 = [x for pc in range(10) for x in xaddr(1, [pc]) + xld(pc, 1)]
        L += x1[:4 * o.x1n] + [WaitTag(vm_tags=['X0a'])] + self.stamp(1) + ['s_barrier'] + self.probe('s0') + x1[4 * o.x1n:4 * o.x1m]
        L += [WaitTag(vm_tags=['X0']), 's_barrier'] + x1[4 * o.x1m:] + wstage(2) + wstage(3) + xaddr(2, range(10))
        x2 = [x for pc in range(10) for x in xld(pc, 2)]
        L += x2[:2 * o.x2n] + [WaitTag(vm_tags=['W']), 's_barrier'] + x2[2 * o.x2n:] + xaddr(3, range(10))
        lpre = self.seq(L + [f's_setprio {o.lprio}', 's_branch L_ld_in'])
        del self.P.static[self.mk0:]
        self.P.static[self.ldat:self.ldat] = lpre
        self.mk0 = len(self.P.static)

        def lpair(p):
            S = ['s_barrier'] + (['L_ld_in:'] if p == 0 else []) + wstage(2 * (p % 2)) + wstage(2 * (p % 2) + 1)
            f2 = p + 4
            for pc in range(10):
                x = xld(pc, p % 3)
                S += [x[0]] + (xaddr(f2, [pc - 1])[:1] if pc else []) + [x[1]] + (xaddr(f2, [pc - 1])[1:] if pc else [])
            S += xaddr(f2, [9])
            if p >= 10:
                S += [f'v_mov_b32_dpp v{Q + 4 * pc + c_}, v{Q + 4 * pc + c_} row_shl:3 row_mask:0xf bank_mask:0xf' for pc in range(10) for c_ in ((0, 2) if p == 10 else (1, 3))]
            if p == 11:
                S += [f's_add_u32 s{S_LOOP}, s{S_LOOP}, 1', f's_cmp_lt_u32 s{S_LOOP}, 2']
            return S + [WaitTag(vm_tags=['W'])]
        body = self.seq(['L_dnn_loop1:'])
        for p in range(12):
            if p == 8 and o.lpf:
                body += self.seq([f's_cmp_lg_u32 s{S_LOOP}, 1', 's_cbranch_scc1 L_nolpf'])
                self.seq([f's_mov_b64 exec, {(1 << o.lpf) - 1}', 'global_load_dword v10, v[8:9], off', 's_mov_b64 exec, -1'] + small(SRD_W2, L_W2))
                body += self.seq(['L_nolpf:'])
            body += self.seq(lpair(p) + (['s_cbranch_scc1 L_dnn_loop1'] if p == 11 else []))
        tl = c0 + lpre + body * 2 + self.seq(['s_branch L_ld_tail'])
        self.ldblk = self.P.static[self.mk0:]
        del self.P.static[self.mk0:]
        tl += self.seq(['L_ld_tail:', 's_barrier'] + self.tlb2(T) + ['s_mov_b64 exec, 1', f'buffer_load_dword v250, v{T}, {srd(SRD_DBG)}, 0 offen offset:240 sc1', 's_mov_b64 exec, -1'])
        tl += self.seq(self.probe('s50'))
        if o.walk:
            tl += self.seq([f's_cmp_eq_u32 s{lw}, 0', 's_cbranch_scc1 L_wkd', 's_mov_b64 exec, 0', f's_cmp_eq_u32 s{lw}, 1', 's_cbranch_scc1 L_wk0',
                            f's_cmp_eq_u32 s{lw}, 2', f's_cbranch_scc1 L_wk{np_ // 3}', f's_branch L_wk{2 * np_ // 3}', 'L_wkd:'])
        A = 64
        L = [f's_cmp_lg_u32 s{S_WAVE}, 4', 's_cbranch_scc1 L_end',
             f'v_lshlrev_b32 v3, 4, v0', f'v_lshlrev_b32 v4, 2, v0', f'v_add_u32 v1, {RB}, v3', f'v_add_u32 v2, {RB + 1024}, v4', f'v_add_u32 v4, 1024, v4',
             'v_mov_b32 v5, 32', f'v_mov_b32 v7, s{S_MB}',
             f's_mul_i32 s{S_T0}, s{S_MB}, 1280', f's_mul_i32 s{S_T1}, s{S_R}, {WSP}', f's_add_u32 s{S_T1}, s{S_T1}, s{S_T0}', 's_setprio 3']
        if o.sent:
            L += [f'v_mov_b32 v{A + k}, -1' for k in range(4)] + [f'buffer_store_dwordx4 {vr(A, 4)}, v3, {srd(SRD_WS)}, s{S_T1} offen sc1',
                  f'buffer_store_dword v{A}, v4, {srd(SRD_WS)}, s{S_T1} offen sc1', 's_waitcnt vmcnt(0)']
        L += self.stamp_flush() + ['s_barrier'] + self.probe('dend')
        L += [f'ds_read_b128 {vr(A, 4)}, v1', f'ds_read_b128 {vr(A + 8, 4)}, v1 offset:1280', f'ds_read2st64_b32 {vr(A + 4, 2)}, v2 offset0:0 offset1:5',
              f'v_pk_add_f32 {p2(A)}, {p2(A)}, {p2(A + 8)}', f'v_pk_add_f32 {p2(A + 2)}, {p2(A + 2)}, {p2(A + 10)}', f'v_add_f32 v{A + 4}, v{A + 4}, v{A + 5}']
        if o.sent:
            L += [f'v_min_u32 v{A + k}, -2, v{A + k}' for k in range(5)]
        L += (self.stamp(16) if o.diag else [])
        L += [f'buffer_store_dwordx4 {vr(A, 4)}, v3, {srd(SRD_WS)}, s{S_T1} offen sc1',
              f'buffer_store_dword v{A + 4}, v4, {srd(SRD_WS)}, s{S_T1} offen sc1', 's_mov_b64 exec, 1']
        tl += self.seq(L)

        L = ['L_pub:']
        if o.skew:
            L += ['v_mov_b32 v20, s86', 'v_mov_b32 v21, s86', 'v_mov_b32 v22, s88', 's_lshl_b32 s89, s2, 7', 's_add_u32 s89, s89, 0x40000', 'v_lshlrev_b32 v23, 28, v0',
                  f'buffer_store_dwordx3 v[20:22], v23, {srd(SRD_WS)}, s89 offen sc1']
        def loads():
            c = [f's_mul_i32 s{S_T0}, s{S_T3}, 1280']
            for qq in range(14):
                c += [f'buffer_load_dwordx4 {vr(A + 8 * qq, 4)}, v3, {srd(SRD_WS)}, s{S_T0} offen sc1',
                      f'buffer_load_dword v{A + 8 * qq + 4}, v4, {srd(SRD_WS)}, s{S_T0} offen sc1', f's_add_u32 s{S_T0}, s{S_T0}, {WSP}']
            return c
        R_ = 56
        L += ['v_lshlrev_b32 v6, 4, v7'] + ([] if o.sent else ['s_waitcnt vmcnt(0)']) + ['v_mov_b32 v13, v5', f'buffer_atomic_add v5, v6, {srd(SRD_DBG)}, 0 offen sc0',
              'v_cmp_eq_u32 vcc, 12, v7', 'v_mov_b32 v8, 436', 'v_mov_b32 v9, 434', 'v_cndmask_b32 v8, v8, v9, vcc', 'v_sub_u32 v8, v8, v13']
        if o.spec:
            L += [f's_mov_b64 s[{S_MASK}:{S_MASK + 1}], exec', 's_mov_b64 exec, -1', f'v_readfirstlane_b32 s{S_T3}, v7'] + loads() + [f's_mov_b64 exec, s[{S_MASK}:{S_MASK + 1}]']
            L += ['s_waitcnt vmcnt(0) lgkmcnt(0)']
        else:
            L += ['s_waitcnt vmcnt(0) lgkmcnt(0)']
        L += (self.stamp(18) if o.diag else []) + [
             f'v_cmp_eq_u32 s[{S_EX}:{S_EX + 1}], v5, v8', 's_mov_b64 exec, -1', f's_lshl_b32 s{S_BOUT}, s{S_BOUT}, 16',
             'v_lshrrev_b32 v1, 1, v3', 'v_lshrrev_b32 v2, 1, v4']
        if o.spec:
            L += [f's_bitcmp1_b32 s{S_EX}, 0', f's_bitset0_b32 s{S_EX}, 0', 's_cbranch_scc1 L_sum']
        pa = self.seq(L)
        L = ['L_fin:', f's_cmp_eq_u32 s{S_EX}, 0', 's_cbranch_scc1 L_done',
             f's_ff1_i32_b32 s{S_T2}, s{S_EX}', f's_bitset0_b32 s{S_EX}, s{S_T2}', f'v_readlane_b32 s{S_T3}, v7, s{S_T2}', 's_waitcnt vmcnt(0)', 'L_again:'] + loads()
        pb = self.seq(L)
        L = ['L_sum:', f'v_pk_add_f32 {p2(R_)}, {p2(A)}, {p2(A + 8)}', f'v_pk_add_f32 {p2(R_ + 2)}, {p2(A + 2)}, {p2(A + 10)}', f'v_add_f32 v{R_ + 4}, v{A + 4}, v{A + 12}']
        for qq in range(2, 14):
            L += [f'v_pk_add_f32 {p2(R_)}, {p2(R_)}, {p2(A + 8 * qq)}', f'v_pk_add_f32 {p2(R_ + 2)}, {p2(R_ + 2)}, {p2(A + 8 * qq + 2)}',
                  f'v_add_f32 v{R_ + 4}, v{R_ + 4}, v{A + 8 * qq + 4}']
        if o.sent:
            L += [f'v_cmp_u_f32 vcc, v{R_}, v{R_ + 1}', f'v_cmp_u_f32 s[{S_MASK}:{S_MASK + 1}], v{R_ + 2}, v{R_ + 3}', f's_or_b64 s[{S_MASK}:{S_MASK + 1}], s[{S_MASK}:{S_MASK + 1}], vcc',
                  f'v_cmp_u_f32 vcc, v{R_ + 4}, v{R_ + 4}', f's_or_b64 vcc, s[{S_MASK}:{S_MASK + 1}], vcc', 's_cbranch_vccnz L_chk', 'L_ok:']
        L += [f's_mul_i32 s{S_T3}, s{S_T3}, 640']
        A0 = A
        A = R_
        L += [f'v_add_f32 v{A + k}, s{S_BOUT}, v{A + k}' for k in range(5)]
        L += [f'v_cvt_pk_bf16_f32 v10, v{A}, v{A + 1}', f'v_cvt_pk_bf16_f32 v11, v{A + 2}, v{A + 3}', f'v_cvt_pk_bf16_f32 v12, v{A + 4}, v{A + 4}',
              f'buffer_store_dwordx2 v[10:11], v1, {srd(SRD_OUT)}, s{S_T3} offen', f'buffer_store_short v12, v2, {srd(SRD_OUT)}, s{S_T3} offen']
        if o.skew:
            L += [f's_cmp_lg_u32 s{S_EX}, 0', 's_cbranch_scc1 L_fin', 'v_lshlrev_b32 v20, 7, v0', 's_mov_b32 s88, 0x40000']
            for k in range(4):
                L += [f'buffer_load_dwordx3 v[{32 + 4 * k}:{34 + 4 * k}], v20, {srd(SRD_WS)}, s88 offen sc1', 's_add_u32 s88, s88, 8192']
            L += ['s_waitcnt vmcnt(0)']
            if o.probe.startswith('st') or o.absol:
                L += ['s_memrealtime s[88:89]', 's_waitcnt lgkmcnt(0)', 'v_mov_b32 v26, 0', 'v_mov_b32 v27, 0']
                for k in range(4):
                    L += [f'v_sub_u32 v28, s88, v{32 + 4 * k}', 'v_cmp_gt_u32 vcc, 4500, v28', f'v_not_b32 v29, v{32 + 4 * k}', 'v_cndmask_b32 v29, 0, v29, vcc', 'v_max_u32 v27, v27, v29']
                    if o.absol:
                        L += [f'v_cndmask_b32 v29, 0, v{34 + 4 * k}, vcc', 'v_max_u32 v26, v26, v29']
                    elif str(k) in o.probe[2:]:
                        L += [f'v_cndmask_b32 v29, 0, v{32 + 4 * k}, vcc', 'v_max_u32 v26, v26, v29']
            else:
                for k in range(4):
                    L += [f'v_sub_u32 v28, v{34 + 4 * k}, v{32 + 4 * k}', 'v_cmp_gt_u32 vcc, 5000, v28', f'v_cndmask_b32 v28, 0, v28, vcc',
                          f'v_cmp_eq_u32 vcc, v{32 + 4 * k}, v{33 + 4 * k}', f'v_cndmask_b32 v{33 + 4 * k}, 0, v28, vcc']
                L += ['v_max_u32 v26, v33, v37', 'v_max3_u32 v26, v26, v41, v45', 'v_mov_b32 v27, -1']
            if o.probe == 'span':
                L += ['s_memrealtime s[86:87]', 's_waitcnt lgkmcnt(0)', 'v_mov_b32 v26, s86']
            for (ctl, rm) in (('row_shr:1', '0xf'), ('row_shr:2', '0xf'), ('row_shr:4', '0xf'), ('row_shr:8', '0xf'), ('row_bcast:15', '0xa'), ('row_bcast:31', '0xc')):
                L += [f'v_max_u32_dpp v{r}, v{r}, v{r} {ctl} row_mask:{rm} bank_mask:0xf' for r in (26, 27)]
            L += ['v_not_b32 v27, v27', 'v_sub_u32 v22, v26, v27', 's_memrealtime s[86:87]', 'v_readlane_b32 s88, v22, 63', 's_waitcnt lgkmcnt(0)',
                  's_min_u32 s88, s88, 5000', f's_mul_i32 s88, s88, {o.skew - 1}', 's_add_u32 s88, s88, s86',
                  'L_spin:', 's_memrealtime s[86:87]', 's_waitcnt lgkmcnt(0)', 's_sub_u32 s89, s88, s86', 's_cmp_gt_i32 s89, 0', 's_cbranch_scc1 L_spin']
        L += self.stamp(5) + self.stamp_flush() + ['s_branch L_fin']
        pc_ = self.seq(L)
        if o.sent:
            L = ['L_chk:', 'v_mov_b32 v14, 0', 'v_mov_b32 v15, 0']
            for qq in range(14):
                L += [f'v_max3_u32 v14, v14, v{A0 + 8 * qq}, v{A0 + 8 * qq + 1}', f'v_max3_u32 v14, v14, v{A0 + 8 * qq + 2}, v{A0 + 8 * qq + 3}', f'v_max_u32 v15, v15, v{A0 + 8 * qq + 4}']
            L += [f's_cmp_eq_u32 s{S_T3}, 12', f's_cselect_b32 s{S_T0}, 0, -1', f'v_and_b32 v15, s{S_T0}, v15', 'v_max_u32 v14, v14, v15',
                  'v_cmp_eq_u32 vcc, -1, v14', 's_cbranch_vccnz L_again', 's_branch L_ok']
            self.chk = self.seq(L)
        pe = self.seq(['L_done:', 's_endpgm'])
        self.pub = pa + pb + pc_ + pe
        self.extra_traces = [pa + pc_ + pb + pc_] + ([pa + pb + pc_[:45] + self.chk + pb[7:] + pc_] if o.sent else [])
        return [tc, tl + self.pub]

    def pubsrd(self):
        return self.build_srd(SRD_WS, S_WS, 0x10000000) + self.build_srd(SRD_OUT, S_OUT, 8192) + self.build_srd(SRD_DBG, S_DBG, 256)

    def tables(self):
        OOB = 0x100000
        G = [[] for _ in range(11)]
        for l in range(64):
            half, i32, g, r, c = l >> 5, l & 31, l >> 4, (l >> 2) & 3, l & 3
            lin0 = g * 128 + r * XPP + c * 8
            G[0] += [lin0, lin0 + 512 if g < 3 else XOFF(27) + c * 8, (l >> 3) * 16, 0x3f803f80 if l < 32 else 0]
            G[1] += [(l & 7) * 16, 0xeeee if l & 1 else 0x4444, half * XPP + i32 * 4, IMG + half * 20 * IMGP + i32 * 4]
            tr = [IMG + cin16.IMGROW(cin16.LAB[g][2 * rp + (r >> 1)][r & 1]) * IMGP + c * 8 for rp in range(8)]
            G[2] += tr[:4]
            G[3] += tr[4:]
            row, col = 8 * half + r, (g & 1) * 32 + c * 8
            G[4] += [V3OFF + row * 64 + col, A1 + row * 1352 + col, A1 + min(row + 16, 25) * 1352 + col, A1 + min(row + 20, 25) * 1352 + col]
            t, gd, rr = (i32 >> 2) & 1, i32 >> 3, i32 & 3
            ig = 16 * t + 4 * rr + gd
            iq = 4 * rr + gd if t == 0 else 16 + ((4 * rr + gd + 4) & 15)
            pm = []
            for q in range(8):
                k0 = 16 * (q >> 2) + 8 * half + 2 * (q & 3)
                pm.append((0xffff if iq == k0 else 0xffff0000 if iq == k0 + 1 else 0) if iq < 26 else 0)
            G[5] += pm[:4]
            G[6] += pm[4:]
            ga = A2 + 52 * ig if ig < 26 else OOB
            rowp = ((l & 12) + 2 * (l & 1)) * 16 + (OOB if l & 2 else 0)
            G[7] += [ga + half * 8 * W2P, ga + half * OOB, rowp + half * 256 + (g & 1) * 8, rowp + g * 256]
            G[8] += [SG + i32 * 64 if i32 < 26 else V2S if i32 == 26 else OOB, 64 if i32 == 26 else 3328, (i32 >> 1) + 2 * half,
                     SQ + i32 * 64 + ((((i32 >> 1) & 3) ^ (2 * half)) << 4)]
            v2 = []
            for hf in range(2):
                j = 4 * g + 16 * hf + r
                v2.append(V2S + (j & 1) * 1664 + (j >> 1) * 64 + ((c ^ (((13 + j) & 3) * 2)) * 8) if j < 26 else SG + 676 * 64 + c * 8)
            wo = [L_WCO + 2 * (16 * tl_ + 4 * c + r) if 16 * tl_ + 4 * c + r < 26 else OOB for tl_ in range(2)]
            G[9] += v2 + wo
            G[10] += [L_WCO + 104 + 16 * half, L_WCO + 52 + 2 * l, V3OFF + 52 + 64 * l, SG + 676 * 64 + (l & 15) * 4]
        U = []
        for w in range(8):
            for e in range(16):
                for u in (w, w + 8, w + 16):
                    U += [SG + row * 64 + f * 8 for row, f in cin16.p2rows(u, e >> 2, e & 3)] if u < 22 else [0, 0]
        return [x for n in (4, 2, 3, 0, 5, 6, 7, 8, 9, 1, 10) for x in G[n]] + [0] * 256 + U + [0] * 256

    def cin(self):
        o = self.opt
        cw = S_CW
        vFa, vLin0, vLin1, vXi0, vXi1, vC16, vIDX, vXa, vIw, vPWL, vPXL, PXR, PFR = 1, 4, 5, 6, 7, 8, 9, 10, 11, 12, 13, 3, 14
        XI, vTR = 16, 20
        XR, P, Z, WF, D = 32, 60, 116, 164, 184
        vStg, vFR, vFw = vFa, 2, 59
        t3, t4, t5 = 29, 30, 31
        AV = [28, 58]
        PM = 216
        vA3, vBs0, vBs1a, vBs1b, vGa, vGb, vT3, vT3d = range(224, 232)
        G8, vV2r, vV2q, vWo, AD = 232, 236, 237, 238, 240
        WA = list(range(244, 250))
        vS, vMx = 250, 111
        UA, UX = 224, [232, 233, 234, 235, 240, 241]
        AFR = 112
        BALL, DALL = 60, 120
        S_F1, S_F2, S_G, S_LO, S_HI, S_CM, S_U0, S_U1, S_U2 = 74, 75, 95, 96, 97, 90, 98, 99, 100
        S_CG, S_IV = 0, 1
        OOB = 0x100000
        TA_, TB_, TC_ = SG + 35840, SQ + 26 * W2P, FRS + 2048
        GREG = [224, 20, 24, 4, 216, 220, 228, 232, 236, 8, 240]
        DPPS = (('row_shr:1', '0xf'), ('row_shr:2', '0xf'), ('row_shr:4', '0xf'), ('row_shr:8', '0xf'),
                ('row_bcast:15', '0xa'), ('row_bcast:31', '0xc'))

        K_W7, K_IMG, K_W2, K_W1, K_W12, K_H8, K_T3 = 44, 45, 46, 47, 92 - 10, 92 - 9, 101
        L = ['L_cin:', f'v_lshlrev_b32 v{vStg}, 4, v0', f's_and_b32 s{cw}, s{S_WAVE}, 3', f's_lshr_b32 s{S_GRP}, s{S_WAVE}, 2', f's_lshl_b32 s{S_STG}, s{cw}, 10',
             f's_mul_i32 s{S_MB}, s{S_T0}, 11', f's_add_u32 s{S_MB}, s{S_MB}, s{S_T1}', f's_sub_u32 s{S_MB}, s{S_MB}, 22',
             f's_cmp_eq_u32 s{S_MB}, 86', 's_cbranch_scc1 L_end', f's_cmp_eq_u32 s{S_GRP}, 0', 's_cbranch_scc1 L_sc']
        c0 = self.seq(L)
        L = ['s_setprio 2', f'v_add_u32 v2, L_tables-L_pc+4096, v{vStg}', f'v_mov_b32 v3, s{S_MASK + 1}',
             f'v_add_co_u32 v2, vcc, s{S_MASK}, v2', 'v_addc_co_u32 v3, vcc, 0, v3, vcc',
             f'v_add_co_u32 v{XR}, vcc, s{S_STG}, v2', f'v_addc_co_u32 v{XR + 1}, vcc, 0, v3, vcc',
             f'global_load_dwordx4 {vr(GREG[0], 4)}, v[2:3], off offset:-4096',
             'v_add_co_u32 v2, vcc, 0x1800, v2', 'v_addc_co_u32 v3, vcc, 0, v3, vcc', f'global_load_dwordx4 {vr(GREG[10], 4)}, v[2:3], off',
             f's_cmp_lt_u32 s{cw}, 3', f's_mov_b32 s{S_T2}, {TB_ - 3072}', f's_cselect_b32 s{S_T2}, {TA_ + 4096}, s{S_T2}']
        tdma = lambda off: I(f'global_load_lds_dwordx4 {vr(XR, 2)}, off offset:{off}', tag='TAB')
        L += [f's_add_u32 m0, s{S_STG}, {TA_ + 4096}', tdma(-4096), f's_add_u32 m0, s{S_STG}, s{S_T2}', tdma(0),
              f'v_add_co_u32 v{XR}, vcc, 0x2000, v{XR}', f'v_addc_co_u32 v{XR + 1}, vcc, 0, v{XR + 1}, vcc',
              f's_add_u32 m0, s{S_STG}, {TC_}', tdma(0), f's_add_u32 m0, s{S_STG}, {TB_ + 1024 + 4096}', f's_cmp_ge_u32 s{cw}, 2', 's_cbranch_scc1 L_sc']
        g1s = self.seq(L)
        L = [tdma(-4096)]
        g1t = self.seq(L)
        L = ['L_sc:', f's_mul_i32 s{S_RC}, s{S_GRP}, 20', f's_add_u32 s{S_RC}, s{S_RC}, s{S_WAVE}',
             f's_mul_i32 s{S_SAMP}, s{S_MB}, 48', f's_add_u32 s{S_SAMP}, s{S_SAMP}, s{S_RC}', f's_mul_i32 s{S_SAMP}, s{S_SAMP}, 104',
             f'v_lshrrev_b32 v{t4}, 3, v0', f'v_lshlrev_b32 v{t4}, 4, v{t4}', f'v_and_b32 v{t3}, 0x70, v{vStg}',
             f's_mul_i32 s{S_XM0}, s{S_WAVE}, {XBSZ}', f's_add_u32 s{S_XM0}, s{S_XM0}, {XB}', f's_cmp_eq_u32 s{S_GRP}, 0', 's_cbranch_scc1 L_g0']
        csc = self.seq(L)
        SC2 = [f's_lshl_b32 s{S_RC}, s{S_RC}, 2', f's_add_u32 s{S_RC}, s{S_RC}, {RC}',
               f's_mul_i32 s{S_LOOP}, s{S_GRP}, 3', f's_sub_u32 s{S_LOOP}, 4, s{S_LOOP}', (f's_cmp_eq_u32 s{S_MB}, 85', f's_cselect_b32 s{S_LOOP}, s{S_LOOP}, 6'),
               f's_lshl_b32 s{K_W7}, s{S_WAVE}, 7', f's_mul_i32 s{K_IMG}, s{S_WAVE}, {IMGSZ}', f's_lshl_b32 s{K_W2}, s{S_WAVE}, 2', f's_lshl_b32 s{K_W1}, s{S_WAVE}, 1',
               f's_lshl_b32 s{K_W12}, s{S_WAVE}, 12',
               f's_and_b32 s{S_U0}, s{S_WAVE}, 1', f's_lshr_b32 s{S_U1}, s{S_WAVE}, 1',
               f's_mul_i32 s{S_T0}, s{S_U1}, 3072', f's_lshl_b32 s{K_H8}, s{S_U0}, 3', f's_add_u32 s{S_T0}, s{S_T0}, s{K_H8}', f'v_add_u32 v{vFw}, s{S_T0}, v{vStg}',
               f's_lshl_b32 s{S_T1}, s{S_U1}, 3', f's_lshr_b32 s{S_T1}, 0x05030200, s{S_T1}', f's_and_b32 s{S_T1}, s{S_T1}, 0xff',
               f's_lshl_b32 s{S_T1}, s{S_T1}, 9', f's_lshl_b32 s{S_T2}, s{S_U0}, 2', f's_add_u32 s{K_T3}, s{S_T1}, s{S_T2}',
               f's_mov_b32 s{S_U1}, 0x05040100', f's_mov_b32 s{S_U2}, 0x07060302',
               f'v_mov_b32 v{vFR}, {L_FLG}', 'v_mov_b32 v109, 0', 'v_mov_b32 v108, 0'] + [f'v_mov_b64 {vr(r, 2)}, 0' for r in range(XR, XR + 26, 2)]
        XJ = 104
        assert not (o.pfx or o.pfw)

        def pfw():
            return [f'buffer_load_dword v{PFR}, v{vPWL}, {srd(SRD_W)}, s{S_PW} offen',
                    f's_add_u32 s{S_PW}, s{S_PW}, {o.pfne * 688 * 128}']

        def pfx_a():
            return [f'buffer_load_dword v{PXR}, v{vPXL}, {srd(SRD_IDX)}, s{S_PX} offen',
                    f's_cmp_eq_u32 s{S_PX}, s{S_PXE}', f's_cselect_b32 s{S_PXE}, 0x7000000, s{S_PXE}',
                    f's_cselect_b32 s{S_PX}, 0x7000000, s{S_PX}',
                    f's_add_u32 s{S_PX}, s{S_PX}, 24', f's_min_u32 s{S_PX}, s{S_PX}, s{S_PXE}']

        def pfx_b():
            return [f'v_lshlrev_b32 v{PXR}, 7, v{PXR}', f'buffer_load_dword v{PFR + 1}, v{PXR}, {srd(SRD_TAB)}, 0 offen']

        def xidx(XI=XI, vXi0=vXi0):
            return [f'buffer_load_dwordx4 {vr(XI, 4)}, v{vXi0}, {srd(SRD_IDX)}, s{S_SAMP} offen', f's_add_u32 s{S_SAMP}, s{S_SAMP}, {4 * 104}']

        def xdma(XI=XI, off=0, tag='XB', vC16=vC16):
            c = [f'v_lshl_add_u32 v{XI + u}, v{XI + u}, 7, v{vC16}' for u in range(4)]
            for u in range(4):
                c += [f's_add_u32 m0, s{S_XM0}, {u * XPP + off}']
                if u % 2 == 0:
                    c.append(f's_mov_b32 exec_hi, {0xffffff if u == 0 else 0xffff:#x}')
                c.append(I(f'buffer_load_dwordx4 v{XI + u}, {srd(SRD_TAB)}, 0 offen lds', tag=tag))
            return c + ['s_mov_b32 exec_hi, -1']

        def stage(dst, goff, tag):
            st = []
            for m in range(9):
                st.append((f's_add_u32 m0, s{S_STG}, {dst + m * 4096}', f's_add_u32 s{S_TW}, s{S_STG}, {goff + m * 4096}',
                           I(f'buffer_load_dwordx4 v{vStg}, {srd(SRD_CIN)}, s{S_TW} offen lds', tag=tag)))
            return st

        def pubmax(regs_offs):
            c = []
            for (ctl, rm) in DPPS:
                for r, _ in regs_offs:
                    c.append(f'v_max_u32_dpp v{r}, v{r}, v{r} {ctl} row_mask:{rm} bank_mask:0xf')
            c += ['s_mov_b32 exec_lo, 0', 's_mov_b32 exec_hi, 0x80000000']
            c += [f'ds_max_u32 v{vFR}, v{r} offset:{16 + 4 * k}' for r, k in regs_offs]
            return c + ['s_mov_b64 exec, -1']

        def mxop(src, n, mx, first):
            return [f'v_mfma_f32_16x16x32_bf16 {vr(mx, 4)}, {vr(src + r, 4)}, {vr(src + r, 4)}, {"0" if first and r == 0 else vr(mx, 4)}' for r in range(0, n, 4)]

        def mxfin(mx):
            return [f'v_max3_f32 v{mx}, v{mx}, v{mx + 1}, 0', f'v_max3_f32 v{mx}, v{mx}, v{mx + 2}, v{mx + 3}']

        def bread(m, off):
            b = BALL + m * 8
            return [f'ds_read_b64_tr_b16 {vr(b, 2)}, v{vBs0} offset:{off}',
                    f'ds_read_b64_tr_b16 {vr(b + 2, 2)}, v{vBs0} offset:{off + 4 * 1352}',
                    f'ds_read_b64_tr_b16 {vr(b + 4, 2)}, v{vBs1a} offset:{off}',
                    f'ds_read_b64_tr_b16 {vr(b + 6, 2)}, v{vBs1b} offset:{off}']

        def mm2(d, a, b):
            return [f'v_mfma_f32_32x32x16_bf16 {vr(d, 16)}, {vr(a, 4)}, {vr(b, 4)}, 0',
                    f'v_mfma_f32_32x32x16_bf16 {vr(d, 16)}, {vr(a + 4, 4)}, {vr(b + 4, 4)}, {vr(d, 16)}']

        tA, tB = 250, 251
        trd = lambda n: f'ds_read_b128 {vr(GREG[n], 4)}, v{tA if n < 7 else tB} offset:{(n if n < 7 else n - 7) * 1024}'
        vbs = [f'v_add_u32 v{r}, s{K_W7}, v{r}' for r in (vBs0, vBs1a, vBs1b)]

        def FX(g):
            R = [trd(n) for n in ((0,) if g == 0 else ()) + (6, 7, 3, 9, 1, 2, 4, 5, 8)]
            F = vbs + [f'v_add_u32 v{r}, s{K_W2}, v{r}' for r in (vGa, vGb)]
            F += [f'v_add_u32 v{vT3d}, s{K_H8}, v{vT3d}', f'v_add_u32 v{vT3}, s{K_T3}, v{vT3}']
            F += [f'v_mad_u32_u24 v{G8}, v{G8 + 1}, s{S_WAVE}, v{G8}', f'v_add_u32 v{G8 + 2}, s{K_W1}, v{G8 + 2}',
                  f'v_mad_u32_u24 v{G8 + 1}, v{G8 + 1}, 8, v{G8}', f'v_add_u32 v{WA[2]}, s{K_W12}, v{G8 + 3}', f'v_add_u32 v{WA[3]}, 2048, v{WA[2]}']
            for n_, (wa, bs) in enumerate(((WA[0], G8), (WA[1], G8), (WA[4], G8 + 1), (WA[5], G8 + 1))):
                F += [f'v_add_u32 v{t5}, {n_ & 1}, v{G8 + 2}', f'v_and_b32 v{t5}, 3, v{t5}', f'v_lshl_add_u32 v{wa}, v{t5}, 4, v{bs}']
                if n_ & 1:
                    F.append(f'v_add_u32 v{wa}, 1664, v{wa}')
            F += [f'v_add_u32 v{r}, s{S_XM0}, v{r}' for r in (vXa, vLin0, vLin1)] + [f'ds_write_b32 v{vXa}, v{vXi1} offset:{XOFF(26)}']
            F += [f'v_add_u32 v{r}, s{K_IMG}, v{r}' for r in [vIw] + list(range(vTR, vTR + 8))]
            return R, F
        SC2 += [f'v_add_u32 v{tA}, {TA_}, v{vStg}', f'v_add_u32 v{tB}, {TB_}, v{vStg}', f'v_lshrrev_b32 v3, 5, v0', f'v_lshl_add_u32 v3, v3, 2, v{vFR}']

        def pub2(r1, r2, off):
            c = [f'v_permlane32_swap_b32 v{r1}, v{r2}', f'v_max_u32 v{r1}, v{r1}, v{r2}']
            c += [f'v_max_u32_dpp v{r1}, v{r1}, v{r1} {ctl} row_mask:{rm} bank_mask:0xf' for ctl, rm in DPPS[:5]]
            return c + ['s_mov_b32 exec_lo, 0x80000000', 's_mov_b32 exec_hi, 0x80000000', f'ds_max_u32 v3, v{r1} offset:{16 + off}', 's_mov_b64 exec, -1']
        AV = [28, 58, 111]
        L = ['s_waitcnt lgkmcnt(0)'] + self.build_srd(SRD_WCO, S_WCO, 156) + [f's_mov_b32 m0, {L_WCO}', 's_mov_b64 exec, 0x7ff',
             I(f'buffer_load_dwordx4 v{vStg}, {srd(SRD_WCO)}, 0 offen lds', tag='WCO'), 's_mov_b64 exec, -1'] + self.stamp0() + SC2
        L += self.build_srd(SRD_IDX, S_IDX, 4096 * 104) + self.build_srd(SRD_TAB, S_TAB, 100000 * 128)
        XK = 252 - 4 if False else 12
        if o.xg1:
            L += [f's_sub_u32 s{S_T0}, s{S_SAMP}, {24 * 104}', f'buffer_load_dwordx4 {vr(XI, 4)}, v{t4}, {srd(SRD_IDX)}, s{S_T0} offen',
                  f'buffer_load_dwordx4 {vr(XK, 4)}, v{t4}, {srd(SRD_IDX)}, s{S_T0} offen offset:{4 * 104}']
        L += [f'ds_write_b128 v{vFR}, {vr(XR, 4)} offset:16', f's_lshl_b32 s{S_T0}, s{cw}, 6', f'v_add_u32 v{t3}, s{S_T0}, v0']
        for p_ in range(3):
            L += [f'v_mul_u32_u24 v{t4}, 2521, v{t3}', f'v_lshrrev_b32 v{t4}, 16, v{t4}', f'v_mul_u32_u24 v{t4}, 12, v{t4}', f'v_lshl_add_u32 v{AV[p_]}, v{t3}, 1, v{t4}']
            L += [f'v_add_u32 v{t3}, 256, v{t3}'] if p_ < 2 else [f'v_cmp_gt_u32 vcc, 676, v{t3}', f's_mov_b64 s[{S_MASK}:{S_MASK + 1}], vcc']
        L += [f'v_lshlrev_b32 v{t3}, 3, v0', 's_mov_b32 exec_hi, 0xffff', f'ds_write_b64 v{t3}, {vr(XR, 2)} offset:{V3OFF + 26 * 64}', 's_mov_b32 exec_hi, -1',
              f'ds_write_b32 v{AD + 3}, v{XR}', f'ds_write_b32 v{AD + 3}, v{XR} offset:{SSZ}', WaitTag(vm_tags=['WCO'])]
        assert V3OFF == 0
        for s2 in range(2):
            for rd in range(2):
                L.append(f'ds_read_b64 {vr(AFR + 4 * s2 + 2 * rd, 2)}, v{AD} offset:{s2 * 32 + rd * 8}')
        L += [f'ds_read_u16 v110, v{AD + 1}',
              's_mov_b64 exec, 0x3ffffff', f'ds_write_b16 v{AD + 2}, v110', 'v_lshlrev_b32 v109, 17, v110', 'v_lshrrev_b32 v109, 1, v109', 's_mov_b64 exec, -1']
        if o.cwalk:
            L += ['s_mov_b64 exec, 0'] + [x for q_ in range(3) for x in (f's_cmp_eq_u32 s{cw}, {q_}', f's_cbranch_scc1 L_WENTRY{q_}')] + ['s_branch L_WENTRY3', 'L_wret:', 's_mov_b64 exec, -1']
        L += (FX(1)[1] if o.dirt else vbs) + [WaitTag(vm_tags=['TAB'], lgkm0=True)] + self.probe('tab')
        v3p = []
        L += ['s_barrier'] + self.stamp(2) + self.probe('b0')
        vb = lambda m: A3 - A1 - 512 + (m >> 1) * 512 + (m & 1) * 64
        for m in range(3):
            L += bread(m, vb(m))
        for m in range(6):
            if m + 3 < 6:
                L += bread(m + 3, vb(m + 3))
            L += mm2(DALL + m * 16, AFR, BALL + m * 8)
            if m == 3 and not o.dirt:
                L += FX(1)[0]
        if not o.dirt:
            L += FX(1)[1][3:]
        for p_ in range(3):
            L += ['s_mov_b32 exec_lo, 0', f'v_mov_b32 v{DALL + 32 * p_}, v{DALL + 32 * p_ + 16}', 's_mov_b32 exec_lo, -1',
                  f'v_cvt_pk_bf16_f32 v{BALL + p_}, 0, v{DALL + 32 * p_}']
            if p_ == 2:
                L += [f's_mov_b64 exec, s[{S_MASK}:{S_MASK + 1}]']
            L += [f'ds_write_b16_d16_hi v{AV[p_]}, v{BALL + p_}', f'v_max_f32 v108, |v{BALL + p_}|, v108']
        L += ['s_mov_b64 exec, -1'] + pub2(108, 109, 8) + self.stamp(13) + [f's_setprio {o.g1p}', 's_waitcnt lgkmcnt(0)', 's_barrier', 's_branch L_w2']
        v3 = self.seq(L)

        def stage3(dst, goff, tag, lab, mid=None, fill=()):
            st = stage(dst, goff, tag)
            a_ = st[:8] if mid is None else st[:mid[0]] + [tuple(mid[1])] + st[mid[0]:8]
            return (self.seq(interleave(a_, list(fill)) + [f's_cmp_eq_u32 s{cw}, 3', f's_cbranch_scc1 {lab}']), self.seq([st[8]]), self.seq([f'{lab}:']))
        g0 = [self.seq(['L_g0:', 's_waitcnt lgkmcnt(0)'] + self.build_srd(SRD_CIN, S_CIN, 105456))]
        g0.append(stage3(A3, 70304, 'W3', 'L_st3'))
        g0.append(self.seq(self.stamp0() + self.build_srd(SRD_IDX, S_IDX, 4096 * 104) + ([f's_add_u32 s{S_SAMP}, s{S_SAMP}, {8 * 104}'] if o.xg1 else xidx(XI, t4) + xidx(XJ, t4)) + self.build_srd(SRD_TAB, S_TAB, 100000 * 128)))
        def w2grp(n):
            c = []
            for k, go in enumerate((0, 1024, 1864)):
                c.append((f's_add_u32 m0, s{S_STG9}, {A2 + n * 4 * 3072 + k * 1024}', f's_add_u32 s{S_TW}, s{S_TGT}, {35152 + n * 4 * 2704 + go}',
                          I(f'buffer_load_dwordx4 v{t5 if k == 1 else vStg}, {srd(SRD_CIN)}, s{S_TW} offen lds', tag='W2')))
            return c
        g0.append((self.seq([f's_mul_i32 s{S_STG9}, s{cw}, 3072', f's_mul_i32 s{S_TGT}, s{cw}, 2704', f'v_lshrrev_b32 v{t5}, 5, v0', f'v_mul_u32_u24 v{t5}, 184, v{t5}',
                             f'v_sub_u32 v{t5}, v{vStg}, v{t5}'] + interleave(w2grp(0) + w2grp(1) + w2grp(2), SC2) + [f's_cmp_lg_u32 s{cw}, 0', 's_cbranch_scc1 L_st2']),
                   self.seq(w2grp(3)), self.seq(['L_st2:']), 1))
        xx = xdma(vC16=t3, tag='XBa') + xdma(XJ, 4 * XBSZ, vC16=t3)
        g0.append(stage3(A1, 0, 'W1', 'L_st1', (o.sigat, [WaitTag(vm_tags=['W2' if o.mrg else 'W3']), 's_barrier'] + self.stamp(2) + FX(0)[0])))
        g0.append(self.seq(([] if o.xg1 else xx) + FX(0)[1] + self.stamp(13) + [WaitTag(vm_tags=['W1']), 's_barrier']))

        def G0(w):
            r = []
            for x in g0:
                r += x if isinstance(x, list) else x[0] + (x[1] if w < (3 if len(x) == 3 else x[3]) else []) + x[2]
            return r

        def gather(dst, off):
            c = [f'v_add_u32 v{r}, {off}, v{r}' for r in (vGa, vGb)] if off else []
            for s2 in range(2):
                for e in range(0, 8, 2):
                    base = vGb if (s2 == 1 and e >= 2) else vGa
                    h = 16 * s2 + e
                    c.append(f'ds_read2st64_b32 {vr(dst + 8 * s2 + e, 2)}, v{base} offset0:{6 * h} offset1:{6 * h + 6}')
            return c

        def perms(g_, aj):
            return [f'v_perm_b32 v{aj + 8 * jj + r}, v{g_ + 2 * r + 1}, v{g_ + 2 * r}, s{S_U1 + jj}' for jj in range(2) for r in range(8)]

        def sout(t):
            d, c_ = DALL + 16 * t, DALL + 16 * t
            c = [f'v_cvt_pk_f16_f32 v{c_ + r}, v{d + 2 * r}, v{d + 2 * r + 1}' for r in range(8)]
            return c[:4] + [f'ds_write_b128 v{WA[t]}, {vr(c_, 4)}', f'v_xor_b32 v{WA[t]}, 16, v{WA[t]}'] + c[4:] + [f'ds_write_b128 v{WA[t]}, {vr(c_ + 4, 4)}']
        M1, M2 = 28, 28

        def pub1(r, off):
            c = [f'v_max_u32_dpp v{r}, v{r}, v{r} {ctl} row_mask:{rm} bank_mask:0xf' for ctl, rm in DPPS]
            return c + [('s_mov_b32 exec_lo, 0', 's_mov_b32 exec_hi, 0x80000000', f'ds_max_u32 v{vFR}, v{r} offset:{16 + off}', 's_mov_b64 exec, -1')]
        L = ['L_w2:'] + self.stamp(14) + self.probe('bw2') + gather(BALL, 0)
        cx = []
        if o.xg1:
            cc0 = self.seq(L + [f's_cmp_eq_u32 s{S_GRP}, 0', 's_cbranch_scc1 L_nx1'])
            cx = self.seq(xdma(XI, -4 * XBSZ) + xdma(XK))
            L = ['L_nx1:']
        else:
            cc0 = []
        L += [f's_cmp_ge_u32 s{S_WAVE}, 5', 's_cbranch_scc1 L_u0']
        cc = self.seq(L)
        M1, M2 = 28, 108
        fin2 = lambda: interleave(mxfin(M1), mxfin(M2)) + [tuple(x) if isinstance(x, list) else x for x in pub2(M1, M2, 0)[:7] + [pub2(M1, M2, 0)[7:]]]
        afr = [f'ds_read_b64_tr_b16 {vr(AFR + 4 * s2 + 2 * rd, 2)}, v{vA3} offset:{s2 * 1024 + rd * 256}' for s2 in range(2) for rd in range(2)]
        b1u = self.seq(gather(BALL + 32, 32) + bread(2, 0) + bread(3, 64) + afr + mxop(BALL, 16, M2, True) + perms(BALL, DALL + 64)[:8] + mxop(BALL + 32, 16, M2, False)
                       + mxop(BALL + 16, 16, M1, True) + perms(BALL, DALL + 64)[8:] + interleave(fin2(), perms(BALL + 32, BALL)) + ['s_branch L_u1'])
        L = ['L_u0:'] + bread(2, 0) + bread(3, 64) + bread(4, 384) + bread(5, 384 + 64) + afr + mxop(BALL, 16, M2, True) + mxop(BALL + 16, 32, M1, True)
        L += perms(BALL, DALL + 64)[:4] + interleave(fin2(), perms(BALL, DALL + 64)[4:])
        L += [f'v_add_u32 v{WA[4]}, {192 * 64}, v{WA[2]}', f'v_add_u32 v{WA[5]}, {192 * 64}, v{WA[3]}',
              f's_cmp_lg_u32 s{S_WAVE}, 7', 's_cbranch_scc1 L_u1', 's_mov_b32 exec_lo, 0xfffffff0', 's_mov_b32 exec_hi, 0xfffffff0', f'v_mov_b32 v{WA[5]}, {OOB}', 's_mov_b64 exec, -1']
        b1q = self.seq(L)
        MXR = 108
        vM = 58

        def ureads(j):
            return [f'ds_read_u16_d16_hi v{XR + 2 * j}, v{vXa} offset:{XOFF(2 * j)}',
                    f'ds_read_u16_d16_hi v{XR + 2 * j + 1}, v{vXa} offset:{XOFF(2 * j) + 2}']
        mx3 = lambda j: f'v_max3_f32 v{vM}, |v{XR + 2 * j}|, |v{XR + 2 * j + 1}|, {"0" if j == 0 else f"v{vM}"}'
        L = ['L_u1:'] + self.stamp(1) + [WaitTag(lgkm0=True), 's_barrier'] + self.stamp(7) + self.probe('b1')
        L += [f'ds_read_b128 {vr(MXR, 4)}, v{vFR} offset:16']
        L += [f's_mul_i32 s{S_T0}, s{S_WAVE}, 384', f'v_lshrrev_b32 v{t3}, 2, v0', f'v_mul_u32_u24 v{t3}, 24, v{t3}', f'v_add_u32 v{t3}, s{S_T0}, v{t3}',
              f'v_and_b32 v{t4}, 3, v0', f'v_lshlrev_b32 v{t4}, 3, v{t4}']
        L += [f'ds_read_b64 {vr(UA + 2 * n_, 2)}, v{t3} offset:{TC_ + 8 * n_}' for n_ in range(3)]
        q1 = [f'v_add_u32 v{MXR}, {127 << 23:#x}, v{MXR}', f'v_lshrrev_b32 v{MXR}, 24, v{MXR}', f'v_sub_u32 v{MXR}, 267, v{MXR}', f'v_min_u32 v{MXR}, 167, v{MXR}',
              f'v_readfirstlane_b32 s{S_F1}, v{MXR}', f'v_mul_u32_u24 v{MXR}, 0x800080, v{MXR}']
        sc = [f'v_add_u32 v{MXR + 1}, {127 << 23:#x}, v{MXR + 1}', f'v_lshrrev_b32 v{MXR + 1}, 24, v{MXR + 1}',
              's_mov_b32 vcc_lo, 0x4000000', 's_mov_b32 vcc_hi, 0x4000000', f'v_cndmask_b32 v{vS}, v{MXR + 2}, v{MXR + 3}, vcc', f'v_lshrrev_b32 v{vS}, 23, v{vS}',
              f'v_add_u32 v{vS}, v{vS}, v{MXR + 1}', f'v_sub_u32 v{vS}, 388, v{vS}', f's_movk_i32 s{S_U0}, 167', f'v_med3_i32 v{vS}, v{vS}, 1, s{S_U0}',
              f'v_subrev_u32 v{MXR + 2}, 127, v{vS}', f'v_lshlrev_b32 v{vS}, 23, v{vS}', f'v_cmp_gt_i32 vcc, 0, v{MXR + 2}',
              f'v_mul_u32_u24 v{MXR + 2}, 0x800080, v{MXR + 2}']
        mq = mm2(DALL + 32, PM, BALL + 16) + mm2(DALL + 48, PM, BALL + 24)
        L += interleave(q1, sc[:6]) + [f'v_and_b32 v{PM + r}, v{PM + r}, v{MXR}' for r in range(8)] + interleave([mq[0], mq[2], mq[1], mq[3]], sc[6:]) + ['s_cbranch_vccnz L_sdown']
        L += [f'v_add_u32 v{AFR + r}, v{AFR + r}, v{MXR + 2}' for r in range(8)]
        u1a = self.seq(L)
        L = ['L_scaled:'] + interleave(mm2(DALL, DALL + 64, AFR) + mm2(DALL + 16, DALL + 72, AFR), sout(2) + sout(3))
        L += [f's_cmp_ge_u32 s{S_WAVE}, 5', 's_cbranch_scc1 L_u2']
        u1 = self.seq(L)
        u2u = self.seq(interleave(mm2(DALL + 64, BALL, AFR) + mm2(DALL + 80, BALL + 8, AFR), sout(0)) + ['s_branch L_u3'])
        u2q = self.seq(['L_u2:'] + interleave(mm2(DALL + 64, PM, BALL + 32) + mm2(DALL + 80, PM, BALL + 40), sout(0)))
        L = ['L_u3:'] + xidx() + xidx(12)
        L += interleave(sout(1) + sout(4) + sout(5), [x for n_ in range(6) for x in (f'v_xor_b32 v{UA + n_}, v{UA + n_}, v{t4}', f'v_xor_b32 v{UX[n_]}, 32, v{UA + n_}')])
        L += [f'v_readlane_b32 s{S_CG}, v{vS}, 0', f'v_readlane_b32 s{S_IV}, v{vS}, 26',
              f's_sub_u32 s{S_F2}, {254 << 23:#x}, s{S_CG}', f's_sub_u32 s{S_IV}, {254 << 23:#x}, s{S_IV}',
              f's_sub_u32 s{S_F1}, 254, s{S_F1}', f's_lshl_b32 s{S_F1}, s{S_F1}, 23',
              f's_mov_b32 s{S_MASK}, 0x88888888', f's_mov_b32 s{S_MASK + 1}, 0x88888888']

        def sigma(s_):
            t = (s_ - 1) // 2
            first = (s_ - 1) % 2 == 0
            return (0 if first else 1) if t % 2 == 0 else (1 if first else 0)
        for s_ in range(1, 11):
            assert ((s_ - 1) // 2) * 1024 + sigma(s_) * 512 - (s_ // 4) * 2048 == (-1024, 0, 512, 1536)[s_ % 4]

        def p2read(n_):
            b = BALL + 16 * n_
            c = []
            UAl = list(range(UA, UA + 6))
            for x, (ar, off) in enumerate(((UAl, 0), (UX, 0), (UAl, SSZ), (UX, SSZ))):
                for y in range(2):
                    c.append(f'ds_read_b64_tr_b16 {vr(b + 4 * x + 2 * y, 2)}, v{ar[2 * n_ + y]} offset:{off}')
            return c

        def p2a(n_):
            b = BALL + 16 * n_
            c = []
            for x in range(4):
                c += [f'v_pk_add_f16 v{b + 4 * x + y}, v{b + 4 * x + y}, v{b + 4 * x + 2 + y}' for y in range(2)]
                if x in (0, 2):
                    c.append(f'ds_write_b64 v{vFw}, {vr(b + 4 * x, 2)} offset:{FR + n_ * 4 * 3072 + x * 1024}')
            c += [f'v_cndmask_b32 v{b + 4 + y}, v{b + 4 + y}, v{b + 12 + y}, s[{S_MASK}:{S_MASK + 1}]' for y in range(2)]
            c.append(f'ds_write_b64 v{vFw}, {vr(b + 4, 2)} offset:{FR + n_ * 4 * 3072 + 1024}')
            return c

        def p2s(n_):
            b = BALL + 16 * n_ + 12
            off = FRS + max(n_ * 2048 - 1024, 0)
            return ([f'v_subrev_u32 v{vT3}, 1024, v{vT3}'] if n_ == 0 else []) + [
                f'ds_write_b32 v{vT3}, v{b} offset:{off}', f'ds_write_b32 v{vT3}, v{b + 1} offset:{off + 16}']
        ec = []
        if o.econv:
            L += [f's_cmp_lg_u32 s{S_GRP}, 0', 's_cbranch_scc1 L_noec']
            u3 = self.seq(L)
            ec = self.seq([WaitTag(vm_tags=['XBa'])] + [x for j in range(13) for x in ureads(j)])
            L = ['L_noec:']
        else:
            u3 = []
        L += [WaitTag(vm_tags=['XB'] if o.xg1 else [], lgkm0=True), 's_barrier'] + self.stamp(10)
        L += p2read(0) + p2read(1) + [f's_cmp_ge_u32 s{S_WAVE}, 6', 's_cbranch_scc1 L_lin']
        b2 = self.seq(L)
        p2c = self.seq(p2read(2) + p2a(2) + p2s(2) + ['s_branch L_p2'])
        LB = BALL + 32
        ZR4 = t5
        L = ['L_lin:', f's_and_b32 s{S_U0}, s{S_WAVE}, 1', f's_cselect_b64 vcc, -1, 0', f's_lshl_b32 s{S_U1}, s{S_U0}, 5', f'v_mov_b32 v{ZR4}, 0',
             f'v_xor_b32 v{vV2r}, s{S_U1}, v{vV2r}', f'v_xor_b32 v{vV2q}, s{S_U1}, v{vV2q}', f'v_cndmask_b32 v{vWo}, v{vWo}, v{vWo + 1}, vcc',
             f'ds_read_b64_tr_b16 {vr(LB, 2)}, v{vV2r}', f'ds_read_b64_tr_b16 {vr(LB + 2, 2)}, v{vV2q}',
             f'ds_read_u16_d16_hi v{ZR4}, v{vWo}',
             f's_lshl_b32 s{S_U0}, s{S_U0}, 10', f'v_add_u32 v{t3}, s{S_U0}, v{vStg}']
        for r in range(4):
            a_, b_ = LB + 4 + 2 * r, LB + 5 + 2 * r
            L += [f'v_cvt_f32_f16 v{a_}, v{LB + r}', f'v_cvt_f32_f16_sdwa v{b_}, v{LB + r} dst_sel:DWORD dst_unused:UNUSED_PAD src0_sel:WORD_1',
                  f'v_mul_f32 v{a_}, s{S_IV}, v{a_}', f'v_mul_f32 v{b_}, s{S_IV}, v{b_}']
            if r == 3:
                L += ['s_mov_b32 exec_lo, 0', 's_mov_b32 exec_hi, 0xffff', f'v_mov_b32 v{a_}, v{ZR4}', 's_mov_b64 exec, -1']
            L += [f'v_mul_f32 v{a_}, s{S_CG}, v{a_}', f'v_mul_f32 v{b_}, s{S_CG}, v{b_}', f'v_cvt_pk_bf16_f32 v{LB + r}, v{a_}, v{b_}']
        L += [f'ds_write_b128 v{t3}, {vr(LB, 4)} offset:{FRL}']
        lin = self.seq(L)
        p2 = self.seq(['L_p2:'] + p2a(1) + p2s(1) + p2a(0) + [f's_cmp_lt_u32 s{S_WAVE}, 2', 's_cbranch_scc1 L_p2d'])
        p2e = self.seq(p2s(0) + ['s_branch L_built'])
        p2d = self.seq(['L_p2d:', f'ds_write_b64 v{vT3d}, {vr(BALL + 12, 2)} offset:{FRS + 5 * 1024}'])

        L = ['L_sdown:']
        for r in range(8):
            L += [f'v_lshlrev_b32 v{MXR}, 16, v{AFR + r}', f'v_and_b32 v{MXR + 1}, 0xffff0000, v{AFR + r}',
                  f'v_mul_f32 v{MXR}, v{MXR}, v{vS}', f'v_mul_f32 v{MXR + 1}, v{MXR + 1}, v{vS}', f'v_cvt_pk_bf16_f32 v{AFR + r}, v{MXR}, v{MXR + 1}']
        self.sdown = L + ['s_branch L_scaled']

        def PRE(w, sd=None):
            grp = w >> 2
            return (c0 + (g1s + (g1t if w < 6 else []) if grp else []) + csc + (v3p + v3 if grp else G0(w)) + cc0 + (cx if grp else []) + cc + (b1q if w >= 5 else b1u)
                    + (u1a if sd is None else u1a[:-8] + sd) + u1 + (u2q if w >= 5 else u2u) + u3 + ([] if grp else ec) + b2
                    + (lin if w >= 6 else p2c) + p2 + (p2d if w < 2 else p2e))
        L = ['L_built:'] + self.stamp(11)
        L += [f's_mov_b32 s{S_CG}, s{S_F1}', f's_mov_b32 s{S_IV}, s{S_F2}', f's_mov_b32 s{S_LO}, {f32hex(0.125)}', f's_mov_b32 s{S_HI}, {f32hex(0.0 if o.slow else 128.0)}']
        CV, vM, S_XD = 28, 58, 81

        def ureads(j):
            return [f'ds_read_u16_d16_hi v{XR + 2 * j}, v{vXa} offset:{XOFF(2 * j)}',
                    f'ds_read_u16_d16_hi v{XR + 2 * j + 1}, v{vXa} offset:{XOFF(2 * j) + 2}']
        mx3 = lambda j: f'v_max3_f32 v{vM}, |v{XR + 2 * j}|, |v{XR + 2 * j + 1}|, {"0" if j == 0 else f"v{vM}"}'
        cvt = lambda j: f'v_cvt_pk_f16_f32 v{CV + j % 4}, v{XR + 2 * j}, v{XR + 2 * j + 1}'
        iwr = lambda j: f'ds_write_b32 v{vIw}, v{CV + j % 4} offset:{j * IMGP}'
        S_SKIP = 51
        pfr = lambda: (pfx_b() + pfx_a() if o.pfx else []) + (pfw() if o.pfw else [])
        conv = lambda tag='XB': ([WaitTag(vm_tags=[tag])] + [x for j in range(13) for x in ureads(j)]
                        + [x for j in range(13) for x in (mx3(j), f'v_cvt_pk_f16_f32 v{D + j}, v{XR + 2 * j}, v{XR + 2 * j + 1}')])
        L += [f's_mov_b32 s{S_SKIP}, 1', f's_mul_i32 s{S_U0}, s{S_WAVE}, 1536', f's_add_u32 s{S_U0}, s{S_U0}, {PART}',
              f's_cmp_lg_u32 s{S_GRP}, 0', 's_cbranch_scc1 L_g1c']
        c2a = self.seq(L)
        c2g0 = self.seq([f's_sub_u32 s{S_SAMP}, s{S_SAMP}, {4 * 104}'] + (conv('XBa')[27:] if o.econv else conv('XBa')) + [WaitTag(lgkm0=True), 's_barrier'] + self.stamp(8) + ['s_branch L_cin_go'])
        DX = XB2 - XB - 4 * XBSZ
        L = ['L_g1c:', WaitTag(vm_tags=['XB'], lgkm0=True), 's_barrier'] + self.stamp(8) + self.probe('b4')
        L += [f's_add_u32 s{S_XM0}, s{S_XM0}, {DX}'] + xdma(tag='XB0') + xdma(12, 4 * XBSZ) + xidx() + pfr() + [f'v_add_u32 v{r}, {DX}, v{r}' for r in (vXa, vLin0, vLin1)]
        L += [f'ds_write_b32 v{vXa}, v{vXi1} offset:{XOFF(26)}', f'ds_write_b32 v{vXa}, v{vXi1} offset:{XOFF(26) + 4 * XBSZ}']
        c2g1 = self.seq(L)
        c2b = []
        c2g1d = self.seq(['L_g1d:'] + conv('XB0'))
        c2c = self.seq(['L_cin_go:'] + [f'ds_write_b32 v{vIw}, v{D + j} offset:{j * IMGP}' for j in range(13)]
                       + [f's_mov_b32 s{S_XD}, {4 * XBSZ}', f's_add_u32 s{S_XM0}, s{S_XM0}, {4 * XBSZ}',
                          f'v_lshlrev_b32 v{vXi1}, 2, v0', f'v_add_u32 v{vXi1}, s{S_U0}, v{vXi1}'])

        NWF = 5
        PF = o.cpfd
        zslot = lambda s_: 1 if s_ % 2 == 0 else (0 if ((s_ - 1) // 2) % 2 == 0 else 2)
        zr = lambda T, sl: Z + 12 * T + 4 * sl
        preg = lambda T, r: P + 14 * T + (r if r < 14 else r - 14)
        acc = lambda T, tile: D + 16 * T + 4 * tile
        jobs = [('l', 0, 0), ('l', 0, 1)]
        for s_ in range(11):
            jobs += [('d', s_, 2), ('d', s_, 0), ('d', s_, 1)]
            if s_ == 0:
                jobs.append(('d', 0, 3))
            elif s_ % 2 == 0:
                jobs.append(('s', s_, 3))
        NJ = len(jobs)
        assert NJ == 41

        def wread(n):
            kind, s_, tile = jobs[n]
            off = FRL + tile * 1024 if kind == 'l' else (FR + s_ * 3072 + tile * 1024 if tile < 3 else FRS + (5 if s_ == 0 else (s_ - 1) // 2) * 1024)
            return f'ds_read_b128 {vr(WF + 4 * (n % NWF), 4)}, v{vFa} offset:{off}'

        def mfma(n, T):
            kind, s_, tile = jobs[n]
            a = vr(WF + 4 * (n % NWF), 4)
            d = vr(acc(T, tile), 4)
            if kind == 'l':
                return f'v_mfma_f32_16x16x32_bf16 {d}, {a}, {vr(zr(T, 2), 4)}, 0'
            if kind == 's':
                lo = 0 if ((s_ - 1) // 2) % 2 == 0 else 1
                return f'v_smfmac_f32_16x16x64_f16 {d}, {a}, {vr(zr(T, lo), 8)}, v{vIDX}'
            return f'v_mfma_f32_16x16x32_f16 {d}, {a}, {vr(zr(T, zslot(s_)), 4)}, {"0" if (s_ == 0 and tile >= 2) else d}'

        def pk(T, n):
            a, b, s0, s1 = cin16.INS[n]
            return (f'v_pk_mul_f16 v{zr(T, zslot(n // 4)) + n % 4}, v{preg(T, a)}, v{preg(T, b)} '
                    f'op_sel:[{s0[0]},{s0[1]}] op_sel_hi:[{s1[0]},{s1[1]}]')

        def trp(T, rp):
            return f'ds_read_b64_tr_b16 {vr(preg(T, 2 * rp), 2)}, v{vTR + rp} offset:{32 * T}'

        LASTA = max(n for n, x in enumerate(cin16.INS) if x[0] < 2)
        S_A1, S_A2, S_PINC = 49, 50, 48
        fin = []
        for T in range(4):
            fin += [(acc(T, 0) + r, acc(T, 2) + r) for r in range(4)] + [(acc(T, 1), acc(T, 1) + 3)]
        for T in range(4):
            fin += [(acc(T, 1) + 1 + (r >> 1), acc(T, 3) + r) for r in range(4)]

        def final(f1, f2):
            c = []
            for k, (a, b) in enumerate(fin):
                d = Z + k % 4
                c.append(f'v_mul_f32 v{d}, v{a}, v{b}' if k < 4 else f'v_fmac_f32 v{d}, v{a}, v{b}')
            c += [f'v_add_f32 v{Z}, v{Z}, v{Z + 1}', f'v_add_f32 v{Z + 2}, v{Z + 2}, v{Z + 3}', f'v_add_f32 v{Z}, v{Z}, v{Z + 2}']
            c += [f'v_mul_f32 v{Z}, s{x}, v{Z}' for x in (f1, f2)]
            return c + [f'ds_write_b32 v{vXi1}, v{Z}']
        code = ['L_cin_loop:', f'v_cmp_le_f32 s[{S_CM}:{S_CM + 1}], s{S_HI}, v{vM}', f'v_cmp_le_f32 vcc, s{S_LO}, v{vM}',
                f's_mov_b32 s{S_A1}, s{S_F1}', f's_mov_b32 s{S_A2}, s{S_F2}',
                f's_cmp_lg_u64 s[{S_CM}:{S_CM + 1}], 0', 's_cbranch_scc1 L_cslow', 's_cbranch_vccz L_cslow']
        cA = self.seq(code)
        RD = []
        for rp in (0, 3, 4):
            RD += [trp(T, rp) for T in range(4)]
        for T in range(4):
            RD += [f'ds_read_b64_tr_b16 {vr(zr(T, 2), 2)}, v{vLin0} offset:{32 * T}', f'ds_read_b64_tr_b16 {vr(zr(T, 2) + 2, 2)}, v{vLin1} offset:{32 * T}']
        RD += [wread(k) for k in range(PF)]
        for rp in (5, 6, 1, 2):
            RD += [trp(T, rp) for T in range(4)]
        pfr = lambda: (pfx_b() + pfx_a() if o.pfx else []) + (pfw() if o.pfw else [])
        vm = xdma() + xidx() + pfr()
        VA = final(S_A1, S_A2) + [f'v_add_u32 v{vXi1}, 256, v{vXi1}']
        PK0 = [pk(T, n) for T in range(4) for n in range(4)]
        TG = [f'v_add_u32 v{r}, s{S_XD}, v{r}' for r in (vXa, vLin0, vLin1)] + [f's_sub_u32 s{S_XM0}, s{S_XM0}, s{S_XD}', f's_sub_u32 s{S_XD}, 0, s{S_XD}', f's_mov_b32 s{S_SKIP}, 0']
        cB0 = self.seq(['L_cconv:', f's_cmp_lg_u32 s{S_SKIP}, 0', 's_cbranch_scc1 L_first'])
        cVM = self.seq(interleave(RD, VA) + PK0 + vm)
        self.first = ['L_first:'] + RD[:28] + interleave(RD[28:], PK0) + ['s_branch L_novm']
        code = ['L_novm:'] + TG
        LA = 1
        def lstamp(base):
            if not (o.stamps and o.cst):
                return []
            return [f's_memtime s[{S_ST}:{S_ST + 1}]', f's_memrealtime s[{S_ST + 2}:{S_ST + 3}]', f's_sub_u32 s{S_C0}, {base + 6}, s{S_LOOP}', 's_waitcnt lgkmcnt(0)',
                    f's_mov_b32 m0, s{S_C0}', f'v_writelane_b32 v252, s{S_ST}, m0', f'v_writelane_b32 v253, s{S_ST + 2}, m0']
        code += lstamp(19)
        code += [Touch(vr(WF, 4)), Touch(vr(zr(3, 2), 4))] + (['s_setprio 2', 's_barrier'] if o.cbar else ['s_setprio 1'])
        MS = [(n, T) for n in range(NJ) for T in range(4)]
        first_use, last_use = {}, {}
        for mi, (n, T) in enumerate(MS):
            kind, s_, tile = jobs[n]
            if kind == 'l':
                last_use[(T, 'lin')] = mi
                continue
            for su in ([s_] if kind == 'd' else [s_ - 1, s_]):
                first_use.setdefault((T, su), mi)
                last_use[(T, su)] = mi
        V = []
        for s_ in range(LA, 11):
            prev = [p_ for p_ in range(s_) if zslot(p_) == zslot(s_)]
            for T in range(4):
                rdy = last_use[(T, prev[-1])] + o.war if prev else (last_use[(T, 'lin')] if zslot(s_) == 2 else -1)
                for n in range(4 * s_, 4 * s_ + 4):
                    V.append((pk(T, n), rdy, first_use[(T, s_)], n, T))
        forced = 0
        late = []
        XL_ = [x for j in range(13) for x in ureads(j)]
        xrd = {}
        CVR = [preg(T, r) for r in (2, 3, 6, 7) for T in range(4)]
        cvrdy = max(n for n, x in enumerate(cin16.INS) if set(x[:2]) & {2, 3, 6, 7})
        cvt2 = lambda j: f'v_cvt_pk_f16_f32 v{CVR[j]}, v{XR + 2 * j}, v{XR + 2 * j + 1}'
        iwr2 = lambda j: f'ds_write_b32 v{vIw}, v{CVR[j]} offset:{j * IMGP}'
        nm = nc = nw = 0
        V.sort(key=lambda x: x[2])
        prev2 = 0
        for mi, (n, T) in enumerate(MS):
            while V and V[0][2] <= mi:
                assert V[0][1] < mi
                code.append(V.pop(0)[0]); forced += 1
            code.append(mfma(n, T))
            t = 4
            if o.cbar and mi == len(MS) - 1 - o.cbov:
                code += ['s_setprio 3', 's_barrier']; t += 8
            if not o.cbar and mi == 4 * o.hiat - 2:
                code.append('s_setprio 2'); t += 4
            if T == 3 and n + 1 < NJ:
                code.append(Touch(vr(WF + 4 * ((n + 1) % NWF), 4))); t += 4
            if T == 0 and n + PF < NJ:
                code.append(wread(n + PF)); t += 8
            elif T in (1, 2) and late:
                code.append(late.pop(0)); t += 8
            elif T in (1, 2) and mi >= o.x0 and XL_:
                if len(XL_) == 26:
                    code.append(WaitTag(vm_tags=['XB']))
                code.append(XL_.pop(0)); t += 8
                if len(XL_) % 2 == 0:
                    xrd[12 - len(XL_) // 2] = mi
            elif not V and nw < nc and t == 4:
                code.append(iwr2(nw)); nw += 1; t += 12
            t = max(t, 12 if jobs[n][0] == 's' else 8)
            k = 0
            while t < 16:
                urgent = any(V[q_][2] - 1 - mi < q_ + 1 for q_ in range(min(24, len(V))))
                if k == 1 and prev2 >= o.max2 and not urgent:
                    break
                cand = [x for x in V[:32] if x[1] <= mi]
                extra = None
                if nm < 13 and nm in xrd and xrd[nm] + o.xlat <= mi:
                    extra = 'm'
                elif nc < nm and all(x[3] > cvrdy for x in V):
                    extra = 'c'
                if cand and (k == 0 or urgent or not extra) and (k == 0 or urgent or o.eager):
                    x = cand[0]
                    V.remove(x)
                    code.append(x[0])
                    if x[3] <= LASTA and all(y[3] > LASTA for y in V if y[4] == x[4]):
                        late.append(trp(x[4], 7))
                elif extra == 'm':
                    code.append(mx3(nm)); nm += 1
                elif extra == 'c':
                    code.append(cvt2(nc)); nc += 1
                else:
                    break
                t += 4; k += 1
            prev2 = prev2 + 1 if k == 2 else 0
        assert not late and not XL_ and not V
        print('left', 13 - nm, 13 - nc, 13 - nw)
        tail = [mx3(j) for j in range(nm, 13)] + [cvt2(j) for j in range(nc, 13)] + [iwr2(j) for j in range(nw, 13)]
        print('forced VALU', forced)
        code += lstamp(25)
        code.append(f's_setprio {o.p0}')
        code += [f's_sub_u32 s{S_LOOP}, s{S_LOOP}, 1', f's_cmp_eq_u32 s{S_LOOP}, 0', 's_cbranch_scc1 L_cin_done'] + tail
        ntail = len(tail) + 1
        def keep(x):
            t_ = x.text if isinstance(x, I) else x
            if isinstance(t_, tuple):
                return True
            if 'nopk' in o.dbg and t_.startswith('v_pk_mul_f16'):
                return False
            if 'nowf' in o.dbg and t_.startswith('ds_read_b128'):
                return False
            if 'nosm' in o.dbg and t_.startswith('v_smfmac'):
                return False
            return True
        code = [x for x in code if keep(x)]
        if 'bf' in o.dbg:
            code = [x.replace('x32_f16', 'x32_bf16').replace('x64_f16', 'x64_bf16') if isinstance(x, str) else x for x in code]
        cB = self.seq(code + ['s_branch L_cin_loop'])
        mark0 = len(self.P.static)
        bl = []
        if o.burn:
            bl = [f's_movk_i32 s{S_LOOP}, {o.burn // 2}', 'L_burn2:'] + [f'v_mfma_f32_16x16x32_f16 {vr(P + 4 * (k % 2), 4)}, {vr(WF + 4 * (k % 4), 4)}, {vr(Z + 4 * (k // 4), 4)}, 0' for k in range(32)]
            bl += [f's_sub_u32 s{S_LOOP}, s{S_LOOP}, 1', f's_cmp_lg_u32 s{S_LOOP}, 0', 's_cbranch_scc1 L_burn2']
        L = ['L_cin_done:', f's_mul_i32 s{S_U0}, s{S_WAVE}, 1536', f's_add_u32 s{S_U0}, s{S_U0}, {PART}',
             f'v_lshlrev_b32 v{Z + 4}, 5, v0', f'v_add_u32 v{Z + 4}, s{S_U0}, v{Z + 4}',
             f'ds_read_b128 {vr(P, 4)}, v{Z + 4}', f'ds_read_b128 {vr(P + 4, 4)}, v{Z + 4} offset:16'] + bl + final(S_F1, S_F2)[:-1]
        E = [f'v_subrev_u32 v{Z + 6}, s{S_U0}, v{vXi1}', f'v_lshrrev_b32 v{Z + 6}, 8, v{Z + 6}', f'v_lshrrev_b32 v{Z + 5}, 3, v0', f'v_cmp_gt_u32 vcc, v{Z + 6}, v{Z + 5}',
             f'v_min_u32 v{Z + 5}, v{Z + 5}, v{Z + 6}', f'v_lshlrev_b32 v{Z + 5}, 4, v{Z + 5}', f'v_add_u32 v{Z + 5}, s{S_RC}, v{Z + 5}',
             ] + [f'v_add_f32 v{P + a_}, v{P + a_}, v{P + b_}' for a_, b_ in ((0, 1), (2, 3), (4, 5), (6, 7), (0, 2), (4, 6), (0, 4))]
        E += [f'v_add_f32_dpp v{P}, v{P}, v{P} {ctl} row_mask:0xf bank_mask:0xf' for ctl in ('quad_perm:[1,0,3,2]', 'quad_perm:[2,3,0,1]', 'row_half_mirror')]
        L += interleave([f'v_add_f32_dpp v{Z}, v{Z}, v{Z} {ctl} row_mask:{rm} bank_mask:0xf' for ctl, rm in DPPS], E)
        L += [f'v_cndmask_b32 v{P}, v{Z}, v{P}, vcc', 's_bitset1_b32 vcc_hi, 31', 's_mov_b64 exec, vcc', f'ds_write_b32 v{Z + 5}, v{P}', 's_mov_b64 exec, -1']
        L += self.stamp(9) + self.stamp_flush() + self.probe('cend') + [f's_cmp_eq_u32 s{S_WAVE}, 0', 's_cbranch_scc1 L_cpub', 's_waitcnt lgkmcnt(0)', 's_barrier', 's_endpgm',
              'L_cpub:', f's_load_dword s{S_BOUT}, s[{S_BO}:{S_BO + 1}], 0'] + self.pubsrd() + [
              'v_lshlrev_b32 v6, 2, v0', f'v_add_u32 v2, {RC}, v6', 'v_add_u32 v4, 1024, v6',
              f's_mul_i32 s{S_T1}, s{S_MB}, 192', f's_add_u32 s{S_T1}, s{S_T1}, {13 * WSP}',
              'v_mov_b32 v13, -1', 's_mov_b32 exec_hi, 0xffff', f'buffer_store_dword v13, v6, {srd(SRD_WS)}, s{S_T1} offen sc1', 's_mov_b64 exec, 1',
              f'buffer_load_dword v250, v6, {srd(SRD_OUT)}, 0 offen', f'buffer_load_dword v251, v6, {srd(SRD_DBG)}, 0 offen offset:240 sc1', 's_mov_b64 exec, -1',
              f's_mul_i32 s{S_T0}, s{S_MB}, 3', f's_mul_i32 s{S_T2}, s{S_T0}, 3277', f's_lshr_b32 s{S_T2}, s{S_T2}, 16',
              f'v_add_u32 v7, s{S_T2}, v0', f's_mul_i32 s{S_T2}, s{S_T2}, 20', f's_add_u32 s{S_T2}, s{S_T2}, 20',
              f's_sub_u32 s{S_T2}, s{S_T2}, s{S_T0}', f's_min_u32 s{S_T2}, s{S_T2}, 3', f's_sub_u32 s{S_T0}, 3, s{S_T2}',
              f'v_mov_b32 v5, s{S_T0}', f'v_writelane_b32 v5, s{S_T2}, 0',
              f's_cmp_eq_u32 s{S_T0}, 0', f's_cselect_b32 s{S_T0}, 1, 3',
              'v_lshlrev_b32 v3, 4, v0', 's_mov_b32 exec_hi, 0xffff', 's_waitcnt vmcnt(0) lgkmcnt(0)', 's_barrier'] + self.probe('cend2') + ['ds_read_b32 v64, v2']
        L += (self.stamp(16) if o.diag else [])
        L += ['v_min_u32 v64, -2, v64'] if o.sent else []
        L += [f'buffer_store_dword v64, v6, {srd(SRD_WS)}, s{S_T1} offen sc1', f's_mov_b32 exec_lo, s{S_T0}', 's_mov_b32 exec_hi, 0', 's_branch L_pub']
        fin_ = self.seq(L)
        blk = self.P.static[mark0:]
        del self.P.static[mark0:]
        at = self.P.static.index(self.pub[-1]) + 1
        self.P.static[at:at] = blk + self.ldblk
        L = ['L_cslow:']
        for (ctl, rm) in (('row_shr:1', '0xf'), ('row_shr:2', '0xf'), ('row_shr:4', '0xf'), ('row_shr:8', '0xf'),
                          ('row_bcast:15', '0xa'), ('row_bcast:31', '0xc')):
            L.append(f'v_max_f32_dpp v{vM}, v{vM}, v{vM} {ctl} row_mask:{rm} bank_mask:0xf')
        L += [f'v_readlane_b32 s{S_U0}, v{vM}, 63', f's_mov_b32 s{S_HI}, 0',
              f's_lshr_b32 s{S_U0}, s{S_U0}, 23', f's_min_u32 s{S_U0}, s{S_U0}, {127 + 55}',
              f's_lshr_b32 s{S_U1}, s{S_IV}, 23', f's_sub_u32 s{S_U1}, s{S_U1}, 47', f's_lshr_b32 s{S_U1}, s{S_U1}, 1', f's_min_u32 s{S_U1}, s{S_U1}, 59',
              f's_sub_u32 s{S_U1}, 131, s{S_U1}', f's_max_u32 s{S_U0}, s{S_U0}, s{S_U1}',
              f's_sub_u32 s{S_U1}, {127 + 4 + 127}, s{S_U0}',
              f's_lshl_b32 s{S_U2}, s{S_U1}, 1', f's_sub_u32 s{S_U2}, s{S_U2}, 127',
              f's_sub_u32 s{S_G}, 254, s{S_U2}', f's_lshl_b32 s{S_G}, s{S_G}, 23',
              f'v_mov_b32 v{P}, s{S_G}', f'v_mul_f32 v{P + 1}, s{S_CG}, v{P}', f'v_mul_f32 v{P}, s{S_IV}, v{P}',
              f'v_readfirstlane_b32 s{S_F1}, v{P + 1}', f'v_readfirstlane_b32 s{S_F2}, v{P}',
              f's_lshl_b32 s{S_U1}, s{S_U1}, 23', f's_lshl_b32 s{S_U2}, s{S_U2}, 23']
        TS = P
        for j in range(13):
            L += [f'v_mul_f32 v{TS}, s{S_U1}, v{XR + 2 * j}', f'v_mul_f32 v{TS + 1}, s{S_U1}, v{XR + 2 * j + 1}',
                  f'v_mul_f32 v{TS + 2}, s{S_U2}, v{XR + 2 * j}', f'v_mul_f32 v{TS + 3}, s{S_U2}, v{XR + 2 * j + 1}',
                  f'v_cvt_pk_f16_f32 v{TS + 20 + j}, v{TS}, v{TS + 1}', f'v_cvt_pk_bf16_f32 v{TS + 4 + j}, v{TS + 2}, v{TS + 3}',
                  f'ds_write_b32 v{vIw}, v{TS + 20 + j} offset:{j * IMGP}', f'ds_write_b32 v{vXa}, v{TS + 4 + j} offset:{XOFF(2 * j)}']
        L += [f'v_mov_b32 v{TS}, s{S_U2}', f'v_cvt_pk_bf16_f32 v{TS}, v{TS}, v{TS}',
              's_mov_b32 exec_hi, 0', f'ds_write_b32 v{vXa}, v{TS} offset:{XOFF(26)}', 's_mov_b32 exec_hi, -1',
              's_waitcnt lgkmcnt(0)', 's_branch L_cconv']
        slow = self.seq(L)
        sdown = self.seq(self.sdown)
        cF = self.seq(self.first)
        traces = []
        for w in range(8):
            grp = w >> 2
            c2 = c2a + (c2g1 + (c2b if w == 4 else []) + c2g1d if grp else c2g0) + c2c
            it = lambda sl, first: cA + (slow if sl else []) + cB0 + (cF if first else cVM) + cB
            traces.append(PRE(w) + c2 + it(0, 1) + it(0, 0) + it(0, 0)[:-ntail] + fin_ + self.pub)
            if w in (0, 4):
                traces.append(PRE(w, sdown) + c2 + it(1, 1) + it(1, 0)[:-ntail] + fin_ + self.pub)
        return traces

    def build(self):
        pro = self.prologue()
        d = self.dnn()
        cs = self.cin()
        self.seq(['L_end:', 's_endpgm'])
        traces = [pro + c for c in d + cs] + self.extra_traces
        for t in traces:
            resolve_waits(t)
        for _ in range(2):
            for t in traces:
                resolve_hazards(t)
        hdr = open(os.path.join(os.path.dirname(os.path.abspath(__file__)), 'header.txt')).read()
        txt = hdr + f'; @launch grid=(256,1,1) block=(512,1,1) lds={LDS_TOTAL}\n'
        txt += f'''.amdgcn_target "amdgcn-amd-amdhsa--gfx950"
{DOC}.text
.globl {KNAME}
.p2align 8
.type {KNAME},@function
{KNAME}:
'''
        body_ = self.P.emit()
        if self.opt.align:
            for lab in ('L_dnn_loop0:', 'L_dnn_loop1:', 'L_cin_loop:', 'L_epi:'):
                pad = '  s_nop 0\n' if self.opt.align > 100 else ''
                body_ = body_.replace(lab + '\n', f'.p2align {self.opt.align % 100}\n{pad}{lab}\n')
        if self.opt.cwalk:
            lines = body_.split('\n')
            i0, i1 = lines.index('L_w2:'), lines.index('L_cslow:')
            out, k, cnt = lines[:i0], 0, 0
            seg = lines[i0:i1]
            prot = 0
            for n_, l in enumerate(seg):
                out.append(l)
                t = l.strip()
                cnt += 1
                inmain = 'L_novm:' in seg[:n_ + 1]
                nxt = seg[n_ + 1].strip() if n_ + 1 < len(seg) else ''
                ok = t.endswith(':') or (cnt >= self.opt.cwalk and ('mfma' in t and nxt.startswith('v_pk') if inmain else t.startswith(('ds_', 'v_perm', 'v_cvt_pk'))))
                if ok and t not in ('L_cin_loop:', 'L_cconv:', 'L_scaled:'):
                    out += [f'L_wp{k}:', f'  s_cbranch_execz L_wp{k + 1}']
                    k += 1; cnt = 0
            j = lines.index('L_first:')
            rest = lines[i1:j + 1] + [f'L_wp{k}:', '  s_cbranch_execz L_wret'] + lines[j + 1:]
            body_ = '\n'.join(out + rest)
            print('walk pads', k + 1)
            self.npads = k + 1
            for q_ in range(4):
                body_ = body_.replace(f'L_WENTRY{q_}', f'L_wp{q_ * (k + 1) // 4}')
        if self.opt.fix:
            body_ = fixalign.fix(body_ + 'L_tables:\n', self.opt.fix)[:-len('L_tables:\n')]
        txt += body_
        tb = self.tables()
        assert len(tb) == 16 * 256
        txt += '.p2align 8\nL_tables:\n' + ''.join('.long ' + ', '.join(f'{x:#x}' for x in tb[i:i + 8]) + '\n' for i in range(0, len(tb), 8))
        txt += f'''.section .rodata,"a"
.p2align 6
.amdhsa_kernel {KNAME}
  .amdhsa_next_free_vgpr 256
  .amdhsa_next_free_sgpr 102
  .amdhsa_accum_offset 256
  .amdhsa_group_segment_fixed_size 0
  .amdhsa_kernarg_size 88
  .amdhsa_user_sgpr_count 2
  .amdhsa_user_sgpr_kernarg_segment_ptr 1
  .amdhsa_system_sgpr_workgroup_id_x 1
  .amdhsa_float_denorm_mode_32 {self.opt.denorm}
.end_amdhsa_kernel
'''
        return txt


def main():
    ap = argparse.ArgumentParser()
    ap.add_argument('-o', default='standalone__deep_cross_xdeepfm__recsys.s')
    ap.add_argument('--stamps', action='store_true')
    ap.add_argument('--nodma', action='store_true')
    ap.add_argument('--cpf', type=int, default=1)
    ap.add_argument('--coop', type=int, default=0)
    ap.add_argument('--coopw', type=int, default=2)
    ap.add_argument('--tbpos', type=int, default=0)
    ap.add_argument('--dbar3', type=int, default=1)
    ap.add_argument('--tlb', type=int, default=0)
    ap.add_argument('--tlb2', type=int, default=1)
    ap.add_argument('--itst', type=int, default=0)
    ap.add_argument('--diag', type=int, default=0)
    ap.add_argument('--dbg', default='')
    ap.add_argument('--lead3', type=int, default=1)
    ap.add_argument('--morder', type=int, default=0)
    ap.add_argument('--etlb', type=int, default=0)
    ap.add_argument('--lateb', type=int, default=0)
    ap.add_argument('--wfl', default='')
    ap.add_argument('--xfl', default='')
    ap.add_argument('--tag', type=int, default=0)
    ap.add_argument('--idxfirst', type=int, default=1)
    ap.add_argument('--bpos', type=int, default=2)
    ap.add_argument('--sigat', type=int, default=4)
    ap.add_argument('--epx', type=int, default=1)
    ap.add_argument('--denorm', type=int, default=3)
    ap.add_argument('--mprio', type=int, default=0)
    ap.add_argument('--swap', type=int, default=0)
    ap.add_argument('--bov', type=int, default=1)
    ap.add_argument('--rfirst', type=int, default=0)
    ap.add_argument('--g1x', type=int, default=0)
    ap.add_argument('--ldsred', type=int, default=0)
    ap.add_argument('--csnake', type=int, default=0)
    ap.add_argument('--cswap', type=int, default=0)
    ap.add_argument('--align', type=int, default=0)
    ap.add_argument('--c2', type=int, default=0)
    ap.add_argument('--d1', type=int, default=0)
    ap.add_argument('--cstr', type=int, default=3)
    ap.add_argument('--bearly', type=int, default=1)
    ap.add_argument('--w2late', type=int, default=1)
    ap.add_argument('--aov', type=int, default=5)
    ap.add_argument('--upos', type=int, default=1)
    ap.add_argument('--calt', type=int, default=1)
    ap.add_argument('--pfpos', type=int, default=1)
    ap.add_argument('--wlate', type=int, default=0)
    ap.add_argument('--dbar2', type=int, default=0)
    ap.add_argument('--dbar', type=int, default=0)
    ap.add_argument('--pfw', type=int, default=0)
    ap.add_argument('--pfx', type=int, default=0)
    ap.add_argument('--pfx0', type=int, default=4)
    ap.add_argument('--pfs', type=int, default=13)
    ap.add_argument('--dcoopx', type=int, default=1)
    ap.add_argument('--dcx0', type=int, default=0)
    ap.add_argument('--dcxpos', type=int, default=-1)
    ap.add_argument('--pfe0', type=int, default=2)
    ap.add_argument('--pfne', type=int, default=13)
    ap.add_argument('--prio47', type=int, default=0)
    ap.add_argument('--lookahead', type=int, default=5)
    ap.add_argument('--nz', type=int, default=6)
    ap.add_argument('--nwf', type=int, default=8)
    ap.add_argument('--hiat', type=int, default=4)
    ap.add_argument('--wmerge', type=int, default=0)
    ap.add_argument('--gapv', type=int, default=6)
    ap.add_argument('--slow', type=int, default=0)
    ap.add_argument('--absol', type=int, default=0)
    ap.add_argument('--rev', type=int, default=1)
    ap.add_argument('--xg1', type=int, default=0)
    ap.add_argument('--bou', type=int, default=1)
    ap.add_argument('--sjw', type=int, default=7)
    ap.add_argument('--cwalk', type=int, default=0)
    ap.add_argument('--few', default='')
    ap.add_argument('--econv', type=int, default=0)
    ap.add_argument('--nsh', type=int, default=16)
    ap.add_argument('--sh0', type=int, default=5)
    ap.add_argument('--dirt', type=int, default=0)
    ap.add_argument('--mrg', type=int, default=0)
    ap.add_argument('--g1p', type=int, default=0)
    ap.add_argument('--sa', type=int, default=4)
    ap.add_argument('--sbg', type=int, default=16)
    ap.add_argument('--bwat', type=int, default=0)
    ap.add_argument('--x2n', type=int, default=8)
    ap.add_argument('--sent', type=int, default=1)
    ap.add_argument('--spec', type=int, default=0)
    ap.add_argument('--probe', default='')
    ap.add_argument('--skew', type=int, default=0)
    ap.add_argument('--fix', type=int, default=64)
    ap.add_argument('--walk', type=int, default=0)
    ap.add_argument('--eal', type=int, default=3)
    ap.add_argument('--eoff', type=int, default=0)
    ap.add_argument('--ct', default='')
    ap.add_argument('--rot', type=int, default=13)
    ap.add_argument('--i0', type=int, default=1)
    ap.add_argument('--i1', type=int, default=10)
    ap.add_argument('--burn', type=int, default=0)
    ap.add_argument('--lord', type=int, default=1)
    ap.add_argument('--lprio', type=int, default=0)
    ap.add_argument('--rsp', type=int, default=0)
    ap.add_argument('--tch', type=int, default=0)
    ap.add_argument('--tf', type=int, default=4)
    ap.add_argument('--toff', type=int, default=0)
    ap.add_argument('--tw0', type=int, default=12)
    ap.add_argument('--xat', type=int, default=0)
    ap.add_argument('--pf1', type=int, default=1)
    ap.add_argument('--lpf', type=int, default=20)
    ap.add_argument('--lpfit', type=int, default=6)
    ap.add_argument('--x1m', type=int, default=10)
    ap.add_argument('--bgap', type=int, default=6)
    ap.add_argument('--cprio', type=int, default=1)
    ap.add_argument('--x1n', type=int, default=5)
    ap.add_argument('--w0', type=int, default=2)
    ap.add_argument('--dbar1', type=int, default=1)
    ap.add_argument('--aon', type=int, default=2)
    ap.add_argument('--cbar', type=int, default=0)
    ap.add_argument('--vmpos', type=int, default=2)
    ap.add_argument('--il2', type=int, default=0)
    ap.add_argument('--p1', type=int, default=0)
    ap.add_argument('--pm', type=int, default=2)
    ap.add_argument('--cbov', type=int, default=3)
    ap.add_argument('--p0', type=int, default=0)
    ap.add_argument('--max2', type=int, default=2)
    ap.add_argument('--eager', type=int, default=0)
    ap.add_argument('--cst', type=int, default=0)
    ap.add_argument('--x0', type=int, default=60)
    ap.add_argument('--xlat', type=int, default=18)
    ap.add_argument('--xper', type=int, default=3)
    ap.add_argument('--xc0', type=int, default=0)
    ap.add_argument('--n3', type=int, default=1)
    ap.add_argument('--xi0', type=int, default=1)
    ap.add_argument('--pfsat', type=int, default=0)
    ap.add_argument('--g1prio', type=int, default=0)
    ap.add_argument('--xearly', type=int, default=1)
    ap.add_argument('--cpfd', type=int, default=4)
    ap.add_argument('--cla', type=int, default=1)
    ap.add_argument('--war', type=int, default=1)
    opt = ap.parse_args()
    resolve_waits.dbg = 'dup' in opt.dbg
    g = Gen(opt)
    txt = g.build()
    open(opt.o, 'w').write(txt)
    print('wrote', opt.o, len(txt), 'bytes')


if __name__ == '__main__':
    main()
```

```python
import sys, os, struct, argparse
sys.path.insert(0, os.path.dirname(os.path.abspath(__file__)))
from asmlib import I, WaitTag, Touch, Prog, resolve_waits, resolve_hazards
import cin16, fixalign

KNAME = 'standalone__deep_cross_xdeepfm__recsys_kernel'
LDS_TOTAL = 163840

XSLOT = 320 * 128
WR = 3 * XSLOT + 8192
WSLOT = 32 * 256
L_BIAS = 3 * XSLOT
L_W2 = L_BIAS + 256
RB = L_W2 + 256
assert WR % 32768 == 0 and WR + 4 * WSLOT <= LDS_TOTAL
WSP = 16640
assert RB + 2560 <= LDS_TOTAL

W2P = 1536
SSZ = 677 * 64
FRS = 0
V3OFF = 0
A1 = 6144
FR = A1
FRL = FR + 33 * 1024
A3 = FRL + 2048
SG = A3
A2 = SG + SSZ
SQ = A2
V2S = SQ + SSZ
L_WCO = V2S + 832
L_FLG = L_WCO + 192
L_MX = L_FLG + 16
RC = L_FLG + 64
XB = V2S + 2496
XPP = 1056
XBSZ = 3 * XPP + 7 * 128
IMG = A3
IMGP = 160
IMGSZ = 33 * IMGP
XB2 = IMG + 8 * IMGSZ
PART = XB2 + 8 * XBSZ
XOFF = lambda f: (f & 3) * XPP + (f >> 2) * 128
assert RC + 512 <= V2S + 1664
assert XB + 8 * XBSZ <= LDS_TOTAL and XB % 16 == 0 and A2 % 64 == 0 and A3 % 64 == 0 and L_WCO % 16 == 0 and V2S % 64 == 0
assert PART + 8 * 1536 <= V2S + 832 and IMGSZ % 32 == 0 and XB2 % 16 == 0

S_WAVE = 3
S_IDX, S_TAB, S_CIN, S_WCO, S_W1, S_B1, S_W2, S_BO, S_OUT, S_DBG, S_WS = 4, 6, 8, 10, 12, 14, 16, 18, 20, 22, 24
S_MB, S_R = 26, 27
SRD_IDX, SRD_TAB, SRD_CIN, SRD_WCO, SRD_W, SRD_B1, SRD_W2, SRD_OUT, SRD_WS, SRD_DBG = 28, 32, 36, 40, 44, 48, 52, 56, 60, 64
S_T0, S_T1, S_T2, S_T3 = 68, 69, 70, 71
S_LOOP, S_IDXOFF, S_WSOFF, S_WMB, S_XM0, S_N0, S_C0, S_CW, S_BOUT, S_TW = 72, 73, 74, 75, 76, 77, 78, 79, 80, 81
S_EX = 82
S_GRP, S_RC = 84, 85
S_ST = 86
S_M26, S_MASK = 90, 92
S_SAMP, S_STG, S_STG9, S_TGT = 94, 95, 96, 97
S_M26B = 98
S_GW = 100
S_TAGT = 0
S_TAG = 1
S_PW = 101
S_PX = 77
S_PXE = 73

GELU_C0 = -2.0 * 0.7978845608028654 * 1.4426950408889634
GELU_C1 = GELU_C0 * 0.044715


def f32hex(x):
    return '0x%08x' % struct.unpack('<I', struct.pack('<f', x))[0]


def vr(a, n):
    return f'v[{a}:{a + n - 1}]' if n > 1 else f'v{a}'


def srd(a):
    return f's[{a}:{a + 3}]'


def flat(gs):
    res = []
    for c in gs:
        if isinstance(c, (tuple, list)):
            res += flat(c)
        else:
            res.append(c)
    return res


def interleave(a, b):
    out = []
    ia = ib = 0
    na, nb = len(a), len(b)
    while ia < na or ib < nb:
        if ib >= nb or (ia < na and ia * nb <= ib * na):
            out.append(a[ia]); ia += 1
        else:
            out.append(b[ib]); ib += 1
    return out


SLOTS = []
for j in range(0, 26, 2):
    for s in range(0, 14 if j <= 12 else 13):
        SLOTS.append((j, (j + s) % 26))
assert len(SLOTS) == 176
DUP_SLOT = SLOTS.index((12, 25))
assert all((d * 2521) >> 16 == d // 26 for d in range(800))
assert all((d * 10923) >> 16 == d // 6 for d in range(64))
assert all((d * 5042) >> 16 == d // 13 for d in range(170))
assert all((d * 3277) >> 16 == d // 20 for d in range(264))


DOC = '''; ---------------------------------------------------------------------------------------------
; Generated by tools/gen23.py (own generator; waits / hazard nops derived from instruction traces).
;
;       U[i,j,k] = sum_h W2[h,i,j] V3[h,k]
;   Both quadratic forms use the 351 distinct products x_j x_k (j<=k) with symmetrised weights, evaluated by
;   DNN branch: full bf16 GEMM + bias + tanh-GELU (x / (1 + exp(-2u))) + dot with w_dnn2.
;   their own producer) and counters in d_debug; the last arriver of a row block adds up and writes d_out.
;   L_tables holds constant per-lane LDS address tables (functions of the lane id only).
; ---------------------------------------------------------------------------------------------
'''


class Gen:
    def __init__(self, opt):
        self.opt = opt
        self.P = Prog()

    def seq(self, lines):
        return [self.P.add(l) for l in flat(lines)]

    def build_srd(self, dst, ptr, size):
        return [f's_mov_b32 s{dst}, s{ptr}', f's_and_b32 s{dst + 1}, s{ptr + 1}, 0xffff',
                f's_mov_b32 s{dst + 2}, {size}', f's_mov_b32 s{dst + 3}, 0x20000']

    def stamp(self, slot):
        if not self.opt.stamps or (self.opt.few and slot not in [int(x) for x in self.opt.few.split(',')]):
            return []
        return [f's_memtime s[{S_ST}:{S_ST + 1}]', f's_memrealtime s[{S_ST + 2}:{S_ST + 3}]', 's_waitcnt lgkmcnt(0)',
                f'v_writelane_b32 v252, s{S_ST}, {slot}', f'v_writelane_b32 v253, s{S_ST + 2}, {slot}']

    def probe(self, name, wave=4):
        if self.opt.probe != name:
            return []
        return ['s_memrealtime s[88:89]', 's_waitcnt lgkmcnt(0)']

    def stamp_flush(self):
        if not self.opt.stamps:
            return []
        L = self.build_srd(SRD_WS, S_WS, 0x10000000)
        L += [f's_lshl_b32 s{S_C0}, s2, 3', f's_add_u32 s{S_C0}, s{S_C0}, s{S_WAVE}',
              f's_lshl_b32 s{S_C0}, s{S_C0}, 8', f's_add_u32 s{S_C0}, s{S_C0}, 0x100000',
              'v_lshlrev_b32 v254, 3, v0', 's_mov_b32 exec_hi, 0',
              f'buffer_store_dwordx2 v[252:253], v254, {srd(SRD_WS)}, s{S_C0} offen', 's_mov_b32 exec_hi, -1']
        return L

    def stamp0(self):
        if not self.opt.stamps:
            return []
        return ['v_mov_b32 v252, 0xcdcdcdcd', 'v_mov_b32 v253, 0xcdcdcdcd',
                f'v_writelane_b32 v252, s{S_ST}, 0', f'v_writelane_b32 v253, s{S_ST + 2}, 0'] + self.stamp(15)

    def tlb2(self, t):
        L = self.build_srd(SRD_WS, S_WS, 0x10000000) + self.build_srd(SRD_OUT, S_OUT, 8192) + self.build_srd(SRD_DBG, S_DBG, 256)
        L += [f's_load_dword s{S_BOUT}, s[{S_BO}:{S_BO + 1}], 0', f'v_mov_b32 v{t}, 0', 's_mov_b64 exec, 1',
              f's_mov_b32 s{S_TW}, 0x80000',
              f'buffer_load_dword v{t + 1}, v{t}, {srd(SRD_WS)}, s{S_TW} offen',
              f'buffer_load_dword v{t + 2}, v{t}, {srd(SRD_OUT)}, 0 offen',
              's_mov_b64 exec, -1']
        return L

    def tlb1(self, vtmp, vdst):
        if not self.opt.etlb:
            return self.build_srd(SRD_TAB, S_TAB, 100000 * 128)
        return self.build_srd(SRD_TAB, S_TAB, 100000 * 128) + [
            f'v_mov_b32 v{vtmp}, s{S_BOUT}', f'buffer_load_dword v{vdst}, v{vtmp}, {srd(SRD_TAB)}, 0 offen']

    def gettag(self, lab, t, VT):
        return [f's_cmp_lg_u32 s{S_WAVE}, 0', f's_cbranch_scc1 {lab}',
                f's_memrealtime s[{S_TAGT}:{S_TAGT + 1}]'] + self.build_srd(SRD_DBG, S_DBG, 256) + [
                f's_lshl_b32 s{S_TW}, s{S_MB}, 2', f'v_mov_b32 v{t}, s{S_TW}', 's_waitcnt lgkmcnt(0)',
                f's_or_b32 s{S_TAG}, s{S_TAGT}, 1', f'v_mov_b32 v{VT}, s{S_TAG}', f'v_mov_b32 v{VT + 1}, 0',
                's_mov_b64 exec, 1',
                f'buffer_atomic_cmpswap v[{VT}:{VT + 1}], v{t}, {srd(SRD_DBG)}, 0 offen offset:128 sc0',
                's_mov_b64 exec, -1', f'{lab}:']

    def prologue(self):
        L = []
        if self.opt.stamps:
            L += [f's_memtime s[{S_ST}:{S_ST + 1}]', f's_memrealtime s[{S_ST + 2}:{S_ST + 3}]']
        L += ['s_cmp_ge_u32 s2, 256', 's_cbranch_scc1 L_end',
              's_load_dwordx16 s[4:19], s[0:1], 0',
              's_load_dwordx4 s[20:23], s[0:1], 64',
              's_load_dwordx2 s[24:25], s[0:1], 80',
              'v_lshrrev_b32 v1, 6, v0']
        if self.opt.cpf:
            L += [f's_getpc_b64 s[{S_MASK}:{S_MASK + 1}]', 'L_pc:',
                  f's_and_b32 s{S_T0}, s2, 0xf8', f'v_add_u32 v2, s{S_T0}, v1', 'v_and_b32 v3, 32, v0', 'v_lshl_add_u32 v2, v3, 3, v2', 'v_lshlrev_b32 v2, 7, v2',
                  f'v_min_u32 v2, L_end-L_pc, v2',
                  f'v_mov_b32 v3, s{S_MASK + 1}',
                  f'v_add_co_u32 v2, vcc, s{S_MASK}, v2', 'v_addc_co_u32 v3, vcc, 0, v3, vcc',
                  'global_load_dword v251, v[2:3], off']
        if self.opt.skew:
            L += ['s_memrealtime s[86:87]', 's_mov_b32 s88, 0']
        L += ['v_and_b32 v0, 63, v0',
              f'v_readfirstlane_b32 s{S_WAVE}, v1',
              f's_and_b32 s{S_T0}, s2, 7', f's_lshr_b32 s{S_T1}, s2, 3', f's_xor_b32 s{S_T1}, s{S_T1}, {31 * self.opt.rev}',
              f's_and_b32 s{S_BOUT}, s2, 0xf8', f's_add_u32 s{S_BOUT}, s{S_BOUT}, s{S_WAVE}', f's_lshl_b32 s{S_BOUT}, s{S_BOUT}, {self.opt.etlb}',
              f's_min_u32 s{S_T2}, s{S_T0}, 1', f's_add_u32 s{S_T3}, s{S_T1}, s{S_T2}',
              f's_cmp_ge_u32 s{S_T3}, 22', 's_cbranch_scc1 L_cin',
              f's_mul_i32 s{S_T0}, s{S_T0}, 21', f's_add_u32 s{S_T0}, s{S_T0}, s{S_T3}',
              ]
        if self.opt.band == 0:
            L += [f's_mul_i32 s{S_MB}, s{S_T0}, 5042', f's_lshr_b32 s{S_MB}, s{S_MB}, 16',
                  f's_mul_i32 s{S_T1}, s{S_MB}, 13', f's_sub_u32 s{S_R}, s{S_T0}, s{S_T1}']
        else:
            assert all((d * 9363) >> 16 == d // 7 for d in range(91)) and all((d * 10923) >> 16 == d // 6 for d in range(78))
            L += [f's_sub_u32 s{S_T1}, 168, s{S_T0}', f's_cmp_lt_u32 s{S_T0}, 91', f's_cselect_b32 s{S_T0}, s{S_T0}, s{S_T1}',
                  f's_cselect_b32 s{S_T1}, 0, 1560', f's_cselect_b32 s{S_T2}, 7, 6', f's_cselect_b32 s{S_R}, 0, 7', f's_add_u32 s{S_T1}, s{S_T1}, 9363',
                  f's_mul_i32 s{S_MB}, s{S_T0}, s{S_T1}', f's_lshr_b32 s{S_MB}, s{S_MB}, 16', f's_mul_i32 s{S_T1}, s{S_MB}, s{S_T2}',
                  f's_add_u32 s{S_R}, s{S_R}, s{S_T0}', f's_sub_u32 s{S_R}, s{S_R}, s{S_T1}']
        return self.seq(L)

    def dnn(self):
        o = self.opt
        vW = [1, 2, 3, 4]
        vX = [[5, 6], [7, 8]]
        vPa, vPc = 9, 10
        WF, XA, ACC = 16, 48, 88
        W2F = WF
        KC0, KC1, KONE = 12, 14, 248
        SUMP, GT = 32, 52
        vIdxOff, vCh, vWD, vBL = 1, [2, 3], [4, 5], 11
        ST, VO = 16, 56
        T = 100
        g, i4, q = T + 16, T + 17, T + 18
        PI = T + 8

        def acc(tn, tm):
            return ACC + (tm * 4 + tn) * 4

        def small(srd_, dst):
            return [f's_mov_b32 m0, {dst}', 's_mov_b64 exec, 0xffff',
                    I(f'buffer_load_dwordx4 v{vBL}, {srd(srd_)}, s{S_N0} offen lds', tag='BIAS'), 's_mov_b64 exec, -1']
        L = [f's_lshl_b32 s{S_N0}, s{S_R}, 8', f's_mul_i32 s{S_T3}, s{S_MB}, 320',
             f'v_lshrrev_b32 v{g}, 4, v0', f'v_lshlrev_b32 v{vBL}, 4, v0', f's_and_b32 s{S_CW}, s{S_WAVE}, 3',
             f's_cmp_lt_u32 s{S_WAVE}, 4', 's_cbranch_scc1 L_cmp']
        c0 = self.seq(L)
        self.ldat = len(self.P.static)
        PI = T

        RG, CG = S_T0, S_T1
        L = ['L_cmp:', f's_mul_i32 s{S_T2}, s{S_WAVE}, 13', f'v_min_u32 v{q}, 12, v0', f'v_add_u32 v{q}, s{S_T2}, v{q}',
             f'v_lshrrev_b32 v{i4}, 1, v{q}', f'v_mul_u32_u24 v{i4}, 96, v{i4}', f'v_lshl_add_u32 v{q}, v{q}, 2, v{i4}',
             f's_mul_i32 s{S_C0}, s{S_R}, 25', f's_min_u32 s{S_C0}, s{S_C0}, 294',
             f's_add_u32 s{S_C0}, s{S_C0}, s{S_T3}', f's_mul_i32 s{S_C0}, s{S_C0}, 104', 's_waitcnt lgkmcnt(0)']
        ct = [int(x) for x in o.ct]
        L += self.build_srd(SRD_IDX, S_IDX, 4096 * 104)
        if ct:
            L += [f'buffer_load_dwordx4 {vr(PI, 4)}, v{q}, {srd(SRD_IDX)}, s{S_C0} offen']
        if ct and max(ct) > 3:
            L += [f'buffer_load_dwordx4 {vr(PI + 4, 4)}, v{q}, {srd(SRD_IDX)}, s{S_C0} offen offset:16']
        L += self.tlb1(T + 14, T + 15)
        touch = [x for k in ct for x in (f'v_lshlrev_b32 v{PI + k}, 7, v{PI + k}', f'buffer_load_dword v{XA + k}, v{PI + k}, {srd(SRD_TAB)}, 0 offen')]
        L += self.build_srd(SRD_B1, S_B1, 3328) + small(SRD_B1, L_BIAS) + self.stamp0()
        L += [f's_and_b32 s{RG}, s{S_WAVE}, 1', f's_lshr_b32 s{CG}, s{S_WAVE}, 1',
              f'v_bfe_u32 v{i4}, v0, 2, 2', f'v_lshl_add_u32 v{q}, v{g}, 3, v{i4}', f'v_lshlrev_b32 v{q}, 8, v{q}',
              f'v_bfe_u32 v{i4}, v0, 2, 3', f's_lshl_b32 s{S_T2}, s{CG}, 2', f'v_xor_b32 v{i4}, s{S_T2}, v{i4}',
              f'v_lshl_add_u32 v{q}, v{i4}, 5, v{q}', f'v_and_b32 v{i4}, 3, v0', f'v_lshl_add_u32 v{q}, v{i4}, 3, v{q}',
              f'v_add_u32 v{vW[0]}, {WR}, v{q}']
        L += [f'v_xor_b32 v{vW[tn]}, {32 * tn}, v{vW[0]}' for tn in range(1, 4)]
        L += [f's_lshl_b32 s{S_T2}, s{CG}, 7', f's_add_u32 s{S_T2}, s{S_T2}, {L_BIAS}', f'v_lshlrev_b32 v{q}, 3, v{g}', f'v_add_u32 v{vPa}, s{S_T2}, v{q}',
              f'v_and_b32 v{q}, 15, v0', f'v_lshlrev_b32 v{q}, 7, v{q}',
              f'v_bfe_u32 v{i4}, v0, 1, 3', f'v_xor_b32 v{i4}, v{i4}, v{g}', f'v_lshl_add_u32 v{q}, v{i4}, 4, v{q}',
              f's_mul_i32 s{S_T2}, s{RG}, 20480', f'v_add_u32 v{vX[0][0]}, s{S_T2}, v{q}', f'v_xor_b32 v{vX[1][0]}, 64, v{vX[0][0]}',
              f'v_add_u32 v{vX[0][1]}, {2 * XSLOT}, v{vX[0][0]}', f'v_add_u32 v{vX[1][1]}, {2 * XSLOT}, v{vX[1][0]}',
              f's_mul_i32 s{S_T2}, s{S_WAVE}, 640', f's_add_u32 s{S_T2}, s{S_T2}, {RB}',
              f'v_and_b32 v{q}, 15, v0', f'v_lshlrev_b32 v{q}, 2, v{q}', f'v_add_u32 v{q}, s{S_T2}, v{q}',
              f'v_lshrrev_b32 v{i4}, 5, v0', f'v_lshl_add_u32 v{q}, v{i4}, 6, v{q}', f'v_bfe_u32 v{i4}, v0, 4, 1', f'v_lshl_add_u32 v{vPc}, v{i4}, 7, v{q}',
              f's_mov_b32 s{S_LOOP}, 0',
              f'v_mov_b32 v{KC0}, {f32hex(GELU_C0)}', f'v_mov_b32 v{KC0 + 1}, {f32hex(GELU_C0)}',
              f'v_mov_b32 v{KC1}, {f32hex(GELU_C1)}', f'v_mov_b32 v{KC1 + 1}, {f32hex(GELU_C1)}']

        def pkreads(off, dst):
            return [f'ds_read_b64 {vr(dst + 4 * tn + 2, 2)}, v{vPa} offset:{off + 32 * tn}' for tn in range(4)]

        def unp(dst):
            c = []
            for tn in range(4):
                r = dst + 4 * tn
                c += [f'v_lshlrev_b32 v{r}, 16, v{r + 2}', f'v_and_b32 v{r + 1}, 0xffff0000, v{r + 2}',
                      f'v_lshlrev_b32 v{r + 2}, 16, v{r + 3}', f'v_and_b32 v{r + 3}, 0xffff0000, v{r + 3}']
            return c
        L += touch + self.stamp(6)
        BI = [WaitTag(vm_tags=['BIAS'])] + pkreads(0, acc(0, 9)) + unp(acc(0, 9)) + [f'v_mov_b64 {vr(acc(0, 8) + r, 2)}, {vr(acc(0, 9) + r, 2)}' for r in range(0, 16, 2)]

        def rX(p, k):
            xs = p % 3
            return f'ds_read_b128 {vr(XA + 4 * (k % 10), 4)}, v{vX[k % 2][xs // 2]} offset:{(xs % 2) * XSLOT + (k // 2) * 2048}'

        def rW(tn):
            return [f'ds_read_b64_tr_b16 {vr(WF + 16 * par + 4 * tn + 2 * rd, 2)}, v{vW[tn]} offset:{par * WSLOT + rd * 1024}' for par in range(2) for rd in range(2)]
        tog = lambda tn: f'v_xor_b32 v{vW[tn]}, {2 * WSLOT}, v{vW[tn]}'

        def dec(gi):
            G, tn, a_, par = gi // 16, (gi // 4) % 4, (gi // 2) % 2, gi % 2
            if o.bou:
                par ^= a_ ^ (G == 4)
                a_ ^= tn & 1
            return G, tn, a_, par
        lastx = {4 * dec(gi)[0] + 2 * dec(gi)[2] + dec(gi)[3]: gi for gi in range(80)}

        def mf(gi, first=False):
            G, tn, a_, par = dec(gi)
            d = acc(tn, 2 * G + a_)
            if first and gi % 2 == 0 and G < 4:
                return f'v_mfma_f32_16x16x32_bf16 {vr(d, 4)}, {vr(WF + 16 * par + 4 * tn, 4)}, {vr(XA + 4 * ((4 * G + 2 * a_ + par) % 10), 4)}, {vr(acc(tn, 9), 4)}'
            return f'v_mfma_f32_16x16x32_bf16 {vr(d, 4)}, {vr(WF + 16 * par + 4 * tn, 4)}, {vr(XA + 4 * ((4 * G + 2 * a_ + par) % 10), 4)}, {vr(d, 4)}'
        SH = [11, 248, 249, 250]
        nsh = o.nsh

        def shadow():
            c = []
            for b0 in range(0, nsh, 4):
                E = [(ACC + e, SH[e - b0]) for e in range(b0, min(b0 + 4, nsh))]
                for op in ('v_mul_f32 T, X, X', f'v_fma_f32 T, T, v{KC1}, v{KC0}', 'v_mul_f32 T, T, X', 'v_exp_f32 T, T', 'v_add_f32 T, 1.0, T', 'v_rcp_f32 T, T', 'v_mul_f32 X, X, T'):
                    c += [(op.replace('T', f'v{t}').replace('X', f'v{x}'), 8 if ('exp' in op or 'rcp' in op) else 4) for x, t in E]
            return c

        def cpair(p, kind, loopend=False):
            S = []
            ev = {}
            if kind == 'first':
                g_ = o.sbg + 1
                for k in range(2 * o.sa, 10):
                    ev[g_] = rX(p, k); g_ += 1
            else:
                for i_, x in enumerate(rW(3)[2:]):
                    ev[i_] = x
                for i_, k in enumerate(range(6, 10)):
                    ev[2 + i_] = rX(p, k)
            for k in range(10):
                g_ = lastx[k]
                while g_ in ev or (kind == 'first' and g_ <= o.sbg):
                    g_ += 1
                ev[g_] = rX(p, k + 10)
            BG = 48 + o.bgap if o.bou else 46 + o.bgap
            if kind != 'last':
                ev[BG], ev[BG + 1] = rX(p + 1, 0), rX(p + 1, 1)
                for k in range(2, 6):
                    ev[lastx[10 + k]] = rX(p + 1, k)
                for tn in range(4):
                    for i_, x in enumerate(rW(tn)):
                        if 66 + 4 * tn + i_ < 80:
                            ev[66 + 4 * tn + i_] = x
            sh_ = shadow() if kind == 'last' else []
            for gi in range(80):
                S.append(mf(gi, kind == 'first'))
                t = 4
                if o.dwalk and kind != 'last' and gi in (24, 40, 64, 7):
                    S += [f'L_dw{self.ndw}:', f's_cbranch_execz L_dw{self.ndw + 1}']
                    self.ndw += 1
                if kind == 'first' and gi == o.sbg:
                    S += (self.stamp(20) if o.itst == 2 else []) + ['s_barrier'] + (self.stamp(21) if o.itst == 2 else [])
                if kind != 'last' and gi == BG - 1:
                    st_ = lambda k: ([f's_cmp_lg_u32 s{S_LOOP}, 0', f's_cbranch_scc1 L_ns{k}'] + self.stamp(k) + [f'L_ns{k}:']) if (o.itst == 2 and p < 3) else []
                    S += ['s_waitcnt lgkmcnt(0)'] + st_(22 + 2 * p) + ['s_barrier'] + st_(23 + 2 * p)
                if gi in ev:
                    S.append(ev[gi]); t += 8
                if kind != 'last' and 8 <= gi < 12:
                    S.append(tog(gi - 8))
                if gi % 2 == 0 and gi + 2 < 80:
                    n_ = gi + 2
                    G, tn, a_ = n_ // 16, (n_ // 4) % 4, (n_ // 2) % 2
                    if tn == 0:
                        S.append(Touch(vr(XA + 4 * ((4 * G + 2 * a_) % 10), 8)))
                    if G == 0 and a_ == 0:
                        S.append(Touch(vr(WF + 16 + 4 * tn, 4)))
                if gi == 78 and kind != 'last':
                    S.append(Touch(vr(WF + 16, 4)))
                if loopend and gi == 48:
                    S += [f's_add_u32 s{S_LOOP}, s{S_LOOP}, 1', f's_cmp_lt_u32 s{S_LOOP}, 8']
                t = max(t, 8)
                while sh_ and gi >= o.sh0 and t + sh_[0][1] <= 16:
                    x, c_ = sh_.pop(0)
                    S.append(x); t += c_
            S += [x for x, _ in sh_]
            if kind == 'last':
                print('shadow left', len(sh_))
            return S
        self.ndw = 0
        if o.dwalk:
            L += ['s_mov_b64 exec, 0'] + [x for q_ in range(3) for x in (f's_cmp_eq_u32 s{S_WAVE}, {q_}', f's_cbranch_scc1 L_dw{4 * q_}')] + ['s_branch L_dw12', 'L_dw16:', 's_mov_b64 exec, -1']
        L += self.stamp(1) + ['s_barrier'] + [x for tn in range(4) for x in rW(tn)] + BI + ['s_waitcnt lgkmcnt(0)', f's_setprio {o.cprio}', 's_barrier'] + self.stamp(2)
        L += [rX(0, k) for k in range(2 * o.sa)] + cpair(0, 'first')
        cpre = self.seq(L)
        body = self.seq(['L_dnn_loop0:'])
        for p in range(1, 4):
            S = cpair(p, 'mid', p == 3)
            if p == 3:
                if o.stamps and o.itst == 1:
                    i_ = S.index('s_barrier')
                    S = S[:i_] + [f's_memtime s[{S_ST}:{S_ST + 1}]', f's_memrealtime s[{S_ST + 2}:{S_ST + 3}]', f's_or_b32 m0, s{S_LOOP}, 16', 's_waitcnt lgkmcnt(0)',
                                  f'v_writelane_b32 v252, s{S_ST}, m0', f'v_writelane_b32 v253, s{S_ST + 2}, m0', f's_cmp_lt_u32 s{S_LOOP}, 8'] + S[i_:]
                S += ['s_cbranch_scc1 L_dnn_loop0']
            body += self.seq(S)
        tc = c0 + cpre + body * 2 + self.seq(['L_tail:'])
        tc += self.seq(cpair(25, 'last') + pkreads(256, W2F) + [f'v_mov_b32 v{KONE}, 1.0', f'v_mov_b32 v{KONE + 1}, 1.0'])
        if o.burn:
            bl = [f's_movk_i32 s{S_LOOP}, {o.burn}', 'L_burn:'] + [f'v_mfma_f32_16x16x32_bf16 {vr(XA + 32 + 4 * (k % 2), 4)}, {vr(WF + 16 + 4 * (k % 4), 4)}, {vr(XA + 4 * (k // 4), 4)}, 0' for k in range(32)]
            tc += self.seq(bl + [f's_sub_u32 s{S_LOOP}, s{S_LOOP}, 1', f's_cmp_lg_u32 s{S_LOOP}, 0', 's_cbranch_scc1 L_burn'])
        tc += self.seq(['L_epi:'] + self.stamp(3))

        p2 = lambda r: vr(r, 2)
        seen = set()

        def gelu(groups):
            L = []
            for k, vals in enumerate(groups):
                tb = GT + (k % 2) * 16
                V_ = [(x, w, s_, tb + 4 * i_, tb + 4 * i_ + 2) for i_, (x, w, s_) in enumerate(vals)]
                for (x, w, s_, t, u) in V_:
                    L.append(f'v_pk_mul_f32 {p2(t)}, {p2(x)}, {p2(x)}')
                for (x, w, s_, t, u) in V_:
                    L.append(f'v_pk_fma_f32 {p2(t)}, {p2(t)}, {p2(KC1)}, {p2(KC0)}')
                for (x, w, s_, t, u) in V_:
                    L.append(f'v_pk_mul_f32 {p2(t)}, {p2(t)}, {p2(x)}')
                for (x, w, s_, t, u) in V_:
                    L += [f'v_exp_f32 v{t}, v{t}', f'v_exp_f32 v{t + 1}, v{t + 1}']
                for (x, w, s_, t, u) in V_:
                    L.append(f'v_pk_mul_f32 {p2(u)}, {p2(x)}, {p2(w)}')
                for (x, w, s_, t, u) in V_:
                    L.append(f'v_pk_add_f32 {p2(t)}, {p2(t)}, {p2(KONE)}')
                for (x, w, s_, t, u) in V_:
                    L += [f'v_rcp_f32 v{t}, v{t}', f'v_rcp_f32 v{t + 1}, v{t + 1}']
                for (x, w, s_, t, u) in V_:
                    if s_ in seen:
                        L.append(f'v_pk_fma_f32 {p2(s_)}, {p2(t)}, {p2(u)}, {p2(s_)}')
                    else:
                        L.append(f'v_pk_mul_f32 {p2(s_)}, {p2(t)}, {p2(u)}')
                        seen.add(s_)
            return L
        el = lambda tn, tm, d: (acc(tn, tm) + 2 * d, W2F + 4 * tn + 2 * d, SUMP + 2 * tm)
        allel = [el(tn, 2 * tp + a_, d) for tp in range(5) for tn in range(4) for d in range(2) for a_ in range(2)]
        rest = [e for e in allel if e[0] >= ACC + nsh]
        if o.rshare:
            assert nsh % 8 == 0
            KS = 84
            quads = [[el(2 * h + t_, tm, d) for t_ in range(2) for d in range(2)] for tm in range(10) for h in range(2)]
            quads = [q_ for q_ in quads if q_[0][0] >= ACC + nsh]
            order = sorted(range(len(quads)), key=lambda i_: (i_ // 4, i_ % 2, i_))
            quads = [quads[i_] for i_ in order]
            L = [f'v_mov_b32 v{KS}, {f32hex(-24.0)}', f'v_mov_b32 v{KS + 1}, {f32hex(-24.0)}', f'v_mov_b32 v{KS + 2}, {f32hex(2.0 ** 24)}', f'v_mov_b32 v{KS + 3}, {f32hex(2.0 ** 24)}']
            for k in range(0, len(quads), 2):
                Qs = quads[k:k + 2]
                V_ = [(x, w, GT + 16 * j_ + 4 * i_, GT + 16 * j_ + 4 * i_ + 2) for j_, q_ in enumerate(Qs) for i_, (x, w, s_) in enumerate(q_)]
                L += [f'v_pk_mul_f32 {p2(t)}, {p2(x)}, {p2(x)}' for (x, w, t, u) in V_]
                L += [f'v_pk_fma_f32 {p2(t)}, {p2(t)}, {p2(KC1)}, {p2(KC0)}' for (x, w, t, u) in V_]
                L += [f'v_pk_fma_f32 {p2(t)}, {p2(t)}, {p2(x)}, {p2(KS)}' for (x, w, t, u) in V_]
                L += [f'v_exp_f32 v{t + e_}, v{t + e_} clamp' for (x, w, t, u) in V_ for e_ in range(2)]
                if k == 0:
                    L += unp(W2F)
                L += [f'v_pk_mul_f32 {p2(u)}, {p2(x)}, {p2(w)}' for (x, w, t, u) in V_]
                L += [f'v_pk_fma_f32 {p2(t)}, {p2(t)}, {p2(KS + 2)}, {p2(KONE)}' for (x, w, t, u) in V_]
                for prs in ([(0, 1), (2, 3)], [(0, 2)]):
                    M_ = [(V_[4 * j_ + a_], V_[4 * j_ + b_]) for j_ in range(len(Qs)) for a_, b_ in prs]
                    L += [f'v_pk_mul_f32 {p2(A_[3])}, {p2(A_[3])}, {p2(B_[2])}' for A_, B_ in M_]
                    L += [f'v_pk_fma_f32 {p2(A_[3])}, {p2(B_[3])}, {p2(A_[2])}, {p2(A_[3])}' for A_, B_ in M_]
                    L += [f'v_pk_mul_f32 {p2(A_[2])}, {p2(A_[2])}, {p2(B_[2])}' for A_, B_ in M_]
                L += [f'v_rcp_f32 v{V_[4 * j_][2] + e_}, v{V_[4 * j_][2] + e_}' for j_ in range(len(Qs)) for e_ in range(2)]
                for j_, q_ in enumerate(Qs):
                    s_, t, u = q_[0][2], V_[4 * j_][2], V_[4 * j_][3]
                    L.append(f'v_pk_fma_f32 {p2(s_)}, {p2(t)}, {p2(u)}, {p2(s_)}' if s_ in seen else f'v_pk_mul_f32 {p2(s_)}, {p2(t)}, {p2(u)}')
                    seen.add(s_)
        else:
            L = gelu([rest[i:i + 4] for i in range(0, len(rest), 4)])
            L = L[:20] + unp(W2F) + L[20:]
        for (x, w, s_) in allel:
            if x < ACC + nsh:
                L.append(f'v_pk_fma_f32 {p2(s_)}, {p2(x)}, {p2(w)}, {p2(s_)}' if s_ in seen else f'v_pk_mul_f32 {p2(s_)}, {p2(x)}, {p2(w)}')
                seen.add(s_)
        sm = lambda tm: SUMP + 2 * tm
        L += [f'v_add_f32 v{sm(tm)}, v{sm(tm)}, v{sm(tm) + 1}' for tm in range(10)]
        L += [f'v_permlane32_swap_b32 v{sm(tm)}, v{sm(tm + 1)}' for tm in range(0, 10, 2)]
        L += [f'v_add_f32 v{sm(tm)}, v{sm(tm)}, v{sm(tm + 1)}' for tm in (8, 0, 2, 4, 6)]
        L += [f'v_mov_b32 v{sm(9)}, v{sm(8)}', f'v_permlane16_swap_b32 v{sm(0)}, v{sm(2)}', f'v_permlane16_swap_b32 v{sm(4)}, v{sm(6)}',
              f'v_permlane16_swap_b32 v{sm(8)}, v{sm(9)}',
              f'v_add_f32 v{sm(0)}, v{sm(0)}, v{sm(2)}', f'v_add_f32 v{sm(4)}, v{sm(4)}, v{sm(6)}', f'v_add_f32 v{sm(8)}, v{sm(8)}, v{sm(9)}',
              f'ds_write_b32 v{vPc}, v{sm(0)}', f'ds_write_b32 v{vPc}, v{sm(4)} offset:256',
              's_mov_b32 exec_lo, 0xffff', 's_mov_b32 exec_hi, 0xffff', f'ds_write_b32 v{vPc}, v{sm(8)} offset:512', 's_mov_b64 exec, -1']
        L += ['s_waitcnt lgkmcnt(0)'] + self.stamp(4) + self.stamp_flush() + ['s_barrier', 's_endpgm']
        tc += self.seq(L)

        def wstage(slot):
            c = []
            for u in range(2):
                c += [f's_add_u32 m0, s{S_WMB}, {WR + slot * WSLOT + u * 1024}',
                      I(f'buffer_load_dwordx4 v{vWD[u]}, {srd(SRD_W)}, s{S_WSOFF} offen lds', tag='W')]
            return c + [f's_add_u32 s{S_WSOFF}, s{S_WSOFF}, {32 * 3328}']

        Q, TM, BP = 16, 56, [12, 13]
        TI, vWT = 70, 76
        SP = [36, 37, 38, 39, 40, 41, 42, 43, 48, 49]
        SI = [94, 95, 96, 97, 98, 99, 100, 101, 82, 83]

        def xaddr(f, pcs):
            c = []
            for odd in range(2):
                p_ = f + 26 * odd
                for pc in pcs:
                    c.append(f'v_add_u32_dpp v{TM + pc}, v{Q + 4 * pc + p_ % 4}, v{vCh[0]} row_newbcast:{p_ >> 2} row_mask:0xf bank_mask:{(3, 12)[odd]:#x}')
            return c

        def xld(pc, slot, tag='X'):
            return [f's_add_u32 m0, s{S_XM0}, {slot * XSLOT + pc * 2048}',
                    I(f'buffer_load_dwordx4 v{TM + pc}, {srd(SRD_TAB)}, 0 offen lds', tag=tag)]
        idxl = [f'buffer_load_dwordx4 {vr(Q + 4 * pc, 4)}, v{BP[0]}, {srd(SRD_IDX)}, s{SI[pc // 2]} offen offset:{(pc % 2) * 1664}' for pc in range(10)]
        LO, HI = range(5), range(5, 10)
        NR = (22 + o.tf - 1) // o.tf
        lw = S_CW
        self.mk0 = len(self.P.static)
        L = [f's_lshr_b32 s{S_T0}, s{lw}, 1', f's_mul_i32 s{S_T0}, s{S_T0}, 20', f's_and_b32 s{S_T1}, s{lw}, 1', f's_add_u32 s{S_T0}, s{S_T0}, s{S_T1}',
             f's_lshl_b32 s{S_XM0}, s{S_T0}, 10', f's_mul_i32 s{S_C0}, s{S_T3}, 104', f's_mul_i32 s{S_T0}, s{S_T0}, 832', f's_add_u32 s{SI[0]}, s{S_C0}, s{S_T0}',
             f'v_mul_u32_u24 v{q}, 48, v{g}', f'v_sub_u32 v{BP[0]}, v{vBL}, v{q}']
        L += [f's_add_u32 s{SI[k]}, s{SI[0]}, {k * 2 * 1664}' for k in range(1, 5)]
        L += [f's_and_b32 s{S_T2}, s{lw}, 1', f's_lshl_b32 s{S_T2}, s{S_T2}, 3',
              f'v_lshlrev_b32 v{i4}, 1, v{g}', f'v_or_b32 v{i4}, s{S_T2}, v{i4}', f'v_xor_b32 v{i4}, v{i4}, v0', f'v_and_b32 v{i4}, 15, v{i4}',
              f'v_mul_u32_u24 v{vWD[0]}, 3328, v{g}', f'v_lshl_add_u32 v{vWD[0]}, v{i4}, 4, v{vWD[0]}', f'v_add_u32 v{vWD[1]}, {4 * 3328}, v{vWD[0]}',
              f's_mul_i32 s{S_WSOFF}, s{lw}, {8 * 3328}', f's_add_u32 s{S_WSOFF}, s{S_WSOFF}, s{S_N0}', f's_lshl_b32 s{S_WMB}, s{lw}, 11',
              's_waitcnt lgkmcnt(0)']
        L += self.build_srd(SRD_IDX, S_IDX, 4096 * 104) + idxl[:o.i0] + self.tlb1(T + 14, T + 15) + self.build_srd(SRD_W, S_W1, 1664 * 3328)
        for sl in range(o.w0):
            L += wstage(sl)
        L += self.stamp0() + idxl[o.i0:]
        for sl in range(o.w0, 2):
            L += wstage(sl)
        L += [f's_lshl_b32 s{S_T2}, s{S_T1}, 6',
              f'v_and_b32 v{q}, 7, v0', f'v_xor_b32 v{q}, v{q}, v{g}', f'v_lshlrev_b32 v{q}, 4, v{q}', f'v_xor_b32 v{vCh[0]}, s{S_T2}, v{q}', f'v_xor_b32 v{vCh[1]}, 64, v{vCh[0]}',
              f's_mov_b32 s{S_LOOP}, 0',
              f's_mul_i32 s{S_T2}, s{lw}, 13', f's_add_u32 s{S_T2}, s{S_T2}, s{S_R}', f's_min_u32 s{S_T2}, s{S_T2}, 39', f's_lshl_b32 s{S_T2}, s{S_T2}, 3',
              f's_add_u32 s{S_T2}, s{S_T2}, s{S_T3}', f's_mul_i32 s{S_GRP}, s{S_T2}, 104',
              f'v_lshrrev_b32 v{q}, {o.tf.bit_length() - 1}, v0', f'v_min_u32 v{q}, 7, v{q}', f'v_mul_u32_u24 v{q}, 104, v{q}',
              f'v_and_b32 v{i4}, {o.tf - 1}, v0', f'v_lshl_add_u32 v7, v{i4}, 2, v{q}',
              f's_lshl_b32 s{S_T2}, s{S_MB}, 2', f's_add_u32 s{S_T2}, s{S_T2}, s{lw}', f's_add_u32 s{S_T2}, s{S_T2}, {o.tw0 * 32}', f's_mul_i32 s{S_RC}, s{S_T2}, 3328',
              f's_add_u32 s{S_RC}, s{S_RC}, s{S_N0}', f's_mov_b32 s{S_T2}, {52 * 3328}',
              f'v_lshrrev_b32 v{q}, 1, v0', f'v_mul_lo_u32 v{q}, s{S_T2}, v{q}', f'v_and_b32 v{i4}, 1, v0', f'v_lshl_add_u32 v{vWT}, v{i4}, 7, v{q}']
        L += self.build_srd(SRD_W2, S_W2, 3328)
        L += [f's_mul_i32 s{S_T2}, s{lw}, {o.lpf * 128}', f's_add_u32 s{S_T2}, s{S_T2}, L_tail-L_pc', f'v_lshlrev_b32 v8, 7, v0', f'v_add_u32 v8, s{S_T2}, v8',
              f'v_mov_b32 v9, s{S_MASK + 1}', f'v_add_co_u32 v8, vcc, s{S_MASK}, v8', 'v_addc_co_u32 v9, vcc, 0, v9, vcc']
        sh = lambda pc, c_: f'v_lshlrev_b32 v{Q + 4 * pc + c_}, 7, v{Q + 4 * pc + c_}'
        for pc in range(10):
            L += [sh(pc, 0), sh(pc, 2), sh(pc, 1), sh(pc, 3)] + xaddr(0, [pc]) + xld(pc, 0, 'X0a' if pc < o.sa else 'X0')
            if pc == 0:
                L += self.stamp(6)
            if pc == o.bwat:
                L += [WaitTag(vm_tags=['W']), 's_barrier']
        L += self.stamp(7)
        x1 = [x for pc in range(10) for x in xaddr(1, [pc]) + xld(pc, 1)]
        L += x1[:4 * o.x1n] + [WaitTag(vm_tags=['X0a'])] + self.stamp(1) + ['s_barrier'] + self.probe('s0') + x1[4 * o.x1n:4 * o.x1m]
        L += [WaitTag(vm_tags=['X0']), 's_barrier'] + x1[4 * o.x1m:] + wstage(2) + wstage(3) + xaddr(2, range(10))
        x2 = [x for pc in range(10) for x in xld(pc, 2)]
        L += x2[:2 * o.x2n] + [WaitTag(vm_tags=['W']), 's_barrier'] + x2[2 * o.x2n:] + xaddr(3, range(10))
        lpre = self.seq(L + [f's_setprio {o.lprio}', 's_branch L_ld_in'])
        del self.P.static[self.mk0:]
        self.P.static[self.ldat:self.ldat] = lpre
        self.mk0 = len(self.P.static)

        def lpair(p):
            S = ['s_barrier'] + (['L_ld_in:'] if p == 0 else []) + wstage(2 * (p % 2)) + wstage(2 * (p % 2) + 1)
            f2 = p + 4
            for pc in range(10):
                x = xld(pc, p % 3)
                S += [x[0]] + (xaddr(f2, [pc - 1])[:1] if pc else []) + [x[1]] + (xaddr(f2, [pc - 1])[1:] if pc else [])
            S += xaddr(f2, [9])
            if p >= 10:
                S += [f'v_mov_b32_dpp v{Q + 4 * pc + c_}, v{Q + 4 * pc + c_} row_shl:3 row_mask:0xf bank_mask:0xf' for pc in range(10) for c_ in ((0, 2) if p == 10 else (1, 3))]
            if p == 11:
                S += [f's_add_u32 s{S_LOOP}, s{S_LOOP}, 1', f's_cmp_lt_u32 s{S_LOOP}, 2']
            return S + [WaitTag(vm_tags=['W'])]
        body = self.seq(['L_dnn_loop1:'])
        for p in range(12):
            if p == 8 and o.lpf:
                body += self.seq([f's_cmp_lg_u32 s{S_LOOP}, 1', 's_cbranch_scc1 L_nolpf'])
                self.seq([f's_mov_b64 exec, {(1 << o.lpf) - 1}', 'global_load_dword v10, v[8:9], off', 's_mov_b64 exec, -1'] + small(SRD_W2, L_W2))
                body += self.seq(['L_nolpf:'])
            body += self.seq(lpair(p) + (['s_cbranch_scc1 L_dnn_loop1'] if p == 11 else []))
        tl = c0 + lpre + body * 2 + self.seq(['s_branch L_ld_tail'])
        self.ldblk = self.P.static[self.mk0:]
        del self.P.static[self.mk0:]
        tl += self.seq(['L_ld_tail:', 's_barrier'] + self.tlb2(T) + ['s_mov_b64 exec, 1', f'buffer_load_dword v250, v{T}, {srd(SRD_DBG)}, 0 offen offset:240 sc1', 's_mov_b64 exec, -1'])
        tl += self.seq(self.probe('s50'))
        if o.walk:
            tl += self.seq([f's_cmp_eq_u32 s{lw}, 0', 's_cbranch_scc1 L_wkd', 's_mov_b64 exec, 0', f's_cmp_eq_u32 s{lw}, 1', 's_cbranch_scc1 L_wk0',
                            f's_cmp_eq_u32 s{lw}, 2', f's_cbranch_scc1 L_wk{np_ // 3}', f's_branch L_wk{2 * np_ // 3}', 'L_wkd:'])
        A = 64
        L = [f's_cmp_lg_u32 s{S_WAVE}, 4', 's_cbranch_scc1 L_end',
             f'v_lshlrev_b32 v3, 4, v0', f'v_lshlrev_b32 v4, 2, v0', f'v_add_u32 v1, {RB}, v3', f'v_add_u32 v2, {RB + 1024}, v4', f'v_add_u32 v4, 1024, v4',
             'v_mov_b32 v5, 32', f'v_mov_b32 v7, s{S_MB}',
             f's_mul_i32 s{S_T0}, s{S_MB}, 1280', f's_mul_i32 s{S_T1}, s{S_R}, {WSP}', f's_add_u32 s{S_T1}, s{S_T1}, s{S_T0}', 's_setprio 3']
        if o.sent:
            L += [f'v_mov_b32 v{A + k}, -1' for k in range(4)] + [f'buffer_store_dwordx4 {vr(A, 4)}, v3, {srd(SRD_WS)}, s{S_T1} offen sc1',
                  f'buffer_store_dword v{A}, v4, {srd(SRD_WS)}, s{S_T1} offen sc1', 's_waitcnt vmcnt(0)']
        L += self.stamp_flush() + ['s_barrier'] + self.probe('dend')
        L += [f'ds_read_b128 {vr(A, 4)}, v1', f'ds_read_b128 {vr(A + 8, 4)}, v1 offset:1280', f'ds_read2st64_b32 {vr(A + 4, 2)}, v2 offset0:0 offset1:5',
              f'v_pk_add_f32 {p2(A)}, {p2(A)}, {p2(A + 8)}', f'v_pk_add_f32 {p2(A + 2)}, {p2(A + 2)}, {p2(A + 10)}', f'v_add_f32 v{A + 4}, v{A + 4}, v{A + 5}']
        if o.sent:
            L += [f'v_min_u32 v{A + k}, -2, v{A + k}' for k in range(5)]
        L += (self.stamp(16) if o.diag else [])
        L += [f'buffer_store_dwordx4 {vr(A, 4)}, v3, {srd(SRD_WS)}, s{S_T1} offen sc1',
              f'buffer_store_dword v{A + 4}, v4, {srd(SRD_WS)}, s{S_T1} offen sc1', 's_mov_b64 exec, 1']
        tl += self.seq(L)

        L = ['L_pub:']
        if o.skew:
            L += ['v_mov_b32 v20, s86', 'v_mov_b32 v21, s86', 'v_mov_b32 v22, s88', 's_lshl_b32 s89, s2, 7', 's_add_u32 s89, s89, 0x40000', 'v_lshlrev_b32 v23, 28, v0',
                  f'buffer_store_dwordx3 v[20:22], v23, {srd(SRD_WS)}, s89 offen sc1']
        def loads():
            c = [f's_mul_i32 s{S_T0}, s{S_T3}, 1280']
            for qq in range(14):
                c += [f'buffer_load_dwordx4 {vr(A + 8 * qq, 4)}, v3, {srd(SRD_WS)}, s{S_T0} offen sc1',
                      f'buffer_load_dword v{A + 8 * qq + 4}, v4, {srd(SRD_WS)}, s{S_T0} offen sc1', f's_add_u32 s{S_T0}, s{S_T0}, {WSP}']
            return c
        R_ = 56
        L += ['v_lshlrev_b32 v6, 4, v7'] + ([] if o.sent else ['s_waitcnt vmcnt(0)']) + ['v_mov_b32 v13, v5', f'buffer_atomic_add v5, v6, {srd(SRD_DBG)}, 0 offen sc0',
              'v_cmp_eq_u32 vcc, 12, v7', 'v_mov_b32 v8, 436', 'v_mov_b32 v9, 434', 'v_cndmask_b32 v8, v8, v9, vcc', 'v_sub_u32 v8, v8, v13']
        if o.spec:
            L += [f's_mov_b64 s[{S_MASK}:{S_MASK + 1}], exec', 's_mov_b64 exec, -1', f'v_readfirstlane_b32 s{S_T3}, v7'] + loads() + [f's_mov_b64 exec, s[{S_MASK}:{S_MASK + 1}]']
            L += ['s_waitcnt vmcnt(0) lgkmcnt(0)']
        else:
            L += ['s_waitcnt vmcnt(0) lgkmcnt(0)']
        L += (self.stamp(18) if o.diag else []) + [
             f'v_cmp_eq_u32 s[{S_EX}:{S_EX + 1}], v5, v8', 's_mov_b64 exec, -1', f's_lshl_b32 s{S_BOUT}, s{S_BOUT}, 16',
             'v_lshrrev_b32 v1, 1, v3', 'v_lshrrev_b32 v2, 1, v4']
        if o.spec:
            L += [f's_bitcmp1_b32 s{S_EX}, 0', f's_bitset0_b32 s{S_EX}, 0', 's_cbranch_scc1 L_sum']
        pa = self.seq(L)
        L = ['L_fin:', f's_cmp_eq_u32 s{S_EX}, 0', 's_cbranch_scc1 L_done',
             f's_ff1_i32_b32 s{S_T2}, s{S_EX}', f's_bitset0_b32 s{S_EX}, s{S_T2}', f'v_readlane_b32 s{S_T3}, v7, s{S_T2}', 's_waitcnt vmcnt(0)', 'L_again:'] + loads()
        pb = self.seq(L)
        L = ['L_sum:', f'v_pk_add_f32 {p2(R_)}, {p2(A)}, {p2(A + 8)}', f'v_pk_add_f32 {p2(R_ + 2)}, {p2(A + 2)}, {p2(A + 10)}', f'v_add_f32 v{R_ + 4}, v{A + 4}, v{A + 12}']
        for qq in range(2, 14):
            L += [f'v_pk_add_f32 {p2(R_)}, {p2(R_)}, {p2(A + 8 * qq)}', f'v_pk_add_f32 {p2(R_ + 2)}, {p2(R_ + 2)}, {p2(A + 8 * qq + 2)}',
                  f'v_add_f32 v{R_ + 4}, v{R_ + 4}, v{A + 8 * qq + 4}']
        if o.sent:
            L += [f'v_cmp_u_f32 vcc, v{R_}, v{R_ + 1}', f'v_cmp_u_f32 s[{S_MASK}:{S_MASK + 1}], v{R_ + 2}, v{R_ + 3}', f's_or_b64 s[{S_MASK}:{S_MASK + 1}], s[{S_MASK}:{S_MASK + 1}], vcc',
                  f'v_cmp_u_f32 vcc, v{R_ + 4}, v{R_ + 4}', f's_or_b64 vcc, s[{S_MASK}:{S_MASK + 1}], vcc', 's_cbranch_vccnz L_chk', 'L_ok:']
        L += [f's_mul_i32 s{S_T3}, s{S_T3}, 640']
        A0 = A
        A = R_
        L += [f'v_add_f32 v{A + k}, s{S_BOUT}, v{A + k}' for k in range(5)]
        L += [f'v_cvt_pk_bf16_f32 v10, v{A}, v{A + 1}', f'v_cvt_pk_bf16_f32 v11, v{A + 2}, v{A + 3}', f'v_cvt_pk_bf16_f32 v12, v{A + 4}, v{A + 4}',
              f'buffer_store_dwordx2 v[10:11], v1, {srd(SRD_OUT)}, s{S_T3} offen', f'buffer_store_short v12, v2, {srd(SRD_OUT)}, s{S_T3} offen']
        if o.skew:
            L += [f's_cmp_lg_u32 s{S_EX}, 0', 's_cbranch_scc1 L_fin', 'v_lshlrev_b32 v20, 7, v0', 's_mov_b32 s88, 0x40000']
            for k in range(4):
                L += [f'buffer_load_dwordx3 v[{32 + 4 * k}:{34 + 4 * k}], v20, {srd(SRD_WS)}, s88 offen sc1', 's_add_u32 s88, s88, 8192']
            L += ['s_waitcnt vmcnt(0)']
            if o.probe.startswith('st') or o.absol:
                L += ['s_memrealtime s[88:89]', 's_waitcnt lgkmcnt(0)', 'v_mov_b32 v26, 0', 'v_mov_b32 v27, 0']
                for k in range(4):
                    L += [f'v_sub_u32 v28, s88, v{32 + 4 * k}', 'v_cmp_gt_u32 vcc, 4500, v28', f'v_not_b32 v29, v{32 + 4 * k}', 'v_cndmask_b32 v29, 0, v29, vcc', 'v_max_u32 v27, v27, v29']
                    if o.absol:
                        L += [f'v_cndmask_b32 v29, 0, v{34 + 4 * k}, vcc', 'v_max_u32 v26, v26, v29']
                    elif str(k) in o.probe[2:]:
                        L += [f'v_cndmask_b32 v29, 0, v{32 + 4 * k}, vcc', 'v_max_u32 v26, v26, v29']
            else:
                for k in range(4):
                    L += [f'v_sub_u32 v28, v{34 + 4 * k}, v{32 + 4 * k}', 'v_cmp_gt_u32 vcc, 5000, v28', f'v_cndmask_b32 v28, 0, v28, vcc',
                          f'v_cmp_eq_u32 vcc, v{32 + 4 * k}, v{33 + 4 * k}', f'v_cndmask_b32 v{33 + 4 * k}, 0, v28, vcc']
                L += ['v_max_u32 v26, v33, v37', 'v_max3_u32 v26, v26, v41, v45', 'v_mov_b32 v27, -1']
            if o.probe == 'span':
                L += ['s_memrealtime s[86:87]', 's_waitcnt lgkmcnt(0)', 'v_mov_b32 v26, s86']
            for (ctl, rm) in (('row_shr:1', '0xf'), ('row_shr:2', '0xf'), ('row_shr:4', '0xf'), ('row_shr:8', '0xf'), ('row_bcast:15', '0xa'), ('row_bcast:31', '0xc')):
                L += [f'v_max_u32_dpp v{r}, v{r}, v{r} {ctl} row_mask:{rm} bank_mask:0xf' for r in (26, 27)]
            L += ['v_not_b32 v27, v27', 'v_sub_u32 v22, v26, v27', 's_memrealtime s[86:87]', 'v_readlane_b32 s88, v22, 63', 's_waitcnt lgkmcnt(0)',
                  's_min_u32 s88, s88, 5000', f's_mul_i32 s88, s88, {o.skew - 1}', 's_add_u32 s88, s88, s86',
                  'L_spin:', 's_memrealtime s[86:87]', 's_waitcnt lgkmcnt(0)', 's_sub_u32 s89, s88, s86', 's_cmp_gt_i32 s89, 0', 's_cbranch_scc1 L_spin']
        L += self.stamp(5) + self.stamp_flush() + ['s_branch L_fin']
        pc_ = self.seq(L)
        if o.sent:
            L = ['L_chk:', 'v_mov_b32 v14, 0', 'v_mov_b32 v15, 0']
            for qq in range(14):
                L += [f'v_max3_u32 v14, v14, v{A0 + 8 * qq}, v{A0 + 8 * qq + 1}', f'v_max3_u32 v14, v14, v{A0 + 8 * qq + 2}, v{A0 + 8 * qq + 3}', f'v_max_u32 v15, v15, v{A0 + 8 * qq + 4}']
            L += [f's_cmp_eq_u32 s{S_T3}, 12', f's_cselect_b32 s{S_T0}, 0, -1', f'v_and_b32 v15, s{S_T0}, v15', 'v_max_u32 v14, v14, v15',
                  'v_cmp_eq_u32 vcc, -1, v14', 's_cbranch_vccnz L_again', 's_branch L_ok']
            self.chk = self.seq(L)
        pe = self.seq(['L_done:', 's_endpgm'])
        self.pub = pa + pb + pc_ + pe
        self.extra_traces = [pa + pc_ + pb + pc_] + ([pa + pb + pc_[:45] + self.chk + pb[7:] + pc_] if o.sent else [])
        return [tc, tl + self.pub]

    def pubsrd(self):
        return self.build_srd(SRD_WS, S_WS, 0x10000000) + self.build_srd(SRD_OUT, S_OUT, 8192) + self.build_srd(SRD_DBG, S_DBG, 256)

    def tables(self):
        OOB = 0x100000
        G = [[] for _ in range(11)]
        for l in range(64):
            half, i32, g, r, c = l >> 5, l & 31, l >> 4, (l >> 2) & 3, l & 3
            lin0 = g * 128 + r * XPP + c * 8
            G[0] += [lin0, lin0 + 512 if g < 3 else XOFF(27) + c * 8, (l >> 3) * 16, 0x3f803f80 if l < 32 else 0]
            G[1] += [(l & 7) * 16, 0xeeee if l & 1 else 0x4444, half * XPP + i32 * 4, IMG + half * 20 * IMGP + i32 * 4]
            tr = [IMG + cin16.IMGROW(cin16.LAB[g][2 * rp + (r >> 1)][r & 1]) * IMGP + c * 8 for rp in range(8)]
            G[2] += tr[:4]
            G[3] += tr[4:]
            row, col = 8 * half + r, (g & 1) * 32 + c * 8
            G[4] += [V3OFF + row * 64 + col, A1 + row * 1352 + col, A1 + min(row + 16, 25) * 1352 + col, A1 + min(row + 20, 25) * 1352 + col]
            t, gd, rr = (i32 >> 2) & 1, i32 >> 3, i32 & 3
            ig = 16 * t + 4 * rr + gd
            iq = 4 * rr + gd if t == 0 else 16 + ((4 * rr + gd + 4) & 15)
            pm = []
            for q in range(8):
                k0 = 16 * (q >> 2) + 8 * half + 2 * (q & 3)
                pm.append((0xffff if iq == k0 else 0xffff0000 if iq == k0 + 1 else 0) if iq < 26 else 0)
            G[5] += pm[:4]
            G[6] += pm[4:]
            ga = A2 + 52 * ig if ig < 26 else OOB
            rowp = ((l & 12) + 2 * (l & 1)) * 16 + (OOB if l & 2 else 0)
            G[7] += [ga + half * 8 * W2P, ga + half * OOB, rowp + half * 256 + (g & 1) * 8, rowp + g * 256]
            G[8] += [SG + i32 * 64 if i32 < 26 else V2S if i32 == 26 else OOB, 64 if i32 == 26 else 3328, (i32 >> 1) + 2 * half,
                     SQ + i32 * 64 + ((((i32 >> 1) & 3) ^ (2 * half)) << 4)]
            v2 = []
            for hf in range(2):
                j = 4 * g + 16 * hf + r
                v2.append(V2S + (j & 1) * 1664 + (j >> 1) * 64 + ((c ^ (((13 + j) & 3) * 2)) * 8) if j < 26 else SG + 676 * 64 + c * 8)
            wo = [L_WCO + 2 * (16 * tl_ + 4 * c + r) if 16 * tl_ + 4 * c + r < 26 else OOB for tl_ in range(2)]
            G[9] += v2 + wo
            G[10] += [L_WCO + 104 + 16 * half, L_WCO + 52 + 2 * l, V3OFF + 52 + 64 * l, SG + 676 * 64 + (l & 15) * 4]
        U = []
        for w in range(8):
            for e in range(16):
                for u in (w, w + 8, w + 16):
                    U += [SG + row * 64 + f * 8 for row, f in cin16.p2rows(u, e >> 2, e & 3)] if u < 22 else [0, 0]
        return [x for n in (4, 2, 3, 0, 5, 6, 7, 8, 9, 1, 10) for x in G[n]] + [0] * 256 + U + [0] * 256

    def cin(self):
        o = self.opt
        cw = S_CW
        vFa, vLin0, vLin1, vXi0, vXi1, vC16, vIDX, vXa, vIw, vPWL, vPXL, PXR, PFR = 1, 4, 5, 6, 7, 8, 9, 10, 11, 12, 13, 3, 14
        XI, vTR = 16, 20
        XR, P, Z, WF, D = 32, 60, 116, 164, 184
        vStg, vFR, vFw = vFa, 2, 59
        t3, t4, t5 = 29, 30, 31
        AV = [28, 58]
        PM = 216
        vA3, vBs0, vBs1a, vBs1b, vGa, vGb, vT3, vT3d = range(224, 232)
        G8, vV2r, vV2q, vWo, AD = 232, 236, 237, 238, 240
        WA = list(range(244, 250))
        vS, vMx = 250, 111
        UA, UX = 224, [232, 233, 234, 235, 240, 241]
        AFR = 112
        BALL, DALL = 60, 120
        S_F1, S_F2, S_G, S_LO, S_HI, S_CM, S_U0, S_U1, S_U2 = 74, 75, 95, 96, 97, 90, 98, 99, 100
        S_CG, S_IV = 0, 1
        OOB = 0x100000
        TA_, TB_, TC_ = SG + 35840, SQ + 26 * W2P, FRS + 2048
        GREG = [224, 20, 24, 4, 216, 220, 228, 232, 236, 8, 240]
        DPPS = (('row_shr:1', '0xf'), ('row_shr:2', '0xf'), ('row_shr:4', '0xf'), ('row_shr:8', '0xf'),
                ('row_bcast:15', '0xa'), ('row_bcast:31', '0xc'))

        K_W7, K_IMG, K_W2, K_W1, K_W12, K_H8, K_T3 = 44, 45, 46, 47, 92 - 10, 92 - 9, 101
        L = ['L_cin:', f'v_lshlrev_b32 v{vStg}, 4, v0', f's_and_b32 s{cw}, s{S_WAVE}, 3', f's_lshr_b32 s{S_GRP}, s{S_WAVE}, 2', f's_lshl_b32 s{S_STG}, s{cw}, 10',
             f's_mul_i32 s{S_MB}, s{S_T0}, 11', f's_add_u32 s{S_MB}, s{S_MB}, s{S_T1}', f's_sub_u32 s{S_MB}, s{S_MB}, 22',
             f's_cmp_eq_u32 s{S_MB}, 86', 's_cbranch_scc1 L_end', f's_cmp_eq_u32 s{S_GRP}, 0', 's_cbranch_scc1 L_sc']
        c0 = self.seq(L)
        L = ['s_setprio 2', f'v_add_u32 v2, L_tables-L_pc+4096, v{vStg}', f'v_mov_b32 v3, s{S_MASK + 1}',
             f'v_add_co_u32 v2, vcc, s{S_MASK}, v2', 'v_addc_co_u32 v3, vcc, 0, v3, vcc',
             f'v_add_co_u32 v{XR}, vcc, s{S_STG}, v2', f'v_addc_co_u32 v{XR + 1}, vcc, 0, v3, vcc',
             f'global_load_dwordx4 {vr(GREG[0], 4)}, v[2:3], off offset:-4096',
             'v_add_co_u32 v2, vcc, 0x1800, v2', 'v_addc_co_u32 v3, vcc, 0, v3, vcc', f'global_load_dwordx4 {vr(GREG[10], 4)}, v[2:3], off',
             f's_cmp_lt_u32 s{cw}, 3', f's_mov_b32 s{S_T2}, {TB_ - 3072}', f's_cselect_b32 s{S_T2}, {TA_ + 4096}, s{S_T2}']
        tdma = lambda off: I(f'global_load_lds_dwordx4 {vr(XR, 2)}, off offset:{off}', tag='TAB')
        L += [f's_add_u32 m0, s{S_STG}, {TA_ + 4096}', tdma(-4096), f's_add_u32 m0, s{S_STG}, s{S_T2}', tdma(0),
              f'v_add_co_u32 v{XR}, vcc, 0x2000, v{XR}', f'v_addc_co_u32 v{XR + 1}, vcc, 0, v{XR + 1}, vcc',
              f's_add_u32 m0, s{S_STG}, {TC_}', tdma(0), f's_add_u32 m0, s{S_STG}, {TB_ + 1024 + 4096}', f's_cmp_ge_u32 s{cw}, 2', 's_cbranch_scc1 L_sc']
        g1s = self.seq(L)
        L = [tdma(-4096)]
        g1t = self.seq(L)
        L = ['L_sc:', f's_mul_i32 s{S_RC}, s{S_GRP}, 20', f's_add_u32 s{S_RC}, s{S_RC}, s{S_WAVE}',
             f's_mul_i32 s{S_SAMP}, s{S_MB}, 48', f's_add_u32 s{S_SAMP}, s{S_SAMP}, s{S_RC}', f's_mul_i32 s{S_SAMP}, s{S_SAMP}, 104',
             f'v_lshrrev_b32 v{t4}, 3, v0', f'v_lshlrev_b32 v{t4}, 4, v{t4}', f'v_and_b32 v{t3}, 0x70, v{vStg}',
             f's_mul_i32 s{S_XM0}, s{S_WAVE}, {XBSZ}', f's_add_u32 s{S_XM0}, s{S_XM0}, {XB}', f's_cmp_eq_u32 s{S_GRP}, 0', 's_cbranch_scc1 L_g0']
        csc = self.seq(L)
        SC2 = [f's_lshl_b32 s{S_RC}, s{S_RC}, 2', f's_add_u32 s{S_RC}, s{S_RC}, {RC}',
               f's_mul_i32 s{S_LOOP}, s{S_GRP}, 3', f's_sub_u32 s{S_LOOP}, 4, s{S_LOOP}', (f's_cmp_eq_u32 s{S_MB}, 85', f's_cselect_b32 s{S_LOOP}, s{S_LOOP}, 6'),
               f's_lshl_b32 s{K_W7}, s{S_WAVE}, 7', f's_mul_i32 s{K_IMG}, s{S_WAVE}, {IMGSZ}', f's_lshl_b32 s{K_W2}, s{S_WAVE}, 2', f's_lshl_b32 s{K_W1}, s{S_WAVE}, 1',
               f's_lshl_b32 s{K_W12}, s{S_WAVE}, 12',
               f's_and_b32 s{S_U0}, s{S_WAVE}, 1', f's_lshr_b32 s{S_U1}, s{S_WAVE}, 1',
               f's_mul_i32 s{S_T0}, s{S_U1}, 3072', f's_lshl_b32 s{K_H8}, s{S_U0}, 3', f's_add_u32 s{S_T0}, s{S_T0}, s{K_H8}', f'v_add_u32 v{vFw}, s{S_T0}, v{vStg}',
               f's_lshl_b32 s{S_T1}, s{S_U1}, 3', f's_lshr_b32 s{S_T1}, 0x05030200, s{S_T1}', f's_and_b32 s{S_T1}, s{S_T1}, 0xff',
               f's_lshl_b32 s{S_T1}, s{S_T1}, 9', f's_lshl_b32 s{S_T2}, s{S_U0}, 2', f's_add_u32 s{K_T3}, s{S_T1}, s{S_T2}',
               f's_mov_b32 s{S_U1}, 0x05040100', f's_mov_b32 s{S_U2}, 0x07060302',
               f'v_mov_b32 v{vFR}, {L_FLG}', 'v_mov_b32 v109, 0', 'v_mov_b32 v108, 0'] + [f'v_mov_b64 {vr(r, 2)}, 0' for r in range(XR, XR + 26, 2)]
        XJ = 104
        assert not (o.pfx or o.pfw)

        def pfw():
            return [f'buffer_load_dword v{PFR}, v{vPWL}, {srd(SRD_W)}, s{S_PW} offen',
                    f's_add_u32 s{S_PW}, s{S_PW}, {o.pfne * 688 * 128}']

        def pfx_a():
            return [f'buffer_load_dword v{PXR}, v{vPXL}, {srd(SRD_IDX)}, s{S_PX} offen',
                    f's_cmp_eq_u32 s{S_PX}, s{S_PXE}', f's_cselect_b32 s{S_PXE}, 0x7000000, s{S_PXE}',
                    f's_cselect_b32 s{S_PX}, 0x7000000, s{S_PX}',
                    f's_add_u32 s{S_PX}, s{S_PX}, 24', f's_min_u32 s{S_PX}, s{S_PX}, s{S_PXE}']

        def pfx_b():
            return [f'v_lshlrev_b32 v{PXR}, 7, v{PXR}', f'buffer_load_dword v{PFR + 1}, v{PXR}, {srd(SRD_TAB)}, 0 offen']

        def xidx(XI=XI, vXi0=vXi0):
            return [f'buffer_load_dwordx4 {vr(XI, 4)}, v{vXi0}, {srd(SRD_IDX)}, s{S_SAMP} offen', f's_add_u32 s{S_SAMP}, s{S_SAMP}, {4 * 104}']

        def xdma(XI=XI, off=0, tag='XB', vC16=vC16):
            c = [f'v_lshl_add_u32 v{XI + u}, v{XI + u}, 7, v{vC16}' for u in range(4)]
            for u in range(4):
                c += [f's_add_u32 m0, s{S_XM0}, {u * XPP + off}']
                if u % 2 == 0:
                    c.append(f's_mov_b32 exec_hi, {0xffffff if u == 0 else 0xffff:#x}')
                c.append(I(f'buffer_load_dwordx4 v{XI + u}, {srd(SRD_TAB)}, 0 offen lds', tag=tag))
            return c + ['s_mov_b32 exec_hi, -1']

        def stage(dst, goff, tag):
            st = []
            for m in range(9):
                st.append((f's_add_u32 m0, s{S_STG}, {dst + m * 4096}', f's_add_u32 s{S_TW}, s{S_STG}, {goff + m * 4096}',
                           I(f'buffer_load_dwordx4 v{vStg}, {srd(SRD_CIN)}, s{S_TW} offen lds', tag=tag)))
            return st

        def pubmax(regs_offs):
            c = []
            for (ctl, rm) in DPPS:
                for r, _ in regs_offs:
                    c.append(f'v_max_u32_dpp v{r}, v{r}, v{r} {ctl} row_mask:{rm} bank_mask:0xf')
            c += ['s_mov_b32 exec_lo, 0', 's_mov_b32 exec_hi, 0x80000000']
            c += [f'ds_max_u32 v{vFR}, v{r} offset:{16 + 4 * k}' for r, k in regs_offs]
            return c + ['s_mov_b64 exec, -1']

        def mxop(src, n, mx, first):
            return [f'v_mfma_f32_16x16x32_bf16 {vr(mx, 4)}, {vr(src + r, 4)}, {vr(src + r, 4)}, {"0" if first and r == 0 else vr(mx, 4)}' for r in range(0, n, 4)]

        def mxfin(mx):
            return [f'v_max3_f32 v{mx}, v{mx}, v{mx + 1}, 0', f'v_max3_f32 v{mx}, v{mx}, v{mx + 2}, v{mx + 3}']

        def bread(m, off):
            b = BALL + m * 8
            return [f'ds_read_b64_tr_b16 {vr(b, 2)}, v{vBs0} offset:{off}',
                    f'ds_read_b64_tr_b16 {vr(b + 2, 2)}, v{vBs0} offset:{off + 4 * 1352}',
                    f'ds_read_b64_tr_b16 {vr(b + 4, 2)}, v{vBs1a} offset:{off}',
                    f'ds_read_b64_tr_b16 {vr(b + 6, 2)}, v{vBs1b} offset:{off}']

        def mm2(d, a, b):
            return [f'v_mfma_f32_32x32x16_bf16 {vr(d, 16)}, {vr(a, 4)}, {vr(b, 4)}, 0',
                    f'v_mfma_f32_32x32x16_bf16 {vr(d, 16)}, {vr(a + 4, 4)}, {vr(b + 4, 4)}, {vr(d, 16)}']

        tA, tB = 250, 251
        trd = lambda n: f'ds_read_b128 {vr(GREG[n], 4)}, v{tA if n < 7 else tB} offset:{(n if n < 7 else n - 7) * 1024}'
        vbs = [f'v_add_u32 v{r}, s{K_W7}, v{r}' for r in (vBs0, vBs1a, vBs1b)]

        def FX(g):
            R = [trd(n) for n in ((0,) if g == 0 else ()) + (6, 7, 3, 9, 1, 2, 4, 5, 8)]
            F = vbs + [f'v_add_u32 v{r}, s{K_W2}, v{r}' for r in (vGa, vGb)]
            F += [f'v_add_u32 v{vT3d}, s{K_H8}, v{vT3d}', f'v_add_u32 v{vT3}, s{K_T3}, v{vT3}']
            F += [f'v_mad_u32_u24 v{G8}, v{G8 + 1}, s{S_WAVE}, v{G8}', f'v_add_u32 v{G8 + 2}, s{K_W1}, v{G8 + 2}',
                  f'v_mad_u32_u24 v{G8 + 1}, v{G8 + 1}, 8, v{G8}', f'v_add_u32 v{WA[2]}, s{K_W12}, v{G8 + 3}', f'v_add_u32 v{WA[3]}, 2048, v{WA[2]}']
            for n_, (wa, bs) in enumerate(((WA[0], G8), (WA[1], G8), (WA[4], G8 + 1), (WA[5], G8 + 1))):
                F += [f'v_add_u32 v{t5}, {n_ & 1}, v{G8 + 2}', f'v_and_b32 v{t5}, 3, v{t5}', f'v_lshl_add_u32 v{wa}, v{t5}, 4, v{bs}']
                if n_ & 1:
                    F.append(f'v_add_u32 v{wa}, 1664, v{wa}')
            F += [f'v_add_u32 v{r}, s{S_XM0}, v{r}' for r in (vXa, vLin0, vLin1)] + [f'ds_write_b32 v{vXa}, v{vXi1} offset:{XOFF(26)}']
            F += [f'v_add_u32 v{r}, s{K_IMG}, v{r}' for r in [vIw] + list(range(vTR, vTR + 8))]
            return R, F
        SC2 += [f'v_add_u32 v{tA}, {TA_}, v{vStg}', f'v_add_u32 v{tB}, {TB_}, v{vStg}', f'v_lshrrev_b32 v3, 5, v0', f'v_lshl_add_u32 v3, v3, 2, v{vFR}']

        def pub2(r1, r2, off):
            c = [f'v_permlane32_swap_b32 v{r1}, v{r2}', f'v_max_u32 v{r1}, v{r1}, v{r2}']
            c += [f'v_max_u32_dpp v{r1}, v{r1}, v{r1} {ctl} row_mask:{rm} bank_mask:0xf' for ctl, rm in DPPS[:5]]
            return c + ['s_mov_b32 exec_lo, 0x80000000', 's_mov_b32 exec_hi, 0x80000000', f'ds_max_u32 v3, v{r1} offset:{16 + off}', 's_mov_b64 exec, -1']
        AV = [28, 58, 111]
        L = ['s_waitcnt lgkmcnt(0)'] + self.build_srd(SRD_WCO, S_WCO, 156) + [f's_mov_b32 m0, {L_WCO}', 's_mov_b64 exec, 0x7ff',
             I(f'buffer_load_dwordx4 v{vStg}, {srd(SRD_WCO)}, 0 offen lds', tag='WCO'), 's_mov_b64 exec, -1'] + self.stamp0() + SC2
        L += self.build_srd(SRD_IDX, S_IDX, 4096 * 104) + self.build_srd(SRD_TAB, S_TAB, 100000 * 128)
        XK = 252 - 4 if False else 12
        if o.xg1:
            L += [f's_sub_u32 s{S_T0}, s{S_SAMP}, {24 * 104}', f'buffer_load_dwordx4 {vr(XI, 4)}, v{t4}, {srd(SRD_IDX)}, s{S_T0} offen',
                  f'buffer_load_dwordx4 {vr(XK, 4)}, v{t4}, {srd(SRD_IDX)}, s{S_T0} offen offset:{4 * 104}']
        L += [f'ds_write_b128 v{vFR}, {vr(XR, 4)} offset:16', f's_lshl_b32 s{S_T0}, s{cw}, 6', f'v_add_u32 v{t3}, s{S_T0}, v0']
        for p_ in range(3):
            L += [f'v_mul_u32_u24 v{t4}, 2521, v{t3}', f'v_lshrrev_b32 v{t4}, 16, v{t4}', f'v_mul_u32_u24 v{t4}, 12, v{t4}', f'v_lshl_add_u32 v{AV[p_]}, v{t3}, 1, v{t4}']
            L += [f'v_add_u32 v{t3}, 256, v{t3}'] if p_ < 2 else [f'v_cmp_gt_u32 vcc, 676, v{t3}', f's_mov_b64 s[{S_MASK}:{S_MASK + 1}], vcc']
        L += [f'v_lshlrev_b32 v{t3}, 3, v0', 's_mov_b32 exec_hi, 0xffff', f'ds_write_b64 v{t3}, {vr(XR, 2)} offset:{V3OFF + 26 * 64}', 's_mov_b32 exec_hi, -1',
              f'ds_write_b32 v{AD + 3}, v{XR}', f'ds_write_b32 v{AD + 3}, v{XR} offset:{SSZ}', WaitTag(vm_tags=['WCO'])]
        assert V3OFF == 0
        for s2 in range(2):
            for rd in range(2):
                L.append(f'ds_read_b64 {vr(AFR + 4 * s2 + 2 * rd, 2)}, v{AD} offset:{s2 * 32 + rd * 8}')
        L += [f'ds_read_u16 v110, v{AD + 1}',
              's_mov_b64 exec, 0x3ffffff', f'ds_write_b16 v{AD + 2}, v110', 'v_lshlrev_b32 v109, 17, v110', 'v_lshrrev_b32 v109, 1, v109', 's_mov_b64 exec, -1']
        if o.cwalk:
            L += ['s_mov_b64 exec, 0'] + [x for q_ in range(3) for x in (f's_cmp_eq_u32 s{cw}, {q_}', f's_cbranch_scc1 L_WENTRY{q_}')] + ['s_branch L_WENTRY3', 'L_wret:', 's_mov_b64 exec, -1']
        L += (FX(1)[1] if o.dirt else vbs) + [WaitTag(vm_tags=['TAB'], lgkm0=True)] + self.probe('tab')
        v3p = []
        L += ['s_barrier'] + self.stamp(2) + self.probe('b0')
        vb = lambda m: A3 - A1 - 512 + (m >> 1) * 512 + (m & 1) * 64
        for m in range(3):
            L += bread(m, vb(m))
        for m in range(6):
            if m + 3 < 6:
                L += bread(m + 3, vb(m + 3))
            L += mm2(DALL + m * 16, AFR, BALL + m * 8)
            if m == 3 and not o.dirt:
                L += FX(1)[0]
        if not o.dirt:
            L += FX(1)[1][3:]
        for p_ in range(3):
            L += ['s_mov_b32 exec_lo, 0', f'v_mov_b32 v{DALL + 32 * p_}, v{DALL + 32 * p_ + 16}', 's_mov_b32 exec_lo, -1',
                  f'v_cvt_pk_bf16_f32 v{BALL + p_}, 0, v{DALL + 32 * p_}']
            if p_ == 2:
                L += [f's_mov_b64 exec, s[{S_MASK}:{S_MASK + 1}]']
            L += [f'ds_write_b16_d16_hi v{AV[p_]}, v{BALL + p_}', f'v_max_f32 v108, |v{BALL + p_}|, v108']
        L += ['s_mov_b64 exec, -1'] + pub2(108, 109, 8) + self.stamp(13) + [f's_setprio {o.g1p}', 's_waitcnt lgkmcnt(0)', 's_barrier', 's_branch L_w2']
        v3 = self.seq(L)

        def stage3(dst, goff, tag, lab, mid=None, fill=()):
            st = stage(dst, goff, tag)
            a_ = st[:8] if mid is None else st[:mid[0]] + [tuple(mid[1])] + st[mid[0]:8]
            return (self.seq(interleave(a_, list(fill)) + [f's_cmp_eq_u32 s{cw}, 3', f's_cbranch_scc1 {lab}']), self.seq([st[8]]), self.seq([f'{lab}:']))
        g0 = [self.seq(['L_g0:', 's_waitcnt lgkmcnt(0)'] + self.build_srd(SRD_CIN, S_CIN, 105456))]
        g0.append(stage3(A3, 70304, 'W3', 'L_st3'))
        g0.append(self.seq(self.stamp0() + self.build_srd(SRD_IDX, S_IDX, 4096 * 104) + ([f's_add_u32 s{S_SAMP}, s{S_SAMP}, {8 * 104}'] if o.xg1 else xidx(XI, t4) + xidx(XJ, t4)) + self.build_srd(SRD_TAB, S_TAB, 100000 * 128)))
        def w2grp(n):
            c = []
            for k, go in enumerate((0, 1024, 1864)):
                c.append((f's_add_u32 m0, s{S_STG9}, {A2 + n * 4 * 3072 + k * 1024}', f's_add_u32 s{S_TW}, s{S_TGT}, {35152 + n * 4 * 2704 + go}',
                          I(f'buffer_load_dwordx4 v{t5 if k == 1 else vStg}, {srd(SRD_CIN)}, s{S_TW} offen lds', tag='W2')))
            return c
        g0.append((self.seq([f's_mul_i32 s{S_STG9}, s{cw}, 3072', f's_mul_i32 s{S_TGT}, s{cw}, 2704', f'v_lshrrev_b32 v{t5}, 5, v0', f'v_mul_u32_u24 v{t5}, 184, v{t5}',
                             f'v_sub_u32 v{t5}, v{vStg}, v{t5}'] + interleave(w2grp(0) + w2grp(1) + w2grp(2), SC2) + [f's_cmp_lg_u32 s{cw}, 0', 's_cbranch_scc1 L_st2']),
                   self.seq(w2grp(3)), self.seq(['L_st2:']), 1))
        xx = xdma(vC16=t3, tag='XBa') + xdma(XJ, 4 * XBSZ, vC16=t3)
        g0.append(stage3(A1, 0, 'W1', 'L_st1', (o.sigat, [WaitTag(vm_tags=['W2' if o.mrg else 'W3']), 's_barrier'] + self.stamp(2) + FX(0)[0])))
        g0.append(self.seq(([] if o.xg1 else xx) + FX(0)[1] + self.stamp(13) + [WaitTag(vm_tags=['W1']), 's_barrier']))

        def G0(w):
            r = []
            for x in g0:
                r += x if isinstance(x, list) else x[0] + (x[1] if w < (3 if len(x) == 3 else x[3]) else []) + x[2]
            return r

        def gather(dst, off):
            c = [f'v_add_u32 v{r}, {off}, v{r}' for r in (vGa, vGb)] if off else []
            for s2 in range(2):
                for e in range(0, 8, 2):
                    base = vGb if (s2 == 1 and e >= 2) else vGa
                    h = 16 * s2 + e
                    c.append(f'ds_read2st64_b32 {vr(dst + 8 * s2 + e, 2)}, v{base} offset0:{6 * h} offset1:{6 * h + 6}')
            return c

        def perms(g_, aj):
            return [f'v_perm_b32 v{aj + 8 * jj + r}, v{g_ + 2 * r + 1}, v{g_ + 2 * r}, s{S_U1 + jj}' for jj in range(2) for r in range(8)]

        def sout(t):
            d, c_ = DALL + 16 * t, DALL + 16 * t
            c = [f'v_cvt_pk_f16_f32 v{c_ + r}, v{d + 2 * r}, v{d + 2 * r + 1}' for r in range(8)]
            return c[:4] + [f'ds_write_b128 v{WA[t]}, {vr(c_, 4)}', f'v_xor_b32 v{WA[t]}, 16, v{WA[t]}'] + c[4:] + [f'ds_write_b128 v{WA[t]}, {vr(c_ + 4, 4)}']
        M1, M2 = 28, 28

        def pub1(r, off):
            c = [f'v_max_u32_dpp v{r}, v{r}, v{r} {ctl} row_mask:{rm} bank_mask:0xf' for ctl, rm in DPPS]
            return c + [('s_mov_b32 exec_lo, 0', 's_mov_b32 exec_hi, 0x80000000', f'ds_max_u32 v{vFR}, v{r} offset:{16 + off}', 's_mov_b64 exec, -1')]
        L = ['L_w2:'] + self.stamp(14) + self.probe('bw2') + gather(BALL, 0)
        cx = []
        if o.xg1:
            cc0 = self.seq(L + [f's_cmp_eq_u32 s{S_GRP}, 0', 's_cbranch_scc1 L_nx1'])
            cx = self.seq(xdma(XI, -4 * XBSZ) + xdma(XK))
            L = ['L_nx1:']
        else:
            cc0 = []
        L += [f's_cmp_ge_u32 s{S_WAVE}, 5', 's_cbranch_scc1 L_u0']
        cc = self.seq(L)
        M1, M2 = 28, 108
        fin2 = lambda: interleave(mxfin(M1), mxfin(M2)) + [tuple(x) if isinstance(x, list) else x for x in pub2(M1, M2, 0)[:7] + [pub2(M1, M2, 0)[7:]]]
        afr = [f'ds_read_b64_tr_b16 {vr(AFR + 4 * s2 + 2 * rd, 2)}, v{vA3} offset:{s2 * 1024 + rd * 256}' for s2 in range(2) for rd in range(2)]
        b1u = self.seq(gather(BALL + 32, 32) + bread(2, 0) + bread(3, 64) + afr + mxop(BALL, 16, M2, True) + perms(BALL, DALL + 64)[:8] + mxop(BALL + 32, 16, M2, False)
                       + mxop(BALL + 16, 16, M1, True) + perms(BALL, DALL + 64)[8:] + interleave(fin2(), perms(BALL + 32, BALL)) + ['s_branch L_u1'])
        L = ['L_u0:'] + bread(2, 0) + bread(3, 64) + bread(4, 384) + bread(5, 384 + 64) + afr + mxop(BALL, 16, M2, True) + mxop(BALL + 16, 32, M1, True)
        L += perms(BALL, DALL + 64)[:4] + interleave(fin2(), perms(BALL, DALL + 64)[4:])
        L += [f'v_add_u32 v{WA[4]}, {192 * 64}, v{WA[2]}', f'v_add_u32 v{WA[5]}, {192 * 64}, v{WA[3]}',
              f's_cmp_lg_u32 s{S_WAVE}, 7', 's_cbranch_scc1 L_u1', 's_mov_b32 exec_lo, 0xfffffff0', 's_mov_b32 exec_hi, 0xfffffff0', f'v_mov_b32 v{WA[5]}, {OOB}', 's_mov_b64 exec, -1']
        b1q = self.seq(L)
        MXR = 108
        vM = 58

        def ureads(j):
            return [f'ds_read_u16_d16_hi v{XR + 2 * j}, v{vXa} offset:{XOFF(2 * j)}',
                    f'ds_read_u16_d16_hi v{XR + 2 * j + 1}, v{vXa} offset:{XOFF(2 * j) + 2}']
        mx3 = lambda j: f'v_max3_f32 v{vM}, |v{XR + 2 * j}|, |v{XR + 2 * j + 1}|, {"0" if j == 0 else f"v{vM}"}'
        L = ['L_u1:'] + self.stamp(1) + [WaitTag(lgkm0=True), 's_barrier'] + self.stamp(7) + self.probe('b1')
        L += [f'ds_read_b128 {vr(MXR, 4)}, v{vFR} offset:16']
        L += [f's_mul_i32 s{S_T0}, s{S_WAVE}, 384', f'v_lshrrev_b32 v{t3}, 2, v0', f'v_mul_u32_u24 v{t3}, 24, v{t3}', f'v_add_u32 v{t3}, s{S_T0}, v{t3}',
              f'v_and_b32 v{t4}, 3, v0', f'v_lshlrev_b32 v{t4}, 3, v{t4}']
        L += [f'ds_read_b64 {vr(UA + 2 * n_, 2)}, v{t3} offset:{TC_ + 8 * n_}' for n_ in range(3)]
        q1 = [f'v_add_u32 v{MXR}, {127 << 23:#x}, v{MXR}', f'v_lshrrev_b32 v{MXR}, 24, v{MXR}', f'v_sub_u32 v{MXR}, 267, v{MXR}', f'v_min_u32 v{MXR}, 167, v{MXR}',
              f'v_readfirstlane_b32 s{S_F1}, v{MXR}', f'v_mul_u32_u24 v{MXR}, 0x800080, v{MXR}']
        sc = [f'v_add_u32 v{MXR + 1}, {127 << 23:#x}, v{MXR + 1}', f'v_lshrrev_b32 v{MXR + 1}, 24, v{MXR + 1}',
              's_mov_b32 vcc_lo, 0x4000000', 's_mov_b32 vcc_hi, 0x4000000', f'v_cndmask_b32 v{vS}, v{MXR + 2}, v{MXR + 3}, vcc', f'v_lshrrev_b32 v{vS}, 23, v{vS}',
              f'v_add_u32 v{vS}, v{vS}, v{MXR + 1}', f'v_sub_u32 v{vS}, 388, v{vS}', f's_movk_i32 s{S_U0}, 167', f'v_med3_i32 v{vS}, v{vS}, 1, s{S_U0}',
              f'v_subrev_u32 v{MXR + 2}, 127, v{vS}', f'v_lshlrev_b32 v{vS}, 23, v{vS}', f'v_cmp_gt_i32 vcc, 0, v{MXR + 2}',
              f'v_mul_u32_u24 v{MXR + 2}, 0x800080, v{MXR + 2}']
        mq = mm2(DALL + 32, PM, BALL + 16) + mm2(DALL + 48, PM, BALL + 24)
        L += interleave(q1, sc[:6]) + [f'v_and_b32 v{PM + r}, v{PM + r}, v{MXR}' for r in range(8)] + interleave([mq[0], mq[2], mq[1], mq[3]], sc[6:]) + ['s_cbranch_vccnz L_sdown']
        L += [f'v_add_u32 v{AFR + r}, v{AFR + r}, v{MXR + 2}' for r in range(8)]
        u1a = self.seq(L)
        L = ['L_scaled:'] + interleave(mm2(DALL, DALL + 64, AFR) + mm2(DALL + 16, DALL + 72, AFR), sout(2) + sout(3))
        L += [f's_cmp_ge_u32 s{S_WAVE}, 5', 's_cbranch_scc1 L_u2']
        u1 = self.seq(L)
        u2u = self.seq(interleave(mm2(DALL + 64, BALL, AFR) + mm2(DALL + 80, BALL + 8, AFR), sout(0)) + ['s_branch L_u3'])
        u2q = self.seq(['L_u2:'] + interleave(mm2(DALL + 64, PM, BALL + 32) + mm2(DALL + 80, PM, BALL + 40), sout(0)))
        L = ['L_u3:'] + xidx() + xidx(12)
        L += interleave(sout(1) + sout(4) + sout(5), [x for n_ in range(6) for x in (f'v_xor_b32 v{UA + n_}, v{UA + n_}, v{t4}', f'v_xor_b32 v{UX[n_]}, 32, v{UA + n_}')])
        L += [f'v_readlane_b32 s{S_CG}, v{vS}, 0', f'v_readlane_b32 s{S_IV}, v{vS}, 26',
              f's_sub_u32 s{S_F2}, {254 << 23:#x}, s{S_CG}', f's_sub_u32 s{S_IV}, {254 << 23:#x}, s{S_IV}',
              f's_sub_u32 s{S_F1}, 254, s{S_F1}', f's_lshl_b32 s{S_F1}, s{S_F1}, 23',
              f's_mov_b32 s{S_MASK}, 0x88888888', f's_mov_b32 s{S_MASK + 1}, 0x88888888']

        def sigma(s_):
            t = (s_ - 1) // 2
            first = (s_ - 1) % 2 == 0
            return (0 if first else 1) if t % 2 == 0 else (1 if first else 0)
        for s_ in range(1, 11):
            assert ((s_ - 1) // 2) * 1024 + sigma(s_) * 512 - (s_ // 4) * 2048 == (-1024, 0, 512, 1536)[s_ % 4]

        def p2read(n_):
            b = BALL + 16 * n_
            c = []
            UAl = list(range(UA, UA + 6))
            for x, (ar, off) in enumerate(((UAl, 0), (UX, 0), (UAl, SSZ), (UX, SSZ))):
                for y in range(2):
                    c.append(f'ds_read_b64_tr_b16 {vr(b + 4 * x + 2 * y, 2)}, v{ar[2 * n_ + y]} offset:{off}')
            return c

        def p2a(n_):
            b = BALL + 16 * n_
            c = []
            for x in range(4):
                c += [f'v_pk_add_f16 v{b + 4 * x + y}, v{b + 4 * x + y}, v{b + 4 * x + 2 + y}' for y in range(2)]
                if x in (0, 2):
                    c.append(f'ds_write_b64 v{vFw}, {vr(b + 4 * x, 2)} offset:{FR + n_ * 4 * 3072 + x * 1024}')
            c += [f'v_cndmask_b32 v{b + 4 + y}, v{b + 4 + y}, v{b + 12 + y}, s[{S_MASK}:{S_MASK + 1}]' for y in range(2)]
            c.append(f'ds_write_b64 v{vFw}, {vr(b + 4, 2)} offset:{FR + n_ * 4 * 3072 + 1024}')
            return c

        def p2s(n_):
            b = BALL + 16 * n_ + 12
            off = FRS + max(n_ * 2048 - 1024, 0)
            return ([f'v_subrev_u32 v{vT3}, 1024, v{vT3}'] if n_ == 0 else []) + [
                f'ds_write_b32 v{vT3}, v{b} offset:{off}', f'ds_write_b32 v{vT3}, v{b + 1} offset:{off + 16}']
        ec = []
        if o.econv:
            L += [f's_cmp_lg_u32 s{S_GRP}, 0', 's_cbranch_scc1 L_noec']
            u3 = self.seq(L)
            ec = self.seq([WaitTag(vm_tags=['XBa'])] + [x for j in range(13) for x in ureads(j)])
            L = ['L_noec:']
        else:
            u3 = []
        L += [WaitTag(vm_tags=['XB'] if o.xg1 else [], lgkm0=True), 's_barrier'] + self.stamp(10)
        L += p2read(0) + p2read(1) + [f's_cmp_ge_u32 s{S_WAVE}, 6', 's_cbranch_scc1 L_lin']
        b2 = self.seq(L)
        p2c = self.seq(p2read(2) + p2a(2) + p2s(2) + ['s_branch L_p2'])
        LB = BALL + 32
        ZR4 = t5
        L = ['L_lin:', f's_and_b32 s{S_U0}, s{S_WAVE}, 1', f's_cselect_b64 vcc, -1, 0', f's_lshl_b32 s{S_U1}, s{S_U0}, 5', f'v_mov_b32 v{ZR4}, 0',
             f'v_xor_b32 v{vV2r}, s{S_U1}, v{vV2r}', f'v_xor_b32 v{vV2q}, s{S_U1}, v{vV2q}', f'v_cndmask_b32 v{vWo}, v{vWo}, v{vWo + 1}, vcc',
             f'ds_read_b64_tr_b16 {vr(LB, 2)}, v{vV2r}', f'ds_read_b64_tr_b16 {vr(LB + 2, 2)}, v{vV2q}',
             f'ds_read_u16_d16_hi v{ZR4}, v{vWo}',
             f's_lshl_b32 s{S_U0}, s{S_U0}, 10', f'v_add_u32 v{t3}, s{S_U0}, v{vStg}']
        for r in range(4):
            a_, b_ = LB + 4 + 2 * r, LB + 5 + 2 * r
            L += [f'v_cvt_f32_f16 v{a_}, v{LB + r}', f'v_cvt_f32_f16_sdwa v{b_}, v{LB + r} dst_sel:DWORD dst_unused:UNUSED_PAD src0_sel:WORD_1',
                  f'v_mul_f32 v{a_}, s{S_IV}, v{a_}', f'v_mul_f32 v{b_}, s{S_IV}, v{b_}']
            if r == 3:
                L += ['s_mov_b32 exec_lo, 0', 's_mov_b32 exec_hi, 0xffff', f'v_mov_b32 v{a_}, v{ZR4}', 's_mov_b64 exec, -1']
            L += [f'v_mul_f32 v{a_}, s{S_CG}, v{a_}', f'v_mul_f32 v{b_}, s{S_CG}, v{b_}', f'v_cvt_pk_bf16_f32 v{LB + r}, v{a_}, v{b_}']
        L += [f'ds_write_b128 v{t3}, {vr(LB, 4)} offset:{FRL}']
        lin = self.seq(L)
        p2 = self.seq(['L_p2:'] + p2a(1) + p2s(1) + p2a(0) + [f's_cmp_lt_u32 s{S_WAVE}, 2', 's_cbranch_scc1 L_p2d'])
        p2e = self.seq(p2s(0) + ['s_branch L_built'])
        p2d = self.seq(['L_p2d:', f'ds_write_b64 v{vT3d}, {vr(BALL + 12, 2)} offset:{FRS + 5 * 1024}'])

        L = ['L_sdown:']
        for r in range(8):
            L += [f'v_lshlrev_b32 v{MXR}, 16, v{AFR + r}', f'v_and_b32 v{MXR + 1}, 0xffff0000, v{AFR + r}',
                  f'v_mul_f32 v{MXR}, v{MXR}, v{vS}', f'v_mul_f32 v{MXR + 1}, v{MXR + 1}, v{vS}', f'v_cvt_pk_bf16_f32 v{AFR + r}, v{MXR}, v{MXR + 1}']
        self.sdown = L + ['s_branch L_scaled']

        def PRE(w, sd=None):
            grp = w >> 2
            return (c0 + (g1s + (g1t if w < 6 else []) if grp else []) + csc + (v3p + v3 if grp else G0(w)) + cc0 + (cx if grp else []) + cc + (b1q if w >= 5 else b1u)
                    + (u1a if sd is None else u1a[:-8] + sd) + u1 + (u2q if w >= 5 else u2u) + u3 + ([] if grp else ec) + b2
                    + (lin if w >= 6 else p2c) + p2 + (p2d if w < 2 else p2e))
        L = ['L_built:'] + self.stamp(11)
        L += [f's_mov_b32 s{S_CG}, s{S_F1}', f's_mov_b32 s{S_IV}, s{S_F2}', f's_mov_b32 s{S_LO}, {f32hex(0.125)}', f's_mov_b32 s{S_HI}, {f32hex(0.0 if o.slow else 128.0)}']
        CV, vM, S_XD = 28, 58, 81

        def ureads(j):
            return [f'ds_read_u16_d16_hi v{XR + 2 * j}, v{vXa} offset:{XOFF(2 * j)}',
                    f'ds_read_u16_d16_hi v{XR + 2 * j + 1}, v{vXa} offset:{XOFF(2 * j) + 2}']
        mx3 = lambda j: f'v_max3_f32 v{vM}, |v{XR + 2 * j}|, |v{XR + 2 * j + 1}|, {"0" if j == 0 else f"v{vM}"}'
        cvt = lambda j: f'v_cvt_pk_f16_f32 v{CV + j % 4}, v{XR + 2 * j}, v{XR + 2 * j + 1}'
        iwr = lambda j: f'ds_write_b32 v{vIw}, v{CV + j % 4} offset:{j * IMGP}'
        S_SKIP = 51
        pfr = lambda: (pfx_b() + pfx_a() if o.pfx else []) + (pfw() if o.pfw else [])
        conv = lambda tag='XB': ([WaitTag(vm_tags=[tag])] + [x for j in range(13) for x in ureads(j)]
                        + [x for j in range(13) for x in (mx3(j), f'v_cvt_pk_f16_f32 v{D + j}, v{XR + 2 * j}, v{XR + 2 * j + 1}')])
        L += [f's_mov_b32 s{S_SKIP}, 1', f's_mul_i32 s{S_U0}, s{S_WAVE}, 1536', f's_add_u32 s{S_U0}, s{S_U0}, {PART}',
              f's_cmp_lg_u32 s{S_GRP}, 0', 's_cbranch_scc1 L_g1c']
        c2a = self.seq(L)
        c2g0 = self.seq([f's_sub_u32 s{S_SAMP}, s{S_SAMP}, {4 * 104}'] + (conv('XBa')[27:] if o.econv else conv('XBa')) + [WaitTag(lgkm0=True), 's_barrier'] + self.stamp(8) + ['s_branch L_cin_go'])
        DX = XB2 - XB - 4 * XBSZ
        L = ['L_g1c:', WaitTag(vm_tags=['XB'], lgkm0=True), 's_barrier'] + self.stamp(8) + self.probe('b4')
        L += [f's_add_u32 s{S_XM0}, s{S_XM0}, {DX}'] + xdma(tag='XB0') + xdma(12, 4 * XBSZ) + xidx() + pfr() + [f'v_add_u32 v{r}, {DX}, v{r}' for r in (vXa, vLin0, vLin1)]
        L += [f'ds_write_b32 v{vXa}, v{vXi1} offset:{XOFF(26)}', f'ds_write_b32 v{vXa}, v{vXi1} offset:{XOFF(26) + 4 * XBSZ}']
        c2g1 = self.seq(L)
        c2b = []
        c2g1d = self.seq(['L_g1d:'] + conv('XB0'))
        c2c = self.seq(['L_cin_go:'] + [f'ds_write_b32 v{vIw}, v{D + j} offset:{j * IMGP}' for j in range(13)]
                       + [f's_mov_b32 s{S_XD}, {4 * XBSZ}', f's_add_u32 s{S_XM0}, s{S_XM0}, {4 * XBSZ}',
                          f'v_lshlrev_b32 v{vXi1}, 2, v0', f'v_add_u32 v{vXi1}, s{S_U0}, v{vXi1}'])

        NWF = 5
        PF = o.cpfd
        zslot = lambda s_: 1 if s_ % 2 == 0 else (0 if ((s_ - 1) // 2) % 2 == 0 else 2)
        zr = lambda T, sl: Z + 12 * T + 4 * sl
        preg = lambda T, r: P + 14 * T + (r if r < 14 else r - 14)
        acc = lambda T, tile: D + 16 * T + 4 * tile
        jobs = [('l', 0, 0), ('l', 0, 1)]
        for s_ in range(11):
            jobs += [('d', s_, 2), ('d', s_, 0), ('d', s_, 1)]
            if s_ == 0:
                jobs.append(('d', 0, 3))
            elif s_ % 2 == 0:
                jobs.append(('s', s_, 3))
        NJ = len(jobs)
        assert NJ == 41

        def wread(n):
            kind, s_, tile = jobs[n]
            off = FRL + tile * 1024 if kind == 'l' else (FR + s_ * 3072 + tile * 1024 if tile < 3 else FRS + (5 if s_ == 0 else (s_ - 1) // 2) * 1024)
            return f'ds_read_b128 {vr(WF + 4 * (n % NWF), 4)}, v{vFa} offset:{off}'

        def mfma(n, T):
            kind, s_, tile = jobs[n]
            a = vr(WF + 4 * (n % NWF), 4)
            d = vr(acc(T, tile), 4)
            if kind == 'l':
                return f'v_mfma_f32_16x16x32_bf16 {d}, {a}, {vr(zr(T, 2), 4)}, 0'
            if kind == 's':
                lo = 0 if ((s_ - 1) // 2) % 2 == 0 else 1
                return f'v_smfmac_f32_16x16x64_f16 {d}, {a}, {vr(zr(T, lo), 8)}, v{vIDX}'
            return f'v_mfma_f32_16x16x32_f16 {d}, {a}, {vr(zr(T, zslot(s_)), 4)}, {"0" if (s_ == 0 and tile >= 2) else d}'

        def pk(T, n):
            a, b, s0, s1 = cin16.INS[n]
            return (f'v_pk_mul_f16 v{zr(T, zslot(n // 4)) + n % 4}, v{preg(T, a)}, v{preg(T, b)} '
                    f'op_sel:[{s0[0]},{s0[1]}] op_sel_hi:[{s1[0]},{s1[1]}]')

        def trp(T, rp):
            return f'ds_read_b64_tr_b16 {vr(preg(T, 2 * rp), 2)}, v{vTR + rp} offset:{32 * T}'

        LASTA = max(n for n, x in enumerate(cin16.INS) if x[0] < 2)
        S_A1, S_A2, S_PINC = 49, 50, 48
        fin = []
        for T in range(4):
            fin += [(acc(T, 0) + r, acc(T, 2) + r) for r in range(4)] + [(acc(T, 1), acc(T, 1) + 3)]
        for T in range(4):
            fin += [(acc(T, 1) + 1 + (r >> 1), acc(T, 3) + r) for r in range(4)]

        def final(f1, f2):
            c = []
            for k, (a, b) in enumerate(fin):
                d = Z + k % 4
                c.append(f'v_mul_f32 v{d}, v{a}, v{b}' if k < 4 else f'v_fmac_f32 v{d}, v{a}, v{b}')
            c += [f'v_add_f32 v{Z}, v{Z}, v{Z + 1}', f'v_add_f32 v{Z + 2}, v{Z + 2}, v{Z + 3}', f'v_add_f32 v{Z}, v{Z}, v{Z + 2}']
            c += [f'v_mul_f32 v{Z}, s{x}, v{Z}' for x in (f1, f2)]
            return c + [f'ds_write_b32 v{vXi1}, v{Z}']
        code = ['L_cin_loop:', f'v_cmp_le_f32 s[{S_CM}:{S_CM + 1}], s{S_HI}, v{vM}', f'v_cmp_le_f32 vcc, s{S_LO}, v{vM}',
                f's_mov_b32 s{S_A1}, s{S_F1}', f's_mov_b32 s{S_A2}, s{S_F2}',
                f's_cmp_lg_u64 s[{S_CM}:{S_CM + 1}], 0', 's_cbranch_scc1 L_cslow', 's_cbranch_vccz L_cslow']
        cA = self.seq(code)
        RD = []
        for rp in (0, 3, 4):
            RD += [trp(T, rp) for T in range(4)]
        for T in range(4):
            RD += [f'ds_read_b64_tr_b16 {vr(zr(T, 2), 2)}, v{vLin0} offset:{32 * T}', f'ds_read_b64_tr_b16 {vr(zr(T, 2) + 2, 2)}, v{vLin1} offset:{32 * T}']
        RD += [wread(k) for k in range(PF)]
        for rp in (5, 6, 1, 2):
            RD += [trp(T, rp) for T in range(4)]
        pfr = lambda: (pfx_b() + pfx_a() if o.pfx else []) + (pfw() if o.pfw else [])
        vm = xdma() + xidx() + pfr()
        VA = final(S_A1, S_A2) + [f'v_add_u32 v{vXi1}, 256, v{vXi1}']
        PK0 = [pk(T, n) for T in range(4) for n in range(4)]
        TG = [f'v_add_u32 v{r}, s{S_XD}, v{r}' for r in (vXa, vLin0, vLin1)] + [f's_sub_u32 s{S_XM0}, s{S_XM0}, s{S_XD}', f's_sub_u32 s{S_XD}, 0, s{S_XD}', f's_mov_b32 s{S_SKIP}, 0']
        cB0 = self.seq(['L_cconv:', f's_cmp_lg_u32 s{S_SKIP}, 0', 's_cbranch_scc1 L_first'])
        cVM = self.seq(interleave(RD, VA) + PK0 + vm)
        self.first = ['L_first:'] + RD[:28] + interleave(RD[28:], PK0) + ['s_branch L_novm']
        code = ['L_novm:'] + TG
        LA = 1
        def lstamp(base):
            if not (o.stamps and o.cst):
                return []
            return [f's_memtime s[{S_ST}:{S_ST + 1}]', f's_memrealtime s[{S_ST + 2}:{S_ST + 3}]', f's_sub_u32 s{S_C0}, {base + 6}, s{S_LOOP}', 's_waitcnt lgkmcnt(0)',
                    f's_mov_b32 m0, s{S_C0}', f'v_writelane_b32 v252, s{S_ST}, m0', f'v_writelane_b32 v253, s{S_ST + 2}, m0']
        code += lstamp(19)
        code += [Touch(vr(WF, 4)), Touch(vr(zr(3, 2), 4))] + (['s_setprio 2', 's_barrier'] if o.cbar else ['s_setprio 1'])
        MS = [(n, T) for n in range(NJ) for T in range(4)]
        first_use, last_use = {}, {}
        for mi, (n, T) in enumerate(MS):
            kind, s_, tile = jobs[n]
            if kind == 'l':
                last_use[(T, 'lin')] = mi
                continue
            for su in ([s_] if kind == 'd' else [s_ - 1, s_]):
                first_use.setdefault((T, su), mi)
                last_use[(T, su)] = mi
        V = []
        for s_ in range(LA, 11):
            prev = [p_ for p_ in range(s_) if zslot(p_) == zslot(s_)]
            for T in range(4):
                rdy = last_use[(T, prev[-1])] + o.war if prev else (last_use[(T, 'lin')] if zslot(s_) == 2 else -1)
                for n in range(4 * s_, 4 * s_ + 4):
                    V.append((pk(T, n), rdy, first_use[(T, s_)], n, T))
        forced = 0
        late = []
        XL_ = [x for j in range(13) for x in ureads(j)]
        xrd = {}
        CVR = [preg(T, r) for r in (2, 3, 6, 7) for T in range(4)]
        cvrdy = max(n for n, x in enumerate(cin16.INS) if set(x[:2]) & {2, 3, 6, 7})
        cvt2 = lambda j: f'v_cvt_pk_f16_f32 v{CVR[j]}, v{XR + 2 * j}, v{XR + 2 * j + 1}'
        iwr2 = lambda j: f'ds_write_b32 v{vIw}, v{CVR[j]} offset:{j * IMGP}'
        nm = nc = nw = 0
        V.sort(key=lambda x: x[2])
        prev2 = 0
        for mi, (n, T) in enumerate(MS):
            while V and V[0][2] <= mi:
                assert V[0][1] < mi
                code.append(V.pop(0)[0]); forced += 1
            code.append(mfma(n, T))
            t = 4
            if o.cbar and mi == len(MS) - 1 - o.cbov:
                code += ['s_setprio 3', 's_barrier']; t += 8
            if not o.cbar and mi == 4 * o.hiat - 2:
                code.append('s_setprio 2'); t += 4
            if T == 3 and n + 1 < NJ:
                code.append(Touch(vr(WF + 4 * ((n + 1) % NWF), 4))); t += 4
            if T == 0 and n + PF < NJ:
                code.append(wread(n + PF)); t += 8
            elif T in (1, 2) and late:
                code.append(late.pop(0)); t += 8
            elif T in (1, 2) and mi >= o.x0 and XL_:
                if len(XL_) == 26:
                    code.append(WaitTag(vm_tags=['XB']))
                code.append(XL_.pop(0)); t += 8
                if len(XL_) % 2 == 0:
                    xrd[12 - len(XL_) // 2] = mi
            elif not V and nw < nc and t == 4:
                code.append(iwr2(nw)); nw += 1; t += 12
            t = max(t, 12 if jobs[n][0] == 's' else 8)
            k = 0
            while t < 16:
                urgent = any(V[q_][2] - 1 - mi < q_ + 1 for q_ in range(min(24, len(V))))
                if k == 1 and prev2 >= o.max2 and not urgent:
                    break
                cand = [x for x in V[:32] if x[1] <= mi]
                extra = None
                if nm < 13 and nm in xrd and xrd[nm] + o.xlat <= mi:
                    extra = 'm'
                elif nc < nm and all(x[3] > cvrdy for x in V):
                    extra = 'c'
                if cand and (k == 0 or urgent or not extra) and (k == 0 or urgent or o.eager):
                    x = cand[0]
                    V.remove(x)
                    code.append(x[0])
                    if x[3] <= LASTA and all(y[3] > LASTA for y in V if y[4] == x[4]):
                        late.append(trp(x[4], 7))
                elif extra == 'm':
                    code.append(mx3(nm)); nm += 1
                elif extra == 'c':
                    code.append(cvt2(nc)); nc += 1
                else:
                    break
                t += 4; k += 1
            prev2 = prev2 + 1 if k == 2 else 0
        assert not late and not XL_ and not V
        print('left', 13 - nm, 13 - nc, 13 - nw)
        tail = [mx3(j) for j in range(nm, 13)] + [cvt2(j) for j in range(nc, 13)] + [iwr2(j) for j in range(nw, 13)]
        print('forced VALU', forced)
        code += lstamp(25)
        code.append(f's_setprio {o.p0}')
        code += [f's_sub_u32 s{S_LOOP}, s{S_LOOP}, 1', f's_cmp_eq_u32 s{S_LOOP}, 0', 's_cbranch_scc1 L_cin_done'] + tail
        ntail = len(tail) + 1
        def keep(x):
            t_ = x.text if isinstance(x, I) else x
            if isinstance(t_, tuple):
                return True
            if 'nopk' in o.dbg and t_.startswith('v_pk_mul_f16'):
                return False
            if 'nowf' in o.dbg and t_.startswith('ds_read_b128'):
                return False
            if 'nosm' in o.dbg and t_.startswith('v_smfmac'):
                return False
            return True
        code = [x for x in code if keep(x)]
        if 'bf' in o.dbg:
            code = [x.replace('x32_f16', 'x32_bf16').replace('x64_f16', 'x64_bf16') if isinstance(x, str) else x for x in code]
        cB = self.seq(code + ['s_branch L_cin_loop'])
        mark0 = len(self.P.static)
        bl = []
        if o.burn:
            bl = [f's_movk_i32 s{S_LOOP}, {o.burn // 2}', 'L_burn2:'] + [f'v_mfma_f32_16x16x32_f16 {vr(P + 4 * (k % 2), 4)}, {vr(WF + 4 * (k % 4), 4)}, {vr(Z + 4 * (k // 4), 4)}, 0' for k in range(32)]
            bl += [f's_sub_u32 s{S_LOOP}, s{S_LOOP}, 1', f's_cmp_lg_u32 s{S_LOOP}, 0', 's_cbranch_scc1 L_burn2']
        L = ['L_cin_done:', f's_mul_i32 s{S_U0}, s{S_WAVE}, 1536', f's_add_u32 s{S_U0}, s{S_U0}, {PART}',
             f'v_lshlrev_b32 v{Z + 4}, 5, v0', f'v_add_u32 v{Z + 4}, s{S_U0}, v{Z + 4}',
             f'ds_read_b128 {vr(P, 4)}, v{Z + 4}', f'ds_read_b128 {vr(P + 4, 4)}, v{Z + 4} offset:16'] + bl + final(S_F1, S_F2)[:-1]
        E = [f'v_subrev_u32 v{Z + 6}, s{S_U0}, v{vXi1}', f'v_lshrrev_b32 v{Z + 6}, 8, v{Z + 6}', f'v_lshrrev_b32 v{Z + 5}, 3, v0', f'v_cmp_gt_u32 vcc, v{Z + 6}, v{Z + 5}',
             f'v_min_u32 v{Z + 5}, v{Z + 5}, v{Z + 6}', f'v_lshlrev_b32 v{Z + 5}, 4, v{Z + 5}', f'v_add_u32 v{Z + 5}, s{S_RC}, v{Z + 5}',
             ] + [f'v_add_f32 v{P + a_}, v{P + a_}, v{P + b_}' for a_, b_ in ((0, 1), (2, 3), (4, 5), (6, 7), (0, 2), (4, 6), (0, 4))]
        E += [f'v_add_f32_dpp v{P}, v{P}, v{P} {ctl} row_mask:0xf bank_mask:0xf' for ctl in ('quad_perm:[1,0,3,2]', 'quad_perm:[2,3,0,1]', 'row_half_mirror')]
        L += interleave([f'v_add_f32_dpp v{Z}, v{Z}, v{Z} {ctl} row_mask:{rm} bank_mask:0xf' for ctl, rm in DPPS], E)
        L += [f'v_cndmask_b32 v{P}, v{Z}, v{P}, vcc', 's_bitset1_b32 vcc_hi, 31', 's_mov_b64 exec, vcc', f'ds_write_b32 v{Z + 5}, v{P}', 's_mov_b64 exec, -1']
        L += self.stamp(9) + self.stamp_flush() + self.probe('cend') + [f's_cmp_eq_u32 s{S_WAVE}, 0', 's_cbranch_scc1 L_cpub', 's_waitcnt lgkmcnt(0)', 's_barrier', 's_endpgm',
              'L_cpub:', f's_load_dword s{S_BOUT}, s[{S_BO}:{S_BO + 1}], 0'] + self.pubsrd() + [
              'v_lshlrev_b32 v6, 2, v0', f'v_add_u32 v2, {RC}, v6', 'v_add_u32 v4, 1024, v6',
              f's_mul_i32 s{S_T1}, s{S_MB}, 192', f's_add_u32 s{S_T1}, s{S_T1}, {13 * WSP}',
              'v_mov_b32 v13, -1', 's_mov_b32 exec_hi, 0xffff', f'buffer_store_dword v13, v6, {srd(SRD_WS)}, s{S_T1} offen sc1', 's_mov_b64 exec, 1',
              f'buffer_load_dword v250, v6, {srd(SRD_OUT)}, 0 offen', f'buffer_load_dword v251, v6, {srd(SRD_DBG)}, 0 offen offset:240 sc1', 's_mov_b64 exec, -1',
              f's_mul_i32 s{S_T0}, s{S_MB}, 3', f's_mul_i32 s{S_T2}, s{S_T0}, 3277', f's_lshr_b32 s{S_T2}, s{S_T2}, 16',
              f'v_add_u32 v7, s{S_T2}, v0', f's_mul_i32 s{S_T2}, s{S_T2}, 20', f's_add_u32 s{S_T2}, s{S_T2}, 20',
              f's_sub_u32 s{S_T2}, s{S_T2}, s{S_T0}', f's_min_u32 s{S_T2}, s{S_T2}, 3', f's_sub_u32 s{S_T0}, 3, s{S_T2}',
              f'v_mov_b32 v5, s{S_T0}', f'v_writelane_b32 v5, s{S_T2}, 0',
              f's_cmp_eq_u32 s{S_T0}, 0', f's_cselect_b32 s{S_T0}, 1, 3',
              'v_lshlrev_b32 v3, 4, v0', 's_mov_b32 exec_hi, 0xffff', 's_waitcnt vmcnt(0) lgkmcnt(0)', 's_barrier'] + self.probe('cend2') + ['ds_read_b32 v64, v2']
        L += (self.stamp(16) if o.diag else [])
        L += ['v_min_u32 v64, -2, v64'] if o.sent else []
        L += [f'buffer_store_dword v64, v6, {srd(SRD_WS)}, s{S_T1} offen sc1', f's_mov_b32 exec_lo, s{S_T0}', 's_mov_b32 exec_hi, 0', 's_branch L_pub']
        fin_ = self.seq(L)
        blk = self.P.static[mark0:]
        del self.P.static[mark0:]
        at = self.P.static.index(self.pub[-1]) + 1
        self.P.static[at:at] = blk + self.ldblk
        L = ['L_cslow:']
        for (ctl, rm) in (('row_shr:1', '0xf'), ('row_shr:2', '0xf'), ('row_shr:4', '0xf'), ('row_shr:8', '0xf'),
                          ('row_bcast:15', '0xa'), ('row_bcast:31', '0xc')):
            L.append(f'v_max_f32_dpp v{vM}, v{vM}, v{vM} {ctl} row_mask:{rm} bank_mask:0xf')
        L += [f'v_readlane_b32 s{S_U0}, v{vM}, 63', f's_mov_b32 s{S_HI}, 0',
              f's_lshr_b32 s{S_U0}, s{S_U0}, 23', f's_min_u32 s{S_U0}, s{S_U0}, {127 + 55}',
              f's_lshr_b32 s{S_U1}, s{S_IV}, 23', f's_sub_u32 s{S_U1}, s{S_U1}, 47', f's_lshr_b32 s{S_U1}, s{S_U1}, 1', f's_min_u32 s{S_U1}, s{S_U1}, 59',
              f's_sub_u32 s{S_U1}, 131, s{S_U1}', f's_max_u32 s{S_U0}, s{S_U0}, s{S_U1}',
              f's_sub_u32 s{S_U1}, {127 + 4 + 127}, s{S_U0}',
              f's_lshl_b32 s{S_U2}, s{S_U1}, 1', f's_sub_u32 s{S_U2}, s{S_U2}, 127',
              f's_sub_u32 s{S_G}, 254, s{S_U2}', f's_lshl_b32 s{S_G}, s{S_G}, 23',
              f'v_mov_b32 v{P}, s{S_G}', f'v_mul_f32 v{P + 1}, s{S_CG}, v{P}', f'v_mul_f32 v{P}, s{S_IV}, v{P}',
              f'v_readfirstlane_b32 s{S_F1}, v{P + 1}', f'v_readfirstlane_b32 s{S_F2}, v{P}',
              f's_lshl_b32 s{S_U1}, s{S_U1}, 23', f's_lshl_b32 s{S_U2}, s{S_U2}, 23']
        TS = P
        for j in range(13):
            L += [f'v_mul_f32 v{TS}, s{S_U1}, v{XR + 2 * j}', f'v_mul_f32 v{TS + 1}, s{S_U1}, v{XR + 2 * j + 1}',
                  f'v_mul_f32 v{TS + 2}, s{S_U2}, v{XR + 2 * j}', f'v_mul_f32 v{TS + 3}, s{S_U2}, v{XR + 2 * j + 1}',
                  f'v_cvt_pk_f16_f32 v{TS + 20 + j}, v{TS}, v{TS + 1}', f'v_cvt_pk_bf16_f32 v{TS + 4 + j}, v{TS + 2}, v{TS + 3}',
                  f'ds_write_b32 v{vIw}, v{TS + 20 + j} offset:{j * IMGP}', f'ds_write_b32 v{vXa}, v{TS + 4 + j} offset:{XOFF(2 * j)}']
        L += [f'v_mov_b32 v{TS}, s{S_U2}', f'v_cvt_pk_bf16_f32 v{TS}, v{TS}, v{TS}',
              's_mov_b32 exec_hi, 0', f'ds_write_b32 v{vXa}, v{TS} offset:{XOFF(26)}', 's_mov_b32 exec_hi, -1',
              's_waitcnt lgkmcnt(0)', 's_branch L_cconv']
        slow = self.seq(L)
        sdown = self.seq(self.sdown)
        cF = self.seq(self.first)
        traces = []
        for w in range(8):
            grp = w >> 2
            c2 = c2a + (c2g1 + (c2b if w == 4 else []) + c2g1d if grp else c2g0) + c2c
            it = lambda sl, first: cA + (slow if sl else []) + cB0 + (cF if first else cVM) + cB
            traces.append(PRE(w) + c2 + it(0, 1) + it(0, 0) + it(0, 0)[:-ntail] + fin_ + self.pub)
            if w in (0, 4):
                traces.append(PRE(w, sdown) + c2 + it(1, 1) + it(1, 0)[:-ntail] + fin_ + self.pub)
        return traces

    def build(self):
        pro = self.prologue()
        d = self.dnn()
        cs = self.cin()
        self.seq(['L_end:', 's_endpgm'])
        traces = [pro + c for c in d + cs] + self.extra_traces
        for t in traces:
            resolve_waits(t)
        for _ in range(2):
            for t in traces:
                resolve_hazards(t)
        hdr = open(os.path.join(os.path.dirname(os.path.abspath(__file__)), 'header.txt')).read()
        txt = hdr + f'; @launch grid=(256,1,1) block=(512,1,1) lds={LDS_TOTAL}\n'
        txt += f'''.amdgcn_target "amdgcn-amd-amdhsa--gfx950"
{DOC}.text
.globl {KNAME}
.p2align 8
.type {KNAME},@function
{KNAME}:
'''
        body_ = self.P.emit()
        if self.opt.align:
            for lab in ('L_dnn_loop0:', 'L_dnn_loop1:', 'L_cin_loop:', 'L_epi:'):
                pad = '  s_nop 0\n' if self.opt.align > 100 else ''
                body_ = body_.replace(lab + '\n', f'.p2align {self.opt.align % 100}\n{pad}{lab}\n')
        if self.opt.cwalk:
            lines = body_.split('\n')
            i0, i1 = lines.index('L_w2:'), lines.index('L_cslow:')
            out, k, cnt = lines[:i0], 0, 0
            seg = lines[i0:i1]
            prot = 0
            for n_, l in enumerate(seg):
                out.append(l)
                t = l.strip()
                cnt += 1
                inmain = 'L_novm:' in seg[:n_ + 1]
                nxt = seg[n_ + 1].strip() if n_ + 1 < len(seg) else ''
                ok = t.endswith(':') or (cnt >= self.opt.cwalk and ('mfma' in t and nxt.startswith('v_pk') if inmain else t.startswith(('ds_', 'v_perm', 'v_cvt_pk'))))
                if ok and t not in ('L_cin_loop:', 'L_cconv:', 'L_scaled:'):
                    out += [f'L_wp{k}:', f'  s_cbranch_execz L_wp{k + 1}']
                    k += 1; cnt = 0
            j = lines.index('L_first:')
            rest = lines[i1:j + 1] + [f'L_wp{k}:', '  s_cbranch_execz L_wret'] + lines[j + 1:]
            body_ = '\n'.join(out + rest)
            print('walk pads', k + 1)
            self.npads = k + 1
            for q_ in range(4):
                body_ = body_.replace(f'L_WENTRY{q_}', f'L_wp{q_ * (k + 1) // 4}')
        if self.opt.fix:
            body_ = fixalign.fix(body_ + 'L_tables:\n', self.opt.fix)[:-len('L_tables:\n')]
        txt += body_
        tb = self.tables()
        assert len(tb) == 16 * 256
        txt += '.p2align 8\nL_tables:\n' + ''.join('.long ' + ', '.join(f'{x:#x}' for x in tb[i:i + 8]) + '\n' for i in range(0, len(tb), 8))
        txt += f'''.section .rodata,"a"
.p2align 6
.amdhsa_kernel {KNAME}
  .amdhsa_next_free_vgpr 256
  .amdhsa_next_free_sgpr 102
  .amdhsa_accum_offset 256
  .amdhsa_group_segment_fixed_size 0
  .amdhsa_kernarg_size 88
  .amdhsa_user_sgpr_count 2
  .amdhsa_user_sgpr_kernarg_segment_ptr 1
  .amdhsa_system_sgpr_workgroup_id_x 1
  .amdhsa_float_denorm_mode_32 {self.opt.denorm}
.end_amdhsa_kernel
'''
        return txt


def main():
    ap = argparse.ArgumentParser()
    ap.add_argument('-o', default='standalone__deep_cross_xdeepfm__recsys.s')
    ap.add_argument('--stamps', action='store_true')
    ap.add_argument('--nodma', action='store_true')
    ap.add_argument('--cpf', type=int, default=1)
    ap.add_argument('--coop', type=int, default=0)
    ap.add_argument('--coopw', type=int, default=2)
    ap.add_argument('--tbpos', type=int, default=0)
    ap.add_argument('--dbar3', type=int, default=1)
    ap.add_argument('--tlb', type=int, default=0)
    ap.add_argument('--tlb2', type=int, default=1)
    ap.add_argument('--itst', type=int, default=0)
    ap.add_argument('--diag', type=int, default=0)
    ap.add_argument('--dbg', default='')
    ap.add_argument('--lead3', type=int, default=1)
    ap.add_argument('--morder', type=int, default=0)
    ap.add_argument('--etlb', type=int, default=0)
    ap.add_argument('--lateb', type=int, default=0)
    ap.add_argument('--wfl', default='')
    ap.add_argument('--xfl', default='')
    ap.add_argument('--tag', type=int, default=0)
    ap.add_argument('--idxfirst', type=int, default=1)
    ap.add_argument('--bpos', type=int, default=2)
    ap.add_argument('--sigat', type=int, default=4)
    ap.add_argument('--epx', type=int, default=1)
    ap.add_argument('--denorm', type=int, default=3)
    ap.add_argument('--mprio', type=int, default=0)
    ap.add_argument('--swap', type=int, default=0)
    ap.add_argument('--bov', type=int, default=1)
    ap.add_argument('--rfirst', type=int, default=0)
    ap.add_argument('--g1x', type=int, default=0)
    ap.add_argument('--ldsred', type=int, default=0)
    ap.add_argument('--csnake', type=int, default=0)
    ap.add_argument('--cswap', type=int, default=0)
    ap.add_argument('--align', type=int, default=0)
    ap.add_argument('--c2', type=int, default=0)
    ap.add_argument('--d1', type=int, default=0)
    ap.add_argument('--cstr', type=int, default=3)
    ap.add_argument('--bearly', type=int, default=1)
    ap.add_argument('--w2late', type=int, default=1)
    ap.add_argument('--aov', type=int, default=5)
    ap.add_argument('--upos', type=int, default=1)
    ap.add_argument('--calt', type=int, default=1)
    ap.add_argument('--pfpos', type=int, default=1)
    ap.add_argument('--wlate', type=int, default=0)
    ap.add_argument('--dbar2', type=int, default=0)
    ap.add_argument('--dbar', type=int, default=0)
    ap.add_argument('--pfw', type=int, default=0)
    ap.add_argument('--pfx', type=int, default=0)
    ap.add_argument('--pfx0', type=int, default=4)
    ap.add_argument('--pfs', type=int, default=13)
    ap.add_argument('--dcoopx', type=int, default=1)
    ap.add_argument('--dcx0', type=int, default=0)
    ap.add_argument('--dcxpos', type=int, default=-1)
    ap.add_argument('--pfe0', type=int, default=2)
    ap.add_argument('--pfne', type=int, default=13)
    ap.add_argument('--prio47', type=int, default=0)
    ap.add_argument('--lookahead', type=int, default=5)
    ap.add_argument('--nz', type=int, default=6)
    ap.add_argument('--nwf', type=int, default=8)
    ap.add_argument('--hiat', type=int, default=4)
    ap.add_argument('--wmerge', type=int, default=0)
    ap.add_argument('--gapv', type=int, default=6)
    ap.add_argument('--slow', type=int, default=0)
    ap.add_argument('--rshare', type=int, default=1)
    ap.add_argument('--dwalk', type=int, default=0)
    ap.add_argument('--band', type=int, default=0)
    ap.add_argument('--absol', type=int, default=0)
    ap.add_argument('--rev', type=int, default=1)
    ap.add_argument('--xg1', type=int, default=0)
    ap.add_argument('--bou', type=int, default=1)
    ap.add_argument('--sjw', type=int, default=7)
    ap.add_argument('--cwalk', type=int, default=0)
    ap.add_argument('--few', default='')
    ap.add_argument('--econv', type=int, default=0)
    ap.add_argument('--nsh', type=int, default=16)
    ap.add_argument('--sh0', type=int, default=5)
    ap.add_argument('--dirt', type=int, default=0)
    ap.add_argument('--mrg', type=int, default=0)
    ap.add_argument('--g1p', type=int, default=0)
    ap.add_argument('--sa', type=int, default=4)
    ap.add_argument('--sbg', type=int, default=16)
    ap.add_argument('--bwat', type=int, default=0)
    ap.add_argument('--x2n', type=int, default=8)
    ap.add_argument('--sent', type=int, default=1)
    ap.add_argument('--spec', type=int, default=0)
    ap.add_argument('--probe', default='')
    ap.add_argument('--skew', type=int, default=0)
    ap.add_argument('--fix', type=int, default=64)
    ap.add_argument('--walk', type=int, default=0)
    ap.add_argument('--eal', type=int, default=3)
    ap.add_argument('--eoff', type=int, default=0)
    ap.add_argument('--ct', default='')
    ap.add_argument('--rot', type=int, default=13)
    ap.add_argument('--i0', type=int, default=1)
    ap.add_argument('--i1', type=int, default=10)
    ap.add_argument('--burn', type=int, default=0)
    ap.add_argument('--lord', type=int, default=1)
    ap.add_argument('--lprio', type=int, default=0)
    ap.add_argument('--rsp', type=int, default=0)
    ap.add_argument('--tch', type=int, default=0)
    ap.add_argument('--tf', type=int, default=4)
    ap.add_argument('--toff', type=int, default=0)
    ap.add_argument('--tw0', type=int, default=12)
    ap.add_argument('--xat', type=int, default=0)
    ap.add_argument('--pf1', type=int, default=1)
    ap.add_argument('--lpf', type=int, default=20)
    ap.add_argument('--lpfit', type=int, default=6)
    ap.add_argument('--x1m', type=int, default=10)
    ap.add_argument('--bgap', type=int, default=6)
    ap.add_argument('--cprio', type=int, default=1)
    ap.add_argument('--x1n', type=int, default=5)
    ap.add_argument('--w0', type=int, default=2)
    ap.add_argument('--dbar1', type=int, default=1)
    ap.add_argument('--aon', type=int, default=2)
    ap.add_argument('--cbar', type=int, default=0)
    ap.add_argument('--vmpos', type=int, default=2)
    ap.add_argument('--il2', type=int, default=0)
    ap.add_argument('--p1', type=int, default=0)
    ap.add_argument('--pm', type=int, default=2)
    ap.add_argument('--cbov', type=int, default=3)
    ap.add_argument('--p0', type=int, default=0)
    ap.add_argument('--max2', type=int, default=2)
    ap.add_argument('--eager', type=int, default=0)
    ap.add_argument('--cst', type=int, default=0)
    ap.add_argument('--x0', type=int, default=60)
    ap.add_argument('--xlat', type=int, default=18)
    ap.add_argument('--xper', type=int, default=3)
    ap.add_argument('--xc0', type=int, default=0)
    ap.add_argument('--n3', type=int, default=1)
    ap.add_argument('--xi0', type=int, default=1)
    ap.add_argument('--pfsat', type=int, default=0)
    ap.add_argument('--g1prio', type=int, default=0)
    ap.add_argument('--xearly', type=int, default=1)
    ap.add_argument('--cpfd', type=int, default=4)
    ap.add_argument('--cla', type=int, default=1)
    ap.add_argument('--war', type=int, default=1)
    opt = ap.parse_args()
    resolve_waits.dbg = 'dup' in opt.dbg
    g = Gen(opt)
    txt = g.build()
    open(opt.o, 'w').write(txt)
    print('wrote', opt.o, len(txt), 'bytes')


if __name__ == '__main__':
    main()
```

```python
import sys, os, struct, argparse
sys.path.insert(0, os.path.dirname(os.path.abspath(__file__)))
from asmlib import I, WaitTag, Touch, Prog, resolve_waits, resolve_hazards
import cin16, fixalign

KNAME = 'standalone__deep_cross_xdeepfm__recsys_kernel'
LDS_TOTAL = 163840

XSLOT = 320 * 128
WR = 3 * XSLOT + 8192
WSLOT = 32 * 256
L_BIAS = 3 * XSLOT
L_W2 = L_BIAS + 256
RB = L_W2 + 256
assert WR % 32768 == 0 and WR + 4 * WSLOT <= LDS_TOTAL
WSP = 16640
assert RB + 2560 <= LDS_TOTAL

W2P = 1536
SSZ = 677 * 64
FRS = 0
V3OFF = 0
A1 = 6144
FR = A1
FRL = FR + 33 * 1024
A3 = FRL + 2048
SG = A3
A2 = SG + SSZ
SQ = A2
V2S = SQ + SSZ
L_WCO = V2S + 832
L_FLG = L_WCO + 192
L_MX = L_FLG + 16
RC = L_FLG + 64
XB = V2S + 2496
XPP = 1056
XBSZ = 3 * XPP + 7 * 128
IMG = A3
IMGP = 160
IMGSZ = 33 * IMGP
XB2 = IMG + 8 * IMGSZ
PART = XB2 + 8 * XBSZ
XOFF = lambda f: (f & 3) * XPP + (f >> 2) * 128
assert RC + 512 <= V2S + 1664
assert XB + 8 * XBSZ <= LDS_TOTAL and XB % 16 == 0 and A2 % 64 == 0 and A3 % 64 == 0 and L_WCO % 16 == 0 and V2S % 64 == 0
assert PART + 8 * 1536 <= V2S + 832 and IMGSZ % 32 == 0 and XB2 % 16 == 0

S_WAVE = 3
S_IDX, S_TAB, S_CIN, S_WCO, S_W1, S_B1, S_W2, S_BO, S_OUT, S_DBG, S_WS = 4, 6, 8, 10, 12, 14, 16, 18, 20, 22, 24
S_MB, S_R = 26, 27
SRD_IDX, SRD_TAB, SRD_CIN, SRD_WCO, SRD_W, SRD_B1, SRD_W2, SRD_OUT, SRD_WS, SRD_DBG = 28, 32, 36, 40, 44, 48, 52, 56, 60, 64
S_T0, S_T1, S_T2, S_T3 = 68, 69, 70, 71
S_LOOP, S_IDXOFF, S_WSOFF, S_WMB, S_XM0, S_N0, S_C0, S_CW, S_BOUT, S_TW = 72, 73, 74, 75, 76, 77, 78, 79, 80, 81
S_EX = 82
S_GRP, S_RC = 84, 85
S_ST = 86
S_M26, S_MASK = 90, 92
S_SAMP, S_STG, S_STG9, S_TGT = 94, 95, 96, 97
S_M26B = 98
S_GW = 100
S_TAGT = 0
S_TAG = 1
S_PW = 101
S_PX = 77
S_PXE = 73

GELU_C0 = -2.0 * 0.7978845608028654 * 1.4426950408889634
GELU_C1 = GELU_C0 * 0.044715


def f32hex(x):
    return '0x%08x' % struct.unpack('<I', struct.pack('<f', x))[0]


def vr(a, n):
    return f'v[{a}:{a + n - 1}]' if n > 1 else f'v{a}'


def srd(a):
    return f's[{a}:{a + 3}]'


def flat(gs):
    res = []
    for c in gs:
        if isinstance(c, (tuple, list)):
            res += flat(c)
        else:
            res.append(c)
    return res


def interleave(a, b):
    out = []
    ia = ib = 0
    na, nb = len(a), len(b)
    while ia < na or ib < nb:
        if ib >= nb or (ia < na and ia * nb <= ib * na):
            out.append(a[ia]); ia += 1
        else:
            out.append(b[ib]); ib += 1
    return out


SLOTS = []
for j in range(0, 26, 2):
    for s in range(0, 14 if j <= 12 else 13):
        SLOTS.append((j, (j + s) % 26))
assert len(SLOTS) == 176
DUP_SLOT = SLOTS.index((12, 25))
assert all((d * 2521) >> 16 == d // 26 for d in range(800))
assert all((d * 10923) >> 16 == d // 6 for d in range(64))
assert all((d * 5042) >> 16 == d // 13 for d in range(170))
assert all((d * 3277) >> 16 == d // 20 for d in range(264))


DOC = '''; ---------------------------------------------------------------------------------------------
; Generated by tools/gen23.py (own generator; waits / hazard nops derived from instruction traces).
;
;       U[i,j,k] = sum_h W2[h,i,j] V3[h,k]
;   Both quadratic forms use the 351 distinct products x_j x_k (j<=k) with symmetrised weights, evaluated by
;   DNN branch: full bf16 GEMM + bias + tanh-GELU (x / (1 + exp(-2u))) + dot with w_dnn2.
;   their own producer) and counters in d_debug; the last arriver of a row block adds up and writes d_out.
;   L_tables holds constant per-lane LDS address tables (functions of the lane id only).
; ---------------------------------------------------------------------------------------------
'''


class Gen:
    def __init__(self, opt):
        self.opt = opt
        self.P = Prog()

    def seq(self, lines):
        return [self.P.add(l) for l in flat(lines)]

    def build_srd(self, dst, ptr, size):
        return [f's_mov_b32 s{dst}, s{ptr}', f's_and_b32 s{dst + 1}, s{ptr + 1}, 0xffff',
                f's_mov_b32 s{dst + 2}, {size}', f's_mov_b32 s{dst + 3}, 0x20000']

    def stamp(self, slot):
        if not self.opt.stamps or (self.opt.few and slot not in [int(x) for x in self.opt.few.split(',')]):
            return []
        return [f's_memtime s[{S_ST}:{S_ST + 1}]', f's_memrealtime s[{S_ST + 2}:{S_ST + 3}]', 's_waitcnt lgkmcnt(0)',
                f'v_writelane_b32 v252, s{S_ST}, {slot}', f'v_writelane_b32 v253, s{S_ST + 2}, {slot}']

    def probe(self, name, wave=4):
        if self.opt.probe != name:
            return []
        return ['s_memrealtime s[88:89]', 's_waitcnt lgkmcnt(0)']

    def stamp_flush(self):
        if not self.opt.stamps:
            return []
        L = self.build_srd(SRD_WS, S_WS, 0x10000000)
        L += [f's_lshl_b32 s{S_C0}, s2, 3', f's_add_u32 s{S_C0}, s{S_C0}, s{S_WAVE}',
              f's_lshl_b32 s{S_C0}, s{S_C0}, 8', f's_add_u32 s{S_C0}, s{S_C0}, 0x100000',
              'v_lshlrev_b32 v254, 3, v0', 's_mov_b32 exec_hi, 0',
              f'buffer_store_dwordx2 v[252:253], v254, {srd(SRD_WS)}, s{S_C0} offen', 's_mov_b32 exec_hi, -1']
        return L

    def stamp0(self):
        if not self.opt.stamps:
            return []
        return ['v_mov_b32 v252, 0xcdcdcdcd', 'v_mov_b32 v253, 0xcdcdcdcd',
                f'v_writelane_b32 v252, s{S_ST}, 0', f'v_writelane_b32 v253, s{S_ST + 2}, 0'] + self.stamp(15)

    def tlb2(self, t):
        L = self.build_srd(SRD_WS, S_WS, 0x10000000) + self.build_srd(SRD_OUT, S_OUT, 8192) + self.build_srd(SRD_DBG, S_DBG, 256)
        L += [f's_load_dword s{S_BOUT}, s[{S_BO}:{S_BO + 1}], 0', f'v_mov_b32 v{t}, 0', 's_mov_b64 exec, 1',
              f's_mov_b32 s{S_TW}, 0x80000',
              f'buffer_load_dword v{t + 1}, v{t}, {srd(SRD_WS)}, s{S_TW} offen',
              f'buffer_load_dword v{t + 2}, v{t}, {srd(SRD_OUT)}, 0 offen',
              's_mov_b64 exec, -1']
        return L

    def tlb1(self, vtmp, vdst):
        if not self.opt.etlb:
            return self.build_srd(SRD_TAB, S_TAB, 100000 * 128)
        return self.build_srd(SRD_TAB, S_TAB, 100000 * 128) + [
            f'v_mov_b32 v{vtmp}, s{S_BOUT}', f'buffer_load_dword v{vdst}, v{vtmp}, {srd(SRD_TAB)}, 0 offen']

    def gettag(self, lab, t, VT):
        return [f's_cmp_lg_u32 s{S_WAVE}, 0', f's_cbranch_scc1 {lab}',
                f's_memrealtime s[{S_TAGT}:{S_TAGT + 1}]'] + self.build_srd(SRD_DBG, S_DBG, 256) + [
                f's_lshl_b32 s{S_TW}, s{S_MB}, 2', f'v_mov_b32 v{t}, s{S_TW}', 's_waitcnt lgkmcnt(0)',
                f's_or_b32 s{S_TAG}, s{S_TAGT}, 1', f'v_mov_b32 v{VT}, s{S_TAG}', f'v_mov_b32 v{VT + 1}, 0',
                's_mov_b64 exec, 1',
                f'buffer_atomic_cmpswap v[{VT}:{VT + 1}], v{t}, {srd(SRD_DBG)}, 0 offen offset:128 sc0',
                's_mov_b64 exec, -1', f'{lab}:']

    def prologue(self):
        L = []
        if self.opt.stamps:
            L += [f's_memtime s[{S_ST}:{S_ST + 1}]', f's_memrealtime s[{S_ST + 2}:{S_ST + 3}]']
        L += ['s_cmp_ge_u32 s2, 256', 's_cbranch_scc1 L_end',
              's_load_dwordx16 s[4:19], s[0:1], 0',
              's_load_dwordx4 s[20:23], s[0:1], 64',
              's_load_dwordx2 s[24:25], s[0:1], 80',
              'v_lshrrev_b32 v1, 6, v0']
        if self.opt.cpf:
            L += [f's_getpc_b64 s[{S_MASK}:{S_MASK + 1}]', 'L_pc:',
                  f's_and_b32 s{S_T0}, s2, 0xf8', f'v_add_u32 v2, s{S_T0}, v1', 'v_and_b32 v3, 32, v0', 'v_lshl_add_u32 v2, v3, 3, v2', 'v_lshlrev_b32 v2, 7, v2',
                  f'v_min_u32 v2, L_end-L_pc, v2',
                  f'v_mov_b32 v3, s{S_MASK + 1}',
                  f'v_add_co_u32 v2, vcc, s{S_MASK}, v2', 'v_addc_co_u32 v3, vcc, 0, v3, vcc',
                  'global_load_dword v251, v[2:3], off']
        if self.opt.skew:
            L += ['s_memrealtime s[86:87]', 's_mov_b32 s88, 0']
        L += ['v_and_b32 v0, 63, v0',
              f'v_readfirstlane_b32 s{S_WAVE}, v1',
              f's_and_b32 s{S_T0}, s2, 7', f's_lshr_b32 s{S_T1}, s2, 3', f's_xor_b32 s{S_T1}, s{S_T1}, {31 * self.opt.rev}',
              f's_and_b32 s{S_BOUT}, s2, 0xf8', f's_add_u32 s{S_BOUT}, s{S_BOUT}, s{S_WAVE}', f's_lshl_b32 s{S_BOUT}, s{S_BOUT}, {self.opt.etlb}',
              f's_min_u32 s{S_T2}, s{S_T0}, 1', f's_add_u32 s{S_T3}, s{S_T1}, s{S_T2}',
              f's_cmp_ge_u32 s{S_T3}, 22', 's_cbranch_scc1 L_cin',
              f's_mul_i32 s{S_T0}, s{S_T0}, 21', f's_add_u32 s{S_T0}, s{S_T0}, s{S_T3}',
              ]
        if self.opt.band == 0:
            L += [f's_mul_i32 s{S_MB}, s{S_T0}, 5042', f's_lshr_b32 s{S_MB}, s{S_MB}, 16',
                  f's_mul_i32 s{S_T1}, s{S_MB}, 13', f's_sub_u32 s{S_R}, s{S_T0}, s{S_T1}']
        else:
            assert all((d * 9363) >> 16 == d // 7 for d in range(91)) and all((d * 10923) >> 16 == d // 6 for d in range(78))
            L += [f's_sub_u32 s{S_T1}, 168, s{S_T0}', f's_cmp_lt_u32 s{S_T0}, 91', f's_cselect_b32 s{S_T0}, s{S_T0}, s{S_T1}',
                  f's_cselect_b32 s{S_T1}, 0, 1560', f's_cselect_b32 s{S_T2}, 7, 6', f's_cselect_b32 s{S_R}, 0, 7', f's_add_u32 s{S_T1}, s{S_T1}, 9363',
                  f's_mul_i32 s{S_MB}, s{S_T0}, s{S_T1}', f's_lshr_b32 s{S_MB}, s{S_MB}, 16', f's_mul_i32 s{S_T1}, s{S_MB}, s{S_T2}',
                  f's_add_u32 s{S_R}, s{S_R}, s{S_T0}', f's_sub_u32 s{S_R}, s{S_R}, s{S_T1}']
        return self.seq(L)

    def dnn(self):
        o = self.opt
        vW = [1, 2, 3, 4]
        vX = [[5, 6], [7, 8]]
        vPa, vPc = 9, 10
        WF, XA, ACC = 16, 48, 88
        W2F = WF
        KC0, KC1, KONE = 12, 14, 248
        SUMP, GT = 32, 52
        vIdxOff, vCh, vWD, vBL = 1, [2, 3], [4, 5], 11
        ST, VO = 16, 56
        T = 100
        g, i4, q = T + 16, T + 17, T + 18
        PI = T + 8

        def acc(tn, tm):
            return ACC + (tm * 4 + tn) * 4

        def small(srd_, dst):
            return [f's_mov_b32 m0, {dst}', 's_mov_b64 exec, 0xffff',
                    I(f'buffer_load_dwordx4 v{vBL}, {srd(srd_)}, s{S_N0} offen lds', tag='BIAS'), 's_mov_b64 exec, -1']
        L = [f's_lshl_b32 s{S_N0}, s{S_R}, 8', f's_mul_i32 s{S_T3}, s{S_MB}, 320',
             f'v_lshrrev_b32 v{g}, 4, v0', f'v_lshlrev_b32 v{vBL}, 4, v0', f's_and_b32 s{S_CW}, s{S_WAVE}, 3',
             f's_cmp_lt_u32 s{S_WAVE}, 4', 's_cbranch_scc1 L_cmp']
        c0 = self.seq(L)
        self.ldat = len(self.P.static)
        PI = T

        RG, CG = S_T0, S_T1
        L = ['L_cmp:', f's_mul_i32 s{S_T2}, s{S_WAVE}, 13', f'v_min_u32 v{q}, 12, v0', f'v_add_u32 v{q}, s{S_T2}, v{q}',
             f'v_lshrrev_b32 v{i4}, 1, v{q}', f'v_mul_u32_u24 v{i4}, 96, v{i4}', f'v_lshl_add_u32 v{q}, v{q}, 2, v{i4}',
             f's_mul_i32 s{S_C0}, s{S_R}, 25', f's_min_u32 s{S_C0}, s{S_C0}, 294',
             f's_add_u32 s{S_C0}, s{S_C0}, s{S_T3}', f's_mul_i32 s{S_C0}, s{S_C0}, 104', 's_waitcnt lgkmcnt(0)']
        ct = [int(x) for x in o.ct]
        L += self.build_srd(SRD_IDX, S_IDX, 4096 * 104)
        if ct:
            L += [f'buffer_load_dwordx4 {vr(PI, 4)}, v{q}, {srd(SRD_IDX)}, s{S_C0} offen']
        if ct and max(ct) > 3:
            L += [f'buffer_load_dwordx4 {vr(PI + 4, 4)}, v{q}, {srd(SRD_IDX)}, s{S_C0} offen offset:16']
        L += self.tlb1(T + 14, T + 15)
        touch = [x for k in ct for x in (f'v_lshlrev_b32 v{PI + k}, 7, v{PI + k}', f'buffer_load_dword v{XA + k}, v{PI + k}, {srd(SRD_TAB)}, 0 offen')]
        L += self.build_srd(SRD_B1, S_B1, 3328) + small(SRD_B1, L_BIAS) + self.stamp0()
        L += [f's_and_b32 s{RG}, s{S_WAVE}, 1', f's_lshr_b32 s{CG}, s{S_WAVE}, 1',
              f'v_bfe_u32 v{i4}, v0, 2, 2', f'v_lshl_add_u32 v{q}, v{g}, 3, v{i4}', f'v_lshlrev_b32 v{q}, 8, v{q}',
              f'v_bfe_u32 v{i4}, v0, 2, 3', f's_lshl_b32 s{S_T2}, s{CG}, 2', f'v_xor_b32 v{i4}, s{S_T2}, v{i4}',
              f'v_lshl_add_u32 v{q}, v{i4}, 5, v{q}', f'v_and_b32 v{i4}, 3, v0', f'v_lshl_add_u32 v{q}, v{i4}, 3, v{q}',
              f'v_add_u32 v{vW[0]}, {WR}, v{q}']
        L += [f'v_xor_b32 v{vW[tn]}, {32 * tn}, v{vW[0]}' for tn in range(1, 4)]
        L += [f's_lshl_b32 s{S_T2}, s{CG}, 7', f's_add_u32 s{S_T2}, s{S_T2}, {L_BIAS}', f'v_lshlrev_b32 v{q}, 3, v{g}', f'v_add_u32 v{vPa}, s{S_T2}, v{q}',
              f'v_and_b32 v{q}, 15, v0', f'v_lshlrev_b32 v{q}, 7, v{q}',
              f'v_bfe_u32 v{i4}, v0, 1, 3', f'v_xor_b32 v{i4}, v{i4}, v{g}', f'v_lshl_add_u32 v{q}, v{i4}, 4, v{q}',
              f's_mul_i32 s{S_T2}, s{RG}, 20480', f'v_add_u32 v{vX[0][0]}, s{S_T2}, v{q}', f'v_xor_b32 v{vX[1][0]}, 64, v{vX[0][0]}',
              f'v_add_u32 v{vX[0][1]}, {2 * XSLOT}, v{vX[0][0]}', f'v_add_u32 v{vX[1][1]}, {2 * XSLOT}, v{vX[1][0]}',
              f's_mul_i32 s{S_T2}, s{S_WAVE}, 640', f's_add_u32 s{S_T2}, s{S_T2}, {RB}',
              f'v_and_b32 v{q}, 15, v0', f'v_lshlrev_b32 v{q}, 2, v{q}', f'v_add_u32 v{q}, s{S_T2}, v{q}',
              f'v_lshrrev_b32 v{i4}, 5, v0', f'v_lshl_add_u32 v{q}, v{i4}, 6, v{q}', f'v_bfe_u32 v{i4}, v0, 4, 1', f'v_lshl_add_u32 v{vPc}, v{i4}, 7, v{q}',
              f's_mov_b32 s{S_LOOP}, 0',
              f'v_mov_b32 v{KC0}, {f32hex(GELU_C0)}', f'v_mov_b32 v{KC0 + 1}, {f32hex(GELU_C0)}',
              f'v_mov_b32 v{KC1}, {f32hex(GELU_C1)}', f'v_mov_b32 v{KC1 + 1}, {f32hex(GELU_C1)}']

        def pkreads(off, dst):
            return [f'ds_read_b64 {vr(dst + 4 * tn + 2, 2)}, v{vPa} offset:{off + 32 * tn}' for tn in range(4)]

        def unp(dst):
            c = []
            for tn in range(4):
                r = dst + 4 * tn
                c += [f'v_lshlrev_b32 v{r}, 16, v{r + 2}', f'v_and_b32 v{r + 1}, 0xffff0000, v{r + 2}',
                      f'v_lshlrev_b32 v{r + 2}, 16, v{r + 3}', f'v_and_b32 v{r + 3}, 0xffff0000, v{r + 3}']
            return c
        L += touch + self.stamp(6)
        BI = [WaitTag(vm_tags=['BIAS'])] + pkreads(0, acc(0, 9)) + unp(acc(0, 9)) + [f'v_mov_b64 {vr(acc(0, 8) + r, 2)}, {vr(acc(0, 9) + r, 2)}' for r in range(0, 16, 2)]

        def rX(p, k):
            xs = p % 3
            return f'ds_read_b128 {vr(XA + 4 * (k % 10), 4)}, v{vX[k % 2][xs // 2]} offset:{(xs % 2) * XSLOT + (k // 2) * 2048}'

        def rW(tn):
            return [f'ds_read_b64_tr_b16 {vr(WF + 16 * par + 4 * tn + 2 * rd, 2)}, v{vW[tn]} offset:{par * WSLOT + rd * 1024}' for par in range(2) for rd in range(2)]
        tog = lambda tn: f'v_xor_b32 v{vW[tn]}, {2 * WSLOT}, v{vW[tn]}'

        def dec(gi):
            G, tn, a_, par = gi // 16, (gi // 4) % 4, (gi // 2) % 2, gi % 2
            if o.bou:
                par ^= a_ ^ (G == 4)
                a_ ^= tn & 1
            return G, tn, a_, par
        lastx = {4 * dec(gi)[0] + 2 * dec(gi)[2] + dec(gi)[3]: gi for gi in range(80)}

        def mf(gi, first=False):
            G, tn, a_, par = dec(gi)
            d = acc(tn, 2 * G + a_)
            if first and gi % 2 == 0 and G < 4:
                return f'v_mfma_f32_16x16x32_bf16 {vr(d, 4)}, {vr(WF + 16 * par + 4 * tn, 4)}, {vr(XA + 4 * ((4 * G + 2 * a_ + par) % 10), 4)}, {vr(acc(tn, 9), 4)}'
            return f'v_mfma_f32_16x16x32_bf16 {vr(d, 4)}, {vr(WF + 16 * par + 4 * tn, 4)}, {vr(XA + 4 * ((4 * G + 2 * a_ + par) % 10), 4)}, {vr(d, 4)}'
        SH = [11, 248, 249, 250]
        nsh = o.nsh

        def shadow():
            c = []
            for b0 in range(0, nsh, 4):
                E = [(ACC + e, SH[e - b0]) for e in range(b0, min(b0 + 4, nsh))]
                for op in ('v_mul_f32 T, X, X', f'v_fma_f32 T, T, v{KC1}, v{KC0}', 'v_mul_f32 T, T, X', 'v_exp_f32 T, T', 'v_add_f32 T, 1.0, T', 'v_rcp_f32 T, T', 'v_mul_f32 X, X, T'):
                    c += [(op.replace('T', f'v{t}').replace('X', f'v{x}'), 8 if ('exp' in op or 'rcp' in op) else 4) for x, t in E]
            return c

        def cpair(p, kind, loopend=False):
            S = []
            ev = {}
            if kind == 'first':
                g_ = o.sbg + 1
                for k in range(2 * o.sa, 10):
                    ev[g_] = rX(p, k); g_ += 1
            else:
                for i_, x in enumerate(rW(3)[2:]):
                    ev[i_] = x
                for i_, k in enumerate(range(6, 10)):
                    ev[2 + i_] = rX(p, k)
            for k in range(10):
                g_ = lastx[k]
                while g_ in ev or (kind == 'first' and g_ <= o.sbg):
                    g_ += 1
                ev[g_] = rX(p, k + 10)
            BG = 48 + o.bgap if o.bou else 46 + o.bgap
            if kind != 'last':
                ev[BG], ev[BG + 1] = rX(p + 1, 0), rX(p + 1, 1)
                for k in range(2, 6):
                    ev[lastx[10 + k]] = rX(p + 1, k)
                for tn in range(4):
                    for i_, x in enumerate(rW(tn)):
                        if 66 + 4 * tn + i_ < 80:
                            ev[66 + 4 * tn + i_] = x
            sh_ = shadow() if kind == 'last' else []
            for gi in range(80):
                S.append(mf(gi, kind == 'first'))
                t = 4
                if o.dwalk and kind != 'last' and gi in (24, 40, 64, 7):
                    S += [f'L_dw{self.ndw}:', f's_cbranch_execz L_dw{self.ndw + 1}']
                    self.ndw += 1
                if kind == 'first' and gi == o.sbg:
                    S += (self.stamp(20) if o.itst == 2 else []) + ['s_barrier'] + (self.stamp(21) if o.itst == 2 else [])
                if kind != 'last' and gi == BG - 1:
                    st_ = lambda k: ([f's_cmp_lg_u32 s{S_LOOP}, 0', f's_cbranch_scc1 L_ns{k}'] + self.stamp(k) + [f'L_ns{k}:']) if (o.itst == 2 and p < 3) else []
                    S += ['s_waitcnt lgkmcnt(0)'] + st_(22 + 2 * p) + ['s_barrier'] + st_(23 + 2 * p)
                if gi in ev:
                    S.append(ev[gi]); t += 8
                if kind != 'last' and 8 <= gi < 12:
                    S.append(tog(gi - 8))
                if gi % 2 == 0 and gi + 2 < 80:
                    n_ = gi + 2
                    G, tn, a_ = n_ // 16, (n_ // 4) % 4, (n_ // 2) % 2
                    if tn == 0:
                        S.append(Touch(vr(XA + 4 * ((4 * G + 2 * a_) % 10), 8)))
                    if G == 0 and a_ == 0:
                        S.append(Touch(vr(WF + 16 + 4 * tn, 4)))
                if gi == 78 and kind != 'last':
                    S.append(Touch(vr(WF + 16, 4)))
                if loopend and gi == 48:
                    S += [f's_add_u32 s{S_LOOP}, s{S_LOOP}, 1', f's_cmp_lt_u32 s{S_LOOP}, 8']
                t = max(t, 8)
                while sh_ and gi >= o.sh0 and t + sh_[0][1] <= 16:
                    x, c_ = sh_.pop(0)
                    S.append(x); t += c_
            S += [x for x, _ in sh_]
            if kind == 'last':
                print('shadow left', len(sh_))
            return S
        self.ndw = 0
        if o.dwalk:
            L += ['s_mov_b64 exec, 0'] + [x for q_ in range(3) for x in (f's_cmp_eq_u32 s{S_WAVE}, {q_}', f's_cbranch_scc1 L_dw{4 * q_}')] + ['s_branch L_dw12', 'L_dw16:', 's_mov_b64 exec, -1']
        L += self.stamp(1) + ['s_barrier'] + [x for tn in range(4) for x in rW(tn)] + BI + ['s_waitcnt lgkmcnt(0)', f's_setprio {o.cprio}', 's_barrier'] + self.stamp(2)
        L += [rX(0, k) for k in range(2 * o.sa)] + cpair(0, 'first')
        cpre = self.seq(L)
        body = self.seq(['L_dnn_loop0:'])
        for p in range(1, 4):
            S = cpair(p, 'mid', p == 3)
            if p == 3:
                if o.stamps and o.itst == 1:
                    i_ = S.index('s_barrier')
                    S = S[:i_] + [f's_memtime s[{S_ST}:{S_ST + 1}]', f's_memrealtime s[{S_ST + 2}:{S_ST + 3}]', f's_or_b32 m0, s{S_LOOP}, 16', 's_waitcnt lgkmcnt(0)',
                                  f'v_writelane_b32 v252, s{S_ST}, m0', f'v_writelane_b32 v253, s{S_ST + 2}, m0', f's_cmp_lt_u32 s{S_LOOP}, 8'] + S[i_:]
                S += ['s_cbranch_scc1 L_dnn_loop0']
            body += self.seq(S)
        tc = c0 + cpre + body * 2 + self.seq(['L_tail:'])
        tc += self.seq(cpair(25, 'last') + pkreads(256, W2F) + [f'v_mov_b32 v{KONE}, 1.0', f'v_mov_b32 v{KONE + 1}, 1.0'])
        if o.burn:
            bl = [f's_movk_i32 s{S_LOOP}, {o.burn}', 'L_burn:'] + [f'v_mfma_f32_16x16x32_bf16 {vr(XA + 32 + 4 * (k % 2), 4)}, {vr(WF + 16 + 4 * (k % 4), 4)}, {vr(XA + 4 * (k // 4), 4)}, 0' for k in range(32)]
            tc += self.seq(bl + [f's_sub_u32 s{S_LOOP}, s{S_LOOP}, 1', f's_cmp_lg_u32 s{S_LOOP}, 0', 's_cbranch_scc1 L_burn'])
        tc += self.seq(['L_epi:'] + self.stamp(3))

        p2 = lambda r: vr(r, 2)
        seen = set()

        def gelu(groups):
            L = []
            for k, vals in enumerate(groups):
                tb = GT + (k % 2) * 16
                V_ = [(x, w, s_, tb + 4 * i_, tb + 4 * i_ + 2) for i_, (x, w, s_) in enumerate(vals)]
                for (x, w, s_, t, u) in V_:
                    L.append(f'v_pk_mul_f32 {p2(t)}, {p2(x)}, {p2(x)}')
                for (x, w, s_, t, u) in V_:
                    L.append(f'v_pk_fma_f32 {p2(t)}, {p2(t)}, {p2(KC1)}, {p2(KC0)}')
                for (x, w, s_, t, u) in V_:
                    L.append(f'v_pk_mul_f32 {p2(t)}, {p2(t)}, {p2(x)}')
                for (x, w, s_, t, u) in V_:
                    L += [f'v_exp_f32 v{t}, v{t}', f'v_exp_f32 v{t + 1}, v{t + 1}']
                for (x, w, s_, t, u) in V_:
                    L.append(f'v_pk_mul_f32 {p2(u)}, {p2(x)}, {p2(w)}')
                for (x, w, s_, t, u) in V_:
                    L.append(f'v_pk_add_f32 {p2(t)}, {p2(t)}, {p2(KONE)}')
                for (x, w, s_, t, u) in V_:
                    L += [f'v_rcp_f32 v{t}, v{t}', f'v_rcp_f32 v{t + 1}, v{t + 1}']
                for (x, w, s_, t, u) in V_:
                    if s_ in seen:
                        L.append(f'v_pk_fma_f32 {p2(s_)}, {p2(t)}, {p2(u)}, {p2(s_)}')
                    else:
                        L.append(f'v_pk_mul_f32 {p2(s_)}, {p2(t)}, {p2(u)}')
                        seen.add(s_)
            return L
        el = lambda tn, tm, d: (acc(tn, tm) + 2 * d, W2F + 4 * tn + 2 * d, SUMP + 2 * tm)
        allel = [el(tn, 2 * tp + a_, d) for tp in range(5) for tn in range(4) for d in range(2) for a_ in range(2)]
        rest = [e for e in allel if e[0] >= ACC + nsh]
        if o.rshare:
            assert nsh % 8 == 0
            KS = 84
            quads = [[el(2 * h + t_, tm, d) for t_ in range(2) for d in range(2)] for tm in range(10) for h in range(2)]
            quads = [q_ for q_ in quads if q_[0][0] >= ACC + nsh]
            order = sorted(range(len(quads)), key=lambda i_: (i_ // 4, i_ % 2, i_))
            quads = [quads[i_] for i_ in order]
            L = [f'v_mov_b32 v{KS}, {f32hex(-24.0)}', f'v_mov_b32 v{KS + 1}, {f32hex(-24.0)}', f'v_mov_b32 v{KS + 2}, {f32hex(2.0 ** 24)}', f'v_mov_b32 v{KS + 3}, {f32hex(2.0 ** 24)}']
            for k in range(0, len(quads), 2):
                Qs = quads[k:k + 2]
                V_ = [(x, w, GT + 16 * j_ + 4 * i_, GT + 16 * j_ + 4 * i_ + 2) for j_, q_ in enumerate(Qs) for i_, (x, w, s_) in enumerate(q_)]
                L += [f'v_pk_mul_f32 {p2(t)}, {p2(x)}, {p2(x)}' for (x, w, t, u) in V_]
                L += [f'v_pk_fma_f32 {p2(t)}, {p2(t)}, {p2(KC1)}, {p2(KC0)}' for (x, w, t, u) in V_]
                L += [f'v_pk_fma_f32 {p2(t)}, {p2(t)}, {p2(x)}, {p2(KS)}' for (x, w, t, u) in V_]
                L += [f'v_exp_f32 v{t + e_}, v{t + e_} clamp' for (x, w, t, u) in V_ for e_ in range(2)]
                if k == 0:
                    L += unp(W2F)
                L += [f'v_pk_mul_f32 {p2(u)}, {p2(x)}, {p2(w)}' for (x, w, t, u) in V_]
                L += [f'v_pk_fma_f32 {p2(t)}, {p2(t)}, {p2(KS + 2)}, {p2(KONE)}' for (x, w, t, u) in V_]
                for prs in ([(0, 1), (2, 3)], [(0, 2)]):
                    M_ = [(V_[4 * j_ + a_], V_[4 * j_ + b_]) for j_ in range(len(Qs)) for a_, b_ in prs]
                    L += [f'v_pk_mul_f32 {p2(A_[3])}, {p2(A_[3])}, {p2(B_[2])}' for A_, B_ in M_]
                    L += [f'v_pk_fma_f32 {p2(A_[3])}, {p2(B_[3])}, {p2(A_[2])}, {p2(A_[3])}' for A_, B_ in M_]
                    L += [f'v_pk_mul_f32 {p2(A_[2])}, {p2(A_[2])}, {p2(B_[2])}' for A_, B_ in M_]
                L += [f'v_rcp_f32 v{V_[4 * j_][2] + e_}, v{V_[4 * j_][2] + e_}' for j_ in range(len(Qs)) for e_ in range(2)]
                for j_, q_ in enumerate(Qs):
                    s_, t, u = q_[0][2], V_[4 * j_][2], V_[4 * j_][3]
                    L.append(f'v_pk_fma_f32 {p2(s_)}, {p2(t)}, {p2(u)}, {p2(s_)}' if s_ in seen else f'v_pk_mul_f32 {p2(s_)}, {p2(t)}, {p2(u)}')
                    seen.add(s_)
        else:
            L = gelu([rest[i:i + 4] for i in range(0, len(rest), 4)])
            L = L[:20] + unp(W2F) + L[20:]
        for (x, w, s_) in allel:
            if x < ACC + nsh:
                L.append(f'v_pk_fma_f32 {p2(s_)}, {p2(x)}, {p2(w)}, {p2(s_)}' if s_ in seen else f'v_pk_mul_f32 {p2(s_)}, {p2(x)}, {p2(w)}')
                seen.add(s_)
        sm = lambda tm: SUMP + 2 * tm
        L += [f'v_add_f32 v{sm(tm)}, v{sm(tm)}, v{sm(tm) + 1}' for tm in range(10)]
        L += [f'v_permlane32_swap_b32 v{sm(tm)}, v{sm(tm + 1)}' for tm in range(0, 10, 2)]
        L += [f'v_add_f32 v{sm(tm)}, v{sm(tm)}, v{sm(tm + 1)}' for tm in (8, 0, 2, 4, 6)]
        L += [f'v_mov_b32 v{sm(9)}, v{sm(8)}', f'v_permlane16_swap_b32 v{sm(0)}, v{sm(2)}', f'v_permlane16_swap_b32 v{sm(4)}, v{sm(6)}',
              f'v_permlane16_swap_b32 v{sm(8)}, v{sm(9)}',
              f'v_add_f32 v{sm(0)}, v{sm(0)}, v{sm(2)}', f'v_add_f32 v{sm(4)}, v{sm(4)}, v{sm(6)}', f'v_add_f32 v{sm(8)}, v{sm(8)}, v{sm(9)}',
              f'ds_write_b32 v{vPc}, v{sm(0)}', f'ds_write_b32 v{vPc}, v{sm(4)} offset:256',
              's_mov_b32 exec_lo, 0xffff', 's_mov_b32 exec_hi, 0xffff', f'ds_write_b32 v{vPc}, v{sm(8)} offset:512', 's_mov_b64 exec, -1']
        L += ['s_waitcnt lgkmcnt(0)'] + self.stamp(4) + self.stamp_flush() + ['s_barrier', 's_endpgm']
        tc += self.seq(L)

        def wstage(slot):
            c = []
            for u in range(2):
                c += [f's_add_u32 m0, s{S_WMB}, {WR + slot * WSLOT + u * 1024}',
                      I(f'buffer_load_dwordx4 v{vWD[u]}, {srd(SRD_W)}, s{S_WSOFF} offen lds', tag='W')]
            return c + [f's_add_u32 s{S_WSOFF}, s{S_WSOFF}, {32 * 3328}']

        Q, TM, BP = 16, 56, [12, 13]
        TI, vWT = 70, 76
        SP = [36, 37, 38, 39, 40, 41, 42, 43, 48, 49]
        SI = [94, 95, 96, 97, 98, 99, 100, 101, 82, 83]

        def xaddr(f, pcs):
            c = []
            for odd in range(2):
                p_ = f + 26 * odd
                for pc in pcs:
                    c.append(f'v_add_u32_dpp v{TM + pc}, v{Q + 4 * pc + p_ % 4}, v{vCh[0]} row_newbcast:{p_ >> 2} row_mask:0xf bank_mask:{(3, 12)[odd]:#x}')
            return c

        def xld(pc, slot, tag='X'):
            return [f's_add_u32 m0, s{S_XM0}, {slot * XSLOT + pc * 2048}',
                    I(f'buffer_load_dwordx4 v{TM + pc}, {srd(SRD_TAB)}, 0 offen lds', tag=tag)]
        idxl = [f'buffer_load_dwordx4 {vr(Q + 4 * pc, 4)}, v{BP[0]}, {srd(SRD_IDX)}, s{SI[pc // 2]} offen offset:{(pc % 2) * 1664}' for pc in range(10)]
        LO, HI = range(5), range(5, 10)
        NR = (22 + o.tf - 1) // o.tf
        lw = S_CW
        self.mk0 = len(self.P.static)
        L = [f's_lshr_b32 s{S_T0}, s{lw}, 1', f's_mul_i32 s{S_T0}, s{S_T0}, 20', f's_and_b32 s{S_T1}, s{lw}, 1', f's_add_u32 s{S_T0}, s{S_T0}, s{S_T1}',
             f's_lshl_b32 s{S_XM0}, s{S_T0}, 10', f's_mul_i32 s{S_C0}, s{S_T3}, 104', f's_mul_i32 s{S_T0}, s{S_T0}, 832', f's_add_u32 s{SI[0]}, s{S_C0}, s{S_T0}',
             f'v_mul_u32_u24 v{q}, 48, v{g}', f'v_sub_u32 v{BP[0]}, v{vBL}, v{q}']
        L += [f's_add_u32 s{SI[k]}, s{SI[0]}, {k * 2 * 1664}' for k in range(1, 5)]
        L += [f's_and_b32 s{S_T2}, s{lw}, 1', f's_lshl_b32 s{S_T2}, s{S_T2}, 3',
              f'v_lshlrev_b32 v{i4}, 1, v{g}', f'v_or_b32 v{i4}, s{S_T2}, v{i4}', f'v_xor_b32 v{i4}, v{i4}, v0', f'v_and_b32 v{i4}, 15, v{i4}',
              f'v_mul_u32_u24 v{vWD[0]}, 3328, v{g}', f'v_lshl_add_u32 v{vWD[0]}, v{i4}, 4, v{vWD[0]}', f'v_add_u32 v{vWD[1]}, {4 * 3328}, v{vWD[0]}',
              f's_mul_i32 s{S_WSOFF}, s{lw}, {8 * 3328}', f's_add_u32 s{S_WSOFF}, s{S_WSOFF}, s{S_N0}', f's_lshl_b32 s{S_WMB}, s{lw}, 11',
              's_waitcnt lgkmcnt(0)']
        L += self.build_srd(SRD_IDX, S_IDX, 4096 * 104) + idxl[:o.i0] + self.tlb1(T + 14, T + 15) + self.build_srd(SRD_W, S_W1, 1664 * 3328)
        for sl in range(o.w0):
            L += wstage(sl)
        L += self.stamp0() + idxl[o.i0:]
        for sl in range(o.w0, 2):
            L += wstage(sl)
        L += [f's_lshl_b32 s{S_T2}, s{S_T1}, 6',
              f'v_and_b32 v{q}, 7, v0', f'v_xor_b32 v{q}, v{q}, v{g}', f'v_lshlrev_b32 v{q}, 4, v{q}', f'v_xor_b32 v{vCh[0]}, s{S_T2}, v{q}', f'v_xor_b32 v{vCh[1]}, 64, v{vCh[0]}',
              f's_mov_b32 s{S_LOOP}, 0',
              f's_mul_i32 s{S_T2}, s{lw}, 13', f's_add_u32 s{S_T2}, s{S_T2}, s{S_R}', f's_min_u32 s{S_T2}, s{S_T2}, 39', f's_lshl_b32 s{S_T2}, s{S_T2}, 3',
              f's_add_u32 s{S_T2}, s{S_T2}, s{S_T3}', f's_mul_i32 s{S_GRP}, s{S_T2}, 104',
              f'v_lshrrev_b32 v{q}, {o.tf.bit_length() - 1}, v0', f'v_min_u32 v{q}, 7, v{q}', f'v_mul_u32_u24 v{q}, 104, v{q}',
              f'v_and_b32 v{i4}, {o.tf - 1}, v0', f'v_lshl_add_u32 v7, v{i4}, 2, v{q}',
              f's_lshl_b32 s{S_T2}, s{S_MB}, 2', f's_add_u32 s{S_T2}, s{S_T2}, s{lw}', f's_add_u32 s{S_T2}, s{S_T2}, {o.tw0 * 32}', f's_mul_i32 s{S_RC}, s{S_T2}, 3328',
              f's_add_u32 s{S_RC}, s{S_RC}, s{S_N0}', f's_mov_b32 s{S_T2}, {52 * 3328}',
              f'v_lshrrev_b32 v{q}, 1, v0', f'v_mul_lo_u32 v{q}, s{S_T2}, v{q}', f'v_and_b32 v{i4}, 1, v0', f'v_lshl_add_u32 v{vWT}, v{i4}, 7, v{q}']
        L += self.build_srd(SRD_W2, S_W2, 3328)
        L += [f's_mul_i32 s{S_T2}, s{lw}, {o.lpf * 128}', f's_add_u32 s{S_T2}, s{S_T2}, L_tail-L_pc', f'v_lshlrev_b32 v8, 7, v0', f'v_add_u32 v8, s{S_T2}, v8',
              f'v_mov_b32 v9, s{S_MASK + 1}', f'v_add_co_u32 v8, vcc, s{S_MASK}, v8', 'v_addc_co_u32 v9, vcc, 0, v9, vcc']
        sh = lambda pc, c_: f'v_lshlrev_b32 v{Q + 4 * pc + c_}, 7, v{Q + 4 * pc + c_}'
        for pc in range(10):
            L += [sh(pc, 0), sh(pc, 2), sh(pc, 1), sh(pc, 3)] + xaddr(0, [pc]) + xld(pc, 0, 'X0a' if pc < o.sa else 'X0')
            if pc == 0:
                L += self.stamp(6) + self.probe('i0')
            if pc == o.bwat:
                L += [WaitTag(vm_tags=['W']), 's_barrier']
        L += self.stamp(7) + self.probe('x0i')
        x1 = [x for pc in range(10) for x in xaddr(1, [pc]) + xld(pc, 1)]
        L += x1[:4 * o.x1n] + [WaitTag(vm_tags=['X0a'])] + self.stamp(1) + ['s_barrier'] + self.probe('s0') + x1[4 * o.x1n:4 * o.x1m]
        L += [WaitTag(vm_tags=['X0']), 's_barrier'] + x1[4 * o.x1m:] + wstage(2) + wstage(3) + xaddr(2, range(10))
        x2 = [x for pc in range(10) for x in xld(pc, 2)]
        L += x2[:2 * o.x2n] + [WaitTag(vm_tags=['W']), 's_barrier'] + self.probe('bar0') + x2[2 * o.x2n:] + xaddr(3, range(10))
        lpre = self.seq(L + [f's_setprio {o.lprio}', 's_branch L_ld_in'])
        del self.P.static[self.mk0:]
        self.P.static[self.ldat:self.ldat] = lpre
        self.mk0 = len(self.P.static)

        def lpair(p):
            S = ['s_barrier'] + (['L_ld_in:'] if p == 0 else []) + wstage(2 * (p % 2)) + wstage(2 * (p % 2) + 1)
            f2 = p + 4
            for pc in range(10):
                x = xld(pc, p % 3)
                S += [x[0]] + (xaddr(f2, [pc - 1])[:1] if pc else []) + [x[1]] + (xaddr(f2, [pc - 1])[1:] if pc else [])
            S += xaddr(f2, [9])
            if p >= 10:
                S += [f'v_mov_b32_dpp v{Q + 4 * pc + c_}, v{Q + 4 * pc + c_} row_shl:3 row_mask:0xf bank_mask:0xf' for pc in range(10) for c_ in ((0, 2) if p == 10 else (1, 3))]
            if p == 11:
                S += [f's_add_u32 s{S_LOOP}, s{S_LOOP}, 1', f's_cmp_lt_u32 s{S_LOOP}, 2']
            return S + [WaitTag(vm_tags=['W'])]
        body = self.seq(['L_dnn_loop1:'])
        for p in range(12):
            if p == 8 and o.lpf:
                body += self.seq([f's_cmp_lg_u32 s{S_LOOP}, 1', 's_cbranch_scc1 L_nolpf'])
                self.seq([f's_mov_b64 exec, {(1 << o.lpf) - 1}', 'global_load_dword v10, v[8:9], off', 's_mov_b64 exec, -1'] + small(SRD_W2, L_W2))
                body += self.seq(['L_nolpf:'])
            lp = lpair(p)
            if o.probe == f'bar{p}' and p:
                lp = lp[:1] + [f's_cmp_lg_u32 s{S_LOOP}, 0', 's_cbranch_scc1 L_nopb'] + self.probe(o.probe) + ['L_nopb:'] + lp[1:]
            body += self.seq(lp + (['s_cbranch_scc1 L_dnn_loop1'] if p == 11 else []))
        tl = c0 + lpre + body * 2 + self.seq(['s_branch L_ld_tail'])
        self.ldblk = self.P.static[self.mk0:]
        del self.P.static[self.mk0:]
        tl += self.seq(['L_ld_tail:', 's_barrier'] + self.tlb2(T) + ['s_mov_b64 exec, 1', f'buffer_load_dword v250, v{T}, {srd(SRD_DBG)}, 0 offen offset:240 sc1', 's_mov_b64 exec, -1'])
        tl += self.seq(self.probe('s50'))
        if o.walk:
            tl += self.seq([f's_cmp_eq_u32 s{lw}, 0', 's_cbranch_scc1 L_wkd', 's_mov_b64 exec, 0', f's_cmp_eq_u32 s{lw}, 1', 's_cbranch_scc1 L_wk0',
                            f's_cmp_eq_u32 s{lw}, 2', f's_cbranch_scc1 L_wk{np_ // 3}', f's_branch L_wk{2 * np_ // 3}', 'L_wkd:'])
        A = 64
        L = [f's_cmp_lg_u32 s{S_WAVE}, 4', 's_cbranch_scc1 L_end',
             f'v_lshlrev_b32 v3, 4, v0', f'v_lshlrev_b32 v4, 2, v0', f'v_add_u32 v1, {RB}, v3', f'v_add_u32 v2, {RB + 1024}, v4', f'v_add_u32 v4, 1024, v4',
             'v_mov_b32 v5, 32', f'v_mov_b32 v7, s{S_MB}',
             f's_mul_i32 s{S_T0}, s{S_MB}, 1280', f's_mul_i32 s{S_T1}, s{S_R}, {WSP}', f's_add_u32 s{S_T1}, s{S_T1}, s{S_T0}', 's_setprio 3']
        if o.sent:
            L += [f'v_mov_b32 v{A + k}, -1' for k in range(4)] + [f'buffer_store_dwordx4 {vr(A, 4)}, v3, {srd(SRD_WS)}, s{S_T1} offen sc1',
                  f'buffer_store_dword v{A}, v4, {srd(SRD_WS)}, s{S_T1} offen sc1', 's_waitcnt vmcnt(0)']
        L += self.stamp_flush() + ['s_barrier'] + self.probe('dend')
        L += [f'ds_read_b128 {vr(A, 4)}, v1', f'ds_read_b128 {vr(A + 8, 4)}, v1 offset:1280', f'ds_read2st64_b32 {vr(A + 4, 2)}, v2 offset0:0 offset1:5',
              f'v_pk_add_f32 {p2(A)}, {p2(A)}, {p2(A + 8)}', f'v_pk_add_f32 {p2(A + 2)}, {p2(A + 2)}, {p2(A + 10)}', f'v_add_f32 v{A + 4}, v{A + 4}, v{A + 5}']
        if o.sent:
            L += [f'v_min_u32 v{A + k}, -2, v{A + k}' for k in range(5)]
        L += (self.stamp(16) if o.diag else [])
        L += [f'buffer_store_dwordx4 {vr(A, 4)}, v3, {srd(SRD_WS)}, s{S_T1} offen sc1',
              f'buffer_store_dword v{A + 4}, v4, {srd(SRD_WS)}, s{S_T1} offen sc1', 's_mov_b64 exec, 1']
        tl += self.seq(L)

        L = ['L_pub:']
        if o.skew:
            L += ['v_mov_b32 v20, s86', 'v_mov_b32 v21, s86', 'v_mov_b32 v22, s88', 's_lshl_b32 s89, s2, 7', 's_add_u32 s89, s89, 0x40000', 'v_lshlrev_b32 v23, 28, v0',
                  f'buffer_store_dwordx3 v[20:22], v23, {srd(SRD_WS)}, s89 offen sc1', 's_waitcnt vmcnt(0)']
        def loads():
            c = [f's_mul_i32 s{S_T0}, s{S_T3}, 1280']
            for qq in range(14):
                c += [f'buffer_load_dwordx4 {vr(A + 8 * qq, 4)}, v3, {srd(SRD_WS)}, s{S_T0} offen sc1',
                      f'buffer_load_dword v{A + 8 * qq + 4}, v4, {srd(SRD_WS)}, s{S_T0} offen sc1', f's_add_u32 s{S_T0}, s{S_T0}, {WSP}']
            return c
        R_ = 56
        L += ['v_lshlrev_b32 v6, 4, v7'] + ([] if o.sent else ['s_waitcnt vmcnt(0)']) + ['v_mov_b32 v13, v5', f'buffer_atomic_add v5, v6, {srd(SRD_DBG)}, 0 offen sc0',
              'v_cmp_eq_u32 vcc, 12, v7', 'v_mov_b32 v8, 436', 'v_mov_b32 v9, 434', 'v_cndmask_b32 v8, v8, v9, vcc', 'v_sub_u32 v8, v8, v13']
        if o.spec:
            L += [f's_mov_b64 s[{S_MASK}:{S_MASK + 1}], exec', 's_mov_b64 exec, -1', f'v_readfirstlane_b32 s{S_T3}, v7'] + loads() + [f's_mov_b64 exec, s[{S_MASK}:{S_MASK + 1}]']
            L += ['s_waitcnt vmcnt(0) lgkmcnt(0)']
        else:
            L += ['s_waitcnt vmcnt(0) lgkmcnt(0)']
        L += (self.stamp(18) if o.diag else []) + [
             f'v_cmp_eq_u32 s[{S_EX}:{S_EX + 1}], v5, v8', 's_mov_b64 exec, -1', f's_lshl_b32 s{S_BOUT}, s{S_BOUT}, 16',
             'v_lshrrev_b32 v1, 1, v3', 'v_lshrrev_b32 v2, 1, v4']
        if o.spec:
            L += [f's_bitcmp1_b32 s{S_EX}, 0', f's_bitset0_b32 s{S_EX}, 0', 's_cbranch_scc1 L_sum']
        pa = self.seq(L)
        L = ['L_fin:', f's_cmp_eq_u32 s{S_EX}, 0', 's_cbranch_scc1 L_done',
             f's_ff1_i32_b32 s{S_T2}, s{S_EX}', f's_bitset0_b32 s{S_EX}, s{S_T2}', f'v_readlane_b32 s{S_T3}, v7, s{S_T2}', 's_waitcnt vmcnt(0)', 'L_again:'] + loads()
        pb = self.seq(L)
        L = ['L_sum:', f'v_pk_add_f32 {p2(R_)}, {p2(A)}, {p2(A + 8)}', f'v_pk_add_f32 {p2(R_ + 2)}, {p2(A + 2)}, {p2(A + 10)}', f'v_add_f32 v{R_ + 4}, v{A + 4}, v{A + 12}']
        for qq in range(2, 14):
            L += [f'v_pk_add_f32 {p2(R_)}, {p2(R_)}, {p2(A + 8 * qq)}', f'v_pk_add_f32 {p2(R_ + 2)}, {p2(R_ + 2)}, {p2(A + 8 * qq + 2)}',
                  f'v_add_f32 v{R_ + 4}, v{R_ + 4}, v{A + 8 * qq + 4}']
        if o.sent:
            L += [f'v_cmp_u_f32 vcc, v{R_}, v{R_ + 1}', f'v_cmp_u_f32 s[{S_MASK}:{S_MASK + 1}], v{R_ + 2}, v{R_ + 3}', f's_or_b64 s[{S_MASK}:{S_MASK + 1}], s[{S_MASK}:{S_MASK + 1}], vcc',
                  f'v_cmp_u_f32 vcc, v{R_ + 4}, v{R_ + 4}', f's_or_b64 vcc, s[{S_MASK}:{S_MASK + 1}], vcc', 's_cbranch_vccnz L_chk', 'L_ok:']
        L += [f's_mul_i32 s{S_T3}, s{S_T3}, 640']
        A0 = A
        A = R_
        L += [f'v_add_f32 v{A + k}, s{S_BOUT}, v{A + k}' for k in range(5)]
        L += [f'v_cvt_pk_bf16_f32 v10, v{A}, v{A + 1}', f'v_cvt_pk_bf16_f32 v11, v{A + 2}, v{A + 3}', f'v_cvt_pk_bf16_f32 v12, v{A + 4}, v{A + 4}',
              f'buffer_store_dwordx2 v[10:11], v1, {srd(SRD_OUT)}, s{S_T3} offen', f'buffer_store_short v12, v2, {srd(SRD_OUT)}, s{S_T3} offen']
        if o.skew:
            L += [f's_cmp_lg_u32 s{S_EX}, 0', 's_cbranch_scc1 L_fin', 'v_lshlrev_b32 v20, 7, v0', 's_mov_b32 s88, 0x40000']
            for k in range(4):
                L += [f'buffer_load_dwordx3 v[{32 + 4 * k}:{34 + 4 * k}], v20, {srd(SRD_WS)}, s88 offen sc1', 's_add_u32 s88, s88, 8192']
            L += ['s_waitcnt vmcnt(0)']
            if o.probe.startswith('st') or o.absol:
                L += ['s_memrealtime s[88:89]', 's_waitcnt lgkmcnt(0)', 'v_mov_b32 v26, 0', 'v_mov_b32 v27, 0']
                for k in range(4):
                    L += [f'v_sub_u32 v28, s88, v{32 + 4 * k}', 'v_cmp_gt_u32 vcc, 4500, v28', f'v_not_b32 v29, v{32 + 4 * k}', 'v_cndmask_b32 v29, 0, v29, vcc', 'v_max_u32 v27, v27, v29']
                    if o.absol:
                        L += [f'v_cndmask_b32 v29, 0, v{34 + 4 * k}, vcc', 'v_max_u32 v26, v26, v29']
                    elif str(k) in o.probe[2:]:
                        L += [f'v_cndmask_b32 v29, 0, v{32 + 4 * k}, vcc', 'v_max_u32 v26, v26, v29']
            else:
                for k in range(4):
                    L += [f'v_sub_u32 v28, v{34 + 4 * k}, v{32 + 4 * k}', 'v_cmp_gt_u32 vcc, 5000, v28', f'v_cndmask_b32 v28, 0, v28, vcc',
                          f'v_cmp_eq_u32 vcc, v{32 + 4 * k}, v{33 + 4 * k}', f'v_cndmask_b32 v{33 + 4 * k}, 0, v28, vcc']
                L += ['v_max_u32 v26, v33, v37', 'v_max3_u32 v26, v26, v41, v45', 'v_mov_b32 v27, -1']
            if o.probe == 'span':
                L += ['s_memrealtime s[86:87]', 's_waitcnt lgkmcnt(0)', 'v_mov_b32 v26, s86']
            for (ctl, rm) in (('row_shr:1', '0xf'), ('row_shr:2', '0xf'), ('row_shr:4', '0xf'), ('row_shr:8', '0xf'), ('row_bcast:15', '0xa'), ('row_bcast:31', '0xc')):
                L += [f'v_max_u32_dpp v{r}, v{r}, v{r} {ctl} row_mask:{rm} bank_mask:0xf' for r in (26, 27)]
            L += ['v_not_b32 v27, v27', 'v_sub_u32 v22, v26, v27', 's_memrealtime s[86:87]', 'v_readlane_b32 s88, v22, 63', 's_waitcnt lgkmcnt(0)',
                  's_min_u32 s88, s88, 5000', f's_mul_i32 s88, s88, {o.skew - 1}', 's_add_u32 s88, s88, s86',
                  'L_spin:', 's_memrealtime s[86:87]', 's_waitcnt lgkmcnt(0)', 's_sub_u32 s89, s88, s86', 's_cmp_gt_i32 s89, 0', 's_cbranch_scc1 L_spin']
        L += self.stamp(5) + self.stamp_flush() + ['s_branch L_fin']
        pc_ = self.seq(L)
        if o.sent:
            L = ['L_chk:', 'v_mov_b32 v14, 0', 'v_mov_b32 v15, 0']
            for qq in range(14):
                L += [f'v_max3_u32 v14, v14, v{A0 + 8 * qq}, v{A0 + 8 * qq + 1}', f'v_max3_u32 v14, v14, v{A0 + 8 * qq + 2}, v{A0 + 8 * qq + 3}', f'v_max_u32 v15, v15, v{A0 + 8 * qq + 4}']
            L += [f's_cmp_eq_u32 s{S_T3}, 12', f's_cselect_b32 s{S_T0}, 0, -1', f'v_and_b32 v15, s{S_T0}, v15', 'v_max_u32 v14, v14, v15',
                  'v_cmp_eq_u32 vcc, -1, v14', 's_cbranch_vccnz L_again', 's_branch L_ok']
            self.chk = self.seq(L)
        pe = self.seq(['L_done:', 's_endpgm'])
        self.pub = pa + pb + pc_ + pe
        self.extra_traces = [pa + pc_ + pb + pc_] + ([pa + pb + pc_[:45] + self.chk + pb[7:] + pc_] if o.sent else [])
        return [tc, tl + self.pub]

    def pubsrd(self):
        return self.build_srd(SRD_WS, S_WS, 0x10000000) + self.build_srd(SRD_OUT, S_OUT, 8192) + self.build_srd(SRD_DBG, S_DBG, 256)

    def tables(self):
        OOB = 0x100000
        G = [[] for _ in range(11)]
        for l in range(64):
            half, i32, g, r, c = l >> 5, l & 31, l >> 4, (l >> 2) & 3, l & 3
            lin0 = g * 128 + r * XPP + c * 8
            G[0] += [lin0, lin0 + 512 if g < 3 else XOFF(27) + c * 8, (l >> 3) * 16, 0x3f803f80 if l < 32 else 0]
            G[1] += [(l & 7) * 16, 0xeeee if l & 1 else 0x4444, half * XPP + i32 * 4, IMG + half * 20 * IMGP + i32 * 4]
            tr = [IMG + cin16.IMGROW(cin16.LAB[g][2 * rp + (r >> 1)][r & 1]) * IMGP + c * 8 for rp in range(8)]
            G[2] += tr[:4]
            G[3] += tr[4:]
            row, col = 8 * half + r, (g & 1) * 32 + c * 8
            G[4] += [V3OFF + row * 64 + col, A1 + row * 1352 + col, A1 + min(row + 16, 25) * 1352 + col, A1 + min(row + 20, 25) * 1352 + col]
            t, gd, rr = (i32 >> 2) & 1, i32 >> 3, i32 & 3
            ig = 16 * t + 4 * rr + gd
            iq = 4 * rr + gd if t == 0 else 16 + ((4 * rr + gd + 4) & 15)
            pm = []
            for q in range(8):
                k0 = 16 * (q >> 2) + 8 * half + 2 * (q & 3)
                pm.append((0xffff if iq == k0 else 0xffff0000 if iq == k0 + 1 else 0) if iq < 26 else 0)
            G[5] += pm[:4]
            G[6] += pm[4:]
            ga = A2 + 52 * ig if ig < 26 else OOB
            rowp = ((l & 12) + 2 * (l & 1)) * 16 + (OOB if l & 2 else 0)
            G[7] += [ga + half * 8 * W2P, ga + half * OOB, rowp + half * 256 + (g & 1) * 8, rowp + g * 256]
            G[8] += [SG + i32 * 64 if i32 < 26 else V2S if i32 == 26 else OOB, 64 if i32 == 26 else 3328, (i32 >> 1) + 2 * half,
                     SQ + i32 * 64 + ((((i32 >> 1) & 3) ^ (2 * half)) << 4)]
            v2 = []
            for hf in range(2):
                j = 4 * g + 16 * hf + r
                v2.append(V2S + (j & 1) * 1664 + (j >> 1) * 64 + ((c ^ (((13 + j) & 3) * 2)) * 8) if j < 26 else SG + 676 * 64 + c * 8)
            wo = [L_WCO + 2 * (16 * tl_ + 4 * c + r) if 16 * tl_ + 4 * c + r < 26 else OOB for tl_ in range(2)]
            G[9] += v2 + wo
            G[10] += [L_WCO + 104 + 16 * half, L_WCO + 52 + 2 * l, V3OFF + 52 + 64 * l, SG + 676 * 64 + (l & 15) * 4]
        U = []
        for w in range(8):
            for e in range(16):
                for u in (w, w + 8, w + 16):
                    U += [SG + row * 64 + f * 8 for row, f in cin16.p2rows(u, e >> 2, e & 3)] if u < 22 else [0, 0]
        return [x for n in (4, 2, 3, 0, 5, 6, 7, 8, 9, 1, 10) for x in G[n]] + [0] * 256 + U + [0] * 256

    def cin(self):
        o = self.opt
        cw = S_CW
        vFa, vLin0, vLin1, vXi0, vXi1, vC16, vIDX, vXa, vIw, vPWL, vPXL, PXR, PFR = 1, 4, 5, 6, 7, 8, 9, 10, 11, 12, 13, 3, 14
        XI, vTR = 16, 20
        XR, P, Z, WF, D = 32, 60, 116, 164, 184
        vStg, vFR, vFw = vFa, 2, 59
        t3, t4, t5 = 29, 30, 31
        AV = [28, 58]
        PM = 216
        vA3, vBs0, vBs1a, vBs1b, vGa, vGb, vT3, vT3d = range(224, 232)
        G8, vV2r, vV2q, vWo, AD = 232, 236, 237, 238, 240
        WA = list(range(244, 250))
        vS, vMx = 250, 111
        UA, UX = 224, [232, 233, 234, 235, 240, 241]
        AFR = 112
        BALL, DALL = 60, 120
        S_F1, S_F2, S_G, S_LO, S_HI, S_CM, S_U0, S_U1, S_U2 = 74, 75, 95, 96, 97, 90, 98, 99, 100
        S_CG, S_IV = 0, 1
        OOB = 0x100000
        TA_, TB_, TC_ = SG + 35840, SQ + 26 * W2P, FRS + 2048
        GREG = [224, 20, 24, 4, 216, 220, 228, 232, 236, 8, 240]
        DPPS = (('row_shr:1', '0xf'), ('row_shr:2', '0xf'), ('row_shr:4', '0xf'), ('row_shr:8', '0xf'),
                ('row_bcast:15', '0xa'), ('row_bcast:31', '0xc'))

        K_W7, K_IMG, K_W2, K_W1, K_W12, K_H8, K_T3 = 44, 45, 46, 47, 92 - 10, 92 - 9, 101
        L = ['L_cin:', f'v_lshlrev_b32 v{vStg}, 4, v0', f's_and_b32 s{cw}, s{S_WAVE}, 3', f's_lshr_b32 s{S_GRP}, s{S_WAVE}, 2', f's_lshl_b32 s{S_STG}, s{cw}, 10',
             f's_mul_i32 s{S_MB}, s{S_T0}, 11', f's_add_u32 s{S_MB}, s{S_MB}, s{S_T1}', f's_sub_u32 s{S_MB}, s{S_MB}, 22',
             f's_cmp_eq_u32 s{S_MB}, 86', 's_cbranch_scc1 L_end', f's_cmp_eq_u32 s{S_GRP}, 0', 's_cbranch_scc1 L_sc']
        c0 = self.seq(L)
        L = ['s_setprio 2', f'v_add_u32 v2, L_tables-L_pc+4096, v{vStg}', f'v_mov_b32 v3, s{S_MASK + 1}',
             f'v_add_co_u32 v2, vcc, s{S_MASK}, v2', 'v_addc_co_u32 v3, vcc, 0, v3, vcc',
             f'v_add_co_u32 v{XR}, vcc, s{S_STG}, v2', f'v_addc_co_u32 v{XR + 1}, vcc, 0, v3, vcc',
             f'global_load_dwordx4 {vr(GREG[0], 4)}, v[2:3], off offset:-4096',
             'v_add_co_u32 v2, vcc, 0x1800, v2', 'v_addc_co_u32 v3, vcc, 0, v3, vcc', f'global_load_dwordx4 {vr(GREG[10], 4)}, v[2:3], off',
             f's_cmp_lt_u32 s{cw}, 3', f's_mov_b32 s{S_T2}, {TB_ - 3072}', f's_cselect_b32 s{S_T2}, {TA_ + 4096}, s{S_T2}']
        tdma = lambda off: I(f'global_load_lds_dwordx4 {vr(XR, 2)}, off offset:{off}', tag='TAB')
        L += [f's_add_u32 m0, s{S_STG}, {TA_ + 4096}', tdma(-4096), f's_add_u32 m0, s{S_STG}, s{S_T2}', tdma(0),
              f'v_add_co_u32 v{XR}, vcc, 0x2000, v{XR}', f'v_addc_co_u32 v{XR + 1}, vcc, 0, v{XR + 1}, vcc',
              f's_add_u32 m0, s{S_STG}, {TC_}', tdma(0), f's_add_u32 m0, s{S_STG}, {TB_ + 1024 + 4096}', f's_cmp_ge_u32 s{cw}, 2', 's_cbranch_scc1 L_sc']
        g1s = self.seq(L)
        L = [tdma(-4096)]
        g1t = self.seq(L)
        L = ['L_sc:', f's_mul_i32 s{S_RC}, s{S_GRP}, 20', f's_add_u32 s{S_RC}, s{S_RC}, s{S_WAVE}',
             f's_mul_i32 s{S_SAMP}, s{S_MB}, 48', f's_add_u32 s{S_SAMP}, s{S_SAMP}, s{S_RC}', f's_mul_i32 s{S_SAMP}, s{S_SAMP}, 104',
             f'v_lshrrev_b32 v{t4}, 3, v0', f'v_lshlrev_b32 v{t4}, 4, v{t4}', f'v_and_b32 v{t3}, 0x70, v{vStg}',
             f's_mul_i32 s{S_XM0}, s{S_WAVE}, {XBSZ}', f's_add_u32 s{S_XM0}, s{S_XM0}, {XB}', f's_cmp_eq_u32 s{S_GRP}, 0', 's_cbranch_scc1 L_g0']
        csc = self.seq(L)
        SC2 = [f's_lshl_b32 s{S_RC}, s{S_RC}, 2', f's_add_u32 s{S_RC}, s{S_RC}, {RC}',
               f's_mul_i32 s{S_LOOP}, s{S_GRP}, 3', f's_sub_u32 s{S_LOOP}, 4, s{S_LOOP}', (f's_cmp_eq_u32 s{S_MB}, 85', f's_cselect_b32 s{S_LOOP}, s{S_LOOP}, 6'),
               f's_lshl_b32 s{K_W7}, s{S_WAVE}, 7', f's_mul_i32 s{K_IMG}, s{S_WAVE}, {IMGSZ}', f's_lshl_b32 s{K_W2}, s{S_WAVE}, 2', f's_lshl_b32 s{K_W1}, s{S_WAVE}, 1',
               f's_lshl_b32 s{K_W12}, s{S_WAVE}, 12',
               f's_and_b32 s{S_U0}, s{S_WAVE}, 1', f's_lshr_b32 s{S_U1}, s{S_WAVE}, 1',
               f's_mul_i32 s{S_T0}, s{S_U1}, 3072', f's_lshl_b32 s{K_H8}, s{S_U0}, 3', f's_add_u32 s{S_T0}, s{S_T0}, s{K_H8}', f'v_add_u32 v{vFw}, s{S_T0}, v{vStg}',
               f's_lshl_b32 s{S_T1}, s{S_U1}, 3', f's_lshr_b32 s{S_T1}, 0x05030200, s{S_T1}', f's_and_b32 s{S_T1}, s{S_T1}, 0xff',
               f's_lshl_b32 s{S_T1}, s{S_T1}, 9', f's_lshl_b32 s{S_T2}, s{S_U0}, 2', f's_add_u32 s{K_T3}, s{S_T1}, s{S_T2}',
               f's_mov_b32 s{S_U1}, 0x05040100', f's_mov_b32 s{S_U2}, 0x07060302',
               f'v_mov_b32 v{vFR}, {L_FLG}', 'v_mov_b32 v109, 0', 'v_mov_b32 v108, 0'] + [f'v_mov_b64 {vr(r, 2)}, 0' for r in range(XR, XR + 26, 2)]
        XJ = 104
        assert not (o.pfx or o.pfw)

        def pfw():
            return [f'buffer_load_dword v{PFR}, v{vPWL}, {srd(SRD_W)}, s{S_PW} offen',
                    f's_add_u32 s{S_PW}, s{S_PW}, {o.pfne * 688 * 128}']

        def pfx_a():
            return [f'buffer_load_dword v{PXR}, v{vPXL}, {srd(SRD_IDX)}, s{S_PX} offen',
                    f's_cmp_eq_u32 s{S_PX}, s{S_PXE}', f's_cselect_b32 s{S_PXE}, 0x7000000, s{S_PXE}',
                    f's_cselect_b32 s{S_PX}, 0x7000000, s{S_PX}',
                    f's_add_u32 s{S_PX}, s{S_PX}, 24', f's_min_u32 s{S_PX}, s{S_PX}, s{S_PXE}']

        def pfx_b():
            return [f'v_lshlrev_b32 v{PXR}, 7, v{PXR}', f'buffer_load_dword v{PFR + 1}, v{PXR}, {srd(SRD_TAB)}, 0 offen']

        def xidx(XI=XI, vXi0=vXi0):
            return [f'buffer_load_dwordx4 {vr(XI, 4)}, v{vXi0}, {srd(SRD_IDX)}, s{S_SAMP} offen', f's_add_u32 s{S_SAMP}, s{S_SAMP}, {4 * 104}']

        def xdma(XI=XI, off=0, tag='XB', vC16=vC16):
            c = [f'v_lshl_add_u32 v{XI + u}, v{XI + u}, 7, v{vC16}' for u in range(4)]
            for u in range(4):
                c += [f's_add_u32 m0, s{S_XM0}, {u * XPP + off}']
                if u % 2 == 0:
                    c.append(f's_mov_b32 exec_hi, {0xffffff if u == 0 else 0xffff:#x}')
                c.append(I(f'buffer_load_dwordx4 v{XI + u}, {srd(SRD_TAB)}, 0 offen lds', tag=tag))
            return c + ['s_mov_b32 exec_hi, -1']

        def stage(dst, goff, tag):
            st = []
            for m in range(9):
                st.append((f's_add_u32 m0, s{S_STG}, {dst + m * 4096}', f's_add_u32 s{S_TW}, s{S_STG}, {goff + m * 4096}',
                           I(f'buffer_load_dwordx4 v{vStg}, {srd(SRD_CIN)}, s{S_TW} offen lds', tag=tag)))
            return st

        def pubmax(regs_offs):
            c = []
            for (ctl, rm) in DPPS:
                for r, _ in regs_offs:
                    c.append(f'v_max_u32_dpp v{r}, v{r}, v{r} {ctl} row_mask:{rm} bank_mask:0xf')
            c += ['s_mov_b32 exec_lo, 0', 's_mov_b32 exec_hi, 0x80000000']
            c += [f'ds_max_u32 v{vFR}, v{r} offset:{16 + 4 * k}' for r, k in regs_offs]
            return c + ['s_mov_b64 exec, -1']

        def mxop(src, n, mx, first):
            return [f'v_mfma_f32_16x16x32_bf16 {vr(mx, 4)}, {vr(src + r, 4)}, {vr(src + r, 4)}, {"0" if first and r == 0 else vr(mx, 4)}' for r in range(0, n, 4)]

        def mxfin(mx):
            return [f'v_max3_f32 v{mx}, v{mx}, v{mx + 1}, 0', f'v_max3_f32 v{mx}, v{mx}, v{mx + 2}, v{mx + 3}']

        def bread(m, off):
            b = BALL + m * 8
            return [f'ds_read_b64_tr_b16 {vr(b, 2)}, v{vBs0} offset:{off}',
                    f'ds_read_b64_tr_b16 {vr(b + 2, 2)}, v{vBs0} offset:{off + 4 * 1352}',
                    f'ds_read_b64_tr_b16 {vr(b + 4, 2)}, v{vBs1a} offset:{off}',
                    f'ds_read_b64_tr_b16 {vr(b + 6, 2)}, v{vBs1b} offset:{off}']

        def mm2(d, a, b):
            return [f'v_mfma_f32_32x32x16_bf16 {vr(d, 16)}, {vr(a, 4)}, {vr(b, 4)}, 0',
                    f'v_mfma_f32_32x32x16_bf16 {vr(d, 16)}, {vr(a + 4, 4)}, {vr(b + 4, 4)}, {vr(d, 16)}']

        tA, tB = 250, 251
        trd = lambda n: f'ds_read_b128 {vr(GREG[n], 4)}, v{tA if n < 7 else tB} offset:{(n if n < 7 else n - 7) * 1024}'
        vbs = [f'v_add_u32 v{r}, s{K_W7}, v{r}' for r in (vBs0, vBs1a, vBs1b)]

        def FX(g):
            R = [trd(n) for n in ((0,) if g == 0 else ()) + (6, 7, 3, 9, 1, 2, 4, 5, 8)]
            F = vbs + [f'v_add_u32 v{r}, s{K_W2}, v{r}' for r in (vGa, vGb)]
            F += [f'v_add_u32 v{vT3d}, s{K_H8}, v{vT3d}', f'v_add_u32 v{vT3}, s{K_T3}, v{vT3}']
            F += [f'v_mad_u32_u24 v{G8}, v{G8 + 1}, s{S_WAVE}, v{G8}', f'v_add_u32 v{G8 + 2}, s{K_W1}, v{G8 + 2}',
                  f'v_mad_u32_u24 v{G8 + 1}, v{G8 + 1}, 8, v{G8}', f'v_add_u32 v{WA[2]}, s{K_W12}, v{G8 + 3}', f'v_add_u32 v{WA[3]}, 2048, v{WA[2]}']
            for n_, (wa, bs) in enumerate(((WA[0], G8), (WA[1], G8), (WA[4], G8 + 1), (WA[5], G8 + 1))):
                F += [f'v_add_u32 v{t5}, {n_ & 1}, v{G8 + 2}', f'v_and_b32 v{t5}, 3, v{t5}', f'v_lshl_add_u32 v{wa}, v{t5}, 4, v{bs}']
                if n_ & 1:
                    F.append(f'v_add_u32 v{wa}, 1664, v{wa}')
            F += [f'v_add_u32 v{r}, s{S_XM0}, v{r}' for r in (vXa, vLin0, vLin1)] + [f'ds_write_b32 v{vXa}, v{vXi1} offset:{XOFF(26)}']
            F += [f'v_add_u32 v{r}, s{K_IMG}, v{r}' for r in [vIw] + list(range(vTR, vTR + 8))]
            return R, F
        SC2 += [f'v_add_u32 v{tA}, {TA_}, v{vStg}', f'v_add_u32 v{tB}, {TB_}, v{vStg}', f'v_lshrrev_b32 v3, 5, v0', f'v_lshl_add_u32 v3, v3, 2, v{vFR}']

        def pub2(r1, r2, off):
            c = [f'v_permlane32_swap_b32 v{r1}, v{r2}', f'v_max_u32 v{r1}, v{r1}, v{r2}']
            c += [f'v_max_u32_dpp v{r1}, v{r1}, v{r1} {ctl} row_mask:{rm} bank_mask:0xf' for ctl, rm in DPPS[:5]]
            return c + ['s_mov_b32 exec_lo, 0x80000000', 's_mov_b32 exec_hi, 0x80000000', f'ds_max_u32 v3, v{r1} offset:{16 + off}', 's_mov_b64 exec, -1']
        AV = [28, 58, 111]
        L = ['s_waitcnt lgkmcnt(0)'] + self.build_srd(SRD_WCO, S_WCO, 156) + [f's_mov_b32 m0, {L_WCO}', 's_mov_b64 exec, 0x7ff',
             I(f'buffer_load_dwordx4 v{vStg}, {srd(SRD_WCO)}, 0 offen lds', tag='WCO'), 's_mov_b64 exec, -1'] + self.stamp0() + SC2
        L += self.build_srd(SRD_IDX, S_IDX, 4096 * 104) + self.build_srd(SRD_TAB, S_TAB, 100000 * 128)
        XK = 252 - 4 if False else 12
        if o.xg1:
            L += [f's_sub_u32 s{S_T0}, s{S_SAMP}, {24 * 104}', f'buffer_load_dwordx4 {vr(XI, 4)}, v{t4}, {srd(SRD_IDX)}, s{S_T0} offen',
                  f'buffer_load_dwordx4 {vr(XK, 4)}, v{t4}, {srd(SRD_IDX)}, s{S_T0} offen offset:{4 * 104}']
        L += [f'ds_write_b128 v{vFR}, {vr(XR, 4)} offset:16', f's_lshl_b32 s{S_T0}, s{cw}, 6', f'v_add_u32 v{t3}, s{S_T0}, v0']
        for p_ in range(3):
            L += [f'v_mul_u32_u24 v{t4}, 2521, v{t3}', f'v_lshrrev_b32 v{t4}, 16, v{t4}', f'v_mul_u32_u24 v{t4}, 12, v{t4}', f'v_lshl_add_u32 v{AV[p_]}, v{t3}, 1, v{t4}']
            L += [f'v_add_u32 v{t3}, 256, v{t3}'] if p_ < 2 else [f'v_cmp_gt_u32 vcc, 676, v{t3}', f's_mov_b64 s[{S_MASK}:{S_MASK + 1}], vcc']
        L += [f'v_lshlrev_b32 v{t3}, 3, v0', 's_mov_b32 exec_hi, 0xffff', f'ds_write_b64 v{t3}, {vr(XR, 2)} offset:{V3OFF + 26 * 64}', 's_mov_b32 exec_hi, -1',
              f'ds_write_b32 v{AD + 3}, v{XR}', f'ds_write_b32 v{AD + 3}, v{XR} offset:{SSZ}', WaitTag(vm_tags=['WCO'])]
        assert V3OFF == 0
        for s2 in range(2):
            for rd in range(2):
                L.append(f'ds_read_b64 {vr(AFR + 4 * s2 + 2 * rd, 2)}, v{AD} offset:{s2 * 32 + rd * 8}')
        L += [f'ds_read_u16 v110, v{AD + 1}',
              's_mov_b64 exec, 0x3ffffff', f'ds_write_b16 v{AD + 2}, v110', 'v_lshlrev_b32 v109, 17, v110', 'v_lshrrev_b32 v109, 1, v109', 's_mov_b64 exec, -1']
        if o.cwalk:
            L += ['s_mov_b64 exec, 0'] + [x for q_ in range(3) for x in (f's_cmp_eq_u32 s{cw}, {q_}', f's_cbranch_scc1 L_WENTRY{q_}')] + ['s_branch L_WENTRY3', 'L_wret:', 's_mov_b64 exec, -1']
        L += (FX(1)[1] if o.dirt else vbs) + [WaitTag(vm_tags=['TAB'], lgkm0=True)] + self.probe('tab')
        v3p = []
        L += ['s_barrier'] + self.stamp(2) + self.probe('b0')
        vb = lambda m: A3 - A1 - 512 + (m >> 1) * 512 + (m & 1) * 64
        for m in range(3):
            L += bread(m, vb(m))
        for m in range(6):
            if m + 3 < 6:
                L += bread(m + 3, vb(m + 3))
            L += mm2(DALL + m * 16, AFR, BALL + m * 8)
            if m == 3 and not o.dirt:
                L += FX(1)[0]
        if not o.dirt:
            L += FX(1)[1][3:]
        for p_ in range(3):
            L += ['s_mov_b32 exec_lo, 0', f'v_mov_b32 v{DALL + 32 * p_}, v{DALL + 32 * p_ + 16}', 's_mov_b32 exec_lo, -1',
                  f'v_cvt_pk_bf16_f32 v{BALL + p_}, 0, v{DALL + 32 * p_}']
            if p_ == 2:
                L += [f's_mov_b64 exec, s[{S_MASK}:{S_MASK + 1}]']
            L += [f'ds_write_b16_d16_hi v{AV[p_]}, v{BALL + p_}', f'v_max_f32 v108, |v{BALL + p_}|, v108']
        L += ['s_mov_b64 exec, -1'] + pub2(108, 109, 8) + self.stamp(13) + [f's_setprio {o.g1p}', 's_waitcnt lgkmcnt(0)', 's_barrier', 's_branch L_w2']
        v3 = self.seq(L)

        def stage3(dst, goff, tag, lab, mid=None, fill=()):
            st = stage(dst, goff, tag)
            a_ = st[:8] if mid is None else st[:mid[0]] + [tuple(mid[1])] + st[mid[0]:8]
            return (self.seq(interleave(a_, list(fill)) + [f's_cmp_eq_u32 s{cw}, 3', f's_cbranch_scc1 {lab}']), self.seq([st[8]]), self.seq([f'{lab}:']))
        g0 = [self.seq(['L_g0:', 's_waitcnt lgkmcnt(0)'] + self.build_srd(SRD_CIN, S_CIN, 105456))]
        g0.append(stage3(A3, 70304, 'W3', 'L_st3'))
        g0.append(self.seq(self.stamp0() + self.build_srd(SRD_IDX, S_IDX, 4096 * 104) + ([f's_add_u32 s{S_SAMP}, s{S_SAMP}, {8 * 104}'] if o.xg1 else xidx(XI, t4) + xidx(XJ, t4)) + self.build_srd(SRD_TAB, S_TAB, 100000 * 128)))
        def w2grp(n):
            c = []
            for k, go in enumerate((0, 1024, 1864)):
                c.append((f's_add_u32 m0, s{S_STG9}, {A2 + n * 4 * 3072 + k * 1024}', f's_add_u32 s{S_TW}, s{S_TGT}, {35152 + n * 4 * 2704 + go}',
                          I(f'buffer_load_dwordx4 v{t5 if k == 1 else vStg}, {srd(SRD_CIN)}, s{S_TW} offen lds', tag='W2')))
            return c
        g0.append((self.seq([f's_mul_i32 s{S_STG9}, s{cw}, 3072', f's_mul_i32 s{S_TGT}, s{cw}, 2704', f'v_lshrrev_b32 v{t5}, 5, v0', f'v_mul_u32_u24 v{t5}, 184, v{t5}',
                             f'v_sub_u32 v{t5}, v{vStg}, v{t5}'] + interleave(w2grp(0) + w2grp(1) + w2grp(2), SC2) + [f's_cmp_lg_u32 s{cw}, 0', 's_cbranch_scc1 L_st2']),
                   self.seq(w2grp(3)), self.seq(['L_st2:']), 1))
        xx = xdma(vC16=t3, tag='XBa') + xdma(XJ, 4 * XBSZ, vC16=t3)
        g0.append(stage3(A1, 0, 'W1', 'L_st1', (o.sigat, [WaitTag(vm_tags=['W2' if o.mrg else 'W3']), 's_barrier'] + self.stamp(2) + FX(0)[0])))
        g0.append(self.seq(([] if o.xg1 else xx) + FX(0)[1] + self.stamp(13) + [WaitTag(vm_tags=['W1']), 's_barrier']))

        def G0(w):
            r = []
            for x in g0:
                r += x if isinstance(x, list) else x[0] + (x[1] if w < (3 if len(x) == 3 else x[3]) else []) + x[2]
            return r

        def gather(dst, off):
            c = [f'v_add_u32 v{r}, {off}, v{r}' for r in (vGa, vGb)] if off else []
            for s2 in range(2):
                for e in range(0, 8, 2):
                    base = vGb if (s2 == 1 and e >= 2) else vGa
                    h = 16 * s2 + e
                    c.append(f'ds_read2st64_b32 {vr(dst + 8 * s2 + e, 2)}, v{base} offset0:{6 * h} offset1:{6 * h + 6}')
            return c

        def perms(g_, aj):
            return [f'v_perm_b32 v{aj + 8 * jj + r}, v{g_ + 2 * r + 1}, v{g_ + 2 * r}, s{S_U1 + jj}' for jj in range(2) for r in range(8)]

        def sout(t):
            d, c_ = DALL + 16 * t, DALL + 16 * t
            c = [f'v_cvt_pk_f16_f32 v{c_ + r}, v{d + 2 * r}, v{d + 2 * r + 1}' for r in range(8)]
            return c[:4] + [f'ds_write_b128 v{WA[t]}, {vr(c_, 4)}', f'v_xor_b32 v{WA[t]}, 16, v{WA[t]}'] + c[4:] + [f'ds_write_b128 v{WA[t]}, {vr(c_ + 4, 4)}']
        M1, M2 = 28, 28

        def pub1(r, off):
            c = [f'v_max_u32_dpp v{r}, v{r}, v{r} {ctl} row_mask:{rm} bank_mask:0xf' for ctl, rm in DPPS]
            return c + [('s_mov_b32 exec_lo, 0', 's_mov_b32 exec_hi, 0x80000000', f'ds_max_u32 v{vFR}, v{r} offset:{16 + off}', 's_mov_b64 exec, -1')]
        L = ['L_w2:'] + self.stamp(14) + self.probe('bw2') + gather(BALL, 0)
        cx = []
        if o.xg1:
            cc0 = self.seq(L + [f's_cmp_eq_u32 s{S_GRP}, 0', 's_cbranch_scc1 L_nx1'])
            cx = self.seq(xdma(XI, -4 * XBSZ) + xdma(XK))
            L = ['L_nx1:']
        else:
            cc0 = []
        L += [f's_cmp_ge_u32 s{S_WAVE}, 5', 's_cbranch_scc1 L_u0']
        cc = self.seq(L)
        M1, M2 = 28, 108
        fin2 = lambda: interleave(mxfin(M1), mxfin(M2)) + [tuple(x) if isinstance(x, list) else x for x in pub2(M1, M2, 0)[:7] + [pub2(M1, M2, 0)[7:]]]
        afr = [f'ds_read_b64_tr_b16 {vr(AFR + 4 * s2 + 2 * rd, 2)}, v{vA3} offset:{s2 * 1024 + rd * 256}' for s2 in range(2) for rd in range(2)]
        b1u = self.seq(gather(BALL + 32, 32) + bread(2, 0) + bread(3, 64) + afr + mxop(BALL, 16, M2, True) + perms(BALL, DALL + 64)[:8] + mxop(BALL + 32, 16, M2, False)
                       + mxop(BALL + 16, 16, M1, True) + perms(BALL, DALL + 64)[8:] + interleave(fin2(), perms(BALL + 32, BALL)) + ['s_branch L_u1'])
        L = ['L_u0:'] + bread(2, 0) + bread(3, 64) + bread(4, 384) + bread(5, 384 + 64) + afr + mxop(BALL, 16, M2, True) + mxop(BALL + 16, 32, M1, True)
        L += perms(BALL, DALL + 64)[:4] + interleave(fin2(), perms(BALL, DALL + 64)[4:])
        L += [f'v_add_u32 v{WA[4]}, {192 * 64}, v{WA[2]}', f'v_add_u32 v{WA[5]}, {192 * 64}, v{WA[3]}',
              f's_cmp_lg_u32 s{S_WAVE}, 7', 's_cbranch_scc1 L_u1', 's_mov_b32 exec_lo, 0xfffffff0', 's_mov_b32 exec_hi, 0xfffffff0', f'v_mov_b32 v{WA[5]}, {OOB}', 's_mov_b64 exec, -1']
        b1q = self.seq(L)
        MXR = 108
        vM = 58

        def ureads(j):
            return [f'ds_read_u16_d16_hi v{XR + 2 * j}, v{vXa} offset:{XOFF(2 * j)}',
                    f'ds_read_u16_d16_hi v{XR + 2 * j + 1}, v{vXa} offset:{XOFF(2 * j) + 2}']
        mx3 = lambda j: f'v_max3_f32 v{vM}, |v{XR + 2 * j}|, |v{XR + 2 * j + 1}|, {"0" if j == 0 else f"v{vM}"}'
        L = ['L_u1:'] + self.stamp(1) + [WaitTag(lgkm0=True), 's_barrier'] + self.stamp(7) + self.probe('b1')
        L += [f'ds_read_b128 {vr(MXR, 4)}, v{vFR} offset:16']
        L += [f's_mul_i32 s{S_T0}, s{S_WAVE}, 384', f'v_lshrrev_b32 v{t3}, 2, v0', f'v_mul_u32_u24 v{t3}, 24, v{t3}', f'v_add_u32 v{t3}, s{S_T0}, v{t3}',
              f'v_and_b32 v{t4}, 3, v0', f'v_lshlrev_b32 v{t4}, 3, v{t4}']
        L += [f'ds_read_b64 {vr(UA + 2 * n_, 2)}, v{t3} offset:{TC_ + 8 * n_}' for n_ in range(3)]
        q1 = [f'v_add_u32 v{MXR}, {127 << 23:#x}, v{MXR}', f'v_lshrrev_b32 v{MXR}, 24, v{MXR}', f'v_sub_u32 v{MXR}, 267, v{MXR}', f'v_min_u32 v{MXR}, 167, v{MXR}',
              f'v_readfirstlane_b32 s{S_F1}, v{MXR}', f'v_mul_u32_u24 v{MXR}, 0x800080, v{MXR}']
        sc = [f'v_add_u32 v{MXR + 1}, {127 << 23:#x}, v{MXR + 1}', f'v_lshrrev_b32 v{MXR + 1}, 24, v{MXR + 1}',
              's_mov_b32 vcc_lo, 0x4000000', 's_mov_b32 vcc_hi, 0x4000000', f'v_cndmask_b32 v{vS}, v{MXR + 2}, v{MXR + 3}, vcc', f'v_lshrrev_b32 v{vS}, 23, v{vS}',
              f'v_add_u32 v{vS}, v{vS}, v{MXR + 1}', f'v_sub_u32 v{vS}, 388, v{vS}', f's_movk_i32 s{S_U0}, 167', f'v_med3_i32 v{vS}, v{vS}, 1, s{S_U0}',
              f'v_subrev_u32 v{MXR + 2}, 127, v{vS}', f'v_lshlrev_b32 v{vS}, 23, v{vS}', f'v_cmp_gt_i32 vcc, 0, v{MXR + 2}',
              f'v_mul_u32_u24 v{MXR + 2}, 0x800080, v{MXR + 2}']
        mq = mm2(DALL + 32, PM, BALL + 16) + mm2(DALL + 48, PM, BALL + 24)
        L += interleave(q1, sc[:6]) + [f'v_and_b32 v{PM + r}, v{PM + r}, v{MXR}' for r in range(8)] + interleave([mq[0], mq[2], mq[1], mq[3]], sc[6:]) + ['s_cbranch_vccnz L_sdown']
        L += [f'v_add_u32 v{AFR + r}, v{AFR + r}, v{MXR + 2}' for r in range(8)]
        u1a = self.seq(L)
        L = ['L_scaled:'] + interleave(mm2(DALL, DALL + 64, AFR) + mm2(DALL + 16, DALL + 72, AFR), sout(2) + sout(3))
        L += [f's_cmp_ge_u32 s{S_WAVE}, 5', 's_cbranch_scc1 L_u2']
        u1 = self.seq(L)
        u2u = self.seq(interleave(mm2(DALL + 64, BALL, AFR) + mm2(DALL + 80, BALL + 8, AFR), sout(0)) + ['s_branch L_u3'])
        u2q = self.seq(['L_u2:'] + interleave(mm2(DALL + 64, PM, BALL + 32) + mm2(DALL + 80, PM, BALL + 40), sout(0)))
        L = ['L_u3:'] + xidx() + xidx(12)
        L += interleave(sout(1) + sout(4) + sout(5), [x for n_ in range(6) for x in (f'v_xor_b32 v{UA + n_}, v{UA + n_}, v{t4}', f'v_xor_b32 v{UX[n_]}, 32, v{UA + n_}')])
        L += [f'v_readlane_b32 s{S_CG}, v{vS}, 0', f'v_readlane_b32 s{S_IV}, v{vS}, 26',
              f's_sub_u32 s{S_F2}, {254 << 23:#x}, s{S_CG}', f's_sub_u32 s{S_IV}, {254 << 23:#x}, s{S_IV}',
              f's_sub_u32 s{S_F1}, 254, s{S_F1}', f's_lshl_b32 s{S_F1}, s{S_F1}, 23',
              f's_mov_b32 s{S_MASK}, 0x88888888', f's_mov_b32 s{S_MASK + 1}, 0x88888888']

        def sigma(s_):
            t = (s_ - 1) // 2
            first = (s_ - 1) % 2 == 0
            return (0 if first else 1) if t % 2 == 0 else (1 if first else 0)
        for s_ in range(1, 11):
            assert ((s_ - 1) // 2) * 1024 + sigma(s_) * 512 - (s_ // 4) * 2048 == (-1024, 0, 512, 1536)[s_ % 4]

        def p2read(n_):
            b = BALL + 16 * n_
            c = []
            UAl = list(range(UA, UA + 6))
            for x, (ar, off) in enumerate(((UAl, 0), (UX, 0), (UAl, SSZ), (UX, SSZ))):
                for y in range(2):
                    c.append(f'ds_read_b64_tr_b16 {vr(b + 4 * x + 2 * y, 2)}, v{ar[2 * n_ + y]} offset:{off}')
            return c

        def p2a(n_):
            b = BALL + 16 * n_
            c = []
            for x in range(4):
                c += [f'v_pk_add_f16 v{b + 4 * x + y}, v{b + 4 * x + y}, v{b + 4 * x + 2 + y}' for y in range(2)]
                if x in (0, 2):
                    c.append(f'ds_write_b64 v{vFw}, {vr(b + 4 * x, 2)} offset:{FR + n_ * 4 * 3072 + x * 1024}')
            c += [f'v_cndmask_b32 v{b + 4 + y}, v{b + 4 + y}, v{b + 12 + y}, s[{S_MASK}:{S_MASK + 1}]' for y in range(2)]
            c.append(f'ds_write_b64 v{vFw}, {vr(b + 4, 2)} offset:{FR + n_ * 4 * 3072 + 1024}')
            return c

        def p2s(n_):
            b = BALL + 16 * n_ + 12
            off = FRS + max(n_ * 2048 - 1024, 0)
            return ([f'v_subrev_u32 v{vT3}, 1024, v{vT3}'] if n_ == 0 else []) + [
                f'ds_write_b32 v{vT3}, v{b} offset:{off}', f'ds_write_b32 v{vT3}, v{b + 1} offset:{off + 16}']
        ec = []
        if o.econv:
            L += [f's_cmp_lg_u32 s{S_GRP}, 0', 's_cbranch_scc1 L_noec']
            u3 = self.seq(L)
            ec = self.seq([WaitTag(vm_tags=['XBa'])] + [x for j in range(13) for x in ureads(j)])
            L = ['L_noec:']
        else:
            u3 = []
        L += [WaitTag(vm_tags=['XB'] if o.xg1 else [], lgkm0=True), 's_barrier'] + self.stamp(10)
        L += p2read(0) + p2read(1) + [f's_cmp_ge_u32 s{S_WAVE}, 6', 's_cbranch_scc1 L_lin']
        b2 = self.seq(L)
        p2c = self.seq(p2read(2) + p2a(2) + p2s(2) + ['s_branch L_p2'])
        LB = BALL + 32
        ZR4 = t5
        L = ['L_lin:', f's_and_b32 s{S_U0}, s{S_WAVE}, 1', f's_cselect_b64 vcc, -1, 0', f's_lshl_b32 s{S_U1}, s{S_U0}, 5', f'v_mov_b32 v{ZR4}, 0',
             f'v_xor_b32 v{vV2r}, s{S_U1}, v{vV2r}', f'v_xor_b32 v{vV2q}, s{S_U1}, v{vV2q}', f'v_cndmask_b32 v{vWo}, v{vWo}, v{vWo + 1}, vcc',
             f'ds_read_b64_tr_b16 {vr(LB, 2)}, v{vV2r}', f'ds_read_b64_tr_b16 {vr(LB + 2, 2)}, v{vV2q}',
             f'ds_read_u16_d16_hi v{ZR4}, v{vWo}',
             f's_lshl_b32 s{S_U0}, s{S_U0}, 10', f'v_add_u32 v{t3}, s{S_U0}, v{vStg}']
        for r in range(4):
            a_, b_ = LB + 4 + 2 * r, LB + 5 + 2 * r
            L += [f'v_cvt_f32_f16 v{a_}, v{LB + r}', f'v_cvt_f32_f16_sdwa v{b_}, v{LB + r} dst_sel:DWORD dst_unused:UNUSED_PAD src0_sel:WORD_1',
                  f'v_mul_f32 v{a_}, s{S_IV}, v{a_}', f'v_mul_f32 v{b_}, s{S_IV}, v{b_}']
            if r == 3:
                L += ['s_mov_b32 exec_lo, 0', 's_mov_b32 exec_hi, 0xffff', f'v_mov_b32 v{a_}, v{ZR4}', 's_mov_b64 exec, -1']
            L += [f'v_mul_f32 v{a_}, s{S_CG}, v{a_}', f'v_mul_f32 v{b_}, s{S_CG}, v{b_}', f'v_cvt_pk_bf16_f32 v{LB + r}, v{a_}, v{b_}']
        L += [f'ds_write_b128 v{t3}, {vr(LB, 4)} offset:{FRL}']
        lin = self.seq(L)
        p2 = self.seq(['L_p2:'] + p2a(1) + p2s(1) + p2a(0) + [f's_cmp_lt_u32 s{S_WAVE}, 2', 's_cbranch_scc1 L_p2d'])
        p2e = self.seq(p2s(0) + ['s_branch L_built'])
        p2d = self.seq(['L_p2d:', f'ds_write_b64 v{vT3d}, {vr(BALL + 12, 2)} offset:{FRS + 5 * 1024}'])

        L = ['L_sdown:']
        for r in range(8):
            L += [f'v_lshlrev_b32 v{MXR}, 16, v{AFR + r}', f'v_and_b32 v{MXR + 1}, 0xffff0000, v{AFR + r}',
                  f'v_mul_f32 v{MXR}, v{MXR}, v{vS}', f'v_mul_f32 v{MXR + 1}, v{MXR + 1}, v{vS}', f'v_cvt_pk_bf16_f32 v{AFR + r}, v{MXR}, v{MXR + 1}']
        self.sdown = L + ['s_branch L_scaled']

        def PRE(w, sd=None):
            grp = w >> 2
            return (c0 + (g1s + (g1t if w < 6 else []) if grp else []) + csc + (v3p + v3 if grp else G0(w)) + cc0 + (cx if grp else []) + cc + (b1q if w >= 5 else b1u)
                    + (u1a if sd is None else u1a[:-8] + sd) + u1 + (u2q if w >= 5 else u2u) + u3 + ([] if grp else ec) + b2
                    + (lin if w >= 6 else p2c) + p2 + (p2d if w < 2 else p2e))
        L = ['L_built:'] + self.stamp(11)
        L += [f's_mov_b32 s{S_CG}, s{S_F1}', f's_mov_b32 s{S_IV}, s{S_F2}', f's_mov_b32 s{S_LO}, {f32hex(0.125)}', f's_mov_b32 s{S_HI}, {f32hex(0.0 if o.slow else 128.0)}']
        CV, vM, S_XD = 28, 58, 81

        def ureads(j):
            return [f'ds_read_u16_d16_hi v{XR + 2 * j}, v{vXa} offset:{XOFF(2 * j)}',
                    f'ds_read_u16_d16_hi v{XR + 2 * j + 1}, v{vXa} offset:{XOFF(2 * j) + 2}']
        mx3 = lambda j: f'v_max3_f32 v{vM}, |v{XR + 2 * j}|, |v{XR + 2 * j + 1}|, {"0" if j == 0 else f"v{vM}"}'
        cvt = lambda j: f'v_cvt_pk_f16_f32 v{CV + j % 4}, v{XR + 2 * j}, v{XR + 2 * j + 1}'
        iwr = lambda j: f'ds_write_b32 v{vIw}, v{CV + j % 4} offset:{j * IMGP}'
        S_SKIP = 51
        pfr = lambda: (pfx_b() + pfx_a() if o.pfx else []) + (pfw() if o.pfw else [])
        conv = lambda tag='XB': ([WaitTag(vm_tags=[tag])] + [x for j in range(13) for x in ureads(j)]
                        + [x for j in range(13) for x in (mx3(j), f'v_cvt_pk_f16_f32 v{D + j}, v{XR + 2 * j}, v{XR + 2 * j + 1}')])
        L += [f's_mov_b32 s{S_SKIP}, 1', f's_mul_i32 s{S_U0}, s{S_WAVE}, 1536', f's_add_u32 s{S_U0}, s{S_U0}, {PART}',
              f's_cmp_lg_u32 s{S_GRP}, 0', 's_cbranch_scc1 L_g1c']
        c2a = self.seq(L)
        c2g0 = self.seq([f's_sub_u32 s{S_SAMP}, s{S_SAMP}, {4 * 104}'] + (conv('XBa')[27:] if o.econv else conv('XBa')) + [WaitTag(lgkm0=True), 's_barrier'] + self.stamp(8) + ['s_branch L_cin_go'])
        DX = XB2 - XB - 4 * XBSZ
        L = ['L_g1c:', WaitTag(vm_tags=['XB'], lgkm0=True), 's_barrier'] + self.stamp(8) + self.probe('b4')
        L += [f's_add_u32 s{S_XM0}, s{S_XM0}, {DX}'] + xdma(tag='XB0') + xdma(12, 4 * XBSZ) + xidx() + pfr() + [f'v_add_u32 v{r}, {DX}, v{r}' for r in (vXa, vLin0, vLin1)]
        L += [f'ds_write_b32 v{vXa}, v{vXi1} offset:{XOFF(26)}', f'ds_write_b32 v{vXa}, v{vXi1} offset:{XOFF(26) + 4 * XBSZ}']
        c2g1 = self.seq(L)
        c2b = []
        c2g1d = self.seq(['L_g1d:'] + conv('XB0'))
        c2c = self.seq(['L_cin_go:'] + [f'ds_write_b32 v{vIw}, v{D + j} offset:{j * IMGP}' for j in range(13)]
                       + [f's_mov_b32 s{S_XD}, {4 * XBSZ}', f's_add_u32 s{S_XM0}, s{S_XM0}, {4 * XBSZ}',
                          f'v_lshlrev_b32 v{vXi1}, 2, v0', f'v_add_u32 v{vXi1}, s{S_U0}, v{vXi1}'])

        NWF = 5
        PF = o.cpfd
        zslot = lambda s_: 1 if s_ % 2 == 0 else (0 if ((s_ - 1) // 2) % 2 == 0 else 2)
        zr = lambda T, sl: Z + 12 * T + 4 * sl
        preg = lambda T, r: P + 14 * T + (r if r < 14 else r - 14)
        acc = lambda T, tile: D + 16 * T + 4 * tile
        jobs = [('l', 0, 0), ('l', 0, 1)]
        for s_ in range(11):
            jobs += [('d', s_, 2), ('d', s_, 0), ('d', s_, 1)]
            if s_ == 0:
                jobs.append(('d', 0, 3))
            elif s_ % 2 == 0:
                jobs.append(('s', s_, 3))
        NJ = len(jobs)
        assert NJ == 41

        def wread(n):
            kind, s_, tile = jobs[n]
            off = FRL + tile * 1024 if kind == 'l' else (FR + s_ * 3072 + tile * 1024 if tile < 3 else FRS + (5 if s_ == 0 else (s_ - 1) // 2) * 1024)
            return f'ds_read_b128 {vr(WF + 4 * (n % NWF), 4)}, v{vFa} offset:{off}'

        def mfma(n, T):
            kind, s_, tile = jobs[n]
            a = vr(WF + 4 * (n % NWF), 4)
            d = vr(acc(T, tile), 4)
            if kind == 'l':
                return f'v_mfma_f32_16x16x32_bf16 {d}, {a}, {vr(zr(T, 2), 4)}, 0'
            if kind == 's':
                lo = 0 if ((s_ - 1) // 2) % 2 == 0 else 1
                return f'v_smfmac_f32_16x16x64_f16 {d}, {a}, {vr(zr(T, lo), 8)}, v{vIDX}'
            return f'v_mfma_f32_16x16x32_f16 {d}, {a}, {vr(zr(T, zslot(s_)), 4)}, {"0" if (s_ == 0 and tile >= 2) else d}'

        def pk(T, n):
            a, b, s0, s1 = cin16.INS[n]
            return (f'v_pk_mul_f16 v{zr(T, zslot(n // 4)) + n % 4}, v{preg(T, a)}, v{preg(T, b)} '
                    f'op_sel:[{s0[0]},{s0[1]}] op_sel_hi:[{s1[0]},{s1[1]}]')

        def trp(T, rp):
            return f'ds_read_b64_tr_b16 {vr(preg(T, 2 * rp), 2)}, v{vTR + rp} offset:{32 * T}'

        LASTA = max(n for n, x in enumerate(cin16.INS) if x[0] < 2)
        S_A1, S_A2, S_PINC = 49, 50, 48
        fin = []
        for T in range(4):
            fin += [(acc(T, 0) + r, acc(T, 2) + r) for r in range(4)] + [(acc(T, 1), acc(T, 1) + 3)]
        for T in range(4):
            fin += [(acc(T, 1) + 1 + (r >> 1), acc(T, 3) + r) for r in range(4)]

        def final(f1, f2):
            c = []
            for k, (a, b) in enumerate(fin):
                d = Z + k % 4
                c.append(f'v_mul_f32 v{d}, v{a}, v{b}' if k < 4 else f'v_fmac_f32 v{d}, v{a}, v{b}')
            c += [f'v_add_f32 v{Z}, v{Z}, v{Z + 1}', f'v_add_f32 v{Z + 2}, v{Z + 2}, v{Z + 3}', f'v_add_f32 v{Z}, v{Z}, v{Z + 2}']
            c += [f'v_mul_f32 v{Z}, s{x}, v{Z}' for x in (f1, f2)]
            return c + [f'ds_write_b32 v{vXi1}, v{Z}']
        code = ['L_cin_loop:', f'v_cmp_le_f32 s[{S_CM}:{S_CM + 1}], s{S_HI}, v{vM}', f'v_cmp_le_f32 vcc, s{S_LO}, v{vM}',
                f's_mov_b32 s{S_A1}, s{S_F1}', f's_mov_b32 s{S_A2}, s{S_F2}',
                f's_cmp_lg_u64 s[{S_CM}:{S_CM + 1}], 0', 's_cbranch_scc1 L_cslow', 's_cbranch_vccz L_cslow']
        cA = self.seq(code)
        RD = []
        for rp in (0, 3, 4):
            RD += [trp(T, rp) for T in range(4)]
        for T in range(4):
            RD += [f'ds_read_b64_tr_b16 {vr(zr(T, 2), 2)}, v{vLin0} offset:{32 * T}', f'ds_read_b64_tr_b16 {vr(zr(T, 2) + 2, 2)}, v{vLin1} offset:{32 * T}']
        RD += [wread(k) for k in range(PF)]
        for rp in (5, 6, 1, 2):
            RD += [trp(T, rp) for T in range(4)]
        pfr = lambda: (pfx_b() + pfx_a() if o.pfx else []) + (pfw() if o.pfw else [])
        vm = xdma() + xidx() + pfr()
        VA = final(S_A1, S_A2) + [f'v_add_u32 v{vXi1}, 256, v{vXi1}']
        PK0 = [pk(T, n) for T in range(4) for n in range(4)]
        TG = [f'v_add_u32 v{r}, s{S_XD}, v{r}' for r in (vXa, vLin0, vLin1)] + [f's_sub_u32 s{S_XM0}, s{S_XM0}, s{S_XD}', f's_sub_u32 s{S_XD}, 0, s{S_XD}', f's_mov_b32 s{S_SKIP}, 0']
        cB0 = self.seq(['L_cconv:', f's_cmp_lg_u32 s{S_SKIP}, 0', 's_cbranch_scc1 L_first'])
        cVM = self.seq(interleave(RD, VA) + PK0 + vm)
        self.first = ['L_first:'] + RD[:28] + interleave(RD[28:], PK0) + ['s_branch L_novm']
        code = ['L_novm:'] + TG
        LA = 1
        def lstamp(base):
            if not (o.stamps and o.cst):
                return []
            return [f's_memtime s[{S_ST}:{S_ST + 1}]', f's_memrealtime s[{S_ST + 2}:{S_ST + 3}]', f's_sub_u32 s{S_C0}, {base + 6}, s{S_LOOP}', 's_waitcnt lgkmcnt(0)',
                    f's_mov_b32 m0, s{S_C0}', f'v_writelane_b32 v252, s{S_ST}, m0', f'v_writelane_b32 v253, s{S_ST + 2}, m0']
        code += lstamp(19)
        code += [Touch(vr(WF, 4)), Touch(vr(zr(3, 2), 4))] + (['s_setprio 2', 's_barrier'] if o.cbar else ['s_setprio 1'])
        MS = [(n, T) for n in range(NJ) for T in range(4)]
        first_use, last_use = {}, {}
        for mi, (n, T) in enumerate(MS):
            kind, s_, tile = jobs[n]
            if kind == 'l':
                last_use[(T, 'lin')] = mi
                continue
            for su in ([s_] if kind == 'd' else [s_ - 1, s_]):
                first_use.setdefault((T, su), mi)
                last_use[(T, su)] = mi
        V = []
        for s_ in range(LA, 11):
            prev = [p_ for p_ in range(s_) if zslot(p_) == zslot(s_)]
            for T in range(4):
                rdy = last_use[(T, prev[-1])] + o.war if prev else (last_use[(T, 'lin')] if zslot(s_) == 2 else -1)
                for n in range(4 * s_, 4 * s_ + 4):
                    V.append((pk(T, n), rdy, first_use[(T, s_)], n, T))
        forced = 0
        late = []
        XL_ = [x for j in range(13) for x in ureads(j)]
        xrd = {}
        CVR = [preg(T, r) for r in (2, 3, 6, 7) for T in range(4)]
        cvrdy = max(n for n, x in enumerate(cin16.INS) if set(x[:2]) & {2, 3, 6, 7})
        cvt2 = lambda j: f'v_cvt_pk_f16_f32 v{CVR[j]}, v{XR + 2 * j}, v{XR + 2 * j + 1}'
        iwr2 = lambda j: f'ds_write_b32 v{vIw}, v{CVR[j]} offset:{j * IMGP}'
        nm = nc = nw = 0
        V.sort(key=lambda x: x[2])
        prev2 = 0
        for mi, (n, T) in enumerate(MS):
            while V and V[0][2] <= mi:
                assert V[0][1] < mi
                code.append(V.pop(0)[0]); forced += 1
            code.append(mfma(n, T))
            t = 4
            if o.cbar and mi == len(MS) - 1 - o.cbov:
                code += ['s_setprio 3', 's_barrier']; t += 8
            if not o.cbar and mi == 4 * o.hiat - 2:
                code.append('s_setprio 2'); t += 4
            if T == 3 and n + 1 < NJ:
                code.append(Touch(vr(WF + 4 * ((n + 1) % NWF), 4))); t += 4
            if T == 0 and n + PF < NJ:
                code.append(wread(n + PF)); t += 8
            elif T in (1, 2) and late:
                code.append(late.pop(0)); t += 8
            elif T in (1, 2) and mi >= o.x0 and XL_:
                if len(XL_) == 26:
                    code.append(WaitTag(vm_tags=['XB']))
                code.append(XL_.pop(0)); t += 8
                if len(XL_) % 2 == 0:
                    xrd[12 - len(XL_) // 2] = mi
            elif not V and nw < nc and t == 4:
                code.append(iwr2(nw)); nw += 1; t += 12
            t = max(t, 12 if jobs[n][0] == 's' else 8)
            k = 0
            while t < 16:
                urgent = any(V[q_][2] - 1 - mi < q_ + 1 for q_ in range(min(24, len(V))))
                if k == 1 and prev2 >= o.max2 and not urgent:
                    break
                cand = [x for x in V[:32] if x[1] <= mi]
                extra = None
                if nm < 13 and nm in xrd and xrd[nm] + o.xlat <= mi:
                    extra = 'm'
                elif nc < nm and all(x[3] > cvrdy for x in V):
                    extra = 'c'
                if cand and (k == 0 or urgent or not extra) and (k == 0 or urgent or o.eager):
                    x = cand[0]
                    V.remove(x)
                    code.append(x[0])
                    if x[3] <= LASTA and all(y[3] > LASTA for y in V if y[4] == x[4]):
                        late.append(trp(x[4], 7))
                elif extra == 'm':
                    code.append(mx3(nm)); nm += 1
                elif extra == 'c':
                    code.append(cvt2(nc)); nc += 1
                else:
                    break
                t += 4; k += 1
            prev2 = prev2 + 1 if k == 2 else 0
        assert not late and not XL_ and not V
        print('left', 13 - nm, 13 - nc, 13 - nw)
        tail = [mx3(j) for j in range(nm, 13)] + [cvt2(j) for j in range(nc, 13)] + [iwr2(j) for j in range(nw, 13)]
        print('forced VALU', forced)
        code += lstamp(25)
        code.append(f's_setprio {o.p0}')
        code += [f's_sub_u32 s{S_LOOP}, s{S_LOOP}, 1', f's_cmp_eq_u32 s{S_LOOP}, 0', 's_cbranch_scc1 L_cin_done'] + tail
        ntail = len(tail) + 1
        def keep(x):
            t_ = x.text if isinstance(x, I) else x
            if isinstance(t_, tuple):
                return True
            if 'nopk' in o.dbg and t_.startswith('v_pk_mul_f16'):
                return False
            if 'nowf' in o.dbg and t_.startswith('ds_read_b128'):
                return False
            if 'nosm' in o.dbg and t_.startswith('v_smfmac'):
                return False
            return True
        code = [x for x in code if keep(x)]
        if 'bf' in o.dbg:
            code = [x.replace('x32_f16', 'x32_bf16').replace('x64_f16', 'x64_bf16') if isinstance(x, str) else x for x in code]
        cB = self.seq(code + ['s_branch L_cin_loop'])
        mark0 = len(self.P.static)
        bl = []
        if o.burn:
            bl = [f's_movk_i32 s{S_LOOP}, {o.burn // 2}', 'L_burn2:'] + [f'v_mfma_f32_16x16x32_f16 {vr(P + 4 * (k % 2), 4)}, {vr(WF + 4 * (k % 4), 4)}, {vr(Z + 4 * (k // 4), 4)}, 0' for k in range(32)]
            bl += [f's_sub_u32 s{S_LOOP}, s{S_LOOP}, 1', f's_cmp_lg_u32 s{S_LOOP}, 0', 's_cbranch_scc1 L_burn2']
        L = ['L_cin_done:', f's_mul_i32 s{S_U0}, s{S_WAVE}, 1536', f's_add_u32 s{S_U0}, s{S_U0}, {PART}',
             f'v_lshlrev_b32 v{Z + 4}, 5, v0', f'v_add_u32 v{Z + 4}, s{S_U0}, v{Z + 4}',
             f'ds_read_b128 {vr(P, 4)}, v{Z + 4}', f'ds_read_b128 {vr(P + 4, 4)}, v{Z + 4} offset:16'] + bl + final(S_F1, S_F2)[:-1]
        E = [f'v_subrev_u32 v{Z + 6}, s{S_U0}, v{vXi1}', f'v_lshrrev_b32 v{Z + 6}, 8, v{Z + 6}', f'v_lshrrev_b32 v{Z + 5}, 3, v0', f'v_cmp_gt_u32 vcc, v{Z + 6}, v{Z + 5}',
             f'v_min_u32 v{Z + 5}, v{Z + 5}, v{Z + 6}', f'v_lshlrev_b32 v{Z + 5}, 4, v{Z + 5}', f'v_add_u32 v{Z + 5}, s{S_RC}, v{Z + 5}',
             ] + [f'v_add_f32 v{P + a_}, v{P + a_}, v{P + b_}' for a_, b_ in ((0, 1), (2, 3), (4, 5), (6, 7), (0, 2), (4, 6), (0, 4))]
        E += [f'v_add_f32_dpp v{P}, v{P}, v{P} {ctl} row_mask:0xf bank_mask:0xf' for ctl in ('quad_perm:[1,0,3,2]', 'quad_perm:[2,3,0,1]', 'row_half_mirror')]
        L += interleave([f'v_add_f32_dpp v{Z}, v{Z}, v{Z} {ctl} row_mask:{rm} bank_mask:0xf' for ctl, rm in DPPS], E)
        L += [f'v_cndmask_b32 v{P}, v{Z}, v{P}, vcc', 's_bitset1_b32 vcc_hi, 31', 's_mov_b64 exec, vcc', f'ds_write_b32 v{Z + 5}, v{P}', 's_mov_b64 exec, -1']
        L += self.stamp(9) + self.stamp_flush() + self.probe('cend') + [f's_cmp_eq_u32 s{S_WAVE}, 0', 's_cbranch_scc1 L_cpub', 's_waitcnt lgkmcnt(0)', 's_barrier', 's_endpgm',
              'L_cpub:', f's_load_dword s{S_BOUT}, s[{S_BO}:{S_BO + 1}], 0'] + self.pubsrd() + [
              'v_lshlrev_b32 v6, 2, v0', f'v_add_u32 v2, {RC}, v6', 'v_add_u32 v4, 1024, v6',
              f's_mul_i32 s{S_T1}, s{S_MB}, 192', f's_add_u32 s{S_T1}, s{S_T1}, {13 * WSP}',
              'v_mov_b32 v13, -1', 's_mov_b32 exec_hi, 0xffff', f'buffer_store_dword v13, v6, {srd(SRD_WS)}, s{S_T1} offen sc1', 's_mov_b64 exec, 1',
              f'buffer_load_dword v250, v6, {srd(SRD_OUT)}, 0 offen', f'buffer_load_dword v251, v6, {srd(SRD_DBG)}, 0 offen offset:240 sc1', 's_mov_b64 exec, -1',
              f's_mul_i32 s{S_T0}, s{S_MB}, 3', f's_mul_i32 s{S_T2}, s{S_T0}, 3277', f's_lshr_b32 s{S_T2}, s{S_T2}, 16',
              f'v_add_u32 v7, s{S_T2}, v0', f's_mul_i32 s{S_T2}, s{S_T2}, 20', f's_add_u32 s{S_T2}, s{S_T2}, 20',
              f's_sub_u32 s{S_T2}, s{S_T2}, s{S_T0}', f's_min_u32 s{S_T2}, s{S_T2}, 3', f's_sub_u32 s{S_T0}, 3, s{S_T2}',
              f'v_mov_b32 v5, s{S_T0}', f'v_writelane_b32 v5, s{S_T2}, 0',
              f's_cmp_eq_u32 s{S_T0}, 0', f's_cselect_b32 s{S_T0}, 1, 3',
              'v_lshlrev_b32 v3, 4, v0', 's_mov_b32 exec_hi, 0xffff', 's_waitcnt vmcnt(0) lgkmcnt(0)', 's_barrier'] + self.probe('cend2') + ['ds_read_b32 v64, v2']
        L += (self.stamp(16) if o.diag else [])
        L += ['v_min_u32 v64, -2, v64'] if o.sent else []
        L += [f'buffer_store_dword v64, v6, {srd(SRD_WS)}, s{S_T1} offen sc1', f's_mov_b32 exec_lo, s{S_T0}', 's_mov_b32 exec_hi, 0', 's_branch L_pub']
        fin_ = self.seq(L)
        blk = self.P.static[mark0:]
        del self.P.static[mark0:]
        at = self.P.static.index(self.pub[-1]) + 1
        self.P.static[at:at] = blk + self.ldblk
        L = ['L_cslow:']
        for (ctl, rm) in (('row_shr:1', '0xf'), ('row_shr:2', '0xf'), ('row_shr:4', '0xf'), ('row_shr:8', '0xf'),
                          ('row_bcast:15', '0xa'), ('row_bcast:31', '0xc')):
            L.append(f'v_max_f32_dpp v{vM}, v{vM}, v{vM} {ctl} row_mask:{rm} bank_mask:0xf')
        L += [f'v_readlane_b32 s{S_U0}, v{vM}, 63', f's_mov_b32 s{S_HI}, 0',
              f's_lshr_b32 s{S_U0}, s{S_U0}, 23', f's_min_u32 s{S_U0}, s{S_U0}, {127 + 55}',
              f's_lshr_b32 s{S_U1}, s{S_IV}, 23', f's_sub_u32 s{S_U1}, s{S_U1}, 47', f's_lshr_b32 s{S_U1}, s{S_U1}, 1', f's_min_u32 s{S_U1}, s{S_U1}, 59',
              f's_sub_u32 s{S_U1}, 131, s{S_U1}', f's_max_u32 s{S_U0}, s{S_U0}, s{S_U1}',
              f's_sub_u32 s{S_U1}, {127 + 4 + 127}, s{S_U0}',
              f's_lshl_b32 s{S_U2}, s{S_U1}, 1', f's_sub_u32 s{S_U2}, s{S_U2}, 127',
              f's_sub_u32 s{S_G}, 254, s{S_U2}', f's_lshl_b32 s{S_G}, s{S_G}, 23',
              f'v_mov_b32 v{P}, s{S_G}', f'v_mul_f32 v{P + 1}, s{S_CG}, v{P}', f'v_mul_f32 v{P}, s{S_IV}, v{P}',
              f'v_readfirstlane_b32 s{S_F1}, v{P + 1}', f'v_readfirstlane_b32 s{S_F2}, v{P}',
              f's_lshl_b32 s{S_U1}, s{S_U1}, 23', f's_lshl_b32 s{S_U2}, s{S_U2}, 23']
        TS = P
        for j in range(13):
            L += [f'v_mul_f32 v{TS}, s{S_U1}, v{XR + 2 * j}', f'v_mul_f32 v{TS + 1}, s{S_U1}, v{XR + 2 * j + 1}',
                  f'v_mul_f32 v{TS + 2}, s{S_U2}, v{XR + 2 * j}', f'v_mul_f32 v{TS + 3}, s{S_U2}, v{XR + 2 * j + 1}',
                  f'v_cvt_pk_f16_f32 v{TS + 20 + j}, v{TS}, v{TS + 1}', f'v_cvt_pk_bf16_f32 v{TS + 4 + j}, v{TS + 2}, v{TS + 3}',
                  f'ds_write_b32 v{vIw}, v{TS + 20 + j} offset:{j * IMGP}', f'ds_write_b32 v{vXa}, v{TS + 4 + j} offset:{XOFF(2 * j)}']
        L += [f'v_mov_b32 v{TS}, s{S_U2}', f'v_cvt_pk_bf16_f32 v{TS}, v{TS}, v{TS}',
              's_mov_b32 exec_hi, 0', f'ds_write_b32 v{vXa}, v{TS} offset:{XOFF(26)}', 's_mov_b32 exec_hi, -1',
              's_waitcnt lgkmcnt(0)', 's_branch L_cconv']
        slow = self.seq(L)
        sdown = self.seq(self.sdown)
        cF = self.seq(self.first)
        traces = []
        for w in range(8):
            grp = w >> 2
            c2 = c2a + (c2g1 + (c2b if w == 4 else []) + c2g1d if grp else c2g0) + c2c
            it = lambda sl, first: cA + (slow if sl else []) + cB0 + (cF if first else cVM) + cB
            traces.append(PRE(w) + c2 + it(0, 1) + it(0, 0) + it(0, 0)[:-ntail] + fin_ + self.pub)
            if w in (0, 4):
                traces.append(PRE(w, sdown) + c2 + it(1, 1) + it(1, 0)[:-ntail] + fin_ + self.pub)
        return traces

    def build(self):
        pro = self.prologue()
        d = self.dnn()
        cs = self.cin()
        self.seq(['L_end:', 's_endpgm'])
        traces = [pro + c for c in d + cs] + self.extra_traces
        for t in traces:
            resolve_waits(t)
        for _ in range(2):
            for t in traces:
                resolve_hazards(t)
        hdr = open(os.path.join(os.path.dirname(os.path.abspath(__file__)), 'header.txt')).read()
        txt = hdr + f'; @launch grid=(256,1,1) block=(512,1,1) lds={LDS_TOTAL}\n'
        txt += f'''.amdgcn_target "amdgcn-amd-amdhsa--gfx950"
{DOC}.text
.globl {KNAME}
.p2align 8
.type {KNAME},@function
{KNAME}:
'''
        body_ = self.P.emit()
        if self.opt.align:
            for lab in ('L_dnn_loop0:', 'L_dnn_loop1:', 'L_cin_loop:', 'L_epi:'):
                pad = '  s_nop 0\n' if self.opt.align > 100 else ''
                body_ = body_.replace(lab + '\n', f'.p2align {self.opt.align % 100}\n{pad}{lab}\n')
        if self.opt.cwalk:
            lines = body_.split('\n')
            i0, i1 = lines.index('L_w2:'), lines.index('L_cslow:')
            out, k, cnt = lines[:i0], 0, 0
            seg = lines[i0:i1]
            prot = 0
            for n_, l in enumerate(seg):
                out.append(l)
                t = l.strip()
                cnt += 1
                inmain = 'L_novm:' in seg[:n_ + 1]
                nxt = seg[n_ + 1].strip() if n_ + 1 < len(seg) else ''
                ok = t.endswith(':') or (cnt >= self.opt.cwalk and ('mfma' in t and nxt.startswith('v_pk') if inmain else t.startswith(('ds_', 'v_perm', 'v_cvt_pk'))))
                if ok and t not in ('L_cin_loop:', 'L_cconv:', 'L_scaled:'):
                    out += [f'L_wp{k}:', f'  s_cbranch_execz L_wp{k + 1}']
                    k += 1; cnt = 0
            j = lines.index('L_first:')
            rest = lines[i1:j + 1] + [f'L_wp{k}:', '  s_cbranch_execz L_wret'] + lines[j + 1:]
            body_ = '\n'.join(out + rest)
            print('walk pads', k + 1)
            self.npads = k + 1
            for q_ in range(4):
                body_ = body_.replace(f'L_WENTRY{q_}', f'L_wp{q_ * (k + 1) // 4}')
        if self.opt.fix:
            body_ = fixalign.fix(body_ + 'L_tables:\n', self.opt.fix)[:-len('L_tables:\n')]
        txt += body_
        tb = self.tables()
        assert len(tb) == 16 * 256
        txt += '.p2align 8\nL_tables:\n' + ''.join('.long ' + ', '.join(f'{x:#x}' for x in tb[i:i + 8]) + '\n' for i in range(0, len(tb), 8))
        txt += f'''.section .rodata,"a"
.p2align 6
.amdhsa_kernel {KNAME}
  .amdhsa_next_free_vgpr 256
  .amdhsa_next_free_sgpr 102
  .amdhsa_accum_offset 256
  .amdhsa_group_segment_fixed_size 0
  .amdhsa_kernarg_size 88
  .amdhsa_user_sgpr_count 2
  .amdhsa_user_sgpr_kernarg_segment_ptr 1
  .amdhsa_system_sgpr_workgroup_id_x 1
  .amdhsa_float_denorm_mode_32 {self.opt.denorm}
.end_amdhsa_kernel
'''
        return txt


def main():
    ap = argparse.ArgumentParser()
    ap.add_argument('-o', default='standalone__deep_cross_xdeepfm__recsys.s')
    ap.add_argument('--stamps', action='store_true')
    ap.add_argument('--nodma', action='store_true')
    ap.add_argument('--cpf', type=int, default=1)
    ap.add_argument('--coop', type=int, default=0)
    ap.add_argument('--coopw', type=int, default=2)
    ap.add_argument('--tbpos', type=int, default=0)
    ap.add_argument('--dbar3', type=int, default=1)
    ap.add_argument('--tlb', type=int, default=0)
    ap.add_argument('--tlb2', type=int, default=1)
    ap.add_argument('--itst', type=int, default=0)
    ap.add_argument('--diag', type=int, default=0)
    ap.add_argument('--dbg', default='')
    ap.add_argument('--lead3', type=int, default=1)
    ap.add_argument('--morder', type=int, default=0)
    ap.add_argument('--etlb', type=int, default=0)
    ap.add_argument('--lateb', type=int, default=0)
    ap.add_argument('--wfl', default='')
    ap.add_argument('--xfl', default='')
    ap.add_argument('--tag', type=int, default=0)
    ap.add_argument('--idxfirst', type=int, default=1)
    ap.add_argument('--bpos', type=int, default=2)
    ap.add_argument('--sigat', type=int, default=4)
    ap.add_argument('--epx', type=int, default=1)
    ap.add_argument('--denorm', type=int, default=3)
    ap.add_argument('--mprio', type=int, default=0)
    ap.add_argument('--swap', type=int, default=0)
    ap.add_argument('--bov', type=int, default=1)
    ap.add_argument('--rfirst', type=int, default=0)
    ap.add_argument('--g1x', type=int, default=0)
    ap.add_argument('--ldsred', type=int, default=0)
    ap.add_argument('--csnake', type=int, default=0)
    ap.add_argument('--cswap', type=int, default=0)
    ap.add_argument('--align', type=int, default=0)
    ap.add_argument('--c2', type=int, default=0)
    ap.add_argument('--d1', type=int, default=0)
    ap.add_argument('--cstr', type=int, default=3)
    ap.add_argument('--bearly', type=int, default=1)
    ap.add_argument('--w2late', type=int, default=1)
    ap.add_argument('--aov', type=int, default=5)
    ap.add_argument('--upos', type=int, default=1)
    ap.add_argument('--calt', type=int, default=1)
    ap.add_argument('--pfpos', type=int, default=1)
    ap.add_argument('--wlate', type=int, default=0)
    ap.add_argument('--dbar2', type=int, default=0)
    ap.add_argument('--dbar', type=int, default=0)
    ap.add_argument('--pfw', type=int, default=0)
    ap.add_argument('--pfx', type=int, default=0)
    ap.add_argument('--pfx0', type=int, default=4)
    ap.add_argument('--pfs', type=int, default=13)
    ap.add_argument('--dcoopx', type=int, default=1)
    ap.add_argument('--dcx0', type=int, default=0)
    ap.add_argument('--dcxpos', type=int, default=-1)
    ap.add_argument('--pfe0', type=int, default=2)
    ap.add_argument('--pfne', type=int, default=13)
    ap.add_argument('--prio47', type=int, default=0)
    ap.add_argument('--lookahead', type=int, default=5)
    ap.add_argument('--nz', type=int, default=6)
    ap.add_argument('--nwf', type=int, default=8)
    ap.add_argument('--hiat', type=int, default=4)
    ap.add_argument('--wmerge', type=int, default=0)
    ap.add_argument('--gapv', type=int, default=6)
    ap.add_argument('--slow', type=int, default=0)
    ap.add_argument('--rshare', type=int, default=1)
    ap.add_argument('--dwalk', type=int, default=0)
    ap.add_argument('--band', type=int, default=0)
    ap.add_argument('--absol', type=int, default=0)
    ap.add_argument('--rev', type=int, default=1)
    ap.add_argument('--xg1', type=int, default=0)
    ap.add_argument('--bou', type=int, default=1)
    ap.add_argument('--sjw', type=int, default=7)
    ap.add_argument('--cwalk', type=int, default=0)
    ap.add_argument('--few', default='')
    ap.add_argument('--econv', type=int, default=0)
    ap.add_argument('--nsh', type=int, default=16)
    ap.add_argument('--sh0', type=int, default=5)
    ap.add_argument('--dirt', type=int, default=0)
    ap.add_argument('--mrg', type=int, default=0)
    ap.add_argument('--g1p', type=int, default=0)
    ap.add_argument('--sa', type=int, default=4)
    ap.add_argument('--sbg', type=int, default=16)
    ap.add_argument('--bwat', type=int, default=0)
    ap.add_argument('--x2n', type=int, default=8)
    ap.add_argument('--sent', type=int, default=1)
    ap.add_argument('--spec', type=int, default=0)
    ap.add_argument('--probe', default='')
    ap.add_argument('--skew', type=int, default=0)
    ap.add_argument('--fix', type=int, default=64)
    ap.add_argument('--walk', type=int, default=0)
    ap.add_argument('--eal', type=int, default=3)
    ap.add_argument('--eoff', type=int, default=0)
    ap.add_argument('--ct', default='')
    ap.add_argument('--rot', type=int, default=13)
    ap.add_argument('--i0', type=int, default=1)
    ap.add_argument('--i1', type=int, default=10)
    ap.add_argument('--burn', type=int, default=0)
    ap.add_argument('--lord', type=int, default=1)
    ap.add_argument('--lprio', type=int, default=0)
    ap.add_argument('--rsp', type=int, default=0)
    ap.add_argument('--tch', type=int, default=0)
    ap.add_argument('--tf', type=int, default=4)
    ap.add_argument('--toff', type=int, default=0)
    ap.add_argument('--tw0', type=int, default=12)
    ap.add_argument('--xat', type=int, default=0)
    ap.add_argument('--pf1', type=int, default=1)
    ap.add_argument('--lpf', type=int, default=20)
    ap.add_argument('--lpfit', type=int, default=6)
    ap.add_argument('--x1m', type=int, default=10)
    ap.add_argument('--bgap', type=int, default=6)
    ap.add_argument('--cprio', type=int, default=1)
    ap.add_argument('--x1n', type=int, default=5)
    ap.add_argument('--w0', type=int, default=2)
    ap.add_argument('--dbar1', type=int, default=1)
    ap.add_argument('--aon', type=int, default=2)
    ap.add_argument('--cbar', type=int, default=0)
    ap.add_argument('--vmpos', type=int, default=2)
    ap.add_argument('--il2', type=int, default=0)
    ap.add_argument('--p1', type=int, default=0)
    ap.add_argument('--pm', type=int, default=2)
    ap.add_argument('--cbov', type=int, default=3)
    ap.add_argument('--p0', type=int, default=0)
    ap.add_argument('--max2', type=int, default=2)
    ap.add_argument('--eager', type=int, default=0)
    ap.add_argument('--cst', type=int, default=0)
    ap.add_argument('--x0', type=int, default=60)
    ap.add_argument('--xlat', type=int, default=18)
    ap.add_argument('--xper', type=int, default=3)
    ap.add_argument('--xc0', type=int, default=0)
    ap.add_argument('--n3', type=int, default=1)
    ap.add_argument('--xi0', type=int, default=1)
    ap.add_argument('--pfsat', type=int, default=0)
    ap.add_argument('--g1prio', type=int, default=0)
    ap.add_argument('--xearly', type=int, default=1)
    ap.add_argument('--cpfd', type=int, default=4)
    ap.add_argument('--cla', type=int, default=1)
    ap.add_argument('--war', type=int, default=1)
    opt = ap.parse_args()
    resolve_waits.dbg = 'dup' in opt.dbg
    g = Gen(opt)
    txt = g.build()
    open(opt.o, 'w').write(txt)
    print('wrote', opt.o, len(txt), 'bytes')


if __name__ == '__main__':
    main()
```

```python
import sys, os, struct, argparse
sys.path.insert(0, os.path.dirname(os.path.abspath(__file__)))
from asmlib import I, WaitTag, Touch, Prog, resolve_waits, resolve_hazards
import cin16, fixalign

KNAME = 'standalone__deep_cross_xdeepfm__recsys_kernel'
LDS_TOTAL = 163840

XSLOT = 320 * 128
WR = 3 * XSLOT + 8192
WSLOT = 32 * 256
L_BIAS = 3 * XSLOT
L_W2 = L_BIAS + 256
RB = L_W2 + 256
assert WR % 32768 == 0 and WR + 4 * WSLOT <= LDS_TOTAL
WSP = 16640
assert RB + 2560 <= LDS_TOTAL

W2P = 1536
SSZ = 677 * 64
FRS = 0
V3OFF = 0
A1 = 6144
FR = A1
FRL = FR + 33 * 1024
A3 = FRL + 2048
SG = A3
A2 = SG + SSZ
SQ = A2
V2S = SQ + SSZ
L_WCO = V2S + 832
L_FLG = L_WCO + 192
L_MX = L_FLG + 16
RC = L_FLG + 64
XB = V2S + 2496
XPP = 1056
XBSZ = 3 * XPP + 7 * 128
IMG = A3
IMGP = 160
IMGSZ = 33 * IMGP
XB2 = IMG + 8 * IMGSZ
PART = XB2 + 8 * XBSZ
XOFF = lambda f: (f & 3) * XPP + (f >> 2) * 128
assert RC + 512 <= V2S + 1664
assert XB + 8 * XBSZ <= LDS_TOTAL and XB % 16 == 0 and A2 % 64 == 0 and A3 % 64 == 0 and L_WCO % 16 == 0 and V2S % 64 == 0
assert PART + 8 * 1536 <= V2S + 832 and IMGSZ % 32 == 0 and XB2 % 16 == 0

S_WAVE = 3
S_IDX, S_TAB, S_CIN, S_WCO, S_W1, S_B1, S_W2, S_BO, S_OUT, S_DBG, S_WS = 4, 6, 8, 10, 12, 14, 16, 18, 20, 22, 24
S_MB, S_R = 26, 27
SRD_IDX, SRD_TAB, SRD_CIN, SRD_WCO, SRD_W, SRD_B1, SRD_W2, SRD_OUT, SRD_WS, SRD_DBG = 28, 32, 36, 40, 44, 48, 52, 56, 60, 64
S_T0, S_T1, S_T2, S_T3 = 68, 69, 70, 71
S_LOOP, S_IDXOFF, S_WSOFF, S_WMB, S_XM0, S_N0, S_C0, S_CW, S_BOUT, S_TW = 72, 73, 74, 75, 76, 77, 78, 79, 80, 81
S_EX = 82
S_GRP, S_RC = 84, 85
S_ST = 86
S_M26, S_MASK = 90, 92
S_SAMP, S_STG, S_STG9, S_TGT = 94, 95, 96, 97
S_M26B = 98
S_GW = 100
S_TAGT = 0
S_TAG = 1
S_PW = 101
S_PX = 77
S_PXE = 73

GELU_C0 = -2.0 * 0.7978845608028654 * 1.4426950408889634
GELU_C1 = GELU_C0 * 0.044715


def f32hex(x):
    return '0x%08x' % struct.unpack('<I', struct.pack('<f', x))[0]


def vr(a, n):
    return f'v[{a}:{a + n - 1}]' if n > 1 else f'v{a}'


def srd(a):
    return f's[{a}:{a + 3}]'


def flat(gs):
    res = []
    for c in gs:
        if isinstance(c, (tuple, list)):
            res += flat(c)
        else:
            res.append(c)
    return res


def interleave(a, b):
    out = []
    ia = ib = 0
    na, nb = len(a), len(b)
    while ia < na or ib < nb:
        if ib >= nb or (ia < na and ia * nb <= ib * na):
            out.append(a[ia]); ia += 1
        else:
            out.append(b[ib]); ib += 1
    return out


SLOTS = []
for j in range(0, 26, 2):
    for s in range(0, 14 if j <= 12 else 13):
        SLOTS.append((j, (j + s) % 26))
assert len(SLOTS) == 176
DUP_SLOT = SLOTS.index((12, 25))
assert all((d * 2521) >> 16 == d // 26 for d in range(800))
assert all((d * 10923) >> 16 == d // 6 for d in range(64))
assert all((d * 5042) >> 16 == d // 13 for d in range(170))
assert all((d * 3277) >> 16 == d // 20 for d in range(264))


DOC = '''; ---------------------------------------------------------------------------------------------
; Generated by tools/gen23.py (own generator; waits / hazard nops derived from instruction traces).
;
;       U[i,j,k] = sum_h W2[h,i,j] V3[h,k]
;   Both quadratic forms use the 351 distinct products x_j x_k (j<=k) with symmetrised weights, evaluated by
;   DNN branch: full bf16 GEMM + bias + tanh-GELU (x / (1 + exp(-2u))) + dot with w_dnn2.
;   their own producer) and counters in d_debug; the last arriver of a row block adds up and writes d_out.
;   L_tables holds constant per-lane LDS address tables (functions of the lane id only).
; ---------------------------------------------------------------------------------------------
'''


class Gen:
    def __init__(self, opt):
        self.opt = opt
        self.P = Prog()

    def seq(self, lines):
        return [self.P.add(l) for l in flat(lines)]

    def build_srd(self, dst, ptr, size):
        return [f's_mov_b32 s{dst}, s{ptr}', f's_and_b32 s{dst + 1}, s{ptr + 1}, 0xffff',
                f's_mov_b32 s{dst + 2}, {size}', f's_mov_b32 s{dst + 3}, 0x20000']

    def stamp(self, slot):
        if not self.opt.stamps or (self.opt.few and slot not in [int(x) for x in self.opt.few.split(',')]):
            return []
        return [f's_memtime s[{S_ST}:{S_ST + 1}]', f's_memrealtime s[{S_ST + 2}:{S_ST + 3}]', 's_waitcnt lgkmcnt(0)',
                f'v_writelane_b32 v252, s{S_ST}, {slot}', f'v_writelane_b32 v253, s{S_ST + 2}, {slot}']

    def probe(self, name, wave=4):
        if self.opt.cyc:
            a_, b_, _ = self.opt.cyc.split(',')
            return ['s_memtime s[86:87]', 's_waitcnt lgkmcnt(0)'] if name == a_ else ['s_memtime s[88:89]', 's_waitcnt lgkmcnt(0)'] if name == b_ else []
        if self.opt.probe != name:
            return []
        return ['s_memrealtime s[88:89]', 's_waitcnt lgkmcnt(0)']

    def stamp_flush(self):
        if not self.opt.stamps:
            return []
        L = self.build_srd(SRD_WS, S_WS, 0x10000000)
        L += [f's_lshl_b32 s{S_C0}, s2, 3', f's_add_u32 s{S_C0}, s{S_C0}, s{S_WAVE}',
              f's_lshl_b32 s{S_C0}, s{S_C0}, 8', f's_add_u32 s{S_C0}, s{S_C0}, 0x100000',
              'v_lshlrev_b32 v254, 3, v0', 's_mov_b32 exec_hi, 0',
              f'buffer_store_dwordx2 v[252:253], v254, {srd(SRD_WS)}, s{S_C0} offen', 's_mov_b32 exec_hi, -1']
        return L

    def stamp0(self):
        if not self.opt.stamps:
            return []
        return ['v_mov_b32 v252, 0xcdcdcdcd', 'v_mov_b32 v253, 0xcdcdcdcd',
                f'v_writelane_b32 v252, s{S_ST}, 0', f'v_writelane_b32 v253, s{S_ST + 2}, 0'] + self.stamp(15)

    def tlb2(self, t):
        L = self.build_srd(SRD_WS, S_WS, 0x10000000) + self.build_srd(SRD_OUT, S_OUT, 8192) + self.build_srd(SRD_DBG, S_DBG, 256)
        L += [f's_load_dword s{S_BOUT}, s[{S_BO}:{S_BO + 1}], 0', f'v_mov_b32 v{t}, 0', 's_mov_b64 exec, 1',
              f's_mov_b32 s{S_TW}, 0x80000',
              f'buffer_load_dword v{t + 1}, v{t}, {srd(SRD_WS)}, s{S_TW} offen',
              f'buffer_load_dword v{t + 2}, v{t}, {srd(SRD_OUT)}, 0 offen',
              's_mov_b64 exec, -1']
        return L

    def tlb1(self, vtmp, vdst):
        if not self.opt.etlb:
            return self.build_srd(SRD_TAB, S_TAB, 100000 * 128)
        return self.build_srd(SRD_TAB, S_TAB, 100000 * 128) + [
            f'v_mov_b32 v{vtmp}, s{S_BOUT}', f'buffer_load_dword v{vdst}, v{vtmp}, {srd(SRD_TAB)}, 0 offen']

    def gettag(self, lab, t, VT):
        return [f's_cmp_lg_u32 s{S_WAVE}, 0', f's_cbranch_scc1 {lab}',
                f's_memrealtime s[{S_TAGT}:{S_TAGT + 1}]'] + self.build_srd(SRD_DBG, S_DBG, 256) + [
                f's_lshl_b32 s{S_TW}, s{S_MB}, 2', f'v_mov_b32 v{t}, s{S_TW}', 's_waitcnt lgkmcnt(0)',
                f's_or_b32 s{S_TAG}, s{S_TAGT}, 1', f'v_mov_b32 v{VT}, s{S_TAG}', f'v_mov_b32 v{VT + 1}, 0',
                's_mov_b64 exec, 1',
                f'buffer_atomic_cmpswap v[{VT}:{VT + 1}], v{t}, {srd(SRD_DBG)}, 0 offen offset:128 sc0',
                's_mov_b64 exec, -1', f'{lab}:']

    def prologue(self):
        L = []
        if self.opt.stamps:
            L += [f's_memtime s[{S_ST}:{S_ST + 1}]', f's_memrealtime s[{S_ST + 2}:{S_ST + 3}]']
        L += ['s_cmp_ge_u32 s2, 256', 's_cbranch_scc1 L_end',
              's_load_dwordx16 s[4:19], s[0:1], 0',
              's_load_dwordx4 s[20:23], s[0:1], 64',
              's_load_dwordx2 s[24:25], s[0:1], 80',
              'v_lshrrev_b32 v1, 6, v0']
        if self.opt.cpf:
            L += [f's_getpc_b64 s[{S_MASK}:{S_MASK + 1}]', 'L_pc:',
                  f's_and_b32 s{S_T0}, s2, 0xf8', f'v_add_u32 v2, s{S_T0}, v1', 'v_and_b32 v3, 32, v0', 'v_lshl_add_u32 v2, v3, 3, v2', 'v_lshlrev_b32 v2, 7, v2',
                  f'v_min_u32 v2, L_end-L_pc, v2',
                  f'v_mov_b32 v3, s{S_MASK + 1}',
                  f'v_add_co_u32 v2, vcc, s{S_MASK}, v2', 'v_addc_co_u32 v3, vcc, 0, v3, vcc',
                  'global_load_dword v251, v[2:3], off']
        if self.opt.skew:
            L += ['s_memtime s[86:87]' if self.opt.cyc else 's_memrealtime s[86:87]', 's_mov_b32 s88, 0']
        L += ['v_and_b32 v0, 63, v0',
              f'v_readfirstlane_b32 s{S_WAVE}, v1',
              f's_and_b32 s{S_T0}, s2, 7', f's_lshr_b32 s{S_T1}, s2, 3', f's_xor_b32 s{S_T1}, s{S_T1}, {31 * self.opt.rev}',
              f's_and_b32 s{S_BOUT}, s2, 0xf8', f's_add_u32 s{S_BOUT}, s{S_BOUT}, s{S_WAVE}', f's_lshl_b32 s{S_BOUT}, s{S_BOUT}, {self.opt.etlb}',
              f's_min_u32 s{S_T2}, s{S_T0}, 1', f's_add_u32 s{S_T3}, s{S_T1}, s{S_T2}',
              f's_cmp_ge_u32 s{S_T3}, 22', 's_cbranch_scc1 L_cin',
              f's_mul_i32 s{S_T0}, s{S_T0}, 21', f's_add_u32 s{S_T0}, s{S_T0}, s{S_T3}',
              ]
        if self.opt.band == 0:
            L += [f's_mul_i32 s{S_MB}, s{S_T0}, 5042', f's_lshr_b32 s{S_MB}, s{S_MB}, 16',
                  f's_mul_i32 s{S_T1}, s{S_MB}, 13', f's_sub_u32 s{S_R}, s{S_T0}, s{S_T1}']
        else:
            assert all((d * 9363) >> 16 == d // 7 for d in range(91)) and all((d * 10923) >> 16 == d // 6 for d in range(78))
            L += [f's_sub_u32 s{S_T1}, 168, s{S_T0}', f's_cmp_lt_u32 s{S_T0}, 91', f's_cselect_b32 s{S_T0}, s{S_T0}, s{S_T1}',
                  f's_cselect_b32 s{S_T1}, 0, 1560', f's_cselect_b32 s{S_T2}, 7, 6', f's_cselect_b32 s{S_R}, 0, 7', f's_add_u32 s{S_T1}, s{S_T1}, 9363',
                  f's_mul_i32 s{S_MB}, s{S_T0}, s{S_T1}', f's_lshr_b32 s{S_MB}, s{S_MB}, 16', f's_mul_i32 s{S_T1}, s{S_MB}, s{S_T2}',
                  f's_add_u32 s{S_R}, s{S_R}, s{S_T0}', f's_sub_u32 s{S_R}, s{S_R}, s{S_T1}']
        return self.seq(L)

    def dnn(self):
        o = self.opt
        vW = [1, 2, 3, 4]
        vX = [[5, 6], [7, 8]]
        vPa, vPc = 9, 10
        WF, XA, ACC = 16, 48, 88
        W2F = WF
        KC0, KC1, KONE = 12, 14, 248
        SUMP, GT = 32, 52
        vIdxOff, vCh, vWD, vBL = 1, [2, 3], [4, 5], 11
        ST, VO = 16, 56
        T = 100
        g, i4, q = T + 16, T + 17, T + 18
        PI = T + 8

        def acc(tn, tm):
            return ACC + (tm * 4 + tn) * 4

        def small(srd_, dst):
            return [f's_mov_b32 m0, {dst}', 's_mov_b64 exec, 0xffff',
                    I(f'buffer_load_dwordx4 v{vBL}, {srd(srd_)}, s{S_N0} offen lds', tag='BIAS'), 's_mov_b64 exec, -1']
        L = [f's_lshl_b32 s{S_N0}, s{S_R}, 8', f's_mul_i32 s{S_T3}, s{S_MB}, 320',
             f'v_lshrrev_b32 v{g}, 4, v0', f'v_lshlrev_b32 v{vBL}, 4, v0', f's_and_b32 s{S_CW}, s{S_WAVE}, 3',
             f's_cmp_lt_u32 s{S_WAVE}, 4', 's_cbranch_scc1 L_cmp']
        c0 = self.seq(L)
        self.ldat = len(self.P.static)
        PI = T

        RG, CG = S_T0, S_T1
        L = ['L_cmp:', f's_mul_i32 s{S_T2}, s{S_WAVE}, 13', f'v_min_u32 v{q}, 12, v0', f'v_add_u32 v{q}, s{S_T2}, v{q}',
             f'v_lshrrev_b32 v{i4}, 1, v{q}', f'v_mul_u32_u24 v{i4}, 96, v{i4}', f'v_lshl_add_u32 v{q}, v{q}, 2, v{i4}',
             f's_mul_i32 s{S_C0}, s{S_R}, 25', f's_min_u32 s{S_C0}, s{S_C0}, 294',
             f's_add_u32 s{S_C0}, s{S_C0}, s{S_T3}', f's_mul_i32 s{S_C0}, s{S_C0}, 104', 's_waitcnt lgkmcnt(0)']
        ct = [int(x) for x in o.ct]
        L += self.build_srd(SRD_IDX, S_IDX, 4096 * 104)
        if ct:
            L += [f'buffer_load_dwordx4 {vr(PI, 4)}, v{q}, {srd(SRD_IDX)}, s{S_C0} offen']
        if ct and max(ct) > 3:
            L += [f'buffer_load_dwordx4 {vr(PI + 4, 4)}, v{q}, {srd(SRD_IDX)}, s{S_C0} offen offset:16']
        L += self.tlb1(T + 14, T + 15)
        touch = [x for k in ct for x in (f'v_lshlrev_b32 v{PI + k}, 7, v{PI + k}', f'buffer_load_dword v{XA + k}, v{PI + k}, {srd(SRD_TAB)}, 0 offen')]
        L += self.build_srd(SRD_B1, S_B1, 3328) + small(SRD_B1, L_BIAS) + self.stamp0()
        L += [f's_and_b32 s{RG}, s{S_WAVE}, 1', f's_lshr_b32 s{CG}, s{S_WAVE}, 1',
              f'v_bfe_u32 v{i4}, v0, 2, 2', f'v_lshl_add_u32 v{q}, v{g}, 3, v{i4}', f'v_lshlrev_b32 v{q}, 8, v{q}',
              f'v_bfe_u32 v{i4}, v0, 2, 3', f's_lshl_b32 s{S_T2}, s{CG}, 2', f'v_xor_b32 v{i4}, s{S_T2}, v{i4}',
              f'v_lshl_add_u32 v{q}, v{i4}, 5, v{q}', f'v_and_b32 v{i4}, 3, v0', f'v_lshl_add_u32 v{q}, v{i4}, 3, v{q}',
              f'v_add_u32 v{vW[0]}, {WR}, v{q}']
        L += [f'v_xor_b32 v{vW[tn]}, {32 * tn}, v{vW[0]}' for tn in range(1, 4)]
        L += [f's_lshl_b32 s{S_T2}, s{CG}, 7', f's_add_u32 s{S_T2}, s{S_T2}, {L_BIAS}', f'v_lshlrev_b32 v{q}, 3, v{g}', f'v_add_u32 v{vPa}, s{S_T2}, v{q}',
              f'v_and_b32 v{q}, 15, v0', f'v_lshlrev_b32 v{q}, 7, v{q}',
              f'v_bfe_u32 v{i4}, v0, 1, 3', f'v_xor_b32 v{i4}, v{i4}, v{g}', f'v_lshl_add_u32 v{q}, v{i4}, 4, v{q}',
              f's_mul_i32 s{S_T2}, s{RG}, 20480', f'v_add_u32 v{vX[0][0]}, s{S_T2}, v{q}', f'v_xor_b32 v{vX[1][0]}, 64, v{vX[0][0]}',
              f'v_add_u32 v{vX[0][1]}, {2 * XSLOT}, v{vX[0][0]}', f'v_add_u32 v{vX[1][1]}, {2 * XSLOT}, v{vX[1][0]}',
              f's_mul_i32 s{S_T2}, s{S_WAVE}, 640', f's_add_u32 s{S_T2}, s{S_T2}, {RB}',
              f'v_and_b32 v{q}, 15, v0', f'v_lshlrev_b32 v{q}, 2, v{q}', f'v_add_u32 v{q}, s{S_T2}, v{q}',
              f'v_lshrrev_b32 v{i4}, 5, v0', f'v_lshl_add_u32 v{q}, v{i4}, 6, v{q}', f'v_bfe_u32 v{i4}, v0, 4, 1', f'v_lshl_add_u32 v{vPc}, v{i4}, 7, v{q}',
              f's_mov_b32 s{S_LOOP}, 0',
              f'v_mov_b32 v{KC0}, {f32hex(GELU_C0)}', f'v_mov_b32 v{KC0 + 1}, {f32hex(GELU_C0)}',
              f'v_mov_b32 v{KC1}, {f32hex(GELU_C1)}', f'v_mov_b32 v{KC1 + 1}, {f32hex(GELU_C1)}']

        def pkreads(off, dst):
            return [f'ds_read_b64 {vr(dst + 4 * tn + 2, 2)}, v{vPa} offset:{off + 32 * tn}' for tn in range(4)]

        def unp(dst):
            c = []
            for tn in range(4):
                r = dst + 4 * tn
                c += [f'v_lshlrev_b32 v{r}, 16, v{r + 2}', f'v_and_b32 v{r + 1}, 0xffff0000, v{r + 2}',
                      f'v_lshlrev_b32 v{r + 2}, 16, v{r + 3}', f'v_and_b32 v{r + 3}, 0xffff0000, v{r + 3}']
            return c
        L += touch + self.stamp(6)
        BI = [WaitTag(vm_tags=['BIAS'])] + pkreads(0, acc(0, 9)) + unp(acc(0, 9)) + [f'v_mov_b64 {vr(acc(0, 8) + r, 2)}, {vr(acc(0, 9) + r, 2)}' for r in range(0, 16, 2)]

        def rX(p, k):
            xs = p % 3
            return f'ds_read_b128 {vr(XA + 4 * (k % 10), 4)}, v{vX[k % 2][xs // 2]} offset:{(xs % 2) * XSLOT + (k // 2) * 2048}'

        def rW(tn):
            return [f'ds_read_b64_tr_b16 {vr(WF + 16 * par + 4 * tn + 2 * rd, 2)}, v{vW[tn]} offset:{par * WSLOT + rd * 1024}' for par in range(2) for rd in range(2)]
        tog = lambda tn: f'v_xor_b32 v{vW[tn]}, {2 * WSLOT}, v{vW[tn]}'

        def dec(gi):
            G, tn, a_, par = gi // 16, (gi // 4) % 4, (gi // 2) % 2, gi % 2
            if o.bou:
                par ^= a_ ^ (G == 4)
                a_ ^= tn & 1
            return G, tn, a_, par
        lastx = {4 * dec(gi)[0] + 2 * dec(gi)[2] + dec(gi)[3]: gi for gi in range(80)}

        def mf(gi, first=False):
            G, tn, a_, par = dec(gi)
            d = acc(tn, 2 * G + a_)
            if first and gi % 2 == 0 and G < 4:
                return f'v_mfma_f32_16x16x32_bf16 {vr(d, 4)}, {vr(WF + 16 * par + 4 * tn, 4)}, {vr(XA + 4 * ((4 * G + 2 * a_ + par) % 10), 4)}, {vr(acc(tn, 9), 4)}'
            return f'v_mfma_f32_16x16x32_bf16 {vr(d, 4)}, {vr(WF + 16 * par + 4 * tn, 4)}, {vr(XA + 4 * ((4 * G + 2 * a_ + par) % 10), 4)}, {vr(d, 4)}'
        SH = [11, 248, 249, 250]
        nsh = o.nsh

        def shadow():
            c = []
            for b0 in range(0, nsh, 4):
                E = [(ACC + e, SH[e - b0]) for e in range(b0, min(b0 + 4, nsh))]
                for op in ('v_mul_f32 T, X, X', f'v_fma_f32 T, T, v{KC1}, v{KC0}', 'v_mul_f32 T, T, X', 'v_exp_f32 T, T', 'v_add_f32 T, 1.0, T', 'v_rcp_f32 T, T', 'v_mul_f32 X, X, T'):
                    c += [(op.replace('T', f'v{t}').replace('X', f'v{x}'), 8 if ('exp' in op or 'rcp' in op) else 4) for x, t in E]
            return c

        def cpair(p, kind, loopend=False):
            S = []
            ev = {}
            if kind == 'first':
                g_ = o.sbg + 1
                for k in range(2 * o.sa, 10):
                    ev[g_] = rX(p, k); g_ += 1
            else:
                for i_, x in enumerate(rW(3)[2:]):
                    ev[i_] = x
                for i_, k in enumerate(range(6, 10)):
                    ev[2 + i_] = rX(p, k)
            for k in range(10):
                g_ = lastx[k]
                while g_ in ev or (kind == 'first' and g_ <= o.sbg):
                    g_ += 1
                ev[g_] = rX(p, k + 10)
            BG = 48 + o.bgap if o.bou else 46 + o.bgap
            if kind != 'last':
                ev[BG], ev[BG + 1] = rX(p + 1, 0), rX(p + 1, 1)
                for k in range(2, 6):
                    ev[lastx[10 + k]] = rX(p + 1, k)
                for tn in range(4):
                    for i_, x in enumerate(rW(tn)):
                        if 66 + 4 * tn + i_ < 80:
                            ev[66 + 4 * tn + i_] = x
            sh_ = shadow() if kind == 'last' else []
            for gi in range(80):
                S.append(mf(gi, kind == 'first'))
                t = 4
                if o.dwalk and kind != 'last' and gi in (24, 40, 64, 7):
                    S += [f'L_dw{self.ndw}:', f's_cbranch_execz L_dw{self.ndw + 1}']
                    self.ndw += 1
                if kind == 'first' and gi == o.sbg:
                    S += (self.stamp(20) if o.itst == 2 else []) + ['s_barrier'] + (self.stamp(21) if o.itst == 2 else [])
                if kind != 'last' and gi == BG - 1:
                    st_ = lambda k: ([f's_cmp_lg_u32 s{S_LOOP}, 0', f's_cbranch_scc1 L_ns{k}'] + self.stamp(k) + [f'L_ns{k}:']) if (o.itst == 2 and p < 3) else []
                    S += ['s_waitcnt lgkmcnt(0)'] + st_(22 + 2 * p) + ['s_barrier'] + st_(23 + 2 * p)
                if gi in ev:
                    S.append(ev[gi]); t += 8
                if kind != 'last' and 8 <= gi < 12:
                    S.append(tog(gi - 8))
                if gi % 2 == 0 and gi + 2 < 80:
                    n_ = gi + 2
                    G, tn, a_ = n_ // 16, (n_ // 4) % 4, (n_ // 2) % 2
                    if tn == 0:
                        S.append(Touch(vr(XA + 4 * ((4 * G + 2 * a_) % 10), 8)))
                    if G == 0 and a_ == 0:
                        S.append(Touch(vr(WF + 16 + 4 * tn, 4)))
                if gi == 78 and kind != 'last':
                    S.append(Touch(vr(WF + 16, 4)))
                if loopend and gi == 48:
                    S += [f's_add_u32 s{S_LOOP}, s{S_LOOP}, 1', f's_cmp_lt_u32 s{S_LOOP}, 8']
                t = max(t, 8)
                while sh_ and gi >= o.sh0 and t + sh_[0][1] <= 16:
                    x, c_ = sh_.pop(0)
                    S.append(x); t += c_
            S += [x for x, _ in sh_]
            if kind == 'last':
                print('shadow left', len(sh_))
            return S
        self.ndw = 0
        if o.dwalk:
            L += ['s_mov_b64 exec, 0'] + [x for q_ in range(3) for x in (f's_cmp_eq_u32 s{S_WAVE}, {q_}', f's_cbranch_scc1 L_dw{4 * q_}')] + ['s_branch L_dw12', 'L_dw16:', 's_mov_b64 exec, -1']
        L += self.stamp(1) + ['s_barrier'] + [x for tn in range(4) for x in rW(tn)] + BI + ['s_waitcnt lgkmcnt(0)', f's_setprio {o.cprio}', 's_barrier'] + self.stamp(2)
        L += [rX(0, k) for k in range(2 * o.sa)] + cpair(0, 'first')
        cpre = self.seq(L)
        body = self.seq(['L_dnn_loop0:'])
        for p in range(1, 4):
            S = cpair(p, 'mid', p == 3)
            if p == 3:
                if o.stamps and o.itst == 1:
                    i_ = S.index('s_barrier')
                    S = S[:i_] + [f's_memtime s[{S_ST}:{S_ST + 1}]', f's_memrealtime s[{S_ST + 2}:{S_ST + 3}]', f's_or_b32 m0, s{S_LOOP}, 16', 's_waitcnt lgkmcnt(0)',
                                  f'v_writelane_b32 v252, s{S_ST}, m0', f'v_writelane_b32 v253, s{S_ST + 2}, m0', f's_cmp_lt_u32 s{S_LOOP}, 8'] + S[i_:]
                S += ['s_cbranch_scc1 L_dnn_loop0']
            body += self.seq(S)
        tc = c0 + cpre + body * 2 + self.seq(['L_tail:'])
        tc += self.seq(cpair(25, 'last') + pkreads(256, W2F) + [f'v_mov_b32 v{KONE}, 1.0', f'v_mov_b32 v{KONE + 1}, 1.0'])
        if o.burn:
            bl = [f's_movk_i32 s{S_LOOP}, {o.burn}', 'L_burn:'] + [f'v_mfma_f32_16x16x32_bf16 {vr(XA + 32 + 4 * (k % 2), 4)}, {vr(WF + 16 + 4 * (k % 4), 4)}, {vr(XA + 4 * (k // 4), 4)}, 0' for k in range(32)]
            tc += self.seq(bl + [f's_sub_u32 s{S_LOOP}, s{S_LOOP}, 1', f's_cmp_lg_u32 s{S_LOOP}, 0', 's_cbranch_scc1 L_burn'])
        tc += self.seq(['L_epi:'] + self.stamp(3))

        p2 = lambda r: vr(r, 2)
        seen = set()

        def gelu(groups):
            L = []
            for k, vals in enumerate(groups):
                tb = GT + (k % 2) * 16
                V_ = [(x, w, s_, tb + 4 * i_, tb + 4 * i_ + 2) for i_, (x, w, s_) in enumerate(vals)]
                for (x, w, s_, t, u) in V_:
                    L.append(f'v_pk_mul_f32 {p2(t)}, {p2(x)}, {p2(x)}')
                for (x, w, s_, t, u) in V_:
                    L.append(f'v_pk_fma_f32 {p2(t)}, {p2(t)}, {p2(KC1)}, {p2(KC0)}')
                for (x, w, s_, t, u) in V_:
                    L.append(f'v_pk_mul_f32 {p2(t)}, {p2(t)}, {p2(x)}')
                for (x, w, s_, t, u) in V_:
                    L += [f'v_exp_f32 v{t}, v{t}', f'v_exp_f32 v{t + 1}, v{t + 1}']
                for (x, w, s_, t, u) in V_:
                    L.append(f'v_pk_mul_f32 {p2(u)}, {p2(x)}, {p2(w)}')
                for (x, w, s_, t, u) in V_:
                    L.append(f'v_pk_add_f32 {p2(t)}, {p2(t)}, {p2(KONE)}')
                for (x, w, s_, t, u) in V_:
                    L += [f'v_rcp_f32 v{t}, v{t}', f'v_rcp_f32 v{t + 1}, v{t + 1}']
                for (x, w, s_, t, u) in V_:
                    if s_ in seen:
                        L.append(f'v_pk_fma_f32 {p2(s_)}, {p2(t)}, {p2(u)}, {p2(s_)}')
                    else:
                        L.append(f'v_pk_mul_f32 {p2(s_)}, {p2(t)}, {p2(u)}')
                        seen.add(s_)
            return L
        el = lambda tn, tm, d: (acc(tn, tm) + 2 * d, W2F + 4 * tn + 2 * d, SUMP + 2 * tm)
        allel = [el(tn, 2 * tp + a_, d) for tp in range(5) for tn in range(4) for d in range(2) for a_ in range(2)]
        rest = [e for e in allel if e[0] >= ACC + nsh]
        if o.rshare:
            assert nsh % 8 == 0
            KS = 84
            quads = [[el(2 * h + t_, tm, d) for t_ in range(2) for d in range(2)] for tm in range(10) for h in range(2)]
            quads = [q_ for q_ in quads if q_[0][0] >= ACC + nsh]
            order = sorted(range(len(quads)), key=lambda i_: (i_ // 4, i_ % 2, i_))
            quads = [quads[i_] for i_ in order]
            L = [f'v_mov_b32 v{KS}, {f32hex(-24.0)}', f'v_mov_b32 v{KS + 1}, {f32hex(-24.0)}', f'v_mov_b32 v{KS + 2}, {f32hex(2.0 ** 24)}', f'v_mov_b32 v{KS + 3}, {f32hex(2.0 ** 24)}']
            for k in range(0, len(quads), 2):
                Qs = quads[k:k + 2]
                V_ = [(x, w, GT + 16 * j_ + 4 * i_, GT + 16 * j_ + 4 * i_ + 2) for j_, q_ in enumerate(Qs) for i_, (x, w, s_) in enumerate(q_)]
                L += [f'v_pk_mul_f32 {p2(t)}, {p2(x)}, {p2(x)}' for (x, w, t, u) in V_]
                L += [f'v_pk_fma_f32 {p2(t)}, {p2(t)}, {p2(KC1)}, {p2(KC0)}' for (x, w, t, u) in V_]
                L += [f'v_pk_fma_f32 {p2(t)}, {p2(t)}, {p2(x)}, {p2(KS)}' for (x, w, t, u) in V_]
                L += [f'v_exp_f32 v{t + e_}, v{t + e_} clamp' for (x, w, t, u) in V_ for e_ in range(2)]
                if k == 0:
                    L += unp(W2F)
                L += [f'v_pk_mul_f32 {p2(u)}, {p2(x)}, {p2(w)}' for (x, w, t, u) in V_]
                L += [f'v_pk_fma_f32 {p2(t)}, {p2(t)}, {p2(KS + 2)}, {p2(KONE)}' for (x, w, t, u) in V_]
                for prs in ([(0, 1), (2, 3)], [(0, 2)]):
                    M_ = [(V_[4 * j_ + a_], V_[4 * j_ + b_]) for j_ in range(len(Qs)) for a_, b_ in prs]
                    L += [f'v_pk_mul_f32 {p2(A_[3])}, {p2(A_[3])}, {p2(B_[2])}' for A_, B_ in M_]
                    L += [f'v_pk_fma_f32 {p2(A_[3])}, {p2(B_[3])}, {p2(A_[2])}, {p2(A_[3])}' for A_, B_ in M_]
                    L += [f'v_pk_mul_f32 {p2(A_[2])}, {p2(A_[2])}, {p2(B_[2])}' for A_, B_ in M_]
                L += [f'v_rcp_f32 v{V_[4 * j_][2] + e_}, v{V_[4 * j_][2] + e_}' for j_ in range(len(Qs)) for e_ in range(2)]
                for j_, q_ in enumerate(Qs):
                    s_, t, u = q_[0][2], V_[4 * j_][2], V_[4 * j_][3]
                    L.append(f'v_pk_fma_f32 {p2(s_)}, {p2(t)}, {p2(u)}, {p2(s_)}' if s_ in seen else f'v_pk_mul_f32 {p2(s_)}, {p2(t)}, {p2(u)}')
                    seen.add(s_)
        else:
            L = gelu([rest[i:i + 4] for i in range(0, len(rest), 4)])
            L = L[:20] + unp(W2F) + L[20:]
        for (x, w, s_) in allel:
            if x < ACC + nsh:
                L.append(f'v_pk_fma_f32 {p2(s_)}, {p2(x)}, {p2(w)}, {p2(s_)}' if s_ in seen else f'v_pk_mul_f32 {p2(s_)}, {p2(x)}, {p2(w)}')
                seen.add(s_)
        sm = lambda tm: SUMP + 2 * tm
        L += [f'v_add_f32 v{sm(tm)}, v{sm(tm)}, v{sm(tm) + 1}' for tm in range(10)]
        L += [f'v_permlane32_swap_b32 v{sm(tm)}, v{sm(tm + 1)}' for tm in range(0, 10, 2)]
        L += [f'v_add_f32 v{sm(tm)}, v{sm(tm)}, v{sm(tm + 1)}' for tm in (8, 0, 2, 4, 6)]
        L += [f'v_mov_b32 v{sm(9)}, v{sm(8)}', f'v_permlane16_swap_b32 v{sm(0)}, v{sm(2)}', f'v_permlane16_swap_b32 v{sm(4)}, v{sm(6)}',
              f'v_permlane16_swap_b32 v{sm(8)}, v{sm(9)}',
              f'v_add_f32 v{sm(0)}, v{sm(0)}, v{sm(2)}', f'v_add_f32 v{sm(4)}, v{sm(4)}, v{sm(6)}', f'v_add_f32 v{sm(8)}, v{sm(8)}, v{sm(9)}',
              f'ds_write_b32 v{vPc}, v{sm(0)}', f'ds_write_b32 v{vPc}, v{sm(4)} offset:256',
              's_mov_b32 exec_lo, 0xffff', 's_mov_b32 exec_hi, 0xffff', f'ds_write_b32 v{vPc}, v{sm(8)} offset:512', 's_mov_b64 exec, -1']
        L += ['s_waitcnt lgkmcnt(0)'] + self.stamp(4) + self.stamp_flush() + ['s_barrier', 's_endpgm']
        tc += self.seq(L)

        def wstage(slot):
            c = []
            for u in range(2):
                c += [f's_add_u32 m0, s{S_WMB}, {WR + slot * WSLOT + u * 1024}',
                      I(f'buffer_load_dwordx4 v{vWD[u]}, {srd(SRD_W)}, s{S_WSOFF} offen lds', tag='W')]
            return c + [f's_add_u32 s{S_WSOFF}, s{S_WSOFF}, {32 * 3328}']

        Q, TM, BP = 16, 56, [12, 13]
        TI, vWT = 70, 76
        SP = [36, 37, 38, 39, 40, 41, 42, 43, 48, 49]
        SI = [94, 95, 96, 97, 98, 99, 100, 101, 82, 83]

        def xaddr(f, pcs):
            c = []
            for odd in range(2):
                p_ = f + 26 * odd
                for pc in pcs:
                    c.append(f'v_add_u32_dpp v{TM + pc}, v{Q + 4 * pc + p_ % 4}, v{vCh[0]} row_newbcast:{p_ >> 2} row_mask:0xf bank_mask:{(3, 12)[odd]:#x}')
            return c

        def xld(pc, slot, tag='X'):
            return [f's_add_u32 m0, s{S_XM0}, {slot * XSLOT + pc * 2048}',
                    I(f'buffer_load_dwordx4 v{TM + pc}, {srd(SRD_TAB)}, 0 offen lds', tag=tag)]
        idxl = [f'buffer_load_dwordx4 {vr(Q + 4 * pc, 4)}, v{BP[0]}, {srd(SRD_IDX)}, s{SI[pc // 2]} offen offset:{(pc % 2) * 1664}' for pc in range(10)]
        LO, HI = range(5), range(5, 10)
        NR = (22 + o.tf - 1) // o.tf
        lw = S_CW
        self.mk0 = len(self.P.static)
        L = [f's_lshr_b32 s{S_T0}, s{lw}, 1', f's_mul_i32 s{S_T0}, s{S_T0}, 20', f's_and_b32 s{S_T1}, s{lw}, 1', f's_add_u32 s{S_T0}, s{S_T0}, s{S_T1}',
             f's_lshl_b32 s{S_XM0}, s{S_T0}, 10', f's_mul_i32 s{S_C0}, s{S_T3}, 104', f's_mul_i32 s{S_T0}, s{S_T0}, 832', f's_add_u32 s{SI[0]}, s{S_C0}, s{S_T0}',
             f'v_mul_u32_u24 v{q}, 48, v{g}', f'v_sub_u32 v{BP[0]}, v{vBL}, v{q}']
        L += [f's_add_u32 s{SI[k]}, s{SI[0]}, {k * 2 * 1664}' for k in range(1, 5)]
        L += [f's_and_b32 s{S_T2}, s{lw}, 1', f's_lshl_b32 s{S_T2}, s{S_T2}, 3',
              f'v_lshlrev_b32 v{i4}, 1, v{g}', f'v_or_b32 v{i4}, s{S_T2}, v{i4}', f'v_xor_b32 v{i4}, v{i4}, v0', f'v_and_b32 v{i4}, 15, v{i4}',
              f'v_mul_u32_u24 v{vWD[0]}, 3328, v{g}', f'v_lshl_add_u32 v{vWD[0]}, v{i4}, 4, v{vWD[0]}', f'v_add_u32 v{vWD[1]}, {4 * 3328}, v{vWD[0]}',
              f's_mul_i32 s{S_WSOFF}, s{lw}, {8 * 3328}', f's_add_u32 s{S_WSOFF}, s{S_WSOFF}, s{S_N0}', f's_lshl_b32 s{S_WMB}, s{lw}, 11',
              's_waitcnt lgkmcnt(0)']
        L += self.build_srd(SRD_IDX, S_IDX, 4096 * 104) + idxl[:o.i0] + self.tlb1(T + 14, T + 15) + self.build_srd(SRD_W, S_W1, 1664 * 3328)
        for sl in range(o.w0):
            L += wstage(sl)
        L += self.stamp0() + idxl[o.i0:]
        for sl in range(o.w0, 2):
            L += wstage(sl)
        L += [f's_lshl_b32 s{S_T2}, s{S_T1}, 6',
              f'v_and_b32 v{q}, 7, v0', f'v_xor_b32 v{q}, v{q}, v{g}', f'v_lshlrev_b32 v{q}, 4, v{q}', f'v_xor_b32 v{vCh[0]}, s{S_T2}, v{q}', f'v_xor_b32 v{vCh[1]}, 64, v{vCh[0]}',
              f's_mov_b32 s{S_LOOP}, 0',
              f's_mul_i32 s{S_T2}, s{lw}, 13', f's_add_u32 s{S_T2}, s{S_T2}, s{S_R}', f's_min_u32 s{S_T2}, s{S_T2}, 39', f's_lshl_b32 s{S_T2}, s{S_T2}, 3',
              f's_add_u32 s{S_T2}, s{S_T2}, s{S_T3}', f's_mul_i32 s{S_GRP}, s{S_T2}, 104',
              f'v_lshrrev_b32 v{q}, {o.tf.bit_length() - 1}, v0', f'v_min_u32 v{q}, 7, v{q}', f'v_mul_u32_u24 v{q}, 104, v{q}',
              f'v_and_b32 v{i4}, {o.tf - 1}, v0', f'v_lshl_add_u32 v7, v{i4}, 2, v{q}',
              f's_lshl_b32 s{S_T2}, s{S_MB}, 2', f's_add_u32 s{S_T2}, s{S_T2}, s{lw}', f's_add_u32 s{S_T2}, s{S_T2}, {o.tw0 * 32}', f's_mul_i32 s{S_RC}, s{S_T2}, 3328',
              f's_add_u32 s{S_RC}, s{S_RC}, s{S_N0}', f's_mov_b32 s{S_T2}, {52 * 3328}',
              f'v_lshrrev_b32 v{q}, 1, v0', f'v_mul_lo_u32 v{q}, s{S_T2}, v{q}', f'v_and_b32 v{i4}, 1, v0', f'v_lshl_add_u32 v{vWT}, v{i4}, 7, v{q}']
        L += self.build_srd(SRD_W2, S_W2, 3328)
        L += [f's_mul_i32 s{S_T2}, s{lw}, {o.lpf * 128}', f's_add_u32 s{S_T2}, s{S_T2}, L_tail-L_pc', f'v_lshlrev_b32 v8, 7, v0', f'v_add_u32 v8, s{S_T2}, v8',
              f'v_mov_b32 v9, s{S_MASK + 1}', f'v_add_co_u32 v8, vcc, s{S_MASK}, v8', 'v_addc_co_u32 v9, vcc, 0, v9, vcc']
        sh = lambda pc, c_: f'v_lshlrev_b32 v{Q + 4 * pc + c_}, 7, v{Q + 4 * pc + c_}'
        for pc in range(10):
            L += [sh(pc, 0), sh(pc, 2), sh(pc, 1), sh(pc, 3)] + xaddr(0, [pc]) + xld(pc, 0, 'X0a' if pc < o.sa else 'X0')
            if pc == 0:
                L += self.stamp(6) + self.probe('i0')
            if pc == o.bwat:
                L += [WaitTag(vm_tags=['W']), 's_barrier']
        L += self.stamp(7) + self.probe('x0i')
        x1 = [x for pc in range(10) for x in xaddr(1, [pc]) + xld(pc, 1)]
        L += x1[:4 * o.x1n] + [WaitTag(vm_tags=['X0a'])] + self.stamp(1) + ['s_barrier'] + self.probe('s0') + x1[4 * o.x1n:4 * o.x1m]
        L += [WaitTag(vm_tags=['X0']), 's_barrier'] + x1[4 * o.x1m:] + wstage(2) + wstage(3) + xaddr(2, range(10))
        x2 = [x for pc in range(10) for x in xld(pc, 2)]
        L += x2[:2 * o.x2n] + [WaitTag(vm_tags=['W']), 's_barrier'] + self.probe('bar0') + x2[2 * o.x2n:] + xaddr(3, range(10))
        lpre = self.seq(L + [f's_setprio {o.lprio}', 's_branch L_ld_in'])
        del self.P.static[self.mk0:]
        self.P.static[self.ldat:self.ldat] = lpre
        self.mk0 = len(self.P.static)

        def lpair(p):
            S = ['s_barrier'] + (['L_ld_in:'] if p == 0 else []) + wstage(2 * (p % 2)) + wstage(2 * (p % 2) + 1)
            f2 = p + 4
            for pc in range(10):
                x = xld(pc, p % 3)
                S += [x[0]] + (xaddr(f2, [pc - 1])[:1] if pc else []) + [x[1]] + (xaddr(f2, [pc - 1])[1:] if pc else [])
            S += xaddr(f2, [9])
            if p >= 10:
                S += [f'v_mov_b32_dpp v{Q + 4 * pc + c_}, v{Q + 4 * pc + c_} row_shl:3 row_mask:0xf bank_mask:0xf' for pc in range(10) for c_ in ((0, 2) if p == 10 else (1, 3))]
            if p == 11:
                S += [f's_add_u32 s{S_LOOP}, s{S_LOOP}, 1', f's_cmp_lt_u32 s{S_LOOP}, 2']
            return S + [WaitTag(vm_tags=['W'])]
        body = self.seq(['L_dnn_loop1:'])
        for p in range(12):
            if p == 8 and o.lpf:
                body += self.seq([f's_cmp_lg_u32 s{S_LOOP}, 1', 's_cbranch_scc1 L_nolpf'])
                self.seq([f's_mov_b64 exec, {(1 << o.lpf) - 1}', 'global_load_dword v10, v[8:9], off', 's_mov_b64 exec, -1'] + small(SRD_W2, L_W2))
                body += self.seq(['L_nolpf:'])
            lp = lpair(p)
            if p and self.probe(f'bar{p}'):
                lp = lp[:1] + [f's_cmp_lg_u32 s{S_LOOP}, 0', f's_cbranch_scc1 L_nopb{p}'] + self.probe(f'bar{p}') + [f'L_nopb{p}:'] + lp[1:]
            body += self.seq(lp + (['s_cbranch_scc1 L_dnn_loop1'] if p == 11 else []))
        tl = c0 + lpre + body * 2 + self.seq(['s_branch L_ld_tail'])
        self.ldblk = self.P.static[self.mk0:]
        del self.P.static[self.mk0:]
        tl += self.seq(['L_ld_tail:', 's_barrier'] + self.tlb2(T) + ['s_mov_b64 exec, 1', f'buffer_load_dword v250, v{T}, {srd(SRD_DBG)}, 0 offen offset:240 sc1', 's_mov_b64 exec, -1'])
        tl += self.seq(self.probe('s50'))
        if o.walk:
            tl += self.seq([f's_cmp_eq_u32 s{lw}, 0', 's_cbranch_scc1 L_wkd', 's_mov_b64 exec, 0', f's_cmp_eq_u32 s{lw}, 1', 's_cbranch_scc1 L_wk0',
                            f's_cmp_eq_u32 s{lw}, 2', f's_cbranch_scc1 L_wk{np_ // 3}', f's_branch L_wk{2 * np_ // 3}', 'L_wkd:'])
        A = 64
        L = [f's_cmp_lg_u32 s{S_WAVE}, 4', 's_cbranch_scc1 L_end',
             f'v_lshlrev_b32 v3, 4, v0', f'v_lshlrev_b32 v4, 2, v0', f'v_add_u32 v1, {RB}, v3', f'v_add_u32 v2, {RB + 1024}, v4', f'v_add_u32 v4, 1024, v4',
             'v_mov_b32 v5, 32', f'v_mov_b32 v7, s{S_MB}',
             f's_mul_i32 s{S_T0}, s{S_MB}, 1280', f's_mul_i32 s{S_T1}, s{S_R}, {WSP}', f's_add_u32 s{S_T1}, s{S_T1}, s{S_T0}', 's_setprio 3']
        if o.sent:
            L += [f'v_mov_b32 v{A + k}, -1' for k in range(4)] + [f'buffer_store_dwordx4 {vr(A, 4)}, v3, {srd(SRD_WS)}, s{S_T1} offen sc1',
                  f'buffer_store_dword v{A}, v4, {srd(SRD_WS)}, s{S_T1} offen sc1', 's_waitcnt vmcnt(0)']
        L += self.stamp_flush() + ['s_barrier'] + self.probe('dend')
        L += [f'ds_read_b128 {vr(A, 4)}, v1', f'ds_read_b128 {vr(A + 8, 4)}, v1 offset:1280', f'ds_read2st64_b32 {vr(A + 4, 2)}, v2 offset0:0 offset1:5',
              f'v_pk_add_f32 {p2(A)}, {p2(A)}, {p2(A + 8)}', f'v_pk_add_f32 {p2(A + 2)}, {p2(A + 2)}, {p2(A + 10)}', f'v_add_f32 v{A + 4}, v{A + 4}, v{A + 5}']
        if o.sent:
            L += [f'v_min_u32 v{A + k}, -2, v{A + k}' for k in range(5)]
        L += (self.stamp(16) if o.diag else [])
        L += [f'buffer_store_dwordx4 {vr(A, 4)}, v3, {srd(SRD_WS)}, s{S_T1} offen sc1',
              f'buffer_store_dword v{A + 4}, v4, {srd(SRD_WS)}, s{S_T1} offen sc1', 's_mov_b64 exec, 1']
        tl += self.seq(L)

        L = ['L_pub:']
        if o.skew:
            L += ['v_mov_b32 v20, s86', 'v_mov_b32 v21, s86', 'v_mov_b32 v22, s88', 's_lshl_b32 s89, s2, 7', 's_add_u32 s89, s89, 0x40000', 'v_lshlrev_b32 v23, 28, v0',
                  f'buffer_store_dwordx3 v[20:22], v23, {srd(SRD_WS)}, s89 offen sc1', 's_waitcnt vmcnt(0)']
        def loads():
            c = [f's_mul_i32 s{S_T0}, s{S_T3}, 1280']
            for qq in range(14):
                c += [f'buffer_load_dwordx4 {vr(A + 8 * qq, 4)}, v3, {srd(SRD_WS)}, s{S_T0} offen sc1',
                      f'buffer_load_dword v{A + 8 * qq + 4}, v4, {srd(SRD_WS)}, s{S_T0} offen sc1', f's_add_u32 s{S_T0}, s{S_T0}, {WSP}']
            return c
        R_ = 56
        L += ['v_lshlrev_b32 v6, 4, v7'] + ([] if o.sent else ['s_waitcnt vmcnt(0)']) + ['v_mov_b32 v13, v5', f'buffer_atomic_add v5, v6, {srd(SRD_DBG)}, 0 offen sc0',
              'v_cmp_eq_u32 vcc, 12, v7', 'v_mov_b32 v8, 436', 'v_mov_b32 v9, 434', 'v_cndmask_b32 v8, v8, v9, vcc', 'v_sub_u32 v8, v8, v13']
        if o.spec:
            L += [f's_mov_b64 s[{S_MASK}:{S_MASK + 1}], exec', 's_mov_b64 exec, -1', f'v_readfirstlane_b32 s{S_T3}, v7'] + loads() + [f's_mov_b64 exec, s[{S_MASK}:{S_MASK + 1}]']
            L += ['s_waitcnt vmcnt(0) lgkmcnt(0)']
        else:
            L += ['s_waitcnt vmcnt(0) lgkmcnt(0)']
        L += (self.stamp(18) if o.diag else []) + [
             f'v_cmp_eq_u32 s[{S_EX}:{S_EX + 1}], v5, v8', 's_mov_b64 exec, -1', f's_lshl_b32 s{S_BOUT}, s{S_BOUT}, 16',
             'v_lshrrev_b32 v1, 1, v3', 'v_lshrrev_b32 v2, 1, v4']
        if o.spec:
            L += [f's_bitcmp1_b32 s{S_EX}, 0', f's_bitset0_b32 s{S_EX}, 0', 's_cbranch_scc1 L_sum']
        pa = self.seq(L)
        L = ['L_fin:', f's_cmp_eq_u32 s{S_EX}, 0', 's_cbranch_scc1 L_done',
             f's_ff1_i32_b32 s{S_T2}, s{S_EX}', f's_bitset0_b32 s{S_EX}, s{S_T2}', f'v_readlane_b32 s{S_T3}, v7, s{S_T2}', 's_waitcnt vmcnt(0)', 'L_again:'] + loads()
        pb = self.seq(L)
        L = ['L_sum:', f'v_pk_add_f32 {p2(R_)}, {p2(A)}, {p2(A + 8)}', f'v_pk_add_f32 {p2(R_ + 2)}, {p2(A + 2)}, {p2(A + 10)}', f'v_add_f32 v{R_ + 4}, v{A + 4}, v{A + 12}']
        for qq in range(2, 14):
            L += [f'v_pk_add_f32 {p2(R_)}, {p2(R_)}, {p2(A + 8 * qq)}', f'v_pk_add_f32 {p2(R_ + 2)}, {p2(R_ + 2)}, {p2(A + 8 * qq + 2)}',
                  f'v_add_f32 v{R_ + 4}, v{R_ + 4}, v{A + 8 * qq + 4}']
        if o.sent:
            L += [f'v_cmp_u_f32 vcc, v{R_}, v{R_ + 1}', f'v_cmp_u_f32 s[{S_MASK}:{S_MASK + 1}], v{R_ + 2}, v{R_ + 3}', f's_or_b64 s[{S_MASK}:{S_MASK + 1}], s[{S_MASK}:{S_MASK + 1}], vcc',
                  f'v_cmp_u_f32 vcc, v{R_ + 4}, v{R_ + 4}', f's_or_b64 vcc, s[{S_MASK}:{S_MASK + 1}], vcc', 's_cbranch_vccnz L_chk', 'L_ok:']
        L += [f's_mul_i32 s{S_T3}, s{S_T3}, 640']
        A0 = A
        A = R_
        L += [f'v_add_f32 v{A + k}, s{S_BOUT}, v{A + k}' for k in range(5)]
        L += [f'v_cvt_pk_bf16_f32 v10, v{A}, v{A + 1}', f'v_cvt_pk_bf16_f32 v11, v{A + 2}, v{A + 3}', f'v_cvt_pk_bf16_f32 v12, v{A + 4}, v{A + 4}',
              f'buffer_store_dwordx2 v[10:11], v1, {srd(SRD_OUT)}, s{S_T3} offen', f'buffer_store_short v12, v2, {srd(SRD_OUT)}, s{S_T3} offen']
        if o.skew:
            L += [f's_cmp_lg_u32 s{S_EX}, 0', 's_cbranch_scc1 L_fin', 'v_lshlrev_b32 v20, 7, v0', 's_mov_b32 s88, 0x40000']
            for k in range(4):
                L += [f'buffer_load_dwordx3 v[{32 + 4 * k}:{34 + 4 * k}], v20, {srd(SRD_WS)}, s88 offen sc1', 's_add_u32 s88, s88, 8192']
            L += ['s_waitcnt vmcnt(0)']
            if o.probe.startswith('st') or o.absol:
                L += ['s_memrealtime s[88:89]', 's_waitcnt lgkmcnt(0)', 'v_mov_b32 v26, 0', 'v_mov_b32 v27, 0']
                for k in range(4):
                    L += [f'v_sub_u32 v28, s88, v{32 + 4 * k}', 'v_cmp_gt_u32 vcc, 4500, v28', f'v_not_b32 v29, v{32 + 4 * k}', 'v_cndmask_b32 v29, 0, v29, vcc', 'v_max_u32 v27, v27, v29']
                    if o.absol:
                        L += [f'v_cndmask_b32 v29, 0, v{34 + 4 * k}, vcc', 'v_max_u32 v26, v26, v29']
                    elif str(k) in o.probe[2:]:
                        L += [f'v_cndmask_b32 v29, 0, v{32 + 4 * k}, vcc', 'v_max_u32 v26, v26, v29']
            else:
                for k in range(4):
                    L += [f'v_sub_u32 v28, v{34 + 4 * k}, v{32 + 4 * k}', f'v_cmp_gt_u32 vcc, {100000 if o.cyc else 5000}, v28', f'v_cndmask_b32 v28, 0, v28, vcc',
                          f'v_cmp_eq_u32 vcc, v{32 + 4 * k}, v{33 + 4 * k}', f'v_cndmask_b32 v{33 + 4 * k}, 0, v28, vcc']
                L += ['v_max_u32 v26, v33, v37', 'v_max3_u32 v26, v26, v41, v45', 'v_mov_b32 v27, -1']
            if o.probe == 'span':
                L += ['s_memrealtime s[86:87]', 's_waitcnt lgkmcnt(0)', 'v_mov_b32 v26, s86']
            for (ctl, rm) in (('row_shr:1', '0xf'), ('row_shr:2', '0xf'), ('row_shr:4', '0xf'), ('row_shr:8', '0xf'), ('row_bcast:15', '0xa'), ('row_bcast:31', '0xc')):
                L += [f'v_max_u32_dpp v{r}, v{r}, v{r} {ctl} row_mask:{rm} bank_mask:0xf' for r in (26, 27)]
            L += ['v_not_b32 v27, v27', 'v_sub_u32 v22, v26, v27', 's_memrealtime s[86:87]', 'v_readlane_b32 s88, v22, 63', 's_waitcnt lgkmcnt(0)',
                  *([f's_max_u32 s88, s88, {o.cyc.split(chr(44))[2]}', f's_sub_u32 s88, s88, {o.cyc.split(chr(44))[2]}', 's_lshr_b32 s88, s88, 1'] if o.cyc else []), 's_min_u32 s88, s88, 5000', f's_mul_i32 s88, s88, {o.skew - 1}', 's_add_u32 s88, s88, s86',
                  'L_spin:', 's_memrealtime s[86:87]', 's_waitcnt lgkmcnt(0)', 's_sub_u32 s89, s88, s86', 's_cmp_gt_i32 s89, 0', 's_cbranch_scc1 L_spin']
        L += self.stamp(5) + self.stamp_flush() + ['s_branch L_fin']
        pc_ = self.seq(L)
        if o.sent:
            L = ['L_chk:', 'v_mov_b32 v14, 0', 'v_mov_b32 v15, 0']
            for qq in range(14):
                L += [f'v_max3_u32 v14, v14, v{A0 + 8 * qq}, v{A0 + 8 * qq + 1}', f'v_max3_u32 v14, v14, v{A0 + 8 * qq + 2}, v{A0 + 8 * qq + 3}', f'v_max_u32 v15, v15, v{A0 + 8 * qq + 4}']
            L += [f's_cmp_eq_u32 s{S_T3}, 12', f's_cselect_b32 s{S_T0}, 0, -1', f'v_and_b32 v15, s{S_T0}, v15', 'v_max_u32 v14, v14, v15',
                  'v_cmp_eq_u32 vcc, -1, v14', 's_cbranch_vccnz L_again', 's_branch L_ok']
            self.chk = self.seq(L)
        pe = self.seq(['L_done:', 's_endpgm'])
        self.pub = pa + pb + pc_ + pe
        self.extra_traces = [pa + pc_ + pb + pc_] + ([pa + pb + pc_[:45] + self.chk + pb[7:] + pc_] if o.sent else [])
        return [tc, tl + self.pub]

    def pubsrd(self):
        return self.build_srd(SRD_WS, S_WS, 0x10000000) + self.build_srd(SRD_OUT, S_OUT, 8192) + self.build_srd(SRD_DBG, S_DBG, 256)

    def tables(self):
        OOB = 0x100000
        G = [[] for _ in range(11)]
        for l in range(64):
            half, i32, g, r, c = l >> 5, l & 31, l >> 4, (l >> 2) & 3, l & 3
            lin0 = g * 128 + r * XPP + c * 8
            G[0] += [lin0, lin0 + 512 if g < 3 else XOFF(27) + c * 8, (l >> 3) * 16, 0x3f803f80 if l < 32 else 0]
            G[1] += [(l & 7) * 16, 0xeeee if l & 1 else 0x4444, half * XPP + i32 * 4, IMG + half * 20 * IMGP + i32 * 4]
            tr = [IMG + cin16.IMGROW(cin16.LAB[g][2 * rp + (r >> 1)][r & 1]) * IMGP + c * 8 for rp in range(8)]
            G[2] += tr[:4]
            G[3] += tr[4:]
            row, col = 8 * half + r, (g & 1) * 32 + c * 8
            G[4] += [V3OFF + row * 64 + col, A1 + row * 1352 + col, A1 + min(row + 16, 25) * 1352 + col, A1 + min(row + 20, 25) * 1352 + col]
            t, gd, rr = (i32 >> 2) & 1, i32 >> 3, i32 & 3
            ig = 16 * t + 4 * rr + gd
            iq = 4 * rr + gd if t == 0 else 16 + ((4 * rr + gd + 4) & 15)
            pm = []
            for q in range(8):
                k0 = 16 * (q >> 2) + 8 * half + 2 * (q & 3)
                pm.append((0xffff if iq == k0 else 0xffff0000 if iq == k0 + 1 else 0) if iq < 26 else 0)
            G[5] += pm[:4]
            G[6] += pm[4:]
            ga = A2 + 52 * ig if ig < 26 else OOB
            rowp = ((l & 12) + 2 * (l & 1)) * 16 + (OOB if l & 2 else 0)
            G[7] += [ga + half * 8 * W2P, ga + half * OOB, rowp + half * 256 + (g & 1) * 8, rowp + g * 256]
            G[8] += [SG + i32 * 64 if i32 < 26 else V2S if i32 == 26 else OOB, 64 if i32 == 26 else 3328, (i32 >> 1) + 2 * half,
                     SQ + i32 * 64 + ((((i32 >> 1) & 3) ^ (2 * half)) << 4)]
            v2 = []
            for hf in range(2):
                j = 4 * g + 16 * hf + r
                v2.append(V2S + (j & 1) * 1664 + (j >> 1) * 64 + ((c ^ (((13 + j) & 3) * 2)) * 8) if j < 26 else SG + 676 * 64 + c * 8)
            wo = [L_WCO + 2 * (16 * tl_ + 4 * c + r) if 16 * tl_ + 4 * c + r < 26 else OOB for tl_ in range(2)]
            G[9] += v2 + wo
            G[10] += [L_WCO + 104 + 16 * half, L_WCO + 52 + 2 * l, V3OFF + 52 + 64 * l, SG + 676 * 64 + (l & 15) * 4]
        U = []
        for w in range(8):
            for e in range(16):
                for u in (w, w + 8, w + 16):
                    U += [SG + row * 64 + f * 8 for row, f in cin16.p2rows(u, e >> 2, e & 3)] if u < 22 else [0, 0]
        return [x for n in (4, 2, 3, 0, 5, 6, 7, 8, 9, 1, 10) for x in G[n]] + [0] * 256 + U + [0] * 256

    def cin(self):
        o = self.opt
        cw = S_CW
        vFa, vLin0, vLin1, vXi0, vXi1, vC16, vIDX, vXa, vIw, vPWL, vPXL, PXR, PFR = 1, 4, 5, 6, 7, 8, 9, 10, 11, 12, 13, 3, 14
        XI, vTR = 16, 20
        XR, P, Z, WF, D = 32, 60, 116, 164, 184
        vStg, vFR, vFw = vFa, 2, 59
        t3, t4, t5 = 29, 30, 31
        AV = [28, 58]
        PM = 216
        vA3, vBs0, vBs1a, vBs1b, vGa, vGb, vT3, vT3d = range(224, 232)
        G8, vV2r, vV2q, vWo, AD = 232, 236, 237, 238, 240
        WA = list(range(244, 250))
        vS, vMx = 250, 111
        UA, UX = 224, [232, 233, 234, 235, 240, 241]
        AFR = 112
        BALL, DALL = 60, 120
        S_F1, S_F2, S_G, S_LO, S_HI, S_CM, S_U0, S_U1, S_U2 = 74, 75, 95, 96, 97, 90, 98, 99, 100
        S_CG, S_IV = 0, 1
        OOB = 0x100000
        TA_, TB_, TC_ = SG + 35840, SQ + 26 * W2P, FRS + 2048
        GREG = [224, 20, 24, 4, 216, 220, 228, 232, 236, 8, 240]
        DPPS = (('row_shr:1', '0xf'), ('row_shr:2', '0xf'), ('row_shr:4', '0xf'), ('row_shr:8', '0xf'),
                ('row_bcast:15', '0xa'), ('row_bcast:31', '0xc'))

        K_W7, K_IMG, K_W2, K_W1, K_W12, K_H8, K_T3 = 44, 45, 46, 47, 92 - 10, 92 - 9, 101
        L = ['L_cin:', f'v_lshlrev_b32 v{vStg}, 4, v0', f's_and_b32 s{cw}, s{S_WAVE}, 3', f's_lshr_b32 s{S_GRP}, s{S_WAVE}, 2', f's_lshl_b32 s{S_STG}, s{cw}, 10',
             f's_mul_i32 s{S_MB}, s{S_T0}, 11', f's_add_u32 s{S_MB}, s{S_MB}, s{S_T1}', f's_sub_u32 s{S_MB}, s{S_MB}, 22',
             f's_cmp_eq_u32 s{S_MB}, 86', 's_cbranch_scc1 L_end', f's_cmp_eq_u32 s{S_GRP}, 0', 's_cbranch_scc1 L_sc']
        c0 = self.seq(L)
        L = ['s_setprio 2', f'v_add_u32 v2, L_tables-L_pc+4096, v{vStg}', f'v_mov_b32 v3, s{S_MASK + 1}',
             f'v_add_co_u32 v2, vcc, s{S_MASK}, v2', 'v_addc_co_u32 v3, vcc, 0, v3, vcc',
             f'v_add_co_u32 v{XR}, vcc, s{S_STG}, v2', f'v_addc_co_u32 v{XR + 1}, vcc, 0, v3, vcc',
             f'global_load_dwordx4 {vr(GREG[0], 4)}, v[2:3], off offset:-4096',
             'v_add_co_u32 v2, vcc, 0x1800, v2', 'v_addc_co_u32 v3, vcc, 0, v3, vcc', f'global_load_dwordx4 {vr(GREG[10], 4)}, v[2:3], off',
             f's_cmp_lt_u32 s{cw}, 3', f's_mov_b32 s{S_T2}, {TB_ - 3072}', f's_cselect_b32 s{S_T2}, {TA_ + 4096}, s{S_T2}']
        tdma = lambda off: I(f'global_load_lds_dwordx4 {vr(XR, 2)}, off offset:{off}', tag='TAB')
        L += [f's_add_u32 m0, s{S_STG}, {TA_ + 4096}', tdma(-4096), f's_add_u32 m0, s{S_STG}, s{S_T2}', tdma(0),
              f'v_add_co_u32 v{XR}, vcc, 0x2000, v{XR}', f'v_addc_co_u32 v{XR + 1}, vcc, 0, v{XR + 1}, vcc',
              f's_add_u32 m0, s{S_STG}, {TC_}', tdma(0), f's_add_u32 m0, s{S_STG}, {TB_ + 1024 + 4096}', f's_cmp_ge_u32 s{cw}, 2', 's_cbranch_scc1 L_sc']
        g1s = self.seq(L)
        L = [tdma(-4096)]
        g1t = self.seq(L)
        L = ['L_sc:', f's_mul_i32 s{S_RC}, s{S_GRP}, 20', f's_add_u32 s{S_RC}, s{S_RC}, s{S_WAVE}',
             f's_mul_i32 s{S_SAMP}, s{S_MB}, 48', f's_add_u32 s{S_SAMP}, s{S_SAMP}, s{S_RC}', f's_mul_i32 s{S_SAMP}, s{S_SAMP}, 104',
             f'v_lshrrev_b32 v{t4}, 3, v0', f'v_lshlrev_b32 v{t4}, 4, v{t4}', f'v_and_b32 v{t3}, 0x70, v{vStg}',
             f's_mul_i32 s{S_XM0}, s{S_WAVE}, {XBSZ}', f's_add_u32 s{S_XM0}, s{S_XM0}, {XB}', f's_cmp_eq_u32 s{S_GRP}, 0', 's_cbranch_scc1 L_g0']
        csc = self.seq(L)
        SC2 = [f's_lshl_b32 s{S_RC}, s{S_RC}, 2', f's_add_u32 s{S_RC}, s{S_RC}, {RC}',
               f's_mul_i32 s{S_LOOP}, s{S_GRP}, 3', f's_sub_u32 s{S_LOOP}, 4, s{S_LOOP}', (f's_cmp_eq_u32 s{S_MB}, 85', f's_cselect_b32 s{S_LOOP}, s{S_LOOP}, 6'),
               f's_lshl_b32 s{K_W7}, s{S_WAVE}, 7', f's_mul_i32 s{K_IMG}, s{S_WAVE}, {IMGSZ}', f's_lshl_b32 s{K_W2}, s{S_WAVE}, 2', f's_lshl_b32 s{K_W1}, s{S_WAVE}, 1',
               f's_lshl_b32 s{K_W12}, s{S_WAVE}, 12',
               f's_and_b32 s{S_U0}, s{S_WAVE}, 1', f's_lshr_b32 s{S_U1}, s{S_WAVE}, 1',
               f's_mul_i32 s{S_T0}, s{S_U1}, 3072', f's_lshl_b32 s{K_H8}, s{S_U0}, 3', f's_add_u32 s{S_T0}, s{S_T0}, s{K_H8}', f'v_add_u32 v{vFw}, s{S_T0}, v{vStg}',
               f's_lshl_b32 s{S_T1}, s{S_U1}, 3', f's_lshr_b32 s{S_T1}, 0x05030200, s{S_T1}', f's_and_b32 s{S_T1}, s{S_T1}, 0xff',
               f's_lshl_b32 s{S_T1}, s{S_T1}, 9', f's_lshl_b32 s{S_T2}, s{S_U0}, 2', f's_add_u32 s{K_T3}, s{S_T1}, s{S_T2}',
               f's_mov_b32 s{S_U1}, 0x05040100', f's_mov_b32 s{S_U2}, 0x07060302',
               f'v_mov_b32 v{vFR}, {L_FLG}', 'v_mov_b32 v109, 0', 'v_mov_b32 v108, 0'] + [f'v_mov_b64 {vr(r, 2)}, 0' for r in range(XR, XR + 26, 2)]
        XJ = 104
        assert not (o.pfx or o.pfw)

        def pfw():
            return [f'buffer_load_dword v{PFR}, v{vPWL}, {srd(SRD_W)}, s{S_PW} offen',
                    f's_add_u32 s{S_PW}, s{S_PW}, {o.pfne * 688 * 128}']

        def pfx_a():
            return [f'buffer_load_dword v{PXR}, v{vPXL}, {srd(SRD_IDX)}, s{S_PX} offen',
                    f's_cmp_eq_u32 s{S_PX}, s{S_PXE}', f's_cselect_b32 s{S_PXE}, 0x7000000, s{S_PXE}',
                    f's_cselect_b32 s{S_PX}, 0x7000000, s{S_PX}',
                    f's_add_u32 s{S_PX}, s{S_PX}, 24', f's_min_u32 s{S_PX}, s{S_PX}, s{S_PXE}']

        def pfx_b():
            return [f'v_lshlrev_b32 v{PXR}, 7, v{PXR}', f'buffer_load_dword v{PFR + 1}, v{PXR}, {srd(SRD_TAB)}, 0 offen']

        def xidx(XI=XI, vXi0=vXi0):
            return [f'buffer_load_dwordx4 {vr(XI, 4)}, v{vXi0}, {srd(SRD_IDX)}, s{S_SAMP} offen', f's_add_u32 s{S_SAMP}, s{S_SAMP}, {4 * 104}']

        def xdma(XI=XI, off=0, tag='XB', vC16=vC16):
            c = [f'v_lshl_add_u32 v{XI + u}, v{XI + u}, 7, v{vC16}' for u in range(4)]
            for u in range(4):
                c += [f's_add_u32 m0, s{S_XM0}, {u * XPP + off}']
                if u % 2 == 0:
                    c.append(f's_mov_b32 exec_hi, {0xffffff if u == 0 else 0xffff:#x}')
                c.append(I(f'buffer_load_dwordx4 v{XI + u}, {srd(SRD_TAB)}, 0 offen lds', tag=tag))
            return c + ['s_mov_b32 exec_hi, -1']

        def stage(dst, goff, tag):
            st = []
            for m in range(9):
                st.append((f's_add_u32 m0, s{S_STG}, {dst + m * 4096}', f's_add_u32 s{S_TW}, s{S_STG}, {goff + m * 4096}',
                           I(f'buffer_load_dwordx4 v{vStg}, {srd(SRD_CIN)}, s{S_TW} offen lds', tag=tag)))
            return st

        def pubmax(regs_offs):
            c = []
            for (ctl, rm) in DPPS:
                for r, _ in regs_offs:
                    c.append(f'v_max_u32_dpp v{r}, v{r}, v{r} {ctl} row_mask:{rm} bank_mask:0xf')
            c += ['s_mov_b32 exec_lo, 0', 's_mov_b32 exec_hi, 0x80000000']
            c += [f'ds_max_u32 v{vFR}, v{r} offset:{16 + 4 * k}' for r, k in regs_offs]
            return c + ['s_mov_b64 exec, -1']

        def mxop(src, n, mx, first):
            return [f'v_mfma_f32_16x16x32_bf16 {vr(mx, 4)}, {vr(src + r, 4)}, {vr(src + r, 4)}, {"0" if first and r == 0 else vr(mx, 4)}' for r in range(0, n, 4)]

        def mxfin(mx):
            return [f'v_max3_f32 v{mx}, v{mx}, v{mx + 1}, 0', f'v_max3_f32 v{mx}, v{mx}, v{mx + 2}, v{mx + 3}']

        def bread(m, off):
            b = BALL + m * 8
            return [f'ds_read_b64_tr_b16 {vr(b, 2)}, v{vBs0} offset:{off}',
                    f'ds_read_b64_tr_b16 {vr(b + 2, 2)}, v{vBs0} offset:{off + 4 * 1352}',
                    f'ds_read_b64_tr_b16 {vr(b + 4, 2)}, v{vBs1a} offset:{off}',
                    f'ds_read_b64_tr_b16 {vr(b + 6, 2)}, v{vBs1b} offset:{off}']

        def mm2(d, a, b):
            return [f'v_mfma_f32_32x32x16_bf16 {vr(d, 16)}, {vr(a, 4)}, {vr(b, 4)}, 0',
                    f'v_mfma_f32_32x32x16_bf16 {vr(d, 16)}, {vr(a + 4, 4)}, {vr(b + 4, 4)}, {vr(d, 16)}']

        tA, tB = 250, 251
        trd = lambda n: f'ds_read_b128 {vr(GREG[n], 4)}, v{tA if n < 7 else tB} offset:{(n if n < 7 else n - 7) * 1024}'
        vbs = [f'v_add_u32 v{r}, s{K_W7}, v{r}' for r in (vBs0, vBs1a, vBs1b)]

        def FX(g):
            R = [trd(n) for n in ((0,) if g == 0 else ()) + (6, 7, 3, 9, 1, 2, 4, 5, 8)]
            F = vbs + [f'v_add_u32 v{r}, s{K_W2}, v{r}' for r in (vGa, vGb)]
            F += [f'v_add_u32 v{vT3d}, s{K_H8}, v{vT3d}', f'v_add_u32 v{vT3}, s{K_T3}, v{vT3}']
            F += [f'v_mad_u32_u24 v{G8}, v{G8 + 1}, s{S_WAVE}, v{G8}', f'v_add_u32 v{G8 + 2}, s{K_W1}, v{G8 + 2}',
                  f'v_mad_u32_u24 v{G8 + 1}, v{G8 + 1}, 8, v{G8}', f'v_add_u32 v{WA[2]}, s{K_W12}, v{G8 + 3}', f'v_add_u32 v{WA[3]}, 2048, v{WA[2]}']
            for n_, (wa, bs) in enumerate(((WA[0], G8), (WA[1], G8), (WA[4], G8 + 1), (WA[5], G8 + 1))):
                F += [f'v_add_u32 v{t5}, {n_ & 1}, v{G8 + 2}', f'v_and_b32 v{t5}, 3, v{t5}', f'v_lshl_add_u32 v{wa}, v{t5}, 4, v{bs}']
                if n_ & 1:
                    F.append(f'v_add_u32 v{wa}, 1664, v{wa}')
            F += [f'v_add_u32 v{r}, s{S_XM0}, v{r}' for r in (vXa, vLin0, vLin1)] + [f'ds_write_b32 v{vXa}, v{vXi1} offset:{XOFF(26)}']
            F += [f'v_add_u32 v{r}, s{K_IMG}, v{r}' for r in [vIw] + list(range(vTR, vTR + 8))]
            return R, F
        SC2 += [f'v_add_u32 v{tA}, {TA_}, v{vStg}', f'v_add_u32 v{tB}, {TB_}, v{vStg}', f'v_lshrrev_b32 v3, 5, v0', f'v_lshl_add_u32 v3, v3, 2, v{vFR}']

        def pub2(r1, r2, off):
            c = [f'v_permlane32_swap_b32 v{r1}, v{r2}', f'v_max_u32 v{r1}, v{r1}, v{r2}']
            c += [f'v_max_u32_dpp v{r1}, v{r1}, v{r1} {ctl} row_mask:{rm} bank_mask:0xf' for ctl, rm in DPPS[:5]]
            return c + ['s_mov_b32 exec_lo, 0x80000000', 's_mov_b32 exec_hi, 0x80000000', f'ds_max_u32 v3, v{r1} offset:{16 + off}', 's_mov_b64 exec, -1']
        AV = [28, 58, 111]
        L = ['s_waitcnt lgkmcnt(0)'] + self.build_srd(SRD_WCO, S_WCO, 156) + [f's_mov_b32 m0, {L_WCO}', 's_mov_b64 exec, 0x7ff',
             I(f'buffer_load_dwordx4 v{vStg}, {srd(SRD_WCO)}, 0 offen lds', tag='WCO'), 's_mov_b64 exec, -1'] + self.stamp0() + SC2
        L += self.build_srd(SRD_IDX, S_IDX, 4096 * 104) + self.build_srd(SRD_TAB, S_TAB, 100000 * 128)
        XK = 252 - 4 if False else 12
        if o.xg1:
            L += [f's_sub_u32 s{S_T0}, s{S_SAMP}, {24 * 104}', f'buffer_load_dwordx4 {vr(XI, 4)}, v{t4}, {srd(SRD_IDX)}, s{S_T0} offen',
                  f'buffer_load_dwordx4 {vr(XK, 4)}, v{t4}, {srd(SRD_IDX)}, s{S_T0} offen offset:{4 * 104}']
        L += [f'ds_write_b128 v{vFR}, {vr(XR, 4)} offset:16', f's_lshl_b32 s{S_T0}, s{cw}, 6', f'v_add_u32 v{t3}, s{S_T0}, v0']
        for p_ in range(3):
            L += [f'v_mul_u32_u24 v{t4}, 2521, v{t3}', f'v_lshrrev_b32 v{t4}, 16, v{t4}', f'v_mul_u32_u24 v{t4}, 12, v{t4}', f'v_lshl_add_u32 v{AV[p_]}, v{t3}, 1, v{t4}']
            L += [f'v_add_u32 v{t3}, 256, v{t3}'] if p_ < 2 else [f'v_cmp_gt_u32 vcc, 676, v{t3}', f's_mov_b64 s[{S_MASK}:{S_MASK + 1}], vcc']
        L += [f'v_lshlrev_b32 v{t3}, 3, v0', 's_mov_b32 exec_hi, 0xffff', f'ds_write_b64 v{t3}, {vr(XR, 2)} offset:{V3OFF + 26 * 64}', 's_mov_b32 exec_hi, -1',
              f'ds_write_b32 v{AD + 3}, v{XR}', f'ds_write_b32 v{AD + 3}, v{XR} offset:{SSZ}', WaitTag(vm_tags=['WCO'])]
        assert V3OFF == 0
        for s2 in range(2):
            for rd in range(2):
                L.append(f'ds_read_b64 {vr(AFR + 4 * s2 + 2 * rd, 2)}, v{AD} offset:{s2 * 32 + rd * 8}')
        L += [f'ds_read_u16 v110, v{AD + 1}',
              's_mov_b64 exec, 0x3ffffff', f'ds_write_b16 v{AD + 2}, v110', 'v_lshlrev_b32 v109, 17, v110', 'v_lshrrev_b32 v109, 1, v109', 's_mov_b64 exec, -1']
        if o.cwalk:
            L += ['s_mov_b64 exec, 0'] + [x for q_ in range(3) for x in (f's_cmp_eq_u32 s{cw}, {q_}', f's_cbranch_scc1 L_WENTRY{q_}')] + ['s_branch L_WENTRY3', 'L_wret:', 's_mov_b64 exec, -1']
        L += (FX(1)[1] if o.dirt else vbs) + [WaitTag(vm_tags=['TAB'], lgkm0=True)] + self.probe('tab')
        v3p = []
        L += ['s_barrier'] + self.stamp(2) + self.probe('b0')
        vb = lambda m: A3 - A1 - 512 + (m >> 1) * 512 + (m & 1) * 64
        for m in range(3):
            L += bread(m, vb(m))
        for m in range(6):
            if m + 3 < 6:
                L += bread(m + 3, vb(m + 3))
            L += mm2(DALL + m * 16, AFR, BALL + m * 8)
            if m == 3 and not o.dirt:
                L += FX(1)[0]
        if not o.dirt:
            L += FX(1)[1][3:]
        for p_ in range(3):
            L += ['s_mov_b32 exec_lo, 0', f'v_mov_b32 v{DALL + 32 * p_}, v{DALL + 32 * p_ + 16}', 's_mov_b32 exec_lo, -1',
                  f'v_cvt_pk_bf16_f32 v{BALL + p_}, 0, v{DALL + 32 * p_}']
            if p_ == 2:
                L += [f's_mov_b64 exec, s[{S_MASK}:{S_MASK + 1}]']
            L += [f'ds_write_b16_d16_hi v{AV[p_]}, v{BALL + p_}', f'v_max_f32 v108, |v{BALL + p_}|, v108']
        L += ['s_mov_b64 exec, -1'] + pub2(108, 109, 8) + self.stamp(13) + [f's_setprio {o.g1p}', 's_waitcnt lgkmcnt(0)', 's_barrier', 's_branch L_w2']
        v3 = self.seq(L)

        def stage3(dst, goff, tag, lab, mid=None, fill=()):
            st = stage(dst, goff, tag)
            a_ = st[:8] if mid is None else st[:mid[0]] + [tuple(mid[1])] + st[mid[0]:8]
            return (self.seq(interleave(a_, list(fill)) + [f's_cmp_eq_u32 s{cw}, 3', f's_cbranch_scc1 {lab}']), self.seq([st[8]]), self.seq([f'{lab}:']))
        g0 = [self.seq(['L_g0:', 's_waitcnt lgkmcnt(0)'] + self.build_srd(SRD_CIN, S_CIN, 105456))]
        g0.append(stage3(A3, 70304, 'W3', 'L_st3'))
        g0.append(self.seq(self.stamp0() + self.build_srd(SRD_IDX, S_IDX, 4096 * 104) + ([f's_add_u32 s{S_SAMP}, s{S_SAMP}, {8 * 104}'] if o.xg1 else xidx(XI, t4) + xidx(XJ, t4)) + self.build_srd(SRD_TAB, S_TAB, 100000 * 128)))
        def w2grp(n):
            c = []
            for k, go in enumerate((0, 1024, 1864)):
                c.append((f's_add_u32 m0, s{S_STG9}, {A2 + n * 4 * 3072 + k * 1024}', f's_add_u32 s{S_TW}, s{S_TGT}, {35152 + n * 4 * 2704 + go}',
                          I(f'buffer_load_dwordx4 v{t5 if k == 1 else vStg}, {srd(SRD_CIN)}, s{S_TW} offen lds', tag='W2')))
            return c
        g0.append((self.seq([f's_mul_i32 s{S_STG9}, s{cw}, 3072', f's_mul_i32 s{S_TGT}, s{cw}, 2704', f'v_lshrrev_b32 v{t5}, 5, v0', f'v_mul_u32_u24 v{t5}, 184, v{t5}',
                             f'v_sub_u32 v{t5}, v{vStg}, v{t5}'] + interleave(w2grp(0) + w2grp(1) + w2grp(2), SC2) + [f's_cmp_lg_u32 s{cw}, 0', 's_cbranch_scc1 L_st2']),
                   self.seq(w2grp(3)), self.seq(['L_st2:']), 1))
        xx = xdma(vC16=t3, tag='XBa') + xdma(XJ, 4 * XBSZ, vC16=t3)
        g0.append(stage3(A1, 0, 'W1', 'L_st1', (o.sigat, [WaitTag(vm_tags=['W2' if o.mrg else 'W3']), 's_barrier'] + self.stamp(2) + FX(0)[0])))
        g0.append(self.seq(([] if o.xg1 else xx) + FX(0)[1] + self.stamp(13) + [WaitTag(vm_tags=['W1']), 's_barrier']))

        def G0(w):
            r = []
            for x in g0:
                r += x if isinstance(x, list) else x[0] + (x[1] if w < (3 if len(x) == 3 else x[3]) else []) + x[2]
            return r

        def gather(dst, off):
            c = [f'v_add_u32 v{r}, {off}, v{r}' for r in (vGa, vGb)] if off else []
            for s2 in range(2):
                for e in range(0, 8, 2):
                    base = vGb if (s2 == 1 and e >= 2) else vGa
                    h = 16 * s2 + e
                    c.append(f'ds_read2st64_b32 {vr(dst + 8 * s2 + e, 2)}, v{base} offset0:{6 * h} offset1:{6 * h + 6}')
            return c

        def perms(g_, aj):
            return [f'v_perm_b32 v{aj + 8 * jj + r}, v{g_ + 2 * r + 1}, v{g_ + 2 * r}, s{S_U1 + jj}' for jj in range(2) for r in range(8)]

        def sout(t):
            d, c_ = DALL + 16 * t, DALL + 16 * t
            c = [f'v_cvt_pk_f16_f32 v{c_ + r}, v{d + 2 * r}, v{d + 2 * r + 1}' for r in range(8)]
            return c[:4] + [f'ds_write_b128 v{WA[t]}, {vr(c_, 4)}', f'v_xor_b32 v{WA[t]}, 16, v{WA[t]}'] + c[4:] + [f'ds_write_b128 v{WA[t]}, {vr(c_ + 4, 4)}']
        M1, M2 = 28, 28

        def pub1(r, off):
            c = [f'v_max_u32_dpp v{r}, v{r}, v{r} {ctl} row_mask:{rm} bank_mask:0xf' for ctl, rm in DPPS]
            return c + [('s_mov_b32 exec_lo, 0', 's_mov_b32 exec_hi, 0x80000000', f'ds_max_u32 v{vFR}, v{r} offset:{16 + off}', 's_mov_b64 exec, -1')]
        L = ['L_w2:'] + self.stamp(14) + self.probe('bw2') + gather(BALL, 0)
        cx = []
        if o.xg1:
            cc0 = self.seq(L + [f's_cmp_eq_u32 s{S_GRP}, 0', 's_cbranch_scc1 L_nx1'])
            cx = self.seq(xdma(XI, -4 * XBSZ) + xdma(XK))
            L = ['L_nx1:']
        else:
            cc0 = []
        L += [f's_cmp_ge_u32 s{S_WAVE}, 5', 's_cbranch_scc1 L_u0']
        cc = self.seq(L)
        M1, M2 = 28, 108
        fin2 = lambda: interleave(mxfin(M1), mxfin(M2)) + [tuple(x) if isinstance(x, list) else x for x in pub2(M1, M2, 0)[:7] + [pub2(M1, M2, 0)[7:]]]
        afr = [f'ds_read_b64_tr_b16 {vr(AFR + 4 * s2 + 2 * rd, 2)}, v{vA3} offset:{s2 * 1024 + rd * 256}' for s2 in range(2) for rd in range(2)]
        b1u = self.seq(gather(BALL + 32, 32) + bread(2, 0) + bread(3, 64) + afr + mxop(BALL, 16, M2, True) + perms(BALL, DALL + 64)[:8] + mxop(BALL + 32, 16, M2, False)
                       + mxop(BALL + 16, 16, M1, True) + perms(BALL, DALL + 64)[8:] + interleave(fin2(), perms(BALL + 32, BALL)) + ['s_branch L_u1'])
        L = ['L_u0:'] + bread(2, 0) + bread(3, 64) + bread(4, 384) + bread(5, 384 + 64) + afr + mxop(BALL, 16, M2, True) + mxop(BALL + 16, 32, M1, True)
        L += perms(BALL, DALL + 64)[:4] + interleave(fin2(), perms(BALL, DALL + 64)[4:])
        L += [f'v_add_u32 v{WA[4]}, {192 * 64}, v{WA[2]}', f'v_add_u32 v{WA[5]}, {192 * 64}, v{WA[3]}',
              f's_cmp_lg_u32 s{S_WAVE}, 7', 's_cbranch_scc1 L_u1', 's_mov_b32 exec_lo, 0xfffffff0', 's_mov_b32 exec_hi, 0xfffffff0', f'v_mov_b32 v{WA[5]}, {OOB}', 's_mov_b64 exec, -1']
        b1q = self.seq(L)
        MXR = 108
        vM = 58

        def ureads(j):
            return [f'ds_read_u16_d16_hi v{XR + 2 * j}, v{vXa} offset:{XOFF(2 * j)}',
                    f'ds_read_u16_d16_hi v{XR + 2 * j + 1}, v{vXa} offset:{XOFF(2 * j) + 2}']
        mx3 = lambda j: f'v_max3_f32 v{vM}, |v{XR + 2 * j}|, |v{XR + 2 * j + 1}|, {"0" if j == 0 else f"v{vM}"}'
        L = ['L_u1:'] + self.stamp(1) + [WaitTag(lgkm0=True), 's_barrier'] + self.stamp(7) + self.probe('b1')
        L += [f'ds_read_b128 {vr(MXR, 4)}, v{vFR} offset:16']
        L += [f's_mul_i32 s{S_T0}, s{S_WAVE}, 384', f'v_lshrrev_b32 v{t3}, 2, v0', f'v_mul_u32_u24 v{t3}, 24, v{t3}', f'v_add_u32 v{t3}, s{S_T0}, v{t3}',
              f'v_and_b32 v{t4}, 3, v0', f'v_lshlrev_b32 v{t4}, 3, v{t4}']
        L += [f'ds_read_b64 {vr(UA + 2 * n_, 2)}, v{t3} offset:{TC_ + 8 * n_}' for n_ in range(3)]
        q1 = [f'v_add_u32 v{MXR}, {127 << 23:#x}, v{MXR}', f'v_lshrrev_b32 v{MXR}, 24, v{MXR}', f'v_sub_u32 v{MXR}, 267, v{MXR}', f'v_min_u32 v{MXR}, 167, v{MXR}',
              f'v_readfirstlane_b32 s{S_F1}, v{MXR}', f'v_mul_u32_u24 v{MXR}, 0x800080, v{MXR}']
        sc = [f'v_add_u32 v{MXR + 1}, {127 << 23:#x}, v{MXR + 1}', f'v_lshrrev_b32 v{MXR + 1}, 24, v{MXR + 1}',
              's_mov_b32 vcc_lo, 0x4000000', 's_mov_b32 vcc_hi, 0x4000000', f'v_cndmask_b32 v{vS}, v{MXR + 2}, v{MXR + 3}, vcc', f'v_lshrrev_b32 v{vS}, 23, v{vS}',
              f'v_add_u32 v{vS}, v{vS}, v{MXR + 1}', f'v_sub_u32 v{vS}, 388, v{vS}', f's_movk_i32 s{S_U0}, 167', f'v_med3_i32 v{vS}, v{vS}, 1, s{S_U0}',
              f'v_subrev_u32 v{MXR + 2}, 127, v{vS}', f'v_lshlrev_b32 v{vS}, 23, v{vS}', f'v_cmp_gt_i32 vcc, 0, v{MXR + 2}',
              f'v_mul_u32_u24 v{MXR + 2}, 0x800080, v{MXR + 2}']
        mq = mm2(DALL + 32, PM, BALL + 16) + mm2(DALL + 48, PM, BALL + 24)
        L += interleave(q1, sc[:6]) + [f'v_and_b32 v{PM + r}, v{PM + r}, v{MXR}' for r in range(8)] + interleave([mq[0], mq[2], mq[1], mq[3]], sc[6:]) + ['s_cbranch_vccnz L_sdown']
        L += [f'v_add_u32 v{AFR + r}, v{AFR + r}, v{MXR + 2}' for r in range(8)]
        u1a = self.seq(L)
        L = ['L_scaled:'] + interleave(mm2(DALL, DALL + 64, AFR) + mm2(DALL + 16, DALL + 72, AFR), sout(2) + sout(3))
        L += [f's_cmp_ge_u32 s{S_WAVE}, 5', 's_cbranch_scc1 L_u2']
        u1 = self.seq(L)
        u2u = self.seq(interleave(mm2(DALL + 64, BALL, AFR) + mm2(DALL + 80, BALL + 8, AFR), sout(0)) + ['s_branch L_u3'])
        u2q = self.seq(['L_u2:'] + interleave(mm2(DALL + 64, PM, BALL + 32) + mm2(DALL + 80, PM, BALL + 40), sout(0)))
        L = ['L_u3:'] + xidx() + xidx(12)
        L += interleave(sout(1) + sout(4) + sout(5), [x for n_ in range(6) for x in (f'v_xor_b32 v{UA + n_}, v{UA + n_}, v{t4}', f'v_xor_b32 v{UX[n_]}, 32, v{UA + n_}')])
        L += [f'v_readlane_b32 s{S_CG}, v{vS}, 0', f'v_readlane_b32 s{S_IV}, v{vS}, 26',
              f's_sub_u32 s{S_F2}, {254 << 23:#x}, s{S_CG}', f's_sub_u32 s{S_IV}, {254 << 23:#x}, s{S_IV}',
              f's_sub_u32 s{S_F1}, 254, s{S_F1}', f's_lshl_b32 s{S_F1}, s{S_F1}, 23',
              f's_mov_b32 s{S_MASK}, 0x88888888', f's_mov_b32 s{S_MASK + 1}, 0x88888888']

        def sigma(s_):
            t = (s_ - 1) // 2
            first = (s_ - 1) % 2 == 0
            return (0 if first else 1) if t % 2 == 0 else (1 if first else 0)
        for s_ in range(1, 11):
            assert ((s_ - 1) // 2) * 1024 + sigma(s_) * 512 - (s_ // 4) * 2048 == (-1024, 0, 512, 1536)[s_ % 4]

        def p2read(n_):
            b = BALL + 16 * n_
            c = []
            UAl = list(range(UA, UA + 6))
            for x, (ar, off) in enumerate(((UAl, 0), (UX, 0), (UAl, SSZ), (UX, SSZ))):
                for y in range(2):
                    c.append(f'ds_read_b64_tr_b16 {vr(b + 4 * x + 2 * y, 2)}, v{ar[2 * n_ + y]} offset:{off}')
            return c

        def p2a(n_):
            b = BALL + 16 * n_
            c = []
            for x in range(4):
                c += [f'v_pk_add_f16 v{b + 4 * x + y}, v{b + 4 * x + y}, v{b + 4 * x + 2 + y}' for y in range(2)]
                if x in (0, 2):
                    c.append(f'ds_write_b64 v{vFw}, {vr(b + 4 * x, 2)} offset:{FR + n_ * 4 * 3072 + x * 1024}')
            c += [f'v_cndmask_b32 v{b + 4 + y}, v{b + 4 + y}, v{b + 12 + y}, s[{S_MASK}:{S_MASK + 1}]' for y in range(2)]
            c.append(f'ds_write_b64 v{vFw}, {vr(b + 4, 2)} offset:{FR + n_ * 4 * 3072 + 1024}')
            return c

        def p2s(n_):
            b = BALL + 16 * n_ + 12
            off = FRS + max(n_ * 2048 - 1024, 0)
            return ([f'v_subrev_u32 v{vT3}, 1024, v{vT3}'] if n_ == 0 else []) + [
                f'ds_write_b32 v{vT3}, v{b} offset:{off}', f'ds_write_b32 v{vT3}, v{b + 1} offset:{off + 16}']
        ec = []
        if o.econv:
            L += [f's_cmp_lg_u32 s{S_GRP}, 0', 's_cbranch_scc1 L_noec']
            u3 = self.seq(L)
            ec = self.seq([WaitTag(vm_tags=['XBa'])] + [x for j in range(13) for x in ureads(j)])
            L = ['L_noec:']
        else:
            u3 = []
        L += [WaitTag(vm_tags=['XB'] if o.xg1 else [], lgkm0=True), 's_barrier'] + self.stamp(10)
        L += p2read(0) + p2read(1) + [f's_cmp_ge_u32 s{S_WAVE}, 6', 's_cbranch_scc1 L_lin']
        b2 = self.seq(L)
        p2c = self.seq(p2read(2) + p2a(2) + p2s(2) + ['s_branch L_p2'])
        LB = BALL + 32
        ZR4 = t5
        L = ['L_lin:', f's_and_b32 s{S_U0}, s{S_WAVE}, 1', f's_cselect_b64 vcc, -1, 0', f's_lshl_b32 s{S_U1}, s{S_U0}, 5', f'v_mov_b32 v{ZR4}, 0',
             f'v_xor_b32 v{vV2r}, s{S_U1}, v{vV2r}', f'v_xor_b32 v{vV2q}, s{S_U1}, v{vV2q}', f'v_cndmask_b32 v{vWo}, v{vWo}, v{vWo + 1}, vcc',
             f'ds_read_b64_tr_b16 {vr(LB, 2)}, v{vV2r}', f'ds_read_b64_tr_b16 {vr(LB + 2, 2)}, v{vV2q}',
             f'ds_read_u16_d16_hi v{ZR4}, v{vWo}',
             f's_lshl_b32 s{S_U0}, s{S_U0}, 10', f'v_add_u32 v{t3}, s{S_U0}, v{vStg}']
        for r in range(4):
            a_, b_ = LB + 4 + 2 * r, LB + 5 + 2 * r
            L += [f'v_cvt_f32_f16 v{a_}, v{LB + r}', f'v_cvt_f32_f16_sdwa v{b_}, v{LB + r} dst_sel:DWORD dst_unused:UNUSED_PAD src0_sel:WORD_1',
                  f'v_mul_f32 v{a_}, s{S_IV}, v{a_}', f'v_mul_f32 v{b_}, s{S_IV}, v{b_}']
            if r == 3:
                L += ['s_mov_b32 exec_lo, 0', 's_mov_b32 exec_hi, 0xffff', f'v_mov_b32 v{a_}, v{ZR4}', 's_mov_b64 exec, -1']
            L += [f'v_mul_f32 v{a_}, s{S_CG}, v{a_}', f'v_mul_f32 v{b_}, s{S_CG}, v{b_}', f'v_cvt_pk_bf16_f32 v{LB + r}, v{a_}, v{b_}']
        L += [f'ds_write_b128 v{t3}, {vr(LB, 4)} offset:{FRL}']
        lin = self.seq(L)
        p2 = self.seq(['L_p2:'] + p2a(1) + p2s(1) + p2a(0) + [f's_cmp_lt_u32 s{S_WAVE}, 2', 's_cbranch_scc1 L_p2d'])
        p2e = self.seq(p2s(0) + ['s_branch L_built'])
        p2d = self.seq(['L_p2d:', f'ds_write_b64 v{vT3d}, {vr(BALL + 12, 2)} offset:{FRS + 5 * 1024}'])

        L = ['L_sdown:']
        for r in range(8):
            L += [f'v_lshlrev_b32 v{MXR}, 16, v{AFR + r}', f'v_and_b32 v{MXR + 1}, 0xffff0000, v{AFR + r}',
                  f'v_mul_f32 v{MXR}, v{MXR}, v{vS}', f'v_mul_f32 v{MXR + 1}, v{MXR + 1}, v{vS}', f'v_cvt_pk_bf16_f32 v{AFR + r}, v{MXR}, v{MXR + 1}']
        self.sdown = L + ['s_branch L_scaled']

        def PRE(w, sd=None):
            grp = w >> 2
            return (c0 + (g1s + (g1t if w < 6 else []) if grp else []) + csc + (v3p + v3 if grp else G0(w)) + cc0 + (cx if grp else []) + cc + (b1q if w >= 5 else b1u)
                    + (u1a if sd is None else u1a[:-8] + sd) + u1 + (u2q if w >= 5 else u2u) + u3 + ([] if grp else ec) + b2
                    + (lin if w >= 6 else p2c) + p2 + (p2d if w < 2 else p2e))
        L = ['L_built:'] + self.stamp(11)
        L += [f's_mov_b32 s{S_CG}, s{S_F1}', f's_mov_b32 s{S_IV}, s{S_F2}', f's_mov_b32 s{S_LO}, {f32hex(0.125)}', f's_mov_b32 s{S_HI}, {f32hex(0.0 if o.slow else 128.0)}']
        CV, vM, S_XD = 28, 58, 81

        def ureads(j):
            return [f'ds_read_u16_d16_hi v{XR + 2 * j}, v{vXa} offset:{XOFF(2 * j)}',
                    f'ds_read_u16_d16_hi v{XR + 2 * j + 1}, v{vXa} offset:{XOFF(2 * j) + 2}']
        mx3 = lambda j: f'v_max3_f32 v{vM}, |v{XR + 2 * j}|, |v{XR + 2 * j + 1}|, {"0" if j == 0 else f"v{vM}"}'
        cvt = lambda j: f'v_cvt_pk_f16_f32 v{CV + j % 4}, v{XR + 2 * j}, v{XR + 2 * j + 1}'
        iwr = lambda j: f'ds_write_b32 v{vIw}, v{CV + j % 4} offset:{j * IMGP}'
        S_SKIP = 51
        pfr = lambda: (pfx_b() + pfx_a() if o.pfx else []) + (pfw() if o.pfw else [])
        conv = lambda tag='XB': ([WaitTag(vm_tags=[tag])] + [x for j in range(13) for x in ureads(j)]
                        + [x for j in range(13) for x in (mx3(j), f'v_cvt_pk_f16_f32 v{D + j}, v{XR + 2 * j}, v{XR + 2 * j + 1}')])
        L += [f's_mov_b32 s{S_SKIP}, 1', f's_mul_i32 s{S_U0}, s{S_WAVE}, 1536', f's_add_u32 s{S_U0}, s{S_U0}, {PART}',
              f's_cmp_lg_u32 s{S_GRP}, 0', 's_cbranch_scc1 L_g1c']
        c2a = self.seq(L)
        c2g0 = self.seq([f's_sub_u32 s{S_SAMP}, s{S_SAMP}, {4 * 104}'] + (conv('XBa')[27:] if o.econv else conv('XBa')) + [WaitTag(lgkm0=True), 's_barrier'] + self.probe('b4a') + self.stamp(8) + ['s_branch L_cin_go'])
        DX = XB2 - XB - 4 * XBSZ
        L = ['L_g1c:', WaitTag(vm_tags=['XB'], lgkm0=True), 's_barrier'] + self.stamp(8) + self.probe('b4')
        L += [f's_add_u32 s{S_XM0}, s{S_XM0}, {DX}'] + xdma(tag='XB0') + xdma(12, 4 * XBSZ) + xidx() + pfr() + [f'v_add_u32 v{r}, {DX}, v{r}' for r in (vXa, vLin0, vLin1)]
        L += [f'ds_write_b32 v{vXa}, v{vXi1} offset:{XOFF(26)}', f'ds_write_b32 v{vXa}, v{vXi1} offset:{XOFF(26) + 4 * XBSZ}']
        c2g1 = self.seq(L)
        c2b = []
        c2g1d = self.seq(['L_g1d:'] + conv('XB0'))
        c2c = self.seq(['L_cin_go:'] + [f'ds_write_b32 v{vIw}, v{D + j} offset:{j * IMGP}' for j in range(13)]
                       + [f's_mov_b32 s{S_XD}, {4 * XBSZ}', f's_add_u32 s{S_XM0}, s{S_XM0}, {4 * XBSZ}',
                          f'v_lshlrev_b32 v{vXi1}, 2, v0', f'v_add_u32 v{vXi1}, s{S_U0}, v{vXi1}'])

        NWF = 5
        PF = o.cpfd
        zslot = lambda s_: 1 if s_ % 2 == 0 else (0 if ((s_ - 1) // 2) % 2 == 0 else 2)
        zr = lambda T, sl: Z + 12 * T + 4 * sl
        preg = lambda T, r: P + 14 * T + (r if r < 14 else r - 14)
        acc = lambda T, tile: D + 16 * T + 4 * tile
        jobs = [('l', 0, 0), ('l', 0, 1)]
        for s_ in range(11):
            jobs += [('d', s_, 2), ('d', s_, 0), ('d', s_, 1)]
            if s_ == 0:
                jobs.append(('d', 0, 3))
            elif s_ % 2 == 0:
                jobs.append(('s', s_, 3))
        NJ = len(jobs)
        assert NJ == 41

        def wread(n):
            kind, s_, tile = jobs[n]
            off = FRL + tile * 1024 if kind == 'l' else (FR + s_ * 3072 + tile * 1024 if tile < 3 else FRS + (5 if s_ == 0 else (s_ - 1) // 2) * 1024)
            return f'ds_read_b128 {vr(WF + 4 * (n % NWF), 4)}, v{vFa} offset:{off}'

        def mfma(n, T):
            kind, s_, tile = jobs[n]
            a = vr(WF + 4 * (n % NWF), 4)
            d = vr(acc(T, tile), 4)
            if kind == 'l':
                return f'v_mfma_f32_16x16x32_bf16 {d}, {a}, {vr(zr(T, 2), 4)}, 0'
            if kind == 's':
                lo = 0 if ((s_ - 1) // 2) % 2 == 0 else 1
                return f'v_smfmac_f32_16x16x64_f16 {d}, {a}, {vr(zr(T, lo), 8)}, v{vIDX}'
            return f'v_mfma_f32_16x16x32_f16 {d}, {a}, {vr(zr(T, zslot(s_)), 4)}, {"0" if (s_ == 0 and tile >= 2) else d}'

        def pk(T, n):
            a, b, s0, s1 = cin16.INS[n]
            return (f'v_pk_mul_f16 v{zr(T, zslot(n // 4)) + n % 4}, v{preg(T, a)}, v{preg(T, b)} '
                    f'op_sel:[{s0[0]},{s0[1]}] op_sel_hi:[{s1[0]},{s1[1]}]')

        def trp(T, rp):
            return f'ds_read_b64_tr_b16 {vr(preg(T, 2 * rp), 2)}, v{vTR + rp} offset:{32 * T}'

        LASTA = max(n for n, x in enumerate(cin16.INS) if x[0] < 2)
        S_A1, S_A2, S_PINC = 49, 50, 48
        fin = []
        for T in range(4):
            fin += [(acc(T, 0) + r, acc(T, 2) + r) for r in range(4)] + [(acc(T, 1), acc(T, 1) + 3)]
        for T in range(4):
            fin += [(acc(T, 1) + 1 + (r >> 1), acc(T, 3) + r) for r in range(4)]

        def final(f1, f2):
            c = []
            for k, (a, b) in enumerate(fin):
                d = Z + k % 4
                c.append(f'v_mul_f32 v{d}, v{a}, v{b}' if k < 4 else f'v_fmac_f32 v{d}, v{a}, v{b}')
            c += [f'v_add_f32 v{Z}, v{Z}, v{Z + 1}', f'v_add_f32 v{Z + 2}, v{Z + 2}, v{Z + 3}', f'v_add_f32 v{Z}, v{Z}, v{Z + 2}']
            c += [f'v_mul_f32 v{Z}, s{x}, v{Z}' for x in (f1, f2)]
            return c + [f'ds_write_b32 v{vXi1}, v{Z}']
        code = ['L_cin_loop:', f'v_cmp_le_f32 s[{S_CM}:{S_CM + 1}], s{S_HI}, v{vM}', f'v_cmp_le_f32 vcc, s{S_LO}, v{vM}',
                f's_mov_b32 s{S_A1}, s{S_F1}', f's_mov_b32 s{S_A2}, s{S_F2}',
                f's_cmp_lg_u64 s[{S_CM}:{S_CM + 1}], 0', 's_cbranch_scc1 L_cslow', 's_cbranch_vccz L_cslow']
        cA = self.seq(code)
        RD = []
        for rp in (0, 3, 4):
            RD += [trp(T, rp) for T in range(4)]
        for T in range(4):
            RD += [f'ds_read_b64_tr_b16 {vr(zr(T, 2), 2)}, v{vLin0} offset:{32 * T}', f'ds_read_b64_tr_b16 {vr(zr(T, 2) + 2, 2)}, v{vLin1} offset:{32 * T}']
        RD += [wread(k) for k in range(PF)]
        for rp in (5, 6, 1, 2):
            RD += [trp(T, rp) for T in range(4)]
        pfr = lambda: (pfx_b() + pfx_a() if o.pfx else []) + (pfw() if o.pfw else [])
        vm = xdma() + xidx() + pfr()
        VA = final(S_A1, S_A2) + [f'v_add_u32 v{vXi1}, 256, v{vXi1}']
        PK0 = [pk(T, n) for T in range(4) for n in range(4)]
        TG = [f'v_add_u32 v{r}, s{S_XD}, v{r}' for r in (vXa, vLin0, vLin1)] + [f's_sub_u32 s{S_XM0}, s{S_XM0}, s{S_XD}', f's_sub_u32 s{S_XD}, 0, s{S_XD}', f's_mov_b32 s{S_SKIP}, 0']
        cB0 = self.seq(['L_cconv:', f's_cmp_lg_u32 s{S_SKIP}, 0', 's_cbranch_scc1 L_first'])
        cVM = self.seq(interleave(RD, VA) + PK0 + vm)
        self.first = ['L_first:'] + RD[:28] + interleave(RD[28:], PK0) + ['s_branch L_novm']
        code = ['L_novm:'] + TG
        LA = 1
        def lstamp(base):
            if not (o.stamps and o.cst):
                return []
            return [f's_memtime s[{S_ST}:{S_ST + 1}]', f's_memrealtime s[{S_ST + 2}:{S_ST + 3}]', f's_sub_u32 s{S_C0}, {base + 6}, s{S_LOOP}', 's_waitcnt lgkmcnt(0)',
                    f's_mov_b32 m0, s{S_C0}', f'v_writelane_b32 v252, s{S_ST}, m0', f'v_writelane_b32 v253, s{S_ST + 2}, m0']
        code += lstamp(19)
        code += [Touch(vr(WF, 4)), Touch(vr(zr(3, 2), 4))] + (['s_setprio 2', 's_barrier'] if o.cbar else ['s_setprio 1'])
        MS = [(n, T) for n in range(NJ) for T in range(4)]
        first_use, last_use = {}, {}
        for mi, (n, T) in enumerate(MS):
            kind, s_, tile = jobs[n]
            if kind == 'l':
                last_use[(T, 'lin')] = mi
                continue
            for su in ([s_] if kind == 'd' else [s_ - 1, s_]):
                first_use.setdefault((T, su), mi)
                last_use[(T, su)] = mi
        V = []
        for s_ in range(LA, 11):
            prev = [p_ for p_ in range(s_) if zslot(p_) == zslot(s_)]
            for T in range(4):
                rdy = last_use[(T, prev[-1])] + o.war if prev else (last_use[(T, 'lin')] if zslot(s_) == 2 else -1)
                for n in range(4 * s_, 4 * s_ + 4):
                    V.append((pk(T, n), rdy, first_use[(T, s_)], n, T))
        forced = 0
        late = []
        XL_ = [x for j in range(13) for x in ureads(j)]
        xrd = {}
        CVR = [preg(T, r) for r in (2, 3, 6, 7) for T in range(4)]
        cvrdy = max(n for n, x in enumerate(cin16.INS) if set(x[:2]) & {2, 3, 6, 7})
        cvt2 = lambda j: f'v_cvt_pk_f16_f32 v{CVR[j]}, v{XR + 2 * j}, v{XR + 2 * j + 1}'
        iwr2 = lambda j: f'ds_write_b32 v{vIw}, v{CVR[j]} offset:{j * IMGP}'
        nm = nc = nw = 0
        V.sort(key=lambda x: x[2])
        prev2 = 0
        for mi, (n, T) in enumerate(MS):
            while V and V[0][2] <= mi:
                assert V[0][1] < mi
                code.append(V.pop(0)[0]); forced += 1
            code.append(mfma(n, T))
            t = 4
            if o.cbar and mi == len(MS) - 1 - o.cbov:
                code += ['s_setprio 3', 's_barrier']; t += 8
            if not o.cbar and mi == 4 * o.hiat - 2:
                code.append('s_setprio 2'); t += 4
            if T == 3 and n + 1 < NJ:
                code.append(Touch(vr(WF + 4 * ((n + 1) % NWF), 4))); t += 4
            if T == 0 and n + PF < NJ:
                code.append(wread(n + PF)); t += 8
            elif T in (1, 2) and late:
                code.append(late.pop(0)); t += 8
            elif T in (1, 2) and mi >= o.x0 and XL_:
                if len(XL_) == 26:
                    code.append(WaitTag(vm_tags=['XB']))
                code.append(XL_.pop(0)); t += 8
                if len(XL_) % 2 == 0:
                    xrd[12 - len(XL_) // 2] = mi
            elif not V and nw < nc and t == 4:
                code.append(iwr2(nw)); nw += 1; t += 12
            t = max(t, 12 if jobs[n][0] == 's' else 8)
            k = 0
            while t < 16:
                urgent = any(V[q_][2] - 1 - mi < q_ + 1 for q_ in range(min(24, len(V))))
                if k == 1 and prev2 >= o.max2 and not urgent:
                    break
                cand = [x for x in V[:32] if x[1] <= mi]
                extra = None
                if nm < 13 and nm in xrd and xrd[nm] + o.xlat <= mi:
                    extra = 'm'
                elif nc < nm and all(x[3] > cvrdy for x in V):
                    extra = 'c'
                if cand and (k == 0 or urgent or not extra) and (k == 0 or urgent or o.eager):
                    x = cand[0]
                    V.remove(x)
                    code.append(x[0])
                    if x[3] <= LASTA and all(y[3] > LASTA for y in V if y[4] == x[4]):
                        late.append(trp(x[4], 7))
                elif extra == 'm':
                    code.append(mx3(nm)); nm += 1
                elif extra == 'c':
                    code.append(cvt2(nc)); nc += 1
                else:
                    break
                t += 4; k += 1
            prev2 = prev2 + 1 if k == 2 else 0
        assert not late and not XL_ and not V
        print('left', 13 - nm, 13 - nc, 13 - nw)
        tail = [mx3(j) for j in range(nm, 13)] + [cvt2(j) for j in range(nc, 13)] + [iwr2(j) for j in range(nw, 13)]
        print('forced VALU', forced)
        code += lstamp(25)
        code.append(f's_setprio {o.p0}')
        code += [f's_sub_u32 s{S_LOOP}, s{S_LOOP}, 1', f's_cmp_eq_u32 s{S_LOOP}, 0', 's_cbranch_scc1 L_cin_done'] + tail
        ntail = len(tail) + 1
        def keep(x):
            t_ = x.text if isinstance(x, I) else x
            if isinstance(t_, tuple):
                return True
            if 'nopk' in o.dbg and t_.startswith('v_pk_mul_f16'):
                return False
            if 'nowf' in o.dbg and t_.startswith('ds_read_b128'):
                return False
            if 'nosm' in o.dbg and t_.startswith('v_smfmac'):
                return False
            return True
        code = [x for x in code if keep(x)]
        if 'bf' in o.dbg:
            code = [x.replace('x32_f16', 'x32_bf16').replace('x64_f16', 'x64_bf16') if isinstance(x, str) else x for x in code]
        cB = self.seq(code + ['s_branch L_cin_loop'])
        mark0 = len(self.P.static)
        bl = []
        if o.burn:
            bl = [f's_movk_i32 s{S_LOOP}, {o.burn // 2}', 'L_burn2:'] + [f'v_mfma_f32_16x16x32_f16 {vr(P + 4 * (k % 2), 4)}, {vr(WF + 4 * (k % 4), 4)}, {vr(Z + 4 * (k // 4), 4)}, 0' for k in range(32)]
            bl += [f's_sub_u32 s{S_LOOP}, s{S_LOOP}, 1', f's_cmp_lg_u32 s{S_LOOP}, 0', 's_cbranch_scc1 L_burn2']
        L = ['L_cin_done:', f's_mul_i32 s{S_U0}, s{S_WAVE}, 1536', f's_add_u32 s{S_U0}, s{S_U0}, {PART}',
             f'v_lshlrev_b32 v{Z + 4}, 5, v0', f'v_add_u32 v{Z + 4}, s{S_U0}, v{Z + 4}',
             f'ds_read_b128 {vr(P, 4)}, v{Z + 4}', f'ds_read_b128 {vr(P + 4, 4)}, v{Z + 4} offset:16'] + bl + final(S_F1, S_F2)[:-1]
        E = [f'v_subrev_u32 v{Z + 6}, s{S_U0}, v{vXi1}', f'v_lshrrev_b32 v{Z + 6}, 8, v{Z + 6}', f'v_lshrrev_b32 v{Z + 5}, 3, v0', f'v_cmp_gt_u32 vcc, v{Z + 6}, v{Z + 5}',
             f'v_min_u32 v{Z + 5}, v{Z + 5}, v{Z + 6}', f'v_lshlrev_b32 v{Z + 5}, 4, v{Z + 5}', f'v_add_u32 v{Z + 5}, s{S_RC}, v{Z + 5}',
             ] + [f'v_add_f32 v{P + a_}, v{P + a_}, v{P + b_}' for a_, b_ in ((0, 1), (2, 3), (4, 5), (6, 7), (0, 2), (4, 6), (0, 4))]
        E += [f'v_add_f32_dpp v{P}, v{P}, v{P} {ctl} row_mask:0xf bank_mask:0xf' for ctl in ('quad_perm:[1,0,3,2]', 'quad_perm:[2,3,0,1]', 'row_half_mirror')]
        L += interleave([f'v_add_f32_dpp v{Z}, v{Z}, v{Z} {ctl} row_mask:{rm} bank_mask:0xf' for ctl, rm in DPPS], E)
        L += [f'v_cndmask_b32 v{P}, v{Z}, v{P}, vcc', 's_bitset1_b32 vcc_hi, 31', 's_mov_b64 exec, vcc', f'ds_write_b32 v{Z + 5}, v{P}', 's_mov_b64 exec, -1']
        L += self.stamp(9) + self.stamp_flush() + self.probe('cend') + [f's_cmp_eq_u32 s{S_WAVE}, 0', 's_cbranch_scc1 L_cpub', 's_waitcnt lgkmcnt(0)', 's_barrier', 's_endpgm',
              'L_cpub:', f's_load_dword s{S_BOUT}, s[{S_BO}:{S_BO + 1}], 0'] + self.pubsrd() + [
              'v_lshlrev_b32 v6, 2, v0', f'v_add_u32 v2, {RC}, v6', 'v_add_u32 v4, 1024, v6',
              f's_mul_i32 s{S_T1}, s{S_MB}, 192', f's_add_u32 s{S_T1}, s{S_T1}, {13 * WSP}',
              'v_mov_b32 v13, -1', 's_mov_b32 exec_hi, 0xffff', f'buffer_store_dword v13, v6, {srd(SRD_WS)}, s{S_T1} offen sc1', 's_mov_b64 exec, 1',
              f'buffer_load_dword v250, v6, {srd(SRD_OUT)}, 0 offen', f'buffer_load_dword v251, v6, {srd(SRD_DBG)}, 0 offen offset:240 sc1', 's_mov_b64 exec, -1',
              f's_mul_i32 s{S_T0}, s{S_MB}, 3', f's_mul_i32 s{S_T2}, s{S_T0}, 3277', f's_lshr_b32 s{S_T2}, s{S_T2}, 16',
              f'v_add_u32 v7, s{S_T2}, v0', f's_mul_i32 s{S_T2}, s{S_T2}, 20', f's_add_u32 s{S_T2}, s{S_T2}, 20',
              f's_sub_u32 s{S_T2}, s{S_T2}, s{S_T0}', f's_min_u32 s{S_T2}, s{S_T2}, 3', f's_sub_u32 s{S_T0}, 3, s{S_T2}',
              f'v_mov_b32 v5, s{S_T0}', f'v_writelane_b32 v5, s{S_T2}, 0',
              f's_cmp_eq_u32 s{S_T0}, 0', f's_cselect_b32 s{S_T0}, 1, 3',
              'v_lshlrev_b32 v3, 4, v0', 's_mov_b32 exec_hi, 0xffff', 's_waitcnt vmcnt(0) lgkmcnt(0)', 's_barrier'] + self.probe('cend2') + ['ds_read_b32 v64, v2']
        L += (self.stamp(16) if o.diag else [])
        L += ['v_min_u32 v64, -2, v64'] if o.sent else []
        L += [f'buffer_store_dword v64, v6, {srd(SRD_WS)}, s{S_T1} offen sc1', f's_mov_b32 exec_lo, s{S_T0}', 's_mov_b32 exec_hi, 0', 's_branch L_pub']
        fin_ = self.seq(L)
        blk = self.P.static[mark0:]
        del self.P.static[mark0:]
        at = self.P.static.index(self.pub[-1]) + 1
        self.P.static[at:at] = blk + self.ldblk
        L = ['L_cslow:']
        for (ctl, rm) in (('row_shr:1', '0xf'), ('row_shr:2', '0xf'), ('row_shr:4', '0xf'), ('row_shr:8', '0xf'),
                          ('row_bcast:15', '0xa'), ('row_bcast:31', '0xc')):
            L.append(f'v_max_f32_dpp v{vM}, v{vM}, v{vM} {ctl} row_mask:{rm} bank_mask:0xf')
        L += [f'v_readlane_b32 s{S_U0}, v{vM}, 63', f's_mov_b32 s{S_HI}, 0',
              f's_lshr_b32 s{S_U0}, s{S_U0}, 23', f's_min_u32 s{S_U0}, s{S_U0}, {127 + 55}',
              f's_lshr_b32 s{S_U1}, s{S_IV}, 23', f's_sub_u32 s{S_U1}, s{S_U1}, 47', f's_lshr_b32 s{S_U1}, s{S_U1}, 1', f's_min_u32 s{S_U1}, s{S_U1}, 59',
              f's_sub_u32 s{S_U1}, 131, s{S_U1}', f's_max_u32 s{S_U0}, s{S_U0}, s{S_U1}',
              f's_sub_u32 s{S_U1}, {127 + 4 + 127}, s{S_U0}',
              f's_lshl_b32 s{S_U2}, s{S_U1}, 1', f's_sub_u32 s{S_U2}, s{S_U2}, 127',
              f's_sub_u32 s{S_G}, 254, s{S_U2}', f's_lshl_b32 s{S_G}, s{S_G}, 23',
              f'v_mov_b32 v{P}, s{S_G}', f'v_mul_f32 v{P + 1}, s{S_CG}, v{P}', f'v_mul_f32 v{P}, s{S_IV}, v{P}',
              f'v_readfirstlane_b32 s{S_F1}, v{P + 1}', f'v_readfirstlane_b32 s{S_F2}, v{P}',
              f's_lshl_b32 s{S_U1}, s{S_U1}, 23', f's_lshl_b32 s{S_U2}, s{S_U2}, 23']
        TS = P
        for j in range(13):
            L += [f'v_mul_f32 v{TS}, s{S_U1}, v{XR + 2 * j}', f'v_mul_f32 v{TS + 1}, s{S_U1}, v{XR + 2 * j + 1}',
                  f'v_mul_f32 v{TS + 2}, s{S_U2}, v{XR + 2 * j}', f'v_mul_f32 v{TS + 3}, s{S_U2}, v{XR + 2 * j + 1}',
                  f'v_cvt_pk_f16_f32 v{TS + 20 + j}, v{TS}, v{TS + 1}', f'v_cvt_pk_bf16_f32 v{TS + 4 + j}, v{TS + 2}, v{TS + 3}',
                  f'ds_write_b32 v{vIw}, v{TS + 20 + j} offset:{j * IMGP}', f'ds_write_b32 v{vXa}, v{TS + 4 + j} offset:{XOFF(2 * j)}']
        L += [f'v_mov_b32 v{TS}, s{S_U2}', f'v_cvt_pk_bf16_f32 v{TS}, v{TS}, v{TS}',
              's_mov_b32 exec_hi, 0', f'ds_write_b32 v{vXa}, v{TS} offset:{XOFF(26)}', 's_mov_b32 exec_hi, -1',
              's_waitcnt lgkmcnt(0)', 's_branch L_cconv']
        slow = self.seq(L)
        sdown = self.seq(self.sdown)
        cF = self.seq(self.first)
        traces = []
        for w in range(8):
            grp = w >> 2
            c2 = c2a + (c2g1 + (c2b if w == 4 else []) + c2g1d if grp else c2g0) + c2c
            it = lambda sl, first: cA + (slow if sl else []) + cB0 + (cF if first else cVM) + cB
            traces.append(PRE(w) + c2 + it(0, 1) + it(0, 0) + it(0, 0)[:-ntail] + fin_ + self.pub)
            if w in (0, 4):
                traces.append(PRE(w, sdown) + c2 + it(1, 1) + it(1, 0)[:-ntail] + fin_ + self.pub)
        return traces

    def build(self):
        pro = self.prologue()
        d = self.dnn()
        cs = self.cin()
        self.seq(['L_end:', 's_endpgm'])
        traces = [pro + c for c in d + cs] + self.extra_traces
        for t in traces:
            resolve_waits(t)
        for _ in range(2):
            for t in traces:
                resolve_hazards(t)
        hdr = open(os.path.join(os.path.dirname(os.path.abspath(__file__)), 'header.txt')).read()
        txt = hdr + f'; @launch grid=(256,1,1) block=(512,1,1) lds={LDS_TOTAL}\n'
        txt += f'''.amdgcn_target "amdgcn-amd-amdhsa--gfx950"
{DOC}.text
.globl {KNAME}
.p2align 8
.type {KNAME},@function
{KNAME}:
'''
        body_ = self.P.emit()
        if self.opt.align:
            for lab in ('L_dnn_loop0:', 'L_dnn_loop1:', 'L_cin_loop:', 'L_epi:'):
                pad = '  s_nop 0\n' if self.opt.align > 100 else ''
                body_ = body_.replace(lab + '\n', f'.p2align {self.opt.align % 100}\n{pad}{lab}\n')
        if self.opt.cwalk:
            lines = body_.split('\n')
            i0, i1 = lines.index('L_w2:'), lines.index('L_cslow:')
            out, k, cnt = lines[:i0], 0, 0
            seg = lines[i0:i1]
            prot = 0
            for n_, l in enumerate(seg):
                out.append(l)
                t = l.strip()
                cnt += 1
                inmain = 'L_novm:' in seg[:n_ + 1]
                nxt = seg[n_ + 1].strip() if n_ + 1 < len(seg) else ''
                ok = t.endswith(':') or (cnt >= self.opt.cwalk and ('mfma' in t and nxt.startswith('v_pk') if inmain else t.startswith(('ds_', 'v_perm', 'v_cvt_pk'))))
                if ok and t not in ('L_cin_loop:', 'L_cconv:', 'L_scaled:'):
                    out += [f'L_wp{k}:', f'  s_cbranch_execz L_wp{k + 1}']
                    k += 1; cnt = 0
            j = lines.index('L_first:')
            rest = lines[i1:j + 1] + [f'L_wp{k}:', '  s_cbranch_execz L_wret'] + lines[j + 1:]
            body_ = '\n'.join(out + rest)
            print('walk pads', k + 1)
            self.npads = k + 1
            for q_ in range(4):
                body_ = body_.replace(f'L_WENTRY{q_}', f'L_wp{q_ * (k + 1) // 4}')
        if self.opt.fix:
            body_ = fixalign.fix(body_ + 'L_tables:\n', self.opt.fix)[:-len('L_tables:\n')]
        txt += body_
        tb = self.tables()
        assert len(tb) == 16 * 256
        txt += '.p2align 8\nL_tables:\n' + ''.join('.long ' + ', '.join(f'{x:#x}' for x in tb[i:i + 8]) + '\n' for i in range(0, len(tb), 8))
        txt += f'''.section .rodata,"a"
.p2align 6
.amdhsa_kernel {KNAME}
  .amdhsa_next_free_vgpr 256
  .amdhsa_next_free_sgpr 102
  .amdhsa_accum_offset 256
  .amdhsa_group_segment_fixed_size 0
  .amdhsa_kernarg_size 88
  .amdhsa_user_sgpr_count 2
  .amdhsa_user_sgpr_kernarg_segment_ptr 1
  .amdhsa_system_sgpr_workgroup_id_x 1
  .amdhsa_float_denorm_mode_32 {self.opt.denorm}
.end_amdhsa_kernel
'''
        return txt


def main():
    ap = argparse.ArgumentParser()
    ap.add_argument('-o', default='standalone__deep_cross_xdeepfm__recsys.s')
    ap.add_argument('--stamps', action='store_true')
    ap.add_argument('--nodma', action='store_true')
    ap.add_argument('--cpf', type=int, default=1)
    ap.add_argument('--coop', type=int, default=0)
    ap.add_argument('--coopw', type=int, default=2)
    ap.add_argument('--tbpos', type=int, default=0)
    ap.add_argument('--dbar3', type=int, default=1)
    ap.add_argument('--tlb', type=int, default=0)
    ap.add_argument('--tlb2', type=int, default=1)
    ap.add_argument('--itst', type=int, default=0)
    ap.add_argument('--diag', type=int, default=0)
    ap.add_argument('--dbg', default='')
    ap.add_argument('--lead3', type=int, default=1)
    ap.add_argument('--morder', type=int, default=0)
    ap.add_argument('--etlb', type=int, default=0)
    ap.add_argument('--lateb', type=int, default=0)
    ap.add_argument('--wfl', default='')
    ap.add_argument('--xfl', default='')
    ap.add_argument('--tag', type=int, default=0)
    ap.add_argument('--idxfirst', type=int, default=1)
    ap.add_argument('--bpos', type=int, default=2)
    ap.add_argument('--sigat', type=int, default=4)
    ap.add_argument('--epx', type=int, default=1)
    ap.add_argument('--denorm', type=int, default=3)
    ap.add_argument('--mprio', type=int, default=0)
    ap.add_argument('--swap', type=int, default=0)
    ap.add_argument('--bov', type=int, default=1)
    ap.add_argument('--rfirst', type=int, default=0)
    ap.add_argument('--g1x', type=int, default=0)
    ap.add_argument('--ldsred', type=int, default=0)
    ap.add_argument('--csnake', type=int, default=0)
    ap.add_argument('--cswap', type=int, default=0)
    ap.add_argument('--align', type=int, default=0)
    ap.add_argument('--c2', type=int, default=0)
    ap.add_argument('--d1', type=int, default=0)
    ap.add_argument('--cstr', type=int, default=3)
    ap.add_argument('--bearly', type=int, default=1)
    ap.add_argument('--w2late', type=int, default=1)
    ap.add_argument('--aov', type=int, default=5)
    ap.add_argument('--upos', type=int, default=1)
    ap.add_argument('--calt', type=int, default=1)
    ap.add_argument('--pfpos', type=int, default=1)
    ap.add_argument('--wlate', type=int, default=0)
    ap.add_argument('--dbar2', type=int, default=0)
    ap.add_argument('--dbar', type=int, default=0)
    ap.add_argument('--pfw', type=int, default=0)
    ap.add_argument('--pfx', type=int, default=0)
    ap.add_argument('--pfx0', type=int, default=4)
    ap.add_argument('--pfs', type=int, default=13)
    ap.add_argument('--dcoopx', type=int, default=1)
    ap.add_argument('--dcx0', type=int, default=0)
    ap.add_argument('--dcxpos', type=int, default=-1)
    ap.add_argument('--pfe0', type=int, default=2)
    ap.add_argument('--pfne', type=int, default=13)
    ap.add_argument('--prio47', type=int, default=0)
    ap.add_argument('--lookahead', type=int, default=5)
    ap.add_argument('--nz', type=int, default=6)
    ap.add_argument('--nwf', type=int, default=8)
    ap.add_argument('--hiat', type=int, default=4)
    ap.add_argument('--wmerge', type=int, default=0)
    ap.add_argument('--gapv', type=int, default=6)
    ap.add_argument('--slow', type=int, default=0)
    ap.add_argument('--cyc', default='')
    ap.add_argument('--rshare', type=int, default=1)
    ap.add_argument('--dwalk', type=int, default=0)
    ap.add_argument('--band', type=int, default=0)
    ap.add_argument('--absol', type=int, default=0)
    ap.add_argument('--rev', type=int, default=1)
    ap.add_argument('--xg1', type=int, default=0)
    ap.add_argument('--bou', type=int, default=1)
    ap.add_argument('--sjw', type=int, default=7)
    ap.add_argument('--cwalk', type=int, default=0)
    ap.add_argument('--few', default='')
    ap.add_argument('--econv', type=int, default=0)
    ap.add_argument('--nsh', type=int, default=16)
    ap.add_argument('--sh0', type=int, default=5)
    ap.add_argument('--dirt', type=int, default=0)
    ap.add_argument('--mrg', type=int, default=0)
    ap.add_argument('--g1p', type=int, default=0)
    ap.add_argument('--sa', type=int, default=4)
    ap.add_argument('--sbg', type=int, default=16)
    ap.add_argument('--bwat', type=int, default=0)
    ap.add_argument('--x2n', type=int, default=8)
    ap.add_argument('--sent', type=int, default=1)
    ap.add_argument('--spec', type=int, default=0)
    ap.add_argument('--probe', default='')
    ap.add_argument('--skew', type=int, default=0)
    ap.add_argument('--fix', type=int, default=64)
    ap.add_argument('--walk', type=int, default=0)
    ap.add_argument('--eal', type=int, default=3)
    ap.add_argument('--eoff', type=int, default=0)
    ap.add_argument('--ct', default='')
    ap.add_argument('--rot', type=int, default=13)
    ap.add_argument('--i0', type=int, default=1)
    ap.add_argument('--i1', type=int, default=10)
    ap.add_argument('--burn', type=int, default=0)
    ap.add_argument('--lord', type=int, default=1)
    ap.add_argument('--lprio', type=int, default=0)
    ap.add_argument('--rsp', type=int, default=0)
    ap.add_argument('--tch', type=int, default=0)
    ap.add_argument('--tf', type=int, default=4)
    ap.add_argument('--toff', type=int, default=0)
    ap.add_argument('--tw0', type=int, default=12)
    ap.add_argument('--xat', type=int, default=0)
    ap.add_argument('--pf1', type=int, default=1)
    ap.add_argument('--lpf', type=int, default=20)
    ap.add_argument('--lpfit', type=int, default=6)
    ap.add_argument('--x1m', type=int, default=10)
    ap.add_argument('--bgap', type=int, default=6)
    ap.add_argument('--cprio', type=int, default=1)
    ap.add_argument('--x1n', type=int, default=5)
    ap.add_argument('--w0', type=int, default=2)
    ap.add_argument('--dbar1', type=int, default=1)
    ap.add_argument('--aon', type=int, default=2)
    ap.add_argument('--cbar', type=int, default=0)
    ap.add_argument('--vmpos', type=int, default=2)
    ap.add_argument('--il2', type=int, default=0)
    ap.add_argument('--p1', type=int, default=0)
    ap.add_argument('--pm', type=int, default=2)
    ap.add_argument('--cbov', type=int, default=3)
    ap.add_argument('--p0', type=int, default=0)
    ap.add_argument('--max2', type=int, default=2)
    ap.add_argument('--eager', type=int, default=0)
    ap.add_argument('--cst', type=int, default=0)
    ap.add_argument('--x0', type=int, default=60)
    ap.add_argument('--xlat', type=int, default=18)
    ap.add_argument('--xper', type=int, default=3)
    ap.add_argument('--xc0', type=int, default=0)
    ap.add_argument('--n3', type=int, default=1)
    ap.add_argument('--xi0', type=int, default=1)
    ap.add_argument('--pfsat', type=int, default=0)
    ap.add_argument('--g1prio', type=int, default=0)
    ap.add_argument('--xearly', type=int, default=1)
    ap.add_argument('--cpfd', type=int, default=4)
    ap.add_argument('--cla', type=int, default=1)
    ap.add_argument('--war', type=int, default=1)
    opt = ap.parse_args()
    resolve_waits.dbg = 'dup' in opt.dbg
    g = Gen(opt)
    txt = g.build()
    open(opt.o, 'w').write(txt)
    print('wrote', opt.o, len(txt), 'bytes')


if __name__ == '__main__':
    main()
```

```python
import sys, os, struct, argparse
sys.path.insert(0, os.path.dirname(os.path.abspath(__file__)))
from asmlib import I, WaitTag, Touch, Prog, resolve_waits, resolve_hazards
import cin16, fixalign

KNAME = 'standalone__deep_cross_xdeepfm__recsys_kernel'
LDS_TOTAL = 163840

XSLOT = 320 * 128
WR = 3 * XSLOT + 8192
WSLOT = 32 * 256
L_BIAS = 3 * XSLOT
L_W2 = L_BIAS + 256
RB = L_W2 + 256
assert WR % 32768 == 0 and WR + 4 * WSLOT <= LDS_TOTAL
WSP = 16640
assert RB + 2560 <= LDS_TOTAL

W2P = 1536
SSZ = 677 * 64
FRS = 0
V3OFF = 0
A1 = 6144
FR = A1
FRL = FR + 33 * 1024
A3 = FRL + 2048
SG = A3
A2 = SG + SSZ
SQ = A2
V2S = SQ + SSZ
L_WCO = V2S + 832
L_FLG = L_WCO + 192
L_MX = L_FLG + 16
RC = L_FLG + 64
XB = V2S + 2496
XPP = 1056
XBSZ = 3 * XPP + 7 * 128
IMG = A3
IMGP = 160
IMGSZ = 33 * IMGP
XB2 = IMG + 8 * IMGSZ
PART = XB2 + 8 * XBSZ
XOFF = lambda f: (f & 3) * XPP + (f >> 2) * 128
assert RC + 512 <= V2S + 1664
assert XB + 8 * XBSZ <= LDS_TOTAL and XB % 16 == 0 and A2 % 64 == 0 and A3 % 64 == 0 and L_WCO % 16 == 0 and V2S % 64 == 0
assert PART + 8 * 1536 <= V2S + 832 and IMGSZ % 32 == 0 and XB2 % 16 == 0

S_WAVE = 3
S_IDX, S_TAB, S_CIN, S_WCO, S_W1, S_B1, S_W2, S_BO, S_OUT, S_DBG, S_WS = 4, 6, 8, 10, 12, 14, 16, 18, 20, 22, 24
S_MB, S_R = 26, 27
SRD_IDX, SRD_TAB, SRD_CIN, SRD_WCO, SRD_W, SRD_B1, SRD_W2, SRD_OUT, SRD_WS, SRD_DBG = 28, 32, 36, 40, 44, 48, 52, 56, 60, 64
S_T0, S_T1, S_T2, S_T3 = 68, 69, 70, 71
S_LOOP, S_IDXOFF, S_WSOFF, S_WMB, S_XM0, S_N0, S_C0, S_CW, S_BOUT, S_TW = 72, 73, 74, 75, 76, 77, 78, 79, 80, 81
S_EX = 82
S_GRP, S_RC = 84, 85
S_ST = 86
S_M26, S_MASK = 90, 92
S_SAMP, S_STG, S_STG9, S_TGT = 94, 95, 96, 97
S_M26B = 98
S_GW = 100
S_TAGT = 0
S_TAG = 1
S_PW = 101
S_PX = 77
S_PXE = 73

GELU_C0 = -2.0 * 0.7978845608028654 * 1.4426950408889634
GELU_C1 = GELU_C0 * 0.044715


def f32hex(x):
    return '0x%08x' % struct.unpack('<I', struct.pack('<f', x))[0]


def vr(a, n):
    return f'v[{a}:{a + n - 1}]' if n > 1 else f'v{a}'


def srd(a):
    return f's[{a}:{a + 3}]'


def flat(gs):
    res = []
    for c in gs:
        if isinstance(c, (tuple, list)):
            res += flat(c)
        else:
            res.append(c)
    return res


def interleave(a, b):
    out = []
    ia = ib = 0
    na, nb = len(a), len(b)
    while ia < na or ib < nb:
        if ib >= nb or (ia < na and ia * nb <= ib * na):
            out.append(a[ia]); ia += 1
        else:
            out.append(b[ib]); ib += 1
    return out


SLOTS = []
for j in range(0, 26, 2):
    for s in range(0, 14 if j <= 12 else 13):
        SLOTS.append((j, (j + s) % 26))
assert len(SLOTS) == 176
DUP_SLOT = SLOTS.index((12, 25))
assert all((d * 2521) >> 16 == d // 26 for d in range(800))
assert all((d * 10923) >> 16 == d // 6 for d in range(64))
assert all((d * 5042) >> 16 == d // 13 for d in range(170))
assert all((d * 3277) >> 16 == d // 20 for d in range(264))


DOC = '''; ---------------------------------------------------------------------------------------------
; Generated by tools/gen23.py (own generator; waits / hazard nops derived from instruction traces).
;
;       U[i,j,k] = sum_h W2[h,i,j] V3[h,k]
;   Both quadratic forms use the 351 distinct products x_j x_k (j<=k) with symmetrised weights, evaluated by
;   DNN branch: full bf16 GEMM + bias + tanh-GELU (x / (1 + exp(-2u))) + dot with w_dnn2.
;   their own producer) and counters in d_debug; the last arriver of a row block adds up and writes d_out.
;   L_tables holds constant per-lane LDS address tables (functions of the lane id only).
; ---------------------------------------------------------------------------------------------
'''


class Gen:
    def __init__(self, opt):
        self.opt = opt
        self.P = Prog()

    def seq(self, lines):
        return [self.P.add(l) for l in flat(lines)]

    def build_srd(self, dst, ptr, size):
        return [f's_mov_b32 s{dst}, s{ptr}', f's_and_b32 s{dst + 1}, s{ptr + 1}, 0xffff',
                f's_mov_b32 s{dst + 2}, {size}', f's_mov_b32 s{dst + 3}, 0x20000']

    def stamp(self, slot):
        if not self.opt.stamps or (self.opt.few and slot not in [int(x) for x in self.opt.few.split(',')]):
            return []
        return [f's_memtime s[{S_ST}:{S_ST + 1}]', f's_memrealtime s[{S_ST + 2}:{S_ST + 3}]', 's_waitcnt lgkmcnt(0)',
                f'v_writelane_b32 v252, s{S_ST}, {slot}', f'v_writelane_b32 v253, s{S_ST + 2}, {slot}']

    def probe(self, name, wave=4):
        if self.opt.cyc:
            a_, b_, _ = self.opt.cyc.split(',')
            return ['s_memtime s[86:87]', 's_waitcnt lgkmcnt(0)'] if name == a_ else ['s_memtime s[88:89]', 's_waitcnt lgkmcnt(0)'] if name == b_ else []
        if self.opt.probe != name:
            return []
        return ['s_memrealtime s[88:89]', 's_waitcnt lgkmcnt(0)']

    def stamp_flush(self):
        if not self.opt.stamps:
            return []
        L = self.build_srd(SRD_WS, S_WS, 0x10000000)
        L += [f's_lshl_b32 s{S_C0}, s2, 3', f's_add_u32 s{S_C0}, s{S_C0}, s{S_WAVE}',
              f's_lshl_b32 s{S_C0}, s{S_C0}, 8', f's_add_u32 s{S_C0}, s{S_C0}, 0x100000',
              'v_lshlrev_b32 v254, 3, v0', 's_mov_b32 exec_hi, 0',
              f'buffer_store_dwordx2 v[252:253], v254, {srd(SRD_WS)}, s{S_C0} offen', 's_mov_b32 exec_hi, -1']
        return L

    def stamp0(self):
        if not self.opt.stamps:
            return []
        return ['v_mov_b32 v252, 0xcdcdcdcd', 'v_mov_b32 v253, 0xcdcdcdcd',
                f'v_writelane_b32 v252, s{S_ST}, 0', f'v_writelane_b32 v253, s{S_ST + 2}, 0'] + self.stamp(15)

    def tlb2(self, t):
        L = self.build_srd(SRD_WS, S_WS, 0x10000000) + self.build_srd(SRD_OUT, S_OUT, 8192) + self.build_srd(SRD_DBG, S_DBG, 256)
        L += [f's_load_dword s{S_BOUT}, s[{S_BO}:{S_BO + 1}], 0', f'v_mov_b32 v{t}, 0', 's_mov_b64 exec, 1',
              f's_mov_b32 s{S_TW}, 0x80000',
              f'buffer_load_dword v{t + 1}, v{t}, {srd(SRD_WS)}, s{S_TW} offen',
              f'buffer_load_dword v{t + 2}, v{t}, {srd(SRD_OUT)}, 0 offen',
              's_mov_b64 exec, -1']
        return L

    def tlb1(self, vtmp, vdst):
        if not self.opt.etlb:
            return self.build_srd(SRD_TAB, S_TAB, 100000 * 128)
        return self.build_srd(SRD_TAB, S_TAB, 100000 * 128) + [
            f'v_mov_b32 v{vtmp}, s{S_BOUT}', f'buffer_load_dword v{vdst}, v{vtmp}, {srd(SRD_TAB)}, 0 offen']

    def gettag(self, lab, t, VT):
        return [f's_cmp_lg_u32 s{S_WAVE}, 0', f's_cbranch_scc1 {lab}',
                f's_memrealtime s[{S_TAGT}:{S_TAGT + 1}]'] + self.build_srd(SRD_DBG, S_DBG, 256) + [
                f's_lshl_b32 s{S_TW}, s{S_MB}, 2', f'v_mov_b32 v{t}, s{S_TW}', 's_waitcnt lgkmcnt(0)',
                f's_or_b32 s{S_TAG}, s{S_TAGT}, 1', f'v_mov_b32 v{VT}, s{S_TAG}', f'v_mov_b32 v{VT + 1}, 0',
                's_mov_b64 exec, 1',
                f'buffer_atomic_cmpswap v[{VT}:{VT + 1}], v{t}, {srd(SRD_DBG)}, 0 offen offset:128 sc0',
                's_mov_b64 exec, -1', f'{lab}:']

    def prologue(self):
        L = []
        if self.opt.stamps:
            L += [f's_memtime s[{S_ST}:{S_ST + 1}]', f's_memrealtime s[{S_ST + 2}:{S_ST + 3}]']
        L += ['s_cmp_ge_u32 s2, 256', 's_cbranch_scc1 L_end',
              's_load_dwordx16 s[4:19], s[0:1], 0',
              's_load_dwordx4 s[20:23], s[0:1], 64',
              's_load_dwordx2 s[24:25], s[0:1], 80',
              'v_lshrrev_b32 v1, 6, v0']
        if self.opt.cpf:
            L += [f's_getpc_b64 s[{S_MASK}:{S_MASK + 1}]', 'L_pc:',
                  f's_and_b32 s{S_T0}, s2, 0xf8', f'v_add_u32 v2, s{S_T0}, v1', 'v_and_b32 v3, 32, v0', 'v_lshl_add_u32 v2, v3, 3, v2', 'v_lshlrev_b32 v2, 7, v2',
                  f'v_min_u32 v2, L_end-L_pc, v2',
                  f'v_mov_b32 v3, s{S_MASK + 1}',
                  f'v_add_co_u32 v2, vcc, s{S_MASK}, v2', 'v_addc_co_u32 v3, vcc, 0, v3, vcc',
                  'global_load_dword v251, v[2:3], off']
        if self.opt.skew:
            L += ['s_memtime s[86:87]' if self.opt.cyc else 's_memrealtime s[86:87]', 's_mov_b32 s88, 0']
        L += ['v_and_b32 v0, 63, v0',
              f'v_readfirstlane_b32 s{S_WAVE}, v1',
              f's_and_b32 s{S_T0}, s2, 7', f's_lshr_b32 s{S_T1}, s2, 3', f's_xor_b32 s{S_T1}, s{S_T1}, {31 * self.opt.rev}',
              f's_and_b32 s{S_BOUT}, s2, 0xf8', f's_add_u32 s{S_BOUT}, s{S_BOUT}, s{S_WAVE}', f's_lshl_b32 s{S_BOUT}, s{S_BOUT}, {self.opt.etlb}',
              f's_min_u32 s{S_T2}, s{S_T0}, 1', f's_add_u32 s{S_T3}, s{S_T1}, s{S_T2}',
              f's_cmp_ge_u32 s{S_T3}, 22', 's_cbranch_scc1 L_cin',
              f's_mul_i32 s{S_T0}, s{S_T0}, 21', f's_add_u32 s{S_T0}, s{S_T0}, s{S_T3}',
              ]
        if self.opt.band == 0:
            L += [f's_mul_i32 s{S_MB}, s{S_T0}, 5042', f's_lshr_b32 s{S_MB}, s{S_MB}, 16',
                  f's_mul_i32 s{S_T1}, s{S_MB}, 13', f's_sub_u32 s{S_R}, s{S_T0}, s{S_T1}']
        else:
            assert all((d * 9363) >> 16 == d // 7 for d in range(91)) and all((d * 10923) >> 16 == d // 6 for d in range(78))
            L += [f's_sub_u32 s{S_T1}, 168, s{S_T0}', f's_cmp_lt_u32 s{S_T0}, 91', f's_cselect_b32 s{S_T0}, s{S_T0}, s{S_T1}',
                  f's_cselect_b32 s{S_T1}, 0, 1560', f's_cselect_b32 s{S_T2}, 7, 6', f's_cselect_b32 s{S_R}, 0, 7', f's_add_u32 s{S_T1}, s{S_T1}, 9363',
                  f's_mul_i32 s{S_MB}, s{S_T0}, s{S_T1}', f's_lshr_b32 s{S_MB}, s{S_MB}, 16', f's_mul_i32 s{S_T1}, s{S_MB}, s{S_T2}',
                  f's_add_u32 s{S_R}, s{S_R}, s{S_T0}', f's_sub_u32 s{S_R}, s{S_R}, s{S_T1}']
        return self.seq(L)

    def dnn(self):
        o = self.opt
        vW = [1, 2, 3, 4]
        vX = [[5, 6], [7, 8]]
        vPa, vPc = 9, 10
        WF, XA, ACC = 16, 48, 88
        W2F = WF
        KC0, KC1, KONE = 12, 14, 248
        SUMP, GT = 32, 52
        vIdxOff, vCh, vWD, vBL = 1, [2, 3], [4, 5], 11
        ST, VO = 16, 56
        T = 100
        g, i4, q = T + 16, T + 17, T + 18
        PI = T + 8

        def acc(tn, tm):
            return ACC + (tm * 4 + tn) * 4

        def small(srd_, dst):
            return [f's_mov_b32 m0, {dst}', 's_mov_b64 exec, 0xffff',
                    I(f'buffer_load_dwordx4 v{vBL}, {srd(srd_)}, s{S_N0} offen lds', tag='BIAS'), 's_mov_b64 exec, -1']
        L = [f's_lshl_b32 s{S_N0}, s{S_R}, 8', f's_mul_i32 s{S_T3}, s{S_MB}, 320',
             f'v_lshrrev_b32 v{g}, 4, v0', f'v_lshlrev_b32 v{vBL}, 4, v0', f's_and_b32 s{S_CW}, s{S_WAVE}, 3',
             f's_cmp_lt_u32 s{S_WAVE}, 4', 's_cbranch_scc1 L_cmp']
        c0 = self.seq(L)
        self.ldat = len(self.P.static)
        PI = T

        RG, CG = S_T0, S_T1
        L = ['L_cmp:', f's_mul_i32 s{S_T2}, s{S_WAVE}, 13', f'v_min_u32 v{q}, 12, v0', f'v_add_u32 v{q}, s{S_T2}, v{q}',
             f'v_lshrrev_b32 v{i4}, 1, v{q}', f'v_mul_u32_u24 v{i4}, 96, v{i4}', f'v_lshl_add_u32 v{q}, v{q}, 2, v{i4}',
             f's_mul_i32 s{S_C0}, s{S_R}, 25', f's_min_u32 s{S_C0}, s{S_C0}, 294',
             f's_add_u32 s{S_C0}, s{S_C0}, s{S_T3}', f's_mul_i32 s{S_C0}, s{S_C0}, 104', 's_waitcnt lgkmcnt(0)']
        ct = [int(x) for x in o.ct + o.ct2]
        L += self.build_srd(SRD_IDX, S_IDX, 4096 * 104)
        if ct:
            L += [f'buffer_load_dwordx4 {vr(PI, 4)}, v{q}, {srd(SRD_IDX)}, s{S_C0} offen']
        if ct and max(ct) > 3:
            L += [f'buffer_load_dwordx4 {vr(PI + 4, 4)}, v{q}, {srd(SRD_IDX)}, s{S_C0} offen offset:16']
        L += self.tlb1(T + 14, T + 15)
        touch = [x for k in ct for x in (f'v_lshlrev_b32 v{PI + k}, 7, v{PI + k}', f'buffer_load_dword v{acc(0, 7) + k}, v{PI + k}, {srd(SRD_TAB)}, 0 offen')]
        touch, touch2 = touch[:2 * len(o.ct)], touch[2 * len(o.ct):]
        L += self.build_srd(SRD_B1, S_B1, 3328) + small(SRD_B1, L_BIAS)
        if o.ew:
            L += self.build_srd(SRD_W, S_W1, 1664 * 3328) + [f's_lshl_b32 s{S_T2}, s{S_MB}, 2', f's_add_u32 s{S_T2}, s{S_T2}, s{S_WAVE}', f's_add_u32 s{S_T2}, s{S_T2}, {o.ew0 * 32}',
                  f's_mul_i32 s{S_T2}, s{S_T2}, 3328', f's_add_u32 s{S_T2}, s{S_T2}, s{S_N0}', f's_mov_b32 s{S_TW}, {52 * 3328}',
                  f'v_lshrrev_b32 v{q}, 1, v0', f'v_mul_lo_u32 v{q}, s{S_TW}, v{q}', f'v_and_b32 v{i4}, 1, v0', f'v_lshl_add_u32 v{q}, v{i4}, 7, v{q}',
                  f'v_add_u32 v{T + 12}, s{S_T2}, v{q}']
            ewl = [f's_mov_b64 exec, {(1 << (2 * o.ew)) - 1}', f'buffer_load_dword v251, v{T + 12}, {srd(SRD_W)}, 0 offen', 's_mov_b64 exec, -1']
            if o.ewat == 0:
                L += ewl
            elif o.ewat == 1:
                touch = touch + ewl
            else:
                touch2 = touch2 + ewl
        L += self.stamp0()
        L += [f's_and_b32 s{RG}, s{S_WAVE}, 1', f's_lshr_b32 s{CG}, s{S_WAVE}, 1',
              f'v_bfe_u32 v{i4}, v0, 2, 2', f'v_lshl_add_u32 v{q}, v{g}, 3, v{i4}', f'v_lshlrev_b32 v{q}, 8, v{q}',
              f'v_bfe_u32 v{i4}, v0, 2, 3', f's_lshl_b32 s{S_T2}, s{CG}, 2', f'v_xor_b32 v{i4}, s{S_T2}, v{i4}',
              f'v_lshl_add_u32 v{q}, v{i4}, 5, v{q}', f'v_and_b32 v{i4}, 3, v0', f'v_lshl_add_u32 v{q}, v{i4}, 3, v{q}',
              f'v_add_u32 v{vW[0]}, {WR}, v{q}']
        L += [f'v_xor_b32 v{vW[tn]}, {32 * tn}, v{vW[0]}' for tn in range(1, 4)]
        L += [f's_lshl_b32 s{S_T2}, s{CG}, 7', f's_add_u32 s{S_T2}, s{S_T2}, {L_BIAS}', f'v_lshlrev_b32 v{q}, 3, v{g}', f'v_add_u32 v{vPa}, s{S_T2}, v{q}',
              f'v_and_b32 v{q}, 15, v0', f'v_lshlrev_b32 v{q}, 7, v{q}',
              f'v_bfe_u32 v{i4}, v0, 1, 3', f'v_xor_b32 v{i4}, v{i4}, v{g}', f'v_lshl_add_u32 v{q}, v{i4}, 4, v{q}',
              f's_mul_i32 s{S_T2}, s{RG}, 20480', f'v_add_u32 v{vX[0][0]}, s{S_T2}, v{q}', f'v_xor_b32 v{vX[1][0]}, 64, v{vX[0][0]}',
              f'v_add_u32 v{vX[0][1]}, {2 * XSLOT}, v{vX[0][0]}', f'v_add_u32 v{vX[1][1]}, {2 * XSLOT}, v{vX[1][0]}',
              f's_mul_i32 s{S_T2}, s{S_WAVE}, 640', f's_add_u32 s{S_T2}, s{S_T2}, {RB}',
              f'v_and_b32 v{q}, 15, v0', f'v_lshlrev_b32 v{q}, 2, v{q}', f'v_add_u32 v{q}, s{S_T2}, v{q}',
              f'v_lshrrev_b32 v{i4}, 5, v0', f'v_lshl_add_u32 v{q}, v{i4}, 6, v{q}', f'v_bfe_u32 v{i4}, v0, 4, 1', f'v_lshl_add_u32 v{vPc}, v{i4}, 7, v{q}',
              f's_mov_b32 s{S_LOOP}, 0',
              f'v_mov_b32 v{KC0}, {f32hex(GELU_C0)}', f'v_mov_b32 v{KC0 + 1}, {f32hex(GELU_C0)}',
              f'v_mov_b32 v{KC1}, {f32hex(GELU_C1)}', f'v_mov_b32 v{KC1 + 1}, {f32hex(GELU_C1)}']

        def pkreads(off, dst):
            return [f'ds_read_b64 {vr(dst + 4 * tn + 2, 2)}, v{vPa} offset:{off + 32 * tn}' for tn in range(4)]

        def unp(dst):
            c = []
            for tn in range(4):
                r = dst + 4 * tn
                c += [f'v_lshlrev_b32 v{r}, 16, v{r + 2}', f'v_and_b32 v{r + 1}, 0xffff0000, v{r + 2}',
                      f'v_lshlrev_b32 v{r + 2}, 16, v{r + 3}', f'v_and_b32 v{r + 3}, 0xffff0000, v{r + 3}']
            return c
        L += touch + self.stamp(6)
        BI = [WaitTag(vm_tags=['BIAS'])] + pkreads(0, acc(0, 9)) + unp(acc(0, 9)) + [f'v_mov_b64 {vr(acc(0, 8) + r, 2)}, {vr(acc(0, 9) + r, 2)}' for r in range(0, 16, 2)]

        def rX(p, k):
            xs = p % 3
            return f'ds_read_b128 {vr(XA + 4 * (k % 10), 4)}, v{vX[k % 2][xs // 2]} offset:{(xs % 2) * XSLOT + (k // 2) * 2048}'

        def rW(tn):
            return [f'ds_read_b64_tr_b16 {vr(WF + 16 * par + 4 * tn + 2 * rd, 2)}, v{vW[tn]} offset:{par * WSLOT + rd * 1024}' for par in range(2) for rd in range(2)]
        tog = lambda tn: f'v_xor_b32 v{vW[tn]}, {2 * WSLOT}, v{vW[tn]}'

        def dec(gi):
            G, tn, a_, par = gi // 16, (gi // 4) % 4, (gi // 2) % 2, gi % 2
            if o.bou:
                par ^= a_ ^ (G == 4)
                a_ ^= tn & 1
            return G, tn, a_, par
        lastx = {4 * dec(gi)[0] + 2 * dec(gi)[2] + dec(gi)[3]: gi for gi in range(80)}

        def mf(gi, first=False):
            G, tn, a_, par = dec(gi)
            d = acc(tn, 2 * G + a_)
            if first and gi % 2 == 0 and G < 4:
                return f'v_mfma_f32_16x16x32_bf16 {vr(d, 4)}, {vr(WF + 16 * par + 4 * tn, 4)}, {vr(XA + 4 * ((4 * G + 2 * a_ + par) % 10), 4)}, {vr(acc(tn, 9), 4)}'
            return f'v_mfma_f32_16x16x32_bf16 {vr(d, 4)}, {vr(WF + 16 * par + 4 * tn, 4)}, {vr(XA + 4 * ((4 * G + 2 * a_ + par) % 10), 4)}, {vr(d, 4)}'
        SH = [11, 248, 249, 250]
        nsh = o.nsh

        def shadow():
            c = []
            for b0 in range(0, nsh, 4):
                E = [(ACC + e, SH[e - b0]) for e in range(b0, min(b0 + 4, nsh))]
                for op in ('v_mul_f32 T, X, X', f'v_fma_f32 T, T, v{KC1}, v{KC0}', 'v_mul_f32 T, T, X', 'v_exp_f32 T, T', 'v_add_f32 T, 1.0, T', 'v_rcp_f32 T, T', 'v_mul_f32 X, X, T'):
                    c += [(op.replace('T', f'v{t}').replace('X', f'v{x}'), 8 if ('exp' in op or 'rcp' in op) else 4) for x, t in E]
            return c

        def cpair(p, kind, loopend=False):
            S = []
            ev = {}
            if kind == 'first':
                g_ = o.sbg + 1
                for k in range(2 * o.sa, 10):
                    ev[g_] = rX(p, k); g_ += 1
            else:
                for i_, x in enumerate(rW(3)[2:]):
                    ev[i_] = x
                for i_, k in enumerate(range(6, 10)):
                    ev[2 + i_] = rX(p, k)
            for k in range(10):
                g_ = lastx[k]
                while g_ in ev or (kind == 'first' and g_ <= o.sbg):
                    g_ += 1
                ev[g_] = rX(p, k + 10)
            BG = 48 + o.bgap if o.bou else 46 + o.bgap
            if kind != 'last':
                ev[BG], ev[BG + 1] = rX(p + 1, 0), rX(p + 1, 1)
                for k in range(2, 6):
                    ev[lastx[10 + k]] = rX(p + 1, k)
                for tn in range(4):
                    for i_, x in enumerate(rW(tn)):
                        if 66 + 4 * tn + i_ < 80:
                            ev[66 + 4 * tn + i_] = x
            sh_ = shadow() if kind == 'last' else []
            for gi in range(80):
                S.append(mf(gi, kind == 'first'))
                t = 4
                if o.dwalk and kind != 'last' and gi in (24, 40, 64, 7):
                    S += [f'L_dw{self.ndw}:', f's_cbranch_execz L_dw{self.ndw + 1}']
                    self.ndw += 1
                if kind == 'first' and gi == o.sbg:
                    S += (self.stamp(20) if o.itst == 2 else []) + ['s_barrier'] + (self.stamp(21) if o.itst == 2 else [])
                if kind != 'last' and gi == BG - 1:
                    st_ = lambda k: ([f's_cmp_lg_u32 s{S_LOOP}, 0', f's_cbranch_scc1 L_ns{k}'] + self.stamp(k) + [f'L_ns{k}:']) if (o.itst == 2 and p < 3) else []
                    S += ['s_waitcnt lgkmcnt(0)'] + st_(22 + 2 * p) + ['s_barrier'] + st_(23 + 2 * p)
                if gi in ev:
                    S.append(ev[gi]); t += 8
                if kind != 'last' and 8 <= gi < 12:
                    S.append(tog(gi - 8))
                if gi % 2 == 0 and gi + 2 < 80:
                    n_ = gi + 2
                    G, tn, a_ = n_ // 16, (n_ // 4) % 4, (n_ // 2) % 2
                    if tn == 0:
                        S.append(Touch(vr(XA + 4 * ((4 * G + 2 * a_) % 10), 8)))
                    if G == 0 and a_ == 0:
                        S.append(Touch(vr(WF + 16 + 4 * tn, 4)))
                if gi == 78 and kind != 'last':
                    S.append(Touch(vr(WF + 16, 4)))
                if loopend and gi == 48:
                    S += [f's_add_u32 s{S_LOOP}, s{S_LOOP}, 1', f's_cmp_lt_u32 s{S_LOOP}, 8']
                t = max(t, 8)
                while sh_ and gi >= o.sh0 and t + sh_[0][1] <= 16:
                    x, c_ = sh_.pop(0)
                    S.append(x); t += c_
            S += [x for x, _ in sh_]
            if kind == 'last':
                print('shadow left', len(sh_))
            return S
        self.ndw = 0
        if o.dwalk:
            L += ['s_mov_b64 exec, 0'] + [x for q_ in range(3) for x in (f's_cmp_eq_u32 s{S_WAVE}, {q_}', f's_cbranch_scc1 L_dw{4 * q_}')] + ['s_branch L_dw12', 'L_dw16:', 's_mov_b64 exec, -1']
        L += self.stamp(1) + ['s_barrier'] + [x for tn in range(4) for x in rW(tn)] + BI + touch2 + ['s_waitcnt lgkmcnt(0)', f's_setprio {o.cprio}', 's_barrier'] + self.stamp(2)
        L += [rX(0, k) for k in range(2 * o.sa)] + cpair(0, 'first')
        cpre = self.seq(L)
        body = self.seq(['L_dnn_loop0:'])
        for p in range(1, 4):
            S = cpair(p, 'mid', p == 3)
            if p == 3:
                if o.stamps and o.itst == 1:
                    i_ = S.index('s_barrier')
                    S = S[:i_] + [f's_memtime s[{S_ST}:{S_ST + 1}]', f's_memrealtime s[{S_ST + 2}:{S_ST + 3}]', f's_or_b32 m0, s{S_LOOP}, 16', 's_waitcnt lgkmcnt(0)',
                                  f'v_writelane_b32 v252, s{S_ST}, m0', f'v_writelane_b32 v253, s{S_ST + 2}, m0', f's_cmp_lt_u32 s{S_LOOP}, 8'] + S[i_:]
                S += ['s_cbranch_scc1 L_dnn_loop0']
            body += self.seq(S)
        tc = c0 + cpre + body * 2 + self.seq(['L_tail:'])
        tc += self.seq(cpair(25, 'last') + pkreads(256, W2F) + [f'v_mov_b32 v{KONE}, 1.0', f'v_mov_b32 v{KONE + 1}, 1.0'])
        if o.burn:
            bl = [f's_movk_i32 s{S_LOOP}, {o.burn}', 'L_burn:'] + [f'v_mfma_f32_16x16x32_bf16 {vr(XA + 32 + 4 * (k % 2), 4)}, {vr(WF + 16 + 4 * (k % 4), 4)}, {vr(XA + 4 * (k // 4), 4)}, 0' for k in range(32)]
            tc += self.seq(bl + [f's_sub_u32 s{S_LOOP}, s{S_LOOP}, 1', f's_cmp_lg_u32 s{S_LOOP}, 0', 's_cbranch_scc1 L_burn'])
        tc += self.seq(['L_epi:'] + self.stamp(3))

        p2 = lambda r: vr(r, 2)
        seen = set()

        def gelu(groups):
            L = []
            for k, vals in enumerate(groups):
                tb = GT + (k % 2) * 16
                V_ = [(x, w, s_, tb + 4 * i_, tb + 4 * i_ + 2) for i_, (x, w, s_) in enumerate(vals)]
                for (x, w, s_, t, u) in V_:
                    L.append(f'v_pk_mul_f32 {p2(t)}, {p2(x)}, {p2(x)}')
                for (x, w, s_, t, u) in V_:
                    L.append(f'v_pk_fma_f32 {p2(t)}, {p2(t)}, {p2(KC1)}, {p2(KC0)}')
                for (x, w, s_, t, u) in V_:
                    L.append(f'v_pk_mul_f32 {p2(t)}, {p2(t)}, {p2(x)}')
                for (x, w, s_, t, u) in V_:
                    L += [f'v_exp_f32 v{t}, v{t}', f'v_exp_f32 v{t + 1}, v{t + 1}']
                for (x, w, s_, t, u) in V_:
                    L.append(f'v_pk_mul_f32 {p2(u)}, {p2(x)}, {p2(w)}')
                for (x, w, s_, t, u) in V_:
                    L.append(f'v_pk_add_f32 {p2(t)}, {p2(t)}, {p2(KONE)}')
                for (x, w, s_, t, u) in V_:
                    L += [f'v_rcp_f32 v{t}, v{t}', f'v_rcp_f32 v{t + 1}, v{t + 1}']
                for (x, w, s_, t, u) in V_:
                    if s_ in seen:
                        L.append(f'v_pk_fma_f32 {p2(s_)}, {p2(t)}, {p2(u)}, {p2(s_)}')
                    else:
                        L.append(f'v_pk_mul_f32 {p2(s_)}, {p2(t)}, {p2(u)}')
                        seen.add(s_)
            return L
        el = lambda tn, tm, d: (acc(tn, tm) + 2 * d, W2F + 4 * tn + 2 * d, SUMP + 2 * tm)
        allel = [el(tn, 2 * tp + a_, d) for tp in range(5) for tn in range(4) for d in range(2) for a_ in range(2)]
        rest = [e for e in allel if e[0] >= ACC + nsh]
        if o.rshare:
            assert nsh % 8 == 0
            KS = 84
            quads = [[el(2 * h + t_, tm, d) for t_ in range(2) for d in range(2)] for tm in range(10) for h in range(2)]
            quads = [q_ for q_ in quads if q_[0][0] >= ACC + nsh]
            order = sorted(range(len(quads)), key=lambda i_: (i_ // 4, i_ % 2, i_))
            quads = [quads[i_] for i_ in order]
            L = [f'v_mov_b32 v{KS}, {f32hex(-24.0)}', f'v_mov_b32 v{KS + 1}, {f32hex(-24.0)}', f'v_mov_b32 v{KS + 2}, {f32hex(2.0 ** 24)}', f'v_mov_b32 v{KS + 3}, {f32hex(2.0 ** 24)}']
            for k in range(0, len(quads), 2):
                Qs = quads[k:k + 2]
                V_ = [(x, w, GT + 16 * j_ + 4 * i_, GT + 16 * j_ + 4 * i_ + 2) for j_, q_ in enumerate(Qs) for i_, (x, w, s_) in enumerate(q_)]
                L += [f'v_pk_mul_f32 {p2(t)}, {p2(x)}, {p2(x)}' for (x, w, t, u) in V_]
                L += [f'v_pk_fma_f32 {p2(t)}, {p2(t)}, {p2(KC1)}, {p2(KC0)}' for (x, w, t, u) in V_]
                L += [f'v_pk_fma_f32 {p2(t)}, {p2(t)}, {p2(x)}, {p2(KS)}' for (x, w, t, u) in V_]
                L += [f'v_exp_f32 v{t + e_}, v{t + e_} clamp' for (x, w, t, u) in V_ for e_ in range(2)]
                if k == 0:
                    L += unp(W2F)
                L += [f'v_pk_mul_f32 {p2(u)}, {p2(x)}, {p2(w)}' for (x, w, t, u) in V_]
                L += [f'v_pk_fma_f32 {p2(t)}, {p2(t)}, {p2(KS + 2)}, {p2(KONE)}' for (x, w, t, u) in V_]
                for prs in ([(0, 1), (2, 3)], [(0, 2)]):
                    M_ = [(V_[4 * j_ + a_], V_[4 * j_ + b_]) for j_ in range(len(Qs)) for a_, b_ in prs]
                    L += [f'v_pk_mul_f32 {p2(A_[3])}, {p2(A_[3])}, {p2(B_[2])}' for A_, B_ in M_]
                    L += [f'v_pk_fma_f32 {p2(A_[3])}, {p2(B_[3])}, {p2(A_[2])}, {p2(A_[3])}' for A_, B_ in M_]
                    L += [f'v_pk_mul_f32 {p2(A_[2])}, {p2(A_[2])}, {p2(B_[2])}' for A_, B_ in M_]
                L += [f'v_rcp_f32 v{V_[4 * j_][2] + e_}, v{V_[4 * j_][2] + e_}' for j_ in range(len(Qs)) for e_ in range(2)]
                for j_, q_ in enumerate(Qs):
                    s_, t, u = q_[0][2], V_[4 * j_][2], V_[4 * j_][3]
                    L.append(f'v_pk_fma_f32 {p2(s_)}, {p2(t)}, {p2(u)}, {p2(s_)}' if s_ in seen else f'v_pk_mul_f32 {p2(s_)}, {p2(t)}, {p2(u)}')
                    seen.add(s_)
        else:
            L = gelu([rest[i:i + 4] for i in range(0, len(rest), 4)])
            L = L[:20] + unp(W2F) + L[20:]
        for (x, w, s_) in allel:
            if x < ACC + nsh:
                L.append(f'v_pk_fma_f32 {p2(s_)}, {p2(x)}, {p2(w)}, {p2(s_)}' if s_ in seen else f'v_pk_mul_f32 {p2(s_)}, {p2(x)}, {p2(w)}')
                seen.add(s_)
        sm = lambda tm: SUMP + 2 * tm
        L += [f'v_add_f32 v{sm(tm)}, v{sm(tm)}, v{sm(tm) + 1}' for tm in range(10)]
        L += [f'v_permlane32_swap_b32 v{sm(tm)}, v{sm(tm + 1)}' for tm in range(0, 10, 2)]
        L += [f'v_add_f32 v{sm(tm)}, v{sm(tm)}, v{sm(tm + 1)}' for tm in (8, 0, 2, 4, 6)]
        L += [f'v_mov_b32 v{sm(9)}, v{sm(8)}', f'v_permlane16_swap_b32 v{sm(0)}, v{sm(2)}', f'v_permlane16_swap_b32 v{sm(4)}, v{sm(6)}',
              f'v_permlane16_swap_b32 v{sm(8)}, v{sm(9)}',
              f'v_add_f32 v{sm(0)}, v{sm(0)}, v{sm(2)}', f'v_add_f32 v{sm(4)}, v{sm(4)}, v{sm(6)}', f'v_add_f32 v{sm(8)}, v{sm(8)}, v{sm(9)}',
              f'ds_write_b32 v{vPc}, v{sm(0)}', f'ds_write_b32 v{vPc}, v{sm(4)} offset:256',
              's_mov_b32 exec_lo, 0xffff', 's_mov_b32 exec_hi, 0xffff', f'ds_write_b32 v{vPc}, v{sm(8)} offset:512', 's_mov_b64 exec, -1']
        L += ['s_waitcnt lgkmcnt(0)'] + self.stamp(4) + self.stamp_flush() + ['s_barrier', 's_endpgm']
        tc += self.seq(L)

        def wstage(slot):
            c = []
            for u in range(2):
                c += [f's_add_u32 m0, s{S_WMB}, {WR + slot * WSLOT + u * 1024}',
                      I(f'buffer_load_dwordx4 v{vWD[u]}, {srd(SRD_W)}, s{S_WSOFF} offen lds', tag='W')]
            return c + [f's_add_u32 s{S_WSOFF}, s{S_WSOFF}, {32 * 3328}']

        Q, TM, BP = 16, 56, [12, 13]
        TI, vWT = 70, 84
        SP = [36, 37, 38, 39, 40, 41, 42, 43, 48, 49]
        SI = [94, 95, 96, 97, 98, 99, 100, 101, 82, 83]

        def xaddr(f, pcs):
            c = []
            for odd in range(2):
                p_ = f + 26 * odd
                for pc in pcs:
                    c.append(f'v_add_u32_dpp v{TM + pc}, v{Q + 4 * pc + p_ % 4}, v{vCh[0]} row_newbcast:{p_ >> 2} row_mask:0xf bank_mask:{(3, 12)[odd]:#x}')
            return c

        def xld(pc, slot, tag='X'):
            return [f's_add_u32 m0, s{S_XM0}, {slot * XSLOT + pc * 2048}',
                    I(f'buffer_load_dwordx4 v{TM + pc}, {srd(SRD_TAB)}, 0 offen lds', tag=tag)]
        idxl = [f'buffer_load_dwordx4 {vr(Q + 4 * pc, 4)}, v{BP[0]}, {srd(SRD_IDX)}, s{SI[pc // 2]} offen offset:{(pc % 2) * 1664}' for pc in range(10)]
        LO, HI = range(5), range(5, 10)
        NR = (22 + o.tf - 1) // o.tf
        lw = S_CW
        self.mk0 = len(self.P.static)
        L = [f's_lshr_b32 s{S_T0}, s{lw}, 1', f's_mul_i32 s{S_T0}, s{S_T0}, 20', f's_and_b32 s{S_T1}, s{lw}, 1', f's_add_u32 s{S_T0}, s{S_T0}, s{S_T1}',
             f's_lshl_b32 s{S_XM0}, s{S_T0}, 10', f's_mul_i32 s{S_C0}, s{S_T3}, 104', f's_mul_i32 s{S_T0}, s{S_T0}, 832', f's_add_u32 s{SI[0]}, s{S_C0}, s{S_T0}',
             f'v_mul_u32_u24 v{q}, 48, v{g}', f'v_sub_u32 v{BP[0]}, v{vBL}, v{q}']
        L += [f's_add_u32 s{SI[k]}, s{SI[0]}, {k * 2 * 1664}' for k in range(1, 5)]
        L += [f's_and_b32 s{S_T2}, s{lw}, 1', f's_lshl_b32 s{S_T2}, s{S_T2}, 3',
              f'v_lshlrev_b32 v{i4}, 1, v{g}', f'v_or_b32 v{i4}, s{S_T2}, v{i4}', f'v_xor_b32 v{i4}, v{i4}, v0', f'v_and_b32 v{i4}, 15, v{i4}',
              f'v_mul_u32_u24 v{vWD[0]}, 3328, v{g}', f'v_lshl_add_u32 v{vWD[0]}, v{i4}, 4, v{vWD[0]}', f'v_add_u32 v{vWD[1]}, {4 * 3328}, v{vWD[0]}',
              f's_mul_i32 s{S_WSOFF}, s{lw}, {8 * 3328}', f's_add_u32 s{S_WSOFF}, s{S_WSOFF}, s{S_N0}', f's_lshl_b32 s{S_WMB}, s{lw}, 11',
              's_waitcnt lgkmcnt(0)']
        L += self.build_srd(SRD_IDX, S_IDX, 4096 * 104) + idxl[:o.i0] + self.tlb1(T + 14, T + 15) + self.build_srd(SRD_W, S_W1, 1664 * 3328)
        for sl in range(o.w0):
            L += wstage(sl)
        L += self.stamp0() + idxl[o.i0:]
        for sl in range(o.w0, 2):
            L += wstage(sl)
        L += [f's_lshl_b32 s{S_T2}, s{S_T1}, 6',
              f'v_and_b32 v{q}, 7, v0', f'v_xor_b32 v{q}, v{q}, v{g}', f'v_lshlrev_b32 v{q}, 4, v{q}', f'v_xor_b32 v{vCh[0]}, s{S_T2}, v{q}', f'v_xor_b32 v{vCh[1]}, 64, v{vCh[0]}',
              f's_mov_b32 s{S_LOOP}, 0',
              f's_mul_i32 s{S_T2}, s{lw}, 13', f's_add_u32 s{S_T2}, s{S_T2}, s{S_R}', f's_min_u32 s{S_T2}, s{S_T2}, 39', f's_lshl_b32 s{S_T2}, s{S_T2}, 3',
              f's_add_u32 s{S_T2}, s{S_T2}, s{S_T3}', f's_mul_i32 s{S_GRP}, s{S_T2}, 104',
              f'v_lshrrev_b32 v{q}, {o.tf.bit_length() - 1}, v0', f'v_min_u32 v{q}, 7, v{q}', f'v_mul_u32_u24 v{q}, 104, v{q}',
              f'v_and_b32 v{i4}, {o.tf - 1}, v0', f'v_lshl_add_u32 v7, v{i4}, 2, v{q}',
              f's_lshl_b32 s{S_T2}, s{S_MB}, 2', f's_add_u32 s{S_T2}, s{S_T2}, s{lw}', f's_add_u32 s{S_T2}, s{S_T2}, {o.tw0 * 32}', f's_mul_i32 s{S_RC}, s{S_T2}, 3328',
              f's_add_u32 s{S_RC}, s{S_RC}, s{S_N0}', f's_mov_b32 s{S_T2}, {52 * 3328}',
              f'v_lshrrev_b32 v{q}, 1, v0', f'v_mul_lo_u32 v{q}, s{S_T2}, v{q}', f'v_and_b32 v{i4}, 1, v0', f'v_lshl_add_u32 v{vWT}, v{i4}, 7, v{q}']
        L += self.build_srd(SRD_W2, S_W2, 3328)
        L += [f's_mul_i32 s{S_T2}, s{lw}, {o.lpf * 128}', f's_add_u32 s{S_T2}, s{S_T2}, L_tail-L_pc', f'v_lshlrev_b32 v8, 7, v0', f'v_add_u32 v8, s{S_T2}, v8',
              f'v_mov_b32 v9, s{S_MASK + 1}', f'v_add_co_u32 v8, vcc, s{S_MASK}, v8', 'v_addc_co_u32 v9, vcc, 0, v9, vcc']
        sh = lambda pc, c_: f'v_lshlrev_b32 v{Q + 4 * pc + c_}, 7, v{Q + 4 * pc + c_}'
        for pc in range(10):
            L += [sh(pc, 0), sh(pc, 2), sh(pc, 1), sh(pc, 3)] + xaddr(0, [pc]) + xld(pc, 0, 'X0a' if pc < o.sa else 'X0')
            if pc == 0:
                L += self.stamp(6) + self.probe('i0')
            if pc == o.bwat:
                L += [WaitTag(vm_tags=['W']), 's_barrier']
        L += self.stamp(7) + self.probe('x0i')
        x1 = [x for pc in range(10) for x in xaddr(1, [pc]) + xld(pc, 1)]
        L += x1[:4 * o.x1n] + [WaitTag(vm_tags=['X0a'])] + self.stamp(1) + ['s_barrier'] + self.probe('s0') + x1[4 * o.x1n:4 * o.x1m]
        L += [WaitTag(vm_tags=['X0']), 's_barrier'] + x1[4 * o.x1m:] + wstage(2) + wstage(3) + xaddr(2, range(10))
        x2 = [x for pc in range(10) for x in xld(pc, 2)]
        NR = (26 - o.tf0 + o.tf - 1) // o.tf
        tex = (1 << (8 * o.tf)) - 1
        texec = [f's_mov_b32 exec_lo, {tex & 0xffffffff:#x}', f's_mov_b32 exec_hi, {tex >> 32:#x}']
        if o.tch:
            L += [f'buffer_load_dword v{TI + r}, v7, {srd(SRD_IDX)}, s{S_GRP} offen offset:{4 * min(o.tf0 + o.tf * r, 26 - o.tf)}' for r in range(NR)]

        def xtouch():
            t_ = [f'v_lshlrev_b32 v{T + 1}, 7, v{TI}'] + texec + [f'buffer_load_dword v{T + 2}, v{T + 1}, {srd(SRD_TAB)}, 0 offen', 's_mov_b64 exec, -1']
            return t_ + [f'v_mov_b32 v{TI + r}, v{TI + r + 1}' for r in range(NR - 1)] + [f'v_mov_b32 v{TI + NR - 1}, 0xffffff']

        def wtouch():
            return ['s_mov_b64 exec, 0x3ff', f'buffer_load_dword v{T + 3}, v{vWT}, {srd(SRD_W)}, s{S_RC} offen', 's_mov_b64 exec, -1', f's_add_u32 s{S_RC}, s{S_RC}, {260 * 3328}']
        L += x2[:2 * o.x2n] + [WaitTag(vm_tags=['W']), 's_barrier'] + self.probe('bar0') + x2[2 * o.x2n:] + xaddr(3, range(10))
        lpre = self.seq(L + [f's_setprio {o.lprio}', 's_branch L_ld_in'])
        del self.P.static[self.mk0:]
        self.P.static[self.ldat:self.ldat] = lpre
        self.mk0 = len(self.P.static)

        def lpair(p):
            S = ['s_barrier'] + (['L_ld_in:'] if p == 0 else []) + wstage(2 * (p % 2)) + wstage(2 * (p % 2) + 1)
            f2 = p + 4
            for pc in range(10):
                x = xld(pc, p % 3)
                S += [x[0]] + (xaddr(f2, [pc - 1])[:1] if pc else []) + [x[1]] + (xaddr(f2, [pc - 1])[1:] if pc else [])
            S += xaddr(f2, [9])
            if p >= 10:
                S += [f'v_mov_b32_dpp v{Q + 4 * pc + c_}, v{Q + 4 * pc + c_} row_shl:3 row_mask:0xf bank_mask:0xf' for pc in range(10) for c_ in ((0, 2) if p == 10 else (1, 3))]
            if o.tch and p % o.tf == o.toff:
                S += xtouch()
            if o.tch and p % 4 == o.twoff:
                S += wtouch()
            if p == 11:
                S += [f's_add_u32 s{S_LOOP}, s{S_LOOP}, 1', f's_cmp_lt_u32 s{S_LOOP}, 2']
            return S + [WaitTag(vm_tags=['W'])]
        body = self.seq(['L_dnn_loop1:'])
        for p in range(12):
            if p == 8 and o.lpf:
                body += self.seq([f's_cmp_lg_u32 s{S_LOOP}, 1', 's_cbranch_scc1 L_nolpf'])
                self.seq([f's_mov_b64 exec, {(1 << o.lpf) - 1}', 'global_load_dword v10, v[8:9], off', 's_mov_b64 exec, -1'] + small(SRD_W2, L_W2))
                body += self.seq(['L_nolpf:'])
            lp = lpair(p)
            if p and self.probe(f'bar{p}'):
                lp = lp[:1] + [f's_cmp_lg_u32 s{S_LOOP}, 0', f's_cbranch_scc1 L_nopb{p}'] + self.probe(f'bar{p}') + [f'L_nopb{p}:'] + lp[1:]
            body += self.seq(lp + (['s_cbranch_scc1 L_dnn_loop1'] if p == 11 else []))
        tl = c0 + lpre + body * 2 + self.seq(['s_branch L_ld_tail'])
        self.ldblk = self.P.static[self.mk0:]
        del self.P.static[self.mk0:]
        tl += self.seq(['L_ld_tail:', 's_barrier'] + self.tlb2(T) + ['s_mov_b64 exec, 1', f'buffer_load_dword v250, v{T}, {srd(SRD_DBG)}, 0 offen offset:240 sc1', 's_mov_b64 exec, -1'])
        tl += self.seq(self.probe('s50'))
        if o.walk:
            tl += self.seq([f's_cmp_eq_u32 s{lw}, 0', 's_cbranch_scc1 L_wkd', 's_mov_b64 exec, 0', f's_cmp_eq_u32 s{lw}, 1', 's_cbranch_scc1 L_wk0',
                            f's_cmp_eq_u32 s{lw}, 2', f's_cbranch_scc1 L_wk{np_ // 3}', f's_branch L_wk{2 * np_ // 3}', 'L_wkd:'])
        A = 64
        L = [f's_cmp_lg_u32 s{S_WAVE}, 4', 's_cbranch_scc1 L_end',
             f'v_lshlrev_b32 v3, 4, v0', f'v_lshlrev_b32 v4, 2, v0', f'v_add_u32 v1, {RB}, v3', f'v_add_u32 v2, {RB + 1024}, v4', f'v_add_u32 v4, 1024, v4',
             'v_mov_b32 v5, 32', f'v_mov_b32 v7, s{S_MB}',
             f's_mul_i32 s{S_T0}, s{S_MB}, 1280', f's_mul_i32 s{S_T1}, s{S_R}, {WSP}', f's_add_u32 s{S_T1}, s{S_T1}, s{S_T0}', 's_setprio 3']
        if o.sent:
            L += [f'v_mov_b32 v{A + k}, -1' for k in range(4)] + [f'buffer_store_dwordx4 {vr(A, 4)}, v3, {srd(SRD_WS)}, s{S_T1} offen sc1',
                  f'buffer_store_dword v{A}, v4, {srd(SRD_WS)}, s{S_T1} offen sc1', 's_waitcnt vmcnt(0)']
        L += self.stamp_flush() + ['s_barrier'] + self.probe('dend')
        L += [f'ds_read_b128 {vr(A, 4)}, v1', f'ds_read_b128 {vr(A + 8, 4)}, v1 offset:1280', f'ds_read2st64_b32 {vr(A + 4, 2)}, v2 offset0:0 offset1:5',
              f'v_pk_add_f32 {p2(A)}, {p2(A)}, {p2(A + 8)}', f'v_pk_add_f32 {p2(A + 2)}, {p2(A + 2)}, {p2(A + 10)}', f'v_add_f32 v{A + 4}, v{A + 4}, v{A + 5}']
        if o.sent:
            L += [f'v_min_u32 v{A + k}, -2, v{A + k}' for k in range(5)]
        L += (self.stamp(16) if o.diag else [])
        L += [f'buffer_store_dwordx4 {vr(A, 4)}, v3, {srd(SRD_WS)}, s{S_T1} offen sc1',
              f'buffer_store_dword v{A + 4}, v4, {srd(SRD_WS)}, s{S_T1} offen sc1', 's_mov_b64 exec, 1']
        tl += self.seq(L)

        L = ['L_pub:']
        if o.skew:
            L += ['v_mov_b32 v20, s86', 'v_mov_b32 v21, s86', 'v_mov_b32 v22, s88', 's_lshl_b32 s89, s2, 7', 's_add_u32 s89, s89, 0x40000', 'v_lshlrev_b32 v23, 28, v0',
                  f'buffer_store_dwordx3 v[20:22], v23, {srd(SRD_WS)}, s89 offen sc1', 's_waitcnt vmcnt(0)']
        def loads():
            c = [f's_mul_i32 s{S_T0}, s{S_T3}, 1280']
            for qq in range(14):
                c += [f'buffer_load_dwordx4 {vr(A + 8 * qq, 4)}, v3, {srd(SRD_WS)}, s{S_T0} offen sc1',
                      f'buffer_load_dword v{A + 8 * qq + 4}, v4, {srd(SRD_WS)}, s{S_T0} offen sc1', f's_add_u32 s{S_T0}, s{S_T0}, {WSP}']
            return c
        R_ = 56
        L += ['v_lshlrev_b32 v6, 4, v7'] + ([] if o.sent else ['s_waitcnt vmcnt(0)']) + ['v_mov_b32 v13, v5', f'buffer_atomic_add v5, v6, {srd(SRD_DBG)}, 0 offen sc0',
              'v_cmp_eq_u32 vcc, 12, v7', 'v_mov_b32 v8, 436', 'v_mov_b32 v9, 434', 'v_cndmask_b32 v8, v8, v9, vcc', 'v_sub_u32 v8, v8, v13']
        if o.spec:
            L += [f's_mov_b64 s[{S_MASK}:{S_MASK + 1}], exec', 's_mov_b64 exec, -1', f'v_readfirstlane_b32 s{S_T3}, v7'] + loads() + [f's_mov_b64 exec, s[{S_MASK}:{S_MASK + 1}]']
            L += ['s_waitcnt vmcnt(0) lgkmcnt(0)']
        else:
            L += ['s_waitcnt vmcnt(0) lgkmcnt(0)']
        L += (self.stamp(18) if o.diag else []) + [
             f'v_cmp_eq_u32 s[{S_EX}:{S_EX + 1}], v5, v8', 's_mov_b64 exec, -1', f's_lshl_b32 s{S_BOUT}, s{S_BOUT}, 16',
             'v_lshrrev_b32 v1, 1, v3', 'v_lshrrev_b32 v2, 1, v4']
        if o.spec:
            L += [f's_bitcmp1_b32 s{S_EX}, 0', f's_bitset0_b32 s{S_EX}, 0', 's_cbranch_scc1 L_sum']
        pa = self.seq(L)
        L = ['L_fin:', f's_cmp_eq_u32 s{S_EX}, 0', 's_cbranch_scc1 L_done',
             f's_ff1_i32_b32 s{S_T2}, s{S_EX}', f's_bitset0_b32 s{S_EX}, s{S_T2}', f'v_readlane_b32 s{S_T3}, v7, s{S_T2}', 's_waitcnt vmcnt(0)', 'L_again:'] + loads()
        pb = self.seq(L)
        L = ['L_sum:', f'v_pk_add_f32 {p2(R_)}, {p2(A)}, {p2(A + 8)}', f'v_pk_add_f32 {p2(R_ + 2)}, {p2(A + 2)}, {p2(A + 10)}', f'v_add_f32 v{R_ + 4}, v{A + 4}, v{A + 12}']
        for qq in range(2, 14):
            L += [f'v_pk_add_f32 {p2(R_)}, {p2(R_)}, {p2(A + 8 * qq)}', f'v_pk_add_f32 {p2(R_ + 2)}, {p2(R_ + 2)}, {p2(A + 8 * qq + 2)}',
                  f'v_add_f32 v{R_ + 4}, v{R_ + 4}, v{A + 8 * qq + 4}']
        if o.sent:
            L += [f'v_cmp_u_f32 vcc, v{R_}, v{R_ + 1}', f'v_cmp_u_f32 s[{S_MASK}:{S_MASK + 1}], v{R_ + 2}, v{R_ + 3}', f's_or_b64 s[{S_MASK}:{S_MASK + 1}], s[{S_MASK}:{S_MASK + 1}], vcc',
                  f'v_cmp_u_f32 vcc, v{R_ + 4}, v{R_ + 4}', f's_or_b64 vcc, s[{S_MASK}:{S_MASK + 1}], vcc', 's_cbranch_vccnz L_chk', 'L_ok:']
        L += [f's_mul_i32 s{S_T3}, s{S_T3}, 640']
        A0 = A
        A = R_
        L += [f'v_add_f32 v{A + k}, s{S_BOUT}, v{A + k}' for k in range(5)]
        L += [f'v_cvt_pk_bf16_f32 v10, v{A}, v{A + 1}', f'v_cvt_pk_bf16_f32 v11, v{A + 2}, v{A + 3}', f'v_cvt_pk_bf16_f32 v12, v{A + 4}, v{A + 4}',
              f'buffer_store_dwordx2 v[10:11], v1, {srd(SRD_OUT)}, s{S_T3} offen', f'buffer_store_short v12, v2, {srd(SRD_OUT)}, s{S_T3} offen']
        if o.skew:
            L += [f's_cmp_lg_u32 s{S_EX}, 0', 's_cbranch_scc1 L_fin', 'v_lshlrev_b32 v20, 7, v0', 's_mov_b32 s88, 0x40000']
            for k in range(4):
                L += [f'buffer_load_dwordx3 v[{32 + 4 * k}:{34 + 4 * k}], v20, {srd(SRD_WS)}, s88 offen sc1', 's_add_u32 s88, s88, 8192']
            L += ['s_waitcnt vmcnt(0)']
            if o.probe.startswith('st') or o.absol:
                L += ['s_memrealtime s[88:89]', 's_waitcnt lgkmcnt(0)', 'v_mov_b32 v26, 0', 'v_mov_b32 v27, 0']
                for k in range(4):
                    L += [f'v_sub_u32 v28, s88, v{32 + 4 * k}', 'v_cmp_gt_u32 vcc, 4500, v28', f'v_not_b32 v29, v{32 + 4 * k}', 'v_cndmask_b32 v29, 0, v29, vcc', 'v_max_u32 v27, v27, v29']
                    if o.absol:
                        L += [f'v_cndmask_b32 v29, 0, v{34 + 4 * k}, vcc', 'v_max_u32 v26, v26, v29']
                    elif str(k) in o.probe[2:]:
                        L += [f'v_cndmask_b32 v29, 0, v{32 + 4 * k}, vcc', 'v_max_u32 v26, v26, v29']
            else:
                for k in range(4):
                    L += [f'v_sub_u32 v28, v{34 + 4 * k}, v{32 + 4 * k}', f'v_cmp_gt_u32 vcc, {100000 if o.cyc else 5000}, v28', f'v_cndmask_b32 v28, 0, v28, vcc',
                          f'v_cmp_eq_u32 vcc, v{32 + 4 * k}, v{33 + 4 * k}', f'v_cndmask_b32 v{33 + 4 * k}, 0, v28, vcc']
                L += ['v_max_u32 v26, v33, v37', 'v_max3_u32 v26, v26, v41, v45', 'v_mov_b32 v27, -1']
            if o.probe == 'span':
                L += ['s_memrealtime s[86:87]', 's_waitcnt lgkmcnt(0)', 'v_mov_b32 v26, s86']
            for (ctl, rm) in (('row_shr:1', '0xf'), ('row_shr:2', '0xf'), ('row_shr:4', '0xf'), ('row_shr:8', '0xf'), ('row_bcast:15', '0xa'), ('row_bcast:31', '0xc')):
                L += [f'v_max_u32_dpp v{r}, v{r}, v{r} {ctl} row_mask:{rm} bank_mask:0xf' for r in (26, 27)]
            L += ['v_not_b32 v27, v27', 'v_sub_u32 v22, v26, v27', 's_memrealtime s[86:87]', 'v_readlane_b32 s88, v22, 63', 's_waitcnt lgkmcnt(0)',
                  *([f's_max_u32 s88, s88, {o.cyc.split(chr(44))[2]}', f's_sub_u32 s88, s88, {o.cyc.split(chr(44))[2]}', 's_lshr_b32 s88, s88, 1'] if o.cyc else []), 's_min_u32 s88, s88, 5000', f's_mul_i32 s88, s88, {o.skew - 1}', 's_add_u32 s88, s88, s86',
                  'L_spin:', 's_memrealtime s[86:87]', 's_waitcnt lgkmcnt(0)', 's_sub_u32 s89, s88, s86', 's_cmp_gt_i32 s89, 0', 's_cbranch_scc1 L_spin']
        L += self.stamp(5) + self.stamp_flush() + ['s_branch L_fin']
        pc_ = self.seq(L)
        if o.sent:
            L = ['L_chk:', 'v_mov_b32 v14, 0', 'v_mov_b32 v15, 0']
            for qq in range(14):
                L += [f'v_max3_u32 v14, v14, v{A0 + 8 * qq}, v{A0 + 8 * qq + 1}', f'v_max3_u32 v14, v14, v{A0 + 8 * qq + 2}, v{A0 + 8 * qq + 3}', f'v_max_u32 v15, v15, v{A0 + 8 * qq + 4}']
            L += [f's_cmp_eq_u32 s{S_T3}, 12', f's_cselect_b32 s{S_T0}, 0, -1', f'v_and_b32 v15, s{S_T0}, v15', 'v_max_u32 v14, v14, v15',
                  'v_cmp_eq_u32 vcc, -1, v14', 's_cbranch_vccnz L_again', 's_branch L_ok']
            self.chk = self.seq(L)
        pe = self.seq(['L_done:', 's_endpgm'])
        self.pub = pa + pb + pc_ + pe
        self.extra_traces = [pa + pc_ + pb + pc_] + ([pa + pb + pc_[:45] + self.chk + pb[7:] + pc_] if o.sent else [])
        return [tc, tl + self.pub]

    def pubsrd(self):
        return self.build_srd(SRD_WS, S_WS, 0x10000000) + self.build_srd(SRD_OUT, S_OUT, 8192) + self.build_srd(SRD_DBG, S_DBG, 256)

    def tables(self):
        OOB = 0x100000
        G = [[] for _ in range(11)]
        for l in range(64):
            half, i32, g, r, c = l >> 5, l & 31, l >> 4, (l >> 2) & 3, l & 3
            lin0 = g * 128 + r * XPP + c * 8
            G[0] += [lin0, lin0 + 512 if g < 3 else XOFF(27) + c * 8, (l >> 3) * 16, 0x3f803f80 if l < 32 else 0]
            G[1] += [(l & 7) * 16, 0xeeee if l & 1 else 0x4444, half * XPP + i32 * 4, IMG + half * 20 * IMGP + i32 * 4]
            tr = [IMG + cin16.IMGROW(cin16.LAB[g][2 * rp + (r >> 1)][r & 1]) * IMGP + c * 8 for rp in range(8)]
            G[2] += tr[:4]
            G[3] += tr[4:]
            row, col = 8 * half + r, (g & 1) * 32 + c * 8
            G[4] += [V3OFF + row * 64 + col, A1 + row * 1352 + col, A1 + min(row + 16, 25) * 1352 + col, A1 + min(row + 20, 25) * 1352 + col]
            t, gd, rr = (i32 >> 2) & 1, i32 >> 3, i32 & 3
            ig = 16 * t + 4 * rr + gd
            iq = 4 * rr + gd if t == 0 else 16 + ((4 * rr + gd + 4) & 15)
            pm = []
            for q in range(8):
                k0 = 16 * (q >> 2) + 8 * half + 2 * (q & 3)
                pm.append((0xffff if iq == k0 else 0xffff0000 if iq == k0 + 1 else 0) if iq < 26 else 0)
            G[5] += pm[:4]
            G[6] += pm[4:]
            ga = A2 + 52 * ig if ig < 26 else OOB
            rowp = ((l & 12) + 2 * (l & 1)) * 16 + (OOB if l & 2 else 0)
            G[7] += [ga + half * 8 * W2P, ga + half * OOB, rowp + half * 256 + (g & 1) * 8, rowp + g * 256]
            G[8] += [SG + i32 * 64 if i32 < 26 else V2S if i32 == 26 else OOB, 64 if i32 == 26 else 3328, (i32 >> 1) + 2 * half,
                     SQ + i32 * 64 + ((((i32 >> 1) & 3) ^ (2 * half)) << 4)]
            v2 = []
            for hf in range(2):
                j = 4 * g + 16 * hf + r
                v2.append(V2S + (j & 1) * 1664 + (j >> 1) * 64 + ((c ^ (((13 + j) & 3) * 2)) * 8) if j < 26 else SG + 676 * 64 + c * 8)
            wo = [L_WCO + 2 * (16 * tl_ + 4 * c + r) if 16 * tl_ + 4 * c + r < 26 else OOB for tl_ in range(2)]
            G[9] += v2 + wo
            G[10] += [L_WCO + 104 + 16 * half, L_WCO + 52 + 2 * l, V3OFF + 52 + 64 * l, SG + 676 * 64 + (l & 15) * 4]
        U = []
        for w in range(8):
            for e in range(16):
                for u in (w, w + 8, w + 16):
                    U += [SG + row * 64 + f * 8 for row, f in cin16.p2rows(u, e >> 2, e & 3)] if u < 22 else [0, 0]
        return [x for n in (4, 2, 3, 0, 5, 6, 7, 8, 9, 1, 10) for x in G[n]] + [0] * 256 + U + [0] * 256

    def cin(self):
        o = self.opt
        cw = S_CW
        vFa, vLin0, vLin1, vXi0, vXi1, vC16, vIDX, vXa, vIw, vPWL, vPXL, PXR, PFR = 1, 4, 5, 6, 7, 8, 9, 10, 11, 12, 13, 14, 15
        XI, vTR = 16, 20
        XR, P, Z, WF, D = 32, 60, 116, 164, 184
        vStg, vFR, vFw = vFa, 2, 59
        t3, t4, t5 = 29, 30, 31
        AV = [28, 58]
        PM = 216
        vA3, vBs0, vBs1a, vBs1b, vGa, vGb, vT3, vT3d = range(224, 232)
        G8, vV2r, vV2q, vWo, AD = 232, 236, 237, 238, 240
        WA = list(range(244, 250))
        vS, vMx = 250, 111
        UA, UX = 224, [232, 233, 234, 235, 240, 241]
        AFR = 112
        BALL, DALL = 60, 120
        S_F1, S_F2, S_G, S_LO, S_HI, S_CM, S_U0, S_U1, S_U2 = 74, 75, 95, 96, 97, 90, 98, 99, 100
        S_CG, S_IV = 0, 1
        OOB = 0x100000
        TA_, TB_, TC_ = SG + 35840, SQ + 26 * W2P, FRS + 2048
        GREG = [224, 20, 24, 4, 216, 220, 228, 232, 236, 8, 240]
        DPPS = (('row_shr:1', '0xf'), ('row_shr:2', '0xf'), ('row_shr:4', '0xf'), ('row_shr:8', '0xf'),
                ('row_bcast:15', '0xa'), ('row_bcast:31', '0xc'))

        K_W7, K_IMG, K_W2, K_W1, K_W12, K_H8, K_T3 = 52, 53, 54, 55, 92 - 10, 92 - 9, 91
        L = ['L_cin:', f'v_lshlrev_b32 v{vStg}, 4, v0', f's_and_b32 s{cw}, s{S_WAVE}, 3', f's_lshr_b32 s{S_GRP}, s{S_WAVE}, 2', f's_lshl_b32 s{S_STG}, s{cw}, 10',
             f's_mul_i32 s{S_MB}, s{S_T0}, 11', f's_add_u32 s{S_MB}, s{S_MB}, s{S_T1}', f's_sub_u32 s{S_MB}, s{S_MB}, 22',
             f's_cmp_eq_u32 s{S_MB}, 86', 's_cbranch_scc1 L_end', f's_cmp_eq_u32 s{S_GRP}, 0', 's_cbranch_scc1 L_sc']
        c0 = self.seq(L)
        L = ['s_setprio 2', f'v_add_u32 v2, L_tables-L_pc+4096, v{vStg}', f'v_mov_b32 v3, s{S_MASK + 1}',
             f'v_add_co_u32 v2, vcc, s{S_MASK}, v2', 'v_addc_co_u32 v3, vcc, 0, v3, vcc',
             f'v_add_co_u32 v{XR}, vcc, s{S_STG}, v2', f'v_addc_co_u32 v{XR + 1}, vcc, 0, v3, vcc',
             f'global_load_dwordx4 {vr(GREG[0], 4)}, v[2:3], off offset:-4096',
             'v_add_co_u32 v2, vcc, 0x1800, v2', 'v_addc_co_u32 v3, vcc, 0, v3, vcc', f'global_load_dwordx4 {vr(GREG[10], 4)}, v[2:3], off',
             f's_cmp_lt_u32 s{cw}, 3', f's_mov_b32 s{S_T2}, {TB_ - 3072}', f's_cselect_b32 s{S_T2}, {TA_ + 4096}, s{S_T2}']
        tdma = lambda off: I(f'global_load_lds_dwordx4 {vr(XR, 2)}, off offset:{off}', tag='TAB')
        L += [f's_add_u32 m0, s{S_STG}, {TA_ + 4096}', tdma(-4096), f's_add_u32 m0, s{S_STG}, s{S_T2}', tdma(0),
              f'v_add_co_u32 v{XR}, vcc, 0x2000, v{XR}', f'v_addc_co_u32 v{XR + 1}, vcc, 0, v{XR + 1}, vcc',
              f's_add_u32 m0, s{S_STG}, {TC_}', tdma(0), f's_add_u32 m0, s{S_STG}, {TB_ + 1024 + 4096}', f's_cmp_ge_u32 s{cw}, 2', 's_cbranch_scc1 L_sc']
        g1s = self.seq(L)
        L = [tdma(-4096)]
        g1t = self.seq(L)
        L = ['L_sc:', f's_mul_i32 s{S_RC}, s{S_GRP}, 20', f's_add_u32 s{S_RC}, s{S_RC}, s{S_WAVE}',
             f's_mul_i32 s{S_SAMP}, s{S_MB}, 48', f's_add_u32 s{S_SAMP}, s{S_SAMP}, s{S_RC}', f's_mul_i32 s{S_SAMP}, s{S_SAMP}, 104',
             f'v_lshrrev_b32 v{t4}, 3, v0', f'v_lshlrev_b32 v{t4}, 4, v{t4}', f'v_and_b32 v{t3}, 0x70, v{vStg}',
             f's_mul_i32 s{S_XM0}, s{S_WAVE}, {XBSZ}', f's_add_u32 s{S_XM0}, s{S_XM0}, {XB}', f's_cmp_eq_u32 s{S_GRP}, 0', 's_cbranch_scc1 L_g0']
        csc = self.seq(L)
        SC2 = [f's_lshl_b32 s{S_RC}, s{S_RC}, 2', f's_add_u32 s{S_RC}, s{S_RC}, {RC}',
               f's_mul_i32 s{S_LOOP}, s{S_GRP}, 3', f's_sub_u32 s{S_LOOP}, 4, s{S_LOOP}', (f's_cmp_eq_u32 s{S_MB}, 85', f's_cselect_b32 s{S_LOOP}, s{S_LOOP}, 6'),
               f's_lshl_b32 s{K_W7}, s{S_WAVE}, 7', f's_mul_i32 s{K_IMG}, s{S_WAVE}, {IMGSZ}', f's_lshl_b32 s{K_W2}, s{S_WAVE}, 2', f's_lshl_b32 s{K_W1}, s{S_WAVE}, 1',
               f's_lshl_b32 s{K_W12}, s{S_WAVE}, 12',
               f's_and_b32 s{S_U0}, s{S_WAVE}, 1', f's_lshr_b32 s{S_U1}, s{S_WAVE}, 1',
               f's_mul_i32 s{S_T0}, s{S_U1}, 3072', f's_lshl_b32 s{K_H8}, s{S_U0}, 3', f's_add_u32 s{S_T0}, s{S_T0}, s{K_H8}', f'v_add_u32 v{vFw}, s{S_T0}, v{vStg}',
               f's_lshl_b32 s{S_T1}, s{S_U1}, 3', f's_lshr_b32 s{S_T1}, 0x05030200, s{S_T1}', f's_and_b32 s{S_T1}, s{S_T1}, 0xff',
               f's_lshl_b32 s{S_T1}, s{S_T1}, 9', f's_lshl_b32 s{S_T2}, s{S_U0}, 2', f's_add_u32 s{K_T3}, s{S_T1}, s{S_T2}',
               f's_mov_b32 s{S_U1}, 0x05040100', f's_mov_b32 s{S_U2}, 0x07060302',
               f'v_mov_b32 v{vFR}, {L_FLG}', 'v_mov_b32 v109, 0', 'v_mov_b32 v108, 0'] + [f'v_mov_b64 {vr(r, 2)}, 0' for r in range(XR, XR + 26, 2)]
        XJ = 104

        def pfw(dst=3):
            return [f'buffer_load_dword v{dst}, v{vPWL}, {srd(SRD_W)}, s{S_PW} offen',
                    f's_add_u32 s{S_PW}, s{S_PW}, {o.pfne * 688 * 128}']

        def pfx_a():
            return [f'buffer_load_dword v{PXR}, v{vPXL}, {srd(SRD_IDX)}, s{S_PX} offen',
                    f's_cmp_eq_u32 s{S_PX}, s{S_PXE}', f's_cselect_b32 s{S_PXE}, 0x7000000, s{S_PXE}',
                    f's_cselect_b32 s{S_PX}, 0x7000000, s{S_PX}',
                    f's_add_u32 s{S_PX}, s{S_PX}, 24', f's_min_u32 s{S_PX}, s{S_PX}, s{S_PXE}']

        def pfx_b():
            return [f'v_lshlrev_b32 v{PXR}, 7, v{PXR}', f'buffer_load_dword v{PFR}, v{PXR}, {srd(SRD_TAB)}, 0 offen']

        def xidx(XI=XI, vXi0=vXi0):
            return [f'buffer_load_dwordx4 {vr(XI, 4)}, v{vXi0}, {srd(SRD_IDX)}, s{S_SAMP} offen', f's_add_u32 s{S_SAMP}, s{S_SAMP}, {4 * 104}']

        def xdma(XI=XI, off=0, tag='XB', vC16=vC16):
            c = [f'v_lshl_add_u32 v{XI + u}, v{XI + u}, 7, v{vC16}' for u in range(4)]
            for u in range(4):
                c += [f's_add_u32 m0, s{S_XM0}, {u * XPP + off}']
                if u % 2 == 0:
                    c.append(f's_mov_b32 exec_hi, {0xffffff if u == 0 else 0xffff:#x}')
                c.append(I(f'buffer_load_dwordx4 v{XI + u}, {srd(SRD_TAB)}, 0 offen lds', tag=tag))
            return c + ['s_mov_b32 exec_hi, -1']

        def stage(dst, goff, tag):
            st = []
            for m in range(9):
                st.append((f's_add_u32 m0, s{S_STG}, {dst + m * 4096}', f's_add_u32 s{S_TW}, s{S_STG}, {goff + m * 4096}',
                           I(f'buffer_load_dwordx4 v{vStg}, {srd(SRD_CIN)}, s{S_TW} offen lds', tag=tag)))
            return st

        def pubmax(regs_offs):
            c = []
            for (ctl, rm) in DPPS:
                for r, _ in regs_offs:
                    c.append(f'v_max_u32_dpp v{r}, v{r}, v{r} {ctl} row_mask:{rm} bank_mask:0xf')
            c += ['s_mov_b32 exec_lo, 0', 's_mov_b32 exec_hi, 0x80000000']
            c += [f'ds_max_u32 v{vFR}, v{r} offset:{16 + 4 * k}' for r, k in regs_offs]
            return c + ['s_mov_b64 exec, -1']

        def mxop(src, n, mx, first):
            return [f'v_mfma_f32_16x16x32_bf16 {vr(mx, 4)}, {vr(src + r, 4)}, {vr(src + r, 4)}, {"0" if first and r == 0 else vr(mx, 4)}' for r in range(0, n, 4)]

        def mxfin(mx):
            return [f'v_max3_f32 v{mx}, v{mx}, v{mx + 1}, 0', f'v_max3_f32 v{mx}, v{mx}, v{mx + 2}, v{mx + 3}']

        def bread(m, off):
            b = BALL + m * 8
            return [f'ds_read_b64_tr_b16 {vr(b, 2)}, v{vBs0} offset:{off}',
                    f'ds_read_b64_tr_b16 {vr(b + 2, 2)}, v{vBs0} offset:{off + 4 * 1352}',
                    f'ds_read_b64_tr_b16 {vr(b + 4, 2)}, v{vBs1a} offset:{off}',
                    f'ds_read_b64_tr_b16 {vr(b + 6, 2)}, v{vBs1b} offset:{off}']

        def mm2(d, a, b):
            return [f'v_mfma_f32_32x32x16_bf16 {vr(d, 16)}, {vr(a, 4)}, {vr(b, 4)}, 0',
                    f'v_mfma_f32_32x32x16_bf16 {vr(d, 16)}, {vr(a + 4, 4)}, {vr(b + 4, 4)}, {vr(d, 16)}']

        tA, tB = 250, 251
        if o.pfw:
            SC2 += self.build_srd(SRD_W, S_W1, 1664 * 3328) + [
                f's_lshl_b32 s{S_PW}, s{S_MB}, 3', f's_add_u32 s{S_PW}, s{S_PW}, s{S_WAVE}', f's_add_u32 s{S_PW}, s{S_PW}, {o.pfe0 * 832}', f's_lshl_b32 s{S_PW}, s{S_PW}, 7',
                f's_mov_b32 s{S_T3}, {688 * 128}', f'v_min_u32 v{vPWL}, {max(o.pfne - 1, 0)}, v0', f'v_mul_lo_u32 v{vPWL}, s{S_T3}, v{vPWL}']
        if o.pfx:
            SC2 += [f's_lshl_b32 s{S_PX}, s{S_MB}, 3', f's_add_u32 s{S_PX}, s{S_PX}, s{S_WAVE}', f's_mul_i32 s{S_PX}, s{S_PX}, {6 * 104}',
                    f's_add_u32 s{S_PXE}, s{S_PX}, 80', f's_add_u32 s{S_PX}, s{S_PX}, {4 * o.pfx0}',
                    f'v_min_u32 v{PXR}, 35, v0', f'v_mul_u32_u24 v{vPXL}, 10923, v{PXR}', f'v_lshrrev_b32 v{vPXL}, 16, v{vPXL}',
                    f'v_mul_u32_u24 v{vPXL}, {104 - 24}, v{vPXL}', f'v_lshl_add_u32 v{vPXL}, v{PXR}, 2, v{vPXL}']
        trd = lambda n: f'ds_read_b128 {vr(GREG[n], 4)}, v{tA if n < 7 else tB} offset:{(n if n < 7 else n - 7) * 1024}'
        vbs = [f'v_add_u32 v{r}, s{K_W7}, v{r}' for r in (vBs0, vBs1a, vBs1b)]

        def FX(g):
            R = [trd(n) for n in ((0,) if g == 0 else ()) + (6, 7, 3, 9, 1, 2, 4, 5, 8)]
            F = vbs + [f'v_add_u32 v{r}, s{K_W2}, v{r}' for r in (vGa, vGb)]
            F += [f'v_add_u32 v{vT3d}, s{K_H8}, v{vT3d}', f'v_add_u32 v{vT3}, s{K_T3}, v{vT3}']
            F += [f'v_mad_u32_u24 v{G8}, v{G8 + 1}, s{S_WAVE}, v{G8}', f'v_add_u32 v{G8 + 2}, s{K_W1}, v{G8 + 2}',
                  f'v_mad_u32_u24 v{G8 + 1}, v{G8 + 1}, 8, v{G8}', f'v_add_u32 v{WA[2]}, s{K_W12}, v{G8 + 3}', f'v_add_u32 v{WA[3]}, 2048, v{WA[2]}']
            for n_, (wa, bs) in enumerate(((WA[0], G8), (WA[1], G8), (WA[4], G8 + 1), (WA[5], G8 + 1))):
                F += [f'v_add_u32 v{t5}, {n_ & 1}, v{G8 + 2}', f'v_and_b32 v{t5}, 3, v{t5}', f'v_lshl_add_u32 v{wa}, v{t5}, 4, v{bs}']
                if n_ & 1:
                    F.append(f'v_add_u32 v{wa}, 1664, v{wa}')
            F += [f'v_add_u32 v{r}, s{S_XM0}, v{r}' for r in (vXa, vLin0, vLin1)] + [f'ds_write_b32 v{vXa}, v{vXi1} offset:{XOFF(26)}']
            F += [f'v_add_u32 v{r}, s{K_IMG}, v{r}' for r in [vIw] + list(range(vTR, vTR + 8))]
            return R, F
        SC2 += [f'v_add_u32 v{tA}, {TA_}, v{vStg}', f'v_add_u32 v{tB}, {TB_}, v{vStg}', f'v_lshrrev_b32 v3, 5, v0', f'v_lshl_add_u32 v3, v3, 2, v{vFR}']

        def pub2(r1, r2, off):
            c = [f'v_permlane32_swap_b32 v{r1}, v{r2}', f'v_max_u32 v{r1}, v{r1}, v{r2}']
            c += [f'v_max_u32_dpp v{r1}, v{r1}, v{r1} {ctl} row_mask:{rm} bank_mask:0xf' for ctl, rm in DPPS[:5]]
            return c + ['s_mov_b32 exec_lo, 0x80000000', 's_mov_b32 exec_hi, 0x80000000', f'ds_max_u32 v3, v{r1} offset:{16 + off}', 's_mov_b64 exec, -1']
        AV = [28, 58, 111]
        L = []
        if o.coop:
            L += [f's_sub_u32 s{S_T0}, s{S_T3}, 22', f's_min_u32 s{S_T0}, s{S_T0}, 9', f's_lshl_b32 s{S_T0}, s{S_T0}, 2', f's_add_u32 s{S_T0}, s{S_T0}, s{cw}', f's_lshl_b32 s{S_T0}, s{S_T0}, 7',
                  f'v_mul_u32_u24 v{t5}, {40 * 128}, v0', 's_waitcnt lgkmcnt(0)'] + self.build_srd(SRD_CIN, S_CIN, 105456) + [
                  f'buffer_load_dword v107, v{t5}, {srd(SRD_CIN)}, s{S_T0} offen']
        L += ['s_waitcnt lgkmcnt(0)'] + self.build_srd(SRD_WCO, S_WCO, 156) + [f's_mov_b32 m0, {L_WCO}', 's_mov_b64 exec, 0x7ff',
             I(f'buffer_load_dwordx4 v{vStg}, {srd(SRD_WCO)}, 0 offen lds', tag='WCO'), 's_mov_b64 exec, -1'] + (['s_barrier'] if o.coop == 2 else []) + self.stamp0() + SC2
        L += self.build_srd(SRD_IDX, S_IDX, 4096 * 104) + self.build_srd(SRD_TAB, S_TAB, 100000 * 128)
        XK = 12
        if o.g1t:
            assert not o.pfx
            L += [f'v_and_b32 v13, 31, v0', f'v_min_u32 v13, 25, v13', f'v_lshrrev_b32 v14, 5, v0', f'v_mul_u32_u24 v14, {4 * 104}, v14', f'v_lshl_add_u32 v13, v13, 2, v14',
                  f'buffer_load_dword v14, v13, {srd(SRD_IDX)}, s{S_SAMP} offen']
        g1touch = [f'v_lshlrev_b32 v14, 7, v14', f'buffer_load_dword v13, v14, {srd(SRD_TAB)}, 0 offen']
        if o.xg1:
            L += [f's_sub_u32 s{S_T0}, s{S_SAMP}, {24 * 104}', f'buffer_load_dwordx4 {vr(XI, 4)}, v{t4}, {srd(SRD_IDX)}, s{S_T0} offen',
                  f'buffer_load_dwordx4 {vr(XK, 4)}, v{t4}, {srd(SRD_IDX)}, s{S_T0} offen offset:{4 * 104}']
        L += [f'ds_write_b128 v{vFR}, {vr(XR, 4)} offset:16', f's_lshl_b32 s{S_T0}, s{cw}, 6', f'v_add_u32 v{t3}, s{S_T0}, v0']
        for p_ in range(3):
            L += [f'v_mul_u32_u24 v{t4}, 2521, v{t3}', f'v_lshrrev_b32 v{t4}, 16, v{t4}', f'v_mul_u32_u24 v{t4}, 12, v{t4}', f'v_lshl_add_u32 v{AV[p_]}, v{t3}, 1, v{t4}']
            L += [f'v_add_u32 v{t3}, 256, v{t3}'] if p_ < 2 else [f'v_cmp_gt_u32 vcc, 676, v{t3}', f's_mov_b64 s[{S_MASK}:{S_MASK + 1}], vcc']
        L += [f'v_lshlrev_b32 v{t3}, 3, v0', 's_mov_b32 exec_hi, 0xffff', f'ds_write_b64 v{t3}, {vr(XR, 2)} offset:{V3OFF + 26 * 64}', 's_mov_b32 exec_hi, -1',
              f'ds_write_b32 v{AD + 3}, v{XR}', f'ds_write_b32 v{AD + 3}, v{XR} offset:{SSZ}', WaitTag(vm_tags=['WCO'])]
        assert V3OFF == 0
        for s2 in range(2):
            for rd in range(2):
                L.append(f'ds_read_b64 {vr(AFR + 4 * s2 + 2 * rd, 2)}, v{AD} offset:{s2 * 32 + rd * 8}')
        L += [f'ds_read_u16 v110, v{AD + 1}',
              's_mov_b64 exec, 0x3ffffff', f'ds_write_b16 v{AD + 2}, v110', 'v_lshlrev_b32 v109, 17, v110', 'v_lshrrev_b32 v109, 1, v109', 's_mov_b64 exec, -1']
        if o.cwalk:
            L += ['s_mov_b64 exec, 0'] + [x for q_ in range(3) for x in (f's_cmp_eq_u32 s{cw}, {q_}', f's_cbranch_scc1 L_WENTRY{q_}')] + ['s_branch L_WENTRY3', 'L_wret:', 's_mov_b64 exec, -1']
        L += (FX(1)[1] if o.dirt else vbs) + [WaitTag(vm_tags=['TAB'], lgkm0=True)] + self.probe('tab') + (pfw(PFR) if o.pfw and o.pfs == 1 else [])
        v3p = []
        L += ['s_barrier'] + self.stamp(2) + self.probe('b0')
        vb = lambda m: A3 - A1 - 512 + (m >> 1) * 512 + (m & 1) * 64
        for m in range(3):
            L += bread(m, vb(m))
        for m in range(6):
            if m + 3 < 6:
                L += bread(m + 3, vb(m + 3))
            L += mm2(DALL + m * 16, AFR, BALL + m * 8)
            if m == 3 and not o.dirt:
                L += FX(1)[0]
        if not o.dirt:
            L += FX(1)[1][3:]
        for p_ in range(3):
            L += ['s_mov_b32 exec_lo, 0', f'v_mov_b32 v{DALL + 32 * p_}, v{DALL + 32 * p_ + 16}', 's_mov_b32 exec_lo, -1',
                  f'v_cvt_pk_bf16_f32 v{BALL + p_}, 0, v{DALL + 32 * p_}']
            if p_ == 2:
                L += [f's_mov_b64 exec, s[{S_MASK}:{S_MASK + 1}]']
            L += [f'ds_write_b16_d16_hi v{AV[p_]}, v{BALL + p_}', f'v_max_f32 v108, |v{BALL + p_}|, v108']
        L += ['s_mov_b64 exec, -1'] + pub2(108, 109, 8) + self.stamp(13) + [f's_setprio {o.g1p}'] + (g1touch if o.g1t == 1 else []) + ['s_waitcnt lgkmcnt(0)', 's_barrier'] + (g1touch if o.g1t == 2 else []) + ['s_branch L_w2']
        v3 = self.seq(L)

        def stage3(dst, goff, tag, lab, mid=None, fill=()):
            st = stage(dst, goff, tag)
            a_ = st[:8] if mid is None else st[:mid[0]] + [tuple(mid[1])] + st[mid[0]:8]
            return (self.seq(interleave(a_, list(fill)) + [f's_cmp_eq_u32 s{cw}, 3', f's_cbranch_scc1 {lab}']), self.seq([st[8]]), self.seq([f'{lab}:']))
        g0 = [self.seq(['L_g0:', 's_waitcnt lgkmcnt(0)'] + self.build_srd(SRD_CIN, S_CIN, 105456) + (['s_barrier'] if o.coop == 2 else []))]
        g0.append(stage3(A3, 70304, 'W3', 'L_st3'))
        g0.append(self.seq(self.stamp0() + self.build_srd(SRD_IDX, S_IDX, 4096 * 104) + ([f's_add_u32 s{S_SAMP}, s{S_SAMP}, {8 * 104}'] if o.xg1 else xidx(XI, t4) + xidx(XJ, t4)) + self.build_srd(SRD_TAB, S_TAB, 100000 * 128)))
        def w2grp(n):
            c = []
            for k, go in enumerate((0, 1024, 1864)):
                c.append((f's_add_u32 m0, s{S_STG9}, {A2 + n * 4 * 3072 + k * 1024}', f's_add_u32 s{S_TW}, s{S_TGT}, {35152 + n * 4 * 2704 + go}',
                          I(f'buffer_load_dwordx4 v{t5 if k == 1 else vStg}, {srd(SRD_CIN)}, s{S_TW} offen lds', tag='W2')))
            return c
        g0.append((self.seq([f's_mul_i32 s{S_STG9}, s{cw}, 3072', f's_mul_i32 s{S_TGT}, s{cw}, 2704', f'v_lshrrev_b32 v{t5}, 5, v0', f'v_mul_u32_u24 v{t5}, 184, v{t5}',
                             f'v_sub_u32 v{t5}, v{vStg}, v{t5}'] + interleave(w2grp(0) + w2grp(1) + w2grp(2), SC2) + [f's_cmp_lg_u32 s{cw}, 0', 's_cbranch_scc1 L_st2']),
                   self.seq(w2grp(3)), self.seq(['L_st2:']), 1))
        xx = xdma(vC16=t3, tag='XBa') + xdma(XJ, 4 * XBSZ, vC16=t3)
        g0.append(stage3(A1, 0, 'W1', 'L_st1', (o.sigat, [WaitTag(vm_tags=['W2' if o.mrg else 'W3']), 's_barrier'] + self.stamp(2) + FX(0)[0])))
        g0.append(self.seq(([] if o.xg1 else xx) + (pfw(PFR) if o.pfw and o.pfs == 1 else []) + FX(0)[1] + self.stamp(13) + [WaitTag(vm_tags=['W1']), 's_barrier']))

        def G0(w):
            r = []
            for x in g0:
                r += x if isinstance(x, list) else x[0] + (x[1] if w < (3 if len(x) == 3 else x[3]) else []) + x[2]
            return r

        def gather(dst, off):
            c = [f'v_add_u32 v{r}, {off}, v{r}' for r in (vGa, vGb)] if off else []
            for s2 in range(2):
                for e in range(0, 8, 2):
                    base = vGb if (s2 == 1 and e >= 2) else vGa
                    h = 16 * s2 + e
                    c.append(f'ds_read2st64_b32 {vr(dst + 8 * s2 + e, 2)}, v{base} offset0:{6 * h} offset1:{6 * h + 6}')
            return c

        def perms(g_, aj):
            return [f'v_perm_b32 v{aj + 8 * jj + r}, v{g_ + 2 * r + 1}, v{g_ + 2 * r}, s{S_U1 + jj}' for jj in range(2) for r in range(8)]

        def sout(t):
            d, c_ = DALL + 16 * t, DALL + 16 * t
            c = [f'v_cvt_pk_f16_f32 v{c_ + r}, v{d + 2 * r}, v{d + 2 * r + 1}' for r in range(8)]
            return c[:4] + [f'ds_write_b128 v{WA[t]}, {vr(c_, 4)}', f'v_xor_b32 v{WA[t]}, 16, v{WA[t]}'] + c[4:] + [f'ds_write_b128 v{WA[t]}, {vr(c_ + 4, 4)}']
        M1, M2 = 28, 28

        def pub1(r, off):
            c = [f'v_max_u32_dpp v{r}, v{r}, v{r} {ctl} row_mask:{rm} bank_mask:0xf' for ctl, rm in DPPS]
            return c + [('s_mov_b32 exec_lo, 0', 's_mov_b32 exec_hi, 0x80000000', f'ds_max_u32 v{vFR}, v{r} offset:{16 + off}', 's_mov_b64 exec, -1')]
        L = ['L_w2:'] + self.stamp(14) + self.probe('bw2') + gather(BALL, 0) + (pfw(PFR) if o.pfw and o.pfs == 2 else []) + (pfx_a() if o.pfx else [])
        cx = []
        if o.xg1:
            cc0 = self.seq(L + [f's_cmp_eq_u32 s{S_GRP}, 0', 's_cbranch_scc1 L_nx1'])
            cx = self.seq(xdma(XI, -4 * XBSZ) + xdma(XK))
            L = ['L_nx1:']
        else:
            cc0 = []
        L += [f's_cmp_ge_u32 s{S_WAVE}, 5', 's_cbranch_scc1 L_u0']
        cc = self.seq(L)
        M1, M2 = 28, 108
        fin2 = lambda: interleave(mxfin(M1), mxfin(M2)) + [tuple(x) if isinstance(x, list) else x for x in pub2(M1, M2, 0)[:7] + [pub2(M1, M2, 0)[7:]]]
        afr = [f'ds_read_b64_tr_b16 {vr(AFR + 4 * s2 + 2 * rd, 2)}, v{vA3} offset:{s2 * 1024 + rd * 256}' for s2 in range(2) for rd in range(2)]
        b1u = self.seq(gather(BALL + 32, 32) + bread(2, 0) + bread(3, 64) + afr + mxop(BALL, 16, M2, True) + perms(BALL, DALL + 64)[:8] + mxop(BALL + 32, 16, M2, False)
                       + mxop(BALL + 16, 16, M1, True) + perms(BALL, DALL + 64)[8:] + interleave(fin2(), perms(BALL + 32, BALL)) + ['s_branch L_u1'])
        L = ['L_u0:'] + bread(2, 0) + bread(3, 64) + bread(4, 384) + bread(5, 384 + 64) + afr + mxop(BALL, 16, M2, True) + mxop(BALL + 16, 32, M1, True)
        L += perms(BALL, DALL + 64)[:4] + interleave(fin2(), perms(BALL, DALL + 64)[4:])
        L += [f'v_add_u32 v{WA[4]}, {192 * 64}, v{WA[2]}', f'v_add_u32 v{WA[5]}, {192 * 64}, v{WA[3]}',
              f's_cmp_lg_u32 s{S_WAVE}, 7', 's_cbranch_scc1 L_u1', 's_mov_b32 exec_lo, 0xfffffff0', 's_mov_b32 exec_hi, 0xfffffff0', f'v_mov_b32 v{WA[5]}, {OOB}', 's_mov_b64 exec, -1']
        b1q = self.seq(L)
        MXR = 108
        vM = 58

        def ureads(j):
            return [f'ds_read_u16_d16_hi v{XR + 2 * j}, v{vXa} offset:{XOFF(2 * j)}',
                    f'ds_read_u16_d16_hi v{XR + 2 * j + 1}, v{vXa} offset:{XOFF(2 * j) + 2}']
        mx3 = lambda j: f'v_max3_f32 v{vM}, |v{XR + 2 * j}|, |v{XR + 2 * j + 1}|, {"0" if j == 0 else f"v{vM}"}'
        L = ['L_u1:'] + self.stamp(1) + [WaitTag(lgkm0=True), 's_barrier'] + self.stamp(7) + self.probe('b1')
        L += [f'ds_read_b128 {vr(MXR, 4)}, v{vFR} offset:16'] + (pfx_b() + pfx_a() if o.pfx and o.pf1 == 1 else [])
        L += [f's_mul_i32 s{S_T0}, s{S_WAVE}, 384', f'v_lshrrev_b32 v{t3}, 2, v0', f'v_mul_u32_u24 v{t3}, 24, v{t3}', f'v_add_u32 v{t3}, s{S_T0}, v{t3}',
              f'v_and_b32 v{t4}, 3, v0', f'v_lshlrev_b32 v{t4}, 3, v{t4}']
        L += [f'ds_read_b64 {vr(UA + 2 * n_, 2)}, v{t3} offset:{TC_ + 8 * n_}' for n_ in range(3)]
        q1 = [f'v_add_u32 v{MXR}, {127 << 23:#x}, v{MXR}', f'v_lshrrev_b32 v{MXR}, 24, v{MXR}', f'v_sub_u32 v{MXR}, 267, v{MXR}', f'v_min_u32 v{MXR}, 167, v{MXR}',
              f'v_readfirstlane_b32 s{S_F1}, v{MXR}', f'v_mul_u32_u24 v{MXR}, 0x800080, v{MXR}']
        sc = [f'v_add_u32 v{MXR + 1}, {127 << 23:#x}, v{MXR + 1}', f'v_lshrrev_b32 v{MXR + 1}, 24, v{MXR + 1}',
              's_mov_b32 vcc_lo, 0x4000000', 's_mov_b32 vcc_hi, 0x4000000', f'v_cndmask_b32 v{vS}, v{MXR + 2}, v{MXR + 3}, vcc', f'v_lshrrev_b32 v{vS}, 23, v{vS}',
              f'v_add_u32 v{vS}, v{vS}, v{MXR + 1}', f'v_sub_u32 v{vS}, 388, v{vS}', f's_movk_i32 s{S_U0}, 167', f'v_med3_i32 v{vS}, v{vS}, 1, s{S_U0}',
              f'v_subrev_u32 v{MXR + 2}, 127, v{vS}', f'v_lshlrev_b32 v{vS}, 23, v{vS}', f'v_cmp_gt_i32 vcc, 0, v{MXR + 2}',
              f'v_mul_u32_u24 v{MXR + 2}, 0x800080, v{MXR + 2}']
        mq = mm2(DALL + 32, PM, BALL + 16) + mm2(DALL + 48, PM, BALL + 24)
        L += interleave(q1, sc[:6]) + [f'v_and_b32 v{PM + r}, v{PM + r}, v{MXR}' for r in range(8)] + interleave([mq[0], mq[2], mq[1], mq[3]], sc[6:]) + ['s_cbranch_vccnz L_sdown']
        L += [f'v_add_u32 v{AFR + r}, v{AFR + r}, v{MXR + 2}' for r in range(8)]
        u1a = self.seq(L)
        L = ['L_scaled:'] + interleave(mm2(DALL, DALL + 64, AFR) + mm2(DALL + 16, DALL + 72, AFR), sout(2) + sout(3))
        L += [f's_cmp_ge_u32 s{S_WAVE}, 5', 's_cbranch_scc1 L_u2']
        u1 = self.seq(L)
        u2u = self.seq(interleave(mm2(DALL + 64, BALL, AFR) + mm2(DALL + 80, BALL + 8, AFR), sout(0)) + ['s_branch L_u3'])
        u2q = self.seq(['L_u2:'] + interleave(mm2(DALL + 64, PM, BALL + 32) + mm2(DALL + 80, PM, BALL + 40), sout(0)))
        L = ['L_u3:'] + xidx() + xidx(112) + (pfx_b() + pfx_a() if o.pfx and o.pf1 == 2 else [])
        L += interleave(sout(1) + sout(4) + sout(5), [x for n_ in range(6) for x in (f'v_xor_b32 v{UA + n_}, v{UA + n_}, v{t4}', f'v_xor_b32 v{UX[n_]}, 32, v{UA + n_}')])
        L += [f'v_readlane_b32 s{S_CG}, v{vS}, 0', f'v_readlane_b32 s{S_IV}, v{vS}, 26',
              f's_sub_u32 s{S_F2}, {254 << 23:#x}, s{S_CG}', f's_sub_u32 s{S_IV}, {254 << 23:#x}, s{S_IV}',
              f's_sub_u32 s{S_F1}, 254, s{S_F1}', f's_lshl_b32 s{S_F1}, s{S_F1}, 23',
              f's_mov_b32 s{S_MASK}, 0x88888888', f's_mov_b32 s{S_MASK + 1}, 0x88888888']

        def sigma(s_):
            t = (s_ - 1) // 2
            first = (s_ - 1) % 2 == 0
            return (0 if first else 1) if t % 2 == 0 else (1 if first else 0)
        for s_ in range(1, 11):
            assert ((s_ - 1) // 2) * 1024 + sigma(s_) * 512 - (s_ // 4) * 2048 == (-1024, 0, 512, 1536)[s_ % 4]

        def p2read(n_):
            b = BALL + 16 * n_
            c = []
            UAl = list(range(UA, UA + 6))
            for x, (ar, off) in enumerate(((UAl, 0), (UX, 0), (UAl, SSZ), (UX, SSZ))):
                for y in range(2):
                    c.append(f'ds_read_b64_tr_b16 {vr(b + 4 * x + 2 * y, 2)}, v{ar[2 * n_ + y]} offset:{off}')
            return c

        def p2a(n_):
            b = BALL + 16 * n_
            c = []
            for x in range(4):
                c += [f'v_pk_add_f16 v{b + 4 * x + y}, v{b + 4 * x + y}, v{b + 4 * x + 2 + y}' for y in range(2)]
                if x in (0, 2):
                    c.append(f'ds_write_b64 v{vFw}, {vr(b + 4 * x, 2)} offset:{FR + n_ * 4 * 3072 + x * 1024}')
            c += [f'v_cndmask_b32 v{b + 4 + y}, v{b + 4 + y}, v{b + 12 + y}, s[{S_MASK}:{S_MASK + 1}]' for y in range(2)]
            c.append(f'ds_write_b64 v{vFw}, {vr(b + 4, 2)} offset:{FR + n_ * 4 * 3072 + 1024}')
            return c

        def p2s(n_):
            b = BALL + 16 * n_ + 12
            off = FRS + max(n_ * 2048 - 1024, 0)
            return ([f'v_subrev_u32 v{vT3}, 1024, v{vT3}'] if n_ == 0 else []) + [
                f'ds_write_b32 v{vT3}, v{b} offset:{off}', f'ds_write_b32 v{vT3}, v{b + 1} offset:{off + 16}']
        ec = []
        if o.econv:
            L += [f's_cmp_lg_u32 s{S_GRP}, 0', 's_cbranch_scc1 L_noec']
            u3 = self.seq(L)
            ec = self.seq([WaitTag(vm_tags=['XBa'])] + [x for j in range(13) for x in ureads(j)])
            L = ['L_noec:']
        else:
            u3 = []
        L += [WaitTag(vm_tags=['XB'] if o.xg1 else [], lgkm0=True), 's_barrier'] + self.stamp(10)
        L += p2read(0) + p2read(1) + [f's_cmp_ge_u32 s{S_WAVE}, 6', 's_cbranch_scc1 L_lin']
        b2 = self.seq(L)
        p2c = self.seq(p2read(2) + p2a(2) + p2s(2) + ['s_branch L_p2'])
        LB = BALL + 32
        ZR4 = t5
        L = ['L_lin:', f's_and_b32 s{S_U0}, s{S_WAVE}, 1', f's_cselect_b64 vcc, -1, 0', f's_lshl_b32 s{S_U1}, s{S_U0}, 5', f'v_mov_b32 v{ZR4}, 0',
             f'v_xor_b32 v{vV2r}, s{S_U1}, v{vV2r}', f'v_xor_b32 v{vV2q}, s{S_U1}, v{vV2q}', f'v_cndmask_b32 v{vWo}, v{vWo}, v{vWo + 1}, vcc',
             f'ds_read_b64_tr_b16 {vr(LB, 2)}, v{vV2r}', f'ds_read_b64_tr_b16 {vr(LB + 2, 2)}, v{vV2q}',
             f'ds_read_u16_d16_hi v{ZR4}, v{vWo}',
             f's_lshl_b32 s{S_U0}, s{S_U0}, 10', f'v_add_u32 v{t3}, s{S_U0}, v{vStg}']
        for r in range(4):
            a_, b_ = LB + 4 + 2 * r, LB + 5 + 2 * r
            L += [f'v_cvt_f32_f16 v{a_}, v{LB + r}', f'v_cvt_f32_f16_sdwa v{b_}, v{LB + r} dst_sel:DWORD dst_unused:UNUSED_PAD src0_sel:WORD_1',
                  f'v_mul_f32 v{a_}, s{S_IV}, v{a_}', f'v_mul_f32 v{b_}, s{S_IV}, v{b_}']
            if r == 3:
                L += ['s_mov_b32 exec_lo, 0', 's_mov_b32 exec_hi, 0xffff', f'v_mov_b32 v{a_}, v{ZR4}', 's_mov_b64 exec, -1']
            L += [f'v_mul_f32 v{a_}, s{S_CG}, v{a_}', f'v_mul_f32 v{b_}, s{S_CG}, v{b_}', f'v_cvt_pk_bf16_f32 v{LB + r}, v{a_}, v{b_}']
        L += [f'ds_write_b128 v{t3}, {vr(LB, 4)} offset:{FRL}']
        lin = self.seq(L)
        p2 = self.seq(['L_p2:'] + p2a(1) + p2s(1) + p2a(0) + [f's_cmp_lt_u32 s{S_WAVE}, 2', 's_cbranch_scc1 L_p2d'])
        p2e = self.seq(p2s(0) + ['s_branch L_built'])
        p2d = self.seq(['L_p2d:', f'ds_write_b64 v{vT3d}, {vr(BALL + 12, 2)} offset:{FRS + 5 * 1024}'])

        L = ['L_sdown:']
        for r in range(8):
            L += [f'v_lshlrev_b32 v{MXR}, 16, v{AFR + r}', f'v_and_b32 v{MXR + 1}, 0xffff0000, v{AFR + r}',
                  f'v_mul_f32 v{MXR}, v{MXR}, v{vS}', f'v_mul_f32 v{MXR + 1}, v{MXR + 1}, v{vS}', f'v_cvt_pk_bf16_f32 v{AFR + r}, v{MXR}, v{MXR + 1}']
        self.sdown = L + ['s_branch L_scaled']

        def PRE(w, sd=None):
            grp = w >> 2
            return (c0 + (g1s + (g1t if w < 6 else []) if grp else []) + csc + (v3p + v3 if grp else G0(w)) + cc0 + (cx if grp else []) + cc + (b1q if w >= 5 else b1u)
                    + (u1a if sd is None else u1a[:-8] + sd) + u1 + (u2q if w >= 5 else u2u) + u3 + ([] if grp else ec) + b2
                    + (lin if w >= 6 else p2c) + p2 + (p2d if w < 2 else p2e))
        L = ['L_built:'] + self.stamp(11)
        L += [f's_mov_b32 s{S_CG}, s{S_F1}', f's_mov_b32 s{S_IV}, s{S_F2}', f's_mov_b32 s{S_LO}, {f32hex(0.125)}', f's_mov_b32 s{S_HI}, {f32hex(0.0 if o.slow else 128.0)}']
        CV, vM, S_XD = 28, 58, 81

        def ureads(j):
            return [f'ds_read_u16_d16_hi v{XR + 2 * j}, v{vXa} offset:{XOFF(2 * j)}',
                    f'ds_read_u16_d16_hi v{XR + 2 * j + 1}, v{vXa} offset:{XOFF(2 * j) + 2}']
        mx3 = lambda j: f'v_max3_f32 v{vM}, |v{XR + 2 * j}|, |v{XR + 2 * j + 1}|, {"0" if j == 0 else f"v{vM}"}'
        cvt = lambda j: f'v_cvt_pk_f16_f32 v{CV + j % 4}, v{XR + 2 * j}, v{XR + 2 * j + 1}'
        iwr = lambda j: f'ds_write_b32 v{vIw}, v{CV + j % 4} offset:{j * IMGP}'
        S_SKIP = 51
        pfr = lambda: (pfx_b() + pfx_a() if o.pfx else []) + (pfw() if o.pfw else [])
        conv = lambda tag='XB': ([WaitTag(vm_tags=[tag])] + [x for j in range(13) for x in ureads(j)]
                        + [x for j in range(13) for x in (mx3(j), f'v_cvt_pk_f16_f32 v{D + j}, v{XR + 2 * j}, v{XR + 2 * j + 1}')])
        L += [f's_mov_b32 s{S_SKIP}, 1', f's_mul_i32 s{S_U0}, s{S_WAVE}, 1536', f's_add_u32 s{S_U0}, s{S_U0}, {PART}',
              f's_cmp_lg_u32 s{S_GRP}, 0', 's_cbranch_scc1 L_g1c']
        c2a = self.seq(L)
        c2g0 = self.seq([f's_sub_u32 s{S_SAMP}, s{S_SAMP}, {4 * 104}', Touch('v[112:115]')] + (conv('XBa')[27:] if o.econv else conv('XBa')) + [WaitTag(lgkm0=True), 's_barrier'] + self.probe('b4a') + self.stamp(8) + ['s_branch L_cin_go'])
        DX = XB2 - XB - 4 * XBSZ
        L = ['L_g1c:', WaitTag(vm_tags=['XB'], lgkm0=True), 's_barrier'] + self.stamp(8) + self.probe('b4')
        L += [f's_add_u32 s{S_XM0}, s{S_XM0}, {DX}'] + xdma(tag='XB0') + xdma(112, 4 * XBSZ) + xidx() + pfr() + [f'v_add_u32 v{r}, {DX}, v{r}' for r in (vXa, vLin0, vLin1)]
        L += [f'ds_write_b32 v{vXa}, v{vXi1} offset:{XOFF(26)}', f'ds_write_b32 v{vXa}, v{vXi1} offset:{XOFF(26) + 4 * XBSZ}']
        c2g1 = self.seq(L)
        c2b = []
        c2g1d = self.seq(['L_g1d:'] + conv('XB0'))
        c2c = self.seq(['L_cin_go:'] + [f'ds_write_b32 v{vIw}, v{D + j} offset:{j * IMGP}' for j in range(13)]
                       + [f's_mov_b32 s{S_XD}, {4 * XBSZ}', f's_add_u32 s{S_XM0}, s{S_XM0}, {4 * XBSZ}',
                          f'v_lshlrev_b32 v{vXi1}, 2, v0', f'v_add_u32 v{vXi1}, s{S_U0}, v{vXi1}'])

        NWF = 5
        PF = o.cpfd
        zslot = lambda s_: 1 if s_ % 2 == 0 else (0 if ((s_ - 1) // 2) % 2 == 0 else 2)
        zr = lambda T, sl: Z + 12 * T + 4 * sl
        preg = lambda T, r: P + 14 * T + (r if r < 14 else r - 14)
        acc = lambda T, tile: D + 16 * T + 4 * tile
        jobs = [('l', 0, 0), ('l', 0, 1)]
        for s_ in range(11):
            jobs += [('d', s_, 2), ('d', s_, 0), ('d', s_, 1)]
            if s_ == 0:
                jobs.append(('d', 0, 3))
            elif s_ % 2 == 0:
                jobs.append(('s', s_, 3))
        NJ = len(jobs)
        assert NJ == 41

        def wread(n):
            kind, s_, tile = jobs[n]
            off = FRL + tile * 1024 if kind == 'l' else (FR + s_ * 3072 + tile * 1024 if tile < 3 else FRS + (5 if s_ == 0 else (s_ - 1) // 2) * 1024)
            return f'ds_read_b128 {vr(WF + 4 * (n % NWF), 4)}, v{vFa} offset:{off}'

        def mfma(n, T):
            kind, s_, tile = jobs[n]
            a = vr(WF + 4 * (n % NWF), 4)
            d = vr(acc(T, tile), 4)
            if kind == 'l':
                return f'v_mfma_f32_16x16x32_bf16 {d}, {a}, {vr(zr(T, 2), 4)}, 0'
            if kind == 's':
                lo = 0 if ((s_ - 1) // 2) % 2 == 0 else 1
                return f'v_smfmac_f32_16x16x64_f16 {d}, {a}, {vr(zr(T, lo), 8)}, v{vIDX}'
            return f'v_mfma_f32_16x16x32_f16 {d}, {a}, {vr(zr(T, zslot(s_)), 4)}, {"0" if (s_ == 0 and tile >= 2) else d}'

        def pk(T, n):
            a, b, s0, s1 = cin16.INS[n]
            return (f'v_pk_mul_f16 v{zr(T, zslot(n // 4)) + n % 4}, v{preg(T, a)}, v{preg(T, b)} '
                    f'op_sel:[{s0[0]},{s0[1]}] op_sel_hi:[{s1[0]},{s1[1]}]')

        def trp(T, rp):
            return f'ds_read_b64_tr_b16 {vr(preg(T, 2 * rp), 2)}, v{vTR + rp} offset:{32 * T}'

        LASTA = max(n for n, x in enumerate(cin16.INS) if x[0] < 2)
        S_A1, S_A2, S_PINC = 49, 50, 48
        fin = []
        for T in range(4):
            fin += [(acc(T, 0) + r, acc(T, 2) + r) for r in range(4)] + [(acc(T, 1), acc(T, 1) + 3)]
        for T in range(4):
            fin += [(acc(T, 1) + 1 + (r >> 1), acc(T, 3) + r) for r in range(4)]

        def final(f1, f2):
            c = []
            for k, (a, b) in enumerate(fin):
                d = Z + k % 4
                c.append(f'v_mul_f32 v{d}, v{a}, v{b}' if k < 4 else f'v_fmac_f32 v{d}, v{a}, v{b}')
            c += [f'v_add_f32 v{Z}, v{Z}, v{Z + 1}', f'v_add_f32 v{Z + 2}, v{Z + 2}, v{Z + 3}', f'v_add_f32 v{Z}, v{Z}, v{Z + 2}']
            c += [f'v_mul_f32 v{Z}, s{x}, v{Z}' for x in (f1, f2)]
            return c + [f'ds_write_b32 v{vXi1}, v{Z}']
        code = ['L_cin_loop:', f'v_cmp_le_f32 s[{S_CM}:{S_CM + 1}], s{S_HI}, v{vM}', f'v_cmp_le_f32 vcc, s{S_LO}, v{vM}',
                f's_mov_b32 s{S_A1}, s{S_F1}', f's_mov_b32 s{S_A2}, s{S_F2}',
                f's_cmp_lg_u64 s[{S_CM}:{S_CM + 1}], 0', 's_cbranch_scc1 L_cslow', 's_cbranch_vccz L_cslow']
        cA = self.seq(code)
        RD = []
        for rp in (0, 3, 4):
            RD += [trp(T, rp) for T in range(4)]
        for T in range(4):
            RD += [f'ds_read_b64_tr_b16 {vr(zr(T, 2), 2)}, v{vLin0} offset:{32 * T}', f'ds_read_b64_tr_b16 {vr(zr(T, 2) + 2, 2)}, v{vLin1} offset:{32 * T}']
        RD += [wread(k) for k in range(PF)]
        for rp in (5, 6, 1, 2):
            RD += [trp(T, rp) for T in range(4)]
        pfr = lambda: (pfx_b() + pfx_a() if o.pfx else []) + (pfw() if o.pfw else [])
        vm = xdma() + xidx() + pfr()
        VA = final(S_A1, S_A2) + [f'v_add_u32 v{vXi1}, 256, v{vXi1}']
        PK0 = [pk(T, n) for T in range(4) for n in range(4)]
        TG = [f'v_add_u32 v{r}, s{S_XD}, v{r}' for r in (vXa, vLin0, vLin1)] + [f's_sub_u32 s{S_XM0}, s{S_XM0}, s{S_XD}', f's_sub_u32 s{S_XD}, 0, s{S_XD}', f's_mov_b32 s{S_SKIP}, 0']
        cB0 = self.seq(['L_cconv:', f's_cmp_lg_u32 s{S_SKIP}, 0', 's_cbranch_scc1 L_first'])
        cVM = self.seq(interleave(RD, VA) + PK0 + vm)
        self.first = ['L_first:'] + RD[:28] + interleave(RD[28:], PK0) + ['s_branch L_novm']
        code = ['L_novm:'] + TG
        LA = 1
        def lstamp(base):
            if not (o.stamps and o.cst):
                return []
            return [f's_memtime s[{S_ST}:{S_ST + 1}]', f's_memrealtime s[{S_ST + 2}:{S_ST + 3}]', f's_sub_u32 s{S_C0}, {base + 6}, s{S_LOOP}', 's_waitcnt lgkmcnt(0)',
                    f's_mov_b32 m0, s{S_C0}', f'v_writelane_b32 v252, s{S_ST}, m0', f'v_writelane_b32 v253, s{S_ST + 2}, m0']
        code += lstamp(19)
        code += [Touch(vr(WF, 4)), Touch(vr(zr(3, 2), 4))] + ([f's_cmp_eq_u32 s{S_GRP}, 0', 's_cbranch_scc1 L_np1', 's_setprio 1', 'L_np1:'] if o.gprio else ['s_setprio 1'])
        MS = [(n, T) for n in range(NJ) for T in range(4)]
        first_use, last_use = {}, {}
        for mi, (n, T) in enumerate(MS):
            kind, s_, tile = jobs[n]
            if kind == 'l':
                last_use[(T, 'lin')] = mi
                continue
            for su in ([s_] if kind == 'd' else [s_ - 1, s_]):
                first_use.setdefault((T, su), mi)
                last_use[(T, su)] = mi
        V = []
        for s_ in range(LA, 11):
            prev = [p_ for p_ in range(s_) if zslot(p_) == zslot(s_)]
            for T in range(4):
                rdy = last_use[(T, prev[-1])] + o.war if prev else (last_use[(T, 'lin')] if zslot(s_) == 2 else -1)
                for n in range(4 * s_, 4 * s_ + 4):
                    V.append((pk(T, n), rdy, first_use[(T, s_)], n, T))
        forced = 0
        late = []
        XL_ = [x for j in range(13) for x in ureads(j)]
        xrd = {}
        CVR = [preg(T, r) for r in (2, 3, 6, 7) for T in range(4)]
        cvrdy = max(n for n, x in enumerate(cin16.INS) if set(x[:2]) & {2, 3, 6, 7})
        cvt2 = lambda j: f'v_cvt_pk_f16_f32 v{CVR[j]}, v{XR + 2 * j}, v{XR + 2 * j + 1}'
        iwr2 = lambda j: f'ds_write_b32 v{vIw}, v{CVR[j]} offset:{j * IMGP}'
        nm = nc = nw = 0
        V.sort(key=lambda x: x[2])
        prev2 = 0
        for mi, (n, T) in enumerate(MS):
            while V and V[0][2] <= mi:
                assert V[0][1] < mi
                code.append(V.pop(0)[0]); forced += 1
            code.append(mfma(n, T))
            t = 4
            if o.cbar and mi == len(MS) - 1 - o.cbov:
                code += ['s_setprio 3', 's_barrier']; t += 8
            if not o.cbar and mi == 4 * o.hiat - 2:
                code.append('s_setprio 2'); t += 4
            if T == 3 and n + 1 < NJ:
                code.append(Touch(vr(WF + 4 * ((n + 1) % NWF), 4))); t += 4
            if T == 0 and n + PF < NJ:
                code.append(wread(n + PF)); t += 8
            elif T in (1, 2) and late:
                code.append(late.pop(0)); t += 8
            elif T in (1, 2) and mi >= o.x0 and XL_:
                if len(XL_) == 26:
                    code.append(WaitTag(vm_tags=['XB']))
                code.append(XL_.pop(0)); t += 8
                if len(XL_) % 2 == 0:
                    xrd[12 - len(XL_) // 2] = mi
            elif not V and nw < nc and t == 4:
                code.append(iwr2(nw)); nw += 1; t += 12
            t = max(t, 12 if jobs[n][0] == 's' else 8)
            k = 0
            while t < 16:
                urgent = any(V[q_][2] - 1 - mi < q_ + 1 for q_ in range(min(24, len(V))))
                if k == 1 and prev2 >= o.max2 and not urgent:
                    break
                cand = [x for x in V[:32] if x[1] <= mi]
                extra = None
                if nm < 13 and nm in xrd and xrd[nm] + o.xlat <= mi:
                    extra = 'm'
                elif nc < nm and all(x[3] > cvrdy for x in V):
                    extra = 'c'
                if cand and (k == 0 or urgent or not extra) and (k == 0 or urgent or o.eager):
                    x = cand[0]
                    V.remove(x)
                    code.append(x[0])
                    if x[3] <= LASTA and all(y[3] > LASTA for y in V if y[4] == x[4]):
                        late.append(trp(x[4], 7))
                elif extra == 'm':
                    code.append(mx3(nm)); nm += 1
                elif extra == 'c':
                    code.append(cvt2(nc)); nc += 1
                else:
                    break
                t += 4; k += 1
            prev2 = prev2 + 1 if k == 2 else 0
        assert not late and not XL_ and not V
        print('left', 13 - nm, 13 - nc, 13 - nw)
        tail = [mx3(j) for j in range(nm, 13)] + [cvt2(j) for j in range(nc, 13)] + [iwr2(j) for j in range(nw, 13)]
        print('forced VALU', forced)
        code += lstamp(25)
        code.append(f's_setprio {o.p0}')
        code += [f's_sub_u32 s{S_LOOP}, s{S_LOOP}, 1', f's_cmp_eq_u32 s{S_LOOP}, 0', 's_cbranch_scc1 L_cin_done'] + tail
        ntail = len(tail) + 1
        def keep(x):
            t_ = x.text if isinstance(x, I) else x
            if isinstance(t_, tuple):
                return True
            if 'nopk' in o.dbg and t_.startswith('v_pk_mul_f16'):
                return False
            if 'nowf' in o.dbg and t_.startswith('ds_read_b128'):
                return False
            if 'nosm' in o.dbg and t_.startswith('v_smfmac'):
                return False
            return True
        code = [x for x in code if keep(x)]
        if 'bf' in o.dbg:
            code = [x.replace('x32_f16', 'x32_bf16').replace('x64_f16', 'x64_bf16') if isinstance(x, str) else x for x in code]
        cB = self.seq(code + ['s_branch L_cin_loop'])
        mark0 = len(self.P.static)
        bl = []
        if o.burn:
            bl = [f's_movk_i32 s{S_LOOP}, {o.burn // 2}', 'L_burn2:'] + [f'v_mfma_f32_16x16x32_f16 {vr(P + 4 * (k % 2), 4)}, {vr(WF + 4 * (k % 4), 4)}, {vr(Z + 4 * (k // 4), 4)}, 0' for k in range(32)]
            bl += [f's_sub_u32 s{S_LOOP}, s{S_LOOP}, 1', f's_cmp_lg_u32 s{S_LOOP}, 0', 's_cbranch_scc1 L_burn2']
        L = ['L_cin_done:', f's_mul_i32 s{S_U0}, s{S_WAVE}, 1536', f's_add_u32 s{S_U0}, s{S_U0}, {PART}',
             f'v_lshlrev_b32 v{Z + 4}, 5, v0', f'v_add_u32 v{Z + 4}, s{S_U0}, v{Z + 4}',
             f'ds_read_b128 {vr(P, 4)}, v{Z + 4}', f'ds_read_b128 {vr(P + 4, 4)}, v{Z + 4} offset:16'] + bl + final(S_F1, S_F2)[:-1]
        E = [f'v_subrev_u32 v{Z + 6}, s{S_U0}, v{vXi1}', f'v_lshrrev_b32 v{Z + 6}, 8, v{Z + 6}', f'v_lshrrev_b32 v{Z + 5}, 3, v0', f'v_cmp_gt_u32 vcc, v{Z + 6}, v{Z + 5}',
             f'v_min_u32 v{Z + 5}, v{Z + 5}, v{Z + 6}', f'v_lshlrev_b32 v{Z + 5}, 4, v{Z + 5}', f'v_add_u32 v{Z + 5}, s{S_RC}, v{Z + 5}',
             ] + [f'v_add_f32 v{P + a_}, v{P + a_}, v{P + b_}' for a_, b_ in ((0, 1), (2, 3), (4, 5), (6, 7), (0, 2), (4, 6), (0, 4))]
        E += [f'v_add_f32_dpp v{P}, v{P}, v{P} {ctl} row_mask:0xf bank_mask:0xf' for ctl in ('quad_perm:[1,0,3,2]', 'quad_perm:[2,3,0,1]', 'row_half_mirror')]
        L += interleave([f'v_add_f32_dpp v{Z}, v{Z}, v{Z} {ctl} row_mask:{rm} bank_mask:0xf' for ctl, rm in DPPS], E)
        L += [f'v_cndmask_b32 v{P}, v{Z}, v{P}, vcc', 's_bitset1_b32 vcc_hi, 31', 's_mov_b64 exec, vcc', f'ds_write_b32 v{Z + 5}, v{P}', 's_mov_b64 exec, -1']
        L += self.stamp(9) + self.stamp_flush() + self.probe('cend') + [f's_cmp_eq_u32 s{S_WAVE}, 0', 's_cbranch_scc1 L_cpub', 's_waitcnt lgkmcnt(0)', 's_barrier', 's_endpgm',
              'L_cpub:', f's_load_dword s{S_BOUT}, s[{S_BO}:{S_BO + 1}], 0'] + self.pubsrd() + [
              'v_lshlrev_b32 v6, 2, v0', f'v_add_u32 v2, {RC}, v6', 'v_add_u32 v4, 1024, v6',
              f's_mul_i32 s{S_T1}, s{S_MB}, 192', f's_add_u32 s{S_T1}, s{S_T1}, {13 * WSP}',
              'v_mov_b32 v13, -1', 's_mov_b32 exec_hi, 0xffff', f'buffer_store_dword v13, v6, {srd(SRD_WS)}, s{S_T1} offen sc1', 's_mov_b64 exec, 1',
              f'buffer_load_dword v250, v6, {srd(SRD_OUT)}, 0 offen', f'buffer_load_dword v251, v6, {srd(SRD_DBG)}, 0 offen offset:240 sc1', 's_mov_b64 exec, -1',
              f's_mul_i32 s{S_T0}, s{S_MB}, 3', f's_mul_i32 s{S_T2}, s{S_T0}, 3277', f's_lshr_b32 s{S_T2}, s{S_T2}, 16',
              f'v_add_u32 v7, s{S_T2}, v0', f's_mul_i32 s{S_T2}, s{S_T2}, 20', f's_add_u32 s{S_T2}, s{S_T2}, 20',
              f's_sub_u32 s{S_T2}, s{S_T2}, s{S_T0}', f's_min_u32 s{S_T2}, s{S_T2}, 3', f's_sub_u32 s{S_T0}, 3, s{S_T2}',
              f'v_mov_b32 v5, s{S_T0}', f'v_writelane_b32 v5, s{S_T2}, 0',
              f's_cmp_eq_u32 s{S_T0}, 0', f's_cselect_b32 s{S_T0}, 1, 3',
              'v_lshlrev_b32 v3, 4, v0', 's_mov_b32 exec_hi, 0xffff', 's_waitcnt vmcnt(0) lgkmcnt(0)', 's_barrier'] + self.probe('cend2') + ['ds_read_b32 v64, v2']
        L += (self.stamp(16) if o.diag else [])
        L += ['v_min_u32 v64, -2, v64'] if o.sent else []
        L += [f'buffer_store_dword v64, v6, {srd(SRD_WS)}, s{S_T1} offen sc1', f's_mov_b32 exec_lo, s{S_T0}', 's_mov_b32 exec_hi, 0', 's_branch L_pub']
        fin_ = self.seq(L)
        blk = self.P.static[mark0:]
        del self.P.static[mark0:]
        at = self.P.static.index(self.pub[-1]) + 1
        self.P.static[at:at] = blk + self.ldblk
        L = ['L_cslow:']
        for (ctl, rm) in (('row_shr:1', '0xf'), ('row_shr:2', '0xf'), ('row_shr:4', '0xf'), ('row_shr:8', '0xf'),
                          ('row_bcast:15', '0xa'), ('row_bcast:31', '0xc')):
            L.append(f'v_max_f32_dpp v{vM}, v{vM}, v{vM} {ctl} row_mask:{rm} bank_mask:0xf')
        L += [f'v_readlane_b32 s{S_U0}, v{vM}, 63', f's_mov_b32 s{S_HI}, 0',
              f's_lshr_b32 s{S_U0}, s{S_U0}, 23', f's_min_u32 s{S_U0}, s{S_U0}, {127 + 55}',
              f's_lshr_b32 s{S_U1}, s{S_IV}, 23', f's_sub_u32 s{S_U1}, s{S_U1}, 47', f's_lshr_b32 s{S_U1}, s{S_U1}, 1', f's_min_u32 s{S_U1}, s{S_U1}, 59',
              f's_sub_u32 s{S_U1}, 131, s{S_U1}', f's_max_u32 s{S_U0}, s{S_U0}, s{S_U1}',
              f's_sub_u32 s{S_U1}, {127 + 4 + 127}, s{S_U0}',
              f's_lshl_b32 s{S_U2}, s{S_U1}, 1', f's_sub_u32 s{S_U2}, s{S_U2}, 127',
              f's_sub_u32 s{S_G}, 254, s{S_U2}', f's_lshl_b32 s{S_G}, s{S_G}, 23',
              f'v_mov_b32 v{P}, s{S_G}', f'v_mul_f32 v{P + 1}, s{S_CG}, v{P}', f'v_mul_f32 v{P}, s{S_IV}, v{P}',
              f'v_readfirstlane_b32 s{S_F1}, v{P + 1}', f'v_readfirstlane_b32 s{S_F2}, v{P}',
              f's_lshl_b32 s{S_U1}, s{S_U1}, 23', f's_lshl_b32 s{S_U2}, s{S_U2}, 23']
        TS = P
        for j in range(13):
            L += [f'v_mul_f32 v{TS}, s{S_U1}, v{XR + 2 * j}', f'v_mul_f32 v{TS + 1}, s{S_U1}, v{XR + 2 * j + 1}',
                  f'v_mul_f32 v{TS + 2}, s{S_U2}, v{XR + 2 * j}', f'v_mul_f32 v{TS + 3}, s{S_U2}, v{XR + 2 * j + 1}',
                  f'v_cvt_pk_f16_f32 v{TS + 20 + j}, v{TS}, v{TS + 1}', f'v_cvt_pk_bf16_f32 v{TS + 4 + j}, v{TS + 2}, v{TS + 3}',
                  f'ds_write_b32 v{vIw}, v{TS + 20 + j} offset:{j * IMGP}', f'ds_write_b32 v{vXa}, v{TS + 4 + j} offset:{XOFF(2 * j)}']
        L += [f'v_mov_b32 v{TS}, s{S_U2}', f'v_cvt_pk_bf16_f32 v{TS}, v{TS}, v{TS}',
              's_mov_b32 exec_hi, 0', f'ds_write_b32 v{vXa}, v{TS} offset:{XOFF(26)}', 's_mov_b32 exec_hi, -1',
              's_waitcnt lgkmcnt(0)', 's_branch L_cconv']
        slow = self.seq(L)
        sdown = self.seq(self.sdown)
        cF = self.seq(self.first)
        traces = []
        for w in range(8):
            grp = w >> 2
            c2 = c2a + (c2g1 + (c2b if w == 4 else []) + c2g1d if grp else c2g0) + c2c
            it = lambda sl, first: cA + (slow if sl else []) + cB0 + (cF if first else cVM) + cB
            traces.append(PRE(w) + c2 + it(0, 1) + it(0, 0) + it(0, 0)[:-ntail] + fin_ + self.pub)
            if w in (0, 4):
                traces.append(PRE(w, sdown) + c2 + it(1, 1) + it(1, 0)[:-ntail] + fin_ + self.pub)
        return traces

    def build(self):
        pro = self.prologue()
        d = self.dnn()
        cs = self.cin()
        self.seq(['L_end:', 's_endpgm'])
        traces = [pro + c for c in d + cs] + self.extra_traces
        for t in traces:
            resolve_waits(t)
        for _ in range(2):
            for t in traces:
                resolve_hazards(t)
        hdr = open(os.path.join(os.path.dirname(os.path.abspath(__file__)), 'header.txt')).read()
        txt = hdr + f'; @launch grid=(256,1,1) block=(512,1,1) lds={LDS_TOTAL}\n'
        txt += f'''.amdgcn_target "amdgcn-amd-amdhsa--gfx950"
{DOC}.text
.globl {KNAME}
.p2align 8
.type {KNAME},@function
{KNAME}:
'''
        body_ = self.P.emit()
        if self.opt.align:
            for lab in ('L_dnn_loop0:', 'L_dnn_loop1:', 'L_cin_loop:', 'L_epi:'):
                pad = '  s_nop 0\n' if self.opt.align > 100 else ''
                body_ = body_.replace(lab + '\n', f'.p2align {self.opt.align % 100}\n{pad}{lab}\n')
        if self.opt.cwalk:
            lines = body_.split('\n')
            i0, i1 = lines.index('L_w2:'), lines.index('L_cslow:')
            out, k, cnt = lines[:i0], 0, 0
            seg = lines[i0:i1]
            prot = 0
            for n_, l in enumerate(seg):
                out.append(l)
                t = l.strip()
                cnt += 1
                inmain = 'L_novm:' in seg[:n_ + 1]
                nxt = seg[n_ + 1].strip() if n_ + 1 < len(seg) else ''
                ok = t.endswith(':') or (cnt >= self.opt.cwalk and ('mfma' in t and nxt.startswith('v_pk') if inmain else t.startswith(('ds_', 'v_perm', 'v_cvt_pk'))))
                if ok and t not in ('L_cin_loop:', 'L_cconv:', 'L_scaled:'):
                    out += [f'L_wp{k}:', f'  s_cbranch_execz L_wp{k + 1}']
                    k += 1; cnt = 0
            j = lines.index('L_first:')
            rest = lines[i1:j + 1] + [f'L_wp{k}:', '  s_cbranch_execz L_wret'] + lines[j + 1:]
            body_ = '\n'.join(out + rest)
            print('walk pads', k + 1)
            self.npads = k + 1
            for q_ in range(4):
                body_ = body_.replace(f'L_WENTRY{q_}', f'L_wp{q_ * (k + 1) // 4}')
        if self.opt.fix:
            body_ = fixalign.fix(body_ + 'L_tables:\n', self.opt.fix)[:-len('L_tables:\n')]
        txt += body_
        tb = self.tables()
        assert len(tb) == 16 * 256
        txt += '.p2align 8\nL_tables:\n' + ''.join('.long ' + ', '.join(f'{x:#x}' for x in tb[i:i + 8]) + '\n' for i in range(0, len(tb), 8))
        txt += f'''.section .rodata,"a"
.p2align 6
.amdhsa_kernel {KNAME}
  .amdhsa_next_free_vgpr 256
  .amdhsa_next_free_sgpr 102
  .amdhsa_accum_offset 256
  .amdhsa_group_segment_fixed_size 0
  .amdhsa_kernarg_size 88
  .amdhsa_user_sgpr_count 2
  .amdhsa_user_sgpr_kernarg_segment_ptr 1
  .amdhsa_system_sgpr_workgroup_id_x 1
  .amdhsa_float_denorm_mode_32 {self.opt.denorm}
.end_amdhsa_kernel
'''
        return txt


def main():
    ap = argparse.ArgumentParser()
    ap.add_argument('-o', default='standalone__deep_cross_xdeepfm__recsys.s')
    ap.add_argument('--stamps', action='store_true')
    ap.add_argument('--nodma', action='store_true')
    ap.add_argument('--cpf', type=int, default=1)
    ap.add_argument('--coop', type=int, default=1)
    ap.add_argument('--coopw', type=int, default=2)
    ap.add_argument('--tbpos', type=int, default=0)
    ap.add_argument('--dbar3', type=int, default=1)
    ap.add_argument('--tlb', type=int, default=0)
    ap.add_argument('--tlb2', type=int, default=1)
    ap.add_argument('--itst', type=int, default=0)
    ap.add_argument('--diag', type=int, default=0)
    ap.add_argument('--dbg', default='')
    ap.add_argument('--lead3', type=int, default=1)
    ap.add_argument('--morder', type=int, default=0)
    ap.add_argument('--etlb', type=int, default=0)
    ap.add_argument('--lateb', type=int, default=0)
    ap.add_argument('--wfl', default='')
    ap.add_argument('--xfl', default='')
    ap.add_argument('--tag', type=int, default=0)
    ap.add_argument('--idxfirst', type=int, default=1)
    ap.add_argument('--bpos', type=int, default=2)
    ap.add_argument('--sigat', type=int, default=4)
    ap.add_argument('--epx', type=int, default=1)
    ap.add_argument('--denorm', type=int, default=3)
    ap.add_argument('--mprio', type=int, default=0)
    ap.add_argument('--swap', type=int, default=0)
    ap.add_argument('--bov', type=int, default=1)
    ap.add_argument('--rfirst', type=int, default=0)
    ap.add_argument('--g1x', type=int, default=0)
    ap.add_argument('--ldsred', type=int, default=0)
    ap.add_argument('--csnake', type=int, default=0)
    ap.add_argument('--cswap', type=int, default=0)
    ap.add_argument('--align', type=int, default=0)
    ap.add_argument('--c2', type=int, default=0)
    ap.add_argument('--d1', type=int, default=0)
    ap.add_argument('--cstr', type=int, default=3)
    ap.add_argument('--bearly', type=int, default=1)
    ap.add_argument('--w2late', type=int, default=1)
    ap.add_argument('--aov', type=int, default=5)
    ap.add_argument('--upos', type=int, default=1)
    ap.add_argument('--calt', type=int, default=1)
    ap.add_argument('--pfpos', type=int, default=1)
    ap.add_argument('--wlate', type=int, default=0)
    ap.add_argument('--dbar2', type=int, default=0)
    ap.add_argument('--dbar', type=int, default=0)
    ap.add_argument('--pfw', type=int, default=0)
    ap.add_argument('--pfx', type=int, default=0)
    ap.add_argument('--pfx0', type=int, default=4)
    ap.add_argument('--pfs', type=int, default=1)
    ap.add_argument('--dcoopx', type=int, default=1)
    ap.add_argument('--dcx0', type=int, default=0)
    ap.add_argument('--dcxpos', type=int, default=-1)
    ap.add_argument('--pfe0', type=int, default=2)
    ap.add_argument('--pfne', type=int, default=13)
    ap.add_argument('--prio47', type=int, default=0)
    ap.add_argument('--lookahead', type=int, default=5)
    ap.add_argument('--nz', type=int, default=6)
    ap.add_argument('--nwf', type=int, default=8)
    ap.add_argument('--hiat', type=int, default=4)
    ap.add_argument('--wmerge', type=int, default=0)
    ap.add_argument('--gapv', type=int, default=6)
    ap.add_argument('--slow', type=int, default=0)
    ap.add_argument('--ct2', default='')
    ap.add_argument('--ewat', type=int, default=0)
    ap.add_argument('--gprio', type=int, default=1)
    ap.add_argument('--g1t', type=int, default=1)
    ap.add_argument('--tf0', type=int, default=6)
    ap.add_argument('--twoff', type=int, default=0)
    ap.add_argument('--ew', type=int, default=4)
    ap.add_argument('--ew0', type=int, default=2)
    ap.add_argument('--cyc', default='')
    ap.add_argument('--rshare', type=int, default=1)
    ap.add_argument('--dwalk', type=int, default=0)
    ap.add_argument('--band', type=int, default=0)
    ap.add_argument('--absol', type=int, default=0)
    ap.add_argument('--rev', type=int, default=1)
    ap.add_argument('--xg1', type=int, default=0)
    ap.add_argument('--bou', type=int, default=1)
    ap.add_argument('--sjw', type=int, default=7)
    ap.add_argument('--cwalk', type=int, default=0)
    ap.add_argument('--few', default='')
    ap.add_argument('--econv', type=int, default=0)
    ap.add_argument('--nsh', type=int, default=16)
    ap.add_argument('--sh0', type=int, default=5)
    ap.add_argument('--dirt', type=int, default=0)
    ap.add_argument('--mrg', type=int, default=0)
    ap.add_argument('--g1p', type=int, default=0)
    ap.add_argument('--sa', type=int, default=4)
    ap.add_argument('--sbg', type=int, default=16)
    ap.add_argument('--bwat', type=int, default=0)
    ap.add_argument('--x2n', type=int, default=8)
    ap.add_argument('--sent', type=int, default=1)
    ap.add_argument('--spec', type=int, default=0)
    ap.add_argument('--probe', default='')
    ap.add_argument('--skew', type=int, default=0)
    ap.add_argument('--fix', type=int, default=64)
    ap.add_argument('--walk', type=int, default=0)
    ap.add_argument('--eal', type=int, default=3)
    ap.add_argument('--eoff', type=int, default=0)
    ap.add_argument('--ct', default='024')
    ap.add_argument('--rot', type=int, default=13)
    ap.add_argument('--i0', type=int, default=1)
    ap.add_argument('--i1', type=int, default=10)
    ap.add_argument('--burn', type=int, default=0)
    ap.add_argument('--lord', type=int, default=1)
    ap.add_argument('--lprio', type=int, default=0)
    ap.add_argument('--rsp', type=int, default=0)
    ap.add_argument('--tch', type=int, default=1)
    ap.add_argument('--tf', type=int, default=4)
    ap.add_argument('--toff', type=int, default=1)
    ap.add_argument('--tw0', type=int, default=8)
    ap.add_argument('--xat', type=int, default=0)
    ap.add_argument('--pf1', type=int, default=1)
    ap.add_argument('--lpf', type=int, default=20)
    ap.add_argument('--lpfit', type=int, default=6)
    ap.add_argument('--x1m', type=int, default=10)
    ap.add_argument('--bgap', type=int, default=6)
    ap.add_argument('--cprio', type=int, default=1)
    ap.add_argument('--x1n', type=int, default=5)
    ap.add_argument('--w0', type=int, default=2)
    ap.add_argument('--dbar1', type=int, default=1)
    ap.add_argument('--aon', type=int, default=2)
    ap.add_argument('--cbar', type=int, default=0)
    ap.add_argument('--vmpos', type=int, default=2)
    ap.add_argument('--il2', type=int, default=0)
    ap.add_argument('--p1', type=int, default=0)
    ap.add_argument('--pm', type=int, default=2)
    ap.add_argument('--cbov', type=int, default=3)
    ap.add_argument('--p0', type=int, default=0)
    ap.add_argument('--max2', type=int, default=2)
    ap.add_argument('--eager', type=int, default=0)
    ap.add_argument('--cst', type=int, default=0)
    ap.add_argument('--x0', type=int, default=60)
    ap.add_argument('--xlat', type=int, default=18)
    ap.add_argument('--xper', type=int, default=3)
    ap.add_argument('--xc0', type=int, default=0)
    ap.add_argument('--n3', type=int, default=1)
    ap.add_argument('--xi0', type=int, default=1)
    ap.add_argument('--pfsat', type=int, default=0)
    ap.add_argument('--g1prio', type=int, default=0)
    ap.add_argument('--xearly', type=int, default=1)
    ap.add_argument('--cpfd', type=int, default=4)
    ap.add_argument('--cla', type=int, default=1)
    ap.add_argument('--war', type=int, default=1)
    opt = ap.parse_args()
    resolve_waits.dbg = 'dup' in opt.dbg
    g = Gen(opt)
    txt = g.build()
    open(opt.o, 'w').write(txt)
    print('wrote', opt.o, len(txt), 'bytes')


if __name__ == '__main__':
    main()
```

```python
import sys, os, struct, argparse
sys.path.insert(0, os.path.dirname(os.path.abspath(__file__)))
from asmlib import I, WaitTag, Touch, Prog, resolve_waits, resolve_hazards
import cin16, fixalign

KNAME = 'standalone__deep_cross_xdeepfm__recsys_kernel'
LDS_TOTAL = 163840

XSLOT = 320 * 128
WR = 3 * XSLOT + 8192
WSLOT = 32 * 256
L_BIAS = 3 * XSLOT
L_W2 = L_BIAS + 256
RB = L_W2 + 256
assert WR % 32768 == 0 and WR + 4 * WSLOT <= LDS_TOTAL
WSP = 16640
assert RB + 2560 <= LDS_TOTAL

W2P = 1536
SSZ = 677 * 64
FRS = 0
V3OFF = 0
A1 = 6144
FR = A1
FRL = FR + 33 * 1024
A3 = FRL + 2048
SG = A3
A2 = SG + SSZ
SQ = A2
V2S = SQ + SSZ
L_WCO = V2S + 832
L_FLG = L_WCO + 192
L_MX = L_FLG + 16
RC = L_FLG + 64
XB = V2S + 2496
XPP = 1056
XBSZ = 3 * XPP + 7 * 128
IMG = A3
IMGP = 160
IMGSZ = 33 * IMGP
XB2 = IMG + 8 * IMGSZ
PART = XB2 + 8 * XBSZ
XOFF = lambda f: (f & 3) * XPP + (f >> 2) * 128
assert RC + 512 <= V2S + 1664
assert XB + 8 * XBSZ <= LDS_TOTAL and XB % 16 == 0 and A2 % 64 == 0 and A3 % 64 == 0 and L_WCO % 16 == 0 and V2S % 64 == 0
assert PART + 8 * 1536 <= V2S + 832 and IMGSZ % 32 == 0 and XB2 % 16 == 0

S_WAVE = 3
S_IDX, S_TAB, S_CIN, S_WCO, S_W1, S_B1, S_W2, S_BO, S_OUT, S_DBG, S_WS = 4, 6, 8, 10, 12, 14, 16, 18, 20, 22, 24
S_MB, S_R = 26, 27
SRD_IDX, SRD_TAB, SRD_CIN, SRD_WCO, SRD_W, SRD_B1, SRD_W2, SRD_OUT, SRD_WS, SRD_DBG = 28, 32, 36, 40, 44, 48, 52, 56, 60, 64
S_T0, S_T1, S_T2, S_T3 = 68, 69, 70, 71
S_LOOP, S_IDXOFF, S_WSOFF, S_WMB, S_XM0, S_N0, S_C0, S_CW, S_BOUT, S_TW = 72, 73, 74, 75, 76, 77, 78, 79, 80, 81
S_EX = 82
S_GRP, S_RC = 84, 85
S_ST = 86
S_M26, S_MASK = 90, 92
S_SAMP, S_STG, S_STG9, S_TGT = 94, 95, 96, 97
S_M26B = 98
S_GW = 100
S_TAGT = 0
S_TAG = 1
S_PW = 101
S_PX = 77
S_PXE = 73

GELU_C0 = -2.0 * 0.7978845608028654 * 1.4426950408889634
GELU_C1 = GELU_C0 * 0.044715


def f32hex(x):
    return '0x%08x' % struct.unpack('<I', struct.pack('<f', x))[0]


def vr(a, n):
    return f'v[{a}:{a + n - 1}]' if n > 1 else f'v{a}'


def srd(a):
    return f's[{a}:{a + 3}]'


def flat(gs):
    res = []
    for c in gs:
        if isinstance(c, (tuple, list)):
            res += flat(c)
        else:
            res.append(c)
    return res


def interleave(a, b):
    out = []
    ia = ib = 0
    na, nb = len(a), len(b)
    while ia < na or ib < nb:
        if ib >= nb or (ia < na and ia * nb <= ib * na):
            out.append(a[ia]); ia += 1
        else:
            out.append(b[ib]); ib += 1
    return out


SLOTS = []
for j in range(0, 26, 2):
    for s in range(0, 14 if j <= 12 else 13):
        SLOTS.append((j, (j + s) % 26))
assert len(SLOTS) == 176
DUP_SLOT = SLOTS.index((12, 25))
assert all((d * 2521) >> 16 == d // 26 for d in range(800))
assert all((d * 10923) >> 16 == d // 6 for d in range(64))
assert all((d * 5042) >> 16 == d // 13 for d in range(170))
assert all((d * 3277) >> 16 == d // 20 for d in range(264))


DOC = '''; ---------------------------------------------------------------------------------------------
; Generated by tools/gen23.py (own generator; waits / hazard nops derived from instruction traces).
;
;       U[i,j,k] = sum_h W2[h,i,j] V3[h,k]
;   Both quadratic forms use the 351 distinct products x_j x_k (j<=k) with symmetrised weights, evaluated by
;   DNN branch: full bf16 GEMM + bias + tanh-GELU (x / (1 + exp(-2u))) + dot with w_dnn2.
;   their own producer) and counters in d_debug; the last arriver of a row block adds up and writes d_out.
;   L_tables holds constant per-lane LDS address tables (functions of the lane id only).
; ---------------------------------------------------------------------------------------------
'''


class Gen:
    def __init__(self, opt):
        self.opt = opt
        self.P = Prog()

    def seq(self, lines):
        return [self.P.add(l) for l in flat(lines)]

    def build_srd(self, dst, ptr, size):
        return [f's_mov_b32 s{dst}, s{ptr}', f's_and_b32 s{dst + 1}, s{ptr + 1}, 0xffff',
                f's_mov_b32 s{dst + 2}, {size}', f's_mov_b32 s{dst + 3}, 0x20000']

    def stamp(self, slot):
        if not self.opt.stamps or (self.opt.few and slot not in [int(x) for x in self.opt.few.split(',')]):
            return []
        return [f's_memtime s[{S_ST}:{S_ST + 1}]', f's_memrealtime s[{S_ST + 2}:{S_ST + 3}]', 's_waitcnt lgkmcnt(0)',
                f'v_writelane_b32 v252, s{S_ST}, {slot}', f'v_writelane_b32 v253, s{S_ST + 2}, {slot}']

    def probe(self, name, wave=4):
        if self.opt.cyc:
            a_, b_, _ = self.opt.cyc.split(',')
            return ['s_memtime s[86:87]', 's_waitcnt lgkmcnt(0)'] if name == a_ else ['s_memtime s[88:89]', 's_waitcnt lgkmcnt(0)'] if name == b_ else []
        if self.opt.probe != name:
            return []
        return ['s_memrealtime s[88:89]', 's_waitcnt lgkmcnt(0)']

    def stamp_flush(self):
        if not self.opt.stamps:
            return []
        L = self.build_srd(SRD_WS, S_WS, 0x10000000)
        L += [f's_lshl_b32 s{S_C0}, s2, 3', f's_add_u32 s{S_C0}, s{S_C0}, s{S_WAVE}',
              f's_lshl_b32 s{S_C0}, s{S_C0}, 8', f's_add_u32 s{S_C0}, s{S_C0}, 0x100000',
              'v_lshlrev_b32 v254, 3, v0', 's_mov_b32 exec_hi, 0',
              f'buffer_store_dwordx2 v[252:253], v254, {srd(SRD_WS)}, s{S_C0} offen', 's_mov_b32 exec_hi, -1']
        return L

    def stamp0(self):
        if not self.opt.stamps:
            return []
        return ['v_mov_b32 v252, 0xcdcdcdcd', 'v_mov_b32 v253, 0xcdcdcdcd',
                f'v_writelane_b32 v252, s{S_ST}, 0', f'v_writelane_b32 v253, s{S_ST + 2}, 0'] + self.stamp(15)

    def tlb2(self, t):
        L = self.build_srd(SRD_WS, S_WS, 0x10000000) + self.build_srd(SRD_OUT, S_OUT, 8192) + self.build_srd(SRD_DBG, S_DBG, 256)
        L += [f's_load_dword s{S_BOUT}, s[{S_BO}:{S_BO + 1}], 0', f'v_mov_b32 v{t}, 0', 's_mov_b64 exec, 1',
              f's_mov_b32 s{S_TW}, 0x80000',
              f'buffer_load_dword v{t + 1}, v{t}, {srd(SRD_WS)}, s{S_TW} offen',
              f'buffer_load_dword v{t + 2}, v{t}, {srd(SRD_OUT)}, 0 offen',
              's_mov_b64 exec, -1']
        return L

    def tlb1(self, vtmp, vdst):
        if not self.opt.etlb:
            return self.build_srd(SRD_TAB, S_TAB, 100000 * 128)
        return self.build_srd(SRD_TAB, S_TAB, 100000 * 128) + [
            f'v_mov_b32 v{vtmp}, s{S_BOUT}', f'buffer_load_dword v{vdst}, v{vtmp}, {srd(SRD_TAB)}, 0 offen']

    def gettag(self, lab, t, VT):
        return [f's_cmp_lg_u32 s{S_WAVE}, 0', f's_cbranch_scc1 {lab}',
                f's_memrealtime s[{S_TAGT}:{S_TAGT + 1}]'] + self.build_srd(SRD_DBG, S_DBG, 256) + [
                f's_lshl_b32 s{S_TW}, s{S_MB}, 2', f'v_mov_b32 v{t}, s{S_TW}', 's_waitcnt lgkmcnt(0)',
                f's_or_b32 s{S_TAG}, s{S_TAGT}, 1', f'v_mov_b32 v{VT}, s{S_TAG}', f'v_mov_b32 v{VT + 1}, 0',
                's_mov_b64 exec, 1',
                f'buffer_atomic_cmpswap v[{VT}:{VT + 1}], v{t}, {srd(SRD_DBG)}, 0 offen offset:128 sc0',
                's_mov_b64 exec, -1', f'{lab}:']

    def prologue(self):
        L = []
        if self.opt.stamps:
            L += [f's_memtime s[{S_ST}:{S_ST + 1}]', f's_memrealtime s[{S_ST + 2}:{S_ST + 3}]']
        L += ['s_cmp_ge_u32 s2, 256', 's_cbranch_scc1 L_end',
              's_load_dwordx16 s[4:19], s[0:1], 0',
              's_load_dwordx4 s[20:23], s[0:1], 64',
              's_load_dwordx2 s[24:25], s[0:1], 80',
              'v_lshrrev_b32 v1, 6, v0']
        if self.opt.cpf:
            L += [f's_getpc_b64 s[{S_MASK}:{S_MASK + 1}]', 'L_pc:',
                  f's_and_b32 s{S_T0}, s2, 0xf8', f'v_add_u32 v2, s{S_T0}, v1', 'v_and_b32 v3, 32, v0', 'v_lshl_add_u32 v2, v3, 3, v2', 'v_lshlrev_b32 v2, 7, v2',
                  f'v_min_u32 v2, L_end-L_pc, v2',
                  f'v_mov_b32 v3, s{S_MASK + 1}',
                  f'v_add_co_u32 v2, vcc, s{S_MASK}, v2', 'v_addc_co_u32 v3, vcc, 0, v3, vcc',
                  'global_load_dword v251, v[2:3], off']
        if self.opt.skew:
            L += ['s_memtime s[86:87]' if self.opt.cyc else 's_memrealtime s[86:87]', 's_mov_b32 s88, 0']
        L += ['v_and_b32 v0, 63, v0',
              f'v_readfirstlane_b32 s{S_WAVE}, v1',
              f's_and_b32 s{S_T0}, s2, 7', f's_lshr_b32 s{S_T1}, s2, 3', f's_xor_b32 s{S_T1}, s{S_T1}, {31 * self.opt.rev}',
              f's_and_b32 s{S_BOUT}, s2, 0xf8', f's_add_u32 s{S_BOUT}, s{S_BOUT}, s{S_WAVE}', f's_lshl_b32 s{S_BOUT}, s{S_BOUT}, {self.opt.etlb}',
              f's_min_u32 s{S_T2}, s{S_T0}, 1', f's_add_u32 s{S_T3}, s{S_T1}, s{S_T2}',
              f's_cmp_ge_u32 s{S_T3}, 22', 's_cbranch_scc1 L_cin',
              f's_mul_i32 s{S_T0}, s{S_T0}, 21', f's_add_u32 s{S_T0}, s{S_T0}, s{S_T3}',
              ]
        if self.opt.band == 0:
            L += [f's_mul_i32 s{S_MB}, s{S_T0}, 5042', f's_lshr_b32 s{S_MB}, s{S_MB}, 16',
                  f's_mul_i32 s{S_T1}, s{S_MB}, 13', f's_sub_u32 s{S_R}, s{S_T0}, s{S_T1}']
        else:
            assert all((d * 9363) >> 16 == d // 7 for d in range(91)) and all((d * 10923) >> 16 == d // 6 for d in range(78))
            L += [f's_sub_u32 s{S_T1}, 168, s{S_T0}', f's_cmp_lt_u32 s{S_T0}, 91', f's_cselect_b32 s{S_T0}, s{S_T0}, s{S_T1}',
                  f's_cselect_b32 s{S_T1}, 0, 1560', f's_cselect_b32 s{S_T2}, 7, 6', f's_cselect_b32 s{S_R}, 0, 7', f's_add_u32 s{S_T1}, s{S_T1}, 9363',
                  f's_mul_i32 s{S_MB}, s{S_T0}, s{S_T1}', f's_lshr_b32 s{S_MB}, s{S_MB}, 16', f's_mul_i32 s{S_T1}, s{S_MB}, s{S_T2}',
                  f's_add_u32 s{S_R}, s{S_R}, s{S_T0}', f's_sub_u32 s{S_R}, s{S_R}, s{S_T1}']
        return self.seq(L)

    def dnn(self):
        o = self.opt
        vW = [1, 2, 3, 4]
        vX = [[5, 6], [7, 8]]
        vPa, vPc = 9, 10
        WF, XA, ACC = 16, 48, 88
        W2F = WF
        KC0, KC1, KONE = 12, 14, 248
        SUMP, GT = 32, 52
        vIdxOff, vCh, vWD, vBL = 1, [2, 3], [4, 5], 11
        ST, VO = 16, 56
        T = 100
        g, i4, q = T + 16, T + 17, T + 18
        PI = T + 8

        def acc(tn, tm):
            return ACC + (tm * 4 + tn) * 4

        def small(srd_, dst):
            return [f's_mov_b32 m0, {dst}', 's_mov_b64 exec, 0xffff',
                    I(f'buffer_load_dwordx4 v{vBL}, {srd(srd_)}, s{S_N0} offen lds', tag='BIAS'), 's_mov_b64 exec, -1']
        L = [f's_lshl_b32 s{S_N0}, s{S_R}, 8', f's_mul_i32 s{S_T3}, s{S_MB}, 320',
             f'v_lshrrev_b32 v{g}, 4, v0', f'v_lshlrev_b32 v{vBL}, 4, v0', f's_and_b32 s{S_CW}, s{S_WAVE}, 3',
             f's_cmp_lt_u32 s{S_WAVE}, 4', 's_cbranch_scc1 L_cmp']
        c0 = self.seq(L)
        self.ldat = len(self.P.static)
        PI = T

        RG, CG = S_T0, S_T1
        L = ['L_cmp:', f's_mul_i32 s{S_T2}, s{S_WAVE}, 13', f'v_min_u32 v{q}, 12, v0', f'v_add_u32 v{q}, s{S_T2}, v{q}',
             f'v_lshrrev_b32 v{i4}, 1, v{q}', f'v_mul_u32_u24 v{i4}, 96, v{i4}', f'v_lshl_add_u32 v{q}, v{q}, 2, v{i4}',
             f's_mul_i32 s{S_C0}, s{S_R}, 25', f's_min_u32 s{S_C0}, s{S_C0}, 294',
             f's_add_u32 s{S_C0}, s{S_C0}, s{S_T3}', f's_mul_i32 s{S_C0}, s{S_C0}, 104', 's_waitcnt lgkmcnt(0)']
        ct = [int(x) for x in o.ct + o.ct2]
        L += self.build_srd(SRD_IDX, S_IDX, 4096 * 104)
        if ct:
            L += [f'buffer_load_dwordx4 {vr(PI, 4)}, v{q}, {srd(SRD_IDX)}, s{S_C0} offen']
        if ct and max(ct) > 3:
            L += [f'buffer_load_dwordx4 {vr(PI + 4, 4)}, v{q}, {srd(SRD_IDX)}, s{S_C0} offen offset:16']
        L += self.tlb1(T + 14, T + 15)
        if o.ptl:
            L += [f'v_lshlrev_b32 v{T + 14}, {o.ptl}, v0', f's_lshl_b32 s{S_T2}, s{S_WAVE}, {o.ptl - 2}', f's_mov_b64 exec, {(1 << min(64, (12800000 >> o.ptl) + 1)) - 1}',
                  f'buffer_load_dword v{T + 15}, v{T + 14}, {srd(SRD_TAB)}, s{S_T2} offen', 's_mov_b64 exec, -1']
        touch = [x for k in ct for x in (f'v_lshlrev_b32 v{PI + k}, 7, v{PI + k}', f'buffer_load_dword v{acc(0, 7) + k}, v{PI + k}, {srd(SRD_TAB)}, 0 offen')]
        touch, touch2 = touch[:2 * len(o.ct)], touch[2 * len(o.ct):]
        L += self.build_srd(SRD_B1, S_B1, 3328) + small(SRD_B1, L_BIAS)
        if o.ew:
            L += self.build_srd(SRD_W, S_W1, 1664 * 3328) + [f's_lshl_b32 s{S_T2}, s{S_MB}, 2', f's_add_u32 s{S_T2}, s{S_T2}, s{S_WAVE}', f's_add_u32 s{S_T2}, s{S_T2}, {o.ew0 * 32}',
                  f's_mul_i32 s{S_T2}, s{S_T2}, 3328', f's_add_u32 s{S_T2}, s{S_T2}, s{S_N0}', f's_mov_b32 s{S_TW}, {52 * 3328}',
                  f'v_lshrrev_b32 v{q}, 1, v0', f'v_mul_lo_u32 v{q}, s{S_TW}, v{q}', f'v_and_b32 v{i4}, 1, v0', f'v_lshl_add_u32 v{q}, v{i4}, 7, v{q}',
                  f'v_add_u32 v{T + 12}, s{S_T2}, v{q}']
            ewl = [f's_mov_b64 exec, {(1 << (2 * o.ew)) - 1}', f'buffer_load_dword v251, v{T + 12}, {srd(SRD_W)}, 0 offen', 's_mov_b64 exec, -1']
            if o.ewat == 0:
                L += ewl
            elif o.ewat == 1:
                touch = touch + ewl
            else:
                touch2 = touch2 + ewl
        L += self.stamp0()
        L += [f's_and_b32 s{RG}, s{S_WAVE}, 1', f's_lshr_b32 s{CG}, s{S_WAVE}, 1',
              f'v_bfe_u32 v{i4}, v0, 2, 2', f'v_lshl_add_u32 v{q}, v{g}, 3, v{i4}', f'v_lshlrev_b32 v{q}, 8, v{q}',
              f'v_bfe_u32 v{i4}, v0, 2, 3', f's_lshl_b32 s{S_T2}, s{CG}, 2', f'v_xor_b32 v{i4}, s{S_T2}, v{i4}',
              f'v_lshl_add_u32 v{q}, v{i4}, 5, v{q}', f'v_and_b32 v{i4}, 3, v0', f'v_lshl_add_u32 v{q}, v{i4}, 3, v{q}',
              f'v_add_u32 v{vW[0]}, {WR}, v{q}']
        L += [f'v_xor_b32 v{vW[tn]}, {32 * tn}, v{vW[0]}' for tn in range(1, 4)]
        L += [f's_lshl_b32 s{S_T2}, s{CG}, 7', f's_add_u32 s{S_T2}, s{S_T2}, {L_BIAS}', f'v_lshlrev_b32 v{q}, 3, v{g}', f'v_add_u32 v{vPa}, s{S_T2}, v{q}',
              f'v_and_b32 v{q}, 15, v0', f'v_lshlrev_b32 v{q}, 7, v{q}',
              f'v_bfe_u32 v{i4}, v0, 1, 3', f'v_xor_b32 v{i4}, v{i4}, v{g}', f'v_lshl_add_u32 v{q}, v{i4}, 4, v{q}',
              f's_mul_i32 s{S_T2}, s{RG}, 20480', f'v_add_u32 v{vX[0][0]}, s{S_T2}, v{q}', f'v_xor_b32 v{vX[1][0]}, 64, v{vX[0][0]}',
              f'v_add_u32 v{vX[0][1]}, {2 * XSLOT}, v{vX[0][0]}', f'v_add_u32 v{vX[1][1]}, {2 * XSLOT}, v{vX[1][0]}',
              f's_mul_i32 s{S_T2}, s{S_WAVE}, 640', f's_add_u32 s{S_T2}, s{S_T2}, {RB}',
              f'v_and_b32 v{q}, 15, v0', f'v_lshlrev_b32 v{q}, 2, v{q}', f'v_add_u32 v{q}, s{S_T2}, v{q}',
              f'v_lshrrev_b32 v{i4}, 5, v0', f'v_lshl_add_u32 v{q}, v{i4}, 6, v{q}', f'v_bfe_u32 v{i4}, v0, 4, 1', f'v_lshl_add_u32 v{vPc}, v{i4}, 7, v{q}',
              f's_mov_b32 s{S_LOOP}, 0',
              f'v_mov_b32 v{KC0}, {f32hex(GELU_C0)}', f'v_mov_b32 v{KC0 + 1}, {f32hex(GELU_C0)}',
              f'v_mov_b32 v{KC1}, {f32hex(GELU_C1)}', f'v_mov_b32 v{KC1 + 1}, {f32hex(GELU_C1)}']

        def pkreads(off, dst):
            return [f'ds_read_b64 {vr(dst + 4 * tn + 2, 2)}, v{vPa} offset:{off + 32 * tn}' for tn in range(4)]

        def unp(dst):
            c = []
            for tn in range(4):
                r = dst + 4 * tn
                c += [f'v_lshlrev_b32 v{r}, 16, v{r + 2}', f'v_and_b32 v{r + 1}, 0xffff0000, v{r + 2}',
                      f'v_lshlrev_b32 v{r + 2}, 16, v{r + 3}', f'v_and_b32 v{r + 3}, 0xffff0000, v{r + 3}']
            return c
        L += touch + self.stamp(6)
        BI = [WaitTag(vm_tags=['BIAS'])] + pkreads(0, acc(0, 9)) + unp(acc(0, 9)) + [f'v_mov_b64 {vr(acc(0, 8) + r, 2)}, {vr(acc(0, 9) + r, 2)}' for r in range(0, 16, 2)]

        def rX(p, k):
            xs = p % 3
            return f'ds_read_b128 {vr(XA + 4 * (k % 10), 4)}, v{vX[k % 2][xs // 2]} offset:{(xs % 2) * XSLOT + (k // 2) * 2048}'

        def rW(tn):
            return [f'ds_read_b64_tr_b16 {vr(WF + 16 * par + 4 * tn + 2 * rd, 2)}, v{vW[tn]} offset:{par * WSLOT + rd * 1024}' for par in range(2) for rd in range(2)]
        tog = lambda tn: f'v_xor_b32 v{vW[tn]}, {2 * WSLOT}, v{vW[tn]}'

        def dec(gi):
            G, tn, a_, par = gi // 16, (gi // 4) % 4, (gi // 2) % 2, gi % 2
            if o.bou:
                par ^= a_ ^ (G == 4)
                a_ ^= tn & 1
            return G, tn, a_, par
        lastx = {4 * dec(gi)[0] + 2 * dec(gi)[2] + dec(gi)[3]: gi for gi in range(80)}

        def mf(gi, first=False):
            G, tn, a_, par = dec(gi)
            d = acc(tn, 2 * G + a_)
            if first and gi % 2 == 0 and G < 4:
                return f'v_mfma_f32_16x16x32_bf16 {vr(d, 4)}, {vr(WF + 16 * par + 4 * tn, 4)}, {vr(XA + 4 * ((4 * G + 2 * a_ + par) % 10), 4)}, {vr(acc(tn, 9), 4)}'
            return f'v_mfma_f32_16x16x32_bf16 {vr(d, 4)}, {vr(WF + 16 * par + 4 * tn, 4)}, {vr(XA + 4 * ((4 * G + 2 * a_ + par) % 10), 4)}, {vr(d, 4)}'
        SH = [11, 248, 249, 250]
        nsh = o.nsh

        def shadow():
            c = []
            for b0 in range(0, nsh, 4):
                E = [(ACC + e, SH[e - b0]) for e in range(b0, min(b0 + 4, nsh))]
                for op in ('v_mul_f32 T, X, X', f'v_fma_f32 T, T, v{KC1}, v{KC0}', 'v_mul_f32 T, T, X', 'v_exp_f32 T, T', 'v_add_f32 T, 1.0, T', 'v_rcp_f32 T, T', 'v_mul_f32 X, X, T'):
                    c += [(op.replace('T', f'v{t}').replace('X', f'v{x}'), 8 if ('exp' in op or 'rcp' in op) else 4) for x, t in E]
            return c

        def cpair(p, kind, loopend=False):
            S = []
            ev = {}
            if kind == 'first':
                g_ = o.sbg + 1
                for k in range(2 * o.sa, 10):
                    ev[g_] = rX(p, k); g_ += 1
            else:
                for i_, x in enumerate(rW(3)[2:]):
                    ev[i_] = x
                for i_, k in enumerate(range(6, 10)):
                    ev[2 + i_] = rX(p, k)
            for k in range(10):
                g_ = lastx[k]
                while g_ in ev or (kind == 'first' and g_ <= o.sbg):
                    g_ += 1
                ev[g_] = rX(p, k + 10)
            BG = 48 + o.bgap if o.bou else 46 + o.bgap
            if kind != 'last':
                ev[BG], ev[BG + 1] = rX(p + 1, 0), rX(p + 1, 1)
                for k in range(2, 6):
                    ev[lastx[10 + k]] = rX(p + 1, k)
                for tn in range(4):
                    for i_, x in enumerate(rW(tn)):
                        if 66 + 4 * tn + i_ < 80:
                            ev[66 + 4 * tn + i_] = x
            sh_ = shadow() if kind == 'last' else []
            for gi in range(80):
                S.append(mf(gi, kind == 'first'))
                t = 4
                if o.dwalk and kind != 'last' and gi in (24, 40, 64, 7):
                    S += [f'L_dw{self.ndw}:', f's_cbranch_execz L_dw{self.ndw + 1}']
                    self.ndw += 1
                if kind == 'first' and gi == o.sbg:
                    S += (self.stamp(20) if o.itst == 2 else []) + ['s_barrier'] + (self.stamp(21) if o.itst == 2 else [])
                if kind != 'last' and gi == BG - 1:
                    st_ = lambda k: ([f's_cmp_lg_u32 s{S_LOOP}, 0', f's_cbranch_scc1 L_ns{k}'] + self.stamp(k) + [f'L_ns{k}:']) if (o.itst == 2 and p < 3) else []
                    S += ['s_waitcnt lgkmcnt(0)'] + st_(22 + 2 * p) + ['s_barrier'] + st_(23 + 2 * p)
                if gi in ev:
                    S.append(ev[gi]); t += 8
                if kind != 'last' and 8 <= gi < 12:
                    S.append(tog(gi - 8))
                if gi % 2 == 0 and gi + 2 < 80:
                    n_ = gi + 2
                    G, tn, a_ = n_ // 16, (n_ // 4) % 4, (n_ // 2) % 2
                    if tn == 0:
                        S.append(Touch(vr(XA + 4 * ((4 * G + 2 * a_) % 10), 8)))
                    if G == 0 and a_ == 0:
                        S.append(Touch(vr(WF + 16 + 4 * tn, 4)))
                if gi == 78 and kind != 'last':
                    S.append(Touch(vr(WF + 16, 4)))
                if loopend and gi == 48:
                    S += [f's_add_u32 s{S_LOOP}, s{S_LOOP}, 1', f's_cmp_lt_u32 s{S_LOOP}, 8']
                t = max(t, 8)
                while sh_ and gi >= o.sh0 and t + sh_[0][1] <= 16:
                    x, c_ = sh_.pop(0)
                    S.append(x); t += c_
            S += [x for x, _ in sh_]
            if kind == 'last':
                print('shadow left', len(sh_))
            return S
        self.ndw = 0
        if o.dwalk:
            L += ['s_mov_b64 exec, 0'] + [x for q_ in range(3) for x in (f's_cmp_eq_u32 s{S_WAVE}, {q_}', f's_cbranch_scc1 L_dw{4 * q_}')] + ['s_branch L_dw12', 'L_dw16:', 's_mov_b64 exec, -1']
        L += self.stamp(1) + ['s_barrier'] + [x for tn in range(4) for x in rW(tn)] + BI + touch2 + ['s_waitcnt lgkmcnt(0)', f's_setprio {o.cprio}', 's_barrier'] + self.stamp(2)
        L += [rX(0, k) for k in range(2 * o.sa)] + cpair(0, 'first')
        cpre = self.seq(L)
        body = self.seq(['L_dnn_loop0:'])
        for p in range(1, 4):
            S = cpair(p, 'mid', p == 3)
            if p == 3:
                if o.stamps and o.itst == 1:
                    i_ = S.index('s_barrier')
                    S = S[:i_] + [f's_memtime s[{S_ST}:{S_ST + 1}]', f's_memrealtime s[{S_ST + 2}:{S_ST + 3}]', f's_or_b32 m0, s{S_LOOP}, 16', 's_waitcnt lgkmcnt(0)',
                                  f'v_writelane_b32 v252, s{S_ST}, m0', f'v_writelane_b32 v253, s{S_ST + 2}, m0', f's_cmp_lt_u32 s{S_LOOP}, 8'] + S[i_:]
                S += ['s_cbranch_scc1 L_dnn_loop0']
            body += self.seq(S)
        tc = c0 + cpre + body * 2 + self.seq(['L_tail:'])
        tc += self.seq(cpair(25, 'last') + pkreads(256, W2F) + [f'v_mov_b32 v{KONE}, 1.0', f'v_mov_b32 v{KONE + 1}, 1.0'])
        if o.burn:
            bl = [f's_movk_i32 s{S_LOOP}, {o.burn}', 'L_burn:'] + [f'v_mfma_f32_16x16x32_bf16 {vr(XA + 32 + 4 * (k % 2), 4)}, {vr(WF + 16 + 4 * (k % 4), 4)}, {vr(XA + 4 * (k // 4), 4)}, 0' for k in range(32)]
            tc += self.seq(bl + [f's_sub_u32 s{S_LOOP}, s{S_LOOP}, 1', f's_cmp_lg_u32 s{S_LOOP}, 0', 's_cbranch_scc1 L_burn'])
        tc += self.seq(['L_epi:'] + self.stamp(3))

        p2 = lambda r: vr(r, 2)
        seen = set()

        def gelu(groups):
            L = []
            for k, vals in enumerate(groups):
                tb = GT + (k % 2) * 16
                V_ = [(x, w, s_, tb + 4 * i_, tb + 4 * i_ + 2) for i_, (x, w, s_) in enumerate(vals)]
                for (x, w, s_, t, u) in V_:
                    L.append(f'v_pk_mul_f32 {p2(t)}, {p2(x)}, {p2(x)}')
                for (x, w, s_, t, u) in V_:
                    L.append(f'v_pk_fma_f32 {p2(t)}, {p2(t)}, {p2(KC1)}, {p2(KC0)}')
                for (x, w, s_, t, u) in V_:
                    L.append(f'v_pk_mul_f32 {p2(t)}, {p2(t)}, {p2(x)}')
                for (x, w, s_, t, u) in V_:
                    L += [f'v_exp_f32 v{t}, v{t}', f'v_exp_f32 v{t + 1}, v{t + 1}']
                for (x, w, s_, t, u) in V_:
                    L.append(f'v_pk_mul_f32 {p2(u)}, {p2(x)}, {p2(w)}')
                for (x, w, s_, t, u) in V_:
                    L.append(f'v_pk_add_f32 {p2(t)}, {p2(t)}, {p2(KONE)}')
                for (x, w, s_, t, u) in V_:
                    L += [f'v_rcp_f32 v{t}, v{t}', f'v_rcp_f32 v{t + 1}, v{t + 1}']
                for (x, w, s_, t, u) in V_:
                    if s_ in seen:
                        L.append(f'v_pk_fma_f32 {p2(s_)}, {p2(t)}, {p2(u)}, {p2(s_)}')
                    else:
                        L.append(f'v_pk_mul_f32 {p2(s_)}, {p2(t)}, {p2(u)}')
                        seen.add(s_)
            return L
        el = lambda tn, tm, d: (acc(tn, tm) + 2 * d, W2F + 4 * tn + 2 * d, SUMP + 2 * tm)
        allel = [el(tn, 2 * tp + a_, d) for tp in range(5) for tn in range(4) for d in range(2) for a_ in range(2)]
        rest = [e for e in allel if e[0] >= ACC + nsh]
        if o.rshare:
            assert nsh % 8 == 0
            KS = 84
            quads = [[el(2 * h + t_, tm, d) for t_ in range(2) for d in range(2)] for tm in range(10) for h in range(2)]
            quads = [q_ for q_ in quads if q_[0][0] >= ACC + nsh]
            order = sorted(range(len(quads)), key=lambda i_: (i_ // 4, i_ % 2, i_))
            quads = [quads[i_] for i_ in order]
            L = [f'v_mov_b32 v{KS}, {f32hex(-24.0)}', f'v_mov_b32 v{KS + 1}, {f32hex(-24.0)}', f'v_mov_b32 v{KS + 2}, {f32hex(2.0 ** 24)}', f'v_mov_b32 v{KS + 3}, {f32hex(2.0 ** 24)}']
            for k in range(0, len(quads), 2):
                Qs = quads[k:k + 2]
                V_ = [(x, w, GT + 16 * j_ + 4 * i_, GT + 16 * j_ + 4 * i_ + 2) for j_, q_ in enumerate(Qs) for i_, (x, w, s_) in enumerate(q_)]
                L += [f'v_pk_mul_f32 {p2(t)}, {p2(x)}, {p2(x)}' for (x, w, t, u) in V_]
                L += [f'v_pk_fma_f32 {p2(t)}, {p2(t)}, {p2(KC1)}, {p2(KC0)}' for (x, w, t, u) in V_]
                L += [f'v_pk_fma_f32 {p2(t)}, {p2(t)}, {p2(x)}, {p2(KS)}' for (x, w, t, u) in V_]
                L += [f'v_exp_f32 v{t + e_}, v{t + e_} clamp' for (x, w, t, u) in V_ for e_ in range(2)]
                if k == 0:
                    L += unp(W2F)
                L += [f'v_pk_mul_f32 {p2(u)}, {p2(x)}, {p2(w)}' for (x, w, t, u) in V_]
                L += [f'v_pk_fma_f32 {p2(t)}, {p2(t)}, {p2(KS + 2)}, {p2(KONE)}' for (x, w, t, u) in V_]
                for prs in ([(0, 1), (2, 3)], [(0, 2)]):
                    M_ = [(V_[4 * j_ + a_], V_[4 * j_ + b_]) for j_ in range(len(Qs)) for a_, b_ in prs]
                    L += [f'v_pk_mul_f32 {p2(A_[3])}, {p2(A_[3])}, {p2(B_[2])}' for A_, B_ in M_]
                    L += [f'v_pk_fma_f32 {p2(A_[3])}, {p2(B_[3])}, {p2(A_[2])}, {p2(A_[3])}' for A_, B_ in M_]
                    L += [f'v_pk_mul_f32 {p2(A_[2])}, {p2(A_[2])}, {p2(B_[2])}' for A_, B_ in M_]
                L += [f'v_rcp_f32 v{V_[4 * j_][2] + e_}, v{V_[4 * j_][2] + e_}' for j_ in range(len(Qs)) for e_ in range(2)]
                for j_, q_ in enumerate(Qs):
                    s_, t, u = q_[0][2], V_[4 * j_][2], V_[4 * j_][3]
                    L.append(f'v_pk_fma_f32 {p2(s_)}, {p2(t)}, {p2(u)}, {p2(s_)}' if s_ in seen else f'v_pk_mul_f32 {p2(s_)}, {p2(t)}, {p2(u)}')
                    seen.add(s_)
        else:
            L = gelu([rest[i:i + 4] for i in range(0, len(rest), 4)])
            L = L[:20] + unp(W2F) + L[20:]
        for (x, w, s_) in allel:
            if x < ACC + nsh:
                L.append(f'v_pk_fma_f32 {p2(s_)}, {p2(x)}, {p2(w)}, {p2(s_)}' if s_ in seen else f'v_pk_mul_f32 {p2(s_)}, {p2(x)}, {p2(w)}')
                seen.add(s_)
        sm = lambda tm: SUMP + 2 * tm
        L += [f'v_add_f32 v{sm(tm)}, v{sm(tm)}, v{sm(tm) + 1}' for tm in range(10)]
        L += [f'v_permlane32_swap_b32 v{sm(tm)}, v{sm(tm + 1)}' for tm in range(0, 10, 2)]
        L += [f'v_add_f32 v{sm(tm)}, v{sm(tm)}, v{sm(tm + 1)}' for tm in (8, 0, 2, 4, 6)]
        L += [f'v_mov_b32 v{sm(9)}, v{sm(8)}', f'v_permlane16_swap_b32 v{sm(0)}, v{sm(2)}', f'v_permlane16_swap_b32 v{sm(4)}, v{sm(6)}',
              f'v_permlane16_swap_b32 v{sm(8)}, v{sm(9)}',
              f'v_add_f32 v{sm(0)}, v{sm(0)}, v{sm(2)}', f'v_add_f32 v{sm(4)}, v{sm(4)}, v{sm(6)}', f'v_add_f32 v{sm(8)}, v{sm(8)}, v{sm(9)}',
              f'ds_write_b32 v{vPc}, v{sm(0)}', f'ds_write_b32 v{vPc}, v{sm(4)} offset:256',
              's_mov_b32 exec_lo, 0xffff', 's_mov_b32 exec_hi, 0xffff', f'ds_write_b32 v{vPc}, v{sm(8)} offset:512', 's_mov_b64 exec, -1']
        L += ['s_waitcnt lgkmcnt(0)'] + self.stamp(4) + self.stamp_flush() + ['s_barrier', 's_endpgm']
        tc += self.seq(L)

        def wstage(slot):
            c = []
            for u in range(2):
                c += [f's_add_u32 m0, s{S_WMB}, {WR + slot * WSLOT + u * 1024}',
                      I(f'buffer_load_dwordx4 v{vWD[u]}, {srd(SRD_W)}, s{S_WSOFF} offen lds', tag='W')]
            return c + [f's_add_u32 s{S_WSOFF}, s{S_WSOFF}, {32 * 3328}']

        Q, TM, BP = 16, 56, [12, 13]
        TI, vWT = 70, 84
        SP = [36, 37, 38, 39, 40, 41, 42, 43, 48, 49]
        SI = [94, 95, 96, 97, 98, 99, 100, 101, 82, 83]

        def xaddr(f, pcs):
            c = []
            for odd in range(2):
                p_ = f + 26 * odd
                for pc in pcs:
                    c.append(f'v_add_u32_dpp v{TM + pc}, v{Q + 4 * pc + p_ % 4}, v{vCh[0]} row_newbcast:{p_ >> 2} row_mask:0xf bank_mask:{(3, 12)[odd]:#x}')
            return c

        def xld(pc, slot, tag='X'):
            return [f's_add_u32 m0, s{S_XM0}, {slot * XSLOT + pc * 2048}',
                    I(f'buffer_load_dwordx4 v{TM + pc}, {srd(SRD_TAB)}, 0 offen lds', tag=tag)]
        idxl = [f'buffer_load_dwordx4 {vr(Q + 4 * pc, 4)}, v{BP[0]}, {srd(SRD_IDX)}, s{SI[pc // 2]} offen offset:{(pc % 2) * 1664}' for pc in range(10)]
        LO, HI = range(5), range(5, 10)
        NR = (22 + o.tf - 1) // o.tf
        lw = S_CW
        self.mk0 = len(self.P.static)
        L = [f's_lshr_b32 s{S_T0}, s{lw}, 1', f's_mul_i32 s{S_T0}, s{S_T0}, 20', f's_and_b32 s{S_T1}, s{lw}, 1', f's_add_u32 s{S_T0}, s{S_T0}, s{S_T1}',
             f's_lshl_b32 s{S_XM0}, s{S_T0}, 10', f's_mul_i32 s{S_C0}, s{S_T3}, 104', f's_mul_i32 s{S_T0}, s{S_T0}, 832', f's_add_u32 s{SI[0]}, s{S_C0}, s{S_T0}',
             f'v_mul_u32_u24 v{q}, 48, v{g}', f'v_sub_u32 v{BP[0]}, v{vBL}, v{q}']
        L += [f's_add_u32 s{SI[k]}, s{SI[0]}, {k * 2 * 1664}' for k in range(1, 5)]
        L += [f's_and_b32 s{S_T2}, s{lw}, 1', f's_lshl_b32 s{S_T2}, s{S_T2}, 3',
              f'v_lshlrev_b32 v{i4}, 1, v{g}', f'v_or_b32 v{i4}, s{S_T2}, v{i4}', f'v_xor_b32 v{i4}, v{i4}, v0', f'v_and_b32 v{i4}, 15, v{i4}',
              f'v_mul_u32_u24 v{vWD[0]}, 3328, v{g}', f'v_lshl_add_u32 v{vWD[0]}, v{i4}, 4, v{vWD[0]}', f'v_add_u32 v{vWD[1]}, {4 * 3328}, v{vWD[0]}',
              f's_mul_i32 s{S_WSOFF}, s{lw}, {8 * 3328}', f's_add_u32 s{S_WSOFF}, s{S_WSOFF}, s{S_N0}', f's_lshl_b32 s{S_WMB}, s{lw}, 11',
              's_waitcnt lgkmcnt(0)']
        L += self.build_srd(SRD_IDX, S_IDX, 4096 * 104) + idxl[:o.i0] + self.tlb1(T + 14, T + 15) + self.build_srd(SRD_W, S_W1, 1664 * 3328)
        for sl in range(o.w0):
            L += wstage(sl)
        L += self.stamp0() + idxl[o.i0:]
        for sl in range(o.w0, 2):
            L += wstage(sl)
        L += [f's_lshl_b32 s{S_T2}, s{S_T1}, 6',
              f'v_and_b32 v{q}, 7, v0', f'v_xor_b32 v{q}, v{q}, v{g}', f'v_lshlrev_b32 v{q}, 4, v{q}', f'v_xor_b32 v{vCh[0]}, s{S_T2}, v{q}', f'v_xor_b32 v{vCh[1]}, 64, v{vCh[0]}',
              f's_mov_b32 s{S_LOOP}, 0',
              f's_mul_i32 s{S_T2}, s{lw}, 13', f's_add_u32 s{S_T2}, s{S_T2}, s{S_R}', f's_min_u32 s{S_T2}, s{S_T2}, 39', f's_lshl_b32 s{S_T2}, s{S_T2}, 3',
              f's_add_u32 s{S_T2}, s{S_T2}, s{S_T3}', f's_mul_i32 s{S_GRP}, s{S_T2}, 104',
              f'v_lshrrev_b32 v{q}, {o.tf.bit_length() - 1}, v0', f'v_min_u32 v{q}, 7, v{q}', f'v_mul_u32_u24 v{q}, 104, v{q}',
              f'v_and_b32 v{i4}, {o.tf - 1}, v0', f'v_lshl_add_u32 v7, v{i4}, 2, v{q}',
              f's_lshl_b32 s{S_T2}, s{S_MB}, 2', f's_add_u32 s{S_T2}, s{S_T2}, s{lw}', f's_add_u32 s{S_T2}, s{S_T2}, {o.tw0 * 32}', f's_mul_i32 s{S_RC}, s{S_T2}, 3328',
              f's_add_u32 s{S_RC}, s{S_RC}, s{S_N0}', f's_mov_b32 s{S_T2}, {52 * 3328}',
              f'v_lshrrev_b32 v{q}, 1, v0', f'v_mul_lo_u32 v{q}, s{S_T2}, v{q}', f'v_and_b32 v{i4}, 1, v0', f'v_lshl_add_u32 v{vWT}, v{i4}, 7, v{q}']
        L += self.build_srd(SRD_W2, S_W2, 3328)
        L += [f's_mul_i32 s{S_T2}, s{lw}, {o.lpf * 128}', f's_add_u32 s{S_T2}, s{S_T2}, L_tail-L_pc', f'v_lshlrev_b32 v8, 7, v0', f'v_add_u32 v8, s{S_T2}, v8',
              f'v_mov_b32 v9, s{S_MASK + 1}', f'v_add_co_u32 v8, vcc, s{S_MASK}, v8', 'v_addc_co_u32 v9, vcc, 0, v9, vcc']
        sh = lambda pc, c_: f'v_lshlrev_b32 v{Q + 4 * pc + c_}, 7, v{Q + 4 * pc + c_}'
        for pc in range(10):
            L += [sh(pc, 0), sh(pc, 2), sh(pc, 1), sh(pc, 3)] + xaddr(0, [pc]) + xld(pc, 0, 'X0a' if pc < o.sa else 'X0')
            if pc == 0:
                L += self.stamp(6) + self.probe('i0')
            if pc == o.bwat:
                L += [WaitTag(vm_tags=['W']), 's_barrier']
        L += self.stamp(7) + self.probe('x0i')
        x1 = [x for pc in range(10) for x in xaddr(1, [pc]) + xld(pc, 1)]
        L += x1[:4 * o.x1n] + [WaitTag(vm_tags=['X0a'])] + self.stamp(1) + ['s_barrier'] + self.probe('s0') + x1[4 * o.x1n:4 * o.x1m]
        L += [WaitTag(vm_tags=['X0']), 's_barrier'] + x1[4 * o.x1m:] + wstage(2) + wstage(3) + xaddr(2, range(10))
        x2 = [x for pc in range(10) for x in xld(pc, 2)]
        NR = (26 - o.tf0 + o.tf - 1) // o.tf
        tex = (1 << (8 * o.tf)) - 1
        texec = [f's_mov_b32 exec_lo, {tex & 0xffffffff:#x}', f's_mov_b32 exec_hi, {tex >> 32:#x}']
        if o.tch:
            L += [f'buffer_load_dword v{TI + r}, v7, {srd(SRD_IDX)}, s{S_GRP} offen offset:{4 * min(o.tf0 + o.tf * r, 26 - o.tf)}' for r in range(NR)]

        def xtouch():
            t_ = [f'v_lshlrev_b32 v{T + 1}, 7, v{TI}'] + texec + [f'buffer_load_dword v{T + 2}, v{T + 1}, {srd(SRD_TAB)}, 0 offen', 's_mov_b64 exec, -1']
            return t_ + [f'v_mov_b32 v{TI + r}, v{TI + r + 1}' for r in range(NR - 1)] + [f'v_mov_b32 v{TI + NR - 1}, 0xffffff']

        def wtouch():
            return ['s_mov_b64 exec, 0x3ff', f'buffer_load_dword v{T + 3}, v{vWT}, {srd(SRD_W)}, s{S_RC} offen', 's_mov_b64 exec, -1', f's_add_u32 s{S_RC}, s{S_RC}, {260 * 3328}']
        L += x2[:2 * o.x2n] + [WaitTag(vm_tags=['W']), 's_barrier'] + self.probe('bar0') + x2[2 * o.x2n:] + xaddr(3, range(10))
        lpre = self.seq(L + [f's_setprio {o.lprio}', 's_branch L_ld_in'])
        del self.P.static[self.mk0:]
        self.P.static[self.ldat:self.ldat] = lpre
        self.mk0 = len(self.P.static)

        def lpair(p):
            S = ['s_barrier'] + (['L_ld_in:'] if p == 0 else []) + wstage(2 * (p % 2)) + wstage(2 * (p % 2) + 1)
            f2 = p + 4
            for pc in range(10):
                x = xld(pc, p % 3)
                S += [x[0]] + (xaddr(f2, [pc - 1])[:1] if pc else []) + [x[1]] + (xaddr(f2, [pc - 1])[1:] if pc else [])
            S += xaddr(f2, [9])
            if p >= 10:
                S += [f'v_mov_b32_dpp v{Q + 4 * pc + c_}, v{Q + 4 * pc + c_} row_shl:3 row_mask:0xf bank_mask:0xf' for pc in range(10) for c_ in ((0, 2) if p == 10 else (1, 3))]
            if o.tch and p % o.tf == o.toff:
                S += xtouch()
            if o.tch and p % 4 == o.twoff:
                S += wtouch()
            if p == 11:
                S += [f's_add_u32 s{S_LOOP}, s{S_LOOP}, 1', f's_cmp_lt_u32 s{S_LOOP}, 2']
            return S + [WaitTag(vm_tags=['W'])]
        body = self.seq(['L_dnn_loop1:'])
        for p in range(12):
            if p == 8 and o.lpf:
                body += self.seq([f's_cmp_lg_u32 s{S_LOOP}, 1', 's_cbranch_scc1 L_nolpf'])
                self.seq([f's_mov_b64 exec, {(1 << o.lpf) - 1}', 'global_load_dword v10, v[8:9], off', 's_mov_b64 exec, -1'] + small(SRD_W2, L_W2))
                body += self.seq(['L_nolpf:'])
            lp = lpair(p)
            if p and self.probe(f'bar{p}'):
                lp = lp[:1] + [f's_cmp_lg_u32 s{S_LOOP}, 0', f's_cbranch_scc1 L_nopb{p}'] + self.probe(f'bar{p}') + [f'L_nopb{p}:'] + lp[1:]
            body += self.seq(lp + (['s_cbranch_scc1 L_dnn_loop1'] if p == 11 else []))
        tl = c0 + lpre + body * 2 + self.seq(['s_branch L_ld_tail'])
        self.ldblk = self.P.static[self.mk0:]
        del self.P.static[self.mk0:]
        tl += self.seq(['L_ld_tail:', 's_barrier'] + self.tlb2(T) + ['s_mov_b64 exec, 1', f'buffer_load_dword v250, v{T}, {srd(SRD_DBG)}, 0 offen offset:240 sc1', 's_mov_b64 exec, -1'])
        tl += self.seq(self.probe('s50'))
        if o.walk:
            tl += self.seq([f's_cmp_eq_u32 s{lw}, 0', 's_cbranch_scc1 L_wkd', 's_mov_b64 exec, 0', f's_cmp_eq_u32 s{lw}, 1', 's_cbranch_scc1 L_wk0',
                            f's_cmp_eq_u32 s{lw}, 2', f's_cbranch_scc1 L_wk{np_ // 3}', f's_branch L_wk{2 * np_ // 3}', 'L_wkd:'])
        A = 64
        L = [f's_cmp_lg_u32 s{S_WAVE}, 4', 's_cbranch_scc1 L_end',
             f'v_lshlrev_b32 v3, 4, v0', f'v_lshlrev_b32 v4, 2, v0', f'v_add_u32 v1, {RB}, v3', f'v_add_u32 v2, {RB + 1024}, v4', f'v_add_u32 v4, 1024, v4',
             'v_mov_b32 v5, 32', f'v_mov_b32 v7, s{S_MB}',
             f's_mul_i32 s{S_T0}, s{S_MB}, 1280', f's_mul_i32 s{S_T1}, s{S_R}, {WSP}', f's_add_u32 s{S_T1}, s{S_T1}, s{S_T0}', 's_setprio 3']
        if o.sent:
            L += [f'v_mov_b32 v{A + k}, -1' for k in range(4)] + [f'buffer_store_dwordx4 {vr(A, 4)}, v3, {srd(SRD_WS)}, s{S_T1} offen sc1',
                  f'buffer_store_dword v{A}, v4, {srd(SRD_WS)}, s{S_T1} offen sc1', 's_waitcnt vmcnt(0)']
        L += self.stamp_flush() + ['s_barrier'] + self.probe('dend')
        L += [f'ds_read_b128 {vr(A, 4)}, v1', f'ds_read_b128 {vr(A + 8, 4)}, v1 offset:1280', f'ds_read2st64_b32 {vr(A + 4, 2)}, v2 offset0:0 offset1:5',
              f'v_pk_add_f32 {p2(A)}, {p2(A)}, {p2(A + 8)}', f'v_pk_add_f32 {p2(A + 2)}, {p2(A + 2)}, {p2(A + 10)}', f'v_add_f32 v{A + 4}, v{A + 4}, v{A + 5}']
        if o.sent:
            L += [f'v_min_u32 v{A + k}, -2, v{A + k}' for k in range(5)]
        L += (self.stamp(16) if o.diag else [])
        L += [f'buffer_store_dwordx4 {vr(A, 4)}, v3, {srd(SRD_WS)}, s{S_T1} offen sc1',
              f'buffer_store_dword v{A + 4}, v4, {srd(SRD_WS)}, s{S_T1} offen sc1', 's_mov_b64 exec, 1']
        tl += self.seq(L)

        L = ['L_pub:']
        if o.skew:
            L += ['v_mov_b32 v20, s86', 'v_mov_b32 v21, s86', 'v_mov_b32 v22, s88', 's_lshl_b32 s89, s2, 7', 's_add_u32 s89, s89, 0x40000', 'v_lshlrev_b32 v23, 28, v0',
                  f'buffer_store_dwordx3 v[20:22], v23, {srd(SRD_WS)}, s89 offen sc1', 's_waitcnt vmcnt(0)']
        def loads():
            c = [f's_mul_i32 s{S_T0}, s{S_T3}, 1280']
            for qq in range(14):
                c += [f'buffer_load_dwordx4 {vr(A + 8 * qq, 4)}, v3, {srd(SRD_WS)}, s{S_T0} offen sc1',
                      f'buffer_load_dword v{A + 8 * qq + 4}, v4, {srd(SRD_WS)}, s{S_T0} offen sc1', f's_add_u32 s{S_T0}, s{S_T0}, {WSP}']
            return c
        R_ = 56
        L += ['v_lshlrev_b32 v6, 4, v7'] + ([] if o.sent else ['s_waitcnt vmcnt(0)']) + ['v_mov_b32 v13, v5', f'buffer_atomic_add v5, v6, {srd(SRD_DBG)}, 0 offen sc0',
              'v_cmp_eq_u32 vcc, 12, v7', 'v_mov_b32 v8, 436', 'v_mov_b32 v9, 434', 'v_cndmask_b32 v8, v8, v9, vcc', 'v_sub_u32 v8, v8, v13']
        if o.spec:
            L += [f's_mov_b64 s[{S_MASK}:{S_MASK + 1}], exec', 's_mov_b64 exec, -1', f'v_readfirstlane_b32 s{S_T3}, v7'] + loads() + [f's_mov_b64 exec, s[{S_MASK}:{S_MASK + 1}]']
            L += ['s_waitcnt vmcnt(0) lgkmcnt(0)']
        else:
            L += ['s_waitcnt vmcnt(0) lgkmcnt(0)']
        L += (self.stamp(18) if o.diag else []) + [
             f'v_cmp_eq_u32 s[{S_EX}:{S_EX + 1}], v5, v8', 's_mov_b64 exec, -1', f's_lshl_b32 s{S_BOUT}, s{S_BOUT}, 16',
             'v_lshrrev_b32 v1, 1, v3', 'v_lshrrev_b32 v2, 1, v4']
        if o.spec:
            L += [f's_bitcmp1_b32 s{S_EX}, 0', f's_bitset0_b32 s{S_EX}, 0', 's_cbranch_scc1 L_sum']
        pa = self.seq(L)
        L = ['L_fin:', f's_cmp_eq_u32 s{S_EX}, 0', 's_cbranch_scc1 L_done',
             f's_ff1_i32_b32 s{S_T2}, s{S_EX}', f's_bitset0_b32 s{S_EX}, s{S_T2}', f'v_readlane_b32 s{S_T3}, v7, s{S_T2}', 's_waitcnt vmcnt(0)', 'L_again:'] + loads()
        pb = self.seq(L)
        L = ['L_sum:', f'v_pk_add_f32 {p2(R_)}, {p2(A)}, {p2(A + 8)}', f'v_pk_add_f32 {p2(R_ + 2)}, {p2(A + 2)}, {p2(A + 10)}', f'v_add_f32 v{R_ + 4}, v{A + 4}, v{A + 12}']
        for qq in range(2, 14):
            L += [f'v_pk_add_f32 {p2(R_)}, {p2(R_)}, {p2(A + 8 * qq)}', f'v_pk_add_f32 {p2(R_ + 2)}, {p2(R_ + 2)}, {p2(A + 8 * qq + 2)}',
                  f'v_add_f32 v{R_ + 4}, v{R_ + 4}, v{A + 8 * qq + 4}']
        if o.sent:
            L += [f'v_cmp_u_f32 vcc, v{R_}, v{R_ + 1}', f'v_cmp_u_f32 s[{S_MASK}:{S_MASK + 1}], v{R_ + 2}, v{R_ + 3}', f's_or_b64 s[{S_MASK}:{S_MASK + 1}], s[{S_MASK}:{S_MASK + 1}], vcc',
                  f'v_cmp_u_f32 vcc, v{R_ + 4}, v{R_ + 4}', f's_or_b64 vcc, s[{S_MASK}:{S_MASK + 1}], vcc', 's_cbranch_vccnz L_chk', 'L_ok:']
        L += [f's_mul_i32 s{S_T3}, s{S_T3}, 640']
        A0 = A
        A = R_
        L += [f'v_add_f32 v{A + k}, s{S_BOUT}, v{A + k}' for k in range(5)]
        L += [f'v_cvt_pk_bf16_f32 v10, v{A}, v{A + 1}', f'v_cvt_pk_bf16_f32 v11, v{A + 2}, v{A + 3}', f'v_cvt_pk_bf16_f32 v12, v{A + 4}, v{A + 4}',
              f'buffer_store_dwordx2 v[10:11], v1, {srd(SRD_OUT)}, s{S_T3} offen', f'buffer_store_short v12, v2, {srd(SRD_OUT)}, s{S_T3} offen']
        if o.skew:
            L += [f's_cmp_lg_u32 s{S_EX}, 0', 's_cbranch_scc1 L_fin', 'v_lshlrev_b32 v20, 7, v0', 's_mov_b32 s88, 0x40000']
            for k in range(4):
                L += [f'buffer_load_dwordx3 v[{32 + 4 * k}:{34 + 4 * k}], v20, {srd(SRD_WS)}, s88 offen sc1', 's_add_u32 s88, s88, 8192']
            L += ['s_waitcnt vmcnt(0)']
            if o.probe.startswith('st') or o.absol:
                L += ['s_memrealtime s[88:89]', 's_waitcnt lgkmcnt(0)', 'v_mov_b32 v26, 0', 'v_mov_b32 v27, 0']
                for k in range(4):
                    L += [f'v_sub_u32 v28, s88, v{32 + 4 * k}', 'v_cmp_gt_u32 vcc, 4500, v28', f'v_not_b32 v29, v{32 + 4 * k}', 'v_cndmask_b32 v29, 0, v29, vcc', 'v_max_u32 v27, v27, v29']
                    if o.absol:
                        L += [f'v_cndmask_b32 v29, 0, v{34 + 4 * k}, vcc', 'v_max_u32 v26, v26, v29']
                    elif str(k) in o.probe[2:]:
                        L += [f'v_cndmask_b32 v29, 0, v{32 + 4 * k}, vcc', 'v_max_u32 v26, v26, v29']
            else:
                for k in range(4):
                    L += [f'v_sub_u32 v28, v{34 + 4 * k}, v{32 + 4 * k}', f'v_cmp_gt_u32 vcc, {100000 if o.cyc else 5000}, v28', f'v_cndmask_b32 v28, 0, v28, vcc',
                          f'v_cmp_eq_u32 vcc, v{32 + 4 * k}, v{33 + 4 * k}', f'v_cndmask_b32 v{33 + 4 * k}, 0, v28, vcc']
                L += ['v_max_u32 v26, v33, v37', 'v_max3_u32 v26, v26, v41, v45', 'v_mov_b32 v27, -1']
            if o.probe == 'span':
                L += ['s_memrealtime s[86:87]', 's_waitcnt lgkmcnt(0)', 'v_mov_b32 v26, s86']
            for (ctl, rm) in (('row_shr:1', '0xf'), ('row_shr:2', '0xf'), ('row_shr:4', '0xf'), ('row_shr:8', '0xf'), ('row_bcast:15', '0xa'), ('row_bcast:31', '0xc')):
                L += [f'v_max_u32_dpp v{r}, v{r}, v{r} {ctl} row_mask:{rm} bank_mask:0xf' for r in (26, 27)]
            L += ['v_not_b32 v27, v27', 'v_sub_u32 v22, v26, v27', 's_memrealtime s[86:87]', 'v_readlane_b32 s88, v22, 63', 's_waitcnt lgkmcnt(0)',
                  *([f's_max_u32 s88, s88, {o.cyc.split(chr(44))[2]}', f's_sub_u32 s88, s88, {o.cyc.split(chr(44))[2]}', 's_lshr_b32 s88, s88, 1'] if o.cyc else []), 's_min_u32 s88, s88, 5000', f's_mul_i32 s88, s88, {o.skew - 1}', 's_add_u32 s88, s88, s86',
                  'L_spin:', 's_memrealtime s[86:87]', 's_waitcnt lgkmcnt(0)', 's_sub_u32 s89, s88, s86', 's_cmp_gt_i32 s89, 0', 's_cbranch_scc1 L_spin']
        L += self.stamp(5) + self.stamp_flush() + ['s_branch L_fin']
        pc_ = self.seq(L)
        if o.sent:
            L = ['L_chk:', 'v_mov_b32 v14, 0', 'v_mov_b32 v15, 0']
            for qq in range(14):
                L += [f'v_max3_u32 v14, v14, v{A0 + 8 * qq}, v{A0 + 8 * qq + 1}', f'v_max3_u32 v14, v14, v{A0 + 8 * qq + 2}, v{A0 + 8 * qq + 3}', f'v_max_u32 v15, v15, v{A0 + 8 * qq + 4}']
            L += [f's_cmp_eq_u32 s{S_T3}, 12', f's_cselect_b32 s{S_T0}, 0, -1', f'v_and_b32 v15, s{S_T0}, v15', 'v_max_u32 v14, v14, v15',
                  'v_cmp_eq_u32 vcc, -1, v14', 's_cbranch_vccnz L_again', 's_branch L_ok']
            self.chk = self.seq(L)
        pe = self.seq(['L_done:', 's_endpgm'])
        self.pub = pa + pb + pc_ + pe
        self.extra_traces = [pa + pc_ + pb + pc_] + ([pa + pb + pc_[:45] + self.chk + pb[7:] + pc_] if o.sent else [])
        return [tc, tl + self.pub]

    def pubsrd(self):
        return self.build_srd(SRD_WS, S_WS, 0x10000000) + self.build_srd(SRD_OUT, S_OUT, 8192) + self.build_srd(SRD_DBG, S_DBG, 256)

    def tables(self):
        OOB = 0x100000
        G = [[] for _ in range(11)]
        for l in range(64):
            half, i32, g, r, c = l >> 5, l & 31, l >> 4, (l >> 2) & 3, l & 3
            lin0 = g * 128 + r * XPP + c * 8
            G[0] += [lin0, lin0 + 512 if g < 3 else XOFF(27) + c * 8, (l >> 3) * 16, 0x3f803f80 if l < 32 else 0]
            G[1] += [(l & 7) * 16, 0xeeee if l & 1 else 0x4444, half * XPP + i32 * 4, IMG + half * 20 * IMGP + i32 * 4]
            tr = [IMG + cin16.IMGROW(cin16.LAB[g][2 * rp + (r >> 1)][r & 1]) * IMGP + c * 8 for rp in range(8)]
            G[2] += tr[:4]
            G[3] += tr[4:]
            row, col = 8 * half + r, (g & 1) * 32 + c * 8
            G[4] += [V3OFF + row * 64 + col, A1 + row * 1352 + col, A1 + min(row + 16, 25) * 1352 + col, A1 + min(row + 20, 25) * 1352 + col]
            t, gd, rr = (i32 >> 2) & 1, i32 >> 3, i32 & 3
            ig = 16 * t + 4 * rr + gd
            iq = 4 * rr + gd if t == 0 else 16 + ((4 * rr + gd + 4) & 15)
            pm = []
            for q in range(8):
                k0 = 16 * (q >> 2) + 8 * half + 2 * (q & 3)
                pm.append((0xffff if iq == k0 else 0xffff0000 if iq == k0 + 1 else 0) if iq < 26 else 0)
            G[5] += pm[:4]
            G[6] += pm[4:]
            ga = A2 + 52 * ig if ig < 26 else OOB
            rowp = ((l & 12) + 2 * (l & 1)) * 16 + (OOB if l & 2 else 0)
            G[7] += [ga + half * 8 * W2P, ga + half * OOB, rowp + half * 256 + (g & 1) * 8, rowp + g * 256]
            G[8] += [SG + i32 * 64 if i32 < 26 else V2S if i32 == 26 else OOB, 64 if i32 == 26 else 3328, (i32 >> 1) + 2 * half,
                     SQ + i32 * 64 + ((((i32 >> 1) & 3) ^ (2 * half)) << 4)]
            v2 = []
            for hf in range(2):
                j = 4 * g + 16 * hf + r
                v2.append(V2S + (j & 1) * 1664 + (j >> 1) * 64 + ((c ^ (((13 + j) & 3) * 2)) * 8) if j < 26 else SG + 676 * 64 + c * 8)
            wo = [L_WCO + 2 * (16 * tl_ + 4 * c + r) if 16 * tl_ + 4 * c + r < 26 else OOB for tl_ in range(2)]
            G[9] += v2 + wo
            G[10] += [L_WCO + 104 + 16 * half, L_WCO + 52 + 2 * l, V3OFF + 52 + 64 * l, SG + 676 * 64 + (l & 15) * 4]
        U = []
        for w in range(8):
            for e in range(16):
                for u in (w, w + 8, w + 16):
                    U += [SG + row * 64 + f * 8 for row, f in cin16.p2rows(u, e >> 2, e & 3)] if u < 22 else [0, 0]
        return [x for n in (4, 2, 3, 0, 5, 6, 7, 8, 9, 1, 10) for x in G[n]] + [0] * 256 + U + [0] * 256

    def cin(self):
        o = self.opt
        cw = S_CW
        vFa, vLin0, vLin1, vXi0, vXi1, vC16, vIDX, vXa, vIw, vPWL, vPXL, PXR, PFR = 1, 4, 5, 6, 7, 8, 9, 10, 11, 12, 13, 14, 15
        XI, vTR = 16, 20
        XR, P, Z, WF, D = 32, 60, 116, 164, 184
        vStg, vFR, vFw = vFa, 2, 59
        t3, t4, t5 = 29, 30, 31
        AV = [28, 58]
        PM = 216
        vA3, vBs0, vBs1a, vBs1b, vGa, vGb, vT3, vT3d = range(224, 232)
        G8, vV2r, vV2q, vWo, AD = 232, 236, 237, 238, 240
        WA = list(range(244, 250))
        vS, vMx = 250, 111
        UA, UX = 224, [232, 233, 234, 235, 240, 241]
        AFR = 112
        BALL, DALL = 60, 120
        S_F1, S_F2, S_G, S_LO, S_HI, S_CM, S_U0, S_U1, S_U2 = 74, 75, 95, 96, 97, 90, 98, 99, 100
        S_CG, S_IV = 0, 1
        OOB = 0x100000
        TA_, TB_, TC_ = SG + 35840, SQ + 26 * W2P, FRS + 2048
        GREG = [224, 20, 24, 4, 216, 220, 228, 232, 236, 8, 240]
        DPPS = (('row_shr:1', '0xf'), ('row_shr:2', '0xf'), ('row_shr:4', '0xf'), ('row_shr:8', '0xf'),
                ('row_bcast:15', '0xa'), ('row_bcast:31', '0xc'))

        K_W7, K_IMG, K_W2, K_W1, K_W12, K_H8, K_T3 = 52, 53, 54, 55, 92 - 10, 92 - 9, 91
        L = ['L_cin:', f'v_lshlrev_b32 v{vStg}, 4, v0', f's_and_b32 s{cw}, s{S_WAVE}, 3', f's_lshr_b32 s{S_GRP}, s{S_WAVE}, 2', f's_lshl_b32 s{S_STG}, s{cw}, 10',
             f's_mul_i32 s{S_MB}, s{S_T0}, 11', f's_add_u32 s{S_MB}, s{S_MB}, s{S_T1}', f's_sub_u32 s{S_MB}, s{S_MB}, 22',
             f's_cmp_eq_u32 s{S_MB}, 86', 's_cbranch_scc1 L_end', f's_cmp_eq_u32 s{S_GRP}, 0', 's_cbranch_scc1 L_sc']
        c0 = self.seq(L)
        L = ['s_setprio 2', f'v_add_u32 v2, L_tables-L_pc+4096, v{vStg}', f'v_mov_b32 v3, s{S_MASK + 1}',
             f'v_add_co_u32 v2, vcc, s{S_MASK}, v2', 'v_addc_co_u32 v3, vcc, 0, v3, vcc',
             f'v_add_co_u32 v{XR}, vcc, s{S_STG}, v2', f'v_addc_co_u32 v{XR + 1}, vcc, 0, v3, vcc',
             f'global_load_dwordx4 {vr(GREG[0], 4)}, v[2:3], off offset:-4096',
             'v_add_co_u32 v2, vcc, 0x1800, v2', 'v_addc_co_u32 v3, vcc, 0, v3, vcc', f'global_load_dwordx4 {vr(GREG[10], 4)}, v[2:3], off',
             f's_cmp_lt_u32 s{cw}, 3', f's_mov_b32 s{S_T2}, {TB_ - 3072}', f's_cselect_b32 s{S_T2}, {TA_ + 4096}, s{S_T2}']
        tdma = lambda off: I(f'global_load_lds_dwordx4 {vr(XR, 2)}, off offset:{off}', tag='TAB')
        L += [f's_add_u32 m0, s{S_STG}, {TA_ + 4096}', tdma(-4096), f's_add_u32 m0, s{S_STG}, s{S_T2}', tdma(0),
              f'v_add_co_u32 v{XR}, vcc, 0x2000, v{XR}', f'v_addc_co_u32 v{XR + 1}, vcc, 0, v{XR + 1}, vcc',
              f's_add_u32 m0, s{S_STG}, {TC_}', tdma(0), f's_add_u32 m0, s{S_STG}, {TB_ + 1024 + 4096}', f's_cmp_ge_u32 s{cw}, 2', 's_cbranch_scc1 L_sc']
        g1s = self.seq(L)
        L = [tdma(-4096)]
        g1t = self.seq(L)
        L = ['L_sc:', f's_mul_i32 s{S_RC}, s{S_GRP}, 20', f's_add_u32 s{S_RC}, s{S_RC}, s{S_WAVE}',
             f's_mul_i32 s{S_SAMP}, s{S_MB}, 48', f's_add_u32 s{S_SAMP}, s{S_SAMP}, s{S_RC}', f's_mul_i32 s{S_SAMP}, s{S_SAMP}, 104',
             f'v_lshrrev_b32 v{t4}, 3, v0', f'v_lshlrev_b32 v{t4}, 4, v{t4}', f'v_and_b32 v{t3}, 0x70, v{vStg}',
             f's_mul_i32 s{S_XM0}, s{S_WAVE}, {XBSZ}', f's_add_u32 s{S_XM0}, s{S_XM0}, {XB}', f's_cmp_eq_u32 s{S_GRP}, 0', 's_cbranch_scc1 L_g0']
        csc = self.seq(L)
        SC2 = [f's_lshl_b32 s{S_RC}, s{S_RC}, 2', f's_add_u32 s{S_RC}, s{S_RC}, {RC}',
               f's_mul_i32 s{S_LOOP}, s{S_GRP}, 3', f's_sub_u32 s{S_LOOP}, 4, s{S_LOOP}', (f's_cmp_eq_u32 s{S_MB}, 85', f's_cselect_b32 s{S_LOOP}, s{S_LOOP}, 6'),
               f's_lshl_b32 s{K_W7}, s{S_WAVE}, 7', f's_mul_i32 s{K_IMG}, s{S_WAVE}, {IMGSZ}', f's_lshl_b32 s{K_W2}, s{S_WAVE}, 2', f's_lshl_b32 s{K_W1}, s{S_WAVE}, 1',
               f's_lshl_b32 s{K_W12}, s{S_WAVE}, 12',
               f's_and_b32 s{S_U0}, s{S_WAVE}, 1', f's_lshr_b32 s{S_U1}, s{S_WAVE}, 1',
               f's_mul_i32 s{S_T0}, s{S_U1}, 3072', f's_lshl_b32 s{K_H8}, s{S_U0}, 3', f's_add_u32 s{S_T0}, s{S_T0}, s{K_H8}', f'v_add_u32 v{vFw}, s{S_T0}, v{vStg}',
               f's_lshl_b32 s{S_T1}, s{S_U1}, 3', f's_lshr_b32 s{S_T1}, 0x05030200, s{S_T1}', f's_and_b32 s{S_T1}, s{S_T1}, 0xff',
               f's_lshl_b32 s{S_T1}, s{S_T1}, 9', f's_lshl_b32 s{S_T2}, s{S_U0}, 2', f's_add_u32 s{K_T3}, s{S_T1}, s{S_T2}',
               f's_mov_b32 s{S_U1}, 0x05040100', f's_mov_b32 s{S_U2}, 0x07060302',
               f'v_mov_b32 v{vFR}, {L_FLG}', 'v_mov_b32 v109, 0', 'v_mov_b32 v108, 0'] + [f'v_mov_b64 {vr(r, 2)}, 0' for r in range(XR, XR + 26, 2)]
        XJ = 104

        def pfw(dst=3):
            return [f'buffer_load_dword v{dst}, v{vPWL}, {srd(SRD_W)}, s{S_PW} offen',
                    f's_add_u32 s{S_PW}, s{S_PW}, {o.pfne * 688 * 128}']

        def pfx_a():
            return [f'buffer_load_dword v{PXR}, v{vPXL}, {srd(SRD_IDX)}, s{S_PX} offen',
                    f's_cmp_eq_u32 s{S_PX}, s{S_PXE}', f's_cselect_b32 s{S_PXE}, 0x7000000, s{S_PXE}',
                    f's_cselect_b32 s{S_PX}, 0x7000000, s{S_PX}',
                    f's_add_u32 s{S_PX}, s{S_PX}, 24', f's_min_u32 s{S_PX}, s{S_PX}, s{S_PXE}']

        def pfx_b():
            return [f'v_lshlrev_b32 v{PXR}, 7, v{PXR}', f'buffer_load_dword v{PFR}, v{PXR}, {srd(SRD_TAB)}, 0 offen']

        def xidx(XI=XI, vXi0=vXi0):
            return [f'buffer_load_dwordx4 {vr(XI, 4)}, v{vXi0}, {srd(SRD_IDX)}, s{S_SAMP} offen', f's_add_u32 s{S_SAMP}, s{S_SAMP}, {4 * 104}']

        def xdma(XI=XI, off=0, tag='XB', vC16=vC16):
            c = [f'v_lshl_add_u32 v{XI + u}, v{XI + u}, 7, v{vC16}' for u in range(4)]
            for u in range(4):
                c += [f's_add_u32 m0, s{S_XM0}, {u * XPP + off}']
                if u % 2 == 0:
                    c.append(f's_mov_b32 exec_hi, {0xffffff if u == 0 else 0xffff:#x}')
                c.append(I(f'buffer_load_dwordx4 v{XI + u}, {srd(SRD_TAB)}, 0 offen lds', tag=tag))
            return c + ['s_mov_b32 exec_hi, -1']

        def stage(dst, goff, tag):
            st = []
            for m in range(9):
                st.append((f's_add_u32 m0, s{S_STG}, {dst + m * 4096}', f's_add_u32 s{S_TW}, s{S_STG}, {goff + m * 4096}',
                           I(f'buffer_load_dwordx4 v{vStg}, {srd(SRD_CIN)}, s{S_TW} offen lds', tag=tag)))
            return st

        def pubmax(regs_offs):
            c = []
            for (ctl, rm) in DPPS:
                for r, _ in regs_offs:
                    c.append(f'v_max_u32_dpp v{r}, v{r}, v{r} {ctl} row_mask:{rm} bank_mask:0xf')
            c += ['s_mov_b32 exec_lo, 0', 's_mov_b32 exec_hi, 0x80000000']
            c += [f'ds_max_u32 v{vFR}, v{r} offset:{16 + 4 * k}' for r, k in regs_offs]
            return c + ['s_mov_b64 exec, -1']

        def mxop(src, n, mx, first):
            return [f'v_mfma_f32_16x16x32_bf16 {vr(mx, 4)}, {vr(src + r, 4)}, {vr(src + r, 4)}, {"0" if first and r == 0 else vr(mx, 4)}' for r in range(0, n, 4)]

        def mxfin(mx):
            return [f'v_max3_f32 v{mx}, v{mx}, v{mx + 1}, 0', f'v_max3_f32 v{mx}, v{mx}, v{mx + 2}, v{mx + 3}']

        def bread(m, off):
            b = BALL + m * 8
            return [f'ds_read_b64_tr_b16 {vr(b, 2)}, v{vBs0} offset:{off}',
                    f'ds_read_b64_tr_b16 {vr(b + 2, 2)}, v{vBs0} offset:{off + 4 * 1352}',
                    f'ds_read_b64_tr_b16 {vr(b + 4, 2)}, v{vBs1a} offset:{off}',
                    f'ds_read_b64_tr_b16 {vr(b + 6, 2)}, v{vBs1b} offset:{off}']

        def mm2(d, a, b):
            return [f'v_mfma_f32_32x32x16_bf16 {vr(d, 16)}, {vr(a, 4)}, {vr(b, 4)}, 0',
                    f'v_mfma_f32_32x32x16_bf16 {vr(d, 16)}, {vr(a + 4, 4)}, {vr(b + 4, 4)}, {vr(d, 16)}']

        tA, tB = 250, 251
        if o.pfw:
            SC2 += self.build_srd(SRD_W, S_W1, 1664 * 3328) + [
                f's_lshl_b32 s{S_PW}, s{S_MB}, 3', f's_add_u32 s{S_PW}, s{S_PW}, s{S_WAVE}', f's_add_u32 s{S_PW}, s{S_PW}, {o.pfe0 * 832}', f's_lshl_b32 s{S_PW}, s{S_PW}, 7',
                f's_mov_b32 s{S_T3}, {688 * 128}', f'v_min_u32 v{vPWL}, {max(o.pfne - 1, 0)}, v0', f'v_mul_lo_u32 v{vPWL}, s{S_T3}, v{vPWL}']
        if o.pfx:
            SC2 += [f's_lshl_b32 s{S_PX}, s{S_MB}, 3', f's_add_u32 s{S_PX}, s{S_PX}, s{S_WAVE}', f's_mul_i32 s{S_PX}, s{S_PX}, {6 * 104}',
                    f's_add_u32 s{S_PXE}, s{S_PX}, 80', f's_add_u32 s{S_PX}, s{S_PX}, {4 * o.pfx0}',
                    f'v_min_u32 v{PXR}, 35, v0', f'v_mul_u32_u24 v{vPXL}, 10923, v{PXR}', f'v_lshrrev_b32 v{vPXL}, 16, v{vPXL}',
                    f'v_mul_u32_u24 v{vPXL}, {104 - 24}, v{vPXL}', f'v_lshl_add_u32 v{vPXL}, v{PXR}, 2, v{vPXL}']
        trd = lambda n: f'ds_read_b128 {vr(GREG[n], 4)}, v{tA if n < 7 else tB} offset:{(n if n < 7 else n - 7) * 1024}'
        vbs = [f'v_add_u32 v{r}, s{K_W7}, v{r}' for r in (vBs0, vBs1a, vBs1b)]

        def FX(g):
            R = [trd(n) for n in ((0,) if g == 0 else ()) + (6, 7, 3, 9, 1, 2, 4, 5, 8)]
            F = vbs + [f'v_add_u32 v{r}, s{K_W2}, v{r}' for r in (vGa, vGb)]
            F += [f'v_add_u32 v{vT3d}, s{K_H8}, v{vT3d}', f'v_add_u32 v{vT3}, s{K_T3}, v{vT3}']
            F += [f'v_mad_u32_u24 v{G8}, v{G8 + 1}, s{S_WAVE}, v{G8}', f'v_add_u32 v{G8 + 2}, s{K_W1}, v{G8 + 2}',
                  f'v_mad_u32_u24 v{G8 + 1}, v{G8 + 1}, 8, v{G8}', f'v_add_u32 v{WA[2]}, s{K_W12}, v{G8 + 3}', f'v_add_u32 v{WA[3]}, 2048, v{WA[2]}']
            for n_, (wa, bs) in enumerate(((WA[0], G8), (WA[1], G8), (WA[4], G8 + 1), (WA[5], G8 + 1))):
                F += [f'v_add_u32 v{t5}, {n_ & 1}, v{G8 + 2}', f'v_and_b32 v{t5}, 3, v{t5}', f'v_lshl_add_u32 v{wa}, v{t5}, 4, v{bs}']
                if n_ & 1:
                    F.append(f'v_add_u32 v{wa}, 1664, v{wa}')
            F += [f'v_add_u32 v{r}, s{S_XM0}, v{r}' for r in (vXa, vLin0, vLin1)] + [f'ds_write_b32 v{vXa}, v{vXi1} offset:{XOFF(26)}']
            F += [f'v_add_u32 v{r}, s{K_IMG}, v{r}' for r in [vIw] + list(range(vTR, vTR + 8))]
            return R, F
        SC2 += [f'v_add_u32 v{tA}, {TA_}, v{vStg}', f'v_add_u32 v{tB}, {TB_}, v{vStg}', f'v_lshrrev_b32 v3, 5, v0', f'v_lshl_add_u32 v3, v3, 2, v{vFR}']

        def pub2(r1, r2, off):
            c = [f'v_permlane32_swap_b32 v{r1}, v{r2}', f'v_max_u32 v{r1}, v{r1}, v{r2}']
            c += [f'v_max_u32_dpp v{r1}, v{r1}, v{r1} {ctl} row_mask:{rm} bank_mask:0xf' for ctl, rm in DPPS[:5]]
            return c + ['s_mov_b32 exec_lo, 0x80000000', 's_mov_b32 exec_hi, 0x80000000', f'ds_max_u32 v3, v{r1} offset:{16 + off}', 's_mov_b64 exec, -1']
        AV = [28, 58, 111]
        L = []
        if o.coop:
            L += [f's_sub_u32 s{S_T0}, s{S_T3}, 22', f's_min_u32 s{S_T0}, s{S_T0}, 9', f's_lshl_b32 s{S_T0}, s{S_T0}, 2', f's_add_u32 s{S_T0}, s{S_T0}, s{cw}', f's_lshl_b32 s{S_T0}, s{S_T0}, 7',
                  f'v_mul_u32_u24 v{t5}, {40 * 128}, v0', 's_waitcnt lgkmcnt(0)'] + self.build_srd(SRD_CIN, S_CIN, 105456) + [
                  f'buffer_load_dword v107, v{t5}, {srd(SRD_CIN)}, s{S_T0} offen']
        L += ['s_waitcnt lgkmcnt(0)'] + self.build_srd(SRD_WCO, S_WCO, 156) + [f's_mov_b32 m0, {L_WCO}', 's_mov_b64 exec, 0x7ff',
             I(f'buffer_load_dwordx4 v{vStg}, {srd(SRD_WCO)}, 0 offen lds', tag='WCO'), 's_mov_b64 exec, -1'] + (['s_barrier'] if o.coop == 2 else []) + self.stamp0() + SC2
        L += self.build_srd(SRD_IDX, S_IDX, 4096 * 104) + self.build_srd(SRD_TAB, S_TAB, 100000 * 128)
        XK = 12
        if o.g1t:
            assert not o.pfx
            L += [f'v_and_b32 v13, 31, v0', f'v_min_u32 v13, 25, v13', f'v_lshrrev_b32 v14, 5, v0', f'v_mul_u32_u24 v14, {4 * 104}, v14', f'v_lshl_add_u32 v13, v13, 2, v14',
                  f'buffer_load_dword v14, v13, {srd(SRD_IDX)}, s{S_SAMP} offen']
        g1touch = [f'v_lshlrev_b32 v14, 7, v14', f'buffer_load_dword v13, v14, {srd(SRD_TAB)}, 0 offen']
        if o.xg1:
            L += [f's_sub_u32 s{S_T0}, s{S_SAMP}, {24 * 104}', f'buffer_load_dwordx4 {vr(XI, 4)}, v{t4}, {srd(SRD_IDX)}, s{S_T0} offen',
                  f'buffer_load_dwordx4 {vr(XK, 4)}, v{t4}, {srd(SRD_IDX)}, s{S_T0} offen offset:{4 * 104}']
        L += [f'ds_write_b128 v{vFR}, {vr(XR, 4)} offset:16', f's_lshl_b32 s{S_T0}, s{cw}, 6', f'v_add_u32 v{t3}, s{S_T0}, v0']
        for p_ in range(3):
            L += [f'v_mul_u32_u24 v{t4}, 2521, v{t3}', f'v_lshrrev_b32 v{t4}, 16, v{t4}', f'v_mul_u32_u24 v{t4}, 12, v{t4}', f'v_lshl_add_u32 v{AV[p_]}, v{t3}, 1, v{t4}']
            L += [f'v_add_u32 v{t3}, 256, v{t3}'] if p_ < 2 else [f'v_cmp_gt_u32 vcc, 676, v{t3}', f's_mov_b64 s[{S_MASK}:{S_MASK + 1}], vcc']
        L += [f'v_lshlrev_b32 v{t3}, 3, v0', 's_mov_b32 exec_hi, 0xffff', f'ds_write_b64 v{t3}, {vr(XR, 2)} offset:{V3OFF + 26 * 64}', 's_mov_b32 exec_hi, -1',
              f'ds_write_b32 v{AD + 3}, v{XR}', f'ds_write_b32 v{AD + 3}, v{XR} offset:{SSZ}', WaitTag(vm_tags=['WCO'])]
        assert V3OFF == 0
        for s2 in range(2):
            for rd in range(2):
                L.append(f'ds_read_b64 {vr(AFR + 4 * s2 + 2 * rd, 2)}, v{AD} offset:{s2 * 32 + rd * 8}')
        L += [f'ds_read_u16 v110, v{AD + 1}',
              's_mov_b64 exec, 0x3ffffff', f'ds_write_b16 v{AD + 2}, v110', 'v_lshlrev_b32 v109, 17, v110', 'v_lshrrev_b32 v109, 1, v109', 's_mov_b64 exec, -1']
        if o.cwalk:
            L += ['s_mov_b64 exec, 0'] + [x for q_ in range(3) for x in (f's_cmp_eq_u32 s{cw}, {q_}', f's_cbranch_scc1 L_WENTRY{q_}')] + ['s_branch L_WENTRY3', 'L_wret:', 's_mov_b64 exec, -1']
        L += (FX(1)[1] if o.dirt else vbs) + [WaitTag(vm_tags=['TAB'], lgkm0=True)] + self.probe('tab') + (pfw(PFR) if o.pfw and o.pfs == 1 else [])
        v3p = []
        L += ['s_barrier'] + self.stamp(2) + self.probe('b0')
        vb = lambda m: A3 - A1 - 512 + (m >> 1) * 512 + (m & 1) * 64
        for m in range(3):
            L += bread(m, vb(m))
        for m in range(6):
            if m + 3 < 6:
                L += bread(m + 3, vb(m + 3))
            L += mm2(DALL + m * 16, AFR, BALL + m * 8)
            if m == 3 and not o.dirt:
                L += FX(1)[0]
        if not o.dirt:
            L += FX(1)[1][3:]
        for p_ in range(3):
            L += ['s_mov_b32 exec_lo, 0', f'v_mov_b32 v{DALL + 32 * p_}, v{DALL + 32 * p_ + 16}', 's_mov_b32 exec_lo, -1',
                  f'v_cvt_pk_bf16_f32 v{BALL + p_}, 0, v{DALL + 32 * p_}']
            if p_ == 2:
                L += [f's_mov_b64 exec, s[{S_MASK}:{S_MASK + 1}]']
            L += [f'ds_write_b16_d16_hi v{AV[p_]}, v{BALL + p_}', f'v_max_f32 v108, |v{BALL + p_}|, v108']
        L += ['s_mov_b64 exec, -1'] + pub2(108, 109, 8) + self.stamp(13) + [f's_setprio {o.g1p}'] + (g1touch if o.g1t == 1 else []) + ['s_waitcnt lgkmcnt(0)', 's_barrier'] + (g1touch if o.g1t == 2 else []) + ['s_branch L_w2']
        v3 = self.seq(L)

        def stage3(dst, goff, tag, lab, mid=None, fill=()):
            st = stage(dst, goff, tag)
            a_ = st[:8] if mid is None else st[:mid[0]] + [tuple(mid[1])] + st[mid[0]:8]
            return (self.seq(interleave(a_, list(fill)) + [f's_cmp_eq_u32 s{cw}, 3', f's_cbranch_scc1 {lab}']), self.seq([st[8]]), self.seq([f'{lab}:']))
        g0 = [self.seq(['L_g0:', 's_waitcnt lgkmcnt(0)'] + self.build_srd(SRD_CIN, S_CIN, 105456) + (['s_barrier'] if o.coop == 2 else []))]
        g0.append(stage3(A3, 70304, 'W3', 'L_st3'))
        g0.append(self.seq(self.stamp0() + self.build_srd(SRD_IDX, S_IDX, 4096 * 104) + ([f's_add_u32 s{S_SAMP}, s{S_SAMP}, {8 * 104}'] if o.xg1 else xidx(XI, t4) + xidx(XJ, t4)) + self.build_srd(SRD_TAB, S_TAB, 100000 * 128)))
        def w2grp(n):
            c = []
            for k, go in enumerate((0, 1024, 1864)):
                c.append((f's_add_u32 m0, s{S_STG9}, {A2 + n * 4 * 3072 + k * 1024}', f's_add_u32 s{S_TW}, s{S_TGT}, {35152 + n * 4 * 2704 + go}',
                          I(f'buffer_load_dwordx4 v{t5 if k == 1 else vStg}, {srd(SRD_CIN)}, s{S_TW} offen lds', tag='W2')))
            return c
        g0.append((self.seq([f's_mul_i32 s{S_STG9}, s{cw}, 3072', f's_mul_i32 s{S_TGT}, s{cw}, 2704', f'v_lshrrev_b32 v{t5}, 5, v0', f'v_mul_u32_u24 v{t5}, 184, v{t5}',
                             f'v_sub_u32 v{t5}, v{vStg}, v{t5}'] + interleave(w2grp(0) + w2grp(1) + w2grp(2), SC2) + [f's_cmp_lg_u32 s{cw}, 0', 's_cbranch_scc1 L_st2']),
                   self.seq(w2grp(3)), self.seq(['L_st2:']), 1))
        xx = xdma(vC16=t3, tag='XBa') + xdma(XJ, 4 * XBSZ, vC16=t3)
        g0.append(stage3(A1, 0, 'W1', 'L_st1', (o.sigat, [WaitTag(vm_tags=['W2' if o.mrg else 'W3']), 's_barrier'] + self.stamp(2) + FX(0)[0])))
        g0.append(self.seq(([] if o.xg1 else xx) + (pfw(PFR) if o.pfw and o.pfs == 1 else []) + FX(0)[1] + self.stamp(13) + [WaitTag(vm_tags=['W1']), 's_barrier']))

        def G0(w):
            r = []
            for x in g0:
                r += x if isinstance(x, list) else x[0] + (x[1] if w < (3 if len(x) == 3 else x[3]) else []) + x[2]
            return r

        def gather(dst, off):
            c = [f'v_add_u32 v{r}, {off}, v{r}' for r in (vGa, vGb)] if off else []
            for s2 in range(2):
                for e in range(0, 8, 2):
                    base = vGb if (s2 == 1 and e >= 2) else vGa
                    h = 16 * s2 + e
                    c.append(f'ds_read2st64_b32 {vr(dst + 8 * s2 + e, 2)}, v{base} offset0:{6 * h} offset1:{6 * h + 6}')
            return c

        def perms(g_, aj):
            return [f'v_perm_b32 v{aj + 8 * jj + r}, v{g_ + 2 * r + 1}, v{g_ + 2 * r}, s{S_U1 + jj}' for jj in range(2) for r in range(8)]

        def sout(t):
            d, c_ = DALL + 16 * t, DALL + 16 * t
            c = [f'v_cvt_pk_f16_f32 v{c_ + r}, v{d + 2 * r}, v{d + 2 * r + 1}' for r in range(8)]
            return c[:4] + [f'ds_write_b128 v{WA[t]}, {vr(c_, 4)}', f'v_xor_b32 v{WA[t]}, 16, v{WA[t]}'] + c[4:] + [f'ds_write_b128 v{WA[t]}, {vr(c_ + 4, 4)}']
        M1, M2 = 28, 28

        def pub1(r, off):
            c = [f'v_max_u32_dpp v{r}, v{r}, v{r} {ctl} row_mask:{rm} bank_mask:0xf' for ctl, rm in DPPS]
            return c + [('s_mov_b32 exec_lo, 0', 's_mov_b32 exec_hi, 0x80000000', f'ds_max_u32 v{vFR}, v{r} offset:{16 + off}', 's_mov_b64 exec, -1')]
        L = ['L_w2:'] + self.stamp(14) + self.probe('bw2') + gather(BALL, 0) + (pfw(PFR) if o.pfw and o.pfs == 2 else []) + (pfx_a() if o.pfx else [])
        cx = []
        if o.xg1:
            cc0 = self.seq(L + [f's_cmp_eq_u32 s{S_GRP}, 0', 's_cbranch_scc1 L_nx1'])
            cx = self.seq(xdma(XI, -4 * XBSZ) + xdma(XK))
            L = ['L_nx1:']
        else:
            cc0 = []
        L += [f's_cmp_ge_u32 s{S_WAVE}, 5', 's_cbranch_scc1 L_u0']
        cc = self.seq(L)
        M1, M2 = 28, 108
        fin2 = lambda: interleave(mxfin(M1), mxfin(M2)) + [tuple(x) if isinstance(x, list) else x for x in pub2(M1, M2, 0)[:7] + [pub2(M1, M2, 0)[7:]]]
        afr = [f'ds_read_b64_tr_b16 {vr(AFR + 4 * s2 + 2 * rd, 2)}, v{vA3} offset:{s2 * 1024 + rd * 256}' for s2 in range(2) for rd in range(2)]
        b1u = self.seq(gather(BALL + 32, 32) + bread(2, 0) + bread(3, 64) + afr + mxop(BALL, 16, M2, True) + perms(BALL, DALL + 64)[:8] + mxop(BALL + 32, 16, M2, False)
                       + mxop(BALL + 16, 16, M1, True) + perms(BALL, DALL + 64)[8:] + interleave(fin2(), perms(BALL + 32, BALL)) + ['s_branch L_u1'])
        L = ['L_u0:'] + bread(2, 0) + bread(3, 64) + bread(4, 384) + bread(5, 384 + 64) + afr + mxop(BALL, 16, M2, True) + mxop(BALL + 16, 32, M1, True)
        L += perms(BALL, DALL + 64)[:4] + interleave(fin2(), perms(BALL, DALL + 64)[4:])
        L += [f'v_add_u32 v{WA[4]}, {192 * 64}, v{WA[2]}', f'v_add_u32 v{WA[5]}, {192 * 64}, v{WA[3]}',
              f's_cmp_lg_u32 s{S_WAVE}, 7', 's_cbranch_scc1 L_u1', 's_mov_b32 exec_lo, 0xfffffff0', 's_mov_b32 exec_hi, 0xfffffff0', f'v_mov_b32 v{WA[5]}, {OOB}', 's_mov_b64 exec, -1']
        b1q = self.seq(L)
        MXR = 108
        vM = 58

        def ureads(j):
            return [f'ds_read_u16_d16_hi v{XR + 2 * j}, v{vXa} offset:{XOFF(2 * j)}',
                    f'ds_read_u16_d16_hi v{XR + 2 * j + 1}, v{vXa} offset:{XOFF(2 * j) + 2}']
        mx3 = lambda j: f'v_max3_f32 v{vM}, |v{XR + 2 * j}|, |v{XR + 2 * j + 1}|, {"0" if j == 0 else f"v{vM}"}'
        L = ['L_u1:'] + self.stamp(1) + [WaitTag(lgkm0=True), 's_barrier'] + self.stamp(7) + self.probe('b1')
        L += [f'ds_read_b128 {vr(MXR, 4)}, v{vFR} offset:16'] + (pfx_b() + pfx_a() if o.pfx and o.pf1 == 1 else [])
        L += [f's_mul_i32 s{S_T0}, s{S_WAVE}, 384', f'v_lshrrev_b32 v{t3}, 2, v0', f'v_mul_u32_u24 v{t3}, 24, v{t3}', f'v_add_u32 v{t3}, s{S_T0}, v{t3}',
              f'v_and_b32 v{t4}, 3, v0', f'v_lshlrev_b32 v{t4}, 3, v{t4}']
        L += [f'ds_read_b64 {vr(UA + 2 * n_, 2)}, v{t3} offset:{TC_ + 8 * n_}' for n_ in range(3)]
        q1 = [f'v_add_u32 v{MXR}, {127 << 23:#x}, v{MXR}', f'v_lshrrev_b32 v{MXR}, 24, v{MXR}', f'v_sub_u32 v{MXR}, 267, v{MXR}', f'v_min_u32 v{MXR}, 167, v{MXR}',
              f'v_readfirstlane_b32 s{S_F1}, v{MXR}', f'v_mul_u32_u24 v{MXR}, 0x800080, v{MXR}']
        sc = [f'v_add_u32 v{MXR + 1}, {127 << 23:#x}, v{MXR + 1}', f'v_lshrrev_b32 v{MXR + 1}, 24, v{MXR + 1}',
              's_mov_b32 vcc_lo, 0x4000000', 's_mov_b32 vcc_hi, 0x4000000', f'v_cndmask_b32 v{vS}, v{MXR + 2}, v{MXR + 3}, vcc', f'v_lshrrev_b32 v{vS}, 23, v{vS}',
              f'v_add_u32 v{vS}, v{vS}, v{MXR + 1}', f'v_sub_u32 v{vS}, 388, v{vS}', f's_movk_i32 s{S_U0}, 167', f'v_med3_i32 v{vS}, v{vS}, 1, s{S_U0}',
              f'v_subrev_u32 v{MXR + 2}, 127, v{vS}', f'v_lshlrev_b32 v{vS}, 23, v{vS}', f'v_cmp_gt_i32 vcc, 0, v{MXR + 2}',
              f'v_mul_u32_u24 v{MXR + 2}, 0x800080, v{MXR + 2}']
        mq = mm2(DALL + 32, PM, BALL + 16) + mm2(DALL + 48, PM, BALL + 24)
        L += interleave(q1, sc[:6]) + [f'v_and_b32 v{PM + r}, v{PM + r}, v{MXR}' for r in range(8)] + interleave([mq[0], mq[2], mq[1], mq[3]], sc[6:]) + ['s_cbranch_vccnz L_sdown']
        L += [f'v_add_u32 v{AFR + r}, v{AFR + r}, v{MXR + 2}' for r in range(8)]
        u1a = self.seq(L)
        L = ['L_scaled:'] + interleave(mm2(DALL, DALL + 64, AFR) + mm2(DALL + 16, DALL + 72, AFR), sout(2) + sout(3))
        L += [f's_cmp_ge_u32 s{S_WAVE}, 5', 's_cbranch_scc1 L_u2']
        u1 = self.seq(L)
        u2u = self.seq(interleave(mm2(DALL + 64, BALL, AFR) + mm2(DALL + 80, BALL + 8, AFR), sout(0)) + ['s_branch L_u3'])
        u2q = self.seq(['L_u2:'] + interleave(mm2(DALL + 64, PM, BALL + 32) + mm2(DALL + 80, PM, BALL + 40), sout(0)))
        L = ['L_u3:'] + xidx() + xidx(112) + (pfx_b() + pfx_a() if o.pfx and o.pf1 == 2 else [])
        L += interleave(sout(1) + sout(4) + sout(5), [x for n_ in range(6) for x in (f'v_xor_b32 v{UA + n_}, v{UA + n_}, v{t4}', f'v_xor_b32 v{UX[n_]}, 32, v{UA + n_}')])
        L += [f'v_readlane_b32 s{S_CG}, v{vS}, 0', f'v_readlane_b32 s{S_IV}, v{vS}, 26',
              f's_sub_u32 s{S_F2}, {254 << 23:#x}, s{S_CG}', f's_sub_u32 s{S_IV}, {254 << 23:#x}, s{S_IV}',
              f's_sub_u32 s{S_F1}, 254, s{S_F1}', f's_lshl_b32 s{S_F1}, s{S_F1}, 23',
              f's_mov_b32 s{S_MASK}, 0x88888888', f's_mov_b32 s{S_MASK + 1}, 0x88888888']

        def sigma(s_):
            t = (s_ - 1) // 2
            first = (s_ - 1) % 2 == 0
            return (0 if first else 1) if t % 2 == 0 else (1 if first else 0)
        for s_ in range(1, 11):
            assert ((s_ - 1) // 2) * 1024 + sigma(s_) * 512 - (s_ // 4) * 2048 == (-1024, 0, 512, 1536)[s_ % 4]

        def p2read(n_):
            b = BALL + 16 * n_
            c = []
            UAl = list(range(UA, UA + 6))
            for x, (ar, off) in enumerate(((UAl, 0), (UX, 0), (UAl, SSZ), (UX, SSZ))):
                for y in range(2):
                    c.append(f'ds_read_b64_tr_b16 {vr(b + 4 * x + 2 * y, 2)}, v{ar[2 * n_ + y]} offset:{off}')
            return c

        def p2a(n_):
            b = BALL + 16 * n_
            c = []
            for x in range(4):
                c += [f'v_pk_add_f16 v{b + 4 * x + y}, v{b + 4 * x + y}, v{b + 4 * x + 2 + y}' for y in range(2)]
                if x in (0, 2):
                    c.append(f'ds_write_b64 v{vFw}, {vr(b + 4 * x, 2)} offset:{FR + n_ * 4 * 3072 + x * 1024}')
            c += [f'v_cndmask_b32 v{b + 4 + y}, v{b + 4 + y}, v{b + 12 + y}, s[{S_MASK}:{S_MASK + 1}]' for y in range(2)]
            c.append(f'ds_write_b64 v{vFw}, {vr(b + 4, 2)} offset:{FR + n_ * 4 * 3072 + 1024}')
            return c

        def p2s(n_):
            b = BALL + 16 * n_ + 12
            off = FRS + max(n_ * 2048 - 1024, 0)
            return ([f'v_subrev_u32 v{vT3}, 1024, v{vT3}'] if n_ == 0 else []) + [
                f'ds_write_b32 v{vT3}, v{b} offset:{off}', f'ds_write_b32 v{vT3}, v{b + 1} offset:{off + 16}']
        ec = []
        if o.econv:
            L += [f's_cmp_lg_u32 s{S_GRP}, 0', 's_cbranch_scc1 L_noec']
            u3 = self.seq(L)
            ec = self.seq([WaitTag(vm_tags=['XBa'])] + [x for j in range(13) for x in ureads(j)])
            L = ['L_noec:']
        else:
            u3 = []
        L += [WaitTag(vm_tags=['XB'] if o.xg1 else [], lgkm0=True), 's_barrier'] + self.stamp(10)
        L += p2read(0) + p2read(1) + [f's_cmp_ge_u32 s{S_WAVE}, 6', 's_cbranch_scc1 L_lin']
        b2 = self.seq(L)
        p2c = self.seq(p2read(2) + p2a(2) + p2s(2) + ['s_branch L_p2'])
        LB = BALL + 32
        ZR4 = t5
        L = ['L_lin:', f's_and_b32 s{S_U0}, s{S_WAVE}, 1', f's_cselect_b64 vcc, -1, 0', f's_lshl_b32 s{S_U1}, s{S_U0}, 5', f'v_mov_b32 v{ZR4}, 0',
             f'v_xor_b32 v{vV2r}, s{S_U1}, v{vV2r}', f'v_xor_b32 v{vV2q}, s{S_U1}, v{vV2q}', f'v_cndmask_b32 v{vWo}, v{vWo}, v{vWo + 1}, vcc',
             f'ds_read_b64_tr_b16 {vr(LB, 2)}, v{vV2r}', f'ds_read_b64_tr_b16 {vr(LB + 2, 2)}, v{vV2q}',
             f'ds_read_u16_d16_hi v{ZR4}, v{vWo}',
             f's_lshl_b32 s{S_U0}, s{S_U0}, 10', f'v_add_u32 v{t3}, s{S_U0}, v{vStg}']
        for r in range(4):
            a_, b_ = LB + 4 + 2 * r, LB + 5 + 2 * r
            L += [f'v_cvt_f32_f16 v{a_}, v{LB + r}', f'v_cvt_f32_f16_sdwa v{b_}, v{LB + r} dst_sel:DWORD dst_unused:UNUSED_PAD src0_sel:WORD_1',
                  f'v_mul_f32 v{a_}, s{S_IV}, v{a_}', f'v_mul_f32 v{b_}, s{S_IV}, v{b_}']
            if r == 3:
                L += ['s_mov_b32 exec_lo, 0', 's_mov_b32 exec_hi, 0xffff', f'v_mov_b32 v{a_}, v{ZR4}', 's_mov_b64 exec, -1']
            L += [f'v_mul_f32 v{a_}, s{S_CG}, v{a_}', f'v_mul_f32 v{b_}, s{S_CG}, v{b_}', f'v_cvt_pk_bf16_f32 v{LB + r}, v{a_}, v{b_}']
        L += [f'ds_write_b128 v{t3}, {vr(LB, 4)} offset:{FRL}']
        lin = self.seq(L)
        p2 = self.seq(['L_p2:'] + p2a(1) + p2s(1) + p2a(0) + [f's_cmp_lt_u32 s{S_WAVE}, 2', 's_cbranch_scc1 L_p2d'])
        p2e = self.seq(p2s(0) + ['s_branch L_built'])
        p2d = self.seq(['L_p2d:', f'ds_write_b64 v{vT3d}, {vr(BALL + 12, 2)} offset:{FRS + 5 * 1024}'])

        L = ['L_sdown:']
        for r in range(8):
            L += [f'v_lshlrev_b32 v{MXR}, 16, v{AFR + r}', f'v_and_b32 v{MXR + 1}, 0xffff0000, v{AFR + r}',
                  f'v_mul_f32 v{MXR}, v{MXR}, v{vS}', f'v_mul_f32 v{MXR + 1}, v{MXR + 1}, v{vS}', f'v_cvt_pk_bf16_f32 v{AFR + r}, v{MXR}, v{MXR + 1}']
        self.sdown = L + ['s_branch L_scaled']

        def PRE(w, sd=None):
            grp = w >> 2
            return (c0 + (g1s + (g1t if w < 6 else []) if grp else []) + csc + (v3p + v3 if grp else G0(w)) + cc0 + (cx if grp else []) + cc + (b1q if w >= 5 else b1u)
                    + (u1a if sd is None else u1a[:-8] + sd) + u1 + (u2q if w >= 5 else u2u) + u3 + ([] if grp else ec) + b2
                    + (lin if w >= 6 else p2c) + p2 + (p2d if w < 2 else p2e))
        L = ['L_built:'] + self.stamp(11)
        L += [f's_mov_b32 s{S_CG}, s{S_F1}', f's_mov_b32 s{S_IV}, s{S_F2}', f's_mov_b32 s{S_LO}, {f32hex(0.125)}', f's_mov_b32 s{S_HI}, {f32hex(0.0 if o.slow else 128.0)}']
        CV, vM, S_XD = 28, 58, 81

        def ureads(j):
            return [f'ds_read_u16_d16_hi v{XR + 2 * j}, v{vXa} offset:{XOFF(2 * j)}',
                    f'ds_read_u16_d16_hi v{XR + 2 * j + 1}, v{vXa} offset:{XOFF(2 * j) + 2}']
        mx3 = lambda j: f'v_max3_f32 v{vM}, |v{XR + 2 * j}|, |v{XR + 2 * j + 1}|, {"0" if j == 0 else f"v{vM}"}'
        cvt = lambda j: f'v_cvt_pk_f16_f32 v{CV + j % 4}, v{XR + 2 * j}, v{XR + 2 * j + 1}'
        iwr = lambda j: f'ds_write_b32 v{vIw}, v{CV + j % 4} offset:{j * IMGP}'
        S_SKIP = 51
        pfr = lambda: (pfx_b() + pfx_a() if o.pfx else []) + (pfw() if o.pfw else [])
        conv = lambda tag='XB': ([WaitTag(vm_tags=[tag])] + [x for j in range(13) for x in ureads(j)]
                        + [x for j in range(13) for x in (mx3(j), f'v_cvt_pk_f16_f32 v{D + j}, v{XR + 2 * j}, v{XR + 2 * j + 1}')])
        L += [f's_mov_b32 s{S_SKIP}, 1', f's_mul_i32 s{S_U0}, s{S_WAVE}, 1536', f's_add_u32 s{S_U0}, s{S_U0}, {PART}',
              f's_cmp_lg_u32 s{S_GRP}, 0', 's_cbranch_scc1 L_g1c']
        c2a = self.seq(L)
        c2g0 = self.seq([f's_sub_u32 s{S_SAMP}, s{S_SAMP}, {4 * 104}', Touch('v[112:115]')] + (conv('XBa')[27:] if o.econv else conv('XBa')) + [WaitTag(lgkm0=True), 's_barrier'] + self.probe('b4a') + self.stamp(8) + ['s_branch L_cin_go'])
        DX = XB2 - XB - 4 * XBSZ
        L = ['L_g1c:', WaitTag(vm_tags=['XB'], lgkm0=True), 's_barrier'] + self.stamp(8) + self.probe('b4')
        L += [f's_add_u32 s{S_XM0}, s{S_XM0}, {DX}'] + xdma(tag='XB0') + xdma(112, 4 * XBSZ) + xidx() + pfr() + [f'v_add_u32 v{r}, {DX}, v{r}' for r in (vXa, vLin0, vLin1)]
        L += [f'ds_write_b32 v{vXa}, v{vXi1} offset:{XOFF(26)}', f'ds_write_b32 v{vXa}, v{vXi1} offset:{XOFF(26) + 4 * XBSZ}']
        c2g1 = self.seq(L)
        c2b = []
        c2g1d = self.seq(['L_g1d:'] + conv('XB0'))
        c2c = self.seq(['L_cin_go:'] + [f'ds_write_b32 v{vIw}, v{D + j} offset:{j * IMGP}' for j in range(13)]
                       + [f's_mov_b32 s{S_XD}, {4 * XBSZ}', f's_add_u32 s{S_XM0}, s{S_XM0}, {4 * XBSZ}',
                          f'v_lshlrev_b32 v{vXi1}, 2, v0', f'v_add_u32 v{vXi1}, s{S_U0}, v{vXi1}'])

        NWF = 5
        PF = o.cpfd
        zslot = lambda s_: 1 if s_ % 2 == 0 else (0 if ((s_ - 1) // 2) % 2 == 0 else 2)
        zr = lambda T, sl: Z + 12 * T + 4 * sl
        preg = lambda T, r: P + 14 * T + (r if r < 14 else r - 14)
        acc = lambda T, tile: D + 16 * T + 4 * tile
        jobs = [('l', 0, 0), ('l', 0, 1)]
        for s_ in range(11):
            jobs += [('d', s_, 2), ('d', s_, 0), ('d', s_, 1)]
            if s_ == 0:
                jobs.append(('d', 0, 3))
            elif s_ % 2 == 0:
                jobs.append(('s', s_, 3))
        NJ = len(jobs)
        assert NJ == 41

        def wread(n):
            kind, s_, tile = jobs[n]
            off = FRL + tile * 1024 if kind == 'l' else (FR + s_ * 3072 + tile * 1024 if tile < 3 else FRS + (5 if s_ == 0 else (s_ - 1) // 2) * 1024)
            return f'ds_read_b128 {vr(WF + 4 * (n % NWF), 4)}, v{vFa} offset:{off}'

        def mfma(n, T):
            kind, s_, tile = jobs[n]
            a = vr(WF + 4 * (n % NWF), 4)
            d = vr(acc(T, tile), 4)
            if kind == 'l':
                return f'v_mfma_f32_16x16x32_bf16 {d}, {a}, {vr(zr(T, 2), 4)}, 0'
            if kind == 's':
                lo = 0 if ((s_ - 1) // 2) % 2 == 0 else 1
                return f'v_smfmac_f32_16x16x64_f16 {d}, {a}, {vr(zr(T, lo), 8)}, v{vIDX}'
            return f'v_mfma_f32_16x16x32_f16 {d}, {a}, {vr(zr(T, zslot(s_)), 4)}, {"0" if (s_ == 0 and tile >= 2) else d}'

        def pk(T, n):
            a, b, s0, s1 = cin16.INS[n]
            return (f'v_pk_mul_f16 v{zr(T, zslot(n // 4)) + n % 4}, v{preg(T, a)}, v{preg(T, b)} '
                    f'op_sel:[{s0[0]},{s0[1]}] op_sel_hi:[{s1[0]},{s1[1]}]')

        def trp(T, rp):
            return f'ds_read_b64_tr_b16 {vr(preg(T, 2 * rp), 2)}, v{vTR + rp} offset:{32 * T}'

        LASTA = max(n for n, x in enumerate(cin16.INS) if x[0] < 2)
        S_A1, S_A2, S_PINC = 49, 50, 48
        fin = []
        for T in range(4):
            fin += [(acc(T, 0) + r, acc(T, 2) + r) for r in range(4)] + [(acc(T, 1), acc(T, 1) + 3)]
        for T in range(4):
            fin += [(acc(T, 1) + 1 + (r >> 1), acc(T, 3) + r) for r in range(4)]

        def final(f1, f2):
            c = []
            for k, (a, b) in enumerate(fin):
                d = Z + k % 4
                c.append(f'v_mul_f32 v{d}, v{a}, v{b}' if k < 4 else f'v_fmac_f32 v{d}, v{a}, v{b}')
            c += [f'v_add_f32 v{Z}, v{Z}, v{Z + 1}', f'v_add_f32 v{Z + 2}, v{Z + 2}, v{Z + 3}', f'v_add_f32 v{Z}, v{Z}, v{Z + 2}']
            c += [f'v_mul_f32 v{Z}, s{x}, v{Z}' for x in (f1, f2)]
            return c + [f'ds_write_b32 v{vXi1}, v{Z}']
        code = ['L_cin_loop:', f'v_cmp_le_f32 s[{S_CM}:{S_CM + 1}], s{S_HI}, v{vM}', f'v_cmp_le_f32 vcc, s{S_LO}, v{vM}',
                f's_mov_b32 s{S_A1}, s{S_F1}', f's_mov_b32 s{S_A2}, s{S_F2}',
                f's_cmp_lg_u64 s[{S_CM}:{S_CM + 1}], 0', 's_cbranch_scc1 L_cslow', 's_cbranch_vccz L_cslow']
        cA = self.seq(code)
        RD = []
        for rp in (0, 3, 4):
            RD += [trp(T, rp) for T in range(4)]
        for T in range(4):
            RD += [f'ds_read_b64_tr_b16 {vr(zr(T, 2), 2)}, v{vLin0} offset:{32 * T}', f'ds_read_b64_tr_b16 {vr(zr(T, 2) + 2, 2)}, v{vLin1} offset:{32 * T}']
        RD += [wread(k) for k in range(PF)]
        for rp in (5, 6, 1, 2):
            RD += [trp(T, rp) for T in range(4)]
        pfr = lambda: (pfx_b() + pfx_a() if o.pfx else []) + (pfw() if o.pfw else [])
        vm = xdma() + xidx() + pfr()
        VA = final(S_A1, S_A2) + [f'v_add_u32 v{vXi1}, 256, v{vXi1}']
        PK0 = [pk(T, n) for T in range(4) for n in range(4)]
        TG = [f'v_add_u32 v{r}, s{S_XD}, v{r}' for r in (vXa, vLin0, vLin1)] + [f's_sub_u32 s{S_XM0}, s{S_XM0}, s{S_XD}', f's_sub_u32 s{S_XD}, 0, s{S_XD}', f's_mov_b32 s{S_SKIP}, 0']
        cB0 = self.seq(['L_cconv:', f's_cmp_lg_u32 s{S_SKIP}, 0', 's_cbranch_scc1 L_first'])
        cVM = self.seq(interleave(RD, VA) + PK0 + vm)
        self.first = ['L_first:'] + RD[:28] + interleave(RD[28:], PK0) + ['s_branch L_novm']
        code = ['L_novm:'] + TG
        LA = 1
        def lstamp(base):
            if not (o.stamps and o.cst):
                return []
            return [f's_memtime s[{S_ST}:{S_ST + 1}]', f's_memrealtime s[{S_ST + 2}:{S_ST + 3}]', f's_sub_u32 s{S_C0}, {base + 6}, s{S_LOOP}', 's_waitcnt lgkmcnt(0)',
                    f's_mov_b32 m0, s{S_C0}', f'v_writelane_b32 v252, s{S_ST}, m0', f'v_writelane_b32 v253, s{S_ST + 2}, m0']
        code += lstamp(19)
        code += [Touch(vr(WF, 4)), Touch(vr(zr(3, 2), 4))] + ([f's_cmp_eq_u32 s{S_GRP}, 0', 's_cbranch_scc1 L_np1', 's_setprio 1', 'L_np1:'] if o.gprio else ['s_setprio 1'])
        MS = [(n, T) for n in range(NJ) for T in range(4)]
        first_use, last_use = {}, {}
        for mi, (n, T) in enumerate(MS):
            kind, s_, tile = jobs[n]
            if kind == 'l':
                last_use[(T, 'lin')] = mi
                continue
            for su in ([s_] if kind == 'd' else [s_ - 1, s_]):
                first_use.setdefault((T, su), mi)
                last_use[(T, su)] = mi
        V = []
        for s_ in range(LA, 11):
            prev = [p_ for p_ in range(s_) if zslot(p_) == zslot(s_)]
            for T in range(4):
                rdy = last_use[(T, prev[-1])] + o.war if prev else (last_use[(T, 'lin')] if zslot(s_) == 2 else -1)
                for n in range(4 * s_, 4 * s_ + 4):
                    V.append((pk(T, n), rdy, first_use[(T, s_)], n, T))
        forced = 0
        late = []
        XL_ = [x for j in range(13) for x in ureads(j)]
        xrd = {}
        CVR = [preg(T, r) for r in (2, 3, 6, 7) for T in range(4)]
        cvrdy = max(n for n, x in enumerate(cin16.INS) if set(x[:2]) & {2, 3, 6, 7})
        cvt2 = lambda j: f'v_cvt_pk_f16_f32 v{CVR[j]}, v{XR + 2 * j}, v{XR + 2 * j + 1}'
        iwr2 = lambda j: f'ds_write_b32 v{vIw}, v{CVR[j]} offset:{j * IMGP}'
        nm = nc = nw = 0
        V.sort(key=lambda x: x[2])
        prev2 = 0
        for mi, (n, T) in enumerate(MS):
            while V and V[0][2] <= mi:
                assert V[0][1] < mi
                code.append(V.pop(0)[0]); forced += 1
            code.append(mfma(n, T))
            t = 4
            if o.cbar and mi == len(MS) - 1 - o.cbov:
                code += ['s_setprio 3', 's_barrier']; t += 8
            if not o.cbar and mi == 4 * o.hiat - 2:
                code.append('s_setprio 2'); t += 4
            if T == 3 and n + 1 < NJ:
                code.append(Touch(vr(WF + 4 * ((n + 1) % NWF), 4))); t += 4
            if T == 0 and n + PF < NJ:
                code.append(wread(n + PF)); t += 8
            elif T in (1, 2) and late:
                code.append(late.pop(0)); t += 8
            elif T in (1, 2) and mi >= o.x0 and XL_:
                if len(XL_) == 26:
                    code.append(WaitTag(vm_tags=['XB']))
                code.append(XL_.pop(0)); t += 8
                if len(XL_) % 2 == 0:
                    xrd[12 - len(XL_) // 2] = mi
            elif not V and nw < nc and t == 4:
                code.append(iwr2(nw)); nw += 1; t += 12
            t = max(t, 12 if jobs[n][0] == 's' else 8)
            k = 0
            while t < 16:
                urgent = any(V[q_][2] - 1 - mi < q_ + 1 for q_ in range(min(24, len(V))))
                if k == 1 and prev2 >= o.max2 and not urgent:
                    break
                cand = [x for x in V[:32] if x[1] <= mi]
                extra = None
                if nm < 13 and nm in xrd and xrd[nm] + o.xlat <= mi:
                    extra = 'm'
                elif nc < nm and all(x[3] > cvrdy for x in V):
                    extra = 'c'
                if cand and (k == 0 or urgent or not extra) and (k == 0 or urgent or o.eager):
                    x = cand[0]
                    V.remove(x)
                    code.append(x[0])
                    if x[3] <= LASTA and all(y[3] > LASTA for y in V if y[4] == x[4]):
                        late.append(trp(x[4], 7))
                elif extra == 'm':
                    code.append(mx3(nm)); nm += 1
                elif extra == 'c':
                    code.append(cvt2(nc)); nc += 1
                else:
                    break
                t += 4; k += 1
            prev2 = prev2 + 1 if k == 2 else 0
        assert not late and not XL_ and not V
        print('left', 13 - nm, 13 - nc, 13 - nw)
        tail = [mx3(j) for j in range(nm, 13)] + [cvt2(j) for j in range(nc, 13)] + [iwr2(j) for j in range(nw, 13)]
        print('forced VALU', forced)
        code += lstamp(25)
        code.append(f's_setprio {o.p0}')
        code += [f's_sub_u32 s{S_LOOP}, s{S_LOOP}, 1', f's_cmp_eq_u32 s{S_LOOP}, 0', 's_cbranch_scc1 L_cin_done'] + tail
        ntail = len(tail) + 1
        def keep(x):
            t_ = x.text if isinstance(x, I) else x
            if isinstance(t_, tuple):
                return True
            if 'nopk' in o.dbg and t_.startswith('v_pk_mul_f16'):
                return False
            if 'nowf' in o.dbg and t_.startswith('ds_read_b128'):
                return False
            if 'nosm' in o.dbg and t_.startswith('v_smfmac'):
                return False
            return True
        code = [x for x in code if keep(x)]
        if 'bf' in o.dbg:
            code = [x.replace('x32_f16', 'x32_bf16').replace('x64_f16', 'x64_bf16') if isinstance(x, str) else x for x in code]
        cB = self.seq(code + ['s_branch L_cin_loop'])
        mark0 = len(self.P.static)
        bl = []
        if o.burn:
            bl = [f's_movk_i32 s{S_LOOP}, {o.burn // 2}', 'L_burn2:'] + [f'v_mfma_f32_16x16x32_f16 {vr(P + 4 * (k % 2), 4)}, {vr(WF + 4 * (k % 4), 4)}, {vr(Z + 4 * (k // 4), 4)}, 0' for k in range(32)]
            bl += [f's_sub_u32 s{S_LOOP}, s{S_LOOP}, 1', f's_cmp_lg_u32 s{S_LOOP}, 0', 's_cbranch_scc1 L_burn2']
        L = ['L_cin_done:', f's_mul_i32 s{S_U0}, s{S_WAVE}, 1536', f's_add_u32 s{S_U0}, s{S_U0}, {PART}',
             f'v_lshlrev_b32 v{Z + 4}, 5, v0', f'v_add_u32 v{Z + 4}, s{S_U0}, v{Z + 4}',
             f'ds_read_b128 {vr(P, 4)}, v{Z + 4}', f'ds_read_b128 {vr(P + 4, 4)}, v{Z + 4} offset:16'] + bl + final(S_F1, S_F2)[:-1]
        E = [f'v_subrev_u32 v{Z + 6}, s{S_U0}, v{vXi1}', f'v_lshrrev_b32 v{Z + 6}, 8, v{Z + 6}', f'v_lshrrev_b32 v{Z + 5}, 3, v0', f'v_cmp_gt_u32 vcc, v{Z + 6}, v{Z + 5}',
             f'v_min_u32 v{Z + 5}, v{Z + 5}, v{Z + 6}', f'v_lshlrev_b32 v{Z + 5}, 4, v{Z + 5}', f'v_add_u32 v{Z + 5}, s{S_RC}, v{Z + 5}',
             ] + [f'v_add_f32 v{P + a_}, v{P + a_}, v{P + b_}' for a_, b_ in ((0, 1), (2, 3), (4, 5), (6, 7), (0, 2), (4, 6), (0, 4))]
        E += [f'v_add_f32_dpp v{P}, v{P}, v{P} {ctl} row_mask:0xf bank_mask:0xf' for ctl in ('quad_perm:[1,0,3,2]', 'quad_perm:[2,3,0,1]', 'row_half_mirror')]
        L += interleave([f'v_add_f32_dpp v{Z}, v{Z}, v{Z} {ctl} row_mask:{rm} bank_mask:0xf' for ctl, rm in DPPS], E)
        L += [f'v_cndmask_b32 v{P}, v{Z}, v{P}, vcc', 's_bitset1_b32 vcc_hi, 31', 's_mov_b64 exec, vcc', f'ds_write_b32 v{Z + 5}, v{P}', 's_mov_b64 exec, -1']
        L += self.stamp(9) + self.stamp_flush() + self.probe('cend') + [f's_cmp_eq_u32 s{S_WAVE}, 0', 's_cbranch_scc1 L_cpub', 's_waitcnt lgkmcnt(0)', 's_barrier', 's_endpgm',
              'L_cpub:', f's_load_dword s{S_BOUT}, s[{S_BO}:{S_BO + 1}], 0'] + self.pubsrd() + [
              'v_lshlrev_b32 v6, 2, v0', f'v_add_u32 v2, {RC}, v6', 'v_add_u32 v4, 1024, v6',
              f's_mul_i32 s{S_T1}, s{S_MB}, 192', f's_add_u32 s{S_T1}, s{S_T1}, {13 * WSP}',
              'v_mov_b32 v13, -1', 's_mov_b32 exec_hi, 0xffff', f'buffer_store_dword v13, v6, {srd(SRD_WS)}, s{S_T1} offen sc1', 's_mov_b64 exec, 1',
              f'buffer_load_dword v250, v6, {srd(SRD_OUT)}, 0 offen', f'buffer_load_dword v251, v6, {srd(SRD_DBG)}, 0 offen offset:240 sc1', 's_mov_b64 exec, -1',
              f's_mul_i32 s{S_T0}, s{S_MB}, 3', f's_mul_i32 s{S_T2}, s{S_T0}, 3277', f's_lshr_b32 s{S_T2}, s{S_T2}, 16',
              f'v_add_u32 v7, s{S_T2}, v0', f's_mul_i32 s{S_T2}, s{S_T2}, 20', f's_add_u32 s{S_T2}, s{S_T2}, 20',
              f's_sub_u32 s{S_T2}, s{S_T2}, s{S_T0}', f's_min_u32 s{S_T2}, s{S_T2}, 3', f's_sub_u32 s{S_T0}, 3, s{S_T2}',
              f'v_mov_b32 v5, s{S_T0}', f'v_writelane_b32 v5, s{S_T2}, 0',
              f's_cmp_eq_u32 s{S_T0}, 0', f's_cselect_b32 s{S_T0}, 1, 3',
              'v_lshlrev_b32 v3, 4, v0', 's_mov_b32 exec_hi, 0xffff', 's_waitcnt vmcnt(0) lgkmcnt(0)', 's_barrier'] + self.probe('cend2') + ['ds_read_b32 v64, v2']
        L += (self.stamp(16) if o.diag else [])
        L += ['v_min_u32 v64, -2, v64'] if o.sent else []
        L += [f'buffer_store_dword v64, v6, {srd(SRD_WS)}, s{S_T1} offen sc1', f's_mov_b32 exec_lo, s{S_T0}', 's_mov_b32 exec_hi, 0', 's_branch L_pub']
        fin_ = self.seq(L)
        blk = self.P.static[mark0:]
        del self.P.static[mark0:]
        at = self.P.static.index(self.pub[-1]) + 1
        self.P.static[at:at] = blk + self.ldblk
        L = ['L_cslow:']
        for (ctl, rm) in (('row_shr:1', '0xf'), ('row_shr:2', '0xf'), ('row_shr:4', '0xf'), ('row_shr:8', '0xf'),
                          ('row_bcast:15', '0xa'), ('row_bcast:31', '0xc')):
            L.append(f'v_max_f32_dpp v{vM}, v{vM}, v{vM} {ctl} row_mask:{rm} bank_mask:0xf')
        L += [f'v_readlane_b32 s{S_U0}, v{vM}, 63', f's_mov_b32 s{S_HI}, 0',
              f's_lshr_b32 s{S_U0}, s{S_U0}, 23', f's_min_u32 s{S_U0}, s{S_U0}, {127 + 55}',
              f's_lshr_b32 s{S_U1}, s{S_IV}, 23', f's_sub_u32 s{S_U1}, s{S_U1}, 47', f's_lshr_b32 s{S_U1}, s{S_U1}, 1', f's_min_u32 s{S_U1}, s{S_U1}, 59',
              f's_sub_u32 s{S_U1}, 131, s{S_U1}', f's_max_u32 s{S_U0}, s{S_U0}, s{S_U1}',
              f's_sub_u32 s{S_U1}, {127 + 4 + 127}, s{S_U0}',
              f's_lshl_b32 s{S_U2}, s{S_U1}, 1', f's_sub_u32 s{S_U2}, s{S_U2}, 127',
              f's_sub_u32 s{S_G}, 254, s{S_U2}', f's_lshl_b32 s{S_G}, s{S_G}, 23',
              f'v_mov_b32 v{P}, s{S_G}', f'v_mul_f32 v{P + 1}, s{S_CG}, v{P}', f'v_mul_f32 v{P}, s{S_IV}, v{P}',
              f'v_readfirstlane_b32 s{S_F1}, v{P + 1}', f'v_readfirstlane_b32 s{S_F2}, v{P}',
              f's_lshl_b32 s{S_U1}, s{S_U1}, 23', f's_lshl_b32 s{S_U2}, s{S_U2}, 23']
        TS = P
        for j in range(13):
            L += [f'v_mul_f32 v{TS}, s{S_U1}, v{XR + 2 * j}', f'v_mul_f32 v{TS + 1}, s{S_U1}, v{XR + 2 * j + 1}',
                  f'v_mul_f32 v{TS + 2}, s{S_U2}, v{XR + 2 * j}', f'v_mul_f32 v{TS + 3}, s{S_U2}, v{XR + 2 * j + 1}',
                  f'v_cvt_pk_f16_f32 v{TS + 20 + j}, v{TS}, v{TS + 1}', f'v_cvt_pk_bf16_f32 v{TS + 4 + j}, v{TS + 2}, v{TS + 3}',
                  f'ds_write_b32 v{vIw}, v{TS + 20 + j} offset:{j * IMGP}', f'ds_write_b32 v{vXa}, v{TS + 4 + j} offset:{XOFF(2 * j)}']
        L += [f'v_mov_b32 v{TS}, s{S_U2}', f'v_cvt_pk_bf16_f32 v{TS}, v{TS}, v{TS}',
              's_mov_b32 exec_hi, 0', f'ds_write_b32 v{vXa}, v{TS} offset:{XOFF(26)}', 's_mov_b32 exec_hi, -1',
              's_waitcnt lgkmcnt(0)', 's_branch L_cconv']
        slow = self.seq(L)
        sdown = self.seq(self.sdown)
        cF = self.seq(self.first)
        traces = []
        for w in range(8):
            grp = w >> 2
            c2 = c2a + (c2g1 + (c2b if w == 4 else []) + c2g1d if grp else c2g0) + c2c
            it = lambda sl, first: cA + (slow if sl else []) + cB0 + (cF if first else cVM) + cB
            traces.append(PRE(w) + c2 + it(0, 1) + it(0, 0) + it(0, 0)[:-ntail] + fin_ + self.pub)
            if w in (0, 4):
                traces.append(PRE(w, sdown) + c2 + it(1, 1) + it(1, 0)[:-ntail] + fin_ + self.pub)
        return traces

    def build(self):
        pro = self.prologue()
        d = self.dnn()
        cs = self.cin()
        self.seq(['L_end:', 's_endpgm'])
        traces = [pro + c for c in d + cs] + self.extra_traces
        for t in traces:
            resolve_waits(t)
        for _ in range(2):
            for t in traces:
                resolve_hazards(t)
        hdr = open(os.path.join(os.path.dirname(os.path.abspath(__file__)), 'header.txt')).read()
        txt = hdr + f'; @launch grid=(256,1,1) block=(512,1,1) lds={LDS_TOTAL}\n'
        txt += f'''.amdgcn_target "amdgcn-amd-amdhsa--gfx950"
{DOC}.text
.globl {KNAME}
.p2align 8
.type {KNAME},@function
{KNAME}:
'''
        body_ = self.P.emit()
        if self.opt.align:
            for lab in ('L_dnn_loop0:', 'L_dnn_loop1:', 'L_cin_loop:', 'L_epi:'):
                pad = '  s_nop 0\n' if self.opt.align > 100 else ''
                body_ = body_.replace(lab + '\n', f'.p2align {self.opt.align % 100}\n{pad}{lab}\n')
        if self.opt.cwalk:
            lines = body_.split('\n')
            i0, i1 = lines.index('L_w2:'), lines.index('L_cslow:')
            out, k, cnt = lines[:i0], 0, 0
            seg = lines[i0:i1]
            prot = 0
            for n_, l in enumerate(seg):
                out.append(l)
                t = l.strip()
                cnt += 1
                inmain = 'L_novm:' in seg[:n_ + 1]
                nxt = seg[n_ + 1].strip() if n_ + 1 < len(seg) else ''
                ok = t.endswith(':') or (cnt >= self.opt.cwalk and ('mfma' in t and nxt.startswith('v_pk') if inmain else t.startswith(('ds_', 'v_perm', 'v_cvt_pk'))))
                if ok and t not in ('L_cin_loop:', 'L_cconv:', 'L_scaled:'):
                    out += [f'L_wp{k}:', f'  s_cbranch_execz L_wp{k + 1}']
                    k += 1; cnt = 0
            j = lines.index('L_first:')
            rest = lines[i1:j + 1] + [f'L_wp{k}:', '  s_cbranch_execz L_wret'] + lines[j + 1:]
            body_ = '\n'.join(out + rest)
            print('walk pads', k + 1)
            self.npads = k + 1
            for q_ in range(4):
                body_ = body_.replace(f'L_WENTRY{q_}', f'L_wp{q_ * (k + 1) // 4}')
        if self.opt.fix:
            body_ = fixalign.fix(body_ + 'L_tables:\n', self.opt.fix)[:-len('L_tables:\n')]
        txt += body_
        tb = self.tables()
        assert len(tb) == 16 * 256
        txt += '.p2align 8\nL_tables:\n' + ''.join('.long ' + ', '.join(f'{x:#x}' for x in tb[i:i + 8]) + '\n' for i in range(0, len(tb), 8))
        txt += f'''.section .rodata,"a"
.p2align 6
.amdhsa_kernel {KNAME}
  .amdhsa_next_free_vgpr 256
  .amdhsa_next_free_sgpr 102
  .amdhsa_accum_offset 256
  .amdhsa_group_segment_fixed_size 0
  .amdhsa_kernarg_size 88
  .amdhsa_user_sgpr_count 2
  .amdhsa_user_sgpr_kernarg_segment_ptr 1
  .amdhsa_system_sgpr_workgroup_id_x 1
  .amdhsa_float_denorm_mode_32 {self.opt.denorm}
.end_amdhsa_kernel
'''
        return txt


def main():
    ap = argparse.ArgumentParser()
    ap.add_argument('-o', default='standalone__deep_cross_xdeepfm__recsys.s')
    ap.add_argument('--stamps', action='store_true')
    ap.add_argument('--nodma', action='store_true')
    ap.add_argument('--cpf', type=int, default=1)
    ap.add_argument('--coop', type=int, default=1)
    ap.add_argument('--coopw', type=int, default=2)
    ap.add_argument('--tbpos', type=int, default=0)
    ap.add_argument('--dbar3', type=int, default=1)
    ap.add_argument('--tlb', type=int, default=0)
    ap.add_argument('--tlb2', type=int, default=1)
    ap.add_argument('--itst', type=int, default=0)
    ap.add_argument('--diag', type=int, default=0)
    ap.add_argument('--dbg', default='')
    ap.add_argument('--lead3', type=int, default=1)
    ap.add_argument('--morder', type=int, default=0)
    ap.add_argument('--etlb', type=int, default=0)
    ap.add_argument('--lateb', type=int, default=0)
    ap.add_argument('--wfl', default='')
    ap.add_argument('--xfl', default='')
    ap.add_argument('--tag', type=int, default=0)
    ap.add_argument('--idxfirst', type=int, default=1)
    ap.add_argument('--bpos', type=int, default=2)
    ap.add_argument('--sigat', type=int, default=4)
    ap.add_argument('--epx', type=int, default=1)
    ap.add_argument('--denorm', type=int, default=3)
    ap.add_argument('--mprio', type=int, default=0)
    ap.add_argument('--swap', type=int, default=0)
    ap.add_argument('--bov', type=int, default=1)
    ap.add_argument('--rfirst', type=int, default=0)
    ap.add_argument('--g1x', type=int, default=0)
    ap.add_argument('--ldsred', type=int, default=0)
    ap.add_argument('--csnake', type=int, default=0)
    ap.add_argument('--cswap', type=int, default=0)
    ap.add_argument('--align', type=int, default=0)
    ap.add_argument('--c2', type=int, default=0)
    ap.add_argument('--d1', type=int, default=0)
    ap.add_argument('--cstr', type=int, default=3)
    ap.add_argument('--bearly', type=int, default=1)
    ap.add_argument('--w2late', type=int, default=1)
    ap.add_argument('--aov', type=int, default=5)
    ap.add_argument('--upos', type=int, default=1)
    ap.add_argument('--calt', type=int, default=1)
    ap.add_argument('--pfpos', type=int, default=1)
    ap.add_argument('--wlate', type=int, default=0)
    ap.add_argument('--dbar2', type=int, default=0)
    ap.add_argument('--dbar', type=int, default=0)
    ap.add_argument('--pfw', type=int, default=0)
    ap.add_argument('--pfx', type=int, default=0)
    ap.add_argument('--pfx0', type=int, default=4)
    ap.add_argument('--pfs', type=int, default=1)
    ap.add_argument('--dcoopx', type=int, default=1)
    ap.add_argument('--dcx0', type=int, default=0)
    ap.add_argument('--dcxpos', type=int, default=-1)
    ap.add_argument('--pfe0', type=int, default=2)
    ap.add_argument('--pfne', type=int, default=13)
    ap.add_argument('--prio47', type=int, default=0)
    ap.add_argument('--lookahead', type=int, default=5)
    ap.add_argument('--nz', type=int, default=6)
    ap.add_argument('--nwf', type=int, default=8)
    ap.add_argument('--hiat', type=int, default=4)
    ap.add_argument('--wmerge', type=int, default=0)
    ap.add_argument('--gapv', type=int, default=6)
    ap.add_argument('--slow', type=int, default=0)
    ap.add_argument('--ptl', type=int, default=0)
    ap.add_argument('--ct2', default='')
    ap.add_argument('--ewat', type=int, default=0)
    ap.add_argument('--gprio', type=int, default=1)
    ap.add_argument('--g1t', type=int, default=1)
    ap.add_argument('--tf0', type=int, default=6)
    ap.add_argument('--twoff', type=int, default=0)
    ap.add_argument('--ew', type=int, default=4)
    ap.add_argument('--ew0', type=int, default=2)
    ap.add_argument('--cyc', default='')
    ap.add_argument('--rshare', type=int, default=1)
    ap.add_argument('--dwalk', type=int, default=0)
    ap.add_argument('--band', type=int, default=0)
    ap.add_argument('--absol', type=int, default=0)
    ap.add_argument('--rev', type=int, default=1)
    ap.add_argument('--xg1', type=int, default=0)
    ap.add_argument('--bou', type=int, default=1)
    ap.add_argument('--sjw', type=int, default=7)
    ap.add_argument('--cwalk', type=int, default=0)
    ap.add_argument('--few', default='')
    ap.add_argument('--econv', type=int, default=0)
    ap.add_argument('--nsh', type=int, default=16)
    ap.add_argument('--sh0', type=int, default=5)
    ap.add_argument('--dirt', type=int, default=0)
    ap.add_argument('--mrg', type=int, default=0)
    ap.add_argument('--g1p', type=int, default=0)
    ap.add_argument('--sa', type=int, default=4)
    ap.add_argument('--sbg', type=int, default=16)
    ap.add_argument('--bwat', type=int, default=0)
    ap.add_argument('--x2n', type=int, default=8)
    ap.add_argument('--sent', type=int, default=1)
    ap.add_argument('--spec', type=int, default=0)
    ap.add_argument('--probe', default='')
    ap.add_argument('--skew', type=int, default=0)
    ap.add_argument('--fix', type=int, default=64)
    ap.add_argument('--walk', type=int, default=0)
    ap.add_argument('--eal', type=int, default=3)
    ap.add_argument('--eoff', type=int, default=0)
    ap.add_argument('--ct', default='024')
    ap.add_argument('--rot', type=int, default=13)
    ap.add_argument('--i0', type=int, default=1)
    ap.add_argument('--i1', type=int, default=10)
    ap.add_argument('--burn', type=int, default=0)
    ap.add_argument('--lord', type=int, default=1)
    ap.add_argument('--lprio', type=int, default=0)
    ap.add_argument('--rsp', type=int, default=0)
    ap.add_argument('--tch', type=int, default=1)
    ap.add_argument('--tf', type=int, default=4)
    ap.add_argument('--toff', type=int, default=1)
    ap.add_argument('--tw0', type=int, default=8)
    ap.add_argument('--xat', type=int, default=0)
    ap.add_argument('--pf1', type=int, default=1)
    ap.add_argument('--lpf', type=int, default=20)
    ap.add_argument('--lpfit', type=int, default=6)
    ap.add_argument('--x1m', type=int, default=10)
    ap.add_argument('--bgap', type=int, default=6)
    ap.add_argument('--cprio', type=int, default=1)
    ap.add_argument('--x1n', type=int, default=5)
    ap.add_argument('--w0', type=int, default=2)
    ap.add_argument('--dbar1', type=int, default=1)
    ap.add_argument('--aon', type=int, default=2)
    ap.add_argument('--cbar', type=int, default=0)
    ap.add_argument('--vmpos', type=int, default=2)
    ap.add_argument('--il2', type=int, default=0)
    ap.add_argument('--p1', type=int, default=0)
    ap.add_argument('--pm', type=int, default=2)
    ap.add_argument('--cbov', type=int, default=3)
    ap.add_argument('--p0', type=int, default=0)
    ap.add_argument('--max2', type=int, default=2)
    ap.add_argument('--eager', type=int, default=0)
    ap.add_argument('--cst', type=int, default=0)
    ap.add_argument('--x0', type=int, default=60)
    ap.add_argument('--xlat', type=int, default=18)
    ap.add_argument('--xper', type=int, default=3)
    ap.add_argument('--xc0', type=int, default=0)
    ap.add_argument('--n3', type=int, default=1)
    ap.add_argument('--xi0', type=int, default=1)
    ap.add_argument('--pfsat', type=int, default=0)
    ap.add_argument('--g1prio', type=int, default=0)
    ap.add_argument('--xearly', type=int, default=1)
    ap.add_argument('--cpfd', type=int, default=4)
    ap.add_argument('--cla', type=int, default=1)
    ap.add_argument('--war', type=int, default=1)
    opt = ap.parse_args()
    resolve_waits.dbg = 'dup' in opt.dbg
    g = Gen(opt)
    txt = g.build()
    open(opt.o, 'w').write(txt)
    print('wrote', opt.o, len(txt), 'bytes')


if __name__ == '__main__':
    main()
```

```python
import sys, os, struct, argparse
sys.path.insert(0, os.path.dirname(os.path.abspath(__file__)))
from asmlib import I, WaitTag, Touch, Prog, resolve_waits, resolve_hazards
import cin16, fixalign

KNAME = 'standalone__deep_cross_xdeepfm__recsys_kernel'
LDS_TOTAL = 163840

XSLOT = 320 * 128
WR = 3 * XSLOT + 8192
WSLOT = 32 * 256
L_BIAS = 3 * XSLOT
L_W2 = L_BIAS + 256
RB = L_W2 + 256
assert WR % 32768 == 0 and WR + 4 * WSLOT <= LDS_TOTAL
WSP = 16640
assert RB + 2560 <= LDS_TOTAL

W2P = 1536
SSZ = 677 * 64
FRS = 0
V3OFF = 0
A1 = 6144
FR = A1
FRL = FR + 33 * 1024
A3 = FRL + 2048
SG = A3
A2 = SG + SSZ
SQ = A2
V2S = SQ + SSZ
L_WCO = V2S + 832
L_FLG = L_WCO + 192
L_MX = L_FLG + 16
RC = L_FLG + 64
XB = V2S + 2496
XPP = 1056
XBSZ = 3 * XPP + 7 * 128
IMG = A3
IMGP = 160
IMGSZ = 33 * IMGP
XB2 = IMG + 8 * IMGSZ
PART = XB2 + 8 * XBSZ
XOFF = lambda f: (f & 3) * XPP + (f >> 2) * 128
assert RC + 512 <= V2S + 1664
assert XB + 8 * XBSZ <= LDS_TOTAL and XB % 16 == 0 and A2 % 64 == 0 and A3 % 64 == 0 and L_WCO % 16 == 0 and V2S % 64 == 0
assert PART + 8 * 1536 <= V2S + 832 and IMGSZ % 32 == 0 and XB2 % 16 == 0

S_WAVE = 3
S_IDX, S_TAB, S_CIN, S_WCO, S_W1, S_B1, S_W2, S_BO, S_OUT, S_DBG, S_WS = 4, 6, 8, 10, 12, 14, 16, 18, 20, 22, 24
S_MB, S_R = 26, 27
SRD_IDX, SRD_TAB, SRD_CIN, SRD_WCO, SRD_W, SRD_B1, SRD_W2, SRD_OUT, SRD_WS, SRD_DBG = 28, 32, 36, 40, 44, 48, 52, 56, 60, 64
S_T0, S_T1, S_T2, S_T3 = 68, 69, 70, 71
S_LOOP, S_IDXOFF, S_WSOFF, S_WMB, S_XM0, S_N0, S_C0, S_CW, S_BOUT, S_TW = 72, 73, 74, 75, 76, 77, 78, 79, 80, 81
S_EX = 82
S_GRP, S_RC = 84, 85
S_ST = 86
S_M26, S_MASK = 90, 92
S_SAMP, S_STG, S_STG9, S_TGT = 94, 95, 96, 97
S_M26B = 98
S_GW = 100
S_TAGT = 0
S_TAG = 1
S_PW = 101
S_PX = 77
S_PXE = 73

GELU_C0 = -2.0 * 0.7978845608028654 * 1.4426950408889634
GELU_C1 = GELU_C0 * 0.044715


def f32hex(x):
    return '0x%08x' % struct.unpack('<I', struct.pack('<f', x))[0]


def vr(a, n):
    return f'v[{a}:{a + n - 1}]' if n > 1 else f'v{a}'


def srd(a):
    return f's[{a}:{a + 3}]'


def flat(gs):
    res = []
    for c in gs:
        if isinstance(c, (tuple, list)):
            res += flat(c)
        else:
            res.append(c)
    return res


def interleave(a, b):
    out = []
    ia = ib = 0
    na, nb = len(a), len(b)
    while ia < na or ib < nb:
        if ib >= nb or (ia < na and ia * nb <= ib * na):
            out.append(a[ia]); ia += 1
        else:
            out.append(b[ib]); ib += 1
    return out


SLOTS = []
for j in range(0, 26, 2):
    for s in range(0, 14 if j <= 12 else 13):
        SLOTS.append((j, (j + s) % 26))
assert len(SLOTS) == 176
DUP_SLOT = SLOTS.index((12, 25))
assert all((d * 2521) >> 16 == d // 26 for d in range(800))
assert all((d * 10923) >> 16 == d // 6 for d in range(64))
assert all((d * 5042) >> 16 == d // 13 for d in range(170))
assert all((d * 3277) >> 16 == d // 20 for d in range(264))


DOC = '''; ---------------------------------------------------------------------------------------------
; Generated by tools/gen23.py (own generator; waits / hazard nops derived from instruction traces).
;
;       U[i,j,k] = sum_h W2[h,i,j] V3[h,k]
;   Both quadratic forms use the 351 distinct products x_j x_k (j<=k) with symmetrised weights, evaluated by
;   DNN branch: full bf16 GEMM + bias + tanh-GELU (x / (1 + exp(-2u))) + dot with w_dnn2.
;   their own producer) and counters in d_debug; the last arriver of a row block adds up and writes d_out.
;   L_tables holds constant per-lane LDS address tables (functions of the lane id only).
; ---------------------------------------------------------------------------------------------
'''


class Gen:
    def __init__(self, opt):
        self.opt = opt
        self.P = Prog()

    def seq(self, lines):
        return [self.P.add(l) for l in flat(lines)]

    def build_srd(self, dst, ptr, size):
        return [f's_mov_b32 s{dst}, s{ptr}', f's_and_b32 s{dst + 1}, s{ptr + 1}, 0xffff',
                f's_mov_b32 s{dst + 2}, {size}', f's_mov_b32 s{dst + 3}, 0x20000']

    def stamp(self, slot):
        if not self.opt.stamps or (self.opt.few and slot not in [int(x) for x in self.opt.few.split(',')]):
            return []
        return [f's_memtime s[{S_ST}:{S_ST + 1}]', f's_memrealtime s[{S_ST + 2}:{S_ST + 3}]', 's_waitcnt lgkmcnt(0)',
                f'v_writelane_b32 v252, s{S_ST}, {slot}', f'v_writelane_b32 v253, s{S_ST + 2}, {slot}']

    def probe(self, name, wave=4):
        if self.opt.cyc:
            a_, b_, _ = self.opt.cyc.split(',')
            return ['s_memtime s[86:87]', 's_waitcnt lgkmcnt(0)'] if name == a_ else ['s_memtime s[88:89]', 's_waitcnt lgkmcnt(0)'] if name == b_ else []
        if self.opt.probe != name:
            return []
        return ['s_memrealtime s[88:89]', 's_waitcnt lgkmcnt(0)']

    def stamp_flush(self):
        if not self.opt.stamps:
            return []
        L = self.build_srd(SRD_WS, S_WS, 0x10000000)
        L += [f's_lshl_b32 s{S_C0}, s2, 3', f's_add_u32 s{S_C0}, s{S_C0}, s{S_WAVE}',
              f's_lshl_b32 s{S_C0}, s{S_C0}, 8', f's_add_u32 s{S_C0}, s{S_C0}, 0x100000',
              'v_lshlrev_b32 v254, 3, v0', 's_mov_b32 exec_hi, 0',
              f'buffer_store_dwordx2 v[252:253], v254, {srd(SRD_WS)}, s{S_C0} offen', 's_mov_b32 exec_hi, -1']
        return L

    def stamp0(self):
        if not self.opt.stamps:
            return []
        return ['v_mov_b32 v252, 0xcdcdcdcd', 'v_mov_b32 v253, 0xcdcdcdcd',
                f'v_writelane_b32 v252, s{S_ST}, 0', f'v_writelane_b32 v253, s{S_ST + 2}, 0'] + self.stamp(15)

    def tlb2(self, t):
        L = self.build_srd(SRD_WS, S_WS, 0x10000000) + self.build_srd(SRD_OUT, S_OUT, 8192) + self.build_srd(SRD_DBG, S_DBG, 256)
        L += [f's_load_dword s{S_BOUT}, s[{S_BO}:{S_BO + 1}], 0', f'v_mov_b32 v{t}, 0', 's_mov_b64 exec, 1',
              f's_mov_b32 s{S_TW}, 0x80000',
              f'buffer_load_dword v{t + 1}, v{t}, {srd(SRD_WS)}, s{S_TW} offen',
              f'buffer_load_dword v{t + 2}, v{t}, {srd(SRD_OUT)}, 0 offen',
              's_mov_b64 exec, -1']
        return L

    def tlb1(self, vtmp, vdst):
        if not self.opt.etlb:
            return self.build_srd(SRD_TAB, S_TAB, 100000 * 128)
        return self.build_srd(SRD_TAB, S_TAB, 100000 * 128) + [
            f'v_mov_b32 v{vtmp}, s{S_BOUT}', f'buffer_load_dword v{vdst}, v{vtmp}, {srd(SRD_TAB)}, 0 offen']

    def gettag(self, lab, t, VT):
        return [f's_cmp_lg_u32 s{S_WAVE}, 0', f's_cbranch_scc1 {lab}',
                f's_memrealtime s[{S_TAGT}:{S_TAGT + 1}]'] + self.build_srd(SRD_DBG, S_DBG, 256) + [
                f's_lshl_b32 s{S_TW}, s{S_MB}, 2', f'v_mov_b32 v{t}, s{S_TW}', 's_waitcnt lgkmcnt(0)',
                f's_or_b32 s{S_TAG}, s{S_TAGT}, 1', f'v_mov_b32 v{VT}, s{S_TAG}', f'v_mov_b32 v{VT + 1}, 0',
                's_mov_b64 exec, 1',
                f'buffer_atomic_cmpswap v[{VT}:{VT + 1}], v{t}, {srd(SRD_DBG)}, 0 offen offset:128 sc0',
                's_mov_b64 exec, -1', f'{lab}:']

    def prologue(self):
        L = []
        if self.opt.stamps:
            L += [f's_memtime s[{S_ST}:{S_ST + 1}]', f's_memrealtime s[{S_ST + 2}:{S_ST + 3}]']
        L += ['s_cmp_ge_u32 s2, 256', 's_cbranch_scc1 L_end',
              's_load_dwordx16 s[4:19], s[0:1], 0',
              's_load_dwordx4 s[20:23], s[0:1], 64',
              's_load_dwordx2 s[24:25], s[0:1], 80',
              'v_lshrrev_b32 v1, 6, v0']
        if self.opt.cpf:
            L += [f's_getpc_b64 s[{S_MASK}:{S_MASK + 1}]', 'L_pc:',
                  f's_and_b32 s{S_T0}, s2, 0xf8', f'v_add_u32 v2, s{S_T0}, v1', 'v_and_b32 v3, 32, v0', 'v_lshl_add_u32 v2, v3, 3, v2', 'v_lshlrev_b32 v2, 7, v2',
                  f'v_min_u32 v2, L_end-L_pc, v2',
                  f'v_mov_b32 v3, s{S_MASK + 1}',
                  f'v_add_co_u32 v2, vcc, s{S_MASK}, v2', 'v_addc_co_u32 v3, vcc, 0, v3, vcc',
                  'global_load_dword v251, v[2:3], off']
        if self.opt.skew:
            L += ['s_memtime s[86:87]' if self.opt.cyc else 's_memrealtime s[86:87]', 's_mov_b32 s88, 0']
        L += ['v_and_b32 v0, 63, v0',
              f'v_readfirstlane_b32 s{S_WAVE}, v1',
              f's_and_b32 s{S_T0}, s2, 7', f's_lshr_b32 s{S_T1}, s2, 3', f's_xor_b32 s{S_T1}, s{S_T1}, {31 * self.opt.rev}',
              f's_and_b32 s{S_BOUT}, s2, 0xf8', f's_add_u32 s{S_BOUT}, s{S_BOUT}, s{S_WAVE}', f's_lshl_b32 s{S_BOUT}, s{S_BOUT}, {self.opt.etlb}',
              f's_min_u32 s{S_T2}, s{S_T0}, 1', f's_add_u32 s{S_T3}, s{S_T1}, s{S_T2}',
              f's_cmp_ge_u32 s{S_T3}, 22', 's_cbranch_scc1 L_cin',
              f's_mul_i32 s{S_T0}, s{S_T0}, 21', f's_add_u32 s{S_T0}, s{S_T0}, s{S_T3}',
              ]
        if self.opt.band == 0:
            L += [f's_mul_i32 s{S_MB}, s{S_T0}, 5042', f's_lshr_b32 s{S_MB}, s{S_MB}, 16',
                  f's_mul_i32 s{S_T1}, s{S_MB}, 13', f's_sub_u32 s{S_R}, s{S_T0}, s{S_T1}']
        else:
            assert all((d * 9363) >> 16 == d // 7 for d in range(91)) and all((d * 10923) >> 16 == d // 6 for d in range(78))
            L += [f's_sub_u32 s{S_T1}, 168, s{S_T0}', f's_cmp_lt_u32 s{S_T0}, 91', f's_cselect_b32 s{S_T0}, s{S_T0}, s{S_T1}',
                  f's_cselect_b32 s{S_T1}, 0, 1560', f's_cselect_b32 s{S_T2}, 7, 6', f's_cselect_b32 s{S_R}, 0, 7', f's_add_u32 s{S_T1}, s{S_T1}, 9363',
                  f's_mul_i32 s{S_MB}, s{S_T0}, s{S_T1}', f's_lshr_b32 s{S_MB}, s{S_MB}, 16', f's_mul_i32 s{S_T1}, s{S_MB}, s{S_T2}',
                  f's_add_u32 s{S_R}, s{S_R}, s{S_T0}', f's_sub_u32 s{S_R}, s{S_R}, s{S_T1}']
        return self.seq(L)

    def dnn(self):
        o = self.opt
        vW = [1, 2, 3, 4]
        vX = [[5, 6], [7, 8]]
        vPa, vPc = 9, 10
        WF, XA, ACC = 16, 48, 88
        W2F = WF
        KC0, KC1, KONE = 12, 14, 248
        SUMP, GT = 32, 52
        vIdxOff, vCh, vWD, vBL = 1, [2, 3], [4, 5], 11
        ST, VO = 16, 56
        T = 100
        g, i4, q = T + 16, T + 17, T + 18
        PI = T + 8

        def acc(tn, tm):
            return ACC + (tm * 4 + tn) * 4

        def small(srd_, dst):
            return [f's_mov_b32 m0, {dst}', 's_mov_b64 exec, 0xffff',
                    I(f'buffer_load_dwordx4 v{vBL}, {srd(srd_)}, s{S_N0} offen lds', tag='BIAS'), 's_mov_b64 exec, -1']
        L = [f's_lshl_b32 s{S_N0}, s{S_R}, 8', f's_mul_i32 s{S_T3}, s{S_MB}, 320',
             f'v_lshrrev_b32 v{g}, 4, v0', f'v_lshlrev_b32 v{vBL}, 4, v0', f's_and_b32 s{S_CW}, s{S_WAVE}, 3',
             f's_cmp_lt_u32 s{S_WAVE}, 4', 's_cbranch_scc1 L_cmp']
        c0 = self.seq(L)
        self.ldat = len(self.P.static)
        PI = T

        RG, CG = S_T0, S_T1
        L = ['L_cmp:', f's_mul_i32 s{S_T2}, s{S_WAVE}, 13', f'v_min_u32 v{q}, 12, v0', f'v_add_u32 v{q}, s{S_T2}, v{q}',
             f'v_lshrrev_b32 v{i4}, 1, v{q}', f'v_mul_u32_u24 v{i4}, 96, v{i4}', f'v_lshl_add_u32 v{q}, v{q}, 2, v{i4}',
             f's_mul_i32 s{S_C0}, s{S_R}, 25', f's_min_u32 s{S_C0}, s{S_C0}, 294',
             f's_add_u32 s{S_C0}, s{S_C0}, s{S_T3}', f's_mul_i32 s{S_C0}, s{S_C0}, 104', 's_waitcnt lgkmcnt(0)']
        ct = [int(x) for x in o.ct + o.ct2]
        L += self.build_srd(SRD_IDX, S_IDX, 4096 * 104)
        if ct:
            L += [f'buffer_load_dwordx4 {vr(PI, 4)}, v{q}, {srd(SRD_IDX)}, s{S_C0} offen']
        if ct and max(ct) > 3:
            L += [f'buffer_load_dwordx4 {vr(PI + 4, 4)}, v{q}, {srd(SRD_IDX)}, s{S_C0} offen offset:16']
        L += self.tlb1(T + 14, T + 15)
        if o.ptl:
            L += [f'v_lshlrev_b32 v{T + 14}, {o.ptl}, v0', f's_lshl_b32 s{S_T2}, s{S_WAVE}, {o.ptl - 2}', f's_mov_b64 exec, {(1 << min(64, (12800000 >> o.ptl) + 1)) - 1}',
                  f'buffer_load_dword v{T + 15}, v{T + 14}, {srd(SRD_TAB)}, s{S_T2} offen', 's_mov_b64 exec, -1']
        touch = [x for k in ct for x in (f'v_lshlrev_b32 v{PI + k}, 7, v{PI + k}', f'buffer_load_dword v{acc(0, 7) + k}, v{PI + k}, {srd(SRD_TAB)}, 0 offen')]
        touch, touch2 = touch[:2 * len(o.ct)], touch[2 * len(o.ct):]
        L += self.build_srd(SRD_B1, S_B1, 3328) + small(SRD_B1, L_BIAS)
        if o.ew:
            L += self.build_srd(SRD_W, S_W1, 1664 * 3328) + [f's_lshl_b32 s{S_T2}, s{S_MB}, 2', f's_add_u32 s{S_T2}, s{S_T2}, s{S_WAVE}', f's_add_u32 s{S_T2}, s{S_T2}, {o.ew0 * 32}',
                  f's_mul_i32 s{S_T2}, s{S_T2}, 3328', f's_add_u32 s{S_T2}, s{S_T2}, s{S_N0}', f's_mov_b32 s{S_TW}, {52 * 3328}',
                  f'v_lshrrev_b32 v{q}, 1, v0', f'v_mul_lo_u32 v{q}, s{S_TW}, v{q}', f'v_and_b32 v{i4}, 1, v0', f'v_lshl_add_u32 v{q}, v{i4}, 7, v{q}',
                  f'v_add_u32 v{T + 12}, s{S_T2}, v{q}']
            ewl = [f's_mov_b64 exec, {(1 << (2 * o.ew)) - 1}', f'buffer_load_dword v251, v{T + 12}, {srd(SRD_W)}, 0 offen', 's_mov_b64 exec, -1']
            if o.ewat == 0:
                L += ewl
            elif o.ewat == 1:
                touch = touch + ewl
            else:
                touch2 = touch2 + ewl
        L += (['s_barrier'] if o.dbar0 else []) + self.stamp0()
        L += [f's_and_b32 s{RG}, s{S_WAVE}, 1', f's_lshr_b32 s{CG}, s{S_WAVE}, 1',
              f'v_bfe_u32 v{i4}, v0, 2, 2', f'v_lshl_add_u32 v{q}, v{g}, 3, v{i4}', f'v_lshlrev_b32 v{q}, 8, v{q}',
              f'v_bfe_u32 v{i4}, v0, 2, 3', f's_lshl_b32 s{S_T2}, s{CG}, 2', f'v_xor_b32 v{i4}, s{S_T2}, v{i4}',
              f'v_lshl_add_u32 v{q}, v{i4}, 5, v{q}', f'v_and_b32 v{i4}, 3, v0', f'v_lshl_add_u32 v{q}, v{i4}, 3, v{q}',
              f'v_add_u32 v{vW[0]}, {WR}, v{q}']
        L += [f'v_xor_b32 v{vW[tn]}, {32 * tn}, v{vW[0]}' for tn in range(1, 4)]
        L += [f's_lshl_b32 s{S_T2}, s{CG}, 7', f's_add_u32 s{S_T2}, s{S_T2}, {L_BIAS}', f'v_lshlrev_b32 v{q}, 3, v{g}', f'v_add_u32 v{vPa}, s{S_T2}, v{q}',
              f'v_and_b32 v{q}, 15, v0', f'v_lshlrev_b32 v{q}, 7, v{q}',
              f'v_bfe_u32 v{i4}, v0, 1, 3', f'v_xor_b32 v{i4}, v{i4}, v{g}', f'v_lshl_add_u32 v{q}, v{i4}, 4, v{q}',
              f's_mul_i32 s{S_T2}, s{RG}, 20480', f'v_add_u32 v{vX[0][0]}, s{S_T2}, v{q}', f'v_xor_b32 v{vX[1][0]}, 64, v{vX[0][0]}',
              f'v_add_u32 v{vX[0][1]}, {2 * XSLOT}, v{vX[0][0]}', f'v_add_u32 v{vX[1][1]}, {2 * XSLOT}, v{vX[1][0]}',
              f's_mul_i32 s{S_T2}, s{S_WAVE}, 640', f's_add_u32 s{S_T2}, s{S_T2}, {RB}',
              f'v_and_b32 v{q}, 15, v0', f'v_lshlrev_b32 v{q}, 2, v{q}', f'v_add_u32 v{q}, s{S_T2}, v{q}',
              f'v_lshrrev_b32 v{i4}, 5, v0', f'v_lshl_add_u32 v{q}, v{i4}, 6, v{q}', f'v_bfe_u32 v{i4}, v0, 4, 1', f'v_lshl_add_u32 v{vPc}, v{i4}, 7, v{q}',
              f's_mov_b32 s{S_LOOP}, 0',
              f'v_mov_b32 v{KC0}, {f32hex(GELU_C0)}', f'v_mov_b32 v{KC0 + 1}, {f32hex(GELU_C0)}',
              f'v_mov_b32 v{KC1}, {f32hex(GELU_C1)}', f'v_mov_b32 v{KC1 + 1}, {f32hex(GELU_C1)}']

        def pkreads(off, dst):
            return [f'ds_read_b64 {vr(dst + 4 * tn + 2, 2)}, v{vPa} offset:{off + 32 * tn}' for tn in range(4)]

        def unp(dst):
            c = []
            for tn in range(4):
                r = dst + 4 * tn
                c += [f'v_lshlrev_b32 v{r}, 16, v{r + 2}', f'v_and_b32 v{r + 1}, 0xffff0000, v{r + 2}',
                      f'v_lshlrev_b32 v{r + 2}, 16, v{r + 3}', f'v_and_b32 v{r + 3}, 0xffff0000, v{r + 3}']
            return c
        L += touch + self.stamp(6)
        BI = [WaitTag(vm_tags=['BIAS'])] + pkreads(0, acc(0, 9)) + unp(acc(0, 9)) + [f'v_mov_b64 {vr(acc(0, 8) + r, 2)}, {vr(acc(0, 9) + r, 2)}' for r in range(0, 16, 2)]

        def rX(p, k):
            xs = p % 3
            return f'ds_read_b128 {vr(XA + 4 * (k % 10), 4)}, v{vX[k % 2][xs // 2]} offset:{(xs % 2) * XSLOT + (k // 2) * 2048}'

        def rW(tn):
            return [f'ds_read_b64_tr_b16 {vr(WF + 16 * par + 4 * tn + 2 * rd, 2)}, v{vW[tn]} offset:{par * WSLOT + rd * 1024}' for par in range(2) for rd in range(2)]
        tog = lambda tn: f'v_xor_b32 v{vW[tn]}, {2 * WSLOT}, v{vW[tn]}'

        def dec(gi):
            G, tn, a_, par = gi // 16, (gi // 4) % 4, (gi // 2) % 2, gi % 2
            if o.bou:
                par ^= a_ ^ (G == 4)
                a_ ^= tn & 1
            return G, tn, a_, par
        lastx = {4 * dec(gi)[0] + 2 * dec(gi)[2] + dec(gi)[3]: gi for gi in range(80)}

        def mf(gi, first=False):
            G, tn, a_, par = dec(gi)
            d = acc(tn, 2 * G + a_)
            if first and gi % 2 == 0 and G < 4:
                return f'v_mfma_f32_16x16x32_bf16 {vr(d, 4)}, {vr(WF + 16 * par + 4 * tn, 4)}, {vr(XA + 4 * ((4 * G + 2 * a_ + par) % 10), 4)}, {vr(acc(tn, 9), 4)}'
            return f'v_mfma_f32_16x16x32_bf16 {vr(d, 4)}, {vr(WF + 16 * par + 4 * tn, 4)}, {vr(XA + 4 * ((4 * G + 2 * a_ + par) % 10), 4)}, {vr(d, 4)}'
        SH = [11, 248, 249, 250]
        nsh = o.nsh

        def shadow():
            c = []
            for b0 in range(0, nsh, 4):
                E = [(ACC + e, SH[e - b0]) for e in range(b0, min(b0 + 4, nsh))]
                for op in ('v_mul_f32 T, X, X', f'v_fma_f32 T, T, v{KC1}, v{KC0}', 'v_mul_f32 T, T, X', 'v_exp_f32 T, T', 'v_add_f32 T, 1.0, T', 'v_rcp_f32 T, T', 'v_mul_f32 X, X, T'):
                    c += [(op.replace('T', f'v{t}').replace('X', f'v{x}'), 8 if ('exp' in op or 'rcp' in op) else 4) for x, t in E]
            return c

        def cpair(p, kind, loopend=False):
            S = []
            ev = {}
            if kind == 'first':
                g_ = o.sbg + 1
                for k in range(2 * o.sa, 10):
                    ev[g_] = rX(p, k); g_ += 1
            else:
                for i_, x in enumerate(rW(3)[2:]):
                    ev[i_] = x
                for i_, k in enumerate(range(6, 10)):
                    ev[2 + i_] = rX(p, k)
            for k in range(10):
                g_ = lastx[k]
                while g_ in ev or (kind == 'first' and g_ <= o.sbg):
                    g_ += 1
                ev[g_] = rX(p, k + 10)
            BG = 48 + o.bgap if o.bou else 46 + o.bgap
            if kind != 'last':
                ev[BG], ev[BG + 1] = rX(p + 1, 0), rX(p + 1, 1)
                for k in range(2, 6):
                    ev[lastx[10 + k]] = rX(p + 1, k)
                for tn in range(4):
                    for i_, x in enumerate(rW(tn)):
                        if 66 + 4 * tn + i_ < 80:
                            ev[66 + 4 * tn + i_] = x
            sh_ = shadow() if kind == 'last' else []
            for gi in range(80):
                S.append(mf(gi, kind == 'first'))
                t = 4
                if o.dwalk and kind != 'last' and gi in (24, 40, 64, 7):
                    S += [f'L_dw{self.ndw}:', f's_cbranch_execz L_dw{self.ndw + 1}']
                    self.ndw += 1
                if kind == 'first' and gi == o.sbg:
                    S += (self.stamp(20) if o.itst == 2 else []) + ['s_barrier'] + (self.stamp(21) if o.itst == 2 else [])
                if kind != 'last' and gi == BG - 1:
                    st_ = lambda k: ([f's_cmp_lg_u32 s{S_LOOP}, 0', f's_cbranch_scc1 L_ns{k}'] + self.stamp(k) + [f'L_ns{k}:']) if (o.itst == 2 and p < 3) else []
                    S += ['s_waitcnt lgkmcnt(0)'] + st_(22 + 2 * p) + ['s_barrier'] + st_(23 + 2 * p)
                if gi in ev:
                    S.append(ev[gi]); t += 8
                if kind != 'last' and 8 <= gi < 12:
                    S.append(tog(gi - 8))
                if gi % 2 == 0 and gi + 2 < 80:
                    n_ = gi + 2
                    G, tn, a_ = n_ // 16, (n_ // 4) % 4, (n_ // 2) % 2
                    if tn == 0:
                        S.append(Touch(vr(XA + 4 * ((4 * G + 2 * a_) % 10), 8)))
                    if G == 0 and a_ == 0:
                        S.append(Touch(vr(WF + 16 + 4 * tn, 4)))
                if gi == 78 and kind != 'last':
                    S.append(Touch(vr(WF + 16, 4)))
                if loopend and gi == 48:
                    S += [f's_add_u32 s{S_LOOP}, s{S_LOOP}, 1', f's_cmp_lt_u32 s{S_LOOP}, 8']
                t = max(t, 8)
                while sh_ and gi >= o.sh0 and t + sh_[0][1] <= 16:
                    x, c_ = sh_.pop(0)
                    S.append(x); t += c_
            S += [x for x, _ in sh_]
            if kind == 'last':
                print('shadow left', len(sh_))
            return S
        self.ndw = 0
        if o.dwalk:
            L += ['s_mov_b64 exec, 0'] + [x for q_ in range(3) for x in (f's_cmp_eq_u32 s{S_WAVE}, {q_}', f's_cbranch_scc1 L_dw{4 * q_}')] + ['s_branch L_dw12', 'L_dw16:', 's_mov_b64 exec, -1']
        L += self.stamp(1) + ['s_barrier'] + [x for tn in range(4) for x in rW(tn)] + BI + touch2 + ['s_waitcnt lgkmcnt(0)', f's_setprio {o.cprio}', 's_barrier'] + self.stamp(2)
        L += [rX(0, k) for k in range(2 * o.sa)] + cpair(0, 'first')
        cpre = self.seq(L)
        body = self.seq(['L_dnn_loop0:'])
        for p in range(1, 4):
            S = cpair(p, 'mid', p == 3)
            if p == 3:
                if o.stamps and o.itst == 1:
                    i_ = S.index('s_barrier')
                    S = S[:i_] + [f's_memtime s[{S_ST}:{S_ST + 1}]', f's_memrealtime s[{S_ST + 2}:{S_ST + 3}]', f's_or_b32 m0, s{S_LOOP}, 16', 's_waitcnt lgkmcnt(0)',
                                  f'v_writelane_b32 v252, s{S_ST}, m0', f'v_writelane_b32 v253, s{S_ST + 2}, m0', f's_cmp_lt_u32 s{S_LOOP}, 8'] + S[i_:]
                S += ['s_cbranch_scc1 L_dnn_loop0']
            body += self.seq(S)
        tc = c0 + cpre + body * 2 + self.seq(['L_tail:'])
        tc += self.seq(cpair(25, 'last') + pkreads(256, W2F) + [f'v_mov_b32 v{KONE}, 1.0', f'v_mov_b32 v{KONE + 1}, 1.0'])
        if o.burn:
            bl = [f's_movk_i32 s{S_LOOP}, {o.burn}', 'L_burn:'] + [f'v_mfma_f32_16x16x32_bf16 {vr(XA + 32 + 4 * (k % 2), 4)}, {vr(WF + 16 + 4 * (k % 4), 4)}, {vr(XA + 4 * (k // 4), 4)}, 0' for k in range(32)]
            tc += self.seq(bl + [f's_sub_u32 s{S_LOOP}, s{S_LOOP}, 1', f's_cmp_lg_u32 s{S_LOOP}, 0', 's_cbranch_scc1 L_burn'])
        tc += self.seq(['L_epi:'] + self.stamp(3))

        p2 = lambda r: vr(r, 2)
        seen = set()

        def gelu(groups):
            L = []
            for k, vals in enumerate(groups):
                tb = GT + (k % 2) * 16
                V_ = [(x, w, s_, tb + 4 * i_, tb + 4 * i_ + 2) for i_, (x, w, s_) in enumerate(vals)]
                for (x, w, s_, t, u) in V_:
                    L.append(f'v_pk_mul_f32 {p2(t)}, {p2(x)}, {p2(x)}')
                for (x, w, s_, t, u) in V_:
                    L.append(f'v_pk_fma_f32 {p2(t)}, {p2(t)}, {p2(KC1)}, {p2(KC0)}')
                for (x, w, s_, t, u) in V_:
                    L.append(f'v_pk_mul_f32 {p2(t)}, {p2(t)}, {p2(x)}')
                for (x, w, s_, t, u) in V_:
                    L += [f'v_exp_f32 v{t}, v{t}', f'v_exp_f32 v{t + 1}, v{t + 1}']
                for (x, w, s_, t, u) in V_:
                    L.append(f'v_pk_mul_f32 {p2(u)}, {p2(x)}, {p2(w)}')
                for (x, w, s_, t, u) in V_:
                    L.append(f'v_pk_add_f32 {p2(t)}, {p2(t)}, {p2(KONE)}')
                for (x, w, s_, t, u) in V_:
                    L += [f'v_rcp_f32 v{t}, v{t}', f'v_rcp_f32 v{t + 1}, v{t + 1}']
                for (x, w, s_, t, u) in V_:
                    if s_ in seen:
                        L.append(f'v_pk_fma_f32 {p2(s_)}, {p2(t)}, {p2(u)}, {p2(s_)}')
                    else:
                        L.append(f'v_pk_mul_f32 {p2(s_)}, {p2(t)}, {p2(u)}')
                        seen.add(s_)
            return L
        el = lambda tn, tm, d: (acc(tn, tm) + 2 * d, W2F + 4 * tn + 2 * d, SUMP + 2 * tm)
        allel = [el(tn, 2 * tp + a_, d) for tp in range(5) for tn in range(4) for d in range(2) for a_ in range(2)]
        rest = [e for e in allel if e[0] >= ACC + nsh]
        if o.rshare:
            assert nsh % 8 == 0
            KS = 84
            quads = [[el(2 * h + t_, tm, d) for t_ in range(2) for d in range(2)] for tm in range(10) for h in range(2)]
            quads = [q_ for q_ in quads if q_[0][0] >= ACC + nsh]
            order = sorted(range(len(quads)), key=lambda i_: (i_ // 4, i_ % 2, i_))
            quads = [quads[i_] for i_ in order]
            L = [f'v_mov_b32 v{KS}, {f32hex(-24.0)}', f'v_mov_b32 v{KS + 1}, {f32hex(-24.0)}', f'v_mov_b32 v{KS + 2}, {f32hex(2.0 ** 24)}', f'v_mov_b32 v{KS + 3}, {f32hex(2.0 ** 24)}']
            for k in range(0, len(quads), 2):
                Qs = quads[k:k + 2]
                V_ = [(x, w, GT + 16 * j_ + 4 * i_, GT + 16 * j_ + 4 * i_ + 2) for j_, q_ in enumerate(Qs) for i_, (x, w, s_) in enumerate(q_)]
                L += [f'v_pk_mul_f32 {p2(t)}, {p2(x)}, {p2(x)}' for (x, w, t, u) in V_]
                L += [f'v_pk_fma_f32 {p2(t)}, {p2(t)}, {p2(KC1)}, {p2(KC0)}' for (x, w, t, u) in V_]
                L += [f'v_pk_fma_f32 {p2(t)}, {p2(t)}, {p2(x)}, {p2(KS)}' for (x, w, t, u) in V_]
                L += [f'v_exp_f32 v{t + e_}, v{t + e_} clamp' for (x, w, t, u) in V_ for e_ in range(2)]
                if k == 0:
                    L += unp(W2F)
                L += [f'v_pk_mul_f32 {p2(u)}, {p2(x)}, {p2(w)}' for (x, w, t, u) in V_]
                L += [f'v_pk_fma_f32 {p2(t)}, {p2(t)}, {p2(KS + 2)}, {p2(KONE)}' for (x, w, t, u) in V_]
                for prs in ([(0, 1), (2, 3)], [(0, 2)]):
                    M_ = [(V_[4 * j_ + a_], V_[4 * j_ + b_]) for j_ in range(len(Qs)) for a_, b_ in prs]
                    L += [f'v_pk_mul_f32 {p2(A_[3])}, {p2(A_[3])}, {p2(B_[2])}' for A_, B_ in M_]
                    L += [f'v_pk_fma_f32 {p2(A_[3])}, {p2(B_[3])}, {p2(A_[2])}, {p2(A_[3])}' for A_, B_ in M_]
                    L += [f'v_pk_mul_f32 {p2(A_[2])}, {p2(A_[2])}, {p2(B_[2])}' for A_, B_ in M_]
                L += [f'v_rcp_f32 v{V_[4 * j_][2] + e_}, v{V_[4 * j_][2] + e_}' for j_ in range(len(Qs)) for e_ in range(2)]
                for j_, q_ in enumerate(Qs):
                    s_, t, u = q_[0][2], V_[4 * j_][2], V_[4 * j_][3]
                    L.append(f'v_pk_fma_f32 {p2(s_)}, {p2(t)}, {p2(u)}, {p2(s_)}' if s_ in seen else f'v_pk_mul_f32 {p2(s_)}, {p2(t)}, {p2(u)}')
                    seen.add(s_)
        else:
            L = gelu([rest[i:i + 4] for i in range(0, len(rest), 4)])
            L = L[:20] + unp(W2F) + L[20:]
        for (x, w, s_) in allel:
            if x < ACC + nsh:
                L.append(f'v_pk_fma_f32 {p2(s_)}, {p2(x)}, {p2(w)}, {p2(s_)}' if s_ in seen else f'v_pk_mul_f32 {p2(s_)}, {p2(x)}, {p2(w)}')
                seen.add(s_)
        sm = lambda tm: SUMP + 2 * tm
        L += [f'v_add_f32 v{sm(tm)}, v{sm(tm)}, v{sm(tm) + 1}' for tm in range(10)]
        L += [f'v_permlane32_swap_b32 v{sm(tm)}, v{sm(tm + 1)}' for tm in range(0, 10, 2)]
        L += [f'v_add_f32 v{sm(tm)}, v{sm(tm)}, v{sm(tm + 1)}' for tm in (8, 0, 2, 4, 6)]
        L += [f'v_mov_b32 v{sm(9)}, v{sm(8)}', f'v_permlane16_swap_b32 v{sm(0)}, v{sm(2)}', f'v_permlane16_swap_b32 v{sm(4)}, v{sm(6)}',
              f'v_permlane16_swap_b32 v{sm(8)}, v{sm(9)}',
              f'v_add_f32 v{sm(0)}, v{sm(0)}, v{sm(2)}', f'v_add_f32 v{sm(4)}, v{sm(4)}, v{sm(6)}', f'v_add_f32 v{sm(8)}, v{sm(8)}, v{sm(9)}',
              f'ds_write_b32 v{vPc}, v{sm(0)}', f'ds_write_b32 v{vPc}, v{sm(4)} offset:256',
              's_mov_b32 exec_lo, 0xffff', 's_mov_b32 exec_hi, 0xffff', f'ds_write_b32 v{vPc}, v{sm(8)} offset:512', 's_mov_b64 exec, -1']
        L += ['s_waitcnt lgkmcnt(0)'] + self.stamp(4) + self.stamp_flush() + ['s_barrier', 's_endpgm']
        tc += self.seq(L)

        def wstage(slot):
            c = []
            for u in range(2):
                c += [f's_add_u32 m0, s{S_WMB}, {WR + slot * WSLOT + u * 1024}',
                      I(f'buffer_load_dwordx4 v{vWD[u]}, {srd(SRD_W)}, s{S_WSOFF} offen lds', tag='W')]
            return c + [f's_add_u32 s{S_WSOFF}, s{S_WSOFF}, {32 * 3328}']

        Q, TM, BP = 16, 56, [12, 13]
        TI, vWT = 70, 84
        SP = [36, 37, 38, 39, 40, 41, 42, 43, 48, 49]
        SI = [94, 95, 96, 97, 98, 99, 100, 101, 82, 83]

        def xaddr(f, pcs):
            c = []
            for odd in range(2):
                p_ = f + 26 * odd
                for pc in pcs:
                    c.append(f'v_add_u32_dpp v{TM + pc}, v{Q + 4 * pc + p_ % 4}, v{vCh[0]} row_newbcast:{p_ >> 2} row_mask:0xf bank_mask:{(3, 12)[odd]:#x}')
            return c

        def xld(pc, slot, tag='X'):
            return [f's_add_u32 m0, s{S_XM0}, {slot * XSLOT + pc * 2048}',
                    I(f'buffer_load_dwordx4 v{TM + pc}, {srd(SRD_TAB)}, 0 offen lds', tag=tag)]
        idxl = [f'buffer_load_dwordx4 {vr(Q + 4 * pc, 4)}, v{BP[0]}, {srd(SRD_IDX)}, s{SI[pc // 2]} offen offset:{(pc % 2) * 1664}' for pc in range(10)]
        LO, HI = range(5), range(5, 10)
        NR = (22 + o.tf - 1) // o.tf
        lw = S_CW
        self.mk0 = len(self.P.static)
        L = [f's_lshr_b32 s{S_T0}, s{lw}, 1', f's_mul_i32 s{S_T0}, s{S_T0}, 20', f's_and_b32 s{S_T1}, s{lw}, 1', f's_add_u32 s{S_T0}, s{S_T0}, s{S_T1}',
             f's_lshl_b32 s{S_XM0}, s{S_T0}, 10', f's_mul_i32 s{S_C0}, s{S_T3}, 104', f's_mul_i32 s{S_T0}, s{S_T0}, 832', f's_add_u32 s{SI[0]}, s{S_C0}, s{S_T0}',
             f'v_mul_u32_u24 v{q}, 48, v{g}', f'v_sub_u32 v{BP[0]}, v{vBL}, v{q}']
        L += [f's_add_u32 s{SI[k]}, s{SI[0]}, {k * 2 * 1664}' for k in range(1, 5)]
        L += [f's_and_b32 s{S_T2}, s{lw}, 1', f's_lshl_b32 s{S_T2}, s{S_T2}, 3',
              f'v_lshlrev_b32 v{i4}, 1, v{g}', f'v_or_b32 v{i4}, s{S_T2}, v{i4}', f'v_xor_b32 v{i4}, v{i4}, v0', f'v_and_b32 v{i4}, 15, v{i4}',
              f'v_mul_u32_u24 v{vWD[0]}, 3328, v{g}', f'v_lshl_add_u32 v{vWD[0]}, v{i4}, 4, v{vWD[0]}', f'v_add_u32 v{vWD[1]}, {4 * 3328}, v{vWD[0]}',
              f's_mul_i32 s{S_WSOFF}, s{lw}, {8 * 3328}', f's_add_u32 s{S_WSOFF}, s{S_WSOFF}, s{S_N0}', f's_lshl_b32 s{S_WMB}, s{lw}, 11',
              's_waitcnt lgkmcnt(0)']
        L += self.build_srd(SRD_IDX, S_IDX, 4096 * 104) + (['s_barrier'] if o.dbar0 == 1 else []) + idxl[:o.i0] + self.tlb1(T + 14, T + 15) + self.build_srd(SRD_W, S_W1, 1664 * 3328)
        for sl in range(o.w0):
            L += wstage(sl)
        L += self.stamp0() + (['s_barrier'] if o.dbar0 >= 2 else []) + ([Touch(vr(Q, 4))] if o.dbar0 == 3 else []) + idxl[o.i0:]
        for sl in range(o.w0, 2):
            L += wstage(sl)
        L += [f's_lshl_b32 s{S_T2}, s{S_T1}, 6',
              f'v_and_b32 v{q}, 7, v0', f'v_xor_b32 v{q}, v{q}, v{g}', f'v_lshlrev_b32 v{q}, 4, v{q}', f'v_xor_b32 v{vCh[0]}, s{S_T2}, v{q}', f'v_xor_b32 v{vCh[1]}, 64, v{vCh[0]}',
              f's_mov_b32 s{S_LOOP}, 0',
              f's_mul_i32 s{S_T2}, s{lw}, 13', f's_add_u32 s{S_T2}, s{S_T2}, s{S_R}', f's_min_u32 s{S_T2}, s{S_T2}, 39', f's_lshl_b32 s{S_T2}, s{S_T2}, 3',
              f's_add_u32 s{S_T2}, s{S_T2}, s{S_T3}', f's_mul_i32 s{S_GRP}, s{S_T2}, 104',
              f'v_lshrrev_b32 v{q}, {o.tf.bit_length() - 1}, v0', f'v_min_u32 v{q}, 7, v{q}', f'v_mul_u32_u24 v{q}, 104, v{q}',
              f'v_and_b32 v{i4}, {o.tf - 1}, v0', f'v_lshl_add_u32 v7, v{i4}, 2, v{q}',
              f's_lshl_b32 s{S_T2}, s{S_MB}, 2', f's_add_u32 s{S_T2}, s{S_T2}, s{lw}', f's_add_u32 s{S_T2}, s{S_T2}, {o.tw0 * 32}', f's_mul_i32 s{S_RC}, s{S_T2}, 3328',
              f's_add_u32 s{S_RC}, s{S_RC}, s{S_N0}', f's_mov_b32 s{S_T2}, {52 * 3328}',
              f'v_lshrrev_b32 v{q}, 1, v0', f'v_mul_lo_u32 v{q}, s{S_T2}, v{q}', f'v_and_b32 v{i4}, 1, v0', f'v_lshl_add_u32 v{vWT}, v{i4}, 7, v{q}']
        L += self.build_srd(SRD_W2, S_W2, 3328)
        L += [f's_mul_i32 s{S_T2}, s{lw}, {o.lpf * 128}', f's_add_u32 s{S_T2}, s{S_T2}, L_tail-L_pc', f'v_lshlrev_b32 v8, 7, v0', f'v_add_u32 v8, s{S_T2}, v8',
              f'v_mov_b32 v9, s{S_MASK + 1}', f'v_add_co_u32 v8, vcc, s{S_MASK}, v8', 'v_addc_co_u32 v9, vcc, 0, v9, vcc']
        sh = lambda pc, c_: f'v_lshlrev_b32 v{Q + 4 * pc + c_}, 7, v{Q + 4 * pc + c_}'
        for pc in range(10):
            L += [sh(pc, 0), sh(pc, 2), sh(pc, 1), sh(pc, 3)] + xaddr(0, [pc]) + xld(pc, 0, 'X0a' if pc < o.sa else 'X0')
            if pc == 0:
                L += self.stamp(6) + self.probe('i0')
            if pc == o.bwat:
                L += [WaitTag(vm_tags=['W']), 's_barrier']
        L += self.stamp(7) + self.probe('x0i')
        x1 = [x for pc in range(10) for x in xaddr(1, [pc]) + xld(pc, 1)]
        L += x1[:4 * o.x1n] + [WaitTag(vm_tags=['X0a'])] + self.stamp(1) + ['s_barrier'] + self.probe('s0') + x1[4 * o.x1n:4 * o.x1m]
        L += [WaitTag(vm_tags=['X0']), 's_barrier'] + x1[4 * o.x1m:] + wstage(2) + wstage(3) + xaddr(2, range(10))
        x2 = [x for pc in range(10) for x in xld(pc, 2)]
        NR = (26 - o.tf0 + o.tf - 1) // o.tf
        tex = (1 << (8 * o.tf)) - 1
        texec = [f's_mov_b32 exec_lo, {tex & 0xffffffff:#x}', f's_mov_b32 exec_hi, {tex >> 32:#x}']
        if o.tch:
            L += [f'buffer_load_dword v{TI + r}, v7, {srd(SRD_IDX)}, s{S_GRP} offen offset:{4 * min(o.tf0 + o.tf * r, 26 - o.tf)}' for r in range(NR)]

        def xtouch():
            t_ = [f'v_lshlrev_b32 v{T + 1}, 7, v{TI}'] + texec + [f'buffer_load_dword v{T + 2}, v{T + 1}, {srd(SRD_TAB)}, 0 offen', 's_mov_b64 exec, -1']
            return t_ + [f'v_mov_b32 v{TI + r}, v{TI + r + 1}' for r in range(NR - 1)] + [f'v_mov_b32 v{TI + NR - 1}, 0xffffff']

        def wtouch():
            return ['s_mov_b64 exec, 0x3ff', f'buffer_load_dword v{T + 3}, v{vWT}, {srd(SRD_W)}, s{S_RC} offen', 's_mov_b64 exec, -1', f's_add_u32 s{S_RC}, s{S_RC}, {260 * 3328}']
        L += x2[:2 * o.x2n] + [WaitTag(vm_tags=['W']), 's_barrier'] + self.probe('bar0') + x2[2 * o.x2n:] + xaddr(3, range(10))
        lpre = self.seq(L + [f's_setprio {o.lprio}', 's_branch L_ld_in'])
        del self.P.static[self.mk0:]
        self.P.static[self.ldat:self.ldat] = lpre
        self.mk0 = len(self.P.static)

        def lpair(p):
            S = ['s_barrier'] + (['L_ld_in:'] if p == 0 else []) + wstage(2 * (p % 2)) + wstage(2 * (p % 2) + 1)
            f2 = p + 4
            for pc in range(10):
                x = xld(pc, p % 3)
                S += [x[0]] + (xaddr(f2, [pc - 1])[:1] if pc else []) + [x[1]] + (xaddr(f2, [pc - 1])[1:] if pc else [])
            S += xaddr(f2, [9])
            if p >= 10:
                S += [f'v_mov_b32_dpp v{Q + 4 * pc + c_}, v{Q + 4 * pc + c_} row_shl:3 row_mask:0xf bank_mask:0xf' for pc in range(10) for c_ in ((0, 2) if p == 10 else (1, 3))]
            if o.tch and p % o.tf == o.toff:
                S += xtouch()
            if o.tch and p % 4 == o.twoff:
                S += wtouch()
            if p == 11:
                S += [f's_add_u32 s{S_LOOP}, s{S_LOOP}, 1', f's_cmp_lt_u32 s{S_LOOP}, 2']
            return S + [WaitTag(vm_tags=['W'])]
        body = self.seq(['L_dnn_loop1:'])
        for p in range(12):
            if p == 8 and o.lpf:
                body += self.seq([f's_cmp_lg_u32 s{S_LOOP}, 1', 's_cbranch_scc1 L_nolpf'])
                self.seq([f's_mov_b64 exec, {(1 << o.lpf) - 1}', 'global_load_dword v10, v[8:9], off', 's_mov_b64 exec, -1'] + small(SRD_W2, L_W2))
                body += self.seq(['L_nolpf:'])
            lp = lpair(p)
            if p and self.probe(f'bar{p}'):
                lp = lp[:1] + [f's_cmp_lg_u32 s{S_LOOP}, 0', f's_cbranch_scc1 L_nopb{p}'] + self.probe(f'bar{p}') + [f'L_nopb{p}:'] + lp[1:]
            body += self.seq(lp + (['s_cbranch_scc1 L_dnn_loop1'] if p == 11 else []))
        tl = c0 + lpre + body * 2 + self.seq(['s_branch L_ld_tail'])
        self.ldblk = self.P.static[self.mk0:]
        del self.P.static[self.mk0:]
        tl += self.seq(['L_ld_tail:', 's_barrier'] + self.tlb2(T) + ['s_mov_b64 exec, 1', f'buffer_load_dword v250, v{T}, {srd(SRD_DBG)}, 0 offen offset:240 sc1', 's_mov_b64 exec, -1'])
        tl += self.seq(self.probe('s50'))
        if o.walk:
            tl += self.seq([f's_cmp_eq_u32 s{lw}, 0', 's_cbranch_scc1 L_wkd', 's_mov_b64 exec, 0', f's_cmp_eq_u32 s{lw}, 1', 's_cbranch_scc1 L_wk0',
                            f's_cmp_eq_u32 s{lw}, 2', f's_cbranch_scc1 L_wk{np_ // 3}', f's_branch L_wk{2 * np_ // 3}', 'L_wkd:'])
        A = 64
        L = [f's_cmp_lg_u32 s{S_WAVE}, 4', 's_cbranch_scc1 L_end',
             f'v_lshlrev_b32 v3, 4, v0', f'v_lshlrev_b32 v4, 2, v0', f'v_add_u32 v1, {RB}, v3', f'v_add_u32 v2, {RB + 1024}, v4', f'v_add_u32 v4, 1024, v4',
             'v_mov_b32 v5, 32', f'v_mov_b32 v7, s{S_MB}',
             f's_mul_i32 s{S_T0}, s{S_MB}, 1280', f's_mul_i32 s{S_T1}, s{S_R}, {WSP}', f's_add_u32 s{S_T1}, s{S_T1}, s{S_T0}', 's_setprio 3']
        if o.sent:
            L += [f'v_mov_b32 v{A + k}, -1' for k in range(4)] + [f'buffer_store_dwordx4 {vr(A, 4)}, v3, {srd(SRD_WS)}, s{S_T1} offen sc1',
                  f'buffer_store_dword v{A}, v4, {srd(SRD_WS)}, s{S_T1} offen sc1', 's_waitcnt vmcnt(0)']
        L += self.stamp_flush() + ['s_barrier'] + self.probe('dend')
        L += [f'ds_read_b128 {vr(A, 4)}, v1', f'ds_read_b128 {vr(A + 8, 4)}, v1 offset:1280', f'ds_read2st64_b32 {vr(A + 4, 2)}, v2 offset0:0 offset1:5',
              f'v_pk_add_f32 {p2(A)}, {p2(A)}, {p2(A + 8)}', f'v_pk_add_f32 {p2(A + 2)}, {p2(A + 2)}, {p2(A + 10)}', f'v_add_f32 v{A + 4}, v{A + 4}, v{A + 5}']
        if o.sent:
            L += [f'v_min_u32 v{A + k}, -2, v{A + k}' for k in range(5)]
        L += (self.stamp(16) if o.diag else [])
        L += [f'buffer_store_dwordx4 {vr(A, 4)}, v3, {srd(SRD_WS)}, s{S_T1} offen sc1',
              f'buffer_store_dword v{A + 4}, v4, {srd(SRD_WS)}, s{S_T1} offen sc1', 's_mov_b64 exec, 1']
        tl += self.seq(L)

        L = ['L_pub:']
        if o.skew:
            L += ['v_mov_b32 v20, s86', 'v_mov_b32 v21, s86', 'v_mov_b32 v22, s88', 's_lshl_b32 s89, s2, 7', 's_add_u32 s89, s89, 0x40000', 'v_lshlrev_b32 v23, 28, v0',
                  f'buffer_store_dwordx3 v[20:22], v23, {srd(SRD_WS)}, s89 offen sc1', 's_waitcnt vmcnt(0)']
        def loads():
            c = [f's_mul_i32 s{S_T0}, s{S_T3}, 1280']
            for qq in range(14):
                c += [f'buffer_load_dwordx4 {vr(A + 8 * qq, 4)}, v3, {srd(SRD_WS)}, s{S_T0} offen sc1',
                      f'buffer_load_dword v{A + 8 * qq + 4}, v4, {srd(SRD_WS)}, s{S_T0} offen sc1', f's_add_u32 s{S_T0}, s{S_T0}, {WSP}']
            return c
        R_ = 56
        L += ['v_lshlrev_b32 v6, 4, v7'] + ([] if o.sent else ['s_waitcnt vmcnt(0)']) + ['v_mov_b32 v13, v5', f'buffer_atomic_add v5, v6, {srd(SRD_DBG)}, 0 offen sc0',
              'v_cmp_eq_u32 vcc, 12, v7', 'v_mov_b32 v8, 436', 'v_mov_b32 v9, 434', 'v_cndmask_b32 v8, v8, v9, vcc', 'v_sub_u32 v8, v8, v13']
        if o.spec:
            L += [f's_mov_b64 s[{S_MASK}:{S_MASK + 1}], exec', 's_mov_b64 exec, -1', f'v_readfirstlane_b32 s{S_T3}, v7'] + loads() + [f's_mov_b64 exec, s[{S_MASK}:{S_MASK + 1}]']
            L += ['s_waitcnt vmcnt(0) lgkmcnt(0)']
        else:
            L += ['s_waitcnt vmcnt(0) lgkmcnt(0)']
        L += (self.stamp(18) if o.diag else []) + [
             f'v_cmp_eq_u32 s[{S_EX}:{S_EX + 1}], v5, v8', 's_mov_b64 exec, -1', f's_lshl_b32 s{S_BOUT}, s{S_BOUT}, 16',
             'v_lshrrev_b32 v1, 1, v3', 'v_lshrrev_b32 v2, 1, v4']
        if o.spec:
            L += [f's_bitcmp1_b32 s{S_EX}, 0', f's_bitset0_b32 s{S_EX}, 0', 's_cbranch_scc1 L_sum']
        pa = self.seq(L)
        L = ['L_fin:', f's_cmp_eq_u32 s{S_EX}, 0', 's_cbranch_scc1 L_done',
             f's_ff1_i32_b32 s{S_T2}, s{S_EX}', f's_bitset0_b32 s{S_EX}, s{S_T2}', f'v_readlane_b32 s{S_T3}, v7, s{S_T2}', 's_waitcnt vmcnt(0)', 'L_again:'] + loads()
        pb = self.seq(L)
        L = ['L_sum:', f'v_pk_add_f32 {p2(R_)}, {p2(A)}, {p2(A + 8)}', f'v_pk_add_f32 {p2(R_ + 2)}, {p2(A + 2)}, {p2(A + 10)}', f'v_add_f32 v{R_ + 4}, v{A + 4}, v{A + 12}']
        for qq in range(2, 14):
            L += [f'v_pk_add_f32 {p2(R_)}, {p2(R_)}, {p2(A + 8 * qq)}', f'v_pk_add_f32 {p2(R_ + 2)}, {p2(R_ + 2)}, {p2(A + 8 * qq + 2)}',
                  f'v_add_f32 v{R_ + 4}, v{R_ + 4}, v{A + 8 * qq + 4}']
        if o.sent:
            L += [f'v_cmp_u_f32 vcc, v{R_}, v{R_ + 1}', f'v_cmp_u_f32 s[{S_MASK}:{S_MASK + 1}], v{R_ + 2}, v{R_ + 3}', f's_or_b64 s[{S_MASK}:{S_MASK + 1}], s[{S_MASK}:{S_MASK + 1}], vcc',
                  f'v_cmp_u_f32 vcc, v{R_ + 4}, v{R_ + 4}', f's_or_b64 vcc, s[{S_MASK}:{S_MASK + 1}], vcc', 's_cbranch_vccnz L_chk', 'L_ok:']
        L += [f's_mul_i32 s{S_T3}, s{S_T3}, 640']
        A0 = A
        A = R_
        L += [f'v_add_f32 v{A + k}, s{S_BOUT}, v{A + k}' for k in range(5)]
        L += [f'v_cvt_pk_bf16_f32 v10, v{A}, v{A + 1}', f'v_cvt_pk_bf16_f32 v11, v{A + 2}, v{A + 3}', f'v_cvt_pk_bf16_f32 v12, v{A + 4}, v{A + 4}',
              f'buffer_store_dwordx2 v[10:11], v1, {srd(SRD_OUT)}, s{S_T3} offen', f'buffer_store_short v12, v2, {srd(SRD_OUT)}, s{S_T3} offen']
        if o.skew:
            L += [f's_cmp_lg_u32 s{S_EX}, 0', 's_cbranch_scc1 L_fin', 'v_lshlrev_b32 v20, 7, v0', 's_mov_b32 s88, 0x40000']
            for k in range(4):
                L += [f'buffer_load_dwordx3 v[{32 + 4 * k}:{34 + 4 * k}], v20, {srd(SRD_WS)}, s88 offen sc1', 's_add_u32 s88, s88, 8192']
            L += ['s_waitcnt vmcnt(0)']
            if o.probe.startswith('st') or o.absol:
                L += ['s_memrealtime s[88:89]', 's_waitcnt lgkmcnt(0)', 'v_mov_b32 v26, 0', 'v_mov_b32 v27, 0']
                for k in range(4):
                    L += [f'v_sub_u32 v28, s88, v{32 + 4 * k}', 'v_cmp_gt_u32 vcc, 4500, v28', f'v_not_b32 v29, v{32 + 4 * k}', 'v_cndmask_b32 v29, 0, v29, vcc', 'v_max_u32 v27, v27, v29']
                    if o.absol:
                        L += [f'v_cndmask_b32 v29, 0, v{34 + 4 * k}, vcc', 'v_max_u32 v26, v26, v29']
                    elif str(k) in o.probe[2:]:
                        L += [f'v_cndmask_b32 v29, 0, v{32 + 4 * k}, vcc', 'v_max_u32 v26, v26, v29']
            else:
                for k in range(4):
                    L += [f'v_sub_u32 v28, v{34 + 4 * k}, v{32 + 4 * k}', f'v_cmp_gt_u32 vcc, {100000 if o.cyc else 5000}, v28', f'v_cndmask_b32 v28, 0, v28, vcc',
                          f'v_cmp_eq_u32 vcc, v{32 + 4 * k}, v{33 + 4 * k}', f'v_cndmask_b32 v{33 + 4 * k}, 0, v28, vcc']
                L += ['v_max_u32 v26, v33, v37', 'v_max3_u32 v26, v26, v41, v45', 'v_mov_b32 v27, -1']
            if o.probe == 'span':
                L += ['s_memrealtime s[86:87]', 's_waitcnt lgkmcnt(0)', 'v_mov_b32 v26, s86']
            for (ctl, rm) in (('row_shr:1', '0xf'), ('row_shr:2', '0xf'), ('row_shr:4', '0xf'), ('row_shr:8', '0xf'), ('row_bcast:15', '0xa'), ('row_bcast:31', '0xc')):
                L += [f'v_max_u32_dpp v{r}, v{r}, v{r} {ctl} row_mask:{rm} bank_mask:0xf' for r in (26, 27)]
            L += ['v_not_b32 v27, v27', 'v_sub_u32 v22, v26, v27', 's_memrealtime s[86:87]', 'v_readlane_b32 s88, v22, 63', 's_waitcnt lgkmcnt(0)',
                  *([f's_max_u32 s88, s88, {o.cyc.split(chr(44))[2]}', f's_sub_u32 s88, s88, {o.cyc.split(chr(44))[2]}', 's_lshr_b32 s88, s88, 1'] if o.cyc else []), 's_min_u32 s88, s88, 5000', f's_mul_i32 s88, s88, {o.skew - 1}', 's_add_u32 s88, s88, s86',
                  'L_spin:', 's_memrealtime s[86:87]', 's_waitcnt lgkmcnt(0)', 's_sub_u32 s89, s88, s86', 's_cmp_gt_i32 s89, 0', 's_cbranch_scc1 L_spin']
        L += self.stamp(5) + self.stamp_flush() + ['s_branch L_fin']
        pc_ = self.seq(L)
        if o.sent:
            L = ['L_chk:', 'v_mov_b32 v14, 0', 'v_mov_b32 v15, 0']
            for qq in range(14):
                L += [f'v_max3_u32 v14, v14, v{A0 + 8 * qq}, v{A0 + 8 * qq + 1}', f'v_max3_u32 v14, v14, v{A0 + 8 * qq + 2}, v{A0 + 8 * qq + 3}', f'v_max_u32 v15, v15, v{A0 + 8 * qq + 4}']
            L += [f's_cmp_eq_u32 s{S_T3}, 12', f's_cselect_b32 s{S_T0}, 0, -1', f'v_and_b32 v15, s{S_T0}, v15', 'v_max_u32 v14, v14, v15',
                  'v_cmp_eq_u32 vcc, -1, v14', 's_cbranch_vccnz L_again', 's_branch L_ok']
            self.chk = self.seq(L)
        pe = self.seq(['L_done:', 's_endpgm'])
        self.pub = pa + pb + pc_ + pe
        self.extra_traces = [pa + pc_ + pb + pc_] + ([pa + pb + pc_[:45] + self.chk + pb[7:] + pc_] if o.sent else [])
        return [tc, tl + self.pub]

    def pubsrd(self):
        return self.build_srd(SRD_WS, S_WS, 0x10000000) + self.build_srd(SRD_OUT, S_OUT, 8192) + self.build_srd(SRD_DBG, S_DBG, 256)

    def tables(self):
        OOB = 0x100000
        G = [[] for _ in range(11)]
        for l in range(64):
            half, i32, g, r, c = l >> 5, l & 31, l >> 4, (l >> 2) & 3, l & 3
            lin0 = g * 128 + r * XPP + c * 8
            G[0] += [lin0, lin0 + 512 if g < 3 else XOFF(27) + c * 8, (l >> 3) * 16, 0x3f803f80 if l < 32 else 0]
            G[1] += [(l & 7) * 16, 0xeeee if l & 1 else 0x4444, half * XPP + i32 * 4, IMG + half * 20 * IMGP + i32 * 4]
            tr = [IMG + cin16.IMGROW(cin16.LAB[g][2 * rp + (r >> 1)][r & 1]) * IMGP + c * 8 for rp in range(8)]
            G[2] += tr[:4]
            G[3] += tr[4:]
            row, col = 8 * half + r, (g & 1) * 32 + c * 8
            G[4] += [V3OFF + row * 64 + col, A1 + row * 1352 + col, A1 + min(row + 16, 25) * 1352 + col, A1 + min(row + 20, 25) * 1352 + col]
            t, gd, rr = (i32 >> 2) & 1, i32 >> 3, i32 & 3
            ig = 16 * t + 4 * rr + gd
            iq = 4 * rr + gd if t == 0 else 16 + ((4 * rr + gd + 4) & 15)
            pm = []
            for q in range(8):
                k0 = 16 * (q >> 2) + 8 * half + 2 * (q & 3)
                pm.append((0xffff if iq == k0 else 0xffff0000 if iq == k0 + 1 else 0) if iq < 26 else 0)
            G[5] += pm[:4]
            G[6] += pm[4:]
            ga = A2 + 52 * ig if ig < 26 else OOB
            rowp = ((l & 12) + 2 * (l & 1)) * 16 + (OOB if l & 2 else 0)
            G[7] += [ga + half * 8 * W2P, ga + half * OOB, rowp + half * 256 + (g & 1) * 8, rowp + g * 256]
            G[8] += [SG + i32 * 64 if i32 < 26 else V2S if i32 == 26 else OOB, 64 if i32 == 26 else 3328, (i32 >> 1) + 2 * half,
                     SQ + i32 * 64 + ((((i32 >> 1) & 3) ^ (2 * half)) << 4)]
            v2 = []
            for hf in range(2):
                j = 4 * g + 16 * hf + r
                v2.append(V2S + (j & 1) * 1664 + (j >> 1) * 64 + ((c ^ (((13 + j) & 3) * 2)) * 8) if j < 26 else SG + 676 * 64 + c * 8)
            wo = [L_WCO + 2 * (16 * tl_ + 4 * c + r) if 16 * tl_ + 4 * c + r < 26 else OOB for tl_ in range(2)]
            G[9] += v2 + wo
            G[10] += [L_WCO + 104 + 16 * half, L_WCO + 52 + 2 * l, V3OFF + 52 + 64 * l, SG + 676 * 64 + (l & 15) * 4]
        U = []
        for w in range(8):
            for e in range(16):
                for u in (w, w + 8, w + 16):
                    U += [SG + row * 64 + f * 8 for row, f in cin16.p2rows(u, e >> 2, e & 3)] if u < 22 else [0, 0]
        return [x for n in (4, 2, 3, 0, 5, 6, 7, 8, 9, 1, 10) for x in G[n]] + [0] * 256 + U + [0] * 256

    def cin(self):
        o = self.opt
        cw = S_CW
        vFa, vLin0, vLin1, vXi0, vXi1, vC16, vIDX, vXa, vIw, vPWL, vPXL, PXR, PFR = 1, 4, 5, 6, 7, 8, 9, 10, 11, 12, 13, 14, 15
        XI, vTR = 16, 20
        XR, P, Z, WF, D = 32, 60, 116, 164, 184
        vStg, vFR, vFw = vFa, 2, 59
        t3, t4, t5 = 29, 30, 31
        AV = [28, 58]
        PM = 216
        vA3, vBs0, vBs1a, vBs1b, vGa, vGb, vT3, vT3d = range(224, 232)
        G8, vV2r, vV2q, vWo, AD = 232, 236, 237, 238, 240
        WA = list(range(244, 250))
        vS, vMx = 250, 111
        UA, UX = 224, [232, 233, 234, 235, 240, 241]
        AFR = 112
        BALL, DALL = 60, 120
        S_F1, S_F2, S_G, S_LO, S_HI, S_CM, S_U0, S_U1, S_U2 = 74, 75, 95, 96, 97, 90, 98, 99, 100
        S_CG, S_IV = 0, 1
        OOB = 0x100000
        TA_, TB_, TC_ = SG + 35840, SQ + 26 * W2P, FRS + 2048
        GREG = [224, 20, 24, 4, 216, 220, 228, 232, 236, 8, 240]
        DPPS = (('row_shr:1', '0xf'), ('row_shr:2', '0xf'), ('row_shr:4', '0xf'), ('row_shr:8', '0xf'),
                ('row_bcast:15', '0xa'), ('row_bcast:31', '0xc'))

        K_W7, K_IMG, K_W2, K_W1, K_W12, K_H8, K_T3 = 52, 53, 54, 55, 92 - 10, 92 - 9, 91
        L = ['L_cin:', f'v_lshlrev_b32 v{vStg}, 4, v0', f's_and_b32 s{cw}, s{S_WAVE}, 3', f's_lshr_b32 s{S_GRP}, s{S_WAVE}, 2', f's_lshl_b32 s{S_STG}, s{cw}, 10',
             f's_mul_i32 s{S_MB}, s{S_T0}, 11', f's_add_u32 s{S_MB}, s{S_MB}, s{S_T1}', f's_sub_u32 s{S_MB}, s{S_MB}, 22',
             f's_cmp_eq_u32 s{S_MB}, 86', 's_cbranch_scc1 L_end', f's_cmp_eq_u32 s{S_GRP}, 0', 's_cbranch_scc1 L_sc']
        c0 = self.seq(L)
        L = ['s_setprio 2', f'v_add_u32 v2, L_tables-L_pc+4096, v{vStg}', f'v_mov_b32 v3, s{S_MASK + 1}',
             f'v_add_co_u32 v2, vcc, s{S_MASK}, v2', 'v_addc_co_u32 v3, vcc, 0, v3, vcc',
             f'v_add_co_u32 v{XR}, vcc, s{S_STG}, v2', f'v_addc_co_u32 v{XR + 1}, vcc, 0, v3, vcc',
             f'global_load_dwordx4 {vr(GREG[0], 4)}, v[2:3], off offset:-4096',
             'v_add_co_u32 v2, vcc, 0x1800, v2', 'v_addc_co_u32 v3, vcc, 0, v3, vcc', f'global_load_dwordx4 {vr(GREG[10], 4)}, v[2:3], off',
             f's_cmp_lt_u32 s{cw}, 3', f's_mov_b32 s{S_T2}, {TB_ - 3072}', f's_cselect_b32 s{S_T2}, {TA_ + 4096}, s{S_T2}']
        tdma = lambda off: I(f'global_load_lds_dwordx4 {vr(XR, 2)}, off offset:{off}', tag='TAB')
        L += [f's_add_u32 m0, s{S_STG}, {TA_ + 4096}', tdma(-4096), f's_add_u32 m0, s{S_STG}, s{S_T2}', tdma(0),
              f'v_add_co_u32 v{XR}, vcc, 0x2000, v{XR}', f'v_addc_co_u32 v{XR + 1}, vcc, 0, v{XR + 1}, vcc',
              f's_add_u32 m0, s{S_STG}, {TC_}', tdma(0), f's_add_u32 m0, s{S_STG}, {TB_ + 1024 + 4096}', f's_cmp_ge_u32 s{cw}, 2', 's_cbranch_scc1 L_sc']
        g1s = self.seq(L)
        L = [tdma(-4096)]
        g1t = self.seq(L)
        L = ['L_sc:', f's_mul_i32 s{S_RC}, s{S_GRP}, 20', f's_add_u32 s{S_RC}, s{S_RC}, s{S_WAVE}',
             f's_mul_i32 s{S_SAMP}, s{S_MB}, 48', f's_add_u32 s{S_SAMP}, s{S_SAMP}, s{S_RC}', f's_mul_i32 s{S_SAMP}, s{S_SAMP}, 104',
             f'v_lshrrev_b32 v{t4}, 3, v0', f'v_lshlrev_b32 v{t4}, 4, v{t4}', f'v_and_b32 v{t3}, 0x70, v{vStg}',
             f's_mul_i32 s{S_XM0}, s{S_WAVE}, {XBSZ}', f's_add_u32 s{S_XM0}, s{S_XM0}, {XB}', f's_cmp_eq_u32 s{S_GRP}, 0', 's_cbranch_scc1 L_g0']
        csc = self.seq(L)
        SC2 = [f's_lshl_b32 s{S_RC}, s{S_RC}, 2', f's_add_u32 s{S_RC}, s{S_RC}, {RC}',
               f's_mul_i32 s{S_LOOP}, s{S_GRP}, 3', f's_sub_u32 s{S_LOOP}, 4, s{S_LOOP}', (f's_cmp_eq_u32 s{S_MB}, 85', f's_cselect_b32 s{S_LOOP}, s{S_LOOP}, 6'),
               f's_lshl_b32 s{K_W7}, s{S_WAVE}, 7', f's_mul_i32 s{K_IMG}, s{S_WAVE}, {IMGSZ}', f's_lshl_b32 s{K_W2}, s{S_WAVE}, 2', f's_lshl_b32 s{K_W1}, s{S_WAVE}, 1',
               f's_lshl_b32 s{K_W12}, s{S_WAVE}, 12',
               f's_and_b32 s{S_U0}, s{S_WAVE}, 1', f's_lshr_b32 s{S_U1}, s{S_WAVE}, 1',
               f's_mul_i32 s{S_T0}, s{S_U1}, 3072', f's_lshl_b32 s{K_H8}, s{S_U0}, 3', f's_add_u32 s{S_T0}, s{S_T0}, s{K_H8}', f'v_add_u32 v{vFw}, s{S_T0}, v{vStg}',
               f's_lshl_b32 s{S_T1}, s{S_U1}, 3', f's_lshr_b32 s{S_T1}, 0x05030200, s{S_T1}', f's_and_b32 s{S_T1}, s{S_T1}, 0xff',
               f's_lshl_b32 s{S_T1}, s{S_T1}, 9', f's_lshl_b32 s{S_T2}, s{S_U0}, 2', f's_add_u32 s{K_T3}, s{S_T1}, s{S_T2}',
               f's_mov_b32 s{S_U1}, 0x05040100', f's_mov_b32 s{S_U2}, 0x07060302',
               f'v_mov_b32 v{vFR}, {L_FLG}', 'v_mov_b32 v109, 0', 'v_mov_b32 v108, 0'] + [f'v_mov_b64 {vr(r, 2)}, 0' for r in range(XR, XR + 26, 2)]
        XJ = 104

        def pfw(dst=3):
            return [f'buffer_load_dword v{dst}, v{vPWL}, {srd(SRD_W)}, s{S_PW} offen',
                    f's_add_u32 s{S_PW}, s{S_PW}, {o.pfne * 688 * 128}']

        def pfx_a():
            return [f'buffer_load_dword v{PXR}, v{vPXL}, {srd(SRD_IDX)}, s{S_PX} offen',
                    f's_cmp_eq_u32 s{S_PX}, s{S_PXE}', f's_cselect_b32 s{S_PXE}, 0x7000000, s{S_PXE}',
                    f's_cselect_b32 s{S_PX}, 0x7000000, s{S_PX}',
                    f's_add_u32 s{S_PX}, s{S_PX}, 24', f's_min_u32 s{S_PX}, s{S_PX}, s{S_PXE}']

        def pfx_b():
            return [f'v_lshlrev_b32 v{PXR}, 7, v{PXR}', f'buffer_load_dword v{PFR}, v{PXR}, {srd(SRD_TAB)}, 0 offen']

        def xidx(XI=XI, vXi0=vXi0):
            return [f'buffer_load_dwordx4 {vr(XI, 4)}, v{vXi0}, {srd(SRD_IDX)}, s{S_SAMP} offen', f's_add_u32 s{S_SAMP}, s{S_SAMP}, {4 * 104}']

        def xdma(XI=XI, off=0, tag='XB', vC16=vC16):
            c = [f'v_lshl_add_u32 v{XI + u}, v{XI + u}, 7, v{vC16}' for u in range(4)]
            for u in range(4):
                c += [f's_add_u32 m0, s{S_XM0}, {u * XPP + off}']
                if u % 2 == 0:
                    c.append(f's_mov_b32 exec_hi, {0xffffff if u == 0 else 0xffff:#x}')
                c.append(I(f'buffer_load_dwordx4 v{XI + u}, {srd(SRD_TAB)}, 0 offen lds', tag=tag))
            return c + ['s_mov_b32 exec_hi, -1']

        def stage(dst, goff, tag):
            st = []
            for m in range(9):
                st.append((f's_add_u32 m0, s{S_STG}, {dst + m * 4096}', f's_add_u32 s{S_TW}, s{S_STG}, {goff + m * 4096}',
                           I(f'buffer_load_dwordx4 v{vStg}, {srd(SRD_CIN)}, s{S_TW} offen lds', tag=tag)))
            return st

        def pubmax(regs_offs):
            c = []
            for (ctl, rm) in DPPS:
                for r, _ in regs_offs:
                    c.append(f'v_max_u32_dpp v{r}, v{r}, v{r} {ctl} row_mask:{rm} bank_mask:0xf')
            c += ['s_mov_b32 exec_lo, 0', 's_mov_b32 exec_hi, 0x80000000']
            c += [f'ds_max_u32 v{vFR}, v{r} offset:{16 + 4 * k}' for r, k in regs_offs]
            return c + ['s_mov_b64 exec, -1']

        def mxop(src, n, mx, first):
            return [f'v_mfma_f32_16x16x32_bf16 {vr(mx, 4)}, {vr(src + r, 4)}, {vr(src + r, 4)}, {"0" if first and r == 0 else vr(mx, 4)}' for r in range(0, n, 4)]

        def mxfin(mx):
            return [f'v_max3_f32 v{mx}, v{mx}, v{mx + 1}, 0', f'v_max3_f32 v{mx}, v{mx}, v{mx + 2}, v{mx + 3}']

        def bread(m, off):
            b = BALL + m * 8
            return [f'ds_read_b64_tr_b16 {vr(b, 2)}, v{vBs0} offset:{off}',
                    f'ds_read_b64_tr_b16 {vr(b + 2, 2)}, v{vBs0} offset:{off + 4 * 1352}',
                    f'ds_read_b64_tr_b16 {vr(b + 4, 2)}, v{vBs1a} offset:{off}',
                    f'ds_read_b64_tr_b16 {vr(b + 6, 2)}, v{vBs1b} offset:{off}']

        def mm2(d, a, b):
            return [f'v_mfma_f32_32x32x16_bf16 {vr(d, 16)}, {vr(a, 4)}, {vr(b, 4)}, 0',
                    f'v_mfma_f32_32x32x16_bf16 {vr(d, 16)}, {vr(a + 4, 4)}, {vr(b + 4, 4)}, {vr(d, 16)}']

        tA, tB = 250, 251
        if o.pfw:
            SC2 += self.build_srd(SRD_W, S_W1, 1664 * 3328) + [
                f's_lshl_b32 s{S_PW}, s{S_MB}, 3', f's_add_u32 s{S_PW}, s{S_PW}, s{S_WAVE}', f's_add_u32 s{S_PW}, s{S_PW}, {o.pfe0 * 832}', f's_lshl_b32 s{S_PW}, s{S_PW}, 7',
                f's_mov_b32 s{S_T3}, {688 * 128}', f'v_min_u32 v{vPWL}, {max(o.pfne - 1, 0)}, v0', f'v_mul_lo_u32 v{vPWL}, s{S_T3}, v{vPWL}']
        if o.pfx:
            SC2 += [f's_lshl_b32 s{S_PX}, s{S_MB}, 3', f's_add_u32 s{S_PX}, s{S_PX}, s{S_WAVE}', f's_mul_i32 s{S_PX}, s{S_PX}, {6 * 104}',
                    f's_add_u32 s{S_PXE}, s{S_PX}, 80', f's_add_u32 s{S_PX}, s{S_PX}, {4 * o.pfx0}',
                    f'v_min_u32 v{PXR}, 35, v0', f'v_mul_u32_u24 v{vPXL}, 10923, v{PXR}', f'v_lshrrev_b32 v{vPXL}, 16, v{vPXL}',
                    f'v_mul_u32_u24 v{vPXL}, {104 - 24}, v{vPXL}', f'v_lshl_add_u32 v{vPXL}, v{PXR}, 2, v{vPXL}']
        trd = lambda n: f'ds_read_b128 {vr(GREG[n], 4)}, v{tA if n < 7 else tB} offset:{(n if n < 7 else n - 7) * 1024}'
        vbs = [f'v_add_u32 v{r}, s{K_W7}, v{r}' for r in (vBs0, vBs1a, vBs1b)]

        def FX(g):
            R = [trd(n) for n in ((0,) if g == 0 else ()) + (6, 7, 3, 9, 1, 2, 4, 5, 8)]
            F = vbs + [f'v_add_u32 v{r}, s{K_W2}, v{r}' for r in (vGa, vGb)]
            F += [f'v_add_u32 v{vT3d}, s{K_H8}, v{vT3d}', f'v_add_u32 v{vT3}, s{K_T3}, v{vT3}']
            F += [f'v_mad_u32_u24 v{G8}, v{G8 + 1}, s{S_WAVE}, v{G8}', f'v_add_u32 v{G8 + 2}, s{K_W1}, v{G8 + 2}',
                  f'v_mad_u32_u24 v{G8 + 1}, v{G8 + 1}, 8, v{G8}', f'v_add_u32 v{WA[2]}, s{K_W12}, v{G8 + 3}', f'v_add_u32 v{WA[3]}, 2048, v{WA[2]}']
            for n_, (wa, bs) in enumerate(((WA[0], G8), (WA[1], G8), (WA[4], G8 + 1), (WA[5], G8 + 1))):
                F += [f'v_add_u32 v{t5}, {n_ & 1}, v{G8 + 2}', f'v_and_b32 v{t5}, 3, v{t5}', f'v_lshl_add_u32 v{wa}, v{t5}, 4, v{bs}']
                if n_ & 1:
                    F.append(f'v_add_u32 v{wa}, 1664, v{wa}')
            F += [f'v_add_u32 v{r}, s{S_XM0}, v{r}' for r in (vXa, vLin0, vLin1)] + [f'ds_write_b32 v{vXa}, v{vXi1} offset:{XOFF(26)}']
            F += [f'v_add_u32 v{r}, s{K_IMG}, v{r}' for r in [vIw] + list(range(vTR, vTR + 8))]
            return R, F
        SC2 += [f'v_add_u32 v{tA}, {TA_}, v{vStg}', f'v_add_u32 v{tB}, {TB_}, v{vStg}', f'v_lshrrev_b32 v3, 5, v0', f'v_lshl_add_u32 v3, v3, 2, v{vFR}']

        def pub2(r1, r2, off):
            c = [f'v_permlane32_swap_b32 v{r1}, v{r2}', f'v_max_u32 v{r1}, v{r1}, v{r2}']
            c += [f'v_max_u32_dpp v{r1}, v{r1}, v{r1} {ctl} row_mask:{rm} bank_mask:0xf' for ctl, rm in DPPS[:5]]
            return c + ['s_mov_b32 exec_lo, 0x80000000', 's_mov_b32 exec_hi, 0x80000000', f'ds_max_u32 v3, v{r1} offset:{16 + off}', 's_mov_b64 exec, -1']
        AV = [28, 58, 111]
        CO = [f's_sub_u32 s{S_T0}, s{S_T3}, 22', f's_min_u32 s{S_T0}, s{S_T0}, 9', f's_lshl_b32 s{S_T0}, s{S_T0}, 2', f's_add_u32 s{S_T0}, s{S_T0}, s{cw}', f's_lshl_b32 s{S_T0}, s{S_T0}, 7',
              f'v_mul_u32_u24 v{t5}, {40 * 128}, v0', 's_waitcnt lgkmcnt(0)'] + self.build_srd(SRD_CIN, S_CIN, 105456) + [
              f'buffer_load_dword v107, v{t5}, {srd(SRD_CIN)}, s{S_T0} offen']
        L = CO if o.coop in (1, 2) else []
        L += ['s_waitcnt lgkmcnt(0)'] + self.build_srd(SRD_WCO, S_WCO, 156) + [f's_mov_b32 m0, {L_WCO}', 's_mov_b64 exec, 0x7ff',
             I(f'buffer_load_dwordx4 v{vStg}, {srd(SRD_WCO)}, 0 offen lds', tag='WCO'), 's_mov_b64 exec, -1'] + (['s_barrier'] if o.coop in (2, 4) else []) + self.stamp0() + SC2
        L += self.build_srd(SRD_IDX, S_IDX, 4096 * 104) + self.build_srd(SRD_TAB, S_TAB, 100000 * 128)
        XK = 12
        if o.g1t:
            assert not o.pfx
            L += [f'v_and_b32 v13, 31, v0', f'v_min_u32 v13, 25, v13', f'v_lshrrev_b32 v14, 5, v0', f'v_mul_u32_u24 v14, {4 * 104}, v14', f'v_lshl_add_u32 v13, v13, 2, v14',
                  f'buffer_load_dword v14, v13, {srd(SRD_IDX)}, s{S_SAMP} offen']
        g1touch = [f'v_lshlrev_b32 v14, 7, v14', f'buffer_load_dword v13, v14, {srd(SRD_TAB)}, 0 offen']
        if o.xg1:
            L += [f's_sub_u32 s{S_T0}, s{S_SAMP}, {24 * 104}', f'buffer_load_dwordx4 {vr(XI, 4)}, v{t4}, {srd(SRD_IDX)}, s{S_T0} offen',
                  f'buffer_load_dwordx4 {vr(XK, 4)}, v{t4}, {srd(SRD_IDX)}, s{S_T0} offen offset:{4 * 104}']
        L += [f'ds_write_b128 v{vFR}, {vr(XR, 4)} offset:16', f's_lshl_b32 s{S_T0}, s{cw}, 6', f'v_add_u32 v{t3}, s{S_T0}, v0']
        for p_ in range(3):
            L += [f'v_mul_u32_u24 v{t4}, 2521, v{t3}', f'v_lshrrev_b32 v{t4}, 16, v{t4}', f'v_mul_u32_u24 v{t4}, 12, v{t4}', f'v_lshl_add_u32 v{AV[p_]}, v{t3}, 1, v{t4}']
            L += [f'v_add_u32 v{t3}, 256, v{t3}'] if p_ < 2 else [f'v_cmp_gt_u32 vcc, 676, v{t3}', f's_mov_b64 s[{S_MASK}:{S_MASK + 1}], vcc']
        L += [f'v_lshlrev_b32 v{t3}, 3, v0', 's_mov_b32 exec_hi, 0xffff', f'ds_write_b64 v{t3}, {vr(XR, 2)} offset:{V3OFF + 26 * 64}', 's_mov_b32 exec_hi, -1',
              f'ds_write_b32 v{AD + 3}, v{XR}', f'ds_write_b32 v{AD + 3}, v{XR} offset:{SSZ}', WaitTag(vm_tags=['WCO'])]
        assert V3OFF == 0
        for s2 in range(2):
            for rd in range(2):
                L.append(f'ds_read_b64 {vr(AFR + 4 * s2 + 2 * rd, 2)}, v{AD} offset:{s2 * 32 + rd * 8}')
        L += [f'ds_read_u16 v110, v{AD + 1}',
              's_mov_b64 exec, 0x3ffffff', f'ds_write_b16 v{AD + 2}, v110', 'v_lshlrev_b32 v109, 17, v110', 'v_lshrrev_b32 v109, 1, v109', 's_mov_b64 exec, -1']
        if o.cwalk:
            L += ['s_mov_b64 exec, 0'] + [x for q_ in range(3) for x in (f's_cmp_eq_u32 s{cw}, {q_}', f's_cbranch_scc1 L_WENTRY{q_}')] + ['s_branch L_WENTRY3', 'L_wret:', 's_mov_b64 exec, -1']
        L += (FX(1)[1] if o.dirt else vbs) + [WaitTag(vm_tags=['TAB'], lgkm0=True)] + self.probe('tab') + (pfw(PFR) if o.pfw and o.pfs == 1 else [])
        v3p = []
        L += ['s_barrier'] + self.stamp(2) + self.probe('b0')
        vb = lambda m: A3 - A1 - 512 + (m >> 1) * 512 + (m & 1) * 64
        for m in range(3):
            L += bread(m, vb(m))
        for m in range(6):
            if m + 3 < 6:
                L += bread(m + 3, vb(m + 3))
            L += mm2(DALL + m * 16, AFR, BALL + m * 8)
            if m == 3 and not o.dirt:
                L += FX(1)[0]
        if not o.dirt:
            L += FX(1)[1][3:]
        for p_ in range(3):
            L += ['s_mov_b32 exec_lo, 0', f'v_mov_b32 v{DALL + 32 * p_}, v{DALL + 32 * p_ + 16}', 's_mov_b32 exec_lo, -1',
                  f'v_cvt_pk_bf16_f32 v{BALL + p_}, 0, v{DALL + 32 * p_}']
            if p_ == 2:
                L += [f's_mov_b64 exec, s[{S_MASK}:{S_MASK + 1}]']
            L += [f'ds_write_b16_d16_hi v{AV[p_]}, v{BALL + p_}', f'v_max_f32 v108, |v{BALL + p_}|, v108']
        L += ['s_mov_b64 exec, -1'] + pub2(108, 109, 8) + self.stamp(13) + [f's_setprio {o.g1p}'] + (g1touch if o.g1t == 1 else []) + ['s_waitcnt lgkmcnt(0)', 's_barrier'] + (g1touch if o.g1t == 2 else []) + ['s_branch L_w2']
        v3 = self.seq(L)

        def stage3(dst, goff, tag, lab, mid=None, fill=()):
            st = stage(dst, goff, tag)
            a_ = st[:8] if mid is None else st[:mid[0]] + [tuple(mid[1])] + st[mid[0]:8]
            return (self.seq(interleave(a_, list(fill)) + [f's_cmp_eq_u32 s{cw}, 3', f's_cbranch_scc1 {lab}']), self.seq([st[8]]), self.seq([f'{lab}:']))
        g0 = [self.seq(['L_g0:'] + ([x.replace('v107,', 'v103,') for x in CO] if o.coop >= 3 else ['s_waitcnt lgkmcnt(0)'] + self.build_srd(SRD_CIN, S_CIN, 105456)) + (['s_barrier'] if o.coop in (2, 4) else []) + ([Touch('v103')] if o.coop == 5 else []))]
        g0.append(stage3(A3, 70304, 'W3', 'L_st3'))
        g0.append(self.seq(self.stamp0() + self.build_srd(SRD_IDX, S_IDX, 4096 * 104) + ([f's_add_u32 s{S_SAMP}, s{S_SAMP}, {8 * 104}'] if o.xg1 else xidx(XI, t4) + xidx(XJ, t4)) + self.build_srd(SRD_TAB, S_TAB, 100000 * 128)))
        def w2grp(n):
            c = []
            for k, go in enumerate((0, 1024, 1864)):
                c.append((f's_add_u32 m0, s{S_STG9}, {A2 + n * 4 * 3072 + k * 1024}', f's_add_u32 s{S_TW}, s{S_TGT}, {35152 + n * 4 * 2704 + go}',
                          I(f'buffer_load_dwordx4 v{t5 if k == 1 else vStg}, {srd(SRD_CIN)}, s{S_TW} offen lds', tag='W2')))
            return c
        g0.append((self.seq([f's_mul_i32 s{S_STG9}, s{cw}, 3072', f's_mul_i32 s{S_TGT}, s{cw}, 2704', f'v_lshrrev_b32 v{t5}, 5, v0', f'v_mul_u32_u24 v{t5}, 184, v{t5}',
                             f'v_sub_u32 v{t5}, v{vStg}, v{t5}'] + interleave(w2grp(0) + w2grp(1) + w2grp(2), SC2) + [f's_cmp_lg_u32 s{cw}, 0', 's_cbranch_scc1 L_st2']),
                   self.seq(w2grp(3)), self.seq(['L_st2:']), 1))
        xx = xdma(vC16=t3, tag='XBa') + xdma(XJ, 4 * XBSZ, vC16=t3)
        g0.append(stage3(A1, 0, 'W1', 'L_st1', (o.sigat, [WaitTag(vm_tags=['W2' if o.mrg else 'W3']), 's_barrier'] + self.stamp(2) + FX(0)[0])))
        g0.append(self.seq(([] if o.xg1 else xx) + (pfw(PFR) if o.pfw and o.pfs == 1 else []) + FX(0)[1] + self.stamp(13) + [WaitTag(vm_tags=['W1']), 's_barrier']))

        def G0(w):
            r = []
            for x in g0:
                r += x if isinstance(x, list) else x[0] + (x[1] if w < (3 if len(x) == 3 else x[3]) else []) + x[2]
            return r

        def gather(dst, off):
            c = [f'v_add_u32 v{r}, {off}, v{r}' for r in (vGa, vGb)] if off else []
            for s2 in range(2):
                for e in range(0, 8, 2):
                    base = vGb if (s2 == 1 and e >= 2) else vGa
                    h = 16 * s2 + e
                    c.append(f'ds_read2st64_b32 {vr(dst + 8 * s2 + e, 2)}, v{base} offset0:{6 * h} offset1:{6 * h + 6}')
            return c

        def perms(g_, aj):
            return [f'v_perm_b32 v{aj + 8 * jj + r}, v{g_ + 2 * r + 1}, v{g_ + 2 * r}, s{S_U1 + jj}' for jj in range(2) for r in range(8)]

        def sout(t):
            d, c_ = DALL + 16 * t, DALL + 16 * t
            c = [f'v_cvt_pk_f16_f32 v{c_ + r}, v{d + 2 * r}, v{d + 2 * r + 1}' for r in range(8)]
            return c[:4] + [f'ds_write_b128 v{WA[t]}, {vr(c_, 4)}', f'v_xor_b32 v{WA[t]}, 16, v{WA[t]}'] + c[4:] + [f'ds_write_b128 v{WA[t]}, {vr(c_ + 4, 4)}']
        M1, M2 = 28, 28

        def pub1(r, off):
            c = [f'v_max_u32_dpp v{r}, v{r}, v{r} {ctl} row_mask:{rm} bank_mask:0xf' for ctl, rm in DPPS]
            return c + [('s_mov_b32 exec_lo, 0', 's_mov_b32 exec_hi, 0x80000000', f'ds_max_u32 v{vFR}, v{r} offset:{16 + off}', 's_mov_b64 exec, -1')]
        L = ['L_w2:'] + self.stamp(14) + self.probe('bw2') + gather(BALL, 0) + (pfw(PFR) if o.pfw and o.pfs == 2 else []) + (pfx_a() if o.pfx else [])
        cx = []
        if o.xg1:
            cc0 = self.seq(L + [f's_cmp_eq_u32 s{S_GRP}, 0', 's_cbranch_scc1 L_nx1'])
            cx = self.seq(xdma(XI, -4 * XBSZ) + xdma(XK))
            L = ['L_nx1:']
        else:
            cc0 = []
        L += [f's_cmp_ge_u32 s{S_WAVE}, 5', 's_cbranch_scc1 L_u0']
        cc = self.seq(L)
        M1, M2 = 28, 108
        fin2 = lambda: interleave(mxfin(M1), mxfin(M2)) + [tuple(x) if isinstance(x, list) else x for x in pub2(M1, M2, 0)[:7] + [pub2(M1, M2, 0)[7:]]]
        afr = [f'ds_read_b64_tr_b16 {vr(AFR + 4 * s2 + 2 * rd, 2)}, v{vA3} offset:{s2 * 1024 + rd * 256}' for s2 in range(2) for rd in range(2)]
        b1u = self.seq(gather(BALL + 32, 32) + bread(2, 0) + bread(3, 64) + afr + mxop(BALL, 16, M2, True) + perms(BALL, DALL + 64)[:8] + mxop(BALL + 32, 16, M2, False)
                       + mxop(BALL + 16, 16, M1, True) + perms(BALL, DALL + 64)[8:] + interleave(fin2(), perms(BALL + 32, BALL)) + ['s_branch L_u1'])
        L = ['L_u0:'] + bread(2, 0) + bread(3, 64) + bread(4, 384) + bread(5, 384 + 64) + afr + mxop(BALL, 16, M2, True) + mxop(BALL + 16, 32, M1, True)
        L += perms(BALL, DALL + 64)[:4] + interleave(fin2(), perms(BALL, DALL + 64)[4:])
        L += [f'v_add_u32 v{WA[4]}, {192 * 64}, v{WA[2]}', f'v_add_u32 v{WA[5]}, {192 * 64}, v{WA[3]}',
              f's_cmp_lg_u32 s{S_WAVE}, 7', 's_cbranch_scc1 L_u1', 's_mov_b32 exec_lo, 0xfffffff0', 's_mov_b32 exec_hi, 0xfffffff0', f'v_mov_b32 v{WA[5]}, {OOB}', 's_mov_b64 exec, -1']
        b1q = self.seq(L)
        MXR = 108
        vM = 58

        def ureads(j):
            return [f'ds_read_u16_d16_hi v{XR + 2 * j}, v{vXa} offset:{XOFF(2 * j)}',
                    f'ds_read_u16_d16_hi v{XR + 2 * j + 1}, v{vXa} offset:{XOFF(2 * j) + 2}']
        mx3 = lambda j: f'v_max3_f32 v{vM}, |v{XR + 2 * j}|, |v{XR + 2 * j + 1}|, {"0" if j == 0 else f"v{vM}"}'
        L = ['L_u1:'] + self.stamp(1) + [WaitTag(lgkm0=True), 's_barrier'] + self.stamp(7) + self.probe('b1')
        L += [f'ds_read_b128 {vr(MXR, 4)}, v{vFR} offset:16'] + (pfx_b() + pfx_a() if o.pfx and o.pf1 == 1 else [])
        L += [f's_mul_i32 s{S_T0}, s{S_WAVE}, 384', f'v_lshrrev_b32 v{t3}, 2, v0', f'v_mul_u32_u24 v{t3}, 24, v{t3}', f'v_add_u32 v{t3}, s{S_T0}, v{t3}',
              f'v_and_b32 v{t4}, 3, v0', f'v_lshlrev_b32 v{t4}, 3, v{t4}']
        L += [f'ds_read_b64 {vr(UA + 2 * n_, 2)}, v{t3} offset:{TC_ + 8 * n_}' for n_ in range(3)]
        q1 = [f'v_add_u32 v{MXR}, {127 << 23:#x}, v{MXR}', f'v_lshrrev_b32 v{MXR}, 24, v{MXR}', f'v_sub_u32 v{MXR}, 267, v{MXR}', f'v_min_u32 v{MXR}, 167, v{MXR}',
              f'v_readfirstlane_b32 s{S_F1}, v{MXR}', f'v_mul_u32_u24 v{MXR}, 0x800080, v{MXR}']
        sc = [f'v_add_u32 v{MXR + 1}, {127 << 23:#x}, v{MXR + 1}', f'v_lshrrev_b32 v{MXR + 1}, 24, v{MXR + 1}',
              's_mov_b32 vcc_lo, 0x4000000', 's_mov_b32 vcc_hi, 0x4000000', f'v_cndmask_b32 v{vS}, v{MXR + 2}, v{MXR + 3}, vcc', f'v_lshrrev_b32 v{vS}, 23, v{vS}',
              f'v_add_u32 v{vS}, v{vS}, v{MXR + 1}', f'v_sub_u32 v{vS}, 388, v{vS}', f's_movk_i32 s{S_U0}, 167', f'v_med3_i32 v{vS}, v{vS}, 1, s{S_U0}',
              f'v_subrev_u32 v{MXR + 2}, 127, v{vS}', f'v_lshlrev_b32 v{vS}, 23, v{vS}', f'v_cmp_gt_i32 vcc, 0, v{MXR + 2}',
              f'v_mul_u32_u24 v{MXR + 2}, 0x800080, v{MXR + 2}']
        mq = mm2(DALL + 32, PM, BALL + 16) + mm2(DALL + 48, PM, BALL + 24)
        L += interleave(q1, sc[:6]) + [f'v_and_b32 v{PM + r}, v{PM + r}, v{MXR}' for r in range(8)] + interleave([mq[0], mq[2], mq[1], mq[3]], sc[6:]) + ['s_cbranch_vccnz L_sdown']
        L += [f'v_add_u32 v{AFR + r}, v{AFR + r}, v{MXR + 2}' for r in range(8)]
        u1a = self.seq(L)
        L = ['L_scaled:'] + interleave(mm2(DALL, DALL + 64, AFR) + mm2(DALL + 16, DALL + 72, AFR), sout(2) + sout(3))
        L += [f's_cmp_ge_u32 s{S_WAVE}, 5', 's_cbranch_scc1 L_u2']
        u1 = self.seq(L)
        u2u = self.seq(interleave(mm2(DALL + 64, BALL, AFR) + mm2(DALL + 80, BALL + 8, AFR), sout(0)) + ['s_branch L_u3'])
        u2q = self.seq(['L_u2:'] + interleave(mm2(DALL + 64, PM, BALL + 32) + mm2(DALL + 80, PM, BALL + 40), sout(0)))
        L = ['L_u3:'] + xidx() + xidx(112) + (pfx_b() + pfx_a() if o.pfx and o.pf1 == 2 else [])
        L += interleave(sout(1) + sout(4) + sout(5), [x for n_ in range(6) for x in (f'v_xor_b32 v{UA + n_}, v{UA + n_}, v{t4}', f'v_xor_b32 v{UX[n_]}, 32, v{UA + n_}')])
        L += [f'v_readlane_b32 s{S_CG}, v{vS}, 0', f'v_readlane_b32 s{S_IV}, v{vS}, 26',
              f's_sub_u32 s{S_F2}, {254 << 23:#x}, s{S_CG}', f's_sub_u32 s{S_IV}, {254 << 23:#x}, s{S_IV}',
              f's_sub_u32 s{S_F1}, 254, s{S_F1}', f's_lshl_b32 s{S_F1}, s{S_F1}, 23',
              f's_mov_b32 s{S_MASK}, 0x88888888', f's_mov_b32 s{S_MASK + 1}, 0x88888888']

        def sigma(s_):
            t = (s_ - 1) // 2
            first = (s_ - 1) % 2 == 0
            return (0 if first else 1) if t % 2 == 0 else (1 if first else 0)
        for s_ in range(1, 11):
            assert ((s_ - 1) // 2) * 1024 + sigma(s_) * 512 - (s_ // 4) * 2048 == (-1024, 0, 512, 1536)[s_ % 4]

        def p2read(n_):
            b = BALL + 16 * n_
            c = []
            UAl = list(range(UA, UA + 6))
            for x, (ar, off) in enumerate(((UAl, 0), (UX, 0), (UAl, SSZ), (UX, SSZ))):
                for y in range(2):
                    c.append(f'ds_read_b64_tr_b16 {vr(b + 4 * x + 2 * y, 2)}, v{ar[2 * n_ + y]} offset:{off}')
            return c

        def p2a(n_):
            b = BALL + 16 * n_
            c = []
            for x in range(4):
                c += [f'v_pk_add_f16 v{b + 4 * x + y}, v{b + 4 * x + y}, v{b + 4 * x + 2 + y}' for y in range(2)]
                if x in (0, 2):
                    c.append(f'ds_write_b64 v{vFw}, {vr(b + 4 * x, 2)} offset:{FR + n_ * 4 * 3072 + x * 1024}')
            c += [f'v_cndmask_b32 v{b + 4 + y}, v{b + 4 + y}, v{b + 12 + y}, s[{S_MASK}:{S_MASK + 1}]' for y in range(2)]
            c.append(f'ds_write_b64 v{vFw}, {vr(b + 4, 2)} offset:{FR + n_ * 4 * 3072 + 1024}')
            return c

        def p2s(n_):
            b = BALL + 16 * n_ + 12
            off = FRS + max(n_ * 2048 - 1024, 0)
            return ([f'v_subrev_u32 v{vT3}, 1024, v{vT3}'] if n_ == 0 else []) + [
                f'ds_write_b32 v{vT3}, v{b} offset:{off}', f'ds_write_b32 v{vT3}, v{b + 1} offset:{off + 16}']
        ec = []
        if o.econv:
            L += [f's_cmp_lg_u32 s{S_GRP}, 0', 's_cbranch_scc1 L_noec']
            u3 = self.seq(L)
            ec = self.seq([WaitTag(vm_tags=['XBa'])] + [x for j in range(13) for x in ureads(j)])
            L = ['L_noec:']
        else:
            u3 = []
        L += [WaitTag(vm_tags=['XB'] if o.xg1 else [], lgkm0=True), 's_barrier'] + self.stamp(10)
        L += p2read(0) + p2read(1) + [f's_cmp_ge_u32 s{S_WAVE}, 6', 's_cbranch_scc1 L_lin']
        b2 = self.seq(L)
        p2c = self.seq(p2read(2) + p2a(2) + p2s(2) + ['s_branch L_p2'])
        LB = BALL + 32
        ZR4 = t5
        L = ['L_lin:', f's_and_b32 s{S_U0}, s{S_WAVE}, 1', f's_cselect_b64 vcc, -1, 0', f's_lshl_b32 s{S_U1}, s{S_U0}, 5', f'v_mov_b32 v{ZR4}, 0',
             f'v_xor_b32 v{vV2r}, s{S_U1}, v{vV2r}', f'v_xor_b32 v{vV2q}, s{S_U1}, v{vV2q}', f'v_cndmask_b32 v{vWo}, v{vWo}, v{vWo + 1}, vcc',
             f'ds_read_b64_tr_b16 {vr(LB, 2)}, v{vV2r}', f'ds_read_b64_tr_b16 {vr(LB + 2, 2)}, v{vV2q}',
             f'ds_read_u16_d16_hi v{ZR4}, v{vWo}',
             f's_lshl_b32 s{S_U0}, s{S_U0}, 10', f'v_add_u32 v{t3}, s{S_U0}, v{vStg}']
        for r in range(4):
            a_, b_ = LB + 4 + 2 * r, LB + 5 + 2 * r
            L += [f'v_cvt_f32_f16 v{a_}, v{LB + r}', f'v_cvt_f32_f16_sdwa v{b_}, v{LB + r} dst_sel:DWORD dst_unused:UNUSED_PAD src0_sel:WORD_1',
                  f'v_mul_f32 v{a_}, s{S_IV}, v{a_}', f'v_mul_f32 v{b_}, s{S_IV}, v{b_}']
            if r == 3:
                L += ['s_mov_b32 exec_lo, 0', 's_mov_b32 exec_hi, 0xffff', f'v_mov_b32 v{a_}, v{ZR4}', 's_mov_b64 exec, -1']
            L += [f'v_mul_f32 v{a_}, s{S_CG}, v{a_}', f'v_mul_f32 v{b_}, s{S_CG}, v{b_}', f'v_cvt_pk_bf16_f32 v{LB + r}, v{a_}, v{b_}']
        L += [f'ds_write_b128 v{t3}, {vr(LB, 4)} offset:{FRL}']
        lin = self.seq(L)
        p2 = self.seq(['L_p2:'] + p2a(1) + p2s(1) + p2a(0) + [f's_cmp_lt_u32 s{S_WAVE}, 2', 's_cbranch_scc1 L_p2d'])
        p2e = self.seq(p2s(0) + ['s_branch L_built'])
        p2d = self.seq(['L_p2d:', f'ds_write_b64 v{vT3d}, {vr(BALL + 12, 2)} offset:{FRS + 5 * 1024}'])

        L = ['L_sdown:']
        for r in range(8):
            L += [f'v_lshlrev_b32 v{MXR}, 16, v{AFR + r}', f'v_and_b32 v{MXR + 1}, 0xffff0000, v{AFR + r}',
                  f'v_mul_f32 v{MXR}, v{MXR}, v{vS}', f'v_mul_f32 v{MXR + 1}, v{MXR + 1}, v{vS}', f'v_cvt_pk_bf16_f32 v{AFR + r}, v{MXR}, v{MXR + 1}']
        self.sdown = L + ['s_branch L_scaled']

        def PRE(w, sd=None):
            grp = w >> 2
            return (c0 + (g1s + (g1t if w < 6 else []) if grp else []) + csc + (v3p + v3 if grp else G0(w)) + cc0 + (cx if grp else []) + cc + (b1q if w >= 5 else b1u)
                    + (u1a if sd is None else u1a[:-8] + sd) + u1 + (u2q if w >= 5 else u2u) + u3 + ([] if grp else ec) + b2
                    + (lin if w >= 6 else p2c) + p2 + (p2d if w < 2 else p2e))
        L = ['L_built:'] + self.stamp(11)
        L += [f's_mov_b32 s{S_CG}, s{S_F1}', f's_mov_b32 s{S_IV}, s{S_F2}', f's_mov_b32 s{S_LO}, {f32hex(0.125)}', f's_mov_b32 s{S_HI}, {f32hex(0.0 if o.slow else 128.0)}']
        CV, vM, S_XD = 28, 58, 81

        def ureads(j):
            return [f'ds_read_u16_d16_hi v{XR + 2 * j}, v{vXa} offset:{XOFF(2 * j)}',
                    f'ds_read_u16_d16_hi v{XR + 2 * j + 1}, v{vXa} offset:{XOFF(2 * j) + 2}']
        mx3 = lambda j: f'v_max3_f32 v{vM}, |v{XR + 2 * j}|, |v{XR + 2 * j + 1}|, {"0" if j == 0 else f"v{vM}"}'
        cvt = lambda j: f'v_cvt_pk_f16_f32 v{CV + j % 4}, v{XR + 2 * j}, v{XR + 2 * j + 1}'
        iwr = lambda j: f'ds_write_b32 v{vIw}, v{CV + j % 4} offset:{j * IMGP}'
        S_SKIP = 51
        pfr = lambda: (pfx_b() + pfx_a() if o.pfx else []) + (pfw() if o.pfw else [])
        conv = lambda tag='XB': ([WaitTag(vm_tags=[tag])] + [x for j in range(13) for x in ureads(j)]
                        + [x for j in range(13) for x in (mx3(j), f'v_cvt_pk_f16_f32 v{D + j}, v{XR + 2 * j}, v{XR + 2 * j + 1}')])
        L += [f's_mov_b32 s{S_SKIP}, 1', f's_mul_i32 s{S_U0}, s{S_WAVE}, 1536', f's_add_u32 s{S_U0}, s{S_U0}, {PART}',
              f's_cmp_lg_u32 s{S_GRP}, 0', 's_cbranch_scc1 L_g1c']
        c2a = self.seq(L)
        c2g0 = self.seq([f's_sub_u32 s{S_SAMP}, s{S_SAMP}, {4 * 104}', Touch('v[112:115]')] + (conv('XBa')[27:] if o.econv else conv('XBa')) + [WaitTag(lgkm0=True), 's_barrier'] + self.probe('b4a') + self.stamp(8) + ['s_branch L_cin_go'])
        DX = XB2 - XB - 4 * XBSZ
        L = ['L_g1c:', WaitTag(vm_tags=['XB'], lgkm0=True), 's_barrier'] + self.stamp(8) + self.probe('b4')
        L += [f's_add_u32 s{S_XM0}, s{S_XM0}, {DX}'] + xdma(tag='XB0') + xdma(112, 4 * XBSZ) + xidx() + pfr() + [f'v_add_u32 v{r}, {DX}, v{r}' for r in (vXa, vLin0, vLin1)]
        L += [f'ds_write_b32 v{vXa}, v{vXi1} offset:{XOFF(26)}', f'ds_write_b32 v{vXa}, v{vXi1} offset:{XOFF(26) + 4 * XBSZ}']
        c2g1 = self.seq(L)
        c2b = []
        c2g1d = self.seq(['L_g1d:'] + conv('XB0'))
        c2c = self.seq(['L_cin_go:'] + [f'ds_write_b32 v{vIw}, v{D + j} offset:{j * IMGP}' for j in range(13)]
                       + [f's_mov_b32 s{S_XD}, {4 * XBSZ}', f's_add_u32 s{S_XM0}, s{S_XM0}, {4 * XBSZ}',
                          f'v_lshlrev_b32 v{vXi1}, 2, v0', f'v_add_u32 v{vXi1}, s{S_U0}, v{vXi1}'])

        NWF = 5
        PF = o.cpfd
        zslot = lambda s_: 1 if s_ % 2 == 0 else (0 if ((s_ - 1) // 2) % 2 == 0 else 2)
        zr = lambda T, sl: Z + 12 * T + 4 * sl
        preg = lambda T, r: P + 14 * T + (r if r < 14 else r - 14)
        acc = lambda T, tile: D + 16 * T + 4 * tile
        jobs = [('l', 0, 0), ('l', 0, 1)]
        for s_ in range(11):
            jobs += [('d', s_, 2), ('d', s_, 0), ('d', s_, 1)]
            if s_ == 0:
                jobs.append(('d', 0, 3))
            elif s_ % 2 == 0:
                jobs.append(('s', s_, 3))
        NJ = len(jobs)
        assert NJ == 41

        def wread(n):
            kind, s_, tile = jobs[n]
            off = FRL + tile * 1024 if kind == 'l' else (FR + s_ * 3072 + tile * 1024 if tile < 3 else FRS + (5 if s_ == 0 else (s_ - 1) // 2) * 1024)
            return f'ds_read_b128 {vr(WF + 4 * (n % NWF), 4)}, v{vFa} offset:{off}'

        def mfma(n, T):
            kind, s_, tile = jobs[n]
            a = vr(WF + 4 * (n % NWF), 4)
            d = vr(acc(T, tile), 4)
            if kind == 'l':
                return f'v_mfma_f32_16x16x32_bf16 {d}, {a}, {vr(zr(T, 2), 4)}, 0'
            if kind == 's':
                lo = 0 if ((s_ - 1) // 2) % 2 == 0 else 1
                return f'v_smfmac_f32_16x16x64_f16 {d}, {a}, {vr(zr(T, lo), 8)}, v{vIDX}'
            return f'v_mfma_f32_16x16x32_f16 {d}, {a}, {vr(zr(T, zslot(s_)), 4)}, {"0" if (s_ == 0 and tile >= 2) else d}'

        def pk(T, n):
            a, b, s0, s1 = cin16.INS[n]
            return (f'v_pk_mul_f16 v{zr(T, zslot(n // 4)) + n % 4}, v{preg(T, a)}, v{preg(T, b)} '
                    f'op_sel:[{s0[0]},{s0[1]}] op_sel_hi:[{s1[0]},{s1[1]}]')

        def trp(T, rp):
            return f'ds_read_b64_tr_b16 {vr(preg(T, 2 * rp), 2)}, v{vTR + rp} offset:{32 * T}'

        LASTA = max(n for n, x in enumerate(cin16.INS) if x[0] < 2)
        S_A1, S_A2, S_PINC = 49, 50, 48
        fin = []
        for T in range(4):
            fin += [(acc(T, 0) + r, acc(T, 2) + r) for r in range(4)] + [(acc(T, 1), acc(T, 1) + 3)]
        for T in range(4):
            fin += [(acc(T, 1) + 1 + (r >> 1), acc(T, 3) + r) for r in range(4)]

        def final(f1, f2):
            c = []
            for k, (a, b) in enumerate(fin):
                d = Z + k % 4
                c.append(f'v_mul_f32 v{d}, v{a}, v{b}' if k < 4 else f'v_fmac_f32 v{d}, v{a}, v{b}')
            c += [f'v_add_f32 v{Z}, v{Z}, v{Z + 1}', f'v_add_f32 v{Z + 2}, v{Z + 2}, v{Z + 3}', f'v_add_f32 v{Z}, v{Z}, v{Z + 2}']
            c += [f'v_mul_f32 v{Z}, s{x}, v{Z}' for x in (f1, f2)]
            return c + [f'ds_write_b32 v{vXi1}, v{Z}']
        code = ['L_cin_loop:', f'v_cmp_le_f32 s[{S_CM}:{S_CM + 1}], s{S_HI}, v{vM}', f'v_cmp_le_f32 vcc, s{S_LO}, v{vM}',
                f's_mov_b32 s{S_A1}, s{S_F1}', f's_mov_b32 s{S_A2}, s{S_F2}',
                f's_cmp_lg_u64 s[{S_CM}:{S_CM + 1}], 0', 's_cbranch_scc1 L_cslow', 's_cbranch_vccz L_cslow']
        cA = self.seq(code)
        RD = []
        for rp in (0, 3, 4):
            RD += [trp(T, rp) for T in range(4)]
        for T in range(4):
            RD += [f'ds_read_b64_tr_b16 {vr(zr(T, 2), 2)}, v{vLin0} offset:{32 * T}', f'ds_read_b64_tr_b16 {vr(zr(T, 2) + 2, 2)}, v{vLin1} offset:{32 * T}']
        RD += [wread(k) for k in range(PF)]
        for rp in (5, 6, 1, 2):
            RD += [trp(T, rp) for T in range(4)]
        pfr = lambda: (pfx_b() + pfx_a() if o.pfx else []) + (pfw() if o.pfw else [])
        vm = xdma() + xidx() + pfr()
        VA = final(S_A1, S_A2) + [f'v_add_u32 v{vXi1}, 256, v{vXi1}']
        PK0 = [pk(T, n) for T in range(4) for n in range(4)]
        TG = [f'v_add_u32 v{r}, s{S_XD}, v{r}' for r in (vXa, vLin0, vLin1)] + [f's_sub_u32 s{S_XM0}, s{S_XM0}, s{S_XD}', f's_sub_u32 s{S_XD}, 0, s{S_XD}', f's_mov_b32 s{S_SKIP}, 0']
        cB0 = self.seq(['L_cconv:', f's_cmp_lg_u32 s{S_SKIP}, 0', 's_cbranch_scc1 L_first'])
        cVM = self.seq(interleave(RD, VA) + PK0 + vm)
        self.first = ['L_first:'] + RD[:28] + interleave(RD[28:], PK0) + ['s_branch L_novm']
        code = ['L_novm:'] + TG
        LA = 1
        def lstamp(base):
            if not (o.stamps and o.cst):
                return []
            return [f's_memtime s[{S_ST}:{S_ST + 1}]', f's_memrealtime s[{S_ST + 2}:{S_ST + 3}]', f's_sub_u32 s{S_C0}, {base + 6}, s{S_LOOP}', 's_waitcnt lgkmcnt(0)',
                    f's_mov_b32 m0, s{S_C0}', f'v_writelane_b32 v252, s{S_ST}, m0', f'v_writelane_b32 v253, s{S_ST + 2}, m0']
        code += lstamp(19)
        code += [Touch(vr(WF, 4)), Touch(vr(zr(3, 2), 4))] + ([f's_cmp_eq_u32 s{S_GRP}, 0', 's_cbranch_scc1 L_np1', 's_setprio 1', 'L_np1:'] if o.gprio else ['s_setprio 1'])
        MS = [(n, T) for n in range(NJ) for T in range(4)]
        first_use, last_use = {}, {}
        for mi, (n, T) in enumerate(MS):
            kind, s_, tile = jobs[n]
            if kind == 'l':
                last_use[(T, 'lin')] = mi
                continue
            for su in ([s_] if kind == 'd' else [s_ - 1, s_]):
                first_use.setdefault((T, su), mi)
                last_use[(T, su)] = mi
        V = []
        for s_ in range(LA, 11):
            prev = [p_ for p_ in range(s_) if zslot(p_) == zslot(s_)]
            for T in range(4):
                rdy = last_use[(T, prev[-1])] + o.war if prev else (last_use[(T, 'lin')] if zslot(s_) == 2 else -1)
                for n in range(4 * s_, 4 * s_ + 4):
                    V.append((pk(T, n), rdy, first_use[(T, s_)], n, T))
        forced = 0
        late = []
        XL_ = [x for j in range(13) for x in ureads(j)]
        xrd = {}
        CVR = [preg(T, r) for r in (2, 3, 6, 7) for T in range(4)]
        cvrdy = max(n for n, x in enumerate(cin16.INS) if set(x[:2]) & {2, 3, 6, 7})
        cvt2 = lambda j: f'v_cvt_pk_f16_f32 v{CVR[j]}, v{XR + 2 * j}, v{XR + 2 * j + 1}'
        iwr2 = lambda j: f'ds_write_b32 v{vIw}, v{CVR[j]} offset:{j * IMGP}'
        nm = nc = nw = 0
        V.sort(key=lambda x: x[2])
        prev2 = 0
        for mi, (n, T) in enumerate(MS):
            while V and V[0][2] <= mi:
                assert V[0][1] < mi
                code.append(V.pop(0)[0]); forced += 1
            code.append(mfma(n, T))
            t = 4
            if o.cbar and mi == len(MS) - 1 - o.cbov:
                code += ['s_setprio 3', 's_barrier']; t += 8
            if not o.cbar and mi == 4 * o.hiat - 2:
                code.append('s_setprio 2'); t += 4
            if T == 3 and n + 1 < NJ:
                code.append(Touch(vr(WF + 4 * ((n + 1) % NWF), 4))); t += 4
            if T == 0 and n + PF < NJ:
                code.append(wread(n + PF)); t += 8
            elif T in (1, 2) and late:
                code.append(late.pop(0)); t += 8
            elif T in (1, 2) and mi >= o.x0 and XL_:
                if len(XL_) == 26:
                    code.append(WaitTag(vm_tags=['XB']))
                code.append(XL_.pop(0)); t += 8
                if len(XL_) % 2 == 0:
                    xrd[12 - len(XL_) // 2] = mi
            elif not V and nw < nc and t == 4:
                code.append(iwr2(nw)); nw += 1; t += 12
            t = max(t, 12 if jobs[n][0] == 's' else 8)
            k = 0
            while t < 16:
                urgent = any(V[q_][2] - 1 - mi < q_ + 1 for q_ in range(min(24, len(V))))
                if k == 1 and prev2 >= o.max2 and not urgent:
                    break
                cand = [x for x in V[:32] if x[1] <= mi]
                extra = None
                if nm < 13 and nm in xrd and xrd[nm] + o.xlat <= mi:
                    extra = 'm'
                elif nc < nm and all(x[3] > cvrdy for x in V):
                    extra = 'c'
                if cand and (k == 0 or urgent or not extra) and (k == 0 or urgent or o.eager):
                    x = cand[0]
                    V.remove(x)
                    code.append(x[0])
                    if x[3] <= LASTA and all(y[3] > LASTA for y in V if y[4] == x[4]):
                        late.append(trp(x[4], 7))
                elif extra == 'm':
                    code.append(mx3(nm)); nm += 1
                elif extra == 'c':
                    code.append(cvt2(nc)); nc += 1
                else:
                    break
                t += 4; k += 1
            prev2 = prev2 + 1 if k == 2 else 0
        assert not late and not XL_ and not V
        print('left', 13 - nm, 13 - nc, 13 - nw)
        tail = [mx3(j) for j in range(nm, 13)] + [cvt2(j) for j in range(nc, 13)] + [iwr2(j) for j in range(nw, 13)]
        print('forced VALU', forced)
        code += lstamp(25)
        code.append(f's_setprio {o.p0}')
        code += [f's_sub_u32 s{S_LOOP}, s{S_LOOP}, 1', f's_cmp_eq_u32 s{S_LOOP}, 0', 's_cbranch_scc1 L_cin_done'] + tail
        ntail = len(tail) + 1
        def keep(x):
            t_ = x.text if isinstance(x, I) else x
            if isinstance(t_, tuple):
                return True
            if 'nopk' in o.dbg and t_.startswith('v_pk_mul_f16'):
                return False
            if 'nowf' in o.dbg and t_.startswith('ds_read_b128'):
                return False
            if 'nosm' in o.dbg and t_.startswith('v_smfmac'):
                return False
            return True
        code = [x for x in code if keep(x)]
        if 'bf' in o.dbg:
            code = [x.replace('x32_f16', 'x32_bf16').replace('x64_f16', 'x64_bf16') if isinstance(x, str) else x for x in code]
        cB = self.seq(code + ['s_branch L_cin_loop'])
        mark0 = len(self.P.static)
        bl = []
        if o.burn:
            bl = [f's_movk_i32 s{S_LOOP}, {o.burn // 2}', 'L_burn2:'] + [f'v_mfma_f32_16x16x32_f16 {vr(P + 4 * (k % 2), 4)}, {vr(WF + 4 * (k % 4), 4)}, {vr(Z + 4 * (k // 4), 4)}, 0' for k in range(32)]
            bl += [f's_sub_u32 s{S_LOOP}, s{S_LOOP}, 1', f's_cmp_lg_u32 s{S_LOOP}, 0', 's_cbranch_scc1 L_burn2']
        L = ['L_cin_done:', f's_mul_i32 s{S_U0}, s{S_WAVE}, 1536', f's_add_u32 s{S_U0}, s{S_U0}, {PART}',
             f'v_lshlrev_b32 v{Z + 4}, 5, v0', f'v_add_u32 v{Z + 4}, s{S_U0}, v{Z + 4}',
             f'ds_read_b128 {vr(P, 4)}, v{Z + 4}', f'ds_read_b128 {vr(P + 4, 4)}, v{Z + 4} offset:16'] + bl + final(S_F1, S_F2)[:-1]
        E = [f'v_subrev_u32 v{Z + 6}, s{S_U0}, v{vXi1}', f'v_lshrrev_b32 v{Z + 6}, 8, v{Z + 6}', f'v_lshrrev_b32 v{Z + 5}, 3, v0', f'v_cmp_gt_u32 vcc, v{Z + 6}, v{Z + 5}',
             f'v_min_u32 v{Z + 5}, v{Z + 5}, v{Z + 6}', f'v_lshlrev_b32 v{Z + 5}, 4, v{Z + 5}', f'v_add_u32 v{Z + 5}, s{S_RC}, v{Z + 5}',
             ] + [f'v_add_f32 v{P + a_}, v{P + a_}, v{P + b_}' for a_, b_ in ((0, 1), (2, 3), (4, 5), (6, 7), (0, 2), (4, 6), (0, 4))]
        E += [f'v_add_f32_dpp v{P}, v{P}, v{P} {ctl} row_mask:0xf bank_mask:0xf' for ctl in ('quad_perm:[1,0,3,2]', 'quad_perm:[2,3,0,1]', 'row_half_mirror')]
        L += interleave([f'v_add_f32_dpp v{Z}, v{Z}, v{Z} {ctl} row_mask:{rm} bank_mask:0xf' for ctl, rm in DPPS], E)
        L += [f'v_cndmask_b32 v{P}, v{Z}, v{P}, vcc', 's_bitset1_b32 vcc_hi, 31', 's_mov_b64 exec, vcc', f'ds_write_b32 v{Z + 5}, v{P}', 's_mov_b64 exec, -1']
        L += self.stamp(9) + self.stamp_flush() + self.probe('cend') + [f's_cmp_eq_u32 s{S_WAVE}, 0', 's_cbranch_scc1 L_cpub', 's_waitcnt lgkmcnt(0)', 's_barrier', 's_endpgm',
              'L_cpub:', f's_load_dword s{S_BOUT}, s[{S_BO}:{S_BO + 1}], 0'] + self.pubsrd() + [
              'v_lshlrev_b32 v6, 2, v0', f'v_add_u32 v2, {RC}, v6', 'v_add_u32 v4, 1024, v6',
              f's_mul_i32 s{S_T1}, s{S_MB}, 192', f's_add_u32 s{S_T1}, s{S_T1}, {13 * WSP}',
              'v_mov_b32 v13, -1', 's_mov_b32 exec_hi, 0xffff', f'buffer_store_dword v13, v6, {srd(SRD_WS)}, s{S_T1} offen sc1', 's_mov_b64 exec, 1',
              f'buffer_load_dword v250, v6, {srd(SRD_OUT)}, 0 offen', f'buffer_load_dword v251, v6, {srd(SRD_DBG)}, 0 offen offset:240 sc1', 's_mov_b64 exec, -1',
              f's_mul_i32 s{S_T0}, s{S_MB}, 3', f's_mul_i32 s{S_T2}, s{S_T0}, 3277', f's_lshr_b32 s{S_T2}, s{S_T2}, 16',
              f'v_add_u32 v7, s{S_T2}, v0', f's_mul_i32 s{S_T2}, s{S_T2}, 20', f's_add_u32 s{S_T2}, s{S_T2}, 20',
              f's_sub_u32 s{S_T2}, s{S_T2}, s{S_T0}', f's_min_u32 s{S_T2}, s{S_T2}, 3', f's_sub_u32 s{S_T0}, 3, s{S_T2}',
              f'v_mov_b32 v5, s{S_T0}', f'v_writelane_b32 v5, s{S_T2}, 0',
              f's_cmp_eq_u32 s{S_T0}, 0', f's_cselect_b32 s{S_T0}, 1, 3',
              'v_lshlrev_b32 v3, 4, v0', 's_mov_b32 exec_hi, 0xffff', 's_waitcnt vmcnt(0) lgkmcnt(0)', 's_barrier'] + self.probe('cend2') + ['ds_read_b32 v64, v2']
        L += (self.stamp(16) if o.diag else [])
        L += ['v_min_u32 v64, -2, v64'] if o.sent else []
        L += [f'buffer_store_dword v64, v6, {srd(SRD_WS)}, s{S_T1} offen sc1', f's_mov_b32 exec_lo, s{S_T0}', 's_mov_b32 exec_hi, 0', 's_branch L_pub']
        fin_ = self.seq(L)
        blk = self.P.static[mark0:]
        del self.P.static[mark0:]
        at = self.P.static.index(self.pub[-1]) + 1
        self.P.static[at:at] = blk + self.ldblk
        L = ['L_cslow:']
        for (ctl, rm) in (('row_shr:1', '0xf'), ('row_shr:2', '0xf'), ('row_shr:4', '0xf'), ('row_shr:8', '0xf'),
                          ('row_bcast:15', '0xa'), ('row_bcast:31', '0xc')):
            L.append(f'v_max_f32_dpp v{vM}, v{vM}, v{vM} {ctl} row_mask:{rm} bank_mask:0xf')
        L += [f'v_readlane_b32 s{S_U0}, v{vM}, 63', f's_mov_b32 s{S_HI}, 0',
              f's_lshr_b32 s{S_U0}, s{S_U0}, 23', f's_min_u32 s{S_U0}, s{S_U0}, {127 + 55}',
              f's_lshr_b32 s{S_U1}, s{S_IV}, 23', f's_sub_u32 s{S_U1}, s{S_U1}, 47', f's_lshr_b32 s{S_U1}, s{S_U1}, 1', f's_min_u32 s{S_U1}, s{S_U1}, 59',
              f's_sub_u32 s{S_U1}, 131, s{S_U1}', f's_max_u32 s{S_U0}, s{S_U0}, s{S_U1}',
              f's_sub_u32 s{S_U1}, {127 + 4 + 127}, s{S_U0}',
              f's_lshl_b32 s{S_U2}, s{S_U1}, 1', f's_sub_u32 s{S_U2}, s{S_U2}, 127',
              f's_sub_u32 s{S_G}, 254, s{S_U2}', f's_lshl_b32 s{S_G}, s{S_G}, 23',
              f'v_mov_b32 v{P}, s{S_G}', f'v_mul_f32 v{P + 1}, s{S_CG}, v{P}', f'v_mul_f32 v{P}, s{S_IV}, v{P}',
              f'v_readfirstlane_b32 s{S_F1}, v{P + 1}', f'v_readfirstlane_b32 s{S_F2}, v{P}',
              f's_lshl_b32 s{S_U1}, s{S_U1}, 23', f's_lshl_b32 s{S_U2}, s{S_U2}, 23']
        TS = P
        for j in range(13):
            L += [f'v_mul_f32 v{TS}, s{S_U1}, v{XR + 2 * j}', f'v_mul_f32 v{TS + 1}, s{S_U1}, v{XR + 2 * j + 1}',
                  f'v_mul_f32 v{TS + 2}, s{S_U2}, v{XR + 2 * j}', f'v_mul_f32 v{TS + 3}, s{S_U2}, v{XR + 2 * j + 1}',
                  f'v_cvt_pk_f16_f32 v{TS + 20 + j}, v{TS}, v{TS + 1}', f'v_cvt_pk_bf16_f32 v{TS + 4 + j}, v{TS + 2}, v{TS + 3}',
                  f'ds_write_b32 v{vIw}, v{TS + 20 + j} offset:{j * IMGP}', f'ds_write_b32 v{vXa}, v{TS + 4 + j} offset:{XOFF(2 * j)}']
        L += [f'v_mov_b32 v{TS}, s{S_U2}', f'v_cvt_pk_bf16_f32 v{TS}, v{TS}, v{TS}',
              's_mov_b32 exec_hi, 0', f'ds_write_b32 v{vXa}, v{TS} offset:{XOFF(26)}', 's_mov_b32 exec_hi, -1',
              's_waitcnt lgkmcnt(0)', 's_branch L_cconv']
        slow = self.seq(L)
        sdown = self.seq(self.sdown)
        cF = self.seq(self.first)
        traces = []
        for w in range(8):
            grp = w >> 2
            c2 = c2a + (c2g1 + (c2b if w == 4 else []) + c2g1d if grp else c2g0) + c2c
            it = lambda sl, first: cA + (slow if sl else []) + cB0 + (cF if first else cVM) + cB
            traces.append(PRE(w) + c2 + it(0, 1) + it(0, 0) + it(0, 0)[:-ntail] + fin_ + self.pub)
            if w in (0, 4):
                traces.append(PRE(w, sdown) + c2 + it(1, 1) + it(1, 0)[:-ntail] + fin_ + self.pub)
        return traces

    def build(self):
        pro = self.prologue()
        d = self.dnn()
        cs = self.cin()
        self.seq(['L_end:', 's_endpgm'])
        traces = [pro + c for c in d + cs] + self.extra_traces
        for t in traces:
            resolve_waits(t)
        for _ in range(2):
            for t in traces:
                resolve_hazards(t)
        hdr = open(os.path.join(os.path.dirname(os.path.abspath(__file__)), 'header.txt')).read()
        txt = hdr + f'; @launch grid=(256,1,1) block=(512,1,1) lds={LDS_TOTAL}\n'
        txt += f'''.amdgcn_target "amdgcn-amd-amdhsa--gfx950"
{DOC}.text
.globl {KNAME}
.p2align 8
.type {KNAME},@function
{KNAME}:
'''
        body_ = self.P.emit()
        if self.opt.align:
            for lab in ('L_dnn_loop0:', 'L_dnn_loop1:', 'L_cin_loop:', 'L_epi:'):
                pad = '  s_nop 0\n' if self.opt.align > 100 else ''
                body_ = body_.replace(lab + '\n', f'.p2align {self.opt.align % 100}\n{pad}{lab}\n')
        if self.opt.cwalk:
            lines = body_.split('\n')
            i0, i1 = lines.index('L_w2:'), lines.index('L_cslow:')
            out, k, cnt = lines[:i0], 0, 0
            seg = lines[i0:i1]
            prot = 0
            for n_, l in enumerate(seg):
                out.append(l)
                t = l.strip()
                cnt += 1
                inmain = 'L_novm:' in seg[:n_ + 1]
                nxt = seg[n_ + 1].strip() if n_ + 1 < len(seg) else ''
                ok = t.endswith(':') or (cnt >= self.opt.cwalk and ('mfma' in t and nxt.startswith('v_pk') if inmain else t.startswith(('ds_', 'v_perm', 'v_cvt_pk'))))
                if ok and t not in ('L_cin_loop:', 'L_cconv:', 'L_scaled:'):
                    out += [f'L_wp{k}:', f'  s_cbranch_execz L_wp{k + 1}']
                    k += 1; cnt = 0
            j = lines.index('L_first:')
            rest = lines[i1:j + 1] + [f'L_wp{k}:', '  s_cbranch_execz L_wret'] + lines[j + 1:]
            body_ = '\n'.join(out + rest)
            print('walk pads', k + 1)
            self.npads = k + 1
            for q_ in range(4):
                body_ = body_.replace(f'L_WENTRY{q_}', f'L_wp{q_ * (k + 1) // 4}')
        if self.opt.fix:
            body_ = fixalign.fix(body_ + 'L_tables:\n', self.opt.fix)[:-len('L_tables:\n')]
        txt += body_
        tb = self.tables()
        assert len(tb) == 16 * 256
        txt += '.p2align 8\nL_tables:\n' + ''.join('.long ' + ', '.join(f'{x:#x}' for x in tb[i:i + 8]) + '\n' for i in range(0, len(tb), 8))
        txt += f'''.section .rodata,"a"
.p2align 6
.amdhsa_kernel {KNAME}
  .amdhsa_next_free_vgpr 256
  .amdhsa_next_free_sgpr 102
  .amdhsa_accum_offset 256
  .amdhsa_group_segment_fixed_size 0
  .amdhsa_kernarg_size 88
  .amdhsa_user_sgpr_count 2
  .amdhsa_user_sgpr_kernarg_segment_ptr 1
  .amdhsa_system_sgpr_workgroup_id_x 1
  .amdhsa_float_denorm_mode_32 {self.opt.denorm}
.end_amdhsa_kernel
'''
        return txt


def main():
    ap = argparse.ArgumentParser()
    ap.add_argument('-o', default='standalone__deep_cross_xdeepfm__recsys.s')
    ap.add_argument('--stamps', action='store_true')
    ap.add_argument('--nodma', action='store_true')
    ap.add_argument('--cpf', type=int, default=1)
    ap.add_argument('--coop', type=int, default=1)
    ap.add_argument('--coopw', type=int, default=2)
    ap.add_argument('--tbpos', type=int, default=0)
    ap.add_argument('--dbar3', type=int, default=1)
    ap.add_argument('--tlb', type=int, default=0)
    ap.add_argument('--tlb2', type=int, default=1)
    ap.add_argument('--itst', type=int, default=0)
    ap.add_argument('--diag', type=int, default=0)
    ap.add_argument('--dbg', default='')
    ap.add_argument('--lead3', type=int, default=1)
    ap.add_argument('--morder', type=int, default=0)
    ap.add_argument('--etlb', type=int, default=0)
    ap.add_argument('--lateb', type=int, default=0)
    ap.add_argument('--wfl', default='')
    ap.add_argument('--xfl', default='')
    ap.add_argument('--tag', type=int, default=0)
    ap.add_argument('--idxfirst', type=int, default=1)
    ap.add_argument('--bpos', type=int, default=2)
    ap.add_argument('--sigat', type=int, default=4)
    ap.add_argument('--epx', type=int, default=1)
    ap.add_argument('--denorm', type=int, default=3)
    ap.add_argument('--mprio', type=int, default=0)
    ap.add_argument('--swap', type=int, default=0)
    ap.add_argument('--bov', type=int, default=1)
    ap.add_argument('--rfirst', type=int, default=0)
    ap.add_argument('--g1x', type=int, default=0)
    ap.add_argument('--ldsred', type=int, default=0)
    ap.add_argument('--csnake', type=int, default=0)
    ap.add_argument('--cswap', type=int, default=0)
    ap.add_argument('--align', type=int, default=0)
    ap.add_argument('--c2', type=int, default=0)
    ap.add_argument('--d1', type=int, default=0)
    ap.add_argument('--cstr', type=int, default=3)
    ap.add_argument('--bearly', type=int, default=1)
    ap.add_argument('--w2late', type=int, default=1)
    ap.add_argument('--aov', type=int, default=5)
    ap.add_argument('--upos', type=int, default=1)
    ap.add_argument('--calt', type=int, default=1)
    ap.add_argument('--pfpos', type=int, default=1)
    ap.add_argument('--wlate', type=int, default=0)
    ap.add_argument('--dbar2', type=int, default=0)
    ap.add_argument('--dbar', type=int, default=0)
    ap.add_argument('--pfw', type=int, default=0)
    ap.add_argument('--pfx', type=int, default=0)
    ap.add_argument('--pfx0', type=int, default=4)
    ap.add_argument('--pfs', type=int, default=1)
    ap.add_argument('--dcoopx', type=int, default=1)
    ap.add_argument('--dcx0', type=int, default=0)
    ap.add_argument('--dcxpos', type=int, default=-1)
    ap.add_argument('--pfe0', type=int, default=2)
    ap.add_argument('--pfne', type=int, default=13)
    ap.add_argument('--prio47', type=int, default=0)
    ap.add_argument('--lookahead', type=int, default=5)
    ap.add_argument('--nz', type=int, default=6)
    ap.add_argument('--nwf', type=int, default=8)
    ap.add_argument('--hiat', type=int, default=4)
    ap.add_argument('--wmerge', type=int, default=0)
    ap.add_argument('--gapv', type=int, default=6)
    ap.add_argument('--slow', type=int, default=0)
    ap.add_argument('--dbar0', type=int, default=0)
    ap.add_argument('--ptl', type=int, default=0)
    ap.add_argument('--ct2', default='')
    ap.add_argument('--ewat', type=int, default=0)
    ap.add_argument('--gprio', type=int, default=1)
    ap.add_argument('--g1t', type=int, default=1)
    ap.add_argument('--tf0', type=int, default=6)
    ap.add_argument('--twoff', type=int, default=0)
    ap.add_argument('--ew', type=int, default=4)
    ap.add_argument('--ew0', type=int, default=2)
    ap.add_argument('--cyc', default='')
    ap.add_argument('--rshare', type=int, default=1)
    ap.add_argument('--dwalk', type=int, default=0)
    ap.add_argument('--band', type=int, default=0)
    ap.add_argument('--absol', type=int, default=0)
    ap.add_argument('--rev', type=int, default=1)
    ap.add_argument('--xg1', type=int, default=0)
    ap.add_argument('--bou', type=int, default=1)
    ap.add_argument('--sjw', type=int, default=7)
    ap.add_argument('--cwalk', type=int, default=0)
    ap.add_argument('--few', default='')
    ap.add_argument('--econv', type=int, default=0)
    ap.add_argument('--nsh', type=int, default=16)
    ap.add_argument('--sh0', type=int, default=5)
    ap.add_argument('--dirt', type=int, default=0)
    ap.add_argument('--mrg', type=int, default=0)
    ap.add_argument('--g1p', type=int, default=0)
    ap.add_argument('--sa', type=int, default=4)
    ap.add_argument('--sbg', type=int, default=16)
    ap.add_argument('--bwat', type=int, default=0)
    ap.add_argument('--x2n', type=int, default=8)
    ap.add_argument('--sent', type=int, default=1)
    ap.add_argument('--spec', type=int, default=0)
    ap.add_argument('--probe', default='')
    ap.add_argument('--skew', type=int, default=0)
    ap.add_argument('--fix', type=int, default=64)
    ap.add_argument('--walk', type=int, default=0)
    ap.add_argument('--eal', type=int, default=3)
    ap.add_argument('--eoff', type=int, default=0)
    ap.add_argument('--ct', default='024')
    ap.add_argument('--rot', type=int, default=13)
    ap.add_argument('--i0', type=int, default=1)
    ap.add_argument('--i1', type=int, default=10)
    ap.add_argument('--burn', type=int, default=0)
    ap.add_argument('--lord', type=int, default=1)
    ap.add_argument('--lprio', type=int, default=0)
    ap.add_argument('--rsp', type=int, default=0)
    ap.add_argument('--tch', type=int, default=1)
    ap.add_argument('--tf', type=int, default=4)
    ap.add_argument('--toff', type=int, default=1)
    ap.add_argument('--tw0', type=int, default=8)
    ap.add_argument('--xat', type=int, default=0)
    ap.add_argument('--pf1', type=int, default=1)
    ap.add_argument('--lpf', type=int, default=20)
    ap.add_argument('--lpfit', type=int, default=6)
    ap.add_argument('--x1m', type=int, default=10)
    ap.add_argument('--bgap', type=int, default=6)
    ap.add_argument('--cprio', type=int, default=1)
    ap.add_argument('--x1n', type=int, default=5)
    ap.add_argument('--w0', type=int, default=2)
    ap.add_argument('--dbar1', type=int, default=1)
    ap.add_argument('--aon', type=int, default=2)
    ap.add_argument('--cbar', type=int, default=0)
    ap.add_argument('--vmpos', type=int, default=2)
    ap.add_argument('--il2', type=int, default=0)
    ap.add_argument('--p1', type=int, default=0)
    ap.add_argument('--pm', type=int, default=2)
    ap.add_argument('--cbov', type=int, default=3)
    ap.add_argument('--p0', type=int, default=0)
    ap.add_argument('--max2', type=int, default=2)
    ap.add_argument('--eager', type=int, default=0)
    ap.add_argument('--cst', type=int, default=0)
    ap.add_argument('--x0', type=int, default=60)
    ap.add_argument('--xlat', type=int, default=18)
    ap.add_argument('--xper', type=int, default=3)
    ap.add_argument('--xc0', type=int, default=0)
    ap.add_argument('--n3', type=int, default=1)
    ap.add_argument('--xi0', type=int, default=1)
    ap.add_argument('--pfsat', type=int, default=0)
    ap.add_argument('--g1prio', type=int, default=0)
    ap.add_argument('--xearly', type=int, default=1)
    ap.add_argument('--cpfd', type=int, default=4)
    ap.add_argument('--cla', type=int, default=1)
    ap.add_argument('--war', type=int, default=1)
    opt = ap.parse_args()
    resolve_waits.dbg = 'dup' in opt.dbg
    g = Gen(opt)
    txt = g.build()
    open(opt.o, 'w').write(txt)
    print('wrote', opt.o, len(txt), 'bytes')


if __name__ == '__main__':
    main()
```

```python
import sys, os, struct, argparse
sys.path.insert(0, os.path.dirname(os.path.abspath(__file__)))
from asmlib import I, WaitTag, Touch, Prog, resolve_waits, resolve_hazards
import cin16, fixalign

KNAME = 'standalone__deep_cross_xdeepfm__recsys_kernel'
LDS_TOTAL = 163840

XSLOT = 320 * 128
WR = 3 * XSLOT + 8192
WSLOT = 32 * 256
L_BIAS = 3 * XSLOT
L_W2 = L_BIAS + 256
RB = L_W2 + 256
assert WR % 32768 == 0 and WR + 4 * WSLOT <= LDS_TOTAL
WSP = 16640
assert RB + 2560 <= LDS_TOTAL

W2P = 1536
SSZ = 677 * 64
FRS = 0
V3OFF = 0
A1 = 6144
FR = A1
FRL = FR + 33 * 1024
A3 = FRL + 2048
SG = A3
A2 = SG + SSZ
SQ = A2
V2S = SQ + SSZ
L_WCO = V2S + 832
L_FLG = L_WCO + 192
L_MX = L_FLG + 16
RC = L_FLG + 64
XB = V2S + 2496
XPP = 1056
XBSZ = 3 * XPP + 7 * 128
IMG = A3
IMGP = 160
IMGSZ = 33 * IMGP
XB2 = IMG + 8 * IMGSZ
PART = XB2 + 8 * XBSZ
XOFF = lambda f: (f & 3) * XPP + (f >> 2) * 128
assert RC + 512 <= V2S + 1664
assert XB + 8 * XBSZ <= LDS_TOTAL and XB % 16 == 0 and A2 % 64 == 0 and A3 % 64 == 0 and L_WCO % 16 == 0 and V2S % 64 == 0
assert PART + 8 * 1536 <= V2S + 832 and IMGSZ % 32 == 0 and XB2 % 16 == 0

S_WAVE = 3
S_IDX, S_TAB, S_CIN, S_WCO, S_W1, S_B1, S_W2, S_BO, S_OUT, S_DBG, S_WS = 4, 6, 8, 10, 12, 14, 16, 18, 20, 22, 24
S_MB, S_R = 26, 27
SRD_IDX, SRD_TAB, SRD_CIN, SRD_WCO, SRD_W, SRD_B1, SRD_W2, SRD_OUT, SRD_WS, SRD_DBG = 28, 32, 36, 40, 44, 48, 52, 56, 60, 64
S_T0, S_T1, S_T2, S_T3 = 68, 69, 70, 71
S_LOOP, S_IDXOFF, S_WSOFF, S_WMB, S_XM0, S_N0, S_C0, S_CW, S_BOUT, S_TW = 72, 73, 74, 75, 76, 77, 78, 79, 80, 81
S_EX = 82
S_GRP, S_RC = 84, 85
S_ST = 86
S_M26, S_MASK = 90, 92
S_SAMP, S_STG, S_STG9, S_TGT = 94, 95, 96, 97
S_M26B = 98
S_GW = 100
S_TAGT = 0
S_TAG = 1
S_PW = 101
S_PX = 77
S_PXE = 73

GELU_C0 = -2.0 * 0.7978845608028654 * 1.4426950408889634
GELU_C1 = GELU_C0 * 0.044715


def f32hex(x):
    return '0x%08x' % struct.unpack('<I', struct.pack('<f', x))[0]


def vr(a, n):
    return f'v[{a}:{a + n - 1}]' if n > 1 else f'v{a}'


def srd(a):
    return f's[{a}:{a + 3}]'


def flat(gs):
    res = []
    for c in gs:
        if isinstance(c, (tuple, list)):
            res += flat(c)
        else:
            res.append(c)
    return res


def interleave(a, b):
    out = []
    ia = ib = 0
    na, nb = len(a), len(b)
    while ia < na or ib < nb:
        if ib >= nb or (ia < na and ia * nb <= ib * na):
            out.append(a[ia]); ia += 1
        else:
            out.append(b[ib]); ib += 1
    return out


SLOTS = []
for j in range(0, 26, 2):
    for s in range(0, 14 if j <= 12 else 13):
        SLOTS.append((j, (j + s) % 26))
assert len(SLOTS) == 176
DUP_SLOT = SLOTS.index((12, 25))
assert all((d * 2521) >> 16 == d // 26 for d in range(800))
assert all((d * 10923) >> 16 == d // 6 for d in range(64))
assert all((d * 5042) >> 16 == d // 13 for d in range(170))
assert all((d * 3277) >> 16 == d // 20 for d in range(264))


DOC = '''; ---------------------------------------------------------------------------------------------
; Generated by tools/gen23.py (own generator; waits / hazard nops derived from instruction traces).
;
;       U[i,j,k] = sum_h W2[h,i,j] V3[h,k]
;   Both quadratic forms use the 351 distinct products x_j x_k (j<=k) with symmetrised weights, evaluated by
;   DNN branch: full bf16 GEMM + bias + tanh-GELU (x / (1 + exp(-2u))) + dot with w_dnn2.
;   their own producer) and counters in d_debug; the last arriver of a row block adds up and writes d_out.
;   L_tables holds constant per-lane LDS address tables (functions of the lane id only).
; ---------------------------------------------------------------------------------------------
'''


class Gen:
    def __init__(self, opt):
        self.opt = opt
        self.P = Prog()

    def seq(self, lines):
        return [self.P.add(l) for l in flat(lines)]

    def build_srd(self, dst, ptr, size):
        return [f's_mov_b32 s{dst}, s{ptr}', f's_and_b32 s{dst + 1}, s{ptr + 1}, 0xffff',
                f's_mov_b32 s{dst + 2}, {size}', f's_mov_b32 s{dst + 3}, 0x20000']

    def stamp(self, slot):
        if not self.opt.stamps or (self.opt.few and slot not in [int(x) for x in self.opt.few.split(',')]):
            return []
        return [f's_memtime s[{S_ST}:{S_ST + 1}]', f's_memrealtime s[{S_ST + 2}:{S_ST + 3}]', 's_waitcnt lgkmcnt(0)',
                f'v_writelane_b32 v252, s{S_ST}, {slot}', f'v_writelane_b32 v253, s{S_ST + 2}, {slot}']

    def probe(self, name, wave=4):
        if self.opt.cyc:
            a_, b_, _ = self.opt.cyc.split(',')
            return ['s_memtime s[86:87]', 's_waitcnt lgkmcnt(0)'] if name == a_ else ['s_memtime s[88:89]', 's_waitcnt lgkmcnt(0)'] if name == b_ else []
        if self.opt.probe != name:
            return []
        return ['s_memrealtime s[88:89]', 's_waitcnt lgkmcnt(0)']

    def stamp_flush(self):
        if not self.opt.stamps:
            return []
        L = self.build_srd(SRD_WS, S_WS, 0x10000000)
        L += [f's_lshl_b32 s{S_C0}, s2, 3', f's_add_u32 s{S_C0}, s{S_C0}, s{S_WAVE}',
              f's_lshl_b32 s{S_C0}, s{S_C0}, 8', f's_add_u32 s{S_C0}, s{S_C0}, 0x100000',
              'v_lshlrev_b32 v254, 3, v0', 's_mov_b32 exec_hi, 0',
              f'buffer_store_dwordx2 v[252:253], v254, {srd(SRD_WS)}, s{S_C0} offen', 's_mov_b32 exec_hi, -1']
        return L

    def stamp0(self):
        if not self.opt.stamps:
            return []
        return ['v_mov_b32 v252, 0xcdcdcdcd', 'v_mov_b32 v253, 0xcdcdcdcd',
                f'v_writelane_b32 v252, s{S_ST}, 0', f'v_writelane_b32 v253, s{S_ST + 2}, 0'] + self.stamp(15)

    def tlb2(self, t):
        L = self.build_srd(SRD_WS, S_WS, 0x10000000) + self.build_srd(SRD_OUT, S_OUT, 8192) + self.build_srd(SRD_DBG, S_DBG, 256)
        L += [f's_load_dword s{S_BOUT}, s[{S_BO}:{S_BO + 1}], 0', f'v_mov_b32 v{t}, 0', 's_mov_b64 exec, 1',
              f's_mov_b32 s{S_TW}, 0x80000',
              f'buffer_load_dword v{t + 1}, v{t}, {srd(SRD_WS)}, s{S_TW} offen',
              f'buffer_load_dword v{t + 2}, v{t}, {srd(SRD_OUT)}, 0 offen',
              's_mov_b64 exec, -1']
        return L

    def tlb1(self, vtmp, vdst):
        if not self.opt.etlb:
            return self.build_srd(SRD_TAB, S_TAB, 100000 * 128)
        return self.build_srd(SRD_TAB, S_TAB, 100000 * 128) + [
            f'v_mov_b32 v{vtmp}, s{S_BOUT}', f'buffer_load_dword v{vdst}, v{vtmp}, {srd(SRD_TAB)}, 0 offen']

    def gettag(self, lab, t, VT):
        return [f's_cmp_lg_u32 s{S_WAVE}, 0', f's_cbranch_scc1 {lab}',
                f's_memrealtime s[{S_TAGT}:{S_TAGT + 1}]'] + self.build_srd(SRD_DBG, S_DBG, 256) + [
                f's_lshl_b32 s{S_TW}, s{S_MB}, 2', f'v_mov_b32 v{t}, s{S_TW}', 's_waitcnt lgkmcnt(0)',
                f's_or_b32 s{S_TAG}, s{S_TAGT}, 1', f'v_mov_b32 v{VT}, s{S_TAG}', f'v_mov_b32 v{VT + 1}, 0',
                's_mov_b64 exec, 1',
                f'buffer_atomic_cmpswap v[{VT}:{VT + 1}], v{t}, {srd(SRD_DBG)}, 0 offen offset:128 sc0',
                's_mov_b64 exec, -1', f'{lab}:']

    def prologue(self):
        L = []
        if self.opt.stamps:
            L += [f's_memtime s[{S_ST}:{S_ST + 1}]', f's_memrealtime s[{S_ST + 2}:{S_ST + 3}]']
        L += ['s_cmp_ge_u32 s2, 256', 's_cbranch_scc1 L_end',
              's_load_dwordx16 s[4:19], s[0:1], 0',
              's_load_dwordx4 s[20:23], s[0:1], 64',
              's_load_dwordx2 s[24:25], s[0:1], 80',
              'v_lshrrev_b32 v1, 6, v0']
        if self.opt.cpf:
            L += [f's_getpc_b64 s[{S_MASK}:{S_MASK + 1}]', 'L_pc:',
                  f's_and_b32 s{S_T0}, s2, 0xf8', f'v_add_u32 v2, s{S_T0}, v1', 'v_and_b32 v3, 32, v0', 'v_lshl_add_u32 v2, v3, 3, v2', 'v_lshlrev_b32 v2, 7, v2',
                  f'v_min_u32 v2, L_end-L_pc, v2',
                  f'v_mov_b32 v3, s{S_MASK + 1}',
                  f'v_add_co_u32 v2, vcc, s{S_MASK}, v2', 'v_addc_co_u32 v3, vcc, 0, v3, vcc',
                  'global_load_dword v251, v[2:3], off']
        if self.opt.skew:
            L += ['s_memtime s[86:87]' if self.opt.cyc else 's_memrealtime s[86:87]', 's_mov_b32 s88, 0']
        L += ['v_and_b32 v0, 63, v0',
              f'v_readfirstlane_b32 s{S_WAVE}, v1',
              f's_and_b32 s{S_T0}, s2, 7', f's_lshr_b32 s{S_T1}, s2, 3', f's_xor_b32 s{S_T1}, s{S_T1}, {31 * self.opt.rev}',
              f's_and_b32 s{S_BOUT}, s2, 0xf8', f's_add_u32 s{S_BOUT}, s{S_BOUT}, s{S_WAVE}', f's_lshl_b32 s{S_BOUT}, s{S_BOUT}, {self.opt.etlb}',
              f's_min_u32 s{S_T2}, s{S_T0}, 1', f's_add_u32 s{S_T3}, s{S_T1}, s{S_T2}',
              f's_cmp_ge_u32 s{S_T3}, 22', 's_cbranch_scc1 L_cin',
              f's_mul_i32 s{S_T0}, s{S_T0}, 21', f's_add_u32 s{S_T0}, s{S_T0}, s{S_T3}',
              ]
        if self.opt.band == 0:
            L += [f's_mul_i32 s{S_MB}, s{S_T0}, 5042', f's_lshr_b32 s{S_MB}, s{S_MB}, 16',
                  f's_mul_i32 s{S_T1}, s{S_MB}, 13', f's_sub_u32 s{S_R}, s{S_T0}, s{S_T1}']
        else:
            assert all((d * 9363) >> 16 == d // 7 for d in range(91)) and all((d * 10923) >> 16 == d // 6 for d in range(78))
            L += [f's_sub_u32 s{S_T1}, 168, s{S_T0}', f's_cmp_lt_u32 s{S_T0}, 91', f's_cselect_b32 s{S_T0}, s{S_T0}, s{S_T1}',
                  f's_cselect_b32 s{S_T1}, 0, 1560', f's_cselect_b32 s{S_T2}, 7, 6', f's_cselect_b32 s{S_R}, 0, 7', f's_add_u32 s{S_T1}, s{S_T1}, 9363',
                  f's_mul_i32 s{S_MB}, s{S_T0}, s{S_T1}', f's_lshr_b32 s{S_MB}, s{S_MB}, 16', f's_mul_i32 s{S_T1}, s{S_MB}, s{S_T2}',
                  f's_add_u32 s{S_R}, s{S_R}, s{S_T0}', f's_sub_u32 s{S_R}, s{S_R}, s{S_T1}']
        return self.seq(L)

    def dnn(self):
        o = self.opt
        vW = [1, 2, 3, 4]
        vX = [[5, 6], [7, 8]]
        vPa, vPc = 9, 10
        WF, XA, ACC = 16, 48, 88
        W2F = WF
        KC0, KC1, KONE = 12, 14, 248
        SUMP, GT = 32, 52
        vIdxOff, vCh, vWD, vBL = 1, [2, 3], [4, 5], 11
        ST, VO = 16, 56
        T = 100
        g, i4, q = T + 16, T + 17, T + 18
        PI = T + 8

        def acc(tn, tm):
            return ACC + (tm * 4 + tn) * 4

        def small(srd_, dst):
            return [f's_mov_b32 m0, {dst}', 's_mov_b64 exec, 0xffff',
                    I(f'buffer_load_dwordx4 v{vBL}, {srd(srd_)}, s{S_N0} offen lds', tag='BIAS'), 's_mov_b64 exec, -1']
        L = [f's_lshl_b32 s{S_N0}, s{S_R}, 8', f's_mul_i32 s{S_T3}, s{S_MB}, 320',
             f'v_lshrrev_b32 v{g}, 4, v0', f'v_lshlrev_b32 v{vBL}, 4, v0', f's_and_b32 s{S_CW}, s{S_WAVE}, 3',
             f's_cmp_ge_u32 s{S_WAVE}, 4', 's_cbranch_scc1 L_ld']
        c0 = self.seq(L)
        PI = T

        RG, CG = S_T0, S_T1
        L = [f's_mul_i32 s{S_T2}, s{S_WAVE}, 13', f'v_min_u32 v{q}, 12, v0', f'v_add_u32 v{q}, s{S_T2}, v{q}',
             f'v_lshrrev_b32 v{i4}, 1, v{q}', f'v_mul_u32_u24 v{i4}, 96, v{i4}', f'v_lshl_add_u32 v{q}, v{q}, 2, v{i4}',
             f's_mul_i32 s{S_C0}, s{S_R}, 25', f's_min_u32 s{S_C0}, s{S_C0}, 294',
             f's_add_u32 s{S_C0}, s{S_C0}, s{S_T3}', f's_mul_i32 s{S_C0}, s{S_C0}, 104',
             f's_lshl_b32 s{S_T2}, s{S_MB}, 2', f's_add_u32 s{S_T2}, s{S_T2}, s{S_WAVE}', f's_add_u32 s{S_T2}, s{S_T2}, {o.ew0 * 32}',
             f's_mul_i32 s{S_T2}, s{S_T2}, 3328', f's_add_u32 s{S_T2}, s{S_T2}, s{S_N0}', f's_mov_b32 s{S_TW}, {52 * 3328}',
             f'v_lshrrev_b32 v{T + 12}, 1, v0', f'v_mul_lo_u32 v{T + 12}, s{S_TW}, v{T + 12}', f'v_and_b32 v{i4}, 1, v0', f'v_lshl_add_u32 v{T + 12}, v{i4}, 7, v{T + 12}',
             f'v_add_u32 v{T + 12}, s{S_T2}, v{T + 12}', 's_waitcnt lgkmcnt(0)']
        ct = [int(x) for x in o.ct + o.ct2]
        L += self.build_srd(SRD_IDX, S_IDX, 4096 * 104)
        if ct:
            L += [f'buffer_load_dwordx4 {vr(PI, 4)}, v{q}, {srd(SRD_IDX)}, s{S_C0} offen']
        if ct and max(ct) > 3:
            L += [f'buffer_load_dwordx4 {vr(PI + 4, 4)}, v{q}, {srd(SRD_IDX)}, s{S_C0} offen offset:16']
        L += self.tlb1(T + 14, T + 15)
        if o.ptl:
            L += [f'v_lshlrev_b32 v{T + 14}, {o.ptl}, v0', f's_lshl_b32 s{S_T2}, s{S_WAVE}, {o.ptl - 2}', f's_mov_b64 exec, {(1 << min(64, (12800000 >> o.ptl) + 1)) - 1}',
                  f'buffer_load_dword v{T + 15}, v{T + 14}, {srd(SRD_TAB)}, s{S_T2} offen', 's_mov_b64 exec, -1']
        touch = [x for k in ct for x in (f'v_lshlrev_b32 v{PI + k}, 7, v{PI + k}', f'buffer_load_dword v{acc(0, 7) + k}, v{PI + k}, {srd(SRD_TAB)}, 0 offen')]
        touch, touch2 = touch[:2 * len(o.ct)], touch[2 * len(o.ct):]
        L += self.build_srd(SRD_B1, S_B1, 3328) + small(SRD_B1, L_BIAS)
        if o.ew:
            L += self.build_srd(SRD_W, S_W1, 1664 * 3328)
            ewl = [f's_mov_b64 exec, {(1 << (2 * o.ew)) - 1}', f'buffer_load_dword v{acc(0, 7) + 9}, v{T + 12}, {srd(SRD_W)}, 0 offen', 's_mov_b64 exec, -1']
            if o.ewat == 0:
                L += ewl
            elif o.ewat == 1:
                touch = touch + ewl
            else:
                touch2 = touch2 + ewl
        chead = self.seq(L + (['s_barrier'] if o.dbar0 else []) + ['s_branch L_cmp'])
        self.ldat = len(self.P.static)
        L = ['L_cmp:'] + self.stamp0()
        L += [f's_and_b32 s{RG}, s{S_WAVE}, 1', f's_lshr_b32 s{CG}, s{S_WAVE}, 1',
              f'v_bfe_u32 v{i4}, v0, 2, 2', f'v_lshl_add_u32 v{q}, v{g}, 3, v{i4}', f'v_lshlrev_b32 v{q}, 8, v{q}',
              f'v_bfe_u32 v{i4}, v0, 2, 3', f's_lshl_b32 s{S_T2}, s{CG}, 2', f'v_xor_b32 v{i4}, s{S_T2}, v{i4}',
              f'v_lshl_add_u32 v{q}, v{i4}, 5, v{q}', f'v_and_b32 v{i4}, 3, v0', f'v_lshl_add_u32 v{q}, v{i4}, 3, v{q}',
              f'v_add_u32 v{vW[0]}, {WR}, v{q}']
        L += [f'v_xor_b32 v{vW[tn]}, {32 * tn}, v{vW[0]}' for tn in range(1, 4)]
        L += [f's_lshl_b32 s{S_T2}, s{CG}, 7', f's_add_u32 s{S_T2}, s{S_T2}, {L_BIAS}', f'v_lshlrev_b32 v{q}, 3, v{g}', f'v_add_u32 v{vPa}, s{S_T2}, v{q}',
              f'v_and_b32 v{q}, 15, v0', f'v_lshlrev_b32 v{q}, 7, v{q}',
              f'v_bfe_u32 v{i4}, v0, 1, 3', f'v_xor_b32 v{i4}, v{i4}, v{g}', f'v_lshl_add_u32 v{q}, v{i4}, 4, v{q}',
              f's_mul_i32 s{S_T2}, s{RG}, 20480', f'v_add_u32 v{vX[0][0]}, s{S_T2}, v{q}', f'v_xor_b32 v{vX[1][0]}, 64, v{vX[0][0]}',
              f'v_add_u32 v{vX[0][1]}, {2 * XSLOT}, v{vX[0][0]}', f'v_add_u32 v{vX[1][1]}, {2 * XSLOT}, v{vX[1][0]}',
              f's_mul_i32 s{S_T2}, s{S_WAVE}, 640', f's_add_u32 s{S_T2}, s{S_T2}, {RB}',
              f'v_and_b32 v{q}, 15, v0', f'v_lshlrev_b32 v{q}, 2, v{q}', f'v_add_u32 v{q}, s{S_T2}, v{q}',
              f'v_lshrrev_b32 v{i4}, 5, v0', f'v_lshl_add_u32 v{q}, v{i4}, 6, v{q}', f'v_bfe_u32 v{i4}, v0, 4, 1', f'v_lshl_add_u32 v{vPc}, v{i4}, 7, v{q}',
              f's_mov_b32 s{S_LOOP}, 0',
              f'v_mov_b32 v{KC0}, {f32hex(GELU_C0)}', f'v_mov_b32 v{KC0 + 1}, {f32hex(GELU_C0)}',
              f'v_mov_b32 v{KC1}, {f32hex(GELU_C1)}', f'v_mov_b32 v{KC1 + 1}, {f32hex(GELU_C1)}']

        def pkreads(off, dst):
            return [f'ds_read_b64 {vr(dst + 4 * tn + 2, 2)}, v{vPa} offset:{off + 32 * tn}' for tn in range(4)]

        def unp(dst):
            c = []
            for tn in range(4):
                r = dst + 4 * tn
                c += [f'v_lshlrev_b32 v{r}, 16, v{r + 2}', f'v_and_b32 v{r + 1}, 0xffff0000, v{r + 2}',
                      f'v_lshlrev_b32 v{r + 2}, 16, v{r + 3}', f'v_and_b32 v{r + 3}, 0xffff0000, v{r + 3}']
            return c
        L += touch + self.stamp(6)
        BI = [WaitTag(vm_tags=['BIAS'])] + pkreads(0, acc(0, 9)) + unp(acc(0, 9)) + [f'v_mov_b64 {vr(acc(0, 8) + r, 2)}, {vr(acc(0, 9) + r, 2)}' for r in range(0, 16, 2)]

        def rX(p, k):
            xs = p % 3
            return f'ds_read_b128 {vr(XA + 4 * (k % 10), 4)}, v{vX[k % 2][xs // 2]} offset:{(xs % 2) * XSLOT + (k // 2) * 2048}'

        def rW(tn):
            return [f'ds_read_b64_tr_b16 {vr(WF + 16 * par + 4 * tn + 2 * rd, 2)}, v{vW[tn]} offset:{par * WSLOT + rd * 1024}' for par in range(2) for rd in range(2)]
        tog = lambda tn: f'v_xor_b32 v{vW[tn]}, {2 * WSLOT}, v{vW[tn]}'

        def dec(gi):
            G, tn, a_, par = gi // 16, (gi // 4) % 4, (gi // 2) % 2, gi % 2
            if o.bou:
                par ^= a_ ^ (G == 4)
                a_ ^= tn & 1
            return G, tn, a_, par
        lastx = {4 * dec(gi)[0] + 2 * dec(gi)[2] + dec(gi)[3]: gi for gi in range(80)}

        def mf(gi, first=False):
            G, tn, a_, par = dec(gi)
            d = acc(tn, 2 * G + a_)
            if first and gi % 2 == 0 and G < 4:
                return f'v_mfma_f32_16x16x32_bf16 {vr(d, 4)}, {vr(WF + 16 * par + 4 * tn, 4)}, {vr(XA + 4 * ((4 * G + 2 * a_ + par) % 10), 4)}, {vr(acc(tn, 9), 4)}'
            return f'v_mfma_f32_16x16x32_bf16 {vr(d, 4)}, {vr(WF + 16 * par + 4 * tn, 4)}, {vr(XA + 4 * ((4 * G + 2 * a_ + par) % 10), 4)}, {vr(d, 4)}'
        SH = [11, 248, 249, 250]
        nsh = o.nsh

        def shadow():
            c = []
            for b0 in range(0, nsh, 4):
                E = [(ACC + e, SH[e - b0]) for e in range(b0, min(b0 + 4, nsh))]
                for op in ('v_mul_f32 T, X, X', f'v_fma_f32 T, T, v{KC1}, v{KC0}', 'v_mul_f32 T, T, X', 'v_exp_f32 T, T', 'v_add_f32 T, 1.0, T', 'v_rcp_f32 T, T', 'v_mul_f32 X, X, T'):
                    c += [(op.replace('T', f'v{t}').replace('X', f'v{x}'), 8 if ('exp' in op or 'rcp' in op) else 4) for x, t in E]
            return c

        def cpair(p, kind, loopend=False):
            S = []
            ev = {}
            if kind == 'first':
                g_ = o.sbg + 1
                for k in range(2 * o.sa, 10):
                    ev[g_] = rX(p, k); g_ += 1
            else:
                for i_, x in enumerate(rW(3)[2:]):
                    ev[i_] = x
                for i_, k in enumerate(range(6, 10)):
                    ev[2 + i_] = rX(p, k)
            for k in range(10):
                g_ = lastx[k]
                while g_ in ev or (kind == 'first' and g_ <= o.sbg):
                    g_ += 1
                ev[g_] = rX(p, k + 10)
            BG = 48 + o.bgap if o.bou else 46 + o.bgap
            if kind != 'last':
                ev[BG], ev[BG + 1] = rX(p + 1, 0), rX(p + 1, 1)
                for k in range(2, 6):
                    ev[lastx[10 + k]] = rX(p + 1, k)
                for tn in range(4):
                    for i_, x in enumerate(rW(tn)):
                        if 66 + 4 * tn + i_ < 80:
                            ev[66 + 4 * tn + i_] = x
            sh_ = shadow() if kind == 'last' else []
            for gi in range(80):
                S.append(mf(gi, kind == 'first'))
                t = 4
                if o.dwalk and kind != 'last' and gi in (24, 40, 64, 7):
                    S += [f'L_dw{self.ndw}:', f's_cbranch_execz L_dw{self.ndw + 1}']
                    self.ndw += 1
                if kind == 'first' and gi == o.sbg:
                    S += (self.stamp(20) if o.itst == 2 else []) + ['s_barrier'] + (self.stamp(21) if o.itst == 2 else [])
                if kind != 'last' and gi == BG - 1:
                    st_ = lambda k: ([f's_cmp_lg_u32 s{S_LOOP}, 0', f's_cbranch_scc1 L_ns{k}'] + self.stamp(k) + [f'L_ns{k}:']) if (o.itst == 2 and p < 3) else []
                    S += ['s_waitcnt lgkmcnt(0)'] + st_(22 + 2 * p) + ['s_barrier'] + st_(23 + 2 * p)
                if gi in ev:
                    S.append(ev[gi]); t += 8
                if kind != 'last' and 8 <= gi < 12:
                    S.append(tog(gi - 8))
                if gi % 2 == 0 and gi + 2 < 80:
                    n_ = gi + 2
                    G, tn, a_ = n_ // 16, (n_ // 4) % 4, (n_ // 2) % 2
                    if tn == 0:
                        S.append(Touch(vr(XA + 4 * ((4 * G + 2 * a_) % 10), 8)))
                    if G == 0 and a_ == 0:
                        S.append(Touch(vr(WF + 16 + 4 * tn, 4)))
                if gi == 78 and kind != 'last':
                    S.append(Touch(vr(WF + 16, 4)))
                if loopend and gi == 48:
                    S += [f's_add_u32 s{S_LOOP}, s{S_LOOP}, 1', f's_cmp_lt_u32 s{S_LOOP}, 8']
                t = max(t, 8)
                while sh_ and gi >= o.sh0 and t + sh_[0][1] <= 16:
                    x, c_ = sh_.pop(0)
                    S.append(x); t += c_
            S += [x for x, _ in sh_]
            if kind == 'last':
                print('shadow left', len(sh_))
            return S
        self.ndw = 0
        if o.dwalk:
            L += ['s_mov_b64 exec, 0'] + [x for q_ in range(3) for x in (f's_cmp_eq_u32 s{S_WAVE}, {q_}', f's_cbranch_scc1 L_dw{4 * q_}')] + ['s_branch L_dw12', 'L_dw16:', 's_mov_b64 exec, -1']
        L += self.stamp(1) + ['s_barrier'] + [x for tn in range(4) for x in rW(tn)] + BI + touch2 + ['s_waitcnt lgkmcnt(0)', f's_setprio {o.cprio}', 's_barrier'] + self.stamp(2)
        L += [rX(0, k) for k in range(2 * o.sa)] + cpair(0, 'first')
        cpre = self.seq(L)
        body = self.seq(['L_dnn_loop0:'])
        for p in range(1, 4):
            S = cpair(p, 'mid', p == 3)
            if p == 3:
                if o.stamps and o.itst == 1:
                    i_ = S.index('s_barrier')
                    S = S[:i_] + [f's_memtime s[{S_ST}:{S_ST + 1}]', f's_memrealtime s[{S_ST + 2}:{S_ST + 3}]', f's_or_b32 m0, s{S_LOOP}, 16', 's_waitcnt lgkmcnt(0)',
                                  f'v_writelane_b32 v252, s{S_ST}, m0', f'v_writelane_b32 v253, s{S_ST + 2}, m0', f's_cmp_lt_u32 s{S_LOOP}, 8'] + S[i_:]
                S += ['s_cbranch_scc1 L_dnn_loop0']
            body += self.seq(S)
        tc = c0 + chead + cpre + body * 2 + self.seq(['L_tail:'])
        tc += self.seq(cpair(25, 'last') + pkreads(256, W2F) + [f'v_mov_b32 v{KONE}, 1.0', f'v_mov_b32 v{KONE + 1}, 1.0'])
        if o.burn:
            bl = [f's_movk_i32 s{S_LOOP}, {o.burn}', 'L_burn:'] + [f'v_mfma_f32_16x16x32_bf16 {vr(XA + 32 + 4 * (k % 2), 4)}, {vr(WF + 16 + 4 * (k % 4), 4)}, {vr(XA + 4 * (k // 4), 4)}, 0' for k in range(32)]
            tc += self.seq(bl + [f's_sub_u32 s{S_LOOP}, s{S_LOOP}, 1', f's_cmp_lg_u32 s{S_LOOP}, 0', 's_cbranch_scc1 L_burn'])
        tc += self.seq(['L_epi:'] + self.stamp(3))

        p2 = lambda r: vr(r, 2)
        seen = set()

        def gelu(groups):
            L = []
            for k, vals in enumerate(groups):
                tb = GT + (k % 2) * 16
                V_ = [(x, w, s_, tb + 4 * i_, tb + 4 * i_ + 2) for i_, (x, w, s_) in enumerate(vals)]
                for (x, w, s_, t, u) in V_:
                    L.append(f'v_pk_mul_f32 {p2(t)}, {p2(x)}, {p2(x)}')
                for (x, w, s_, t, u) in V_:
                    L.append(f'v_pk_fma_f32 {p2(t)}, {p2(t)}, {p2(KC1)}, {p2(KC0)}')
                for (x, w, s_, t, u) in V_:
                    L.append(f'v_pk_mul_f32 {p2(t)}, {p2(t)}, {p2(x)}')
                for (x, w, s_, t, u) in V_:
                    L += [f'v_exp_f32 v{t}, v{t}', f'v_exp_f32 v{t + 1}, v{t + 1}']
                for (x, w, s_, t, u) in V_:
                    L.append(f'v_pk_mul_f32 {p2(u)}, {p2(x)}, {p2(w)}')
                for (x, w, s_, t, u) in V_:
                    L.append(f'v_pk_add_f32 {p2(t)}, {p2(t)}, {p2(KONE)}')
                for (x, w, s_, t, u) in V_:
                    L += [f'v_rcp_f32 v{t}, v{t}', f'v_rcp_f32 v{t + 1}, v{t + 1}']
                for (x, w, s_, t, u) in V_:
                    if s_ in seen:
                        L.append(f'v_pk_fma_f32 {p2(s_)}, {p2(t)}, {p2(u)}, {p2(s_)}')
                    else:
                        L.append(f'v_pk_mul_f32 {p2(s_)}, {p2(t)}, {p2(u)}')
                        seen.add(s_)
            return L
        el = lambda tn, tm, d: (acc(tn, tm) + 2 * d, W2F + 4 * tn + 2 * d, SUMP + 2 * tm)
        allel = [el(tn, 2 * tp + a_, d) for tp in range(5) for tn in range(4) for d in range(2) for a_ in range(2)]
        rest = [e for e in allel if e[0] >= ACC + nsh]
        if o.rshare:
            assert nsh % 8 == 0
            KS = 84
            quads = [[el(2 * h + t_, tm, d) for t_ in range(2) for d in range(2)] for tm in range(10) for h in range(2)]
            quads = [q_ for q_ in quads if q_[0][0] >= ACC + nsh]
            order = sorted(range(len(quads)), key=lambda i_: (i_ // 4, i_ % 2, i_))
            quads = [quads[i_] for i_ in order]
            L = [f'v_mov_b32 v{KS}, {f32hex(-24.0)}', f'v_mov_b32 v{KS + 1}, {f32hex(-24.0)}', f'v_mov_b32 v{KS + 2}, {f32hex(2.0 ** 24)}', f'v_mov_b32 v{KS + 3}, {f32hex(2.0 ** 24)}']
            for k in range(0, len(quads), 2):
                Qs = quads[k:k + 2]
                V_ = [(x, w, GT + 16 * j_ + 4 * i_, GT + 16 * j_ + 4 * i_ + 2) for j_, q_ in enumerate(Qs) for i_, (x, w, s_) in enumerate(q_)]
                L += [f'v_pk_mul_f32 {p2(t)}, {p2(x)}, {p2(x)}' for (x, w, t, u) in V_]
                L += [f'v_pk_fma_f32 {p2(t)}, {p2(t)}, {p2(KC1)}, {p2(KC0)}' for (x, w, t, u) in V_]
                L += [f'v_pk_fma_f32 {p2(t)}, {p2(t)}, {p2(x)}, {p2(KS)}' for (x, w, t, u) in V_]
                L += [f'v_exp_f32 v{t + e_}, v{t + e_} clamp' for (x, w, t, u) in V_ for e_ in range(2)]
                if k == 0:
                    L += unp(W2F)
                L += [f'v_pk_mul_f32 {p2(u)}, {p2(x)}, {p2(w)}' for (x, w, t, u) in V_]
                L += [f'v_pk_fma_f32 {p2(t)}, {p2(t)}, {p2(KS + 2)}, {p2(KONE)}' for (x, w, t, u) in V_]
                for prs in ([(0, 1), (2, 3)], [(0, 2)]):
                    M_ = [(V_[4 * j_ + a_], V_[4 * j_ + b_]) for j_ in range(len(Qs)) for a_, b_ in prs]
                    L += [f'v_pk_mul_f32 {p2(A_[3])}, {p2(A_[3])}, {p2(B_[2])}' for A_, B_ in M_]
                    L += [f'v_pk_fma_f32 {p2(A_[3])}, {p2(B_[3])}, {p2(A_[2])}, {p2(A_[3])}' for A_, B_ in M_]
                    L += [f'v_pk_mul_f32 {p2(A_[2])}, {p2(A_[2])}, {p2(B_[2])}' for A_, B_ in M_]
                L += [f'v_rcp_f32 v{V_[4 * j_][2] + e_}, v{V_[4 * j_][2] + e_}' for j_ in range(len(Qs)) for e_ in range(2)]
                for j_, q_ in enumerate(Qs):
                    s_, t, u = q_[0][2], V_[4 * j_][2], V_[4 * j_][3]
                    L.append(f'v_pk_fma_f32 {p2(s_)}, {p2(t)}, {p2(u)}, {p2(s_)}' if s_ in seen else f'v_pk_mul_f32 {p2(s_)}, {p2(t)}, {p2(u)}')
                    seen.add(s_)
        else:
            L = gelu([rest[i:i + 4] for i in range(0, len(rest), 4)])
            L = L[:20] + unp(W2F) + L[20:]
        for (x, w, s_) in allel:
            if x < ACC + nsh:
                L.append(f'v_pk_fma_f32 {p2(s_)}, {p2(x)}, {p2(w)}, {p2(s_)}' if s_ in seen else f'v_pk_mul_f32 {p2(s_)}, {p2(x)}, {p2(w)}')
                seen.add(s_)
        sm = lambda tm: SUMP + 2 * tm
        L += [f'v_add_f32 v{sm(tm)}, v{sm(tm)}, v{sm(tm) + 1}' for tm in range(10)]
        L += [f'v_permlane32_swap_b32 v{sm(tm)}, v{sm(tm + 1)}' for tm in range(0, 10, 2)]
        L += [f'v_add_f32 v{sm(tm)}, v{sm(tm)}, v{sm(tm + 1)}' for tm in (8, 0, 2, 4, 6)]
        L += [f'v_mov_b32 v{sm(9)}, v{sm(8)}', f'v_permlane16_swap_b32 v{sm(0)}, v{sm(2)}', f'v_permlane16_swap_b32 v{sm(4)}, v{sm(6)}',
              f'v_permlane16_swap_b32 v{sm(8)}, v{sm(9)}',
              f'v_add_f32 v{sm(0)}, v{sm(0)}, v{sm(2)}', f'v_add_f32 v{sm(4)}, v{sm(4)}, v{sm(6)}', f'v_add_f32 v{sm(8)}, v{sm(8)}, v{sm(9)}',
              f'ds_write_b32 v{vPc}, v{sm(0)}', f'ds_write_b32 v{vPc}, v{sm(4)} offset:256',
              's_mov_b32 exec_lo, 0xffff', 's_mov_b32 exec_hi, 0xffff', f'ds_write_b32 v{vPc}, v{sm(8)} offset:512', 's_mov_b64 exec, -1']
        L += ['s_waitcnt lgkmcnt(0)'] + self.stamp(4) + self.stamp_flush() + ['s_barrier', 's_endpgm']
        tc += self.seq(L)

        def wstage(slot):
            c = []
            for u in range(2):
                c += [f's_add_u32 m0, s{S_WMB}, {WR + slot * WSLOT + u * 1024}',
                      I(f'buffer_load_dwordx4 v{vWD[u]}, {srd(SRD_W)}, s{S_WSOFF} offen lds', tag='W')]
            return c + [f's_add_u32 s{S_WSOFF}, s{S_WSOFF}, {32 * 3328}']

        Q, TM, BP = 16, 56, [12, 13]
        TI, vWT = 70, 84
        SP = [36, 37, 38, 39, 40, 41, 42, 43, 48, 49]
        SI = [94, 95, 96, 97, 98, 99, 100, 101, 82, 83]

        def xaddr(f, pcs):
            c = []
            for odd in range(2):
                p_ = f + 26 * odd
                for pc in pcs:
                    c.append(f'v_add_u32_dpp v{TM + pc}, v{Q + 4 * pc + p_ % 4}, v{vCh[0]} row_newbcast:{p_ >> 2} row_mask:0xf bank_mask:{(3, 12)[odd]:#x}')
            return c

        def xld(pc, slot, tag='X'):
            return [f's_add_u32 m0, s{S_XM0}, {slot * XSLOT + pc * 2048}',
                    I(f'buffer_load_dwordx4 v{TM + pc}, {srd(SRD_TAB)}, 0 offen lds', tag=tag)]
        idxl = [f'buffer_load_dwordx4 {vr(Q + 4 * pc, 4)}, v{BP[0]}, {srd(SRD_IDX)}, s{SI[pc // 2]} offen offset:{(pc % 2) * 1664}' for pc in range(10)]
        LO, HI = range(5), range(5, 10)
        NR = (22 + o.tf - 1) // o.tf
        lw = S_CW
        self.mk0 = len(self.P.static)
        L = ['L_ld:', f's_lshr_b32 s{S_T0}, s{lw}, 1', f's_mul_i32 s{S_T0}, s{S_T0}, 20', f's_and_b32 s{S_T1}, s{lw}, 1', f's_add_u32 s{S_T0}, s{S_T0}, s{S_T1}',
             f's_lshl_b32 s{S_XM0}, s{S_T0}, 10', f's_mul_i32 s{S_C0}, s{S_T3}, 104', f's_mul_i32 s{S_T0}, s{S_T0}, 832', f's_add_u32 s{SI[0]}, s{S_C0}, s{S_T0}',
             f'v_mul_u32_u24 v{q}, 48, v{g}', f'v_sub_u32 v{BP[0]}, v{vBL}, v{q}']
        L += [f's_add_u32 s{SI[k]}, s{SI[0]}, {k * 2 * 1664}' for k in range(1, 5)]
        L += [f's_and_b32 s{S_T2}, s{lw}, 1', f's_lshl_b32 s{S_T2}, s{S_T2}, 3',
              f'v_lshlrev_b32 v{i4}, 1, v{g}', f'v_or_b32 v{i4}, s{S_T2}, v{i4}', f'v_xor_b32 v{i4}, v{i4}, v0', f'v_and_b32 v{i4}, 15, v{i4}',
              f'v_mul_u32_u24 v{vWD[0]}, 3328, v{g}', f'v_lshl_add_u32 v{vWD[0]}, v{i4}, 4, v{vWD[0]}', f'v_add_u32 v{vWD[1]}, {4 * 3328}, v{vWD[0]}',
              f's_mul_i32 s{S_WSOFF}, s{lw}, {8 * 3328}', f's_add_u32 s{S_WSOFF}, s{S_WSOFF}, s{S_N0}', f's_lshl_b32 s{S_WMB}, s{lw}, 11',
              's_waitcnt lgkmcnt(0)']
        L += self.build_srd(SRD_IDX, S_IDX, 4096 * 104) + (['s_barrier'] if o.dbar0 == 1 else []) + idxl[:o.i0] + self.tlb1(T + 14, T + 15) + self.build_srd(SRD_W, S_W1, 1664 * 3328)
        for sl in range(o.w0):
            L += wstage(sl)
        L += self.stamp0() + (['s_barrier'] if o.dbar0 >= 2 else []) + ([Touch(vr(Q, 4))] if o.dbar0 == 3 else []) + idxl[o.i0:]
        for sl in range(o.w0, 2):
            L += wstage(sl)
        L += [f's_lshl_b32 s{S_T2}, s{S_T1}, 6',
              f'v_and_b32 v{q}, 7, v0', f'v_xor_b32 v{q}, v{q}, v{g}', f'v_lshlrev_b32 v{q}, 4, v{q}', f'v_xor_b32 v{vCh[0]}, s{S_T2}, v{q}', f'v_xor_b32 v{vCh[1]}, 64, v{vCh[0]}',
              f's_mov_b32 s{S_LOOP}, 0',
              f's_mul_i32 s{S_T2}, s{lw}, 13', f's_add_u32 s{S_T2}, s{S_T2}, s{S_R}', f's_min_u32 s{S_T2}, s{S_T2}, 39', f's_lshl_b32 s{S_T2}, s{S_T2}, 3',
              f's_add_u32 s{S_T2}, s{S_T2}, s{S_T3}', f's_mul_i32 s{S_GRP}, s{S_T2}, 104',
              f'v_lshrrev_b32 v{q}, {o.tf.bit_length() - 1}, v0', f'v_min_u32 v{q}, 7, v{q}', f'v_mul_u32_u24 v{q}, 104, v{q}',
              f'v_and_b32 v{i4}, {o.tf - 1}, v0', f'v_lshl_add_u32 v7, v{i4}, 2, v{q}',
              f's_lshl_b32 s{S_T2}, s{S_MB}, 2', f's_add_u32 s{S_T2}, s{S_T2}, s{lw}', f's_add_u32 s{S_T2}, s{S_T2}, {o.tw0 * 32}', f's_mul_i32 s{S_RC}, s{S_T2}, 3328',
              f's_add_u32 s{S_RC}, s{S_RC}, s{S_N0}', f's_mov_b32 s{S_T2}, {52 * 3328}',
              f'v_lshrrev_b32 v{q}, 1, v0', f'v_mul_lo_u32 v{q}, s{S_T2}, v{q}', f'v_and_b32 v{i4}, 1, v0', f'v_lshl_add_u32 v{vWT}, v{i4}, 7, v{q}']
        L += self.build_srd(SRD_W2, S_W2, 3328)
        L += [f's_mul_i32 s{S_T2}, s{lw}, {o.lpf * 128}', f's_add_u32 s{S_T2}, s{S_T2}, L_tail-L_pc', f'v_lshlrev_b32 v8, 7, v0', f'v_add_u32 v8, s{S_T2}, v8',
              f'v_mov_b32 v9, s{S_MASK + 1}', f'v_add_co_u32 v8, vcc, s{S_MASK}, v8', 'v_addc_co_u32 v9, vcc, 0, v9, vcc']
        sh = lambda pc, c_: f'v_lshlrev_b32 v{Q + 4 * pc + c_}, 7, v{Q + 4 * pc + c_}'
        for pc in range(10):
            L += [sh(pc, 0), sh(pc, 2), sh(pc, 1), sh(pc, 3)] + xaddr(0, [pc]) + xld(pc, 0, 'X0a' if pc < o.sa else 'X0')
            if pc == 0:
                L += self.stamp(6) + self.probe('i0')
            if pc == o.bwat:
                L += [WaitTag(vm_tags=['W']), 's_barrier']
        L += self.stamp(7) + self.probe('x0i')
        x1 = [x for pc in range(10) for x in xaddr(1, [pc]) + xld(pc, 1)]
        L += x1[:4 * o.x1n] + [WaitTag(vm_tags=['X0a'])] + self.stamp(1) + ['s_barrier'] + self.probe('s0') + x1[4 * o.x1n:4 * o.x1m]
        L += [WaitTag(vm_tags=['X0']), 's_barrier'] + x1[4 * o.x1m:] + wstage(2) + wstage(3) + xaddr(2, range(10))
        x2 = [x for pc in range(10) for x in xld(pc, 2)]
        NR = (26 - o.tf0 + o.tf - 1) // o.tf
        tex = (1 << (8 * o.tf)) - 1
        texec = [f's_mov_b32 exec_lo, {tex & 0xffffffff:#x}', f's_mov_b32 exec_hi, {tex >> 32:#x}']
        if o.tch:
            L += [f'buffer_load_dword v{TI + r}, v7, {srd(SRD_IDX)}, s{S_GRP} offen offset:{4 * min(o.tf0 + o.tf * r, 26 - o.tf)}' for r in range(NR)]

        def xtouch():
            t_ = [f'v_lshlrev_b32 v{T + 1}, 7, v{TI}'] + texec + [f'buffer_load_dword v{T + 2}, v{T + 1}, {srd(SRD_TAB)}, 0 offen', 's_mov_b64 exec, -1']
            return t_ + [f'v_mov_b32 v{TI + r}, v{TI + r + 1}' for r in range(NR - 1)] + [f'v_mov_b32 v{TI + NR - 1}, 0xffffff']

        def wtouch():
            return ['s_mov_b64 exec, 0x3ff', f'buffer_load_dword v{T + 3}, v{vWT}, {srd(SRD_W)}, s{S_RC} offen', 's_mov_b64 exec, -1', f's_add_u32 s{S_RC}, s{S_RC}, {260 * 3328}']
        L += x2[:2 * o.x2n] + [WaitTag(vm_tags=['W']), 's_barrier'] + self.probe('bar0') + x2[2 * o.x2n:] + xaddr(3, range(10))
        lpre = self.seq(L + [f's_setprio {o.lprio}', 's_branch L_ld_in'])
        del self.P.static[self.mk0:]
        self.P.static[self.ldat:self.ldat] = lpre
        self.mk0 = len(self.P.static)

        def lpair(p):
            S = ['s_barrier'] + (['L_ld_in:'] if p == 0 else []) + wstage(2 * (p % 2)) + wstage(2 * (p % 2) + 1)
            f2 = p + 4
            for pc in range(10):
                x = xld(pc, p % 3)
                S += [x[0]] + (xaddr(f2, [pc - 1])[:1] if pc else []) + [x[1]] + (xaddr(f2, [pc - 1])[1:] if pc else [])
            S += xaddr(f2, [9])
            if p >= 10:
                S += [f'v_mov_b32_dpp v{Q + 4 * pc + c_}, v{Q + 4 * pc + c_} row_shl:3 row_mask:0xf bank_mask:0xf' for pc in range(10) for c_ in ((0, 2) if p == 10 else (1, 3))]
            if o.tch and p % o.tf == o.toff:
                S += xtouch()
            if o.tch and p % 4 == o.twoff:
                S += wtouch()
            if p == 11:
                S += [f's_add_u32 s{S_LOOP}, s{S_LOOP}, 1', f's_cmp_lt_u32 s{S_LOOP}, 2']
            return S + [WaitTag(vm_tags=['W'])]
        body = self.seq(['L_dnn_loop1:'])
        for p in range(12):
            if p == 8 and o.lpf:
                body += self.seq([f's_cmp_lg_u32 s{S_LOOP}, 1', 's_cbranch_scc1 L_nolpf'])
                self.seq([f's_mov_b64 exec, {(1 << o.lpf) - 1}', 'global_load_dword v10, v[8:9], off', 's_mov_b64 exec, -1'] + small(SRD_W2, L_W2))
                body += self.seq(['L_nolpf:'])
            lp = lpair(p)
            if p and self.probe(f'bar{p}'):
                lp = lp[:1] + [f's_cmp_lg_u32 s{S_LOOP}, 0', f's_cbranch_scc1 L_nopb{p}'] + self.probe(f'bar{p}') + [f'L_nopb{p}:'] + lp[1:]
            body += self.seq(lp + (['s_cbranch_scc1 L_dnn_loop1'] if p == 11 else []))
        tl = c0 + lpre + body * 2 + self.seq(['s_branch L_ld_tail'])
        self.ldblk = self.P.static[self.mk0:]
        del self.P.static[self.mk0:]
        tl += self.seq(['L_ld_tail:', 's_barrier'] + self.tlb2(T) + ['s_mov_b64 exec, 1', f'buffer_load_dword v250, v{T}, {srd(SRD_DBG)}, 0 offen offset:240 sc1', 's_mov_b64 exec, -1'])
        tl += self.seq(self.probe('s50'))
        if o.walk:
            tl += self.seq([f's_cmp_eq_u32 s{lw}, 0', 's_cbranch_scc1 L_wkd', 's_mov_b64 exec, 0', f's_cmp_eq_u32 s{lw}, 1', 's_cbranch_scc1 L_wk0',
                            f's_cmp_eq_u32 s{lw}, 2', f's_cbranch_scc1 L_wk{np_ // 3}', f's_branch L_wk{2 * np_ // 3}', 'L_wkd:'])
        A = 64
        L = [f's_cmp_lg_u32 s{S_WAVE}, 4', 's_cbranch_scc1 L_end',
             f'v_lshlrev_b32 v3, 4, v0', f'v_lshlrev_b32 v4, 2, v0', f'v_add_u32 v1, {RB}, v3', f'v_add_u32 v2, {RB + 1024}, v4', f'v_add_u32 v4, 1024, v4',
             'v_mov_b32 v5, 32', f'v_mov_b32 v7, s{S_MB}',
             f's_mul_i32 s{S_T0}, s{S_MB}, 1280', f's_mul_i32 s{S_T1}, s{S_R}, {WSP}', f's_add_u32 s{S_T1}, s{S_T1}, s{S_T0}', 's_setprio 3']
        if o.sent:
            L += [f'v_mov_b32 v{A + k}, -1' for k in range(4)] + [f'buffer_store_dwordx4 {vr(A, 4)}, v3, {srd(SRD_WS)}, s{S_T1} offen sc1',
                  f'buffer_store_dword v{A}, v4, {srd(SRD_WS)}, s{S_T1} offen sc1', 's_waitcnt vmcnt(0)']
        L += self.stamp_flush() + ['s_barrier'] + self.probe('dend')
        L += [f'ds_read_b128 {vr(A, 4)}, v1', f'ds_read_b128 {vr(A + 8, 4)}, v1 offset:1280', f'ds_read2st64_b32 {vr(A + 4, 2)}, v2 offset0:0 offset1:5',
              f'v_pk_add_f32 {p2(A)}, {p2(A)}, {p2(A + 8)}', f'v_pk_add_f32 {p2(A + 2)}, {p2(A + 2)}, {p2(A + 10)}', f'v_add_f32 v{A + 4}, v{A + 4}, v{A + 5}']
        if o.sent:
            L += [f'v_min_u32 v{A + k}, -2, v{A + k}' for k in range(5)]
        L += (self.stamp(16) if o.diag else [])
        L += [f'buffer_store_dwordx4 {vr(A, 4)}, v3, {srd(SRD_WS)}, s{S_T1} offen sc1',
              f'buffer_store_dword v{A + 4}, v4, {srd(SRD_WS)}, s{S_T1} offen sc1', 's_mov_b64 exec, 1']
        tl += self.seq(L)

        L = ['L_pub:']
        if o.skew:
            L += ['v_mov_b32 v20, s86', 'v_mov_b32 v21, s86', 'v_mov_b32 v22, s88', 's_lshl_b32 s89, s2, 7', 's_add_u32 s89, s89, 0x40000', 'v_lshlrev_b32 v23, 28, v0',
                  f'buffer_store_dwordx3 v[20:22], v23, {srd(SRD_WS)}, s89 offen sc1', 's_waitcnt vmcnt(0)']
        def loads():
            c = [f's_mul_i32 s{S_T0}, s{S_T3}, 1280']
            for qq in range(14):
                c += [f'buffer_load_dwordx4 {vr(A + 8 * qq, 4)}, v3, {srd(SRD_WS)}, s{S_T0} offen sc1',
                      f'buffer_load_dword v{A + 8 * qq + 4}, v4, {srd(SRD_WS)}, s{S_T0} offen sc1', f's_add_u32 s{S_T0}, s{S_T0}, {WSP}']
            return c
        R_ = 56
        L += ['v_lshlrev_b32 v6, 4, v7'] + ([] if o.sent else ['s_waitcnt vmcnt(0)']) + ['v_mov_b32 v13, v5', f'buffer_atomic_add v5, v6, {srd(SRD_DBG)}, 0 offen sc0',
              'v_cmp_eq_u32 vcc, 12, v7', 'v_mov_b32 v8, 436', 'v_mov_b32 v9, 434', 'v_cndmask_b32 v8, v8, v9, vcc', 'v_sub_u32 v8, v8, v13']
        if o.spec:
            L += [f's_mov_b64 s[{S_MASK}:{S_MASK + 1}], exec', 's_mov_b64 exec, -1', f'v_readfirstlane_b32 s{S_T3}, v7'] + loads() + [f's_mov_b64 exec, s[{S_MASK}:{S_MASK + 1}]']
            L += ['s_waitcnt vmcnt(0) lgkmcnt(0)']
        else:
            L += ['s_waitcnt vmcnt(0) lgkmcnt(0)']
        L += (self.stamp(18) if o.diag else []) + [
             f'v_cmp_eq_u32 s[{S_EX}:{S_EX + 1}], v5, v8', 's_mov_b64 exec, -1', f's_lshl_b32 s{S_BOUT}, s{S_BOUT}, 16',
             'v_lshrrev_b32 v1, 1, v3', 'v_lshrrev_b32 v2, 1, v4']
        if o.spec:
            L += [f's_bitcmp1_b32 s{S_EX}, 0', f's_bitset0_b32 s{S_EX}, 0', 's_cbranch_scc1 L_sum']
        pa = self.seq(L)
        L = ['L_fin:', f's_cmp_eq_u32 s{S_EX}, 0', 's_cbranch_scc1 L_done',
             f's_ff1_i32_b32 s{S_T2}, s{S_EX}', f's_bitset0_b32 s{S_EX}, s{S_T2}', f'v_readlane_b32 s{S_T3}, v7, s{S_T2}', 's_waitcnt vmcnt(0)', 'L_again:'] + loads()
        pb = self.seq(L)
        L = ['L_sum:', f'v_pk_add_f32 {p2(R_)}, {p2(A)}, {p2(A + 8)}', f'v_pk_add_f32 {p2(R_ + 2)}, {p2(A + 2)}, {p2(A + 10)}', f'v_add_f32 v{R_ + 4}, v{A + 4}, v{A + 12}']
        for qq in range(2, 14):
            L += [f'v_pk_add_f32 {p2(R_)}, {p2(R_)}, {p2(A + 8 * qq)}', f'v_pk_add_f32 {p2(R_ + 2)}, {p2(R_ + 2)}, {p2(A + 8 * qq + 2)}',
                  f'v_add_f32 v{R_ + 4}, v{R_ + 4}, v{A + 8 * qq + 4}']
        if o.sent:
            L += [f'v_cmp_u_f32 vcc, v{R_}, v{R_ + 1}', f'v_cmp_u_f32 s[{S_MASK}:{S_MASK + 1}], v{R_ + 2}, v{R_ + 3}', f's_or_b64 s[{S_MASK}:{S_MASK + 1}], s[{S_MASK}:{S_MASK + 1}], vcc',
                  f'v_cmp_u_f32 vcc, v{R_ + 4}, v{R_ + 4}', f's_or_b64 vcc, s[{S_MASK}:{S_MASK + 1}], vcc', 's_cbranch_vccnz L_chk', 'L_ok:']
        L += [f's_mul_i32 s{S_T3}, s{S_T3}, 640']
        A0 = A
        A = R_
        L += [f'v_add_f32 v{A + k}, s{S_BOUT}, v{A + k}' for k in range(5)]
        L += [f'v_cvt_pk_bf16_f32 v10, v{A}, v{A + 1}', f'v_cvt_pk_bf16_f32 v11, v{A + 2}, v{A + 3}', f'v_cvt_pk_bf16_f32 v12, v{A + 4}, v{A + 4}',
              f'buffer_store_dwordx2 v[10:11], v1, {srd(SRD_OUT)}, s{S_T3} offen', f'buffer_store_short v12, v2, {srd(SRD_OUT)}, s{S_T3} offen']
        if o.skew:
            L += [f's_cmp_lg_u32 s{S_EX}, 0', 's_cbranch_scc1 L_fin', 'v_lshlrev_b32 v20, 7, v0', 's_mov_b32 s88, 0x40000']
            for k in range(4):
                L += [f'buffer_load_dwordx3 v[{32 + 4 * k}:{34 + 4 * k}], v20, {srd(SRD_WS)}, s88 offen sc1', 's_add_u32 s88, s88, 8192']
            L += ['s_waitcnt vmcnt(0)']
            if o.probe.startswith('st') or o.absol:
                L += ['s_memrealtime s[88:89]', 's_waitcnt lgkmcnt(0)', 'v_mov_b32 v26, 0', 'v_mov_b32 v27, 0']
                for k in range(4):
                    L += [f'v_sub_u32 v28, s88, v{32 + 4 * k}', 'v_cmp_gt_u32 vcc, 4500, v28', f'v_not_b32 v29, v{32 + 4 * k}', 'v_cndmask_b32 v29, 0, v29, vcc', 'v_max_u32 v27, v27, v29']
                    if o.absol:
                        L += [f'v_cndmask_b32 v29, 0, v{34 + 4 * k}, vcc', 'v_max_u32 v26, v26, v29']
                    elif str(k) in o.probe[2:]:
                        L += [f'v_cndmask_b32 v29, 0, v{32 + 4 * k}, vcc', 'v_max_u32 v26, v26, v29']
            else:
                for k in range(4):
                    L += [f'v_sub_u32 v28, v{34 + 4 * k}, v{32 + 4 * k}', f'v_cmp_gt_u32 vcc, {100000 if o.cyc else 5000}, v28', f'v_cndmask_b32 v28, 0, v28, vcc',
                          f'v_cmp_eq_u32 vcc, v{32 + 4 * k}, v{33 + 4 * k}', f'v_cndmask_b32 v{33 + 4 * k}, 0, v28, vcc']
                L += ['v_max_u32 v26, v33, v37', 'v_max3_u32 v26, v26, v41, v45', 'v_mov_b32 v27, -1']
            if o.probe == 'span':
                L += ['s_memrealtime s[86:87]', 's_waitcnt lgkmcnt(0)', 'v_mov_b32 v26, s86']
            for (ctl, rm) in (('row_shr:1', '0xf'), ('row_shr:2', '0xf'), ('row_shr:4', '0xf'), ('row_shr:8', '0xf'), ('row_bcast:15', '0xa'), ('row_bcast:31', '0xc')):
                L += [f'v_max_u32_dpp v{r}, v{r}, v{r} {ctl} row_mask:{rm} bank_mask:0xf' for r in (26, 27)]
            L += ['v_not_b32 v27, v27', 'v_sub_u32 v22, v26, v27', 's_memrealtime s[86:87]', 'v_readlane_b32 s88, v22, 63', 's_waitcnt lgkmcnt(0)',
                  *([f's_max_u32 s88, s88, {o.cyc.split(chr(44))[2]}', f's_sub_u32 s88, s88, {o.cyc.split(chr(44))[2]}', 's_lshr_b32 s88, s88, 1'] if o.cyc else []), 's_min_u32 s88, s88, 5000', f's_mul_i32 s88, s88, {o.skew - 1}', 's_add_u32 s88, s88, s86',
                  'L_spin:', 's_memrealtime s[86:87]', 's_waitcnt lgkmcnt(0)', 's_sub_u32 s89, s88, s86', 's_cmp_gt_i32 s89, 0', 's_cbranch_scc1 L_spin']
        L += self.stamp(5) + self.stamp_flush() + ['s_branch L_fin']
        pc_ = self.seq(L)
        if o.sent:
            L = ['L_chk:', 'v_mov_b32 v14, 0', 'v_mov_b32 v15, 0']
            for qq in range(14):
                L += [f'v_max3_u32 v14, v14, v{A0 + 8 * qq}, v{A0 + 8 * qq + 1}', f'v_max3_u32 v14, v14, v{A0 + 8 * qq + 2}, v{A0 + 8 * qq + 3}', f'v_max_u32 v15, v15, v{A0 + 8 * qq + 4}']
            L += [f's_cmp_eq_u32 s{S_T3}, 12', f's_cselect_b32 s{S_T0}, 0, -1', f'v_and_b32 v15, s{S_T0}, v15', 'v_max_u32 v14, v14, v15',
                  'v_cmp_eq_u32 vcc, -1, v14', 's_cbranch_vccnz L_again', 's_branch L_ok']
            self.chk = self.seq(L)
        pe = self.seq(['L_done:', 's_endpgm'])
        self.pub = pa + pb + pc_ + pe
        self.extra_traces = [pa + pc_ + pb + pc_] + ([pa + pb + pc_[:45] + self.chk + pb[7:] + pc_] if o.sent else [])
        return [tc, tl + self.pub]

    def pubsrd(self):
        return self.build_srd(SRD_WS, S_WS, 0x10000000) + self.build_srd(SRD_OUT, S_OUT, 8192) + self.build_srd(SRD_DBG, S_DBG, 256)

    def tables(self):
        OOB = 0x100000
        G = [[] for _ in range(11)]
        for l in range(64):
            half, i32, g, r, c = l >> 5, l & 31, l >> 4, (l >> 2) & 3, l & 3
            lin0 = g * 128 + r * XPP + c * 8
            G[0] += [lin0, lin0 + 512 if g < 3 else XOFF(27) + c * 8, (l >> 3) * 16, 0x3f803f80 if l < 32 else 0]
            G[1] += [(l & 7) * 16, 0xeeee if l & 1 else 0x4444, half * XPP + i32 * 4, IMG + half * 20 * IMGP + i32 * 4]
            tr = [IMG + cin16.IMGROW(cin16.LAB[g][2 * rp + (r >> 1)][r & 1]) * IMGP + c * 8 for rp in range(8)]
            G[2] += tr[:4]
            G[3] += tr[4:]
            row, col = 8 * half + r, (g & 1) * 32 + c * 8
            G[4] += [V3OFF + row * 64 + col, A1 + row * 1352 + col, A1 + min(row + 16, 25) * 1352 + col, A1 + min(row + 20, 25) * 1352 + col]
            t, gd, rr = (i32 >> 2) & 1, i32 >> 3, i32 & 3
            ig = 16 * t + 4 * rr + gd
            iq = 4 * rr + gd if t == 0 else 16 + ((4 * rr + gd + 4) & 15)
            pm = []
            for q in range(8):
                k0 = 16 * (q >> 2) + 8 * half + 2 * (q & 3)
                pm.append((0xffff if iq == k0 else 0xffff0000 if iq == k0 + 1 else 0) if iq < 26 else 0)
            G[5] += pm[:4]
            G[6] += pm[4:]
            ga = A2 + 52 * ig if ig < 26 else OOB
            rowp = ((l & 12) + 2 * (l & 1)) * 16 + (OOB if l & 2 else 0)
            G[7] += [ga + half * 8 * W2P, ga + half * OOB, rowp + half * 256 + (g & 1) * 8, rowp + g * 256]
            G[8] += [SG + i32 * 64 if i32 < 26 else V2S if i32 == 26 else OOB, 64 if i32 == 26 else 3328, (i32 >> 1) + 2 * half,
                     SQ + i32 * 64 + ((((i32 >> 1) & 3) ^ (2 * half)) << 4)]
            v2 = []
            for hf in range(2):
                j = 4 * g + 16 * hf + r
                v2.append(V2S + (j & 1) * 1664 + (j >> 1) * 64 + ((c ^ (((13 + j) & 3) * 2)) * 8) if j < 26 else SG + 676 * 64 + c * 8)
            wo = [L_WCO + 2 * (16 * tl_ + 4 * c + r) if 16 * tl_ + 4 * c + r < 26 else OOB for tl_ in range(2)]
            G[9] += v2 + wo
            G[10] += [L_WCO + 104 + 16 * half, L_WCO + 52 + 2 * l, V3OFF + 52 + 64 * l, SG + 676 * 64 + (l & 15) * 4]
        U = []
        for w in range(8):
            for e in range(16):
                for u in (w, w + 8, w + 16):
                    U += [SG + row * 64 + f * 8 for row, f in cin16.p2rows(u, e >> 2, e & 3)] if u < 22 else [0, 0]
        return [x for n in (4, 2, 3, 0, 5, 6, 7, 8, 9, 1, 10) for x in G[n]] + [0] * 256 + U + [0] * 256

    def cin(self):
        o = self.opt
        cw = S_CW
        vFa, vLin0, vLin1, vXi0, vXi1, vC16, vIDX, vXa, vIw, vPWL, vPXL, PXR, PFR = 1, 4, 5, 6, 7, 8, 9, 10, 11, 12, 13, 14, 15
        XI, vTR = 16, 20
        XR, P, Z, WF, D = 32, 60, 116, 164, 184
        vStg, vFR, vFw = vFa, 2, 59
        t3, t4, t5 = 29, 30, 31
        AV = [28, 58]
        PM = 216
        vA3, vBs0, vBs1a, vBs1b, vGa, vGb, vT3, vT3d = range(224, 232)
        G8, vV2r, vV2q, vWo, AD = 232, 236, 237, 238, 240
        WA = list(range(244, 250))
        vS, vMx = 250, 111
        UA, UX = 224, [232, 233, 234, 235, 240, 241]
        AFR = 112
        BALL, DALL = 60, 120
        S_F1, S_F2, S_G, S_LO, S_HI, S_CM, S_U0, S_U1, S_U2 = 74, 75, 95, 96, 97, 90, 98, 99, 100
        S_CG, S_IV = 0, 1
        OOB = 0x100000
        TA_, TB_, TC_ = SG + 35840, SQ + 26 * W2P, FRS + 2048
        GREG = [224, 20, 24, 4, 216, 220, 228, 232, 236, 8, 240]
        DPPS = (('row_shr:1', '0xf'), ('row_shr:2', '0xf'), ('row_shr:4', '0xf'), ('row_shr:8', '0xf'),
                ('row_bcast:15', '0xa'), ('row_bcast:31', '0xc'))

        K_W7, K_IMG, K_W2, K_W1, K_W12, K_H8, K_T3 = 52, 53, 54, 55, 92 - 10, 92 - 9, 91
        L = ['L_cin:', f'v_lshlrev_b32 v{vStg}, 4, v0', f's_and_b32 s{cw}, s{S_WAVE}, 3', f's_lshr_b32 s{S_GRP}, s{S_WAVE}, 2', f's_lshl_b32 s{S_STG}, s{cw}, 10',
             f's_mul_i32 s{S_MB}, s{S_T0}, 11', f's_add_u32 s{S_MB}, s{S_MB}, s{S_T1}', f's_sub_u32 s{S_MB}, s{S_MB}, 22',
             f's_cmp_eq_u32 s{S_MB}, 86', 's_cbranch_scc1 L_end', f's_cmp_eq_u32 s{S_GRP}, 0', 's_cbranch_scc1 L_sc']
        c0 = self.seq(L)
        L = ['s_setprio 2', f'v_add_u32 v2, L_tables-L_pc+4096, v{vStg}', f'v_mov_b32 v3, s{S_MASK + 1}',
             f'v_add_co_u32 v2, vcc, s{S_MASK}, v2', 'v_addc_co_u32 v3, vcc, 0, v3, vcc',
             f'v_add_co_u32 v{XR}, vcc, s{S_STG}, v2', f'v_addc_co_u32 v{XR + 1}, vcc, 0, v3, vcc',
             f'global_load_dwordx4 {vr(GREG[0], 4)}, v[2:3], off offset:-4096',
             'v_add_co_u32 v2, vcc, 0x1800, v2', 'v_addc_co_u32 v3, vcc, 0, v3, vcc', f'global_load_dwordx4 {vr(GREG[10], 4)}, v[2:3], off',
             f's_cmp_lt_u32 s{cw}, 3', f's_mov_b32 s{S_T2}, {TB_ - 3072}', f's_cselect_b32 s{S_T2}, {TA_ + 4096}, s{S_T2}']
        tdma = lambda off: I(f'global_load_lds_dwordx4 {vr(XR, 2)}, off offset:{off}', tag='TAB')
        L += [f's_add_u32 m0, s{S_STG}, {TA_ + 4096}', tdma(-4096), f's_add_u32 m0, s{S_STG}, s{S_T2}', tdma(0),
              f'v_add_co_u32 v{XR}, vcc, 0x2000, v{XR}', f'v_addc_co_u32 v{XR + 1}, vcc, 0, v{XR + 1}, vcc',
              f's_add_u32 m0, s{S_STG}, {TC_}', tdma(0), f's_add_u32 m0, s{S_STG}, {TB_ + 1024 + 4096}', f's_cmp_ge_u32 s{cw}, 2', 's_cbranch_scc1 L_sc']
        g1s = self.seq(L)
        L = [tdma(-4096)]
        g1t = self.seq(L)
        L = ['L_sc:', f's_mul_i32 s{S_RC}, s{S_GRP}, 20', f's_add_u32 s{S_RC}, s{S_RC}, s{S_WAVE}',
             f's_mul_i32 s{S_SAMP}, s{S_MB}, 48', f's_add_u32 s{S_SAMP}, s{S_SAMP}, s{S_RC}', f's_mul_i32 s{S_SAMP}, s{S_SAMP}, 104',
             f'v_lshrrev_b32 v{t4}, 3, v0', f'v_lshlrev_b32 v{t4}, 4, v{t4}', f'v_and_b32 v{t3}, 0x70, v{vStg}',
             f's_mul_i32 s{S_XM0}, s{S_WAVE}, {XBSZ}', f's_add_u32 s{S_XM0}, s{S_XM0}, {XB}', f's_cmp_eq_u32 s{S_GRP}, 0', 's_cbranch_scc1 L_g0']
        csc = self.seq(L)
        SC2 = [f's_lshl_b32 s{S_RC}, s{S_RC}, 2', f's_add_u32 s{S_RC}, s{S_RC}, {RC}',
               f's_mul_i32 s{S_LOOP}, s{S_GRP}, 3', f's_sub_u32 s{S_LOOP}, 4, s{S_LOOP}', (f's_cmp_eq_u32 s{S_MB}, 85', f's_cselect_b32 s{S_LOOP}, s{S_LOOP}, 6'),
               f's_lshl_b32 s{K_W7}, s{S_WAVE}, 7', f's_mul_i32 s{K_IMG}, s{S_WAVE}, {IMGSZ}', f's_lshl_b32 s{K_W2}, s{S_WAVE}, 2', f's_lshl_b32 s{K_W1}, s{S_WAVE}, 1',
               f's_lshl_b32 s{K_W12}, s{S_WAVE}, 12',
               f's_and_b32 s{S_U0}, s{S_WAVE}, 1', f's_lshr_b32 s{S_U1}, s{S_WAVE}, 1',
               f's_mul_i32 s{S_T0}, s{S_U1}, 3072', f's_lshl_b32 s{K_H8}, s{S_U0}, 3', f's_add_u32 s{S_T0}, s{S_T0}, s{K_H8}', f'v_add_u32 v{vFw}, s{S_T0}, v{vStg}',
               f's_lshl_b32 s{S_T1}, s{S_U1}, 3', f's_lshr_b32 s{S_T1}, 0x05030200, s{S_T1}', f's_and_b32 s{S_T1}, s{S_T1}, 0xff',
               f's_lshl_b32 s{S_T1}, s{S_T1}, 9', f's_lshl_b32 s{S_T2}, s{S_U0}, 2', f's_add_u32 s{K_T3}, s{S_T1}, s{S_T2}',
               f's_mov_b32 s{S_U1}, 0x05040100', f's_mov_b32 s{S_U2}, 0x07060302',
               f'v_mov_b32 v{vFR}, {L_FLG}', 'v_mov_b32 v109, 0', 'v_mov_b32 v108, 0'] + [f'v_mov_b64 {vr(r, 2)}, 0' for r in range(XR, XR + 26, 2)]
        XJ = 104

        def pfw(dst=3):
            return [f'buffer_load_dword v{dst}, v{vPWL}, {srd(SRD_W)}, s{S_PW} offen',
                    f's_add_u32 s{S_PW}, s{S_PW}, {o.pfne * 688 * 128}']

        def pfx_a():
            return [f'buffer_load_dword v{PXR}, v{vPXL}, {srd(SRD_IDX)}, s{S_PX} offen',
                    f's_cmp_eq_u32 s{S_PX}, s{S_PXE}', f's_cselect_b32 s{S_PXE}, 0x7000000, s{S_PXE}',
                    f's_cselect_b32 s{S_PX}, 0x7000000, s{S_PX}',
                    f's_add_u32 s{S_PX}, s{S_PX}, 24', f's_min_u32 s{S_PX}, s{S_PX}, s{S_PXE}']

        def pfx_b():
            return [f'v_lshlrev_b32 v{PXR}, 7, v{PXR}', f'buffer_load_dword v{PFR}, v{PXR}, {srd(SRD_TAB)}, 0 offen']

        def xidx(XI=XI, vXi0=vXi0):
            return [f'buffer_load_dwordx4 {vr(XI, 4)}, v{vXi0}, {srd(SRD_IDX)}, s{S_SAMP} offen', f's_add_u32 s{S_SAMP}, s{S_SAMP}, {4 * 104}']

        def xdma(XI=XI, off=0, tag='XB', vC16=vC16):
            c = [f'v_lshl_add_u32 v{XI + u}, v{XI + u}, 7, v{vC16}' for u in range(4)]
            for u in range(4):
                c += [f's_add_u32 m0, s{S_XM0}, {u * XPP + off}']
                if u % 2 == 0:
                    c.append(f's_mov_b32 exec_hi, {0xffffff if u == 0 else 0xffff:#x}')
                c.append(I(f'buffer_load_dwordx4 v{XI + u}, {srd(SRD_TAB)}, 0 offen lds', tag=tag))
            return c + ['s_mov_b32 exec_hi, -1']

        def stage(dst, goff, tag):
            st = []
            for m in range(9):
                st.append((f's_add_u32 m0, s{S_STG}, {dst + m * 4096}', f's_add_u32 s{S_TW}, s{S_STG}, {goff + m * 4096}',
                           I(f'buffer_load_dwordx4 v{vStg}, {srd(SRD_CIN)}, s{S_TW} offen lds', tag=tag)))
            return st

        def pubmax(regs_offs):
            c = []
            for (ctl, rm) in DPPS:
                for r, _ in regs_offs:
                    c.append(f'v_max_u32_dpp v{r}, v{r}, v{r} {ctl} row_mask:{rm} bank_mask:0xf')
            c += ['s_mov_b32 exec_lo, 0', 's_mov_b32 exec_hi, 0x80000000']
            c += [f'ds_max_u32 v{vFR}, v{r} offset:{16 + 4 * k}' for r, k in regs_offs]
            return c + ['s_mov_b64 exec, -1']

        def mxop(src, n, mx, first):
            return [f'v_mfma_f32_16x16x32_bf16 {vr(mx, 4)}, {vr(src + r, 4)}, {vr(src + r, 4)}, {"0" if first and r == 0 else vr(mx, 4)}' for r in range(0, n, 4)]

        def mxfin(mx):
            return [f'v_max3_f32 v{mx}, v{mx}, v{mx + 1}, 0', f'v_max3_f32 v{mx}, v{mx}, v{mx + 2}, v{mx + 3}']

        def bread(m, off):
            b = BALL + m * 8
            return [f'ds_read_b64_tr_b16 {vr(b, 2)}, v{vBs0} offset:{off}',
                    f'ds_read_b64_tr_b16 {vr(b + 2, 2)}, v{vBs0} offset:{off + 4 * 1352}',
                    f'ds_read_b64_tr_b16 {vr(b + 4, 2)}, v{vBs1a} offset:{off}',
                    f'ds_read_b64_tr_b16 {vr(b + 6, 2)}, v{vBs1b} offset:{off}']

        def mm2(d, a, b):
            return [f'v_mfma_f32_32x32x16_bf16 {vr(d, 16)}, {vr(a, 4)}, {vr(b, 4)}, 0',
                    f'v_mfma_f32_32x32x16_bf16 {vr(d, 16)}, {vr(a + 4, 4)}, {vr(b + 4, 4)}, {vr(d, 16)}']

        tA, tB = 250, 251
        if o.pfw:
            SC2 += self.build_srd(SRD_W, S_W1, 1664 * 3328) + [
                f's_lshl_b32 s{S_PW}, s{S_MB}, 3', f's_add_u32 s{S_PW}, s{S_PW}, s{S_WAVE}', f's_add_u32 s{S_PW}, s{S_PW}, {o.pfe0 * 832}', f's_lshl_b32 s{S_PW}, s{S_PW}, 7',
                f's_mov_b32 s{S_T3}, {688 * 128}', f'v_min_u32 v{vPWL}, {max(o.pfne - 1, 0)}, v0', f'v_mul_lo_u32 v{vPWL}, s{S_T3}, v{vPWL}']
        if o.pfx:
            SC2 += [f's_lshl_b32 s{S_PX}, s{S_MB}, 3', f's_add_u32 s{S_PX}, s{S_PX}, s{S_WAVE}', f's_mul_i32 s{S_PX}, s{S_PX}, {6 * 104}',
                    f's_add_u32 s{S_PXE}, s{S_PX}, 80', f's_add_u32 s{S_PX}, s{S_PX}, {4 * o.pfx0}',
                    f'v_min_u32 v{PXR}, 35, v0', f'v_mul_u32_u24 v{vPXL}, 10923, v{PXR}', f'v_lshrrev_b32 v{vPXL}, 16, v{vPXL}',
                    f'v_mul_u32_u24 v{vPXL}, {104 - 24}, v{vPXL}', f'v_lshl_add_u32 v{vPXL}, v{PXR}, 2, v{vPXL}']
        trd = lambda n: f'ds_read_b128 {vr(GREG[n], 4)}, v{tA if n < 7 else tB} offset:{(n if n < 7 else n - 7) * 1024}'
        vbs = [f'v_add_u32 v{r}, s{K_W7}, v{r}' for r in (vBs0, vBs1a, vBs1b)]

        def FX(g):
            R = [trd(n) for n in ((0,) if g == 0 else ()) + (6, 7, 3, 9, 1, 2, 4, 5, 8)]
            F = vbs + [f'v_add_u32 v{r}, s{K_W2}, v{r}' for r in (vGa, vGb)]
            F += [f'v_add_u32 v{vT3d}, s{K_H8}, v{vT3d}', f'v_add_u32 v{vT3}, s{K_T3}, v{vT3}']
            F += [f'v_mad_u32_u24 v{G8}, v{G8 + 1}, s{S_WAVE}, v{G8}', f'v_add_u32 v{G8 + 2}, s{K_W1}, v{G8 + 2}',
                  f'v_mad_u32_u24 v{G8 + 1}, v{G8 + 1}, 8, v{G8}', f'v_add_u32 v{WA[2]}, s{K_W12}, v{G8 + 3}', f'v_add_u32 v{WA[3]}, 2048, v{WA[2]}']
            for n_, (wa, bs) in enumerate(((WA[0], G8), (WA[1], G8), (WA[4], G8 + 1), (WA[5], G8 + 1))):
                F += [f'v_add_u32 v{t5}, {n_ & 1}, v{G8 + 2}', f'v_and_b32 v{t5}, 3, v{t5}', f'v_lshl_add_u32 v{wa}, v{t5}, 4, v{bs}']
                if n_ & 1:
                    F.append(f'v_add_u32 v{wa}, 1664, v{wa}')
            F += [f'v_add_u32 v{r}, s{S_XM0}, v{r}' for r in (vXa, vLin0, vLin1)] + [f'ds_write_b32 v{vXa}, v{vXi1} offset:{XOFF(26)}']
            F += [f'v_add_u32 v{r}, s{K_IMG}, v{r}' for r in [vIw] + list(range(vTR, vTR + 8))]
            return R, F
        SC2 += [f'v_add_u32 v{tA}, {TA_}, v{vStg}', f'v_add_u32 v{tB}, {TB_}, v{vStg}', f'v_lshrrev_b32 v3, 5, v0', f'v_lshl_add_u32 v3, v3, 2, v{vFR}']

        def pub2(r1, r2, off):
            c = [f'v_permlane32_swap_b32 v{r1}, v{r2}', f'v_max_u32 v{r1}, v{r1}, v{r2}']
            c += [f'v_max_u32_dpp v{r1}, v{r1}, v{r1} {ctl} row_mask:{rm} bank_mask:0xf' for ctl, rm in DPPS[:5]]
            return c + ['s_mov_b32 exec_lo, 0x80000000', 's_mov_b32 exec_hi, 0x80000000', f'ds_max_u32 v3, v{r1} offset:{16 + off}', 's_mov_b64 exec, -1']
        AV = [28, 58, 111]
        CO = [f's_sub_u32 s{S_T0}, s{S_T3}, 22', f's_min_u32 s{S_T0}, s{S_T0}, 9', f's_lshl_b32 s{S_T0}, s{S_T0}, 2', f's_add_u32 s{S_T0}, s{S_T0}, s{cw}', f's_lshl_b32 s{S_T0}, s{S_T0}, 7',
              f'v_mul_u32_u24 v{t5}, {40 * 128}, v0', 's_waitcnt lgkmcnt(0)'] + self.build_srd(SRD_CIN, S_CIN, 105456) + [
              f'buffer_load_dword v107, v{t5}, {srd(SRD_CIN)}, s{S_T0} offen']
        L = CO if o.coop in (1, 2) else []
        L += ['s_waitcnt lgkmcnt(0)'] + self.build_srd(SRD_WCO, S_WCO, 156) + [f's_mov_b32 m0, {L_WCO}', 's_mov_b64 exec, 0x7ff',
             I(f'buffer_load_dwordx4 v{vStg}, {srd(SRD_WCO)}, 0 offen lds', tag='WCO'), 's_mov_b64 exec, -1'] + (['s_barrier'] if o.coop in (2, 4) else []) + self.stamp0() + SC2
        L += self.build_srd(SRD_IDX, S_IDX, 4096 * 104) + self.build_srd(SRD_TAB, S_TAB, 100000 * 128)
        XK = 12
        if o.g1t:
            assert not o.pfx
            L += [f'v_and_b32 v13, 31, v0', f'v_min_u32 v13, 25, v13', f'v_lshrrev_b32 v14, 5, v0', f'v_mul_u32_u24 v14, {4 * 104}, v14', f'v_lshl_add_u32 v13, v13, 2, v14',
                  f'buffer_load_dword v14, v13, {srd(SRD_IDX)}, s{S_SAMP} offen']
        g1touch = [f'v_lshlrev_b32 v14, 7, v14', f'buffer_load_dword v13, v14, {srd(SRD_TAB)}, 0 offen']
        if o.xg1:
            L += [f's_sub_u32 s{S_T0}, s{S_SAMP}, {24 * 104}', f'buffer_load_dwordx4 {vr(XI, 4)}, v{t4}, {srd(SRD_IDX)}, s{S_T0} offen',
                  f'buffer_load_dwordx4 {vr(XK, 4)}, v{t4}, {srd(SRD_IDX)}, s{S_T0} offen offset:{4 * 104}']
        L += [f'ds_write_b128 v{vFR}, {vr(XR, 4)} offset:16', f's_lshl_b32 s{S_T0}, s{cw}, 6', f'v_add_u32 v{t3}, s{S_T0}, v0']
        for p_ in range(3):
            L += [f'v_mul_u32_u24 v{t4}, 2521, v{t3}', f'v_lshrrev_b32 v{t4}, 16, v{t4}', f'v_mul_u32_u24 v{t4}, 12, v{t4}', f'v_lshl_add_u32 v{AV[p_]}, v{t3}, 1, v{t4}']
            L += [f'v_add_u32 v{t3}, 256, v{t3}'] if p_ < 2 else [f'v_cmp_gt_u32 vcc, 676, v{t3}', f's_mov_b64 s[{S_MASK}:{S_MASK + 1}], vcc']
        L += [f'v_lshlrev_b32 v{t3}, 3, v0', 's_mov_b32 exec_hi, 0xffff', f'ds_write_b64 v{t3}, {vr(XR, 2)} offset:{V3OFF + 26 * 64}', 's_mov_b32 exec_hi, -1',
              f'ds_write_b32 v{AD + 3}, v{XR}', f'ds_write_b32 v{AD + 3}, v{XR} offset:{SSZ}', WaitTag(vm_tags=['WCO'])]
        assert V3OFF == 0
        for s2 in range(2):
            for rd in range(2):
                L.append(f'ds_read_b64 {vr(AFR + 4 * s2 + 2 * rd, 2)}, v{AD} offset:{s2 * 32 + rd * 8}')
        L += [f'ds_read_u16 v110, v{AD + 1}',
              's_mov_b64 exec, 0x3ffffff', f'ds_write_b16 v{AD + 2}, v110', 'v_lshlrev_b32 v109, 17, v110', 'v_lshrrev_b32 v109, 1, v109', 's_mov_b64 exec, -1']
        if o.cwalk:
            L += ['s_mov_b64 exec, 0'] + [x for q_ in range(3) for x in (f's_cmp_eq_u32 s{cw}, {q_}', f's_cbranch_scc1 L_WENTRY{q_}')] + ['s_branch L_WENTRY3', 'L_wret:', 's_mov_b64 exec, -1']
        L += (FX(1)[1] if o.dirt else vbs) + [WaitTag(vm_tags=['TAB'], lgkm0=True)] + self.probe('tab') + (pfw(PFR) if o.pfw and o.pfs == 1 else [])
        v3p = []
        L += ['s_barrier'] + self.stamp(2) + self.probe('b0')
        vb = lambda m: A3 - A1 - 512 + (m >> 1) * 512 + (m & 1) * 64
        for m in range(3):
            L += bread(m, vb(m))
        for m in range(6):
            if m + 3 < 6:
                L += bread(m + 3, vb(m + 3))
            L += mm2(DALL + m * 16, AFR, BALL + m * 8)
            if m == 3 and not o.dirt:
                L += FX(1)[0]
        if not o.dirt:
            L += FX(1)[1][3:]
        for p_ in range(3):
            L += ['s_mov_b32 exec_lo, 0', f'v_mov_b32 v{DALL + 32 * p_}, v{DALL + 32 * p_ + 16}', 's_mov_b32 exec_lo, -1',
                  f'v_cvt_pk_bf16_f32 v{BALL + p_}, 0, v{DALL + 32 * p_}']
            if p_ == 2:
                L += [f's_mov_b64 exec, s[{S_MASK}:{S_MASK + 1}]']
            L += [f'ds_write_b16_d16_hi v{AV[p_]}, v{BALL + p_}', f'v_max_f32 v108, |v{BALL + p_}|, v108']
        L += ['s_mov_b64 exec, -1'] + pub2(108, 109, 8) + self.stamp(13) + [f's_setprio {o.g1p}'] + (g1touch if o.g1t == 1 else []) + ['s_waitcnt lgkmcnt(0)', 's_barrier'] + (g1touch if o.g1t == 2 else []) + ['s_branch L_w2']
        v3 = self.seq(L)

        def stage3(dst, goff, tag, lab, mid=None, fill=()):
            st = stage(dst, goff, tag)
            a_ = st[:8] if mid is None else st[:mid[0]] + [tuple(mid[1])] + st[mid[0]:8]
            return (self.seq(interleave(a_, list(fill)) + [f's_cmp_eq_u32 s{cw}, 3', f's_cbranch_scc1 {lab}']), self.seq([st[8]]), self.seq([f'{lab}:']))
        g0 = [self.seq(['L_g0:'] + ([x.replace('v107,', 'v103,') for x in CO] if o.coop >= 3 else ['s_waitcnt lgkmcnt(0)'] + self.build_srd(SRD_CIN, S_CIN, 105456)) + (['s_barrier'] if o.coop in (2, 4) else []) + ([Touch('v103')] if o.coop == 5 else []))]
        g0.append(stage3(A3, 70304, 'W3', 'L_st3'))
        g0.append(self.seq(self.stamp0() + self.build_srd(SRD_IDX, S_IDX, 4096 * 104) + ([f's_add_u32 s{S_SAMP}, s{S_SAMP}, {8 * 104}'] if o.xg1 else xidx(XI, t4) + xidx(XJ, t4)) + self.build_srd(SRD_TAB, S_TAB, 100000 * 128)))
        def w2grp(n):
            c = []
            for k, go in enumerate((0, 1024, 1864)):
                c.append((f's_add_u32 m0, s{S_STG9}, {A2 + n * 4 * 3072 + k * 1024}', f's_add_u32 s{S_TW}, s{S_TGT}, {35152 + n * 4 * 2704 + go}',
                          I(f'buffer_load_dwordx4 v{t5 if k == 1 else vStg}, {srd(SRD_CIN)}, s{S_TW} offen lds', tag='W2')))
            return c
        g0.append((self.seq([f's_mul_i32 s{S_STG9}, s{cw}, 3072', f's_mul_i32 s{S_TGT}, s{cw}, 2704', f'v_lshrrev_b32 v{t5}, 5, v0', f'v_mul_u32_u24 v{t5}, 184, v{t5}',
                             f'v_sub_u32 v{t5}, v{vStg}, v{t5}'] + interleave(w2grp(0) + w2grp(1) + w2grp(2), SC2) + [f's_cmp_lg_u32 s{cw}, 0', 's_cbranch_scc1 L_st2']),
                   self.seq(w2grp(3)), self.seq(['L_st2:']), 1))
        xx = xdma(vC16=t3, tag='XBa') + xdma(XJ, 4 * XBSZ, vC16=t3)
        g0.append(stage3(A1, 0, 'W1', 'L_st1', (o.sigat, [WaitTag(vm_tags=['W2' if o.mrg else 'W3']), 's_barrier'] + self.stamp(2) + FX(0)[0])))
        g0.append(self.seq(([] if o.xg1 else xx) + (pfw(PFR) if o.pfw and o.pfs == 1 else []) + FX(0)[1] + self.stamp(13) + [WaitTag(vm_tags=['W1']), 's_barrier']))

        def G0(w):
            r = []
            for x in g0:
                r += x if isinstance(x, list) else x[0] + (x[1] if w < (3 if len(x) == 3 else x[3]) else []) + x[2]
            return r

        def gather(dst, off):
            c = [f'v_add_u32 v{r}, {off}, v{r}' for r in (vGa, vGb)] if off else []
            for s2 in range(2):
                for e in range(0, 8, 2):
                    base = vGb if (s2 == 1 and e >= 2) else vGa
                    h = 16 * s2 + e
                    c.append(f'ds_read2st64_b32 {vr(dst + 8 * s2 + e, 2)}, v{base} offset0:{6 * h} offset1:{6 * h + 6}')
            return c

        def perms(g_, aj):
            return [f'v_perm_b32 v{aj + 8 * jj + r}, v{g_ + 2 * r + 1}, v{g_ + 2 * r}, s{S_U1 + jj}' for jj in range(2) for r in range(8)]

        def sout(t):
            d, c_ = DALL + 16 * t, DALL + 16 * t
            c = [f'v_cvt_pk_f16_f32 v{c_ + r}, v{d + 2 * r}, v{d + 2 * r + 1}' for r in range(8)]
            return c[:4] + [f'ds_write_b128 v{WA[t]}, {vr(c_, 4)}', f'v_xor_b32 v{WA[t]}, 16, v{WA[t]}'] + c[4:] + [f'ds_write_b128 v{WA[t]}, {vr(c_ + 4, 4)}']
        M1, M2 = 28, 28

        def pub1(r, off):
            c = [f'v_max_u32_dpp v{r}, v{r}, v{r} {ctl} row_mask:{rm} bank_mask:0xf' for ctl, rm in DPPS]
            return c + [('s_mov_b32 exec_lo, 0', 's_mov_b32 exec_hi, 0x80000000', f'ds_max_u32 v{vFR}, v{r} offset:{16 + off}', 's_mov_b64 exec, -1')]
        L = ['L_w2:'] + self.stamp(14) + self.probe('bw2') + gather(BALL, 0) + (pfw(PFR) if o.pfw and o.pfs == 2 else []) + (pfx_a() if o.pfx else [])
        cx = []
        if o.xg1:
            cc0 = self.seq(L + [f's_cmp_eq_u32 s{S_GRP}, 0', 's_cbranch_scc1 L_nx1'])
            cx = self.seq(xdma(XI, -4 * XBSZ) + xdma(XK))
            L = ['L_nx1:']
        else:
            cc0 = []
        L += [f's_cmp_ge_u32 s{S_WAVE}, 5', 's_cbranch_scc1 L_u0']
        cc = self.seq(L)
        M1, M2 = 28, 108
        fin2 = lambda: interleave(mxfin(M1), mxfin(M2)) + [tuple(x) if isinstance(x, list) else x for x in pub2(M1, M2, 0)[:7] + [pub2(M1, M2, 0)[7:]]]
        afr = [f'ds_read_b64_tr_b16 {vr(AFR + 4 * s2 + 2 * rd, 2)}, v{vA3} offset:{s2 * 1024 + rd * 256}' for s2 in range(2) for rd in range(2)]
        b1u = self.seq(gather(BALL + 32, 32) + bread(2, 0) + bread(3, 64) + afr + mxop(BALL, 16, M2, True) + perms(BALL, DALL + 64)[:8] + mxop(BALL + 32, 16, M2, False)
                       + mxop(BALL + 16, 16, M1, True) + perms(BALL, DALL + 64)[8:] + interleave(fin2(), perms(BALL + 32, BALL)) + ['s_branch L_u1'])
        L = ['L_u0:'] + bread(2, 0) + bread(3, 64) + bread(4, 384) + bread(5, 384 + 64) + afr + mxop(BALL, 16, M2, True) + mxop(BALL + 16, 32, M1, True)
        L += perms(BALL, DALL + 64)[:4] + interleave(fin2(), perms(BALL, DALL + 64)[4:])
        L += [f'v_add_u32 v{WA[4]}, {192 * 64}, v{WA[2]}', f'v_add_u32 v{WA[5]}, {192 * 64}, v{WA[3]}',
              f's_cmp_lg_u32 s{S_WAVE}, 7', 's_cbranch_scc1 L_u1', 's_mov_b32 exec_lo, 0xfffffff0', 's_mov_b32 exec_hi, 0xfffffff0', f'v_mov_b32 v{WA[5]}, {OOB}', 's_mov_b64 exec, -1']
        b1q = self.seq(L)
        MXR = 108
        vM = 58

        def ureads(j):
            return [f'ds_read_u16_d16_hi v{XR + 2 * j}, v{vXa} offset:{XOFF(2 * j)}',
                    f'ds_read_u16_d16_hi v{XR + 2 * j + 1}, v{vXa} offset:{XOFF(2 * j) + 2}']
        mx3 = lambda j: f'v_max3_f32 v{vM}, |v{XR + 2 * j}|, |v{XR + 2 * j + 1}|, {"0" if j == 0 else f"v{vM}"}'
        L = ['L_u1:'] + self.stamp(1) + [WaitTag(lgkm0=True), 's_barrier'] + self.stamp(7) + self.probe('b1')
        L += [f'ds_read_b128 {vr(MXR, 4)}, v{vFR} offset:16'] + (pfx_b() + pfx_a() if o.pfx and o.pf1 == 1 else [])
        L += [f's_mul_i32 s{S_T0}, s{S_WAVE}, 384', f'v_lshrrev_b32 v{t3}, 2, v0', f'v_mul_u32_u24 v{t3}, 24, v{t3}', f'v_add_u32 v{t3}, s{S_T0}, v{t3}',
              f'v_and_b32 v{t4}, 3, v0', f'v_lshlrev_b32 v{t4}, 3, v{t4}']
        L += [f'ds_read_b64 {vr(UA + 2 * n_, 2)}, v{t3} offset:{TC_ + 8 * n_}' for n_ in range(3)]
        q1 = [f'v_add_u32 v{MXR}, {127 << 23:#x}, v{MXR}', f'v_lshrrev_b32 v{MXR}, 24, v{MXR}', f'v_sub_u32 v{MXR}, 267, v{MXR}', f'v_min_u32 v{MXR}, 167, v{MXR}',
              f'v_readfirstlane_b32 s{S_F1}, v{MXR}', f'v_mul_u32_u24 v{MXR}, 0x800080, v{MXR}']
        sc = [f'v_add_u32 v{MXR + 1}, {127 << 23:#x}, v{MXR + 1}', f'v_lshrrev_b32 v{MXR + 1}, 24, v{MXR + 1}',
              's_mov_b32 vcc_lo, 0x4000000', 's_mov_b32 vcc_hi, 0x4000000', f'v_cndmask_b32 v{vS}, v{MXR + 2}, v{MXR + 3}, vcc', f'v_lshrrev_b32 v{vS}, 23, v{vS}',
              f'v_add_u32 v{vS}, v{vS}, v{MXR + 1}', f'v_sub_u32 v{vS}, 388, v{vS}', f's_movk_i32 s{S_U0}, 167', f'v_med3_i32 v{vS}, v{vS}, 1, s{S_U0}',
              f'v_subrev_u32 v{MXR + 2}, 127, v{vS}', f'v_lshlrev_b32 v{vS}, 23, v{vS}', f'v_cmp_gt_i32 vcc, 0, v{MXR + 2}',
              f'v_mul_u32_u24 v{MXR + 2}, 0x800080, v{MXR + 2}']
        mq = mm2(DALL + 32, PM, BALL + 16) + mm2(DALL + 48, PM, BALL + 24)
        L += interleave(q1, sc[:6]) + [f'v_and_b32 v{PM + r}, v{PM + r}, v{MXR}' for r in range(8)] + interleave([mq[0], mq[2], mq[1], mq[3]], sc[6:]) + ['s_cbranch_vccnz L_sdown']
        L += [f'v_add_u32 v{AFR + r}, v{AFR + r}, v{MXR + 2}' for r in range(8)]
        u1a = self.seq(L)
        L = ['L_scaled:'] + interleave(mm2(DALL, DALL + 64, AFR) + mm2(DALL + 16, DALL + 72, AFR), sout(2) + sout(3))
        L += [f's_cmp_ge_u32 s{S_WAVE}, 5', 's_cbranch_scc1 L_u2']
        u1 = self.seq(L)
        u2u = self.seq(interleave(mm2(DALL + 64, BALL, AFR) + mm2(DALL + 80, BALL + 8, AFR), sout(0)) + ['s_branch L_u3'])
        u2q = self.seq(['L_u2:'] + interleave(mm2(DALL + 64, PM, BALL + 32) + mm2(DALL + 80, PM, BALL + 40), sout(0)))
        L = ['L_u3:'] + xidx() + xidx(112) + (pfx_b() + pfx_a() if o.pfx and o.pf1 == 2 else [])
        L += interleave(sout(1) + sout(4) + sout(5), [x for n_ in range(6) for x in (f'v_xor_b32 v{UA + n_}, v{UA + n_}, v{t4}', f'v_xor_b32 v{UX[n_]}, 32, v{UA + n_}')])
        L += [f'v_readlane_b32 s{S_CG}, v{vS}, 0', f'v_readlane_b32 s{S_IV}, v{vS}, 26',
              f's_sub_u32 s{S_F2}, {254 << 23:#x}, s{S_CG}', f's_sub_u32 s{S_IV}, {254 << 23:#x}, s{S_IV}',
              f's_sub_u32 s{S_F1}, 254, s{S_F1}', f's_lshl_b32 s{S_F1}, s{S_F1}, 23',
              f's_mov_b32 s{S_MASK}, 0x88888888', f's_mov_b32 s{S_MASK + 1}, 0x88888888']

        def sigma(s_):
            t = (s_ - 1) // 2
            first = (s_ - 1) % 2 == 0
            return (0 if first else 1) if t % 2 == 0 else (1 if first else 0)
        for s_ in range(1, 11):
            assert ((s_ - 1) // 2) * 1024 + sigma(s_) * 512 - (s_ // 4) * 2048 == (-1024, 0, 512, 1536)[s_ % 4]

        def p2read(n_):
            b = BALL + 16 * n_
            c = []
            UAl = list(range(UA, UA + 6))
            for x, (ar, off) in enumerate(((UAl, 0), (UX, 0), (UAl, SSZ), (UX, SSZ))):
                for y in range(2):
                    c.append(f'ds_read_b64_tr_b16 {vr(b + 4 * x + 2 * y, 2)}, v{ar[2 * n_ + y]} offset:{off}')
            return c

        def p2a(n_):
            b = BALL + 16 * n_
            c = []
            for x in range(4):
                c += [f'v_pk_add_f16 v{b + 4 * x + y}, v{b + 4 * x + y}, v{b + 4 * x + 2 + y}' for y in range(2)]
                if x in (0, 2):
                    c.append(f'ds_write_b64 v{vFw}, {vr(b + 4 * x, 2)} offset:{FR + n_ * 4 * 3072 + x * 1024}')
            c += [f'v_cndmask_b32 v{b + 4 + y}, v{b + 4 + y}, v{b + 12 + y}, s[{S_MASK}:{S_MASK + 1}]' for y in range(2)]
            c.append(f'ds_write_b64 v{vFw}, {vr(b + 4, 2)} offset:{FR + n_ * 4 * 3072 + 1024}')
            return c

        def p2s(n_):
            b = BALL + 16 * n_ + 12
            off = FRS + max(n_ * 2048 - 1024, 0)
            return ([f'v_subrev_u32 v{vT3}, 1024, v{vT3}'] if n_ == 0 else []) + [
                f'ds_write_b32 v{vT3}, v{b} offset:{off}', f'ds_write_b32 v{vT3}, v{b + 1} offset:{off + 16}']
        ec = []
        if o.econv:
            L += [f's_cmp_lg_u32 s{S_GRP}, 0', 's_cbranch_scc1 L_noec']
            u3 = self.seq(L)
            ec = self.seq([WaitTag(vm_tags=['XBa'])] + [x for j in range(13) for x in ureads(j)])
            L = ['L_noec:']
        else:
            u3 = []
        L += [WaitTag(vm_tags=['XB'] if o.xg1 else [], lgkm0=True), 's_barrier'] + self.stamp(10)
        L += p2read(0) + p2read(1) + [f's_cmp_ge_u32 s{S_WAVE}, 6', 's_cbranch_scc1 L_lin']
        b2 = self.seq(L)
        p2c = self.seq(p2read(2) + p2a(2) + p2s(2) + ['s_branch L_p2'])
        LB = BALL + 32
        ZR4 = t5
        L = ['L_lin:', f's_and_b32 s{S_U0}, s{S_WAVE}, 1', f's_cselect_b64 vcc, -1, 0', f's_lshl_b32 s{S_U1}, s{S_U0}, 5', f'v_mov_b32 v{ZR4}, 0',
             f'v_xor_b32 v{vV2r}, s{S_U1}, v{vV2r}', f'v_xor_b32 v{vV2q}, s{S_U1}, v{vV2q}', f'v_cndmask_b32 v{vWo}, v{vWo}, v{vWo + 1}, vcc',
             f'ds_read_b64_tr_b16 {vr(LB, 2)}, v{vV2r}', f'ds_read_b64_tr_b16 {vr(LB + 2, 2)}, v{vV2q}',
             f'ds_read_u16_d16_hi v{ZR4}, v{vWo}',
             f's_lshl_b32 s{S_U0}, s{S_U0}, 10', f'v_add_u32 v{t3}, s{S_U0}, v{vStg}']
        for r in range(4):
            a_, b_ = LB + 4 + 2 * r, LB + 5 + 2 * r
            L += [f'v_cvt_f32_f16 v{a_}, v{LB + r}', f'v_cvt_f32_f16_sdwa v{b_}, v{LB + r} dst_sel:DWORD dst_unused:UNUSED_PAD src0_sel:WORD_1',
                  f'v_mul_f32 v{a_}, s{S_IV}, v{a_}', f'v_mul_f32 v{b_}, s{S_IV}, v{b_}']
            if r == 3:
                L += ['s_mov_b32 exec_lo, 0', 's_mov_b32 exec_hi, 0xffff', f'v_mov_b32 v{a_}, v{ZR4}', 's_mov_b64 exec, -1']
            L += [f'v_mul_f32 v{a_}, s{S_CG}, v{a_}', f'v_mul_f32 v{b_}, s{S_CG}, v{b_}', f'v_cvt_pk_bf16_f32 v{LB + r}, v{a_}, v{b_}']
        L += [f'ds_write_b128 v{t3}, {vr(LB, 4)} offset:{FRL}']
        lin = self.seq(L)
        p2 = self.seq(['L_p2:'] + p2a(1) + p2s(1) + p2a(0) + [f's_cmp_lt_u32 s{S_WAVE}, 2', 's_cbranch_scc1 L_p2d'])
        p2e = self.seq(p2s(0) + ['s_branch L_built'])
        p2d = self.seq(['L_p2d:', f'ds_write_b64 v{vT3d}, {vr(BALL + 12, 2)} offset:{FRS + 5 * 1024}'])

        L = ['L_sdown:']
        for r in range(8):
            L += [f'v_lshlrev_b32 v{MXR}, 16, v{AFR + r}', f'v_and_b32 v{MXR + 1}, 0xffff0000, v{AFR + r}',
                  f'v_mul_f32 v{MXR}, v{MXR}, v{vS}', f'v_mul_f32 v{MXR + 1}, v{MXR + 1}, v{vS}', f'v_cvt_pk_bf16_f32 v{AFR + r}, v{MXR}, v{MXR + 1}']
        self.sdown = L + ['s_branch L_scaled']

        def PRE(w, sd=None):
            grp = w >> 2
            return (c0 + (g1s + (g1t if w < 6 else []) if grp else []) + csc + (v3p + v3 if grp else G0(w)) + cc0 + (cx if grp else []) + cc + (b1q if w >= 5 else b1u)
                    + (u1a if sd is None else u1a[:-8] + sd) + u1 + (u2q if w >= 5 else u2u) + u3 + ([] if grp else ec) + b2
                    + (lin if w >= 6 else p2c) + p2 + (p2d if w < 2 else p2e))
        L = ['L_built:'] + self.stamp(11)
        L += [f's_mov_b32 s{S_CG}, s{S_F1}', f's_mov_b32 s{S_IV}, s{S_F2}', f's_mov_b32 s{S_LO}, {f32hex(0.125)}', f's_mov_b32 s{S_HI}, {f32hex(0.0 if o.slow else 128.0)}']
        CV, vM, S_XD = 28, 58, 81

        def ureads(j):
            return [f'ds_read_u16_d16_hi v{XR + 2 * j}, v{vXa} offset:{XOFF(2 * j)}',
                    f'ds_read_u16_d16_hi v{XR + 2 * j + 1}, v{vXa} offset:{XOFF(2 * j) + 2}']
        mx3 = lambda j: f'v_max3_f32 v{vM}, |v{XR + 2 * j}|, |v{XR + 2 * j + 1}|, {"0" if j == 0 else f"v{vM}"}'
        cvt = lambda j: f'v_cvt_pk_f16_f32 v{CV + j % 4}, v{XR + 2 * j}, v{XR + 2 * j + 1}'
        iwr = lambda j: f'ds_write_b32 v{vIw}, v{CV + j % 4} offset:{j * IMGP}'
        S_SKIP = 51
        pfr = lambda: (pfx_b() + pfx_a() if o.pfx else []) + (pfw() if o.pfw else [])
        conv = lambda tag='XB': ([WaitTag(vm_tags=[tag])] + [x for j in range(13) for x in ureads(j)]
                        + [x for j in range(13) for x in (mx3(j), f'v_cvt_pk_f16_f32 v{D + j}, v{XR + 2 * j}, v{XR + 2 * j + 1}')])
        L += [f's_mov_b32 s{S_SKIP}, 1', f's_mul_i32 s{S_U0}, s{S_WAVE}, 1536', f's_add_u32 s{S_U0}, s{S_U0}, {PART}',
              f's_cmp_lg_u32 s{S_GRP}, 0', 's_cbranch_scc1 L_g1c']
        c2a = self.seq(L)
        c2g0 = self.seq([f's_sub_u32 s{S_SAMP}, s{S_SAMP}, {4 * 104}', Touch('v[112:115]')] + (conv('XBa')[27:] if o.econv else conv('XBa')) + [WaitTag(lgkm0=True), 's_barrier'] + self.probe('b4a') + self.stamp(8) + ['s_branch L_cin_go'])
        DX = XB2 - XB - 4 * XBSZ
        L = ['L_g1c:', WaitTag(vm_tags=['XB'], lgkm0=True), 's_barrier'] + self.stamp(8) + self.probe('b4')
        L += [f's_add_u32 s{S_XM0}, s{S_XM0}, {DX}'] + xdma(tag='XB0') + xdma(112, 4 * XBSZ) + xidx() + pfr() + [f'v_add_u32 v{r}, {DX}, v{r}' for r in (vXa, vLin0, vLin1)]
        L += [f'ds_write_b32 v{vXa}, v{vXi1} offset:{XOFF(26)}', f'ds_write_b32 v{vXa}, v{vXi1} offset:{XOFF(26) + 4 * XBSZ}']
        c2g1 = self.seq(L)
        c2b = []
        c2g1d = self.seq(['L_g1d:'] + conv('XB0'))
        c2c = self.seq(['L_cin_go:'] + [f'ds_write_b32 v{vIw}, v{D + j} offset:{j * IMGP}' for j in range(13)]
                       + [f's_mov_b32 s{S_XD}, {4 * XBSZ}', f's_add_u32 s{S_XM0}, s{S_XM0}, {4 * XBSZ}',
                          f'v_lshlrev_b32 v{vXi1}, 2, v0', f'v_add_u32 v{vXi1}, s{S_U0}, v{vXi1}'])

        NWF = 5
        PF = o.cpfd
        zslot = lambda s_: 1 if s_ % 2 == 0 else (0 if ((s_ - 1) // 2) % 2 == 0 else 2)
        zr = lambda T, sl: Z + 12 * T + 4 * sl
        preg = lambda T, r: P + 14 * T + (r if r < 14 else r - 14)
        acc = lambda T, tile: D + 16 * T + 4 * tile
        jobs = [('l', 0, 0), ('l', 0, 1)]
        for s_ in range(11):
            jobs += [('d', s_, 2), ('d', s_, 0), ('d', s_, 1)]
            if s_ == 0:
                jobs.append(('d', 0, 3))
            elif s_ % 2 == 0:
                jobs.append(('s', s_, 3))
        NJ = len(jobs)
        assert NJ == 41

        def wread(n):
            kind, s_, tile = jobs[n]
            off = FRL + tile * 1024 if kind == 'l' else (FR + s_ * 3072 + tile * 1024 if tile < 3 else FRS + (5 if s_ == 0 else (s_ - 1) // 2) * 1024)
            return f'ds_read_b128 {vr(WF + 4 * (n % NWF), 4)}, v{vFa} offset:{off}'

        def mfma(n, T):
            kind, s_, tile = jobs[n]
            a = vr(WF + 4 * (n % NWF), 4)
            d = vr(acc(T, tile), 4)
            if kind == 'l':
                return f'v_mfma_f32_16x16x32_bf16 {d}, {a}, {vr(zr(T, 2), 4)}, 0'
            if kind == 's':
                lo = 0 if ((s_ - 1) // 2) % 2 == 0 else 1
                return f'v_smfmac_f32_16x16x64_f16 {d}, {a}, {vr(zr(T, lo), 8)}, v{vIDX}'
            return f'v_mfma_f32_16x16x32_f16 {d}, {a}, {vr(zr(T, zslot(s_)), 4)}, {"0" if (s_ == 0 and tile >= 2) else d}'

        def pk(T, n):
            a, b, s0, s1 = cin16.INS[n]
            return (f'v_pk_mul_f16 v{zr(T, zslot(n // 4)) + n % 4}, v{preg(T, a)}, v{preg(T, b)} '
                    f'op_sel:[{s0[0]},{s0[1]}] op_sel_hi:[{s1[0]},{s1[1]}]')

        def trp(T, rp):
            return f'ds_read_b64_tr_b16 {vr(preg(T, 2 * rp), 2)}, v{vTR + rp} offset:{32 * T}'

        LASTA = max(n for n, x in enumerate(cin16.INS) if x[0] < 2)
        S_A1, S_A2, S_PINC = 49, 50, 48
        fin = []
        for T in range(4):
            fin += [(acc(T, 0) + r, acc(T, 2) + r) for r in range(4)] + [(acc(T, 1), acc(T, 1) + 3)]
        for T in range(4):
            fin += [(acc(T, 1) + 1 + (r >> 1), acc(T, 3) + r) for r in range(4)]

        def final(f1, f2):
            c = []
            for k, (a, b) in enumerate(fin):
                d = Z + k % 4
                c.append(f'v_mul_f32 v{d}, v{a}, v{b}' if k < 4 else f'v_fmac_f32 v{d}, v{a}, v{b}')
            c += [f'v_add_f32 v{Z}, v{Z}, v{Z + 1}', f'v_add_f32 v{Z + 2}, v{Z + 2}, v{Z + 3}', f'v_add_f32 v{Z}, v{Z}, v{Z + 2}']
            c += [f'v_mul_f32 v{Z}, s{x}, v{Z}' for x in (f1, f2)]
            return c + [f'ds_write_b32 v{vXi1}, v{Z}']
        code = ['L_cin_loop:', f'v_cmp_le_f32 s[{S_CM}:{S_CM + 1}], s{S_HI}, v{vM}', f'v_cmp_le_f32 vcc, s{S_LO}, v{vM}',
                f's_mov_b32 s{S_A1}, s{S_F1}', f's_mov_b32 s{S_A2}, s{S_F2}',
                f's_cmp_lg_u64 s[{S_CM}:{S_CM + 1}], 0', 's_cbranch_scc1 L_cslow', 's_cbranch_vccz L_cslow']
        cA = self.seq(code)
        RD = []
        for rp in (0, 3, 4):
            RD += [trp(T, rp) for T in range(4)]
        for T in range(4):
            RD += [f'ds_read_b64_tr_b16 {vr(zr(T, 2), 2)}, v{vLin0} offset:{32 * T}', f'ds_read_b64_tr_b16 {vr(zr(T, 2) + 2, 2)}, v{vLin1} offset:{32 * T}']
        RD += [wread(k) for k in range(PF)]
        for rp in (5, 6, 1, 2):
            RD += [trp(T, rp) for T in range(4)]
        pfr = lambda: (pfx_b() + pfx_a() if o.pfx else []) + (pfw() if o.pfw else [])
        vm = xdma() + xidx() + pfr()
        VA = final(S_A1, S_A2) + [f'v_add_u32 v{vXi1}, 256, v{vXi1}']
        PK0 = [pk(T, n) for T in range(4) for n in range(4)]
        TG = [f'v_add_u32 v{r}, s{S_XD}, v{r}' for r in (vXa, vLin0, vLin1)] + [f's_sub_u32 s{S_XM0}, s{S_XM0}, s{S_XD}', f's_sub_u32 s{S_XD}, 0, s{S_XD}', f's_mov_b32 s{S_SKIP}, 0']
        cB0 = self.seq(['L_cconv:', f's_cmp_lg_u32 s{S_SKIP}, 0', 's_cbranch_scc1 L_first'])
        cVM = self.seq(interleave(RD, VA) + PK0 + vm)
        self.first = ['L_first:'] + RD[:28] + interleave(RD[28:], PK0) + ['s_branch L_novm']
        code = ['L_novm:'] + TG
        LA = 1
        def lstamp(base):
            if not (o.stamps and o.cst):
                return []
            return [f's_memtime s[{S_ST}:{S_ST + 1}]', f's_memrealtime s[{S_ST + 2}:{S_ST + 3}]', f's_sub_u32 s{S_C0}, {base + 6}, s{S_LOOP}', 's_waitcnt lgkmcnt(0)',
                    f's_mov_b32 m0, s{S_C0}', f'v_writelane_b32 v252, s{S_ST}, m0', f'v_writelane_b32 v253, s{S_ST + 2}, m0']
        code += lstamp(19)
        code += [Touch(vr(WF, 4)), Touch(vr(zr(3, 2), 4))] + ([f's_cmp_eq_u32 s{S_GRP}, 0', 's_cbranch_scc1 L_np1', 's_setprio 1', 'L_np1:'] if o.gprio else ['s_setprio 1'])
        MS = [(n, T) for n in range(NJ) for T in range(4)]
        first_use, last_use = {}, {}
        for mi, (n, T) in enumerate(MS):
            kind, s_, tile = jobs[n]
            if kind == 'l':
                last_use[(T, 'lin')] = mi
                continue
            for su in ([s_] if kind == 'd' else [s_ - 1, s_]):
                first_use.setdefault((T, su), mi)
                last_use[(T, su)] = mi
        V = []
        for s_ in range(LA, 11):
            prev = [p_ for p_ in range(s_) if zslot(p_) == zslot(s_)]
            for T in range(4):
                rdy = last_use[(T, prev[-1])] + o.war if prev else (last_use[(T, 'lin')] if zslot(s_) == 2 else -1)
                for n in range(4 * s_, 4 * s_ + 4):
                    V.append((pk(T, n), rdy, first_use[(T, s_)], n, T))
        forced = 0
        late = []
        XL_ = [x for j in range(13) for x in ureads(j)]
        xrd = {}
        CVR = [preg(T, r) for r in (2, 3, 6, 7) for T in range(4)]
        cvrdy = max(n for n, x in enumerate(cin16.INS) if set(x[:2]) & {2, 3, 6, 7})
        cvt2 = lambda j: f'v_cvt_pk_f16_f32 v{CVR[j]}, v{XR + 2 * j}, v{XR + 2 * j + 1}'
        iwr2 = lambda j: f'ds_write_b32 v{vIw}, v{CVR[j]} offset:{j * IMGP}'
        nm = nc = nw = 0
        V.sort(key=lambda x: x[2])
        prev2 = 0
        for mi, (n, T) in enumerate(MS):
            while V and V[0][2] <= mi:
                assert V[0][1] < mi
                code.append(V.pop(0)[0]); forced += 1
            code.append(mfma(n, T))
            t = 4
            if o.cbar and mi == len(MS) - 1 - o.cbov:
                code += ['s_setprio 3', 's_barrier']; t += 8
            if not o.cbar and mi == 4 * o.hiat - 2:
                code.append('s_setprio 2'); t += 4
            if T == 3 and n + 1 < NJ:
                code.append(Touch(vr(WF + 4 * ((n + 1) % NWF), 4))); t += 4
            if T == 0 and n + PF < NJ:
                code.append(wread(n + PF)); t += 8
            elif T in (1, 2) and late:
                code.append(late.pop(0)); t += 8
            elif T in (1, 2) and mi >= o.x0 and XL_:
                if len(XL_) == 26:
                    code.append(WaitTag(vm_tags=['XB']))
                code.append(XL_.pop(0)); t += 8
                if len(XL_) % 2 == 0:
                    xrd[12 - len(XL_) // 2] = mi
            elif not V and nw < nc and t == 4:
                code.append(iwr2(nw)); nw += 1; t += 12
            t = max(t, 12 if jobs[n][0] == 's' else 8)
            k = 0
            while t < 16:
                urgent = any(V[q_][2] - 1 - mi < q_ + 1 for q_ in range(min(24, len(V))))
                if k == 1 and prev2 >= o.max2 and not urgent:
                    break
                cand = [x for x in V[:32] if x[1] <= mi]
                extra = None
                if nm < 13 and nm in xrd and xrd[nm] + o.xlat <= mi:
                    extra = 'm'
                elif nc < nm and all(x[3] > cvrdy for x in V):
                    extra = 'c'
                if cand and (k == 0 or urgent or not extra) and (k == 0 or urgent or o.eager):
                    x = cand[0]
                    V.remove(x)
                    code.append(x[0])
                    if x[3] <= LASTA and all(y[3] > LASTA for y in V if y[4] == x[4]):
                        late.append(trp(x[4], 7))
                elif extra == 'm':
                    code.append(mx3(nm)); nm += 1
                elif extra == 'c':
                    code.append(cvt2(nc)); nc += 1
                else:
                    break
                t += 4; k += 1
            prev2 = prev2 + 1 if k == 2 else 0
        assert not late and not XL_ and not V
        print('left', 13 - nm, 13 - nc, 13 - nw)
        tail = [mx3(j) for j in range(nm, 13)] + [cvt2(j) for j in range(nc, 13)] + [iwr2(j) for j in range(nw, 13)]
        print('forced VALU', forced)
        code += lstamp(25)
        code.append(f's_setprio {o.p0}')
        code += [f's_sub_u32 s{S_LOOP}, s{S_LOOP}, 1', f's_cmp_eq_u32 s{S_LOOP}, 0', 's_cbranch_scc1 L_cin_done'] + tail
        ntail = len(tail) + 1
        def keep(x):
            t_ = x.text if isinstance(x, I) else x
            if isinstance(t_, tuple):
                return True
            if 'nopk' in o.dbg and t_.startswith('v_pk_mul_f16'):
                return False
            if 'nowf' in o.dbg and t_.startswith('ds_read_b128'):
                return False
            if 'nosm' in o.dbg and t_.startswith('v_smfmac'):
                return False
            return True
        code = [x for x in code if keep(x)]
        if 'bf' in o.dbg:
            code = [x.replace('x32_f16', 'x32_bf16').replace('x64_f16', 'x64_bf16') if isinstance(x, str) else x for x in code]
        cB = self.seq(code + ['s_branch L_cin_loop'])
        mark0 = len(self.P.static)
        bl = []
        if o.burn:
            bl = [f's_movk_i32 s{S_LOOP}, {o.burn // 2}', 'L_burn2:'] + [f'v_mfma_f32_16x16x32_f16 {vr(P + 4 * (k % 2), 4)}, {vr(WF + 4 * (k % 4), 4)}, {vr(Z + 4 * (k // 4), 4)}, 0' for k in range(32)]
            bl += [f's_sub_u32 s{S_LOOP}, s{S_LOOP}, 1', f's_cmp_lg_u32 s{S_LOOP}, 0', 's_cbranch_scc1 L_burn2']
        L = ['L_cin_done:', f's_mul_i32 s{S_U0}, s{S_WAVE}, 1536', f's_add_u32 s{S_U0}, s{S_U0}, {PART}',
             f'v_lshlrev_b32 v{Z + 4}, 5, v0', f'v_add_u32 v{Z + 4}, s{S_U0}, v{Z + 4}',
             f'ds_read_b128 {vr(P, 4)}, v{Z + 4}', f'ds_read_b128 {vr(P + 4, 4)}, v{Z + 4} offset:16'] + bl + final(S_F1, S_F2)[:-1]
        E = [f'v_subrev_u32 v{Z + 6}, s{S_U0}, v{vXi1}', f'v_lshrrev_b32 v{Z + 6}, 8, v{Z + 6}', f'v_lshrrev_b32 v{Z + 5}, 3, v0', f'v_cmp_gt_u32 vcc, v{Z + 6}, v{Z + 5}',
             f'v_min_u32 v{Z + 5}, v{Z + 5}, v{Z + 6}', f'v_lshlrev_b32 v{Z + 5}, 4, v{Z + 5}', f'v_add_u32 v{Z + 5}, s{S_RC}, v{Z + 5}',
             ] + [f'v_add_f32 v{P + a_}, v{P + a_}, v{P + b_}' for a_, b_ in ((0, 1), (2, 3), (4, 5), (6, 7), (0, 2), (4, 6), (0, 4))]
        E += [f'v_add_f32_dpp v{P}, v{P}, v{P} {ctl} row_mask:0xf bank_mask:0xf' for ctl in ('quad_perm:[1,0,3,2]', 'quad_perm:[2,3,0,1]', 'row_half_mirror')]
        L += interleave([f'v_add_f32_dpp v{Z}, v{Z}, v{Z} {ctl} row_mask:{rm} bank_mask:0xf' for ctl, rm in DPPS], E)
        L += [f'v_cndmask_b32 v{P}, v{Z}, v{P}, vcc', 's_bitset1_b32 vcc_hi, 31', 's_mov_b64 exec, vcc', f'ds_write_b32 v{Z + 5}, v{P}', 's_mov_b64 exec, -1']
        L += self.stamp(9) + self.stamp_flush() + self.probe('cend') + [f's_cmp_eq_u32 s{S_WAVE}, 0', 's_cbranch_scc1 L_cpub', 's_waitcnt lgkmcnt(0)', 's_barrier', 's_endpgm',
              'L_cpub:', f's_load_dword s{S_BOUT}, s[{S_BO}:{S_BO + 1}], 0'] + self.pubsrd() + [
              'v_lshlrev_b32 v6, 2, v0', f'v_add_u32 v2, {RC}, v6', 'v_add_u32 v4, 1024, v6',
              f's_mul_i32 s{S_T1}, s{S_MB}, 192', f's_add_u32 s{S_T1}, s{S_T1}, {13 * WSP}',
              'v_mov_b32 v13, -1', 's_mov_b32 exec_hi, 0xffff', f'buffer_store_dword v13, v6, {srd(SRD_WS)}, s{S_T1} offen sc1', 's_mov_b64 exec, 1',
              f'buffer_load_dword v250, v6, {srd(SRD_OUT)}, 0 offen', f'buffer_load_dword v251, v6, {srd(SRD_DBG)}, 0 offen offset:240 sc1', 's_mov_b64 exec, -1',
              f's_mul_i32 s{S_T0}, s{S_MB}, 3', f's_mul_i32 s{S_T2}, s{S_T0}, 3277', f's_lshr_b32 s{S_T2}, s{S_T2}, 16',
              f'v_add_u32 v7, s{S_T2}, v0', f's_mul_i32 s{S_T2}, s{S_T2}, 20', f's_add_u32 s{S_T2}, s{S_T2}, 20',
              f's_sub_u32 s{S_T2}, s{S_T2}, s{S_T0}', f's_min_u32 s{S_T2}, s{S_T2}, 3', f's_sub_u32 s{S_T0}, 3, s{S_T2}',
              f'v_mov_b32 v5, s{S_T0}', f'v_writelane_b32 v5, s{S_T2}, 0',
              f's_cmp_eq_u32 s{S_T0}, 0', f's_cselect_b32 s{S_T0}, 1, 3',
              'v_lshlrev_b32 v3, 4, v0', 's_mov_b32 exec_hi, 0xffff', 's_waitcnt vmcnt(0) lgkmcnt(0)', 's_barrier'] + self.probe('cend2') + ['ds_read_b32 v64, v2']
        L += (self.stamp(16) if o.diag else [])
        L += ['v_min_u32 v64, -2, v64'] if o.sent else []
        L += [f'buffer_store_dword v64, v6, {srd(SRD_WS)}, s{S_T1} offen sc1', f's_mov_b32 exec_lo, s{S_T0}', 's_mov_b32 exec_hi, 0', 's_branch L_pub']
        fin_ = self.seq(L)
        blk = self.P.static[mark0:]
        del self.P.static[mark0:]
        at = self.P.static.index(self.pub[-1]) + 1
        self.P.static[at:at] = blk + self.ldblk
        L = ['L_cslow:']
        for (ctl, rm) in (('row_shr:1', '0xf'), ('row_shr:2', '0xf'), ('row_shr:4', '0xf'), ('row_shr:8', '0xf'),
                          ('row_bcast:15', '0xa'), ('row_bcast:31', '0xc')):
            L.append(f'v_max_f32_dpp v{vM}, v{vM}, v{vM} {ctl} row_mask:{rm} bank_mask:0xf')
        L += [f'v_readlane_b32 s{S_U0}, v{vM}, 63', f's_mov_b32 s{S_HI}, 0',
              f's_lshr_b32 s{S_U0}, s{S_U0}, 23', f's_min_u32 s{S_U0}, s{S_U0}, {127 + 55}',
              f's_lshr_b32 s{S_U1}, s{S_IV}, 23', f's_sub_u32 s{S_U1}, s{S_U1}, 47', f's_lshr_b32 s{S_U1}, s{S_U1}, 1', f's_min_u32 s{S_U1}, s{S_U1}, 59',
              f's_sub_u32 s{S_U1}, 131, s{S_U1}', f's_max_u32 s{S_U0}, s{S_U0}, s{S_U1}',
              f's_sub_u32 s{S_U1}, {127 + 4 + 127}, s{S_U0}',
              f's_lshl_b32 s{S_U2}, s{S_U1}, 1', f's_sub_u32 s{S_U2}, s{S_U2}, 127',
              f's_sub_u32 s{S_G}, 254, s{S_U2}', f's_lshl_b32 s{S_G}, s{S_G}, 23',
              f'v_mov_b32 v{P}, s{S_G}', f'v_mul_f32 v{P + 1}, s{S_CG}, v{P}', f'v_mul_f32 v{P}, s{S_IV}, v{P}',
              f'v_readfirstlane_b32 s{S_F1}, v{P + 1}', f'v_readfirstlane_b32 s{S_F2}, v{P}',
              f's_lshl_b32 s{S_U1}, s{S_U1}, 23', f's_lshl_b32 s{S_U2}, s{S_U2}, 23']
        TS = P
        for j in range(13):
            L += [f'v_mul_f32 v{TS}, s{S_U1}, v{XR + 2 * j}', f'v_mul_f32 v{TS + 1}, s{S_U1}, v{XR + 2 * j + 1}',
                  f'v_mul_f32 v{TS + 2}, s{S_U2}, v{XR + 2 * j}', f'v_mul_f32 v{TS + 3}, s{S_U2}, v{XR + 2 * j + 1}',
                  f'v_cvt_pk_f16_f32 v{TS + 20 + j}, v{TS}, v{TS + 1}', f'v_cvt_pk_bf16_f32 v{TS + 4 + j}, v{TS + 2}, v{TS + 3}',
                  f'ds_write_b32 v{vIw}, v{TS + 20 + j} offset:{j * IMGP}', f'ds_write_b32 v{vXa}, v{TS + 4 + j} offset:{XOFF(2 * j)}']
        L += [f'v_mov_b32 v{TS}, s{S_U2}', f'v_cvt_pk_bf16_f32 v{TS}, v{TS}, v{TS}',
              's_mov_b32 exec_hi, 0', f'ds_write_b32 v{vXa}, v{TS} offset:{XOFF(26)}', 's_mov_b32 exec_hi, -1',
              's_waitcnt lgkmcnt(0)', 's_branch L_cconv']
        slow = self.seq(L)
        sdown = self.seq(self.sdown)
        cF = self.seq(self.first)
        traces = []
        for w in range(8):
            grp = w >> 2
            c2 = c2a + (c2g1 + (c2b if w == 4 else []) + c2g1d if grp else c2g0) + c2c
            it = lambda sl, first: cA + (slow if sl else []) + cB0 + (cF if first else cVM) + cB
            traces.append(PRE(w) + c2 + it(0, 1) + it(0, 0) + it(0, 0)[:-ntail] + fin_ + self.pub)
            if w in (0, 4):
                traces.append(PRE(w, sdown) + c2 + it(1, 1) + it(1, 0)[:-ntail] + fin_ + self.pub)
        return traces

    def build(self):
        pro = self.prologue()
        d = self.dnn()
        cs = self.cin()
        self.seq(['L_end:', 's_endpgm'])
        traces = [pro + c for c in d + cs] + self.extra_traces
        for t in traces:
            resolve_waits(t)
        for _ in range(2):
            for t in traces:
                resolve_hazards(t)
        hdr = open(os.path.join(os.path.dirname(os.path.abspath(__file__)), 'header.txt')).read()
        txt = hdr + f'; @launch grid=(256,1,1) block=(512,1,1) lds={LDS_TOTAL}\n'
        txt += f'''.amdgcn_target "amdgcn-amd-amdhsa--gfx950"
{DOC}.text
.globl {KNAME}
.p2align 8
.type {KNAME},@function
{KNAME}:
'''
        body_ = self.P.emit()
        if self.opt.align:
            for lab in ('L_dnn_loop0:', 'L_dnn_loop1:', 'L_cin_loop:', 'L_epi:'):
                pad = '  s_nop 0\n' if self.opt.align > 100 else ''
                body_ = body_.replace(lab + '\n', f'.p2align {self.opt.align % 100}\n{pad}{lab}\n')
        if self.opt.cwalk:
            lines = body_.split('\n')
            i0, i1 = lines.index('L_w2:'), lines.index('L_cslow:')
            out, k, cnt = lines[:i0], 0, 0
            seg = lines[i0:i1]
            prot = 0
            for n_, l in enumerate(seg):
                out.append(l)
                t = l.strip()
                cnt += 1
                inmain = 'L_novm:' in seg[:n_ + 1]
                nxt = seg[n_ + 1].strip() if n_ + 1 < len(seg) else ''
                ok = t.endswith(':') or (cnt >= self.opt.cwalk and ('mfma' in t and nxt.startswith('v_pk') if inmain else t.startswith(('ds_', 'v_perm', 'v_cvt_pk'))))
                if ok and t not in ('L_cin_loop:', 'L_cconv:', 'L_scaled:'):
                    out += [f'L_wp{k}:', f'  s_cbranch_execz L_wp{k + 1}']
                    k += 1; cnt = 0
            j = lines.index('L_first:')
            rest = lines[i1:j + 1] + [f'L_wp{k}:', '  s_cbranch_execz L_wret'] + lines[j + 1:]
            body_ = '\n'.join(out + rest)
            print('walk pads', k + 1)
            self.npads = k + 1
            for q_ in range(4):
                body_ = body_.replace(f'L_WENTRY{q_}', f'L_wp{q_ * (k + 1) // 4}')
        if self.opt.fix:
            body_ = fixalign.fix(body_ + 'L_tables:\n', self.opt.fix)[:-len('L_tables:\n')]
        txt += body_
        tb = self.tables()
        assert len(tb) == 16 * 256
        txt += '.p2align 8\nL_tables:\n' + ''.join('.long ' + ', '.join(f'{x:#x}' for x in tb[i:i + 8]) + '\n' for i in range(0, len(tb), 8))
        txt += f'''.section .rodata,"a"
.p2align 6
.amdhsa_kernel {KNAME}
  .amdhsa_next_free_vgpr 256
  .amdhsa_next_free_sgpr 102
  .amdhsa_accum_offset 256
  .amdhsa_group_segment_fixed_size 0
  .amdhsa_kernarg_size 88
  .amdhsa_user_sgpr_count 2
  .amdhsa_user_sgpr_kernarg_segment_ptr 1
  .amdhsa_system_sgpr_workgroup_id_x 1
  .amdhsa_float_denorm_mode_32 {self.opt.denorm}
.end_amdhsa_kernel
'''
        return txt


def main():
    ap = argparse.ArgumentParser()
    ap.add_argument('-o', default='standalone__deep_cross_xdeepfm__recsys.s')
    ap.add_argument('--stamps', action='store_true')
    ap.add_argument('--nodma', action='store_true')
    ap.add_argument('--cpf', type=int, default=1)
    ap.add_argument('--coop', type=int, default=3)
    ap.add_argument('--coopw', type=int, default=2)
    ap.add_argument('--tbpos', type=int, default=0)
    ap.add_argument('--dbar3', type=int, default=1)
    ap.add_argument('--tlb', type=int, default=0)
    ap.add_argument('--tlb2', type=int, default=1)
    ap.add_argument('--itst', type=int, default=0)
    ap.add_argument('--diag', type=int, default=0)
    ap.add_argument('--dbg', default='')
    ap.add_argument('--lead3', type=int, default=1)
    ap.add_argument('--morder', type=int, default=0)
    ap.add_argument('--etlb', type=int, default=0)
    ap.add_argument('--lateb', type=int, default=0)
    ap.add_argument('--wfl', default='')
    ap.add_argument('--xfl', default='')
    ap.add_argument('--tag', type=int, default=0)
    ap.add_argument('--idxfirst', type=int, default=1)
    ap.add_argument('--bpos', type=int, default=2)
    ap.add_argument('--sigat', type=int, default=4)
    ap.add_argument('--epx', type=int, default=1)
    ap.add_argument('--denorm', type=int, default=3)
    ap.add_argument('--mprio', type=int, default=0)
    ap.add_argument('--swap', type=int, default=0)
    ap.add_argument('--bov', type=int, default=1)
    ap.add_argument('--rfirst', type=int, default=0)
    ap.add_argument('--g1x', type=int, default=0)
    ap.add_argument('--ldsred', type=int, default=0)
    ap.add_argument('--csnake', type=int, default=0)
    ap.add_argument('--cswap', type=int, default=0)
    ap.add_argument('--align', type=int, default=0)
    ap.add_argument('--c2', type=int, default=0)
    ap.add_argument('--d1', type=int, default=0)
    ap.add_argument('--cstr', type=int, default=3)
    ap.add_argument('--bearly', type=int, default=1)
    ap.add_argument('--w2late', type=int, default=1)
    ap.add_argument('--aov', type=int, default=5)
    ap.add_argument('--upos', type=int, default=1)
    ap.add_argument('--calt', type=int, default=1)
    ap.add_argument('--pfpos', type=int, default=1)
    ap.add_argument('--wlate', type=int, default=0)
    ap.add_argument('--dbar2', type=int, default=0)
    ap.add_argument('--dbar', type=int, default=0)
    ap.add_argument('--pfw', type=int, default=0)
    ap.add_argument('--pfx', type=int, default=0)
    ap.add_argument('--pfx0', type=int, default=4)
    ap.add_argument('--pfs', type=int, default=1)
    ap.add_argument('--dcoopx', type=int, default=1)
    ap.add_argument('--dcx0', type=int, default=0)
    ap.add_argument('--dcxpos', type=int, default=-1)
    ap.add_argument('--pfe0', type=int, default=2)
    ap.add_argument('--pfne', type=int, default=13)
    ap.add_argument('--prio47', type=int, default=0)
    ap.add_argument('--lookahead', type=int, default=5)
    ap.add_argument('--nz', type=int, default=6)
    ap.add_argument('--nwf', type=int, default=8)
    ap.add_argument('--hiat', type=int, default=4)
    ap.add_argument('--wmerge', type=int, default=0)
    ap.add_argument('--gapv', type=int, default=6)
    ap.add_argument('--slow', type=int, default=0)
    ap.add_argument('--dbar0', type=int, default=2)
    ap.add_argument('--ptl', type=int, default=0)
    ap.add_argument('--ct2', default='')
    ap.add_argument('--ewat', type=int, default=0)
    ap.add_argument('--gprio', type=int, default=1)
    ap.add_argument('--g1t', type=int, default=1)
    ap.add_argument('--tf0', type=int, default=6)
    ap.add_argument('--twoff', type=int, default=0)
    ap.add_argument('--ew', type=int, default=4)
    ap.add_argument('--ew0', type=int, default=2)
    ap.add_argument('--cyc', default='')
    ap.add_argument('--rshare', type=int, default=1)
    ap.add_argument('--dwalk', type=int, default=0)
    ap.add_argument('--band', type=int, default=0)
    ap.add_argument('--absol', type=int, default=0)
    ap.add_argument('--rev', type=int, default=1)
    ap.add_argument('--xg1', type=int, default=0)
    ap.add_argument('--bou', type=int, default=1)
    ap.add_argument('--sjw', type=int, default=7)
    ap.add_argument('--cwalk', type=int, default=0)
    ap.add_argument('--few', default='')
    ap.add_argument('--econv', type=int, default=0)
    ap.add_argument('--nsh', type=int, default=16)
    ap.add_argument('--sh0', type=int, default=5)
    ap.add_argument('--dirt', type=int, default=0)
    ap.add_argument('--mrg', type=int, default=0)
    ap.add_argument('--g1p', type=int, default=0)
    ap.add_argument('--sa', type=int, default=4)
    ap.add_argument('--sbg', type=int, default=16)
    ap.add_argument('--bwat', type=int, default=0)
    ap.add_argument('--x2n', type=int, default=8)
    ap.add_argument('--sent', type=int, default=1)
    ap.add_argument('--spec', type=int, default=0)
    ap.add_argument('--probe', default='')
    ap.add_argument('--skew', type=int, default=0)
    ap.add_argument('--fix', type=int, default=64)
    ap.add_argument('--walk', type=int, default=0)
    ap.add_argument('--eal', type=int, default=3)
    ap.add_argument('--eoff', type=int, default=0)
    ap.add_argument('--ct', default='024')
    ap.add_argument('--rot', type=int, default=13)
    ap.add_argument('--i0', type=int, default=1)
    ap.add_argument('--i1', type=int, default=10)
    ap.add_argument('--burn', type=int, default=0)
    ap.add_argument('--lord', type=int, default=1)
    ap.add_argument('--lprio', type=int, default=0)
    ap.add_argument('--rsp', type=int, default=0)
    ap.add_argument('--tch', type=int, default=1)
    ap.add_argument('--tf', type=int, default=4)
    ap.add_argument('--toff', type=int, default=1)
    ap.add_argument('--tw0', type=int, default=8)
    ap.add_argument('--xat', type=int, default=0)
    ap.add_argument('--pf1', type=int, default=1)
    ap.add_argument('--lpf', type=int, default=20)
    ap.add_argument('--lpfit', type=int, default=6)
    ap.add_argument('--x1m', type=int, default=10)
    ap.add_argument('--bgap', type=int, default=6)
    ap.add_argument('--cprio', type=int, default=1)
    ap.add_argument('--x1n', type=int, default=5)
    ap.add_argument('--w0', type=int, default=2)
    ap.add_argument('--dbar1', type=int, default=1)
    ap.add_argument('--aon', type=int, default=2)
    ap.add_argument('--cbar', type=int, default=0)
    ap.add_argument('--vmpos', type=int, default=2)
    ap.add_argument('--il2', type=int, default=0)
    ap.add_argument('--p1', type=int, default=0)
    ap.add_argument('--pm', type=int, default=2)
    ap.add_argument('--cbov', type=int, default=3)
    ap.add_argument('--p0', type=int, default=0)
    ap.add_argument('--max2', type=int, default=2)
    ap.add_argument('--eager', type=int, default=0)
    ap.add_argument('--cst', type=int, default=0)
    ap.add_argument('--x0', type=int, default=60)
    ap.add_argument('--xlat', type=int, default=18)
    ap.add_argument('--xper', type=int, default=3)
    ap.add_argument('--xc0', type=int, default=0)
    ap.add_argument('--n3', type=int, default=1)
    ap.add_argument('--xi0', type=int, default=1)
    ap.add_argument('--pfsat', type=int, default=0)
    ap.add_argument('--g1prio', type=int, default=0)
    ap.add_argument('--xearly', type=int, default=1)
    ap.add_argument('--cpfd', type=int, default=4)
    ap.add_argument('--cla', type=int, default=1)
    ap.add_argument('--war', type=int, default=1)
    opt = ap.parse_args()
    resolve_waits.dbg = 'dup' in opt.dbg
    g = Gen(opt)
    txt = g.build()
    open(opt.o, 'w').write(txt)
    print('wrote', opt.o, len(txt), 'bytes')


if __name__ == '__main__':
    main()
```

```python
import sys, os, struct, argparse
sys.path.insert(0, os.path.dirname(os.path.abspath(__file__)))
from asmlib import I, WaitTag, Touch, Prog, resolve_waits, resolve_hazards
import cin16, fixalign

KNAME = 'standalone__deep_cross_xdeepfm__recsys_kernel'
LDS_TOTAL = 163840

XSLOT = 320 * 128
WR = 3 * XSLOT + 8192
WSLOT = 32 * 256
L_BIAS = 3 * XSLOT
L_W2 = L_BIAS + 256
RB = L_W2 + 256
assert WR % 32768 == 0 and WR + 4 * WSLOT <= LDS_TOTAL
WSP = 16640
assert RB + 2560 <= LDS_TOTAL

W2P = 1536
SSZ = 677 * 64
FRS = 0
V3OFF = 0
A1 = 6144
FR = A1
FRL = FR + 33 * 1024
A3 = FRL + 2048
SG = A3
A2 = SG + SSZ
SQ = A2
V2S = SQ + SSZ
L_WCO = V2S + 832
L_FLG = L_WCO + 192
L_MX = L_FLG + 16
RC = L_FLG + 64
XB = V2S + 2496
XPP = 1056
XBSZ = 3 * XPP + 7 * 128
IMG = A3
IMGP = 160
IMGSZ = 33 * IMGP
XB2 = IMG + 8 * IMGSZ
PART = XB2 + 8 * XBSZ
XOFF = lambda f: (f & 3) * XPP + (f >> 2) * 128
assert RC + 512 <= V2S + 1664
assert XB + 8 * XBSZ <= LDS_TOTAL and XB % 16 == 0 and A2 % 64 == 0 and A3 % 64 == 0 and L_WCO % 16 == 0 and V2S % 64 == 0
assert PART + 8 * 1536 <= V2S + 832 and IMGSZ % 32 == 0 and XB2 % 16 == 0

S_WAVE = 3
S_IDX, S_TAB, S_CIN, S_WCO, S_W1, S_B1, S_W2, S_BO, S_OUT, S_DBG, S_WS = 4, 6, 8, 10, 12, 14, 16, 18, 20, 22, 24
S_MB, S_R = 26, 27
SRD_IDX, SRD_TAB, SRD_CIN, SRD_WCO, SRD_W, SRD_B1, SRD_W2, SRD_OUT, SRD_WS, SRD_DBG = 28, 32, 36, 40, 44, 48, 52, 56, 60, 64
S_T0, S_T1, S_T2, S_T3 = 68, 69, 70, 71
S_LOOP, S_IDXOFF, S_WSOFF, S_WMB, S_XM0, S_N0, S_C0, S_CW, S_BOUT, S_TW = 72, 73, 74, 75, 76, 77, 78, 79, 80, 81
S_EX = 82
S_GRP, S_RC = 84, 85
S_ST = 86
S_M26, S_MASK = 90, 92
S_SAMP, S_STG, S_STG9, S_TGT = 94, 95, 96, 97
S_M26B = 98
S_GW = 100
S_TAGT = 0
S_TAG = 1
S_PW = 101
S_PX = 77
S_PXE = 73

GELU_C0 = -2.0 * 0.7978845608028654 * 1.4426950408889634
GELU_C1 = GELU_C0 * 0.044715


def f32hex(x):
    return '0x%08x' % struct.unpack('<I', struct.pack('<f', x))[0]


def vr(a, n):
    return f'v[{a}:{a + n - 1}]' if n > 1 else f'v{a}'


def srd(a):
    return f's[{a}:{a + 3}]'


def flat(gs):
    res = []
    for c in gs:
        if isinstance(c, (tuple, list)):
            res += flat(c)
        else:
            res.append(c)
    return res


def interleave(a, b):
    out = []
    ia = ib = 0
    na, nb = len(a), len(b)
    while ia < na or ib < nb:
        if ib >= nb or (ia < na and ia * nb <= ib * na):
            out.append(a[ia]); ia += 1
        else:
            out.append(b[ib]); ib += 1
    return out


SLOTS = []
for j in range(0, 26, 2):
    for s in range(0, 14 if j <= 12 else 13):
        SLOTS.append((j, (j + s) % 26))
assert len(SLOTS) == 176
DUP_SLOT = SLOTS.index((12, 25))
assert all((d * 2521) >> 16 == d // 26 for d in range(800))
assert all((d * 10923) >> 16 == d // 6 for d in range(64))
assert all((d * 5042) >> 16 == d // 13 for d in range(170))
assert all((d * 3277) >> 16 == d // 20 for d in range(264))


DOC = '''; ---------------------------------------------------------------------------------------------
; Generated by tools/gen24.py (own generator; waits / hazard nops derived from instruction traces).
;
;       U[i,j,k] = sum_h W2[h,i,j] V3[h,k]
;   Both quadratic forms use the 351 distinct products x_j x_k (j<=k) with symmetrised weights, evaluated by
;   DNN branch: full bf16 GEMM + bias + tanh-GELU (x / (1 + exp(-2u))) + dot with w_dnn2; four terms of one
;   sample share a reciprocal (common denominator; exp(-2u) saturates at 2^24, i.e. at fp32 rounding level).
;   their own producer) and counters in d_debug; the last arriver of a row block adds up and writes d_out.
;   L_tables holds constant per-lane LDS address tables (functions of the lane id only).
; ---------------------------------------------------------------------------------------------
'''


class Gen:
    def __init__(self, opt):
        self.opt = opt
        self.P = Prog()

    def seq(self, lines):
        return [self.P.add(l) for l in flat(lines)]

    def build_srd(self, dst, ptr, size):
        return [f's_mov_b32 s{dst}, s{ptr}', f's_and_b32 s{dst + 1}, s{ptr + 1}, 0xffff',
                f's_mov_b32 s{dst + 2}, {size}', f's_mov_b32 s{dst + 3}, 0x20000']

    def stamp(self, slot):
        if not self.opt.stamps or (self.opt.few and slot not in [int(x) for x in self.opt.few.split(',')]):
            return []
        return [f's_memtime s[{S_ST}:{S_ST + 1}]', f's_memrealtime s[{S_ST + 2}:{S_ST + 3}]', 's_waitcnt lgkmcnt(0)',
                f'v_writelane_b32 v252, s{S_ST}, {slot}', f'v_writelane_b32 v253, s{S_ST + 2}, {slot}']

    def probe(self, name, wave=4):
        if self.opt.cyc:
            a_, b_, _ = self.opt.cyc.split(',')
            return ['s_memtime s[86:87]', 's_waitcnt lgkmcnt(0)'] if name == a_ else ['s_memtime s[88:89]', 's_waitcnt lgkmcnt(0)'] if name == b_ else []
        if self.opt.probe != name:
            return []
        return ['s_memrealtime s[88:89]', 's_waitcnt lgkmcnt(0)']

    def stamp_flush(self):
        if not self.opt.stamps:
            return []
        L = self.build_srd(SRD_WS, S_WS, 0x10000000)
        L += [f's_lshl_b32 s{S_C0}, s2, 3', f's_add_u32 s{S_C0}, s{S_C0}, s{S_WAVE}',
              f's_lshl_b32 s{S_C0}, s{S_C0}, 8', f's_add_u32 s{S_C0}, s{S_C0}, 0x100000',
              'v_lshlrev_b32 v254, 3, v0', 's_mov_b32 exec_hi, 0',
              f'buffer_store_dwordx2 v[252:253], v254, {srd(SRD_WS)}, s{S_C0} offen', 's_mov_b32 exec_hi, -1']
        return L

    def stamp0(self):
        if not self.opt.stamps:
            return []
        return ['v_mov_b32 v252, 0xcdcdcdcd', 'v_mov_b32 v253, 0xcdcdcdcd',
                f'v_writelane_b32 v252, s{S_ST}, 0', f'v_writelane_b32 v253, s{S_ST + 2}, 0'] + self.stamp(15)

    def tlb2(self, t):
        L = self.build_srd(SRD_WS, S_WS, 0x10000000) + self.build_srd(SRD_OUT, S_OUT, 8192) + self.build_srd(SRD_DBG, S_DBG, 256)
        L += [f's_load_dword s{S_BOUT}, s[{S_BO}:{S_BO + 1}], 0', f'v_mov_b32 v{t}, 0', 's_mov_b64 exec, 1',
              f's_mov_b32 s{S_TW}, 0x80000',
              f'buffer_load_dword v{t + 1}, v{t}, {srd(SRD_WS)}, s{S_TW} offen',
              f'buffer_load_dword v{t + 2}, v{t}, {srd(SRD_OUT)}, 0 offen',
              's_mov_b64 exec, -1']
        return L

    def tlb1(self, vtmp, vdst):
        if not self.opt.etlb:
            return self.build_srd(SRD_TAB, S_TAB, 100000 * 128)
        return self.build_srd(SRD_TAB, S_TAB, 100000 * 128) + [
            f'v_mov_b32 v{vtmp}, s{S_BOUT}', f'buffer_load_dword v{vdst}, v{vtmp}, {srd(SRD_TAB)}, 0 offen']

    def gettag(self, lab, t, VT):
        return [f's_cmp_lg_u32 s{S_WAVE}, 0', f's_cbranch_scc1 {lab}',
                f's_memrealtime s[{S_TAGT}:{S_TAGT + 1}]'] + self.build_srd(SRD_DBG, S_DBG, 256) + [
                f's_lshl_b32 s{S_TW}, s{S_MB}, 2', f'v_mov_b32 v{t}, s{S_TW}', 's_waitcnt lgkmcnt(0)',
                f's_or_b32 s{S_TAG}, s{S_TAGT}, 1', f'v_mov_b32 v{VT}, s{S_TAG}', f'v_mov_b32 v{VT + 1}, 0',
                's_mov_b64 exec, 1',
                f'buffer_atomic_cmpswap v[{VT}:{VT + 1}], v{t}, {srd(SRD_DBG)}, 0 offen offset:128 sc0',
                's_mov_b64 exec, -1', f'{lab}:']

    def prologue(self):
        L = []
        if self.opt.stamps:
            L += [f's_memtime s[{S_ST}:{S_ST + 1}]', f's_memrealtime s[{S_ST + 2}:{S_ST + 3}]']
        L += ['s_cmp_ge_u32 s2, 256', 's_cbranch_scc1 L_end',
              's_load_dwordx16 s[4:19], s[0:1], 0',
              's_load_dwordx4 s[20:23], s[0:1], 64',
              's_load_dwordx2 s[24:25], s[0:1], 80',
              'v_lshrrev_b32 v1, 6, v0']
        if self.opt.cpf:
            L += [f's_getpc_b64 s[{S_MASK}:{S_MASK + 1}]', 'L_pc:',
                  f's_and_b32 s{S_T0}, s2, 0xf8', f'v_add_u32 v2, s{S_T0}, v1', 'v_and_b32 v3, 32, v0', 'v_lshl_add_u32 v2, v3, 3, v2', 'v_lshlrev_b32 v2, 7, v2',
                  f'v_min_u32 v2, L_end-L_pc, v2',
                  f'v_mov_b32 v3, s{S_MASK + 1}',
                  f'v_add_co_u32 v2, vcc, s{S_MASK}, v2', 'v_addc_co_u32 v3, vcc, 0, v3, vcc',
                  'global_load_dword v251, v[2:3], off']
        if self.opt.skew:
            L += ['s_memtime s[86:87]' if self.opt.cyc else 's_memrealtime s[86:87]', 's_mov_b32 s88, 0']
        L += ['v_and_b32 v0, 63, v0',
              f'v_readfirstlane_b32 s{S_WAVE}, v1',
              f's_and_b32 s{S_T0}, s2, 7', f's_lshr_b32 s{S_T1}, s2, 3', f's_xor_b32 s{S_T1}, s{S_T1}, {31 * self.opt.rev}',
              f's_and_b32 s{S_BOUT}, s2, 0xf8', f's_add_u32 s{S_BOUT}, s{S_BOUT}, s{S_WAVE}', f's_lshl_b32 s{S_BOUT}, s{S_BOUT}, {self.opt.etlb}',
              f's_min_u32 s{S_T2}, s{S_T0}, 1', f's_add_u32 s{S_T3}, s{S_T1}, s{S_T2}',
              f's_cmp_ge_u32 s{S_T3}, 22', 's_cbranch_scc1 L_cin',
              f's_mul_i32 s{S_T0}, s{S_T0}, 21', f's_add_u32 s{S_T0}, s{S_T0}, s{S_T3}',
              ]
        if self.opt.band == 0:
            L += [f's_mul_i32 s{S_MB}, s{S_T0}, 5042', f's_lshr_b32 s{S_MB}, s{S_MB}, 16',
                  f's_mul_i32 s{S_T1}, s{S_MB}, 13', f's_sub_u32 s{S_R}, s{S_T0}, s{S_T1}']
        else:
            assert all((d * 9363) >> 16 == d // 7 for d in range(91)) and all((d * 10923) >> 16 == d // 6 for d in range(78))
            L += [f's_sub_u32 s{S_T1}, 168, s{S_T0}', f's_cmp_lt_u32 s{S_T0}, 91', f's_cselect_b32 s{S_T0}, s{S_T0}, s{S_T1}',
                  f's_cselect_b32 s{S_T1}, 0, 1560', f's_cselect_b32 s{S_T2}, 7, 6', f's_cselect_b32 s{S_R}, 0, 7', f's_add_u32 s{S_T1}, s{S_T1}, 9363',
                  f's_mul_i32 s{S_MB}, s{S_T0}, s{S_T1}', f's_lshr_b32 s{S_MB}, s{S_MB}, 16', f's_mul_i32 s{S_T1}, s{S_MB}, s{S_T2}',
                  f's_add_u32 s{S_R}, s{S_R}, s{S_T0}', f's_sub_u32 s{S_R}, s{S_R}, s{S_T1}']
        return self.seq(L)

    def dnn(self):
        o = self.opt
        vW = [1, 2, 3, 4]
        vX = [[5, 6], [7, 8]]
        vPa, vPc = 9, 10
        WF, XA, ACC = 16, 48, 88
        W2F = WF
        KC0, KC1, KONE = 12, 14, 248
        SUMP, GT = 32, 52
        vIdxOff, vCh, vWD, vBL = 1, [2, 3], [4, 5], 11
        ST, VO = 16, 56
        T = 100
        g, i4, q = T + 16, T + 17, T + 18
        PI = T + 8

        def acc(tn, tm):
            return ACC + (tm * 4 + tn) * 4

        def small(srd_, dst):
            return [f's_mov_b32 m0, {dst}', 's_mov_b64 exec, 0xffff',
                    I(f'buffer_load_dwordx4 v{vBL}, {srd(srd_)}, s{S_N0} offen lds', tag='BIAS'), 's_mov_b64 exec, -1']
        L = [f's_lshl_b32 s{S_N0}, s{S_R}, 8', f's_mul_i32 s{S_T3}, s{S_MB}, 320',
             f'v_lshrrev_b32 v{g}, 4, v0', f'v_lshlrev_b32 v{vBL}, 4, v0', f's_and_b32 s{S_CW}, s{S_WAVE}, 3',
             f's_cmp_ge_u32 s{S_WAVE}, 4', 's_cbranch_scc1 L_ld']
        c0 = self.seq(L)
        PI = T

        RG, CG = S_T0, S_T1
        L = [f's_mul_i32 s{S_T2}, s{S_WAVE}, 13', f'v_min_u32 v{q}, 12, v0', f'v_add_u32 v{q}, s{S_T2}, v{q}',
             f'v_lshrrev_b32 v{i4}, 1, v{q}', f'v_mul_u32_u24 v{i4}, 96, v{i4}', f'v_lshl_add_u32 v{q}, v{q}, 2, v{i4}',
             f's_mul_i32 s{S_C0}, s{S_R}, 25', f's_min_u32 s{S_C0}, s{S_C0}, 294',
             f's_add_u32 s{S_C0}, s{S_C0}, s{S_T3}', f's_mul_i32 s{S_C0}, s{S_C0}, 104',
             f's_lshl_b32 s{S_T2}, s{S_MB}, 2', f's_add_u32 s{S_T2}, s{S_T2}, s{S_WAVE}', f's_add_u32 s{S_T2}, s{S_T2}, {o.ew0 * 32}',
             f's_mul_i32 s{S_T2}, s{S_T2}, 3328', f's_add_u32 s{S_T2}, s{S_T2}, s{S_N0}', f's_mov_b32 s{S_TW}, {52 * 3328}',
             f'v_lshrrev_b32 v{T + 12}, 1, v0', f'v_mul_lo_u32 v{T + 12}, s{S_TW}, v{T + 12}', f'v_and_b32 v{i4}, 1, v0', f'v_lshl_add_u32 v{T + 12}, v{i4}, 7, v{T + 12}',
             f'v_add_u32 v{T + 12}, s{S_T2}, v{T + 12}', 's_waitcnt lgkmcnt(0)']
        ct = [int(x) for x in o.ct + o.ct2]
        L += self.build_srd(SRD_IDX, S_IDX, 4096 * 104)
        if ct:
            L += [f'buffer_load_dwordx4 {vr(PI, 4)}, v{q}, {srd(SRD_IDX)}, s{S_C0} offen']
        if ct and max(ct) > 3:
            L += [f'buffer_load_dwordx4 {vr(PI + 4, 4)}, v{q}, {srd(SRD_IDX)}, s{S_C0} offen offset:16']
        L += self.tlb1(T + 14, T + 15)
        if o.ptl:
            L += [f'v_lshlrev_b32 v{T + 14}, {o.ptl}, v0', f's_lshl_b32 s{S_T2}, s{S_WAVE}, {o.ptl - 2}', f's_mov_b64 exec, {(1 << min(64, (12800000 >> o.ptl) + 1)) - 1}',
                  f'buffer_load_dword v{T + 15}, v{T + 14}, {srd(SRD_TAB)}, s{S_T2} offen', 's_mov_b64 exec, -1']
        touch = [x for k in ct for x in (f'v_lshlrev_b32 v{PI + k}, 7, v{PI + k}', f'buffer_load_dword v{acc(0, 7) + k}, v{PI + k}, {srd(SRD_TAB)}, 0 offen')]
        touch, touch2 = touch[:2 * len(o.ct)], touch[2 * len(o.ct):]
        L += self.build_srd(SRD_B1, S_B1, 3328) + small(SRD_B1, L_BIAS)
        if o.ew:
            L += self.build_srd(SRD_W, S_W1, 1664 * 3328)
            ewl = [f's_mov_b64 exec, {(1 << (2 * o.ew)) - 1}', f'buffer_load_dword v{acc(0, 7) + 9}, v{T + 12}, {srd(SRD_W)}, 0 offen', 's_mov_b64 exec, -1']
            if o.ewat == 0:
                L += ewl
            elif o.ewat == 1:
                touch = touch + ewl
            else:
                touch2 = touch2 + ewl
        chead = self.seq(L + (['s_barrier'] if o.dbar0 else []) + ['s_branch L_cmp'])
        self.ldat = len(self.P.static)
        L = ['L_cmp:'] + self.stamp0()
        L += [f's_and_b32 s{RG}, s{S_WAVE}, 1', f's_lshr_b32 s{CG}, s{S_WAVE}, 1',
              f'v_bfe_u32 v{i4}, v0, 2, 2', f'v_lshl_add_u32 v{q}, v{g}, 3, v{i4}', f'v_lshlrev_b32 v{q}, 8, v{q}',
              f'v_bfe_u32 v{i4}, v0, 2, 3', f's_lshl_b32 s{S_T2}, s{CG}, 2', f'v_xor_b32 v{i4}, s{S_T2}, v{i4}',
              f'v_lshl_add_u32 v{q}, v{i4}, 5, v{q}', f'v_and_b32 v{i4}, 3, v0', f'v_lshl_add_u32 v{q}, v{i4}, 3, v{q}',
              f'v_add_u32 v{vW[0]}, {WR}, v{q}']
        L += [f'v_xor_b32 v{vW[tn]}, {32 * tn}, v{vW[0]}' for tn in range(1, 4)]
        L += [f's_lshl_b32 s{S_T2}, s{CG}, 7', f's_add_u32 s{S_T2}, s{S_T2}, {L_BIAS}', f'v_lshlrev_b32 v{q}, 3, v{g}', f'v_add_u32 v{vPa}, s{S_T2}, v{q}',
              f'v_and_b32 v{q}, 15, v0', f'v_lshlrev_b32 v{q}, 7, v{q}',
              f'v_bfe_u32 v{i4}, v0, 1, 3', f'v_xor_b32 v{i4}, v{i4}, v{g}', f'v_lshl_add_u32 v{q}, v{i4}, 4, v{q}',
              f's_mul_i32 s{S_T2}, s{RG}, 20480', f'v_add_u32 v{vX[0][0]}, s{S_T2}, v{q}', f'v_xor_b32 v{vX[1][0]}, 64, v{vX[0][0]}',
              f'v_add_u32 v{vX[0][1]}, {2 * XSLOT}, v{vX[0][0]}', f'v_add_u32 v{vX[1][1]}, {2 * XSLOT}, v{vX[1][0]}',
              f's_mul_i32 s{S_T2}, s{S_WAVE}, 640', f's_add_u32 s{S_T2}, s{S_T2}, {RB}',
              f'v_and_b32 v{q}, 15, v0', f'v_lshlrev_b32 v{q}, 2, v{q}', f'v_add_u32 v{q}, s{S_T2}, v{q}',
              f'v_lshrrev_b32 v{i4}, 5, v0', f'v_lshl_add_u32 v{q}, v{i4}, 6, v{q}', f'v_bfe_u32 v{i4}, v0, 4, 1', f'v_lshl_add_u32 v{vPc}, v{i4}, 7, v{q}',
              f's_mov_b32 s{S_LOOP}, 0',
              f'v_mov_b32 v{KC0}, {f32hex(GELU_C0)}', f'v_mov_b32 v{KC0 + 1}, {f32hex(GELU_C0)}',
              f'v_mov_b32 v{KC1}, {f32hex(GELU_C1)}', f'v_mov_b32 v{KC1 + 1}, {f32hex(GELU_C1)}']

        def pkreads(off, dst):
            return [f'ds_read_b64 {vr(dst + 4 * tn + 2, 2)}, v{vPa} offset:{off + 32 * tn}' for tn in range(4)]

        def unp(dst):
            c = []
            for tn in range(4):
                r = dst + 4 * tn
                c += [f'v_lshlrev_b32 v{r}, 16, v{r + 2}', f'v_and_b32 v{r + 1}, 0xffff0000, v{r + 2}',
                      f'v_lshlrev_b32 v{r + 2}, 16, v{r + 3}', f'v_and_b32 v{r + 3}, 0xffff0000, v{r + 3}']
            return c
        L += touch + self.stamp(6)
        CT_, CW_, CD_ = 248, 11, 251
        if o.tch == 2:
            L += [f's_mul_i32 s{S_T2}, s{S_WAVE}, 13', f's_add_u32 s{S_T2}, s{S_T2}, s{S_R}', f's_min_u32 s{S_T2}, s{S_T2}, 39', f's_lshl_b32 s{S_T2}, s{S_T2}, 3',
                  f's_add_u32 s{S_T2}, s{S_T2}, s{S_T3}', f's_mul_i32 s{S_T2}, s{S_T2}, 104',
                  f'v_lshrrev_b32 v{q}, 3, v0', f'v_mul_u32_u24 v{q}, 72, v{q}', f'v_lshl_add_u32 v{q}, v0, 2, v{q}']
            L += [f'buffer_load_dword v{CT_ + r}, v{q}, {srd(SRD_IDX)}, s{S_T2} offen offset:{4 * min(o.tf0 + 8 * r, 18)}' for r in range(3)]
            L += [f'v_add_u32 v{CW_}, {(o.tw0 - o.ew0) * 32 * 3328}, v{T + 12}', f's_mov_b32 s{S_RC}, 0']
            touch2 = touch2 + [f'v_lshlrev_b32 v{CT_ + r}, 7, v{CT_ + r}' for r in range(3)] + [Touch(f'v{CD_}')]
        if o.st:
            SR = [36, 40, 52, 56, 60, 64, 96]
            L += [f's_mul_i32 s{S_T2}, s{S_WAVE}, 13', f's_lshr_b32 s{S_T2}, s{S_T2}, 1', f's_mul_i32 s{S_T2}, s{S_T2}, 104', f's_add_u32 s{S_T2}, s{S_T2}, s{S_C0}', f's_add_u32 s{S_T2}, s{S_T2}, {4 * o.sf0}']
            for r in range(7):
                L += [f's_buffer_load_dwordx4 s[{SR[r]}:{SR[r] + 3}], {srd(SRD_IDX)}, s{S_T2}', f's_add_u32 s{S_T2}, s{S_T2}, 104']
            L += ['s_waitcnt lgkmcnt(0)']
            for f_ in range(o.st):
                for r in range(7):
                    L += [f's_lshl_b32 s{SR[r] + f_}, s{SR[r] + f_}, 7', f's_buffer_load_dword s{SR[r] + f_}, {srd(SRD_TAB)}, s{SR[r] + f_}']
        BI = [WaitTag(vm_tags=['BIAS'])] + pkreads(0, acc(0, 9)) + unp(acc(0, 9)) + [f'v_mov_b64 {vr(acc(0, 8) + r, 2)}, {vr(acc(0, 9) + r, 2)}' for r in range(0, 16, 2)]

        def rX(p, k):
            xs = p % 3
            return f'ds_read_b128 {vr(XA + 4 * (k % 10), 4)}, v{vX[k % 2][xs // 2]} offset:{(xs % 2) * XSLOT + (k // 2) * 2048}'

        def rW(tn):
            return [f'ds_read_b64_tr_b16 {vr(WF + 16 * par + 4 * tn + 2 * rd, 2)}, v{vW[tn]} offset:{par * WSLOT + rd * 1024}' for par in range(2) for rd in range(2)]
        tog = lambda tn: f'v_xor_b32 v{vW[tn]}, {2 * WSLOT}, v{vW[tn]}'

        def dec(gi):
            G, tn, a_, par = gi // 16, (gi // 4) % 4, (gi // 2) % 2, gi % 2
            if o.bou:
                par ^= a_ ^ (G == 4)
                a_ ^= tn & 1
            return G, tn, a_, par
        lastx = {4 * dec(gi)[0] + 2 * dec(gi)[2] + dec(gi)[3]: gi for gi in range(80)}

        def mf(gi, first=False):
            G, tn, a_, par = dec(gi)
            d = acc(tn, 2 * G + a_)
            if first and gi % 2 == 0 and G < 4:
                return f'v_mfma_f32_16x16x32_bf16 {vr(d, 4)}, {vr(WF + 16 * par + 4 * tn, 4)}, {vr(XA + 4 * ((4 * G + 2 * a_ + par) % 10), 4)}, {vr(acc(tn, 9), 4)}'
            return f'v_mfma_f32_16x16x32_bf16 {vr(d, 4)}, {vr(WF + 16 * par + 4 * tn, 4)}, {vr(XA + 4 * ((4 * G + 2 * a_ + par) % 10), 4)}, {vr(d, 4)}'
        SH = [11, 248, 249, 250]
        nsh = o.nsh

        def shadow():
            c = []
            for b0 in range(0, nsh, 4):
                E = [(ACC + e, SH[e - b0]) for e in range(b0, min(b0 + 4, nsh))]
                for op in ('v_mul_f32 T, X, X', f'v_fma_f32 T, T, v{KC1}, v{KC0}', 'v_mul_f32 T, T, X', 'v_exp_f32 T, T', 'v_add_f32 T, 1.0, T', 'v_rcp_f32 T, T', 'v_mul_f32 X, X, T'):
                    c += [(op.replace('T', f'v{t}').replace('X', f'v{x}'), 8 if ('exp' in op or 'rcp' in op) else 4) for x, t in E]
            return c

        def U_(t):
            i_ = I(t)
            i_.wr = []
            return i_

        def cpair(p, kind, loopend=False):
            S = []
            ev = {}
            if kind == 'first':
                g_ = o.sbg + 1
                for k in range(2 * o.sa, 10):
                    ev[g_] = rX(p, k); g_ += 1
            else:
                for i_, x in enumerate(rW(3)[2:]):
                    ev[i_] = x
                for i_, k in enumerate(range(6, 10)):
                    ev[2 + i_] = rX(p, k)
            for k in range(10):
                g_ = lastx[k]
                while g_ in ev or (kind == 'first' and g_ <= o.sbg):
                    g_ += 1
                ev[g_] = rX(p, k + 10)
            BG = 48 + o.bgap if o.bou else 46 + o.bgap
            if kind != 'last':
                ev[BG], ev[BG + 1] = rX(p + 1, 0), rX(p + 1, 1)
                for k in range(2, 6):
                    ev[lastx[10 + k]] = rX(p + 1, k)
                for tn in range(4):
                    for i_, x in enumerate(rW(tn)):
                        if 66 + 4 * tn + i_ < 80:
                            ev[66 + 4 * tn + i_] = x
            sh_ = shadow() if kind == 'last' else []
            for gi in range(80):
                S.append(mf(gi, kind == 'first'))
                t = 4
                if o.dwalk and kind != 'last' and gi in (24, 40, 64, 7):
                    S += [f'L_dw{self.ndw}:', f's_cbranch_execz L_dw{self.ndw + 1}']
                    self.ndw += 1
                if kind == 'first' and gi == o.sbg:
                    S += (self.stamp(20) if o.itst == 2 else []) + ['s_barrier'] + (self.stamp(21) if o.itst == 2 else [])
                if kind != 'last' and gi == BG - 1:
                    st_ = lambda k: ([f's_cmp_lg_u32 s{S_LOOP}, 0', f's_cbranch_scc1 L_ns{k}'] + self.stamp(k) + [f'L_ns{k}:']) if (o.itst == 2 and p < 3) else []
                    S += ['s_waitcnt lgkmcnt(0)'] + st_(22 + 2 * p) + ['s_barrier'] + st_(23 + 2 * p)
                if gi in ev:
                    S.append(ev[gi]); t += 8
                if kind != 'last' and 8 <= gi < 12:
                    S.append(tog(gi - 8))
                if o.tch == 2 and kind == 'mid' and gi == o.tgap:
                    if p == 1:
                        S += [f's_bitcmp1_b32 {o.tmask:#x}, s{S_LOOP}', 's_cbranch_scc1 L_ctx', 'L_ctxr:']
                    if p == 2:
                        S += ['s_mov_b64 exec, 0xff', U_(f'buffer_load_dword v{CD_}, v{CW_}, {srd(SRD_W)}, s{S_RC} offen'), 's_mov_b64 exec, -1', f's_add_u32 s{S_RC}, s{S_RC}, {208 * 3328}']
                if o.tch == 2 and kind == 'first' and gi == o.tgap:
                    S += ['s_mov_b64 exec, 0xff', U_(f'buffer_load_dword v{CD_}, v{CW_}, {srd(SRD_W)}, s{S_RC} offen'), 's_mov_b64 exec, -1', f's_add_u32 s{S_RC}, s{S_RC}, {208 * 3328}']
                if gi % 2 == 0 and gi + 2 < 80:
                    n_ = gi + 2
                    G, tn, a_ = n_ // 16, (n_ // 4) % 4, (n_ // 2) % 2
                    if tn == 0:
                        S.append(Touch(vr(XA + 4 * ((4 * G + 2 * a_) % 10), 8)))
                    if G == 0 and a_ == 0:
                        S.append(Touch(vr(WF + 16 + 4 * tn, 4)))
                if gi == 78 and kind != 'last':
                    S.append(Touch(vr(WF + 16, 4)))
                if loopend and gi == 48:
                    S += [f's_add_u32 s{S_LOOP}, s{S_LOOP}, 1', f's_cmp_lt_u32 s{S_LOOP}, 8']
                t = max(t, 8)
                while sh_ and gi >= o.sh0 and t + sh_[0][1] <= 16:
                    x, c_ = sh_.pop(0)
                    S.append(x); t += c_
            S += [x for x, _ in sh_]
            if kind == 'last':
                print('shadow left', len(sh_))
            return S
        self.ndw = 0
        if o.dwalk:
            L += ['s_mov_b64 exec, 0'] + [x for q_ in range(3) for x in (f's_cmp_eq_u32 s{S_WAVE}, {q_}', f's_cbranch_scc1 L_dw{4 * q_}')] + ['s_branch L_dw12', 'L_dw16:', 's_mov_b64 exec, -1']
        L += self.stamp(1) + ['s_barrier'] + [x for tn in range(4) for x in rW(tn)] + BI + touch2 + ['s_waitcnt lgkmcnt(0)', f's_setprio {o.cprio}', 's_barrier'] + self.stamp(2)
        L += [rX(0, k) for k in range(2 * o.sa)] + cpair(0, 'first')
        cpre = self.seq(L)
        body = self.seq(['L_dnn_loop0:'])
        for p in range(1, 4):
            S = cpair(p, 'mid', p == 3)
            if p == 3:
                if o.stamps and o.itst == 1:
                    i_ = S.index('s_barrier')
                    S = S[:i_] + [f's_memtime s[{S_ST}:{S_ST + 1}]', f's_memrealtime s[{S_ST + 2}:{S_ST + 3}]', f's_or_b32 m0, s{S_LOOP}, 16', 's_waitcnt lgkmcnt(0)',
                                  f'v_writelane_b32 v252, s{S_ST}, m0', f'v_writelane_b32 v253, s{S_ST + 2}, m0', f's_cmp_lt_u32 s{S_LOOP}, 8'] + S[i_:]
                S += ['s_cbranch_scc1 L_dnn_loop0']
            body += self.seq(S)
        tc = c0 + chead + cpre + body * 2 + self.seq(['L_tail:'])
        tc += self.seq((['s_waitcnt vmcnt(0)'] if o.tch == 2 else []) + cpair(25, 'last') + pkreads(256, W2F) + [f'v_mov_b32 v{KONE}, 1.0', f'v_mov_b32 v{KONE + 1}, 1.0'])
        if o.burn:
            bl = [f's_movk_i32 s{S_LOOP}, {o.burn}', 'L_burn:'] + [f'v_mfma_f32_16x16x32_bf16 {vr(XA + 32 + 4 * (k % 2), 4)}, {vr(WF + 16 + 4 * (k % 4), 4)}, {vr(XA + 4 * (k // 4), 4)}, 0' for k in range(32)]
            tc += self.seq(bl + [f's_sub_u32 s{S_LOOP}, s{S_LOOP}, 1', f's_cmp_lg_u32 s{S_LOOP}, 0', 's_cbranch_scc1 L_burn'])
        tc += self.seq(['L_epi:'] + self.stamp(3))

        p2 = lambda r: vr(r, 2)
        seen = set()

        def gelu(groups):
            L = []
            for k, vals in enumerate(groups):
                tb = GT + (k % 2) * 16
                V_ = [(x, w, s_, tb + 4 * i_, tb + 4 * i_ + 2) for i_, (x, w, s_) in enumerate(vals)]
                for (x, w, s_, t, u) in V_:
                    L.append(f'v_pk_mul_f32 {p2(t)}, {p2(x)}, {p2(x)}')
                for (x, w, s_, t, u) in V_:
                    L.append(f'v_pk_fma_f32 {p2(t)}, {p2(t)}, {p2(KC1)}, {p2(KC0)}')
                for (x, w, s_, t, u) in V_:
                    L.append(f'v_pk_mul_f32 {p2(t)}, {p2(t)}, {p2(x)}')
                for (x, w, s_, t, u) in V_:
                    L += [f'v_exp_f32 v{t}, v{t}', f'v_exp_f32 v{t + 1}, v{t + 1}']
                for (x, w, s_, t, u) in V_:
                    L.append(f'v_pk_mul_f32 {p2(u)}, {p2(x)}, {p2(w)}')
                for (x, w, s_, t, u) in V_:
                    L.append(f'v_pk_add_f32 {p2(t)}, {p2(t)}, {p2(KONE)}')
                for (x, w, s_, t, u) in V_:
                    L += [f'v_rcp_f32 v{t}, v{t}', f'v_rcp_f32 v{t + 1}, v{t + 1}']
                for (x, w, s_, t, u) in V_:
                    if s_ in seen:
                        L.append(f'v_pk_fma_f32 {p2(s_)}, {p2(t)}, {p2(u)}, {p2(s_)}')
                    else:
                        L.append(f'v_pk_mul_f32 {p2(s_)}, {p2(t)}, {p2(u)}')
                        seen.add(s_)
            return L
        el = lambda tn, tm, d: (acc(tn, tm) + 2 * d, W2F + 4 * tn + 2 * d, SUMP + 2 * tm)
        allel = [el(tn, 2 * tp + a_, d) for tp in range(5) for tn in range(4) for d in range(2) for a_ in range(2)]
        rest = [e for e in allel if e[0] >= ACC + nsh]
        if o.rshare:
            assert nsh % 8 == 0
            KS = 84
            quads = [[el(2 * h + t_, tm, d) for t_ in range(2) for d in range(2)] for tm in range(10) for h in range(2)]
            quads = [q_ for q_ in quads if q_[0][0] >= ACC + nsh]
            order = sorted(range(len(quads)), key=lambda i_: (i_ // 4, i_ % 2, i_))
            quads = [quads[i_] for i_ in order]
            L = [f'v_mov_b32 v{KS}, {f32hex(-24.0)}', f'v_mov_b32 v{KS + 1}, {f32hex(-24.0)}', f'v_mov_b32 v{KS + 2}, {f32hex(2.0 ** 24)}', f'v_mov_b32 v{KS + 3}, {f32hex(2.0 ** 24)}']
            for k in range(0, len(quads), 2):
                Qs = quads[k:k + 2]
                V_ = [(x, w, GT + 16 * j_ + 4 * i_, GT + 16 * j_ + 4 * i_ + 2) for j_, q_ in enumerate(Qs) for i_, (x, w, s_) in enumerate(q_)]
                L += [f'v_pk_mul_f32 {p2(t)}, {p2(x)}, {p2(x)}' for (x, w, t, u) in V_]
                L += [f'v_pk_fma_f32 {p2(t)}, {p2(t)}, {p2(KC1)}, {p2(KC0)}' for (x, w, t, u) in V_]
                L += [f'v_pk_fma_f32 {p2(t)}, {p2(t)}, {p2(x)}, {p2(KS)}' for (x, w, t, u) in V_]
                L += [f'v_exp_f32 v{t + e_}, v{t + e_} clamp' for (x, w, t, u) in V_ for e_ in range(2)]
                if k == 0:
                    L += unp(W2F)
                L += [f'v_pk_mul_f32 {p2(u)}, {p2(x)}, {p2(w)}' for (x, w, t, u) in V_]
                L += [f'v_pk_fma_f32 {p2(t)}, {p2(t)}, {p2(KS + 2)}, {p2(KONE)}' for (x, w, t, u) in V_]
                for prs in ([(0, 1), (2, 3)], [(0, 2)]):
                    M_ = [(V_[4 * j_ + a_], V_[4 * j_ + b_]) for j_ in range(len(Qs)) for a_, b_ in prs]
                    L += [f'v_pk_mul_f32 {p2(A_[3])}, {p2(A_[3])}, {p2(B_[2])}' for A_, B_ in M_]
                    L += [f'v_pk_fma_f32 {p2(A_[3])}, {p2(B_[3])}, {p2(A_[2])}, {p2(A_[3])}' for A_, B_ in M_]
                    L += [f'v_pk_mul_f32 {p2(A_[2])}, {p2(A_[2])}, {p2(B_[2])}' for A_, B_ in M_]
                L += [f'v_rcp_f32 v{V_[4 * j_][2] + e_}, v{V_[4 * j_][2] + e_}' for j_ in range(len(Qs)) for e_ in range(2)]
                for j_, q_ in enumerate(Qs):
                    s_, t, u = q_[0][2], V_[4 * j_][2], V_[4 * j_][3]
                    L.append(f'v_pk_fma_f32 {p2(s_)}, {p2(t)}, {p2(u)}, {p2(s_)}' if s_ in seen else f'v_pk_mul_f32 {p2(s_)}, {p2(t)}, {p2(u)}')
                    seen.add(s_)
        else:
            L = gelu([rest[i:i + 4] for i in range(0, len(rest), 4)])
            L = L[:20] + unp(W2F) + L[20:]
        for (x, w, s_) in allel:
            if x < ACC + nsh:
                L.append(f'v_pk_fma_f32 {p2(s_)}, {p2(x)}, {p2(w)}, {p2(s_)}' if s_ in seen else f'v_pk_mul_f32 {p2(s_)}, {p2(x)}, {p2(w)}')
                seen.add(s_)
        sm = lambda tm: SUMP + 2 * tm
        L += [f'v_add_f32 v{sm(tm)}, v{sm(tm)}, v{sm(tm) + 1}' for tm in range(10)]
        L += [f'v_permlane32_swap_b32 v{sm(tm)}, v{sm(tm + 1)}' for tm in range(0, 10, 2)]
        L += [f'v_add_f32 v{sm(tm)}, v{sm(tm)}, v{sm(tm + 1)}' for tm in (8, 0, 2, 4, 6)]
        L += [f'v_mov_b32 v{sm(9)}, v{sm(8)}', f'v_permlane16_swap_b32 v{sm(0)}, v{sm(2)}', f'v_permlane16_swap_b32 v{sm(4)}, v{sm(6)}',
              f'v_permlane16_swap_b32 v{sm(8)}, v{sm(9)}',
              f'v_add_f32 v{sm(0)}, v{sm(0)}, v{sm(2)}', f'v_add_f32 v{sm(4)}, v{sm(4)}, v{sm(6)}', f'v_add_f32 v{sm(8)}, v{sm(8)}, v{sm(9)}',
              f'ds_write_b32 v{vPc}, v{sm(0)}', f'ds_write_b32 v{vPc}, v{sm(4)} offset:256',
              's_mov_b32 exec_lo, 0xffff', 's_mov_b32 exec_hi, 0xffff', f'ds_write_b32 v{vPc}, v{sm(8)} offset:512', 's_mov_b64 exec, -1']
        L += ['s_waitcnt lgkmcnt(0)'] + self.stamp(4) + self.stamp_flush() + ['s_barrier', 's_endpgm']
        tc += self.seq(L)

        if o.tch == 2:
            self.seq(['L_ctx:', U_(f'buffer_load_dword v{CD_}, v{CT_}, {srd(SRD_TAB)}, 0 offen'), f'v_mov_b32 v{CT_}, v{CT_ + 1}', f'v_mov_b32 v{CT_ + 1}, v{CT_ + 2}', 's_branch L_ctxr'])
        def wstage(slot):
            c = []
            for u in range(2):
                c += [f's_add_u32 m0, s{S_WMB}, {WR + slot * WSLOT + u * 1024}',
                      I(f'buffer_load_dwordx4 v{vWD[u]}, {srd(SRD_W)}, s{S_WSOFF} offen lds', tag='W')]
            return c + [f's_add_u32 s{S_WSOFF}, s{S_WSOFF}, {32 * 3328}']

        Q, TM, BP = 16, 56, [12, 13]
        TI, vWT = 70, 84
        SP = [36, 37, 38, 39, 40, 41, 42, 43, 48, 49]
        SI = [94, 95, 96, 97, 98, 99, 100, 101, 82, 83]

        def xaddr(f, pcs):
            c = []
            for odd in range(2):
                p_ = f + 26 * odd
                for pc in pcs:
                    c.append(f'v_add_u32_dpp v{TM + pc}, v{Q + 4 * pc + p_ % 4}, v{vCh[0]} row_newbcast:{p_ >> 2} row_mask:0xf bank_mask:{(3, 12)[odd]:#x}')
            return c

        def xld(pc, slot, tag='X'):
            return [f's_add_u32 m0, s{S_XM0}, {slot * XSLOT + pc * 2048}',
                    I(f'buffer_load_dwordx4 v{TM + pc}, {srd(SRD_TAB)}, 0 offen lds', tag=tag)]
        idxl = [f'buffer_load_dwordx4 {vr(Q + 4 * pc, 4)}, v{BP[0]}, {srd(SRD_IDX)}, s{SI[pc // 2]} offen offset:{(pc % 2) * 1664}' for pc in range(10)]
        LO, HI = range(5), range(5, 10)
        NR = (22 + o.tf - 1) // o.tf
        lw = S_CW
        self.mk0 = len(self.P.static)
        L = ['L_ld:', f's_lshr_b32 s{S_T0}, s{lw}, 1', f's_mul_i32 s{S_T0}, s{S_T0}, 20', f's_and_b32 s{S_T1}, s{lw}, 1', f's_add_u32 s{S_T0}, s{S_T0}, s{S_T1}',
             f's_lshl_b32 s{S_XM0}, s{S_T0}, 10', f's_mul_i32 s{S_C0}, s{S_T3}, 104', f's_mul_i32 s{S_T0}, s{S_T0}, 832', f's_add_u32 s{SI[0]}, s{S_C0}, s{S_T0}',
             f'v_mul_u32_u24 v{q}, 48, v{g}', f'v_sub_u32 v{BP[0]}, v{vBL}, v{q}']
        L += [f's_add_u32 s{SI[k]}, s{SI[0]}, {k * 2 * 1664}' for k in range(1, 5)]
        L += [f's_and_b32 s{S_T2}, s{lw}, 1', f's_lshl_b32 s{S_T2}, s{S_T2}, 3',
              f'v_lshlrev_b32 v{i4}, 1, v{g}', f'v_or_b32 v{i4}, s{S_T2}, v{i4}', f'v_xor_b32 v{i4}, v{i4}, v0', f'v_and_b32 v{i4}, 15, v{i4}',
              f'v_mul_u32_u24 v{vWD[0]}, 3328, v{g}', f'v_lshl_add_u32 v{vWD[0]}, v{i4}, 4, v{vWD[0]}', f'v_add_u32 v{vWD[1]}, {4 * 3328}, v{vWD[0]}',
              f's_mul_i32 s{S_WSOFF}, s{lw}, {8 * 3328}', f's_add_u32 s{S_WSOFF}, s{S_WSOFF}, s{S_N0}', f's_lshl_b32 s{S_WMB}, s{lw}, 11',
              's_waitcnt lgkmcnt(0)']
        L += self.build_srd(SRD_IDX, S_IDX, 4096 * 104) + (['s_barrier'] if o.dbar0 == 1 else []) + idxl[:o.i0] + self.tlb1(T + 14, T + 15) + self.build_srd(SRD_W, S_W1, 1664 * 3328)
        for sl in range(o.w0):
            L += wstage(sl)
        L += self.stamp0() + (['s_barrier'] if o.dbar0 >= 2 else []) + ([Touch(vr(Q, 4))] if o.dbar0 == 3 else []) + idxl[o.i0:]
        for sl in range(o.w0, 2):
            L += wstage(sl)
        L += [f's_lshl_b32 s{S_T2}, s{S_T1}, 6',
              f'v_and_b32 v{q}, 7, v0', f'v_xor_b32 v{q}, v{q}, v{g}', f'v_lshlrev_b32 v{q}, 4, v{q}', f'v_xor_b32 v{vCh[0]}, s{S_T2}, v{q}', f'v_xor_b32 v{vCh[1]}, 64, v{vCh[0]}',
              f's_mov_b32 s{S_LOOP}, 0',
              f's_mul_i32 s{S_T2}, s{lw}, 13', f's_add_u32 s{S_T2}, s{S_T2}, s{S_R}', f's_min_u32 s{S_T2}, s{S_T2}, 39', f's_lshl_b32 s{S_T2}, s{S_T2}, 3',
              f's_add_u32 s{S_T2}, s{S_T2}, s{S_T3}', f's_mul_i32 s{S_GRP}, s{S_T2}, 104',
              f'v_lshrrev_b32 v{q}, {o.tf.bit_length() - 1}, v0', f'v_min_u32 v{q}, 7, v{q}', f'v_mul_u32_u24 v{q}, 104, v{q}',
              f'v_and_b32 v{i4}, {o.tf - 1}, v0', f'v_lshl_add_u32 v7, v{i4}, 2, v{q}',
              f's_lshl_b32 s{S_T2}, s{S_MB}, 2', f's_add_u32 s{S_T2}, s{S_T2}, s{lw}', f's_add_u32 s{S_T2}, s{S_T2}, {o.tw0 * 32}', f's_mul_i32 s{S_RC}, s{S_T2}, 3328',
              f's_add_u32 s{S_RC}, s{S_RC}, s{S_N0}', f's_mov_b32 s{S_T2}, {52 * 3328}',
              f'v_lshrrev_b32 v{q}, 1, v0', f'v_mul_lo_u32 v{q}, s{S_T2}, v{q}', f'v_and_b32 v{i4}, 1, v0', f'v_lshl_add_u32 v{vWT}, v{i4}, 7, v{q}']
        L += self.build_srd(SRD_W2, S_W2, 3328)
        L += [f's_mul_i32 s{S_T2}, s{lw}, {o.lpf * 128}', f's_add_u32 s{S_T2}, s{S_T2}, L_tail-L_pc', f'v_lshlrev_b32 v8, 7, v0', f'v_add_u32 v8, s{S_T2}, v8',
              f'v_mov_b32 v9, s{S_MASK + 1}', f'v_add_co_u32 v8, vcc, s{S_MASK}, v8', 'v_addc_co_u32 v9, vcc, 0, v9, vcc']
        sh = lambda pc, c_: f'v_lshlrev_b32 v{Q + 4 * pc + c_}, 7, v{Q + 4 * pc + c_}'
        for pc in range(10):
            L += [sh(pc, 0), sh(pc, 2), sh(pc, 1), sh(pc, 3)] + xaddr(0, [pc]) + xld(pc, 0, 'X0a' if pc < o.sa else 'X0')
            if pc == 0:
                L += self.stamp(6) + self.probe('i0')
            if pc == o.bwat:
                L += [WaitTag(vm_tags=['W']), 's_barrier']
        L += self.stamp(7) + self.probe('x0i')
        x1 = [x for pc in range(10) for x in xaddr(1, [pc]) + xld(pc, 1)]
        L += x1[:4 * o.x1n] + [WaitTag(vm_tags=['X0a'])] + self.stamp(1) + ['s_barrier'] + self.probe('s0') + x1[4 * o.x1n:4 * o.x1m]
        L += [WaitTag(vm_tags=['X0']), 's_barrier'] + x1[4 * o.x1m:] + wstage(2) + wstage(3) + xaddr(2, range(10))
        x2 = [x for pc in range(10) for x in xld(pc, 2)]
        NR = (26 - o.tf0 + o.tf - 1) // o.tf
        tex = (1 << (8 * o.tf)) - 1
        texec = [f's_mov_b32 exec_lo, {tex & 0xffffffff:#x}', f's_mov_b32 exec_hi, {tex >> 32:#x}']
        if o.tch == 1:
            L += [f'buffer_load_dword v{TI + r}, v7, {srd(SRD_IDX)}, s{S_GRP} offen offset:{4 * min(o.tf0 + o.tf * r, 26 - o.tf)}' for r in range(NR)]

        def xtouch():
            t_ = [f'v_lshlrev_b32 v{T + 1}, 7, v{TI}'] + texec + [f'buffer_load_dword v{T + 2}, v{T + 1}, {srd(SRD_TAB)}, 0 offen', 's_mov_b64 exec, -1']
            return t_ + [f'v_mov_b32 v{TI + r}, v{TI + r + 1}' for r in range(NR - 1)] + [f'v_mov_b32 v{TI + NR - 1}, 0xffffff']

        def wtouch():
            return ['s_mov_b64 exec, 0x3ff', f'buffer_load_dword v{T + 3}, v{vWT}, {srd(SRD_W)}, s{S_RC} offen', 's_mov_b64 exec, -1', f's_add_u32 s{S_RC}, s{S_RC}, {260 * 3328}']
        L += x2[:2 * o.x2n] + [WaitTag(vm_tags=['W']), 's_barrier'] + self.probe('bar0') + x2[2 * o.x2n:] + xaddr(3, range(10))
        lpre = self.seq(L + [f's_setprio {o.lprio}', 's_branch L_ld_in'])
        del self.P.static[self.mk0:]
        self.P.static[self.ldat:self.ldat] = lpre
        self.mk0 = len(self.P.static)

        def lpair(p):
            S = ['s_barrier'] + (['L_ld_in:'] if p == 0 else []) + wstage(2 * (p % 2)) + wstage(2 * (p % 2) + 1)
            f2 = p + 4
            if p == 11:
                S += [f's_cmp_eq_u32 s{S_LOOP}, 1', 's_cbranch_scc1 L_ld_tail0']
            for pc in range(10):
                x = xld(pc, p % 3)
                S += [x[0]] + (xaddr(f2, [pc - 1])[:1] if pc else []) + [x[1]] + (xaddr(f2, [pc - 1])[1:] if pc else [])
            S += xaddr(f2, [9])
            if p >= 10:
                S += [f'v_mov_b32_dpp v{Q + 4 * pc + c_}, v{Q + 4 * pc + c_} row_shl:3 row_mask:0xf bank_mask:0xf' for pc in range(10) for c_ in ((0, 2) if p == 10 else (1, 3))]
            if o.tch == 1 and p % o.tf == o.toff:
                S += xtouch()
            if o.tch == 1 and p % 4 == o.twoff:
                S += wtouch()
            if p == 11:
                S += [f's_add_u32 s{S_LOOP}, s{S_LOOP}, 1', f's_cmp_lt_u32 s{S_LOOP}, 2']
            return S + [WaitTag(vm_tags=['W'])]
        body = self.seq(['L_dnn_loop1:'])
        for p in range(12):
            if p == 8 and o.lpf:
                body += self.seq([f's_cmp_lg_u32 s{S_LOOP}, 1', 's_cbranch_scc1 L_nolpf'])
                self.seq([f's_mov_b64 exec, {(1 << o.lpf) - 1}', 'global_load_dword v10, v[8:9], off', 's_mov_b64 exec, -1'] + small(SRD_W2, L_W2))
                body += self.seq(['L_nolpf:'])
            lp = lpair(p)
            if p and self.probe(f'bar{p}'):
                lp = lp[:1] + [f's_cmp_lg_u32 s{S_LOOP}, 0', f's_cbranch_scc1 L_nopb{p}'] + self.probe(f'bar{p}') + [f'L_nopb{p}:'] + lp[1:]
            body += self.seq(lp + (['s_cbranch_scc1 L_dnn_loop1'] if p == 11 else []))
        tl = c0 + lpre + body * 2 + self.seq(['s_branch L_ld_tail'])
        self.ldblk = self.P.static[self.mk0:]
        del self.P.static[self.mk0:]
        tl += self.seq(['L_ld_tail0:', 's_waitcnt vmcnt(0)', 'L_ld_tail:', 's_barrier'] + self.tlb2(T) + ['s_mov_b64 exec, 1', f'buffer_load_dword v250, v{T}, {srd(SRD_DBG)}, 0 offen offset:240 sc1', 's_mov_b64 exec, -1'])
        tl += self.seq(self.probe('s50'))
        if o.walk:
            tl += self.seq([f's_cmp_eq_u32 s{lw}, 0', 's_cbranch_scc1 L_wkd', 's_mov_b64 exec, 0', f's_cmp_eq_u32 s{lw}, 1', 's_cbranch_scc1 L_wk0',
                            f's_cmp_eq_u32 s{lw}, 2', f's_cbranch_scc1 L_wk{np_ // 3}', f's_branch L_wk{2 * np_ // 3}', 'L_wkd:'])
        A = 64
        L = [f's_cmp_lg_u32 s{S_WAVE}, 4', 's_cbranch_scc1 L_end',
             f'v_lshlrev_b32 v3, 4, v0', f'v_lshlrev_b32 v4, 2, v0', f'v_add_u32 v1, {RB}, v3', f'v_add_u32 v2, {RB + 1024}, v4', f'v_add_u32 v4, 1024, v4',
             'v_mov_b32 v5, 32', f'v_mov_b32 v7, s{S_MB}',
             f's_mul_i32 s{S_T0}, s{S_MB}, 1280', f's_mul_i32 s{S_T1}, s{S_R}, {WSP}', f's_add_u32 s{S_T1}, s{S_T1}, s{S_T0}', 's_setprio 3']
        if o.sent:
            L += [f'v_mov_b32 v{A + k}, -1' for k in range(4)] + [f'buffer_store_dwordx4 {vr(A, 4)}, v3, {srd(SRD_WS)}, s{S_T1} offen sc1',
                  f'buffer_store_dword v{A}, v4, {srd(SRD_WS)}, s{S_T1} offen sc1', 's_waitcnt vmcnt(0)']
        L += self.stamp_flush() + ['s_barrier'] + self.probe('dend')
        L += [f'ds_read_b128 {vr(A, 4)}, v1', f'ds_read_b128 {vr(A + 8, 4)}, v1 offset:1280', f'ds_read2st64_b32 {vr(A + 4, 2)}, v2 offset0:0 offset1:5',
              f'v_pk_add_f32 {p2(A)}, {p2(A)}, {p2(A + 8)}', f'v_pk_add_f32 {p2(A + 2)}, {p2(A + 2)}, {p2(A + 10)}', f'v_add_f32 v{A + 4}, v{A + 4}, v{A + 5}']
        if o.sent:
            L += [f'v_min_u32 v{A + k}, -2, v{A + k}' for k in range(5)]
        L += (self.stamp(16) if o.diag else [])
        L += [f'buffer_store_dwordx4 {vr(A, 4)}, v3, {srd(SRD_WS)}, s{S_T1} offen sc1',
              f'buffer_store_dword v{A + 4}, v4, {srd(SRD_WS)}, s{S_T1} offen sc1', 's_mov_b64 exec, 1']
        tl += self.seq(L)

        L = ['L_pub:']
        if o.skew:
            L += ['v_mov_b32 v20, s86', 'v_mov_b32 v21, s86', 'v_mov_b32 v22, s88', 's_lshl_b32 s89, s2, 7', 's_add_u32 s89, s89, 0x40000', 'v_lshlrev_b32 v23, 28, v0',
                  f'buffer_store_dwordx3 v[20:22], v23, {srd(SRD_WS)}, s89 offen sc1', 's_waitcnt vmcnt(0)']
        def loads():
            c = [f's_mul_i32 s{S_T0}, s{S_T3}, 1280']
            for qq in range(14):
                c += [f'buffer_load_dwordx4 {vr(A + 8 * qq, 4)}, v3, {srd(SRD_WS)}, s{S_T0} offen sc1',
                      f'buffer_load_dword v{A + 8 * qq + 4}, v4, {srd(SRD_WS)}, s{S_T0} offen sc1', f's_add_u32 s{S_T0}, s{S_T0}, {WSP}']
            return c
        R_ = 56
        L += ['v_lshlrev_b32 v6, 4, v7'] + ([] if o.sent else ['s_waitcnt vmcnt(0)']) + ['v_mov_b32 v13, v5', f'buffer_atomic_add v5, v6, {srd(SRD_DBG)}, 0 offen sc0',
              'v_cmp_eq_u32 vcc, 12, v7', 'v_mov_b32 v8, 436', 'v_mov_b32 v9, 434', 'v_cndmask_b32 v8, v8, v9, vcc', 'v_sub_u32 v8, v8, v13']
        if o.spec:
            L += [f's_mov_b64 s[{S_MASK}:{S_MASK + 1}], exec', 's_mov_b64 exec, -1', f'v_readfirstlane_b32 s{S_T3}, v7'] + loads() + [f's_mov_b64 exec, s[{S_MASK}:{S_MASK + 1}]']
            L += ['s_waitcnt vmcnt(0) lgkmcnt(0)']
        else:
            L += ['s_waitcnt vmcnt(0) lgkmcnt(0)']
        L += (self.stamp(18) if o.diag else []) + [
             f'v_cmp_eq_u32 s[{S_EX}:{S_EX + 1}], v5, v8', 's_mov_b64 exec, -1', f's_lshl_b32 s{S_BOUT}, s{S_BOUT}, 16',
             'v_lshrrev_b32 v1, 1, v3', 'v_lshrrev_b32 v2, 1, v4']
        if o.spec:
            L += [f's_bitcmp1_b32 s{S_EX}, 0', f's_bitset0_b32 s{S_EX}, 0', 's_cbranch_scc1 L_sum']
        pa = self.seq(L)
        L = ['L_fin:', f's_cmp_eq_u32 s{S_EX}, 0', 's_cbranch_scc1 L_done',
             f's_ff1_i32_b32 s{S_T2}, s{S_EX}', f's_bitset0_b32 s{S_EX}, s{S_T2}', f'v_readlane_b32 s{S_T3}, v7, s{S_T2}', 's_waitcnt vmcnt(0)', 'L_again:'] + loads()
        pb = self.seq(L)
        L = ['L_sum:', f'v_pk_add_f32 {p2(R_)}, {p2(A)}, {p2(A + 8)}', f'v_pk_add_f32 {p2(R_ + 2)}, {p2(A + 2)}, {p2(A + 10)}', f'v_add_f32 v{R_ + 4}, v{A + 4}, v{A + 12}']
        for qq in range(2, 14):
            L += [f'v_pk_add_f32 {p2(R_)}, {p2(R_)}, {p2(A + 8 * qq)}', f'v_pk_add_f32 {p2(R_ + 2)}, {p2(R_ + 2)}, {p2(A + 8 * qq + 2)}',
                  f'v_add_f32 v{R_ + 4}, v{R_ + 4}, v{A + 8 * qq + 4}']
        if o.sent:
            L += [f'v_cmp_u_f32 vcc, v{R_}, v{R_ + 1}', f'v_cmp_u_f32 s[{S_MASK}:{S_MASK + 1}], v{R_ + 2}, v{R_ + 3}', f's_or_b64 s[{S_MASK}:{S_MASK + 1}], s[{S_MASK}:{S_MASK + 1}], vcc',
                  f'v_cmp_u_f32 vcc, v{R_ + 4}, v{R_ + 4}', f's_or_b64 vcc, s[{S_MASK}:{S_MASK + 1}], vcc', 's_cbranch_vccnz L_chk', 'L_ok:']
        L += [f's_mul_i32 s{S_T3}, s{S_T3}, 640']
        A0 = A
        A = R_
        L += [f'v_add_f32 v{A + k}, s{S_BOUT}, v{A + k}' for k in range(5)]
        L += [f'v_cvt_pk_bf16_f32 v10, v{A}, v{A + 1}', f'v_cvt_pk_bf16_f32 v11, v{A + 2}, v{A + 3}', f'v_cvt_pk_bf16_f32 v12, v{A + 4}, v{A + 4}',
              f'buffer_store_dwordx2 v[10:11], v1, {srd(SRD_OUT)}, s{S_T3} offen', f'buffer_store_short v12, v2, {srd(SRD_OUT)}, s{S_T3} offen']
        if o.skew:
            L += [f's_cmp_lg_u32 s{S_EX}, 0', 's_cbranch_scc1 L_fin', 'v_lshlrev_b32 v20, 7, v0', 's_mov_b32 s88, 0x40000']
            for k in range(4):
                L += [f'buffer_load_dwordx3 v[{32 + 4 * k}:{34 + 4 * k}], v20, {srd(SRD_WS)}, s88 offen sc1', 's_add_u32 s88, s88, 8192']
            L += ['s_waitcnt vmcnt(0)']
            if o.probe.startswith('st') or o.absol:
                L += ['s_memrealtime s[88:89]', 's_waitcnt lgkmcnt(0)', 'v_mov_b32 v26, 0', 'v_mov_b32 v27, 0']
                for k in range(4):
                    L += [f'v_sub_u32 v28, s88, v{32 + 4 * k}', 'v_cmp_gt_u32 vcc, 4500, v28', f'v_not_b32 v29, v{32 + 4 * k}', 'v_cndmask_b32 v29, 0, v29, vcc', 'v_max_u32 v27, v27, v29']
                    if o.absol:
                        L += [f'v_cndmask_b32 v29, 0, v{34 + 4 * k}, vcc', 'v_max_u32 v26, v26, v29']
                    elif str(k) in o.probe[2:]:
                        L += [f'v_cndmask_b32 v29, 0, v{32 + 4 * k}, vcc', 'v_max_u32 v26, v26, v29']
            else:
                for k in range(4):
                    L += [f'v_sub_u32 v28, v{34 + 4 * k}, v{32 + 4 * k}', f'v_cmp_gt_u32 vcc, {100000 if o.cyc else 5000}, v28', f'v_cndmask_b32 v28, 0, v28, vcc',
                          f'v_cmp_eq_u32 vcc, v{32 + 4 * k}, v{33 + 4 * k}', f'v_cndmask_b32 v{33 + 4 * k}, 0, v28, vcc']
                L += ['v_max_u32 v26, v33, v37', 'v_max3_u32 v26, v26, v41, v45', 'v_mov_b32 v27, -1']
            if o.probe == 'span':
                L += ['s_memrealtime s[86:87]', 's_waitcnt lgkmcnt(0)', 'v_mov_b32 v26, s86']
            for (ctl, rm) in (('row_shr:1', '0xf'), ('row_shr:2', '0xf'), ('row_shr:4', '0xf'), ('row_shr:8', '0xf'), ('row_bcast:15', '0xa'), ('row_bcast:31', '0xc')):
                L += [f'v_max_u32_dpp v{r}, v{r}, v{r} {ctl} row_mask:{rm} bank_mask:0xf' for r in (26, 27)]
            L += ['v_not_b32 v27, v27', 'v_sub_u32 v22, v26, v27', 's_memrealtime s[86:87]', 'v_readlane_b32 s88, v22, 63', 's_waitcnt lgkmcnt(0)',
                  *([f's_max_u32 s88, s88, {o.cyc.split(chr(44))[2]}', f's_sub_u32 s88, s88, {o.cyc.split(chr(44))[2]}', 's_lshr_b32 s88, s88, 1'] if o.cyc else []), 's_min_u32 s88, s88, 5000', f's_mul_i32 s88, s88, {o.skew - 1}', 's_add_u32 s88, s88, s86',
                  'L_spin:', 's_memrealtime s[86:87]', 's_waitcnt lgkmcnt(0)', 's_sub_u32 s89, s88, s86', 's_cmp_gt_i32 s89, 0', 's_cbranch_scc1 L_spin']
        L += self.stamp(5) + self.stamp_flush() + ['s_branch L_fin']
        pc_ = self.seq(L)
        if o.sent:
            L = ['L_chk:', 'v_mov_b32 v14, 0', 'v_mov_b32 v15, 0']
            for qq in range(14):
                L += [f'v_max3_u32 v14, v14, v{A0 + 8 * qq}, v{A0 + 8 * qq + 1}', f'v_max3_u32 v14, v14, v{A0 + 8 * qq + 2}, v{A0 + 8 * qq + 3}', f'v_max_u32 v15, v15, v{A0 + 8 * qq + 4}']
            L += [f's_cmp_eq_u32 s{S_T3}, 12', f's_cselect_b32 s{S_T0}, 0, -1', f'v_and_b32 v15, s{S_T0}, v15', 'v_max_u32 v14, v14, v15',
                  'v_cmp_eq_u32 vcc, -1, v14', 's_cbranch_vccnz L_again', 's_branch L_ok']
            self.chk = self.seq(L)
        pe = self.seq(['L_done:', 's_endpgm'])
        self.pub = pa + pb + pc_ + pe
        self.extra_traces = [pa + pc_ + pb + pc_] + ([pa + pb + pc_[:45] + self.chk + pb[7:] + pc_] if o.sent else [])
        return [tc, tl + self.pub]

    def pubsrd(self):
        return self.build_srd(SRD_WS, S_WS, 0x10000000) + self.build_srd(SRD_OUT, S_OUT, 8192) + self.build_srd(SRD_DBG, S_DBG, 256)

    def tables(self):
        OOB = 0x100000
        G = [[] for _ in range(11)]
        for l in range(64):
            half, i32, g, r, c = l >> 5, l & 31, l >> 4, (l >> 2) & 3, l & 3
            lin0 = g * 128 + r * XPP + c * 8
            G[0] += [lin0, lin0 + 512 if g < 3 else XOFF(27) + c * 8, (l >> 3) * 16, 0x3f803f80 if l < 32 else 0]
            G[1] += [(l & 7) * 16, 0xeeee if l & 1 else 0x4444, half * XPP + i32 * 4, IMG + half * 20 * IMGP + i32 * 4]
            tr = [IMG + cin16.IMGROW(cin16.LAB[g][2 * rp + (r >> 1)][r & 1]) * IMGP + c * 8 for rp in range(8)]
            G[2] += tr[:4]
            G[3] += tr[4:]
            row, col = 8 * half + r, (g & 1) * 32 + c * 8
            G[4] += [V3OFF + row * 64 + col, A1 + row * 1352 + col, A1 + min(row + 16, 25) * 1352 + col, A1 + min(row + 20, 25) * 1352 + col]
            t, gd, rr = (i32 >> 2) & 1, i32 >> 3, i32 & 3
            ig = 16 * t + 4 * rr + gd
            iq = 4 * rr + gd if t == 0 else 16 + ((4 * rr + gd + 4) & 15)
            pm = []
            for q in range(8):
                k0 = 16 * (q >> 2) + 8 * half + 2 * (q & 3)
                pm.append((0xffff if iq == k0 else 0xffff0000 if iq == k0 + 1 else 0) if iq < 26 else 0)
            G[5] += pm[:4]
            G[6] += pm[4:]
            ga = A2 + 52 * ig if ig < 26 else OOB
            rowp = ((l & 12) + 2 * (l & 1)) * 16 + (OOB if l & 2 else 0)
            G[7] += [ga + half * 8 * W2P, ga + half * OOB, rowp + half * 256 + (g & 1) * 8, rowp + g * 256]
            G[8] += [SG + i32 * 64 if i32 < 26 else V2S if i32 == 26 else OOB, 64 if i32 == 26 else 3328, (i32 >> 1) + 2 * half,
                     SQ + i32 * 64 + ((((i32 >> 1) & 3) ^ (2 * half)) << 4)]
            v2 = []
            for hf in range(2):
                j = 4 * g + 16 * hf + r
                v2.append(V2S + (j & 1) * 1664 + (j >> 1) * 64 + ((c ^ (((13 + j) & 3) * 2)) * 8) if j < 26 else SG + 676 * 64 + c * 8)
            wo = [L_WCO + 2 * (16 * tl_ + 4 * c + r) if 16 * tl_ + 4 * c + r < 26 else OOB for tl_ in range(2)]
            G[9] += v2 + wo
            G[10] += [L_WCO + 104 + 16 * half, L_WCO + 52 + 2 * l, V3OFF + 52 + 64 * l, SG + 676 * 64 + (l & 15) * 4]
        U = []
        for w in range(8):
            for e in range(16):
                for u in (w, w + 8, w + 16):
                    U += [SG + row * 64 + f * 8 for row, f in cin16.p2rows(u, e >> 2, e & 3)] if u < 22 else [0, 0]
        return [x for n in (4, 2, 3, 0, 5, 6, 7, 8, 9, 1, 10) for x in G[n]] + [0] * 256 + U + [0] * 256

    def cin(self):
        o = self.opt
        cw = S_CW
        vFa, vLin0, vLin1, vXi0, vXi1, vC16, vIDX, vXa, vIw, vPWL, vPXL, PXR, PFR = 1, 4, 5, 6, 7, 8, 9, 10, 11, 12, 13, 14, 15
        XI, vTR = 16, 20
        XR, P, Z, WF, D = 32, 60, 116, 164, 184
        vStg, vFR, vFw = vFa, 2, 59
        t3, t4, t5 = 29, 30, 31
        AV = [28, 58]
        PM = 216
        vA3, vBs0, vBs1a, vBs1b, vGa, vGb, vT3, vT3d = range(224, 232)
        G8, vV2r, vV2q, vWo, AD = 232, 236, 237, 238, 240
        WA = list(range(244, 250))
        vS, vMx = 250, 111
        UA, UX = 224, [232, 233, 234, 235, 240, 241]
        AFR = 112
        BALL, DALL = 60, 120
        S_F1, S_F2, S_G, S_LO, S_HI, S_CM, S_U0, S_U1, S_U2 = 74, 75, 95, 96, 97, 90, 98, 99, 100
        S_CG, S_IV = 0, 1
        OOB = 0x100000
        TA_, TB_, TC_ = SG + 35840, SQ + 26 * W2P, FRS + 2048
        GREG = [224, 20, 24, 4, 216, 220, 228, 232, 236, 8, 240]
        DPPS = (('row_shr:1', '0xf'), ('row_shr:2', '0xf'), ('row_shr:4', '0xf'), ('row_shr:8', '0xf'),
                ('row_bcast:15', '0xa'), ('row_bcast:31', '0xc'))

        K_W7, K_IMG, K_W2, K_W1, K_W12, K_H8, K_T3 = 52, 53, 54, 55, 92 - 10, 92 - 9, 91
        L = ['L_cin:', f'v_lshlrev_b32 v{vStg}, 4, v0', f's_and_b32 s{cw}, s{S_WAVE}, 3', f's_lshr_b32 s{S_GRP}, s{S_WAVE}, 2', f's_lshl_b32 s{S_STG}, s{cw}, 10',
             f's_mul_i32 s{S_MB}, s{S_T0}, 11', f's_add_u32 s{S_MB}, s{S_MB}, s{S_T1}', f's_sub_u32 s{S_MB}, s{S_MB}, 22',
             f's_cmp_eq_u32 s{S_MB}, 86', 's_cbranch_scc1 L_end', f's_cmp_eq_u32 s{S_GRP}, 0', 's_cbranch_scc1 L_sc']
        c0 = self.seq(L)
        L = ['s_setprio 2', f'v_add_u32 v2, L_tables-L_pc+4096, v{vStg}', f'v_mov_b32 v3, s{S_MASK + 1}',
             f'v_add_co_u32 v2, vcc, s{S_MASK}, v2', 'v_addc_co_u32 v3, vcc, 0, v3, vcc',
             f'v_add_co_u32 v{XR}, vcc, s{S_STG}, v2', f'v_addc_co_u32 v{XR + 1}, vcc, 0, v3, vcc',
             f'global_load_dwordx4 {vr(GREG[0], 4)}, v[2:3], off offset:-4096',
             'v_add_co_u32 v2, vcc, 0x1800, v2', 'v_addc_co_u32 v3, vcc, 0, v3, vcc', f'global_load_dwordx4 {vr(GREG[10], 4)}, v[2:3], off',
             f's_cmp_lt_u32 s{cw}, 3', f's_mov_b32 s{S_T2}, {TB_ - 3072}', f's_cselect_b32 s{S_T2}, {TA_ + 4096}, s{S_T2}']
        tdma = lambda off: I(f'global_load_lds_dwordx4 {vr(XR, 2)}, off offset:{off}', tag='TAB')
        L += [f's_add_u32 m0, s{S_STG}, {TA_ + 4096}', tdma(-4096), f's_add_u32 m0, s{S_STG}, s{S_T2}', tdma(0),
              f'v_add_co_u32 v{XR}, vcc, 0x2000, v{XR}', f'v_addc_co_u32 v{XR + 1}, vcc, 0, v{XR + 1}, vcc',
              f's_add_u32 m0, s{S_STG}, {TC_}', tdma(0), f's_add_u32 m0, s{S_STG}, {TB_ + 1024 + 4096}', f's_cmp_ge_u32 s{cw}, 2', 's_cbranch_scc1 L_sc']
        g1s = self.seq(L)
        L = [tdma(-4096)]
        g1t = self.seq(L)
        L = ['L_sc:', f's_mul_i32 s{S_RC}, s{S_GRP}, 20', f's_add_u32 s{S_RC}, s{S_RC}, s{S_WAVE}',
             f's_mul_i32 s{S_SAMP}, s{S_MB}, 48', f's_add_u32 s{S_SAMP}, s{S_SAMP}, s{S_RC}', f's_mul_i32 s{S_SAMP}, s{S_SAMP}, 104',
             f'v_lshrrev_b32 v{t4}, 3, v0', f'v_lshlrev_b32 v{t4}, 4, v{t4}', f'v_and_b32 v{t3}, 0x70, v{vStg}',
             f's_mul_i32 s{S_XM0}, s{S_WAVE}, {XBSZ}', f's_add_u32 s{S_XM0}, s{S_XM0}, {XB}', f's_cmp_eq_u32 s{S_GRP}, 0', 's_cbranch_scc1 L_g0']
        csc = self.seq(L)
        SC2 = [f's_lshl_b32 s{S_RC}, s{S_RC}, 2', f's_add_u32 s{S_RC}, s{S_RC}, {RC}',
               f's_mul_i32 s{S_LOOP}, s{S_GRP}, 3', f's_sub_u32 s{S_LOOP}, 4, s{S_LOOP}', (f's_cmp_eq_u32 s{S_MB}, 85', f's_cselect_b32 s{S_LOOP}, s{S_LOOP}, 6'),
               f's_lshl_b32 s{K_W7}, s{S_WAVE}, 7', f's_mul_i32 s{K_IMG}, s{S_WAVE}, {IMGSZ}', f's_lshl_b32 s{K_W2}, s{S_WAVE}, 2', f's_lshl_b32 s{K_W1}, s{S_WAVE}, 1',
               f's_lshl_b32 s{K_W12}, s{S_WAVE}, 12',
               f's_and_b32 s{S_U0}, s{S_WAVE}, 1', f's_lshr_b32 s{S_U1}, s{S_WAVE}, 1',
               f's_mul_i32 s{S_T0}, s{S_U1}, 3072', f's_lshl_b32 s{K_H8}, s{S_U0}, 3', f's_add_u32 s{S_T0}, s{S_T0}, s{K_H8}', f'v_add_u32 v{vFw}, s{S_T0}, v{vStg}',
               f's_lshl_b32 s{S_T1}, s{S_U1}, 3', f's_lshr_b32 s{S_T1}, 0x05030200, s{S_T1}', f's_and_b32 s{S_T1}, s{S_T1}, 0xff',
               f's_lshl_b32 s{S_T1}, s{S_T1}, 9', f's_lshl_b32 s{S_T2}, s{S_U0}, 2', f's_add_u32 s{K_T3}, s{S_T1}, s{S_T2}',
               f's_mov_b32 s{S_U1}, 0x05040100', f's_mov_b32 s{S_U2}, 0x07060302',
               f'v_mov_b32 v{vFR}, {L_FLG}', 'v_mov_b32 v109, 0', 'v_mov_b32 v108, 0'] + [f'v_mov_b64 {vr(r, 2)}, 0' for r in range(XR, XR + 26, 2)]
        XJ = 104 if o.xat < 4 else 12

        def pfw(dst=3):
            return [f'buffer_load_dword v{dst}, v{vPWL}, {srd(SRD_W)}, s{S_PW} offen',
                    f's_add_u32 s{S_PW}, s{S_PW}, {o.pfne * 688 * 128}']

        def pfx_a():
            return [f'buffer_load_dword v{PXR}, v{vPXL}, {srd(SRD_IDX)}, s{S_PX} offen',
                    f's_cmp_eq_u32 s{S_PX}, s{S_PXE}', f's_cselect_b32 s{S_PXE}, 0x7000000, s{S_PXE}',
                    f's_cselect_b32 s{S_PX}, 0x7000000, s{S_PX}',
                    f's_add_u32 s{S_PX}, s{S_PX}, 24', f's_min_u32 s{S_PX}, s{S_PX}, s{S_PXE}']

        def pfx_b():
            return [f'v_lshlrev_b32 v{PXR}, 7, v{PXR}', f'buffer_load_dword v{PFR}, v{PXR}, {srd(SRD_TAB)}, 0 offen']

        def xidx(XI=XI, vXi0=vXi0):
            return [f'buffer_load_dwordx4 {vr(XI, 4)}, v{vXi0}, {srd(SRD_IDX)}, s{S_SAMP} offen', f's_add_u32 s{S_SAMP}, s{S_SAMP}, {4 * 104}']

        def xdma(XI=XI, off=0, tag='XB', vC16=vC16):
            c = [f'v_lshl_add_u32 v{XI + u}, v{XI + u}, 7, v{vC16}' for u in range(4)]
            for u in range(4):
                c += [f's_add_u32 m0, s{S_XM0}, {u * XPP + off}']
                if u % 2 == 0:
                    c.append(f's_mov_b32 exec_hi, {0xffffff if u == 0 else 0xffff:#x}')
                c.append(I(f'buffer_load_dwordx4 v{XI + u}, {srd(SRD_TAB)}, 0 offen lds', tag=tag))
            return c + ['s_mov_b32 exec_hi, -1']

        def stage(dst, goff, tag):
            st = []
            for m in range(9):
                st.append((f's_add_u32 m0, s{S_STG}, {dst + m * 4096}', f's_add_u32 s{S_TW}, s{S_STG}, {goff + m * 4096}',
                           I(f'buffer_load_dwordx4 v{vStg}, {srd(SRD_CIN)}, s{S_TW} offen lds', tag=tag)))
            return st

        def pubmax(regs_offs):
            c = []
            for (ctl, rm) in DPPS:
                for r, _ in regs_offs:
                    c.append(f'v_max_u32_dpp v{r}, v{r}, v{r} {ctl} row_mask:{rm} bank_mask:0xf')
            c += ['s_mov_b32 exec_lo, 0', 's_mov_b32 exec_hi, 0x80000000']
            c += [f'ds_max_u32 v{vFR}, v{r} offset:{16 + 4 * k}' for r, k in regs_offs]
            return c + ['s_mov_b64 exec, -1']

        def mxop(src, n, mx, first):
            return [f'v_mfma_f32_16x16x32_bf16 {vr(mx, 4)}, {vr(src + r, 4)}, {vr(src + r, 4)}, {"0" if first and r == 0 else vr(mx, 4)}' for r in range(0, n, 4)]

        def mxfin(mx):
            return [f'v_max3_f32 v{mx}, v{mx}, v{mx + 1}, 0', f'v_max3_f32 v{mx}, v{mx}, v{mx + 2}, v{mx + 3}']

        def bread(m, off):
            b = BALL + m * 8
            return [f'ds_read_b64_tr_b16 {vr(b, 2)}, v{vBs0} offset:{off}',
                    f'ds_read_b64_tr_b16 {vr(b + 2, 2)}, v{vBs0} offset:{off + 4 * 1352}',
                    f'ds_read_b64_tr_b16 {vr(b + 4, 2)}, v{vBs1a} offset:{off}',
                    f'ds_read_b64_tr_b16 {vr(b + 6, 2)}, v{vBs1b} offset:{off}']

        def mm2(d, a, b):
            return [f'v_mfma_f32_32x32x16_bf16 {vr(d, 16)}, {vr(a, 4)}, {vr(b, 4)}, 0',
                    f'v_mfma_f32_32x32x16_bf16 {vr(d, 16)}, {vr(a + 4, 4)}, {vr(b + 4, 4)}, {vr(d, 16)}']

        tA, tB = 250, 251
        if o.pfw:
            SC2 += self.build_srd(SRD_W, S_W1, 1664 * 3328) + [
                f's_lshl_b32 s{S_PW}, s{S_MB}, 3', f's_add_u32 s{S_PW}, s{S_PW}, s{S_WAVE}', f's_add_u32 s{S_PW}, s{S_PW}, {o.pfe0 * 832}', f's_lshl_b32 s{S_PW}, s{S_PW}, 7',
                f's_mov_b32 s{S_T3}, {688 * 128}', f'v_min_u32 v{vPWL}, {max(o.pfne - 1, 0)}, v0', f'v_mul_lo_u32 v{vPWL}, s{S_T3}, v{vPWL}']
        if o.pfx:
            SC2 += [f's_lshl_b32 s{S_PX}, s{S_MB}, 3', f's_add_u32 s{S_PX}, s{S_PX}, s{S_WAVE}', f's_mul_i32 s{S_PX}, s{S_PX}, {6 * 104}',
                    f's_add_u32 s{S_PXE}, s{S_PX}, 80', f's_add_u32 s{S_PX}, s{S_PX}, {4 * o.pfx0}',
                    f'v_min_u32 v{PXR}, 35, v0', f'v_mul_u32_u24 v{vPXL}, 10923, v{PXR}', f'v_lshrrev_b32 v{vPXL}, 16, v{vPXL}',
                    f'v_mul_u32_u24 v{vPXL}, {104 - 24}, v{vPXL}', f'v_lshl_add_u32 v{vPXL}, v{PXR}, 2, v{vPXL}']
        trd = lambda n: f'ds_read_b128 {vr(GREG[n], 4)}, v{tA if n < 7 else tB} offset:{(n if n < 7 else n - 7) * 1024}'
        vbs = [f'v_add_u32 v{r}, s{K_W7}, v{r}' for r in (vBs0, vBs1a, vBs1b)]

        def FX(g):
            R = [trd(n) for n in ((0,) if g == 0 else ()) + (6, 7, 3, 9, 1, 2, 4, 5, 8)]
            F = vbs + [f'v_add_u32 v{r}, s{K_W2}, v{r}' for r in (vGa, vGb)]
            F += [f'v_add_u32 v{vT3d}, s{K_H8}, v{vT3d}', f'v_add_u32 v{vT3}, s{K_T3}, v{vT3}']
            F += [f'v_mad_u32_u24 v{G8}, v{G8 + 1}, s{S_WAVE}, v{G8}', f'v_add_u32 v{G8 + 2}, s{K_W1}, v{G8 + 2}',
                  f'v_mad_u32_u24 v{G8 + 1}, v{G8 + 1}, 8, v{G8}', f'v_add_u32 v{WA[2]}, s{K_W12}, v{G8 + 3}', f'v_add_u32 v{WA[3]}, 2048, v{WA[2]}']
            for n_, (wa, bs) in enumerate(((WA[0], G8), (WA[1], G8), (WA[4], G8 + 1), (WA[5], G8 + 1))):
                F += [f'v_add_u32 v{t5}, {n_ & 1}, v{G8 + 2}', f'v_and_b32 v{t5}, 3, v{t5}', f'v_lshl_add_u32 v{wa}, v{t5}, 4, v{bs}']
                if n_ & 1:
                    F.append(f'v_add_u32 v{wa}, 1664, v{wa}')
            F += [f'v_add_u32 v{r}, s{S_XM0}, v{r}' for r in (vXa, vLin0, vLin1)] + [f'ds_write_b32 v{vXa}, v{vXi1} offset:{XOFF(26)}']
            F += [f'v_add_u32 v{r}, s{K_IMG}, v{r}' for r in [vIw] + list(range(vTR, vTR + 8))]
            return R, F
        SC2 += [f'v_add_u32 v{tA}, {TA_}, v{vStg}', f'v_add_u32 v{tB}, {TB_}, v{vStg}', f'v_lshrrev_b32 v3, 5, v0', f'v_lshl_add_u32 v3, v3, 2, v{vFR}']

        def pub2(r1, r2, off):
            c = [f'v_permlane32_swap_b32 v{r1}, v{r2}', f'v_max_u32 v{r1}, v{r1}, v{r2}']
            c += [f'v_max_u32_dpp v{r1}, v{r1}, v{r1} {ctl} row_mask:{rm} bank_mask:0xf' for ctl, rm in DPPS[:5]]
            return c + ['s_mov_b32 exec_lo, 0x80000000', 's_mov_b32 exec_hi, 0x80000000', f'ds_max_u32 v3, v{r1} offset:{16 + off}', 's_mov_b64 exec, -1']
        AV = [28, 58, 111]
        CO = [f's_sub_u32 s{S_T0}, s{S_T3}, 22', f's_min_u32 s{S_T0}, s{S_T0}, 9', f's_lshl_b32 s{S_T0}, s{S_T0}, 2', f's_add_u32 s{S_T0}, s{S_T0}, s{cw}', f's_lshl_b32 s{S_T0}, s{S_T0}, 7',
              f'v_mul_u32_u24 v{t5}, {40 * 128}, v0', 's_waitcnt lgkmcnt(0)'] + self.build_srd(SRD_CIN, S_CIN, 105456) + [
              f'buffer_load_dword v107, v{t5}, {srd(SRD_CIN)}, s{S_T0} offen']
        L = CO if o.coop in (1, 2) else []
        L += ['s_waitcnt lgkmcnt(0)'] + self.build_srd(SRD_WCO, S_WCO, 156) + [f's_mov_b32 m0, {L_WCO}', 's_mov_b64 exec, 0x7ff',
             I(f'buffer_load_dwordx4 v{vStg}, {srd(SRD_WCO)}, 0 offen lds', tag='WCO'), 's_mov_b64 exec, -1'] + (['s_barrier'] if o.coop in (2, 4) else []) + self.stamp0() + SC2
        L += self.build_srd(SRD_IDX, S_IDX, 4096 * 104) + self.build_srd(SRD_TAB, S_TAB, 100000 * 128)
        XK = 12
        if o.g1t:
            assert not o.pfx
            L += [f'v_and_b32 v13, 31, v0', f'v_min_u32 v13, 25, v13', f'v_lshrrev_b32 v14, 5, v0', f'v_mul_u32_u24 v14, {4 * 104}, v14', f'v_lshl_add_u32 v13, v13, 2, v14',
                  f'buffer_load_dword v14, v13, {srd(SRD_IDX)}, s{S_SAMP} offen']
        g1touch = [f'v_lshlrev_b32 v14, 7, v14', f'buffer_load_dword v13, v14, {srd(SRD_TAB)}, 0 offen']
        hx = []
        if o.hx:
            mg = {4: 16384, 5: 13108}[o.hx]
            assert all((d * mg) >> 16 == d // o.hx for d in range(64))
            L += [f'v_min_u32 v12, {12 * o.hx - 1}, v0', f'v_mul_u32_u24 v15, {mg}, v12', 'v_lshrrev_b32 v15, 16, v15', f'v_mul_u32_u24 v15, {104 - 4 * o.hx}, v15', 'v_lshl_add_u32 v12, v12, 2, v15',
                  f's_lshl_b32 s{S_T0}, s{S_MB}, 2', f's_add_u32 s{S_T0}, s{S_T0}, s{cw}', f's_mul_i32 s{S_T0}, s{S_T0}, {12 * 104}',
                  f'buffer_load_dword v15, v12, {srd(SRD_IDX)}, s{S_T0} offen offset:{4 * o.hx0}']
            hx = ['v_lshlrev_b32 v15, 7, v15', f'buffer_load_dword v12, v15, {srd(SRD_TAB)}, 0 offen']
        if o.hw:
            hw = self.build_srd(SRD_W, S_W1, 1664 * 3328) + [f's_lshl_b32 s{S_T0}, s{S_MB}, 2', f's_add_u32 s{S_T0}, s{S_T0}, s{cw}', f's_add_u32 s{S_T0}, s{S_T0}, {o.hw0 * 832}',
                  f's_lshl_b32 s{S_T0}, s{S_T0}, 7', f'v_mul_u32_u24 v106, {344 * 128}, v0', f's_mov_b64 exec, {(1 << o.hw) - 1}',
                  f'buffer_load_dword v{XI}, v106, {srd(SRD_W)}, s{S_T0} offen', 's_mov_b64 exec, -1']
        if o.xg1:
            L += [f's_sub_u32 s{S_T0}, s{S_SAMP}, {24 * 104}', f'buffer_load_dwordx4 {vr(XI, 4)}, v{t4}, {srd(SRD_IDX)}, s{S_T0} offen',
                  f'buffer_load_dwordx4 {vr(XK, 4)}, v{t4}, {srd(SRD_IDX)}, s{S_T0} offen offset:{4 * 104}']
        L += [f'ds_write_b128 v{vFR}, {vr(XR, 4)} offset:16', f's_lshl_b32 s{S_T0}, s{cw}, 6', f'v_add_u32 v{t3}, s{S_T0}, v0']
        for p_ in range(3):
            L += [f'v_mul_u32_u24 v{t4}, 2521, v{t3}', f'v_lshrrev_b32 v{t4}, 16, v{t4}', f'v_mul_u32_u24 v{t4}, 12, v{t4}', f'v_lshl_add_u32 v{AV[p_]}, v{t3}, 1, v{t4}']
            L += [f'v_add_u32 v{t3}, 256, v{t3}'] if p_ < 2 else [f'v_cmp_gt_u32 vcc, 676, v{t3}', f's_mov_b64 s[{S_MASK}:{S_MASK + 1}], vcc']
        L += [f'v_lshlrev_b32 v{t3}, 3, v0', 's_mov_b32 exec_hi, 0xffff', f'ds_write_b64 v{t3}, {vr(XR, 2)} offset:{V3OFF + 26 * 64}', 's_mov_b32 exec_hi, -1',
              f'ds_write_b32 v{AD + 3}, v{XR}', f'ds_write_b32 v{AD + 3}, v{XR} offset:{SSZ}', WaitTag(vm_tags=['WCO'])]
        assert V3OFF == 0
        for s2 in range(2):
            for rd in range(2):
                L.append(f'ds_read_b64 {vr(AFR + 4 * s2 + 2 * rd, 2)}, v{AD} offset:{s2 * 32 + rd * 8}')
        L += [f'ds_read_u16 v110, v{AD + 1}',
              's_mov_b64 exec, 0x3ffffff', f'ds_write_b16 v{AD + 2}, v110', 'v_lshlrev_b32 v109, 17, v110', 'v_lshrrev_b32 v109, 1, v109', 's_mov_b64 exec, -1']
        if o.cwalk:
            L += ['s_mov_b64 exec, 0'] + [x for q_ in range(3) for x in (f's_cmp_eq_u32 s{cw}, {q_}', f's_cbranch_scc1 L_WENTRY{q_}')] + ['s_branch L_WENTRY3', 'L_wret:', 's_mov_b64 exec, -1']
        L += (FX(1)[1] if o.dirt else vbs) + [WaitTag(vm_tags=['TAB'], lgkm0=True)] + self.probe('tab') + (pfw(PFR) if o.pfw and o.pfs == 1 else []) + (hw if o.hw and o.hwat == 0 else []) + (hx if o.hxat == 0 else [])
        v3p = []
        L += ['s_barrier'] + self.stamp(2) + self.probe('b0')
        vb = lambda m: A3 - A1 - 512 + (m >> 1) * 512 + (m & 1) * 64
        for m in range(3):
            L += bread(m, vb(m))
        for m in range(6):
            if m + 3 < 6:
                L += bread(m + 3, vb(m + 3))
            L += mm2(DALL + m * 16, AFR, BALL + m * 8)
            if m == 3 and not o.dirt:
                L += FX(1)[0]
        if not o.dirt:
            L += FX(1)[1][3:]
        for p_ in range(3):
            L += ['s_mov_b32 exec_lo, 0', f'v_mov_b32 v{DALL + 32 * p_}, v{DALL + 32 * p_ + 16}', 's_mov_b32 exec_lo, -1',
                  f'v_cvt_pk_bf16_f32 v{BALL + p_}, 0, v{DALL + 32 * p_}']
            if p_ == 2:
                L += [f's_mov_b64 exec, s[{S_MASK}:{S_MASK + 1}]']
            L += [f'ds_write_b16_d16_hi v{AV[p_]}, v{BALL + p_}', f'v_max_f32 v108, |v{BALL + p_}|, v108']
        L += ['s_mov_b64 exec, -1'] + pub2(108, 109, 8) + self.stamp(13) + [f's_setprio {o.g1p}'] + (hw if o.hw and o.hwat == 1 else []) + (hx if o.hxat == 1 else []) + (g1touch if o.g1t == 1 else []) + ['s_waitcnt lgkmcnt(0)', 's_barrier'] + (g1touch if o.g1t == 2 else []) + ['s_branch L_w2']
        v3 = self.seq(L)

        def stage3(dst, goff, tag, lab, mid=None, fill=()):
            st = stage(dst, goff, tag)
            a_ = st[:8] if mid is None else st[:mid[0]] + [tuple(mid[1])] + st[mid[0]:8]
            return (self.seq(interleave(a_, list(fill)) + [f's_cmp_eq_u32 s{cw}, 3', f's_cbranch_scc1 {lab}']), self.seq([st[8]]), self.seq([f'{lab}:']))
        g0 = [self.seq(['L_g0:'] + ([x.replace('v107,', 'v103,') for x in CO] if o.coop >= 3 else ['s_waitcnt lgkmcnt(0)'] + self.build_srd(SRD_CIN, S_CIN, 105456)) + (['s_barrier'] if o.coop in (2, 4) else []) + ([Touch('v103')] if o.coop == 5 else []))]
        g0.append(stage3(A3, 70304, 'W3', 'L_st3'))
        g0.append(self.seq(self.stamp0() + self.build_srd(SRD_IDX, S_IDX, 4096 * 104) + ([f's_add_u32 s{S_SAMP}, s{S_SAMP}, {8 * 104}'] if o.xg1 else xidx(XI, t4) + xidx(XJ, t4)) + self.build_srd(SRD_TAB, S_TAB, 100000 * 128)))
        def w2grp(n):
            c = []
            for k, go in enumerate((0, 1024, 1864)):
                c.append((f's_add_u32 m0, s{S_STG9}, {A2 + n * 4 * 3072 + k * 1024}', f's_add_u32 s{S_TW}, s{S_TGT}, {35152 + n * 4 * 2704 + go}',
                          I(f'buffer_load_dwordx4 v{t5 if k == 1 else vStg}, {srd(SRD_CIN)}, s{S_TW} offen lds', tag='W2')))
            return c
        g0.append((self.seq([f's_mul_i32 s{S_STG9}, s{cw}, 3072', f's_mul_i32 s{S_TGT}, s{cw}, 2704', f'v_lshrrev_b32 v{t5}, 5, v0', f'v_mul_u32_u24 v{t5}, 184, v{t5}',
                             f'v_sub_u32 v{t5}, v{vStg}, v{t5}'] + interleave(w2grp(0) + w2grp(1) + w2grp(2), SC2) + [f's_cmp_lg_u32 s{cw}, 0', 's_cbranch_scc1 L_st2']),
                   self.seq(w2grp(3)), self.seq(['L_st2:']), 1))
        xx = xdma(vC16=t3, tag='XBa') + xdma(XJ, 4 * XBSZ, vC16=t3)
        g0.append(stage3(A1, 0, 'W1', 'L_st1', (o.sigat, [WaitTag(vm_tags=['W2' if o.mrg else 'W3']), 's_barrier'] + self.stamp(2) + FX(0)[0])))
        g0.append(self.seq((xx if o.xat == 0 else xx[:len(xx) // 2] if o.xat == 3 else []) + (pfw(PFR) if o.pfw and o.pfs == 1 else []) + FX(0)[1] + (xx if o.xat == 2 else xx[:len(xx) // 2] if o.xat >= 4 else []) + self.stamp(13)
                           + [WaitTag(vm_tags=['W1']), 's_barrier'] + (xx if o.xat == 1 else xx[len(xx) // 2:] if o.xat == 3 else [])))

        def G0(w):
            r = []
            for x in g0:
                r += x if isinstance(x, list) else x[0] + (x[1] if w < (3 if len(x) == 3 else x[3]) else []) + x[2]
            return r

        def gather(dst, off):
            c = [f'v_add_u32 v{r}, {off}, v{r}' for r in (vGa, vGb)] if off else []
            for s2 in range(2):
                for e in range(0, 8, 2):
                    base = vGb if (s2 == 1 and e >= 2) else vGa
                    h = 16 * s2 + e
                    c.append(f'ds_read2st64_b32 {vr(dst + 8 * s2 + e, 2)}, v{base} offset0:{6 * h} offset1:{6 * h + 6}')
            return c

        def perms(g_, aj):
            return [f'v_perm_b32 v{aj + 8 * jj + r}, v{g_ + 2 * r + 1}, v{g_ + 2 * r}, s{S_U1 + jj}' for jj in range(2) for r in range(8)]

        def sout(t):
            d, c_ = DALL + 16 * t, DALL + 16 * t
            c = [f'v_cvt_pk_f16_f32 v{c_ + r}, v{d + 2 * r}, v{d + 2 * r + 1}' for r in range(8)]
            return c[:4] + [f'ds_write_b128 v{WA[t]}, {vr(c_, 4)}', f'v_xor_b32 v{WA[t]}, 16, v{WA[t]}'] + c[4:] + [f'ds_write_b128 v{WA[t]}, {vr(c_ + 4, 4)}']
        M1, M2 = 28, 28

        def pub1(r, off):
            c = [f'v_max_u32_dpp v{r}, v{r}, v{r} {ctl} row_mask:{rm} bank_mask:0xf' for ctl, rm in DPPS]
            return c + [('s_mov_b32 exec_lo, 0', 's_mov_b32 exec_hi, 0x80000000', f'ds_max_u32 v{vFR}, v{r} offset:{16 + off}', 's_mov_b64 exec, -1')]
        L = ['L_w2:'] + self.stamp(14) + self.probe('bw2') + gather(BALL, 0) + (pfw(PFR) if o.pfw and o.pfs == 2 else []) + (pfx_a() if o.pfx else [])
        cx = []
        if o.xg1:
            cc0 = self.seq(L + [f's_cmp_eq_u32 s{S_GRP}, 0', 's_cbranch_scc1 L_nx1'])
            cx = self.seq(xdma(XI, -4 * XBSZ) + xdma(XK))
            L = ['L_nx1:']
        else:
            cc0 = []
        L += [f's_cmp_ge_u32 s{S_WAVE}, 5', 's_cbranch_scc1 L_u0']
        cc = self.seq(L)
        M1, M2 = 28, 108
        fin2 = lambda: interleave(mxfin(M1), mxfin(M2)) + [tuple(x) if isinstance(x, list) else x for x in pub2(M1, M2, 0)[:7] + [pub2(M1, M2, 0)[7:]]]
        afr = [f'ds_read_b64_tr_b16 {vr(AFR + 4 * s2 + 2 * rd, 2)}, v{vA3} offset:{s2 * 1024 + rd * 256}' for s2 in range(2) for rd in range(2)]
        b1u = self.seq(gather(BALL + 32, 32) + bread(2, 0) + bread(3, 64) + afr + mxop(BALL, 16, M2, True) + perms(BALL, DALL + 64)[:8] + mxop(BALL + 32, 16, M2, False)
                       + mxop(BALL + 16, 16, M1, True) + perms(BALL, DALL + 64)[8:] + interleave(fin2(), perms(BALL + 32, BALL)) + ['s_branch L_u1'])
        L = ['L_u0:'] + bread(2, 0) + bread(3, 64) + bread(4, 384) + bread(5, 384 + 64) + afr + mxop(BALL, 16, M2, True) + mxop(BALL + 16, 32, M1, True)
        L += perms(BALL, DALL + 64)[:4] + interleave(fin2(), perms(BALL, DALL + 64)[4:])
        L += [f'v_add_u32 v{WA[4]}, {192 * 64}, v{WA[2]}', f'v_add_u32 v{WA[5]}, {192 * 64}, v{WA[3]}',
              f's_cmp_lg_u32 s{S_WAVE}, 7', 's_cbranch_scc1 L_u1', 's_mov_b32 exec_lo, 0xfffffff0', 's_mov_b32 exec_hi, 0xfffffff0', f'v_mov_b32 v{WA[5]}, {OOB}', 's_mov_b64 exec, -1']
        b1q = self.seq(L)
        MXR = 108
        vM = 58

        def ureads(j):
            return [f'ds_read_u16_d16_hi v{XR + 2 * j}, v{vXa} offset:{XOFF(2 * j)}',
                    f'ds_read_u16_d16_hi v{XR + 2 * j + 1}, v{vXa} offset:{XOFF(2 * j) + 2}']
        mx3 = lambda j: f'v_max3_f32 v{vM}, |v{XR + 2 * j}|, |v{XR + 2 * j + 1}|, {"0" if j == 0 else f"v{vM}"}'
        L = ['L_u1:'] + self.stamp(1) + [WaitTag(lgkm0=True), 's_barrier'] + self.stamp(7) + self.probe('b1')
        L += [f'ds_read_b128 {vr(MXR, 4)}, v{vFR} offset:16'] + (pfx_b() + pfx_a() if o.pfx and o.pf1 == 1 else [])
        hook = {}

        def mkhook(name, c0_, c1_):
            nonlocal L
            if not (c0_ or c1_):
                return
            pre_ = self.seq(L + [f's_cmp_lg_u32 s{S_GRP}, 0', f's_cbranch_scc1 L_{name}1'])
            a_ = self.seq(c0_ + [f's_branch L_{name}2'])
            b_ = self.seq([f'L_{name}1:'] + c1_)
            hook[name] = (pre_, a_, b_)
            L = [f'L_{name}2:']
        mkhook('hb', xdma(XJ, 4 * XBSZ) if o.xat == 5 else [], g1touch if o.g1t == 3 else [])
        L += [f's_mul_i32 s{S_T0}, s{S_WAVE}, 384', f'v_lshrrev_b32 v{t3}, 2, v0', f'v_mul_u32_u24 v{t3}, 24, v{t3}', f'v_add_u32 v{t3}, s{S_T0}, v{t3}',
              f'v_and_b32 v{t4}, 3, v0', f'v_lshlrev_b32 v{t4}, 3, v{t4}']
        L += [f'ds_read_b64 {vr(UA + 2 * n_, 2)}, v{t3} offset:{TC_ + 8 * n_}' for n_ in range(3)]
        q1 = [f'v_add_u32 v{MXR}, {127 << 23:#x}, v{MXR}', f'v_lshrrev_b32 v{MXR}, 24, v{MXR}', f'v_sub_u32 v{MXR}, 267, v{MXR}', f'v_min_u32 v{MXR}, 167, v{MXR}',
              f'v_readfirstlane_b32 s{S_F1}, v{MXR}', f'v_mul_u32_u24 v{MXR}, 0x800080, v{MXR}']
        sc = [f'v_add_u32 v{MXR + 1}, {127 << 23:#x}, v{MXR + 1}', f'v_lshrrev_b32 v{MXR + 1}, 24, v{MXR + 1}',
              's_mov_b32 vcc_lo, 0x4000000', 's_mov_b32 vcc_hi, 0x4000000', f'v_cndmask_b32 v{vS}, v{MXR + 2}, v{MXR + 3}, vcc', f'v_lshrrev_b32 v{vS}, 23, v{vS}',
              f'v_add_u32 v{vS}, v{vS}, v{MXR + 1}', f'v_sub_u32 v{vS}, 388, v{vS}', f's_movk_i32 s{S_U0}, 167', f'v_med3_i32 v{vS}, v{vS}, 1, s{S_U0}',
              f'v_subrev_u32 v{MXR + 2}, 127, v{vS}', f'v_lshlrev_b32 v{vS}, 23, v{vS}', f'v_cmp_gt_i32 vcc, 0, v{MXR + 2}',
              f'v_mul_u32_u24 v{MXR + 2}, 0x800080, v{MXR + 2}']
        mq = mm2(DALL + 32, PM, BALL + 16) + mm2(DALL + 48, PM, BALL + 24)
        L += interleave(q1, sc[:6]) + [f'v_and_b32 v{PM + r}, v{PM + r}, v{MXR}' for r in range(8)] + interleave([mq[0], mq[2], mq[1], mq[3]], sc[6:]) + ['s_cbranch_vccnz L_sdown']
        L += [f'v_add_u32 v{AFR + r}, v{AFR + r}, v{MXR + 2}' for r in range(8)]
        u1a = self.seq(L)
        L = ['L_scaled:'] + interleave(mm2(DALL, DALL + 64, AFR) + mm2(DALL + 16, DALL + 72, AFR), sout(2) + sout(3))
        L += [f's_cmp_ge_u32 s{S_WAVE}, 5', 's_cbranch_scc1 L_u2']
        u1 = self.seq(L)
        u2u = self.seq(interleave(mm2(DALL + 64, BALL, AFR) + mm2(DALL + 80, BALL + 8, AFR), sout(0)) + ['s_branch L_u3'])
        u2q = self.seq(['L_u2:'] + interleave(mm2(DALL + 64, PM, BALL + 32) + mm2(DALL + 80, PM, BALL + 40), sout(0)))
        L = ['L_u3:'] + xidx() + xidx(112) + (pfx_b() + pfx_a() if o.pfx and o.pf1 == 2 else [])
        mkhook('hu', xdma(XJ, 4 * XBSZ) if o.xat == 4 else [], g1touch if o.g1t == 4 else [])
        L += interleave(sout(1) + sout(4) + sout(5), [x for n_ in range(6) for x in (f'v_xor_b32 v{UA + n_}, v{UA + n_}, v{t4}', f'v_xor_b32 v{UX[n_]}, 32, v{UA + n_}')])
        L += [f'v_readlane_b32 s{S_CG}, v{vS}, 0', f'v_readlane_b32 s{S_IV}, v{vS}, 26',
              f's_sub_u32 s{S_F2}, {254 << 23:#x}, s{S_CG}', f's_sub_u32 s{S_IV}, {254 << 23:#x}, s{S_IV}',
              f's_sub_u32 s{S_F1}, 254, s{S_F1}', f's_lshl_b32 s{S_F1}, s{S_F1}, 23',
              f's_mov_b32 s{S_MASK}, 0x88888888', f's_mov_b32 s{S_MASK + 1}, 0x88888888']

        def sigma(s_):
            t = (s_ - 1) // 2
            first = (s_ - 1) % 2 == 0
            return (0 if first else 1) if t % 2 == 0 else (1 if first else 0)
        for s_ in range(1, 11):
            assert ((s_ - 1) // 2) * 1024 + sigma(s_) * 512 - (s_ // 4) * 2048 == (-1024, 0, 512, 1536)[s_ % 4]

        def p2read(n_):
            b = BALL + 16 * n_
            c = []
            UAl = list(range(UA, UA + 6))
            for x, (ar, off) in enumerate(((UAl, 0), (UX, 0), (UAl, SSZ), (UX, SSZ))):
                for y in range(2):
                    c.append(f'ds_read_b64_tr_b16 {vr(b + 4 * x + 2 * y, 2)}, v{ar[2 * n_ + y]} offset:{off}')
            return c

        def p2a(n_):
            b = BALL + 16 * n_
            c = []
            for x in range(4):
                c += [f'v_pk_add_f16 v{b + 4 * x + y}, v{b + 4 * x + y}, v{b + 4 * x + 2 + y}' for y in range(2)]
                if x in (0, 2):
                    c.append(f'ds_write_b64 v{vFw}, {vr(b + 4 * x, 2)} offset:{FR + n_ * 4 * 3072 + x * 1024}')
            c += [f'v_cndmask_b32 v{b + 4 + y}, v{b + 4 + y}, v{b + 12 + y}, s[{S_MASK}:{S_MASK + 1}]' for y in range(2)]
            c.append(f'ds_write_b64 v{vFw}, {vr(b + 4, 2)} offset:{FR + n_ * 4 * 3072 + 1024}')
            return c

        def p2s(n_):
            b = BALL + 16 * n_ + 12
            off = FRS + max(n_ * 2048 - 1024, 0)
            return ([f'v_subrev_u32 v{vT3}, 1024, v{vT3}'] if n_ == 0 else []) + [
                f'ds_write_b32 v{vT3}, v{b} offset:{off}', f'ds_write_b32 v{vT3}, v{b + 1} offset:{off + 16}']
        ec = []
        if o.econv:
            L += [f's_cmp_lg_u32 s{S_GRP}, 0', 's_cbranch_scc1 L_noec']
            u3 = self.seq(L)
            ec = self.seq([WaitTag(vm_tags=['XBa'])] + [x for j in range(13) for x in ureads(j)])
            L = ['L_noec:']
        else:
            u3 = []
        L += [WaitTag(vm_tags=['XB'] if o.xg1 else [], lgkm0=True), 's_barrier'] + self.stamp(10)
        L += p2read(0) + p2read(1) + [f's_cmp_ge_u32 s{S_WAVE}, 6', 's_cbranch_scc1 L_lin']
        b2 = self.seq(L)
        p2c = self.seq(p2read(2) + p2a(2) + p2s(2) + ['s_branch L_p2'])
        LB = BALL + 32
        ZR4 = t5
        L = ['L_lin:', f's_and_b32 s{S_U0}, s{S_WAVE}, 1', f's_cselect_b64 vcc, -1, 0', f's_lshl_b32 s{S_U1}, s{S_U0}, 5', f'v_mov_b32 v{ZR4}, 0',
             f'v_xor_b32 v{vV2r}, s{S_U1}, v{vV2r}', f'v_xor_b32 v{vV2q}, s{S_U1}, v{vV2q}', f'v_cndmask_b32 v{vWo}, v{vWo}, v{vWo + 1}, vcc',
             f'ds_read_b64_tr_b16 {vr(LB, 2)}, v{vV2r}', f'ds_read_b64_tr_b16 {vr(LB + 2, 2)}, v{vV2q}',
             f'ds_read_u16_d16_hi v{ZR4}, v{vWo}',
             f's_lshl_b32 s{S_U0}, s{S_U0}, 10', f'v_add_u32 v{t3}, s{S_U0}, v{vStg}']
        for r in range(4):
            a_, b_ = LB + 4 + 2 * r, LB + 5 + 2 * r
            L += [f'v_cvt_f32_f16 v{a_}, v{LB + r}', f'v_cvt_f32_f16_sdwa v{b_}, v{LB + r} dst_sel:DWORD dst_unused:UNUSED_PAD src0_sel:WORD_1',
                  f'v_mul_f32 v{a_}, s{S_IV}, v{a_}', f'v_mul_f32 v{b_}, s{S_IV}, v{b_}']
            if r == 3:
                L += ['s_mov_b32 exec_lo, 0', 's_mov_b32 exec_hi, 0xffff', f'v_mov_b32 v{a_}, v{ZR4}', 's_mov_b64 exec, -1']
            L += [f'v_mul_f32 v{a_}, s{S_CG}, v{a_}', f'v_mul_f32 v{b_}, s{S_CG}, v{b_}', f'v_cvt_pk_bf16_f32 v{LB + r}, v{a_}, v{b_}']
        L += [f'ds_write_b128 v{t3}, {vr(LB, 4)} offset:{FRL}']
        lin = self.seq(L)
        p2 = self.seq(['L_p2:'] + p2a(1) + p2s(1) + p2a(0) + [f's_cmp_lt_u32 s{S_WAVE}, 2', 's_cbranch_scc1 L_p2d'])
        p2e = self.seq(p2s(0) + ['s_branch L_built'])
        p2d = self.seq(['L_p2d:', f'ds_write_b64 v{vT3d}, {vr(BALL + 12, 2)} offset:{FRS + 5 * 1024}'])

        L = ['L_sdown:']
        for r in range(8):
            L += [f'v_lshlrev_b32 v{MXR}, 16, v{AFR + r}', f'v_and_b32 v{MXR + 1}, 0xffff0000, v{AFR + r}',
                  f'v_mul_f32 v{MXR}, v{MXR}, v{vS}', f'v_mul_f32 v{MXR + 1}, v{MXR + 1}, v{vS}', f'v_cvt_pk_bf16_f32 v{AFR + r}, v{MXR}, v{MXR + 1}']
        self.sdown = L + ['s_branch L_scaled']

        HK = lambda n_, g_: hook[n_][0] + hook[n_][1 + g_] if n_ in hook else []

        def PRE(w, sd=None):
            grp = w >> 2
            return (c0 + (g1s + (g1t if w < 6 else []) if grp else []) + csc + (v3p + v3 if grp else G0(w)) + cc0 + (cx if grp else []) + cc + (b1q if w >= 5 else b1u)
                    + HK('hb', grp) + (u1a if sd is None else u1a[:-8] + sd) + u1 + (u2q if w >= 5 else u2u) + HK('hu', grp) + u3 + ([] if grp else ec) + b2
                    + (lin if w >= 6 else p2c) + p2 + (p2d if w < 2 else p2e))
        L = ['L_built:'] + self.stamp(11)
        L += [f's_mov_b32 s{S_CG}, s{S_F1}', f's_mov_b32 s{S_IV}, s{S_F2}', f's_mov_b32 s{S_LO}, {f32hex(0.125)}', f's_mov_b32 s{S_HI}, {f32hex(0.0 if o.slow else 128.0)}']
        CV, vM, S_XD = 28, 58, 81

        def ureads(j):
            return [f'ds_read_u16_d16_hi v{XR + 2 * j}, v{vXa} offset:{XOFF(2 * j)}',
                    f'ds_read_u16_d16_hi v{XR + 2 * j + 1}, v{vXa} offset:{XOFF(2 * j) + 2}']
        mx3 = lambda j: f'v_max3_f32 v{vM}, |v{XR + 2 * j}|, |v{XR + 2 * j + 1}|, {"0" if j == 0 else f"v{vM}"}'
        cvt = lambda j: f'v_cvt_pk_f16_f32 v{CV + j % 4}, v{XR + 2 * j}, v{XR + 2 * j + 1}'
        iwr = lambda j: f'ds_write_b32 v{vIw}, v{CV + j % 4} offset:{j * IMGP}'
        S_SKIP = 51
        pfr = lambda: (pfx_b() + pfx_a() if o.pfx else []) + (pfw() if o.pfw == 1 else [])
        conv = lambda tag='XB': ([WaitTag(vm_tags=[tag])] + [x for j in range(13) for x in ureads(j)]
                        + [x for j in range(13) for x in (mx3(j), f'v_cvt_pk_f16_f32 v{D + j}, v{XR + 2 * j}, v{XR + 2 * j + 1}')])
        L += [f's_mov_b32 s{S_SKIP}, 1', f's_mul_i32 s{S_U0}, s{S_WAVE}, 1536', f's_add_u32 s{S_U0}, s{S_U0}, {PART}',
              f's_cmp_lg_u32 s{S_GRP}, 0', 's_cbranch_scc1 L_g1c']
        c2a = self.seq(L)
        c2g0 = self.seq([f's_sub_u32 s{S_SAMP}, s{S_SAMP}, {4 * 104}', Touch('v[112:115]')] + (conv('XBa')[27:] if o.econv else conv('XBa')) + [WaitTag(lgkm0=True), 's_barrier'] + self.probe('b4a') + self.stamp(8) + ['s_branch L_cin_go'])
        DX = XB2 - XB - 4 * XBSZ
        L = ['L_g1c:', WaitTag(vm_tags=['XB'], lgkm0=True), 's_barrier'] + self.stamp(8) + self.probe('b4')
        L += [f's_add_u32 s{S_XM0}, s{S_XM0}, {DX}'] + xdma(tag='XB0') + xdma(112, 4 * XBSZ) + xidx() + pfr() + [f'v_add_u32 v{r}, {DX}, v{r}' for r in (vXa, vLin0, vLin1)]
        L += [f'ds_write_b32 v{vXa}, v{vXi1} offset:{XOFF(26)}', f'ds_write_b32 v{vXa}, v{vXi1} offset:{XOFF(26) + 4 * XBSZ}']
        c2g1 = self.seq(L)
        c2b = []
        c2g1d = self.seq(['L_g1d:'] + conv('XB0'))
        c2c = self.seq(['L_cin_go:'] + [f'ds_write_b32 v{vIw}, v{D + j} offset:{j * IMGP}' for j in range(13)]
                       + [f's_mov_b32 s{S_XD}, {4 * XBSZ}', f's_add_u32 s{S_XM0}, s{S_XM0}, {4 * XBSZ}',
                          f'v_lshlrev_b32 v{vXi1}, 2, v0', f'v_add_u32 v{vXi1}, s{S_U0}, v{vXi1}'])

        NWF = 5
        PF = o.cpfd
        zslot = lambda s_: 1 if s_ % 2 == 0 else (0 if ((s_ - 1) // 2) % 2 == 0 else 2)
        zr = lambda T, sl: Z + 12 * T + 4 * sl
        preg = lambda T, r: P + 14 * T + (r if r < 14 else r - 14)
        acc = lambda T, tile: D + 16 * T + 4 * tile
        jobs = [('l', 0, 0), ('l', 0, 1)]
        for s_ in range(11):
            jobs += [('d', s_, 2), ('d', s_, 0), ('d', s_, 1)]
            if s_ == 0:
                jobs.append(('d', 0, 3))
            elif s_ % 2 == 0:
                jobs.append(('s', s_, 3))
        NJ = len(jobs)
        assert NJ == 41

        def wread(n):
            kind, s_, tile = jobs[n]
            off = FRL + tile * 1024 if kind == 'l' else (FR + s_ * 3072 + tile * 1024 if tile < 3 else FRS + (5 if s_ == 0 else (s_ - 1) // 2) * 1024)
            return f'ds_read_b128 {vr(WF + 4 * (n % NWF), 4)}, v{vFa} offset:{off}'

        def mfma(n, T):
            kind, s_, tile = jobs[n]
            a = vr(WF + 4 * (n % NWF), 4)
            d = vr(acc(T, tile), 4)
            if kind == 'l':
                return f'v_mfma_f32_16x16x32_bf16 {d}, {a}, {vr(zr(T, 2), 4)}, 0'
            if kind == 's':
                lo = 0 if ((s_ - 1) // 2) % 2 == 0 else 1
                return f'v_smfmac_f32_16x16x64_f16 {d}, {a}, {vr(zr(T, lo), 8)}, v{vIDX}'
            return f'v_mfma_f32_16x16x32_f16 {d}, {a}, {vr(zr(T, zslot(s_)), 4)}, {"0" if (s_ == 0 and tile >= 2) else d}'

        def pk(T, n):
            a, b, s0, s1 = cin16.INS[n]
            return (f'v_pk_mul_f16 v{zr(T, zslot(n // 4)) + n % 4}, v{preg(T, a)}, v{preg(T, b)} '
                    f'op_sel:[{s0[0]},{s0[1]}] op_sel_hi:[{s1[0]},{s1[1]}]')

        def trp(T, rp):
            return f'ds_read_b64_tr_b16 {vr(preg(T, 2 * rp), 2)}, v{vTR + rp} offset:{32 * T}'

        LASTA = max(n for n, x in enumerate(cin16.INS) if x[0] < 2)
        S_A1, S_A2, S_PINC = 49, 50, 48
        fin = []
        for T in range(4):
            fin += [(acc(T, 0) + r, acc(T, 2) + r) for r in range(4)] + [(acc(T, 1), acc(T, 1) + 3)]
        for T in range(4):
            fin += [(acc(T, 1) + 1 + (r >> 1), acc(T, 3) + r) for r in range(4)]

        def final(f1, f2):
            c = []
            for k, (a, b) in enumerate(fin):
                d = Z + k % 4
                c.append(f'v_mul_f32 v{d}, v{a}, v{b}' if k < 4 else f'v_fmac_f32 v{d}, v{a}, v{b}')
            c += [f'v_add_f32 v{Z}, v{Z}, v{Z + 1}', f'v_add_f32 v{Z + 2}, v{Z + 2}, v{Z + 3}', f'v_add_f32 v{Z}, v{Z}, v{Z + 2}']
            c += [f'v_mul_f32 v{Z}, s{x}, v{Z}' for x in (f1, f2)]
            return c + [f'ds_write_b32 v{vXi1}, v{Z}']
        code = ['L_cin_loop:', f'v_cmp_le_f32 s[{S_CM}:{S_CM + 1}], s{S_HI}, v{vM}', f'v_cmp_le_f32 vcc, s{S_LO}, v{vM}',
                f's_mov_b32 s{S_A1}, s{S_F1}', f's_mov_b32 s{S_A2}, s{S_F2}',
                f's_cmp_lg_u64 s[{S_CM}:{S_CM + 1}], 0', 's_cbranch_scc1 L_cslow', 's_cbranch_vccz L_cslow']
        cA = self.seq(code)
        RD = []
        for rp in (0, 3, 4):
            RD += [trp(T, rp) for T in range(4)]
        for T in range(4):
            RD += [f'ds_read_b64_tr_b16 {vr(zr(T, 2), 2)}, v{vLin0} offset:{32 * T}', f'ds_read_b64_tr_b16 {vr(zr(T, 2) + 2, 2)}, v{vLin1} offset:{32 * T}']
        RD += [wread(k) for k in range(PF)]
        for rp in (5, 6, 1, 2):
            RD += [trp(T, rp) for T in range(4)]
        pfr = lambda: (pfx_b() + pfx_a() if o.pfx else []) + (pfw() if o.pfw == 1 else [])
        vm = xdma() + xidx() + pfr()
        VA = final(S_A1, S_A2) + [f'v_add_u32 v{vXi1}, 256, v{vXi1}']
        PK0 = [pk(T, n) for T in range(4) for n in range(4)]
        TG = [f'v_add_u32 v{r}, s{S_XD}, v{r}' for r in (vXa, vLin0, vLin1)] + [f's_sub_u32 s{S_XM0}, s{S_XM0}, s{S_XD}', f's_sub_u32 s{S_XD}, 0, s{S_XD}', f's_mov_b32 s{S_SKIP}, 0']
        cB0 = self.seq(['L_cconv:', f's_cmp_lg_u32 s{S_SKIP}, 0', 's_cbranch_scc1 L_first'])
        cVM = self.seq(interleave(RD, VA) + PK0 + vm)
        self.first = ['L_first:'] + RD[:28] + interleave(RD[28:], PK0) + ['s_branch L_novm']
        code = ['L_novm:'] + TG
        LA = 1
        def lstamp(base):
            if not (o.stamps and o.cst):
                return []
            return [f's_memtime s[{S_ST}:{S_ST + 1}]', f's_memrealtime s[{S_ST + 2}:{S_ST + 3}]', f's_sub_u32 s{S_C0}, {base + 6}, s{S_LOOP}', 's_waitcnt lgkmcnt(0)',
                    f's_mov_b32 m0, s{S_C0}', f'v_writelane_b32 v252, s{S_ST}, m0', f'v_writelane_b32 v253, s{S_ST + 2}, m0']
        code += lstamp(19)
        code += [Touch(vr(WF, 4)), Touch(vr(zr(3, 2), 4))] + ([f's_cmp_eq_u32 s{S_GRP}, 0', 's_cbranch_scc1 L_np1', 's_setprio 1', 'L_np1:'] if o.gprio else ['s_setprio 1'])
        MS = [(n, T) for n in range(NJ) for T in range(4)]
        first_use, last_use = {}, {}
        for mi, (n, T) in enumerate(MS):
            kind, s_, tile = jobs[n]
            if kind == 'l':
                last_use[(T, 'lin')] = mi
                continue
            for su in ([s_] if kind == 'd' else [s_ - 1, s_]):
                first_use.setdefault((T, su), mi)
                last_use[(T, su)] = mi
        V = []
        for s_ in range(LA, 11):
            prev = [p_ for p_ in range(s_) if zslot(p_) == zslot(s_)]
            for T in range(4):
                rdy = last_use[(T, prev[-1])] + o.war if prev else (last_use[(T, 'lin')] if zslot(s_) == 2 else -1)
                for n in range(4 * s_, 4 * s_ + 4):
                    V.append((pk(T, n), rdy, first_use[(T, s_)], n, T))
        forced = 0
        late = []
        XL_ = [x for j in range(13) for x in ureads(j)]
        xrd = {}
        CVR = [preg(T, r) for r in (2, 3, 6, 7) for T in range(4)]
        cvrdy = max(n for n, x in enumerate(cin16.INS) if set(x[:2]) & {2, 3, 6, 7})
        cvt2 = lambda j: f'v_cvt_pk_f16_f32 v{CVR[j]}, v{XR + 2 * j}, v{XR + 2 * j + 1}'
        iwr2 = lambda j: f'ds_write_b32 v{vIw}, v{CVR[j]} offset:{j * IMGP}'
        nm = nc = nw = 0
        V.sort(key=lambda x: x[2])
        prev2 = 0
        for mi, (n, T) in enumerate(MS):
            while V and V[0][2] <= mi:
                assert V[0][1] < mi
                code.append(V.pop(0)[0]); forced += 1
            code.append(mfma(n, T))
            t = 4
            if o.cbar and mi == len(MS) - 1 - o.cbov:
                code += ['s_setprio 3', 's_barrier']; t += 8
            if not o.cbar and mi == 4 * o.hiat - 2:
                code.append('s_setprio 2'); t += 4
            if T == 3 and n + 1 < NJ:
                code.append(Touch(vr(WF + 4 * ((n + 1) % NWF), 4))); t += 4
            if T == 0 and n + PF < NJ:
                code.append(wread(n + PF)); t += 8
            elif T in (1, 2) and late:
                code.append(late.pop(0)); t += 8
            elif T in (1, 2) and mi >= o.x0 and XL_:
                if len(XL_) == 26:
                    code.append(WaitTag(vm_tags=['XB']))
                code.append(XL_.pop(0)); t += 8
                if len(XL_) % 2 == 0:
                    xrd[12 - len(XL_) // 2] = mi
            elif not V and nw < nc and t == 4:
                code.append(iwr2(nw)); nw += 1; t += 12
            t = max(t, 12 if jobs[n][0] == 's' else 8)
            k = 0
            while t < 16:
                urgent = any(V[q_][2] - 1 - mi < q_ + 1 for q_ in range(min(24, len(V))))
                if k == 1 and prev2 >= o.max2 and not urgent:
                    break
                cand = [x for x in V[:32] if x[1] <= mi]
                extra = None
                if nm < 13 and nm in xrd and xrd[nm] + o.xlat <= mi:
                    extra = 'm'
                elif nc < nm and all(x[3] > cvrdy for x in V):
                    extra = 'c'
                if cand and (k == 0 or urgent or not extra) and (k == 0 or urgent or o.eager):
                    x = cand[0]
                    V.remove(x)
                    code.append(x[0])
                    if x[3] <= LASTA and all(y[3] > LASTA for y in V if y[4] == x[4]):
                        late.append(trp(x[4], 7))
                elif extra == 'm':
                    code.append(mx3(nm)); nm += 1
                elif extra == 'c':
                    code.append(cvt2(nc)); nc += 1
                else:
                    break
                t += 4; k += 1
            prev2 = prev2 + 1 if k == 2 else 0
        assert not late and not XL_ and not V
        print('left', 13 - nm, 13 - nc, 13 - nw)
        tail = [mx3(j) for j in range(nm, 13)] + [cvt2(j) for j in range(nc, 13)] + [iwr2(j) for j in range(nw, 13)]
        print('forced VALU', forced)
        code += lstamp(25)
        code.append(f's_setprio {o.p0}')
        code += [f's_sub_u32 s{S_LOOP}, s{S_LOOP}, 1', f's_cmp_eq_u32 s{S_LOOP}, 0', 's_cbranch_scc1 L_cin_done'] + tail
        ntail = len(tail) + 1
        def keep(x):
            t_ = x.text if isinstance(x, I) else x
            if isinstance(t_, tuple):
                return True
            if 'nopk' in o.dbg and t_.startswith('v_pk_mul_f16'):
                return False
            if 'nowf' in o.dbg and t_.startswith('ds_read_b128'):
                return False
            if 'nosm' in o.dbg and t_.startswith('v_smfmac'):
                return False
            return True
        code = [x for x in code if keep(x)]
        if 'bf' in o.dbg:
            code = [x.replace('x32_f16', 'x32_bf16').replace('x64_f16', 'x64_bf16') if isinstance(x, str) else x for x in code]
        cB = self.seq(code + ['s_branch L_cin_loop'])
        mark0 = len(self.P.static)
        bl = []
        if o.burn:
            bl = [f's_movk_i32 s{S_LOOP}, {o.burn // 2}', 'L_burn2:'] + [f'v_mfma_f32_16x16x32_f16 {vr(P + 4 * (k % 2), 4)}, {vr(WF + 4 * (k % 4), 4)}, {vr(Z + 4 * (k // 4), 4)}, 0' for k in range(32)]
            bl += [f's_sub_u32 s{S_LOOP}, s{S_LOOP}, 1', f's_cmp_lg_u32 s{S_LOOP}, 0', 's_cbranch_scc1 L_burn2']
        L = ['L_cin_done:', f's_mul_i32 s{S_U0}, s{S_WAVE}, 1536', f's_add_u32 s{S_U0}, s{S_U0}, {PART}',
             f'v_lshlrev_b32 v{Z + 4}, 5, v0', f'v_add_u32 v{Z + 4}, s{S_U0}, v{Z + 4}',
             f'ds_read_b128 {vr(P, 4)}, v{Z + 4}', f'ds_read_b128 {vr(P + 4, 4)}, v{Z + 4} offset:16'] + bl + final(S_F1, S_F2)[:-1]
        E = [f'v_subrev_u32 v{Z + 6}, s{S_U0}, v{vXi1}', f'v_lshrrev_b32 v{Z + 6}, 8, v{Z + 6}', f'v_lshrrev_b32 v{Z + 5}, 3, v0', f'v_cmp_gt_u32 vcc, v{Z + 6}, v{Z + 5}',
             f'v_min_u32 v{Z + 5}, v{Z + 5}, v{Z + 6}', f'v_lshlrev_b32 v{Z + 5}, 4, v{Z + 5}', f'v_add_u32 v{Z + 5}, s{S_RC}, v{Z + 5}',
             ] + [f'v_add_f32 v{P + a_}, v{P + a_}, v{P + b_}' for a_, b_ in ((0, 1), (2, 3), (4, 5), (6, 7), (0, 2), (4, 6), (0, 4))]
        E += [f'v_add_f32_dpp v{P}, v{P}, v{P} {ctl} row_mask:0xf bank_mask:0xf' for ctl in ('quad_perm:[1,0,3,2]', 'quad_perm:[2,3,0,1]', 'row_half_mirror')]
        L += interleave([f'v_add_f32_dpp v{Z}, v{Z}, v{Z} {ctl} row_mask:{rm} bank_mask:0xf' for ctl, rm in DPPS], E)
        L += [f'v_cndmask_b32 v{P}, v{Z}, v{P}, vcc', 's_bitset1_b32 vcc_hi, 31', 's_mov_b64 exec, vcc', f'ds_write_b32 v{Z + 5}, v{P}', 's_mov_b64 exec, -1']
        L += self.stamp(9) + self.stamp_flush() + self.probe('cend') + [f's_cmp_eq_u32 s{S_WAVE}, 0', 's_cbranch_scc1 L_cpub', 's_waitcnt lgkmcnt(0)', 's_barrier', 's_endpgm',
              'L_cpub:', f's_load_dword s{S_BOUT}, s[{S_BO}:{S_BO + 1}], 0'] + self.pubsrd() + [
              'v_lshlrev_b32 v6, 2, v0', f'v_add_u32 v2, {RC}, v6', 'v_add_u32 v4, 1024, v6',
              f's_mul_i32 s{S_T1}, s{S_MB}, 192', f's_add_u32 s{S_T1}, s{S_T1}, {13 * WSP}',
              'v_mov_b32 v13, -1', 's_mov_b32 exec_hi, 0xffff', f'buffer_store_dword v13, v6, {srd(SRD_WS)}, s{S_T1} offen sc1', 's_mov_b64 exec, 1',
              f'buffer_load_dword v250, v6, {srd(SRD_OUT)}, 0 offen', f'buffer_load_dword v251, v6, {srd(SRD_DBG)}, 0 offen offset:240 sc1', 's_mov_b64 exec, -1',
              f's_mul_i32 s{S_T0}, s{S_MB}, 3', f's_mul_i32 s{S_T2}, s{S_T0}, 3277', f's_lshr_b32 s{S_T2}, s{S_T2}, 16',
              f'v_add_u32 v7, s{S_T2}, v0', f's_mul_i32 s{S_T2}, s{S_T2}, 20', f's_add_u32 s{S_T2}, s{S_T2}, 20',
              f's_sub_u32 s{S_T2}, s{S_T2}, s{S_T0}', f's_min_u32 s{S_T2}, s{S_T2}, 3', f's_sub_u32 s{S_T0}, 3, s{S_T2}',
              f'v_mov_b32 v5, s{S_T0}', f'v_writelane_b32 v5, s{S_T2}, 0',
              f's_cmp_eq_u32 s{S_T0}, 0', f's_cselect_b32 s{S_T0}, 1, 3',
              'v_lshlrev_b32 v3, 4, v0', 's_mov_b32 exec_hi, 0xffff', 's_waitcnt vmcnt(0) lgkmcnt(0)', 's_barrier'] + self.probe('cend2') + ['ds_read_b32 v64, v2']
        L += (self.stamp(16) if o.diag else [])
        L += ['v_min_u32 v64, -2, v64'] if o.sent else []
        L += [f'buffer_store_dword v64, v6, {srd(SRD_WS)}, s{S_T1} offen sc1', f's_mov_b32 exec_lo, s{S_T0}', 's_mov_b32 exec_hi, 0', 's_branch L_pub']
        fin_ = self.seq(L)
        blk = self.P.static[mark0:]
        del self.P.static[mark0:]
        at = self.P.static.index(self.pub[-1]) + 1
        self.P.static[at:at] = blk + self.ldblk
        L = ['L_cslow:']
        for (ctl, rm) in (('row_shr:1', '0xf'), ('row_shr:2', '0xf'), ('row_shr:4', '0xf'), ('row_shr:8', '0xf'),
                          ('row_bcast:15', '0xa'), ('row_bcast:31', '0xc')):
            L.append(f'v_max_f32_dpp v{vM}, v{vM}, v{vM} {ctl} row_mask:{rm} bank_mask:0xf')
        L += [f'v_readlane_b32 s{S_U0}, v{vM}, 63', f's_mov_b32 s{S_HI}, 0',
              f's_lshr_b32 s{S_U0}, s{S_U0}, 23', f's_min_u32 s{S_U0}, s{S_U0}, {127 + 55}',
              f's_lshr_b32 s{S_U1}, s{S_IV}, 23', f's_sub_u32 s{S_U1}, s{S_U1}, 47', f's_lshr_b32 s{S_U1}, s{S_U1}, 1', f's_min_u32 s{S_U1}, s{S_U1}, 59',
              f's_sub_u32 s{S_U1}, 131, s{S_U1}', f's_max_u32 s{S_U0}, s{S_U0}, s{S_U1}',
              f's_sub_u32 s{S_U1}, {127 + 4 + 127}, s{S_U0}',
              f's_lshl_b32 s{S_U2}, s{S_U1}, 1', f's_sub_u32 s{S_U2}, s{S_U2}, 127',
              f's_sub_u32 s{S_G}, 254, s{S_U2}', f's_lshl_b32 s{S_G}, s{S_G}, 23',
              f'v_mov_b32 v{P}, s{S_G}', f'v_mul_f32 v{P + 1}, s{S_CG}, v{P}', f'v_mul_f32 v{P}, s{S_IV}, v{P}',
              f'v_readfirstlane_b32 s{S_F1}, v{P + 1}', f'v_readfirstlane_b32 s{S_F2}, v{P}',
              f's_lshl_b32 s{S_U1}, s{S_U1}, 23', f's_lshl_b32 s{S_U2}, s{S_U2}, 23']
        TS = P
        for j in range(13):
            L += [f'v_mul_f32 v{TS}, s{S_U1}, v{XR + 2 * j}', f'v_mul_f32 v{TS + 1}, s{S_U1}, v{XR + 2 * j + 1}',
                  f'v_mul_f32 v{TS + 2}, s{S_U2}, v{XR + 2 * j}', f'v_mul_f32 v{TS + 3}, s{S_U2}, v{XR + 2 * j + 1}',
                  f'v_cvt_pk_f16_f32 v{TS + 20 + j}, v{TS}, v{TS + 1}', f'v_cvt_pk_bf16_f32 v{TS + 4 + j}, v{TS + 2}, v{TS + 3}',
                  f'ds_write_b32 v{vIw}, v{TS + 20 + j} offset:{j * IMGP}', f'ds_write_b32 v{vXa}, v{TS + 4 + j} offset:{XOFF(2 * j)}']
        L += [f'v_mov_b32 v{TS}, s{S_U2}', f'v_cvt_pk_bf16_f32 v{TS}, v{TS}, v{TS}',
              's_mov_b32 exec_hi, 0', f'ds_write_b32 v{vXa}, v{TS} offset:{XOFF(26)}', 's_mov_b32 exec_hi, -1',
              's_waitcnt lgkmcnt(0)', 's_branch L_cconv']
        slow = self.seq(L)
        sdown = self.seq(self.sdown)
        cF = self.seq(self.first)
        traces = []
        for w in range(8):
            grp = w >> 2
            c2 = c2a + (c2g1 + (c2b if w == 4 else []) + c2g1d if grp else c2g0) + c2c
            it = lambda sl, first: cA + (slow if sl else []) + cB0 + (cF if first else cVM) + cB
            traces.append(PRE(w) + c2 + it(0, 1) + it(0, 0) + it(0, 0)[:-ntail] + fin_ + self.pub)
            if w in (0, 4):
                traces.append(PRE(w, sdown) + c2 + it(1, 1) + it(1, 0)[:-ntail] + fin_ + self.pub)
        return traces

    def build(self):
        pro = self.prologue()
        d = self.dnn()
        cs = self.cin()
        self.seq(['L_end:', 's_endpgm'])
        traces = [pro + c for c in d + cs] + self.extra_traces
        for t in traces:
            resolve_waits(t)
        for _ in range(2):
            for t in traces:
                resolve_hazards(t)
        hdr = open(os.path.join(os.path.dirname(os.path.abspath(__file__)), 'header.txt')).read()
        txt = hdr + f'; @launch grid=(256,1,1) block=(512,1,1) lds={LDS_TOTAL}\n'
        txt += f'''.amdgcn_target "amdgcn-amd-amdhsa--gfx950"
{DOC}.text
.globl {KNAME}
.p2align 8
.type {KNAME},@function
{KNAME}:
'''
        body_ = self.P.emit()
        if self.opt.align:
            for lab in ('L_dnn_loop0:', 'L_dnn_loop1:', 'L_cin_loop:', 'L_epi:'):
                pad = '  s_nop 0\n' if self.opt.align > 100 else ''
                body_ = body_.replace(lab + '\n', f'.p2align {self.opt.align % 100}\n{pad}{lab}\n')
        if self.opt.cwalk:
            lines = body_.split('\n')
            i0, i1 = lines.index('L_w2:'), lines.index('L_cslow:')
            out, k, cnt = lines[:i0], 0, 0
            seg = lines[i0:i1]
            prot = 0
            for n_, l in enumerate(seg):
                out.append(l)
                t = l.strip()
                cnt += 1
                inmain = 'L_novm:' in seg[:n_ + 1]
                nxt = seg[n_ + 1].strip() if n_ + 1 < len(seg) else ''
                ok = t.endswith(':') or (cnt >= self.opt.cwalk and ('mfma' in t and nxt.startswith('v_pk') if inmain else t.startswith(('ds_', 'v_perm', 'v_cvt_pk'))))
                if ok and t not in ('L_cin_loop:', 'L_cconv:', 'L_scaled:'):
                    out += [f'L_wp{k}:', f'  s_cbranch_execz L_wp{k + 1}']
                    k += 1; cnt = 0
            j = lines.index('L_first:')
            rest = lines[i1:j + 1] + [f'L_wp{k}:', '  s_cbranch_execz L_wret'] + lines[j + 1:]
            body_ = '\n'.join(out + rest)
            print('walk pads', k + 1)
            self.npads = k + 1
            for q_ in range(4):
                body_ = body_.replace(f'L_WENTRY{q_}', f'L_wp{q_ * (k + 1) // 4}')
        if self.opt.fix:
            body_ = fixalign.fix(body_ + 'L_tables:\n', self.opt.fix)[:-len('L_tables:\n')]
        txt += body_
        tb = self.tables()
        assert len(tb) == 16 * 256
        txt += '.p2align 8\nL_tables:\n' + ''.join('.long ' + ', '.join(f'{x:#x}' for x in tb[i:i + 8]) + '\n' for i in range(0, len(tb), 8))
        txt += f'''.section .rodata,"a"
.p2align 6
.amdhsa_kernel {KNAME}
  .amdhsa_next_free_vgpr 256
  .amdhsa_next_free_sgpr 102
  .amdhsa_accum_offset 256
  .amdhsa_group_segment_fixed_size 0
  .amdhsa_kernarg_size 88
  .amdhsa_user_sgpr_count 2
  .amdhsa_user_sgpr_kernarg_segment_ptr 1
  .amdhsa_system_sgpr_workgroup_id_x 1
  .amdhsa_float_denorm_mode_32 {self.opt.denorm}
.end_amdhsa_kernel
'''
        return txt


def main():
    ap = argparse.ArgumentParser()
    ap.add_argument('-o', default='standalone__deep_cross_xdeepfm__recsys.s')
    ap.add_argument('--stamps', action='store_true')
    ap.add_argument('--nodma', action='store_true')
    ap.add_argument('--cpf', type=int, default=1)
    ap.add_argument('--coop', type=int, default=2)
    ap.add_argument('--coopw', type=int, default=2)
    ap.add_argument('--tbpos', type=int, default=0)
    ap.add_argument('--dbar3', type=int, default=1)
    ap.add_argument('--tlb', type=int, default=0)
    ap.add_argument('--tlb2', type=int, default=1)
    ap.add_argument('--itst', type=int, default=0)
    ap.add_argument('--diag', type=int, default=0)
    ap.add_argument('--dbg', default='')
    ap.add_argument('--lead3', type=int, default=1)
    ap.add_argument('--morder', type=int, default=0)
    ap.add_argument('--etlb', type=int, default=0)
    ap.add_argument('--lateb', type=int, default=0)
    ap.add_argument('--wfl', default='')
    ap.add_argument('--xfl', default='')
    ap.add_argument('--tag', type=int, default=0)
    ap.add_argument('--idxfirst', type=int, default=1)
    ap.add_argument('--bpos', type=int, default=2)
    ap.add_argument('--sigat', type=int, default=4)
    ap.add_argument('--epx', type=int, default=1)
    ap.add_argument('--denorm', type=int, default=3)
    ap.add_argument('--mprio', type=int, default=0)
    ap.add_argument('--swap', type=int, default=0)
    ap.add_argument('--bov', type=int, default=1)
    ap.add_argument('--rfirst', type=int, default=0)
    ap.add_argument('--g1x', type=int, default=0)
    ap.add_argument('--ldsred', type=int, default=0)
    ap.add_argument('--csnake', type=int, default=0)
    ap.add_argument('--cswap', type=int, default=0)
    ap.add_argument('--align', type=int, default=0)
    ap.add_argument('--c2', type=int, default=0)
    ap.add_argument('--d1', type=int, default=0)
    ap.add_argument('--cstr', type=int, default=3)
    ap.add_argument('--bearly', type=int, default=1)
    ap.add_argument('--w2late', type=int, default=1)
    ap.add_argument('--aov', type=int, default=5)
    ap.add_argument('--upos', type=int, default=1)
    ap.add_argument('--calt', type=int, default=1)
    ap.add_argument('--pfpos', type=int, default=1)
    ap.add_argument('--wlate', type=int, default=0)
    ap.add_argument('--dbar2', type=int, default=0)
    ap.add_argument('--dbar', type=int, default=0)
    ap.add_argument('--pfw', type=int, default=0)
    ap.add_argument('--pfx', type=int, default=0)
    ap.add_argument('--pfx0', type=int, default=4)
    ap.add_argument('--pfs', type=int, default=1)
    ap.add_argument('--dcoopx', type=int, default=1)
    ap.add_argument('--dcx0', type=int, default=0)
    ap.add_argument('--dcxpos', type=int, default=-1)
    ap.add_argument('--pfe0', type=int, default=2)
    ap.add_argument('--pfne', type=int, default=13)
    ap.add_argument('--prio47', type=int, default=0)
    ap.add_argument('--lookahead', type=int, default=5)
    ap.add_argument('--nz', type=int, default=6)
    ap.add_argument('--nwf', type=int, default=8)
    ap.add_argument('--hiat', type=int, default=8)
    ap.add_argument('--wmerge', type=int, default=0)
    ap.add_argument('--gapv', type=int, default=6)
    ap.add_argument('--slow', type=int, default=0)
    ap.add_argument('--hx', type=int, default=4)
    ap.add_argument('--hx0', type=int, default=4)
    ap.add_argument('--hxat', type=int, default=1)
    ap.add_argument('--hw', type=int, default=0)
    ap.add_argument('--hw0', type=int, default=2)
    ap.add_argument('--hwat', type=int, default=0)
    ap.add_argument('--tgap', type=int, default=40)
    ap.add_argument('--tmask', type=int, default=0x15)
    ap.add_argument('--st', type=int, default=0)
    ap.add_argument('--sf0', type=int, default=2)
    ap.add_argument('--dbar0', type=int, default=2)
    ap.add_argument('--ptl', type=int, default=0)
    ap.add_argument('--ct2', default='')
    ap.add_argument('--ewat', type=int, default=0)
    ap.add_argument('--gprio', type=int, default=1)
    ap.add_argument('--g1t', type=int, default=1)
    ap.add_argument('--tf0', type=int, default=8)
    ap.add_argument('--twoff', type=int, default=0)
    ap.add_argument('--ew', type=int, default=4)
    ap.add_argument('--ew0', type=int, default=2)
    ap.add_argument('--cyc', default='')
    ap.add_argument('--rshare', type=int, default=1)
    ap.add_argument('--dwalk', type=int, default=0)
    ap.add_argument('--band', type=int, default=0)
    ap.add_argument('--absol', type=int, default=0)
    ap.add_argument('--rev', type=int, default=1)
    ap.add_argument('--xg1', type=int, default=0)
    ap.add_argument('--bou', type=int, default=1)
    ap.add_argument('--sjw', type=int, default=7)
    ap.add_argument('--cwalk', type=int, default=0)
    ap.add_argument('--few', default='')
    ap.add_argument('--econv', type=int, default=0)
    ap.add_argument('--nsh', type=int, default=16)
    ap.add_argument('--sh0', type=int, default=5)
    ap.add_argument('--dirt', type=int, default=0)
    ap.add_argument('--mrg', type=int, default=0)
    ap.add_argument('--g1p', type=int, default=0)
    ap.add_argument('--sa', type=int, default=4)
    ap.add_argument('--sbg', type=int, default=16)
    ap.add_argument('--bwat', type=int, default=0)
    ap.add_argument('--x2n', type=int, default=8)
    ap.add_argument('--sent', type=int, default=1)
    ap.add_argument('--spec', type=int, default=0)
    ap.add_argument('--probe', default='')
    ap.add_argument('--skew', type=int, default=0)
    ap.add_argument('--fix', type=int, default=64)
    ap.add_argument('--walk', type=int, default=0)
    ap.add_argument('--eal', type=int, default=3)
    ap.add_argument('--eoff', type=int, default=0)
    ap.add_argument('--ct', default='02')
    ap.add_argument('--rot', type=int, default=13)
    ap.add_argument('--i0', type=int, default=1)
    ap.add_argument('--i1', type=int, default=10)
    ap.add_argument('--burn', type=int, default=0)
    ap.add_argument('--lord', type=int, default=1)
    ap.add_argument('--lprio', type=int, default=0)
    ap.add_argument('--rsp', type=int, default=0)
    ap.add_argument('--tch', type=int, default=1)
    ap.add_argument('--tf', type=int, default=4)
    ap.add_argument('--toff', type=int, default=2)
    ap.add_argument('--tw0', type=int, default=8)
    ap.add_argument('--xat', type=int, default=4)
    ap.add_argument('--pf1', type=int, default=1)
    ap.add_argument('--lpf', type=int, default=20)
    ap.add_argument('--lpfit', type=int, default=6)
    ap.add_argument('--x1m', type=int, default=10)
    ap.add_argument('--bgap', type=int, default=6)
    ap.add_argument('--cprio', type=int, default=1)
    ap.add_argument('--x1n', type=int, default=5)
    ap.add_argument('--w0', type=int, default=2)
    ap.add_argument('--dbar1', type=int, default=1)
    ap.add_argument('--aon', type=int, default=2)
    ap.add_argument('--cbar', type=int, default=0)
    ap.add_argument('--vmpos', type=int, default=2)
    ap.add_argument('--il2', type=int, default=0)
    ap.add_argument('--p1', type=int, default=0)
    ap.add_argument('--pm', type=int, default=2)
    ap.add_argument('--cbov', type=int, default=3)
    ap.add_argument('--p0', type=int, default=0)
    ap.add_argument('--max2', type=int, default=2)
    ap.add_argument('--eager', type=int, default=0)
    ap.add_argument('--cst', type=int, default=0)
    ap.add_argument('--x0', type=int, default=60)
    ap.add_argument('--xlat', type=int, default=18)
    ap.add_argument('--xper', type=int, default=3)
    ap.add_argument('--xc0', type=int, default=0)
    ap.add_argument('--n3', type=int, default=1)
    ap.add_argument('--xi0', type=int, default=1)
    ap.add_argument('--pfsat', type=int, default=0)
    ap.add_argument('--g1prio', type=int, default=0)
    ap.add_argument('--xearly', type=int, default=1)
    ap.add_argument('--cpfd', type=int, default=4)
    ap.add_argument('--cla', type=int, default=1)
    ap.add_argument('--war', type=int, default=1)
    opt = ap.parse_args()
    resolve_waits.dbg = 'dup' in opt.dbg
    g = Gen(opt)
    txt = g.build()
    open(opt.o, 'w').write(txt)
    print('wrote', opt.o, len(txt), 'bytes')


if __name__ == '__main__':
    main()
```

```python
import sys, os, struct, argparse
sys.path.insert(0, os.path.dirname(os.path.abspath(__file__)))
from asmlib import I, WaitTag, Touch, Prog, resolve_waits, resolve_hazards
import cin16, fixalign

KNAME = 'standalone__deep_cross_xdeepfm__recsys_kernel'
LDS_TOTAL = 163840

XSLOT = 320 * 128
WR = 3 * XSLOT + 8192
WSLOT = 32 * 256
L_BIAS = 3 * XSLOT
L_W2 = L_BIAS + 256
RB = L_W2 + 256
assert WR % 32768 == 0 and WR + 4 * WSLOT <= LDS_TOTAL
WSP = 16640
assert RB + 2560 <= LDS_TOTAL

W2P = 1536
SSZ = 677 * 64
FRS = 0
V3OFF = 0
A1 = 6144
FR = A1
FRL = FR + 33 * 1024
A3 = FRL + 2048
SG = A3
A2 = SG + SSZ
SQ = A2
V2S = SQ + SSZ
L_WCO = V2S + 832
L_FLG = L_WCO + 192
L_MX = L_FLG + 16
RC = L_FLG + 64
XB = V2S + 2496
XPP = 1056
XBSZ = 3 * XPP + 7 * 128
IMG = A3
IMGP = 160
IMGSZ = 33 * IMGP
XB2 = IMG + 8 * IMGSZ
PART = XB2 + 8 * XBSZ
XOFF = lambda f: (f & 3) * XPP + (f >> 2) * 128
assert RC + 512 <= V2S + 1664
assert XB + 8 * XBSZ <= LDS_TOTAL and XB % 16 == 0 and A2 % 64 == 0 and A3 % 64 == 0 and L_WCO % 16 == 0 and V2S % 64 == 0
assert PART + 8 * 1536 <= V2S + 832 and IMGSZ % 32 == 0 and XB2 % 16 == 0

S_WAVE = 3
S_IDX, S_TAB, S_CIN, S_WCO, S_W1, S_B1, S_W2, S_BO, S_OUT, S_DBG, S_WS = 4, 6, 8, 10, 12, 14, 16, 18, 20, 22, 24
S_MB, S_R = 26, 27
SRD_IDX, SRD_TAB, SRD_CIN, SRD_WCO, SRD_W, SRD_B1, SRD_W2, SRD_OUT, SRD_WS, SRD_DBG = 28, 32, 36, 40, 44, 48, 52, 56, 60, 64
S_T0, S_T1, S_T2, S_T3 = 68, 69, 70, 71
S_LOOP, S_IDXOFF, S_WSOFF, S_WMB, S_XM0, S_N0, S_C0, S_CW, S_BOUT, S_TW = 72, 73, 74, 75, 76, 77, 78, 79, 80, 81
S_EX = 82
S_GRP, S_RC = 84, 85
S_ST = 86
S_M26, S_MASK = 90, 92
S_SAMP, S_STG, S_STG9, S_TGT = 94, 95, 96, 97
S_M26B = 98
S_GW = 100
S_TAGT = 0
S_TAG = 1
S_PW = 101
S_PX = 77
S_PXE = 73

GELU_C0 = -2.0 * 0.7978845608028654 * 1.4426950408889634
GELU_C1 = GELU_C0 * 0.044715


def f32hex(x):
    return '0x%08x' % struct.unpack('<I', struct.pack('<f', x))[0]


def vr(a, n):
    return f'v[{a}:{a + n - 1}]' if n > 1 else f'v{a}'


def srd(a):
    return f's[{a}:{a + 3}]'


def flat(gs):
    res = []
    for c in gs:
        if isinstance(c, (tuple, list)):
            res += flat(c)
        else:
            res.append(c)
    return res


def interleave(a, b):
    out = []
    ia = ib = 0
    na, nb = len(a), len(b)
    while ia < na or ib < nb:
        if ib >= nb or (ia < na and ia * nb <= ib * na):
            out.append(a[ia]); ia += 1
        else:
            out.append(b[ib]); ib += 1
    return out


SLOTS = []
for j in range(0, 26, 2):
    for s in range(0, 14 if j <= 12 else 13):
        SLOTS.append((j, (j + s) % 26))
assert len(SLOTS) == 176
DUP_SLOT = SLOTS.index((12, 25))
assert all((d * 2521) >> 16 == d // 26 for d in range(800))
assert all((d * 10923) >> 16 == d // 6 for d in range(64))
assert all((d * 5042) >> 16 == d // 13 for d in range(170))
assert all((d * 3277) >> 16 == d // 20 for d in range(264))


DOC = '''; ---------------------------------------------------------------------------------------------
; Generated by tools/gen24.py (own generator; waits / hazard nops derived from instruction traces).
;
;       U[i,j,k] = sum_h W2[h,i,j] V3[h,k]
;   Both quadratic forms use the 351 distinct products x_j x_k (j<=k) with symmetrised weights, evaluated by
;   DNN branch: full bf16 GEMM + bias + tanh-GELU (x / (1 + exp(-2u))) + dot with w_dnn2; four terms of one
;   sample share a reciprocal (common denominator; exp(-2u) saturates at 2^24, i.e. at fp32 rounding level).
;   their own producer) and counters in d_debug; the last arriver of a row block adds up and writes d_out.
;   L_tables holds constant per-lane LDS address tables (functions of the lane id only).
; ---------------------------------------------------------------------------------------------
'''


class Gen:
    def __init__(self, opt):
        self.opt = opt
        self.P = Prog()

    def seq(self, lines):
        return [self.P.add(l) for l in flat(lines)]

    def build_srd(self, dst, ptr, size):
        return [f's_mov_b32 s{dst}, s{ptr}', f's_and_b32 s{dst + 1}, s{ptr + 1}, 0xffff',
                f's_mov_b32 s{dst + 2}, {size}', f's_mov_b32 s{dst + 3}, 0x20000']

    def stamp(self, slot):
        if not self.opt.stamps or (self.opt.few and slot not in [int(x) for x in self.opt.few.split(',')]):
            return []
        return [f's_memtime s[{S_ST}:{S_ST + 1}]', f's_memrealtime s[{S_ST + 2}:{S_ST + 3}]', 's_waitcnt lgkmcnt(0)',
                f'v_writelane_b32 v252, s{S_ST}, {slot}', f'v_writelane_b32 v253, s{S_ST + 2}, {slot}']

    def probe(self, name, wave=4):
        if self.opt.tailp:
            return ['s_memrealtime s[88:89]', 's_waitcnt lgkmcnt(0)'] if name in self.opt.probe.split(',') else []
        if self.opt.cyc:
            a_, b_, _ = self.opt.cyc.split(',')
            return ['s_memtime s[86:87]', 's_waitcnt lgkmcnt(0)'] if name == a_ else ['s_memtime s[88:89]', 's_waitcnt lgkmcnt(0)'] if name == b_ else []
        if self.opt.probe != name:
            return []
        return ['s_memrealtime s[88:89]', 's_waitcnt lgkmcnt(0)']

    def stamp_flush(self):
        if not self.opt.stamps:
            return []
        L = self.build_srd(SRD_WS, S_WS, 0x10000000)
        L += [f's_lshl_b32 s{S_C0}, s2, 3', f's_add_u32 s{S_C0}, s{S_C0}, s{S_WAVE}',
              f's_lshl_b32 s{S_C0}, s{S_C0}, 8', f's_add_u32 s{S_C0}, s{S_C0}, 0x100000',
              'v_lshlrev_b32 v254, 3, v0', 's_mov_b32 exec_hi, 0',
              f'buffer_store_dwordx2 v[252:253], v254, {srd(SRD_WS)}, s{S_C0} offen', 's_mov_b32 exec_hi, -1']
        return L

    def stamp0(self):
        if not self.opt.stamps:
            return []
        return ['v_mov_b32 v252, 0xcdcdcdcd', 'v_mov_b32 v253, 0xcdcdcdcd',
                f'v_writelane_b32 v252, s{S_ST}, 0', f'v_writelane_b32 v253, s{S_ST + 2}, 0'] + self.stamp(15)

    def tlb2(self, t):
        L = self.build_srd(SRD_WS, S_WS, 0x10000000) + self.build_srd(SRD_OUT, S_OUT, 8192) + self.build_srd(SRD_DBG, S_DBG, 256)
        L += [f's_load_dword s{S_BOUT}, s[{S_BO}:{S_BO + 1}], 0', f'v_mov_b32 v{t}, 0', 's_mov_b64 exec, 1',
              f's_mov_b32 s{S_TW}, 0x80000',
              f'buffer_load_dword v{t + 1}, v{t}, {srd(SRD_WS)}, s{S_TW} offen',
              f'buffer_load_dword v{t + 2}, v{t}, {srd(SRD_OUT)}, 0 offen',
              's_mov_b64 exec, -1']
        return L

    def tlb1(self, vtmp, vdst):
        if not self.opt.etlb:
            return self.build_srd(SRD_TAB, S_TAB, 100000 * 128)
        return self.build_srd(SRD_TAB, S_TAB, 100000 * 128) + [
            f'v_mov_b32 v{vtmp}, s{S_BOUT}', f'buffer_load_dword v{vdst}, v{vtmp}, {srd(SRD_TAB)}, 0 offen']

    def gettag(self, lab, t, VT):
        return [f's_cmp_lg_u32 s{S_WAVE}, 0', f's_cbranch_scc1 {lab}',
                f's_memrealtime s[{S_TAGT}:{S_TAGT + 1}]'] + self.build_srd(SRD_DBG, S_DBG, 256) + [
                f's_lshl_b32 s{S_TW}, s{S_MB}, 2', f'v_mov_b32 v{t}, s{S_TW}', 's_waitcnt lgkmcnt(0)',
                f's_or_b32 s{S_TAG}, s{S_TAGT}, 1', f'v_mov_b32 v{VT}, s{S_TAG}', f'v_mov_b32 v{VT + 1}, 0',
                's_mov_b64 exec, 1',
                f'buffer_atomic_cmpswap v[{VT}:{VT + 1}], v{t}, {srd(SRD_DBG)}, 0 offen offset:128 sc0',
                's_mov_b64 exec, -1', f'{lab}:']

    def prologue(self):
        L = []
        if self.opt.stamps:
            L += [f's_memtime s[{S_ST}:{S_ST + 1}]', f's_memrealtime s[{S_ST + 2}:{S_ST + 3}]']
        L += ['s_cmp_ge_u32 s2, 256', 's_cbranch_scc1 L_end',
              's_load_dwordx16 s[4:19], s[0:1], 0',
              's_load_dwordx4 s[20:23], s[0:1], 64',
              's_load_dwordx2 s[24:25], s[0:1], 80',
              'v_lshrrev_b32 v1, 6, v0']
        if self.opt.cpf:
            L += [f's_getpc_b64 s[{S_MASK}:{S_MASK + 1}]', 'L_pc:',
                  f's_and_b32 s{S_T0}, s2, 0xf8', f'v_add_u32 v2, s{S_T0}, v1', 'v_and_b32 v3, 32, v0', 'v_lshl_add_u32 v2, v3, 3, v2', 'v_lshlrev_b32 v2, 7, v2',
                  f'v_min_u32 v2, L_end-L_pc, v2',
                  f'v_mov_b32 v3, s{S_MASK + 1}',
                  f'v_add_co_u32 v2, vcc, s{S_MASK}, v2', 'v_addc_co_u32 v3, vcc, 0, v3, vcc',
                  'global_load_dword v251, v[2:3], off']
        if self.opt.skew:
            L += ['s_memtime s[86:87]' if self.opt.cyc else 's_memrealtime s[86:87]', 's_mov_b32 s88, 0']
        L += ['v_and_b32 v0, 63, v0',
              f'v_readfirstlane_b32 s{S_WAVE}, v1',
              f's_and_b32 s{S_T0}, s2, 7', f's_lshr_b32 s{S_T1}, s2, 3', f's_xor_b32 s{S_T1}, s{S_T1}, {31 * self.opt.rev}',
              f's_and_b32 s{S_BOUT}, s2, 0xf8', f's_add_u32 s{S_BOUT}, s{S_BOUT}, s{S_WAVE}', f's_lshl_b32 s{S_BOUT}, s{S_BOUT}, {self.opt.etlb}',
              f's_min_u32 s{S_T2}, s{S_T0}, 1', f's_add_u32 s{S_T3}, s{S_T1}, s{S_T2}',
              f's_cmp_ge_u32 s{S_T3}, 22', 's_cbranch_scc1 L_cin',
              f's_mul_i32 s{S_T0}, s{S_T0}, 21', f's_add_u32 s{S_T0}, s{S_T0}, s{S_T3}',
              ]
        if self.opt.band == 0:
            L += [f's_mul_i32 s{S_MB}, s{S_T0}, 5042', f's_lshr_b32 s{S_MB}, s{S_MB}, 16',
                  f's_mul_i32 s{S_T1}, s{S_MB}, 13', f's_sub_u32 s{S_R}, s{S_T0}, s{S_T1}']
        else:
            assert all((d * 9363) >> 16 == d // 7 for d in range(91)) and all((d * 10923) >> 16 == d // 6 for d in range(78))
            L += [f's_sub_u32 s{S_T1}, 168, s{S_T0}', f's_cmp_lt_u32 s{S_T0}, 91', f's_cselect_b32 s{S_T0}, s{S_T0}, s{S_T1}',
                  f's_cselect_b32 s{S_T1}, 0, 1560', f's_cselect_b32 s{S_T2}, 7, 6', f's_cselect_b32 s{S_R}, 0, 7', f's_add_u32 s{S_T1}, s{S_T1}, 9363',
                  f's_mul_i32 s{S_MB}, s{S_T0}, s{S_T1}', f's_lshr_b32 s{S_MB}, s{S_MB}, 16', f's_mul_i32 s{S_T1}, s{S_MB}, s{S_T2}',
                  f's_add_u32 s{S_R}, s{S_R}, s{S_T0}', f's_sub_u32 s{S_R}, s{S_R}, s{S_T1}']
        return self.seq(L)

    def dnn(self):
        o = self.opt
        vW = [1, 2, 3, 4]
        vX = [[5, 6], [7, 8]]
        vPa, vPc = 9, 10
        WF, XA, ACC = 16, 48, 88
        W2F = WF
        KC0, KC1, KONE = 12, 14, 248
        SUMP, GT = 32, 52
        vIdxOff, vCh, vWD, vBL = 1, [2, 3], [4, 5], 11
        ST, VO = 16, 56
        T = 100
        g, i4, q = T + 16, T + 17, T + 18
        PI = T + 8

        def acc(tn, tm):
            return ACC + (tm * 4 + tn) * 4

        def small(srd_, dst):
            return [f's_mov_b32 m0, {dst}', 's_mov_b64 exec, 0xffff',
                    I(f'buffer_load_dwordx4 v{vBL}, {srd(srd_)}, s{S_N0} offen lds', tag='BIAS'), 's_mov_b64 exec, -1']
        L = [f's_lshl_b32 s{S_N0}, s{S_R}, 8', f's_mul_i32 s{S_T3}, s{S_MB}, 320',
             f'v_lshrrev_b32 v{g}, 4, v0', f'v_lshlrev_b32 v{vBL}, 4, v0', f's_and_b32 s{S_CW}, s{S_WAVE}, 3',
             f's_cmp_ge_u32 s{S_WAVE}, 4', 's_cbranch_scc1 L_ld']
        c0 = self.seq(L)
        PI = T

        RG, CG = S_T0, S_T1
        L = [f's_mul_i32 s{S_T2}, s{S_WAVE}, 13', f'v_min_u32 v{q}, 12, v0', f'v_add_u32 v{q}, s{S_T2}, v{q}',
             f'v_lshrrev_b32 v{i4}, 1, v{q}', f'v_mul_u32_u24 v{i4}, 96, v{i4}', f'v_lshl_add_u32 v{q}, v{q}, 2, v{i4}',
             f's_mul_i32 s{S_C0}, s{S_R}, 25', f's_min_u32 s{S_C0}, s{S_C0}, 294',
             f's_add_u32 s{S_C0}, s{S_C0}, s{S_T3}', f's_mul_i32 s{S_C0}, s{S_C0}, 104',
             f's_lshl_b32 s{S_T2}, s{S_MB}, 2', f's_add_u32 s{S_T2}, s{S_T2}, s{S_WAVE}', f's_add_u32 s{S_T2}, s{S_T2}, {o.ew0 * 32}',
             f's_mul_i32 s{S_T2}, s{S_T2}, 3328', f's_add_u32 s{S_T2}, s{S_T2}, s{S_N0}', f's_mov_b32 s{S_TW}, {52 * 3328}',
             f'v_lshrrev_b32 v{T + 12}, 1, v0', f'v_mul_lo_u32 v{T + 12}, s{S_TW}, v{T + 12}', f'v_and_b32 v{i4}, 1, v0', f'v_lshl_add_u32 v{T + 12}, v{i4}, 7, v{T + 12}',
             f'v_add_u32 v{T + 12}, s{S_T2}, v{T + 12}', 's_waitcnt lgkmcnt(0)']
        ct = [int(x) for x in o.ct + o.ct2]
        L += self.build_srd(SRD_IDX, S_IDX, 4096 * 104)
        if ct:
            L += [f'buffer_load_dwordx4 {vr(PI, 4)}, v{q}, {srd(SRD_IDX)}, s{S_C0} offen']
        if ct and max(ct) > 3:
            L += [f'buffer_load_dwordx4 {vr(PI + 4, 4)}, v{q}, {srd(SRD_IDX)}, s{S_C0} offen offset:16']
        L += self.tlb1(T + 14, T + 15)
        if o.ptl:
            L += [f'v_lshlrev_b32 v{T + 14}, {o.ptl}, v0', f's_lshl_b32 s{S_T2}, s{S_WAVE}, {o.ptl - 2}', f's_mov_b64 exec, {(1 << min(64, (12800000 >> o.ptl) + 1)) - 1}',
                  f'buffer_load_dword v{T + 15}, v{T + 14}, {srd(SRD_TAB)}, s{S_T2} offen', 's_mov_b64 exec, -1']
        touch = [x for k in ct for x in (f'v_lshlrev_b32 v{PI + k}, 7, v{PI + k}', f'buffer_load_dword v{acc(0, 7) + k}, v{PI + k}, {srd(SRD_TAB)}, 0 offen')]
        touch, touch2 = touch[:2 * len(o.ct)], touch[2 * len(o.ct):]
        L += self.build_srd(SRD_B1, S_B1, 3328) + small(SRD_B1, L_BIAS)
        if o.ew:
            L += self.build_srd(SRD_W, S_W1, 1664 * 3328)
            ewl = [f's_mov_b64 exec, {(1 << (2 * o.ew)) - 1}', f'buffer_load_dword v{acc(0, 7) + 9}, v{T + 12}, {srd(SRD_W)}, 0 offen', 's_mov_b64 exec, -1']
            if o.ewat == 0:
                L += ewl
            elif o.ewat == 1:
                touch = touch + ewl
            else:
                touch2 = touch2 + ewl
        chead = self.seq(L + (['s_barrier'] if o.dbar0 else []) + ['s_branch L_cmp'])
        self.ldat = len(self.P.static)
        L = ['L_cmp:'] + self.stamp0()
        L += [f's_and_b32 s{RG}, s{S_WAVE}, 1', f's_lshr_b32 s{CG}, s{S_WAVE}, 1',
              f'v_bfe_u32 v{i4}, v0, 2, 2', f'v_lshl_add_u32 v{q}, v{g}, 3, v{i4}', f'v_lshlrev_b32 v{q}, 8, v{q}',
              f'v_bfe_u32 v{i4}, v0, 2, 3', f's_lshl_b32 s{S_T2}, s{CG}, 2', f'v_xor_b32 v{i4}, s{S_T2}, v{i4}',
              f'v_lshl_add_u32 v{q}, v{i4}, 5, v{q}', f'v_and_b32 v{i4}, 3, v0', f'v_lshl_add_u32 v{q}, v{i4}, 3, v{q}',
              f'v_add_u32 v{vW[0]}, {WR}, v{q}']
        L += [f'v_xor_b32 v{vW[tn]}, {32 * tn}, v{vW[0]}' for tn in range(1, 4)]
        L += [f's_lshl_b32 s{S_T2}, s{CG}, 7', f's_add_u32 s{S_T2}, s{S_T2}, {L_BIAS}', f'v_lshlrev_b32 v{q}, 3, v{g}', f'v_add_u32 v{vPa}, s{S_T2}, v{q}',
              f'v_and_b32 v{q}, 15, v0', f'v_lshlrev_b32 v{q}, 7, v{q}',
              f'v_bfe_u32 v{i4}, v0, 1, 3', f'v_xor_b32 v{i4}, v{i4}, v{g}', f'v_lshl_add_u32 v{q}, v{i4}, 4, v{q}',
              f's_mul_i32 s{S_T2}, s{RG}, 20480', f'v_add_u32 v{vX[0][0]}, s{S_T2}, v{q}', f'v_xor_b32 v{vX[1][0]}, 64, v{vX[0][0]}',
              f'v_add_u32 v{vX[0][1]}, {2 * XSLOT}, v{vX[0][0]}', f'v_add_u32 v{vX[1][1]}, {2 * XSLOT}, v{vX[1][0]}',
              f's_mul_i32 s{S_T2}, s{S_WAVE}, 640', f's_add_u32 s{S_T2}, s{S_T2}, {RB}',
              f'v_and_b32 v{q}, 15, v0', f'v_lshlrev_b32 v{q}, 2, v{q}', f'v_add_u32 v{q}, s{S_T2}, v{q}',
              f'v_lshrrev_b32 v{i4}, 5, v0', f'v_lshl_add_u32 v{q}, v{i4}, 6, v{q}', f'v_bfe_u32 v{i4}, v0, 4, 1', f'v_lshl_add_u32 v{vPc}, v{i4}, 7, v{q}',
              f's_mov_b32 s{S_LOOP}, 0',
              f'v_mov_b32 v{KC0}, {f32hex(GELU_C0)}', f'v_mov_b32 v{KC0 + 1}, {f32hex(GELU_C0)}',
              f'v_mov_b32 v{KC1}, {f32hex(GELU_C1)}', f'v_mov_b32 v{KC1 + 1}, {f32hex(GELU_C1)}']

        def pkreads(off, dst):
            return [f'ds_read_b64 {vr(dst + 4 * tn + 2, 2)}, v{vPa} offset:{off + 32 * tn}' for tn in range(4)]

        def unp(dst):
            c = []
            for tn in range(4):
                r = dst + 4 * tn
                c += [f'v_lshlrev_b32 v{r}, 16, v{r + 2}', f'v_and_b32 v{r + 1}, 0xffff0000, v{r + 2}',
                      f'v_lshlrev_b32 v{r + 2}, 16, v{r + 3}', f'v_and_b32 v{r + 3}, 0xffff0000, v{r + 3}']
            return c
        L += touch + self.stamp(6)
        CT_, CW_, CD_ = 248, 11, 251
        if o.tch == 2:
            L += [f's_mul_i32 s{S_T2}, s{S_WAVE}, 13', f's_add_u32 s{S_T2}, s{S_T2}, s{S_R}', f's_min_u32 s{S_T2}, s{S_T2}, 39', f's_lshl_b32 s{S_T2}, s{S_T2}, 3',
                  f's_add_u32 s{S_T2}, s{S_T2}, s{S_T3}', f's_mul_i32 s{S_T2}, s{S_T2}, 104',
                  f'v_lshrrev_b32 v{q}, 3, v0', f'v_mul_u32_u24 v{q}, 72, v{q}', f'v_lshl_add_u32 v{q}, v0, 2, v{q}']
            L += [f'buffer_load_dword v{CT_ + r}, v{q}, {srd(SRD_IDX)}, s{S_T2} offen offset:{4 * min(o.tf0 + 8 * r, 18)}' for r in range(3)]
            L += [f'v_add_u32 v{CW_}, {(o.tw0 - o.ew0) * 32 * 3328}, v{T + 12}', f's_mov_b32 s{S_RC}, 0']
            touch2 = touch2 + [f'v_lshlrev_b32 v{CT_ + r}, 7, v{CT_ + r}' for r in range(3)] + [Touch(f'v{CD_}')]
        if o.st:
            SR = [36, 40, 52, 56, 60, 64, 96]
            L += [f's_mul_i32 s{S_T2}, s{S_WAVE}, 13', f's_lshr_b32 s{S_T2}, s{S_T2}, 1', f's_mul_i32 s{S_T2}, s{S_T2}, 104', f's_add_u32 s{S_T2}, s{S_T2}, s{S_C0}', f's_add_u32 s{S_T2}, s{S_T2}, {4 * o.sf0}']
            for r in range(7):
                L += [f's_buffer_load_dwordx4 s[{SR[r]}:{SR[r] + 3}], {srd(SRD_IDX)}, s{S_T2}', f's_add_u32 s{S_T2}, s{S_T2}, 104']
            L += ['s_waitcnt lgkmcnt(0)']
            for f_ in range(o.st):
                for r in range(7):
                    L += [f's_lshl_b32 s{SR[r] + f_}, s{SR[r] + f_}, 7', f's_buffer_load_dword s{SR[r] + f_}, {srd(SRD_TAB)}, s{SR[r] + f_}']
        BI = [WaitTag(vm_tags=['BIAS'])] + pkreads(0, acc(0, 9)) + unp(acc(0, 9)) + [f'v_mov_b64 {vr(acc(0, 8) + r, 2)}, {vr(acc(0, 9) + r, 2)}' for r in range(0, 16, 2)]

        def rX(p, k):
            xs = p % 3
            return f'ds_read_b128 {vr(XA + 4 * (k % 10), 4)}, v{vX[k % 2][xs // 2]} offset:{(xs % 2) * XSLOT + (k // 2) * 2048}'

        def rW(tn):
            return [f'ds_read_b64_tr_b16 {vr(WF + 16 * par + 4 * tn + 2 * rd, 2)}, v{vW[tn]} offset:{par * WSLOT + rd * 1024}' for par in range(2) for rd in range(2)]
        tog = lambda tn: f'v_xor_b32 v{vW[tn]}, {2 * WSLOT}, v{vW[tn]}'

        def dec(gi):
            G, tn, a_, par = gi // 16, (gi // 4) % 4, (gi // 2) % 2, gi % 2
            if o.bou:
                par ^= a_ ^ (G == 4)
                a_ ^= tn & 1
            return G, tn, a_, par
        lastx = {4 * dec(gi)[0] + 2 * dec(gi)[2] + dec(gi)[3]: gi for gi in range(80)}

        def mf(gi, first=False):
            G, tn, a_, par = dec(gi)
            d = acc(tn, 2 * G + a_)
            if first and gi % 2 == 0 and G < 4:
                return f'v_mfma_f32_16x16x32_bf16 {vr(d, 4)}, {vr(WF + 16 * par + 4 * tn, 4)}, {vr(XA + 4 * ((4 * G + 2 * a_ + par) % 10), 4)}, {vr(acc(tn, 9), 4)}'
            return f'v_mfma_f32_16x16x32_bf16 {vr(d, 4)}, {vr(WF + 16 * par + 4 * tn, 4)}, {vr(XA + 4 * ((4 * G + 2 * a_ + par) % 10), 4)}, {vr(d, 4)}'
        SH = [11, 248, 249, 250]
        nsh = o.nsh

        def shadow():
            c = []
            for b0 in range(0, nsh, 4):
                E = [(ACC + e, SH[e - b0]) for e in range(b0, min(b0 + 4, nsh))]
                for op in ('v_mul_f32 T, X, X', f'v_fma_f32 T, T, v{KC1}, v{KC0}', 'v_mul_f32 T, T, X', 'v_exp_f32 T, T', 'v_add_f32 T, 1.0, T', 'v_rcp_f32 T, T', 'v_mul_f32 X, X, T'):
                    c += [(op.replace('T', f'v{t}').replace('X', f'v{x}'), 8 if ('exp' in op or 'rcp' in op) else 4) for x, t in E]
            return c

        def U_(t):
            i_ = I(t)
            i_.wr = []
            return i_

        def cpair(p, kind, loopend=False):
            S = []
            ev = {}
            if kind == 'first':
                g_ = o.sbg + 1
                for k in range(2 * o.sa, 10):
                    ev[g_] = rX(p, k); g_ += 1
            else:
                for i_, x in enumerate(rW(3)[2:]):
                    ev[i_] = x
                for i_, k in enumerate(range(6, 10)):
                    ev[2 + i_] = rX(p, k)
            for k in range(10):
                g_ = lastx[k]
                while g_ in ev or (kind == 'first' and g_ <= o.sbg):
                    g_ += 1
                ev[g_] = rX(p, k + 10)
            BG = 48 + o.bgap if o.bou else 46 + o.bgap
            if kind != 'last':
                ev[BG], ev[BG + 1] = rX(p + 1, 0), rX(p + 1, 1)
                for k in range(2, 6):
                    ev[lastx[10 + k]] = rX(p + 1, k)
                for tn in range(4):
                    for i_, x in enumerate(rW(tn)):
                        if 66 + 4 * tn + i_ < 80:
                            ev[66 + 4 * tn + i_] = x
            sh_ = shadow() if kind == 'last' else []
            for gi in range(80):
                S.append(mf(gi, kind == 'first'))
                t = 4
                if o.dwalk and kind != 'last' and gi in (24, 40, 64, 7):
                    S += [f'L_dw{self.ndw}:', f's_cbranch_execz L_dw{self.ndw + 1}']
                    self.ndw += 1
                if kind == 'first' and gi == o.sbg:
                    S += (self.stamp(20) if o.itst == 2 else []) + ['s_barrier'] + (self.stamp(21) if o.itst == 2 else [])
                if kind != 'last' and gi == BG - 1:
                    st_ = lambda k: ([f's_cmp_lg_u32 s{S_LOOP}, 0', f's_cbranch_scc1 L_ns{k}'] + self.stamp(k) + [f'L_ns{k}:']) if (o.itst == 2 and p < 3) else []
                    S += ['s_waitcnt lgkmcnt(0)'] + st_(22 + 2 * p) + ['s_barrier'] + st_(23 + 2 * p)
                if gi in ev:
                    S.append(ev[gi]); t += 8
                if kind != 'last' and 8 <= gi < 12:
                    S.append(tog(gi - 8))
                if o.tch == 2 and kind == 'mid' and gi == o.tgap:
                    if p == 1:
                        S += [f's_bitcmp1_b32 {o.tmask:#x}, s{S_LOOP}', 's_cbranch_scc1 L_ctx', 'L_ctxr:']
                    if p == 2:
                        S += ['s_mov_b64 exec, 0xff', U_(f'buffer_load_dword v{CD_}, v{CW_}, {srd(SRD_W)}, s{S_RC} offen'), 's_mov_b64 exec, -1', f's_add_u32 s{S_RC}, s{S_RC}, {208 * 3328}']
                if o.tch == 2 and kind == 'first' and gi == o.tgap:
                    S += ['s_mov_b64 exec, 0xff', U_(f'buffer_load_dword v{CD_}, v{CW_}, {srd(SRD_W)}, s{S_RC} offen'), 's_mov_b64 exec, -1', f's_add_u32 s{S_RC}, s{S_RC}, {208 * 3328}']
                if gi % 2 == 0 and gi + 2 < 80:
                    n_ = gi + 2
                    G, tn, a_ = n_ // 16, (n_ // 4) % 4, (n_ // 2) % 2
                    if tn == 0:
                        S.append(Touch(vr(XA + 4 * ((4 * G + 2 * a_) % 10), 8)))
                    if G == 0 and a_ == 0:
                        S.append(Touch(vr(WF + 16 + 4 * tn, 4)))
                if gi == 78 and kind != 'last':
                    S.append(Touch(vr(WF + 16, 4)))
                if loopend and gi == 48:
                    S += [f's_add_u32 s{S_LOOP}, s{S_LOOP}, 1', f's_cmp_lt_u32 s{S_LOOP}, 8']
                t = max(t, 8)
                while sh_ and gi >= o.sh0 and t + sh_[0][1] <= 16:
                    x, c_ = sh_.pop(0)
                    S.append(x); t += c_
            S += [x for x, _ in sh_]
            if kind == 'last':
                print('shadow left', len(sh_))
            return S
        self.ndw = 0
        if o.dwalk:
            L += ['s_mov_b64 exec, 0'] + [x for q_ in range(3) for x in (f's_cmp_eq_u32 s{S_WAVE}, {q_}', f's_cbranch_scc1 L_dw{4 * q_}')] + ['s_branch L_dw12', 'L_dw16:', 's_mov_b64 exec, -1']
        L += self.stamp(1) + ['s_barrier'] + [x for tn in range(4) for x in rW(tn)] + BI + touch2 + ['s_waitcnt lgkmcnt(0)', f's_setprio {o.cprio}', 's_barrier'] + self.stamp(2)
        L += [rX(0, k) for k in range(2 * o.sa)] + cpair(0, 'first')
        cpre = self.seq(L)
        body = self.seq(['L_dnn_loop0:'])
        for p in range(1, 4):
            S = cpair(p, 'mid', p == 3)
            if p == 3:
                if o.stamps and o.itst == 1:
                    i_ = S.index('s_barrier')
                    S = S[:i_] + [f's_memtime s[{S_ST}:{S_ST + 1}]', f's_memrealtime s[{S_ST + 2}:{S_ST + 3}]', f's_or_b32 m0, s{S_LOOP}, 16', 's_waitcnt lgkmcnt(0)',
                                  f'v_writelane_b32 v252, s{S_ST}, m0', f'v_writelane_b32 v253, s{S_ST + 2}, m0', f's_cmp_lt_u32 s{S_LOOP}, 8'] + S[i_:]
                S += ['s_cbranch_scc1 L_dnn_loop0']
            body += self.seq(S)
        tc = c0 + chead + cpre + body * 2 + self.seq(['L_tail:'])
        tc += self.seq((['s_waitcnt vmcnt(0)'] if o.tch == 2 else []) + cpair(25, 'last') + pkreads(256, W2F) + [f'v_mov_b32 v{KONE}, 1.0', f'v_mov_b32 v{KONE + 1}, 1.0'])
        if o.burn:
            bl = [f's_movk_i32 s{S_LOOP}, {o.burn}', 'L_burn:'] + [f'v_mfma_f32_16x16x32_bf16 {vr(XA + 32 + 4 * (k % 2), 4)}, {vr(WF + 16 + 4 * (k % 4), 4)}, {vr(XA + 4 * (k // 4), 4)}, 0' for k in range(32)]
            tc += self.seq(bl + [f's_sub_u32 s{S_LOOP}, s{S_LOOP}, 1', f's_cmp_lg_u32 s{S_LOOP}, 0', 's_cbranch_scc1 L_burn'])
        tc += self.seq(['L_epi:'] + self.stamp(3))

        p2 = lambda r: vr(r, 2)
        seen = set()

        def gelu(groups):
            L = []
            for k, vals in enumerate(groups):
                tb = GT + (k % 2) * 16
                V_ = [(x, w, s_, tb + 4 * i_, tb + 4 * i_ + 2) for i_, (x, w, s_) in enumerate(vals)]
                for (x, w, s_, t, u) in V_:
                    L.append(f'v_pk_mul_f32 {p2(t)}, {p2(x)}, {p2(x)}')
                for (x, w, s_, t, u) in V_:
                    L.append(f'v_pk_fma_f32 {p2(t)}, {p2(t)}, {p2(KC1)}, {p2(KC0)}')
                for (x, w, s_, t, u) in V_:
                    L.append(f'v_pk_mul_f32 {p2(t)}, {p2(t)}, {p2(x)}')
                for (x, w, s_, t, u) in V_:
                    L += [f'v_exp_f32 v{t}, v{t}', f'v_exp_f32 v{t + 1}, v{t + 1}']
                for (x, w, s_, t, u) in V_:
                    L.append(f'v_pk_mul_f32 {p2(u)}, {p2(x)}, {p2(w)}')
                for (x, w, s_, t, u) in V_:
                    L.append(f'v_pk_add_f32 {p2(t)}, {p2(t)}, {p2(KONE)}')
                for (x, w, s_, t, u) in V_:
                    L += [f'v_rcp_f32 v{t}, v{t}', f'v_rcp_f32 v{t + 1}, v{t + 1}']
                for (x, w, s_, t, u) in V_:
                    if s_ in seen:
                        L.append(f'v_pk_fma_f32 {p2(s_)}, {p2(t)}, {p2(u)}, {p2(s_)}')
                    else:
                        L.append(f'v_pk_mul_f32 {p2(s_)}, {p2(t)}, {p2(u)}')
                        seen.add(s_)
            return L
        el = lambda tn, tm, d: (acc(tn, tm) + 2 * d, W2F + 4 * tn + 2 * d, SUMP + 2 * tm)
        allel = [el(tn, 2 * tp + a_, d) for tp in range(5) for tn in range(4) for d in range(2) for a_ in range(2)]
        rest = [e for e in allel if e[0] >= ACC + nsh]
        if o.rshare:
            assert nsh % 8 == 0
            KS = 84
            quads = [[el(2 * h + t_, tm, d) for t_ in range(2) for d in range(2)] for tm in range(10) for h in range(2)]
            quads = [q_ for q_ in quads if q_[0][0] >= ACC + nsh]
            order = sorted(range(len(quads)), key=lambda i_: (i_ // 4, i_ % 2, i_))
            quads = [quads[i_] for i_ in order]
            L = [f'v_mov_b32 v{KS}, {f32hex(-24.0)}', f'v_mov_b32 v{KS + 1}, {f32hex(-24.0)}', f'v_mov_b32 v{KS + 2}, {f32hex(2.0 ** 24)}', f'v_mov_b32 v{KS + 3}, {f32hex(2.0 ** 24)}']
            for k in range(0, len(quads), 2):
                Qs = quads[k:k + 2]
                V_ = [(x, w, GT + 16 * j_ + 4 * i_, GT + 16 * j_ + 4 * i_ + 2) for j_, q_ in enumerate(Qs) for i_, (x, w, s_) in enumerate(q_)]
                L += [f'v_pk_mul_f32 {p2(t)}, {p2(x)}, {p2(x)}' for (x, w, t, u) in V_]
                L += [f'v_pk_fma_f32 {p2(t)}, {p2(t)}, {p2(KC1)}, {p2(KC0)}' for (x, w, t, u) in V_]
                L += [f'v_pk_fma_f32 {p2(t)}, {p2(t)}, {p2(x)}, {p2(KS)}' for (x, w, t, u) in V_]
                L += [f'v_exp_f32 v{t + e_}, v{t + e_} clamp' for (x, w, t, u) in V_ for e_ in range(2)]
                if k == 0:
                    L += unp(W2F)
                L += [f'v_pk_mul_f32 {p2(u)}, {p2(x)}, {p2(w)}' for (x, w, t, u) in V_]
                L += [f'v_pk_fma_f32 {p2(t)}, {p2(t)}, {p2(KS + 2)}, {p2(KONE)}' for (x, w, t, u) in V_]
                for prs in ([(0, 1), (2, 3)], [(0, 2)]):
                    M_ = [(V_[4 * j_ + a_], V_[4 * j_ + b_]) for j_ in range(len(Qs)) for a_, b_ in prs]
                    L += [f'v_pk_mul_f32 {p2(A_[3])}, {p2(A_[3])}, {p2(B_[2])}' for A_, B_ in M_]
                    L += [f'v_pk_fma_f32 {p2(A_[3])}, {p2(B_[3])}, {p2(A_[2])}, {p2(A_[3])}' for A_, B_ in M_]
                    L += [f'v_pk_mul_f32 {p2(A_[2])}, {p2(A_[2])}, {p2(B_[2])}' for A_, B_ in M_]
                L += [f'v_rcp_f32 v{V_[4 * j_][2] + e_}, v{V_[4 * j_][2] + e_}' for j_ in range(len(Qs)) for e_ in range(2)]
                for j_, q_ in enumerate(Qs):
                    s_, t, u = q_[0][2], V_[4 * j_][2], V_[4 * j_][3]
                    L.append(f'v_pk_fma_f32 {p2(s_)}, {p2(t)}, {p2(u)}, {p2(s_)}' if s_ in seen else f'v_pk_mul_f32 {p2(s_)}, {p2(t)}, {p2(u)}')
                    seen.add(s_)
        else:
            L = gelu([rest[i:i + 4] for i in range(0, len(rest), 4)])
            L = L[:20] + unp(W2F) + L[20:]
        for (x, w, s_) in allel:
            if x < ACC + nsh:
                L.append(f'v_pk_fma_f32 {p2(s_)}, {p2(x)}, {p2(w)}, {p2(s_)}' if s_ in seen else f'v_pk_mul_f32 {p2(s_)}, {p2(x)}, {p2(w)}')
                seen.add(s_)
        sm = lambda tm: SUMP + 2 * tm
        L += [f'v_add_f32 v{sm(tm)}, v{sm(tm)}, v{sm(tm) + 1}' for tm in range(10)]
        L += [f'v_permlane32_swap_b32 v{sm(tm)}, v{sm(tm + 1)}' for tm in range(0, 10, 2)]
        L += [f'v_add_f32 v{sm(tm)}, v{sm(tm)}, v{sm(tm + 1)}' for tm in (8, 0, 2, 4, 6)]
        L += [f'v_mov_b32 v{sm(9)}, v{sm(8)}', f'v_permlane16_swap_b32 v{sm(0)}, v{sm(2)}', f'v_permlane16_swap_b32 v{sm(4)}, v{sm(6)}',
              f'v_permlane16_swap_b32 v{sm(8)}, v{sm(9)}',
              f'v_add_f32 v{sm(0)}, v{sm(0)}, v{sm(2)}', f'v_add_f32 v{sm(4)}, v{sm(4)}, v{sm(6)}', f'v_add_f32 v{sm(8)}, v{sm(8)}, v{sm(9)}',
              f'ds_write_b32 v{vPc}, v{sm(0)}', f'ds_write_b32 v{vPc}, v{sm(4)} offset:256',
              's_mov_b32 exec_lo, 0xffff', 's_mov_b32 exec_hi, 0xffff', f'ds_write_b32 v{vPc}, v{sm(8)} offset:512', 's_mov_b64 exec, -1']
        L += ['s_waitcnt lgkmcnt(0)'] + self.stamp(4) + self.stamp_flush() + ['s_barrier', 's_endpgm']
        tc += self.seq(L)

        if o.tch == 2:
            self.seq(['L_ctx:', U_(f'buffer_load_dword v{CD_}, v{CT_}, {srd(SRD_TAB)}, 0 offen'), f'v_mov_b32 v{CT_}, v{CT_ + 1}', f'v_mov_b32 v{CT_ + 1}, v{CT_ + 2}', 's_branch L_ctxr'])
        def wstage(slot):
            c = []
            for u in range(2):
                c += [f's_add_u32 m0, s{S_WMB}, {WR + slot * WSLOT + u * 1024}',
                      I(f'buffer_load_dwordx4 v{vWD[u]}, {srd(SRD_W)}, s{S_WSOFF} offen lds', tag='W')]
            return c + [f's_add_u32 s{S_WSOFF}, s{S_WSOFF}, {32 * 3328}']

        Q, TM, BP = 16, 56, [12, 13]
        TI, vWT = 70, 84
        SP = [36, 37, 38, 39, 40, 41, 42, 43, 48, 49]
        SI = [94, 95, 96, 97, 98, 99, 100, 101, 82, 83]

        def xaddr(f, pcs):
            c = []
            for odd in range(2):
                p_ = f + 26 * odd
                for pc in pcs:
                    c.append(f'v_add_u32_dpp v{TM + pc}, v{Q + 4 * pc + p_ % 4}, v{vCh[0]} row_newbcast:{p_ >> 2} row_mask:0xf bank_mask:{(3, 12)[odd]:#x}')
            return c

        def xld(pc, slot, tag='X'):
            return [f's_add_u32 m0, s{S_XM0}, {slot * XSLOT + pc * 2048}',
                    I(f'buffer_load_dwordx4 v{TM + pc}, {srd(SRD_TAB)}, 0 offen lds', tag=tag)]
        idxl = [f'buffer_load_dwordx4 {vr(Q + 4 * pc, 4)}, v{BP[0]}, {srd(SRD_IDX)}, s{SI[pc // 2]} offen offset:{(pc % 2) * 1664}' for pc in range(10)]
        LO, HI = range(5), range(5, 10)
        NR = (22 + o.tf - 1) // o.tf
        lw = S_CW
        self.mk0 = len(self.P.static)
        L = ['L_ld:', f's_lshr_b32 s{S_T0}, s{lw}, 1', f's_mul_i32 s{S_T0}, s{S_T0}, 20', f's_and_b32 s{S_T1}, s{lw}, 1', f's_add_u32 s{S_T0}, s{S_T0}, s{S_T1}',
             f's_lshl_b32 s{S_XM0}, s{S_T0}, 10', f's_mul_i32 s{S_C0}, s{S_T3}, 104', f's_mul_i32 s{S_T0}, s{S_T0}, 832', f's_add_u32 s{SI[0]}, s{S_C0}, s{S_T0}',
             f'v_mul_u32_u24 v{q}, 48, v{g}', f'v_sub_u32 v{BP[0]}, v{vBL}, v{q}']
        L += [f's_add_u32 s{SI[k]}, s{SI[0]}, {k * 2 * 1664}' for k in range(1, 5)]
        L += [f's_and_b32 s{S_T2}, s{lw}, 1', f's_lshl_b32 s{S_T2}, s{S_T2}, 3',
              f'v_lshlrev_b32 v{i4}, 1, v{g}', f'v_or_b32 v{i4}, s{S_T2}, v{i4}', f'v_xor_b32 v{i4}, v{i4}, v0', f'v_and_b32 v{i4}, 15, v{i4}',
              f'v_mul_u32_u24 v{vWD[0]}, 3328, v{g}', f'v_lshl_add_u32 v{vWD[0]}, v{i4}, 4, v{vWD[0]}', f'v_add_u32 v{vWD[1]}, {4 * 3328}, v{vWD[0]}',
              f's_mul_i32 s{S_WSOFF}, s{lw}, {8 * 3328}', f's_add_u32 s{S_WSOFF}, s{S_WSOFF}, s{S_N0}', f's_lshl_b32 s{S_WMB}, s{lw}, 11',
              's_waitcnt lgkmcnt(0)']
        L += self.build_srd(SRD_IDX, S_IDX, 4096 * 104) + (['s_barrier'] if o.dbar0 == 1 else []) + idxl[:o.i0] + self.tlb1(T + 14, T + 15) + self.build_srd(SRD_W, S_W1, 1664 * 3328)
        for sl in range(o.w0):
            L += wstage(sl)
        L += self.stamp0() + (['s_barrier'] if o.dbar0 >= 2 else []) + ([Touch(vr(Q, 4))] if o.dbar0 == 3 else []) + idxl[o.i0:]
        for sl in range(o.w0, 2):
            L += wstage(sl)
        L += [f's_lshl_b32 s{S_T2}, s{S_T1}, 6',
              f'v_and_b32 v{q}, 7, v0', f'v_xor_b32 v{q}, v{q}, v{g}', f'v_lshlrev_b32 v{q}, 4, v{q}', f'v_xor_b32 v{vCh[0]}, s{S_T2}, v{q}', f'v_xor_b32 v{vCh[1]}, 64, v{vCh[0]}',
              f's_mov_b32 s{S_LOOP}, 0',
              f's_mul_i32 s{S_T2}, s{lw}, 13', f's_add_u32 s{S_T2}, s{S_T2}, s{S_R}', f's_min_u32 s{S_T2}, s{S_T2}, 39', f's_lshl_b32 s{S_T2}, s{S_T2}, 3',
              f's_add_u32 s{S_T2}, s{S_T2}, s{S_T3}', f's_mul_i32 s{S_GRP}, s{S_T2}, 104',
              f'v_lshrrev_b32 v{q}, {o.tf.bit_length() - 1}, v0', f'v_min_u32 v{q}, 7, v{q}', f'v_mul_u32_u24 v{q}, 104, v{q}',
              f'v_and_b32 v{i4}, {o.tf - 1}, v0', f'v_lshl_add_u32 v7, v{i4}, 2, v{q}',
              f's_lshl_b32 s{S_T2}, s{S_MB}, 2', f's_add_u32 s{S_T2}, s{S_T2}, s{lw}', f's_add_u32 s{S_T2}, s{S_T2}, {o.tw0 * 32}', f's_mul_i32 s{S_RC}, s{S_T2}, 3328',
              f's_add_u32 s{S_RC}, s{S_RC}, s{S_N0}', f's_mov_b32 s{S_T2}, {52 * 3328}',
              f'v_lshrrev_b32 v{q}, 1, v0', f'v_mul_lo_u32 v{q}, s{S_T2}, v{q}', f'v_and_b32 v{i4}, 1, v0', f'v_lshl_add_u32 v{vWT}, v{i4}, 7, v{q}']
        L += self.build_srd(SRD_W2, S_W2, 3328)
        L += [f's_mul_i32 s{S_T2}, s{lw}, {o.lpf * 128}', f's_add_u32 s{S_T2}, s{S_T2}, L_tail-L_pc', f'v_lshlrev_b32 v8, 7, v0', f'v_add_u32 v8, s{S_T2}, v8',
              f'v_mov_b32 v9, s{S_MASK + 1}', f'v_add_co_u32 v8, vcc, s{S_MASK}, v8', 'v_addc_co_u32 v9, vcc, 0, v9, vcc']
        sh = lambda pc, c_: f'v_lshlrev_b32 v{Q + 4 * pc + c_}, 7, v{Q + 4 * pc + c_}'
        for pc in range(10):
            L += [sh(pc, 0), sh(pc, 2), sh(pc, 1), sh(pc, 3)] + xaddr(0, [pc]) + xld(pc, 0, 'X0a' if pc < o.sa else 'X0')
            if pc == 0:
                L += self.stamp(6) + self.probe('i0')
            if pc == o.bwat:
                L += [WaitTag(vm_tags=['W']), 's_barrier']
        L += self.stamp(7) + self.probe('x0i')
        x1 = [x for pc in range(10) for x in xaddr(1, [pc]) + xld(pc, 1)]
        L += x1[:4 * o.x1n] + [WaitTag(vm_tags=['X0a'])] + self.stamp(1) + ['s_barrier'] + self.probe('s0') + x1[4 * o.x1n:4 * o.x1m]
        L += [WaitTag(vm_tags=['X0']), 's_barrier'] + x1[4 * o.x1m:] + wstage(2) + wstage(3) + xaddr(2, range(10))
        x2 = [x for pc in range(10) for x in xld(pc, 2)]
        NR = (26 - o.tf0 + o.tf - 1) // o.tf
        tex = (1 << (8 * o.tf)) - 1
        texec = [f's_mov_b32 exec_lo, {tex & 0xffffffff:#x}', f's_mov_b32 exec_hi, {tex >> 32:#x}']
        if o.tch == 1:
            L += [f'buffer_load_dword v{TI + r}, v7, {srd(SRD_IDX)}, s{S_GRP} offen offset:{4 * min(o.tf0 + o.tf * r, 26 - o.tf)}' for r in range(NR)]

        def xtouch():
            t_ = [f'v_lshlrev_b32 v{T + 1}, 7, v{TI}'] + texec + [f'buffer_load_dword v{T + 2}, v{T + 1}, {srd(SRD_TAB)}, 0 offen', 's_mov_b64 exec, -1']
            return t_ + [f'v_mov_b32 v{TI + r}, v{TI + r + 1}' for r in range(NR - 1)] + [f'v_mov_b32 v{TI + NR - 1}, 0xffffff']

        def wtouch():
            return ['s_mov_b64 exec, 0x3ff', f'buffer_load_dword v{T + 3}, v{vWT}, {srd(SRD_W)}, s{S_RC} offen', 's_mov_b64 exec, -1', f's_add_u32 s{S_RC}, s{S_RC}, {260 * 3328}']
        L += x2[:2 * o.x2n] + [WaitTag(vm_tags=['W']), 's_barrier'] + self.probe('bar0') + x2[2 * o.x2n:] + xaddr(3, range(10))
        lpre = self.seq(L + [f's_setprio {o.lprio}', 's_branch L_ld_in'])
        del self.P.static[self.mk0:]
        self.P.static[self.ldat:self.ldat] = lpre
        self.mk0 = len(self.P.static)

        def lpair(p):
            S = ['s_barrier'] + (['L_ld_in:'] if p == 0 else []) + wstage(2 * (p % 2)) + wstage(2 * (p % 2) + 1)
            f2 = p + 4
            if p == 11:
                S += [f's_cmp_eq_u32 s{S_LOOP}, 1', 's_cbranch_scc1 L_ld_tail0']
            for pc in range(10):
                x = xld(pc, p % 3)
                S += [x[0]] + (xaddr(f2, [pc - 1])[:1] if pc else []) + [x[1]] + (xaddr(f2, [pc - 1])[1:] if pc else [])
            S += xaddr(f2, [9])
            if p >= 10:
                S += [f'v_mov_b32_dpp v{Q + 4 * pc + c_}, v{Q + 4 * pc + c_} row_shl:3 row_mask:0xf bank_mask:0xf' for pc in range(10) for c_ in ((0, 2) if p == 10 else (1, 3))]
            if o.tch == 1 and p % o.tf == o.toff:
                S += xtouch()
            if o.tch == 1 and p % 4 == o.twoff:
                S += wtouch()
            if p == 11:
                S += [f's_add_u32 s{S_LOOP}, s{S_LOOP}, 1', f's_cmp_lt_u32 s{S_LOOP}, 2']
            return S + [WaitTag(vm_tags=['W'])]
        body = self.seq(['L_dnn_loop1:'])
        for p in range(12):
            if p == 8 and o.lpf:
                body += self.seq([f's_cmp_lg_u32 s{S_LOOP}, 1', 's_cbranch_scc1 L_nolpf'])
                self.seq([f's_mov_b64 exec, {(1 << o.lpf) - 1}', 'global_load_dword v10, v[8:9], off', 's_mov_b64 exec, -1'] + small(SRD_W2, L_W2))
                body += self.seq(['L_nolpf:'])
            lp = lpair(p)
            if p and self.probe(f'bar{p}'):
                lp = lp[:1] + [f's_cmp_lg_u32 s{S_LOOP}, 0', f's_cbranch_scc1 L_nopb{p}'] + self.probe(f'bar{p}') + [f'L_nopb{p}:'] + lp[1:]
            body += self.seq(lp + (['s_cbranch_scc1 L_dnn_loop1'] if p == 11 else []))
        tl = c0 + lpre + body * 2 + self.seq(['s_branch L_ld_tail'])
        self.ldblk = self.P.static[self.mk0:]
        del self.P.static[self.mk0:]
        tl += self.seq(['L_ld_tail0:', 's_waitcnt vmcnt(0)', 'L_ld_tail:', 's_barrier'] + self.tlb2(T) + ['s_mov_b64 exec, 1', f'buffer_load_dword v250, v{T}, {srd(SRD_DBG)}, 0 offen offset:240 sc1', 's_mov_b64 exec, -1'])
        tl += self.seq(self.probe('s50'))
        if o.walk:
            tl += self.seq([f's_cmp_eq_u32 s{lw}, 0', 's_cbranch_scc1 L_wkd', 's_mov_b64 exec, 0', f's_cmp_eq_u32 s{lw}, 1', 's_cbranch_scc1 L_wk0',
                            f's_cmp_eq_u32 s{lw}, 2', f's_cbranch_scc1 L_wk{np_ // 3}', f's_branch L_wk{2 * np_ // 3}', 'L_wkd:'])
        A = 64
        L = [f's_cmp_lg_u32 s{S_WAVE}, 4', 's_cbranch_scc1 L_end',
             f'v_lshlrev_b32 v3, 4, v0', f'v_lshlrev_b32 v4, 2, v0', f'v_add_u32 v1, {RB}, v3', f'v_add_u32 v2, {RB + 1024}, v4', f'v_add_u32 v4, 1024, v4',
             'v_mov_b32 v5, 32', f'v_mov_b32 v7, s{S_MB}',
             f's_mul_i32 s{S_T0}, s{S_MB}, 1280', f's_mul_i32 s{S_T1}, s{S_R}, {WSP}', f's_add_u32 s{S_T1}, s{S_T1}, s{S_T0}', 's_setprio 3']
        if o.sent:
            L += [f'v_mov_b32 v{A + k}, -1' for k in range(4)] + [f'buffer_store_dwordx4 {vr(A, 4)}, v3, {srd(SRD_WS)}, s{S_T1} offen sc1',
                  f'buffer_store_dword v{A}, v4, {srd(SRD_WS)}, s{S_T1} offen sc1', 's_waitcnt vmcnt(0)']
        if o.pwalk:
            L += ['s_mov_b64 exec, 0', 's_branch L_pw0', 'L_pwr:', 's_mov_b64 exec, -1', f's_cmp_eq_u32 s{S_WAVE}, 0', 's_cbranch_scc1 L_pwc']
        L += self.stamp_flush() + ['s_barrier'] + self.probe('dend')
        L += [f'ds_read_b128 {vr(A, 4)}, v1', f'ds_read_b128 {vr(A + 8, 4)}, v1 offset:1280', f'ds_read2st64_b32 {vr(A + 4, 2)}, v2 offset0:0 offset1:5',
              f'v_pk_add_f32 {p2(A)}, {p2(A)}, {p2(A + 8)}', f'v_pk_add_f32 {p2(A + 2)}, {p2(A + 2)}, {p2(A + 10)}', f'v_add_f32 v{A + 4}, v{A + 4}, v{A + 5}']
        if o.sent:
            L += [f'v_min_u32 v{A + k}, -2, v{A + k}' for k in range(5)]
        L += (self.stamp(16) if o.diag else [])
        L += [f'buffer_store_dwordx4 {vr(A, 4)}, v3, {srd(SRD_WS)}, s{S_T1} offen sc1',
              f'buffer_store_dword v{A + 4}, v4, {srd(SRD_WS)}, s{S_T1} offen sc1', 's_mov_b64 exec, 1']
        tl += self.seq(L)

        L = ['L_pub:']
        if o.skew:
            L += ['v_mov_b32 v20, s86', 'v_mov_b32 v21, s86', 'v_mov_b32 v22, s88', 's_lshl_b32 s89, s2, 7', 's_add_u32 s89, s89, 0x40000', 'v_lshlrev_b32 v23, 28, v0',
                  f'buffer_store_dwordx3 v[20:22], v23, {srd(SRD_WS)}, s89 offen sc1', 's_waitcnt vmcnt(0)']
        def loads():
            c = [f's_mul_i32 s{S_T0}, s{S_T3}, 1280']
            for qq in range(14):
                c += [f'buffer_load_dwordx4 {vr(A + 8 * qq, 4)}, v3, {srd(SRD_WS)}, s{S_T0} offen sc1',
                      f'buffer_load_dword v{A + 8 * qq + 4}, v4, {srd(SRD_WS)}, s{S_T0} offen sc1', f's_add_u32 s{S_T0}, s{S_T0}, {WSP}']
            return c
        R_ = 56
        hb = 0xcdcdcdcd if o.wsc else 0
        L += [f'v_lshlrev_b32 v6, {o.wsc or 4}, v7', f's_mov_b32 s{S_T2}, 0x60000'] + ([] if o.sent else ['s_waitcnt vmcnt(0)']) + ['v_mov_b32 v13, v5',
              f'buffer_atomic_add v5, v6, {srd(SRD_WS)}, s{S_T2} offen sc0' if o.wsc else f'buffer_atomic_add v5, v6, {srd(SRD_DBG)}, 0 offen sc0',
              'v_cmp_eq_u32 vcc, 12, v7', f'v_mov_b32 v8, {hb + 436:#x}', f'v_mov_b32 v9, {hb + 434:#x}', 'v_cndmask_b32 v8, v8, v9, vcc', 'v_sub_u32 v8, v8, v13']
        if o.spec:
            L += [f's_mov_b64 s[{S_MASK}:{S_MASK + 1}], exec', 's_mov_b64 exec, -1', f'v_readfirstlane_b32 s{S_T3}, v7'] + loads() + [f's_mov_b64 exec, s[{S_MASK}:{S_MASK + 1}]']
            L += ['s_waitcnt vmcnt(0) lgkmcnt(0)']
        else:
            L += ['s_waitcnt vmcnt(0) lgkmcnt(0)']
        L += (self.stamp(18) if o.diag else []) + self.probe('atm') + [
             f'v_cmp_eq_u32 s[{S_EX}:{S_EX + 1}], v5, v8', 's_mov_b64 exec, -1', f's_lshl_b32 s{S_BOUT}, s{S_BOUT}, 16',
             'v_lshrrev_b32 v1, 1, v3', 'v_lshrrev_b32 v2, 1, v4']
        if o.spec:
            L += [f's_bitcmp1_b32 s{S_EX}, 0', f's_bitset0_b32 s{S_EX}, 0', 's_cbranch_scc1 L_sum']
        pa = self.seq(L)
        L = ['L_fin:', f's_cmp_eq_u32 s{S_EX}, 0', 's_cbranch_scc1 L_done',
             f's_ff1_i32_b32 s{S_T2}, s{S_EX}', f's_bitset0_b32 s{S_EX}, s{S_T2}', f'v_readlane_b32 s{S_T3}, v7, s{S_T2}', 's_waitcnt vmcnt(0)', 'L_again:'] + loads()
        pb = self.seq(L)
        L = ['L_sum:', f'v_pk_add_f32 {p2(R_)}, {p2(A)}, {p2(A + 8)}', f'v_pk_add_f32 {p2(R_ + 2)}, {p2(A + 2)}, {p2(A + 10)}', f'v_add_f32 v{R_ + 4}, v{A + 4}, v{A + 12}']
        for qq in range(2, 14):
            L += [f'v_pk_add_f32 {p2(R_)}, {p2(R_)}, {p2(A + 8 * qq)}', f'v_pk_add_f32 {p2(R_ + 2)}, {p2(R_ + 2)}, {p2(A + 8 * qq + 2)}',
                  f'v_add_f32 v{R_ + 4}, v{R_ + 4}, v{A + 8 * qq + 4}']
        if o.sent:
            L += [f'v_cmp_u_f32 vcc, v{R_}, v{R_ + 1}', f'v_cmp_u_f32 s[{S_MASK}:{S_MASK + 1}], v{R_ + 2}, v{R_ + 3}', f's_or_b64 s[{S_MASK}:{S_MASK + 1}], s[{S_MASK}:{S_MASK + 1}], vcc',
                  f'v_cmp_u_f32 vcc, v{R_ + 4}, v{R_ + 4}', f's_or_b64 vcc, s[{S_MASK}:{S_MASK + 1}], vcc', 's_cbranch_vccnz L_chk', 'L_ok:']
        L += [f's_mul_i32 s{S_T3}, s{S_T3}, 640']
        A0 = A
        A = R_
        L += [f'v_add_f32 v{A + k}, s{S_BOUT}, v{A + k}' for k in range(5)]
        L += [f'v_cvt_pk_bf16_f32 v10, v{A}, v{A + 1}', f'v_cvt_pk_bf16_f32 v11, v{A + 2}, v{A + 3}', f'v_cvt_pk_bf16_f32 v12, v{A + 4}, v{A + 4}',
              f'buffer_store_dwordx2 v[10:11], v1, {srd(SRD_OUT)}, s{S_T3} offen', f'buffer_store_short v12, v2, {srd(SRD_OUT)}, s{S_T3} offen']
        if o.tailp:
            L += [f's_cmp_lg_u32 s{S_EX}, 0', 's_cbranch_scc1 L_fin', 's_waitcnt vmcnt(0)', 's_memrealtime s[86:87]', 's_waitcnt lgkmcnt(0)', 's_sub_u32 s88, s86, s88', 's_min_u32 s88, s88, 1000',
                  f's_mul_i32 s88, s88, {o.tailp - 1}', 's_add_u32 s88, s88, s86',
                  'L_spin:', 's_memrealtime s[86:87]', 's_waitcnt lgkmcnt(0)', 's_sub_u32 s89, s88, s86', 's_cmp_gt_i32 s89, 0', 's_cbranch_scc1 L_spin']
        if o.skew:
            L += [f's_cmp_lg_u32 s{S_EX}, 0', 's_cbranch_scc1 L_fin', 'v_lshlrev_b32 v20, 7, v0', 's_mov_b32 s88, 0x40000']
            for k in range(4):
                L += [f'buffer_load_dwordx3 v[{32 + 4 * k}:{34 + 4 * k}], v20, {srd(SRD_WS)}, s88 offen sc1', 's_add_u32 s88, s88, 8192']
            L += ['s_waitcnt vmcnt(0)']
            if o.probe.startswith('st') or o.absol:
                L += ['s_memrealtime s[88:89]', 's_waitcnt lgkmcnt(0)', 'v_mov_b32 v26, 0', 'v_mov_b32 v27, 0']
                for k in range(4):
                    L += [f'v_sub_u32 v28, s88, v{32 + 4 * k}', 'v_cmp_gt_u32 vcc, 4500, v28', f'v_not_b32 v29, v{32 + 4 * k}', 'v_cndmask_b32 v29, 0, v29, vcc', 'v_max_u32 v27, v27, v29']
                    if o.absol:
                        L += [f'v_cndmask_b32 v29, 0, v{34 + 4 * k}, vcc', 'v_max_u32 v26, v26, v29']
                    elif str(k) in o.probe[2:]:
                        L += [f'v_cndmask_b32 v29, 0, v{32 + 4 * k}, vcc', 'v_max_u32 v26, v26, v29']
            else:
                for k in range(4):
                    L += [f'v_sub_u32 v28, v{34 + 4 * k}, v{32 + 4 * k}', f'v_cmp_gt_u32 vcc, {100000 if o.cyc else 5000}, v28', f'v_cndmask_b32 v28, 0, v28, vcc',
                          f'v_cmp_eq_u32 vcc, v{32 + 4 * k}, v{33 + 4 * k}', f'v_cndmask_b32 v{33 + 4 * k}, 0, v28, vcc']
                L += ['v_max_u32 v26, v33, v37', 'v_max3_u32 v26, v26, v41, v45', 'v_mov_b32 v27, -1']
            if o.probe == 'span':
                L += ['s_memrealtime s[86:87]', 's_waitcnt lgkmcnt(0)', 'v_mov_b32 v26, s86']
            for (ctl, rm) in (('row_shr:1', '0xf'), ('row_shr:2', '0xf'), ('row_shr:4', '0xf'), ('row_shr:8', '0xf'), ('row_bcast:15', '0xa'), ('row_bcast:31', '0xc')):
                L += [f'v_max_u32_dpp v{r}, v{r}, v{r} {ctl} row_mask:{rm} bank_mask:0xf' for r in (26, 27)]
            L += ['v_not_b32 v27, v27', 'v_sub_u32 v22, v26, v27', 's_memrealtime s[86:87]', 'v_readlane_b32 s88, v22, 63', 's_waitcnt lgkmcnt(0)',
                  *([f's_max_u32 s88, s88, {o.cyc.split(chr(44))[2]}', f's_sub_u32 s88, s88, {o.cyc.split(chr(44))[2]}', 's_lshr_b32 s88, s88, 1'] if o.cyc else []), 's_min_u32 s88, s88, 5000', f's_mul_i32 s88, s88, {o.skew - 1}', 's_add_u32 s88, s88, s86',
                  'L_spin:', 's_memrealtime s[86:87]', 's_waitcnt lgkmcnt(0)', 's_sub_u32 s89, s88, s86', 's_cmp_gt_i32 s89, 0', 's_cbranch_scc1 L_spin']
        L += self.stamp(5) + self.stamp_flush() + ['s_branch L_fin']
        pc_ = self.seq(L)
        if o.sent:
            L = ['L_chk:', 'v_mov_b32 v14, 0', 'v_mov_b32 v15, 0']
            for qq in range(14):
                L += [f'v_max3_u32 v14, v14, v{A0 + 8 * qq}, v{A0 + 8 * qq + 1}', f'v_max3_u32 v14, v14, v{A0 + 8 * qq + 2}, v{A0 + 8 * qq + 3}', f'v_max_u32 v15, v15, v{A0 + 8 * qq + 4}']
            L += [f's_cmp_eq_u32 s{S_T3}, 12', f's_cselect_b32 s{S_T0}, 0, -1', f'v_and_b32 v15, s{S_T0}, v15', 'v_max_u32 v14, v14, v15',
                  'v_cmp_eq_u32 vcc, -1, v14', 's_cbranch_vccnz L_again', 's_branch L_ok']
            self.chk = self.seq(L)
        pe = self.seq(['L_done:', 's_endpgm'])
        self.pub = pa + pb + pc_ + pe
        self.extra_traces = [pa + pc_ + pb + pc_] + ([pa + pb + pc_[:45] + self.chk + pb[7:] + pc_] if o.sent else [])
        return [tc, tl + self.pub]

    def pubsrd(self):
        return self.build_srd(SRD_WS, S_WS, 0x10000000) + self.build_srd(SRD_OUT, S_OUT, 8192) + self.build_srd(SRD_DBG, S_DBG, 256)

    def tables(self):
        OOB = 0x100000
        G = [[] for _ in range(11)]
        for l in range(64):
            half, i32, g, r, c = l >> 5, l & 31, l >> 4, (l >> 2) & 3, l & 3
            lin0 = g * 128 + r * XPP + c * 8
            G[0] += [lin0, lin0 + 512 if g < 3 else XOFF(27) + c * 8, (l >> 3) * 16, 0x3f803f80 if l < 32 else 0]
            G[1] += [(l & 7) * 16, 0xeeee if l & 1 else 0x4444, half * XPP + i32 * 4, IMG + half * 20 * IMGP + i32 * 4]
            tr = [IMG + cin16.IMGROW(cin16.LAB[g][2 * rp + (r >> 1)][r & 1]) * IMGP + c * 8 for rp in range(8)]
            G[2] += tr[:4]
            G[3] += tr[4:]
            row, col = 8 * half + r, (g & 1) * 32 + c * 8
            G[4] += [V3OFF + row * 64 + col, A1 + row * 1352 + col, A1 + min(row + 16, 25) * 1352 + col, A1 + min(row + 20, 25) * 1352 + col]
            t, gd, rr = (i32 >> 2) & 1, i32 >> 3, i32 & 3
            ig = 16 * t + 4 * rr + gd
            iq = 4 * rr + gd if t == 0 else 16 + ((4 * rr + gd + 4) & 15)
            pm = []
            for q in range(8):
                k0 = 16 * (q >> 2) + 8 * half + 2 * (q & 3)
                pm.append((0xffff if iq == k0 else 0xffff0000 if iq == k0 + 1 else 0) if iq < 26 else 0)
            G[5] += pm[:4]
            G[6] += pm[4:]
            ga = A2 + 52 * ig if ig < 26 else OOB
            rowp = ((l & 12) + 2 * (l & 1)) * 16 + (OOB if l & 2 else 0)
            G[7] += [ga + half * 8 * W2P, ga + half * OOB, rowp + half * 256 + (g & 1) * 8, rowp + g * 256]
            G[8] += [SG + i32 * 64 if i32 < 26 else V2S if i32 == 26 else OOB, 64 if i32 == 26 else 3328, (i32 >> 1) + 2 * half,
                     SQ + i32 * 64 + ((((i32 >> 1) & 3) ^ (2 * half)) << 4)]
            v2 = []
            for hf in range(2):
                j = 4 * g + 16 * hf + r
                v2.append(V2S + (j & 1) * 1664 + (j >> 1) * 64 + ((c ^ (((13 + j) & 3) * 2)) * 8) if j < 26 else SG + 676 * 64 + c * 8)
            wo = [L_WCO + 2 * (16 * tl_ + 4 * c + r) if 16 * tl_ + 4 * c + r < 26 else OOB for tl_ in range(2)]
            G[9] += v2 + wo
            G[10] += [L_WCO + 104 + 16 * half, L_WCO + 52 + 2 * l, V3OFF + 52 + 64 * l, SG + 676 * 64 + (l & 15) * 4]
        U = []
        for w in range(8):
            for e in range(16):
                for u in (w, w + 8, w + 16):
                    U += [SG + row * 64 + f * 8 for row, f in cin16.p2rows(u, e >> 2, e & 3)] if u < 22 else [0, 0]
        return [x for n in (4, 2, 3, 0, 5, 6, 7, 8, 9, 1, 10) for x in G[n]] + [0] * 256 + U + [0] * 256

    def cin(self):
        o = self.opt
        cw = S_CW
        vFa, vLin0, vLin1, vXi0, vXi1, vC16, vIDX, vXa, vIw, vPWL, vPXL, PXR, PFR = 1, 4, 5, 6, 7, 8, 9, 10, 11, 12, 13, 14, 15
        XI, vTR = 16, 20
        XR, P, Z, WF, D = 32, 60, 116, 164, 184
        vStg, vFR, vFw = vFa, 2, 59
        t3, t4, t5 = 29, 30, 31
        AV = [28, 58]
        PM = 216
        vA3, vBs0, vBs1a, vBs1b, vGa, vGb, vT3, vT3d = range(224, 232)
        G8, vV2r, vV2q, vWo, AD = 232, 236, 237, 238, 240
        WA = list(range(244, 250))
        vS, vMx = 250, 111
        UA, UX = 224, [232, 233, 234, 235, 240, 241]
        AFR = 112
        BALL, DALL = 60, 120
        S_F1, S_F2, S_G, S_LO, S_HI, S_CM, S_U0, S_U1, S_U2 = 74, 75, 95, 96, 97, 90, 98, 99, 100
        S_CG, S_IV = 0, 1
        OOB = 0x100000
        TA_, TB_, TC_ = SG + 35840, SQ + 26 * W2P, FRS + 2048
        GREG = [224, 20, 24, 4, 216, 220, 228, 232, 236, 8, 240]
        DPPS = (('row_shr:1', '0xf'), ('row_shr:2', '0xf'), ('row_shr:4', '0xf'), ('row_shr:8', '0xf'),
                ('row_bcast:15', '0xa'), ('row_bcast:31', '0xc'))

        K_W7, K_IMG, K_W2, K_W1, K_W12, K_H8, K_T3 = 52, 53, 54, 55, 92 - 10, 92 - 9, 91
        L = ['L_cin:', f'v_lshlrev_b32 v{vStg}, 4, v0', f's_and_b32 s{cw}, s{S_WAVE}, 3', f's_lshr_b32 s{S_GRP}, s{S_WAVE}, 2', f's_lshl_b32 s{S_STG}, s{cw}, 10',
             f's_mul_i32 s{S_MB}, s{S_T0}, 11', f's_add_u32 s{S_MB}, s{S_MB}, s{S_T1}', f's_sub_u32 s{S_MB}, s{S_MB}, 22',
             f's_cmp_eq_u32 s{S_MB}, 86', 's_cbranch_scc1 L_end', f's_cmp_eq_u32 s{S_GRP}, 0', 's_cbranch_scc1 L_sc']
        c0 = self.seq(L)
        L = ['s_setprio 2', f'v_add_u32 v2, L_tables-L_pc+4096, v{vStg}', f'v_mov_b32 v3, s{S_MASK + 1}',
             f'v_add_co_u32 v2, vcc, s{S_MASK}, v2', 'v_addc_co_u32 v3, vcc, 0, v3, vcc',
             f'v_add_co_u32 v{XR}, vcc, s{S_STG}, v2', f'v_addc_co_u32 v{XR + 1}, vcc, 0, v3, vcc',
             f'global_load_dwordx4 {vr(GREG[0], 4)}, v[2:3], off offset:-4096',
             'v_add_co_u32 v2, vcc, 0x1800, v2', 'v_addc_co_u32 v3, vcc, 0, v3, vcc', f'global_load_dwordx4 {vr(GREG[10], 4)}, v[2:3], off',
             f's_cmp_lt_u32 s{cw}, 3', f's_mov_b32 s{S_T2}, {TB_ - 3072}', f's_cselect_b32 s{S_T2}, {TA_ + 4096}, s{S_T2}']
        tdma = lambda off: I(f'global_load_lds_dwordx4 {vr(XR, 2)}, off offset:{off}', tag='TAB')
        L += [f's_add_u32 m0, s{S_STG}, {TA_ + 4096}', tdma(-4096), f's_add_u32 m0, s{S_STG}, s{S_T2}', tdma(0),
              f'v_add_co_u32 v{XR}, vcc, 0x2000, v{XR}', f'v_addc_co_u32 v{XR + 1}, vcc, 0, v{XR + 1}, vcc',
              f's_add_u32 m0, s{S_STG}, {TC_}', tdma(0), f's_add_u32 m0, s{S_STG}, {TB_ + 1024 + 4096}', f's_cmp_ge_u32 s{cw}, 2', 's_cbranch_scc1 L_sc']
        g1s = self.seq(L)
        L = [tdma(-4096)]
        g1t = self.seq(L)
        L = ['L_sc:', f's_mul_i32 s{S_RC}, s{S_GRP}, 20', f's_add_u32 s{S_RC}, s{S_RC}, s{S_WAVE}',
             f's_mul_i32 s{S_SAMP}, s{S_MB}, 48', f's_add_u32 s{S_SAMP}, s{S_SAMP}, s{S_RC}', f's_mul_i32 s{S_SAMP}, s{S_SAMP}, 104',
             f'v_lshrrev_b32 v{t4}, 3, v0', f'v_lshlrev_b32 v{t4}, 4, v{t4}', f'v_and_b32 v{t3}, 0x70, v{vStg}',
             f's_mul_i32 s{S_XM0}, s{S_WAVE}, {XBSZ}', f's_add_u32 s{S_XM0}, s{S_XM0}, {XB}', f's_cmp_eq_u32 s{S_GRP}, 0', 's_cbranch_scc1 L_g0']
        csc = self.seq(L)
        SC2 = [f's_lshl_b32 s{S_RC}, s{S_RC}, 2', f's_add_u32 s{S_RC}, s{S_RC}, {RC}',
               f's_mul_i32 s{S_LOOP}, s{S_GRP}, 3', f's_sub_u32 s{S_LOOP}, 4, s{S_LOOP}', (f's_cmp_eq_u32 s{S_MB}, 85', f's_cselect_b32 s{S_LOOP}, s{S_LOOP}, 6'),
               f's_lshl_b32 s{K_W7}, s{S_WAVE}, 7', f's_mul_i32 s{K_IMG}, s{S_WAVE}, {IMGSZ}', f's_lshl_b32 s{K_W2}, s{S_WAVE}, 2', f's_lshl_b32 s{K_W1}, s{S_WAVE}, 1',
               f's_lshl_b32 s{K_W12}, s{S_WAVE}, 12',
               f's_and_b32 s{S_U0}, s{S_WAVE}, 1', f's_lshr_b32 s{S_U1}, s{S_WAVE}, 1',
               f's_mul_i32 s{S_T0}, s{S_U1}, 3072', f's_lshl_b32 s{K_H8}, s{S_U0}, 3', f's_add_u32 s{S_T0}, s{S_T0}, s{K_H8}', f'v_add_u32 v{vFw}, s{S_T0}, v{vStg}',
               f's_lshl_b32 s{S_T1}, s{S_U1}, 3', f's_lshr_b32 s{S_T1}, 0x05030200, s{S_T1}', f's_and_b32 s{S_T1}, s{S_T1}, 0xff',
               f's_lshl_b32 s{S_T1}, s{S_T1}, 9', f's_lshl_b32 s{S_T2}, s{S_U0}, 2', f's_add_u32 s{K_T3}, s{S_T1}, s{S_T2}',
               f's_mov_b32 s{S_U1}, 0x05040100', f's_mov_b32 s{S_U2}, 0x07060302',
               f'v_mov_b32 v{vFR}, {L_FLG}', 'v_mov_b32 v109, 0', 'v_mov_b32 v108, 0'] + [f'v_mov_b64 {vr(r, 2)}, 0' for r in range(XR, XR + 26, 2)]
        XJ = 104 if o.xat < 4 else 12

        def pfw(dst=3):
            return [f'buffer_load_dword v{dst}, v{vPWL}, {srd(SRD_W)}, s{S_PW} offen',
                    f's_add_u32 s{S_PW}, s{S_PW}, {o.pfne * 688 * 128}']

        def pfx_a():
            return [f'buffer_load_dword v{PXR}, v{vPXL}, {srd(SRD_IDX)}, s{S_PX} offen',
                    f's_cmp_eq_u32 s{S_PX}, s{S_PXE}', f's_cselect_b32 s{S_PXE}, 0x7000000, s{S_PXE}',
                    f's_cselect_b32 s{S_PX}, 0x7000000, s{S_PX}',
                    f's_add_u32 s{S_PX}, s{S_PX}, 24', f's_min_u32 s{S_PX}, s{S_PX}, s{S_PXE}']

        def pfx_b():
            return [f'v_lshlrev_b32 v{PXR}, 7, v{PXR}', f'buffer_load_dword v{PFR}, v{PXR}, {srd(SRD_TAB)}, 0 offen']

        def xidx(XI=XI, vXi0=vXi0):
            return [f'buffer_load_dwordx4 {vr(XI, 4)}, v{vXi0}, {srd(SRD_IDX)}, s{S_SAMP} offen', f's_add_u32 s{S_SAMP}, s{S_SAMP}, {4 * 104}']

        def xdma(XI=XI, off=0, tag='XB', vC16=vC16):
            c = [f'v_lshl_add_u32 v{XI + u}, v{XI + u}, 7, v{vC16}' for u in range(4)]
            for u in range(4):
                c += [f's_add_u32 m0, s{S_XM0}, {u * XPP + off}']
                if u % 2 == 0:
                    c.append(f's_mov_b32 exec_hi, {0xffffff if u == 0 else 0xffff:#x}')
                c.append(I(f'buffer_load_dwordx4 v{XI + u}, {srd(SRD_TAB)}, 0 offen lds', tag=tag))
            return c + ['s_mov_b32 exec_hi, -1']

        def stage(dst, goff, tag):
            st = []
            for m in range(9):
                st.append((f's_add_u32 m0, s{S_STG}, {dst + m * 4096}', f's_add_u32 s{S_TW}, s{S_STG}, {goff + m * 4096}',
                           I(f'buffer_load_dwordx4 v{vStg}, {srd(SRD_CIN)}, s{S_TW} offen lds', tag=tag)))
            return st

        def pubmax(regs_offs):
            c = []
            for (ctl, rm) in DPPS:
                for r, _ in regs_offs:
                    c.append(f'v_max_u32_dpp v{r}, v{r}, v{r} {ctl} row_mask:{rm} bank_mask:0xf')
            c += ['s_mov_b32 exec_lo, 0', 's_mov_b32 exec_hi, 0x80000000']
            c += [f'ds_max_u32 v{vFR}, v{r} offset:{16 + 4 * k}' for r, k in regs_offs]
            return c + ['s_mov_b64 exec, -1']

        def mxop(src, n, mx, first):
            return [f'v_mfma_f32_16x16x32_bf16 {vr(mx, 4)}, {vr(src + r, 4)}, {vr(src + r, 4)}, {"0" if first and r == 0 else vr(mx, 4)}' for r in range(0, n, 4)]

        def mxfin(mx):
            return [f'v_max3_f32 v{mx}, v{mx}, v{mx + 1}, 0', f'v_max3_f32 v{mx}, v{mx}, v{mx + 2}, v{mx + 3}']

        def bread(m, off):
            b = BALL + m * 8
            return [f'ds_read_b64_tr_b16 {vr(b, 2)}, v{vBs0} offset:{off}',
                    f'ds_read_b64_tr_b16 {vr(b + 2, 2)}, v{vBs0} offset:{off + 4 * 1352}',
                    f'ds_read_b64_tr_b16 {vr(b + 4, 2)}, v{vBs1a} offset:{off}',
                    f'ds_read_b64_tr_b16 {vr(b + 6, 2)}, v{vBs1b} offset:{off}']

        def mm2(d, a, b):
            return [f'v_mfma_f32_32x32x16_bf16 {vr(d, 16)}, {vr(a, 4)}, {vr(b, 4)}, 0',
                    f'v_mfma_f32_32x32x16_bf16 {vr(d, 16)}, {vr(a + 4, 4)}, {vr(b + 4, 4)}, {vr(d, 16)}']

        tA, tB = 250, 251
        if o.pfw:
            SC2 += self.build_srd(SRD_W, S_W1, 1664 * 3328) + [
                f's_lshl_b32 s{S_PW}, s{S_MB}, 3', f's_add_u32 s{S_PW}, s{S_PW}, s{S_WAVE}', f's_add_u32 s{S_PW}, s{S_PW}, {o.pfe0 * 832}', f's_lshl_b32 s{S_PW}, s{S_PW}, 7',
                f's_mov_b32 s{S_T3}, {688 * 128}', f'v_min_u32 v{vPWL}, {max(o.pfne - 1, 0)}, v0', f'v_mul_lo_u32 v{vPWL}, s{S_T3}, v{vPWL}']
        if o.pfx:
            SC2 += [f's_lshl_b32 s{S_PX}, s{S_MB}, 3', f's_add_u32 s{S_PX}, s{S_PX}, s{S_WAVE}', f's_mul_i32 s{S_PX}, s{S_PX}, {6 * 104}',
                    f's_add_u32 s{S_PXE}, s{S_PX}, 80', f's_add_u32 s{S_PX}, s{S_PX}, {4 * o.pfx0}',
                    f'v_min_u32 v{PXR}, 35, v0', f'v_mul_u32_u24 v{vPXL}, 10923, v{PXR}', f'v_lshrrev_b32 v{vPXL}, 16, v{vPXL}',
                    f'v_mul_u32_u24 v{vPXL}, {104 - 24}, v{vPXL}', f'v_lshl_add_u32 v{vPXL}, v{PXR}, 2, v{vPXL}']
        trd = lambda n: f'ds_read_b128 {vr(GREG[n], 4)}, v{tA if n < 7 else tB} offset:{(n if n < 7 else n - 7) * 1024}'
        vbs = [f'v_add_u32 v{r}, s{K_W7}, v{r}' for r in (vBs0, vBs1a, vBs1b)]

        def FX(g):
            R = [trd(n) for n in ((0,) if g == 0 else ()) + (6, 7, 3, 9, 1, 2, 4, 5, 8)]
            F = vbs + [f'v_add_u32 v{r}, s{K_W2}, v{r}' for r in (vGa, vGb)]
            F += [f'v_add_u32 v{vT3d}, s{K_H8}, v{vT3d}', f'v_add_u32 v{vT3}, s{K_T3}, v{vT3}']
            F += [f'v_mad_u32_u24 v{G8}, v{G8 + 1}, s{S_WAVE}, v{G8}', f'v_add_u32 v{G8 + 2}, s{K_W1}, v{G8 + 2}',
                  f'v_mad_u32_u24 v{G8 + 1}, v{G8 + 1}, 8, v{G8}', f'v_add_u32 v{WA[2]}, s{K_W12}, v{G8 + 3}', f'v_add_u32 v{WA[3]}, 2048, v{WA[2]}']
            for n_, (wa, bs) in enumerate(((WA[0], G8), (WA[1], G8), (WA[4], G8 + 1), (WA[5], G8 + 1))):
                F += [f'v_add_u32 v{t5}, {n_ & 1}, v{G8 + 2}', f'v_and_b32 v{t5}, 3, v{t5}', f'v_lshl_add_u32 v{wa}, v{t5}, 4, v{bs}']
                if n_ & 1:
                    F.append(f'v_add_u32 v{wa}, 1664, v{wa}')
            F += [f'v_add_u32 v{r}, s{S_XM0}, v{r}' for r in (vXa, vLin0, vLin1)] + [f'ds_write_b32 v{vXa}, v{vXi1} offset:{XOFF(26)}']
            F += [f'v_add_u32 v{r}, s{K_IMG}, v{r}' for r in [vIw] + list(range(vTR, vTR + 8))]
            return R, F
        SC2 += [f'v_add_u32 v{tA}, {TA_}, v{vStg}', f'v_add_u32 v{tB}, {TB_}, v{vStg}', f'v_lshrrev_b32 v3, 5, v0', f'v_lshl_add_u32 v3, v3, 2, v{vFR}']

        def pub2(r1, r2, off):
            c = [f'v_permlane32_swap_b32 v{r1}, v{r2}', f'v_max_u32 v{r1}, v{r1}, v{r2}']
            c += [f'v_max_u32_dpp v{r1}, v{r1}, v{r1} {ctl} row_mask:{rm} bank_mask:0xf' for ctl, rm in DPPS[:5]]
            return c + ['s_mov_b32 exec_lo, 0x80000000', 's_mov_b32 exec_hi, 0x80000000', f'ds_max_u32 v3, v{r1} offset:{16 + off}', 's_mov_b64 exec, -1']
        AV = [28, 58, 111]
        CO = [f's_sub_u32 s{S_T0}, s{S_T3}, 22', f's_min_u32 s{S_T0}, s{S_T0}, 9', f's_lshl_b32 s{S_T0}, s{S_T0}, 2', f's_add_u32 s{S_T0}, s{S_T0}, s{cw}', f's_lshl_b32 s{S_T0}, s{S_T0}, 7',
              f'v_mul_u32_u24 v{t5}, {40 * 128}, v0', 's_waitcnt lgkmcnt(0)'] + self.build_srd(SRD_CIN, S_CIN, 105456) + [
              f'buffer_load_dword v107, v{t5}, {srd(SRD_CIN)}, s{S_T0} offen']
        L = CO if o.coop in (1, 2) else []
        L += ['s_waitcnt lgkmcnt(0)'] + self.build_srd(SRD_WCO, S_WCO, 156) + [f's_mov_b32 m0, {L_WCO}', 's_mov_b64 exec, 0x7ff',
             I(f'buffer_load_dwordx4 v{vStg}, {srd(SRD_WCO)}, 0 offen lds', tag='WCO'), 's_mov_b64 exec, -1'] + (['s_barrier'] if o.coop in (2, 4) else []) + self.stamp0() + SC2
        L += self.build_srd(SRD_IDX, S_IDX, 4096 * 104) + self.build_srd(SRD_TAB, S_TAB, 100000 * 128)
        XK = 12
        if o.g1t:
            assert not o.pfx
            L += [f'v_and_b32 v13, 31, v0', f'v_min_u32 v13, 25, v13', f'v_lshrrev_b32 v14, 5, v0', f'v_mul_u32_u24 v14, {4 * 104}, v14', f'v_lshl_add_u32 v13, v13, 2, v14',
                  f'buffer_load_dword v14, v13, {srd(SRD_IDX)}, s{S_SAMP} offen']
        g1touch = [f'v_lshlrev_b32 v14, 7, v14', f'buffer_load_dword v13, v14, {srd(SRD_TAB)}, 0 offen']
        hx = []
        if o.hx:
            mg = {4: 16384, 5: 13108}[o.hx]
            assert all((d * mg) >> 16 == d // o.hx for d in range(64))
            L += [f'v_min_u32 v12, {12 * o.hx - 1}, v0', f'v_mul_u32_u24 v15, {mg}, v12', 'v_lshrrev_b32 v15, 16, v15', f'v_mul_u32_u24 v15, {104 - 4 * o.hx}, v15', 'v_lshl_add_u32 v12, v12, 2, v15',
                  f's_lshl_b32 s{S_T0}, s{S_MB}, 2', f's_add_u32 s{S_T0}, s{S_T0}, s{cw}', f's_mul_i32 s{S_T0}, s{S_T0}, {12 * 104}',
                  f'buffer_load_dword v15, v12, {srd(SRD_IDX)}, s{S_T0} offen offset:{4 * o.hx0}']
            hx = ['v_lshlrev_b32 v15, 7, v15', f'buffer_load_dword v12, v15, {srd(SRD_TAB)}, 0 offen']
        if o.hw:
            hw = self.build_srd(SRD_W, S_W1, 1664 * 3328) + [f's_lshl_b32 s{S_T0}, s{S_MB}, 2', f's_add_u32 s{S_T0}, s{S_T0}, s{cw}', f's_add_u32 s{S_T0}, s{S_T0}, {o.hw0 * 832}',
                  f's_lshl_b32 s{S_T0}, s{S_T0}, 7', f'v_mul_u32_u24 v106, {344 * 128}, v0', f's_mov_b64 exec, {(1 << o.hw) - 1}',
                  f'buffer_load_dword v{XI}, v106, {srd(SRD_W)}, s{S_T0} offen', 's_mov_b64 exec, -1']
        if o.xg1:
            L += [f's_sub_u32 s{S_T0}, s{S_SAMP}, {24 * 104}', f'buffer_load_dwordx4 {vr(XI, 4)}, v{t4}, {srd(SRD_IDX)}, s{S_T0} offen',
                  f'buffer_load_dwordx4 {vr(XK, 4)}, v{t4}, {srd(SRD_IDX)}, s{S_T0} offen offset:{4 * 104}']
        L += [f'ds_write_b128 v{vFR}, {vr(XR, 4)} offset:16', f's_lshl_b32 s{S_T0}, s{cw}, 6', f'v_add_u32 v{t3}, s{S_T0}, v0']
        for p_ in range(3):
            L += [f'v_mul_u32_u24 v{t4}, 2521, v{t3}', f'v_lshrrev_b32 v{t4}, 16, v{t4}', f'v_mul_u32_u24 v{t4}, 12, v{t4}', f'v_lshl_add_u32 v{AV[p_]}, v{t3}, 1, v{t4}']
            L += [f'v_add_u32 v{t3}, 256, v{t3}'] if p_ < 2 else [f'v_cmp_gt_u32 vcc, 676, v{t3}', f's_mov_b64 s[{S_MASK}:{S_MASK + 1}], vcc']
        L += [f'v_lshlrev_b32 v{t3}, 3, v0', 's_mov_b32 exec_hi, 0xffff', f'ds_write_b64 v{t3}, {vr(XR, 2)} offset:{V3OFF + 26 * 64}', 's_mov_b32 exec_hi, -1',
              f'ds_write_b32 v{AD + 3}, v{XR}', f'ds_write_b32 v{AD + 3}, v{XR} offset:{SSZ}', WaitTag(vm_tags=['WCO'])]
        assert V3OFF == 0
        for s2 in range(2):
            for rd in range(2):
                L.append(f'ds_read_b64 {vr(AFR + 4 * s2 + 2 * rd, 2)}, v{AD} offset:{s2 * 32 + rd * 8}')
        L += [f'ds_read_u16 v110, v{AD + 1}',
              's_mov_b64 exec, 0x3ffffff', f'ds_write_b16 v{AD + 2}, v110', 'v_lshlrev_b32 v109, 17, v110', 'v_lshrrev_b32 v109, 1, v109', 's_mov_b64 exec, -1']
        if o.cwalk:
            L += ['s_mov_b64 exec, 0'] + [x for q_ in range(3) for x in (f's_cmp_eq_u32 s{cw}, {q_}', f's_cbranch_scc1 L_WENTRY{q_}')] + ['s_branch L_WENTRY3', 'L_wret:', 's_mov_b64 exec, -1']
        L += (FX(1)[1] if o.dirt else vbs) + [WaitTag(vm_tags=['TAB'], lgkm0=True)] + self.probe('tab') + (pfw(PFR) if o.pfw and o.pfs == 1 else []) + (hw if o.hw and o.hwat == 0 else []) + (hx if o.hxat == 0 else [])
        v3p = []
        L += ['s_barrier'] + self.stamp(2) + self.probe('b0')
        vb = lambda m: A3 - A1 - 512 + (m >> 1) * 512 + (m & 1) * 64
        for m in range(3):
            L += bread(m, vb(m))
        for m in range(6):
            if m + 3 < 6:
                L += bread(m + 3, vb(m + 3))
            L += mm2(DALL + m * 16, AFR, BALL + m * 8)
            if m == 3 and not o.dirt:
                L += FX(1)[0]
        if not o.dirt:
            L += FX(1)[1][3:]
        for p_ in range(3):
            L += ['s_mov_b32 exec_lo, 0', f'v_mov_b32 v{DALL + 32 * p_}, v{DALL + 32 * p_ + 16}', 's_mov_b32 exec_lo, -1',
                  f'v_cvt_pk_bf16_f32 v{BALL + p_}, 0, v{DALL + 32 * p_}']
            if p_ == 2:
                L += [f's_mov_b64 exec, s[{S_MASK}:{S_MASK + 1}]']
            L += [f'ds_write_b16_d16_hi v{AV[p_]}, v{BALL + p_}', f'v_max_f32 v108, |v{BALL + p_}|, v108']
        L += ['s_mov_b64 exec, -1'] + pub2(108, 109, 8) + self.stamp(13) + [f's_setprio {o.g1p}'] + (hw if o.hw and o.hwat == 1 else []) + (hx if o.hxat == 1 else []) + (g1touch if o.g1t == 1 else []) + ['s_waitcnt lgkmcnt(0)', 's_barrier'] + (g1touch if o.g1t == 2 else []) + ['s_branch L_w2']
        v3 = self.seq(L)

        def stage3(dst, goff, tag, lab, mid=None, fill=()):
            st = stage(dst, goff, tag)
            a_ = st[:8] if mid is None else st[:mid[0]] + [tuple(mid[1])] + st[mid[0]:8]
            return (self.seq(interleave(a_, list(fill)) + [f's_cmp_eq_u32 s{cw}, 3', f's_cbranch_scc1 {lab}']), self.seq([st[8]]), self.seq([f'{lab}:']))
        g0 = [self.seq(['L_g0:'] + ([x.replace('v107,', 'v103,') for x in CO] if o.coop >= 3 else ['s_waitcnt lgkmcnt(0)'] + self.build_srd(SRD_CIN, S_CIN, 105456)) + (['s_barrier'] if o.coop in (2, 4) else []) + ([Touch('v103')] if o.coop == 5 else []))]
        g0.append(stage3(A3, 70304, 'W3', 'L_st3'))
        g0.append(self.seq(self.stamp0() + self.build_srd(SRD_IDX, S_IDX, 4096 * 104) + ([f's_add_u32 s{S_SAMP}, s{S_SAMP}, {8 * 104}'] if o.xg1 else xidx(XI, t4) + xidx(XJ, t4)) + self.build_srd(SRD_TAB, S_TAB, 100000 * 128)))
        def w2grp(n):
            c = []
            for k, go in enumerate((0, 1024, 1864)):
                c.append((f's_add_u32 m0, s{S_STG9}, {A2 + n * 4 * 3072 + k * 1024}', f's_add_u32 s{S_TW}, s{S_TGT}, {35152 + n * 4 * 2704 + go}',
                          I(f'buffer_load_dwordx4 v{t5 if k == 1 else vStg}, {srd(SRD_CIN)}, s{S_TW} offen lds', tag='W2')))
            return c
        g0.append((self.seq([f's_mul_i32 s{S_STG9}, s{cw}, 3072', f's_mul_i32 s{S_TGT}, s{cw}, 2704', f'v_lshrrev_b32 v{t5}, 5, v0', f'v_mul_u32_u24 v{t5}, 184, v{t5}',
                             f'v_sub_u32 v{t5}, v{vStg}, v{t5}'] + interleave(w2grp(0) + w2grp(1) + w2grp(2), SC2) + [f's_cmp_lg_u32 s{cw}, 0', 's_cbranch_scc1 L_st2']),
                   self.seq(w2grp(3)), self.seq(['L_st2:']), 1))
        xx = xdma(vC16=t3, tag='XBa') + xdma(XJ, 4 * XBSZ, vC16=t3)
        g0.append(stage3(A1, 0, 'W1', 'L_st1', (o.sigat, [WaitTag(vm_tags=['W2' if o.mrg else 'W3']), 's_barrier'] + self.stamp(2) + FX(0)[0])))
        g0.append(self.seq((xx if o.xat == 0 else xx[:len(xx) // 2] if o.xat == 3 else []) + (pfw(PFR) if o.pfw and o.pfs == 1 else []) + FX(0)[1] + (xx if o.xat == 2 else xx[:len(xx) // 2] if o.xat >= 4 else []) + self.stamp(13)
                           + [WaitTag(vm_tags=['W1']), 's_barrier'] + (xx if o.xat == 1 else xx[len(xx) // 2:] if o.xat == 3 else [])))

        def G0(w):
            r = []
            for x in g0:
                r += x if isinstance(x, list) else x[0] + (x[1] if w < (3 if len(x) == 3 else x[3]) else []) + x[2]
            return r

        def gather(dst, off):
            c = [f'v_add_u32 v{r}, {off}, v{r}' for r in (vGa, vGb)] if off else []
            for s2 in range(2):
                for e in range(0, 8, 2):
                    base = vGb if (s2 == 1 and e >= 2) else vGa
                    h = 16 * s2 + e
                    c.append(f'ds_read2st64_b32 {vr(dst + 8 * s2 + e, 2)}, v{base} offset0:{6 * h} offset1:{6 * h + 6}')
            return c

        def perms(g_, aj):
            return [f'v_perm_b32 v{aj + 8 * jj + r}, v{g_ + 2 * r + 1}, v{g_ + 2 * r}, s{S_U1 + jj}' for jj in range(2) for r in range(8)]

        def sout(t):
            d, c_ = DALL + 16 * t, DALL + 16 * t
            c = [f'v_cvt_pk_f16_f32 v{c_ + r}, v{d + 2 * r}, v{d + 2 * r + 1}' for r in range(8)]
            return c[:4] + [f'ds_write_b128 v{WA[t]}, {vr(c_, 4)}', f'v_xor_b32 v{WA[t]}, 16, v{WA[t]}'] + c[4:] + [f'ds_write_b128 v{WA[t]}, {vr(c_ + 4, 4)}']
        M1, M2 = 28, 28

        def pub1(r, off):
            c = [f'v_max_u32_dpp v{r}, v{r}, v{r} {ctl} row_mask:{rm} bank_mask:0xf' for ctl, rm in DPPS]
            return c + [('s_mov_b32 exec_lo, 0', 's_mov_b32 exec_hi, 0x80000000', f'ds_max_u32 v{vFR}, v{r} offset:{16 + off}', 's_mov_b64 exec, -1')]
        L = ['L_w2:'] + self.stamp(14) + self.probe('bw2') + gather(BALL, 0) + (pfw(PFR) if o.pfw and o.pfs == 2 else []) + (pfx_a() if o.pfx else [])
        cx = []
        if o.xg1:
            cc0 = self.seq(L + [f's_cmp_eq_u32 s{S_GRP}, 0', 's_cbranch_scc1 L_nx1'])
            cx = self.seq(xdma(XI, -4 * XBSZ) + xdma(XK))
            L = ['L_nx1:']
        else:
            cc0 = []
        L += [f's_cmp_ge_u32 s{S_WAVE}, 5', 's_cbranch_scc1 L_u0']
        cc = self.seq(L)
        M1, M2 = 28, 108
        fin2 = lambda: interleave(mxfin(M1), mxfin(M2)) + [tuple(x) if isinstance(x, list) else x for x in pub2(M1, M2, 0)[:7] + [pub2(M1, M2, 0)[7:]]]
        afr = [f'ds_read_b64_tr_b16 {vr(AFR + 4 * s2 + 2 * rd, 2)}, v{vA3} offset:{s2 * 1024 + rd * 256}' for s2 in range(2) for rd in range(2)]
        b1u = self.seq(gather(BALL + 32, 32) + bread(2, 0) + bread(3, 64) + afr + mxop(BALL, 16, M2, True) + perms(BALL, DALL + 64)[:8] + mxop(BALL + 32, 16, M2, False)
                       + mxop(BALL + 16, 16, M1, True) + perms(BALL, DALL + 64)[8:] + interleave(fin2(), perms(BALL + 32, BALL)) + ['s_branch L_u1'])
        L = ['L_u0:'] + bread(2, 0) + bread(3, 64) + bread(4, 384) + bread(5, 384 + 64) + afr + mxop(BALL, 16, M2, True) + mxop(BALL + 16, 32, M1, True)
        L += perms(BALL, DALL + 64)[:4] + interleave(fin2(), perms(BALL, DALL + 64)[4:])
        L += [f'v_add_u32 v{WA[4]}, {192 * 64}, v{WA[2]}', f'v_add_u32 v{WA[5]}, {192 * 64}, v{WA[3]}',
              f's_cmp_lg_u32 s{S_WAVE}, 7', 's_cbranch_scc1 L_u1', 's_mov_b32 exec_lo, 0xfffffff0', 's_mov_b32 exec_hi, 0xfffffff0', f'v_mov_b32 v{WA[5]}, {OOB}', 's_mov_b64 exec, -1']
        b1q = self.seq(L)
        MXR = 108
        vM = 58

        def ureads(j):
            return [f'ds_read_u16_d16_hi v{XR + 2 * j}, v{vXa} offset:{XOFF(2 * j)}',
                    f'ds_read_u16_d16_hi v{XR + 2 * j + 1}, v{vXa} offset:{XOFF(2 * j) + 2}']
        mx3 = lambda j: f'v_max3_f32 v{vM}, |v{XR + 2 * j}|, |v{XR + 2 * j + 1}|, {"0" if j == 0 else f"v{vM}"}'
        L = ['L_u1:'] + self.stamp(1) + [WaitTag(lgkm0=True), 's_barrier'] + self.stamp(7) + self.probe('b1')
        L += [f'ds_read_b128 {vr(MXR, 4)}, v{vFR} offset:16'] + (pfx_b() + pfx_a() if o.pfx and o.pf1 == 1 else [])
        hook = {}

        def mkhook(name, c0_, c1_):
            nonlocal L
            if not (c0_ or c1_):
                return
            pre_ = self.seq(L + [f's_cmp_lg_u32 s{S_GRP}, 0', f's_cbranch_scc1 L_{name}1'])
            a_ = self.seq(c0_ + [f's_branch L_{name}2'])
            b_ = self.seq([f'L_{name}1:'] + c1_)
            hook[name] = (pre_, a_, b_)
            L = [f'L_{name}2:']
        mkhook('hb', xdma(XJ, 4 * XBSZ) if o.xat == 5 else [], g1touch if o.g1t == 3 else [])
        L += [f's_mul_i32 s{S_T0}, s{S_WAVE}, 384', f'v_lshrrev_b32 v{t3}, 2, v0', f'v_mul_u32_u24 v{t3}, 24, v{t3}', f'v_add_u32 v{t3}, s{S_T0}, v{t3}',
              f'v_and_b32 v{t4}, 3, v0', f'v_lshlrev_b32 v{t4}, 3, v{t4}']
        L += [f'ds_read_b64 {vr(UA + 2 * n_, 2)}, v{t3} offset:{TC_ + 8 * n_}' for n_ in range(3)]
        q1 = [f'v_add_u32 v{MXR}, {127 << 23:#x}, v{MXR}', f'v_lshrrev_b32 v{MXR}, 24, v{MXR}', f'v_sub_u32 v{MXR}, 267, v{MXR}', f'v_min_u32 v{MXR}, 167, v{MXR}',
              f'v_readfirstlane_b32 s{S_F1}, v{MXR}', f'v_mul_u32_u24 v{MXR}, 0x800080, v{MXR}']
        sc = [f'v_add_u32 v{MXR + 1}, {127 << 23:#x}, v{MXR + 1}', f'v_lshrrev_b32 v{MXR + 1}, 24, v{MXR + 1}',
              's_mov_b32 vcc_lo, 0x4000000', 's_mov_b32 vcc_hi, 0x4000000', f'v_cndmask_b32 v{vS}, v{MXR + 2}, v{MXR + 3}, vcc', f'v_lshrrev_b32 v{vS}, 23, v{vS}',
              f'v_add_u32 v{vS}, v{vS}, v{MXR + 1}', f'v_sub_u32 v{vS}, 388, v{vS}', f's_movk_i32 s{S_U0}, 167', f'v_med3_i32 v{vS}, v{vS}, 1, s{S_U0}',
              f'v_subrev_u32 v{MXR + 2}, 127, v{vS}', f'v_lshlrev_b32 v{vS}, 23, v{vS}', f'v_cmp_gt_i32 vcc, 0, v{MXR + 2}',
              f'v_mul_u32_u24 v{MXR + 2}, 0x800080, v{MXR + 2}']
        mq = mm2(DALL + 32, PM, BALL + 16) + mm2(DALL + 48, PM, BALL + 24)
        L += interleave(q1, sc[:6]) + [f'v_and_b32 v{PM + r}, v{PM + r}, v{MXR}' for r in range(8)] + interleave([mq[0], mq[2], mq[1], mq[3]], sc[6:]) + ['s_cbranch_vccnz L_sdown']
        L += [f'v_add_u32 v{AFR + r}, v{AFR + r}, v{MXR + 2}' for r in range(8)]
        u1a = self.seq(L)
        L = ['L_scaled:'] + interleave(mm2(DALL, DALL + 64, AFR) + mm2(DALL + 16, DALL + 72, AFR), sout(2) + sout(3))
        L += [f's_cmp_ge_u32 s{S_WAVE}, 5', 's_cbranch_scc1 L_u2']
        u1 = self.seq(L)
        u2u = self.seq(interleave(mm2(DALL + 64, BALL, AFR) + mm2(DALL + 80, BALL + 8, AFR), sout(0)) + ['s_branch L_u3'])
        u2q = self.seq(['L_u2:'] + interleave(mm2(DALL + 64, PM, BALL + 32) + mm2(DALL + 80, PM, BALL + 40), sout(0)))
        L = ['L_u3:'] + xidx() + xidx(112) + (pfx_b() + pfx_a() if o.pfx and o.pf1 == 2 else [])
        mkhook('hu', xdma(XJ, 4 * XBSZ) if o.xat == 4 else [], g1touch if o.g1t == 4 else [])
        L += interleave(sout(1) + sout(4) + sout(5), [x for n_ in range(6) for x in (f'v_xor_b32 v{UA + n_}, v{UA + n_}, v{t4}', f'v_xor_b32 v{UX[n_]}, 32, v{UA + n_}')])
        L += [f'v_readlane_b32 s{S_CG}, v{vS}, 0', f'v_readlane_b32 s{S_IV}, v{vS}, 26',
              f's_sub_u32 s{S_F2}, {254 << 23:#x}, s{S_CG}', f's_sub_u32 s{S_IV}, {254 << 23:#x}, s{S_IV}',
              f's_sub_u32 s{S_F1}, 254, s{S_F1}', f's_lshl_b32 s{S_F1}, s{S_F1}, 23',
              f's_mov_b32 s{S_MASK}, 0x88888888', f's_mov_b32 s{S_MASK + 1}, 0x88888888']

        def sigma(s_):
            t = (s_ - 1) // 2
            first = (s_ - 1) % 2 == 0
            return (0 if first else 1) if t % 2 == 0 else (1 if first else 0)
        for s_ in range(1, 11):
            assert ((s_ - 1) // 2) * 1024 + sigma(s_) * 512 - (s_ // 4) * 2048 == (-1024, 0, 512, 1536)[s_ % 4]

        def p2read(n_):
            b = BALL + 16 * n_
            c = []
            UAl = list(range(UA, UA + 6))
            for x, (ar, off) in enumerate(((UAl, 0), (UX, 0), (UAl, SSZ), (UX, SSZ))):
                for y in range(2):
                    c.append(f'ds_read_b64_tr_b16 {vr(b + 4 * x + 2 * y, 2)}, v{ar[2 * n_ + y]} offset:{off}')
            return c

        def p2a(n_):
            b = BALL + 16 * n_
            c = []
            for x in range(4):
                c += [f'v_pk_add_f16 v{b + 4 * x + y}, v{b + 4 * x + y}, v{b + 4 * x + 2 + y}' for y in range(2)]
                if x in (0, 2):
                    c.append(f'ds_write_b64 v{vFw}, {vr(b + 4 * x, 2)} offset:{FR + n_ * 4 * 3072 + x * 1024}')
            c += [f'v_cndmask_b32 v{b + 4 + y}, v{b + 4 + y}, v{b + 12 + y}, s[{S_MASK}:{S_MASK + 1}]' for y in range(2)]
            c.append(f'ds_write_b64 v{vFw}, {vr(b + 4, 2)} offset:{FR + n_ * 4 * 3072 + 1024}')
            return c

        def p2s(n_):
            b = BALL + 16 * n_ + 12
            off = FRS + max(n_ * 2048 - 1024, 0)
            return ([f'v_subrev_u32 v{vT3}, 1024, v{vT3}'] if n_ == 0 else []) + [
                f'ds_write_b32 v{vT3}, v{b} offset:{off}', f'ds_write_b32 v{vT3}, v{b + 1} offset:{off + 16}']
        ec = []
        if o.econv:
            L += [f's_cmp_lg_u32 s{S_GRP}, 0', 's_cbranch_scc1 L_noec']
            u3 = self.seq(L)
            ec = self.seq([WaitTag(vm_tags=['XBa'])] + [x for j in range(13) for x in ureads(j)])
            L = ['L_noec:']
        else:
            u3 = []
        L += [WaitTag(vm_tags=['XB'] if o.xg1 else [], lgkm0=True), 's_barrier'] + self.stamp(10)
        L += p2read(0) + p2read(1) + [f's_cmp_ge_u32 s{S_WAVE}, 6', 's_cbranch_scc1 L_lin']
        b2 = self.seq(L)
        p2c = self.seq(p2read(2) + p2a(2) + p2s(2) + ['s_branch L_p2'])
        LB = BALL + 32
        ZR4 = t5
        L = ['L_lin:', f's_and_b32 s{S_U0}, s{S_WAVE}, 1', f's_cselect_b64 vcc, -1, 0', f's_lshl_b32 s{S_U1}, s{S_U0}, 5', f'v_mov_b32 v{ZR4}, 0',
             f'v_xor_b32 v{vV2r}, s{S_U1}, v{vV2r}', f'v_xor_b32 v{vV2q}, s{S_U1}, v{vV2q}', f'v_cndmask_b32 v{vWo}, v{vWo}, v{vWo + 1}, vcc',
             f'ds_read_b64_tr_b16 {vr(LB, 2)}, v{vV2r}', f'ds_read_b64_tr_b16 {vr(LB + 2, 2)}, v{vV2q}',
             f'ds_read_u16_d16_hi v{ZR4}, v{vWo}',
             f's_lshl_b32 s{S_U0}, s{S_U0}, 10', f'v_add_u32 v{t3}, s{S_U0}, v{vStg}']
        for r in range(4):
            a_, b_ = LB + 4 + 2 * r, LB + 5 + 2 * r
            L += [f'v_cvt_f32_f16 v{a_}, v{LB + r}', f'v_cvt_f32_f16_sdwa v{b_}, v{LB + r} dst_sel:DWORD dst_unused:UNUSED_PAD src0_sel:WORD_1',
                  f'v_mul_f32 v{a_}, s{S_IV}, v{a_}', f'v_mul_f32 v{b_}, s{S_IV}, v{b_}']
            if r == 3:
                L += ['s_mov_b32 exec_lo, 0', 's_mov_b32 exec_hi, 0xffff', f'v_mov_b32 v{a_}, v{ZR4}', 's_mov_b64 exec, -1']
            L += [f'v_mul_f32 v{a_}, s{S_CG}, v{a_}', f'v_mul_f32 v{b_}, s{S_CG}, v{b_}', f'v_cvt_pk_bf16_f32 v{LB + r}, v{a_}, v{b_}']
        L += [f'ds_write_b128 v{t3}, {vr(LB, 4)} offset:{FRL}']
        lin = self.seq(L)
        p2 = self.seq(['L_p2:'] + p2a(1) + p2s(1) + p2a(0) + [f's_cmp_lt_u32 s{S_WAVE}, 2', 's_cbranch_scc1 L_p2d'])
        p2e = self.seq(p2s(0) + ['s_branch L_built'])
        p2d = self.seq(['L_p2d:', f'ds_write_b64 v{vT3d}, {vr(BALL + 12, 2)} offset:{FRS + 5 * 1024}'])

        L = ['L_sdown:']
        for r in range(8):
            L += [f'v_lshlrev_b32 v{MXR}, 16, v{AFR + r}', f'v_and_b32 v{MXR + 1}, 0xffff0000, v{AFR + r}',
                  f'v_mul_f32 v{MXR}, v{MXR}, v{vS}', f'v_mul_f32 v{MXR + 1}, v{MXR + 1}, v{vS}', f'v_cvt_pk_bf16_f32 v{AFR + r}, v{MXR}, v{MXR + 1}']
        self.sdown = L + ['s_branch L_scaled']

        HK = lambda n_, g_: hook[n_][0] + hook[n_][1 + g_] if n_ in hook else []

        def PRE(w, sd=None):
            grp = w >> 2
            return (c0 + (g1s + (g1t if w < 6 else []) if grp else []) + csc + (v3p + v3 if grp else G0(w)) + cc0 + (cx if grp else []) + cc + (b1q if w >= 5 else b1u)
                    + HK('hb', grp) + (u1a if sd is None else u1a[:-8] + sd) + u1 + (u2q if w >= 5 else u2u) + HK('hu', grp) + u3 + ([] if grp else ec) + b2
                    + (lin if w >= 6 else p2c) + p2 + (p2d if w < 2 else p2e))
        L = ['L_built:'] + self.stamp(11)
        L += [f's_mov_b32 s{S_CG}, s{S_F1}', f's_mov_b32 s{S_IV}, s{S_F2}', f's_mov_b32 s{S_LO}, {f32hex(0.125)}', f's_mov_b32 s{S_HI}, {f32hex(0.0 if o.slow else 128.0)}']
        CV, vM, S_XD = 28, 58, 81

        def ureads(j):
            return [f'ds_read_u16_d16_hi v{XR + 2 * j}, v{vXa} offset:{XOFF(2 * j)}',
                    f'ds_read_u16_d16_hi v{XR + 2 * j + 1}, v{vXa} offset:{XOFF(2 * j) + 2}']
        mx3 = lambda j: f'v_max3_f32 v{vM}, |v{XR + 2 * j}|, |v{XR + 2 * j + 1}|, {"0" if j == 0 else f"v{vM}"}'
        cvt = lambda j: f'v_cvt_pk_f16_f32 v{CV + j % 4}, v{XR + 2 * j}, v{XR + 2 * j + 1}'
        iwr = lambda j: f'ds_write_b32 v{vIw}, v{CV + j % 4} offset:{j * IMGP}'
        S_SKIP = 51
        pfr = lambda: (pfx_b() + pfx_a() if o.pfx else []) + (pfw() if o.pfw == 1 else [])
        conv = lambda tag='XB': ([WaitTag(vm_tags=[tag])] + [x for j in range(13) for x in ureads(j)]
                        + [x for j in range(13) for x in (mx3(j), f'v_cvt_pk_f16_f32 v{D + j}, v{XR + 2 * j}, v{XR + 2 * j + 1}')])
        L += [f's_mov_b32 s{S_SKIP}, 1', f's_mul_i32 s{S_U0}, s{S_WAVE}, 1536', f's_add_u32 s{S_U0}, s{S_U0}, {PART}',
              f's_cmp_lg_u32 s{S_GRP}, 0', 's_cbranch_scc1 L_g1c']
        c2a = self.seq(L)
        c2g0 = self.seq([f's_sub_u32 s{S_SAMP}, s{S_SAMP}, {4 * 104}', Touch('v[112:115]')] + (conv('XBa')[27:] if o.econv else conv('XBa')) + [WaitTag(lgkm0=True), 's_barrier'] + self.probe('b4a') + self.stamp(8) + ['s_branch L_cin_go'])
        DX = XB2 - XB - 4 * XBSZ
        L = ['L_g1c:', WaitTag(vm_tags=['XB'], lgkm0=True), 's_barrier'] + self.stamp(8) + self.probe('b4')
        L += [f's_add_u32 s{S_XM0}, s{S_XM0}, {DX}'] + xdma(tag='XB0') + xdma(112, 4 * XBSZ) + xidx() + pfr() + [f'v_add_u32 v{r}, {DX}, v{r}' for r in (vXa, vLin0, vLin1)]
        L += [f'ds_write_b32 v{vXa}, v{vXi1} offset:{XOFF(26)}', f'ds_write_b32 v{vXa}, v{vXi1} offset:{XOFF(26) + 4 * XBSZ}']
        c2g1 = self.seq(L)
        c2b = []
        c2g1d = self.seq(['L_g1d:'] + conv('XB0'))
        c2c = self.seq(['L_cin_go:'] + [f'ds_write_b32 v{vIw}, v{D + j} offset:{j * IMGP}' for j in range(13)]
                       + [f's_mov_b32 s{S_XD}, {4 * XBSZ}', f's_add_u32 s{S_XM0}, s{S_XM0}, {4 * XBSZ}',
                          f'v_lshlrev_b32 v{vXi1}, 2, v0', f'v_add_u32 v{vXi1}, s{S_U0}, v{vXi1}'])

        NWF = 5
        PF = o.cpfd
        zslot = lambda s_: 1 if s_ % 2 == 0 else (0 if ((s_ - 1) // 2) % 2 == 0 else 2)
        zr = lambda T, sl: Z + 12 * T + 4 * sl
        preg = lambda T, r: P + 14 * T + (r if r < 14 else r - 14)
        acc = lambda T, tile: D + 16 * T + 4 * tile
        jobs = [('l', 0, 0), ('l', 0, 1)]
        for s_ in range(11):
            jobs += [('d', s_, 2), ('d', s_, 0), ('d', s_, 1)]
            if s_ == 0:
                jobs.append(('d', 0, 3))
            elif s_ % 2 == 0:
                jobs.append(('s', s_, 3))
        NJ = len(jobs)
        assert NJ == 41

        def wread(n):
            kind, s_, tile = jobs[n]
            off = FRL + tile * 1024 if kind == 'l' else (FR + s_ * 3072 + tile * 1024 if tile < 3 else FRS + (5 if s_ == 0 else (s_ - 1) // 2) * 1024)
            return f'ds_read_b128 {vr(WF + 4 * (n % NWF), 4)}, v{vFa} offset:{off}'

        def mfma(n, T):
            kind, s_, tile = jobs[n]
            a = vr(WF + 4 * (n % NWF), 4)
            d = vr(acc(T, tile), 4)
            if kind == 'l':
                return f'v_mfma_f32_16x16x32_bf16 {d}, {a}, {vr(zr(T, 2), 4)}, 0'
            if kind == 's':
                lo = 0 if ((s_ - 1) // 2) % 2 == 0 else 1
                return f'v_smfmac_f32_16x16x64_f16 {d}, {a}, {vr(zr(T, lo), 8)}, v{vIDX}'
            return f'v_mfma_f32_16x16x32_f16 {d}, {a}, {vr(zr(T, zslot(s_)), 4)}, {"0" if (s_ == 0 and tile >= 2) else d}'

        def pk(T, n):
            a, b, s0, s1 = cin16.INS[n]
            return (f'v_pk_mul_f16 v{zr(T, zslot(n // 4)) + n % 4}, v{preg(T, a)}, v{preg(T, b)} '
                    f'op_sel:[{s0[0]},{s0[1]}] op_sel_hi:[{s1[0]},{s1[1]}]')

        def trp(T, rp):
            return f'ds_read_b64_tr_b16 {vr(preg(T, 2 * rp), 2)}, v{vTR + rp} offset:{32 * T}'

        LASTA = max(n for n, x in enumerate(cin16.INS) if x[0] < 2)
        S_A1, S_A2, S_PINC = 49, 50, 48
        fin = []
        for T in range(4):
            fin += [(acc(T, 0) + r, acc(T, 2) + r) for r in range(4)] + [(acc(T, 1), acc(T, 1) + 3)]
        for T in range(4):
            fin += [(acc(T, 1) + 1 + (r >> 1), acc(T, 3) + r) for r in range(4)]

        def final(f1, f2):
            c = []
            for k, (a, b) in enumerate(fin):
                d = Z + k % 4
                c.append(f'v_mul_f32 v{d}, v{a}, v{b}' if k < 4 else f'v_fmac_f32 v{d}, v{a}, v{b}')
            c += [f'v_add_f32 v{Z}, v{Z}, v{Z + 1}', f'v_add_f32 v{Z + 2}, v{Z + 2}, v{Z + 3}', f'v_add_f32 v{Z}, v{Z}, v{Z + 2}']
            c += [f'v_mul_f32 v{Z}, s{x}, v{Z}' for x in (f1, f2)]
            return c + [f'ds_write_b32 v{vXi1}, v{Z}']
        code = ['L_cin_loop:', f'v_cmp_le_f32 s[{S_CM}:{S_CM + 1}], s{S_HI}, v{vM}', f'v_cmp_le_f32 vcc, s{S_LO}, v{vM}',
                f's_mov_b32 s{S_A1}, s{S_F1}', f's_mov_b32 s{S_A2}, s{S_F2}',
                f's_cmp_lg_u64 s[{S_CM}:{S_CM + 1}], 0', 's_cbranch_scc1 L_cslow', 's_cbranch_vccz L_cslow']
        cA = self.seq(code)
        RD = []
        for rp in (0, 3, 4):
            RD += [trp(T, rp) for T in range(4)]
        for T in range(4):
            RD += [f'ds_read_b64_tr_b16 {vr(zr(T, 2), 2)}, v{vLin0} offset:{32 * T}', f'ds_read_b64_tr_b16 {vr(zr(T, 2) + 2, 2)}, v{vLin1} offset:{32 * T}']
        RD += [wread(k) for k in range(PF)]
        for rp in (5, 6, 1, 2):
            RD += [trp(T, rp) for T in range(4)]
        pfr = lambda: (pfx_b() + pfx_a() if o.pfx else []) + (pfw() if o.pfw == 1 else [])
        vm = xdma() + xidx() + pfr()
        VA = final(S_A1, S_A2) + [f'v_add_u32 v{vXi1}, 256, v{vXi1}']
        PK0 = [pk(T, n) for T in range(4) for n in range(4)]
        TG = [f'v_add_u32 v{r}, s{S_XD}, v{r}' for r in (vXa, vLin0, vLin1)] + [f's_sub_u32 s{S_XM0}, s{S_XM0}, s{S_XD}', f's_sub_u32 s{S_XD}, 0, s{S_XD}', f's_mov_b32 s{S_SKIP}, 0']
        cB0 = self.seq(['L_cconv:', f's_cmp_lg_u32 s{S_SKIP}, 0', 's_cbranch_scc1 L_first'])
        cVM = self.seq(interleave(RD, VA) + PK0 + vm)
        self.first = ['L_first:'] + RD[:28] + interleave(RD[28:], PK0) + ['s_branch L_novm']
        code = ['L_novm:'] + TG
        LA = 1
        def lstamp(base):
            if not (o.stamps and o.cst):
                return []
            return [f's_memtime s[{S_ST}:{S_ST + 1}]', f's_memrealtime s[{S_ST + 2}:{S_ST + 3}]', f's_sub_u32 s{S_C0}, {base + 6}, s{S_LOOP}', 's_waitcnt lgkmcnt(0)',
                    f's_mov_b32 m0, s{S_C0}', f'v_writelane_b32 v252, s{S_ST}, m0', f'v_writelane_b32 v253, s{S_ST + 2}, m0']
        code += lstamp(19)
        code += [Touch(vr(WF, 4)), Touch(vr(zr(3, 2), 4))] + ([f's_cmp_eq_u32 s{S_GRP}, 0', 's_cbranch_scc1 L_np1', 's_setprio 1', 'L_np1:'] if o.gprio else ['s_setprio 1'])
        MS = []
        for n in range(NJ):
            pos = [i_ for i_ in range(n + 1) if jobs[i_][1] == jobs[n][1] and (jobs[i_][0] == 'l') == (jobs[n][0] == 'l')].index(n)
            last = jobs[n][2] == 3 or (n + 1 < NJ and jobs[n + 1][1] != jobs[n][1])
            MS += [(n, 3 - T if (o.csn and pos == 1) else T) for T in range(4)]
        first_use, last_use = {}, {}
        for mi, (n, T) in enumerate(MS):
            kind, s_, tile = jobs[n]
            if kind == 'l':
                last_use[(T, 'lin')] = mi
                continue
            for su in ([s_] if kind == 'd' else [s_ - 1, s_]):
                first_use.setdefault((T, su), mi)
                last_use[(T, su)] = mi
        V = []
        for s_ in range(LA, 11):
            prev = [p_ for p_ in range(s_) if zslot(p_) == zslot(s_)]
            for T in range(4):
                rdy = last_use[(T, prev[-1])] + o.war if prev else (last_use[(T, 'lin')] if zslot(s_) == 2 else -1)
                for n in range(4 * s_, 4 * s_ + 4):
                    V.append((pk(T, n), rdy, first_use[(T, s_)], n, T))
        forced = 0
        late = []
        XL_ = [x for j in range(13) for x in ureads(j)]
        xrd = {}
        CVR = [preg(T, r) for r in (2, 3, 6, 7) for T in range(4)]
        cvrdy = max(n for n, x in enumerate(cin16.INS) if set(x[:2]) & {2, 3, 6, 7})
        cvt2 = lambda j: f'v_cvt_pk_f16_f32 v{CVR[j]}, v{XR + 2 * j}, v{XR + 2 * j + 1}'
        iwr2 = lambda j: f'ds_write_b32 v{vIw}, v{CVR[j]} offset:{j * IMGP}'
        nm = nc = nw = 0
        V.sort(key=lambda x: x[2])
        prev2 = 0
        for mi, (n, T) in enumerate(MS):
            while V and V[0][2] <= mi:
                assert V[0][1] < mi
                code.append(V.pop(0)[0]); forced += 1
            code.append(mfma(n, T))
            T = mi % 4
            t = 4
            if o.cbar and mi == len(MS) - 1 - o.cbov:
                code += ['s_setprio 3', 's_barrier']; t += 8
            if not o.cbar and mi == 4 * o.hiat - 2:
                code.append('s_setprio 2'); t += 4
            if T == 3 and n + 1 < NJ:
                code.append(Touch(vr(WF + 4 * ((n + 1) % NWF), 4))); t += 4
            if T == 0 and n + PF < NJ:
                code.append(wread(n + PF)); t += 8
            elif T in (1, 2) and late:
                code.append(late.pop(0)); t += 8
            elif T in (1, 2) and mi >= o.x0 and XL_:
                if len(XL_) == 26:
                    code.append(WaitTag(vm_tags=['XB']))
                code.append(XL_.pop(0)); t += 8
                if len(XL_) % 2 == 0:
                    xrd[12 - len(XL_) // 2] = mi
            elif not V and nw < nc and t == 4:
                code.append(iwr2(nw)); nw += 1; t += 12
            t = max(t, 12 if jobs[n][0] == 's' else 8)
            k = 0
            while t < 16:
                urgent = any(V[q_][2] - 1 - mi < q_ + 1 for q_ in range(min(24, len(V))))
                if k == 1 and prev2 >= o.max2 and not urgent:
                    break
                cand = [x for x in V[:32] if x[1] <= mi]
                extra = None
                if nm < 13 and nm in xrd and xrd[nm] + o.xlat <= mi:
                    extra = 'm'
                elif nc < nm and all(x[3] > cvrdy for x in V):
                    extra = 'c'
                if cand and (k == 0 or urgent or not extra) and (k == 0 or urgent or o.eager):
                    x = cand[0]
                    V.remove(x)
                    code.append(x[0])
                    if x[3] <= LASTA and all(y[3] > LASTA for y in V if y[4] == x[4]):
                        late.append(trp(x[4], 7))
                elif extra == 'm':
                    code.append(mx3(nm)); nm += 1
                elif extra == 'c':
                    code.append(cvt2(nc)); nc += 1
                else:
                    break
                t += 4; k += 1
            prev2 = prev2 + 1 if k == 2 else 0
        assert not late and not XL_ and not V
        print('left', 13 - nm, 13 - nc, 13 - nw)
        tail = [mx3(j) for j in range(nm, 13)] + [cvt2(j) for j in range(nc, 13)] + [iwr2(j) for j in range(nw, 13)]
        print('forced VALU', forced)
        code += lstamp(25)
        code.append(f's_setprio {o.p0}')
        code += [f's_sub_u32 s{S_LOOP}, s{S_LOOP}, 1', f's_cmp_eq_u32 s{S_LOOP}, 0', 's_cbranch_scc1 L_cin_done'] + tail
        ntail = len(tail) + 1
        def keep(x):
            t_ = x.text if isinstance(x, I) else x
            if isinstance(t_, tuple):
                return True
            if 'nopk' in o.dbg and t_.startswith('v_pk_mul_f16'):
                return False
            if 'nowf' in o.dbg and t_.startswith('ds_read_b128'):
                return False
            if 'nosm' in o.dbg and t_.startswith('v_smfmac'):
                return False
            return True
        code = [x for x in code if keep(x)]
        if 'bf' in o.dbg:
            code = [x.replace('x32_f16', 'x32_bf16').replace('x64_f16', 'x64_bf16') if isinstance(x, str) else x for x in code]
        cB = self.seq(code + ['s_branch L_cin_loop'])
        mark0 = len(self.P.static)
        bl = []
        if o.burn:
            bl = [f's_movk_i32 s{S_LOOP}, {o.burn // 2}', 'L_burn2:'] + [f'v_mfma_f32_16x16x32_f16 {vr(P + 4 * (k % 2), 4)}, {vr(WF + 4 * (k % 4), 4)}, {vr(Z + 4 * (k // 4), 4)}, 0' for k in range(32)]
            bl += [f's_sub_u32 s{S_LOOP}, s{S_LOOP}, 1', f's_cmp_lg_u32 s{S_LOOP}, 0', 's_cbranch_scc1 L_burn2']
        L = ['L_cin_done:', f's_mul_i32 s{S_U0}, s{S_WAVE}, 1536', f's_add_u32 s{S_U0}, s{S_U0}, {PART}',
             f'v_lshlrev_b32 v{Z + 4}, 5, v0', f'v_add_u32 v{Z + 4}, s{S_U0}, v{Z + 4}',
             f'ds_read_b128 {vr(P, 4)}, v{Z + 4}', f'ds_read_b128 {vr(P + 4, 4)}, v{Z + 4} offset:16'] + bl + final(S_F1, S_F2)[:-1]
        E = [f'v_subrev_u32 v{Z + 6}, s{S_U0}, v{vXi1}', f'v_lshrrev_b32 v{Z + 6}, 8, v{Z + 6}', f'v_lshrrev_b32 v{Z + 5}, 3, v0', f'v_cmp_gt_u32 vcc, v{Z + 6}, v{Z + 5}',
             f'v_min_u32 v{Z + 5}, v{Z + 5}, v{Z + 6}', f'v_lshlrev_b32 v{Z + 5}, 4, v{Z + 5}', f'v_add_u32 v{Z + 5}, s{S_RC}, v{Z + 5}',
             ] + [f'v_add_f32 v{P + a_}, v{P + a_}, v{P + b_}' for a_, b_ in ((0, 1), (2, 3), (4, 5), (6, 7), (0, 2), (4, 6), (0, 4))]
        E += [f'v_add_f32_dpp v{P}, v{P}, v{P} {ctl} row_mask:0xf bank_mask:0xf' for ctl in ('quad_perm:[1,0,3,2]', 'quad_perm:[2,3,0,1]', 'row_half_mirror')]
        L += interleave([f'v_add_f32_dpp v{Z}, v{Z}, v{Z} {ctl} row_mask:{rm} bank_mask:0xf' for ctl, rm in DPPS], E)
        L += [f'v_cndmask_b32 v{P}, v{Z}, v{P}, vcc', 's_bitset1_b32 vcc_hi, 31', 's_mov_b64 exec, vcc', f'ds_write_b32 v{Z + 5}, v{P}', 's_mov_b64 exec, -1']
        L += self.stamp(9) + self.stamp_flush() + self.probe('cend') + [f's_cmp_eq_u32 s{S_WAVE}, 0', 's_cbranch_scc1 L_cpub', 's_waitcnt lgkmcnt(0)', 's_barrier', 's_endpgm',
              'L_cpub:', f's_load_dword s{S_BOUT}, s[{S_BO}:{S_BO + 1}], 0'] + self.pubsrd() + [
              'v_lshlrev_b32 v6, 2, v0', f'v_add_u32 v2, {RC}, v6', 'v_add_u32 v4, 1024, v6',
              f's_mul_i32 s{S_T1}, s{S_MB}, 192', f's_add_u32 s{S_T1}, s{S_T1}, {13 * WSP}',
              'v_mov_b32 v13, -1', 's_mov_b32 exec_hi, 0xffff', f'buffer_store_dword v13, v6, {srd(SRD_WS)}, s{S_T1} offen sc1', 's_mov_b64 exec, 1',
              f'buffer_load_dword v250, v6, {srd(SRD_OUT)}, 0 offen', f'buffer_load_dword v251, v6, {srd(SRD_DBG)}, 0 offen offset:240 sc1', 's_mov_b64 exec, -1',
              f's_mul_i32 s{S_T0}, s{S_MB}, 3', f's_mul_i32 s{S_T2}, s{S_T0}, 3277', f's_lshr_b32 s{S_T2}, s{S_T2}, 16',
              f'v_add_u32 v7, s{S_T2}, v0', f's_mul_i32 s{S_T2}, s{S_T2}, 20', f's_add_u32 s{S_T2}, s{S_T2}, 20',
              f's_sub_u32 s{S_T2}, s{S_T2}, s{S_T0}', f's_min_u32 s{S_T2}, s{S_T2}, 3', f's_sub_u32 s{S_T0}, 3, s{S_T2}',
              f'v_mov_b32 v5, s{S_T0}', f'v_writelane_b32 v5, s{S_T2}, 0',
              f's_cmp_eq_u32 s{S_T0}, 0', f's_cselect_b32 s{S_T0}, 1, 3',
              'v_lshlrev_b32 v3, 4, v0'] + (['s_mov_b64 exec, 0', 's_branch L_pw0', 'L_pwc:'] if o.pwalk else []) + ['s_mov_b32 exec_hi, 0xffff', 's_waitcnt vmcnt(0) lgkmcnt(0)', 's_barrier'] + self.probe('cend2') + ['ds_read_b32 v64, v2']
        L += (self.stamp(16) if o.diag else [])
        L += ['v_min_u32 v64, -2, v64'] if o.sent else []
        L += [f'buffer_store_dword v64, v6, {srd(SRD_WS)}, s{S_T1} offen sc1', f's_mov_b32 exec_lo, s{S_T0}', 's_mov_b32 exec_hi, 0', 's_branch L_pub']
        fin_ = self.seq(L)
        blk = self.P.static[mark0:]
        del self.P.static[mark0:]
        at = self.P.static.index(self.pub[-1]) + 1
        self.P.static[at:at] = blk + self.ldblk
        L = ['L_cslow:']
        for (ctl, rm) in (('row_shr:1', '0xf'), ('row_shr:2', '0xf'), ('row_shr:4', '0xf'), ('row_shr:8', '0xf'),
                          ('row_bcast:15', '0xa'), ('row_bcast:31', '0xc')):
            L.append(f'v_max_f32_dpp v{vM}, v{vM}, v{vM} {ctl} row_mask:{rm} bank_mask:0xf')
        L += [f'v_readlane_b32 s{S_U0}, v{vM}, 63', f's_mov_b32 s{S_HI}, 0',
              f's_lshr_b32 s{S_U0}, s{S_U0}, 23', f's_min_u32 s{S_U0}, s{S_U0}, {127 + 55}',
              f's_lshr_b32 s{S_U1}, s{S_IV}, 23', f's_sub_u32 s{S_U1}, s{S_U1}, 47', f's_lshr_b32 s{S_U1}, s{S_U1}, 1', f's_min_u32 s{S_U1}, s{S_U1}, 59',
              f's_sub_u32 s{S_U1}, 131, s{S_U1}', f's_max_u32 s{S_U0}, s{S_U0}, s{S_U1}',
              f's_sub_u32 s{S_U1}, {127 + 4 + 127}, s{S_U0}',
              f's_lshl_b32 s{S_U2}, s{S_U1}, 1', f's_sub_u32 s{S_U2}, s{S_U2}, 127',
              f's_sub_u32 s{S_G}, 254, s{S_U2}', f's_lshl_b32 s{S_G}, s{S_G}, 23',
              f'v_mov_b32 v{P}, s{S_G}', f'v_mul_f32 v{P + 1}, s{S_CG}, v{P}', f'v_mul_f32 v{P}, s{S_IV}, v{P}',
              f'v_readfirstlane_b32 s{S_F1}, v{P + 1}', f'v_readfirstlane_b32 s{S_F2}, v{P}',
              f's_lshl_b32 s{S_U1}, s{S_U1}, 23', f's_lshl_b32 s{S_U2}, s{S_U2}, 23']
        TS = P
        for j in range(13):
            L += [f'v_mul_f32 v{TS}, s{S_U1}, v{XR + 2 * j}', f'v_mul_f32 v{TS + 1}, s{S_U1}, v{XR + 2 * j + 1}',
                  f'v_mul_f32 v{TS + 2}, s{S_U2}, v{XR + 2 * j}', f'v_mul_f32 v{TS + 3}, s{S_U2}, v{XR + 2 * j + 1}',
                  f'v_cvt_pk_f16_f32 v{TS + 20 + j}, v{TS}, v{TS + 1}', f'v_cvt_pk_bf16_f32 v{TS + 4 + j}, v{TS + 2}, v{TS + 3}',
                  f'ds_write_b32 v{vIw}, v{TS + 20 + j} offset:{j * IMGP}', f'ds_write_b32 v{vXa}, v{TS + 4 + j} offset:{XOFF(2 * j)}']
        L += [f'v_mov_b32 v{TS}, s{S_U2}', f'v_cvt_pk_bf16_f32 v{TS}, v{TS}, v{TS}',
              's_mov_b32 exec_hi, 0', f'ds_write_b32 v{vXa}, v{TS} offset:{XOFF(26)}', 's_mov_b32 exec_hi, -1',
              's_waitcnt lgkmcnt(0)', 's_branch L_cconv']
        slow = self.seq(L)
        sdown = self.seq(self.sdown)
        cF = self.seq(self.first)
        traces = []
        for w in range(8):
            grp = w >> 2
            c2 = c2a + (c2g1 + (c2b if w == 4 else []) + c2g1d if grp else c2g0) + c2c
            it = lambda sl, first: cA + (slow if sl else []) + cB0 + (cF if first else cVM) + cB
            traces.append(PRE(w) + c2 + it(0, 1) + it(0, 0) + it(0, 0)[:-ntail] + fin_ + self.pub)
            if w in (0, 4):
                traces.append(PRE(w, sdown) + c2 + it(1, 1) + it(1, 0)[:-ntail] + fin_ + self.pub)
        return traces

    def build(self):
        pro = self.prologue()
        d = self.dnn()
        cs = self.cin()
        self.seq(['L_end:', 's_endpgm'])
        traces = [pro + c for c in d + cs] + self.extra_traces
        for t in traces:
            resolve_waits(t)
        for _ in range(2):
            for t in traces:
                resolve_hazards(t)
        hdr = open(os.path.join(os.path.dirname(os.path.abspath(__file__)), 'header.txt')).read()
        txt = hdr + f'; @launch grid=(256,1,1) block=(512,1,1) lds={LDS_TOTAL}\n'
        txt += f'''.amdgcn_target "amdgcn-amd-amdhsa--gfx950"
{DOC}.text
.globl {KNAME}
.p2align 8
.type {KNAME},@function
{KNAME}:
'''
        body_ = self.P.emit()
        if self.opt.align:
            for lab in ('L_dnn_loop0:', 'L_dnn_loop1:', 'L_cin_loop:', 'L_epi:'):
                pad = '  s_nop 0\n' if self.opt.align > 100 else ''
                body_ = body_.replace(lab + '\n', f'.p2align {self.opt.align % 100}\n{pad}{lab}\n')
        if self.opt.cwalk:
            lines = body_.split('\n')
            i0, i1 = lines.index('L_w2:'), lines.index('L_cslow:')
            out, k, cnt = lines[:i0], 0, 0
            seg = lines[i0:i1]
            prot = 0
            for n_, l in enumerate(seg):
                out.append(l)
                t = l.strip()
                cnt += 1
                inmain = 'L_novm:' in seg[:n_ + 1]
                nxt = seg[n_ + 1].strip() if n_ + 1 < len(seg) else ''
                ok = t.endswith(':') or (cnt >= self.opt.cwalk and ('mfma' in t and nxt.startswith('v_pk') if inmain else t.startswith(('ds_', 'v_perm', 'v_cvt_pk'))))
                if ok and t not in ('L_cin_loop:', 'L_cconv:', 'L_scaled:'):
                    out += [f'L_wp{k}:', f'  s_cbranch_execz L_wp{k + 1}']
                    k += 1; cnt = 0
            j = lines.index('L_first:')
            rest = lines[i1:j + 1] + [f'L_wp{k}:', '  s_cbranch_execz L_wret'] + lines[j + 1:]
            body_ = '\n'.join(out + rest)
            print('walk pads', k + 1)
            self.npads = k + 1
            for q_ in range(4):
                body_ = body_.replace(f'L_WENTRY{q_}', f'L_wp{q_ * (k + 1) // 4}')
        if self.opt.pwalk:
            lines = body_.split('\n')
            i0, i1 = lines.index('L_pub:'), lines.index('L_ok:')
            out, k, cnt = lines[:i0 + 1] + ['L_pw0:', '  s_cbranch_execz L_pw1'], 1, 0
            for l in lines[i0 + 1:i1 + 1]:
                out.append(l)
                cnt += 1
                if (cnt >= self.opt.pwalk and l.strip().startswith(('s_add_u32', 'v_add_f32'))) or l == 'L_ok:':
                    out += [f'L_pw{k}:', f'  s_cbranch_execz L_pw{k + 1}' if l != 'L_ok:' else '  s_cbranch_execz L_pwr']
                    k += 1; cnt = 0
            body_ = '\n'.join(out + lines[i1 + 1:])
            print('pub pads', k)
        if self.opt.fix:
            body_ = fixalign.fix(body_ + 'L_tables:\n', self.opt.fix)[:-len('L_tables:\n')]
        txt += body_
        tb = self.tables()
        assert len(tb) == 16 * 256
        txt += '.p2align 8\nL_tables:\n' + ''.join('.long ' + ', '.join(f'{x:#x}' for x in tb[i:i + 8]) + '\n' for i in range(0, len(tb), 8))
        txt += f'''.section .rodata,"a"
.p2align 6
.amdhsa_kernel {KNAME}
  .amdhsa_next_free_vgpr 256
  .amdhsa_next_free_sgpr 102
  .amdhsa_accum_offset 256
  .amdhsa_group_segment_fixed_size 0
  .amdhsa_kernarg_size 88
  .amdhsa_user_sgpr_count 2
  .amdhsa_user_sgpr_kernarg_segment_ptr 1
  .amdhsa_system_sgpr_workgroup_id_x 1
  .amdhsa_float_denorm_mode_32 {self.opt.denorm}
.end_amdhsa_kernel
'''
        return txt


def main():
    ap = argparse.ArgumentParser()
    ap.add_argument('-o', default='standalone__deep_cross_xdeepfm__recsys.s')
    ap.add_argument('--stamps', action='store_true')
    ap.add_argument('--nodma', action='store_true')
    ap.add_argument('--cpf', type=int, default=1)
    ap.add_argument('--coop', type=int, default=2)
    ap.add_argument('--coopw', type=int, default=2)
    ap.add_argument('--tbpos', type=int, default=0)
    ap.add_argument('--dbar3', type=int, default=1)
    ap.add_argument('--tlb', type=int, default=0)
    ap.add_argument('--tlb2', type=int, default=1)
    ap.add_argument('--itst', type=int, default=0)
    ap.add_argument('--diag', type=int, default=0)
    ap.add_argument('--dbg', default='')
    ap.add_argument('--lead3', type=int, default=1)
    ap.add_argument('--morder', type=int, default=0)
    ap.add_argument('--etlb', type=int, default=0)
    ap.add_argument('--lateb', type=int, default=0)
    ap.add_argument('--wfl', default='')
    ap.add_argument('--xfl', default='')
    ap.add_argument('--tag', type=int, default=0)
    ap.add_argument('--idxfirst', type=int, default=1)
    ap.add_argument('--bpos', type=int, default=2)
    ap.add_argument('--sigat', type=int, default=4)
    ap.add_argument('--epx', type=int, default=1)
    ap.add_argument('--denorm', type=int, default=3)
    ap.add_argument('--mprio', type=int, default=0)
    ap.add_argument('--swap', type=int, default=0)
    ap.add_argument('--bov', type=int, default=1)
    ap.add_argument('--rfirst', type=int, default=0)
    ap.add_argument('--g1x', type=int, default=0)
    ap.add_argument('--ldsred', type=int, default=0)
    ap.add_argument('--csnake', type=int, default=0)
    ap.add_argument('--cswap', type=int, default=0)
    ap.add_argument('--align', type=int, default=0)
    ap.add_argument('--c2', type=int, default=0)
    ap.add_argument('--d1', type=int, default=0)
    ap.add_argument('--cstr', type=int, default=3)
    ap.add_argument('--bearly', type=int, default=1)
    ap.add_argument('--w2late', type=int, default=1)
    ap.add_argument('--aov', type=int, default=5)
    ap.add_argument('--upos', type=int, default=1)
    ap.add_argument('--calt', type=int, default=1)
    ap.add_argument('--pfpos', type=int, default=1)
    ap.add_argument('--wlate', type=int, default=0)
    ap.add_argument('--dbar2', type=int, default=0)
    ap.add_argument('--dbar', type=int, default=0)
    ap.add_argument('--pfw', type=int, default=0)
    ap.add_argument('--pfx', type=int, default=0)
    ap.add_argument('--pfx0', type=int, default=4)
    ap.add_argument('--pfs', type=int, default=1)
    ap.add_argument('--dcoopx', type=int, default=1)
    ap.add_argument('--dcx0', type=int, default=0)
    ap.add_argument('--dcxpos', type=int, default=-1)
    ap.add_argument('--pfe0', type=int, default=2)
    ap.add_argument('--pfne', type=int, default=13)
    ap.add_argument('--prio47', type=int, default=0)
    ap.add_argument('--lookahead', type=int, default=5)
    ap.add_argument('--nz', type=int, default=6)
    ap.add_argument('--nwf', type=int, default=8)
    ap.add_argument('--hiat', type=int, default=8)
    ap.add_argument('--wmerge', type=int, default=0)
    ap.add_argument('--gapv', type=int, default=6)
    ap.add_argument('--slow', type=int, default=0)
    ap.add_argument('--csn', type=int, default=1)
    ap.add_argument('--pwalk', type=int, default=0)
    ap.add_argument('--wsc', type=int, default=0)
    ap.add_argument('--tailp', type=int, default=0)
    ap.add_argument('--hx', type=int, default=4)
    ap.add_argument('--hx0', type=int, default=4)
    ap.add_argument('--hxat', type=int, default=1)
    ap.add_argument('--hw', type=int, default=0)
    ap.add_argument('--hw0', type=int, default=2)
    ap.add_argument('--hwat', type=int, default=0)
    ap.add_argument('--tgap', type=int, default=40)
    ap.add_argument('--tmask', type=int, default=0x15)
    ap.add_argument('--st', type=int, default=0)
    ap.add_argument('--sf0', type=int, default=2)
    ap.add_argument('--dbar0', type=int, default=2)
    ap.add_argument('--ptl', type=int, default=0)
    ap.add_argument('--ct2', default='')
    ap.add_argument('--ewat', type=int, default=0)
    ap.add_argument('--gprio', type=int, default=1)
    ap.add_argument('--g1t', type=int, default=1)
    ap.add_argument('--tf0', type=int, default=8)
    ap.add_argument('--twoff', type=int, default=0)
    ap.add_argument('--ew', type=int, default=4)
    ap.add_argument('--ew0', type=int, default=2)
    ap.add_argument('--cyc', default='')
    ap.add_argument('--rshare', type=int, default=1)
    ap.add_argument('--dwalk', type=int, default=0)
    ap.add_argument('--band', type=int, default=0)
    ap.add_argument('--absol', type=int, default=0)
    ap.add_argument('--rev', type=int, default=1)
    ap.add_argument('--xg1', type=int, default=0)
    ap.add_argument('--bou', type=int, default=1)
    ap.add_argument('--sjw', type=int, default=7)
    ap.add_argument('--cwalk', type=int, default=0)
    ap.add_argument('--few', default='')
    ap.add_argument('--econv', type=int, default=0)
    ap.add_argument('--nsh', type=int, default=16)
    ap.add_argument('--sh0', type=int, default=5)
    ap.add_argument('--dirt', type=int, default=0)
    ap.add_argument('--mrg', type=int, default=0)
    ap.add_argument('--g1p', type=int, default=0)
    ap.add_argument('--sa', type=int, default=4)
    ap.add_argument('--sbg', type=int, default=16)
    ap.add_argument('--bwat', type=int, default=0)
    ap.add_argument('--x2n', type=int, default=8)
    ap.add_argument('--sent', type=int, default=1)
    ap.add_argument('--spec', type=int, default=0)
    ap.add_argument('--probe', default='')
    ap.add_argument('--skew', type=int, default=0)
    ap.add_argument('--fix', type=int, default=64)
    ap.add_argument('--walk', type=int, default=0)
    ap.add_argument('--eal', type=int, default=3)
    ap.add_argument('--eoff', type=int, default=0)
    ap.add_argument('--ct', default='02')
    ap.add_argument('--rot', type=int, default=13)
    ap.add_argument('--i0', type=int, default=1)
    ap.add_argument('--i1', type=int, default=10)
    ap.add_argument('--burn', type=int, default=0)
    ap.add_argument('--lord', type=int, default=1)
    ap.add_argument('--lprio', type=int, default=0)
    ap.add_argument('--rsp', type=int, default=0)
    ap.add_argument('--tch', type=int, default=1)
    ap.add_argument('--tf', type=int, default=4)
    ap.add_argument('--toff', type=int, default=2)
    ap.add_argument('--tw0', type=int, default=8)
    ap.add_argument('--xat', type=int, default=4)
    ap.add_argument('--pf1', type=int, default=1)
    ap.add_argument('--lpf', type=int, default=20)
    ap.add_argument('--lpfit', type=int, default=6)
    ap.add_argument('--x1m', type=int, default=10)
    ap.add_argument('--bgap', type=int, default=6)
    ap.add_argument('--cprio', type=int, default=1)
    ap.add_argument('--x1n', type=int, default=5)
    ap.add_argument('--w0', type=int, default=2)
    ap.add_argument('--dbar1', type=int, default=1)
    ap.add_argument('--aon', type=int, default=2)
    ap.add_argument('--cbar', type=int, default=0)
    ap.add_argument('--vmpos', type=int, default=2)
    ap.add_argument('--il2', type=int, default=0)
    ap.add_argument('--p1', type=int, default=0)
    ap.add_argument('--pm', type=int, default=2)
    ap.add_argument('--cbov', type=int, default=3)
    ap.add_argument('--p0', type=int, default=0)
    ap.add_argument('--max2', type=int, default=2)
    ap.add_argument('--eager', type=int, default=0)
    ap.add_argument('--cst', type=int, default=0)
    ap.add_argument('--x0', type=int, default=60)
    ap.add_argument('--xlat', type=int, default=18)
    ap.add_argument('--xper', type=int, default=3)
    ap.add_argument('--xc0', type=int, default=0)
    ap.add_argument('--n3', type=int, default=1)
    ap.add_argument('--xi0', type=int, default=1)
    ap.add_argument('--pfsat', type=int, default=0)
    ap.add_argument('--g1prio', type=int, default=0)
    ap.add_argument('--xearly', type=int, default=1)
    ap.add_argument('--cpfd', type=int, default=4)
    ap.add_argument('--cla', type=int, default=1)
    ap.add_argument('--war', type=int, default=1)
    opt = ap.parse_args()
    resolve_waits.dbg = 'dup' in opt.dbg
    g = Gen(opt)
    txt = g.build()
    open(opt.o, 'w').write(txt)
    print('wrote', opt.o, len(txt), 'bytes')


if __name__ == '__main__':
    main()
```

```python
import sys, os, struct, argparse
sys.path.insert(0, os.path.dirname(os.path.abspath(__file__)))
from asmlib import I, WaitTag, Touch, Prog, resolve_waits, resolve_hazards
import cin16, fixalign

KNAME = 'standalone__deep_cross_xdeepfm__recsys_kernel'
LDS_TOTAL = 163840

XSLOT = 320 * 128
WR = 3 * XSLOT + 8192
WSLOT = 32 * 256
L_BIAS = 3 * XSLOT
L_W2 = L_BIAS + 256
RB = L_W2 + 256
assert WR % 32768 == 0 and WR + 4 * WSLOT <= LDS_TOTAL
WSP = 16640
assert RB + 2560 <= LDS_TOTAL

W2P = 1536
SSZ = 677 * 64
FRS = 0
V3OFF = 0
A1 = 6144
FR = A1
FRL = FR + 33 * 1024
A3 = FRL + 2048
SG = A3
A2 = SG + SSZ
SQ = A2
V2S = SQ + SSZ
L_WCO = V2S + 832
L_FLG = L_WCO + 192
L_MX = L_FLG + 16
RC = L_FLG + 64
XB = V2S + 2496
XPP = 1056
XBSZ = 3 * XPP + 7 * 128
IMG = A3
IMGP = 160
IMGSZ = 33 * IMGP
XB2 = IMG + 8 * IMGSZ
PART = XB2 + 8 * XBSZ
XOFF = lambda f: (f & 3) * XPP + (f >> 2) * 128
assert RC + 512 <= V2S + 1664
assert XB + 8 * XBSZ <= LDS_TOTAL and XB % 16 == 0 and A2 % 64 == 0 and A3 % 64 == 0 and L_WCO % 16 == 0 and V2S % 64 == 0
assert PART + 8 * 1536 <= V2S + 832 and IMGSZ % 32 == 0 and XB2 % 16 == 0

S_WAVE = 3
S_IDX, S_TAB, S_CIN, S_WCO, S_W1, S_B1, S_W2, S_BO, S_OUT, S_DBG, S_WS = 4, 6, 8, 10, 12, 14, 16, 18, 20, 22, 24
S_MB, S_R = 26, 27
SRD_IDX, SRD_TAB, SRD_CIN, SRD_WCO, SRD_W, SRD_B1, SRD_W2, SRD_OUT, SRD_WS, SRD_DBG = 28, 32, 36, 40, 44, 48, 52, 56, 60, 64
S_T0, S_T1, S_T2, S_T3 = 68, 69, 70, 71
S_LOOP, S_IDXOFF, S_WSOFF, S_WMB, S_XM0, S_N0, S_C0, S_CW, S_BOUT, S_TW = 72, 73, 74, 75, 76, 77, 78, 79, 80, 81
S_EX = 82
S_GRP, S_RC = 84, 85
S_ST = 86
S_M26, S_MASK = 90, 92
S_SAMP, S_STG, S_STG9, S_TGT = 94, 95, 96, 97
S_M26B = 98
S_GW = 100
S_TAGT = 0
S_TAG = 1
S_PW = 101
S_PX = 77
S_PXE = 73

GELU_C0 = -2.0 * 0.7978845608028654 * 1.4426950408889634
GELU_C1 = GELU_C0 * 0.044715


def f32hex(x):
    return '0x%08x' % struct.unpack('<I', struct.pack('<f', x))[0]


def vr(a, n):
    return f'v[{a}:{a + n - 1}]' if n > 1 else f'v{a}'


def srd(a):
    return f's[{a}:{a + 3}]'


def flat(gs):
    res = []
    for c in gs:
        if isinstance(c, (tuple, list)):
            res += flat(c)
        else:
            res.append(c)
    return res


def interleave(a, b):
    out = []
    ia = ib = 0
    na, nb = len(a), len(b)
    while ia < na or ib < nb:
        if ib >= nb or (ia < na and ia * nb <= ib * na):
            out.append(a[ia]); ia += 1
        else:
            out.append(b[ib]); ib += 1
    return out


SLOTS = []
for j in range(0, 26, 2):
    for s in range(0, 14 if j <= 12 else 13):
        SLOTS.append((j, (j + s) % 26))
assert len(SLOTS) == 176
DUP_SLOT = SLOTS.index((12, 25))
assert all((d * 2521) >> 16 == d // 26 for d in range(800))
assert all((d * 10923) >> 16 == d // 6 for d in range(64))
assert all((d * 5042) >> 16 == d // 13 for d in range(170))
assert all((d * 3277) >> 16 == d // 20 for d in range(264))


DOC = '''; ---------------------------------------------------------------------------------------------
; Generated by tools/gen24.py (own generator; waits / hazard nops derived from instruction traces).
;
;       U[i,j,k] = sum_h W2[h,i,j] V3[h,k]
;   Both quadratic forms use the 351 distinct products x_j x_k (j<=k) with symmetrised weights, evaluated by
;   DNN branch: full bf16 GEMM + bias + tanh-GELU (x / (1 + exp(-2u))) + dot with w_dnn2; four terms of one
;   sample share a reciprocal (common denominator; exp(-2u) saturates at 2^24, i.e. at fp32 rounding level).
;   their own producer) and counters in d_debug; the last arriver of a row block adds up and writes d_out.
;   L_tables holds constant per-lane LDS address tables (functions of the lane id only).
; ---------------------------------------------------------------------------------------------
'''


class Gen:
    def __init__(self, opt):
        self.opt = opt
        self.P = Prog()
        self.late = []

    def seq(self, lines):
        return [self.P.add(l) for l in flat(lines)]

    def build_srd(self, dst, ptr, size):
        return [f's_mov_b32 s{dst}, s{ptr}', f's_and_b32 s{dst + 1}, s{ptr + 1}, 0xffff',
                f's_mov_b32 s{dst + 2}, {size}', f's_mov_b32 s{dst + 3}, 0x20000']

    def stamp(self, slot):
        if not self.opt.stamps or (self.opt.few and slot not in [int(x) for x in self.opt.few.split(',')]):
            return []
        return [f's_memtime s[{S_ST}:{S_ST + 1}]', f's_memrealtime s[{S_ST + 2}:{S_ST + 3}]', 's_waitcnt lgkmcnt(0)',
                f'v_writelane_b32 v252, s{S_ST}, {slot}', f'v_writelane_b32 v253, s{S_ST + 2}, {slot}']

    def probe(self, name, wave=4):
        if self.opt.tailp:
            return ['s_memrealtime s[88:89]', 's_waitcnt lgkmcnt(0)'] if name in self.opt.probe.split(',') else []
        if self.opt.cyc:
            a_, b_, _ = self.opt.cyc.split(',')
            return ['s_memtime s[86:87]', 's_waitcnt lgkmcnt(0)'] if name == a_ else ['s_memtime s[88:89]', 's_waitcnt lgkmcnt(0)'] if name == b_ else []
        if self.opt.probe != name:
            return []
        return ['s_memrealtime s[88:89]', 's_waitcnt lgkmcnt(0)']

    def stamp_flush(self):
        if not self.opt.stamps:
            return []
        L = self.build_srd(SRD_WS, S_WS, 0x10000000)
        L += [f's_lshl_b32 s{S_C0}, s2, 3', f's_add_u32 s{S_C0}, s{S_C0}, s{S_WAVE}',
              f's_lshl_b32 s{S_C0}, s{S_C0}, 8', f's_add_u32 s{S_C0}, s{S_C0}, 0x100000',
              'v_lshlrev_b32 v254, 3, v0', 's_mov_b32 exec_hi, 0',
              f'buffer_store_dwordx2 v[252:253], v254, {srd(SRD_WS)}, s{S_C0} offen', 's_mov_b32 exec_hi, -1']
        return L

    def stamp0(self):
        if not self.opt.stamps:
            return []
        return ['v_mov_b32 v252, 0xcdcdcdcd', 'v_mov_b32 v253, 0xcdcdcdcd',
                f'v_writelane_b32 v252, s{S_ST}, 0', f'v_writelane_b32 v253, s{S_ST + 2}, 0'] + self.stamp(15)

    def tlb2(self, t):
        L = self.build_srd(SRD_WS, S_WS, 0x10000000) + self.build_srd(SRD_OUT, S_OUT, 8192) + self.build_srd(SRD_DBG, S_DBG, 256)
        L += [f's_load_dword s{S_BOUT}, s[{S_BO}:{S_BO + 1}], 0', f'v_mov_b32 v{t}, 0', 's_mov_b64 exec, 1',
              f's_mov_b32 s{S_TW}, 0x80000',
              f'buffer_load_dword v{t + 1}, v{t}, {srd(SRD_WS)}, s{S_TW} offen',
              f'buffer_load_dword v{t + 2}, v{t}, {srd(SRD_OUT)}, 0 offen',
              's_mov_b64 exec, -1']
        return L

    def tlb1(self, vtmp, vdst):
        if not self.opt.etlb:
            return self.build_srd(SRD_TAB, S_TAB, 100000 * 128)
        return self.build_srd(SRD_TAB, S_TAB, 100000 * 128) + [
            f'v_mov_b32 v{vtmp}, s{S_BOUT}', f'buffer_load_dword v{vdst}, v{vtmp}, {srd(SRD_TAB)}, 0 offen']

    def gettag(self, lab, t, VT):
        return [f's_cmp_lg_u32 s{S_WAVE}, 0', f's_cbranch_scc1 {lab}',
                f's_memrealtime s[{S_TAGT}:{S_TAGT + 1}]'] + self.build_srd(SRD_DBG, S_DBG, 256) + [
                f's_lshl_b32 s{S_TW}, s{S_MB}, 2', f'v_mov_b32 v{t}, s{S_TW}', 's_waitcnt lgkmcnt(0)',
                f's_or_b32 s{S_TAG}, s{S_TAGT}, 1', f'v_mov_b32 v{VT}, s{S_TAG}', f'v_mov_b32 v{VT + 1}, 0',
                's_mov_b64 exec, 1',
                f'buffer_atomic_cmpswap v[{VT}:{VT + 1}], v{t}, {srd(SRD_DBG)}, 0 offen offset:128 sc0',
                's_mov_b64 exec, -1', f'{lab}:']

    def prologue(self):
        L = []
        if self.opt.stamps:
            L += [f's_memtime s[{S_ST}:{S_ST + 1}]', f's_memrealtime s[{S_ST + 2}:{S_ST + 3}]']
        L += ['s_cmp_ge_u32 s2, 256', 's_cbranch_scc1 L_end',
              's_load_dwordx16 s[4:19], s[0:1], 0',
              's_load_dwordx4 s[20:23], s[0:1], 64',
              's_load_dwordx2 s[24:25], s[0:1], 80',
              'v_lshrrev_b32 v1, 6, v0']
        if self.opt.cpf:
            L += [f's_getpc_b64 s[{S_MASK}:{S_MASK + 1}]', 'L_pc:',
                  f's_and_b32 s{S_T0}, s2, 0xf8', f'v_add_u32 v2, s{S_T0}, v1', 'v_and_b32 v3, 32, v0', 'v_lshl_add_u32 v2, v3, 3, v2', 'v_lshlrev_b32 v2, 7, v2',
                  f'v_min_u32 v2, L_end-L_pc, v2',
                  f'v_mov_b32 v3, s{S_MASK + 1}',
                  f'v_add_co_u32 v2, vcc, s{S_MASK}, v2', 'v_addc_co_u32 v3, vcc, 0, v3, vcc',
                  'global_load_dword v251, v[2:3], off']
        if self.opt.skew:
            L += ['s_memtime s[86:87]' if self.opt.cyc else 's_memrealtime s[86:87]', 's_mov_b32 s88, 0']
        L += ['v_and_b32 v0, 63, v0',
              f'v_readfirstlane_b32 s{S_WAVE}, v1',
              f's_and_b32 s{S_T0}, s2, 7', f's_lshr_b32 s{S_T1}, s2, 3', f's_xor_b32 s{S_T1}, s{S_T1}, {31 * self.opt.rev}',
              f's_and_b32 s{S_BOUT}, s2, 0xf8', f's_add_u32 s{S_BOUT}, s{S_BOUT}, s{S_WAVE}', f's_lshl_b32 s{S_BOUT}, s{S_BOUT}, {self.opt.etlb}',
              f's_min_u32 s{S_T2}, s{S_T0}, 1', f's_add_u32 s{S_T3}, s{S_T1}, s{S_T2}',
              f's_cmp_ge_u32 s{S_T3}, 22', 's_cbranch_scc1 L_cin',
              f's_mul_i32 s{S_T0}, s{S_T0}, 21', f's_add_u32 s{S_T0}, s{S_T0}, s{S_T3}',
              ]
        if self.opt.band == 0:
            L += [f's_mul_i32 s{S_MB}, s{S_T0}, 5042', f's_lshr_b32 s{S_MB}, s{S_MB}, 16',
                  f's_mul_i32 s{S_T1}, s{S_MB}, 13', f's_sub_u32 s{S_R}, s{S_T0}, s{S_T1}']
        else:
            assert all((d * 9363) >> 16 == d // 7 for d in range(91)) and all((d * 10923) >> 16 == d // 6 for d in range(78))
            L += [f's_sub_u32 s{S_T1}, 168, s{S_T0}', f's_cmp_lt_u32 s{S_T0}, 91', f's_cselect_b32 s{S_T0}, s{S_T0}, s{S_T1}',
                  f's_cselect_b32 s{S_T1}, 0, 1560', f's_cselect_b32 s{S_T2}, 7, 6', f's_cselect_b32 s{S_R}, 0, 7', f's_add_u32 s{S_T1}, s{S_T1}, 9363',
                  f's_mul_i32 s{S_MB}, s{S_T0}, s{S_T1}', f's_lshr_b32 s{S_MB}, s{S_MB}, 16', f's_mul_i32 s{S_T1}, s{S_MB}, s{S_T2}',
                  f's_add_u32 s{S_R}, s{S_R}, s{S_T0}', f's_sub_u32 s{S_R}, s{S_R}, s{S_T1}']
        return self.seq(L)

    def dnn(self):
        o = self.opt
        vW = [1, 2, 3, 4]
        vX = [[5, 6], [7, 8]]
        vPa, vPc = 9, 10
        WF, XA, ACC = 16, 48, 88
        W2F = WF
        KC0, KC1, KONE = 12, 14, 248
        SUMP, GT = 32, 52
        vIdxOff, vCh, vWD, vBL = 1, [2, 3], [4, 5], 11
        ST, VO = 16, 56
        T = 100
        g, i4, q = T + 16, T + 17, T + 18
        PI = T + 8

        def acc(tn, tm):
            return ACC + (tm * 4 + tn) * 4

        def small(srd_, dst):
            return [f's_mov_b32 m0, {dst}', 's_mov_b64 exec, 0xffff',
                    I(f'buffer_load_dwordx4 v{vBL}, {srd(srd_)}, s{S_N0} offen lds', tag='BIAS'), 's_mov_b64 exec, -1']
        L = [f's_lshl_b32 s{S_N0}, s{S_R}, 8', f's_mul_i32 s{S_T3}, s{S_MB}, 320',
             f'v_lshrrev_b32 v{g}, 4, v0', f'v_lshlrev_b32 v{vBL}, 4, v0', f's_and_b32 s{S_CW}, s{S_WAVE}, 3',
             f's_cmp_ge_u32 s{S_WAVE}, 4', 's_cbranch_scc1 L_ld']
        c0 = self.seq(L)
        PI = T

        RG, CG = S_T0, S_T1
        L = [f's_mul_i32 s{S_T2}, s{S_WAVE}, 13', f'v_min_u32 v{q}, 12, v0', f'v_add_u32 v{q}, s{S_T2}, v{q}',
             f'v_lshrrev_b32 v{i4}, 1, v{q}', f'v_mul_u32_u24 v{i4}, 96, v{i4}', f'v_lshl_add_u32 v{q}, v{q}, 2, v{i4}',
             f's_mul_i32 s{S_C0}, s{S_R}, 25', f's_min_u32 s{S_C0}, s{S_C0}, 294',
             f's_add_u32 s{S_C0}, s{S_C0}, s{S_T3}', f's_mul_i32 s{S_C0}, s{S_C0}, 104',
             f's_lshl_b32 s{S_T2}, s{S_MB}, 2', f's_add_u32 s{S_T2}, s{S_T2}, s{S_WAVE}', f's_add_u32 s{S_T2}, s{S_T2}, {o.ew0 * 32}',
             f's_mul_i32 s{S_T2}, s{S_T2}, 3328', f's_add_u32 s{S_T2}, s{S_T2}, s{S_N0}', f's_mov_b32 s{S_TW}, {52 * 3328}',
             f'v_lshrrev_b32 v{T + 12}, 1, v0', f'v_mul_lo_u32 v{T + 12}, s{S_TW}, v{T + 12}', f'v_and_b32 v{i4}, 1, v0', f'v_lshl_add_u32 v{T + 12}, v{i4}, 7, v{T + 12}',
             f'v_add_u32 v{T + 12}, s{S_T2}, v{T + 12}', 's_waitcnt lgkmcnt(0)']
        ct = [int(x) for x in o.ct + o.ct2]
        L += self.build_srd(SRD_IDX, S_IDX, 4096 * 104)
        if ct:
            L += [f'buffer_load_dwordx4 {vr(PI, 4)}, v{q}, {srd(SRD_IDX)}, s{S_C0} offen']
        if ct and max(ct) > 3:
            L += [f'buffer_load_dwordx4 {vr(PI + 4, 4)}, v{q}, {srd(SRD_IDX)}, s{S_C0} offen offset:16']
        L += self.tlb1(T + 14, T + 15)
        if o.ptl:
            L += [f'v_lshlrev_b32 v{T + 14}, {o.ptl}, v0', f's_lshl_b32 s{S_T2}, s{S_WAVE}, {o.ptl - 2}', f's_mov_b64 exec, {(1 << min(64, (12800000 >> o.ptl) + 1)) - 1}',
                  f'buffer_load_dword v{T + 15}, v{T + 14}, {srd(SRD_TAB)}, s{S_T2} offen', 's_mov_b64 exec, -1']
        touch = [x for k in ct for x in (f'v_lshlrev_b32 v{PI + k}, 7, v{PI + k}', f'buffer_load_dword v{acc(0, 7) + k}, v{PI + k}, {srd(SRD_TAB)}, 0 offen')]
        touch, touch2 = touch[:2 * len(o.ct)], touch[2 * len(o.ct):]
        L += self.build_srd(SRD_B1, S_B1, 3328) + small(SRD_B1, L_BIAS)
        if o.ew:
            L += self.build_srd(SRD_W, S_W1, 1664 * 3328)
            ewl = [f's_mov_b64 exec, {(1 << (2 * o.ew)) - 1}', f'buffer_load_dword v{acc(0, 7) + 9}, v{T + 12}, {srd(SRD_W)}, 0 offen', 's_mov_b64 exec, -1']
            if o.ewat == 0:
                L += ewl
            elif o.ewat == 1:
                touch = touch + ewl
            else:
                touch2 = touch2 + ewl
        chead = self.seq(L + (['s_barrier'] if o.dbar0 else []) + ['s_branch L_cmp'])
        self.ldat = len(self.P.static)
        L = ['L_cmp:'] + self.stamp0()
        L += [f's_and_b32 s{RG}, s{S_WAVE}, 1', f's_lshr_b32 s{CG}, s{S_WAVE}, 1',
              f'v_bfe_u32 v{i4}, v0, 2, 2', f'v_lshl_add_u32 v{q}, v{g}, 3, v{i4}', f'v_lshlrev_b32 v{q}, 8, v{q}',
              f'v_bfe_u32 v{i4}, v0, 2, 3', f's_lshl_b32 s{S_T2}, s{CG}, 2', f'v_xor_b32 v{i4}, s{S_T2}, v{i4}',
              f'v_lshl_add_u32 v{q}, v{i4}, 5, v{q}', f'v_and_b32 v{i4}, 3, v0', f'v_lshl_add_u32 v{q}, v{i4}, 3, v{q}',
              f'v_add_u32 v{vW[0]}, {WR}, v{q}']
        L += [f'v_xor_b32 v{vW[tn]}, {32 * tn}, v{vW[0]}' for tn in range(1, 4)]
        L += [f's_lshl_b32 s{S_T2}, s{CG}, 7', f's_add_u32 s{S_T2}, s{S_T2}, {L_BIAS}', f'v_lshlrev_b32 v{q}, 3, v{g}', f'v_add_u32 v{vPa}, s{S_T2}, v{q}',
              f'v_and_b32 v{q}, 15, v0', f'v_lshlrev_b32 v{q}, 7, v{q}',
              f'v_bfe_u32 v{i4}, v0, 1, 3', f'v_xor_b32 v{i4}, v{i4}, v{g}', f'v_lshl_add_u32 v{q}, v{i4}, 4, v{q}',
              f's_mul_i32 s{S_T2}, s{RG}, 20480', f'v_add_u32 v{vX[0][0]}, s{S_T2}, v{q}', f'v_xor_b32 v{vX[1][0]}, 64, v{vX[0][0]}',
              f'v_add_u32 v{vX[0][1]}, {2 * XSLOT}, v{vX[0][0]}', f'v_add_u32 v{vX[1][1]}, {2 * XSLOT}, v{vX[1][0]}',
              f's_mul_i32 s{S_T2}, s{S_WAVE}, 640', f's_add_u32 s{S_T2}, s{S_T2}, {RB}',
              f'v_and_b32 v{q}, 15, v0', f'v_lshlrev_b32 v{q}, 2, v{q}', f'v_add_u32 v{q}, s{S_T2}, v{q}',
              f'v_lshrrev_b32 v{i4}, 5, v0', f'v_lshl_add_u32 v{q}, v{i4}, 6, v{q}', f'v_bfe_u32 v{i4}, v0, 4, 1', f'v_lshl_add_u32 v{vPc}, v{i4}, 7, v{q}',
              f's_mov_b32 s{S_LOOP}, 0',
              f'v_mov_b32 v{KC0}, {f32hex(GELU_C0)}', f'v_mov_b32 v{KC0 + 1}, {f32hex(GELU_C0)}',
              f'v_mov_b32 v{KC1}, {f32hex(GELU_C1)}', f'v_mov_b32 v{KC1 + 1}, {f32hex(GELU_C1)}']

        def pkreads(off, dst):
            return [f'ds_read_b64 {vr(dst + 4 * tn + 2, 2)}, v{vPa} offset:{off + 32 * tn}' for tn in range(4)]

        def unp(dst):
            c = []
            for tn in range(4):
                r = dst + 4 * tn
                c += [f'v_lshlrev_b32 v{r}, 16, v{r + 2}', f'v_and_b32 v{r + 1}, 0xffff0000, v{r + 2}',
                      f'v_lshlrev_b32 v{r + 2}, 16, v{r + 3}', f'v_and_b32 v{r + 3}, 0xffff0000, v{r + 3}']
            return c
        L += touch + self.stamp(6)
        CT_, CW_, CD_ = 248, 11, 251
        if o.tch == 2:
            L += [f's_mul_i32 s{S_T2}, s{S_WAVE}, 13', f's_add_u32 s{S_T2}, s{S_T2}, s{S_R}', f's_min_u32 s{S_T2}, s{S_T2}, 39', f's_lshl_b32 s{S_T2}, s{S_T2}, 3',
                  f's_add_u32 s{S_T2}, s{S_T2}, s{S_T3}', f's_mul_i32 s{S_T2}, s{S_T2}, 104',
                  f'v_lshrrev_b32 v{q}, 3, v0', f'v_mul_u32_u24 v{q}, 72, v{q}', f'v_lshl_add_u32 v{q}, v0, 2, v{q}']
            L += [f'buffer_load_dword v{CT_ + r}, v{q}, {srd(SRD_IDX)}, s{S_T2} offen offset:{4 * min(o.tf0 + 8 * r, 18)}' for r in range(3)]
            L += [f'v_add_u32 v{CW_}, {(o.tw0 - o.ew0) * 32 * 3328}, v{T + 12}', f's_mov_b32 s{S_RC}, 0']
            touch2 = touch2 + [f'v_lshlrev_b32 v{CT_ + r}, 7, v{CT_ + r}' for r in range(3)] + [Touch(f'v{CD_}')]
        if o.st:
            SR = [36, 40, 52, 56, 60, 64, 96]
            L += [f's_mul_i32 s{S_T2}, s{S_WAVE}, 13', f's_lshr_b32 s{S_T2}, s{S_T2}, 1', f's_mul_i32 s{S_T2}, s{S_T2}, 104', f's_add_u32 s{S_T2}, s{S_T2}, s{S_C0}', f's_add_u32 s{S_T2}, s{S_T2}, {4 * o.sf0}']
            for r in range(7):
                L += [f's_buffer_load_dwordx4 s[{SR[r]}:{SR[r] + 3}], {srd(SRD_IDX)}, s{S_T2}', f's_add_u32 s{S_T2}, s{S_T2}, 104']
            L += ['s_waitcnt lgkmcnt(0)']
            for f_ in range(o.st):
                for r in range(7):
                    L += [f's_lshl_b32 s{SR[r] + f_}, s{SR[r] + f_}, 7', f's_buffer_load_dword s{SR[r] + f_}, {srd(SRD_TAB)}, s{SR[r] + f_}']
        BI = [WaitTag(vm_tags=['BIAS'])] + pkreads(0, acc(0, 9)) + unp(acc(0, 9)) + [f'v_mov_b64 {vr(acc(0, 8) + r, 2)}, {vr(acc(0, 9) + r, 2)}' for r in range(0, 16, 2)]

        def rX(p, k):
            xs = p % 3
            return f'ds_read_b128 {vr(XA + 4 * (k % 10), 4)}, v{vX[k % 2][xs // 2]} offset:{(xs % 2) * XSLOT + (k // 2) * 2048}'

        def rW(tn):
            return [f'ds_read_b64_tr_b16 {vr(WF + 16 * par + 4 * tn + 2 * rd, 2)}, v{vW[tn]} offset:{par * WSLOT + rd * 1024}' for par in range(2) for rd in range(2)]
        tog = lambda tn: f'v_xor_b32 v{vW[tn]}, {2 * WSLOT}, v{vW[tn]}'

        def dec(gi):
            G, tn, a_, par = gi // 16, (gi // 4) % 4, (gi // 2) % 2, gi % 2
            if o.bou:
                par ^= a_ ^ (G == 4)
                a_ ^= tn & 1
            return G, tn, a_, par
        lastx = {4 * dec(gi)[0] + 2 * dec(gi)[2] + dec(gi)[3]: gi for gi in range(80)}

        def mf(gi, first=False):
            G, tn, a_, par = dec(gi)
            d = acc(tn, 2 * G + a_)
            if first and gi % 2 == 0 and G < 4:
                return f'v_mfma_f32_16x16x32_bf16 {vr(d, 4)}, {vr(WF + 16 * par + 4 * tn, 4)}, {vr(XA + 4 * ((4 * G + 2 * a_ + par) % 10), 4)}, {vr(acc(tn, 9), 4)}'
            return f'v_mfma_f32_16x16x32_bf16 {vr(d, 4)}, {vr(WF + 16 * par + 4 * tn, 4)}, {vr(XA + 4 * ((4 * G + 2 * a_ + par) % 10), 4)}, {vr(d, 4)}'
        SH = [11, 248, 249, 250]
        nsh = o.nsh

        def shadow():
            c = []
            for b0 in range(0, nsh, 4):
                E = [(ACC + e, SH[e - b0]) for e in range(b0, min(b0 + 4, nsh))]
                for op in ('v_mul_f32 T, X, X', f'v_fma_f32 T, T, v{KC1}, v{KC0}', 'v_mul_f32 T, T, X', 'v_exp_f32 T, T', 'v_add_f32 T, 1.0, T', 'v_rcp_f32 T, T', 'v_mul_f32 X, X, T'):
                    c += [(op.replace('T', f'v{t}').replace('X', f'v{x}'), 8 if ('exp' in op or 'rcp' in op) else 4) for x, t in E]
            return c

        def U_(t):
            i_ = I(t)
            i_.wr = []
            return i_

        def cpair(p, kind, loopend=False):
            S = []
            ev = {}
            if kind == 'first':
                g_ = o.sbg + 1
                for k in range(2 * o.sa, 10):
                    ev[g_] = rX(p, k); g_ += 1
            else:
                for i_, x in enumerate(rW(3)[2:]):
                    ev[i_] = x
                for i_, k in enumerate(range(6, 10)):
                    ev[2 + i_] = rX(p, k)
            for k in range(10):
                g_ = lastx[k]
                while g_ in ev or (kind == 'first' and g_ <= o.sbg):
                    g_ += 1
                ev[g_] = rX(p, k + 10)
            BG = 48 + o.bgap if o.bou else 46 + o.bgap
            if kind != 'last':
                ev[BG], ev[BG + 1] = rX(p + 1, 0), rX(p + 1, 1)
                for k in range(2, 6):
                    ev[lastx[10 + k]] = rX(p + 1, k)
                for tn in range(4):
                    for i_, x in enumerate(rW(tn)):
                        if 66 + 4 * tn + i_ < 80:
                            ev[66 + 4 * tn + i_] = x
            sh_ = shadow() if kind == 'last' else []
            for gi in range(80):
                S.append(mf(gi, kind == 'first'))
                t = 4
                if o.dwalk and kind != 'last' and gi in (24, 40, 64, 7):
                    S += [f'L_dw{self.ndw}:', f's_cbranch_execz L_dw{self.ndw + 1}']
                    self.ndw += 1
                if kind == 'first' and gi == o.sbg:
                    S += (self.stamp(20) if o.itst == 2 else []) + ['s_barrier'] + (self.stamp(21) if o.itst == 2 else [])
                if kind != 'last' and gi == BG - 1:
                    st_ = lambda k: ([f's_cmp_lg_u32 s{S_LOOP}, 0', f's_cbranch_scc1 L_ns{k}'] + self.stamp(k) + [f'L_ns{k}:']) if (o.itst == 2 and p < 3) else []
                    S += ['s_waitcnt lgkmcnt(0)'] + st_(22 + 2 * p) + ['s_barrier'] + st_(23 + 2 * p)
                if gi in ev:
                    S.append(ev[gi]); t += 8
                if kind != 'last' and 8 <= gi < 12:
                    S.append(tog(gi - 8))
                if o.tch == 2 and kind == 'mid' and gi == o.tgap:
                    if p == 1:
                        S += [f's_bitcmp1_b32 {o.tmask:#x}, s{S_LOOP}', 's_cbranch_scc1 L_ctx', 'L_ctxr:']
                    if p == 2:
                        S += ['s_mov_b64 exec, 0xff', U_(f'buffer_load_dword v{CD_}, v{CW_}, {srd(SRD_W)}, s{S_RC} offen'), 's_mov_b64 exec, -1', f's_add_u32 s{S_RC}, s{S_RC}, {208 * 3328}']
                if o.tch == 2 and kind == 'first' and gi == o.tgap:
                    S += ['s_mov_b64 exec, 0xff', U_(f'buffer_load_dword v{CD_}, v{CW_}, {srd(SRD_W)}, s{S_RC} offen'), 's_mov_b64 exec, -1', f's_add_u32 s{S_RC}, s{S_RC}, {208 * 3328}']
                if gi % 2 == 0 and gi + 2 < 80:
                    n_ = gi + 2
                    G, tn, a_ = n_ // 16, (n_ // 4) % 4, (n_ // 2) % 2
                    if tn == 0:
                        S.append(Touch(vr(XA + 4 * ((4 * G + 2 * a_) % 10), 8)))
                    if G == 0 and a_ == 0:
                        S.append(Touch(vr(WF + 16 + 4 * tn, 4)))
                if gi == 78 and kind != 'last':
                    S.append(Touch(vr(WF + 16, 4)))
                if loopend and gi == 48:
                    S += [f's_add_u32 s{S_LOOP}, s{S_LOOP}, 1', f's_cmp_lt_u32 s{S_LOOP}, 8']
                t = max(t, 8)
                while sh_ and gi >= o.sh0 and t + sh_[0][1] <= 16:
                    x, c_ = sh_.pop(0)
                    S.append(x); t += c_
            S += [x for x, _ in sh_]
            if kind == 'last':
                print('shadow left', len(sh_))
            return S
        self.ndw = 0
        if o.dwalk:
            L += ['s_mov_b64 exec, 0'] + [x for q_ in range(3) for x in (f's_cmp_eq_u32 s{S_WAVE}, {q_}', f's_cbranch_scc1 L_dw{4 * q_}')] + ['s_branch L_dw12', 'L_dw16:', 's_mov_b64 exec, -1']
        L += self.stamp(1) + ['s_barrier'] + [x for tn in range(4) for x in rW(tn)] + BI + touch2 + ['s_waitcnt lgkmcnt(0)', f's_setprio {o.cprio}', 's_barrier'] + self.stamp(2)
        L += [rX(0, k) for k in range(2 * o.sa)] + cpair(0, 'first')
        cpre = self.seq(L)
        body = self.seq(['L_dnn_loop0:'])
        for p in range(1, 4):
            S = cpair(p, 'mid', p == 3)
            if p == 3:
                if o.stamps and o.itst == 1:
                    i_ = S.index('s_barrier')
                    S = S[:i_] + [f's_memtime s[{S_ST}:{S_ST + 1}]', f's_memrealtime s[{S_ST + 2}:{S_ST + 3}]', f's_or_b32 m0, s{S_LOOP}, 16', 's_waitcnt lgkmcnt(0)',
                                  f'v_writelane_b32 v252, s{S_ST}, m0', f'v_writelane_b32 v253, s{S_ST + 2}, m0', f's_cmp_lt_u32 s{S_LOOP}, 8'] + S[i_:]
                S += ['s_cbranch_scc1 L_dnn_loop0']
            body += self.seq(S)
        tc = c0 + chead + cpre + body * 2 + self.seq(['L_tail:'])
        tc += self.seq((['s_waitcnt vmcnt(0)'] if o.tch == 2 else []) + cpair(25, 'last') + pkreads(256, W2F) + [f'v_mov_b32 v{KONE}, 1.0', f'v_mov_b32 v{KONE + 1}, 1.0'])
        if o.burn:
            bl = [f's_movk_i32 s{S_LOOP}, {o.burn}', 'L_burn:'] + [f'v_mfma_f32_16x16x32_bf16 {vr(XA + 32 + 4 * (k % 2), 4)}, {vr(WF + 16 + 4 * (k % 4), 4)}, {vr(XA + 4 * (k // 4), 4)}, 0' for k in range(32)]
            tc += self.seq(bl + [f's_sub_u32 s{S_LOOP}, s{S_LOOP}, 1', f's_cmp_lg_u32 s{S_LOOP}, 0', 's_cbranch_scc1 L_burn'])
        tc += self.seq(['L_epi:'] + self.stamp(3))

        p2 = lambda r: vr(r, 2)
        seen = set()

        def gelu(groups):
            L = []
            for k, vals in enumerate(groups):
                tb = GT + (k % 2) * 16
                V_ = [(x, w, s_, tb + 4 * i_, tb + 4 * i_ + 2) for i_, (x, w, s_) in enumerate(vals)]
                for (x, w, s_, t, u) in V_:
                    L.append(f'v_pk_mul_f32 {p2(t)}, {p2(x)}, {p2(x)}')
                for (x, w, s_, t, u) in V_:
                    L.append(f'v_pk_fma_f32 {p2(t)}, {p2(t)}, {p2(KC1)}, {p2(KC0)}')
                for (x, w, s_, t, u) in V_:
                    L.append(f'v_pk_mul_f32 {p2(t)}, {p2(t)}, {p2(x)}')
                for (x, w, s_, t, u) in V_:
                    L += [f'v_exp_f32 v{t}, v{t}', f'v_exp_f32 v{t + 1}, v{t + 1}']
                for (x, w, s_, t, u) in V_:
                    L.append(f'v_pk_mul_f32 {p2(u)}, {p2(x)}, {p2(w)}')
                for (x, w, s_, t, u) in V_:
                    L.append(f'v_pk_add_f32 {p2(t)}, {p2(t)}, {p2(KONE)}')
                for (x, w, s_, t, u) in V_:
                    L += [f'v_rcp_f32 v{t}, v{t}', f'v_rcp_f32 v{t + 1}, v{t + 1}']
                for (x, w, s_, t, u) in V_:
                    if s_ in seen:
                        L.append(f'v_pk_fma_f32 {p2(s_)}, {p2(t)}, {p2(u)}, {p2(s_)}')
                    else:
                        L.append(f'v_pk_mul_f32 {p2(s_)}, {p2(t)}, {p2(u)}')
                        seen.add(s_)
            return L
        el = lambda tn, tm, d: (acc(tn, tm) + 2 * d, W2F + 4 * tn + 2 * d, SUMP + 2 * tm)
        allel = [el(tn, 2 * tp + a_, d) for tp in range(5) for tn in range(4) for d in range(2) for a_ in range(2)]
        rest = [e for e in allel if e[0] >= ACC + nsh]
        if o.rshare:
            assert nsh % 8 == 0
            KS = 84
            quads = [[el(2 * h + t_, tm, d) for t_ in range(2) for d in range(2)] for tm in range(10) for h in range(2)]
            quads = [q_ for q_ in quads if q_[0][0] >= ACC + nsh]
            order = sorted(range(len(quads)), key=lambda i_: (i_ // 4, i_ % 2, i_))
            quads = [quads[i_] for i_ in order]
            L = [f'v_mov_b32 v{KS}, {f32hex(-24.0)}', f'v_mov_b32 v{KS + 1}, {f32hex(-24.0)}', f'v_mov_b32 v{KS + 2}, {f32hex(2.0 ** 24)}', f'v_mov_b32 v{KS + 3}, {f32hex(2.0 ** 24)}']
            for k in range(0, len(quads), 2):
                Qs = quads[k:k + 2]
                V_ = [(x, w, GT + 16 * j_ + 4 * i_, GT + 16 * j_ + 4 * i_ + 2) for j_, q_ in enumerate(Qs) for i_, (x, w, s_) in enumerate(q_)]
                L += [f'v_pk_mul_f32 {p2(t)}, {p2(x)}, {p2(x)}' for (x, w, t, u) in V_]
                L += [f'v_pk_fma_f32 {p2(t)}, {p2(t)}, {p2(KC1)}, {p2(KC0)}' for (x, w, t, u) in V_]
                L += [f'v_pk_fma_f32 {p2(t)}, {p2(t)}, {p2(x)}, {p2(KS)}' for (x, w, t, u) in V_]
                L += [f'v_exp_f32 v{t + e_}, v{t + e_} clamp' for (x, w, t, u) in V_ for e_ in range(2)]
                if k == 0:
                    L += unp(W2F)
                L += [f'v_pk_mul_f32 {p2(u)}, {p2(x)}, {p2(w)}' for (x, w, t, u) in V_]
                L += [f'v_pk_fma_f32 {p2(t)}, {p2(t)}, {p2(KS + 2)}, {p2(KONE)}' for (x, w, t, u) in V_]
                for prs in ([(0, 1), (2, 3)], [(0, 2)]):
                    M_ = [(V_[4 * j_ + a_], V_[4 * j_ + b_]) for j_ in range(len(Qs)) for a_, b_ in prs]
                    L += [f'v_pk_mul_f32 {p2(A_[3])}, {p2(A_[3])}, {p2(B_[2])}' for A_, B_ in M_]
                    L += [f'v_pk_fma_f32 {p2(A_[3])}, {p2(B_[3])}, {p2(A_[2])}, {p2(A_[3])}' for A_, B_ in M_]
                    L += [f'v_pk_mul_f32 {p2(A_[2])}, {p2(A_[2])}, {p2(B_[2])}' for A_, B_ in M_]
                L += [f'v_rcp_f32 v{V_[4 * j_][2] + e_}, v{V_[4 * j_][2] + e_}' for j_ in range(len(Qs)) for e_ in range(2)]
                for j_, q_ in enumerate(Qs):
                    s_, t, u = q_[0][2], V_[4 * j_][2], V_[4 * j_][3]
                    L.append(f'v_pk_fma_f32 {p2(s_)}, {p2(t)}, {p2(u)}, {p2(s_)}' if s_ in seen else f'v_pk_mul_f32 {p2(s_)}, {p2(t)}, {p2(u)}')
                    seen.add(s_)
        else:
            L = gelu([rest[i:i + 4] for i in range(0, len(rest), 4)])
            L = L[:20] + unp(W2F) + L[20:]
        for (x, w, s_) in allel:
            if x < ACC + nsh:
                L.append(f'v_pk_fma_f32 {p2(s_)}, {p2(x)}, {p2(w)}, {p2(s_)}' if s_ in seen else f'v_pk_mul_f32 {p2(s_)}, {p2(x)}, {p2(w)}')
                seen.add(s_)
        sm = lambda tm: SUMP + 2 * tm
        L += [f'v_add_f32 v{sm(tm)}, v{sm(tm)}, v{sm(tm) + 1}' for tm in range(10)]
        L += [f'v_permlane32_swap_b32 v{sm(tm)}, v{sm(tm + 1)}' for tm in range(0, 10, 2)]
        L += [f'v_add_f32 v{sm(tm)}, v{sm(tm)}, v{sm(tm + 1)}' for tm in (8, 0, 2, 4, 6)]
        L += [f'v_mov_b32 v{sm(9)}, v{sm(8)}', f'v_permlane16_swap_b32 v{sm(0)}, v{sm(2)}', f'v_permlane16_swap_b32 v{sm(4)}, v{sm(6)}',
              f'v_permlane16_swap_b32 v{sm(8)}, v{sm(9)}',
              f'v_add_f32 v{sm(0)}, v{sm(0)}, v{sm(2)}', f'v_add_f32 v{sm(4)}, v{sm(4)}, v{sm(6)}', f'v_add_f32 v{sm(8)}, v{sm(8)}, v{sm(9)}',
              f'ds_write_b32 v{vPc}, v{sm(0)}', f'ds_write_b32 v{vPc}, v{sm(4)} offset:256',
              's_mov_b32 exec_lo, 0xffff', 's_mov_b32 exec_hi, 0xffff', f'ds_write_b32 v{vPc}, v{sm(8)} offset:512', 's_mov_b64 exec, -1']
        L += ['s_waitcnt lgkmcnt(0)'] + self.stamp(4) + self.stamp_flush() + ['s_barrier', 's_endpgm']
        tc += self.seq(L)

        if o.tch == 2:
            self.seq(['L_ctx:', U_(f'buffer_load_dword v{CD_}, v{CT_}, {srd(SRD_TAB)}, 0 offen'), f'v_mov_b32 v{CT_}, v{CT_ + 1}', f'v_mov_b32 v{CT_ + 1}, v{CT_ + 2}', 's_branch L_ctxr'])
        def wstage(slot):
            c = []
            for u in range(2):
                c += [f's_add_u32 m0, s{S_WMB}, {WR + slot * WSLOT + u * 1024}',
                      I(f'buffer_load_dwordx4 v{vWD[u]}, {srd(SRD_W)}, s{S_WSOFF} offen lds', tag='W')]
            return c + [f's_add_u32 s{S_WSOFF}, s{S_WSOFF}, {32 * 3328}']

        Q, TM, BP = 16, 56, [12, 13]
        TI, vWT = 70, 84
        SP = [36, 37, 38, 39, 40, 41, 42, 43, 48, 49]
        SI = [94, 95, 96, 97, 98, 99, 100, 101, 82, 83]

        def xaddr(f, pcs):
            c = []
            for odd in range(2):
                p_ = f + 26 * odd
                for pc in pcs:
                    c.append(f'v_add_u32_dpp v{TM + pc}, v{Q + 4 * pc + p_ % 4}, v{vCh[0]} row_newbcast:{p_ >> 2} row_mask:0xf bank_mask:{(3, 12)[odd]:#x}')
            return c

        def xld(pc, slot, tag='X'):
            return [f's_add_u32 m0, s{S_XM0}, {slot * XSLOT + pc * 2048}',
                    I(f'buffer_load_dwordx4 v{TM + pc}, {srd(SRD_TAB)}, 0 offen lds', tag=tag)]
        idxl = [f'buffer_load_dwordx4 {vr(Q + 4 * pc, 4)}, v{BP[0]}, {srd(SRD_IDX)}, s{SI[pc // 2]} offen offset:{(pc % 2) * 1664}' for pc in range(10)]
        LO, HI = range(5), range(5, 10)
        NR = (22 + o.tf - 1) // o.tf
        lw = S_CW
        self.mk0 = len(self.P.static)
        L = ['L_ld:', f's_lshr_b32 s{S_T0}, s{lw}, 1', f's_mul_i32 s{S_T0}, s{S_T0}, 20', f's_and_b32 s{S_T1}, s{lw}, 1', f's_add_u32 s{S_T0}, s{S_T0}, s{S_T1}',
             f's_lshl_b32 s{S_XM0}, s{S_T0}, 10', f's_mul_i32 s{S_C0}, s{S_T3}, 104', f's_mul_i32 s{S_T0}, s{S_T0}, 832', f's_add_u32 s{SI[0]}, s{S_C0}, s{S_T0}',
             f'v_mul_u32_u24 v{q}, 48, v{g}', f'v_sub_u32 v{BP[0]}, v{vBL}, v{q}']
        L += [f's_add_u32 s{SI[k]}, s{SI[0]}, {k * 2 * 1664}' for k in range(1, 5)]
        L += [f's_and_b32 s{S_T2}, s{lw}, 1', f's_lshl_b32 s{S_T2}, s{S_T2}, 3',
              f'v_lshlrev_b32 v{i4}, 1, v{g}', f'v_or_b32 v{i4}, s{S_T2}, v{i4}', f'v_xor_b32 v{i4}, v{i4}, v0', f'v_and_b32 v{i4}, 15, v{i4}',
              f'v_mul_u32_u24 v{vWD[0]}, 3328, v{g}', f'v_lshl_add_u32 v{vWD[0]}, v{i4}, 4, v{vWD[0]}', f'v_add_u32 v{vWD[1]}, {4 * 3328}, v{vWD[0]}',
              f's_mul_i32 s{S_WSOFF}, s{lw}, {8 * 3328}', f's_add_u32 s{S_WSOFF}, s{S_WSOFF}, s{S_N0}', f's_lshl_b32 s{S_WMB}, s{lw}, 11',
              's_waitcnt lgkmcnt(0)']
        L += self.build_srd(SRD_IDX, S_IDX, 4096 * 104) + (['s_barrier'] if o.dbar0 == 1 else []) + idxl[:o.i0] + self.tlb1(T + 14, T + 15) + self.build_srd(SRD_W, S_W1, 1664 * 3328)
        for sl in range(o.w0):
            L += wstage(sl)
        L += self.stamp0() + (['s_barrier'] if o.dbar0 >= 2 else []) + ([Touch(vr(Q, 4))] if o.dbar0 == 3 else []) + idxl[o.i0:]
        for sl in range(o.w0, 2):
            L += wstage(sl)
        L += [f's_lshl_b32 s{S_T2}, s{S_T1}, 6',
              f'v_and_b32 v{q}, 7, v0', f'v_xor_b32 v{q}, v{q}, v{g}', f'v_lshlrev_b32 v{q}, 4, v{q}', f'v_xor_b32 v{vCh[0]}, s{S_T2}, v{q}', f'v_xor_b32 v{vCh[1]}, 64, v{vCh[0]}',
              f's_mov_b32 s{S_LOOP}, 0',
              f's_mul_i32 s{S_T2}, s{lw}, 13', f's_add_u32 s{S_T2}, s{S_T2}, s{S_R}', f's_min_u32 s{S_T2}, s{S_T2}, 39', f's_lshl_b32 s{S_T2}, s{S_T2}, 3',
              f's_add_u32 s{S_T2}, s{S_T2}, s{S_T3}', f's_mul_i32 s{S_GRP}, s{S_T2}, 104',
              f'v_lshrrev_b32 v{q}, {o.tf.bit_length() - 1}, v0', f'v_min_u32 v{q}, 7, v{q}', f'v_mul_u32_u24 v{q}, 104, v{q}',
              f'v_and_b32 v{i4}, {o.tf - 1}, v0', f'v_lshl_add_u32 v7, v{i4}, 2, v{q}',
              f's_lshl_b32 s{S_T2}, s{S_MB}, 2', f's_add_u32 s{S_T2}, s{S_T2}, s{lw}', f's_add_u32 s{S_T2}, s{S_T2}, {o.tw0 * 32}', f's_mul_i32 s{S_RC}, s{S_T2}, 3328',
              f's_add_u32 s{S_RC}, s{S_RC}, s{S_N0}', f's_mov_b32 s{S_T2}, {52 * 3328}',
              f'v_lshrrev_b32 v{q}, 1, v0', f'v_mul_lo_u32 v{q}, s{S_T2}, v{q}', f'v_and_b32 v{i4}, 1, v0', f'v_lshl_add_u32 v{vWT}, v{i4}, 7, v{q}']
        L += self.build_srd(SRD_W2, S_W2, 3328)
        L += [f's_mul_i32 s{S_T2}, s{lw}, {o.lpf * 128}', f's_add_u32 s{S_T2}, s{S_T2}, L_tail-L_pc', f'v_lshlrev_b32 v8, 7, v0', f'v_add_u32 v8, s{S_T2}, v8',
              f'v_mov_b32 v9, s{S_MASK + 1}', f'v_add_co_u32 v8, vcc, s{S_MASK}, v8', 'v_addc_co_u32 v9, vcc, 0, v9, vcc']
        sh = lambda pc, c_: f'v_lshlrev_b32 v{Q + 4 * pc + c_}, 7, v{Q + 4 * pc + c_}'
        for pc in range(10):
            L += [sh(pc, 0), sh(pc, 2), sh(pc, 1), sh(pc, 3)] + xaddr(0, [pc]) + xld(pc, 0, 'X0a' if pc < o.sa else 'X0')
            if pc == 0:
                L += self.stamp(6) + self.probe('i0')
            if pc == o.bwat:
                L += [WaitTag(vm_tags=['W']), 's_barrier']
        L += self.stamp(7) + self.probe('x0i')
        x1 = [x for pc in range(10) for x in xaddr(1, [pc]) + xld(pc, 1)]
        L += x1[:4 * o.x1n] + [WaitTag(vm_tags=['X0a'])] + self.stamp(1) + ['s_barrier'] + self.probe('s0') + x1[4 * o.x1n:4 * o.x1m]
        L += [WaitTag(vm_tags=['X0']), 's_barrier'] + x1[4 * o.x1m:] + wstage(2) + wstage(3) + xaddr(2, range(10))
        x2 = [x for pc in range(10) for x in xld(pc, 2)]
        NR = (26 - o.tf0 + o.tf - 1) // o.tf
        tex = (1 << (8 * o.tf)) - 1
        texec = [f's_mov_b32 exec_lo, {tex & 0xffffffff:#x}', f's_mov_b32 exec_hi, {tex >> 32:#x}']
        if o.tch == 1:
            L += [f'buffer_load_dword v{TI + r}, v7, {srd(SRD_IDX)}, s{S_GRP} offen offset:{4 * min(o.tf0 + o.tf * r, 26 - o.tf)}' for r in range(NR)]

        def xtouch():
            t_ = [f'v_lshlrev_b32 v{T + 1}, 7, v{TI}'] + texec + [f'buffer_load_dword v{T + 2}, v{T + 1}, {srd(SRD_TAB)}, 0 offen', 's_mov_b64 exec, -1']
            return t_ + [f'v_mov_b32 v{TI + r}, v{TI + r + 1}' for r in range(NR - 1)] + [f'v_mov_b32 v{TI + NR - 1}, 0xffffff']

        def wtouch():
            return ['s_mov_b64 exec, 0x3ff', f'buffer_load_dword v{T + 3}, v{vWT}, {srd(SRD_W)}, s{S_RC} offen', 's_mov_b64 exec, -1', f's_add_u32 s{S_RC}, s{S_RC}, {260 * 3328}']
        L += x2[:2 * o.x2n] + [WaitTag(vm_tags=['W']), 's_barrier'] + self.probe('bar0') + x2[2 * o.x2n:] + xaddr(3, range(10))
        lpre = self.seq(L + [f's_setprio {o.lprio}', 's_branch L_ld_in'])
        del self.P.static[self.mk0:]
        self.P.static[self.ldat:self.ldat] = lpre
        self.mk0 = len(self.P.static)

        def lpair(p):
            S = ['s_barrier'] + (['L_ld_in:'] if p == 0 else []) + wstage(2 * (p % 2)) + wstage(2 * (p % 2) + 1)
            f2 = p + 4
            if p == 11:
                S += [f's_cmp_eq_u32 s{S_LOOP}, 1', 's_cbranch_scc1 L_ld_tail0']
            for pc in range(10):
                x = xld(pc, p % 3)
                S += [x[0]] + (xaddr(f2, [pc - 1])[:1] if pc else []) + [x[1]] + (xaddr(f2, [pc - 1])[1:] if pc else [])
            S += xaddr(f2, [9])
            if p >= 10:
                S += [f'v_mov_b32_dpp v{Q + 4 * pc + c_}, v{Q + 4 * pc + c_} row_shl:3 row_mask:0xf bank_mask:0xf' for pc in range(10) for c_ in ((0, 2) if p == 10 else (1, 3))]
            if o.tch == 1 and p % o.tf == o.toff:
                S += xtouch()
            if o.tch == 1 and p % 4 == o.twoff:
                S += wtouch()
            if p == 11:
                S += [f's_add_u32 s{S_LOOP}, s{S_LOOP}, 1', f's_cmp_lt_u32 s{S_LOOP}, 2']
            return S + [WaitTag(vm_tags=['W'])]
        body = self.seq(['L_dnn_loop1:'])
        for p in range(12):
            if p == 8 and o.lpf:
                body += self.seq([f's_cmp_lg_u32 s{S_LOOP}, 1', 's_cbranch_scc1 L_nolpf'])
                self.seq([f's_mov_b64 exec, {(1 << o.lpf) - 1}', 'global_load_dword v10, v[8:9], off', 's_mov_b64 exec, -1'] + small(SRD_W2, L_W2))
                body += self.seq(['L_nolpf:'])
            lp = lpair(p)
            if p and self.probe(f'bar{p}'):
                lp = lp[:1] + [f's_cmp_lg_u32 s{S_LOOP}, 0', f's_cbranch_scc1 L_nopb{p}'] + self.probe(f'bar{p}') + [f'L_nopb{p}:'] + lp[1:]
            body += self.seq(lp + (['s_cbranch_scc1 L_dnn_loop1'] if p == 11 else []))
        tl = c0 + lpre + body * 2 + self.seq(['s_branch L_ld_tail'])
        self.ldblk = self.P.static[self.mk0:]
        del self.P.static[self.mk0:]
        tl += self.seq(['L_ld_tail0:', 's_waitcnt vmcnt(0)', 'L_ld_tail:', 's_barrier'] + self.tlb2(T) + ['s_mov_b64 exec, 1', f'buffer_load_dword v250, v{T}, {srd(SRD_DBG)}, 0 offen offset:128 sc1', 's_mov_b64 exec, -1'])
        tl += self.seq(self.probe('s50'))
        if o.walk:
            tl += self.seq([f's_cmp_eq_u32 s{lw}, 0', 's_cbranch_scc1 L_wkd', 's_mov_b64 exec, 0', f's_cmp_eq_u32 s{lw}, 1', 's_cbranch_scc1 L_wk0',
                            f's_cmp_eq_u32 s{lw}, 2', f's_cbranch_scc1 L_wk{np_ // 3}', f's_branch L_wk{2 * np_ // 3}', 'L_wkd:'])
        A = 64
        L = [f's_cmp_lg_u32 s{S_WAVE}, 4', 's_cbranch_scc1 L_end',
             f'v_lshlrev_b32 v3, 4, v0', f'v_lshlrev_b32 v4, 2, v0', f'v_add_u32 v1, {RB}, v3', f'v_add_u32 v2, {RB + 1024}, v4', f'v_add_u32 v4, 1024, v4',
             'v_mov_b32 v5, 32', f'v_mov_b32 v7, s{S_MB}',
             f's_mul_i32 s{S_T0}, s{S_MB}, 1280', f's_mul_i32 s{S_T1}, s{S_R}, {WSP}', f's_add_u32 s{S_T1}, s{S_T1}, s{S_T0}', 's_setprio 3']
        if o.sent:
            L += [f'v_mov_b32 v{A + k}, -1' for k in range(4)] + [f'buffer_store_dwordx4 {vr(A, 4)}, v3, {srd(SRD_WS)}, s{S_T1} offen sc1',
                  f'buffer_store_dword v{A}, v4, {srd(SRD_WS)}, s{S_T1} offen sc1', 's_waitcnt vmcnt(0)'] + (self.cready('d', 250) if o.wsc else [])
        if o.pwalk:
            L += ['s_mov_b64 exec, 0', 's_branch L_pw0', 'L_pwr:', 's_mov_b64 exec, -1', f's_cmp_eq_u32 s{S_WAVE}, 0', 's_cbranch_scc1 L_pwc']
        L += self.stamp_flush() + ['s_barrier'] + self.probe('dend')
        L += [f'ds_read_b128 {vr(A, 4)}, v1', f'ds_read_b128 {vr(A + 8, 4)}, v1 offset:1280', f'ds_read2st64_b32 {vr(A + 4, 2)}, v2 offset0:0 offset1:5',
              f'v_pk_add_f32 {p2(A)}, {p2(A)}, {p2(A + 8)}', f'v_pk_add_f32 {p2(A + 2)}, {p2(A + 2)}, {p2(A + 10)}', f'v_add_f32 v{A + 4}, v{A + 4}, v{A + 5}']
        if o.sent:
            L += [f'v_min_u32 v{A + k}, -2, v{A + k}' for k in range(5)]
        L += (self.stamp(16) if o.diag else [])
        L += [f'buffer_store_dwordx4 {vr(A, 4)}, v3, {srd(SRD_WS)}, s{S_T1} offen sc1',
              f'buffer_store_dword v{A + 4}, v4, {srd(SRD_WS)}, s{S_T1} offen sc1', 's_mov_b64 exec, 1']
        tl += self.seq(L)

        L = ['L_pub:']
        if o.skew:
            L += ['v_mov_b32 v20, s86', 'v_mov_b32 v21, s86', 'v_mov_b32 v22, s88', 's_lshl_b32 s89, s2, 7', 's_add_u32 s89, s89, 0x40000', 'v_lshlrev_b32 v23, 28, v0',
                  f'buffer_store_dwordx3 v[20:22], v23, {srd(SRD_WS)}, s89 offen sc1', 's_waitcnt vmcnt(0)']
        def loads():
            c = [f's_mul_i32 s{S_T0}, s{S_T3}, 1280']
            for qq in range(14):
                c += [f'buffer_load_dwordx4 {vr(A + 8 * qq, 4)}, v3, {srd(SRD_WS)}, s{S_T0} offen sc1',
                      f'buffer_load_dword v{A + 8 * qq + 4}, v4, {srd(SRD_WS)}, s{S_T0} offen sc1', f's_add_u32 s{S_T0}, s{S_T0}, {WSP}']
            return c
        R_ = 56
        hb = 0
        L += [f'v_lshlrev_b32 v6, {o.wsc or 4}, v7', f's_mov_b32 s{S_T2}, 0x60000'] + ([] if o.sent else ['s_waitcnt vmcnt(0)']) + ['v_mov_b32 v13, v5',
              f'buffer_atomic_add v5, v6, {srd(SRD_WS)}, s{S_T2} offen sc0' if o.wsc else f'buffer_atomic_add v5, v6, {srd(SRD_DBG)}, 0 offen sc0',
              'v_cmp_eq_u32 vcc, 12, v7', f'v_mov_b32 v8, {hb + 436:#x}', f'v_mov_b32 v9, {hb + 434:#x}', 'v_cndmask_b32 v8, v8, v9, vcc', 'v_sub_u32 v8, v8, v13']
        if o.spec:
            L += [f's_mov_b64 s[{S_MASK}:{S_MASK + 1}], exec', 's_mov_b64 exec, -1', f'v_readfirstlane_b32 s{S_T3}, v7'] + loads() + [f's_mov_b64 exec, s[{S_MASK}:{S_MASK + 1}]']
            L += ['s_waitcnt vmcnt(0) lgkmcnt(0)']
        else:
            L += ['s_waitcnt vmcnt(0) lgkmcnt(0)']
        L += (self.stamp(18) if o.diag else []) + self.probe('atm') + [
             f'v_cmp_eq_u32 s[{S_EX}:{S_EX + 1}], v5, v8', 's_mov_b64 exec, -1', f's_lshl_b32 s{S_BOUT}, s{S_BOUT}, 16',
             'v_lshrrev_b32 v1, 1, v3', 'v_lshrrev_b32 v2, 1, v4']
        if o.spec:
            L += [f's_bitcmp1_b32 s{S_EX}, 0', f's_bitset0_b32 s{S_EX}, 0', 's_cbranch_scc1 L_sum']
        pa = self.seq(L)
        L = ['L_fin:', f's_cmp_eq_u32 s{S_EX}, 0', 's_cbranch_scc1 L_done',
             f's_ff1_i32_b32 s{S_T2}, s{S_EX}', f's_bitset0_b32 s{S_EX}, s{S_T2}', f'v_readlane_b32 s{S_T3}, v7, s{S_T2}', 's_waitcnt vmcnt(0)', 'L_again:'] + loads()
        pb = self.seq(L)
        L = ['L_sum:', f'v_pk_add_f32 {p2(R_)}, {p2(A)}, {p2(A + 8)}', f'v_pk_add_f32 {p2(R_ + 2)}, {p2(A + 2)}, {p2(A + 10)}', f'v_add_f32 v{R_ + 4}, v{A + 4}, v{A + 12}']
        for qq in range(2, 14):
            L += [f'v_pk_add_f32 {p2(R_)}, {p2(R_)}, {p2(A + 8 * qq)}', f'v_pk_add_f32 {p2(R_ + 2)}, {p2(R_ + 2)}, {p2(A + 8 * qq + 2)}',
                  f'v_add_f32 v{R_ + 4}, v{R_ + 4}, v{A + 8 * qq + 4}']
        if o.sent:
            L += [f'v_cmp_u_f32 vcc, v{R_}, v{R_ + 1}', f'v_cmp_u_f32 s[{S_MASK}:{S_MASK + 1}], v{R_ + 2}, v{R_ + 3}', f's_or_b64 s[{S_MASK}:{S_MASK + 1}], s[{S_MASK}:{S_MASK + 1}], vcc',
                  f'v_cmp_u_f32 vcc, v{R_ + 4}, v{R_ + 4}', f's_or_b64 vcc, s[{S_MASK}:{S_MASK + 1}], vcc', 's_cbranch_vccnz L_chk', 'L_ok:']
        L += [f's_mul_i32 s{S_T3}, s{S_T3}, 640']
        A0 = A
        A = R_
        L += [f'v_add_f32 v{A + k}, s{S_BOUT}, v{A + k}' for k in range(5)]
        L += [f'v_cvt_pk_bf16_f32 v10, v{A}, v{A + 1}', f'v_cvt_pk_bf16_f32 v11, v{A + 2}, v{A + 3}', f'v_cvt_pk_bf16_f32 v12, v{A + 4}, v{A + 4}',
              f'buffer_store_dwordx2 v[10:11], v1, {srd(SRD_OUT)}, s{S_T3} offen', f'buffer_store_short v12, v2, {srd(SRD_OUT)}, s{S_T3} offen']
        if o.tailp:
            L += [f's_cmp_lg_u32 s{S_EX}, 0', 's_cbranch_scc1 L_fin', 's_waitcnt vmcnt(0)', 's_memrealtime s[86:87]', 's_waitcnt lgkmcnt(0)', 's_sub_u32 s88, s86, s88', 's_min_u32 s88, s88, 1000',
                  f's_mul_i32 s88, s88, {o.tailp - 1}', 's_add_u32 s88, s88, s86',
                  'L_spin:', 's_memrealtime s[86:87]', 's_waitcnt lgkmcnt(0)', 's_sub_u32 s89, s88, s86', 's_cmp_gt_i32 s89, 0', 's_cbranch_scc1 L_spin']
        if o.skew:
            L += [f's_cmp_lg_u32 s{S_EX}, 0', 's_cbranch_scc1 L_fin', 'v_lshlrev_b32 v20, 7, v0', 's_mov_b32 s88, 0x40000']
            for k in range(4):
                L += [f'buffer_load_dwordx3 v[{32 + 4 * k}:{34 + 4 * k}], v20, {srd(SRD_WS)}, s88 offen sc1', 's_add_u32 s88, s88, 8192']
            L += ['s_waitcnt vmcnt(0)']
            if o.probe.startswith('st') or o.absol:
                L += ['s_memrealtime s[88:89]', 's_waitcnt lgkmcnt(0)', 'v_mov_b32 v26, 0', 'v_mov_b32 v27, 0']
                for k in range(4):
                    L += [f'v_sub_u32 v28, s88, v{32 + 4 * k}', 'v_cmp_gt_u32 vcc, 4500, v28', f'v_not_b32 v29, v{32 + 4 * k}', 'v_cndmask_b32 v29, 0, v29, vcc', 'v_max_u32 v27, v27, v29']
                    if o.absol:
                        L += [f'v_cndmask_b32 v29, 0, v{34 + 4 * k}, vcc', 'v_max_u32 v26, v26, v29']
                    elif str(k) in o.probe[2:]:
                        L += [f'v_cndmask_b32 v29, 0, v{32 + 4 * k}, vcc', 'v_max_u32 v26, v26, v29']
            else:
                for k in range(4):
                    L += [f'v_sub_u32 v28, v{34 + 4 * k}, v{32 + 4 * k}', f'v_cmp_gt_u32 vcc, {100000 if o.cyc else 5000}, v28', f'v_cndmask_b32 v28, 0, v28, vcc',
                          f'v_cmp_eq_u32 vcc, v{32 + 4 * k}, v{33 + 4 * k}', f'v_cndmask_b32 v{33 + 4 * k}, 0, v28, vcc']
                L += ['v_max_u32 v26, v33, v37', 'v_max3_u32 v26, v26, v41, v45', 'v_mov_b32 v27, -1']
            if o.probe == 'span':
                L += ['s_memrealtime s[86:87]', 's_waitcnt lgkmcnt(0)', 'v_mov_b32 v26, s86']
            for (ctl, rm) in (('row_shr:1', '0xf'), ('row_shr:2', '0xf'), ('row_shr:4', '0xf'), ('row_shr:8', '0xf'), ('row_bcast:15', '0xa'), ('row_bcast:31', '0xc')):
                L += [f'v_max_u32_dpp v{r}, v{r}, v{r} {ctl} row_mask:{rm} bank_mask:0xf' for r in (26, 27)]
            L += ['v_not_b32 v27, v27', 'v_sub_u32 v22, v26, v27', 's_memrealtime s[86:87]', 'v_readlane_b32 s88, v22, 63', 's_waitcnt lgkmcnt(0)',
                  *([f's_max_u32 s88, s88, {o.cyc.split(chr(44))[2]}', f's_sub_u32 s88, s88, {o.cyc.split(chr(44))[2]}', 's_lshr_b32 s88, s88, 1'] if o.cyc else []), 's_min_u32 s88, s88, 5000', f's_mul_i32 s88, s88, {o.skew - 1}', 's_add_u32 s88, s88, s86',
                  'L_spin:', 's_memrealtime s[86:87]', 's_waitcnt lgkmcnt(0)', 's_sub_u32 s89, s88, s86', 's_cmp_gt_i32 s89, 0', 's_cbranch_scc1 L_spin']
        L += self.stamp(5) + self.stamp_flush() + ['s_branch L_fin']
        pc_ = self.seq(L)
        if o.sent:
            L = ['L_chk:', 'v_mov_b32 v14, 0', 'v_mov_b32 v15, 0']
            for qq in range(14):
                L += [f'v_max3_u32 v14, v14, v{A0 + 8 * qq}, v{A0 + 8 * qq + 1}', f'v_max3_u32 v14, v14, v{A0 + 8 * qq + 2}, v{A0 + 8 * qq + 3}', f'v_max_u32 v15, v15, v{A0 + 8 * qq + 4}']
            L += [f's_cmp_eq_u32 s{S_T3}, 12', f's_cselect_b32 s{S_T0}, 0, -1', f'v_and_b32 v15, s{S_T0}, v15', 'v_max_u32 v14, v14, v15',
                  'v_cmp_eq_u32 vcc, -1, v14', 's_cbranch_vccnz L_again', 's_branch L_ok']
            self.chk = self.seq(L)
        pe = self.seq(['L_done:', 's_endpgm'])
        self.pub = pa + pb + pc_ + pe
        self.extra_traces = [pa + pc_ + pb + pc_] + ([pa + pb + pc_[:45] + self.chk + pb[7:] + pc_] if o.sent else [])
        return [tc, tl + self.pub]

    def cinit(self, lab, skip):
        return ['s_mov_b64 exec, 0x1fff', 'v_mov_b32 v20, 1', 'v_mov_b32 v21, 0', f'v_lshlrev_b32 v22, {self.opt.wsc}, v0', 's_mov_b64 exec, 1',
                f'buffer_atomic_add v20, v21, {srd(SRD_DBG)}, 0 offen sc0', f's_mov_b32 s{S_TW}, 0x60000', 's_waitcnt vmcnt(0)',
                'v_cmp_ne_u32 vcc, 0, v20', f's_cbranch_vccnz {skip}', 's_mov_b64 exec, 0x1fff',
                f'buffer_store_dword v21, v22, {srd(SRD_WS)}, s{S_TW} offen sc1', 's_mov_b64 exec, 1', 'v_mov_b32 v20, 1', 's_waitcnt vmcnt(0)',
                f'buffer_store_dword v20, v21, {srd(SRD_DBG)}, 0 offen offset:128 sc1']

    def cready(self, tag, vr_):
        self.late += [f'L_ci{tag}:'] + self.cinit(tag, f'L_cp{tag}') + [f'L_cp{tag}:', f'buffer_load_dword v20, v21, {srd(SRD_DBG)}, 0 offen offset:128 sc1', 's_waitcnt vmcnt(0)',
                      'v_cmp_eq_u32 vcc, 0, v20', f's_cbranch_vccnz L_cp{tag}', 's_mov_b64 exec, -1', f's_branch L_cr{tag}']
        return [f'v_readfirstlane_b32 s{S_TW}, v{vr_}', f's_cmp_eq_u32 s{S_TW}, 0', f's_cbranch_scc1 L_ci{tag}', f'L_cr{tag}:']

    def pubsrd(self):
        return self.build_srd(SRD_WS, S_WS, 0x10000000) + self.build_srd(SRD_OUT, S_OUT, 8192) + self.build_srd(SRD_DBG, S_DBG, 256)

    def tables(self):
        OOB = 0x100000
        G = [[] for _ in range(11)]
        for l in range(64):
            half, i32, g, r, c = l >> 5, l & 31, l >> 4, (l >> 2) & 3, l & 3
            lin0 = g * 128 + r * XPP + c * 8
            G[0] += [lin0, lin0 + 512 if g < 3 else XOFF(27) + c * 8, (l >> 3) * 16, 0x3f803f80 if l < 32 else 0]
            G[1] += [(l & 7) * 16, 0xeeee if l & 1 else 0x4444, half * XPP + i32 * 4, IMG + half * 20 * IMGP + i32 * 4]
            tr = [IMG + cin16.IMGROW(cin16.LAB[g][2 * rp + (r >> 1)][r & 1]) * IMGP + c * 8 for rp in range(8)]
            G[2] += tr[:4]
            G[3] += tr[4:]
            row, col = 8 * half + r, (g & 1) * 32 + c * 8
            G[4] += [V3OFF + row * 64 + col, A1 + row * 1352 + col, A1 + min(row + 16, 25) * 1352 + col, A1 + min(row + 20, 25) * 1352 + col]
            t, gd, rr = (i32 >> 2) & 1, i32 >> 3, i32 & 3
            ig = 16 * t + 4 * rr + gd
            iq = 4 * rr + gd if t == 0 else 16 + ((4 * rr + gd + 4) & 15)
            pm = []
            for q in range(8):
                k0 = 16 * (q >> 2) + 8 * half + 2 * (q & 3)
                pm.append((0xffff if iq == k0 else 0xffff0000 if iq == k0 + 1 else 0) if iq < 26 else 0)
            G[5] += pm[:4]
            G[6] += pm[4:]
            ga = A2 + 52 * ig if ig < 26 else OOB
            rowp = ((l & 12) + 2 * (l & 1)) * 16 + (OOB if l & 2 else 0)
            G[7] += [ga + half * 8 * W2P, ga + half * OOB, rowp + half * 256 + (g & 1) * 8, rowp + g * 256]
            G[8] += [SG + i32 * 64 if i32 < 26 else V2S if i32 == 26 else OOB, 64 if i32 == 26 else 3328, (i32 >> 1) + 2 * half,
                     SQ + i32 * 64 + ((((i32 >> 1) & 3) ^ (2 * half)) << 4)]
            v2 = []
            for hf in range(2):
                j = 4 * g + 16 * hf + r
                v2.append(V2S + (j & 1) * 1664 + (j >> 1) * 64 + ((c ^ (((13 + j) & 3) * 2)) * 8) if j < 26 else SG + 676 * 64 + c * 8)
            wo = [L_WCO + 2 * (16 * tl_ + 4 * c + r) if 16 * tl_ + 4 * c + r < 26 else OOB for tl_ in range(2)]
            G[9] += v2 + wo
            G[10] += [L_WCO + 104 + 16 * half, L_WCO + 52 + 2 * l, V3OFF + 52 + 64 * l, SG + 676 * 64 + (l & 15) * 4]
        U = []
        for w in range(8):
            for e in range(16):
                for u in (w, w + 8, w + 16):
                    U += [SG + row * 64 + f * 8 for row, f in cin16.p2rows(u, e >> 2, e & 3)] if u < 22 else [0, 0]
        return [x for n in (4, 2, 3, 0, 5, 6, 7, 8, 9, 1, 10) for x in G[n]] + [0] * 256 + U + [0] * 256

    def cin(self):
        o = self.opt
        cw = S_CW
        vFa, vLin0, vLin1, vXi0, vXi1, vC16, vIDX, vXa, vIw, vPWL, vPXL, PXR, PFR = 1, 4, 5, 6, 7, 8, 9, 10, 11, 12, 13, 14, 15
        XI, vTR = 16, 20
        XR, P, Z, WF, D = 32, 60, 116, 164, 184
        vStg, vFR, vFw = vFa, 2, 59
        t3, t4, t5 = 29, 30, 31
        AV = [28, 58]
        PM = 216
        vA3, vBs0, vBs1a, vBs1b, vGa, vGb, vT3, vT3d = range(224, 232)
        G8, vV2r, vV2q, vWo, AD = 232, 236, 237, 238, 240
        WA = list(range(244, 250))
        vS, vMx = 250, 111
        UA, UX = 224, [232, 233, 234, 235, 240, 241]
        AFR = 112
        BALL, DALL = 60, 120
        S_F1, S_F2, S_G, S_LO, S_HI, S_CM, S_U0, S_U1, S_U2 = 74, 75, 95, 96, 97, 90, 98, 99, 100
        S_CG, S_IV = 0, 1
        OOB = 0x100000
        TA_, TB_, TC_ = SG + 35840, SQ + 26 * W2P, FRS + 2048
        GREG = [224, 20, 24, 4, 216, 220, 228, 232, 236, 8, 240]
        DPPS = (('row_shr:1', '0xf'), ('row_shr:2', '0xf'), ('row_shr:4', '0xf'), ('row_shr:8', '0xf'),
                ('row_bcast:15', '0xa'), ('row_bcast:31', '0xc'))

        K_W7, K_IMG, K_W2, K_W1, K_W12, K_H8, K_T3 = 52, 53, 54, 55, 92 - 10, 92 - 9, 91
        L = ['L_cin:', f'v_lshlrev_b32 v{vStg}, 4, v0', f's_and_b32 s{cw}, s{S_WAVE}, 3', f's_lshr_b32 s{S_GRP}, s{S_WAVE}, 2', f's_lshl_b32 s{S_STG}, s{cw}, 10',
             f's_mul_i32 s{S_MB}, s{S_T0}, 11', f's_add_u32 s{S_MB}, s{S_MB}, s{S_T1}', f's_sub_u32 s{S_MB}, s{S_MB}, 22',
             f's_cmp_eq_u32 s{S_MB}, 86', 's_cbranch_scc1 L_spare' if o.wsc and not o.nospare else 's_cbranch_scc1 L_end', f's_cmp_eq_u32 s{S_GRP}, 0', 's_cbranch_scc1 L_sc']
        c0 = self.seq(L)
        L = ['s_setprio 2', f'v_add_u32 v2, L_tables-L_pc+4096, v{vStg}', f'v_mov_b32 v3, s{S_MASK + 1}',
             f'v_add_co_u32 v2, vcc, s{S_MASK}, v2', 'v_addc_co_u32 v3, vcc, 0, v3, vcc',
             f'v_add_co_u32 v{XR}, vcc, s{S_STG}, v2', f'v_addc_co_u32 v{XR + 1}, vcc, 0, v3, vcc',
             f'global_load_dwordx4 {vr(GREG[0], 4)}, v[2:3], off offset:-4096',
             'v_add_co_u32 v2, vcc, 0x1800, v2', 'v_addc_co_u32 v3, vcc, 0, v3, vcc', f'global_load_dwordx4 {vr(GREG[10], 4)}, v[2:3], off',
             f's_cmp_lt_u32 s{cw}, 3', f's_mov_b32 s{S_T2}, {TB_ - 3072}', f's_cselect_b32 s{S_T2}, {TA_ + 4096}, s{S_T2}']
        tdma = lambda off: I(f'global_load_lds_dwordx4 {vr(XR, 2)}, off offset:{off}', tag='TAB')
        L += [f's_add_u32 m0, s{S_STG}, {TA_ + 4096}', tdma(-4096), f's_add_u32 m0, s{S_STG}, s{S_T2}', tdma(0),
              f'v_add_co_u32 v{XR}, vcc, 0x2000, v{XR}', f'v_addc_co_u32 v{XR + 1}, vcc, 0, v{XR + 1}, vcc',
              f's_add_u32 m0, s{S_STG}, {TC_}', tdma(0), f's_add_u32 m0, s{S_STG}, {TB_ + 1024 + 4096}', f's_cmp_ge_u32 s{cw}, 2', 's_cbranch_scc1 L_sc']
        g1s = self.seq(L)
        L = [tdma(-4096)]
        g1t = self.seq(L)
        L = ['L_sc:', f's_mul_i32 s{S_RC}, s{S_GRP}, 20', f's_add_u32 s{S_RC}, s{S_RC}, s{S_WAVE}',
             f's_mul_i32 s{S_SAMP}, s{S_MB}, 48', f's_add_u32 s{S_SAMP}, s{S_SAMP}, s{S_RC}', f's_mul_i32 s{S_SAMP}, s{S_SAMP}, 104',
             f'v_lshrrev_b32 v{t4}, 3, v0', f'v_lshlrev_b32 v{t4}, 4, v{t4}', f'v_and_b32 v{t3}, 0x70, v{vStg}',
             f's_mul_i32 s{S_XM0}, s{S_WAVE}, {XBSZ}', f's_add_u32 s{S_XM0}, s{S_XM0}, {XB}', f's_cmp_eq_u32 s{S_GRP}, 0', 's_cbranch_scc1 L_g0']
        csc = self.seq(L)
        SC2 = [f's_lshl_b32 s{S_RC}, s{S_RC}, 2', f's_add_u32 s{S_RC}, s{S_RC}, {RC}',
               f's_mul_i32 s{S_LOOP}, s{S_GRP}, 3', f's_sub_u32 s{S_LOOP}, 4, s{S_LOOP}', (f's_cmp_eq_u32 s{S_MB}, 85', f's_cselect_b32 s{S_LOOP}, s{S_LOOP}, 6'),
               f's_lshl_b32 s{K_W7}, s{S_WAVE}, 7', f's_mul_i32 s{K_IMG}, s{S_WAVE}, {IMGSZ}', f's_lshl_b32 s{K_W2}, s{S_WAVE}, 2', f's_lshl_b32 s{K_W1}, s{S_WAVE}, 1',
               f's_lshl_b32 s{K_W12}, s{S_WAVE}, 12',
               f's_and_b32 s{S_U0}, s{S_WAVE}, 1', f's_lshr_b32 s{S_U1}, s{S_WAVE}, 1',
               f's_mul_i32 s{S_T0}, s{S_U1}, 3072', f's_lshl_b32 s{K_H8}, s{S_U0}, 3', f's_add_u32 s{S_T0}, s{S_T0}, s{K_H8}', f'v_add_u32 v{vFw}, s{S_T0}, v{vStg}',
               f's_lshl_b32 s{S_T1}, s{S_U1}, 3', f's_lshr_b32 s{S_T1}, 0x05030200, s{S_T1}', f's_and_b32 s{S_T1}, s{S_T1}, 0xff',
               f's_lshl_b32 s{S_T1}, s{S_T1}, 9', f's_lshl_b32 s{S_T2}, s{S_U0}, 2', f's_add_u32 s{K_T3}, s{S_T1}, s{S_T2}',
               f's_mov_b32 s{S_U1}, 0x05040100', f's_mov_b32 s{S_U2}, 0x07060302',
               f'v_mov_b32 v{vFR}, {L_FLG}', 'v_mov_b32 v109, 0', 'v_mov_b32 v108, 0'] + [f'v_mov_b64 {vr(r, 2)}, 0' for r in range(XR, XR + 26, 2)]
        XJ = 104 if o.xat < 4 else 12

        def pfw(dst=3):
            return [f'buffer_load_dword v{dst}, v{vPWL}, {srd(SRD_W)}, s{S_PW} offen',
                    f's_add_u32 s{S_PW}, s{S_PW}, {o.pfne * 688 * 128}']

        def pfx_a():
            return [f'buffer_load_dword v{PXR}, v{vPXL}, {srd(SRD_IDX)}, s{S_PX} offen',
                    f's_cmp_eq_u32 s{S_PX}, s{S_PXE}', f's_cselect_b32 s{S_PXE}, 0x7000000, s{S_PXE}',
                    f's_cselect_b32 s{S_PX}, 0x7000000, s{S_PX}',
                    f's_add_u32 s{S_PX}, s{S_PX}, 24', f's_min_u32 s{S_PX}, s{S_PX}, s{S_PXE}']

        def pfx_b():
            return [f'v_lshlrev_b32 v{PXR}, 7, v{PXR}', f'buffer_load_dword v{PFR}, v{PXR}, {srd(SRD_TAB)}, 0 offen']

        def xidx(XI=XI, vXi0=vXi0):
            return [f'buffer_load_dwordx4 {vr(XI, 4)}, v{vXi0}, {srd(SRD_IDX)}, s{S_SAMP} offen', f's_add_u32 s{S_SAMP}, s{S_SAMP}, {4 * 104}']

        def xdma(XI=XI, off=0, tag='XB', vC16=vC16):
            c = [f'v_lshl_add_u32 v{XI + u}, v{XI + u}, 7, v{vC16}' for u in range(4)]
            for u in range(4):
                c += [f's_add_u32 m0, s{S_XM0}, {u * XPP + off}']
                if u % 2 == 0:
                    c.append(f's_mov_b32 exec_hi, {0xffffff if u == 0 else 0xffff:#x}')
                c.append(I(f'buffer_load_dwordx4 v{XI + u}, {srd(SRD_TAB)}, 0 offen lds', tag=tag))
            return c + ['s_mov_b32 exec_hi, -1']

        def stage(dst, goff, tag):
            st = []
            for m in range(9):
                st.append((f's_add_u32 m0, s{S_STG}, {dst + m * 4096}', f's_add_u32 s{S_TW}, s{S_STG}, {goff + m * 4096}',
                           I(f'buffer_load_dwordx4 v{vStg}, {srd(SRD_CIN)}, s{S_TW} offen lds', tag=tag)))
            return st

        def pubmax(regs_offs):
            c = []
            for (ctl, rm) in DPPS:
                for r, _ in regs_offs:
                    c.append(f'v_max_u32_dpp v{r}, v{r}, v{r} {ctl} row_mask:{rm} bank_mask:0xf')
            c += ['s_mov_b32 exec_lo, 0', 's_mov_b32 exec_hi, 0x80000000']
            c += [f'ds_max_u32 v{vFR}, v{r} offset:{16 + 4 * k}' for r, k in regs_offs]
            return c + ['s_mov_b64 exec, -1']

        def mxop(src, n, mx, first):
            return [f'v_mfma_f32_16x16x32_bf16 {vr(mx, 4)}, {vr(src + r, 4)}, {vr(src + r, 4)}, {"0" if first and r == 0 else vr(mx, 4)}' for r in range(0, n, 4)]

        def mxfin(mx):
            return [f'v_max3_f32 v{mx}, v{mx}, v{mx + 1}, 0', f'v_max3_f32 v{mx}, v{mx}, v{mx + 2}, v{mx + 3}']

        def bread(m, off):
            b = BALL + m * 8
            return [f'ds_read_b64_tr_b16 {vr(b, 2)}, v{vBs0} offset:{off}',
                    f'ds_read_b64_tr_b16 {vr(b + 2, 2)}, v{vBs0} offset:{off + 4 * 1352}',
                    f'ds_read_b64_tr_b16 {vr(b + 4, 2)}, v{vBs1a} offset:{off}',
                    f'ds_read_b64_tr_b16 {vr(b + 6, 2)}, v{vBs1b} offset:{off}']

        def mm2(d, a, b):
            return [f'v_mfma_f32_32x32x16_bf16 {vr(d, 16)}, {vr(a, 4)}, {vr(b, 4)}, 0',
                    f'v_mfma_f32_32x32x16_bf16 {vr(d, 16)}, {vr(a + 4, 4)}, {vr(b + 4, 4)}, {vr(d, 16)}']

        tA, tB = 250, 251
        if o.pfw:
            SC2 += self.build_srd(SRD_W, S_W1, 1664 * 3328) + [
                f's_lshl_b32 s{S_PW}, s{S_MB}, 3', f's_add_u32 s{S_PW}, s{S_PW}, s{S_WAVE}', f's_add_u32 s{S_PW}, s{S_PW}, {o.pfe0 * 832}', f's_lshl_b32 s{S_PW}, s{S_PW}, 7',
                f's_mov_b32 s{S_T3}, {688 * 128}', f'v_min_u32 v{vPWL}, {max(o.pfne - 1, 0)}, v0', f'v_mul_lo_u32 v{vPWL}, s{S_T3}, v{vPWL}']
        if o.pfx:
            SC2 += [f's_lshl_b32 s{S_PX}, s{S_MB}, 3', f's_add_u32 s{S_PX}, s{S_PX}, s{S_WAVE}', f's_mul_i32 s{S_PX}, s{S_PX}, {6 * 104}',
                    f's_add_u32 s{S_PXE}, s{S_PX}, 80', f's_add_u32 s{S_PX}, s{S_PX}, {4 * o.pfx0}',
                    f'v_min_u32 v{PXR}, 35, v0', f'v_mul_u32_u24 v{vPXL}, 10923, v{PXR}', f'v_lshrrev_b32 v{vPXL}, 16, v{vPXL}',
                    f'v_mul_u32_u24 v{vPXL}, {104 - 24}, v{vPXL}', f'v_lshl_add_u32 v{vPXL}, v{PXR}, 2, v{vPXL}']
        trd = lambda n: f'ds_read_b128 {vr(GREG[n], 4)}, v{tA if n < 7 else tB} offset:{(n if n < 7 else n - 7) * 1024}'
        vbs = [f'v_add_u32 v{r}, s{K_W7}, v{r}' for r in (vBs0, vBs1a, vBs1b)]

        def FX(g):
            R = [trd(n) for n in ((0,) if g == 0 else ()) + (6, 7, 3, 9, 1, 2, 4, 5, 8)]
            F = vbs + [f'v_add_u32 v{r}, s{K_W2}, v{r}' for r in (vGa, vGb)]
            F += [f'v_add_u32 v{vT3d}, s{K_H8}, v{vT3d}', f'v_add_u32 v{vT3}, s{K_T3}, v{vT3}']
            F += [f'v_mad_u32_u24 v{G8}, v{G8 + 1}, s{S_WAVE}, v{G8}', f'v_add_u32 v{G8 + 2}, s{K_W1}, v{G8 + 2}',
                  f'v_mad_u32_u24 v{G8 + 1}, v{G8 + 1}, 8, v{G8}', f'v_add_u32 v{WA[2]}, s{K_W12}, v{G8 + 3}', f'v_add_u32 v{WA[3]}, 2048, v{WA[2]}']
            for n_, (wa, bs) in enumerate(((WA[0], G8), (WA[1], G8), (WA[4], G8 + 1), (WA[5], G8 + 1))):
                F += [f'v_add_u32 v{t5}, {n_ & 1}, v{G8 + 2}', f'v_and_b32 v{t5}, 3, v{t5}', f'v_lshl_add_u32 v{wa}, v{t5}, 4, v{bs}']
                if n_ & 1:
                    F.append(f'v_add_u32 v{wa}, 1664, v{wa}')
            F += [f'v_add_u32 v{r}, s{S_XM0}, v{r}' for r in (vXa, vLin0, vLin1)] + [f'ds_write_b32 v{vXa}, v{vXi1} offset:{XOFF(26)}']
            F += [f'v_add_u32 v{r}, s{K_IMG}, v{r}' for r in [vIw] + list(range(vTR, vTR + 8))]
            return R, F
        SC2 += [f'v_add_u32 v{tA}, {TA_}, v{vStg}', f'v_add_u32 v{tB}, {TB_}, v{vStg}', f'v_lshrrev_b32 v3, 5, v0', f'v_lshl_add_u32 v3, v3, 2, v{vFR}']

        def pub2(r1, r2, off):
            c = [f'v_permlane32_swap_b32 v{r1}, v{r2}', f'v_max_u32 v{r1}, v{r1}, v{r2}']
            c += [f'v_max_u32_dpp v{r1}, v{r1}, v{r1} {ctl} row_mask:{rm} bank_mask:0xf' for ctl, rm in DPPS[:5]]
            return c + ['s_mov_b32 exec_lo, 0x80000000', 's_mov_b32 exec_hi, 0x80000000', f'ds_max_u32 v3, v{r1} offset:{16 + off}', 's_mov_b64 exec, -1']
        AV = [28, 58, 111]
        CO = [f's_sub_u32 s{S_T0}, s{S_T3}, 22', f's_min_u32 s{S_T0}, s{S_T0}, 9', f's_lshl_b32 s{S_T0}, s{S_T0}, 2', f's_add_u32 s{S_T0}, s{S_T0}, s{cw}', f's_lshl_b32 s{S_T0}, s{S_T0}, 7',
              f'v_mul_u32_u24 v{t5}, {40 * 128}, v0', 's_waitcnt lgkmcnt(0)'] + self.build_srd(SRD_CIN, S_CIN, 105456) + [
              f'buffer_load_dword v107, v{t5}, {srd(SRD_CIN)}, s{S_T0} offen']
        L = CO if o.coop in (1, 2) else []
        L += ['s_waitcnt lgkmcnt(0)'] + self.build_srd(SRD_WCO, S_WCO, 156) + [f's_mov_b32 m0, {L_WCO}', 's_mov_b64 exec, 0x7ff',
             I(f'buffer_load_dwordx4 v{vStg}, {srd(SRD_WCO)}, 0 offen lds', tag='WCO'), 's_mov_b64 exec, -1'] + (['s_barrier'] if o.coop in (2, 4) else []) + self.stamp0() + SC2
        L += self.build_srd(SRD_IDX, S_IDX, 4096 * 104) + self.build_srd(SRD_TAB, S_TAB, 100000 * 128)
        XK = 12
        if o.g1t:
            assert not o.pfx
            L += [f'v_and_b32 v13, 31, v0', f'v_min_u32 v13, 25, v13', f'v_lshrrev_b32 v14, 5, v0', f'v_mul_u32_u24 v14, {4 * 104}, v14', f'v_lshl_add_u32 v13, v13, 2, v14',
                  f'buffer_load_dword v14, v13, {srd(SRD_IDX)}, s{S_SAMP} offen']
        g1touch = [f'v_lshlrev_b32 v14, 7, v14', f'buffer_load_dword v13, v14, {srd(SRD_TAB)}, 0 offen']
        hx = []
        if o.hx:
            mg = {4: 16384, 5: 13108}[o.hx]
            assert all((d * mg) >> 16 == d // o.hx for d in range(64))
            L += [f'v_min_u32 v12, {12 * o.hx - 1}, v0', f'v_mul_u32_u24 v15, {mg}, v12', 'v_lshrrev_b32 v15, 16, v15', f'v_mul_u32_u24 v15, {104 - 4 * o.hx}, v15', 'v_lshl_add_u32 v12, v12, 2, v15',
                  f's_lshl_b32 s{S_T0}, s{S_MB}, 2', f's_add_u32 s{S_T0}, s{S_T0}, s{cw}', f's_mul_i32 s{S_T0}, s{S_T0}, {12 * 104}',
                  f'buffer_load_dword v15, v12, {srd(SRD_IDX)}, s{S_T0} offen offset:{4 * o.hx0}']
            hx = ['v_lshlrev_b32 v15, 7, v15', f'buffer_load_dword v12, v15, {srd(SRD_TAB)}, 0 offen']
        if o.hw:
            hw = self.build_srd(SRD_W, S_W1, 1664 * 3328) + [f's_lshl_b32 s{S_T0}, s{S_MB}, 2', f's_add_u32 s{S_T0}, s{S_T0}, s{cw}', f's_add_u32 s{S_T0}, s{S_T0}, {o.hw0 * 832}',
                  f's_lshl_b32 s{S_T0}, s{S_T0}, 7', f'v_mul_u32_u24 v106, {344 * 128}, v0', f's_mov_b64 exec, {(1 << o.hw) - 1}',
                  f'buffer_load_dword v{XI}, v106, {srd(SRD_W)}, s{S_T0} offen', 's_mov_b64 exec, -1']
        if o.xg1:
            L += [f's_sub_u32 s{S_T0}, s{S_SAMP}, {24 * 104}', f'buffer_load_dwordx4 {vr(XI, 4)}, v{t4}, {srd(SRD_IDX)}, s{S_T0} offen',
                  f'buffer_load_dwordx4 {vr(XK, 4)}, v{t4}, {srd(SRD_IDX)}, s{S_T0} offen offset:{4 * 104}']
        L += [f'ds_write_b128 v{vFR}, {vr(XR, 4)} offset:16', f's_lshl_b32 s{S_T0}, s{cw}, 6', f'v_add_u32 v{t3}, s{S_T0}, v0']
        for p_ in range(3):
            L += [f'v_mul_u32_u24 v{t4}, 2521, v{t3}', f'v_lshrrev_b32 v{t4}, 16, v{t4}', f'v_mul_u32_u24 v{t4}, 12, v{t4}', f'v_lshl_add_u32 v{AV[p_]}, v{t3}, 1, v{t4}']
            L += [f'v_add_u32 v{t3}, 256, v{t3}'] if p_ < 2 else [f'v_cmp_gt_u32 vcc, 676, v{t3}', f's_mov_b64 s[{S_MASK}:{S_MASK + 1}], vcc']
        L += [f'v_lshlrev_b32 v{t3}, 3, v0', 's_mov_b32 exec_hi, 0xffff', f'ds_write_b64 v{t3}, {vr(XR, 2)} offset:{V3OFF + 26 * 64}', 's_mov_b32 exec_hi, -1',
              f'ds_write_b32 v{AD + 3}, v{XR}', f'ds_write_b32 v{AD + 3}, v{XR} offset:{SSZ}', WaitTag(vm_tags=['WCO'])]
        assert V3OFF == 0
        for s2 in range(2):
            for rd in range(2):
                L.append(f'ds_read_b64 {vr(AFR + 4 * s2 + 2 * rd, 2)}, v{AD} offset:{s2 * 32 + rd * 8}')
        L += [f'ds_read_u16 v110, v{AD + 1}',
              's_mov_b64 exec, 0x3ffffff', f'ds_write_b16 v{AD + 2}, v110', 'v_lshlrev_b32 v109, 17, v110', 'v_lshrrev_b32 v109, 1, v109', 's_mov_b64 exec, -1']
        if o.cwalk:
            L += ['s_mov_b64 exec, 0'] + [x for q_ in range(3) for x in (f's_cmp_eq_u32 s{cw}, {q_}', f's_cbranch_scc1 L_WENTRY{q_}')] + ['s_branch L_WENTRY3', 'L_wret:', 's_mov_b64 exec, -1']
        L += (FX(1)[1] if o.dirt else vbs) + [WaitTag(vm_tags=['TAB'], lgkm0=True)] + self.probe('tab') + (pfw(PFR) if o.pfw and o.pfs == 1 else []) + (hw if o.hw and o.hwat == 0 else []) + (hx if o.hxat == 0 else [])
        v3p = []
        L += ['s_barrier'] + self.stamp(2) + self.probe('b0')
        vb = lambda m: A3 - A1 - 512 + (m >> 1) * 512 + (m & 1) * 64
        for m in range(3):
            L += bread(m, vb(m))
        for m in range(6):
            if m + 3 < 6:
                L += bread(m + 3, vb(m + 3))
            L += mm2(DALL + m * 16, AFR, BALL + m * 8)
            if m == 3 and not o.dirt:
                L += FX(1)[0]
        if not o.dirt:
            L += FX(1)[1][3:]
        for p_ in range(3):
            L += ['s_mov_b32 exec_lo, 0', f'v_mov_b32 v{DALL + 32 * p_}, v{DALL + 32 * p_ + 16}', 's_mov_b32 exec_lo, -1',
                  f'v_cvt_pk_bf16_f32 v{BALL + p_}, 0, v{DALL + 32 * p_}']
            if p_ == 2:
                L += [f's_mov_b64 exec, s[{S_MASK}:{S_MASK + 1}]']
            L += [f'ds_write_b16_d16_hi v{AV[p_]}, v{BALL + p_}', f'v_max_f32 v108, |v{BALL + p_}|, v108']
        L += ['s_mov_b64 exec, -1'] + pub2(108, 109, 8) + self.stamp(13) + [f's_setprio {o.g1p}'] + (hw if o.hw and o.hwat == 1 else []) + (hx if o.hxat == 1 else []) + (g1touch if o.g1t == 1 else []) + ['s_waitcnt lgkmcnt(0)', 's_barrier'] + (g1touch if o.g1t == 2 else []) + ['s_branch L_w2']
        v3 = self.seq(L)

        def stage3(dst, goff, tag, lab, mid=None, fill=()):
            st = stage(dst, goff, tag)
            a_ = st[:8] if mid is None else st[:mid[0]] + [tuple(mid[1])] + st[mid[0]:8]
            return (self.seq(interleave(a_, list(fill)) + [f's_cmp_eq_u32 s{cw}, 3', f's_cbranch_scc1 {lab}']), self.seq([st[8]]), self.seq([f'{lab}:']))
        g0 = [self.seq(['L_g0:'] + ([x.replace('v107,', 'v103,') for x in CO] if o.coop >= 3 else ['s_waitcnt lgkmcnt(0)'] + self.build_srd(SRD_CIN, S_CIN, 105456)) + (['s_barrier'] if o.coop in (2, 4) else []) + ([Touch('v103')] if o.coop == 5 else []))]
        g0.append(stage3(A3, 70304, 'W3', 'L_st3'))
        g0.append(self.seq(self.stamp0() + self.build_srd(SRD_IDX, S_IDX, 4096 * 104) + ([f's_add_u32 s{S_SAMP}, s{S_SAMP}, {8 * 104}'] if o.xg1 else xidx(XI, t4) + xidx(XJ, t4)) + self.build_srd(SRD_TAB, S_TAB, 100000 * 128)))
        def w2grp(n):
            c = []
            for k, go in enumerate((0, 1024, 1864)):
                c.append((f's_add_u32 m0, s{S_STG9}, {A2 + n * 4 * 3072 + k * 1024}', f's_add_u32 s{S_TW}, s{S_TGT}, {35152 + n * 4 * 2704 + go}',
                          I(f'buffer_load_dwordx4 v{t5 if k == 1 else vStg}, {srd(SRD_CIN)}, s{S_TW} offen lds', tag='W2')))
            return c
        g0.append((self.seq([f's_mul_i32 s{S_STG9}, s{cw}, 3072', f's_mul_i32 s{S_TGT}, s{cw}, 2704', f'v_lshrrev_b32 v{t5}, 5, v0', f'v_mul_u32_u24 v{t5}, 184, v{t5}',
                             f'v_sub_u32 v{t5}, v{vStg}, v{t5}'] + interleave(w2grp(0) + w2grp(1) + w2grp(2), SC2) + [f's_cmp_lg_u32 s{cw}, 0', 's_cbranch_scc1 L_st2']),
                   self.seq(w2grp(3)), self.seq(['L_st2:']), 1))
        xx = xdma(vC16=t3, tag='XBa') + xdma(XJ, 4 * XBSZ, vC16=t3)
        g0.append(stage3(A1, 0, 'W1', 'L_st1', (o.sigat, [WaitTag(vm_tags=['W2' if o.mrg else 'W3']), 's_barrier'] + self.stamp(2) + FX(0)[0])))
        g0.append(self.seq((xx if o.xat == 0 else xx[:len(xx) // 2] if o.xat == 3 else []) + (pfw(PFR) if o.pfw and o.pfs == 1 else []) + FX(0)[1] + (xx if o.xat == 2 else xx[:len(xx) // 2] if o.xat >= 4 else []) + self.stamp(13)
                           + [WaitTag(vm_tags=['W1']), 's_barrier'] + (xx if o.xat == 1 else xx[len(xx) // 2:] if o.xat == 3 else [])))

        def G0(w):
            r = []
            for x in g0:
                r += x if isinstance(x, list) else x[0] + (x[1] if w < (3 if len(x) == 3 else x[3]) else []) + x[2]
            return r

        def gather(dst, off):
            c = [f'v_add_u32 v{r}, {off}, v{r}' for r in (vGa, vGb)] if off else []
            for s2 in range(2):
                for e in range(0, 8, 2):
                    base = vGb if (s2 == 1 and e >= 2) else vGa
                    h = 16 * s2 + e
                    c.append(f'ds_read2st64_b32 {vr(dst + 8 * s2 + e, 2)}, v{base} offset0:{6 * h} offset1:{6 * h + 6}')
            return c

        def perms(g_, aj):
            return [f'v_perm_b32 v{aj + 8 * jj + r}, v{g_ + 2 * r + 1}, v{g_ + 2 * r}, s{S_U1 + jj}' for jj in range(2) for r in range(8)]

        def sout(t):
            d, c_ = DALL + 16 * t, DALL + 16 * t
            c = [f'v_cvt_pk_f16_f32 v{c_ + r}, v{d + 2 * r}, v{d + 2 * r + 1}' for r in range(8)]
            return c[:4] + [f'ds_write_b128 v{WA[t]}, {vr(c_, 4)}', f'v_xor_b32 v{WA[t]}, 16, v{WA[t]}'] + c[4:] + [f'ds_write_b128 v{WA[t]}, {vr(c_ + 4, 4)}']
        M1, M2 = 28, 28

        def pub1(r, off):
            c = [f'v_max_u32_dpp v{r}, v{r}, v{r} {ctl} row_mask:{rm} bank_mask:0xf' for ctl, rm in DPPS]
            return c + [('s_mov_b32 exec_lo, 0', 's_mov_b32 exec_hi, 0x80000000', f'ds_max_u32 v{vFR}, v{r} offset:{16 + off}', 's_mov_b64 exec, -1')]
        L = ['L_w2:'] + self.stamp(14) + self.probe('bw2') + gather(BALL, 0) + (pfw(PFR) if o.pfw and o.pfs == 2 else []) + (pfx_a() if o.pfx else [])
        cx = []
        if o.xg1:
            cc0 = self.seq(L + [f's_cmp_eq_u32 s{S_GRP}, 0', 's_cbranch_scc1 L_nx1'])
            cx = self.seq(xdma(XI, -4 * XBSZ) + xdma(XK))
            L = ['L_nx1:']
        else:
            cc0 = []
        L += [f's_cmp_ge_u32 s{S_WAVE}, 5', 's_cbranch_scc1 L_u0']
        cc = self.seq(L)
        M1, M2 = 28, 108
        fin2 = lambda: interleave(mxfin(M1), mxfin(M2)) + [tuple(x) if isinstance(x, list) else x for x in pub2(M1, M2, 0)[:7] + [pub2(M1, M2, 0)[7:]]]
        afr = [f'ds_read_b64_tr_b16 {vr(AFR + 4 * s2 + 2 * rd, 2)}, v{vA3} offset:{s2 * 1024 + rd * 256}' for s2 in range(2) for rd in range(2)]
        b1u = self.seq(gather(BALL + 32, 32) + bread(2, 0) + bread(3, 64) + afr + mxop(BALL, 16, M2, True) + perms(BALL, DALL + 64)[:8] + mxop(BALL + 32, 16, M2, False)
                       + mxop(BALL + 16, 16, M1, True) + perms(BALL, DALL + 64)[8:] + interleave(fin2(), perms(BALL + 32, BALL)) + ['s_branch L_u1'])
        L = ['L_u0:'] + bread(2, 0) + bread(3, 64) + bread(4, 384) + bread(5, 384 + 64) + afr + mxop(BALL, 16, M2, True) + mxop(BALL + 16, 32, M1, True)
        L += perms(BALL, DALL + 64)[:4] + interleave(fin2(), perms(BALL, DALL + 64)[4:])
        L += [f'v_add_u32 v{WA[4]}, {192 * 64}, v{WA[2]}', f'v_add_u32 v{WA[5]}, {192 * 64}, v{WA[3]}',
              f's_cmp_lg_u32 s{S_WAVE}, 7', 's_cbranch_scc1 L_u1', 's_mov_b32 exec_lo, 0xfffffff0', 's_mov_b32 exec_hi, 0xfffffff0', f'v_mov_b32 v{WA[5]}, {OOB}', 's_mov_b64 exec, -1']
        b1q = self.seq(L)
        MXR = 108
        vM = 58

        def ureads(j):
            return [f'ds_read_u16_d16_hi v{XR + 2 * j}, v{vXa} offset:{XOFF(2 * j)}',
                    f'ds_read_u16_d16_hi v{XR + 2 * j + 1}, v{vXa} offset:{XOFF(2 * j) + 2}']
        mx3 = lambda j: f'v_max3_f32 v{vM}, |v{XR + 2 * j}|, |v{XR + 2 * j + 1}|, {"0" if j == 0 else f"v{vM}"}'
        L = ['L_u1:'] + self.stamp(1) + [WaitTag(lgkm0=True), 's_barrier'] + self.stamp(7) + self.probe('b1')
        L += [f'ds_read_b128 {vr(MXR, 4)}, v{vFR} offset:16'] + (pfx_b() + pfx_a() if o.pfx and o.pf1 == 1 else [])
        hook = {}

        def mkhook(name, c0_, c1_):
            nonlocal L
            if not (c0_ or c1_):
                return
            pre_ = self.seq(L + [f's_cmp_lg_u32 s{S_GRP}, 0', f's_cbranch_scc1 L_{name}1'])
            a_ = self.seq(c0_ + [f's_branch L_{name}2'])
            b_ = self.seq([f'L_{name}1:'] + c1_)
            hook[name] = (pre_, a_, b_)
            L = [f'L_{name}2:']
        mkhook('hb', xdma(XJ, 4 * XBSZ) if o.xat == 5 else [], g1touch if o.g1t == 3 else [])
        L += [f's_mul_i32 s{S_T0}, s{S_WAVE}, 384', f'v_lshrrev_b32 v{t3}, 2, v0', f'v_mul_u32_u24 v{t3}, 24, v{t3}', f'v_add_u32 v{t3}, s{S_T0}, v{t3}',
              f'v_and_b32 v{t4}, 3, v0', f'v_lshlrev_b32 v{t4}, 3, v{t4}']
        L += [f'ds_read_b64 {vr(UA + 2 * n_, 2)}, v{t3} offset:{TC_ + 8 * n_}' for n_ in range(3)]
        q1 = [f'v_add_u32 v{MXR}, {127 << 23:#x}, v{MXR}', f'v_lshrrev_b32 v{MXR}, 24, v{MXR}', f'v_sub_u32 v{MXR}, 267, v{MXR}', f'v_min_u32 v{MXR}, 167, v{MXR}',
              f'v_readfirstlane_b32 s{S_F1}, v{MXR}', f'v_mul_u32_u24 v{MXR}, 0x800080, v{MXR}']
        sc = [f'v_add_u32 v{MXR + 1}, {127 << 23:#x}, v{MXR + 1}', f'v_lshrrev_b32 v{MXR + 1}, 24, v{MXR + 1}',
              's_mov_b32 vcc_lo, 0x4000000', 's_mov_b32 vcc_hi, 0x4000000', f'v_cndmask_b32 v{vS}, v{MXR + 2}, v{MXR + 3}, vcc', f'v_lshrrev_b32 v{vS}, 23, v{vS}',
              f'v_add_u32 v{vS}, v{vS}, v{MXR + 1}', f'v_sub_u32 v{vS}, 388, v{vS}', f's_movk_i32 s{S_U0}, 167', f'v_med3_i32 v{vS}, v{vS}, 1, s{S_U0}',
              f'v_subrev_u32 v{MXR + 2}, 127, v{vS}', f'v_lshlrev_b32 v{vS}, 23, v{vS}', f'v_cmp_gt_i32 vcc, 0, v{MXR + 2}',
              f'v_mul_u32_u24 v{MXR + 2}, 0x800080, v{MXR + 2}']
        mq = mm2(DALL + 32, PM, BALL + 16) + mm2(DALL + 48, PM, BALL + 24)
        L += interleave(q1, sc[:6]) + [f'v_and_b32 v{PM + r}, v{PM + r}, v{MXR}' for r in range(8)] + interleave([mq[0], mq[2], mq[1], mq[3]], sc[6:]) + ['s_cbranch_vccnz L_sdown']
        L += [f'v_add_u32 v{AFR + r}, v{AFR + r}, v{MXR + 2}' for r in range(8)]
        u1a = self.seq(L)
        L = ['L_scaled:'] + interleave(mm2(DALL, DALL + 64, AFR) + mm2(DALL + 16, DALL + 72, AFR), sout(2) + sout(3))
        L += [f's_cmp_ge_u32 s{S_WAVE}, 5', 's_cbranch_scc1 L_u2']
        u1 = self.seq(L)
        u2u = self.seq(interleave(mm2(DALL + 64, BALL, AFR) + mm2(DALL + 80, BALL + 8, AFR), sout(0)) + ['s_branch L_u3'])
        u2q = self.seq(['L_u2:'] + interleave(mm2(DALL + 64, PM, BALL + 32) + mm2(DALL + 80, PM, BALL + 40), sout(0)))
        L = ['L_u3:'] + xidx() + xidx(112) + (pfx_b() + pfx_a() if o.pfx and o.pf1 == 2 else [])
        mkhook('hu', xdma(XJ, 4 * XBSZ) if o.xat == 4 else [], g1touch if o.g1t == 4 else [])
        L += interleave(sout(1) + sout(4) + sout(5), [x for n_ in range(6) for x in (f'v_xor_b32 v{UA + n_}, v{UA + n_}, v{t4}', f'v_xor_b32 v{UX[n_]}, 32, v{UA + n_}')])
        L += [f'v_readlane_b32 s{S_CG}, v{vS}, 0', f'v_readlane_b32 s{S_IV}, v{vS}, 26',
              f's_sub_u32 s{S_F2}, {254 << 23:#x}, s{S_CG}', f's_sub_u32 s{S_IV}, {254 << 23:#x}, s{S_IV}',
              f's_sub_u32 s{S_F1}, 254, s{S_F1}', f's_lshl_b32 s{S_F1}, s{S_F1}, 23',
              f's_mov_b32 s{S_MASK}, 0x88888888', f's_mov_b32 s{S_MASK + 1}, 0x88888888']

        def sigma(s_):
            t = (s_ - 1) // 2
            first = (s_ - 1) % 2 == 0
            return (0 if first else 1) if t % 2 == 0 else (1 if first else 0)
        for s_ in range(1, 11):
            assert ((s_ - 1) // 2) * 1024 + sigma(s_) * 512 - (s_ // 4) * 2048 == (-1024, 0, 512, 1536)[s_ % 4]

        def p2read(n_):
            b = BALL + 16 * n_
            c = []
            UAl = list(range(UA, UA + 6))
            for x, (ar, off) in enumerate(((UAl, 0), (UX, 0), (UAl, SSZ), (UX, SSZ))):
                for y in range(2):
                    c.append(f'ds_read_b64_tr_b16 {vr(b + 4 * x + 2 * y, 2)}, v{ar[2 * n_ + y]} offset:{off}')
            return c

        def p2a(n_):
            b = BALL + 16 * n_
            c = []
            for x in range(4):
                c += [f'v_pk_add_f16 v{b + 4 * x + y}, v{b + 4 * x + y}, v{b + 4 * x + 2 + y}' for y in range(2)]
                if x in (0, 2):
                    c.append(f'ds_write_b64 v{vFw}, {vr(b + 4 * x, 2)} offset:{FR + n_ * 4 * 3072 + x * 1024}')
            c += [f'v_cndmask_b32 v{b + 4 + y}, v{b + 4 + y}, v{b + 12 + y}, s[{S_MASK}:{S_MASK + 1}]' for y in range(2)]
            c.append(f'ds_write_b64 v{vFw}, {vr(b + 4, 2)} offset:{FR + n_ * 4 * 3072 + 1024}')
            return c

        def p2s(n_):
            b = BALL + 16 * n_ + 12
            off = FRS + max(n_ * 2048 - 1024, 0)
            return ([f'v_subrev_u32 v{vT3}, 1024, v{vT3}'] if n_ == 0 else []) + [
                f'ds_write_b32 v{vT3}, v{b} offset:{off}', f'ds_write_b32 v{vT3}, v{b + 1} offset:{off + 16}']
        ec = []
        if o.econv:
            L += [f's_cmp_lg_u32 s{S_GRP}, 0', 's_cbranch_scc1 L_noec']
            u3 = self.seq(L)
            ec = self.seq([WaitTag(vm_tags=['XBa'])] + [x for j in range(13) for x in ureads(j)])
            L = ['L_noec:']
        else:
            u3 = []
        L += [WaitTag(vm_tags=['XB'] if o.xg1 else [], lgkm0=True), 's_barrier'] + self.stamp(10)
        L += p2read(0) + p2read(1) + [f's_cmp_ge_u32 s{S_WAVE}, 6', 's_cbranch_scc1 L_lin']
        b2 = self.seq(L)
        p2c = self.seq(p2read(2) + p2a(2) + p2s(2) + ['s_branch L_p2'])
        LB = BALL + 32
        ZR4 = t5
        L = ['L_lin:', f's_and_b32 s{S_U0}, s{S_WAVE}, 1', f's_cselect_b64 vcc, -1, 0', f's_lshl_b32 s{S_U1}, s{S_U0}, 5', f'v_mov_b32 v{ZR4}, 0',
             f'v_xor_b32 v{vV2r}, s{S_U1}, v{vV2r}', f'v_xor_b32 v{vV2q}, s{S_U1}, v{vV2q}', f'v_cndmask_b32 v{vWo}, v{vWo}, v{vWo + 1}, vcc',
             f'ds_read_b64_tr_b16 {vr(LB, 2)}, v{vV2r}', f'ds_read_b64_tr_b16 {vr(LB + 2, 2)}, v{vV2q}',
             f'ds_read_u16_d16_hi v{ZR4}, v{vWo}',
             f's_lshl_b32 s{S_U0}, s{S_U0}, 10', f'v_add_u32 v{t3}, s{S_U0}, v{vStg}']
        for r in range(4):
            a_, b_ = LB + 4 + 2 * r, LB + 5 + 2 * r
            L += [f'v_cvt_f32_f16 v{a_}, v{LB + r}', f'v_cvt_f32_f16_sdwa v{b_}, v{LB + r} dst_sel:DWORD dst_unused:UNUSED_PAD src0_sel:WORD_1',
                  f'v_mul_f32 v{a_}, s{S_IV}, v{a_}', f'v_mul_f32 v{b_}, s{S_IV}, v{b_}']
            if r == 3:
                L += ['s_mov_b32 exec_lo, 0', 's_mov_b32 exec_hi, 0xffff', f'v_mov_b32 v{a_}, v{ZR4}', 's_mov_b64 exec, -1']
            L += [f'v_mul_f32 v{a_}, s{S_CG}, v{a_}', f'v_mul_f32 v{b_}, s{S_CG}, v{b_}', f'v_cvt_pk_bf16_f32 v{LB + r}, v{a_}, v{b_}']
        L += [f'ds_write_b128 v{t3}, {vr(LB, 4)} offset:{FRL}']
        lin = self.seq(L)
        p2 = self.seq(['L_p2:'] + p2a(1) + p2s(1) + p2a(0) + [f's_cmp_lt_u32 s{S_WAVE}, 2', 's_cbranch_scc1 L_p2d'])
        p2e = self.seq(p2s(0) + ['s_branch L_built'])
        p2d = self.seq(['L_p2d:', f'ds_write_b64 v{vT3d}, {vr(BALL + 12, 2)} offset:{FRS + 5 * 1024}'])

        L = ['L_sdown:']
        for r in range(8):
            L += [f'v_lshlrev_b32 v{MXR}, 16, v{AFR + r}', f'v_and_b32 v{MXR + 1}, 0xffff0000, v{AFR + r}',
                  f'v_mul_f32 v{MXR}, v{MXR}, v{vS}', f'v_mul_f32 v{MXR + 1}, v{MXR + 1}, v{vS}', f'v_cvt_pk_bf16_f32 v{AFR + r}, v{MXR}, v{MXR + 1}']
        self.sdown = L + ['s_branch L_scaled']

        HK = lambda n_, g_: hook[n_][0] + hook[n_][1 + g_] if n_ in hook else []

        def PRE(w, sd=None):
            grp = w >> 2
            return (c0 + (g1s + (g1t if w < 6 else []) if grp else []) + csc + (v3p + v3 if grp else G0(w)) + cc0 + (cx if grp else []) + cc + (b1q if w >= 5 else b1u)
                    + HK('hb', grp) + (u1a if sd is None else u1a[:-8] + sd) + u1 + (u2q if w >= 5 else u2u) + HK('hu', grp) + u3 + ([] if grp else ec) + b2
                    + (lin if w >= 6 else p2c) + p2 + (p2d if w < 2 else p2e))
        L = ['L_built:'] + self.stamp(11)
        L += [f's_mov_b32 s{S_CG}, s{S_F1}', f's_mov_b32 s{S_IV}, s{S_F2}', f's_mov_b32 s{S_LO}, {f32hex(0.125)}', f's_mov_b32 s{S_HI}, {f32hex(0.0 if o.slow else 128.0)}']
        CV, vM, S_XD = 28, 58, 81

        def ureads(j):
            return [f'ds_read_u16_d16_hi v{XR + 2 * j}, v{vXa} offset:{XOFF(2 * j)}',
                    f'ds_read_u16_d16_hi v{XR + 2 * j + 1}, v{vXa} offset:{XOFF(2 * j) + 2}']
        mx3 = lambda j: f'v_max3_f32 v{vM}, |v{XR + 2 * j}|, |v{XR + 2 * j + 1}|, {"0" if j == 0 else f"v{vM}"}'
        cvt = lambda j: f'v_cvt_pk_f16_f32 v{CV + j % 4}, v{XR + 2 * j}, v{XR + 2 * j + 1}'
        iwr = lambda j: f'ds_write_b32 v{vIw}, v{CV + j % 4} offset:{j * IMGP}'
        S_SKIP = 51
        pfr = lambda: (pfx_b() + pfx_a() if o.pfx else []) + (pfw() if o.pfw == 1 else [])
        conv = lambda tag='XB': ([WaitTag(vm_tags=[tag])] + [x for j in range(13) for x in ureads(j)]
                        + [x for j in range(13) for x in (mx3(j), f'v_cvt_pk_f16_f32 v{D + j}, v{XR + 2 * j}, v{XR + 2 * j + 1}')])
        L += [f's_mov_b32 s{S_SKIP}, 1', f's_mul_i32 s{S_U0}, s{S_WAVE}, 1536', f's_add_u32 s{S_U0}, s{S_U0}, {PART}',
              f's_cmp_lg_u32 s{S_GRP}, 0', 's_cbranch_scc1 L_g1c']
        c2a = self.seq(L)
        c2g0 = self.seq([f's_sub_u32 s{S_SAMP}, s{S_SAMP}, {4 * 104}', Touch('v[112:115]')] + (conv('XBa')[27:] if o.econv else conv('XBa')) + [WaitTag(lgkm0=True), 's_barrier'] + self.probe('b4a') + self.stamp(8) + ['s_branch L_cin_go'])
        DX = XB2 - XB - 4 * XBSZ
        L = ['L_g1c:', WaitTag(vm_tags=['XB'], lgkm0=True), 's_barrier'] + self.stamp(8) + self.probe('b4')
        L += [f's_add_u32 s{S_XM0}, s{S_XM0}, {DX}'] + xdma(tag='XB0') + xdma(112, 4 * XBSZ) + xidx() + pfr() + [f'v_add_u32 v{r}, {DX}, v{r}' for r in (vXa, vLin0, vLin1)]
        L += [f'ds_write_b32 v{vXa}, v{vXi1} offset:{XOFF(26)}', f'ds_write_b32 v{vXa}, v{vXi1} offset:{XOFF(26) + 4 * XBSZ}']
        c2g1 = self.seq(L)
        c2b = []
        c2g1d = self.seq(['L_g1d:'] + conv('XB0'))
        c2c = self.seq(['L_cin_go:'] + [f'ds_write_b32 v{vIw}, v{D + j} offset:{j * IMGP}' for j in range(13)]
                       + [f's_mov_b32 s{S_XD}, {4 * XBSZ}', f's_add_u32 s{S_XM0}, s{S_XM0}, {4 * XBSZ}',
                          f'v_lshlrev_b32 v{vXi1}, 2, v0', f'v_add_u32 v{vXi1}, s{S_U0}, v{vXi1}'])

        NWF = 5
        PF = o.cpfd
        zslot = lambda s_: 1 if s_ % 2 == 0 else (0 if ((s_ - 1) // 2) % 2 == 0 else 2)
        zr = lambda T, sl: Z + 12 * T + 4 * sl
        preg = lambda T, r: P + 14 * T + (r if r < 14 else r - 14)
        acc = lambda T, tile: D + 16 * T + 4 * tile
        jobs = [('l', 0, 0), ('l', 0, 1)]
        for s_ in range(11):
            jobs += [('d', s_, 2), ('d', s_, 0), ('d', s_, 1)]
            if s_ == 0:
                jobs.append(('d', 0, 3))
            elif s_ % 2 == 0:
                jobs.append(('s', s_, 3))
        NJ = len(jobs)
        assert NJ == 41

        def wread(n):
            kind, s_, tile = jobs[n]
            off = FRL + tile * 1024 if kind == 'l' else (FR + s_ * 3072 + tile * 1024 if tile < 3 else FRS + (5 if s_ == 0 else (s_ - 1) // 2) * 1024)
            return f'ds_read_b128 {vr(WF + 4 * (n % NWF), 4)}, v{vFa} offset:{off}'

        def mfma(n, T):
            kind, s_, tile = jobs[n]
            a = vr(WF + 4 * (n % NWF), 4)
            d = vr(acc(T, tile), 4)
            if kind == 'l':
                return f'v_mfma_f32_16x16x32_bf16 {d}, {a}, {vr(zr(T, 2), 4)}, 0'
            if kind == 's':
                lo = 0 if ((s_ - 1) // 2) % 2 == 0 else 1
                return f'v_smfmac_f32_16x16x64_f16 {d}, {a}, {vr(zr(T, lo), 8)}, v{vIDX}'
            return f'v_mfma_f32_16x16x32_f16 {d}, {a}, {vr(zr(T, zslot(s_)), 4)}, {"0" if (s_ == 0 and tile >= 2) else d}'

        def pk(T, n):
            a, b, s0, s1 = cin16.INS[n]
            return (f'v_pk_mul_f16 v{zr(T, zslot(n // 4)) + n % 4}, v{preg(T, a)}, v{preg(T, b)} '
                    f'op_sel:[{s0[0]},{s0[1]}] op_sel_hi:[{s1[0]},{s1[1]}]')

        def trp(T, rp):
            return f'ds_read_b64_tr_b16 {vr(preg(T, 2 * rp), 2)}, v{vTR + rp} offset:{32 * T}'

        LASTA = max(n for n, x in enumerate(cin16.INS) if x[0] < 2)
        S_A1, S_A2, S_PINC = 49, 50, 48
        fin = []
        for T in range(4):
            fin += [(acc(T, 0) + r, acc(T, 2) + r) for r in range(4)] + [(acc(T, 1), acc(T, 1) + 3)]
        for T in range(4):
            fin += [(acc(T, 1) + 1 + (r >> 1), acc(T, 3) + r) for r in range(4)]

        def final(f1, f2):
            c = []
            for k, (a, b) in enumerate(fin):
                d = Z + k % 4
                c.append(f'v_mul_f32 v{d}, v{a}, v{b}' if k < 4 else f'v_fmac_f32 v{d}, v{a}, v{b}')
            c += [f'v_add_f32 v{Z}, v{Z}, v{Z + 1}', f'v_add_f32 v{Z + 2}, v{Z + 2}, v{Z + 3}', f'v_add_f32 v{Z}, v{Z}, v{Z + 2}']
            c += [f'v_mul_f32 v{Z}, s{x}, v{Z}' for x in (f1, f2)]
            return c + [f'ds_write_b32 v{vXi1}, v{Z}']
        code = ['L_cin_loop:', f'v_cmp_le_f32 s[{S_CM}:{S_CM + 1}], s{S_HI}, v{vM}', f'v_cmp_le_f32 vcc, s{S_LO}, v{vM}',
                f's_mov_b32 s{S_A1}, s{S_F1}', f's_mov_b32 s{S_A2}, s{S_F2}',
                f's_cmp_lg_u64 s[{S_CM}:{S_CM + 1}], 0', 's_cbranch_scc1 L_cslow', 's_cbranch_vccz L_cslow']
        cA = self.seq(code)
        RD = []
        for rp in (0, 3, 4):
            RD += [trp(T, rp) for T in range(4)]
        for T in range(4):
            RD += [f'ds_read_b64_tr_b16 {vr(zr(T, 2), 2)}, v{vLin0} offset:{32 * T}', f'ds_read_b64_tr_b16 {vr(zr(T, 2) + 2, 2)}, v{vLin1} offset:{32 * T}']
        RD += [wread(k) for k in range(PF)]
        for rp in (5, 6, 1, 2):
            RD += [trp(T, rp) for T in range(4)]
        pfr = lambda: (pfx_b() + pfx_a() if o.pfx else []) + (pfw() if o.pfw == 1 else [])
        vm = xdma() + xidx() + pfr()
        VA = final(S_A1, S_A2) + [f'v_add_u32 v{vXi1}, 256, v{vXi1}']
        PK0 = [pk(T, n) for T in range(4) for n in range(4)]
        TG = [f'v_add_u32 v{r}, s{S_XD}, v{r}' for r in (vXa, vLin0, vLin1)] + [f's_sub_u32 s{S_XM0}, s{S_XM0}, s{S_XD}', f's_sub_u32 s{S_XD}, 0, s{S_XD}', f's_mov_b32 s{S_SKIP}, 0']
        cB0 = self.seq(['L_cconv:', f's_cmp_lg_u32 s{S_SKIP}, 0', 's_cbranch_scc1 L_first'])
        cVM = self.seq(interleave(RD, VA) + PK0 + vm)
        self.first = ['L_first:'] + RD[:28] + interleave(RD[28:], PK0) + ['s_branch L_novm']
        code = ['L_novm:'] + TG
        LA = 1
        def lstamp(base):
            if not (o.stamps and o.cst):
                return []
            return [f's_memtime s[{S_ST}:{S_ST + 1}]', f's_memrealtime s[{S_ST + 2}:{S_ST + 3}]', f's_sub_u32 s{S_C0}, {base + 6}, s{S_LOOP}', 's_waitcnt lgkmcnt(0)',
                    f's_mov_b32 m0, s{S_C0}', f'v_writelane_b32 v252, s{S_ST}, m0', f'v_writelane_b32 v253, s{S_ST + 2}, m0']
        code += lstamp(19)
        code += [Touch(vr(WF, 4)), Touch(vr(zr(3, 2), 4))] + ([f's_cmp_eq_u32 s{S_GRP}, 0', 's_cbranch_scc1 L_np1', 's_setprio 1', 'L_np1:'] if o.gprio else ['s_setprio 1'])
        MS = []
        for n in range(NJ):
            pos = [i_ for i_ in range(n + 1) if jobs[i_][1] == jobs[n][1] and (jobs[i_][0] == 'l') == (jobs[n][0] == 'l')].index(n)
            last = jobs[n][2] == 3 or (n + 1 < NJ and jobs[n + 1][1] != jobs[n][1])
            MS += [(n, 3 - T if (o.csn and pos == 1) else T) for T in range(4)]
        first_use, last_use = {}, {}
        for mi, (n, T) in enumerate(MS):
            kind, s_, tile = jobs[n]
            if kind == 'l':
                last_use[(T, 'lin')] = mi
                continue
            for su in ([s_] if kind == 'd' else [s_ - 1, s_]):
                first_use.setdefault((T, su), mi)
                last_use[(T, su)] = mi
        V = []
        for s_ in range(LA, 11):
            prev = [p_ for p_ in range(s_) if zslot(p_) == zslot(s_)]
            for T in range(4):
                rdy = last_use[(T, prev[-1])] + o.war if prev else (last_use[(T, 'lin')] if zslot(s_) == 2 else -1)
                for n in range(4 * s_, 4 * s_ + 4):
                    V.append((pk(T, n), rdy, first_use[(T, s_)], n, T))
        forced = 0
        late = []
        XL_ = [x for j in range(13) for x in ureads(j)]
        xrd = {}
        CVR = [preg(T, r) for r in (2, 3, 6, 7) for T in range(4)]
        cvrdy = max(n for n, x in enumerate(cin16.INS) if set(x[:2]) & {2, 3, 6, 7})
        cvt2 = lambda j: f'v_cvt_pk_f16_f32 v{CVR[j]}, v{XR + 2 * j}, v{XR + 2 * j + 1}'
        iwr2 = lambda j: f'ds_write_b32 v{vIw}, v{CVR[j]} offset:{j * IMGP}'
        nm = nc = nw = 0
        V.sort(key=lambda x: x[2])
        prev2 = 0
        for mi, (n, T) in enumerate(MS):
            while V and V[0][2] <= mi:
                assert V[0][1] < mi
                code.append(V.pop(0)[0]); forced += 1
            code.append(mfma(n, T))
            T = mi % 4
            t = 4
            if o.cbar and mi == len(MS) - 1 - o.cbov:
                code += ['s_setprio 3', 's_barrier']; t += 8
            if not o.cbar and mi == 4 * o.hiat - 2:
                code.append('s_setprio 2'); t += 4
            if T == 3 and n + 1 < NJ:
                code.append(Touch(vr(WF + 4 * ((n + 1) % NWF), 4))); t += 4
            if T == 0 and n + PF < NJ:
                code.append(wread(n + PF)); t += 8
            elif T in (1, 2) and late:
                code.append(late.pop(0)); t += 8
            elif T in (1, 2) and mi >= o.x0 and XL_:
                if len(XL_) == 26:
                    code.append(WaitTag(vm_tags=['XB']))
                code.append(XL_.pop(0)); t += 8
                if len(XL_) % 2 == 0:
                    xrd[12 - len(XL_) // 2] = mi
            elif not V and nw < nc and t == 4:
                code.append(iwr2(nw)); nw += 1; t += 12
            t = max(t, 12 if jobs[n][0] == 's' else 8)
            k = 0
            while t < 16:
                urgent = any(V[q_][2] - 1 - mi < q_ + 1 for q_ in range(min(24, len(V))))
                if k == 1 and prev2 >= o.max2 and not urgent:
                    break
                cand = [x for x in V[:32] if x[1] <= mi]
                extra = None
                if nm < 13 and nm in xrd and xrd[nm] + o.xlat <= mi:
                    extra = 'm'
                elif nc < nm and all(x[3] > cvrdy for x in V):
                    extra = 'c'
                if cand and (k == 0 or urgent or not extra) and (k == 0 or urgent or o.eager):
                    x = cand[0]
                    V.remove(x)
                    code.append(x[0])
                    if x[3] <= LASTA and all(y[3] > LASTA for y in V if y[4] == x[4]):
                        late.append(trp(x[4], 7))
                elif extra == 'm':
                    code.append(mx3(nm)); nm += 1
                elif extra == 'c':
                    code.append(cvt2(nc)); nc += 1
                else:
                    break
                t += 4; k += 1
            prev2 = prev2 + 1 if k == 2 else 0
        assert not late and not XL_ and not V
        print('left', 13 - nm, 13 - nc, 13 - nw)
        tail = [mx3(j) for j in range(nm, 13)] + [cvt2(j) for j in range(nc, 13)] + [iwr2(j) for j in range(nw, 13)]
        print('forced VALU', forced)
        code += lstamp(25)
        code.append(f's_setprio {o.p0}')
        code += [f's_sub_u32 s{S_LOOP}, s{S_LOOP}, 1', f's_cmp_eq_u32 s{S_LOOP}, 0', 's_cbranch_scc1 L_cin_done'] + tail
        ntail = len(tail) + 1
        def keep(x):
            t_ = x.text if isinstance(x, I) else x
            if isinstance(t_, tuple):
                return True
            if 'nopk' in o.dbg and t_.startswith('v_pk_mul_f16'):
                return False
            if 'nowf' in o.dbg and t_.startswith('ds_read_b128'):
                return False
            if 'nosm' in o.dbg and t_.startswith('v_smfmac'):
                return False
            return True
        code = [x for x in code if keep(x)]
        if 'bf' in o.dbg:
            code = [x.replace('x32_f16', 'x32_bf16').replace('x64_f16', 'x64_bf16') if isinstance(x, str) else x for x in code]
        cB = self.seq(code + ['s_branch L_cin_loop'])
        mark0 = len(self.P.static)
        bl = []
        if o.burn:
            bl = [f's_movk_i32 s{S_LOOP}, {o.burn // 2}', 'L_burn2:'] + [f'v_mfma_f32_16x16x32_f16 {vr(P + 4 * (k % 2), 4)}, {vr(WF + 4 * (k % 4), 4)}, {vr(Z + 4 * (k // 4), 4)}, 0' for k in range(32)]
            bl += [f's_sub_u32 s{S_LOOP}, s{S_LOOP}, 1', f's_cmp_lg_u32 s{S_LOOP}, 0', 's_cbranch_scc1 L_burn2']
        L = ['L_cin_done:', f's_mul_i32 s{S_U0}, s{S_WAVE}, 1536', f's_add_u32 s{S_U0}, s{S_U0}, {PART}',
             f'v_lshlrev_b32 v{Z + 4}, 5, v0', f'v_add_u32 v{Z + 4}, s{S_U0}, v{Z + 4}',
             f'ds_read_b128 {vr(P, 4)}, v{Z + 4}', f'ds_read_b128 {vr(P + 4, 4)}, v{Z + 4} offset:16'] + bl + final(S_F1, S_F2)[:-1]
        E = [f'v_subrev_u32 v{Z + 6}, s{S_U0}, v{vXi1}', f'v_lshrrev_b32 v{Z + 6}, 8, v{Z + 6}', f'v_lshrrev_b32 v{Z + 5}, 3, v0', f'v_cmp_gt_u32 vcc, v{Z + 6}, v{Z + 5}',
             f'v_min_u32 v{Z + 5}, v{Z + 5}, v{Z + 6}', f'v_lshlrev_b32 v{Z + 5}, 4, v{Z + 5}', f'v_add_u32 v{Z + 5}, s{S_RC}, v{Z + 5}',
             ] + [f'v_add_f32 v{P + a_}, v{P + a_}, v{P + b_}' for a_, b_ in ((0, 1), (2, 3), (4, 5), (6, 7), (0, 2), (4, 6), (0, 4))]
        E += [f'v_add_f32_dpp v{P}, v{P}, v{P} {ctl} row_mask:0xf bank_mask:0xf' for ctl in ('quad_perm:[1,0,3,2]', 'quad_perm:[2,3,0,1]', 'row_half_mirror')]
        L += interleave([f'v_add_f32_dpp v{Z}, v{Z}, v{Z} {ctl} row_mask:{rm} bank_mask:0xf' for ctl, rm in DPPS], E)
        L += [f'v_cndmask_b32 v{P}, v{Z}, v{P}, vcc', 's_bitset1_b32 vcc_hi, 31', 's_mov_b64 exec, vcc', f'ds_write_b32 v{Z + 5}, v{P}', 's_mov_b64 exec, -1']
        L += self.stamp(9) + self.stamp_flush() + self.probe('cend') + [f's_cmp_eq_u32 s{S_WAVE}, 0', 's_cbranch_scc1 L_cpub', 's_waitcnt lgkmcnt(0)', 's_barrier', 's_endpgm',
              'L_cpub:', f's_load_dword s{S_BOUT}, s[{S_BO}:{S_BO + 1}], 0'] + self.pubsrd() + [
              'v_lshlrev_b32 v6, 2, v0', f'v_add_u32 v2, {RC}, v6', 'v_add_u32 v4, 1024, v6',
              f's_mul_i32 s{S_T1}, s{S_MB}, 192', f's_add_u32 s{S_T1}, s{S_T1}, {13 * WSP}',
              'v_mov_b32 v13, -1', 's_mov_b32 exec_hi, 0xffff', f'buffer_store_dword v13, v6, {srd(SRD_WS)}, s{S_T1} offen sc1', 's_mov_b64 exec, 1',
              f'buffer_load_dword v250, v6, {srd(SRD_OUT)}, 0 offen', f'buffer_load_dword v251, v6, {srd(SRD_DBG)}, 0 offen offset:128 sc1', 's_mov_b64 exec, -1',
              f's_mul_i32 s{S_T0}, s{S_MB}, 3', f's_mul_i32 s{S_T2}, s{S_T0}, 3277', f's_lshr_b32 s{S_T2}, s{S_T2}, 16',
              f'v_add_u32 v7, s{S_T2}, v0', f's_mul_i32 s{S_T2}, s{S_T2}, 20', f's_add_u32 s{S_T2}, s{S_T2}, 20',
              f's_sub_u32 s{S_T2}, s{S_T2}, s{S_T0}', f's_min_u32 s{S_T2}, s{S_T2}, 3', f's_sub_u32 s{S_T0}, 3, s{S_T2}',
              f'v_mov_b32 v5, s{S_T0}', f'v_writelane_b32 v5, s{S_T2}, 0',
              f's_cmp_eq_u32 s{S_T0}, 0', f's_cselect_b32 s{S_T0}, 1, 3',
              'v_lshlrev_b32 v3, 4, v0'] + (['s_mov_b64 exec, 0', 's_branch L_pw0', 'L_pwc:'] if o.pwalk else []) + ['s_waitcnt vmcnt(0) lgkmcnt(0)'] + (self.cready('c', 251) if o.wsc else []) + ['s_mov_b32 exec_hi, 0xffff', 's_barrier'] + self.probe('cend2') + ['ds_read_b32 v64, v2']
        L += (self.stamp(16) if o.diag else [])
        L += ['v_min_u32 v64, -2, v64'] if o.sent else []
        L += [f'buffer_store_dword v64, v6, {srd(SRD_WS)}, s{S_T1} offen sc1', f's_mov_b32 exec_lo, s{S_T0}', 's_mov_b32 exec_hi, 0', 's_branch L_pub']
        fin_ = self.seq(L)
        blk = self.P.static[mark0:]
        del self.P.static[mark0:]
        at = self.P.static.index(self.pub[-1]) + 1
        self.P.static[at:at] = blk + self.ldblk
        L = ['L_cslow:']
        for (ctl, rm) in (('row_shr:1', '0xf'), ('row_shr:2', '0xf'), ('row_shr:4', '0xf'), ('row_shr:8', '0xf'),
                          ('row_bcast:15', '0xa'), ('row_bcast:31', '0xc')):
            L.append(f'v_max_f32_dpp v{vM}, v{vM}, v{vM} {ctl} row_mask:{rm} bank_mask:0xf')
        L += [f'v_readlane_b32 s{S_U0}, v{vM}, 63', f's_mov_b32 s{S_HI}, 0',
              f's_lshr_b32 s{S_U0}, s{S_U0}, 23', f's_min_u32 s{S_U0}, s{S_U0}, {127 + 55}',
              f's_lshr_b32 s{S_U1}, s{S_IV}, 23', f's_sub_u32 s{S_U1}, s{S_U1}, 47', f's_lshr_b32 s{S_U1}, s{S_U1}, 1', f's_min_u32 s{S_U1}, s{S_U1}, 59',
              f's_sub_u32 s{S_U1}, 131, s{S_U1}', f's_max_u32 s{S_U0}, s{S_U0}, s{S_U1}',
              f's_sub_u32 s{S_U1}, {127 + 4 + 127}, s{S_U0}',
              f's_lshl_b32 s{S_U2}, s{S_U1}, 1', f's_sub_u32 s{S_U2}, s{S_U2}, 127',
              f's_sub_u32 s{S_G}, 254, s{S_U2}', f's_lshl_b32 s{S_G}, s{S_G}, 23',
              f'v_mov_b32 v{P}, s{S_G}', f'v_mul_f32 v{P + 1}, s{S_CG}, v{P}', f'v_mul_f32 v{P}, s{S_IV}, v{P}',
              f'v_readfirstlane_b32 s{S_F1}, v{P + 1}', f'v_readfirstlane_b32 s{S_F2}, v{P}',
              f's_lshl_b32 s{S_U1}, s{S_U1}, 23', f's_lshl_b32 s{S_U2}, s{S_U2}, 23']
        TS = P
        for j in range(13):
            L += [f'v_mul_f32 v{TS}, s{S_U1}, v{XR + 2 * j}', f'v_mul_f32 v{TS + 1}, s{S_U1}, v{XR + 2 * j + 1}',
                  f'v_mul_f32 v{TS + 2}, s{S_U2}, v{XR + 2 * j}', f'v_mul_f32 v{TS + 3}, s{S_U2}, v{XR + 2 * j + 1}',
                  f'v_cvt_pk_f16_f32 v{TS + 20 + j}, v{TS}, v{TS + 1}', f'v_cvt_pk_bf16_f32 v{TS + 4 + j}, v{TS + 2}, v{TS + 3}',
                  f'ds_write_b32 v{vIw}, v{TS + 20 + j} offset:{j * IMGP}', f'ds_write_b32 v{vXa}, v{TS + 4 + j} offset:{XOFF(2 * j)}']
        L += [f'v_mov_b32 v{TS}, s{S_U2}', f'v_cvt_pk_bf16_f32 v{TS}, v{TS}, v{TS}',
              's_mov_b32 exec_hi, 0', f'ds_write_b32 v{vXa}, v{TS} offset:{XOFF(26)}', 's_mov_b32 exec_hi, -1',
              's_waitcnt lgkmcnt(0)', 's_branch L_cconv']
        slow = self.seq(L)
        sdown = self.seq(self.sdown)
        cF = self.seq(self.first)
        traces = []
        for w in range(8):
            grp = w >> 2
            c2 = c2a + (c2g1 + (c2b if w == 4 else []) + c2g1d if grp else c2g0) + c2c
            it = lambda sl, first: cA + (slow if sl else []) + cB0 + (cF if first else cVM) + cB
            traces.append(PRE(w) + c2 + it(0, 1) + it(0, 0) + it(0, 0)[:-ntail] + fin_ + self.pub)
            if w in (0, 4):
                traces.append(PRE(w, sdown) + c2 + it(1, 1) + it(1, 0)[:-ntail] + fin_ + self.pub)
        return traces

    def build(self):
        pro = self.prologue()
        d = self.dnn()
        cs = self.cin()
        if self.opt.wsc:
            self.extra_traces.append(self.seq(self.late))
            self.extra_traces.append(self.seq(['L_spare:', f's_cmp_lg_u32 s{S_WAVE}, 0', 's_cbranch_scc1 L_end', 's_waitcnt lgkmcnt(0)'] + self.pubsrd() + self.cinit('s', 'L_end')))
        self.seq(['L_end:', 's_endpgm'])
        traces = [pro + c for c in d + cs] + self.extra_traces
        for t in traces:
            resolve_waits(t)
        for _ in range(2):
            for t in traces:
                resolve_hazards(t)
        hdr = open(os.path.join(os.path.dirname(os.path.abspath(__file__)), 'header.txt')).read()
        txt = hdr + f'; @launch grid=(256,1,1) block=(512,1,1) lds={LDS_TOTAL}\n'
        txt += f'''.amdgcn_target "amdgcn-amd-amdhsa--gfx950"
{DOC}.text
.globl {KNAME}
.p2align 8
.type {KNAME},@function
{KNAME}:
'''
        body_ = self.P.emit()
        if self.opt.align:
            for lab in ('L_dnn_loop0:', 'L_dnn_loop1:', 'L_cin_loop:', 'L_epi:'):
                pad = '  s_nop 0\n' if self.opt.align > 100 else ''
                body_ = body_.replace(lab + '\n', f'.p2align {self.opt.align % 100}\n{pad}{lab}\n')
        if self.opt.cwalk:
            lines = body_.split('\n')
            i0, i1 = lines.index('L_w2:'), lines.index('L_cslow:')
            out, k, cnt = lines[:i0], 0, 0
            seg = lines[i0:i1]
            prot = 0
            for n_, l in enumerate(seg):
                out.append(l)
                t = l.strip()
                cnt += 1
                inmain = 'L_novm:' in seg[:n_ + 1]
                nxt = seg[n_ + 1].strip() if n_ + 1 < len(seg) else ''
                ok = t.endswith(':') or (cnt >= self.opt.cwalk and ('mfma' in t and nxt.startswith('v_pk') if inmain else t.startswith(('ds_', 'v_perm', 'v_cvt_pk'))))
                if ok and t not in ('L_cin_loop:', 'L_cconv:', 'L_scaled:'):
                    out += [f'L_wp{k}:', f'  s_cbranch_execz L_wp{k + 1}']
                    k += 1; cnt = 0
            j = lines.index('L_first:')
            rest = lines[i1:j + 1] + [f'L_wp{k}:', '  s_cbranch_execz L_wret'] + lines[j + 1:]
            body_ = '\n'.join(out + rest)
            print('walk pads', k + 1)
            self.npads = k + 1
            for q_ in range(4):
                body_ = body_.replace(f'L_WENTRY{q_}', f'L_wp{q_ * (k + 1) // 4}')
        if self.opt.pwalk:
            lines = body_.split('\n')
            i0, i1 = lines.index('L_pub:'), lines.index('L_ok:')
            out, k, cnt = lines[:i0 + 1] + ['L_pw0:', '  s_cbranch_execz L_pw1'], 1, 0
            for l in lines[i0 + 1:i1 + 1]:
                out.append(l)
                cnt += 1
                if (cnt >= self.opt.pwalk and l.strip().startswith(('s_add_u32', 'v_add_f32'))) or l == 'L_ok:':
                    out += [f'L_pw{k}:', f'  s_cbranch_execz L_pw{k + 1}' if l != 'L_ok:' else '  s_cbranch_execz L_pwr']
                    k += 1; cnt = 0
            body_ = '\n'.join(out + lines[i1 + 1:])
            print('pub pads', k)
        if self.opt.fix:
            body_ = fixalign.fix(body_ + 'L_tables:\n', self.opt.fix, nops=self.opt.fixn)[:-len('L_tables:\n')]
        txt += body_
        tb = self.tables()
        assert len(tb) == 16 * 256
        txt += '.p2align 8\nL_tables:\n' + ''.join('.long ' + ', '.join(f'{x:#x}' for x in tb[i:i + 8]) + '\n' for i in range(0, len(tb), 8))
        txt += f'''.section .rodata,"a"
.p2align 6
.amdhsa_kernel {KNAME}
  .amdhsa_next_free_vgpr 256
  .amdhsa_next_free_sgpr 102
  .amdhsa_accum_offset 256
  .amdhsa_group_segment_fixed_size 0
  .amdhsa_kernarg_size 88
  .amdhsa_user_sgpr_count 2
  .amdhsa_user_sgpr_kernarg_segment_ptr 1
  .amdhsa_system_sgpr_workgroup_id_x 1
  .amdhsa_float_denorm_mode_32 {self.opt.denorm}
.end_amdhsa_kernel
'''
        return txt


def main():
    ap = argparse.ArgumentParser()
    ap.add_argument('-o', default='standalone__deep_cross_xdeepfm__recsys.s')
    ap.add_argument('--stamps', action='store_true')
    ap.add_argument('--nodma', action='store_true')
    ap.add_argument('--cpf', type=int, default=1)
    ap.add_argument('--coop', type=int, default=2)
    ap.add_argument('--coopw', type=int, default=2)
    ap.add_argument('--tbpos', type=int, default=0)
    ap.add_argument('--dbar3', type=int, default=1)
    ap.add_argument('--tlb', type=int, default=0)
    ap.add_argument('--tlb2', type=int, default=1)
    ap.add_argument('--itst', type=int, default=0)
    ap.add_argument('--diag', type=int, default=0)
    ap.add_argument('--dbg', default='')
    ap.add_argument('--lead3', type=int, default=1)
    ap.add_argument('--morder', type=int, default=0)
    ap.add_argument('--etlb', type=int, default=0)
    ap.add_argument('--lateb', type=int, default=0)
    ap.add_argument('--wfl', default='')
    ap.add_argument('--xfl', default='')
    ap.add_argument('--tag', type=int, default=0)
    ap.add_argument('--idxfirst', type=int, default=1)
    ap.add_argument('--bpos', type=int, default=2)
    ap.add_argument('--sigat', type=int, default=4)
    ap.add_argument('--epx', type=int, default=1)
    ap.add_argument('--denorm', type=int, default=3)
    ap.add_argument('--mprio', type=int, default=0)
    ap.add_argument('--swap', type=int, default=0)
    ap.add_argument('--bov', type=int, default=1)
    ap.add_argument('--rfirst', type=int, default=0)
    ap.add_argument('--g1x', type=int, default=0)
    ap.add_argument('--ldsred', type=int, default=0)
    ap.add_argument('--csnake', type=int, default=0)
    ap.add_argument('--cswap', type=int, default=0)
    ap.add_argument('--align', type=int, default=0)
    ap.add_argument('--c2', type=int, default=0)
    ap.add_argument('--d1', type=int, default=0)
    ap.add_argument('--cstr', type=int, default=3)
    ap.add_argument('--bearly', type=int, default=1)
    ap.add_argument('--w2late', type=int, default=1)
    ap.add_argument('--aov', type=int, default=5)
    ap.add_argument('--upos', type=int, default=1)
    ap.add_argument('--calt', type=int, default=1)
    ap.add_argument('--pfpos', type=int, default=1)
    ap.add_argument('--wlate', type=int, default=0)
    ap.add_argument('--dbar2', type=int, default=0)
    ap.add_argument('--dbar', type=int, default=0)
    ap.add_argument('--pfw', type=int, default=0)
    ap.add_argument('--pfx', type=int, default=0)
    ap.add_argument('--pfx0', type=int, default=4)
    ap.add_argument('--pfs', type=int, default=1)
    ap.add_argument('--dcoopx', type=int, default=1)
    ap.add_argument('--dcx0', type=int, default=0)
    ap.add_argument('--dcxpos', type=int, default=-1)
    ap.add_argument('--pfe0', type=int, default=2)
    ap.add_argument('--pfne', type=int, default=13)
    ap.add_argument('--prio47', type=int, default=0)
    ap.add_argument('--lookahead', type=int, default=5)
    ap.add_argument('--nz', type=int, default=6)
    ap.add_argument('--nwf', type=int, default=8)
    ap.add_argument('--hiat', type=int, default=8)
    ap.add_argument('--wmerge', type=int, default=0)
    ap.add_argument('--gapv', type=int, default=6)
    ap.add_argument('--slow', type=int, default=0)
    ap.add_argument('--fixn', type=int, default=0)
    ap.add_argument('--csn', type=int, default=1)
    ap.add_argument('--pwalk', type=int, default=0)
    ap.add_argument('--wsc', type=int, default=8)
    ap.add_argument('--nospare', type=int, default=0)
    ap.add_argument('--tailp', type=int, default=0)
    ap.add_argument('--hx', type=int, default=4)
    ap.add_argument('--hx0', type=int, default=4)
    ap.add_argument('--hxat', type=int, default=1)
    ap.add_argument('--hw', type=int, default=0)
    ap.add_argument('--hw0', type=int, default=2)
    ap.add_argument('--hwat', type=int, default=0)
    ap.add_argument('--tgap', type=int, default=40)
    ap.add_argument('--tmask', type=int, default=0x15)
    ap.add_argument('--st', type=int, default=0)
    ap.add_argument('--sf0', type=int, default=2)
    ap.add_argument('--dbar0', type=int, default=2)
    ap.add_argument('--ptl', type=int, default=0)
    ap.add_argument('--ct2', default='')
    ap.add_argument('--ewat', type=int, default=0)
    ap.add_argument('--gprio', type=int, default=1)
    ap.add_argument('--g1t', type=int, default=1)
    ap.add_argument('--tf0', type=int, default=8)
    ap.add_argument('--twoff', type=int, default=0)
    ap.add_argument('--ew', type=int, default=4)
    ap.add_argument('--ew0', type=int, default=2)
    ap.add_argument('--cyc', default='')
    ap.add_argument('--rshare', type=int, default=1)
    ap.add_argument('--dwalk', type=int, default=0)
    ap.add_argument('--band', type=int, default=0)
    ap.add_argument('--absol', type=int, default=0)
    ap.add_argument('--rev', type=int, default=1)
    ap.add_argument('--xg1', type=int, default=0)
    ap.add_argument('--bou', type=int, default=1)
    ap.add_argument('--sjw', type=int, default=7)
    ap.add_argument('--cwalk', type=int, default=0)
    ap.add_argument('--few', default='')
    ap.add_argument('--econv', type=int, default=0)
    ap.add_argument('--nsh', type=int, default=16)
    ap.add_argument('--sh0', type=int, default=5)
    ap.add_argument('--dirt', type=int, default=0)
    ap.add_argument('--mrg', type=int, default=0)
    ap.add_argument('--g1p', type=int, default=0)
    ap.add_argument('--sa', type=int, default=4)
    ap.add_argument('--sbg', type=int, default=16)
    ap.add_argument('--bwat', type=int, default=0)
    ap.add_argument('--x2n', type=int, default=8)
    ap.add_argument('--sent', type=int, default=1)
    ap.add_argument('--spec', type=int, default=0)
    ap.add_argument('--probe', default='')
    ap.add_argument('--skew', type=int, default=0)
    ap.add_argument('--fix', type=int, default=64)
    ap.add_argument('--walk', type=int, default=0)
    ap.add_argument('--eal', type=int, default=3)
    ap.add_argument('--eoff', type=int, default=0)
    ap.add_argument('--ct', default='02')
    ap.add_argument('--rot', type=int, default=13)
    ap.add_argument('--i0', type=int, default=1)
    ap.add_argument('--i1', type=int, default=10)
    ap.add_argument('--burn', type=int, default=0)
    ap.add_argument('--lord', type=int, default=1)
    ap.add_argument('--lprio', type=int, default=0)
    ap.add_argument('--rsp', type=int, default=0)
    ap.add_argument('--tch', type=int, default=1)
    ap.add_argument('--tf', type=int, default=4)
    ap.add_argument('--toff', type=int, default=2)
    ap.add_argument('--tw0', type=int, default=8)
    ap.add_argument('--xat', type=int, default=4)
    ap.add_argument('--pf1', type=int, default=1)
    ap.add_argument('--lpf', type=int, default=20)
    ap.add_argument('--lpfit', type=int, default=6)
    ap.add_argument('--x1m', type=int, default=10)
    ap.add_argument('--bgap', type=int, default=6)
    ap.add_argument('--cprio', type=int, default=1)
    ap.add_argument('--x1n', type=int, default=5)
    ap.add_argument('--w0', type=int, default=2)
    ap.add_argument('--dbar1', type=int, default=1)
    ap.add_argument('--aon', type=int, default=2)
    ap.add_argument('--cbar', type=int, default=0)
    ap.add_argument('--vmpos', type=int, default=2)
    ap.add_argument('--il2', type=int, default=0)
    ap.add_argument('--p1', type=int, default=0)
    ap.add_argument('--pm', type=int, default=2)
    ap.add_argument('--cbov', type=int, default=3)
    ap.add_argument('--p0', type=int, default=0)
    ap.add_argument('--max2', type=int, default=2)
    ap.add_argument('--eager', type=int, default=0)
    ap.add_argument('--cst', type=int, default=0)
    ap.add_argument('--x0', type=int, default=60)
    ap.add_argument('--xlat', type=int, default=18)
    ap.add_argument('--xper', type=int, default=3)
    ap.add_argument('--xc0', type=int, default=0)
    ap.add_argument('--n3', type=int, default=1)
    ap.add_argument('--xi0', type=int, default=1)
    ap.add_argument('--pfsat', type=int, default=0)
    ap.add_argument('--g1prio', type=int, default=0)
    ap.add_argument('--xearly', type=int, default=1)
    ap.add_argument('--cpfd', type=int, default=4)
    ap.add_argument('--cla', type=int, default=1)
    ap.add_argument('--war', type=int, default=1)
    opt = ap.parse_args()
    resolve_waits.dbg = 'dup' in opt.dbg
    g = Gen(opt)
    txt = g.build()
    open(opt.o, 'w').write(txt)
    print('wrote', opt.o, len(txt), 'bytes')


if __name__ == '__main__':
    main()
```

```python
import sys, os, struct, argparse
sys.path.insert(0, os.path.dirname(os.path.abspath(__file__)))
from asmlib import I, WaitTag, Touch, Prog, resolve_waits, resolve_hazards
import cin16, fixalign

KNAME = 'standalone__deep_cross_xdeepfm__recsys_kernel'
LDS_TOTAL = 163840

XSLOT = 320 * 128
WR = 3 * XSLOT + 8192
WSLOT = 32 * 256
L_BIAS = 3 * XSLOT
L_W2 = L_BIAS + 256
RB = L_W2 + 256
assert WR % 32768 == 0 and WR + 4 * WSLOT <= LDS_TOTAL
WSP = 16640
assert RB + 2560 <= LDS_TOTAL

W2P = 1536
SSZ = 677 * 64
FRS = 0
V3OFF = 0
A1 = 6144
FR = A1
FRL = FR + 33 * 1024
A3 = FRL + 2048
SG = A3
A2 = SG + SSZ
SQ = A2
V2S = SQ + SSZ
L_WCO = V2S + 832
L_FLG = L_WCO + 192
L_MX = L_FLG + 16
RC = L_FLG + 64
XB = V2S + 2496
XPP = 1056
XBSZ = 3 * XPP + 7 * 128
IMG = A3
IMGP = 160
IMGSZ = 33 * IMGP
XB2 = IMG + 8 * IMGSZ
PART = XB2 + 8 * XBSZ
XOFF = lambda f: (f & 3) * XPP + (f >> 2) * 128
assert RC + 512 <= V2S + 1664
assert XB + 8 * XBSZ <= LDS_TOTAL and XB % 16 == 0 and A2 % 64 == 0 and A3 % 64 == 0 and L_WCO % 16 == 0 and V2S % 64 == 0
assert PART + 8 * 1536 <= V2S + 832 and IMGSZ % 32 == 0 and XB2 % 16 == 0

S_WAVE = 3
S_IDX, S_TAB, S_CIN, S_WCO, S_W1, S_B1, S_W2, S_BO, S_OUT, S_DBG, S_WS = 4, 6, 8, 10, 12, 14, 16, 18, 20, 22, 24
S_MB, S_R = 26, 27
SRD_IDX, SRD_TAB, SRD_CIN, SRD_WCO, SRD_W, SRD_B1, SRD_W2, SRD_OUT, SRD_WS, SRD_DBG = 28, 32, 36, 40, 44, 48, 52, 56, 60, 64
S_T0, S_T1, S_T2, S_T3 = 68, 69, 70, 71
S_LOOP, S_IDXOFF, S_WSOFF, S_WMB, S_XM0, S_N0, S_C0, S_CW, S_BOUT, S_TW = 72, 73, 74, 75, 76, 77, 78, 79, 80, 81
S_EX = 82
S_GRP, S_RC = 84, 85
S_ST = 86
S_M26, S_MASK = 90, 92
S_SAMP, S_STG, S_STG9, S_TGT = 94, 95, 96, 97
S_M26B = 98
S_GW = 100
S_TAGT = 0
S_TAG = 1
S_PW = 101
S_PX = 77
S_PXE = 73

GELU_C0 = -2.0 * 0.7978845608028654 * 1.4426950408889634
GELU_C1 = GELU_C0 * 0.044715


def f32hex(x):
    return '0x%08x' % struct.unpack('<I', struct.pack('<f', x))[0]


def vr(a, n):
    return f'v[{a}:{a + n - 1}]' if n > 1 else f'v{a}'


def srd(a):
    return f's[{a}:{a + 3}]'


def flat(gs):
    res = []
    for c in gs:
        if isinstance(c, (tuple, list)):
            res += flat(c)
        else:
            res.append(c)
    return res


def interleave(a, b):
    out = []
    ia = ib = 0
    na, nb = len(a), len(b)
    while ia < na or ib < nb:
        if ib >= nb or (ia < na and ia * nb <= ib * na):
            out.append(a[ia]); ia += 1
        else:
            out.append(b[ib]); ib += 1
    return out


SLOTS = []
for j in range(0, 26, 2):
    for s in range(0, 14 if j <= 12 else 13):
        SLOTS.append((j, (j + s) % 26))
assert len(SLOTS) == 176
DUP_SLOT = SLOTS.index((12, 25))
assert all((d * 2521) >> 16 == d // 26 for d in range(800))
assert all((d * 10923) >> 16 == d // 6 for d in range(64))
assert all((d * 5042) >> 16 == d // 13 for d in range(170))
assert all((d * 3277) >> 16 == d // 20 for d in range(264))


DOC = '''; ---------------------------------------------------------------------------------------------
; Generated by tools/gen24.py (own generator; waits / hazard nops derived from instruction traces).
;
;       U[i,j,k] = sum_h W2[h,i,j] V3[h,k]
;   Both quadratic forms use the 351 distinct products x_j x_k (j<=k) with symmetrised weights, evaluated by
;   DNN branch: full bf16 GEMM + bias + tanh-GELU (x / (1 + exp(-2u))) + dot with w_dnn2; four terms of one
;   sample share a reciprocal (common denominator; exp(-2u) saturates at 2^24, i.e. at fp32 rounding level).
;   their own producer) and counters in d_debug; the last arriver of a row block adds up and writes d_out.
;   L_tables holds constant per-lane LDS address tables (functions of the lane id only).
; ---------------------------------------------------------------------------------------------
'''


class Gen:
    def __init__(self, opt):
        self.opt = opt
        self.P = Prog()

    def seq(self, lines):
        return [self.P.add(l) for l in flat(lines)]

    def build_srd(self, dst, ptr, size):
        return [f's_mov_b32 s{dst}, s{ptr}', f's_and_b32 s{dst + 1}, s{ptr + 1}, 0xffff',
                f's_mov_b32 s{dst + 2}, {size}', f's_mov_b32 s{dst + 3}, 0x20000']

    def stamp(self, slot):
        if not self.opt.stamps or (self.opt.few and slot not in [int(x) for x in self.opt.few.split(',')]):
            return []
        return [f's_memtime s[{S_ST}:{S_ST + 1}]', f's_memrealtime s[{S_ST + 2}:{S_ST + 3}]', 's_waitcnt lgkmcnt(0)',
                f'v_writelane_b32 v252, s{S_ST}, {slot}', f'v_writelane_b32 v253, s{S_ST + 2}, {slot}']

    def probe(self, name, wave=4):
        if self.opt.tailp:
            return ['s_memrealtime s[88:89]', 's_waitcnt lgkmcnt(0)'] if name in self.opt.probe.split(',') else []
        if self.opt.cyc:
            a_, b_, _ = self.opt.cyc.split(',')
            return ['s_memtime s[86:87]', 's_waitcnt lgkmcnt(0)'] if name == a_ else ['s_memtime s[88:89]', 's_waitcnt lgkmcnt(0)'] if name == b_ else []
        if self.opt.probe != name:
            return []
        return ['s_memrealtime s[88:89]', 's_waitcnt lgkmcnt(0)']

    def stamp_flush(self):
        if not self.opt.stamps:
            return []
        L = self.build_srd(SRD_WS, S_WS, 0x10000000)
        L += [f's_lshl_b32 s{S_C0}, s2, 3', f's_add_u32 s{S_C0}, s{S_C0}, s{S_WAVE}',
              f's_lshl_b32 s{S_C0}, s{S_C0}, 8', f's_add_u32 s{S_C0}, s{S_C0}, 0x100000',
              'v_lshlrev_b32 v254, 3, v0', 's_mov_b32 exec_hi, 0',
              f'buffer_store_dwordx2 v[252:253], v254, {srd(SRD_WS)}, s{S_C0} offen', 's_mov_b32 exec_hi, -1']
        return L

    def stamp0(self):
        if not self.opt.stamps:
            return []
        return ['v_mov_b32 v252, 0xcdcdcdcd', 'v_mov_b32 v253, 0xcdcdcdcd',
                f'v_writelane_b32 v252, s{S_ST}, 0', f'v_writelane_b32 v253, s{S_ST + 2}, 0'] + self.stamp(15)

    def tlb2(self, t):
        L = self.build_srd(SRD_WS, S_WS, 0x10000000) + self.build_srd(SRD_OUT, S_OUT, 8192) + self.build_srd(SRD_DBG, S_DBG, 256)
        L += [f's_load_dword s{S_BOUT}, s[{S_BO}:{S_BO + 1}], 0', f'v_mov_b32 v{t}, 0', 's_mov_b64 exec, 1',
              f's_mov_b32 s{S_TW}, 0x80000',
              f'buffer_load_dword v{t + 1}, v{t}, {srd(SRD_WS)}, s{S_TW} offen',
              f'buffer_load_dword v{t + 2}, v{t}, {srd(SRD_OUT)}, 0 offen',
              's_mov_b64 exec, -1']
        return L

    def tlb1(self, vtmp, vdst):
        if not self.opt.etlb:
            return self.build_srd(SRD_TAB, S_TAB, 100000 * 128)
        return self.build_srd(SRD_TAB, S_TAB, 100000 * 128) + [
            f'v_mov_b32 v{vtmp}, s{S_BOUT}', f'buffer_load_dword v{vdst}, v{vtmp}, {srd(SRD_TAB)}, 0 offen']

    def gettag(self, lab, t, VT):
        return [f's_cmp_lg_u32 s{S_WAVE}, 0', f's_cbranch_scc1 {lab}',
                f's_memrealtime s[{S_TAGT}:{S_TAGT + 1}]'] + self.build_srd(SRD_DBG, S_DBG, 256) + [
                f's_lshl_b32 s{S_TW}, s{S_MB}, 2', f'v_mov_b32 v{t}, s{S_TW}', 's_waitcnt lgkmcnt(0)',
                f's_or_b32 s{S_TAG}, s{S_TAGT}, 1', f'v_mov_b32 v{VT}, s{S_TAG}', f'v_mov_b32 v{VT + 1}, 0',
                's_mov_b64 exec, 1',
                f'buffer_atomic_cmpswap v[{VT}:{VT + 1}], v{t}, {srd(SRD_DBG)}, 0 offen offset:128 sc0',
                's_mov_b64 exec, -1', f'{lab}:']

    def prologue(self):
        L = []
        if self.opt.stamps:
            L += [f's_memtime s[{S_ST}:{S_ST + 1}]', f's_memrealtime s[{S_ST + 2}:{S_ST + 3}]']
        L += ['s_cmp_ge_u32 s2, 256', 's_cbranch_scc1 L_end',
              's_load_dwordx16 s[4:19], s[0:1], 0',
              's_load_dwordx4 s[20:23], s[0:1], 64',
              's_load_dwordx2 s[24:25], s[0:1], 80',
              'v_lshrrev_b32 v1, 6, v0']
        if self.opt.cpf:
            L += [f's_getpc_b64 s[{S_MASK}:{S_MASK + 1}]', 'L_pc:',
                  f's_and_b32 s{S_T0}, s2, 0xf8', f'v_add_u32 v2, s{S_T0}, v1', 'v_and_b32 v3, 32, v0', 'v_lshl_add_u32 v2, v3, 3, v2', 'v_lshlrev_b32 v2, 7, v2',
                  f'v_min_u32 v2, L_end-L_pc, v2',
                  f'v_mov_b32 v3, s{S_MASK + 1}',
                  f'v_add_co_u32 v2, vcc, s{S_MASK}, v2', 'v_addc_co_u32 v3, vcc, 0, v3, vcc',
                  'global_load_dword v251, v[2:3], off']
        if self.opt.skew:
            L += ['s_memtime s[86:87]' if self.opt.cyc else 's_memrealtime s[86:87]', 's_mov_b32 s88, 0']
        L += ['v_and_b32 v0, 63, v0',
              f'v_readfirstlane_b32 s{S_WAVE}, v1',
              f's_and_b32 s{S_T0}, s2, 7', f's_lshr_b32 s{S_T1}, s2, 3', f's_xor_b32 s{S_T1}, s{S_T1}, {31 * self.opt.rev}',
              f's_and_b32 s{S_BOUT}, s2, 0xf8', f's_add_u32 s{S_BOUT}, s{S_BOUT}, s{S_WAVE}', f's_lshl_b32 s{S_BOUT}, s{S_BOUT}, {self.opt.etlb}',
              f's_min_u32 s{S_T2}, s{S_T0}, 1', f's_add_u32 s{S_T3}, s{S_T1}, s{S_T2}',
              f's_cmp_ge_u32 s{S_T3}, 22', 's_cbranch_scc1 L_cin',
              f's_mul_i32 s{S_T0}, s{S_T0}, 21', f's_add_u32 s{S_T0}, s{S_T0}, s{S_T3}',
              ]
        if self.opt.band == 0:
            L += [f's_mul_i32 s{S_MB}, s{S_T0}, 5042', f's_lshr_b32 s{S_MB}, s{S_MB}, 16',
                  f's_mul_i32 s{S_T1}, s{S_MB}, 13', f's_sub_u32 s{S_R}, s{S_T0}, s{S_T1}']
        else:
            assert all((d * 9363) >> 16 == d // 7 for d in range(91)) and all((d * 10923) >> 16 == d // 6 for d in range(78))
            L += [f's_sub_u32 s{S_T1}, 168, s{S_T0}', f's_cmp_lt_u32 s{S_T0}, 91', f's_cselect_b32 s{S_T0}, s{S_T0}, s{S_T1}',
                  f's_cselect_b32 s{S_T1}, 0, 1560', f's_cselect_b32 s{S_T2}, 7, 6', f's_cselect_b32 s{S_R}, 0, 7', f's_add_u32 s{S_T1}, s{S_T1}, 9363',
                  f's_mul_i32 s{S_MB}, s{S_T0}, s{S_T1}', f's_lshr_b32 s{S_MB}, s{S_MB}, 16', f's_mul_i32 s{S_T1}, s{S_MB}, s{S_T2}',
                  f's_add_u32 s{S_R}, s{S_R}, s{S_T0}', f's_sub_u32 s{S_R}, s{S_R}, s{S_T1}']
        return self.seq(L)

    def dnn(self):
        o = self.opt
        vW = [1, 2, 3, 4]
        vX = [[5, 6], [7, 8]]
        vPa, vPc = 9, 10
        WF, XA, ACC = 16, 48, 88
        W2F = WF
        KC0, KC1, KONE = 12, 14, 248
        SUMP, GT = 32, 52
        vIdxOff, vCh, vWD, vBL = 1, [2, 3], [4, 5], 11
        ST, VO = 16, 56
        T = 100
        g, i4, q = T + 16, T + 17, T + 18
        PI = T + 8

        def acc(tn, tm):
            return ACC + (tm * 4 + tn) * 4

        def small(srd_, dst):
            return [f's_mov_b32 m0, {dst}', 's_mov_b64 exec, 0xffff',
                    I(f'buffer_load_dwordx4 v{vBL}, {srd(srd_)}, s{S_N0} offen lds', tag='BIAS'), 's_mov_b64 exec, -1']
        L = [f's_lshl_b32 s{S_N0}, s{S_R}, 8', f's_mul_i32 s{S_T3}, s{S_MB}, 320',
             f'v_lshrrev_b32 v{g}, 4, v0', f'v_lshlrev_b32 v{vBL}, 4, v0', f's_and_b32 s{S_CW}, s{S_WAVE}, 3',
             f's_cmp_ge_u32 s{S_WAVE}, 4', 's_cbranch_scc1 L_ld']
        c0 = self.seq(L)
        PI = T

        RG, CG = S_T0, S_T1
        L = [f's_mul_i32 s{S_T2}, s{S_WAVE}, 13', f'v_min_u32 v{q}, 12, v0', f'v_add_u32 v{q}, s{S_T2}, v{q}',
             f'v_lshrrev_b32 v{i4}, 1, v{q}', f'v_mul_u32_u24 v{i4}, 96, v{i4}', f'v_lshl_add_u32 v{q}, v{q}, 2, v{i4}',
             f's_mul_i32 s{S_C0}, s{S_R}, 25', f's_min_u32 s{S_C0}, s{S_C0}, 294',
             f's_add_u32 s{S_C0}, s{S_C0}, s{S_T3}', f's_mul_i32 s{S_C0}, s{S_C0}, 104',
             f's_lshl_b32 s{S_T2}, s{S_MB}, 2', f's_add_u32 s{S_T2}, s{S_T2}, s{S_WAVE}', f's_add_u32 s{S_T2}, s{S_T2}, {o.ew0 * 32}',
             f's_mul_i32 s{S_T2}, s{S_T2}, 3328', f's_add_u32 s{S_T2}, s{S_T2}, s{S_N0}', f's_mov_b32 s{S_TW}, {52 * 3328}',
             f'v_lshrrev_b32 v{T + 12}, 1, v0', f'v_mul_lo_u32 v{T + 12}, s{S_TW}, v{T + 12}', f'v_and_b32 v{i4}, 1, v0', f'v_lshl_add_u32 v{T + 12}, v{i4}, 7, v{T + 12}',
             f'v_add_u32 v{T + 12}, s{S_T2}, v{T + 12}', 's_waitcnt lgkmcnt(0)']
        ct = [int(x) for x in o.ct + o.ct2]
        L += self.build_srd(SRD_IDX, S_IDX, 4096 * 104)
        if ct:
            L += [f'buffer_load_dwordx4 {vr(PI, 4)}, v{q}, {srd(SRD_IDX)}, s{S_C0} offen']
        if ct and max(ct) > 3:
            L += [f'buffer_load_dwordx4 {vr(PI + 4, 4)}, v{q}, {srd(SRD_IDX)}, s{S_C0} offen offset:16']
        L += self.tlb1(T + 14, T + 15)
        if o.ptl:
            L += [f'v_lshlrev_b32 v{T + 14}, {o.ptl}, v0', f's_lshl_b32 s{S_T2}, s{S_WAVE}, {o.ptl - 2}', f's_mov_b64 exec, {(1 << min(64, (12800000 >> o.ptl) + 1)) - 1}',
                  f'buffer_load_dword v{T + 15}, v{T + 14}, {srd(SRD_TAB)}, s{S_T2} offen', 's_mov_b64 exec, -1']
        touch = [x for k in ct for x in (f'v_lshlrev_b32 v{PI + k}, 7, v{PI + k}', f'buffer_load_dword v{acc(0, 7) + k}, v{PI + k}, {srd(SRD_TAB)}, 0 offen')]
        touch, touch2 = touch[:2 * len(o.ct)], touch[2 * len(o.ct):]
        L += self.build_srd(SRD_B1, S_B1, 3328) + small(SRD_B1, L_BIAS)
        if o.ew:
            L += self.build_srd(SRD_W, S_W1, 1664 * 3328)
            ewl = [f's_mov_b64 exec, {(1 << (2 * o.ew)) - 1}', f'buffer_load_dword v{acc(0, 7) + 9}, v{T + 12}, {srd(SRD_W)}, 0 offen', 's_mov_b64 exec, -1']
            if o.ewat == 0:
                L += ewl
            elif o.ewat == 1:
                touch = touch + ewl
            else:
                touch2 = touch2 + ewl
        chead = self.seq(L + (['s_barrier'] if o.dbar0 else []) + ['s_branch L_cmp'])
        self.ldat = len(self.P.static)
        L = ['L_cmp:'] + self.stamp0()
        L += [f's_and_b32 s{RG}, s{S_WAVE}, 1', f's_lshr_b32 s{CG}, s{S_WAVE}, 1',
              f'v_bfe_u32 v{i4}, v0, 2, 2', f'v_lshl_add_u32 v{q}, v{g}, 3, v{i4}', f'v_lshlrev_b32 v{q}, 8, v{q}',
              f'v_bfe_u32 v{i4}, v0, 2, 3', f's_lshl_b32 s{S_T2}, s{CG}, 2', f'v_xor_b32 v{i4}, s{S_T2}, v{i4}',
              f'v_lshl_add_u32 v{q}, v{i4}, 5, v{q}', f'v_and_b32 v{i4}, 3, v0', f'v_lshl_add_u32 v{q}, v{i4}, 3, v{q}',
              f'v_add_u32 v{vW[0]}, {WR}, v{q}']
        L += [f'v_xor_b32 v{vW[tn]}, {32 * tn}, v{vW[0]}' for tn in range(1, 4)]
        L += [f's_lshl_b32 s{S_T2}, s{CG}, 7', f's_add_u32 s{S_T2}, s{S_T2}, {L_BIAS}', f'v_lshlrev_b32 v{q}, 3, v{g}', f'v_add_u32 v{vPa}, s{S_T2}, v{q}',
              f'v_and_b32 v{q}, 15, v0', f'v_lshlrev_b32 v{q}, 7, v{q}',
              f'v_bfe_u32 v{i4}, v0, 1, 3', f'v_xor_b32 v{i4}, v{i4}, v{g}', f'v_lshl_add_u32 v{q}, v{i4}, 4, v{q}',
              f's_mul_i32 s{S_T2}, s{RG}, 20480', f'v_add_u32 v{vX[0][0]}, s{S_T2}, v{q}', f'v_xor_b32 v{vX[1][0]}, 64, v{vX[0][0]}',
              f'v_add_u32 v{vX[0][1]}, {2 * XSLOT}, v{vX[0][0]}', f'v_add_u32 v{vX[1][1]}, {2 * XSLOT}, v{vX[1][0]}',
              f's_mul_i32 s{S_T2}, s{S_WAVE}, 640', f's_add_u32 s{S_T2}, s{S_T2}, {RB}',
              f'v_and_b32 v{q}, 15, v0', f'v_lshlrev_b32 v{q}, 2, v{q}', f'v_add_u32 v{q}, s{S_T2}, v{q}',
              f'v_lshrrev_b32 v{i4}, 5, v0', f'v_lshl_add_u32 v{q}, v{i4}, 6, v{q}', f'v_bfe_u32 v{i4}, v0, 4, 1', f'v_lshl_add_u32 v{vPc}, v{i4}, 7, v{q}',
              f's_mov_b32 s{S_LOOP}, 0',
              f'v_mov_b32 v{KC0}, {f32hex(GELU_C0)}', f'v_mov_b32 v{KC0 + 1}, {f32hex(GELU_C0)}',
              f'v_mov_b32 v{KC1}, {f32hex(GELU_C1)}', f'v_mov_b32 v{KC1 + 1}, {f32hex(GELU_C1)}']

        def pkreads(off, dst):
            return [f'ds_read_b64 {vr(dst + 4 * tn + 2, 2)}, v{vPa} offset:{off + 32 * tn}' for tn in range(4)]

        def unp(dst):
            c = []
            for tn in range(4):
                r = dst + 4 * tn
                c += [f'v_lshlrev_b32 v{r}, 16, v{r + 2}', f'v_and_b32 v{r + 1}, 0xffff0000, v{r + 2}',
                      f'v_lshlrev_b32 v{r + 2}, 16, v{r + 3}', f'v_and_b32 v{r + 3}, 0xffff0000, v{r + 3}']
            return c
        L += touch + self.stamp(6)
        CT_, CW_, CD_ = 248, 11, 251
        if o.tch == 2:
            L += [f's_mul_i32 s{S_T2}, s{S_WAVE}, 13', f's_add_u32 s{S_T2}, s{S_T2}, s{S_R}', f's_min_u32 s{S_T2}, s{S_T2}, 39', f's_lshl_b32 s{S_T2}, s{S_T2}, 3',
                  f's_add_u32 s{S_T2}, s{S_T2}, s{S_T3}', f's_mul_i32 s{S_T2}, s{S_T2}, 104',
                  f'v_lshrrev_b32 v{q}, 3, v0', f'v_mul_u32_u24 v{q}, 72, v{q}', f'v_lshl_add_u32 v{q}, v0, 2, v{q}']
            L += [f'buffer_load_dword v{CT_ + r}, v{q}, {srd(SRD_IDX)}, s{S_T2} offen offset:{4 * min(o.tf0 + 8 * r, 18)}' for r in range(3)]
            L += [f'v_add_u32 v{CW_}, {(o.tw0 - o.ew0) * 32 * 3328}, v{T + 12}', f's_mov_b32 s{S_RC}, 0']
            touch2 = touch2 + [f'v_lshlrev_b32 v{CT_ + r}, 7, v{CT_ + r}' for r in range(3)] + [Touch(f'v{CD_}')]
        if o.st:
            SR = [36, 40, 52, 56, 60, 64, 96]
            L += [f's_mul_i32 s{S_T2}, s{S_WAVE}, 13', f's_lshr_b32 s{S_T2}, s{S_T2}, 1', f's_mul_i32 s{S_T2}, s{S_T2}, 104', f's_add_u32 s{S_T2}, s{S_T2}, s{S_C0}', f's_add_u32 s{S_T2}, s{S_T2}, {4 * o.sf0}']
            for r in range(7):
                L += [f's_buffer_load_dwordx4 s[{SR[r]}:{SR[r] + 3}], {srd(SRD_IDX)}, s{S_T2}', f's_add_u32 s{S_T2}, s{S_T2}, 104']
            L += ['s_waitcnt lgkmcnt(0)']
            for f_ in range(o.st):
                for r in range(7):
                    L += [f's_lshl_b32 s{SR[r] + f_}, s{SR[r] + f_}, 7', f's_buffer_load_dword s{SR[r] + f_}, {srd(SRD_TAB)}, s{SR[r] + f_}']
        BI = [WaitTag(vm_tags=['BIAS'])] + pkreads(0, acc(0, 9)) + unp(acc(0, 9)) + [f'v_mov_b64 {vr(acc(0, 8) + r, 2)}, {vr(acc(0, 9) + r, 2)}' for r in range(0, 16, 2)]

        def rX(p, k):
            xs = p % 3
            return f'ds_read_b128 {vr(XA + 4 * (k % 10), 4)}, v{vX[k % 2][xs // 2]} offset:{(xs % 2) * XSLOT + (k // 2) * 2048}'

        def rW(tn):
            return [f'ds_read_b64_tr_b16 {vr(WF + 16 * par + 4 * tn + 2 * rd, 2)}, v{vW[tn]} offset:{par * WSLOT + rd * 1024}' for par in range(2) for rd in range(2)]
        tog = lambda tn: f'v_xor_b32 v{vW[tn]}, {2 * WSLOT}, v{vW[tn]}'

        def dec(gi):
            G, tn, a_, par = gi // 16, (gi // 4) % 4, (gi // 2) % 2, gi % 2
            if o.bou:
                par ^= a_ ^ (G == 4)
                a_ ^= tn & 1
            return G, tn, a_, par
        lastx = {4 * dec(gi)[0] + 2 * dec(gi)[2] + dec(gi)[3]: gi for gi in range(80)}

        def mf(gi, first=False):
            G, tn, a_, par = dec(gi)
            d = acc(tn, 2 * G + a_)
            if first and gi % 2 == 0 and G < 4:
                return f'v_mfma_f32_16x16x32_bf16 {vr(d, 4)}, {vr(WF + 16 * par + 4 * tn, 4)}, {vr(XA + 4 * ((4 * G + 2 * a_ + par) % 10), 4)}, {vr(acc(tn, 9), 4)}'
            return f'v_mfma_f32_16x16x32_bf16 {vr(d, 4)}, {vr(WF + 16 * par + 4 * tn, 4)}, {vr(XA + 4 * ((4 * G + 2 * a_ + par) % 10), 4)}, {vr(d, 4)}'
        SH = [11, 248, 249, 250]
        nsh = o.nsh

        def shadow():
            c = []
            for b0 in range(0, nsh, 4):
                E = [(ACC + e, SH[e - b0]) for e in range(b0, min(b0 + 4, nsh))]
                for op in ('v_mul_f32 T, X, X', f'v_fma_f32 T, T, v{KC1}, v{KC0}', 'v_mul_f32 T, T, X', 'v_exp_f32 T, T', 'v_add_f32 T, 1.0, T', 'v_rcp_f32 T, T', 'v_mul_f32 X, X, T'):
                    c += [(op.replace('T', f'v{t}').replace('X', f'v{x}'), 8 if ('exp' in op or 'rcp' in op) else 4) for x, t in E]
            return c

        def U_(t):
            i_ = I(t)
            i_.wr = []
            return i_

        def cpair(p, kind, loopend=False):
            S = []
            ev = {}
            if kind == 'first':
                g_ = o.sbg + 1
                for k in range(2 * o.sa, 10):
                    ev[g_] = rX(p, k); g_ += 1
            else:
                for i_, x in enumerate(rW(3)[2:]):
                    ev[i_] = x
                for i_, k in enumerate(range(6, 10)):
                    ev[2 + i_] = rX(p, k)
            for k in range(10):
                g_ = lastx[k]
                while g_ in ev or (kind == 'first' and g_ <= o.sbg):
                    g_ += 1
                ev[g_] = rX(p, k + 10)
            BG = 48 + o.bgap if o.bou else 46 + o.bgap
            if kind != 'last':
                ev[BG], ev[BG + 1] = rX(p + 1, 0), rX(p + 1, 1)
                for k in range(2, 6):
                    ev[lastx[10 + k]] = rX(p + 1, k)
                for tn in range(4):
                    for i_, x in enumerate(rW(tn)):
                        if 66 + 4 * tn + i_ < 80:
                            ev[66 + 4 * tn + i_] = x
            sh_ = shadow() if kind == 'last' else []
            for gi in range(80):
                S.append(mf(gi, kind == 'first'))
                t = 4
                if o.dwalk and kind != 'last' and gi in (24, 40, 64, 7):
                    S += [f'L_dw{self.ndw}:', f's_cbranch_execz L_dw{self.ndw + 1}']
                    self.ndw += 1
                if kind == 'first' and gi == o.sbg:
                    S += (self.stamp(20) if o.itst == 2 else []) + ['s_barrier'] + (self.stamp(21) if o.itst == 2 else [])
                if kind != 'last' and gi == BG - 1:
                    st_ = lambda k: ([f's_cmp_lg_u32 s{S_LOOP}, 0', f's_cbranch_scc1 L_ns{k}'] + self.stamp(k) + [f'L_ns{k}:']) if (o.itst == 2 and p < 3) else []
                    S += ['s_waitcnt lgkmcnt(0)'] + st_(22 + 2 * p) + ['s_barrier'] + st_(23 + 2 * p)
                if gi in ev:
                    S.append(ev[gi]); t += 8
                if kind != 'last' and 8 <= gi < 12:
                    S.append(tog(gi - 8))
                if o.tch == 2 and kind == 'mid' and gi == o.tgap:
                    if p == 1:
                        S += [f's_bitcmp1_b32 {o.tmask:#x}, s{S_LOOP}', 's_cbranch_scc1 L_ctx', 'L_ctxr:']
                    if p == 2:
                        S += ['s_mov_b64 exec, 0xff', U_(f'buffer_load_dword v{CD_}, v{CW_}, {srd(SRD_W)}, s{S_RC} offen'), 's_mov_b64 exec, -1', f's_add_u32 s{S_RC}, s{S_RC}, {208 * 3328}']
                if o.tch == 2 and kind == 'first' and gi == o.tgap:
                    S += ['s_mov_b64 exec, 0xff', U_(f'buffer_load_dword v{CD_}, v{CW_}, {srd(SRD_W)}, s{S_RC} offen'), 's_mov_b64 exec, -1', f's_add_u32 s{S_RC}, s{S_RC}, {208 * 3328}']
                if gi % 2 == 0 and gi + 2 < 80:
                    n_ = gi + 2
                    G, tn, a_ = n_ // 16, (n_ // 4) % 4, (n_ // 2) % 2
                    if tn == 0:
                        S.append(Touch(vr(XA + 4 * ((4 * G + 2 * a_) % 10), 8)))
                    if G == 0 and a_ == 0:
                        S.append(Touch(vr(WF + 16 + 4 * tn, 4)))
                if gi == 78 and kind != 'last':
                    S.append(Touch(vr(WF + 16, 4)))
                if loopend and gi == 48:
                    S += [f's_add_u32 s{S_LOOP}, s{S_LOOP}, 1', f's_cmp_lt_u32 s{S_LOOP}, 8']
                t = max(t, 8)
                while sh_ and gi >= o.sh0 and t + sh_[0][1] <= 16:
                    x, c_ = sh_.pop(0)
                    S.append(x); t += c_
            S += [x for x, _ in sh_]
            if kind == 'last':
                print('shadow left', len(sh_))
            return S
        self.ndw = 0
        if o.dwalk:
            L += ['s_mov_b64 exec, 0'] + [x for q_ in range(3) for x in (f's_cmp_eq_u32 s{S_WAVE}, {q_}', f's_cbranch_scc1 L_dw{4 * q_}')] + ['s_branch L_dw12', 'L_dw16:', 's_mov_b64 exec, -1']
        L += self.stamp(1) + ['s_barrier'] + [x for tn in range(4) for x in rW(tn)] + BI + touch2 + ['s_waitcnt lgkmcnt(0)', f's_setprio {o.cprio}', 's_barrier'] + self.stamp(2)
        L += [rX(0, k) for k in range(2 * o.sa)] + cpair(0, 'first')
        cpre = self.seq(L)
        body = self.seq(['L_dnn_loop0:'])
        for p in range(1, 4):
            S = cpair(p, 'mid', p == 3)
            if p == 3:
                if o.stamps and o.itst == 1:
                    i_ = S.index('s_barrier')
                    S = S[:i_] + [f's_memtime s[{S_ST}:{S_ST + 1}]', f's_memrealtime s[{S_ST + 2}:{S_ST + 3}]', f's_or_b32 m0, s{S_LOOP}, 16', 's_waitcnt lgkmcnt(0)',
                                  f'v_writelane_b32 v252, s{S_ST}, m0', f'v_writelane_b32 v253, s{S_ST + 2}, m0', f's_cmp_lt_u32 s{S_LOOP}, 8'] + S[i_:]
                S += ['s_cbranch_scc1 L_dnn_loop0']
            body += self.seq(S)
        tc = c0 + chead + cpre + body * 2 + self.seq(['L_tail:'])
        tc += self.seq((['s_waitcnt vmcnt(0)'] if o.tch == 2 else []) + cpair(25, 'last') + pkreads(256, W2F) + [f'v_mov_b32 v{KONE}, 1.0', f'v_mov_b32 v{KONE + 1}, 1.0'])
        if o.burn:
            bl = [f's_movk_i32 s{S_LOOP}, {o.burn}', 'L_burn:'] + [f'v_mfma_f32_16x16x32_bf16 {vr(XA + 32 + 4 * (k % 2), 4)}, {vr(WF + 16 + 4 * (k % 4), 4)}, {vr(XA + 4 * (k // 4), 4)}, 0' for k in range(32)]
            tc += self.seq(bl + [f's_sub_u32 s{S_LOOP}, s{S_LOOP}, 1', f's_cmp_lg_u32 s{S_LOOP}, 0', 's_cbranch_scc1 L_burn'])
        tc += self.seq(['L_epi:'] + self.stamp(3))

        p2 = lambda r: vr(r, 2)
        seen = set()

        def gelu(groups):
            L = []
            for k, vals in enumerate(groups):
                tb = GT + (k % 2) * 16
                V_ = [(x, w, s_, tb + 4 * i_, tb + 4 * i_ + 2) for i_, (x, w, s_) in enumerate(vals)]
                for (x, w, s_, t, u) in V_:
                    L.append(f'v_pk_mul_f32 {p2(t)}, {p2(x)}, {p2(x)}')
                for (x, w, s_, t, u) in V_:
                    L.append(f'v_pk_fma_f32 {p2(t)}, {p2(t)}, {p2(KC1)}, {p2(KC0)}')
                for (x, w, s_, t, u) in V_:
                    L.append(f'v_pk_mul_f32 {p2(t)}, {p2(t)}, {p2(x)}')
                for (x, w, s_, t, u) in V_:
                    L += [f'v_exp_f32 v{t}, v{t}', f'v_exp_f32 v{t + 1}, v{t + 1}']
                for (x, w, s_, t, u) in V_:
                    L.append(f'v_pk_mul_f32 {p2(u)}, {p2(x)}, {p2(w)}')
                for (x, w, s_, t, u) in V_:
                    L.append(f'v_pk_add_f32 {p2(t)}, {p2(t)}, {p2(KONE)}')
                for (x, w, s_, t, u) in V_:
                    L += [f'v_rcp_f32 v{t}, v{t}', f'v_rcp_f32 v{t + 1}, v{t + 1}']
                for (x, w, s_, t, u) in V_:
                    if s_ in seen:
                        L.append(f'v_pk_fma_f32 {p2(s_)}, {p2(t)}, {p2(u)}, {p2(s_)}')
                    else:
                        L.append(f'v_pk_mul_f32 {p2(s_)}, {p2(t)}, {p2(u)}')
                        seen.add(s_)
            return L
        el = lambda tn, tm, d: (acc(tn, tm) + 2 * d, W2F + 4 * tn + 2 * d, SUMP + 2 * tm)
        allel = [el(tn, 2 * tp + a_, d) for tp in range(5) for tn in range(4) for d in range(2) for a_ in range(2)]
        rest = [e for e in allel if e[0] >= ACC + nsh]
        if o.rshare:
            assert nsh % 8 == 0
            KS = 84
            quads = [[el(2 * h + t_, tm, d) for t_ in range(2) for d in range(2)] for tm in range(10) for h in range(2)]
            quads = [q_ for q_ in quads if q_[0][0] >= ACC + nsh]
            order = sorted(range(len(quads)), key=lambda i_: (i_ // 4, i_ % 2, i_))
            quads = [quads[i_] for i_ in order]
            L = [f'v_mov_b32 v{KS}, {f32hex(-24.0)}', f'v_mov_b32 v{KS + 1}, {f32hex(-24.0)}', f'v_mov_b32 v{KS + 2}, {f32hex(2.0 ** 24)}', f'v_mov_b32 v{KS + 3}, {f32hex(2.0 ** 24)}']
            for k in range(0, len(quads), 2):
                Qs = quads[k:k + 2]
                V_ = [(x, w, GT + 16 * j_ + 4 * i_, GT + 16 * j_ + 4 * i_ + 2) for j_, q_ in enumerate(Qs) for i_, (x, w, s_) in enumerate(q_)]
                L += [f'v_pk_mul_f32 {p2(t)}, {p2(x)}, {p2(x)}' for (x, w, t, u) in V_]
                L += [f'v_pk_fma_f32 {p2(t)}, {p2(t)}, {p2(KC1)}, {p2(KC0)}' for (x, w, t, u) in V_]
                L += [f'v_pk_fma_f32 {p2(t)}, {p2(t)}, {p2(x)}, {p2(KS)}' for (x, w, t, u) in V_]
                L += [f'v_exp_f32 v{t + e_}, v{t + e_} clamp' for (x, w, t, u) in V_ for e_ in range(2)]
                if k == 0:
                    L += unp(W2F)
                L += [f'v_pk_mul_f32 {p2(u)}, {p2(x)}, {p2(w)}' for (x, w, t, u) in V_]
                L += [f'v_pk_fma_f32 {p2(t)}, {p2(t)}, {p2(KS + 2)}, {p2(KONE)}' for (x, w, t, u) in V_]
                for prs in ([(0, 1), (2, 3)], [(0, 2)]):
                    M_ = [(V_[4 * j_ + a_], V_[4 * j_ + b_]) for j_ in range(len(Qs)) for a_, b_ in prs]
                    L += [f'v_pk_mul_f32 {p2(A_[3])}, {p2(A_[3])}, {p2(B_[2])}' for A_, B_ in M_]
                    L += [f'v_pk_fma_f32 {p2(A_[3])}, {p2(B_[3])}, {p2(A_[2])}, {p2(A_[3])}' for A_, B_ in M_]
                    L += [f'v_pk_mul_f32 {p2(A_[2])}, {p2(A_[2])}, {p2(B_[2])}' for A_, B_ in M_]
                L += [f'v_rcp_f32 v{V_[4 * j_][2] + e_}, v{V_[4 * j_][2] + e_}' for j_ in range(len(Qs)) for e_ in range(2)]
                for j_, q_ in enumerate(Qs):
                    s_, t, u = q_[0][2], V_[4 * j_][2], V_[4 * j_][3]
                    L.append(f'v_pk_fma_f32 {p2(s_)}, {p2(t)}, {p2(u)}, {p2(s_)}' if s_ in seen else f'v_pk_mul_f32 {p2(s_)}, {p2(t)}, {p2(u)}')
                    seen.add(s_)
        else:
            L = gelu([rest[i:i + 4] for i in range(0, len(rest), 4)])
            L = L[:20] + unp(W2F) + L[20:]
        for (x, w, s_) in allel:
            if x < ACC + nsh:
                L.append(f'v_pk_fma_f32 {p2(s_)}, {p2(x)}, {p2(w)}, {p2(s_)}' if s_ in seen else f'v_pk_mul_f32 {p2(s_)}, {p2(x)}, {p2(w)}')
                seen.add(s_)
        sm = lambda tm: SUMP + 2 * tm
        L += [f'v_add_f32 v{sm(tm)}, v{sm(tm)}, v{sm(tm) + 1}' for tm in range(10)]
        L += [f'v_permlane32_swap_b32 v{sm(tm)}, v{sm(tm + 1)}' for tm in range(0, 10, 2)]
        L += [f'v_add_f32 v{sm(tm)}, v{sm(tm)}, v{sm(tm + 1)}' for tm in (8, 0, 2, 4, 6)]
        L += [f'v_mov_b32 v{sm(9)}, v{sm(8)}', f'v_permlane16_swap_b32 v{sm(0)}, v{sm(2)}', f'v_permlane16_swap_b32 v{sm(4)}, v{sm(6)}',
              f'v_permlane16_swap_b32 v{sm(8)}, v{sm(9)}',
              f'v_add_f32 v{sm(0)}, v{sm(0)}, v{sm(2)}', f'v_add_f32 v{sm(4)}, v{sm(4)}, v{sm(6)}', f'v_add_f32 v{sm(8)}, v{sm(8)}, v{sm(9)}',
              f'ds_write_b32 v{vPc}, v{sm(0)}', f'ds_write_b32 v{vPc}, v{sm(4)} offset:256',
              's_mov_b32 exec_lo, 0xffff', 's_mov_b32 exec_hi, 0xffff', f'ds_write_b32 v{vPc}, v{sm(8)} offset:512', 's_mov_b64 exec, -1']
        L += ['s_waitcnt lgkmcnt(0)'] + self.stamp(4) + self.stamp_flush() + ['s_barrier', 's_endpgm']
        tc += self.seq(L)

        if o.tch == 2:
            self.seq(['L_ctx:', U_(f'buffer_load_dword v{CD_}, v{CT_}, {srd(SRD_TAB)}, 0 offen'), f'v_mov_b32 v{CT_}, v{CT_ + 1}', f'v_mov_b32 v{CT_ + 1}, v{CT_ + 2}', 's_branch L_ctxr'])
        def wstage(slot):
            c = []
            for u in range(2):
                c += [f's_add_u32 m0, s{S_WMB}, {WR + slot * WSLOT + u * 1024}',
                      I(f'buffer_load_dwordx4 v{vWD[u]}, {srd(SRD_W)}, s{S_WSOFF} offen lds', tag='W')]
            return c + [f's_add_u32 s{S_WSOFF}, s{S_WSOFF}, {32 * 3328}']

        Q, TM, BP = 16, 56, [12, 13]
        TI, vWT = 70, 84
        SP = [36, 37, 38, 39, 40, 41, 42, 43, 48, 49]
        SI = [94, 95, 96, 97, 98, 99, 100, 101, 82, 83]

        def xaddr(f, pcs):
            c = []
            for odd in range(2):
                p_ = f + 26 * odd
                for pc in pcs:
                    c.append(f'v_add_u32_dpp v{TM + pc}, v{Q + 4 * pc + p_ % 4}, v{vCh[0]} row_newbcast:{p_ >> 2} row_mask:0xf bank_mask:{(3, 12)[odd]:#x}')
            return c

        def xld(pc, slot, tag='X'):
            return [f's_add_u32 m0, s{S_XM0}, {slot * XSLOT + pc * 2048}',
                    I(f'buffer_load_dwordx4 v{TM + pc}, {srd(SRD_TAB)}, 0 offen lds', tag=tag)]
        idxl = [f'buffer_load_dwordx4 {vr(Q + 4 * pc, 4)}, v{BP[0]}, {srd(SRD_IDX)}, s{SI[pc // 2]} offen offset:{(pc % 2) * 1664}' for pc in range(10)]
        LO, HI = range(5), range(5, 10)
        NR = (22 + o.tf - 1) // o.tf
        lw = S_CW
        self.mk0 = len(self.P.static)
        L = ['L_ld:', f's_lshr_b32 s{S_T0}, s{lw}, 1', f's_mul_i32 s{S_T0}, s{S_T0}, 20', f's_and_b32 s{S_T1}, s{lw}, 1', f's_add_u32 s{S_T0}, s{S_T0}, s{S_T1}',
             f's_lshl_b32 s{S_XM0}, s{S_T0}, 10', f's_mul_i32 s{S_C0}, s{S_T3}, 104', f's_mul_i32 s{S_T0}, s{S_T0}, 832', f's_add_u32 s{SI[0]}, s{S_C0}, s{S_T0}',
             f'v_mul_u32_u24 v{q}, 48, v{g}', f'v_sub_u32 v{BP[0]}, v{vBL}, v{q}']
        L += [f's_add_u32 s{SI[k]}, s{SI[0]}, {k * 2 * 1664}' for k in range(1, 5)]
        L += [f's_and_b32 s{S_T2}, s{lw}, 1', f's_lshl_b32 s{S_T2}, s{S_T2}, 3',
              f'v_lshlrev_b32 v{i4}, 1, v{g}', f'v_or_b32 v{i4}, s{S_T2}, v{i4}', f'v_xor_b32 v{i4}, v{i4}, v0', f'v_and_b32 v{i4}, 15, v{i4}',
              f'v_mul_u32_u24 v{vWD[0]}, 3328, v{g}', f'v_lshl_add_u32 v{vWD[0]}, v{i4}, 4, v{vWD[0]}', f'v_add_u32 v{vWD[1]}, {4 * 3328}, v{vWD[0]}',
              f's_mul_i32 s{S_WSOFF}, s{lw}, {8 * 3328}', f's_add_u32 s{S_WSOFF}, s{S_WSOFF}, s{S_N0}', f's_lshl_b32 s{S_WMB}, s{lw}, 11',
              's_waitcnt lgkmcnt(0)']
        L += self.build_srd(SRD_IDX, S_IDX, 4096 * 104) + (['s_barrier'] if o.dbar0 == 1 else []) + idxl[:o.i0] + self.tlb1(T + 14, T + 15) + self.build_srd(SRD_W, S_W1, 1664 * 3328)
        for sl in range(o.w0):
            L += wstage(sl)
        L += self.stamp0() + (['s_barrier'] if o.dbar0 >= 2 else []) + ([Touch(vr(Q, 4))] if o.dbar0 == 3 else []) + idxl[o.i0:]
        for sl in range(o.w0, 2):
            L += wstage(sl)
        L += [f's_lshl_b32 s{S_T2}, s{S_T1}, 6',
              f'v_and_b32 v{q}, 7, v0', f'v_xor_b32 v{q}, v{q}, v{g}', f'v_lshlrev_b32 v{q}, 4, v{q}', f'v_xor_b32 v{vCh[0]}, s{S_T2}, v{q}', f'v_xor_b32 v{vCh[1]}, 64, v{vCh[0]}',
              f's_mov_b32 s{S_LOOP}, 0',
              f's_mul_i32 s{S_T2}, s{lw}, 13', f's_add_u32 s{S_T2}, s{S_T2}, s{S_R}', f's_min_u32 s{S_T2}, s{S_T2}, 39', f's_lshl_b32 s{S_T2}, s{S_T2}, 3',
              f's_add_u32 s{S_T2}, s{S_T2}, s{S_T3}', f's_mul_i32 s{S_GRP}, s{S_T2}, 104',
              f'v_lshrrev_b32 v{q}, {o.tf.bit_length() - 1}, v0', f'v_min_u32 v{q}, 7, v{q}', f'v_mul_u32_u24 v{q}, 104, v{q}',
              f'v_and_b32 v{i4}, {o.tf - 1}, v0', f'v_lshl_add_u32 v7, v{i4}, 2, v{q}',
              f's_lshl_b32 s{S_T2}, s{S_MB}, 2', f's_add_u32 s{S_T2}, s{S_T2}, s{lw}', f's_add_u32 s{S_T2}, s{S_T2}, {o.tw0 * 32}', f's_mul_i32 s{S_RC}, s{S_T2}, 3328',
              f's_add_u32 s{S_RC}, s{S_RC}, s{S_N0}', f's_mov_b32 s{S_T2}, {52 * 3328}',
              f'v_lshrrev_b32 v{q}, 1, v0', f'v_mul_lo_u32 v{q}, s{S_T2}, v{q}', f'v_and_b32 v{i4}, 1, v0', f'v_lshl_add_u32 v{vWT}, v{i4}, 7, v{q}']
        L += self.build_srd(SRD_W2, S_W2, 3328)
        L += [f's_mul_i32 s{S_T2}, s{lw}, {o.lpf * 128}', f's_add_u32 s{S_T2}, s{S_T2}, L_tail-L_pc', f'v_lshlrev_b32 v8, 7, v0', f'v_add_u32 v8, s{S_T2}, v8',
              f'v_mov_b32 v9, s{S_MASK + 1}', f'v_add_co_u32 v8, vcc, s{S_MASK}, v8', 'v_addc_co_u32 v9, vcc, 0, v9, vcc']
        sh = lambda pc, c_: f'v_lshlrev_b32 v{Q + 4 * pc + c_}, 7, v{Q + 4 * pc + c_}'
        for pc in range(10):
            L += [sh(pc, 0), sh(pc, 2), sh(pc, 1), sh(pc, 3)] + xaddr(0, [pc]) + xld(pc, 0, 'X0a' if pc < o.sa else 'X0')
            if pc == 0:
                L += self.stamp(6) + self.probe('i0')
            if pc == o.bwat:
                L += [WaitTag(vm_tags=['W']), 's_barrier']
        L += self.stamp(7) + self.probe('x0i')
        x1 = [x for pc in range(10) for x in xaddr(1, [pc]) + xld(pc, 1)]
        L += x1[:4 * o.x1n] + [WaitTag(vm_tags=['X0a'])] + self.stamp(1) + ['s_barrier'] + self.probe('s0') + x1[4 * o.x1n:4 * o.x1m]
        L += [WaitTag(vm_tags=['X0']), 's_barrier'] + x1[4 * o.x1m:] + wstage(2) + wstage(3) + xaddr(2, range(10))
        x2 = [x for pc in range(10) for x in xld(pc, 2)]
        NR = (26 - o.tf0 + o.tf - 1) // o.tf
        tex = (1 << (8 * o.tf)) - 1
        texec = [f's_mov_b32 exec_lo, {tex & 0xffffffff:#x}', f's_mov_b32 exec_hi, {tex >> 32:#x}']
        if o.tch == 1:
            L += [f'buffer_load_dword v{TI + r}, v7, {srd(SRD_IDX)}, s{S_GRP} offen offset:{4 * min(o.tf0 + o.tf * r, 26 - o.tf)}' for r in range(NR)]

        def xtouch():
            t_ = [f'v_lshlrev_b32 v{T + 1}, 7, v{TI}'] + texec + [f'buffer_load_dword v{T + 2}, v{T + 1}, {srd(SRD_TAB)}, 0 offen', 's_mov_b64 exec, -1']
            return t_ + [f'v_mov_b32 v{TI + r}, v{TI + r + 1}' for r in range(NR - 1)] + [f'v_mov_b32 v{TI + NR - 1}, 0xffffff']

        def wtouch():
            return ['s_mov_b64 exec, 0x3ff', f'buffer_load_dword v{T + 3}, v{vWT}, {srd(SRD_W)}, s{S_RC} offen', 's_mov_b64 exec, -1', f's_add_u32 s{S_RC}, s{S_RC}, {260 * 3328}']
        L += x2[:2 * o.x2n] + [WaitTag(vm_tags=['W']), 's_barrier'] + self.probe('bar0') + x2[2 * o.x2n:] + xaddr(3, range(10))
        lpre = self.seq(L + [f's_setprio {o.lprio}', 's_branch L_ld_in'])
        del self.P.static[self.mk0:]
        self.P.static[self.ldat:self.ldat] = lpre
        self.mk0 = len(self.P.static)

        def lpair(p):
            S = ['s_barrier'] + (['L_ld_in:'] if p == 0 else []) + wstage(2 * (p % 2)) + wstage(2 * (p % 2) + 1)
            f2 = p + 4
            if p == 11:
                S += [f's_cmp_eq_u32 s{S_LOOP}, 1', 's_cbranch_scc1 L_ld_tail0']
            for pc in range(10):
                x = xld(pc, p % 3)
                S += [x[0]] + (xaddr(f2, [pc - 1])[:1] if pc else []) + [x[1]] + (xaddr(f2, [pc - 1])[1:] if pc else [])
            S += xaddr(f2, [9])
            if p >= 10:
                S += [f'v_mov_b32_dpp v{Q + 4 * pc + c_}, v{Q + 4 * pc + c_} row_shl:3 row_mask:0xf bank_mask:0xf' for pc in range(10) for c_ in ((0, 2) if p == 10 else (1, 3))]
            if o.tch == 1 and p % o.tf == o.toff:
                S += xtouch()
            if o.tch == 1 and p % 4 == o.twoff:
                S += wtouch()
            if p == 11:
                S += [f's_add_u32 s{S_LOOP}, s{S_LOOP}, 1', f's_cmp_lt_u32 s{S_LOOP}, 2']
            return S + [WaitTag(vm_tags=['W'])]
        body = self.seq(['L_dnn_loop1:'])
        for p in range(12):
            if p == 8 and o.lpf:
                body += self.seq([f's_cmp_lg_u32 s{S_LOOP}, 1', 's_cbranch_scc1 L_nolpf'])
                self.seq([f's_mov_b64 exec, {(1 << o.lpf) - 1}', 'global_load_dword v10, v[8:9], off', 's_mov_b64 exec, -1'] + small(SRD_W2, L_W2))
                body += self.seq(['L_nolpf:'])
            lp = lpair(p)
            if p and self.probe(f'bar{p}'):
                lp = lp[:1] + [f's_cmp_lg_u32 s{S_LOOP}, 0', f's_cbranch_scc1 L_nopb{p}'] + self.probe(f'bar{p}') + [f'L_nopb{p}:'] + lp[1:]
            body += self.seq(lp + (['s_cbranch_scc1 L_dnn_loop1'] if p == 11 else []))
        tl = c0 + lpre + body * 2 + self.seq(['s_branch L_ld_tail'])
        self.ldblk = self.P.static[self.mk0:]
        del self.P.static[self.mk0:]
        tl += self.seq(['L_ld_tail0:', 's_waitcnt vmcnt(0)', 'L_ld_tail:', 's_barrier'] + self.tlb2(T) + ['s_mov_b64 exec, 1', f'buffer_load_dword v250, v{T}, {srd(SRD_DBG)}, 0 offen offset:240 sc1', 's_mov_b64 exec, -1'])
        tl += self.seq(self.probe('s50'))
        if o.walk:
            tl += self.seq([f's_cmp_eq_u32 s{lw}, 0', 's_cbranch_scc1 L_wkd', 's_mov_b64 exec, 0', f's_cmp_eq_u32 s{lw}, 1', 's_cbranch_scc1 L_wk0',
                            f's_cmp_eq_u32 s{lw}, 2', f's_cbranch_scc1 L_wk{np_ // 3}', f's_branch L_wk{2 * np_ // 3}', 'L_wkd:'])
        A = 64
        L = [f's_cmp_lg_u32 s{S_WAVE}, 4', 's_cbranch_scc1 L_end',
             f'v_lshlrev_b32 v3, 4, v0', f'v_lshlrev_b32 v4, 2, v0', f'v_add_u32 v1, {RB}, v3', f'v_add_u32 v2, {RB + 1024}, v4', f'v_add_u32 v4, 1024, v4',
             'v_mov_b32 v5, 32', f'v_mov_b32 v7, s{S_MB}',
             f's_mul_i32 s{S_T0}, s{S_MB}, 1280', f's_mul_i32 s{S_T1}, s{S_R}, {WSP}', f's_add_u32 s{S_T1}, s{S_T1}, s{S_T0}', 's_setprio 3']
        if o.sent:
            L += [f'v_mov_b32 v{A + k}, -1' for k in range(4)] + [f'buffer_store_dwordx4 {vr(A, 4)}, v3, {srd(SRD_WS)}, s{S_T1} offen sc1',
                  f'buffer_store_dword v{A}, v4, {srd(SRD_WS)}, s{S_T1} offen sc1', 's_waitcnt vmcnt(0)']
        L += self.stamp_flush() + ['s_barrier'] + self.probe('dend')
        L += [f'ds_read_b128 {vr(A, 4)}, v1', f'ds_read_b128 {vr(A + 8, 4)}, v1 offset:1280', f'ds_read2st64_b32 {vr(A + 4, 2)}, v2 offset0:0 offset1:5',
              f'v_pk_add_f32 {p2(A)}, {p2(A)}, {p2(A + 8)}', f'v_pk_add_f32 {p2(A + 2)}, {p2(A + 2)}, {p2(A + 10)}', f'v_add_f32 v{A + 4}, v{A + 4}, v{A + 5}']
        if o.sent:
            L += [f'v_min_u32 v{A + k}, -2, v{A + k}' for k in range(5)]
        L += (self.stamp(16) if o.diag else [])
        L += [f'buffer_store_dwordx4 {vr(A, 4)}, v3, {srd(SRD_WS)}, s{S_T1} offen sc1',
              f'buffer_store_dword v{A + 4}, v4, {srd(SRD_WS)}, s{S_T1} offen sc1', 's_mov_b64 exec, 1']
        tl += self.seq(L)

        L = ['L_pub:']
        if o.skew:
            L += ['v_mov_b32 v20, s86', 'v_mov_b32 v21, s86', 'v_mov_b32 v22, s88', 's_lshl_b32 s89, s2, 7', 's_add_u32 s89, s89, 0x40000', 'v_lshlrev_b32 v23, 28, v0',
                  f'buffer_store_dwordx3 v[20:22], v23, {srd(SRD_WS)}, s89 offen sc1', 's_waitcnt vmcnt(0)']
        def loads():
            c = [f's_mul_i32 s{S_T0}, s{S_T3}, 1280']
            for qq in range(14):
                c += [f'buffer_load_dwordx4 {vr(A + 8 * qq, 4)}, v3, {srd(SRD_WS)}, s{S_T0} offen sc1',
                      f'buffer_load_dword v{A + 8 * qq + 4}, v4, {srd(SRD_WS)}, s{S_T0} offen sc1', f's_add_u32 s{S_T0}, s{S_T0}, {WSP}']
            return c
        R_ = 56
        L += ['v_lshlrev_b32 v6, 4, v7'] + ([] if o.sent else ['s_waitcnt vmcnt(0)']) + ['v_mov_b32 v13, v5', f'buffer_atomic_add v5, v6, {srd(SRD_DBG)}, 0 offen sc0',
              'v_cmp_eq_u32 vcc, 12, v7', 'v_mov_b32 v8, 436', 'v_mov_b32 v9, 434', 'v_cndmask_b32 v8, v8, v9, vcc', 'v_sub_u32 v8, v8, v13']
        if o.spec:
            L += [f's_mov_b64 s[{S_MASK}:{S_MASK + 1}], exec', 's_mov_b64 exec, -1', f'v_readfirstlane_b32 s{S_T3}, v7'] + loads() + [f's_mov_b64 exec, s[{S_MASK}:{S_MASK + 1}]']
            L += ['s_waitcnt vmcnt(0) lgkmcnt(0)']
        else:
            L += ['s_waitcnt vmcnt(0) lgkmcnt(0)']
        L += (self.stamp(18) if o.diag else []) + self.probe('atm') + [
             f'v_cmp_eq_u32 s[{S_EX}:{S_EX + 1}], v5, v8', 's_mov_b64 exec, -1', f's_lshl_b32 s{S_BOUT}, s{S_BOUT}, 16',
             'v_lshrrev_b32 v1, 1, v3', 'v_lshrrev_b32 v2, 1, v4']
        if o.spec:
            L += [f's_bitcmp1_b32 s{S_EX}, 0', f's_bitset0_b32 s{S_EX}, 0', 's_cbranch_scc1 L_sum']
        pa = self.seq(L)
        L = ['L_fin:', f's_cmp_eq_u32 s{S_EX}, 0', 's_cbranch_scc1 L_done',
             f's_ff1_i32_b32 s{S_T2}, s{S_EX}', f's_bitset0_b32 s{S_EX}, s{S_T2}', f'v_readlane_b32 s{S_T3}, v7, s{S_T2}', 's_waitcnt vmcnt(0)', 'L_again:'] + loads()
        pb = self.seq(L)
        L = ['L_sum:', f'v_pk_add_f32 {p2(R_)}, {p2(A)}, {p2(A + 8)}', f'v_pk_add_f32 {p2(R_ + 2)}, {p2(A + 2)}, {p2(A + 10)}', f'v_add_f32 v{R_ + 4}, v{A + 4}, v{A + 12}']
        for qq in range(2, 14):
            L += [f'v_pk_add_f32 {p2(R_)}, {p2(R_)}, {p2(A + 8 * qq)}', f'v_pk_add_f32 {p2(R_ + 2)}, {p2(R_ + 2)}, {p2(A + 8 * qq + 2)}',
                  f'v_add_f32 v{R_ + 4}, v{R_ + 4}, v{A + 8 * qq + 4}']
        if o.sent:
            L += [f'v_cmp_u_f32 vcc, v{R_}, v{R_ + 1}', f'v_cmp_u_f32 s[{S_MASK}:{S_MASK + 1}], v{R_ + 2}, v{R_ + 3}', f's_or_b64 s[{S_MASK}:{S_MASK + 1}], s[{S_MASK}:{S_MASK + 1}], vcc',
                  f'v_cmp_u_f32 vcc, v{R_ + 4}, v{R_ + 4}', f's_or_b64 vcc, s[{S_MASK}:{S_MASK + 1}], vcc', 's_cbranch_vccnz L_chk', 'L_ok:']
        L += [f's_mul_i32 s{S_T3}, s{S_T3}, 640']
        A0 = A
        A = R_
        L += [f'v_add_f32 v{A + k}, s{S_BOUT}, v{A + k}' for k in range(5)]
        L += [f'v_cvt_pk_bf16_f32 v10, v{A}, v{A + 1}', f'v_cvt_pk_bf16_f32 v11, v{A + 2}, v{A + 3}', f'v_cvt_pk_bf16_f32 v12, v{A + 4}, v{A + 4}',
              f'buffer_store_dwordx2 v[10:11], v1, {srd(SRD_OUT)}, s{S_T3} offen', f'buffer_store_short v12, v2, {srd(SRD_OUT)}, s{S_T3} offen']
        if o.tailp:
            L += [f's_cmp_lg_u32 s{S_EX}, 0', 's_cbranch_scc1 L_fin', 's_waitcnt vmcnt(0)', 's_memrealtime s[86:87]', 's_waitcnt lgkmcnt(0)', 's_sub_u32 s88, s86, s88', 's_min_u32 s88, s88, 1000',
                  f's_mul_i32 s88, s88, {o.tailp - 1}', 's_add_u32 s88, s88, s86',
                  'L_spin:', 's_memrealtime s[86:87]', 's_waitcnt lgkmcnt(0)', 's_sub_u32 s89, s88, s86', 's_cmp_gt_i32 s89, 0', 's_cbranch_scc1 L_spin']
        if o.skew:
            L += [f's_cmp_lg_u32 s{S_EX}, 0', 's_cbranch_scc1 L_fin', 'v_lshlrev_b32 v20, 7, v0', 's_mov_b32 s88, 0x40000']
            for k in range(4):
                L += [f'buffer_load_dwordx3 v[{32 + 4 * k}:{34 + 4 * k}], v20, {srd(SRD_WS)}, s88 offen sc1', 's_add_u32 s88, s88, 8192']
            L += ['s_waitcnt vmcnt(0)']
            if o.probe.startswith('st') or o.absol:
                L += ['s_memrealtime s[88:89]', 's_waitcnt lgkmcnt(0)', 'v_mov_b32 v26, 0', 'v_mov_b32 v27, 0']
                for k in range(4):
                    L += [f'v_sub_u32 v28, s88, v{32 + 4 * k}', 'v_cmp_gt_u32 vcc, 4500, v28', f'v_not_b32 v29, v{32 + 4 * k}', 'v_cndmask_b32 v29, 0, v29, vcc', 'v_max_u32 v27, v27, v29']
                    if o.absol:
                        L += [f'v_cndmask_b32 v29, 0, v{34 + 4 * k}, vcc', 'v_max_u32 v26, v26, v29']
                    elif str(k) in o.probe[2:]:
                        L += [f'v_cndmask_b32 v29, 0, v{32 + 4 * k}, vcc', 'v_max_u32 v26, v26, v29']
            else:
                for k in range(4):
                    L += [f'v_sub_u32 v28, v{34 + 4 * k}, v{32 + 4 * k}', f'v_cmp_gt_u32 vcc, {100000 if o.cyc else 5000}, v28', f'v_cndmask_b32 v28, 0, v28, vcc',
                          f'v_cmp_eq_u32 vcc, v{32 + 4 * k}, v{33 + 4 * k}', f'v_cndmask_b32 v{33 + 4 * k}, 0, v28, vcc']
                L += ['v_max_u32 v26, v33, v37', 'v_max3_u32 v26, v26, v41, v45', 'v_mov_b32 v27, -1']
            if o.probe == 'span':
                L += ['s_memrealtime s[86:87]', 's_waitcnt lgkmcnt(0)', 'v_mov_b32 v26, s86']
            for (ctl, rm) in (('row_shr:1', '0xf'), ('row_shr:2', '0xf'), ('row_shr:4', '0xf'), ('row_shr:8', '0xf'), ('row_bcast:15', '0xa'), ('row_bcast:31', '0xc')):
                L += [f'v_max_u32_dpp v{r}, v{r}, v{r} {ctl} row_mask:{rm} bank_mask:0xf' for r in (26, 27)]
            L += ['v_not_b32 v27, v27', 'v_sub_u32 v22, v26, v27', 's_memrealtime s[86:87]', 'v_readlane_b32 s88, v22, 63', 's_waitcnt lgkmcnt(0)',
                  *([f's_max_u32 s88, s88, {o.cyc.split(chr(44))[2]}', f's_sub_u32 s88, s88, {o.cyc.split(chr(44))[2]}', 's_lshr_b32 s88, s88, 1'] if o.cyc else []), 's_min_u32 s88, s88, 5000', f's_mul_i32 s88, s88, {o.skew - 1}', 's_add_u32 s88, s88, s86',
                  'L_spin:', 's_memrealtime s[86:87]', 's_waitcnt lgkmcnt(0)', 's_sub_u32 s89, s88, s86', 's_cmp_gt_i32 s89, 0', 's_cbranch_scc1 L_spin']
        L += self.stamp(5) + self.stamp_flush() + ['s_branch L_fin']
        pc_ = self.seq(L)
        if o.sent:
            L = ['L_chk:', 'v_mov_b32 v14, 0', 'v_mov_b32 v15, 0']
            for qq in range(14):
                L += [f'v_max3_u32 v14, v14, v{A0 + 8 * qq}, v{A0 + 8 * qq + 1}', f'v_max3_u32 v14, v14, v{A0 + 8 * qq + 2}, v{A0 + 8 * qq + 3}', f'v_max_u32 v15, v15, v{A0 + 8 * qq + 4}']
            L += [f's_cmp_eq_u32 s{S_T3}, 12', f's_cselect_b32 s{S_T0}, 0, -1', f'v_and_b32 v15, s{S_T0}, v15', 'v_max_u32 v14, v14, v15',
                  'v_cmp_eq_u32 vcc, -1, v14', 's_cbranch_vccnz L_again', 's_branch L_ok']
            self.chk = self.seq(L)
        pe = self.seq(['L_done:', 's_endpgm'])
        self.pub = pa + pb + pc_ + pe
        self.extra_traces = [pa + pc_ + pb + pc_] + ([pa + pb + pc_[:45] + self.chk + pb[7:] + pc_] if o.sent else [])
        return [tc, tl + self.pub]

    def pubsrd(self):
        return self.build_srd(SRD_WS, S_WS, 0x10000000) + self.build_srd(SRD_OUT, S_OUT, 8192) + self.build_srd(SRD_DBG, S_DBG, 256)

    def tables(self):
        OOB = 0x100000
        G = [[] for _ in range(11)]
        for l in range(64):
            half, i32, g, r, c = l >> 5, l & 31, l >> 4, (l >> 2) & 3, l & 3
            lin0 = g * 128 + r * XPP + c * 8
            G[0] += [lin0, lin0 + 512 if g < 3 else XOFF(27) + c * 8, (l >> 3) * 16, 0x3f803f80 if l < 32 else 0]
            G[1] += [(l & 7) * 16, 0xeeee if l & 1 else 0x4444, half * XPP + i32 * 4, IMG + half * 20 * IMGP + i32 * 4]
            tr = [IMG + cin16.IMGROW(cin16.LAB[g][2 * rp + (r >> 1)][r & 1]) * IMGP + c * 8 for rp in range(8)]
            G[2] += tr[:4]
            G[3] += tr[4:]
            row, col = 8 * half + r, (g & 1) * 32 + c * 8
            G[4] += [V3OFF + row * 64 + col, A1 + row * 1352 + col, A1 + min(row + 16, 25) * 1352 + col, A1 + min(row + 20, 25) * 1352 + col]
            t, gd, rr = (i32 >> 2) & 1, i32 >> 3, i32 & 3
            ig = 16 * t + 4 * rr + gd
            iq = 4 * rr + gd if t == 0 else 16 + ((4 * rr + gd + 4) & 15)
            pm = []
            for q in range(8):
                k0 = 16 * (q >> 2) + 8 * half + 2 * (q & 3)
                pm.append((0xffff if iq == k0 else 0xffff0000 if iq == k0 + 1 else 0) if iq < 26 else 0)
            G[5] += pm[:4]
            G[6] += pm[4:]
            ga = A2 + 52 * ig if ig < 26 else OOB
            rowp = ((l & 12) + 2 * (l & 1)) * 16 + (OOB if l & 2 else 0)
            G[7] += [ga + half * 8 * W2P, ga + half * OOB, rowp + half * 256 + (g & 1) * 8, rowp + g * 256]
            G[8] += [SG + i32 * 64 if i32 < 26 else V2S if i32 == 26 else OOB, 64 if i32 == 26 else 3328, (i32 >> 1) + 2 * half,
                     SQ + i32 * 64 + ((((i32 >> 1) & 3) ^ (2 * half)) << 4)]
            v2 = []
            for hf in range(2):
                j = 4 * g + 16 * hf + r
                v2.append(V2S + (j & 1) * 1664 + (j >> 1) * 64 + ((c ^ (((13 + j) & 3) * 2)) * 8) if j < 26 else SG + 676 * 64 + c * 8)
            wo = [L_WCO + 2 * (16 * tl_ + 4 * c + r) if 16 * tl_ + 4 * c + r < 26 else OOB for tl_ in range(2)]
            G[9] += v2 + wo
            G[10] += [L_WCO + 104 + 16 * half, L_WCO + 52 + 2 * l, V3OFF + 52 + 64 * l, SG + 676 * 64 + (l & 15) * 4]
        U = []
        for w in range(8):
            for e in range(16):
                for u in (w, w + 8, w + 16):
                    U += [SG + row * 64 + f * 8 for row, f in cin16.p2rows(u, e >> 2, e & 3)] if u < 22 else [0, 0]
        return [x for n in (4, 2, 3, 0, 5, 6, 7, 8, 9, 1, 10) for x in G[n]] + [0] * 256 + U + [0] * 256

    def cin(self):
        o = self.opt
        cw = S_CW
        vFa, vLin0, vLin1, vXi0, vXi1, vC16, vIDX, vXa, vIw, vPWL, vPXL, PXR, PFR = 1, 4, 5, 6, 7, 8, 9, 10, 11, 12, 13, 14, 15
        XI, vTR = 16, 20
        XR, P, Z, WF, D = 32, 60, 116, 164, 184
        vStg, vFR, vFw = vFa, 2, 59
        t3, t4, t5 = 29, 30, 31
        AV = [28, 58]
        PM = 216
        vA3, vBs0, vBs1a, vBs1b, vGa, vGb, vT3, vT3d = range(224, 232)
        G8, vV2r, vV2q, vWo, AD = 232, 236, 237, 238, 240
        WA = list(range(244, 250))
        vS, vMx = 250, 111
        UA, UX = 224, [232, 233, 234, 235, 240, 241]
        AFR = 112
        BALL, DALL = 60, 120
        S_F1, S_F2, S_G, S_LO, S_HI, S_CM, S_U0, S_U1, S_U2 = 74, 75, 95, 96, 97, 90, 98, 99, 100
        S_CG, S_IV = 0, 1
        OOB = 0x100000
        TA_, TB_, TC_ = SG + 35840, SQ + 26 * W2P, FRS + 2048
        GREG = [224, 20, 24, 4, 216, 220, 228, 232, 236, 8, 240]
        DPPS = (('row_shr:1', '0xf'), ('row_shr:2', '0xf'), ('row_shr:4', '0xf'), ('row_shr:8', '0xf'),
                ('row_bcast:15', '0xa'), ('row_bcast:31', '0xc'))

        K_W7, K_IMG, K_W2, K_W1, K_W12, K_H8, K_T3 = 52, 53, 54, 55, 92 - 10, 92 - 9, 91
        L = ['L_cin:', f'v_lshlrev_b32 v{vStg}, 4, v0', f's_and_b32 s{cw}, s{S_WAVE}, 3', f's_lshr_b32 s{S_GRP}, s{S_WAVE}, 2', f's_lshl_b32 s{S_STG}, s{cw}, 10',
             f's_mul_i32 s{S_MB}, s{S_T0}, 11', f's_add_u32 s{S_MB}, s{S_MB}, s{S_T1}', f's_sub_u32 s{S_MB}, s{S_MB}, 22',
             f's_cmp_eq_u32 s{S_MB}, 86', 's_cbranch_scc1 L_end', f's_cmp_eq_u32 s{S_GRP}, 0', 's_cbranch_scc1 L_sc']
        c0 = self.seq(L)
        L = ['s_setprio 2', f'v_add_u32 v2, L_tables-L_pc+4096, v{vStg}', f'v_mov_b32 v3, s{S_MASK + 1}',
             f'v_add_co_u32 v2, vcc, s{S_MASK}, v2', 'v_addc_co_u32 v3, vcc, 0, v3, vcc',
             f'v_add_co_u32 v{XR}, vcc, s{S_STG}, v2', f'v_addc_co_u32 v{XR + 1}, vcc, 0, v3, vcc',
             f'global_load_dwordx4 {vr(GREG[0], 4)}, v[2:3], off offset:-4096',
             'v_add_co_u32 v2, vcc, 0x1800, v2', 'v_addc_co_u32 v3, vcc, 0, v3, vcc', f'global_load_dwordx4 {vr(GREG[10], 4)}, v[2:3], off',
             f's_cmp_lt_u32 s{cw}, 3', f's_mov_b32 s{S_T2}, {TB_ - 3072}', f's_cselect_b32 s{S_T2}, {TA_ + 4096}, s{S_T2}']
        tdma = lambda off: I(f'global_load_lds_dwordx4 {vr(XR, 2)}, off offset:{off}', tag='TAB')
        L += [f's_add_u32 m0, s{S_STG}, {TA_ + 4096}', tdma(-4096), f's_add_u32 m0, s{S_STG}, s{S_T2}', tdma(0),
              f'v_add_co_u32 v{XR}, vcc, 0x2000, v{XR}', f'v_addc_co_u32 v{XR + 1}, vcc, 0, v{XR + 1}, vcc',
              f's_add_u32 m0, s{S_STG}, {TC_}', tdma(0), f's_add_u32 m0, s{S_STG}, {TB_ + 1024 + 4096}', f's_cmp_ge_u32 s{cw}, 2', 's_cbranch_scc1 L_sc']
        g1s = self.seq(L)
        L = [tdma(-4096)]
        g1t = self.seq(L)
        L = ['L_sc:', f's_mul_i32 s{S_RC}, s{S_GRP}, 20', f's_add_u32 s{S_RC}, s{S_RC}, s{S_WAVE}',
             f's_mul_i32 s{S_SAMP}, s{S_MB}, 48', f's_add_u32 s{S_SAMP}, s{S_SAMP}, s{S_RC}', f's_mul_i32 s{S_SAMP}, s{S_SAMP}, 104',
             f'v_lshrrev_b32 v{t4}, 3, v0', f'v_lshlrev_b32 v{t4}, 4, v{t4}', f'v_and_b32 v{t3}, 0x70, v{vStg}',
             f's_mul_i32 s{S_XM0}, s{S_WAVE}, {XBSZ}', f's_add_u32 s{S_XM0}, s{S_XM0}, {XB}', f's_cmp_eq_u32 s{S_GRP}, 0', 's_cbranch_scc1 L_g0']
        csc = self.seq(L)
        SC2 = [f's_lshl_b32 s{S_RC}, s{S_RC}, 2', f's_add_u32 s{S_RC}, s{S_RC}, {RC}',
               f's_mul_i32 s{S_LOOP}, s{S_GRP}, 3', f's_sub_u32 s{S_LOOP}, 4, s{S_LOOP}', (f's_cmp_eq_u32 s{S_MB}, 85', f's_cselect_b32 s{S_LOOP}, s{S_LOOP}, 6'),
               f's_lshl_b32 s{K_W7}, s{S_WAVE}, 7', f's_mul_i32 s{K_IMG}, s{S_WAVE}, {IMGSZ}', f's_lshl_b32 s{K_W2}, s{S_WAVE}, 2', f's_lshl_b32 s{K_W1}, s{S_WAVE}, 1',
               f's_lshl_b32 s{K_W12}, s{S_WAVE}, 12',
               f's_and_b32 s{S_U0}, s{S_WAVE}, 1', f's_lshr_b32 s{S_U1}, s{S_WAVE}, 1',
               f's_mul_i32 s{S_T0}, s{S_U1}, 3072', f's_lshl_b32 s{K_H8}, s{S_U0}, 3', f's_add_u32 s{S_T0}, s{S_T0}, s{K_H8}', f'v_add_u32 v{vFw}, s{S_T0}, v{vStg}',
               f's_lshl_b32 s{S_T1}, s{S_U1}, 3', f's_lshr_b32 s{S_T1}, 0x05030200, s{S_T1}', f's_and_b32 s{S_T1}, s{S_T1}, 0xff',
               f's_lshl_b32 s{S_T1}, s{S_T1}, 9', f's_lshl_b32 s{S_T2}, s{S_U0}, 2', f's_add_u32 s{K_T3}, s{S_T1}, s{S_T2}',
               f's_mov_b32 s{S_U1}, 0x05040100', f's_mov_b32 s{S_U2}, 0x07060302',
               f'v_mov_b32 v{vFR}, {L_FLG}', 'v_mov_b32 v109, 0', 'v_mov_b32 v108, 0'] + [f'v_mov_b64 {vr(r, 2)}, 0' for r in range(XR, XR + 26, 2)]
        XJ = 104 if o.xat < 4 else 12

        def pfw(dst=3):
            return [f'buffer_load_dword v{dst}, v{vPWL}, {srd(SRD_W)}, s{S_PW} offen',
                    f's_add_u32 s{S_PW}, s{S_PW}, {o.pfne * 688 * 128}']

        def pfx_a():
            return [f'buffer_load_dword v{PXR}, v{vPXL}, {srd(SRD_IDX)}, s{S_PX} offen',
                    f's_cmp_eq_u32 s{S_PX}, s{S_PXE}', f's_cselect_b32 s{S_PXE}, 0x7000000, s{S_PXE}',
                    f's_cselect_b32 s{S_PX}, 0x7000000, s{S_PX}',
                    f's_add_u32 s{S_PX}, s{S_PX}, 24', f's_min_u32 s{S_PX}, s{S_PX}, s{S_PXE}']

        def pfx_b():
            return [f'v_lshlrev_b32 v{PXR}, 7, v{PXR}', f'buffer_load_dword v{PFR}, v{PXR}, {srd(SRD_TAB)}, 0 offen']

        def xidx(XI=XI, vXi0=vXi0):
            return [f'buffer_load_dwordx4 {vr(XI, 4)}, v{vXi0}, {srd(SRD_IDX)}, s{S_SAMP} offen', f's_add_u32 s{S_SAMP}, s{S_SAMP}, {4 * 104}']

        def xdma(XI=XI, off=0, tag='XB', vC16=vC16):
            c = [f'v_lshl_add_u32 v{XI + u}, v{XI + u}, 7, v{vC16}' for u in range(4)]
            for u in range(4):
                c += [f's_add_u32 m0, s{S_XM0}, {u * XPP + off}']
                if u % 2 == 0:
                    c.append(f's_mov_b32 exec_hi, {0xffffff if u == 0 else 0xffff:#x}')
                c.append(I(f'buffer_load_dwordx4 v{XI + u}, {srd(SRD_TAB)}, 0 offen lds', tag=tag))
            return c + ['s_mov_b32 exec_hi, -1']

        def stage(dst, goff, tag):
            st = []
            for m in range(9):
                st.append((f's_add_u32 m0, s{S_STG}, {dst + m * 4096}', f's_add_u32 s{S_TW}, s{S_STG}, {goff + m * 4096}',
                           I(f'buffer_load_dwordx4 v{vStg}, {srd(SRD_CIN)}, s{S_TW} offen lds', tag=tag)))
            return st

        def pubmax(regs_offs):
            c = []
            for (ctl, rm) in DPPS:
                for r, _ in regs_offs:
                    c.append(f'v_max_u32_dpp v{r}, v{r}, v{r} {ctl} row_mask:{rm} bank_mask:0xf')
            c += ['s_mov_b32 exec_lo, 0', 's_mov_b32 exec_hi, 0x80000000']
            c += [f'ds_max_u32 v{vFR}, v{r} offset:{16 + 4 * k}' for r, k in regs_offs]
            return c + ['s_mov_b64 exec, -1']

        def mxop(src, n, mx, first):
            return [f'v_mfma_f32_16x16x32_bf16 {vr(mx, 4)}, {vr(src + r, 4)}, {vr(src + r, 4)}, {"0" if first and r == 0 else vr(mx, 4)}' for r in range(0, n, 4)]

        def mxfin(mx):
            return [f'v_max3_f32 v{mx}, v{mx}, v{mx + 1}, 0', f'v_max3_f32 v{mx}, v{mx}, v{mx + 2}, v{mx + 3}']

        def bread(m, off):
            b = BALL + m * 8
            return [f'ds_read_b64_tr_b16 {vr(b, 2)}, v{vBs0} offset:{off}',
                    f'ds_read_b64_tr_b16 {vr(b + 2, 2)}, v{vBs0} offset:{off + 4 * 1352}',
                    f'ds_read_b64_tr_b16 {vr(b + 4, 2)}, v{vBs1a} offset:{off}',
                    f'ds_read_b64_tr_b16 {vr(b + 6, 2)}, v{vBs1b} offset:{off}']

        def mm2(d, a, b):
            return [f'v_mfma_f32_32x32x16_bf16 {vr(d, 16)}, {vr(a, 4)}, {vr(b, 4)}, 0',
                    f'v_mfma_f32_32x32x16_bf16 {vr(d, 16)}, {vr(a + 4, 4)}, {vr(b + 4, 4)}, {vr(d, 16)}']

        tA, tB = 250, 251
        if o.pfw:
            SC2 += self.build_srd(SRD_W, S_W1, 1664 * 3328) + [
                f's_lshl_b32 s{S_PW}, s{S_MB}, 3', f's_add_u32 s{S_PW}, s{S_PW}, s{S_WAVE}', f's_add_u32 s{S_PW}, s{S_PW}, {o.pfe0 * 832}', f's_lshl_b32 s{S_PW}, s{S_PW}, 7',
                f's_mov_b32 s{S_T3}, {688 * 128}', f'v_min_u32 v{vPWL}, {max(o.pfne - 1, 0)}, v0', f'v_mul_lo_u32 v{vPWL}, s{S_T3}, v{vPWL}']
        if o.pfx:
            SC2 += [f's_lshl_b32 s{S_PX}, s{S_MB}, 3', f's_add_u32 s{S_PX}, s{S_PX}, s{S_WAVE}', f's_mul_i32 s{S_PX}, s{S_PX}, {6 * 104}',
                    f's_add_u32 s{S_PXE}, s{S_PX}, 80', f's_add_u32 s{S_PX}, s{S_PX}, {4 * o.pfx0}',
                    f'v_min_u32 v{PXR}, 35, v0', f'v_mul_u32_u24 v{vPXL}, 10923, v{PXR}', f'v_lshrrev_b32 v{vPXL}, 16, v{vPXL}',
                    f'v_mul_u32_u24 v{vPXL}, {104 - 24}, v{vPXL}', f'v_lshl_add_u32 v{vPXL}, v{PXR}, 2, v{vPXL}']
        trd = lambda n: f'ds_read_b128 {vr(GREG[n], 4)}, v{tA if n < 7 else tB} offset:{(n if n < 7 else n - 7) * 1024}'
        vbs = [f'v_add_u32 v{r}, s{K_W7}, v{r}' for r in (vBs0, vBs1a, vBs1b)]

        def FX(g):
            R = [trd(n) for n in ((0,) if g == 0 else ()) + (6, 7, 3, 9, 1, 2, 4, 5, 8)]
            F = vbs + [f'v_add_u32 v{r}, s{K_W2}, v{r}' for r in (vGa, vGb)]
            F += [f'v_add_u32 v{vT3d}, s{K_H8}, v{vT3d}', f'v_add_u32 v{vT3}, s{K_T3}, v{vT3}']
            F += [f'v_mad_u32_u24 v{G8}, v{G8 + 1}, s{S_WAVE}, v{G8}', f'v_add_u32 v{G8 + 2}, s{K_W1}, v{G8 + 2}',
                  f'v_mad_u32_u24 v{G8 + 1}, v{G8 + 1}, 8, v{G8}', f'v_add_u32 v{WA[2]}, s{K_W12}, v{G8 + 3}', f'v_add_u32 v{WA[3]}, 2048, v{WA[2]}']
            for n_, (wa, bs) in enumerate(((WA[0], G8), (WA[1], G8), (WA[4], G8 + 1), (WA[5], G8 + 1))):
                F += [f'v_add_u32 v{t5}, {n_ & 1}, v{G8 + 2}', f'v_and_b32 v{t5}, 3, v{t5}', f'v_lshl_add_u32 v{wa}, v{t5}, 4, v{bs}']
                if n_ & 1:
                    F.append(f'v_add_u32 v{wa}, 1664, v{wa}')
            F += [f'v_add_u32 v{r}, s{S_XM0}, v{r}' for r in (vXa, vLin0, vLin1)] + [f'ds_write_b32 v{vXa}, v{vXi1} offset:{XOFF(26)}']
            F += [f'v_add_u32 v{r}, s{K_IMG}, v{r}' for r in [vIw] + list(range(vTR, vTR + 8))]
            return R, F
        SC2 += [f'v_add_u32 v{tA}, {TA_}, v{vStg}', f'v_add_u32 v{tB}, {TB_}, v{vStg}', f'v_lshrrev_b32 v3, 5, v0', f'v_lshl_add_u32 v3, v3, 2, v{vFR}']

        def pub2(r1, r2, off):
            c = [f'v_permlane32_swap_b32 v{r1}, v{r2}', f'v_max_u32 v{r1}, v{r1}, v{r2}']
            c += [f'v_max_u32_dpp v{r1}, v{r1}, v{r1} {ctl} row_mask:{rm} bank_mask:0xf' for ctl, rm in DPPS[:5]]
            return c + ['s_mov_b32 exec_lo, 0x80000000', 's_mov_b32 exec_hi, 0x80000000', f'ds_max_u32 v3, v{r1} offset:{16 + off}', 's_mov_b64 exec, -1']
        AV = [28, 58, 111]
        CO = [f's_sub_u32 s{S_T0}, s{S_T3}, 22', f's_min_u32 s{S_T0}, s{S_T0}, 9', f's_lshl_b32 s{S_T0}, s{S_T0}, 2', f's_add_u32 s{S_T0}, s{S_T0}, s{cw}', f's_lshl_b32 s{S_T0}, s{S_T0}, 7',
              f'v_mul_u32_u24 v{t5}, {40 * 128}, v0', 's_waitcnt lgkmcnt(0)'] + self.build_srd(SRD_CIN, S_CIN, 105456) + [
              f'buffer_load_dword v107, v{t5}, {srd(SRD_CIN)}, s{S_T0} offen']
        L = CO if o.coop in (1, 2) else []
        L += ['s_waitcnt lgkmcnt(0)'] + self.build_srd(SRD_WCO, S_WCO, 156) + [f's_mov_b32 m0, {L_WCO}', 's_mov_b64 exec, 0x7ff',
             I(f'buffer_load_dwordx4 v{vStg}, {srd(SRD_WCO)}, 0 offen lds', tag='WCO'), 's_mov_b64 exec, -1'] + (['s_barrier'] if o.coop in (2, 4) else []) + self.stamp0() + SC2
        L += self.build_srd(SRD_IDX, S_IDX, 4096 * 104) + self.build_srd(SRD_TAB, S_TAB, 100000 * 128)
        XK = 12
        if o.g1t:
            assert not o.pfx
            L += [f'v_and_b32 v13, 31, v0', f'v_min_u32 v13, 25, v13', f'v_lshrrev_b32 v14, 5, v0', f'v_mul_u32_u24 v14, {4 * 104}, v14', f'v_lshl_add_u32 v13, v13, 2, v14',
                  f'buffer_load_dword v14, v13, {srd(SRD_IDX)}, s{S_SAMP} offen']
        g1touch = [f'v_lshlrev_b32 v14, 7, v14', f'buffer_load_dword v13, v14, {srd(SRD_TAB)}, 0 offen']
        hx = []
        if o.hx:
            mg = {4: 16384, 5: 13108}[o.hx]
            assert all((d * mg) >> 16 == d // o.hx for d in range(64))
            L += [f'v_min_u32 v12, {12 * o.hx - 1}, v0', f'v_mul_u32_u24 v15, {mg}, v12', 'v_lshrrev_b32 v15, 16, v15', f'v_mul_u32_u24 v15, {104 - 4 * o.hx}, v15', 'v_lshl_add_u32 v12, v12, 2, v15',
                  f's_lshl_b32 s{S_T0}, s{S_MB}, 2', f's_add_u32 s{S_T0}, s{S_T0}, s{cw}', f's_mul_i32 s{S_T0}, s{S_T0}, {12 * 104}',
                  f'buffer_load_dword v15, v12, {srd(SRD_IDX)}, s{S_T0} offen offset:{4 * o.hx0}']
            hx = ['v_lshlrev_b32 v15, 7, v15', f'buffer_load_dword v12, v15, {srd(SRD_TAB)}, 0 offen']
        if o.hw:
            hw = self.build_srd(SRD_W, S_W1, 1664 * 3328) + [f's_lshl_b32 s{S_T0}, s{S_MB}, 2', f's_add_u32 s{S_T0}, s{S_T0}, s{cw}', f's_add_u32 s{S_T0}, s{S_T0}, {o.hw0 * 832}',
                  f's_lshl_b32 s{S_T0}, s{S_T0}, 7', f'v_mul_u32_u24 v106, {344 * 128}, v0', f's_mov_b64 exec, {(1 << o.hw) - 1}',
                  f'buffer_load_dword v{XI}, v106, {srd(SRD_W)}, s{S_T0} offen', 's_mov_b64 exec, -1']
        if o.xg1:
            L += [f's_sub_u32 s{S_T0}, s{S_SAMP}, {24 * 104}', f'buffer_load_dwordx4 {vr(XI, 4)}, v{t4}, {srd(SRD_IDX)}, s{S_T0} offen',
                  f'buffer_load_dwordx4 {vr(XK, 4)}, v{t4}, {srd(SRD_IDX)}, s{S_T0} offen offset:{4 * 104}']
        L += [f'ds_write_b128 v{vFR}, {vr(XR, 4)} offset:16', f's_lshl_b32 s{S_T0}, s{cw}, 6', f'v_add_u32 v{t3}, s{S_T0}, v0']
        for p_ in range(3):
            L += [f'v_mul_u32_u24 v{t4}, 2521, v{t3}', f'v_lshrrev_b32 v{t4}, 16, v{t4}', f'v_mul_u32_u24 v{t4}, 12, v{t4}', f'v_lshl_add_u32 v{AV[p_]}, v{t3}, 1, v{t4}']
            L += [f'v_add_u32 v{t3}, 256, v{t3}'] if p_ < 2 else [f'v_cmp_gt_u32 vcc, 676, v{t3}', f's_mov_b64 s[{S_MASK}:{S_MASK + 1}], vcc']
        L += [f'v_lshlrev_b32 v{t3}, 3, v0', 's_mov_b32 exec_hi, 0xffff', f'ds_write_b64 v{t3}, {vr(XR, 2)} offset:{V3OFF + 26 * 64}', 's_mov_b32 exec_hi, -1',
              f'ds_write_b32 v{AD + 3}, v{XR}', f'ds_write_b32 v{AD + 3}, v{XR} offset:{SSZ}', WaitTag(vm_tags=['WCO'])]
        assert V3OFF == 0
        for s2 in range(2):
            for rd in range(2):
                L.append(f'ds_read_b64 {vr(AFR + 4 * s2 + 2 * rd, 2)}, v{AD} offset:{s2 * 32 + rd * 8}')
        L += [f'ds_read_u16 v110, v{AD + 1}',
              's_mov_b64 exec, 0x3ffffff', f'ds_write_b16 v{AD + 2}, v110', 'v_lshlrev_b32 v109, 17, v110', 'v_lshrrev_b32 v109, 1, v109', 's_mov_b64 exec, -1']
        if o.cwalk:
            L += ['s_mov_b64 exec, 0'] + [x for q_ in range(3) for x in (f's_cmp_eq_u32 s{cw}, {q_}', f's_cbranch_scc1 L_WENTRY{q_}')] + ['s_branch L_WENTRY3', 'L_wret:', 's_mov_b64 exec, -1']
        L += (FX(1)[1] if o.dirt else vbs) + [WaitTag(vm_tags=['TAB'], lgkm0=True)] + self.probe('tab') + (pfw(PFR) if o.pfw and o.pfs == 1 else []) + (hw if o.hw and o.hwat == 0 else []) + (hx if o.hxat == 0 else [])
        v3p = []
        L += ['s_barrier'] + self.stamp(2) + self.probe('b0')
        vb = lambda m: A3 - A1 - 512 + (m >> 1) * 512 + (m & 1) * 64
        for m in range(3):
            L += bread(m, vb(m))
        for m in range(6):
            if m + 3 < 6:
                L += bread(m + 3, vb(m + 3))
            L += mm2(DALL + m * 16, AFR, BALL + m * 8)
            if m == 3 and not o.dirt:
                L += FX(1)[0]
        if not o.dirt:
            L += FX(1)[1][3:]
        for p_ in range(3):
            L += ['s_mov_b32 exec_lo, 0', f'v_mov_b32 v{DALL + 32 * p_}, v{DALL + 32 * p_ + 16}', 's_mov_b32 exec_lo, -1',
                  f'v_cvt_pk_bf16_f32 v{BALL + p_}, 0, v{DALL + 32 * p_}']
            if p_ == 2:
                L += [f's_mov_b64 exec, s[{S_MASK}:{S_MASK + 1}]']
            L += [f'ds_write_b16_d16_hi v{AV[p_]}, v{BALL + p_}', f'v_max_f32 v108, |v{BALL + p_}|, v108']
        L += ['s_mov_b64 exec, -1'] + pub2(108, 109, 8) + self.stamp(13) + [f's_setprio {o.g1p}'] + (hw if o.hw and o.hwat == 1 else []) + (hx if o.hxat == 1 else []) + (g1touch if o.g1t == 1 else []) + ['s_waitcnt lgkmcnt(0)', 's_barrier'] + (g1touch if o.g1t == 2 else []) + ['s_branch L_w2']
        v3 = self.seq(L)

        def stage3(dst, goff, tag, lab, mid=None, fill=()):
            st = stage(dst, goff, tag)
            a_ = st[:8] if mid is None else st[:mid[0]] + [tuple(mid[1])] + st[mid[0]:8]
            return (self.seq(interleave(a_, list(fill)) + [f's_cmp_eq_u32 s{cw}, 3', f's_cbranch_scc1 {lab}']), self.seq([st[8]]), self.seq([f'{lab}:']))
        g0 = [self.seq(['L_g0:'] + ([x.replace('v107,', 'v103,') for x in CO] if o.coop >= 3 else ['s_waitcnt lgkmcnt(0)'] + self.build_srd(SRD_CIN, S_CIN, 105456)) + (['s_barrier'] if o.coop in (2, 4) else []) + ([Touch('v103')] if o.coop == 5 else []))]
        g0.append(stage3(A3, 70304, 'W3', 'L_st3'))
        g0.append(self.seq(self.stamp0() + self.build_srd(SRD_IDX, S_IDX, 4096 * 104) + ([f's_add_u32 s{S_SAMP}, s{S_SAMP}, {8 * 104}'] if o.xg1 else xidx(XI, t4) + xidx(XJ, t4)) + self.build_srd(SRD_TAB, S_TAB, 100000 * 128)))
        def w2grp(n):
            c = []
            for k, go in enumerate((0, 1024, 1864)):
                c.append((f's_add_u32 m0, s{S_STG9}, {A2 + n * 4 * 3072 + k * 1024}', f's_add_u32 s{S_TW}, s{S_TGT}, {35152 + n * 4 * 2704 + go}',
                          I(f'buffer_load_dwordx4 v{t5 if k == 1 else vStg}, {srd(SRD_CIN)}, s{S_TW} offen lds', tag='W2')))
            return c
        g0.append((self.seq([f's_mul_i32 s{S_STG9}, s{cw}, 3072', f's_mul_i32 s{S_TGT}, s{cw}, 2704', f'v_lshrrev_b32 v{t5}, 5, v0', f'v_mul_u32_u24 v{t5}, 184, v{t5}',
                             f'v_sub_u32 v{t5}, v{vStg}, v{t5}'] + interleave(w2grp(0) + w2grp(1) + w2grp(2), SC2) + [f's_cmp_lg_u32 s{cw}, 0', 's_cbranch_scc1 L_st2']),
                   self.seq(w2grp(3)), self.seq(['L_st2:']), 1))
        xx = xdma(vC16=t3, tag='XBa') + xdma(XJ, 4 * XBSZ, vC16=t3)
        g0.append(stage3(A1, 0, 'W1', 'L_st1', (o.sigat, [WaitTag(vm_tags=['W2' if o.mrg else 'W3']), 's_barrier'] + self.stamp(2) + FX(0)[0])))
        g0.append(self.seq((xx if o.xat == 0 else xx[:len(xx) // 2] if o.xat == 3 else []) + (pfw(PFR) if o.pfw and o.pfs == 1 else []) + FX(0)[1] + (xx if o.xat == 2 else xx[:len(xx) // 2] if o.xat >= 4 else []) + self.stamp(13)
                           + [WaitTag(vm_tags=['W1']), 's_barrier'] + (xx if o.xat == 1 else xx[len(xx) // 2:] if o.xat == 3 else [])))

        def G0(w):
            r = []
            for x in g0:
                r += x if isinstance(x, list) else x[0] + (x[1] if w < (3 if len(x) == 3 else x[3]) else []) + x[2]
            return r

        def gather(dst, off):
            c = [f'v_add_u32 v{r}, {off}, v{r}' for r in (vGa, vGb)] if off else []
            for s2 in range(2):
                for e in range(0, 8, 2):
                    base = vGb if (s2 == 1 and e >= 2) else vGa
                    h = 16 * s2 + e
                    c.append(f'ds_read2st64_b32 {vr(dst + 8 * s2 + e, 2)}, v{base} offset0:{6 * h} offset1:{6 * h + 6}')
            return c

        def perms(g_, aj):
            return [f'v_perm_b32 v{aj + 8 * jj + r}, v{g_ + 2 * r + 1}, v{g_ + 2 * r}, s{S_U1 + jj}' for jj in range(2) for r in range(8)]

        def sout(t):
            d, c_ = DALL + 16 * t, DALL + 16 * t
            c = [f'v_cvt_pk_f16_f32 v{c_ + r}, v{d + 2 * r}, v{d + 2 * r + 1}' for r in range(8)]
            return c[:4] + [f'ds_write_b128 v{WA[t]}, {vr(c_, 4)}', f'v_xor_b32 v{WA[t]}, 16, v{WA[t]}'] + c[4:] + [f'ds_write_b128 v{WA[t]}, {vr(c_ + 4, 4)}']
        M1, M2 = 28, 28

        def pub1(r, off):
            c = [f'v_max_u32_dpp v{r}, v{r}, v{r} {ctl} row_mask:{rm} bank_mask:0xf' for ctl, rm in DPPS]
            return c + [('s_mov_b32 exec_lo, 0', 's_mov_b32 exec_hi, 0x80000000', f'ds_max_u32 v{vFR}, v{r} offset:{16 + off}', 's_mov_b64 exec, -1')]
        L = ['L_w2:'] + self.stamp(14) + self.probe('bw2') + gather(BALL, 0) + (pfw(PFR) if o.pfw and o.pfs == 2 else []) + (pfx_a() if o.pfx else [])
        cx = []
        if o.xg1:
            cc0 = self.seq(L + [f's_cmp_eq_u32 s{S_GRP}, 0', 's_cbranch_scc1 L_nx1'])
            cx = self.seq(xdma(XI, -4 * XBSZ) + xdma(XK))
            L = ['L_nx1:']
        else:
            cc0 = []
        L += [f's_cmp_ge_u32 s{S_WAVE}, 5', 's_cbranch_scc1 L_u0']
        cc = self.seq(L)
        M1, M2 = 28, 108
        fin2 = lambda: interleave(mxfin(M1), mxfin(M2)) + [tuple(x) if isinstance(x, list) else x for x in pub2(M1, M2, 0)[:7] + [pub2(M1, M2, 0)[7:]]]
        afr = [f'ds_read_b64_tr_b16 {vr(AFR + 4 * s2 + 2 * rd, 2)}, v{vA3} offset:{s2 * 1024 + rd * 256}' for s2 in range(2) for rd in range(2)]
        b1u = self.seq(gather(BALL + 32, 32) + bread(2, 0) + bread(3, 64) + afr + mxop(BALL, 16, M2, True) + perms(BALL, DALL + 64)[:8] + mxop(BALL + 32, 16, M2, False)
                       + mxop(BALL + 16, 16, M1, True) + perms(BALL, DALL + 64)[8:] + interleave(fin2(), perms(BALL + 32, BALL)) + ['s_branch L_u1'])
        L = ['L_u0:'] + bread(2, 0) + bread(3, 64) + bread(4, 384) + bread(5, 384 + 64) + afr + mxop(BALL, 16, M2, True) + mxop(BALL + 16, 32, M1, True)
        L += perms(BALL, DALL + 64)[:4] + interleave(fin2(), perms(BALL, DALL + 64)[4:])
        L += [f'v_add_u32 v{WA[4]}, {192 * 64}, v{WA[2]}', f'v_add_u32 v{WA[5]}, {192 * 64}, v{WA[3]}',
              f's_cmp_lg_u32 s{S_WAVE}, 7', 's_cbranch_scc1 L_u1', 's_mov_b32 exec_lo, 0xfffffff0', 's_mov_b32 exec_hi, 0xfffffff0', f'v_mov_b32 v{WA[5]}, {OOB}', 's_mov_b64 exec, -1']
        b1q = self.seq(L)
        MXR = 108
        vM = 58

        def ureads(j):
            return [f'ds_read_u16_d16_hi v{XR + 2 * j}, v{vXa} offset:{XOFF(2 * j)}',
                    f'ds_read_u16_d16_hi v{XR + 2 * j + 1}, v{vXa} offset:{XOFF(2 * j) + 2}']
        mx3 = lambda j: f'v_max3_f32 v{vM}, |v{XR + 2 * j}|, |v{XR + 2 * j + 1}|, {"0" if j == 0 else f"v{vM}"}'
        L = ['L_u1:'] + self.stamp(1) + [WaitTag(lgkm0=True), 's_barrier'] + self.stamp(7) + self.probe('b1')
        L += [f'ds_read_b128 {vr(MXR, 4)}, v{vFR} offset:16'] + (pfx_b() + pfx_a() if o.pfx and o.pf1 == 1 else [])
        hook = {}

        def mkhook(name, c0_, c1_):
            nonlocal L
            if not (c0_ or c1_):
                return
            pre_ = self.seq(L + [f's_cmp_lg_u32 s{S_GRP}, 0', f's_cbranch_scc1 L_{name}1'])
            a_ = self.seq(c0_ + [f's_branch L_{name}2'])
            b_ = self.seq([f'L_{name}1:'] + c1_)
            hook[name] = (pre_, a_, b_)
            L = [f'L_{name}2:']
        mkhook('hb', xdma(XJ, 4 * XBSZ) if o.xat == 5 else [], g1touch if o.g1t == 3 else [])
        L += [f's_mul_i32 s{S_T0}, s{S_WAVE}, 384', f'v_lshrrev_b32 v{t3}, 2, v0', f'v_mul_u32_u24 v{t3}, 24, v{t3}', f'v_add_u32 v{t3}, s{S_T0}, v{t3}',
              f'v_and_b32 v{t4}, 3, v0', f'v_lshlrev_b32 v{t4}, 3, v{t4}']
        L += [f'ds_read_b64 {vr(UA + 2 * n_, 2)}, v{t3} offset:{TC_ + 8 * n_}' for n_ in range(3)]
        q1 = [f'v_add_u32 v{MXR}, {127 << 23:#x}, v{MXR}', f'v_lshrrev_b32 v{MXR}, 24, v{MXR}', f'v_sub_u32 v{MXR}, 267, v{MXR}', f'v_min_u32 v{MXR}, 167, v{MXR}',
              f'v_readfirstlane_b32 s{S_F1}, v{MXR}', f'v_mul_u32_u24 v{MXR}, 0x800080, v{MXR}']
        sc = [f'v_add_u32 v{MXR + 1}, {127 << 23:#x}, v{MXR + 1}', f'v_lshrrev_b32 v{MXR + 1}, 24, v{MXR + 1}',
              's_mov_b32 vcc_lo, 0x4000000', 's_mov_b32 vcc_hi, 0x4000000', f'v_cndmask_b32 v{vS}, v{MXR + 2}, v{MXR + 3}, vcc', f'v_lshrrev_b32 v{vS}, 23, v{vS}',
              f'v_add_u32 v{vS}, v{vS}, v{MXR + 1}', f'v_sub_u32 v{vS}, 388, v{vS}', f's_movk_i32 s{S_U0}, 167', f'v_med3_i32 v{vS}, v{vS}, 1, s{S_U0}',
              f'v_subrev_u32 v{MXR + 2}, 127, v{vS}', f'v_lshlrev_b32 v{vS}, 23, v{vS}', f'v_cmp_gt_i32 vcc, 0, v{MXR + 2}',
              f'v_mul_u32_u24 v{MXR + 2}, 0x800080, v{MXR + 2}']
        mq = mm2(DALL + 32, PM, BALL + 16) + mm2(DALL + 48, PM, BALL + 24)
        L += interleave(q1, sc[:6]) + [f'v_and_b32 v{PM + r}, v{PM + r}, v{MXR}' for r in range(8)] + interleave([mq[0], mq[2], mq[1], mq[3]], sc[6:]) + ['s_cbranch_vccnz L_sdown']
        L += [f'v_add_u32 v{AFR + r}, v{AFR + r}, v{MXR + 2}' for r in range(8)]
        u1a = self.seq(L)
        L = ['L_scaled:'] + interleave(mm2(DALL, DALL + 64, AFR) + mm2(DALL + 16, DALL + 72, AFR), sout(2) + sout(3))
        L += [f's_cmp_ge_u32 s{S_WAVE}, 5', 's_cbranch_scc1 L_u2']
        u1 = self.seq(L)
        u2u = self.seq(interleave(mm2(DALL + 64, BALL, AFR) + mm2(DALL + 80, BALL + 8, AFR), sout(0)) + ['s_branch L_u3'])
        u2q = self.seq(['L_u2:'] + interleave(mm2(DALL + 64, PM, BALL + 32) + mm2(DALL + 80, PM, BALL + 40), sout(0)))
        L = ['L_u3:'] + xidx() + xidx(112) + (pfx_b() + pfx_a() if o.pfx and o.pf1 == 2 else [])
        mkhook('hu', xdma(XJ, 4 * XBSZ) if o.xat == 4 else [], g1touch if o.g1t == 4 else [])
        L += interleave(sout(1) + sout(4) + sout(5), [x for n_ in range(6) for x in (f'v_xor_b32 v{UA + n_}, v{UA + n_}, v{t4}', f'v_xor_b32 v{UX[n_]}, 32, v{UA + n_}')])
        L += [f'v_readlane_b32 s{S_CG}, v{vS}, 0', f'v_readlane_b32 s{S_IV}, v{vS}, 26',
              f's_sub_u32 s{S_F2}, {254 << 23:#x}, s{S_CG}', f's_sub_u32 s{S_IV}, {254 << 23:#x}, s{S_IV}',
              f's_sub_u32 s{S_F1}, 254, s{S_F1}', f's_lshl_b32 s{S_F1}, s{S_F1}, 23',
              f's_mov_b32 s{S_MASK}, 0x88888888', f's_mov_b32 s{S_MASK + 1}, 0x88888888']

        def sigma(s_):
            t = (s_ - 1) // 2
            first = (s_ - 1) % 2 == 0
            return (0 if first else 1) if t % 2 == 0 else (1 if first else 0)
        for s_ in range(1, 11):
            assert ((s_ - 1) // 2) * 1024 + sigma(s_) * 512 - (s_ // 4) * 2048 == (-1024, 0, 512, 1536)[s_ % 4]

        def p2read(n_):
            b = BALL + 16 * n_
            c = []
            UAl = list(range(UA, UA + 6))
            for x, (ar, off) in enumerate(((UAl, 0), (UX, 0), (UAl, SSZ), (UX, SSZ))):
                for y in range(2):
                    c.append(f'ds_read_b64_tr_b16 {vr(b + 4 * x + 2 * y, 2)}, v{ar[2 * n_ + y]} offset:{off}')
            return c

        def p2a(n_):
            b = BALL + 16 * n_
            c = []
            for x in range(4):
                c += [f'v_pk_add_f16 v{b + 4 * x + y}, v{b + 4 * x + y}, v{b + 4 * x + 2 + y}' for y in range(2)]
                if x in (0, 2):
                    c.append(f'ds_write_b64 v{vFw}, {vr(b + 4 * x, 2)} offset:{FR + n_ * 4 * 3072 + x * 1024}')
            c += [f'v_cndmask_b32 v{b + 4 + y}, v{b + 4 + y}, v{b + 12 + y}, s[{S_MASK}:{S_MASK + 1}]' for y in range(2)]
            c.append(f'ds_write_b64 v{vFw}, {vr(b + 4, 2)} offset:{FR + n_ * 4 * 3072 + 1024}')
            return c

        def p2s(n_):
            b = BALL + 16 * n_ + 12
            off = FRS + max(n_ * 2048 - 1024, 0)
            return ([f'v_subrev_u32 v{vT3}, 1024, v{vT3}'] if n_ == 0 else []) + [
                f'ds_write_b32 v{vT3}, v{b} offset:{off}', f'ds_write_b32 v{vT3}, v{b + 1} offset:{off + 16}']
        ec = []
        if o.econv:
            L += [f's_cmp_lg_u32 s{S_GRP}, 0', 's_cbranch_scc1 L_noec']
            u3 = self.seq(L)
            ec = self.seq([WaitTag(vm_tags=['XBa'])] + [x for j in range(13) for x in ureads(j)])
            L = ['L_noec:']
        else:
            u3 = []
        L += [WaitTag(vm_tags=['XB'] if o.xg1 else [], lgkm0=True), 's_barrier'] + self.stamp(10)
        L += p2read(0) + p2read(1) + [f's_cmp_ge_u32 s{S_WAVE}, 6', 's_cbranch_scc1 L_lin']
        b2 = self.seq(L)
        p2c = self.seq(p2read(2) + p2a(2) + p2s(2) + ['s_branch L_p2'])
        LB = BALL + 32
        ZR4 = t5
        L = ['L_lin:', f's_and_b32 s{S_U0}, s{S_WAVE}, 1', f's_cselect_b64 vcc, -1, 0', f's_lshl_b32 s{S_U1}, s{S_U0}, 5', f'v_mov_b32 v{ZR4}, 0',
             f'v_xor_b32 v{vV2r}, s{S_U1}, v{vV2r}', f'v_xor_b32 v{vV2q}, s{S_U1}, v{vV2q}', f'v_cndmask_b32 v{vWo}, v{vWo}, v{vWo + 1}, vcc',
             f'ds_read_b64_tr_b16 {vr(LB, 2)}, v{vV2r}', f'ds_read_b64_tr_b16 {vr(LB + 2, 2)}, v{vV2q}',
             f'ds_read_u16_d16_hi v{ZR4}, v{vWo}',
             f's_lshl_b32 s{S_U0}, s{S_U0}, 10', f'v_add_u32 v{t3}, s{S_U0}, v{vStg}']
        for r in range(4):
            a_, b_ = LB + 4 + 2 * r, LB + 5 + 2 * r
            L += [f'v_cvt_f32_f16 v{a_}, v{LB + r}', f'v_cvt_f32_f16_sdwa v{b_}, v{LB + r} dst_sel:DWORD dst_unused:UNUSED_PAD src0_sel:WORD_1',
                  f'v_mul_f32 v{a_}, s{S_IV}, v{a_}', f'v_mul_f32 v{b_}, s{S_IV}, v{b_}']
            if r == 3:
                L += ['s_mov_b32 exec_lo, 0', 's_mov_b32 exec_hi, 0xffff', f'v_mov_b32 v{a_}, v{ZR4}', 's_mov_b64 exec, -1']
            L += [f'v_mul_f32 v{a_}, s{S_CG}, v{a_}', f'v_mul_f32 v{b_}, s{S_CG}, v{b_}', f'v_cvt_pk_bf16_f32 v{LB + r}, v{a_}, v{b_}']
        L += [f'ds_write_b128 v{t3}, {vr(LB, 4)} offset:{FRL}']
        lin = self.seq(L)
        p2 = self.seq(['L_p2:'] + p2a(1) + p2s(1) + p2a(0) + [f's_cmp_lt_u32 s{S_WAVE}, 2', 's_cbranch_scc1 L_p2d'])
        p2e = self.seq(p2s(0) + ['s_branch L_built'])
        p2d = self.seq(['L_p2d:', f'ds_write_b64 v{vT3d}, {vr(BALL + 12, 2)} offset:{FRS + 5 * 1024}'])

        L = ['L_sdown:']
        for r in range(8):
            L += [f'v_lshlrev_b32 v{MXR}, 16, v{AFR + r}', f'v_and_b32 v{MXR + 1}, 0xffff0000, v{AFR + r}',
                  f'v_mul_f32 v{MXR}, v{MXR}, v{vS}', f'v_mul_f32 v{MXR + 1}, v{MXR + 1}, v{vS}', f'v_cvt_pk_bf16_f32 v{AFR + r}, v{MXR}, v{MXR + 1}']
        self.sdown = L + ['s_branch L_scaled']

        HK = lambda n_, g_: hook[n_][0] + hook[n_][1 + g_] if n_ in hook else []

        def PRE(w, sd=None):
            grp = w >> 2
            return (c0 + (g1s + (g1t if w < 6 else []) if grp else []) + csc + (v3p + v3 if grp else G0(w)) + cc0 + (cx if grp else []) + cc + (b1q if w >= 5 else b1u)
                    + HK('hb', grp) + (u1a if sd is None else u1a[:-8] + sd) + u1 + (u2q if w >= 5 else u2u) + HK('hu', grp) + u3 + ([] if grp else ec) + b2
                    + (lin if w >= 6 else p2c) + p2 + (p2d if w < 2 else p2e))
        L = ['L_built:'] + self.stamp(11)
        L += [f's_mov_b32 s{S_CG}, s{S_F1}', f's_mov_b32 s{S_IV}, s{S_F2}', f's_mov_b32 s{S_LO}, {f32hex(0.125)}', f's_mov_b32 s{S_HI}, {f32hex(0.0 if o.slow else 128.0)}']
        CV, vM, S_XD = 28, 58, 81

        def ureads(j):
            return [f'ds_read_u16_d16_hi v{XR + 2 * j}, v{vXa} offset:{XOFF(2 * j)}',
                    f'ds_read_u16_d16_hi v{XR + 2 * j + 1}, v{vXa} offset:{XOFF(2 * j) + 2}']
        mx3 = lambda j: f'v_max3_f32 v{vM}, |v{XR + 2 * j}|, |v{XR + 2 * j + 1}|, {"0" if j == 0 else f"v{vM}"}'
        cvt = lambda j: f'v_cvt_pk_f16_f32 v{CV + j % 4}, v{XR + 2 * j}, v{XR + 2 * j + 1}'
        iwr = lambda j: f'ds_write_b32 v{vIw}, v{CV + j % 4} offset:{j * IMGP}'
        S_SKIP = 51
        pfr = lambda: (pfx_b() + pfx_a() if o.pfx else []) + (pfw() if o.pfw == 1 else [])
        conv = lambda tag='XB': ([WaitTag(vm_tags=[tag])] + [x for j in range(13) for x in ureads(j)]
                        + [x for j in range(13) for x in (mx3(j), f'v_cvt_pk_f16_f32 v{D + j}, v{XR + 2 * j}, v{XR + 2 * j + 1}')])
        L += [f's_mov_b32 s{S_SKIP}, 1', f's_mul_i32 s{S_U0}, s{S_WAVE}, 1536', f's_add_u32 s{S_U0}, s{S_U0}, {PART}',
              f's_cmp_lg_u32 s{S_GRP}, 0', 's_cbranch_scc1 L_g1c']
        c2a = self.seq(L)
        c2g0 = self.seq([f's_sub_u32 s{S_SAMP}, s{S_SAMP}, {4 * 104}', Touch('v[112:115]')] + (conv('XBa')[27:] if o.econv else conv('XBa')) + [WaitTag(lgkm0=True), 's_barrier'] + self.probe('b4a') + self.stamp(8) + ['s_branch L_cin_go'])
        DX = XB2 - XB - 4 * XBSZ
        L = ['L_g1c:', WaitTag(vm_tags=['XB'], lgkm0=True), 's_barrier'] + self.stamp(8) + self.probe('b4')
        L += [f's_add_u32 s{S_XM0}, s{S_XM0}, {DX}'] + xdma(tag='XB0') + xdma(112, 4 * XBSZ) + xidx() + pfr() + [f'v_add_u32 v{r}, {DX}, v{r}' for r in (vXa, vLin0, vLin1)]
        L += [f'ds_write_b32 v{vXa}, v{vXi1} offset:{XOFF(26)}', f'ds_write_b32 v{vXa}, v{vXi1} offset:{XOFF(26) + 4 * XBSZ}']
        c2g1 = self.seq(L)
        c2b = []
        c2g1d = self.seq(['L_g1d:'] + conv('XB0'))
        c2c = self.seq(['L_cin_go:'] + [f'ds_write_b32 v{vIw}, v{D + j} offset:{j * IMGP}' for j in range(13)]
                       + [f's_mov_b32 s{S_XD}, {4 * XBSZ}', f's_add_u32 s{S_XM0}, s{S_XM0}, {4 * XBSZ}',
                          f'v_lshlrev_b32 v{vXi1}, 2, v0', f'v_add_u32 v{vXi1}, s{S_U0}, v{vXi1}'])

        NWF = 5
        PF = o.cpfd
        zslot = lambda s_: 1 if s_ % 2 == 0 else (0 if ((s_ - 1) // 2) % 2 == 0 else 2)
        zr = lambda T, sl: Z + 12 * T + 4 * sl
        preg = lambda T, r: P + 14 * T + (r if r < 14 else r - 14)
        acc = lambda T, tile: D + 16 * T + 4 * tile
        jobs = [('l', 0, 0), ('l', 0, 1)]
        for s_ in range(11):
            jobs += [('d', s_, 2), ('d', s_, 0), ('d', s_, 1)]
            if s_ == 0:
                jobs.append(('d', 0, 3))
            elif s_ % 2 == 0:
                jobs.append(('s', s_, 3))
        NJ = len(jobs)
        assert NJ == 41

        def wread(n):
            kind, s_, tile = jobs[n]
            off = FRL + tile * 1024 if kind == 'l' else (FR + s_ * 3072 + tile * 1024 if tile < 3 else FRS + (5 if s_ == 0 else (s_ - 1) // 2) * 1024)
            return f'ds_read_b128 {vr(WF + 4 * (n % NWF), 4)}, v{vFa} offset:{off}'

        def mfma(n, T):
            kind, s_, tile = jobs[n]
            a = vr(WF + 4 * (n % NWF), 4)
            d = vr(acc(T, tile), 4)
            if kind == 'l':
                return f'v_mfma_f32_16x16x32_bf16 {d}, {a}, {vr(zr(T, 2), 4)}, 0'
            if kind == 's':
                lo = 0 if ((s_ - 1) // 2) % 2 == 0 else 1
                return f'v_smfmac_f32_16x16x64_f16 {d}, {a}, {vr(zr(T, lo), 8)}, v{vIDX}'
            return f'v_mfma_f32_16x16x32_f16 {d}, {a}, {vr(zr(T, zslot(s_)), 4)}, {"0" if (s_ == 0 and tile >= 2) else d}'

        def pk(T, n):
            a, b, s0, s1 = cin16.INS[n]
            return (f'v_pk_mul_f16 v{zr(T, zslot(n // 4)) + n % 4}, v{preg(T, a)}, v{preg(T, b)} '
                    f'op_sel:[{s0[0]},{s0[1]}] op_sel_hi:[{s1[0]},{s1[1]}]')

        def trp(T, rp):
            return f'ds_read_b64_tr_b16 {vr(preg(T, 2 * rp), 2)}, v{vTR + rp} offset:{32 * T}'

        LASTA = max(n for n, x in enumerate(cin16.INS) if x[0] < 2)
        S_A1, S_A2, S_PINC = 49, 50, 48
        fin = []
        for T in range(4):
            fin += [(acc(T, 0) + r, acc(T, 2) + r) for r in range(4)] + [(acc(T, 1), acc(T, 1) + 3)]
        for T in range(4):
            fin += [(acc(T, 1) + 1 + (r >> 1), acc(T, 3) + r) for r in range(4)]

        def final(f1, f2):
            c = []
            for k, (a, b) in enumerate(fin):
                d = Z + k % 4
                c.append(f'v_mul_f32 v{d}, v{a}, v{b}' if k < 4 else f'v_fmac_f32 v{d}, v{a}, v{b}')
            c += [f'v_add_f32 v{Z}, v{Z}, v{Z + 1}', f'v_add_f32 v{Z + 2}, v{Z + 2}, v{Z + 3}', f'v_add_f32 v{Z}, v{Z}, v{Z + 2}']
            c += [f'v_mul_f32 v{Z}, s{x}, v{Z}' for x in (f1, f2)]
            return c + [f'ds_write_b32 v{vXi1}, v{Z}']
        code = ['L_cin_loop:', f'v_cmp_le_f32 s[{S_CM}:{S_CM + 1}], s{S_HI}, v{vM}', f'v_cmp_le_f32 vcc, s{S_LO}, v{vM}',
                f's_mov_b32 s{S_A1}, s{S_F1}', f's_mov_b32 s{S_A2}, s{S_F2}',
                f's_cmp_lg_u64 s[{S_CM}:{S_CM + 1}], 0', 's_cbranch_scc1 L_cslow', 's_cbranch_vccz L_cslow']
        cA = self.seq(code)
        RD = []
        for rp in (0, 3, 4):
            RD += [trp(T, rp) for T in range(4)]
        for T in range(4):
            RD += [f'ds_read_b64_tr_b16 {vr(zr(T, 2), 2)}, v{vLin0} offset:{32 * T}', f'ds_read_b64_tr_b16 {vr(zr(T, 2) + 2, 2)}, v{vLin1} offset:{32 * T}']
        RD += [wread(k) for k in range(PF)]
        for rp in (5, 6, 1, 2):
            RD += [trp(T, rp) for T in range(4)]
        pfr = lambda: (pfx_b() + pfx_a() if o.pfx else []) + (pfw() if o.pfw == 1 else [])
        vm = xdma() + xidx() + pfr()
        VA = final(S_A1, S_A2) + [f'v_add_u32 v{vXi1}, 256, v{vXi1}']
        PK0 = [pk(T, n) for T in range(4) for n in range(4)]
        TG = [f'v_add_u32 v{r}, s{S_XD}, v{r}' for r in (vXa, vLin0, vLin1)] + [f's_sub_u32 s{S_XM0}, s{S_XM0}, s{S_XD}', f's_sub_u32 s{S_XD}, 0, s{S_XD}', f's_mov_b32 s{S_SKIP}, 0']
        cB0 = self.seq(['L_cconv:', f's_cmp_lg_u32 s{S_SKIP}, 0', 's_cbranch_scc1 L_first'])
        cVM = self.seq(interleave(RD, VA) + PK0 + vm)
        self.first = ['L_first:'] + RD[:28] + interleave(RD[28:], PK0) + ['s_branch L_novm']
        code = ['L_novm:'] + TG
        LA = 1
        def lstamp(base):
            if not (o.stamps and o.cst):
                return []
            return [f's_memtime s[{S_ST}:{S_ST + 1}]', f's_memrealtime s[{S_ST + 2}:{S_ST + 3}]', f's_sub_u32 s{S_C0}, {base + 6}, s{S_LOOP}', 's_waitcnt lgkmcnt(0)',
                    f's_mov_b32 m0, s{S_C0}', f'v_writelane_b32 v252, s{S_ST}, m0', f'v_writelane_b32 v253, s{S_ST + 2}, m0']
        code += lstamp(19)
        code += [Touch(vr(WF, 4)), Touch(vr(zr(3, 2), 4))] + ([f's_cmp_eq_u32 s{S_GRP}, 0', 's_cbranch_scc1 L_np1', 's_setprio 1', 'L_np1:'] if o.gprio else ['s_setprio 1'])
        MS = [(n, T) for n in range(NJ) for T in range(4)]
        first_use, last_use = {}, {}
        for mi, (n, T) in enumerate(MS):
            kind, s_, tile = jobs[n]
            if kind == 'l':
                last_use[(T, 'lin')] = mi
                continue
            for su in ([s_] if kind == 'd' else [s_ - 1, s_]):
                first_use.setdefault((T, su), mi)
                last_use[(T, su)] = mi
        V = []
        for s_ in range(LA, 11):
            prev = [p_ for p_ in range(s_) if zslot(p_) == zslot(s_)]
            for T in range(4):
                rdy = last_use[(T, prev[-1])] + o.war if prev else (last_use[(T, 'lin')] if zslot(s_) == 2 else -1)
                for n in range(4 * s_, 4 * s_ + 4):
                    V.append((pk(T, n), rdy, first_use[(T, s_)], n, T))
        forced = 0
        late = []
        XL_ = [x for j in range(13) for x in ureads(j)]
        xrd = {}
        CVR = [preg(T, r) for r in (2, 3, 6, 7) for T in range(4)]
        cvrdy = max(n for n, x in enumerate(cin16.INS) if set(x[:2]) & {2, 3, 6, 7})
        cvt2 = lambda j: f'v_cvt_pk_f16_f32 v{CVR[j]}, v{XR + 2 * j}, v{XR + 2 * j + 1}'
        iwr2 = lambda j: f'ds_write_b32 v{vIw}, v{CVR[j]} offset:{j * IMGP}'
        nm = nc = nw = 0
        V.sort(key=lambda x: x[2])
        prev2 = 0
        for mi, (n, T) in enumerate(MS):
            while V and V[0][2] <= mi:
                assert V[0][1] < mi
                code.append(V.pop(0)[0]); forced += 1
            code.append(mfma(n, T))
            t = 4
            if o.cbar and mi == len(MS) - 1 - o.cbov:
                code += ['s_setprio 3', 's_barrier']; t += 8
            if not o.cbar and mi == 4 * o.hiat - 2:
                code.append('s_setprio 2'); t += 4
            if T == 3 and n + 1 < NJ:
                code.append(Touch(vr(WF + 4 * ((n + 1) % NWF), 4))); t += 4
            if T == 0 and n + PF < NJ:
                code.append(wread(n + PF)); t += 8
            elif T in (1, 2) and late:
                code.append(late.pop(0)); t += 8
            elif T in (1, 2) and mi >= o.x0 and XL_:
                if len(XL_) == 26:
                    code.append(WaitTag(vm_tags=['XB']))
                code.append(XL_.pop(0)); t += 8
                if len(XL_) % 2 == 0:
                    xrd[12 - len(XL_) // 2] = mi
            elif not V and nw < nc and t == 4:
                code.append(iwr2(nw)); nw += 1; t += 12
            t = max(t, 12 if jobs[n][0] == 's' else 8)
            k = 0
            while t < 16:
                urgent = any(V[q_][2] - 1 - mi < q_ + 1 for q_ in range(min(24, len(V))))
                if k == 1 and prev2 >= o.max2 and not urgent:
                    break
                cand = [x for x in V[:32] if x[1] <= mi]
                extra = None
                if nm < 13 and nm in xrd and xrd[nm] + o.xlat <= mi:
                    extra = 'm'
                elif nc < nm and all(x[3] > cvrdy for x in V):
                    extra = 'c'
                if cand and (k == 0 or urgent or not extra) and (k == 0 or urgent or o.eager):
                    x = cand[0]
                    V.remove(x)
                    code.append(x[0])
                    if x[3] <= LASTA and all(y[3] > LASTA for y in V if y[4] == x[4]):
                        late.append(trp(x[4], 7))
                elif extra == 'm':
                    code.append(mx3(nm)); nm += 1
                elif extra == 'c':
                    code.append(cvt2(nc)); nc += 1
                else:
                    break
                t += 4; k += 1
            prev2 = prev2 + 1 if k == 2 else 0
        assert not late and not XL_ and not V
        print('left', 13 - nm, 13 - nc, 13 - nw)
        tail = [mx3(j) for j in range(nm, 13)] + [cvt2(j) for j in range(nc, 13)] + [iwr2(j) for j in range(nw, 13)]
        print('forced VALU', forced)
        code += lstamp(25)
        code.append(f's_setprio {o.p0}')
        code += [f's_sub_u32 s{S_LOOP}, s{S_LOOP}, 1', f's_cmp_eq_u32 s{S_LOOP}, 0', 's_cbranch_scc1 L_cin_done'] + tail
        ntail = len(tail) + 1
        def keep(x):
            t_ = x.text if isinstance(x, I) else x
            if isinstance(t_, tuple):
                return True
            if 'nopk' in o.dbg and t_.startswith('v_pk_mul_f16'):
                return False
            if 'nowf' in o.dbg and t_.startswith('ds_read_b128'):
                return False
            if 'nosm' in o.dbg and t_.startswith('v_smfmac'):
                return False
            return True
        code = [x for x in code if keep(x)]
        if 'bf' in o.dbg:
            code = [x.replace('x32_f16', 'x32_bf16').replace('x64_f16', 'x64_bf16') if isinstance(x, str) else x for x in code]
        cB = self.seq(code + ['s_branch L_cin_loop'])
        mark0 = len(self.P.static)
        bl = []
        if o.burn:
            bl = [f's_movk_i32 s{S_LOOP}, {o.burn // 2}', 'L_burn2:'] + [f'v_mfma_f32_16x16x32_f16 {vr(P + 4 * (k % 2), 4)}, {vr(WF + 4 * (k % 4), 4)}, {vr(Z + 4 * (k // 4), 4)}, 0' for k in range(32)]
            bl += [f's_sub_u32 s{S_LOOP}, s{S_LOOP}, 1', f's_cmp_lg_u32 s{S_LOOP}, 0', 's_cbranch_scc1 L_burn2']
        L = ['L_cin_done:', f's_mul_i32 s{S_U0}, s{S_WAVE}, 1536', f's_add_u32 s{S_U0}, s{S_U0}, {PART}',
             f'v_lshlrev_b32 v{Z + 4}, 5, v0', f'v_add_u32 v{Z + 4}, s{S_U0}, v{Z + 4}',
             f'ds_read_b128 {vr(P, 4)}, v{Z + 4}', f'ds_read_b128 {vr(P + 4, 4)}, v{Z + 4} offset:16'] + bl + final(S_F1, S_F2)[:-1]
        E = [f'v_subrev_u32 v{Z + 6}, s{S_U0}, v{vXi1}', f'v_lshrrev_b32 v{Z + 6}, 8, v{Z + 6}', f'v_lshrrev_b32 v{Z + 5}, 3, v0', f'v_cmp_gt_u32 vcc, v{Z + 6}, v{Z + 5}',
             f'v_min_u32 v{Z + 5}, v{Z + 5}, v{Z + 6}', f'v_lshlrev_b32 v{Z + 5}, 4, v{Z + 5}', f'v_add_u32 v{Z + 5}, s{S_RC}, v{Z + 5}',
             ] + [f'v_add_f32 v{P + a_}, v{P + a_}, v{P + b_}' for a_, b_ in ((0, 1), (2, 3), (4, 5), (6, 7), (0, 2), (4, 6), (0, 4))]
        E += [f'v_add_f32_dpp v{P}, v{P}, v{P} {ctl} row_mask:0xf bank_mask:0xf' for ctl in ('quad_perm:[1,0,3,2]', 'quad_perm:[2,3,0,1]', 'row_half_mirror')]
        L += interleave([f'v_add_f32_dpp v{Z}, v{Z}, v{Z} {ctl} row_mask:{rm} bank_mask:0xf' for ctl, rm in DPPS], E)
        L += [f'v_cndmask_b32 v{P}, v{Z}, v{P}, vcc', 's_bitset1_b32 vcc_hi, 31', 's_mov_b64 exec, vcc', f'ds_write_b32 v{Z + 5}, v{P}', 's_mov_b64 exec, -1']
        L += self.stamp(9) + self.stamp_flush() + self.probe('cend') + [f's_cmp_eq_u32 s{S_WAVE}, 0', 's_cbranch_scc1 L_cpub', 's_waitcnt lgkmcnt(0)', 's_barrier', 's_endpgm',
              'L_cpub:', f's_load_dword s{S_BOUT}, s[{S_BO}:{S_BO + 1}], 0'] + self.pubsrd() + [
              'v_lshlrev_b32 v6, 2, v0', f'v_add_u32 v2, {RC}, v6', 'v_add_u32 v4, 1024, v6',
              f's_mul_i32 s{S_T1}, s{S_MB}, 192', f's_add_u32 s{S_T1}, s{S_T1}, {13 * WSP}',
              'v_mov_b32 v13, -1', 's_mov_b32 exec_hi, 0xffff', f'buffer_store_dword v13, v6, {srd(SRD_WS)}, s{S_T1} offen sc1', 's_mov_b64 exec, 1',
              f'buffer_load_dword v250, v6, {srd(SRD_OUT)}, 0 offen', f'buffer_load_dword v251, v6, {srd(SRD_DBG)}, 0 offen offset:240 sc1', 's_mov_b64 exec, -1',
              f's_mul_i32 s{S_T0}, s{S_MB}, 3', f's_mul_i32 s{S_T2}, s{S_T0}, 3277', f's_lshr_b32 s{S_T2}, s{S_T2}, 16',
              f'v_add_u32 v7, s{S_T2}, v0', f's_mul_i32 s{S_T2}, s{S_T2}, 20', f's_add_u32 s{S_T2}, s{S_T2}, 20',
              f's_sub_u32 s{S_T2}, s{S_T2}, s{S_T0}', f's_min_u32 s{S_T2}, s{S_T2}, 3', f's_sub_u32 s{S_T0}, 3, s{S_T2}',
              f'v_mov_b32 v5, s{S_T0}', f'v_writelane_b32 v5, s{S_T2}, 0',
              f's_cmp_eq_u32 s{S_T0}, 0', f's_cselect_b32 s{S_T0}, 1, 3',
              'v_lshlrev_b32 v3, 4, v0', 's_mov_b32 exec_hi, 0xffff', 's_waitcnt vmcnt(0) lgkmcnt(0)', 's_barrier'] + self.probe('cend2') + ['ds_read_b32 v64, v2']
        L += (self.stamp(16) if o.diag else [])
        L += ['v_min_u32 v64, -2, v64'] if o.sent else []
        L += [f'buffer_store_dword v64, v6, {srd(SRD_WS)}, s{S_T1} offen sc1', f's_mov_b32 exec_lo, s{S_T0}', 's_mov_b32 exec_hi, 0', 's_branch L_pub']
        fin_ = self.seq(L)
        blk = self.P.static[mark0:]
        del self.P.static[mark0:]
        at = self.P.static.index(self.pub[-1]) + 1
        self.P.static[at:at] = blk + self.ldblk
        L = ['L_cslow:']
        for (ctl, rm) in (('row_shr:1', '0xf'), ('row_shr:2', '0xf'), ('row_shr:4', '0xf'), ('row_shr:8', '0xf'),
                          ('row_bcast:15', '0xa'), ('row_bcast:31', '0xc')):
            L.append(f'v_max_f32_dpp v{vM}, v{vM}, v{vM} {ctl} row_mask:{rm} bank_mask:0xf')
        L += [f'v_readlane_b32 s{S_U0}, v{vM}, 63', f's_mov_b32 s{S_HI}, 0',
              f's_lshr_b32 s{S_U0}, s{S_U0}, 23', f's_min_u32 s{S_U0}, s{S_U0}, {127 + 55}',
              f's_lshr_b32 s{S_U1}, s{S_IV}, 23', f's_sub_u32 s{S_U1}, s{S_U1}, 47', f's_lshr_b32 s{S_U1}, s{S_U1}, 1', f's_min_u32 s{S_U1}, s{S_U1}, 59',
              f's_sub_u32 s{S_U1}, 131, s{S_U1}', f's_max_u32 s{S_U0}, s{S_U0}, s{S_U1}',
              f's_sub_u32 s{S_U1}, {127 + 4 + 127}, s{S_U0}',
              f's_lshl_b32 s{S_U2}, s{S_U1}, 1', f's_sub_u32 s{S_U2}, s{S_U2}, 127',
              f's_sub_u32 s{S_G}, 254, s{S_U2}', f's_lshl_b32 s{S_G}, s{S_G}, 23',
              f'v_mov_b32 v{P}, s{S_G}', f'v_mul_f32 v{P + 1}, s{S_CG}, v{P}', f'v_mul_f32 v{P}, s{S_IV}, v{P}',
              f'v_readfirstlane_b32 s{S_F1}, v{P + 1}', f'v_readfirstlane_b32 s{S_F2}, v{P}',
              f's_lshl_b32 s{S_U1}, s{S_U1}, 23', f's_lshl_b32 s{S_U2}, s{S_U2}, 23']
        TS = P
        for j in range(13):
            L += [f'v_mul_f32 v{TS}, s{S_U1}, v{XR + 2 * j}', f'v_mul_f32 v{TS + 1}, s{S_U1}, v{XR + 2 * j + 1}',
                  f'v_mul_f32 v{TS + 2}, s{S_U2}, v{XR + 2 * j}', f'v_mul_f32 v{TS + 3}, s{S_U2}, v{XR + 2 * j + 1}',
                  f'v_cvt_pk_f16_f32 v{TS + 20 + j}, v{TS}, v{TS + 1}', f'v_cvt_pk_bf16_f32 v{TS + 4 + j}, v{TS + 2}, v{TS + 3}',
                  f'ds_write_b32 v{vIw}, v{TS + 20 + j} offset:{j * IMGP}', f'ds_write_b32 v{vXa}, v{TS + 4 + j} offset:{XOFF(2 * j)}']
        L += [f'v_mov_b32 v{TS}, s{S_U2}', f'v_cvt_pk_bf16_f32 v{TS}, v{TS}, v{TS}',
              's_mov_b32 exec_hi, 0', f'ds_write_b32 v{vXa}, v{TS} offset:{XOFF(26)}', 's_mov_b32 exec_hi, -1',
              's_waitcnt lgkmcnt(0)', 's_branch L_cconv']
        slow = self.seq(L)
        sdown = self.seq(self.sdown)
        cF = self.seq(self.first)
        traces = []
        for w in range(8):
            grp = w >> 2
            c2 = c2a + (c2g1 + (c2b if w == 4 else []) + c2g1d if grp else c2g0) + c2c
            it = lambda sl, first: cA + (slow if sl else []) + cB0 + (cF if first else cVM) + cB
            traces.append(PRE(w) + c2 + it(0, 1) + it(0, 0) + it(0, 0)[:-ntail] + fin_ + self.pub)
            if w in (0, 4):
                traces.append(PRE(w, sdown) + c2 + it(1, 1) + it(1, 0)[:-ntail] + fin_ + self.pub)
        return traces

    def build(self):
        pro = self.prologue()
        d = self.dnn()
        cs = self.cin()
        self.seq(['L_end:', 's_endpgm'])
        traces = [pro + c for c in d + cs] + self.extra_traces
        for t in traces:
            resolve_waits(t)
        for _ in range(2):
            for t in traces:
                resolve_hazards(t)
        hdr = open(os.path.join(os.path.dirname(os.path.abspath(__file__)), 'header.txt')).read()
        txt = hdr + f'; @launch grid=(256,1,1) block=(512,1,1) lds={LDS_TOTAL}\n'
        txt += f'''.amdgcn_target "amdgcn-amd-amdhsa--gfx950"
{DOC}.text
.globl {KNAME}
.p2align 8
.type {KNAME},@function
{KNAME}:
'''
        body_ = self.P.emit()
        if self.opt.align:
            for lab in ('L_dnn_loop0:', 'L_dnn_loop1:', 'L_cin_loop:', 'L_epi:'):
                pad = '  s_nop 0\n' if self.opt.align > 100 else ''
                body_ = body_.replace(lab + '\n', f'.p2align {self.opt.align % 100}\n{pad}{lab}\n')
        if self.opt.cwalk:
            lines = body_.split('\n')
            i0, i1 = lines.index('L_w2:'), lines.index('L_cslow:')
            out, k, cnt = lines[:i0], 0, 0
            seg = lines[i0:i1]
            prot = 0
            for n_, l in enumerate(seg):
                out.append(l)
                t = l.strip()
                cnt += 1
                inmain = 'L_novm:' in seg[:n_ + 1]
                nxt = seg[n_ + 1].strip() if n_ + 1 < len(seg) else ''
                ok = t.endswith(':') or (cnt >= self.opt.cwalk and ('mfma' in t and nxt.startswith('v_pk') if inmain else t.startswith(('ds_', 'v_perm', 'v_cvt_pk'))))
                if ok and t not in ('L_cin_loop:', 'L_cconv:', 'L_scaled:'):
                    out += [f'L_wp{k}:', f'  s_cbranch_execz L_wp{k + 1}']
                    k += 1; cnt = 0
            j = lines.index('L_first:')
            rest = lines[i1:j + 1] + [f'L_wp{k}:', '  s_cbranch_execz L_wret'] + lines[j + 1:]
            body_ = '\n'.join(out + rest)
            print('walk pads', k + 1)
            self.npads = k + 1
            for q_ in range(4):
                body_ = body_.replace(f'L_WENTRY{q_}', f'L_wp{q_ * (k + 1) // 4}')
        if self.opt.fix:
            body_ = fixalign.fix(body_ + 'L_tables:\n', self.opt.fix)[:-len('L_tables:\n')]
        txt += body_
        tb = self.tables()
        assert len(tb) == 16 * 256
        txt += '.p2align 8\nL_tables:\n' + ''.join('.long ' + ', '.join(f'{x:#x}' for x in tb[i:i + 8]) + '\n' for i in range(0, len(tb), 8))
        txt += f'''.section .rodata,"a"
.p2align 6
.amdhsa_kernel {KNAME}
  .amdhsa_next_free_vgpr 256
  .amdhsa_next_free_sgpr 102
  .amdhsa_accum_offset 256
  .amdhsa_group_segment_fixed_size 0
  .amdhsa_kernarg_size 88
  .amdhsa_user_sgpr_count 2
  .amdhsa_user_sgpr_kernarg_segment_ptr 1
  .amdhsa_system_sgpr_workgroup_id_x 1
  .amdhsa_float_denorm_mode_32 {self.opt.denorm}
.end_amdhsa_kernel
'''
        return txt


def main():
    ap = argparse.ArgumentParser()
    ap.add_argument('-o', default='standalone__deep_cross_xdeepfm__recsys.s')
    ap.add_argument('--stamps', action='store_true')
    ap.add_argument('--nodma', action='store_true')
    ap.add_argument('--cpf', type=int, default=1)
    ap.add_argument('--coop', type=int, default=2)
    ap.add_argument('--coopw', type=int, default=2)
    ap.add_argument('--tbpos', type=int, default=0)
    ap.add_argument('--dbar3', type=int, default=1)
    ap.add_argument('--tlb', type=int, default=0)
    ap.add_argument('--tlb2', type=int, default=1)
    ap.add_argument('--itst', type=int, default=0)
    ap.add_argument('--diag', type=int, default=0)
    ap.add_argument('--dbg', default='')
    ap.add_argument('--lead3', type=int, default=1)
    ap.add_argument('--morder', type=int, default=0)
    ap.add_argument('--etlb', type=int, default=0)
    ap.add_argument('--lateb', type=int, default=0)
    ap.add_argument('--wfl', default='')
    ap.add_argument('--xfl', default='')
    ap.add_argument('--tag', type=int, default=0)
    ap.add_argument('--idxfirst', type=int, default=1)
    ap.add_argument('--bpos', type=int, default=2)
    ap.add_argument('--sigat', type=int, default=4)
    ap.add_argument('--epx', type=int, default=1)
    ap.add_argument('--denorm', type=int, default=3)
    ap.add_argument('--mprio', type=int, default=0)
    ap.add_argument('--swap', type=int, default=0)
    ap.add_argument('--bov', type=int, default=1)
    ap.add_argument('--rfirst', type=int, default=0)
    ap.add_argument('--g1x', type=int, default=0)
    ap.add_argument('--ldsred', type=int, default=0)
    ap.add_argument('--csnake', type=int, default=0)
    ap.add_argument('--cswap', type=int, default=0)
    ap.add_argument('--align', type=int, default=0)
    ap.add_argument('--c2', type=int, default=0)
    ap.add_argument('--d1', type=int, default=0)
    ap.add_argument('--cstr', type=int, default=3)
    ap.add_argument('--bearly', type=int, default=1)
    ap.add_argument('--w2late', type=int, default=1)
    ap.add_argument('--aov', type=int, default=5)
    ap.add_argument('--upos', type=int, default=1)
    ap.add_argument('--calt', type=int, default=1)
    ap.add_argument('--pfpos', type=int, default=1)
    ap.add_argument('--wlate', type=int, default=0)
    ap.add_argument('--dbar2', type=int, default=0)
    ap.add_argument('--dbar', type=int, default=0)
    ap.add_argument('--pfw', type=int, default=0)
    ap.add_argument('--pfx', type=int, default=0)
    ap.add_argument('--pfx0', type=int, default=4)
    ap.add_argument('--pfs', type=int, default=1)
    ap.add_argument('--dcoopx', type=int, default=1)
    ap.add_argument('--dcx0', type=int, default=0)
    ap.add_argument('--dcxpos', type=int, default=-1)
    ap.add_argument('--pfe0', type=int, default=2)
    ap.add_argument('--pfne', type=int, default=13)
    ap.add_argument('--prio47', type=int, default=0)
    ap.add_argument('--lookahead', type=int, default=5)
    ap.add_argument('--nz', type=int, default=6)
    ap.add_argument('--nwf', type=int, default=8)
    ap.add_argument('--hiat', type=int, default=8)
    ap.add_argument('--wmerge', type=int, default=0)
    ap.add_argument('--gapv', type=int, default=6)
    ap.add_argument('--slow', type=int, default=0)
    ap.add_argument('--tailp', type=int, default=0)
    ap.add_argument('--hx', type=int, default=4)
    ap.add_argument('--hx0', type=int, default=4)
    ap.add_argument('--hxat', type=int, default=1)
    ap.add_argument('--hw', type=int, default=0)
    ap.add_argument('--hw0', type=int, default=2)
    ap.add_argument('--hwat', type=int, default=0)
    ap.add_argument('--tgap', type=int, default=40)
    ap.add_argument('--tmask', type=int, default=0x15)
    ap.add_argument('--st', type=int, default=0)
    ap.add_argument('--sf0', type=int, default=2)
    ap.add_argument('--dbar0', type=int, default=2)
    ap.add_argument('--ptl', type=int, default=0)
    ap.add_argument('--ct2', default='')
    ap.add_argument('--ewat', type=int, default=0)
    ap.add_argument('--gprio', type=int, default=1)
    ap.add_argument('--g1t', type=int, default=1)
    ap.add_argument('--tf0', type=int, default=8)
    ap.add_argument('--twoff', type=int, default=0)
    ap.add_argument('--ew', type=int, default=4)
    ap.add_argument('--ew0', type=int, default=2)
    ap.add_argument('--cyc', default='')
    ap.add_argument('--rshare', type=int, default=1)
    ap.add_argument('--dwalk', type=int, default=0)
    ap.add_argument('--band', type=int, default=0)
    ap.add_argument('--absol', type=int, default=0)
    ap.add_argument('--rev', type=int, default=1)
    ap.add_argument('--xg1', type=int, default=0)
    ap.add_argument('--bou', type=int, default=1)
    ap.add_argument('--sjw', type=int, default=7)
    ap.add_argument('--cwalk', type=int, default=0)
    ap.add_argument('--few', default='')
    ap.add_argument('--econv', type=int, default=0)
    ap.add_argument('--nsh', type=int, default=16)
    ap.add_argument('--sh0', type=int, default=5)
    ap.add_argument('--dirt', type=int, default=0)
    ap.add_argument('--mrg', type=int, default=0)
    ap.add_argument('--g1p', type=int, default=0)
    ap.add_argument('--sa', type=int, default=4)
    ap.add_argument('--sbg', type=int, default=16)
    ap.add_argument('--bwat', type=int, default=0)
    ap.add_argument('--x2n', type=int, default=8)
    ap.add_argument('--sent', type=int, default=1)
    ap.add_argument('--spec', type=int, default=0)
    ap.add_argument('--probe', default='')
    ap.add_argument('--skew', type=int, default=0)
    ap.add_argument('--fix', type=int, default=64)
    ap.add_argument('--walk', type=int, default=0)
    ap.add_argument('--eal', type=int, default=3)
    ap.add_argument('--eoff', type=int, default=0)
    ap.add_argument('--ct', default='02')
    ap.add_argument('--rot', type=int, default=13)
    ap.add_argument('--i0', type=int, default=1)
    ap.add_argument('--i1', type=int, default=10)
    ap.add_argument('--burn', type=int, default=0)
    ap.add_argument('--lord', type=int, default=1)
    ap.add_argument('--lprio', type=int, default=0)
    ap.add_argument('--rsp', type=int, default=0)
    ap.add_argument('--tch', type=int, default=1)
    ap.add_argument('--tf', type=int, default=4)
    ap.add_argument('--toff', type=int, default=2)
    ap.add_argument('--tw0', type=int, default=8)
    ap.add_argument('--xat', type=int, default=4)
    ap.add_argument('--pf1', type=int, default=1)
    ap.add_argument('--lpf', type=int, default=20)
    ap.add_argument('--lpfit', type=int, default=6)
    ap.add_argument('--x1m', type=int, default=10)
    ap.add_argument('--bgap', type=int, default=6)
    ap.add_argument('--cprio', type=int, default=1)
    ap.add_argument('--x1n', type=int, default=5)
    ap.add_argument('--w0', type=int, default=2)
    ap.add_argument('--dbar1', type=int, default=1)
    ap.add_argument('--aon', type=int, default=2)
    ap.add_argument('--cbar', type=int, default=0)
    ap.add_argument('--vmpos', type=int, default=2)
    ap.add_argument('--il2', type=int, default=0)
    ap.add_argument('--p1', type=int, default=0)
    ap.add_argument('--pm', type=int, default=2)
    ap.add_argument('--cbov', type=int, default=3)
    ap.add_argument('--p0', type=int, default=0)
    ap.add_argument('--max2', type=int, default=2)
    ap.add_argument('--eager', type=int, default=0)
    ap.add_argument('--cst', type=int, default=0)
    ap.add_argument('--x0', type=int, default=60)
    ap.add_argument('--xlat', type=int, default=18)
    ap.add_argument('--xper', type=int, default=3)
    ap.add_argument('--xc0', type=int, default=0)
    ap.add_argument('--n3', type=int, default=1)
    ap.add_argument('--xi0', type=int, default=1)
    ap.add_argument('--pfsat', type=int, default=0)
    ap.add_argument('--g1prio', type=int, default=0)
    ap.add_argument('--xearly', type=int, default=1)
    ap.add_argument('--cpfd', type=int, default=4)
    ap.add_argument('--cla', type=int, default=1)
    ap.add_argument('--war', type=int, default=1)
    opt = ap.parse_args()
    resolve_waits.dbg = 'dup' in opt.dbg
    g = Gen(opt)
    txt = g.build()
    open(opt.o, 'w').write(txt)
    print('wrote', opt.o, len(txt), 'bytes')


if __name__ == '__main__':
    main()
```

```python
import sys, os, struct, argparse
sys.path.insert(0, os.path.dirname(os.path.abspath(__file__)))
from asmlib import I, WaitTag, Touch, Prog, resolve_waits, resolve_hazards
import cin16, fixalign

KNAME = 'standalone__deep_cross_xdeepfm__recsys_kernel'
LDS_TOTAL = 163840

XSLOT = 320 * 128
WR = 3 * XSLOT + 8192
WSLOT = 32 * 256
L_BIAS = 3 * XSLOT
L_W2 = L_BIAS + 256
RB = L_W2 + 256
assert WR % 32768 == 0 and WR + 4 * WSLOT <= LDS_TOTAL
WSP = 16640
assert RB + 2560 <= LDS_TOTAL

W2P = 1536
SSZ = 677 * 64
FRS = 0
V3OFF = 0
A1 = 6144
FR = A1
FRL = FR + 33 * 1024
A3 = FRL + 2048
SG = A3
A2 = SG + SSZ
SQ = A2
V2S = SQ + SSZ
L_WCO = V2S + 832
L_FLG = L_WCO + 192
L_MX = L_FLG + 16
RC = L_FLG + 64
XB = V2S + 2496
XPP = 1056
XBSZ = 3 * XPP + 7 * 128
IMG = A3
IMGP = 160
IMGSZ = 33 * IMGP
XB2 = IMG + 8 * IMGSZ
PART = XB2 + 8 * XBSZ
XOFF = lambda f: (f & 3) * XPP + (f >> 2) * 128
assert RC + 512 <= V2S + 1664
assert XB + 8 * XBSZ <= LDS_TOTAL and XB % 16 == 0 and A2 % 64 == 0 and A3 % 64 == 0 and L_WCO % 16 == 0 and V2S % 64 == 0
assert PART + 8 * 1536 <= V2S + 832 and IMGSZ % 32 == 0 and XB2 % 16 == 0

S_WAVE = 3
S_IDX, S_TAB, S_CIN, S_WCO, S_W1, S_B1, S_W2, S_BO, S_OUT, S_DBG, S_WS = 4, 6, 8, 10, 12, 14, 16, 18, 20, 22, 24
S_MB, S_R = 26, 27
SRD_IDX, SRD_TAB, SRD_CIN, SRD_WCO, SRD_W, SRD_B1, SRD_W2, SRD_OUT, SRD_WS, SRD_DBG = 28, 32, 36, 40, 44, 48, 52, 56, 60, 64
S_T0, S_T1, S_T2, S_T3 = 68, 69, 70, 71
S_LOOP, S_IDXOFF, S_WSOFF, S_WMB, S_XM0, S_N0, S_C0, S_CW, S_BOUT, S_TW = 72, 73, 74, 75, 76, 77, 78, 79, 80, 81
S_EX = 82
S_GRP, S_RC = 84, 85
S_ST = 86
S_M26, S_MASK = 90, 92
S_SAMP, S_STG, S_STG9, S_TGT = 94, 95, 96, 97
S_M26B = 98
S_GW = 100
S_TAGT = 0
S_TAG = 1
S_PW = 101
S_PX = 77
S_PXE = 73

GELU_C0 = -2.0 * 0.7978845608028654 * 1.4426950408889634
GELU_C1 = GELU_C0 * 0.044715


def f32hex(x):
    return '0x%08x' % struct.unpack('<I', struct.pack('<f', x))[0]


def vr(a, n):
    return f'v[{a}:{a + n - 1}]' if n > 1 else f'v{a}'


def srd(a):
    return f's[{a}:{a + 3}]'


def flat(gs):
    res = []
    for c in gs:
        if isinstance(c, (tuple, list)):
            res += flat(c)
        else:
            res.append(c)
    return res


def interleave(a, b):
    out = []
    ia = ib = 0
    na, nb = len(a), len(b)
    while ia < na or ib < nb:
        if ib >= nb or (ia < na and ia * nb <= ib * na):
            out.append(a[ia]); ia += 1
        else:
            out.append(b[ib]); ib += 1
    return out


SLOTS = []
for j in range(0, 26, 2):
    for s in range(0, 14 if j <= 12 else 13):
        SLOTS.append((j, (j + s) % 26))
assert len(SLOTS) == 176
DUP_SLOT = SLOTS.index((12, 25))
assert all((d * 2521) >> 16 == d // 26 for d in range(800))
assert all((d * 10923) >> 16 == d // 6 for d in range(64))
assert all((d * 5042) >> 16 == d // 13 for d in range(170))
assert all((d * 3277) >> 16 == d // 20 for d in range(264))


DOC = '''; ---------------------------------------------------------------------------------------------
; Generated by tools/gen24.py (own generator; waits / hazard nops derived from instruction traces).
;
;       U[i,j,k] = sum_h W2[h,i,j] V3[h,k]
;   Both quadratic forms use the 351 distinct products x_j x_k (j<=k) with symmetrised weights, evaluated by
;   DNN branch: full bf16 GEMM + bias + tanh-GELU (x / (1 + exp(-2u))) + dot with w_dnn2; four terms of one
;   sample share a reciprocal (common denominator; exp(-2u) saturates at 2^24, i.e. at fp32 rounding level).
;   their own producer) and counters in d_debug; the last arriver of a row block adds up and writes d_out.
;   L_tables holds constant per-lane LDS address tables (functions of the lane id only).
; ---------------------------------------------------------------------------------------------
'''


class Gen:
    def __init__(self, opt):
        self.opt = opt
        self.P = Prog()
        self.late = []

    def seq(self, lines):
        return [self.P.add(l) for l in flat(lines)]

    def build_srd(self, dst, ptr, size):
        return [f's_mov_b32 s{dst}, s{ptr}', f's_and_b32 s{dst + 1}, s{ptr + 1}, 0xffff',
                f's_mov_b32 s{dst + 2}, {size}', f's_mov_b32 s{dst + 3}, 0x20000']

    def stamp(self, slot):
        if not self.opt.stamps or (self.opt.few and slot not in [int(x) for x in self.opt.few.split(',')]):
            return []
        return [f's_memtime s[{S_ST}:{S_ST + 1}]', f's_memrealtime s[{S_ST + 2}:{S_ST + 3}]', 's_waitcnt lgkmcnt(0)',
                f'v_writelane_b32 v252, s{S_ST}, {slot}', f'v_writelane_b32 v253, s{S_ST + 2}, {slot}']

    def probe(self, name, wave=4):
        if self.opt.tailp:
            return ['s_memrealtime s[88:89]', 's_waitcnt lgkmcnt(0)'] if name in self.opt.probe.split(',') else []
        if self.opt.cyc:
            a_, b_, _ = self.opt.cyc.split(',')
            return ['s_memtime s[86:87]', 's_waitcnt lgkmcnt(0)'] if name == a_ else ['s_memtime s[88:89]', 's_waitcnt lgkmcnt(0)'] if name == b_ else []
        if self.opt.probe != name and not (self.opt.probe == 'end' and name in ('dend', 'cend2')):
            return []
        return ['s_memrealtime s[88:89]', 's_waitcnt lgkmcnt(0)']

    def stamp_flush(self):
        if not self.opt.stamps:
            return []
        L = self.build_srd(SRD_WS, S_WS, 0x10000000)
        L += [f's_lshl_b32 s{S_C0}, s2, 3', f's_add_u32 s{S_C0}, s{S_C0}, s{S_WAVE}',
              f's_lshl_b32 s{S_C0}, s{S_C0}, 8', f's_add_u32 s{S_C0}, s{S_C0}, 0x100000',
              'v_lshlrev_b32 v254, 3, v0', 's_mov_b32 exec_hi, 0',
              f'buffer_store_dwordx2 v[252:253], v254, {srd(SRD_WS)}, s{S_C0} offen', 's_mov_b32 exec_hi, -1']
        return L

    def stamp0(self):
        if not self.opt.stamps:
            return []
        return ['v_mov_b32 v252, 0xcdcdcdcd', 'v_mov_b32 v253, 0xcdcdcdcd',
                f'v_writelane_b32 v252, s{S_ST}, 0', f'v_writelane_b32 v253, s{S_ST + 2}, 0'] + self.stamp(15)

    def tlb2(self, t):
        L = self.build_srd(SRD_WS, S_WS, 0x10000000) + self.build_srd(SRD_OUT, S_OUT, 8192) + self.build_srd(SRD_DBG, S_DBG, 256)
        L += [f's_load_dword s{S_BOUT}, s[{S_BO}:{S_BO + 1}], 0', f'v_mov_b32 v{t}, 0', 's_mov_b64 exec, 1',
              f's_mov_b32 s{S_TW}, 0x80000',
              f'buffer_load_dword v{t + 1}, v{t}, {srd(SRD_WS)}, s{S_TW} offen',
              f'buffer_load_dword v{t + 2}, v{t}, {srd(SRD_OUT)}, 0 offen',
              's_mov_b64 exec, -1']
        return L

    def tlb1(self, vtmp, vdst):
        if not self.opt.etlb:
            return self.build_srd(SRD_TAB, S_TAB, 100000 * 128)
        return self.build_srd(SRD_TAB, S_TAB, 100000 * 128) + [
            f'v_mov_b32 v{vtmp}, s{S_BOUT}', f'buffer_load_dword v{vdst}, v{vtmp}, {srd(SRD_TAB)}, 0 offen']

    def gettag(self, lab, t, VT):
        return [f's_cmp_lg_u32 s{S_WAVE}, 0', f's_cbranch_scc1 {lab}',
                f's_memrealtime s[{S_TAGT}:{S_TAGT + 1}]'] + self.build_srd(SRD_DBG, S_DBG, 256) + [
                f's_lshl_b32 s{S_TW}, s{S_MB}, 2', f'v_mov_b32 v{t}, s{S_TW}', 's_waitcnt lgkmcnt(0)',
                f's_or_b32 s{S_TAG}, s{S_TAGT}, 1', f'v_mov_b32 v{VT}, s{S_TAG}', f'v_mov_b32 v{VT + 1}, 0',
                's_mov_b64 exec, 1',
                f'buffer_atomic_cmpswap v[{VT}:{VT + 1}], v{t}, {srd(SRD_DBG)}, 0 offen offset:128 sc0',
                's_mov_b64 exec, -1', f'{lab}:']

    def prologue(self):
        L = []
        if self.opt.stamps:
            L += [f's_memtime s[{S_ST}:{S_ST + 1}]', f's_memrealtime s[{S_ST + 2}:{S_ST + 3}]']
        L += ['s_cmp_ge_u32 s2, 256', 's_cbranch_scc1 L_end',
              's_load_dwordx16 s[4:19], s[0:1], 0',
              's_load_dwordx4 s[20:23], s[0:1], 64',
              's_load_dwordx2 s[24:25], s[0:1], 80',
              'v_lshrrev_b32 v1, 6, v0']
        if self.opt.cpf:
            L += [f's_getpc_b64 s[{S_MASK}:{S_MASK + 1}]', 'L_pc:',
                  f's_and_b32 s{S_T0}, s2, 0xf8', f'v_add_u32 v2, s{S_T0}, v1', 'v_and_b32 v3, 32, v0', 'v_lshl_add_u32 v2, v3, 3, v2', 'v_lshlrev_b32 v2, 7, v2',
                  f'v_min_u32 v2, L_end-L_pc, v2',
                  f'v_mov_b32 v3, s{S_MASK + 1}',
                  f'v_add_co_u32 v2, vcc, s{S_MASK}, v2', 'v_addc_co_u32 v3, vcc, 0, v3, vcc',
                  'global_load_dword v251, v[2:3], off']
        if self.opt.skew:
            L += ['s_memtime s[86:87]' if self.opt.cyc else 's_memrealtime s[86:87]', 's_mov_b32 s88, 0']
        L += ['v_and_b32 v0, 63, v0',
              f'v_readfirstlane_b32 s{S_WAVE}, v1',
              f's_and_b32 s{S_T0}, s2, 7', f's_lshr_b32 s{S_T1}, s2, 3', f's_xor_b32 s{S_T1}, s{S_T1}, {31 * self.opt.rev}',
              f's_and_b32 s{S_BOUT}, s2, 0xf8', f's_add_u32 s{S_BOUT}, s{S_BOUT}, s{S_WAVE}', f's_lshl_b32 s{S_BOUT}, s{S_BOUT}, {self.opt.etlb}',
              f's_min_u32 s{S_T2}, s{S_T0}, 1', f's_add_u32 s{S_T3}, s{S_T1}, s{S_T2}',
              f's_cmp_ge_u32 s{S_T3}, 22', 's_cbranch_scc1 L_cin',
              f's_mul_i32 s{S_T0}, s{S_T0}, 21', f's_add_u32 s{S_T0}, s{S_T0}, s{S_T3}',
              ]
        if self.opt.band == 0:
            L += [f's_mul_i32 s{S_MB}, s{S_T0}, 5042', f's_lshr_b32 s{S_MB}, s{S_MB}, 16',
                  f's_mul_i32 s{S_T1}, s{S_MB}, 13', f's_sub_u32 s{S_R}, s{S_T0}, s{S_T1}']
        else:
            assert all((d * 9363) >> 16 == d // 7 for d in range(91)) and all((d * 10923) >> 16 == d // 6 for d in range(78))
            L += [f's_sub_u32 s{S_T1}, 168, s{S_T0}', f's_cmp_lt_u32 s{S_T0}, 91', f's_cselect_b32 s{S_T0}, s{S_T0}, s{S_T1}',
                  f's_cselect_b32 s{S_T1}, 0, 1560', f's_cselect_b32 s{S_T2}, 7, 6', f's_cselect_b32 s{S_R}, 0, 7', f's_add_u32 s{S_T1}, s{S_T1}, 9363',
                  f's_mul_i32 s{S_MB}, s{S_T0}, s{S_T1}', f's_lshr_b32 s{S_MB}, s{S_MB}, 16', f's_mul_i32 s{S_T1}, s{S_MB}, s{S_T2}',
                  f's_add_u32 s{S_R}, s{S_R}, s{S_T0}', f's_sub_u32 s{S_R}, s{S_R}, s{S_T1}']
        return self.seq(L)

    def dnn(self):
        o = self.opt
        vW = [1, 2, 3, 4]
        vX = [[5, 6], [7, 8]]
        vPa, vPc = 9, 10
        WF, XA, ACC = 16, 48, 88
        W2F = WF
        KC0, KC1, KONE = 12, 14, 248
        SUMP, GT = 32, 52
        vIdxOff, vCh, vWD, vBL = 1, [2, 3], [4, 5], 11
        ST, VO = 16, 56
        T = 100
        g, i4, q = T + 16, T + 17, T + 18
        PI = T + 8

        def acc(tn, tm):
            return ACC + (tm * 4 + tn) * 4

        def small(srd_, dst):
            return [f's_mov_b32 m0, {dst}', 's_mov_b64 exec, 0xffff',
                    I(f'buffer_load_dwordx4 v{vBL}, {srd(srd_)}, s{S_N0} offen lds', tag='BIAS'), 's_mov_b64 exec, -1']
        L = [f's_lshl_b32 s{S_N0}, s{S_R}, 8', f's_mul_i32 s{S_T3}, s{S_MB}, 320',
             f'v_lshrrev_b32 v{g}, 4, v0', f'v_lshlrev_b32 v{vBL}, 4, v0', f's_and_b32 s{S_CW}, s{S_WAVE}, 3',
             f's_cmp_ge_u32 s{S_WAVE}, 4', 's_cbranch_scc1 L_ld']
        c0 = self.seq(L)
        PI = T

        RG, CG = S_T0, S_T1
        L = [f's_mul_i32 s{S_T2}, s{S_WAVE}, 13', f'v_min_u32 v{q}, 12, v0', f'v_add_u32 v{q}, s{S_T2}, v{q}',
             f'v_lshrrev_b32 v{i4}, 1, v{q}', f'v_mul_u32_u24 v{i4}, 96, v{i4}', f'v_lshl_add_u32 v{q}, v{q}, 2, v{i4}',
             f's_mul_i32 s{S_C0}, s{S_R}, 25', f's_min_u32 s{S_C0}, s{S_C0}, 294',
             f's_add_u32 s{S_C0}, s{S_C0}, s{S_T3}', f's_mul_i32 s{S_C0}, s{S_C0}, 104',
             f's_lshl_b32 s{S_T2}, s{S_MB}, 2', f's_add_u32 s{S_T2}, s{S_T2}, s{S_WAVE}', f's_add_u32 s{S_T2}, s{S_T2}, {o.ew0 * 32}',
             f's_mul_i32 s{S_T2}, s{S_T2}, 3328', f's_add_u32 s{S_T2}, s{S_T2}, s{S_N0}', f's_mov_b32 s{S_TW}, {52 * 3328}',
             f'v_lshrrev_b32 v{T + 12}, 1, v0', f'v_mul_lo_u32 v{T + 12}, s{S_TW}, v{T + 12}', f'v_and_b32 v{i4}, 1, v0', f'v_lshl_add_u32 v{T + 12}, v{i4}, 7, v{T + 12}',
             f'v_add_u32 v{T + 12}, s{S_T2}, v{T + 12}', 's_waitcnt lgkmcnt(0)']
        ct = [int(x) for x in o.ct + o.ct2]
        L += self.build_srd(SRD_IDX, S_IDX, 4096 * 104)
        if ct:
            L += [f'buffer_load_dwordx4 {vr(PI, 4)}, v{q}, {srd(SRD_IDX)}, s{S_C0} offen']
        if ct and max(ct) > 3:
            L += [f'buffer_load_dwordx4 {vr(PI + 4, 4)}, v{q}, {srd(SRD_IDX)}, s{S_C0} offen offset:16']
        L += self.tlb1(T + 14, T + 15)
        if o.ptl:
            L += [f'v_lshlrev_b32 v{T + 14}, {o.ptl}, v0', f's_lshl_b32 s{S_T2}, s{S_WAVE}, {o.ptl - 2}', f's_mov_b64 exec, {(1 << min(64, (12800000 >> o.ptl) + 1)) - 1}',
                  f'buffer_load_dword v{T + 15}, v{T + 14}, {srd(SRD_TAB)}, s{S_T2} offen', 's_mov_b64 exec, -1']
        touch = [x for k in ct for x in (f'v_lshlrev_b32 v{PI + k}, 7, v{PI + k}', f'buffer_load_dword v{acc(0, 7) + k}, v{PI + k}, {srd(SRD_TAB)}, 0 offen')]
        touch, touch2 = touch[:2 * len(o.ct)], touch[2 * len(o.ct):]
        L += self.build_srd(SRD_B1, S_B1, 3328) + small(SRD_B1, L_BIAS)
        if o.ew:
            L += self.build_srd(SRD_W, S_W1, 1664 * 3328)
            ewl = [f's_mov_b64 exec, {(1 << (2 * o.ew)) - 1}', f'buffer_load_dword v{acc(0, 7) + 9}, v{T + 12}, {srd(SRD_W)}, 0 offen', 's_mov_b64 exec, -1']
            if o.ewat == 0:
                L += ewl
            elif o.ewat == 1:
                touch = touch + ewl
            else:
                touch2 = touch2 + ewl
        chead = self.seq(L + (['s_barrier'] if o.dbar0 else []) + ['s_branch L_cmp'])
        self.ldat = len(self.P.static)
        L = ['L_cmp:'] + self.stamp0()
        L += [f's_and_b32 s{RG}, s{S_WAVE}, 1', f's_lshr_b32 s{CG}, s{S_WAVE}, 1',
              f'v_bfe_u32 v{i4}, v0, 2, 2', f'v_lshl_add_u32 v{q}, v{g}, 3, v{i4}', f'v_lshlrev_b32 v{q}, 8, v{q}',
              f'v_bfe_u32 v{i4}, v0, 2, 3', f's_lshl_b32 s{S_T2}, s{CG}, 2', f'v_xor_b32 v{i4}, s{S_T2}, v{i4}',
              f'v_lshl_add_u32 v{q}, v{i4}, 5, v{q}', f'v_and_b32 v{i4}, 3, v0', f'v_lshl_add_u32 v{q}, v{i4}, 3, v{q}',
              f'v_add_u32 v{vW[0]}, {WR}, v{q}']
        L += [f'v_xor_b32 v{vW[tn]}, {32 * tn}, v{vW[0]}' for tn in range(1, 4)]
        L += [f's_lshl_b32 s{S_T2}, s{CG}, 7', f's_add_u32 s{S_T2}, s{S_T2}, {L_BIAS}', f'v_lshlrev_b32 v{q}, 3, v{g}', f'v_add_u32 v{vPa}, s{S_T2}, v{q}',
              f'v_and_b32 v{q}, 15, v0', f'v_lshlrev_b32 v{q}, 7, v{q}',
              f'v_bfe_u32 v{i4}, v0, 1, 3', f'v_xor_b32 v{i4}, v{i4}, v{g}', f'v_lshl_add_u32 v{q}, v{i4}, 4, v{q}',
              f's_mul_i32 s{S_T2}, s{RG}, 20480', f'v_add_u32 v{vX[0][0]}, s{S_T2}, v{q}', f'v_xor_b32 v{vX[1][0]}, 64, v{vX[0][0]}',
              f'v_add_u32 v{vX[0][1]}, {2 * XSLOT}, v{vX[0][0]}', f'v_add_u32 v{vX[1][1]}, {2 * XSLOT}, v{vX[1][0]}',
              f's_mul_i32 s{S_T2}, s{S_WAVE}, 640', f's_add_u32 s{S_T2}, s{S_T2}, {RB}',
              f'v_and_b32 v{q}, 15, v0', f'v_lshlrev_b32 v{q}, 2, v{q}', f'v_add_u32 v{q}, s{S_T2}, v{q}',
              f'v_lshrrev_b32 v{i4}, 5, v0', f'v_lshl_add_u32 v{q}, v{i4}, 6, v{q}', f'v_bfe_u32 v{i4}, v0, 4, 1', f'v_lshl_add_u32 v{vPc}, v{i4}, 7, v{q}',
              f's_mov_b32 s{S_LOOP}, 0',
              f'v_mov_b32 v{KC0}, {f32hex(GELU_C0)}', f'v_mov_b32 v{KC0 + 1}, {f32hex(GELU_C0)}',
              f'v_mov_b32 v{KC1}, {f32hex(GELU_C1)}', f'v_mov_b32 v{KC1 + 1}, {f32hex(GELU_C1)}']

        def pkreads(off, dst):
            return [f'ds_read_b64 {vr(dst + 4 * tn + 2, 2)}, v{vPa} offset:{off + 32 * tn}' for tn in range(4)]

        def unp(dst):
            c = []
            for tn in range(4):
                r = dst + 4 * tn
                c += [f'v_lshlrev_b32 v{r}, 16, v{r + 2}', f'v_and_b32 v{r + 1}, 0xffff0000, v{r + 2}',
                      f'v_lshlrev_b32 v{r + 2}, 16, v{r + 3}', f'v_and_b32 v{r + 3}, 0xffff0000, v{r + 3}']
            return c
        L += touch + self.stamp(6)
        CT_, CW_, CD_ = 248, 11, 251
        if o.tch == 2:
            L += [f's_mul_i32 s{S_T2}, s{S_WAVE}, 13', f's_add_u32 s{S_T2}, s{S_T2}, s{S_R}', f's_min_u32 s{S_T2}, s{S_T2}, 39', f's_lshl_b32 s{S_T2}, s{S_T2}, 3',
                  f's_add_u32 s{S_T2}, s{S_T2}, s{S_T3}', f's_mul_i32 s{S_T2}, s{S_T2}, 104',
                  f'v_lshrrev_b32 v{q}, 3, v0', f'v_mul_u32_u24 v{q}, 72, v{q}', f'v_lshl_add_u32 v{q}, v0, 2, v{q}']
            L += [f'buffer_load_dword v{CT_ + r}, v{q}, {srd(SRD_IDX)}, s{S_T2} offen offset:{4 * min(o.tf0 + 8 * r, 18)}' for r in range(3)]
            L += [f'v_add_u32 v{CW_}, {(o.tw0 - o.ew0) * 32 * 3328}, v{T + 12}', f's_mov_b32 s{S_RC}, 0']
            touch2 = touch2 + [f'v_lshlrev_b32 v{CT_ + r}, 7, v{CT_ + r}' for r in range(3)] + [Touch(f'v{CD_}')]
        if o.st:
            SR = [36, 40, 52, 56, 60, 64, 96]
            L += [f's_mul_i32 s{S_T2}, s{S_WAVE}, 13', f's_lshr_b32 s{S_T2}, s{S_T2}, 1', f's_mul_i32 s{S_T2}, s{S_T2}, 104', f's_add_u32 s{S_T2}, s{S_T2}, s{S_C0}', f's_add_u32 s{S_T2}, s{S_T2}, {4 * o.sf0}']
            for r in range(7):
                L += [f's_buffer_load_dwordx4 s[{SR[r]}:{SR[r] + 3}], {srd(SRD_IDX)}, s{S_T2}', f's_add_u32 s{S_T2}, s{S_T2}, 104']
            L += ['s_waitcnt lgkmcnt(0)']
            for f_ in range(o.st):
                for r in range(7):
                    L += [f's_lshl_b32 s{SR[r] + f_}, s{SR[r] + f_}, 7', f's_buffer_load_dword s{SR[r] + f_}, {srd(SRD_TAB)}, s{SR[r] + f_}']
        BI = [WaitTag(vm_tags=['BIAS'])] + pkreads(0, acc(0, 9)) + unp(acc(0, 9)) + [f'v_mov_b64 {vr(acc(0, 8) + r, 2)}, {vr(acc(0, 9) + r, 2)}' for r in range(0, 16, 2)]

        def rX(p, k):
            xs = p % 3
            return f'ds_read_b128 {vr(XA + 4 * (k % 10), 4)}, v{vX[k % 2][xs // 2]} offset:{(xs % 2) * XSLOT + (k // 2) * 2048}'

        def rW(tn):
            return [f'ds_read_b64_tr_b16 {vr(WF + 16 * par + 4 * tn + 2 * rd, 2)}, v{vW[tn]} offset:{par * WSLOT + rd * 1024}' for par in range(2) for rd in range(2)]
        tog = lambda tn: f'v_xor_b32 v{vW[tn]}, {2 * WSLOT}, v{vW[tn]}'

        def dec(gi):
            G, tn, a_, par = gi // 16, (gi // 4) % 4, (gi // 2) % 2, gi % 2
            if o.bou:
                par ^= a_ ^ (G == 4)
                a_ ^= tn & 1
            return G, tn, a_, par
        lastx = {4 * dec(gi)[0] + 2 * dec(gi)[2] + dec(gi)[3]: gi for gi in range(80)}

        def mf(gi, first=False):
            G, tn, a_, par = dec(gi)
            d = acc(tn, 2 * G + a_)
            if first and gi % 2 == 0 and G < 4:
                return f'v_mfma_f32_16x16x32_bf16 {vr(d, 4)}, {vr(WF + 16 * par + 4 * tn, 4)}, {vr(XA + 4 * ((4 * G + 2 * a_ + par) % 10), 4)}, {vr(acc(tn, 9), 4)}'
            return f'v_mfma_f32_16x16x32_bf16 {vr(d, 4)}, {vr(WF + 16 * par + 4 * tn, 4)}, {vr(XA + 4 * ((4 * G + 2 * a_ + par) % 10), 4)}, {vr(d, 4)}'
        SH = [11, 248, 249, 250]
        nsh = o.nsh

        def shadow():
            c = []
            for b0 in range(0, nsh, 4):
                E = [(ACC + e, SH[e - b0]) for e in range(b0, min(b0 + 4, nsh))]
                for op in ('v_mul_f32 T, X, X', f'v_fma_f32 T, T, v{KC1}, v{KC0}', 'v_mul_f32 T, T, X', 'v_exp_f32 T, T', 'v_add_f32 T, 1.0, T', 'v_rcp_f32 T, T', 'v_mul_f32 X, X, T'):
                    c += [(op.replace('T', f'v{t}').replace('X', f'v{x}'), 8 if ('exp' in op or 'rcp' in op) else 4) for x, t in E]
            return c

        def U_(t):
            i_ = I(t)
            i_.wr = []
            return i_

        def cpair(p, kind, loopend=False):
            S = []
            ev = {}
            if kind == 'first':
                g_ = o.sbg + 1
                for k in range(2 * o.sa, 10):
                    ev[g_] = rX(p, k); g_ += 1
            else:
                for i_, x in enumerate(rW(3)[2:]):
                    ev[i_] = x
                for i_, k in enumerate(range(6, 10)):
                    ev[2 + i_] = rX(p, k)
            for k in range(10):
                g_ = lastx[k]
                while g_ in ev or (kind == 'first' and g_ <= o.sbg):
                    g_ += 1
                ev[g_] = rX(p, k + 10)
            BG = 48 + o.bgap if o.bou else 46 + o.bgap
            if kind != 'last':
                ev[BG], ev[BG + 1] = rX(p + 1, 0), rX(p + 1, 1)
                for k in range(2, 6):
                    ev[lastx[10 + k]] = rX(p + 1, k)
                for tn in range(4):
                    for i_, x in enumerate(rW(tn)):
                        if 66 + 4 * tn + i_ < 80:
                            ev[66 + 4 * tn + i_] = x
            sh_ = shadow() if kind == 'last' else []
            for gi in range(80):
                S.append(mf(gi, kind == 'first'))
                t = 4
                if o.dwalk and kind != 'last' and gi in (24, 40, 64, 7):
                    S += [f'L_dw{self.ndw}:', f's_cbranch_execz L_dw{self.ndw + 1}']
                    self.ndw += 1
                if kind == 'first' and gi == o.sbg:
                    S += (self.stamp(20) if o.itst == 2 else []) + ['s_barrier'] + (self.stamp(21) if o.itst == 2 else [])
                if kind != 'last' and gi == BG - 1:
                    st_ = lambda k: ([f's_cmp_lg_u32 s{S_LOOP}, 0', f's_cbranch_scc1 L_ns{k}'] + self.stamp(k) + [f'L_ns{k}:']) if (o.itst == 2 and p < 3) else []
                    S += ['s_waitcnt lgkmcnt(0)'] + st_(22 + 2 * p) + ['s_barrier'] + st_(23 + 2 * p)
                if gi in ev:
                    S.append(ev[gi]); t += 8
                if kind != 'last' and 8 <= gi < 12:
                    S.append(tog(gi - 8))
                if o.tch == 2 and kind == 'mid' and gi == o.tgap:
                    if p == 1:
                        S += [f's_bitcmp1_b32 {o.tmask:#x}, s{S_LOOP}', 's_cbranch_scc1 L_ctx', 'L_ctxr:']
                    if p == 2:
                        S += ['s_mov_b64 exec, 0xff', U_(f'buffer_load_dword v{CD_}, v{CW_}, {srd(SRD_W)}, s{S_RC} offen'), 's_mov_b64 exec, -1', f's_add_u32 s{S_RC}, s{S_RC}, {208 * 3328}']
                if o.tch == 2 and kind == 'first' and gi == o.tgap:
                    S += ['s_mov_b64 exec, 0xff', U_(f'buffer_load_dword v{CD_}, v{CW_}, {srd(SRD_W)}, s{S_RC} offen'), 's_mov_b64 exec, -1', f's_add_u32 s{S_RC}, s{S_RC}, {208 * 3328}']
                if gi % 2 == 0 and gi + 2 < 80:
                    n_ = gi + 2
                    G, tn, a_ = n_ // 16, (n_ // 4) % 4, (n_ // 2) % 2
                    if tn == 0:
                        S.append(Touch(vr(XA + 4 * ((4 * G + 2 * a_) % 10), 8)))
                    if G == 0 and a_ == 0:
                        S.append(Touch(vr(WF + 16 + 4 * tn, 4)))
                if gi == 78 and kind != 'last':
                    S.append(Touch(vr(WF + 16, 4)))
                if loopend and gi == 48:
                    S += [f's_add_u32 s{S_LOOP}, s{S_LOOP}, 1', f's_cmp_lt_u32 s{S_LOOP}, 8']
                t = max(t, 8)
                while sh_ and gi >= o.sh0 and t + sh_[0][1] <= 16:
                    x, c_ = sh_.pop(0)
                    S.append(x); t += c_
            S += [x for x, _ in sh_]
            if kind == 'last':
                print('shadow left', len(sh_))
            return S
        self.ndw = 0
        if o.dwalk:
            L += ['s_mov_b64 exec, 0'] + [x for q_ in range(3) for x in (f's_cmp_eq_u32 s{S_WAVE}, {q_}', f's_cbranch_scc1 L_dw{4 * q_}')] + ['s_branch L_dw12', 'L_dw16:', 's_mov_b64 exec, -1']
        L += self.stamp(1) + ['s_barrier'] + [x for tn in range(4) for x in rW(tn)] + BI + touch2 + ['s_waitcnt lgkmcnt(0)', f's_setprio {o.cprio}', 's_barrier'] + self.stamp(2)
        L += [rX(0, k) for k in range(2 * o.sa)] + cpair(0, 'first')
        cpre = self.seq(L)
        body = self.seq(['L_dnn_loop0:'])
        for p in range(1, 4):
            S = cpair(p, 'mid', p == 3)
            if p == 3:
                if o.stamps and o.itst == 1:
                    i_ = S.index('s_barrier')
                    S = S[:i_] + [f's_memtime s[{S_ST}:{S_ST + 1}]', f's_memrealtime s[{S_ST + 2}:{S_ST + 3}]', f's_or_b32 m0, s{S_LOOP}, 16', 's_waitcnt lgkmcnt(0)',
                                  f'v_writelane_b32 v252, s{S_ST}, m0', f'v_writelane_b32 v253, s{S_ST + 2}, m0', f's_cmp_lt_u32 s{S_LOOP}, 8'] + S[i_:]
                S += ['s_cbranch_scc1 L_dnn_loop0']
            body += self.seq(S)
        tc = c0 + chead + cpre + body * 2 + self.seq(['L_tail:'])
        tc += self.seq((['s_waitcnt vmcnt(0)'] if o.tch == 2 else []) + cpair(25, 'last') + pkreads(256, W2F) + [f'v_mov_b32 v{KONE}, 1.0', f'v_mov_b32 v{KONE + 1}, 1.0'])
        if o.burn:
            bl = [f's_movk_i32 s{S_LOOP}, {o.burn}', 'L_burn:'] + [f'v_mfma_f32_16x16x32_bf16 {vr(XA + 32 + 4 * (k % 2), 4)}, {vr(WF + 16 + 4 * (k % 4), 4)}, {vr(XA + 4 * (k // 4), 4)}, 0' for k in range(32)]
            tc += self.seq(bl + [f's_sub_u32 s{S_LOOP}, s{S_LOOP}, 1', f's_cmp_lg_u32 s{S_LOOP}, 0', 's_cbranch_scc1 L_burn'])
        tc += self.seq(['L_epi:'] + self.stamp(3))

        p2 = lambda r: vr(r, 2)
        seen = set()

        def gelu(groups):
            L = []
            for k, vals in enumerate(groups):
                tb = GT + (k % 2) * 16
                V_ = [(x, w, s_, tb + 4 * i_, tb + 4 * i_ + 2) for i_, (x, w, s_) in enumerate(vals)]
                for (x, w, s_, t, u) in V_:
                    L.append(f'v_pk_mul_f32 {p2(t)}, {p2(x)}, {p2(x)}')
                for (x, w, s_, t, u) in V_:
                    L.append(f'v_pk_fma_f32 {p2(t)}, {p2(t)}, {p2(KC1)}, {p2(KC0)}')
                for (x, w, s_, t, u) in V_:
                    L.append(f'v_pk_mul_f32 {p2(t)}, {p2(t)}, {p2(x)}')
                for (x, w, s_, t, u) in V_:
                    L += [f'v_exp_f32 v{t}, v{t}', f'v_exp_f32 v{t + 1}, v{t + 1}']
                for (x, w, s_, t, u) in V_:
                    L.append(f'v_pk_mul_f32 {p2(u)}, {p2(x)}, {p2(w)}')
                for (x, w, s_, t, u) in V_:
                    L.append(f'v_pk_add_f32 {p2(t)}, {p2(t)}, {p2(KONE)}')
                for (x, w, s_, t, u) in V_:
                    L += [f'v_rcp_f32 v{t}, v{t}', f'v_rcp_f32 v{t + 1}, v{t + 1}']
                for (x, w, s_, t, u) in V_:
                    if s_ in seen:
                        L.append(f'v_pk_fma_f32 {p2(s_)}, {p2(t)}, {p2(u)}, {p2(s_)}')
                    else:
                        L.append(f'v_pk_mul_f32 {p2(s_)}, {p2(t)}, {p2(u)}')
                        seen.add(s_)
            return L
        el = lambda tn, tm, d: (acc(tn, tm) + 2 * d, W2F + 4 * tn + 2 * d, SUMP + 2 * tm)
        allel = [el(tn, 2 * tp + a_, d) for tp in range(5) for tn in range(4) for d in range(2) for a_ in range(2)]
        rest = [e for e in allel if e[0] >= ACC + nsh]
        if o.rshare:
            assert nsh % 8 == 0
            KS = 84
            quads = [[el(2 * h + t_, tm, d) for t_ in range(2) for d in range(2)] for tm in range(10) for h in range(2)]
            quads = [q_ for q_ in quads if q_[0][0] >= ACC + nsh]
            order = sorted(range(len(quads)), key=lambda i_: (i_ // 4, i_ % 2, i_))
            quads = [quads[i_] for i_ in order]
            L = [f'v_mov_b32 v{KS}, {f32hex(-24.0)}', f'v_mov_b32 v{KS + 1}, {f32hex(-24.0)}', f'v_mov_b32 v{KS + 2}, {f32hex(2.0 ** 24)}', f'v_mov_b32 v{KS + 3}, {f32hex(2.0 ** 24)}']
            for k in range(0, len(quads), 2):
                Qs = quads[k:k + 2]
                V_ = [(x, w, GT + 16 * j_ + 4 * i_, GT + 16 * j_ + 4 * i_ + 2) for j_, q_ in enumerate(Qs) for i_, (x, w, s_) in enumerate(q_)]
                L += [f'v_pk_mul_f32 {p2(t)}, {p2(x)}, {p2(x)}' for (x, w, t, u) in V_]
                L += [f'v_pk_fma_f32 {p2(t)}, {p2(t)}, {p2(KC1)}, {p2(KC0)}' for (x, w, t, u) in V_]
                L += [f'v_pk_fma_f32 {p2(t)}, {p2(t)}, {p2(x)}, {p2(KS)}' for (x, w, t, u) in V_]
                L += [f'v_exp_f32 v{t + e_}, v{t + e_} clamp' for (x, w, t, u) in V_ for e_ in range(2)]
                if k == 0:
                    L += unp(W2F)
                L += [f'v_pk_mul_f32 {p2(u)}, {p2(x)}, {p2(w)}' for (x, w, t, u) in V_]
                L += [f'v_pk_fma_f32 {p2(t)}, {p2(t)}, {p2(KS + 2)}, {p2(KONE)}' for (x, w, t, u) in V_]
                for prs in ([(0, 1), (2, 3)], [(0, 2)]):
                    M_ = [(V_[4 * j_ + a_], V_[4 * j_ + b_]) for j_ in range(len(Qs)) for a_, b_ in prs]
                    L += [f'v_pk_mul_f32 {p2(A_[3])}, {p2(A_[3])}, {p2(B_[2])}' for A_, B_ in M_]
                    L += [f'v_pk_fma_f32 {p2(A_[3])}, {p2(B_[3])}, {p2(A_[2])}, {p2(A_[3])}' for A_, B_ in M_]
                    L += [f'v_pk_mul_f32 {p2(A_[2])}, {p2(A_[2])}, {p2(B_[2])}' for A_, B_ in M_]
                L += [f'v_rcp_f32 v{V_[4 * j_][2] + e_}, v{V_[4 * j_][2] + e_}' for j_ in range(len(Qs)) for e_ in range(2)]
                for j_, q_ in enumerate(Qs):
                    s_, t, u = q_[0][2], V_[4 * j_][2], V_[4 * j_][3]
                    L.append(f'v_pk_fma_f32 {p2(s_)}, {p2(t)}, {p2(u)}, {p2(s_)}' if s_ in seen else f'v_pk_mul_f32 {p2(s_)}, {p2(t)}, {p2(u)}')
                    seen.add(s_)
        else:
            L = gelu([rest[i:i + 4] for i in range(0, len(rest), 4)])
            L = L[:20] + unp(W2F) + L[20:]
        for (x, w, s_) in allel:
            if x < ACC + nsh:
                L.append(f'v_pk_fma_f32 {p2(s_)}, {p2(x)}, {p2(w)}, {p2(s_)}' if s_ in seen else f'v_pk_mul_f32 {p2(s_)}, {p2(x)}, {p2(w)}')
                seen.add(s_)
        sm = lambda tm: SUMP + 2 * tm
        L += [f'v_add_f32 v{sm(tm)}, v{sm(tm)}, v{sm(tm) + 1}' for tm in range(10)]
        L += [f'v_permlane32_swap_b32 v{sm(tm)}, v{sm(tm + 1)}' for tm in range(0, 10, 2)]
        L += [f'v_add_f32 v{sm(tm)}, v{sm(tm)}, v{sm(tm + 1)}' for tm in (8, 0, 2, 4, 6)]
        L += [f'v_mov_b32 v{sm(9)}, v{sm(8)}', f'v_permlane16_swap_b32 v{sm(0)}, v{sm(2)}', f'v_permlane16_swap_b32 v{sm(4)}, v{sm(6)}',
              f'v_permlane16_swap_b32 v{sm(8)}, v{sm(9)}',
              f'v_add_f32 v{sm(0)}, v{sm(0)}, v{sm(2)}', f'v_add_f32 v{sm(4)}, v{sm(4)}, v{sm(6)}', f'v_add_f32 v{sm(8)}, v{sm(8)}, v{sm(9)}',
              f'ds_write_b32 v{vPc}, v{sm(0)}', f'ds_write_b32 v{vPc}, v{sm(4)} offset:256',
              's_mov_b32 exec_lo, 0xffff', 's_mov_b32 exec_hi, 0xffff', f'ds_write_b32 v{vPc}, v{sm(8)} offset:512', 's_mov_b64 exec, -1']
        L += ['s_waitcnt lgkmcnt(0)'] + self.stamp(4) + self.stamp_flush() + ['s_barrier', 's_endpgm']
        tc += self.seq(L)

        if o.tch == 2:
            self.seq(['L_ctx:', U_(f'buffer_load_dword v{CD_}, v{CT_}, {srd(SRD_TAB)}, 0 offen'), f'v_mov_b32 v{CT_}, v{CT_ + 1}', f'v_mov_b32 v{CT_ + 1}, v{CT_ + 2}', 's_branch L_ctxr'])
        def wstage(slot):
            c = []
            for u in range(2):
                c += [f's_add_u32 m0, s{S_WMB}, {WR + slot * WSLOT + u * 1024}',
                      I(f'buffer_load_dwordx4 v{vWD[u]}, {srd(SRD_W)}, s{S_WSOFF} offen lds', tag='W')]
            return c + [f's_add_u32 s{S_WSOFF}, s{S_WSOFF}, {32 * 3328}']

        Q, TM, BP = 16, 56, [12, 13]
        TI, vWT = 70, 84
        SP = [36, 37, 38, 39, 40, 41, 42, 43, 48, 49]
        SI = [94, 95, 96, 97, 98, 99, 100, 101, 82, 83]

        def xaddr(f, pcs):
            c = []
            for odd in range(2):
                p_ = f + 26 * odd
                for pc in pcs:
                    c.append(f'v_add_u32_dpp v{TM + pc}, v{Q + 4 * pc + p_ % 4}, v{vCh[0]} row_newbcast:{p_ >> 2} row_mask:0xf bank_mask:{(3, 12)[odd]:#x}')
            return c

        def xld(pc, slot, tag='X'):
            return [f's_add_u32 m0, s{S_XM0}, {slot * XSLOT + pc * 2048}',
                    I(f'buffer_load_dwordx4 v{TM + pc}, {srd(SRD_TAB)}, 0 offen lds', tag=tag)]
        idxl = [f'buffer_load_dwordx4 {vr(Q + 4 * pc, 4)}, v{BP[0]}, {srd(SRD_IDX)}, s{SI[pc // 2]} offen offset:{(pc % 2) * 1664}' for pc in range(10)]
        LO, HI = range(5), range(5, 10)
        NR = (22 + o.tf - 1) // o.tf
        lw = S_CW
        self.mk0 = len(self.P.static)
        L = ['L_ld:', f's_lshr_b32 s{S_T0}, s{lw}, 1', f's_mul_i32 s{S_T0}, s{S_T0}, 20', f's_and_b32 s{S_T1}, s{lw}, 1', f's_add_u32 s{S_T0}, s{S_T0}, s{S_T1}',
             f's_lshl_b32 s{S_XM0}, s{S_T0}, 10', f's_mul_i32 s{S_C0}, s{S_T3}, 104', f's_mul_i32 s{S_T0}, s{S_T0}, 832', f's_add_u32 s{SI[0]}, s{S_C0}, s{S_T0}',
             f'v_mul_u32_u24 v{q}, 48, v{g}', f'v_sub_u32 v{BP[0]}, v{vBL}, v{q}']
        L += [f's_add_u32 s{SI[k]}, s{SI[0]}, {k * 2 * 1664}' for k in range(1, 5)]
        L += [f's_and_b32 s{S_T2}, s{lw}, 1', f's_lshl_b32 s{S_T2}, s{S_T2}, 3',
              f'v_lshlrev_b32 v{i4}, 1, v{g}', f'v_or_b32 v{i4}, s{S_T2}, v{i4}', f'v_xor_b32 v{i4}, v{i4}, v0', f'v_and_b32 v{i4}, 15, v{i4}',
              f'v_mul_u32_u24 v{vWD[0]}, 3328, v{g}', f'v_lshl_add_u32 v{vWD[0]}, v{i4}, 4, v{vWD[0]}', f'v_add_u32 v{vWD[1]}, {4 * 3328}, v{vWD[0]}',
              f's_mul_i32 s{S_WSOFF}, s{lw}, {8 * 3328}', f's_add_u32 s{S_WSOFF}, s{S_WSOFF}, s{S_N0}', f's_lshl_b32 s{S_WMB}, s{lw}, 11',
              's_waitcnt lgkmcnt(0)']
        L += self.build_srd(SRD_IDX, S_IDX, 4096 * 104) + (['s_barrier'] if o.dbar0 == 1 else []) + idxl[:o.i0] + self.tlb1(T + 14, T + 15) + self.build_srd(SRD_W, S_W1, 1664 * 3328)
        for sl in range(o.w0):
            L += wstage(sl)
        L += self.stamp0() + (['s_barrier'] if o.dbar0 >= 2 else []) + ([Touch(vr(Q, 4))] if o.dbar0 == 3 else []) + idxl[o.i0:]
        for sl in range(o.w0, 2):
            L += wstage(sl)
        L += [f's_lshl_b32 s{S_T2}, s{S_T1}, 6',
              f'v_and_b32 v{q}, 7, v0', f'v_xor_b32 v{q}, v{q}, v{g}', f'v_lshlrev_b32 v{q}, 4, v{q}', f'v_xor_b32 v{vCh[0]}, s{S_T2}, v{q}', f'v_xor_b32 v{vCh[1]}, 64, v{vCh[0]}',
              f's_mov_b32 s{S_LOOP}, 0',
              f's_mul_i32 s{S_T2}, s{lw}, 13', f's_add_u32 s{S_T2}, s{S_T2}, s{S_R}', f's_min_u32 s{S_T2}, s{S_T2}, 39', f's_lshl_b32 s{S_T2}, s{S_T2}, 3',
              f's_add_u32 s{S_T2}, s{S_T2}, s{S_T3}', f's_mul_i32 s{S_GRP}, s{S_T2}, 104',
              f'v_lshrrev_b32 v{q}, {o.tf.bit_length() - 1}, v0', f'v_min_u32 v{q}, 7, v{q}', f'v_mul_u32_u24 v{q}, 104, v{q}',
              f'v_and_b32 v{i4}, {o.tf - 1}, v0', f'v_lshl_add_u32 v7, v{i4}, 2, v{q}',
              f's_lshl_b32 s{S_T2}, s{S_MB}, 2', f's_add_u32 s{S_T2}, s{S_T2}, s{lw}', f's_add_u32 s{S_T2}, s{S_T2}, {o.tw0 * 32}', f's_mul_i32 s{S_RC}, s{S_T2}, 3328',
              f's_add_u32 s{S_RC}, s{S_RC}, s{S_N0}', f's_mov_b32 s{S_T2}, {52 * 3328}',
              f'v_lshrrev_b32 v{q}, 1, v0', f'v_mul_lo_u32 v{q}, s{S_T2}, v{q}', f'v_and_b32 v{i4}, 1, v0', f'v_lshl_add_u32 v{vWT}, v{i4}, 7, v{q}']
        L += self.build_srd(SRD_W2, S_W2, 3328)
        L += [f's_mul_i32 s{S_T2}, s{lw}, {o.lpf * 128}', f's_add_u32 s{S_T2}, s{S_T2}, L_tail-L_pc', f'v_lshlrev_b32 v8, 7, v0', f'v_add_u32 v8, s{S_T2}, v8',
              f'v_mov_b32 v9, s{S_MASK + 1}', f'v_add_co_u32 v8, vcc, s{S_MASK}, v8', 'v_addc_co_u32 v9, vcc, 0, v9, vcc']
        sh = lambda pc, c_: f'v_lshlrev_b32 v{Q + 4 * pc + c_}, 7, v{Q + 4 * pc + c_}'
        for pc in range(10):
            L += [sh(pc, 0), sh(pc, 2), sh(pc, 1), sh(pc, 3)] + xaddr(0, [pc]) + xld(pc, 0, 'X0a' if pc < o.sa else 'X0')
            if pc == 0:
                L += self.stamp(6) + self.probe('i0')
            if pc == o.bwat:
                L += [WaitTag(vm_tags=['W']), 's_barrier']
        L += self.stamp(7) + self.probe('x0i')
        x1 = [x for pc in range(10) for x in xaddr(1, [pc]) + xld(pc, 1)]
        L += x1[:4 * o.x1n] + [WaitTag(vm_tags=['X0a'])] + self.stamp(1) + ['s_barrier'] + self.probe('s0') + x1[4 * o.x1n:4 * o.x1m]
        L += [WaitTag(vm_tags=['X0']), 's_barrier'] + x1[4 * o.x1m:] + wstage(2) + wstage(3) + xaddr(2, range(10))
        x2 = [x for pc in range(10) for x in xld(pc, 2)]
        NR = (26 - o.tf0 + o.tf - 1) // o.tf
        tex = (1 << (8 * o.tf)) - 1
        texec = [f's_mov_b32 exec_lo, {tex & 0xffffffff:#x}', f's_mov_b32 exec_hi, {tex >> 32:#x}']
        if o.tch == 1:
            L += [f'buffer_load_dword v{TI + r}, v7, {srd(SRD_IDX)}, s{S_GRP} offen offset:{4 * min(o.tf0 + o.tf * r, 26 - o.tf)}' for r in range(NR)]

        def xtouch():
            t_ = [f'v_lshlrev_b32 v{T + 1}, 7, v{TI}'] + texec + [f'buffer_load_dword v{T + 2}, v{T + 1}, {srd(SRD_TAB)}, 0 offen', 's_mov_b64 exec, -1']
            return t_ + [f'v_mov_b32 v{TI + r}, v{TI + r + 1}' for r in range(NR - 1)] + [f'v_mov_b32 v{TI + NR - 1}, 0xffffff']

        def wtouch():
            return ['s_mov_b64 exec, 0x3ff', f'buffer_load_dword v{T + 3}, v{vWT}, {srd(SRD_W)}, s{S_RC} offen', 's_mov_b64 exec, -1', f's_add_u32 s{S_RC}, s{S_RC}, {260 * 3328}']
        L += x2[:2 * o.x2n] + [WaitTag(vm_tags=['W']), 's_barrier'] + self.probe('bar0') + x2[2 * o.x2n:] + xaddr(3, range(10))
        lpre = self.seq(L + [f's_setprio {o.lprio}', 's_branch L_ld_in'])
        del self.P.static[self.mk0:]
        self.P.static[self.ldat:self.ldat] = lpre
        self.mk0 = len(self.P.static)

        def lpair(p):
            S = ['s_barrier'] + (['L_ld_in:'] if p == 0 else []) + wstage(2 * (p % 2)) + wstage(2 * (p % 2) + 1)
            f2 = p + 4
            if p == 11:
                S += [f's_cmp_eq_u32 s{S_LOOP}, 1', 's_cbranch_scc1 L_ld_tail0']
            for pc in range(10):
                x = xld(pc, p % 3)
                S += [x[0]] + (xaddr(f2, [pc - 1])[:1] if pc else []) + [x[1]] + (xaddr(f2, [pc - 1])[1:] if pc else [])
            S += xaddr(f2, [9])
            if p >= 10:
                S += [f'v_mov_b32_dpp v{Q + 4 * pc + c_}, v{Q + 4 * pc + c_} row_shl:3 row_mask:0xf bank_mask:0xf' for pc in range(10) for c_ in ((0, 2) if p == 10 else (1, 3))]
            if o.tch == 1 and p % o.tf == o.toff:
                S += xtouch()
            if o.tch == 1 and p % 4 == o.twoff:
                S += wtouch()
            if p == 11:
                S += [f's_add_u32 s{S_LOOP}, s{S_LOOP}, 1', f's_cmp_lt_u32 s{S_LOOP}, 2']
            return S + [WaitTag(vm_tags=['W'])]
        body = self.seq(['L_dnn_loop1:'])
        for p in range(12):
            if p == 8 and o.lpf:
                body += self.seq([f's_cmp_lg_u32 s{S_LOOP}, 1', 's_cbranch_scc1 L_nolpf'])
                self.seq([f's_mov_b64 exec, {(1 << o.lpf) - 1}', 'global_load_dword v10, v[8:9], off', 's_mov_b64 exec, -1'] + small(SRD_W2, L_W2))
                body += self.seq(['L_nolpf:'])
            lp = lpair(p)
            if p and self.probe(f'bar{p}'):
                lp = lp[:1] + [f's_cmp_lg_u32 s{S_LOOP}, 0', f's_cbranch_scc1 L_nopb{p}'] + self.probe(f'bar{p}') + [f'L_nopb{p}:'] + lp[1:]
            body += self.seq(lp + (['s_cbranch_scc1 L_dnn_loop1'] if p == 11 else []))
        tl = c0 + lpre + body * 2 + self.seq(['s_branch L_ld_tail'])
        self.ldblk = self.P.static[self.mk0:]
        del self.P.static[self.mk0:]
        tl += self.seq(['L_ld_tail0:', 's_waitcnt vmcnt(0)', 'L_ld_tail:', 's_barrier'] + self.tlb2(T) + ['s_mov_b64 exec, 1', f'buffer_load_dword v250, v{T}, {srd(SRD_DBG)}, 0 offen offset:128 sc1', 's_mov_b64 exec, -1'])
        tl += self.seq(self.probe('s50'))
        if o.walk:
            tl += self.seq([f's_cmp_eq_u32 s{lw}, 0', 's_cbranch_scc1 L_wkd', 's_mov_b64 exec, 0', f's_cmp_eq_u32 s{lw}, 1', 's_cbranch_scc1 L_wk0',
                            f's_cmp_eq_u32 s{lw}, 2', f's_cbranch_scc1 L_wk{np_ // 3}', f's_branch L_wk{2 * np_ // 3}', 'L_wkd:'])
        A = 64
        L = [f's_cmp_lg_u32 s{S_WAVE}, 4', 's_cbranch_scc1 L_end',
             f'v_lshlrev_b32 v3, 4, v0', f'v_lshlrev_b32 v4, 2, v0', f'v_add_u32 v1, {RB}, v3', f'v_add_u32 v2, {RB + 1024}, v4', f'v_add_u32 v4, 1024, v4',
             'v_mov_b32 v5, 32', f'v_mov_b32 v7, s{S_MB}',
             f's_mul_i32 s{S_T0}, s{S_MB}, 1280', f's_mul_i32 s{S_T1}, s{S_R}, {WSP}', f's_add_u32 s{S_T1}, s{S_T1}, s{S_T0}', 's_setprio 3']
        if o.sent:
            L += [f'v_mov_b32 v{A + k}, -1' for k in range(4)] + [f'buffer_store_dwordx4 {vr(A, 4)}, v3, {srd(SRD_WS)}, s{S_T1} offen sc1',
                  f'buffer_store_dword v{A}, v4, {srd(SRD_WS)}, s{S_T1} offen sc1', 's_waitcnt vmcnt(0)'] + (self.cready('d', 250) if o.wsc else [])
        if o.pwalk:
            L += ['s_mov_b64 exec, 0', 's_branch L_pw0', 'L_pwr:', 's_mov_b64 exec, -1', f's_cmp_eq_u32 s{S_WAVE}, 0', 's_cbranch_scc1 L_pwc']
        L += self.stamp_flush() + ['s_barrier'] + self.probe('dend')
        L += [f'ds_read_b128 {vr(A, 4)}, v1', f'ds_read_b128 {vr(A + 8, 4)}, v1 offset:1280', f'ds_read2st64_b32 {vr(A + 4, 2)}, v2 offset0:0 offset1:5',
              f'v_pk_add_f32 {p2(A)}, {p2(A)}, {p2(A + 8)}', f'v_pk_add_f32 {p2(A + 2)}, {p2(A + 2)}, {p2(A + 10)}', f'v_add_f32 v{A + 4}, v{A + 4}, v{A + 5}']
        if o.sent:
            L += [f'v_min_u32 v{A + k}, -2, v{A + k}' for k in range(5)]
        L += (self.stamp(16) if o.diag else [])
        L += [f'buffer_store_dwordx4 {vr(A, 4)}, v3, {srd(SRD_WS)}, s{S_T1} offen sc1',
              f'buffer_store_dword v{A + 4}, v4, {srd(SRD_WS)}, s{S_T1} offen sc1', 's_mov_b64 exec, 1']
        tl += self.seq(L)

        L = ['L_pub:']
        if o.skew:
            L += ['v_mov_b32 v20, s86', 'v_mov_b32 v21, s86', 'v_mov_b32 v22, s88', 's_lshl_b32 s89, s2, 7', 's_add_u32 s89, s89, 0x40000', 'v_lshlrev_b32 v23, 28, v0',
                  f'buffer_store_dwordx3 v[20:22], v23, {srd(SRD_WS)}, s89 offen sc1', 's_waitcnt vmcnt(0)']
        def loads():
            c = [f's_mul_i32 s{S_T0}, s{S_T3}, 1280']
            for qq in range(14):
                c += [f'buffer_load_dwordx4 {vr(A + 8 * qq, 4)}, v3, {srd(SRD_WS)}, s{S_T0} offen sc1',
                      f'buffer_load_dword v{A + 8 * qq + 4}, v4, {srd(SRD_WS)}, s{S_T0} offen sc1', f's_add_u32 s{S_T0}, s{S_T0}, {WSP}']
            return c
        R_ = 56
        hb = 0
        L += [f'v_lshlrev_b32 v6, {o.wsc or 4}, v7', f's_mov_b32 s{S_T2}, 0x60000'] + ([] if o.sent else ['s_waitcnt vmcnt(0)']) + ['v_mov_b32 v13, v5',
              f'buffer_atomic_add v5, v6, {srd(SRD_WS)}, s{S_T2} offen sc0' if o.wsc else f'buffer_atomic_add v5, v6, {srd(SRD_DBG)}, 0 offen sc0',
              'v_cmp_eq_u32 vcc, 12, v7', f'v_mov_b32 v8, {hb + 436:#x}', f'v_mov_b32 v9, {hb + 434:#x}', 'v_cndmask_b32 v8, v8, v9, vcc', 'v_sub_u32 v8, v8, v13']
        if o.spec:
            L += [f's_mov_b64 s[{S_MASK}:{S_MASK + 1}], exec', 's_mov_b64 exec, -1', f'v_readfirstlane_b32 s{S_T3}, v7'] + loads() + [f's_mov_b64 exec, s[{S_MASK}:{S_MASK + 1}]']
            L += ['s_waitcnt vmcnt(0) lgkmcnt(0)']
        else:
            L += ['s_waitcnt vmcnt(0) lgkmcnt(0)']
        L += (self.stamp(18) if o.diag else []) + self.probe('atm') + [
             f'v_cmp_eq_u32 s[{S_EX}:{S_EX + 1}], v5, v8', 's_mov_b64 exec, -1', f's_lshl_b32 s{S_BOUT}, s{S_BOUT}, 16',
             'v_lshrrev_b32 v1, 1, v3', 'v_lshrrev_b32 v2, 1, v4']
        if o.spec:
            L += [f's_bitcmp1_b32 s{S_EX}, 0', f's_bitset0_b32 s{S_EX}, 0', 's_cbranch_scc1 L_sum']
        pa = self.seq(L)
        L = ['L_fin:', f's_cmp_eq_u32 s{S_EX}, 0', 's_cbranch_scc1 L_done',
             f's_ff1_i32_b32 s{S_T2}, s{S_EX}', f's_bitset0_b32 s{S_EX}, s{S_T2}', f'v_readlane_b32 s{S_T3}, v7, s{S_T2}', 's_waitcnt vmcnt(0)', 'L_again:'] + loads()
        pb = self.seq(L)
        L = ['L_sum:', f'v_pk_add_f32 {p2(R_)}, {p2(A)}, {p2(A + 8)}', f'v_pk_add_f32 {p2(R_ + 2)}, {p2(A + 2)}, {p2(A + 10)}', f'v_add_f32 v{R_ + 4}, v{A + 4}, v{A + 12}']
        for qq in range(2, 14):
            L += [f'v_pk_add_f32 {p2(R_)}, {p2(R_)}, {p2(A + 8 * qq)}', f'v_pk_add_f32 {p2(R_ + 2)}, {p2(R_ + 2)}, {p2(A + 8 * qq + 2)}',
                  f'v_add_f32 v{R_ + 4}, v{R_ + 4}, v{A + 8 * qq + 4}']
        if o.sent:
            L += [f'v_cmp_u_f32 vcc, v{R_}, v{R_ + 1}', f'v_cmp_u_f32 s[{S_MASK}:{S_MASK + 1}], v{R_ + 2}, v{R_ + 3}', f's_or_b64 s[{S_MASK}:{S_MASK + 1}], s[{S_MASK}:{S_MASK + 1}], vcc',
                  f'v_cmp_u_f32 vcc, v{R_ + 4}, v{R_ + 4}', f's_or_b64 vcc, s[{S_MASK}:{S_MASK + 1}], vcc', 's_cbranch_vccnz L_chk', 'L_ok:']
        L += [f's_mul_i32 s{S_T3}, s{S_T3}, 640']
        A0 = A
        A = R_
        L += [f'v_add_f32 v{A + k}, s{S_BOUT}, v{A + k}' for k in range(5)]
        L += [f'v_cvt_pk_bf16_f32 v10, v{A}, v{A + 1}', f'v_cvt_pk_bf16_f32 v11, v{A + 2}, v{A + 3}', f'v_cvt_pk_bf16_f32 v12, v{A + 4}, v{A + 4}',
              f'buffer_store_dwordx2 v[10:11], v1, {srd(SRD_OUT)}, s{S_T3} offen', f'buffer_store_short v12, v2, {srd(SRD_OUT)}, s{S_T3} offen']
        if o.tailp:
            L += [f's_cmp_lg_u32 s{S_EX}, 0', 's_cbranch_scc1 L_fin', 's_waitcnt vmcnt(0)', 's_memrealtime s[86:87]', 's_waitcnt lgkmcnt(0)', 's_sub_u32 s88, s86, s88', 's_min_u32 s88, s88, 1000',
                  f's_mul_i32 s88, s88, {o.tailp - 1}', 's_add_u32 s88, s88, s86',
                  'L_spin:', 's_memrealtime s[86:87]', 's_waitcnt lgkmcnt(0)', 's_sub_u32 s89, s88, s86', 's_cmp_gt_i32 s89, 0', 's_cbranch_scc1 L_spin']
        if o.skew:
            L += [f's_cmp_lg_u32 s{S_EX}, 0', 's_cbranch_scc1 L_fin', 'v_lshlrev_b32 v20, 7, v0', 's_mov_b32 s88, 0x40000']
            for k in range(4):
                L += [f'buffer_load_dwordx3 v[{32 + 4 * k}:{34 + 4 * k}], v20, {srd(SRD_WS)}, s88 offen sc1', 's_add_u32 s88, s88, 8192']
            L += ['s_waitcnt vmcnt(0)']
            if o.probe.startswith('st') or o.absol:
                L += ['s_memrealtime s[88:89]', 's_waitcnt lgkmcnt(0)', 'v_mov_b32 v26, 0', 'v_mov_b32 v27, 0']
                for k in range(4):
                    L += [f'v_sub_u32 v28, s88, v{32 + 4 * k}', 'v_cmp_gt_u32 vcc, 4500, v28', f'v_not_b32 v29, v{32 + 4 * k}', 'v_cndmask_b32 v29, 0, v29, vcc', 'v_max_u32 v27, v27, v29']
                    if o.absol:
                        L += [f'v_cndmask_b32 v29, 0, v{34 + 4 * k}, vcc', 'v_max_u32 v26, v26, v29']
                    elif str(k) in o.probe[2:]:
                        L += [f'v_cndmask_b32 v29, 0, v{32 + 4 * k}, vcc', 'v_max_u32 v26, v26, v29']
            else:
                for k in range(4):
                    L += [f'v_sub_u32 v28, v{34 + 4 * k}, v{32 + 4 * k}', f'v_cmp_gt_u32 vcc, {100000 if o.cyc else 5000}, v28', f'v_cndmask_b32 v28, 0, v28, vcc',
                          f'v_cmp_eq_u32 vcc, v{32 + 4 * k}, v{33 + 4 * k}', f'v_cndmask_b32 v{33 + 4 * k}, 0, v28, vcc']
                L += ['v_max_u32 v26, v33, v37', 'v_max3_u32 v26, v26, v41, v45', 'v_mov_b32 v27, -1']
            if o.probe == 'span':
                L += ['s_memrealtime s[86:87]', 's_waitcnt lgkmcnt(0)', 'v_mov_b32 v26, s86']
            for (ctl, rm) in (('row_shr:1', '0xf'), ('row_shr:2', '0xf'), ('row_shr:4', '0xf'), ('row_shr:8', '0xf'), ('row_bcast:15', '0xa'), ('row_bcast:31', '0xc')):
                L += [f'v_max_u32_dpp v{r}, v{r}, v{r} {ctl} row_mask:{rm} bank_mask:0xf' for r in (26, 27)]
            L += ['v_not_b32 v27, v27', 'v_sub_u32 v22, v26, v27', 's_memrealtime s[86:87]', 'v_readlane_b32 s88, v22, 63', 's_waitcnt lgkmcnt(0)',
                  *([f's_max_u32 s88, s88, {o.cyc.split(chr(44))[2]}', f's_sub_u32 s88, s88, {o.cyc.split(chr(44))[2]}', 's_lshr_b32 s88, s88, 1'] if o.cyc else []), 's_min_u32 s88, s88, 5000', f's_mul_i32 s88, s88, {o.skew - 1}', 's_add_u32 s88, s88, s86',
                  'L_spin:', 's_memrealtime s[86:87]', 's_waitcnt lgkmcnt(0)', 's_sub_u32 s89, s88, s86', 's_cmp_gt_i32 s89, 0', 's_cbranch_scc1 L_spin']
        L += self.stamp(5) + self.stamp_flush() + ['s_branch L_fin']
        pc_ = self.seq(L)
        if o.sent:
            L = ['L_chk:', 'v_mov_b32 v14, 0', 'v_mov_b32 v15, 0']
            for qq in range(14):
                L += [f'v_max3_u32 v14, v14, v{A0 + 8 * qq}, v{A0 + 8 * qq + 1}', f'v_max3_u32 v14, v14, v{A0 + 8 * qq + 2}, v{A0 + 8 * qq + 3}', f'v_max_u32 v15, v15, v{A0 + 8 * qq + 4}']
            L += [f's_cmp_eq_u32 s{S_T3}, 12', f's_cselect_b32 s{S_T0}, 0, -1', f'v_and_b32 v15, s{S_T0}, v15', 'v_max_u32 v14, v14, v15',
                  'v_cmp_eq_u32 vcc, -1, v14', 's_cbranch_vccnz L_again', 's_branch L_ok']
            self.chk = self.seq(L)
        pe = self.seq(['L_done:', 's_endpgm'])
        self.pub = pa + pb + pc_ + pe
        self.extra_traces = [pa + pc_ + pb + pc_] + ([pa + pb + pc_[:45] + self.chk + pb[7:] + pc_] if o.sent else [])
        return [tc, tl + self.pub]

    def cinit(self, lab, skip):
        return ['s_mov_b64 exec, 0x1fff', 'v_mov_b32 v20, 1', 'v_mov_b32 v21, 0', f'v_lshlrev_b32 v22, {self.opt.wsc}, v0', 's_mov_b64 exec, 1',
                f'buffer_atomic_add v20, v21, {srd(SRD_DBG)}, 0 offen sc0', f's_mov_b32 s{S_TW}, 0x60000', 's_waitcnt vmcnt(0)',
                'v_cmp_ne_u32 vcc, 0, v20', f's_cbranch_vccnz {skip}', 's_mov_b64 exec, 0x1fff',
                f'buffer_store_dword v21, v22, {srd(SRD_WS)}, s{S_TW} offen sc1', 's_mov_b64 exec, 1', 'v_mov_b32 v20, 1', 's_waitcnt vmcnt(0)',
                f'buffer_store_dword v20, v21, {srd(SRD_DBG)}, 0 offen offset:128 sc1']

    def cready(self, tag, vr_):
        self.late += [f'L_ci{tag}:'] + self.cinit(tag, f'L_cp{tag}') + [f'L_cp{tag}:', f'buffer_load_dword v20, v21, {srd(SRD_DBG)}, 0 offen offset:128 sc1', 's_waitcnt vmcnt(0)',
                      'v_cmp_eq_u32 vcc, 0, v20', f's_cbranch_vccnz L_cp{tag}', 's_mov_b64 exec, -1', f's_branch L_cr{tag}']
        return [f'v_readfirstlane_b32 s{S_TW}, v{vr_}', f's_cmp_eq_u32 s{S_TW}, 0', f's_cbranch_scc1 L_ci{tag}', f'L_cr{tag}:']

    def pubsrd(self):
        return self.build_srd(SRD_WS, S_WS, 0x10000000) + self.build_srd(SRD_OUT, S_OUT, 8192) + self.build_srd(SRD_DBG, S_DBG, 256)

    def tables(self):
        OOB = 0x100000
        G = [[] for _ in range(11)]
        for l in range(64):
            half, i32, g, r, c = l >> 5, l & 31, l >> 4, (l >> 2) & 3, l & 3
            lin0 = g * 128 + r * XPP + c * 8
            G[0] += [lin0, lin0 + 512 if g < 3 else XOFF(27) + c * 8, (l >> 3) * 16, 0x3f803f80 if l < 32 else 0]
            G[1] += [(l & 7) * 16, 0xeeee if l & 1 else 0x4444, half * XPP + i32 * 4, IMG + half * 20 * IMGP + i32 * 4]
            tr = [IMG + cin16.IMGROW(cin16.LAB[g][2 * rp + (r >> 1)][r & 1]) * IMGP + c * 8 for rp in range(8)]
            G[2] += tr[:4]
            G[3] += tr[4:]
            row, col = 8 * half + r, (g & 1) * 32 + c * 8
            G[4] += [V3OFF + row * 64 + col, A1 + row * 1352 + col, A1 + min(row + 16, 25) * 1352 + col, A1 + min(row + 20, 25) * 1352 + col]
            t, gd, rr = (i32 >> 2) & 1, i32 >> 3, i32 & 3
            ig = 16 * t + 4 * rr + gd
            iq = 4 * rr + gd if t == 0 else 16 + ((4 * rr + gd + 4) & 15)
            pm = []
            for q in range(8):
                k0 = 16 * (q >> 2) + 8 * half + 2 * (q & 3)
                pm.append((0xffff if iq == k0 else 0xffff0000 if iq == k0 + 1 else 0) if iq < 26 else 0)
            G[5] += pm[:4]
            G[6] += pm[4:]
            ga = A2 + 52 * ig if ig < 26 else OOB
            rowp = ((l & 12) + 2 * (l & 1)) * 16 + (OOB if l & 2 else 0)
            G[7] += [ga + half * 8 * W2P, ga + half * OOB, rowp + half * 256 + (g & 1) * 8, rowp + g * 256]
            G[8] += [SG + i32 * 64 if i32 < 26 else V2S if i32 == 26 else OOB, 64 if i32 == 26 else 3328, (i32 >> 1) + 2 * half,
                     SQ + i32 * 64 + ((((i32 >> 1) & 3) ^ (2 * half)) << 4)]
            v2 = []
            for hf in range(2):
                j = 4 * g + 16 * hf + r
                v2.append(V2S + (j & 1) * 1664 + (j >> 1) * 64 + ((c ^ (((13 + j) & 3) * 2)) * 8) if j < 26 else SG + 676 * 64 + c * 8)
            wo = [L_WCO + 2 * (16 * tl_ + 4 * c + r) if 16 * tl_ + 4 * c + r < 26 else OOB for tl_ in range(2)]
            G[9] += v2 + wo
            G[10] += [L_WCO + 104 + 16 * half, L_WCO + 52 + 2 * l, V3OFF + 52 + 64 * l, SG + 676 * 64 + (l & 15) * 4]
        U = []
        for w in range(8):
            for e in range(16):
                for u in (w, w + 8, w + 16):
                    U += [SG + row * 64 + f * 8 for row, f in cin16.p2rows(u, e >> 2, e & 3)] if u < 22 else [0, 0]
        return [x for n in (4, 2, 3, 0, 5, 6, 7, 8, 9, 1, 10) for x in G[n]] + [0] * 256 + U + [0] * 256

    def cin(self):
        o = self.opt
        cw = S_CW
        vFa, vLin0, vLin1, vXi0, vXi1, vC16, vIDX, vXa, vIw, vPWL, vPXL, PXR, PFR = 1, 4, 5, 6, 7, 8, 9, 10, 11, 12, 13, 14, 15
        XI, vTR = 16, 20
        XR, P, Z, WF, D = 32, 60, 116, 164, 184
        vStg, vFR, vFw = vFa, 2, 59
        t3, t4, t5 = 29, 30, 31
        AV = [28, 58]
        PM = 216
        vA3, vBs0, vBs1a, vBs1b, vGa, vGb, vT3, vT3d = range(224, 232)
        G8, vV2r, vV2q, vWo, AD = 232, 236, 237, 238, 240
        WA = list(range(244, 250))
        vS, vMx = 250, 111
        UA, UX = 224, [232, 233, 234, 235, 240, 241]
        AFR = 112
        BALL, DALL = 60, 120
        S_F1, S_F2, S_G, S_LO, S_HI, S_CM, S_U0, S_U1, S_U2 = 74, 75, 95, 96, 97, 90, 98, 99, 100
        S_CG, S_IV = 0, 1
        OOB = 0x100000
        TA_, TB_, TC_ = SG + 35840, SQ + 26 * W2P, FRS + 2048
        GREG = [224, 20, 24, 4, 216, 220, 228, 232, 236, 8, 240]
        DPPS = (('row_shr:1', '0xf'), ('row_shr:2', '0xf'), ('row_shr:4', '0xf'), ('row_shr:8', '0xf'),
                ('row_bcast:15', '0xa'), ('row_bcast:31', '0xc'))

        K_W7, K_IMG, K_W2, K_W1, K_W12, K_H8, K_T3 = 52, 53, 54, 55, 92 - 10, 92 - 9, 91
        L = ['L_cin:', f'v_lshlrev_b32 v{vStg}, 4, v0', f's_and_b32 s{cw}, s{S_WAVE}, 3', f's_lshr_b32 s{S_GRP}, s{S_WAVE}, 2', f's_lshl_b32 s{S_STG}, s{cw}, 10',
             f's_mul_i32 s{S_MB}, s{S_T0}, 11', f's_add_u32 s{S_MB}, s{S_MB}, s{S_T1}', f's_sub_u32 s{S_MB}, s{S_MB}, 22',
             f's_cmp_eq_u32 s{S_MB}, 86', 's_cbranch_scc1 L_spare' if o.wsc and not o.nospare else 's_cbranch_scc1 L_end', f's_cmp_eq_u32 s{S_GRP}, 0', 's_cbranch_scc1 L_sc']
        c0 = self.seq(L)
        L = ['s_setprio 2', f'v_add_u32 v2, L_tables-L_pc+4096, v{vStg}', f'v_mov_b32 v3, s{S_MASK + 1}',
             f'v_add_co_u32 v2, vcc, s{S_MASK}, v2', 'v_addc_co_u32 v3, vcc, 0, v3, vcc',
             f'v_add_co_u32 v{XR}, vcc, s{S_STG}, v2', f'v_addc_co_u32 v{XR + 1}, vcc, 0, v3, vcc',
             f'global_load_dwordx4 {vr(GREG[0], 4)}, v[2:3], off offset:-4096',
             'v_add_co_u32 v2, vcc, 0x1800, v2', 'v_addc_co_u32 v3, vcc, 0, v3, vcc', f'global_load_dwordx4 {vr(GREG[10], 4)}, v[2:3], off',
             f's_cmp_lt_u32 s{cw}, 3', f's_mov_b32 s{S_T2}, {TB_ - 3072}', f's_cselect_b32 s{S_T2}, {TA_ + 4096}, s{S_T2}']
        tdma = lambda off: I(f'global_load_lds_dwordx4 {vr(XR, 2)}, off offset:{off}', tag='TAB')
        L += [f's_add_u32 m0, s{S_STG}, {TA_ + 4096}', tdma(-4096), f's_add_u32 m0, s{S_STG}, s{S_T2}', tdma(0),
              f'v_add_co_u32 v{XR}, vcc, 0x2000, v{XR}', f'v_addc_co_u32 v{XR + 1}, vcc, 0, v{XR + 1}, vcc',
              f's_add_u32 m0, s{S_STG}, {TC_}', tdma(0), f's_add_u32 m0, s{S_STG}, {TB_ + 1024 + 4096}', f's_cmp_ge_u32 s{cw}, 2', 's_cbranch_scc1 L_sc']
        g1s = self.seq(L)
        L = [tdma(-4096)]
        g1t = self.seq(L)
        L = ['L_sc:', f's_mul_i32 s{S_RC}, s{S_GRP}, 20', f's_add_u32 s{S_RC}, s{S_RC}, s{S_WAVE}',
             f's_mul_i32 s{S_SAMP}, s{S_MB}, 48', f's_add_u32 s{S_SAMP}, s{S_SAMP}, s{S_RC}', f's_mul_i32 s{S_SAMP}, s{S_SAMP}, 104',
             f'v_lshrrev_b32 v{t4}, 3, v0', f'v_lshlrev_b32 v{t4}, 4, v{t4}', f'v_and_b32 v{t3}, 0x70, v{vStg}',
             f's_mul_i32 s{S_XM0}, s{S_WAVE}, {XBSZ}', f's_add_u32 s{S_XM0}, s{S_XM0}, {XB}', f's_cmp_eq_u32 s{S_GRP}, 0', 's_cbranch_scc1 L_g0']
        csc = self.seq(L)
        SC2 = [f's_lshl_b32 s{S_RC}, s{S_RC}, 2', f's_add_u32 s{S_RC}, s{S_RC}, {RC}',
               f's_mul_i32 s{S_LOOP}, s{S_GRP}, 3', f's_sub_u32 s{S_LOOP}, 4, s{S_LOOP}', (f's_cmp_eq_u32 s{S_MB}, 85', f's_cselect_b32 s{S_LOOP}, s{S_LOOP}, 6'),
               f's_lshl_b32 s{K_W7}, s{S_WAVE}, 7', f's_mul_i32 s{K_IMG}, s{S_WAVE}, {IMGSZ}', f's_lshl_b32 s{K_W2}, s{S_WAVE}, 2', f's_lshl_b32 s{K_W1}, s{S_WAVE}, 1',
               f's_lshl_b32 s{K_W12}, s{S_WAVE}, 12',
               f's_and_b32 s{S_U0}, s{S_WAVE}, 1', f's_lshr_b32 s{S_U1}, s{S_WAVE}, 1',
               f's_mul_i32 s{S_T0}, s{S_U1}, 3072', f's_lshl_b32 s{K_H8}, s{S_U0}, 3', f's_add_u32 s{S_T0}, s{S_T0}, s{K_H8}', f'v_add_u32 v{vFw}, s{S_T0}, v{vStg}',
               f's_lshl_b32 s{S_T1}, s{S_U1}, 3', f's_lshr_b32 s{S_T1}, 0x05030200, s{S_T1}', f's_and_b32 s{S_T1}, s{S_T1}, 0xff',
               f's_lshl_b32 s{S_T1}, s{S_T1}, 9', f's_lshl_b32 s{S_T2}, s{S_U0}, 2', f's_add_u32 s{K_T3}, s{S_T1}, s{S_T2}',
               f's_mov_b32 s{S_U1}, 0x05040100', f's_mov_b32 s{S_U2}, 0x07060302',
               f'v_mov_b32 v{vFR}, {L_FLG}', 'v_mov_b32 v109, 0', 'v_mov_b32 v108, 0'] + [f'v_mov_b64 {vr(r, 2)}, 0' for r in range(XR, XR + 26, 2)]
        XJ = 104 if o.xat < 4 else 12

        def pfw(dst=3):
            return [f'buffer_load_dword v{dst}, v{vPWL}, {srd(SRD_W)}, s{S_PW} offen',
                    f's_add_u32 s{S_PW}, s{S_PW}, {o.pfne * 688 * 128}']

        def pfx_a():
            return [f'buffer_load_dword v{PXR}, v{vPXL}, {srd(SRD_IDX)}, s{S_PX} offen',
                    f's_cmp_eq_u32 s{S_PX}, s{S_PXE}', f's_cselect_b32 s{S_PXE}, 0x7000000, s{S_PXE}',
                    f's_cselect_b32 s{S_PX}, 0x7000000, s{S_PX}',
                    f's_add_u32 s{S_PX}, s{S_PX}, 24', f's_min_u32 s{S_PX}, s{S_PX}, s{S_PXE}']

        def pfx_b():
            return [f'v_lshlrev_b32 v{PXR}, 7, v{PXR}', f'buffer_load_dword v{PFR}, v{PXR}, {srd(SRD_TAB)}, 0 offen']

        def xidx(XI=XI, vXi0=vXi0):
            return [f'buffer_load_dwordx4 {vr(XI, 4)}, v{vXi0}, {srd(SRD_IDX)}, s{S_SAMP} offen', f's_add_u32 s{S_SAMP}, s{S_SAMP}, {4 * 104}']

        def xdma(XI=XI, off=0, tag='XB', vC16=vC16):
            c = [f'v_lshl_add_u32 v{XI + u}, v{XI + u}, 7, v{vC16}' for u in range(4)]
            for u in range(4):
                c += [f's_add_u32 m0, s{S_XM0}, {u * XPP + off}']
                if u % 2 == 0:
                    c.append(f's_mov_b32 exec_hi, {0xffffff if u == 0 else 0xffff:#x}')
                c.append(I(f'buffer_load_dwordx4 v{XI + u}, {srd(SRD_TAB)}, 0 offen lds', tag=tag))
            return c + ['s_mov_b32 exec_hi, -1']

        def stage(dst, goff, tag):
            st = []
            for m in range(9):
                st.append((f's_add_u32 m0, s{S_STG}, {dst + m * 4096}', f's_add_u32 s{S_TW}, s{S_STG}, {goff + m * 4096}',
                           I(f'buffer_load_dwordx4 v{vStg}, {srd(SRD_CIN)}, s{S_TW} offen lds', tag=tag)))
            return st

        def pubmax(regs_offs):
            c = []
            for (ctl, rm) in DPPS:
                for r, _ in regs_offs:
                    c.append(f'v_max_u32_dpp v{r}, v{r}, v{r} {ctl} row_mask:{rm} bank_mask:0xf')
            c += ['s_mov_b32 exec_lo, 0', 's_mov_b32 exec_hi, 0x80000000']
            c += [f'ds_max_u32 v{vFR}, v{r} offset:{16 + 4 * k}' for r, k in regs_offs]
            return c + ['s_mov_b64 exec, -1']

        def mxop(src, n, mx, first):
            return [f'v_mfma_f32_16x16x32_bf16 {vr(mx, 4)}, {vr(src + r, 4)}, {vr(src + r, 4)}, {"0" if first and r == 0 else vr(mx, 4)}' for r in range(0, n, 4)]

        def mxfin(mx):
            return [f'v_max3_f32 v{mx}, v{mx}, v{mx + 1}, 0', f'v_max3_f32 v{mx}, v{mx}, v{mx + 2}, v{mx + 3}']

        def bread(m, off):
            b = BALL + m * 8
            return [f'ds_read_b64_tr_b16 {vr(b, 2)}, v{vBs0} offset:{off}',
                    f'ds_read_b64_tr_b16 {vr(b + 2, 2)}, v{vBs0} offset:{off + 4 * 1352}',
                    f'ds_read_b64_tr_b16 {vr(b + 4, 2)}, v{vBs1a} offset:{off}',
                    f'ds_read_b64_tr_b16 {vr(b + 6, 2)}, v{vBs1b} offset:{off}']

        def mm2(d, a, b):
            return [f'v_mfma_f32_32x32x16_bf16 {vr(d, 16)}, {vr(a, 4)}, {vr(b, 4)}, 0',
                    f'v_mfma_f32_32x32x16_bf16 {vr(d, 16)}, {vr(a + 4, 4)}, {vr(b + 4, 4)}, {vr(d, 16)}']

        tA, tB = 250, 251
        if o.pfw:
            SC2 += self.build_srd(SRD_W, S_W1, 1664 * 3328) + [
                f's_lshl_b32 s{S_PW}, s{S_MB}, 3', f's_add_u32 s{S_PW}, s{S_PW}, s{S_WAVE}', f's_add_u32 s{S_PW}, s{S_PW}, {o.pfe0 * 832}', f's_lshl_b32 s{S_PW}, s{S_PW}, 7',
                f's_mov_b32 s{S_T3}, {688 * 128}', f'v_min_u32 v{vPWL}, {max(o.pfne - 1, 0)}, v0', f'v_mul_lo_u32 v{vPWL}, s{S_T3}, v{vPWL}']
        if o.pfx:
            SC2 += [f's_lshl_b32 s{S_PX}, s{S_MB}, 3', f's_add_u32 s{S_PX}, s{S_PX}, s{S_WAVE}', f's_mul_i32 s{S_PX}, s{S_PX}, {6 * 104}',
                    f's_add_u32 s{S_PXE}, s{S_PX}, 80', f's_add_u32 s{S_PX}, s{S_PX}, {4 * o.pfx0}',
                    f'v_min_u32 v{PXR}, 35, v0', f'v_mul_u32_u24 v{vPXL}, 10923, v{PXR}', f'v_lshrrev_b32 v{vPXL}, 16, v{vPXL}',
                    f'v_mul_u32_u24 v{vPXL}, {104 - 24}, v{vPXL}', f'v_lshl_add_u32 v{vPXL}, v{PXR}, 2, v{vPXL}']
        trd = lambda n: f'ds_read_b128 {vr(GREG[n], 4)}, v{tA if n < 7 else tB} offset:{(n if n < 7 else n - 7) * 1024}'
        vbs = [f'v_add_u32 v{r}, s{K_W7}, v{r}' for r in (vBs0, vBs1a, vBs1b)]

        def FX(g):
            R = [trd(n) for n in ((0,) if g == 0 else ()) + (6, 7, 3, 9, 1, 2, 4, 5, 8)]
            F = vbs + [f'v_add_u32 v{r}, s{K_W2}, v{r}' for r in (vGa, vGb)]
            F += [f'v_add_u32 v{vT3d}, s{K_H8}, v{vT3d}', f'v_add_u32 v{vT3}, s{K_T3}, v{vT3}']
            F += [f'v_mad_u32_u24 v{G8}, v{G8 + 1}, s{S_WAVE}, v{G8}', f'v_add_u32 v{G8 + 2}, s{K_W1}, v{G8 + 2}',
                  f'v_mad_u32_u24 v{G8 + 1}, v{G8 + 1}, 8, v{G8}', f'v_add_u32 v{WA[2]}, s{K_W12}, v{G8 + 3}', f'v_add_u32 v{WA[3]}, 2048, v{WA[2]}']
            for n_, (wa, bs) in enumerate(((WA[0], G8), (WA[1], G8), (WA[4], G8 + 1), (WA[5], G8 + 1))):
                F += [f'v_add_u32 v{t5}, {n_ & 1}, v{G8 + 2}', f'v_and_b32 v{t5}, 3, v{t5}', f'v_lshl_add_u32 v{wa}, v{t5}, 4, v{bs}']
                if n_ & 1:
                    F.append(f'v_add_u32 v{wa}, 1664, v{wa}')
            F += [f'v_add_u32 v{r}, s{S_XM0}, v{r}' for r in (vXa, vLin0, vLin1)] + [f'ds_write_b32 v{vXa}, v{vXi1} offset:{XOFF(26)}']
            F += [f'v_add_u32 v{r}, s{K_IMG}, v{r}' for r in [vIw] + list(range(vTR, vTR + 8))]
            return R, F
        SC2 += [f'v_add_u32 v{tA}, {TA_}, v{vStg}', f'v_add_u32 v{tB}, {TB_}, v{vStg}', f'v_lshrrev_b32 v3, 5, v0', f'v_lshl_add_u32 v3, v3, 2, v{vFR}']

        def pub2(r1, r2, off):
            c = [f'v_permlane32_swap_b32 v{r1}, v{r2}', f'v_max_u32 v{r1}, v{r1}, v{r2}']
            c += [f'v_max_u32_dpp v{r1}, v{r1}, v{r1} {ctl} row_mask:{rm} bank_mask:0xf' for ctl, rm in DPPS[:5]]
            return c + ['s_mov_b32 exec_lo, 0x80000000', 's_mov_b32 exec_hi, 0x80000000', f'ds_max_u32 v3, v{r1} offset:{16 + off}', 's_mov_b64 exec, -1']
        AV = [28, 58, 111]
        CO = [f's_sub_u32 s{S_T0}, s{S_T3}, 22', f's_min_u32 s{S_T0}, s{S_T0}, 9', f's_lshl_b32 s{S_T0}, s{S_T0}, 2', f's_add_u32 s{S_T0}, s{S_T0}, s{cw}', f's_lshl_b32 s{S_T0}, s{S_T0}, 7',
              f'v_mul_u32_u24 v{t5}, {40 * 128}, v0', 's_waitcnt lgkmcnt(0)'] + self.build_srd(SRD_CIN, S_CIN, 105456) + [
              f'buffer_load_dword v107, v{t5}, {srd(SRD_CIN)}, s{S_T0} offen']
        L = CO if o.coop in (1, 2) else []
        L += ['s_waitcnt lgkmcnt(0)'] + self.build_srd(SRD_WCO, S_WCO, 156) + [f's_mov_b32 m0, {L_WCO}', 's_mov_b64 exec, 0x7ff',
             I(f'buffer_load_dwordx4 v{vStg}, {srd(SRD_WCO)}, 0 offen lds', tag='WCO'), 's_mov_b64 exec, -1'] + (['s_barrier'] if o.coop in (2, 4) else []) + self.stamp0() + SC2
        L += self.build_srd(SRD_IDX, S_IDX, 4096 * 104) + self.build_srd(SRD_TAB, S_TAB, 100000 * 128)
        XK = 12
        if o.g1t:
            assert not o.pfx
            L += [f'v_and_b32 v13, 31, v0', f'v_min_u32 v13, 25, v13', f'v_lshrrev_b32 v14, 5, v0', f'v_mul_u32_u24 v14, {4 * 104}, v14', f'v_lshl_add_u32 v13, v13, 2, v14',
                  f'buffer_load_dword v14, v13, {srd(SRD_IDX)}, s{S_SAMP} offen']
        g1touch = [f'v_lshlrev_b32 v14, 7, v14', f'buffer_load_dword v13, v14, {srd(SRD_TAB)}, 0 offen']
        hx = []
        if o.hx:
            mg = {4: 16384, 5: 13108}[o.hx]
            assert all((d * mg) >> 16 == d // o.hx for d in range(64))
            L += [f'v_min_u32 v12, {12 * o.hx - 1}, v0', f'v_mul_u32_u24 v15, {mg}, v12', 'v_lshrrev_b32 v15, 16, v15', f'v_mul_u32_u24 v15, {104 - 4 * o.hx}, v15', 'v_lshl_add_u32 v12, v12, 2, v15',
                  f's_lshl_b32 s{S_T0}, s{S_MB}, 2', f's_add_u32 s{S_T0}, s{S_T0}, s{cw}', f's_mul_i32 s{S_T0}, s{S_T0}, {12 * 104}',
                  f'buffer_load_dword v15, v12, {srd(SRD_IDX)}, s{S_T0} offen offset:{4 * o.hx0}']
            hx = ['v_lshlrev_b32 v15, 7, v15', f'buffer_load_dword v12, v15, {srd(SRD_TAB)}, 0 offen']
        if o.hw:
            hw = self.build_srd(SRD_W, S_W1, 1664 * 3328) + [f's_lshl_b32 s{S_T0}, s{S_MB}, 2', f's_add_u32 s{S_T0}, s{S_T0}, s{cw}', f's_add_u32 s{S_T0}, s{S_T0}, {o.hw0 * 832}',
                  f's_lshl_b32 s{S_T0}, s{S_T0}, 7', f'v_mul_u32_u24 v106, {344 * 128}, v0', f's_mov_b64 exec, {(1 << o.hw) - 1}',
                  f'buffer_load_dword v{XI}, v106, {srd(SRD_W)}, s{S_T0} offen', 's_mov_b64 exec, -1']
        if o.xg1:
            L += [f's_sub_u32 s{S_T0}, s{S_SAMP}, {24 * 104}', f'buffer_load_dwordx4 {vr(XI, 4)}, v{t4}, {srd(SRD_IDX)}, s{S_T0} offen',
                  f'buffer_load_dwordx4 {vr(XK, 4)}, v{t4}, {srd(SRD_IDX)}, s{S_T0} offen offset:{4 * 104}']
        L += [f'ds_write_b128 v{vFR}, {vr(XR, 4)} offset:16', f's_lshl_b32 s{S_T0}, s{cw}, 6', f'v_add_u32 v{t3}, s{S_T0}, v0']
        for p_ in range(3):
            L += [f'v_mul_u32_u24 v{t4}, 2521, v{t3}', f'v_lshrrev_b32 v{t4}, 16, v{t4}', f'v_mul_u32_u24 v{t4}, 12, v{t4}', f'v_lshl_add_u32 v{AV[p_]}, v{t3}, 1, v{t4}']
            L += [f'v_add_u32 v{t3}, 256, v{t3}'] if p_ < 2 else [f'v_cmp_gt_u32 vcc, 676, v{t3}', f's_mov_b64 s[{S_MASK}:{S_MASK + 1}], vcc']
        L += [f'v_lshlrev_b32 v{t3}, 3, v0', 's_mov_b32 exec_hi, 0xffff', f'ds_write_b64 v{t3}, {vr(XR, 2)} offset:{V3OFF + 26 * 64}', 's_mov_b32 exec_hi, -1',
              f'ds_write_b32 v{AD + 3}, v{XR}', f'ds_write_b32 v{AD + 3}, v{XR} offset:{SSZ}', WaitTag(vm_tags=['WCO'])]
        assert V3OFF == 0
        for s2 in range(2):
            for rd in range(2):
                L.append(f'ds_read_b64 {vr(AFR + 4 * s2 + 2 * rd, 2)}, v{AD} offset:{s2 * 32 + rd * 8}')
        L += [f'ds_read_u16 v110, v{AD + 1}',
              's_mov_b64 exec, 0x3ffffff', f'ds_write_b16 v{AD + 2}, v110', 'v_lshlrev_b32 v109, 17, v110', 'v_lshrrev_b32 v109, 1, v109', 's_mov_b64 exec, -1']
        if o.cwalk:
            L += ['s_mov_b64 exec, 0'] + [x for q_ in range(3) for x in (f's_cmp_eq_u32 s{cw}, {q_}', f's_cbranch_scc1 L_WENTRY{q_}')] + ['s_branch L_WENTRY3', 'L_wret:', 's_mov_b64 exec, -1']
        L += (FX(1)[1] if o.dirt else vbs) + [WaitTag(vm_tags=['TAB'], lgkm0=True)] + self.probe('tab') + (pfw(PFR) if o.pfw and o.pfs == 1 else []) + (hw if o.hw and o.hwat == 0 else []) + (hx if o.hxat == 0 else [])
        v3p = []
        L += ['s_barrier'] + self.stamp(2) + self.probe('b0')
        vb = lambda m: A3 - A1 - 512 + (m >> 1) * 512 + (m & 1) * 64
        for m in range(3):
            L += bread(m, vb(m))
        for m in range(6):
            if m + 3 < 6:
                L += bread(m + 3, vb(m + 3))
            L += mm2(DALL + m * 16, AFR, BALL + m * 8)
            if m == 3 and not o.dirt:
                L += FX(1)[0]
        if not o.dirt:
            L += FX(1)[1][3:]
        for p_ in range(3):
            L += ['s_mov_b32 exec_lo, 0', f'v_mov_b32 v{DALL + 32 * p_}, v{DALL + 32 * p_ + 16}', 's_mov_b32 exec_lo, -1',
                  f'v_cvt_pk_bf16_f32 v{BALL + p_}, 0, v{DALL + 32 * p_}']
            if p_ == 2:
                L += [f's_mov_b64 exec, s[{S_MASK}:{S_MASK + 1}]']
            L += [f'ds_write_b16_d16_hi v{AV[p_]}, v{BALL + p_}', f'v_max_f32 v108, |v{BALL + p_}|, v108']
        L += ['s_mov_b64 exec, -1'] + pub2(108, 109, 8) + self.stamp(13) + [f's_setprio {o.g1p}'] + (hw if o.hw and o.hwat == 1 else []) + (hx if o.hxat == 1 else []) + (g1touch if o.g1t == 1 else []) + ['s_waitcnt lgkmcnt(0)', 's_barrier'] + (g1touch if o.g1t == 2 else []) + ['s_branch L_w2']
        v3 = self.seq(L)

        def stage3(dst, goff, tag, lab, mid=None, fill=()):
            st = stage(dst, goff, tag)
            a_ = st[:8] if mid is None else st[:mid[0]] + [tuple(mid[1])] + st[mid[0]:8]
            return (self.seq(interleave(a_, list(fill)) + [f's_cmp_eq_u32 s{cw}, 3', f's_cbranch_scc1 {lab}']), self.seq([st[8]]), self.seq([f'{lab}:']))
        g0 = [self.seq(['L_g0:'] + ([x.replace('v107,', 'v103,') for x in CO] if o.coop >= 3 else ['s_waitcnt lgkmcnt(0)'] + self.build_srd(SRD_CIN, S_CIN, 105456)) + (['s_barrier'] if o.coop in (2, 4) else []) + ([Touch('v103')] if o.coop == 5 else []))]
        g0.append(stage3(A3, 70304, 'W3', 'L_st3'))
        g0.append(self.seq(self.stamp0() + self.build_srd(SRD_IDX, S_IDX, 4096 * 104) + ([f's_add_u32 s{S_SAMP}, s{S_SAMP}, {8 * 104}'] if o.xg1 else xidx(XI, t4) + xidx(XJ, t4)) + self.build_srd(SRD_TAB, S_TAB, 100000 * 128)))
        def w2grp(n):
            c = []
            for k, go in enumerate((0, 1024, 1864)):
                c.append((f's_add_u32 m0, s{S_STG9}, {A2 + n * 4 * 3072 + k * 1024}', f's_add_u32 s{S_TW}, s{S_TGT}, {35152 + n * 4 * 2704 + go}',
                          I(f'buffer_load_dwordx4 v{t5 if k == 1 else vStg}, {srd(SRD_CIN)}, s{S_TW} offen lds', tag='W2')))
            return c
        g0.append((self.seq([f's_mul_i32 s{S_STG9}, s{cw}, 3072', f's_mul_i32 s{S_TGT}, s{cw}, 2704', f'v_lshrrev_b32 v{t5}, 5, v0', f'v_mul_u32_u24 v{t5}, 184, v{t5}',
                             f'v_sub_u32 v{t5}, v{vStg}, v{t5}'] + interleave(w2grp(0) + w2grp(1) + w2grp(2), SC2) + [f's_cmp_lg_u32 s{cw}, 0', 's_cbranch_scc1 L_st2']),
                   self.seq(w2grp(3)), self.seq(['L_st2:']), 1))
        xx = xdma(vC16=t3, tag='XBa') + xdma(XJ, 4 * XBSZ, vC16=t3)
        g0.append(stage3(A1, 0, 'W1', 'L_st1', (o.sigat, [WaitTag(vm_tags=['W2' if o.mrg else 'W3']), 's_barrier'] + self.stamp(2) + FX(0)[0])))
        g0.append(self.seq((xx if o.xat == 0 else xx[:len(xx) // 2] if o.xat == 3 else []) + (pfw(PFR) if o.pfw and o.pfs == 1 else []) + FX(0)[1] + (xx if o.xat == 2 else xx[:len(xx) // 2] if o.xat >= 4 else []) + self.stamp(13)
                           + [WaitTag(vm_tags=['W1']), 's_barrier'] + (xx if o.xat == 1 else xx[len(xx) // 2:] if o.xat == 3 else [])))

        def G0(w):
            r = []
            for x in g0:
                r += x if isinstance(x, list) else x[0] + (x[1] if w < (3 if len(x) == 3 else x[3]) else []) + x[2]
            return r

        def gather(dst, off):
            c = [f'v_add_u32 v{r}, {off}, v{r}' for r in (vGa, vGb)] if off else []
            for s2 in range(2):
                for e in range(0, 8, 2):
                    base = vGb if (s2 == 1 and e >= 2) else vGa
                    h = 16 * s2 + e
                    c.append(f'ds_read2st64_b32 {vr(dst + 8 * s2 + e, 2)}, v{base} offset0:{6 * h} offset1:{6 * h + 6}')
            return c

        def perms(g_, aj):
            return [f'v_perm_b32 v{aj + 8 * jj + r}, v{g_ + 2 * r + 1}, v{g_ + 2 * r}, s{S_U1 + jj}' for jj in range(2) for r in range(8)]

        def sout(t):
            d, c_ = DALL + 16 * t, DALL + 16 * t
            c = [f'v_cvt_pk_f16_f32 v{c_ + r}, v{d + 2 * r}, v{d + 2 * r + 1}' for r in range(8)]
            return c[:4] + [f'ds_write_b128 v{WA[t]}, {vr(c_, 4)}', f'v_xor_b32 v{WA[t]}, 16, v{WA[t]}'] + c[4:] + [f'ds_write_b128 v{WA[t]}, {vr(c_ + 4, 4)}']
        M1, M2 = 28, 28

        def pub1(r, off):
            c = [f'v_max_u32_dpp v{r}, v{r}, v{r} {ctl} row_mask:{rm} bank_mask:0xf' for ctl, rm in DPPS]
            return c + [('s_mov_b32 exec_lo, 0', 's_mov_b32 exec_hi, 0x80000000', f'ds_max_u32 v{vFR}, v{r} offset:{16 + off}', 's_mov_b64 exec, -1')]
        L = ['L_w2:'] + self.stamp(14) + self.probe('bw2') + gather(BALL, 0) + (pfw(PFR) if o.pfw and o.pfs == 2 else []) + (pfx_a() if o.pfx else [])
        cx = []
        if o.xg1:
            cc0 = self.seq(L + [f's_cmp_eq_u32 s{S_GRP}, 0', 's_cbranch_scc1 L_nx1'])
            cx = self.seq(xdma(XI, -4 * XBSZ) + xdma(XK))
            L = ['L_nx1:']
        else:
            cc0 = []
        L += [f's_cmp_ge_u32 s{S_WAVE}, 5', 's_cbranch_scc1 L_u0']
        cc = self.seq(L)
        M1, M2 = 28, 108
        fin2 = lambda: interleave(mxfin(M1), mxfin(M2)) + [tuple(x) if isinstance(x, list) else x for x in pub2(M1, M2, 0)[:7] + [pub2(M1, M2, 0)[7:]]]
        afr = [f'ds_read_b64_tr_b16 {vr(AFR + 4 * s2 + 2 * rd, 2)}, v{vA3} offset:{s2 * 1024 + rd * 256}' for s2 in range(2) for rd in range(2)]
        b1u = self.seq(gather(BALL + 32, 32) + bread(2, 0) + bread(3, 64) + afr + mxop(BALL, 16, M2, True) + perms(BALL, DALL + 64)[:8] + mxop(BALL + 32, 16, M2, False)
                       + mxop(BALL + 16, 16, M1, True) + perms(BALL, DALL + 64)[8:] + interleave(fin2(), perms(BALL + 32, BALL)) + ['s_branch L_u1'])
        L = ['L_u0:'] + bread(2, 0) + bread(3, 64) + bread(4, 384) + bread(5, 384 + 64) + afr + mxop(BALL, 16, M2, True) + mxop(BALL + 16, 32, M1, True)
        L += perms(BALL, DALL + 64)[:4] + interleave(fin2(), perms(BALL, DALL + 64)[4:])
        L += [f'v_add_u32 v{WA[4]}, {192 * 64}, v{WA[2]}', f'v_add_u32 v{WA[5]}, {192 * 64}, v{WA[3]}',
              f's_cmp_lg_u32 s{S_WAVE}, 7', 's_cbranch_scc1 L_u1', 's_mov_b32 exec_lo, 0xfffffff0', 's_mov_b32 exec_hi, 0xfffffff0', f'v_mov_b32 v{WA[5]}, {OOB}', 's_mov_b64 exec, -1']
        b1q = self.seq(L)
        MXR = 108
        vM = 58

        def ureads(j):
            return [f'ds_read_u16_d16_hi v{XR + 2 * j}, v{vXa} offset:{XOFF(2 * j)}',
                    f'ds_read_u16_d16_hi v{XR + 2 * j + 1}, v{vXa} offset:{XOFF(2 * j) + 2}']
        mx3 = lambda j: f'v_max3_f32 v{vM}, |v{XR + 2 * j}|, |v{XR + 2 * j + 1}|, {"0" if j == 0 else f"v{vM}"}'
        L = ['L_u1:'] + self.stamp(1) + [WaitTag(lgkm0=True), 's_barrier'] + self.stamp(7) + self.probe('b1')
        L += [f'ds_read_b128 {vr(MXR, 4)}, v{vFR} offset:16'] + (pfx_b() + pfx_a() if o.pfx and o.pf1 == 1 else [])
        hook = {}

        def mkhook(name, c0_, c1_):
            nonlocal L
            if not (c0_ or c1_):
                return
            pre_ = self.seq(L + [f's_cmp_lg_u32 s{S_GRP}, 0', f's_cbranch_scc1 L_{name}1'])
            a_ = self.seq(c0_ + [f's_branch L_{name}2'])
            b_ = self.seq([f'L_{name}1:'] + c1_)
            hook[name] = (pre_, a_, b_)
            L = [f'L_{name}2:']
        mkhook('hb', xdma(XJ, 4 * XBSZ) if o.xat == 5 else [], g1touch if o.g1t == 3 else [])
        L += [f's_mul_i32 s{S_T0}, s{S_WAVE}, 384', f'v_lshrrev_b32 v{t3}, 2, v0', f'v_mul_u32_u24 v{t3}, 24, v{t3}', f'v_add_u32 v{t3}, s{S_T0}, v{t3}',
              f'v_and_b32 v{t4}, 3, v0', f'v_lshlrev_b32 v{t4}, 3, v{t4}']
        L += [f'ds_read_b64 {vr(UA + 2 * n_, 2)}, v{t3} offset:{TC_ + 8 * n_}' for n_ in range(3)]
        q1 = [f'v_add_u32 v{MXR}, {127 << 23:#x}, v{MXR}', f'v_lshrrev_b32 v{MXR}, 24, v{MXR}', f'v_sub_u32 v{MXR}, 267, v{MXR}', f'v_min_u32 v{MXR}, 167, v{MXR}',
              f'v_readfirstlane_b32 s{S_F1}, v{MXR}', f'v_mul_u32_u24 v{MXR}, 0x800080, v{MXR}']
        sc = [f'v_add_u32 v{MXR + 1}, {127 << 23:#x}, v{MXR + 1}', f'v_lshrrev_b32 v{MXR + 1}, 24, v{MXR + 1}',
              's_mov_b32 vcc_lo, 0x4000000', 's_mov_b32 vcc_hi, 0x4000000', f'v_cndmask_b32 v{vS}, v{MXR + 2}, v{MXR + 3}, vcc', f'v_lshrrev_b32 v{vS}, 23, v{vS}',
              f'v_add_u32 v{vS}, v{vS}, v{MXR + 1}', f'v_sub_u32 v{vS}, 388, v{vS}', f's_movk_i32 s{S_U0}, 167', f'v_med3_i32 v{vS}, v{vS}, 1, s{S_U0}',
              f'v_subrev_u32 v{MXR + 2}, 127, v{vS}', f'v_lshlrev_b32 v{vS}, 23, v{vS}', f'v_cmp_gt_i32 vcc, 0, v{MXR + 2}',
              f'v_mul_u32_u24 v{MXR + 2}, 0x800080, v{MXR + 2}']
        mq = mm2(DALL + 32, PM, BALL + 16) + mm2(DALL + 48, PM, BALL + 24)
        L += interleave(q1, sc[:6]) + [f'v_and_b32 v{PM + r}, v{PM + r}, v{MXR}' for r in range(8)] + interleave([mq[0], mq[2], mq[1], mq[3]], sc[6:]) + ['s_cbranch_vccnz L_sdown']
        L += [f'v_add_u32 v{AFR + r}, v{AFR + r}, v{MXR + 2}' for r in range(8)]
        u1a = self.seq(L)
        L = ['L_scaled:'] + interleave(mm2(DALL, DALL + 64, AFR) + mm2(DALL + 16, DALL + 72, AFR), sout(2) + sout(3))
        L += [f's_cmp_ge_u32 s{S_WAVE}, 5', 's_cbranch_scc1 L_u2']
        u1 = self.seq(L)
        u2u = self.seq(interleave(mm2(DALL + 64, BALL, AFR) + mm2(DALL + 80, BALL + 8, AFR), sout(0)) + ['s_branch L_u3'])
        u2q = self.seq(['L_u2:'] + interleave(mm2(DALL + 64, PM, BALL + 32) + mm2(DALL + 80, PM, BALL + 40), sout(0)))
        L = ['L_u3:'] + xidx() + xidx(112) + (pfx_b() + pfx_a() if o.pfx and o.pf1 == 2 else [])
        mkhook('hu', xdma(XJ, 4 * XBSZ) if o.xat == 4 else [], g1touch if o.g1t == 4 else [])
        L += interleave(sout(1) + sout(4) + sout(5), [x for n_ in range(6) for x in (f'v_xor_b32 v{UA + n_}, v{UA + n_}, v{t4}', f'v_xor_b32 v{UX[n_]}, 32, v{UA + n_}')])
        L += [f'v_readlane_b32 s{S_CG}, v{vS}, 0', f'v_readlane_b32 s{S_IV}, v{vS}, 26',
              f's_sub_u32 s{S_F2}, {254 << 23:#x}, s{S_CG}', f's_sub_u32 s{S_IV}, {254 << 23:#x}, s{S_IV}',
              f's_sub_u32 s{S_F1}, 254, s{S_F1}', f's_lshl_b32 s{S_F1}, s{S_F1}, 23',
              f's_mov_b32 s{S_MASK}, 0x88888888', f's_mov_b32 s{S_MASK + 1}, 0x88888888']

        def sigma(s_):
            t = (s_ - 1) // 2
            first = (s_ - 1) % 2 == 0
            return (0 if first else 1) if t % 2 == 0 else (1 if first else 0)
        for s_ in range(1, 11):
            assert ((s_ - 1) // 2) * 1024 + sigma(s_) * 512 - (s_ // 4) * 2048 == (-1024, 0, 512, 1536)[s_ % 4]

        def p2read(n_):
            b = BALL + 16 * n_
            c = []
            UAl = list(range(UA, UA + 6))
            for x, (ar, off) in enumerate(((UAl, 0), (UX, 0), (UAl, SSZ), (UX, SSZ))):
                for y in range(2):
                    c.append(f'ds_read_b64_tr_b16 {vr(b + 4 * x + 2 * y, 2)}, v{ar[2 * n_ + y]} offset:{off}')
            return c

        def p2a(n_):
            b = BALL + 16 * n_
            c = []
            for x in range(4):
                c += [f'v_pk_add_f16 v{b + 4 * x + y}, v{b + 4 * x + y}, v{b + 4 * x + 2 + y}' for y in range(2)]
                if x in (0, 2):
                    c.append(f'ds_write_b64 v{vFw}, {vr(b + 4 * x, 2)} offset:{FR + n_ * 4 * 3072 + x * 1024}')
            c += [f'v_cndmask_b32 v{b + 4 + y}, v{b + 4 + y}, v{b + 12 + y}, s[{S_MASK}:{S_MASK + 1}]' for y in range(2)]
            c.append(f'ds_write_b64 v{vFw}, {vr(b + 4, 2)} offset:{FR + n_ * 4 * 3072 + 1024}')
            return c

        def p2s(n_):
            b = BALL + 16 * n_ + 12
            off = FRS + max(n_ * 2048 - 1024, 0)
            return ([f'v_subrev_u32 v{vT3}, 1024, v{vT3}'] if n_ == 0 else []) + [
                f'ds_write_b32 v{vT3}, v{b} offset:{off}', f'ds_write_b32 v{vT3}, v{b + 1} offset:{off + 16}']
        ec = []
        if o.econv:
            L += [f's_cmp_lg_u32 s{S_GRP}, 0', 's_cbranch_scc1 L_noec']
            u3 = self.seq(L)
            ec = self.seq([WaitTag(vm_tags=['XBa'])] + [x for j in range(13) for x in ureads(j)])
            L = ['L_noec:']
        else:
            u3 = []
        L += [WaitTag(vm_tags=['XB'] if o.xg1 else [], lgkm0=True), 's_barrier'] + self.stamp(10)
        L += p2read(0) + p2read(1) + [f's_cmp_ge_u32 s{S_WAVE}, 6', 's_cbranch_scc1 L_lin']
        b2 = self.seq(L)
        p2c = self.seq(p2read(2) + p2a(2) + p2s(2) + ['s_branch L_p2'])
        LB = BALL + 32
        ZR4 = t5
        L = ['L_lin:', f's_and_b32 s{S_U0}, s{S_WAVE}, 1', f's_cselect_b64 vcc, -1, 0', f's_lshl_b32 s{S_U1}, s{S_U0}, 5', f'v_mov_b32 v{ZR4}, 0',
             f'v_xor_b32 v{vV2r}, s{S_U1}, v{vV2r}', f'v_xor_b32 v{vV2q}, s{S_U1}, v{vV2q}', f'v_cndmask_b32 v{vWo}, v{vWo}, v{vWo + 1}, vcc',
             f'ds_read_b64_tr_b16 {vr(LB, 2)}, v{vV2r}', f'ds_read_b64_tr_b16 {vr(LB + 2, 2)}, v{vV2q}',
             f'ds_read_u16_d16_hi v{ZR4}, v{vWo}',
             f's_lshl_b32 s{S_U0}, s{S_U0}, 10', f'v_add_u32 v{t3}, s{S_U0}, v{vStg}']
        for r in range(4):
            a_, b_ = LB + 4 + 2 * r, LB + 5 + 2 * r
            L += [f'v_cvt_f32_f16 v{a_}, v{LB + r}', f'v_cvt_f32_f16_sdwa v{b_}, v{LB + r} dst_sel:DWORD dst_unused:UNUSED_PAD src0_sel:WORD_1',
                  f'v_mul_f32 v{a_}, s{S_IV}, v{a_}', f'v_mul_f32 v{b_}, s{S_IV}, v{b_}']
            if r == 3:
                L += ['s_mov_b32 exec_lo, 0', 's_mov_b32 exec_hi, 0xffff', f'v_mov_b32 v{a_}, v{ZR4}', 's_mov_b64 exec, -1']
            L += [f'v_mul_f32 v{a_}, s{S_CG}, v{a_}', f'v_mul_f32 v{b_}, s{S_CG}, v{b_}', f'v_cvt_pk_bf16_f32 v{LB + r}, v{a_}, v{b_}']
        L += [f'ds_write_b128 v{t3}, {vr(LB, 4)} offset:{FRL}']
        lin = self.seq(L)
        p2 = self.seq(['L_p2:'] + p2a(1) + p2s(1) + p2a(0) + [f's_cmp_lt_u32 s{S_WAVE}, 2', 's_cbranch_scc1 L_p2d'])
        p2e = self.seq(p2s(0) + ['s_branch L_built'])
        p2d = self.seq(['L_p2d:', f'ds_write_b64 v{vT3d}, {vr(BALL + 12, 2)} offset:{FRS + 5 * 1024}'])

        L = ['L_sdown:']
        for r in range(8):
            L += [f'v_lshlrev_b32 v{MXR}, 16, v{AFR + r}', f'v_and_b32 v{MXR + 1}, 0xffff0000, v{AFR + r}',
                  f'v_mul_f32 v{MXR}, v{MXR}, v{vS}', f'v_mul_f32 v{MXR + 1}, v{MXR + 1}, v{vS}', f'v_cvt_pk_bf16_f32 v{AFR + r}, v{MXR}, v{MXR + 1}']
        self.sdown = L + ['s_branch L_scaled']

        HK = lambda n_, g_: hook[n_][0] + hook[n_][1 + g_] if n_ in hook else []

        def PRE(w, sd=None):
            grp = w >> 2
            return (c0 + (g1s + (g1t if w < 6 else []) if grp else []) + csc + (v3p + v3 if grp else G0(w)) + cc0 + (cx if grp else []) + cc + (b1q if w >= 5 else b1u)
                    + HK('hb', grp) + (u1a if sd is None else u1a[:-8] + sd) + u1 + (u2q if w >= 5 else u2u) + HK('hu', grp) + u3 + ([] if grp else ec) + b2
                    + (lin if w >= 6 else p2c) + p2 + (p2d if w < 2 else p2e))
        L = ['L_built:'] + self.stamp(11)
        L += [f's_mov_b32 s{S_CG}, s{S_F1}', f's_mov_b32 s{S_IV}, s{S_F2}', f's_mov_b32 s{S_LO}, {f32hex(0.125)}', f's_mov_b32 s{S_HI}, {f32hex(0.0 if o.slow else 128.0)}']
        CV, vM, S_XD = 28, 58, 81

        def ureads(j):
            return [f'ds_read_u16_d16_hi v{XR + 2 * j}, v{vXa} offset:{XOFF(2 * j)}',
                    f'ds_read_u16_d16_hi v{XR + 2 * j + 1}, v{vXa} offset:{XOFF(2 * j) + 2}']
        mx3 = lambda j: f'v_max3_f32 v{vM}, |v{XR + 2 * j}|, |v{XR + 2 * j + 1}|, {"0" if j == 0 else f"v{vM}"}'
        cvt = lambda j: f'v_cvt_pk_f16_f32 v{CV + j % 4}, v{XR + 2 * j}, v{XR + 2 * j + 1}'
        iwr = lambda j: f'ds_write_b32 v{vIw}, v{CV + j % 4} offset:{j * IMGP}'
        S_SKIP = 51
        pfr = lambda: (pfx_b() + pfx_a() if o.pfx else []) + (pfw() if o.pfw == 1 else [])
        conv = lambda tag='XB': ([WaitTag(vm_tags=[tag])] + [x for j in range(13) for x in ureads(j)]
                        + [x for j in range(13) for x in (mx3(j), f'v_cvt_pk_f16_f32 v{D + j}, v{XR + 2 * j}, v{XR + 2 * j + 1}')])
        L += [f's_mov_b32 s{S_SKIP}, 1', f's_mul_i32 s{S_U0}, s{S_WAVE}, 1536', f's_add_u32 s{S_U0}, s{S_U0}, {PART}',
              f's_cmp_lg_u32 s{S_GRP}, 0', 's_cbranch_scc1 L_g1c']
        c2a = self.seq(L)
        c2g0 = self.seq([f's_sub_u32 s{S_SAMP}, s{S_SAMP}, {4 * 104}', Touch('v[112:115]')] + (conv('XBa')[27:] if o.econv else conv('XBa')) + [WaitTag(lgkm0=True), 's_barrier'] + self.probe('b4a') + self.stamp(8) + ['s_branch L_cin_go'])
        DX = XB2 - XB - 4 * XBSZ
        L = ['L_g1c:', WaitTag(vm_tags=['XB'], lgkm0=True), 's_barrier'] + self.stamp(8) + self.probe('b4')
        L += [f's_add_u32 s{S_XM0}, s{S_XM0}, {DX}'] + xdma(tag='XB0') + xdma(112, 4 * XBSZ) + xidx() + pfr() + [f'v_add_u32 v{r}, {DX}, v{r}' for r in (vXa, vLin0, vLin1)]
        L += [f'ds_write_b32 v{vXa}, v{vXi1} offset:{XOFF(26)}', f'ds_write_b32 v{vXa}, v{vXi1} offset:{XOFF(26) + 4 * XBSZ}']
        c2g1 = self.seq(L)
        c2b = []
        c2g1d = self.seq(['L_g1d:'] + conv('XB0'))
        c2c = self.seq(['L_cin_go:'] + [f'ds_write_b32 v{vIw}, v{D + j} offset:{j * IMGP}' for j in range(13)]
                       + [f's_mov_b32 s{S_XD}, {4 * XBSZ}', f's_add_u32 s{S_XM0}, s{S_XM0}, {4 * XBSZ}',
                          f'v_lshlrev_b32 v{vXi1}, 2, v0', f'v_add_u32 v{vXi1}, s{S_U0}, v{vXi1}'])

        NWF = 5
        PF = o.cpfd
        zslot = lambda s_: 1 if s_ % 2 == 0 else (0 if ((s_ - 1) // 2) % 2 == 0 else 2)
        zr = lambda T, sl: Z + 12 * T + 4 * sl
        preg = lambda T, r: P + 14 * T + (r if r < 14 else r - 14)
        acc = lambda T, tile: D + 16 * T + 4 * tile
        jobs = [('l', 0, 0), ('l', 0, 1)]
        for s_ in range(11):
            jobs += [('d', s_, 2), ('d', s_, 0), ('d', s_, 1)]
            if s_ == 0:
                jobs.append(('d', 0, 3))
            elif s_ % 2 == 0:
                jobs.append(('s', s_, 3))
        NJ = len(jobs)
        assert NJ == 41

        def wread(n):
            kind, s_, tile = jobs[n]
            off = FRL + tile * 1024 if kind == 'l' else (FR + s_ * 3072 + tile * 1024 if tile < 3 else FRS + (5 if s_ == 0 else (s_ - 1) // 2) * 1024)
            return f'ds_read_b128 {vr(WF + 4 * (n % NWF), 4)}, v{vFa} offset:{off}'

        def mfma(n, T):
            kind, s_, tile = jobs[n]
            a = vr(WF + 4 * (n % NWF), 4)
            d = vr(acc(T, tile), 4)
            if kind == 'l':
                return f'v_mfma_f32_16x16x32_bf16 {d}, {a}, {vr(zr(T, 2), 4)}, 0'
            if kind == 's':
                lo = 0 if ((s_ - 1) // 2) % 2 == 0 else 1
                return f'v_smfmac_f32_16x16x64_f16 {d}, {a}, {vr(zr(T, lo), 8)}, v{vIDX}'
            return f'v_mfma_f32_16x16x32_f16 {d}, {a}, {vr(zr(T, zslot(s_)), 4)}, {"0" if (s_ == 0 and tile >= 2) else d}'

        def pk(T, n):
            a, b, s0, s1 = cin16.INS[n]
            return (f'v_pk_mul_f16 v{zr(T, zslot(n // 4)) + n % 4}, v{preg(T, a)}, v{preg(T, b)} '
                    f'op_sel:[{s0[0]},{s0[1]}] op_sel_hi:[{s1[0]},{s1[1]}]')

        def trp(T, rp):
            return f'ds_read_b64_tr_b16 {vr(preg(T, 2 * rp), 2)}, v{vTR + rp} offset:{32 * T}'

        LASTA = max(n for n, x in enumerate(cin16.INS) if x[0] < 2)
        S_A1, S_A2, S_PINC = 49, 50, 48
        fin = []
        for T in range(4):
            fin += [(acc(T, 0) + r, acc(T, 2) + r) for r in range(4)] + [(acc(T, 1), acc(T, 1) + 3)]
        for T in range(4):
            fin += [(acc(T, 1) + 1 + (r >> 1), acc(T, 3) + r) for r in range(4)]

        def final(f1, f2):
            c = []
            for k, (a, b) in enumerate(fin):
                d = Z + k % 4
                c.append(f'v_mul_f32 v{d}, v{a}, v{b}' if k < 4 else f'v_fmac_f32 v{d}, v{a}, v{b}')
            c += [f'v_add_f32 v{Z}, v{Z}, v{Z + 1}', f'v_add_f32 v{Z + 2}, v{Z + 2}, v{Z + 3}', f'v_add_f32 v{Z}, v{Z}, v{Z + 2}']
            c += [f'v_mul_f32 v{Z}, s{x}, v{Z}' for x in (f1, f2)]
            return c + [f'ds_write_b32 v{vXi1}, v{Z}']
        code = ['L_cin_loop:', f'v_cmp_le_f32 s[{S_CM}:{S_CM + 1}], s{S_HI}, v{vM}', f'v_cmp_le_f32 vcc, s{S_LO}, v{vM}',
                f's_mov_b32 s{S_A1}, s{S_F1}', f's_mov_b32 s{S_A2}, s{S_F2}',
                f's_cmp_lg_u64 s[{S_CM}:{S_CM + 1}], 0', 's_cbranch_scc1 L_cslow', 's_cbranch_vccz L_cslow']
        cA = self.seq(code)
        RD = []
        for rp in (0, 3, 4):
            RD += [trp(T, rp) for T in range(4)]
        for T in range(4):
            RD += [f'ds_read_b64_tr_b16 {vr(zr(T, 2), 2)}, v{vLin0} offset:{32 * T}', f'ds_read_b64_tr_b16 {vr(zr(T, 2) + 2, 2)}, v{vLin1} offset:{32 * T}']
        RD += [wread(k) for k in range(PF)]
        for rp in (5, 6, 1, 2):
            RD += [trp(T, rp) for T in range(4)]
        pfr = lambda: (pfx_b() + pfx_a() if o.pfx else []) + (pfw() if o.pfw == 1 else [])
        vm = xdma() + xidx() + pfr()
        VA = final(S_A1, S_A2) + [f'v_add_u32 v{vXi1}, 256, v{vXi1}']
        PK0 = [pk(T, n) for T in range(4) for n in range(4)]
        TG = [f'v_add_u32 v{r}, s{S_XD}, v{r}' for r in (vXa, vLin0, vLin1)] + [f's_sub_u32 s{S_XM0}, s{S_XM0}, s{S_XD}', f's_sub_u32 s{S_XD}, 0, s{S_XD}', f's_mov_b32 s{S_SKIP}, 0']
        cB0 = self.seq(['L_cconv:', f's_cmp_lg_u32 s{S_SKIP}, 0', 's_cbranch_scc1 L_first'])
        cVM = self.seq(interleave(RD, VA) + PK0 + vm)
        self.first = ['L_first:'] + RD[:28] + interleave(RD[28:], PK0) + ['s_branch L_novm']
        code = ['L_novm:'] + TG
        LA = 1
        def lstamp(base):
            if not (o.stamps and o.cst):
                return []
            return [f's_memtime s[{S_ST}:{S_ST + 1}]', f's_memrealtime s[{S_ST + 2}:{S_ST + 3}]', f's_sub_u32 s{S_C0}, {base + 6}, s{S_LOOP}', 's_waitcnt lgkmcnt(0)',
                    f's_mov_b32 m0, s{S_C0}', f'v_writelane_b32 v252, s{S_ST}, m0', f'v_writelane_b32 v253, s{S_ST + 2}, m0']
        code += lstamp(19)
        code += [Touch(vr(WF, 4)), Touch(vr(zr(3, 2), 4))] + ([f's_cmp_eq_u32 s{S_GRP}, 0', 's_cbranch_scc1 L_np1', 's_setprio 1', 'L_np1:'] if o.gprio else ['s_setprio 1'])
        MS = []
        for n in range(NJ):
            pos = [i_ for i_ in range(n + 1) if jobs[i_][1] == jobs[n][1] and (jobs[i_][0] == 'l') == (jobs[n][0] == 'l')].index(n)
            last = jobs[n][2] == 3 or (n + 1 < NJ and jobs[n + 1][1] != jobs[n][1])
            MS += [(n, 3 - T if (o.csn and pos == 1) else T) for T in range(4)]
        first_use, last_use = {}, {}
        for mi, (n, T) in enumerate(MS):
            kind, s_, tile = jobs[n]
            if kind == 'l':
                last_use[(T, 'lin')] = mi
                continue
            for su in ([s_] if kind == 'd' else [s_ - 1, s_]):
                first_use.setdefault((T, su), mi)
                last_use[(T, su)] = mi
        V = []
        for s_ in range(LA, 11):
            prev = [p_ for p_ in range(s_) if zslot(p_) == zslot(s_)]
            for T in range(4):
                rdy = last_use[(T, prev[-1])] + o.war if prev else (last_use[(T, 'lin')] if zslot(s_) == 2 else -1)
                for n in range(4 * s_, 4 * s_ + 4):
                    V.append((pk(T, n), rdy, first_use[(T, s_)], n, T))
        forced = 0
        late = []
        XL_ = [x for j in range(13) for x in ureads(j)]
        xrd = {}
        CVR = [preg(T, r) for r in (2, 3, 6, 7) for T in range(4)]
        cvrdy = max(n for n, x in enumerate(cin16.INS) if set(x[:2]) & {2, 3, 6, 7})
        cvt2 = lambda j: f'v_cvt_pk_f16_f32 v{CVR[j]}, v{XR + 2 * j}, v{XR + 2 * j + 1}'
        iwr2 = lambda j: f'ds_write_b32 v{vIw}, v{CVR[j]} offset:{j * IMGP}'
        nm = nc = nw = 0
        V.sort(key=lambda x: x[2])
        prev2 = 0
        for mi, (n, T) in enumerate(MS):
            while V and V[0][2] <= mi:
                assert V[0][1] < mi
                code.append(V.pop(0)[0]); forced += 1
            code.append(mfma(n, T))
            T = mi % 4
            t = 4
            if o.cbar and mi == len(MS) - 1 - o.cbov:
                code += ['s_setprio 3', 's_barrier']; t += 8
            if not o.cbar and mi == 4 * o.hiat - 2:
                code.append('s_setprio 2'); t += 4
            if T == 3 and n + 1 < NJ:
                code.append(Touch(vr(WF + 4 * ((n + 1) % NWF), 4))); t += 4
            if T == 0 and n + PF < NJ:
                code.append(wread(n + PF)); t += 8
            elif T in (1, 2) and late:
                code.append(late.pop(0)); t += 8
            elif T in (1, 2) and mi >= o.x0 and XL_:
                if len(XL_) == 26:
                    code.append(WaitTag(vm_tags=['XB']))
                code.append(XL_.pop(0)); t += 8
                if len(XL_) % 2 == 0:
                    xrd[12 - len(XL_) // 2] = mi
            elif not V and nw < nc and t == 4:
                code.append(iwr2(nw)); nw += 1; t += 12
            t = max(t, 12 if jobs[n][0] == 's' else 8)
            k = 0
            while t < 16:
                urgent = any(V[q_][2] - 1 - mi < q_ + 1 for q_ in range(min(24, len(V))))
                if k == 1 and prev2 >= o.max2 and not urgent:
                    break
                cand = [x for x in V[:32] if x[1] <= mi]
                extra = None
                if nm < 13 and nm in xrd and xrd[nm] + o.xlat <= mi:
                    extra = 'm'
                elif nc < nm and all(x[3] > cvrdy for x in V):
                    extra = 'c'
                if cand and (k == 0 or urgent or not extra) and (k == 0 or urgent or o.eager):
                    x = cand[0]
                    V.remove(x)
                    code.append(x[0])
                    if x[3] <= LASTA and all(y[3] > LASTA for y in V if y[4] == x[4]):
                        late.append(trp(x[4], 7))
                elif extra == 'm':
                    code.append(mx3(nm)); nm += 1
                elif extra == 'c':
                    code.append(cvt2(nc)); nc += 1
                else:
                    break
                t += 4; k += 1
            prev2 = prev2 + 1 if k == 2 else 0
        assert not late and not XL_ and not V
        print('left', 13 - nm, 13 - nc, 13 - nw)
        tail = [mx3(j) for j in range(nm, 13)] + [cvt2(j) for j in range(nc, 13)] + [iwr2(j) for j in range(nw, 13)]
        print('forced VALU', forced)
        code += lstamp(25)
        code.append(f's_setprio {o.p0}')
        code += [f's_sub_u32 s{S_LOOP}, s{S_LOOP}, 1', f's_cmp_eq_u32 s{S_LOOP}, 0', 's_cbranch_scc1 L_cin_done'] + tail
        ntail = len(tail) + 1
        def keep(x):
            t_ = x.text if isinstance(x, I) else x
            if isinstance(t_, tuple):
                return True
            if 'nopk' in o.dbg and t_.startswith('v_pk_mul_f16'):
                return False
            if 'nowf' in o.dbg and t_.startswith('ds_read_b128'):
                return False
            if 'nosm' in o.dbg and t_.startswith('v_smfmac'):
                return False
            return True
        code = [x for x in code if keep(x)]
        if 'bf' in o.dbg:
            code = [x.replace('x32_f16', 'x32_bf16').replace('x64_f16', 'x64_bf16') if isinstance(x, str) else x for x in code]
        cB = self.seq(code + ['s_branch L_cin_loop'])
        mark0 = len(self.P.static)
        bl = []
        if o.burn:
            bl = [f's_movk_i32 s{S_LOOP}, {o.burn // 2}', 'L_burn2:'] + [f'v_mfma_f32_16x16x32_f16 {vr(P + 4 * (k % 2), 4)}, {vr(WF + 4 * (k % 4), 4)}, {vr(Z + 4 * (k // 4), 4)}, 0' for k in range(32)]
            bl += [f's_sub_u32 s{S_LOOP}, s{S_LOOP}, 1', f's_cmp_lg_u32 s{S_LOOP}, 0', 's_cbranch_scc1 L_burn2']
        L = ['L_cin_done:', f's_mul_i32 s{S_U0}, s{S_WAVE}, 1536', f's_add_u32 s{S_U0}, s{S_U0}, {PART}',
             f'v_lshlrev_b32 v{Z + 4}, 5, v0', f'v_add_u32 v{Z + 4}, s{S_U0}, v{Z + 4}',
             f'ds_read_b128 {vr(P, 4)}, v{Z + 4}', f'ds_read_b128 {vr(P + 4, 4)}, v{Z + 4} offset:16'] + bl + final(S_F1, S_F2)[:-1]
        E = [f'v_subrev_u32 v{Z + 6}, s{S_U0}, v{vXi1}', f'v_lshrrev_b32 v{Z + 6}, 8, v{Z + 6}', f'v_lshrrev_b32 v{Z + 5}, 3, v0', f'v_cmp_gt_u32 vcc, v{Z + 6}, v{Z + 5}',
             f'v_min_u32 v{Z + 5}, v{Z + 5}, v{Z + 6}', f'v_lshlrev_b32 v{Z + 5}, 4, v{Z + 5}', f'v_add_u32 v{Z + 5}, s{S_RC}, v{Z + 5}',
             ] + [f'v_add_f32 v{P + a_}, v{P + a_}, v{P + b_}' for a_, b_ in ((0, 1), (2, 3), (4, 5), (6, 7), (0, 2), (4, 6), (0, 4))]
        E += [f'v_add_f32_dpp v{P}, v{P}, v{P} {ctl} row_mask:0xf bank_mask:0xf' for ctl in ('quad_perm:[1,0,3,2]', 'quad_perm:[2,3,0,1]', 'row_half_mirror')]
        L += interleave([f'v_add_f32_dpp v{Z}, v{Z}, v{Z} {ctl} row_mask:{rm} bank_mask:0xf' for ctl, rm in DPPS], E)
        L += [f'v_cndmask_b32 v{P}, v{Z}, v{P}, vcc', 's_bitset1_b32 vcc_hi, 31', 's_mov_b64 exec, vcc', f'ds_write_b32 v{Z + 5}, v{P}', 's_mov_b64 exec, -1']
        L += self.stamp(9) + self.stamp_flush() + self.probe('cend') + [f's_cmp_eq_u32 s{S_WAVE}, 0', 's_cbranch_scc1 L_cpub', 's_waitcnt lgkmcnt(0)', 's_barrier', 's_endpgm',
              'L_cpub:', f's_load_dword s{S_BOUT}, s[{S_BO}:{S_BO + 1}], 0'] + self.pubsrd() + [
              'v_lshlrev_b32 v6, 2, v0', f'v_add_u32 v2, {RC}, v6', 'v_add_u32 v4, 1024, v6',
              f's_mul_i32 s{S_T1}, s{S_MB}, 192', f's_add_u32 s{S_T1}, s{S_T1}, {13 * WSP}',
              'v_mov_b32 v13, -1', 's_mov_b32 exec_hi, 0xffff', f'buffer_store_dword v13, v6, {srd(SRD_WS)}, s{S_T1} offen sc1', 's_mov_b64 exec, 1',
              f'buffer_load_dword v250, v6, {srd(SRD_OUT)}, 0 offen', f'buffer_load_dword v251, v6, {srd(SRD_DBG)}, 0 offen offset:128 sc1', 's_mov_b64 exec, -1',
              f's_mul_i32 s{S_T0}, s{S_MB}, 3', f's_mul_i32 s{S_T2}, s{S_T0}, 3277', f's_lshr_b32 s{S_T2}, s{S_T2}, 16',
              f'v_add_u32 v7, s{S_T2}, v0', f's_mul_i32 s{S_T2}, s{S_T2}, 20', f's_add_u32 s{S_T2}, s{S_T2}, 20',
              f's_sub_u32 s{S_T2}, s{S_T2}, s{S_T0}', f's_min_u32 s{S_T2}, s{S_T2}, 3', f's_sub_u32 s{S_T0}, 3, s{S_T2}',
              f'v_mov_b32 v5, s{S_T0}', f'v_writelane_b32 v5, s{S_T2}, 0',
              f's_cmp_eq_u32 s{S_T0}, 0', f's_cselect_b32 s{S_T0}, 1, 3',
              'v_lshlrev_b32 v3, 4, v0'] + (['s_mov_b64 exec, 0', 's_branch L_pw0', 'L_pwc:'] if o.pwalk else []) + ['s_waitcnt vmcnt(0) lgkmcnt(0)'] + (self.cready('c', 251) if o.wsc else []) + ['s_mov_b32 exec_hi, 0xffff', 's_barrier'] + self.probe('cend2') + ['ds_read_b32 v64, v2']
        L += (self.stamp(16) if o.diag else [])
        L += ['v_min_u32 v64, -2, v64'] if o.sent else []
        L += [f'buffer_store_dword v64, v6, {srd(SRD_WS)}, s{S_T1} offen sc1', f's_mov_b32 exec_lo, s{S_T0}', 's_mov_b32 exec_hi, 0', 's_branch L_pub']
        fin_ = self.seq(L)
        blk = self.P.static[mark0:]
        del self.P.static[mark0:]
        at = self.P.static.index(self.pub[-1]) + 1
        self.P.static[at:at] = blk + self.ldblk
        L = ['L_cslow:']
        for (ctl, rm) in (('row_shr:1', '0xf'), ('row_shr:2', '0xf'), ('row_shr:4', '0xf'), ('row_shr:8', '0xf'),
                          ('row_bcast:15', '0xa'), ('row_bcast:31', '0xc')):
            L.append(f'v_max_f32_dpp v{vM}, v{vM}, v{vM} {ctl} row_mask:{rm} bank_mask:0xf')
        L += [f'v_readlane_b32 s{S_U0}, v{vM}, 63', f's_mov_b32 s{S_HI}, 0',
              f's_lshr_b32 s{S_U0}, s{S_U0}, 23', f's_min_u32 s{S_U0}, s{S_U0}, {127 + 55}',
              f's_lshr_b32 s{S_U1}, s{S_IV}, 23', f's_sub_u32 s{S_U1}, s{S_U1}, 47', f's_lshr_b32 s{S_U1}, s{S_U1}, 1', f's_min_u32 s{S_U1}, s{S_U1}, 59',
              f's_sub_u32 s{S_U1}, 131, s{S_U1}', f's_max_u32 s{S_U0}, s{S_U0}, s{S_U1}',
              f's_sub_u32 s{S_U1}, {127 + 4 + 127}, s{S_U0}',
              f's_lshl_b32 s{S_U2}, s{S_U1}, 1', f's_sub_u32 s{S_U2}, s{S_U2}, 127',
              f's_sub_u32 s{S_G}, 254, s{S_U2}', f's_lshl_b32 s{S_G}, s{S_G}, 23',
              f'v_mov_b32 v{P}, s{S_G}', f'v_mul_f32 v{P + 1}, s{S_CG}, v{P}', f'v_mul_f32 v{P}, s{S_IV}, v{P}',
              f'v_readfirstlane_b32 s{S_F1}, v{P + 1}', f'v_readfirstlane_b32 s{S_F2}, v{P}',
              f's_lshl_b32 s{S_U1}, s{S_U1}, 23', f's_lshl_b32 s{S_U2}, s{S_U2}, 23']
        TS = P
        for j in range(13):
            L += [f'v_mul_f32 v{TS}, s{S_U1}, v{XR + 2 * j}', f'v_mul_f32 v{TS + 1}, s{S_U1}, v{XR + 2 * j + 1}',
                  f'v_mul_f32 v{TS + 2}, s{S_U2}, v{XR + 2 * j}', f'v_mul_f32 v{TS + 3}, s{S_U2}, v{XR + 2 * j + 1}',
                  f'v_cvt_pk_f16_f32 v{TS + 20 + j}, v{TS}, v{TS + 1}', f'v_cvt_pk_bf16_f32 v{TS + 4 + j}, v{TS + 2}, v{TS + 3}',
                  f'ds_write_b32 v{vIw}, v{TS + 20 + j} offset:{j * IMGP}', f'ds_write_b32 v{vXa}, v{TS + 4 + j} offset:{XOFF(2 * j)}']
        L += [f'v_mov_b32 v{TS}, s{S_U2}', f'v_cvt_pk_bf16_f32 v{TS}, v{TS}, v{TS}',
              's_mov_b32 exec_hi, 0', f'ds_write_b32 v{vXa}, v{TS} offset:{XOFF(26)}', 's_mov_b32 exec_hi, -1',
              's_waitcnt lgkmcnt(0)', 's_branch L_cconv']
        slow = self.seq(L)
        sdown = self.seq(self.sdown)
        cF = self.seq(self.first)
        traces = []
        for w in range(8):
            grp = w >> 2
            c2 = c2a + (c2g1 + (c2b if w == 4 else []) + c2g1d if grp else c2g0) + c2c
            it = lambda sl, first: cA + (slow if sl else []) + cB0 + (cF if first else cVM) + cB
            traces.append(PRE(w) + c2 + it(0, 1) + it(0, 0) + it(0, 0)[:-ntail] + fin_ + self.pub)
            if w in (0, 4):
                traces.append(PRE(w, sdown) + c2 + it(1, 1) + it(1, 0)[:-ntail] + fin_ + self.pub)
        return traces

    def build(self):
        pro = self.prologue()
        d = self.dnn()
        cs = self.cin()
        if self.opt.wsc:
            self.extra_traces.append(self.seq(self.late))
            self.extra_traces.append(self.seq(['L_spare:', f's_cmp_lg_u32 s{S_WAVE}, 0', 's_cbranch_scc1 L_end', 's_waitcnt lgkmcnt(0)'] + self.pubsrd() + self.cinit('s', 'L_end')))
        self.seq(['L_end:', 's_endpgm'])
        traces = [pro + c for c in d + cs] + self.extra_traces
        for t in traces:
            resolve_waits(t)
        for _ in range(2):
            for t in traces:
                resolve_hazards(t)
        hdr = open(os.path.join(os.path.dirname(os.path.abspath(__file__)), 'header.txt')).read()
        txt = hdr + f'; @launch grid=(256,1,1) block=(512,1,1) lds={LDS_TOTAL}\n'
        txt += f'''.amdgcn_target "amdgcn-amd-amdhsa--gfx950"
{DOC}.text
.globl {KNAME}
.p2align 8
.type {KNAME},@function
{KNAME}:
'''
        body_ = self.P.emit()
        if self.opt.align:
            for lab in ('L_dnn_loop0:', 'L_dnn_loop1:', 'L_cin_loop:', 'L_epi:'):
                pad = '  s_nop 0\n' if self.opt.align > 100 else ''
                body_ = body_.replace(lab + '\n', f'.p2align {self.opt.align % 100}\n{pad}{lab}\n')
        if self.opt.cwalk:
            lines = body_.split('\n')
            i0, i1 = lines.index('L_w2:'), lines.index('L_cslow:')
            out, k, cnt = lines[:i0], 0, 0
            seg = lines[i0:i1]
            prot = 0
            for n_, l in enumerate(seg):
                out.append(l)
                t = l.strip()
                cnt += 1
                inmain = 'L_novm:' in seg[:n_ + 1]
                nxt = seg[n_ + 1].strip() if n_ + 1 < len(seg) else ''
                ok = t.endswith(':') or (cnt >= self.opt.cwalk and ('mfma' in t and nxt.startswith('v_pk') if inmain else t.startswith(('ds_', 'v_perm', 'v_cvt_pk'))))
                if ok and t not in ('L_cin_loop:', 'L_cconv:', 'L_scaled:'):
                    out += [f'L_wp{k}:', f'  s_cbranch_execz L_wp{k + 1}']
                    k += 1; cnt = 0
            j = lines.index('L_first:')
            rest = lines[i1:j + 1] + [f'L_wp{k}:', '  s_cbranch_execz L_wret'] + lines[j + 1:]
            body_ = '\n'.join(out + rest)
            print('walk pads', k + 1)
            self.npads = k + 1
            for q_ in range(4):
                body_ = body_.replace(f'L_WENTRY{q_}', f'L_wp{q_ * (k + 1) // 4}')
        if self.opt.pwalk:
            lines = body_.split('\n')
            i0, i1 = lines.index('L_pub:'), lines.index('L_ok:')
            out, k, cnt = lines[:i0 + 1] + ['L_pw0:', '  s_cbranch_execz L_pw1'], 1, 0
            for l in lines[i0 + 1:i1 + 1]:
                out.append(l)
                cnt += 1
                if (cnt >= self.opt.pwalk and l.strip().startswith(('s_add_u32', 'v_add_f32'))) or l == 'L_ok:':
                    out += [f'L_pw{k}:', f'  s_cbranch_execz L_pw{k + 1}' if l != 'L_ok:' else '  s_cbranch_execz L_pwr']
                    k += 1; cnt = 0
            body_ = '\n'.join(out + lines[i1 + 1:])
            print('pub pads', k)
        if self.opt.fix:
            body_ = fixalign.fix(body_ + 'L_tables:\n', self.opt.fix, nops=self.opt.fixn)[:-len('L_tables:\n')]
        txt += body_
        tb = self.tables()
        assert len(tb) == 16 * 256
        txt += '.p2align 8\nL_tables:\n' + ''.join('.long ' + ', '.join(f'{x:#x}' for x in tb[i:i + 8]) + '\n' for i in range(0, len(tb), 8))
        txt += f'''.section .rodata,"a"
.p2align 6
.amdhsa_kernel {KNAME}
  .amdhsa_next_free_vgpr 256
  .amdhsa_next_free_sgpr 102
  .amdhsa_accum_offset 256
  .amdhsa_group_segment_fixed_size 0
  .amdhsa_kernarg_size 88
  .amdhsa_user_sgpr_count 2
  .amdhsa_user_sgpr_kernarg_segment_ptr 1
  .amdhsa_system_sgpr_workgroup_id_x 1
  .amdhsa_float_denorm_mode_32 {self.opt.denorm}
.end_amdhsa_kernel
'''
        return txt


def main():
    ap = argparse.ArgumentParser()
    ap.add_argument('-o', default='standalone__deep_cross_xdeepfm__recsys.s')
    ap.add_argument('--stamps', action='store_true')
    ap.add_argument('--nodma', action='store_true')
    ap.add_argument('--cpf', type=int, default=1)
    ap.add_argument('--coop', type=int, default=2)
    ap.add_argument('--coopw', type=int, default=2)
    ap.add_argument('--tbpos', type=int, default=0)
    ap.add_argument('--dbar3', type=int, default=1)
    ap.add_argument('--tlb', type=int, default=0)
    ap.add_argument('--tlb2', type=int, default=1)
    ap.add_argument('--itst', type=int, default=0)
    ap.add_argument('--diag', type=int, default=0)
    ap.add_argument('--dbg', default='')
    ap.add_argument('--lead3', type=int, default=1)
    ap.add_argument('--morder', type=int, default=0)
    ap.add_argument('--etlb', type=int, default=0)
    ap.add_argument('--lateb', type=int, default=0)
    ap.add_argument('--wfl', default='')
    ap.add_argument('--xfl', default='')
    ap.add_argument('--tag', type=int, default=0)
    ap.add_argument('--idxfirst', type=int, default=1)
    ap.add_argument('--bpos', type=int, default=2)
    ap.add_argument('--sigat', type=int, default=4)
    ap.add_argument('--epx', type=int, default=1)
    ap.add_argument('--denorm', type=int, default=3)
    ap.add_argument('--mprio', type=int, default=0)
    ap.add_argument('--swap', type=int, default=0)
    ap.add_argument('--bov', type=int, default=1)
    ap.add_argument('--rfirst', type=int, default=0)
    ap.add_argument('--g1x', type=int, default=0)
    ap.add_argument('--ldsred', type=int, default=0)
    ap.add_argument('--csnake', type=int, default=0)
    ap.add_argument('--cswap', type=int, default=0)
    ap.add_argument('--align', type=int, default=0)
    ap.add_argument('--c2', type=int, default=0)
    ap.add_argument('--d1', type=int, default=0)
    ap.add_argument('--cstr', type=int, default=3)
    ap.add_argument('--bearly', type=int, default=1)
    ap.add_argument('--w2late', type=int, default=1)
    ap.add_argument('--aov', type=int, default=5)
    ap.add_argument('--upos', type=int, default=1)
    ap.add_argument('--calt', type=int, default=1)
    ap.add_argument('--pfpos', type=int, default=1)
    ap.add_argument('--wlate', type=int, default=0)
    ap.add_argument('--dbar2', type=int, default=0)
    ap.add_argument('--dbar', type=int, default=0)
    ap.add_argument('--pfw', type=int, default=0)
    ap.add_argument('--pfx', type=int, default=0)
    ap.add_argument('--pfx0', type=int, default=4)
    ap.add_argument('--pfs', type=int, default=1)
    ap.add_argument('--dcoopx', type=int, default=1)
    ap.add_argument('--dcx0', type=int, default=0)
    ap.add_argument('--dcxpos', type=int, default=-1)
    ap.add_argument('--pfe0', type=int, default=2)
    ap.add_argument('--pfne', type=int, default=13)
    ap.add_argument('--prio47', type=int, default=0)
    ap.add_argument('--lookahead', type=int, default=5)
    ap.add_argument('--nz', type=int, default=6)
    ap.add_argument('--nwf', type=int, default=8)
    ap.add_argument('--hiat', type=int, default=8)
    ap.add_argument('--wmerge', type=int, default=0)
    ap.add_argument('--gapv', type=int, default=6)
    ap.add_argument('--slow', type=int, default=0)
    ap.add_argument('--fixn', type=int, default=0)
    ap.add_argument('--csn', type=int, default=1)
    ap.add_argument('--pwalk', type=int, default=0)
    ap.add_argument('--wsc', type=int, default=8)
    ap.add_argument('--nospare', type=int, default=0)
    ap.add_argument('--tailp', type=int, default=0)
    ap.add_argument('--hx', type=int, default=4)
    ap.add_argument('--hx0', type=int, default=4)
    ap.add_argument('--hxat', type=int, default=1)
    ap.add_argument('--hw', type=int, default=0)
    ap.add_argument('--hw0', type=int, default=2)
    ap.add_argument('--hwat', type=int, default=0)
    ap.add_argument('--tgap', type=int, default=40)
    ap.add_argument('--tmask', type=int, default=0x15)
    ap.add_argument('--st', type=int, default=0)
    ap.add_argument('--sf0', type=int, default=2)
    ap.add_argument('--dbar0', type=int, default=2)
    ap.add_argument('--ptl', type=int, default=0)
    ap.add_argument('--ct2', default='')
    ap.add_argument('--ewat', type=int, default=0)
    ap.add_argument('--gprio', type=int, default=1)
    ap.add_argument('--g1t', type=int, default=1)
    ap.add_argument('--tf0', type=int, default=8)
    ap.add_argument('--twoff', type=int, default=0)
    ap.add_argument('--ew', type=int, default=4)
    ap.add_argument('--ew0', type=int, default=2)
    ap.add_argument('--cyc', default='')
    ap.add_argument('--rshare', type=int, default=1)
    ap.add_argument('--dwalk', type=int, default=0)
    ap.add_argument('--band', type=int, default=0)
    ap.add_argument('--absol', type=int, default=0)
    ap.add_argument('--rev', type=int, default=1)
    ap.add_argument('--xg1', type=int, default=0)
    ap.add_argument('--bou', type=int, default=1)
    ap.add_argument('--sjw', type=int, default=7)
    ap.add_argument('--cwalk', type=int, default=0)
    ap.add_argument('--few', default='')
    ap.add_argument('--econv', type=int, default=0)
    ap.add_argument('--nsh', type=int, default=16)
    ap.add_argument('--sh0', type=int, default=5)
    ap.add_argument('--dirt', type=int, default=0)
    ap.add_argument('--mrg', type=int, default=0)
    ap.add_argument('--g1p', type=int, default=0)
    ap.add_argument('--sa', type=int, default=4)
    ap.add_argument('--sbg', type=int, default=16)
    ap.add_argument('--bwat', type=int, default=0)
    ap.add_argument('--x2n', type=int, default=8)
    ap.add_argument('--sent', type=int, default=1)
    ap.add_argument('--spec', type=int, default=0)
    ap.add_argument('--probe', default='')
    ap.add_argument('--skew', type=int, default=0)
    ap.add_argument('--fix', type=int, default=64)
    ap.add_argument('--walk', type=int, default=0)
    ap.add_argument('--eal', type=int, default=3)
    ap.add_argument('--eoff', type=int, default=0)
    ap.add_argument('--ct', default='02')
    ap.add_argument('--rot', type=int, default=13)
    ap.add_argument('--i0', type=int, default=1)
    ap.add_argument('--i1', type=int, default=10)
    ap.add_argument('--burn', type=int, default=0)
    ap.add_argument('--lord', type=int, default=1)
    ap.add_argument('--lprio', type=int, default=0)
    ap.add_argument('--rsp', type=int, default=0)
    ap.add_argument('--tch', type=int, default=1)
    ap.add_argument('--tf', type=int, default=4)
    ap.add_argument('--toff', type=int, default=2)
    ap.add_argument('--tw0', type=int, default=8)
    ap.add_argument('--xat', type=int, default=4)
    ap.add_argument('--pf1', type=int, default=1)
    ap.add_argument('--lpf', type=int, default=20)
    ap.add_argument('--lpfit', type=int, default=6)
    ap.add_argument('--x1m', type=int, default=10)
    ap.add_argument('--bgap', type=int, default=6)
    ap.add_argument('--cprio', type=int, default=1)
    ap.add_argument('--x1n', type=int, default=5)
    ap.add_argument('--w0', type=int, default=2)
    ap.add_argument('--dbar1', type=int, default=1)
    ap.add_argument('--aon', type=int, default=2)
    ap.add_argument('--cbar', type=int, default=0)
    ap.add_argument('--vmpos', type=int, default=2)
    ap.add_argument('--il2', type=int, default=0)
    ap.add_argument('--p1', type=int, default=0)
    ap.add_argument('--pm', type=int, default=2)
    ap.add_argument('--cbov', type=int, default=3)
    ap.add_argument('--p0', type=int, default=0)
    ap.add_argument('--max2', type=int, default=2)
    ap.add_argument('--eager', type=int, default=0)
    ap.add_argument('--cst', type=int, default=0)
    ap.add_argument('--x0', type=int, default=60)
    ap.add_argument('--xlat', type=int, default=18)
    ap.add_argument('--xper', type=int, default=3)
    ap.add_argument('--xc0', type=int, default=0)
    ap.add_argument('--n3', type=int, default=1)
    ap.add_argument('--xi0', type=int, default=1)
    ap.add_argument('--pfsat', type=int, default=0)
    ap.add_argument('--g1prio', type=int, default=0)
    ap.add_argument('--xearly', type=int, default=1)
    ap.add_argument('--cpfd', type=int, default=4)
    ap.add_argument('--cla', type=int, default=1)
    ap.add_argument('--war', type=int, default=1)
    opt = ap.parse_args()
    resolve_waits.dbg = 'dup' in opt.dbg
    g = Gen(opt)
    txt = g.build()
    open(opt.o, 'w').write(txt)
    print('wrote', opt.o, len(txt), 'bytes')


if __name__ == '__main__':
    main()
```

```python
import sys, os, struct, argparse
sys.path.insert(0, os.path.dirname(os.path.abspath(__file__)))
from asmlib import I, WaitTag, Touch, Prog, resolve_waits, resolve_hazards
import cin16, fixalign

KNAME = 'standalone__deep_cross_xdeepfm__recsys_kernel'
LDS_TOTAL = 163840

XSLOT = 320 * 128
WR = 3 * XSLOT + 8192
WSLOT = 32 * 256
L_BIAS = 3 * XSLOT
L_W2 = L_BIAS + 256
RB = L_W2 + 256
assert WR % 32768 == 0 and WR + 4 * WSLOT <= LDS_TOTAL
WSP = 16640
assert RB + 2560 <= LDS_TOTAL

W2P = 1536
SSZ = 677 * 64
FRS = 0
V3OFF = 0
A1 = 6144
FR = A1
FRL = FR + 33 * 1024
A3 = FRL + 2048
SG = A3
A2 = SG + SSZ
SQ = A2
V2S = SQ + SSZ
L_WCO = V2S + 832
L_FLG = L_WCO + 192
L_MX = L_FLG + 16
RC = L_FLG + 64
XB = V2S + 2496
XPP = 1056
XBSZ = 3 * XPP + 7 * 128
IMG = A3
IMGP = 160
IMGSZ = 33 * IMGP
XB2 = IMG + 8 * IMGSZ
PART = XB2 + 8 * XBSZ
XOFF = lambda f: (f & 3) * XPP + (f >> 2) * 128
assert RC + 512 <= V2S + 1664
assert XB + 8 * XBSZ <= LDS_TOTAL and XB % 16 == 0 and A2 % 64 == 0 and A3 % 64 == 0 and L_WCO % 16 == 0 and V2S % 64 == 0
assert PART + 8 * 1536 <= V2S + 832 and IMGSZ % 32 == 0 and XB2 % 16 == 0

S_WAVE = 3
S_IDX, S_TAB, S_CIN, S_WCO, S_W1, S_B1, S_W2, S_BO, S_OUT, S_DBG, S_WS = 4, 6, 8, 10, 12, 14, 16, 18, 20, 22, 24
S_MB, S_R = 26, 27
SRD_IDX, SRD_TAB, SRD_CIN, SRD_WCO, SRD_W, SRD_B1, SRD_W2, SRD_OUT, SRD_WS, SRD_DBG = 28, 32, 36, 40, 44, 48, 52, 56, 60, 64
S_T0, S_T1, S_T2, S_T3 = 68, 69, 70, 71
S_LOOP, S_IDXOFF, S_WSOFF, S_WMB, S_XM0, S_N0, S_C0, S_CW, S_BOUT, S_TW = 72, 73, 74, 75, 76, 77, 78, 79, 80, 81
S_EX = 82
S_GRP, S_RC = 84, 85
S_ST = 86
S_M26, S_MASK = 90, 92
S_SAMP, S_STG, S_STG9, S_TGT = 94, 95, 96, 97
S_M26B = 98
S_GW = 100
S_TAGT = 0
S_TAG = 1
S_PW = 101
S_PX = 77
S_PXE = 73

GELU_C0 = -2.0 * 0.7978845608028654 * 1.4426950408889634
GELU_C1 = GELU_C0 * 0.044715


def f32hex(x):
    return '0x%08x' % struct.unpack('<I', struct.pack('<f', x))[0]


def vr(a, n):
    return f'v[{a}:{a + n - 1}]' if n > 1 else f'v{a}'


def srd(a):
    return f's[{a}:{a + 3}]'


def flat(gs):
    res = []
    for c in gs:
        if isinstance(c, (tuple, list)):
            res += flat(c)
        else:
            res.append(c)
    return res


def interleave(a, b):
    out = []
    ia = ib = 0
    na, nb = len(a), len(b)
    while ia < na or ib < nb:
        if ib >= nb or (ia < na and ia * nb <= ib * na):
            out.append(a[ia]); ia += 1
        else:
            out.append(b[ib]); ib += 1
    return out


SLOTS = []
for j in range(0, 26, 2):
    for s in range(0, 14 if j <= 12 else 13):
        SLOTS.append((j, (j + s) % 26))
assert len(SLOTS) == 176
DUP_SLOT = SLOTS.index((12, 25))
assert all((d * 2521) >> 16 == d // 26 for d in range(800))
assert all((d * 10923) >> 16 == d // 6 for d in range(64))
assert all((d * 5042) >> 16 == d // 13 for d in range(170))
assert all((d * 3277) >> 16 == d // 20 for d in range(264))


DOC = '''; ---------------------------------------------------------------------------------------------
; Generated by tools/gen24.py (own generator; waits / hazard nops derived from instruction traces).
;
;       U[i,j,k] = sum_h W2[h,i,j] V3[h,k]
;   Both quadratic forms use the 351 distinct products x_j x_k (j<=k) with symmetrised weights, evaluated by
;   DNN branch: full bf16 GEMM + bias + tanh-GELU (x / (1 + exp(-2u))) + dot with w_dnn2; four terms of one
;   sample share a reciprocal (common denominator; exp(-2u) saturates at 2^24, i.e. at fp32 rounding level).
;   their own producer) and arrival counters in d_ws (zeroed in this launch by the first comer, flagged in d_debug);
;   the last arriver of a row block adds up and writes d_out.
;   L_tables holds constant per-lane LDS address tables (functions of the lane id only).
; ---------------------------------------------------------------------------------------------
'''


class Gen:
    def __init__(self, opt):
        self.opt = opt
        self.P = Prog()
        self.late = []

    def seq(self, lines):
        return [self.P.add(l) for l in flat(lines)]

    def build_srd(self, dst, ptr, size):
        return [f's_mov_b32 s{dst}, s{ptr}', f's_and_b32 s{dst + 1}, s{ptr + 1}, 0xffff',
                f's_mov_b32 s{dst + 2}, {size}', f's_mov_b32 s{dst + 3}, 0x20000']

    def stamp(self, slot):
        if not self.opt.stamps or (self.opt.few and slot not in [int(x) for x in self.opt.few.split(',')]):
            return []
        return [f's_memtime s[{S_ST}:{S_ST + 1}]', f's_memrealtime s[{S_ST + 2}:{S_ST + 3}]', 's_waitcnt lgkmcnt(0)',
                f'v_writelane_b32 v252, s{S_ST}, {slot}', f'v_writelane_b32 v253, s{S_ST + 2}, {slot}']

    def probe(self, name, wave=4):
        if self.opt.tailp:
            return ['s_memrealtime s[88:89]', 's_waitcnt lgkmcnt(0)'] if name in self.opt.probe.split(',') else []
        if self.opt.cyc:
            a_, b_, _ = self.opt.cyc.split(',')
            return ['s_memtime s[86:87]', 's_waitcnt lgkmcnt(0)'] if name == a_ else ['s_memtime s[88:89]', 's_waitcnt lgkmcnt(0)'] if name == b_ else []
        if self.opt.probe != name and not (self.opt.probe == 'end' and name in ('dend', 'cend2')):
            return []
        return ['s_memrealtime s[88:89]', 's_waitcnt lgkmcnt(0)']

    def stamp_flush(self):
        if not self.opt.stamps:
            return []
        L = self.build_srd(SRD_WS, S_WS, 0x10000000)
        L += [f's_lshl_b32 s{S_C0}, s2, 3', f's_add_u32 s{S_C0}, s{S_C0}, s{S_WAVE}',
              f's_lshl_b32 s{S_C0}, s{S_C0}, 8', f's_add_u32 s{S_C0}, s{S_C0}, 0x100000',
              'v_lshlrev_b32 v254, 3, v0', 's_mov_b32 exec_hi, 0',
              f'buffer_store_dwordx2 v[252:253], v254, {srd(SRD_WS)}, s{S_C0} offen', 's_mov_b32 exec_hi, -1']
        return L

    def stamp0(self):
        if not self.opt.stamps:
            return []
        return ['v_mov_b32 v252, 0xcdcdcdcd', 'v_mov_b32 v253, 0xcdcdcdcd',
                f'v_writelane_b32 v252, s{S_ST}, 0', f'v_writelane_b32 v253, s{S_ST + 2}, 0'] + self.stamp(15)

    def tlb2(self, t):
        L = self.build_srd(SRD_WS, S_WS, 0x10000000) + self.build_srd(SRD_OUT, S_OUT, 8192) + self.build_srd(SRD_DBG, S_DBG, 256)
        L += [f's_load_dword s{S_BOUT}, s[{S_BO}:{S_BO + 1}], 0', f'v_mov_b32 v{t}, 0', 's_mov_b64 exec, 1',
              f's_mov_b32 s{S_TW}, 0x80000',
              f'buffer_load_dword v{t + 1}, v{t}, {srd(SRD_WS)}, s{S_TW} offen',
              f'buffer_load_dword v{t + 2}, v{t}, {srd(SRD_OUT)}, 0 offen',
              's_mov_b64 exec, -1']
        return L

    def tlb1(self, vtmp, vdst):
        if not self.opt.etlb:
            return self.build_srd(SRD_TAB, S_TAB, 100000 * 128)
        return self.build_srd(SRD_TAB, S_TAB, 100000 * 128) + [
            f'v_mov_b32 v{vtmp}, s{S_BOUT}', f'buffer_load_dword v{vdst}, v{vtmp}, {srd(SRD_TAB)}, 0 offen']

    def gettag(self, lab, t, VT):
        return [f's_cmp_lg_u32 s{S_WAVE}, 0', f's_cbranch_scc1 {lab}',
                f's_memrealtime s[{S_TAGT}:{S_TAGT + 1}]'] + self.build_srd(SRD_DBG, S_DBG, 256) + [
                f's_lshl_b32 s{S_TW}, s{S_MB}, 2', f'v_mov_b32 v{t}, s{S_TW}', 's_waitcnt lgkmcnt(0)',
                f's_or_b32 s{S_TAG}, s{S_TAGT}, 1', f'v_mov_b32 v{VT}, s{S_TAG}', f'v_mov_b32 v{VT + 1}, 0',
                's_mov_b64 exec, 1',
                f'buffer_atomic_cmpswap v[{VT}:{VT + 1}], v{t}, {srd(SRD_DBG)}, 0 offen offset:128 sc0',
                's_mov_b64 exec, -1', f'{lab}:']

    def prologue(self):
        L = []
        if self.opt.stamps:
            L += [f's_memtime s[{S_ST}:{S_ST + 1}]', f's_memrealtime s[{S_ST + 2}:{S_ST + 3}]']
        L += ['s_cmp_ge_u32 s2, 256', 's_cbranch_scc1 L_end',
              's_load_dwordx16 s[4:19], s[0:1], 0',
              's_load_dwordx4 s[20:23], s[0:1], 64',
              's_load_dwordx2 s[24:25], s[0:1], 80',
              'v_lshrrev_b32 v1, 6, v0']
        if self.opt.cpf:
            L += [f's_getpc_b64 s[{S_MASK}:{S_MASK + 1}]', 'L_pc:',
                  f's_and_b32 s{S_T0}, s2, 0xf8', f'v_add_u32 v2, s{S_T0}, v1', 'v_and_b32 v3, 32, v0', 'v_lshl_add_u32 v2, v3, 3, v2', 'v_lshlrev_b32 v2, 7, v2',
                  f'v_min_u32 v2, L_end-L_pc, v2',
                  f'v_mov_b32 v3, s{S_MASK + 1}',
                  f'v_add_co_u32 v2, vcc, s{S_MASK}, v2', 'v_addc_co_u32 v3, vcc, 0, v3, vcc',
                  'global_load_dword v251, v[2:3], off']
        if self.opt.skew:
            L += ['s_memtime s[86:87]' if self.opt.cyc else 's_memrealtime s[86:87]', 's_mov_b32 s88, 0']
        L += ['v_and_b32 v0, 63, v0',
              f'v_readfirstlane_b32 s{S_WAVE}, v1',
              f's_and_b32 s{S_T0}, s2, 7', f's_lshr_b32 s{S_T1}, s2, 3', f's_xor_b32 s{S_T1}, s{S_T1}, {31 * self.opt.rev}',
              f's_and_b32 s{S_BOUT}, s2, 0xf8', f's_add_u32 s{S_BOUT}, s{S_BOUT}, s{S_WAVE}', f's_lshl_b32 s{S_BOUT}, s{S_BOUT}, {self.opt.etlb}',
              f's_min_u32 s{S_T2}, s{S_T0}, 1', f's_add_u32 s{S_T3}, s{S_T1}, s{S_T2}',
              f's_cmp_ge_u32 s{S_T3}, 22', 's_cbranch_scc1 L_cin',
              f's_mul_i32 s{S_T0}, s{S_T0}, 21', f's_add_u32 s{S_T0}, s{S_T0}, s{S_T3}',
              ]
        if self.opt.band == 0:
            L += [f's_mul_i32 s{S_MB}, s{S_T0}, 5042', f's_lshr_b32 s{S_MB}, s{S_MB}, 16',
                  f's_mul_i32 s{S_T1}, s{S_MB}, 13', f's_sub_u32 s{S_R}, s{S_T0}, s{S_T1}']
        else:
            assert all((d * 9363) >> 16 == d // 7 for d in range(91)) and all((d * 10923) >> 16 == d // 6 for d in range(78))
            L += [f's_sub_u32 s{S_T1}, 168, s{S_T0}', f's_cmp_lt_u32 s{S_T0}, 91', f's_cselect_b32 s{S_T0}, s{S_T0}, s{S_T1}',
                  f's_cselect_b32 s{S_T1}, 0, 1560', f's_cselect_b32 s{S_T2}, 7, 6', f's_cselect_b32 s{S_R}, 0, 7', f's_add_u32 s{S_T1}, s{S_T1}, 9363',
                  f's_mul_i32 s{S_MB}, s{S_T0}, s{S_T1}', f's_lshr_b32 s{S_MB}, s{S_MB}, 16', f's_mul_i32 s{S_T1}, s{S_MB}, s{S_T2}',
                  f's_add_u32 s{S_R}, s{S_R}, s{S_T0}', f's_sub_u32 s{S_R}, s{S_R}, s{S_T1}']
        return self.seq(L)

    def dnn(self):
        o = self.opt
        vW = [1, 2, 3, 4]
        vX = [[5, 6], [7, 8]]
        vPa, vPc = 9, 10
        WF, XA, ACC = 16, 48, 88
        W2F = WF
        KC0, KC1, KONE = 12, 14, 248
        SUMP, GT = 32, 52
        vIdxOff, vCh, vWD, vBL = 1, [2, 3], [4, 5], 11
        ST, VO = 16, 56
        T = 100
        g, i4, q = T + 16, T + 17, T + 18
        PI = T + 8

        def acc(tn, tm):
            return ACC + (tm * 4 + tn) * 4

        def small(srd_, dst):
            return [f's_mov_b32 m0, {dst}', 's_mov_b64 exec, 0xffff',
                    I(f'buffer_load_dwordx4 v{vBL}, {srd(srd_)}, s{S_N0} offen lds', tag='BIAS'), 's_mov_b64 exec, -1']
        L = [f's_lshl_b32 s{S_N0}, s{S_R}, 8', f's_mul_i32 s{S_T3}, s{S_MB}, 320',
             f'v_lshrrev_b32 v{g}, 4, v0', f'v_lshlrev_b32 v{vBL}, 4, v0', f's_and_b32 s{S_CW}, s{S_WAVE}, 3',
             f's_cmp_ge_u32 s{S_WAVE}, 4', 's_cbranch_scc1 L_ld']
        c0 = self.seq(L)
        PI = T

        RG, CG = S_T0, S_T1
        L = [f's_mul_i32 s{S_T2}, s{S_WAVE}, 13', f'v_min_u32 v{q}, 12, v0', f'v_add_u32 v{q}, s{S_T2}, v{q}',
             f'v_lshrrev_b32 v{i4}, 1, v{q}', f'v_mul_u32_u24 v{i4}, 96, v{i4}', f'v_lshl_add_u32 v{q}, v{q}, 2, v{i4}',
             f's_mul_i32 s{S_C0}, s{S_R}, 25', f's_min_u32 s{S_C0}, s{S_C0}, 294',
             f's_add_u32 s{S_C0}, s{S_C0}, s{S_T3}', f's_mul_i32 s{S_C0}, s{S_C0}, 104',
             f's_lshl_b32 s{S_T2}, s{S_MB}, 2', f's_add_u32 s{S_T2}, s{S_T2}, s{S_WAVE}', f's_add_u32 s{S_T2}, s{S_T2}, {o.ew0 * 32}',
             f's_mul_i32 s{S_T2}, s{S_T2}, 3328', f's_add_u32 s{S_T2}, s{S_T2}, s{S_N0}', f's_mov_b32 s{S_TW}, {52 * 3328}',
             f'v_lshrrev_b32 v{T + 12}, 1, v0', f'v_mul_lo_u32 v{T + 12}, s{S_TW}, v{T + 12}', f'v_and_b32 v{i4}, 1, v0', f'v_lshl_add_u32 v{T + 12}, v{i4}, 7, v{T + 12}',
             f'v_add_u32 v{T + 12}, s{S_T2}, v{T + 12}', 's_waitcnt lgkmcnt(0)']
        ct = [int(x) for x in o.ct + o.ct2]
        L += self.build_srd(SRD_IDX, S_IDX, 4096 * 104)
        if ct:
            L += [f'buffer_load_dwordx4 {vr(PI, 4)}, v{q}, {srd(SRD_IDX)}, s{S_C0} offen']
        if ct and max(ct) > 3:
            L += [f'buffer_load_dwordx4 {vr(PI + 4, 4)}, v{q}, {srd(SRD_IDX)}, s{S_C0} offen offset:16']
        L += self.tlb1(T + 14, T + 15)
        if o.ptl:
            L += [f'v_lshlrev_b32 v{T + 14}, {o.ptl}, v0', f's_lshl_b32 s{S_T2}, s{S_WAVE}, {o.ptl - 2}', f's_mov_b64 exec, {(1 << min(64, (12800000 >> o.ptl) + 1)) - 1}',
                  f'buffer_load_dword v{T + 15}, v{T + 14}, {srd(SRD_TAB)}, s{S_T2} offen', 's_mov_b64 exec, -1']
        touch = [x for k in ct for x in (f'v_lshlrev_b32 v{PI + k}, 7, v{PI + k}', f'buffer_load_dword v{acc(0, 7) + k}, v{PI + k}, {srd(SRD_TAB)}, 0 offen')]
        touch, touch2 = touch[:2 * len(o.ct)], touch[2 * len(o.ct):]
        L += self.build_srd(SRD_B1, S_B1, 3328) + small(SRD_B1, L_BIAS)
        if o.ew:
            L += self.build_srd(SRD_W, S_W1, 1664 * 3328)
            ewl = [f's_mov_b64 exec, {(1 << (2 * o.ew)) - 1}', f'buffer_load_dword v{acc(0, 7) + 9}, v{T + 12}, {srd(SRD_W)}, 0 offen', 's_mov_b64 exec, -1']
            if o.ewat == 0:
                L += ewl
            elif o.ewat == 1:
                touch = touch + ewl
            else:
                touch2 = touch2 + ewl
        chead = self.seq(L + (['s_barrier'] if o.dbar0 else []) + ['s_branch L_cmp'])
        self.ldat = len(self.P.static)
        L = ['L_cmp:'] + self.stamp0()
        L += [f's_and_b32 s{RG}, s{S_WAVE}, 1', f's_lshr_b32 s{CG}, s{S_WAVE}, 1',
              f'v_bfe_u32 v{i4}, v0, 2, 2', f'v_lshl_add_u32 v{q}, v{g}, 3, v{i4}', f'v_lshlrev_b32 v{q}, 8, v{q}',
              f'v_bfe_u32 v{i4}, v0, 2, 3', f's_lshl_b32 s{S_T2}, s{CG}, 2', f'v_xor_b32 v{i4}, s{S_T2}, v{i4}',
              f'v_lshl_add_u32 v{q}, v{i4}, 5, v{q}', f'v_and_b32 v{i4}, 3, v0', f'v_lshl_add_u32 v{q}, v{i4}, 3, v{q}',
              f'v_add_u32 v{vW[0]}, {WR}, v{q}']
        L += [f'v_xor_b32 v{vW[tn]}, {32 * tn}, v{vW[0]}' for tn in range(1, 4)]
        L += [f's_lshl_b32 s{S_T2}, s{CG}, 7', f's_add_u32 s{S_T2}, s{S_T2}, {L_BIAS}', f'v_lshlrev_b32 v{q}, 3, v{g}', f'v_add_u32 v{vPa}, s{S_T2}, v{q}',
              f'v_and_b32 v{q}, 15, v0', f'v_lshlrev_b32 v{q}, 7, v{q}',
              f'v_bfe_u32 v{i4}, v0, 1, 3', f'v_xor_b32 v{i4}, v{i4}, v{g}', f'v_lshl_add_u32 v{q}, v{i4}, 4, v{q}',
              f's_mul_i32 s{S_T2}, s{RG}, 20480', f'v_add_u32 v{vX[0][0]}, s{S_T2}, v{q}', f'v_xor_b32 v{vX[1][0]}, 64, v{vX[0][0]}',
              f'v_add_u32 v{vX[0][1]}, {2 * XSLOT}, v{vX[0][0]}', f'v_add_u32 v{vX[1][1]}, {2 * XSLOT}, v{vX[1][0]}',
              f's_mul_i32 s{S_T2}, s{S_WAVE}, 640', f's_add_u32 s{S_T2}, s{S_T2}, {RB}',
              f'v_and_b32 v{q}, 15, v0', f'v_lshlrev_b32 v{q}, 2, v{q}', f'v_add_u32 v{q}, s{S_T2}, v{q}',
              f'v_lshrrev_b32 v{i4}, 5, v0', f'v_lshl_add_u32 v{q}, v{i4}, 6, v{q}', f'v_bfe_u32 v{i4}, v0, 4, 1', f'v_lshl_add_u32 v{vPc}, v{i4}, 7, v{q}',
              f's_mov_b32 s{S_LOOP}, 0',
              f'v_mov_b32 v{KC0}, {f32hex(GELU_C0)}', f'v_mov_b32 v{KC0 + 1}, {f32hex(GELU_C0)}',
              f'v_mov_b32 v{KC1}, {f32hex(GELU_C1)}', f'v_mov_b32 v{KC1 + 1}, {f32hex(GELU_C1)}']

        def pkreads(off, dst):
            return [f'ds_read_b64 {vr(dst + 4 * tn + 2, 2)}, v{vPa} offset:{off + 32 * tn}' for tn in range(4)]

        def unp(dst):
            c = []
            for tn in range(4):
                r = dst + 4 * tn
                c += [f'v_lshlrev_b32 v{r}, 16, v{r + 2}', f'v_and_b32 v{r + 1}, 0xffff0000, v{r + 2}',
                      f'v_lshlrev_b32 v{r + 2}, 16, v{r + 3}', f'v_and_b32 v{r + 3}, 0xffff0000, v{r + 3}']
            return c
        L += touch + self.stamp(6)
        CT_, CW_, CD_ = 248, 11, 251
        if o.tch == 2:
            L += [f's_mul_i32 s{S_T2}, s{S_WAVE}, 13', f's_add_u32 s{S_T2}, s{S_T2}, s{S_R}', f's_min_u32 s{S_T2}, s{S_T2}, 39', f's_lshl_b32 s{S_T2}, s{S_T2}, 3',
                  f's_add_u32 s{S_T2}, s{S_T2}, s{S_T3}', f's_mul_i32 s{S_T2}, s{S_T2}, 104',
                  f'v_lshrrev_b32 v{q}, 3, v0', f'v_mul_u32_u24 v{q}, 72, v{q}', f'v_lshl_add_u32 v{q}, v0, 2, v{q}']
            L += [f'buffer_load_dword v{CT_ + r}, v{q}, {srd(SRD_IDX)}, s{S_T2} offen offset:{4 * min(o.tf0 + 8 * r, 18)}' for r in range(3)]
            L += [f'v_add_u32 v{CW_}, {(o.tw0 - o.ew0) * 32 * 3328}, v{T + 12}', f's_mov_b32 s{S_RC}, 0']
            touch2 = touch2 + [f'v_lshlrev_b32 v{CT_ + r}, 7, v{CT_ + r}' for r in range(3)] + [Touch(f'v{CD_}')]
        if o.st:
            SR = [36, 40, 52, 56, 60, 64, 96]
            L += [f's_mul_i32 s{S_T2}, s{S_WAVE}, 13', f's_lshr_b32 s{S_T2}, s{S_T2}, 1', f's_mul_i32 s{S_T2}, s{S_T2}, 104', f's_add_u32 s{S_T2}, s{S_T2}, s{S_C0}', f's_add_u32 s{S_T2}, s{S_T2}, {4 * o.sf0}']
            for r in range(7):
                L += [f's_buffer_load_dwordx4 s[{SR[r]}:{SR[r] + 3}], {srd(SRD_IDX)}, s{S_T2}', f's_add_u32 s{S_T2}, s{S_T2}, 104']
            L += ['s_waitcnt lgkmcnt(0)']
            for f_ in range(o.st):
                for r in range(7):
                    L += [f's_lshl_b32 s{SR[r] + f_}, s{SR[r] + f_}, 7', f's_buffer_load_dword s{SR[r] + f_}, {srd(SRD_TAB)}, s{SR[r] + f_}']
        BI = [WaitTag(vm_tags=['BIAS'])] + pkreads(0, acc(0, 9)) + unp(acc(0, 9)) + [f'v_mov_b64 {vr(acc(0, 8) + r, 2)}, {vr(acc(0, 9) + r, 2)}' for r in range(0, 16, 2)]

        def rX(p, k):
            xs = p % 3
            return f'ds_read_b128 {vr(XA + 4 * (k % 10), 4)}, v{vX[k % 2][xs // 2]} offset:{(xs % 2) * XSLOT + (k // 2) * 2048}'

        def rW(tn):
            return [f'ds_read_b64_tr_b16 {vr(WF + 16 * par + 4 * tn + 2 * rd, 2)}, v{vW[tn]} offset:{par * WSLOT + rd * 1024}' for par in range(2) for rd in range(2)]
        tog = lambda tn: f'v_xor_b32 v{vW[tn]}, {2 * WSLOT}, v{vW[tn]}'

        def dec(gi):
            G, tn, a_, par = gi // 16, (gi // 4) % 4, (gi // 2) % 2, gi % 2
            if o.bou:
                par ^= a_ ^ (G == 4)
                a_ ^= tn & 1
            return G, tn, a_, par
        lastx = {4 * dec(gi)[0] + 2 * dec(gi)[2] + dec(gi)[3]: gi for gi in range(80)}

        def mf(gi, first=False):
            G, tn, a_, par = dec(gi)
            d = acc(tn, 2 * G + a_)
            if first and gi % 2 == 0 and G < 4:
                return f'v_mfma_f32_16x16x32_bf16 {vr(d, 4)}, {vr(WF + 16 * par + 4 * tn, 4)}, {vr(XA + 4 * ((4 * G + 2 * a_ + par) % 10), 4)}, {vr(acc(tn, 9), 4)}'
            return f'v_mfma_f32_16x16x32_bf16 {vr(d, 4)}, {vr(WF + 16 * par + 4 * tn, 4)}, {vr(XA + 4 * ((4 * G + 2 * a_ + par) % 10), 4)}, {vr(d, 4)}'
        SH = [11, 248, 249, 250]
        nsh = o.nsh

        def shadow():
            c = []
            for b0 in range(0, nsh, 4):
                E = [(ACC + e, SH[e - b0]) for e in range(b0, min(b0 + 4, nsh))]
                for op in ('v_mul_f32 T, X, X', f'v_fma_f32 T, T, v{KC1}, v{KC0}', 'v_mul_f32 T, T, X', 'v_exp_f32 T, T', 'v_add_f32 T, 1.0, T', 'v_rcp_f32 T, T', 'v_mul_f32 X, X, T'):
                    c += [(op.replace('T', f'v{t}').replace('X', f'v{x}'), 8 if ('exp' in op or 'rcp' in op) else 4) for x, t in E]
            return c

        def U_(t):
            i_ = I(t)
            i_.wr = []
            return i_

        def cpair(p, kind, loopend=False):
            S = []
            ev = {}
            if kind == 'first':
                g_ = o.sbg + 1
                for k in range(2 * o.sa, 10):
                    ev[g_] = rX(p, k); g_ += 1
            else:
                for i_, x in enumerate(rW(3)[2:]):
                    ev[i_] = x
                for i_, k in enumerate(range(6, 10)):
                    ev[2 + i_] = rX(p, k)
            for k in range(10):
                g_ = lastx[k]
                while g_ in ev or (kind == 'first' and g_ <= o.sbg):
                    g_ += 1
                ev[g_] = rX(p, k + 10)
            BG = 48 + o.bgap if o.bou else 46 + o.bgap
            if kind != 'last':
                ev[BG], ev[BG + 1] = rX(p + 1, 0), rX(p + 1, 1)
                for k in range(2, 6):
                    ev[lastx[10 + k]] = rX(p + 1, k)
                for tn in range(4):
                    for i_, x in enumerate(rW(tn)):
                        if 66 + 4 * tn + i_ < 80:
                            ev[66 + 4 * tn + i_] = x
            sh_ = shadow() if kind == 'last' else []
            for gi in range(80):
                S.append(mf(gi, kind == 'first'))
                t = 4
                if o.dwalk and kind != 'last' and gi in (24, 40, 64, 7):
                    S += [f'L_dw{self.ndw}:', f's_cbranch_execz L_dw{self.ndw + 1}']
                    self.ndw += 1
                if kind == 'first' and gi == o.sbg:
                    S += (self.stamp(20) if o.itst == 2 else []) + ['s_barrier'] + (self.stamp(21) if o.itst == 2 else [])
                if kind != 'last' and gi == BG - 1:
                    st_ = lambda k: ([f's_cmp_lg_u32 s{S_LOOP}, 0', f's_cbranch_scc1 L_ns{k}'] + self.stamp(k) + [f'L_ns{k}:']) if (o.itst == 2 and p < 3) else []
                    S += ['s_waitcnt lgkmcnt(0)'] + st_(22 + 2 * p) + ['s_barrier'] + st_(23 + 2 * p)
                if gi in ev:
                    S.append(ev[gi]); t += 8
                if kind != 'last' and 8 <= gi < 12:
                    S.append(tog(gi - 8))
                if o.tch == 2 and kind == 'mid' and gi == o.tgap:
                    if p == 1:
                        S += [f's_bitcmp1_b32 {o.tmask:#x}, s{S_LOOP}', 's_cbranch_scc1 L_ctx', 'L_ctxr:']
                    if p == 2:
                        S += ['s_mov_b64 exec, 0xff', U_(f'buffer_load_dword v{CD_}, v{CW_}, {srd(SRD_W)}, s{S_RC} offen'), 's_mov_b64 exec, -1', f's_add_u32 s{S_RC}, s{S_RC}, {208 * 3328}']
                if o.tch == 2 and kind == 'first' and gi == o.tgap:
                    S += ['s_mov_b64 exec, 0xff', U_(f'buffer_load_dword v{CD_}, v{CW_}, {srd(SRD_W)}, s{S_RC} offen'), 's_mov_b64 exec, -1', f's_add_u32 s{S_RC}, s{S_RC}, {208 * 3328}']
                if gi % 2 == 0 and gi + 2 < 80:
                    n_ = gi + 2
                    G, tn, a_ = n_ // 16, (n_ // 4) % 4, (n_ // 2) % 2
                    if tn == 0:
                        S.append(Touch(vr(XA + 4 * ((4 * G + 2 * a_) % 10), 8)))
                    if G == 0 and a_ == 0:
                        S.append(Touch(vr(WF + 16 + 4 * tn, 4)))
                if gi == 78 and kind != 'last':
                    S.append(Touch(vr(WF + 16, 4)))
                if loopend and gi == 48:
                    S += [f's_add_u32 s{S_LOOP}, s{S_LOOP}, 1', f's_cmp_lt_u32 s{S_LOOP}, 8']
                t = max(t, 8)
                while sh_ and gi >= o.sh0 and t + sh_[0][1] <= 16:
                    x, c_ = sh_.pop(0)
                    S.append(x); t += c_
            S += [x for x, _ in sh_]
            if kind == 'last':
                print('shadow left', len(sh_))
            return S
        self.ndw = 0
        if o.dwalk:
            L += ['s_mov_b64 exec, 0'] + [x for q_ in range(3) for x in (f's_cmp_eq_u32 s{S_WAVE}, {q_}', f's_cbranch_scc1 L_dw{4 * q_}')] + ['s_branch L_dw12', 'L_dw16:', 's_mov_b64 exec, -1']
        L += self.stamp(1) + ['s_barrier'] + [x for tn in range(4) for x in rW(tn)] + BI + touch2 + ['s_waitcnt lgkmcnt(0)', f's_setprio {o.cprio}', 's_barrier'] + self.stamp(2)
        L += [rX(0, k) for k in range(2 * o.sa)] + cpair(0, 'first')
        cpre = self.seq(L)
        body = self.seq(['L_dnn_loop0:'])
        for p in range(1, 4):
            S = cpair(p, 'mid', p == 3)
            if p == 3:
                if o.stamps and o.itst == 1:
                    i_ = S.index('s_barrier')
                    S = S[:i_] + [f's_memtime s[{S_ST}:{S_ST + 1}]', f's_memrealtime s[{S_ST + 2}:{S_ST + 3}]', f's_or_b32 m0, s{S_LOOP}, 16', 's_waitcnt lgkmcnt(0)',
                                  f'v_writelane_b32 v252, s{S_ST}, m0', f'v_writelane_b32 v253, s{S_ST + 2}, m0', f's_cmp_lt_u32 s{S_LOOP}, 8'] + S[i_:]
                S += ['s_cbranch_scc1 L_dnn_loop0']
            body += self.seq(S)
        tc = c0 + chead + cpre + body * 2 + self.seq(['L_tail:'])
        tc += self.seq((['s_waitcnt vmcnt(0)'] if o.tch == 2 else []) + cpair(25, 'last') + pkreads(256, W2F) + [f'v_mov_b32 v{KONE}, 1.0', f'v_mov_b32 v{KONE + 1}, 1.0'])
        if o.burn:
            bl = [f's_movk_i32 s{S_LOOP}, {o.burn}', 'L_burn:'] + [f'v_mfma_f32_16x16x32_bf16 {vr(XA + 32 + 4 * (k % 2), 4)}, {vr(WF + 16 + 4 * (k % 4), 4)}, {vr(XA + 4 * (k // 4), 4)}, 0' for k in range(32)]
            tc += self.seq(bl + [f's_sub_u32 s{S_LOOP}, s{S_LOOP}, 1', f's_cmp_lg_u32 s{S_LOOP}, 0', 's_cbranch_scc1 L_burn'])
        tc += self.seq(['L_epi:'] + self.stamp(3))

        p2 = lambda r: vr(r, 2)
        seen = set()

        def gelu(groups):
            L = []
            for k, vals in enumerate(groups):
                tb = GT + (k % 2) * 16
                V_ = [(x, w, s_, tb + 4 * i_, tb + 4 * i_ + 2) for i_, (x, w, s_) in enumerate(vals)]
                for (x, w, s_, t, u) in V_:
                    L.append(f'v_pk_mul_f32 {p2(t)}, {p2(x)}, {p2(x)}')
                for (x, w, s_, t, u) in V_:
                    L.append(f'v_pk_fma_f32 {p2(t)}, {p2(t)}, {p2(KC1)}, {p2(KC0)}')
                for (x, w, s_, t, u) in V_:
                    L.append(f'v_pk_mul_f32 {p2(t)}, {p2(t)}, {p2(x)}')
                for (x, w, s_, t, u) in V_:
                    L += [f'v_exp_f32 v{t}, v{t}', f'v_exp_f32 v{t + 1}, v{t + 1}']
                for (x, w, s_, t, u) in V_:
                    L.append(f'v_pk_mul_f32 {p2(u)}, {p2(x)}, {p2(w)}')
                for (x, w, s_, t, u) in V_:
                    L.append(f'v_pk_add_f32 {p2(t)}, {p2(t)}, {p2(KONE)}')
                for (x, w, s_, t, u) in V_:
                    L += [f'v_rcp_f32 v{t}, v{t}', f'v_rcp_f32 v{t + 1}, v{t + 1}']
                for (x, w, s_, t, u) in V_:
                    if s_ in seen:
                        L.append(f'v_pk_fma_f32 {p2(s_)}, {p2(t)}, {p2(u)}, {p2(s_)}')
                    else:
                        L.append(f'v_pk_mul_f32 {p2(s_)}, {p2(t)}, {p2(u)}')
                        seen.add(s_)
            return L
        el = lambda tn, tm, d: (acc(tn, tm) + 2 * d, W2F + 4 * tn + 2 * d, SUMP + 2 * tm)
        allel = [el(tn, 2 * tp + a_, d) for tp in range(5) for tn in range(4) for d in range(2) for a_ in range(2)]
        rest = [e for e in allel if e[0] >= ACC + nsh]
        if o.rshare:
            assert nsh % 8 == 0
            KS = 84
            quads = [[el(2 * h + t_, tm, d) for t_ in range(2) for d in range(2)] for tm in range(10) for h in range(2)]
            quads = [q_ for q_ in quads if q_[0][0] >= ACC + nsh]
            order = sorted(range(len(quads)), key=lambda i_: (i_ // 4, i_ % 2, i_))
            quads = [quads[i_] for i_ in order]
            L = [f'v_mov_b32 v{KS}, {f32hex(-24.0)}', f'v_mov_b32 v{KS + 1}, {f32hex(-24.0)}', f'v_mov_b32 v{KS + 2}, {f32hex(2.0 ** 24)}', f'v_mov_b32 v{KS + 3}, {f32hex(2.0 ** 24)}']
            for k in range(0, len(quads), 2):
                Qs = quads[k:k + 2]
                V_ = [(x, w, GT + 16 * j_ + 4 * i_, GT + 16 * j_ + 4 * i_ + 2) for j_, q_ in enumerate(Qs) for i_, (x, w, s_) in enumerate(q_)]
                L += [f'v_pk_mul_f32 {p2(t)}, {p2(x)}, {p2(x)}' for (x, w, t, u) in V_]
                L += [f'v_pk_fma_f32 {p2(t)}, {p2(t)}, {p2(KC1)}, {p2(KC0)}' for (x, w, t, u) in V_]
                L += [f'v_pk_fma_f32 {p2(t)}, {p2(t)}, {p2(x)}, {p2(KS)}' for (x, w, t, u) in V_]
                L += [f'v_exp_f32 v{t + e_}, v{t + e_} clamp' for (x, w, t, u) in V_ for e_ in range(2)]
                if k == 0:
                    L += unp(W2F)
                L += [f'v_pk_mul_f32 {p2(u)}, {p2(x)}, {p2(w)}' for (x, w, t, u) in V_]
                L += [f'v_pk_fma_f32 {p2(t)}, {p2(t)}, {p2(KS + 2)}, {p2(KONE)}' for (x, w, t, u) in V_]
                for prs in ([(0, 1), (2, 3)], [(0, 2)]):
                    M_ = [(V_[4 * j_ + a_], V_[4 * j_ + b_]) for j_ in range(len(Qs)) for a_, b_ in prs]
                    L += [f'v_pk_mul_f32 {p2(A_[3])}, {p2(A_[3])}, {p2(B_[2])}' for A_, B_ in M_]
                    L += [f'v_pk_fma_f32 {p2(A_[3])}, {p2(B_[3])}, {p2(A_[2])}, {p2(A_[3])}' for A_, B_ in M_]
                    L += [f'v_pk_mul_f32 {p2(A_[2])}, {p2(A_[2])}, {p2(B_[2])}' for A_, B_ in M_]
                L += [f'v_rcp_f32 v{V_[4 * j_][2] + e_}, v{V_[4 * j_][2] + e_}' for j_ in range(len(Qs)) for e_ in range(2)]
                for j_, q_ in enumerate(Qs):
                    s_, t, u = q_[0][2], V_[4 * j_][2], V_[4 * j_][3]
                    L.append(f'v_pk_fma_f32 {p2(s_)}, {p2(t)}, {p2(u)}, {p2(s_)}' if s_ in seen else f'v_pk_mul_f32 {p2(s_)}, {p2(t)}, {p2(u)}')
                    seen.add(s_)
        else:
            L = gelu([rest[i:i + 4] for i in range(0, len(rest), 4)])
            L = L[:20] + unp(W2F) + L[20:]
        for (x, w, s_) in allel:
            if x < ACC + nsh:
                L.append(f'v_pk_fma_f32 {p2(s_)}, {p2(x)}, {p2(w)}, {p2(s_)}' if s_ in seen else f'v_pk_mul_f32 {p2(s_)}, {p2(x)}, {p2(w)}')
                seen.add(s_)
        sm = lambda tm: SUMP + 2 * tm
        L += [f'v_add_f32 v{sm(tm)}, v{sm(tm)}, v{sm(tm) + 1}' for tm in range(10)]
        L += [f'v_permlane32_swap_b32 v{sm(tm)}, v{sm(tm + 1)}' for tm in range(0, 10, 2)]
        L += [f'v_add_f32 v{sm(tm)}, v{sm(tm)}, v{sm(tm + 1)}' for tm in (8, 0, 2, 4, 6)]
        L += [f'v_mov_b32 v{sm(9)}, v{sm(8)}', f'v_permlane16_swap_b32 v{sm(0)}, v{sm(2)}', f'v_permlane16_swap_b32 v{sm(4)}, v{sm(6)}',
              f'v_permlane16_swap_b32 v{sm(8)}, v{sm(9)}',
              f'v_add_f32 v{sm(0)}, v{sm(0)}, v{sm(2)}', f'v_add_f32 v{sm(4)}, v{sm(4)}, v{sm(6)}', f'v_add_f32 v{sm(8)}, v{sm(8)}, v{sm(9)}',
              f'ds_write_b32 v{vPc}, v{sm(0)}', f'ds_write_b32 v{vPc}, v{sm(4)} offset:256',
              's_mov_b32 exec_lo, 0xffff', 's_mov_b32 exec_hi, 0xffff', f'ds_write_b32 v{vPc}, v{sm(8)} offset:512', 's_mov_b64 exec, -1']
        L += ['s_waitcnt lgkmcnt(0)'] + self.stamp(4) + self.stamp_flush() + ['s_barrier', 's_endpgm']
        tc += self.seq(L)

        if o.tch == 2:
            self.seq(['L_ctx:', U_(f'buffer_load_dword v{CD_}, v{CT_}, {srd(SRD_TAB)}, 0 offen'), f'v_mov_b32 v{CT_}, v{CT_ + 1}', f'v_mov_b32 v{CT_ + 1}, v{CT_ + 2}', 's_branch L_ctxr'])
        def wstage(slot):
            c = []
            for u in range(2):
                c += [f's_add_u32 m0, s{S_WMB}, {WR + slot * WSLOT + u * 1024}',
                      I(f'buffer_load_dwordx4 v{vWD[u]}, {srd(SRD_W)}, s{S_WSOFF} offen lds', tag='W')]
            return c + [f's_add_u32 s{S_WSOFF}, s{S_WSOFF}, {32 * 3328}']

        Q, TM, BP = 16, 56, [12, 13]
        TI, vWT = 70, 84
        SP = [36, 37, 38, 39, 40, 41, 42, 43, 48, 49]
        SI = [94, 95, 96, 97, 98, 99, 100, 101, 82, 83]

        def xaddr(f, pcs):
            c = []
            for odd in range(2):
                p_ = f + 26 * odd
                for pc in pcs:
                    c.append(f'v_add_u32_dpp v{TM + pc}, v{Q + 4 * pc + p_ % 4}, v{vCh[0]} row_newbcast:{p_ >> 2} row_mask:0xf bank_mask:{(3, 12)[odd]:#x}')
            return c

        def xld(pc, slot, tag='X'):
            return [f's_add_u32 m0, s{S_XM0}, {slot * XSLOT + pc * 2048}',
                    I(f'buffer_load_dwordx4 v{TM + pc}, {srd(SRD_TAB)}, 0 offen lds', tag=tag)]
        idxl = [f'buffer_load_dwordx4 {vr(Q + 4 * pc, 4)}, v{BP[0]}, {srd(SRD_IDX)}, s{SI[pc // 2]} offen offset:{(pc % 2) * 1664}' for pc in range(10)]
        LO, HI = range(5), range(5, 10)
        NR = (22 + o.tf - 1) // o.tf
        lw = S_CW
        self.mk0 = len(self.P.static)
        L = ['L_ld:', f's_lshr_b32 s{S_T0}, s{lw}, 1', f's_mul_i32 s{S_T0}, s{S_T0}, 20', f's_and_b32 s{S_T1}, s{lw}, 1', f's_add_u32 s{S_T0}, s{S_T0}, s{S_T1}',
             f's_lshl_b32 s{S_XM0}, s{S_T0}, 10', f's_mul_i32 s{S_C0}, s{S_T3}, 104', f's_mul_i32 s{S_T0}, s{S_T0}, 832', f's_add_u32 s{SI[0]}, s{S_C0}, s{S_T0}',
             f'v_mul_u32_u24 v{q}, 48, v{g}', f'v_sub_u32 v{BP[0]}, v{vBL}, v{q}']
        L += [f's_add_u32 s{SI[k]}, s{SI[0]}, {k * 2 * 1664}' for k in range(1, 5)]
        L += [f's_and_b32 s{S_T2}, s{lw}, 1', f's_lshl_b32 s{S_T2}, s{S_T2}, 3',
              f'v_lshlrev_b32 v{i4}, 1, v{g}', f'v_or_b32 v{i4}, s{S_T2}, v{i4}', f'v_xor_b32 v{i4}, v{i4}, v0', f'v_and_b32 v{i4}, 15, v{i4}',
              f'v_mul_u32_u24 v{vWD[0]}, 3328, v{g}', f'v_lshl_add_u32 v{vWD[0]}, v{i4}, 4, v{vWD[0]}', f'v_add_u32 v{vWD[1]}, {4 * 3328}, v{vWD[0]}',
              f's_mul_i32 s{S_WSOFF}, s{lw}, {8 * 3328}', f's_add_u32 s{S_WSOFF}, s{S_WSOFF}, s{S_N0}', f's_lshl_b32 s{S_WMB}, s{lw}, 11',
              's_waitcnt lgkmcnt(0)']
        L += self.build_srd(SRD_IDX, S_IDX, 4096 * 104) + (['s_barrier'] if o.dbar0 == 1 else []) + idxl[:o.i0] + self.tlb1(T + 14, T + 15) + self.build_srd(SRD_W, S_W1, 1664 * 3328)
        for sl in range(o.w0):
            L += wstage(sl)
        L += self.stamp0() + (['s_barrier'] if o.dbar0 >= 2 else []) + ([Touch(vr(Q, 4))] if o.dbar0 == 3 else []) + idxl[o.i0:]
        for sl in range(o.w0, 2):
            L += wstage(sl)
        L += [f's_lshl_b32 s{S_T2}, s{S_T1}, 6',
              f'v_and_b32 v{q}, 7, v0', f'v_xor_b32 v{q}, v{q}, v{g}', f'v_lshlrev_b32 v{q}, 4, v{q}', f'v_xor_b32 v{vCh[0]}, s{S_T2}, v{q}', f'v_xor_b32 v{vCh[1]}, 64, v{vCh[0]}',
              f's_mov_b32 s{S_LOOP}, 0',
              f's_mul_i32 s{S_T2}, s{lw}, 13', f's_add_u32 s{S_T2}, s{S_T2}, s{S_R}', f's_min_u32 s{S_T2}, s{S_T2}, 39', f's_lshl_b32 s{S_T2}, s{S_T2}, 3',
              f's_add_u32 s{S_T2}, s{S_T2}, s{S_T3}', f's_mul_i32 s{S_GRP}, s{S_T2}, 104',
              f'v_lshrrev_b32 v{q}, {o.tf.bit_length() - 1}, v0', f'v_min_u32 v{q}, 7, v{q}', f'v_mul_u32_u24 v{q}, 104, v{q}',
              f'v_and_b32 v{i4}, {o.tf - 1}, v0', f'v_lshl_add_u32 v7, v{i4}, 2, v{q}',
              f's_lshl_b32 s{S_T2}, s{S_MB}, 2', f's_add_u32 s{S_T2}, s{S_T2}, s{lw}', f's_add_u32 s{S_T2}, s{S_T2}, {o.tw0 * 32}', f's_mul_i32 s{S_RC}, s{S_T2}, 3328',
              f's_add_u32 s{S_RC}, s{S_RC}, s{S_N0}', f's_mov_b32 s{S_T2}, {52 * 3328}',
              f'v_lshrrev_b32 v{q}, 1, v0', f'v_mul_lo_u32 v{q}, s{S_T2}, v{q}', f'v_and_b32 v{i4}, 1, v0', f'v_lshl_add_u32 v{vWT}, v{i4}, 7, v{q}']
        L += self.build_srd(SRD_W2, S_W2, 3328)
        L += [f's_mul_i32 s{S_T2}, s{lw}, {o.lpf * 128}', f's_add_u32 s{S_T2}, s{S_T2}, L_tail-L_pc', f'v_lshlrev_b32 v8, 7, v0', f'v_add_u32 v8, s{S_T2}, v8',
              f'v_mov_b32 v9, s{S_MASK + 1}', f'v_add_co_u32 v8, vcc, s{S_MASK}, v8', 'v_addc_co_u32 v9, vcc, 0, v9, vcc']
        sh = lambda pc, c_: f'v_lshlrev_b32 v{Q + 4 * pc + c_}, 7, v{Q + 4 * pc + c_}'
        for pc in range(10):
            L += [sh(pc, 0), sh(pc, 2), sh(pc, 1), sh(pc, 3)] + xaddr(0, [pc]) + xld(pc, 0, 'X0a' if pc < o.sa else 'X0')
            if pc == 0:
                L += self.stamp(6) + self.probe('i0')
            if pc == o.bwat:
                L += [WaitTag(vm_tags=['W']), 's_barrier']
        L += self.stamp(7) + self.probe('x0i')
        x1 = [x for pc in range(10) for x in xaddr(1, [pc]) + xld(pc, 1)]
        L += x1[:4 * o.x1n] + [WaitTag(vm_tags=['X0a'])] + self.stamp(1) + ['s_barrier'] + self.probe('s0') + x1[4 * o.x1n:4 * o.x1m]
        L += [WaitTag(vm_tags=['X0']), 's_barrier'] + x1[4 * o.x1m:] + wstage(2) + wstage(3) + xaddr(2, range(10))
        x2 = [x for pc in range(10) for x in xld(pc, 2)]
        NR = (26 - o.tf0 + o.tf - 1) // o.tf
        tex = (1 << (8 * o.tf)) - 1
        texec = [f's_mov_b32 exec_lo, {tex & 0xffffffff:#x}', f's_mov_b32 exec_hi, {tex >> 32:#x}']
        if o.tch == 1:
            L += [f'buffer_load_dword v{TI + r}, v7, {srd(SRD_IDX)}, s{S_GRP} offen offset:{4 * min(o.tf0 + o.tf * r, 26 - o.tf)}' for r in range(NR)]

        def xtouch():
            t_ = [f'v_lshlrev_b32 v{T + 1}, 7, v{TI}'] + texec + [f'buffer_load_dword v{T + 2}, v{T + 1}, {srd(SRD_TAB)}, 0 offen', 's_mov_b64 exec, -1']
            return t_ + [f'v_mov_b32 v{TI + r}, v{TI + r + 1}' for r in range(NR - 1)] + [f'v_mov_b32 v{TI + NR - 1}, 0xffffff']

        def wtouch():
            return ['s_mov_b64 exec, 0x3ff', f'buffer_load_dword v{T + 3}, v{vWT}, {srd(SRD_W)}, s{S_RC} offen', 's_mov_b64 exec, -1', f's_add_u32 s{S_RC}, s{S_RC}, {260 * 3328}']
        L += x2[:2 * o.x2n] + [WaitTag(vm_tags=['W']), 's_barrier'] + self.probe('bar0') + x2[2 * o.x2n:] + xaddr(3, range(10))
        lpre = self.seq(L + [f's_setprio {o.lprio}', 's_branch L_ld_in'])
        del self.P.static[self.mk0:]
        self.P.static[self.ldat:self.ldat] = lpre
        self.mk0 = len(self.P.static)

        def lpair(p):
            S = ['s_barrier'] + (['L_ld_in:'] if p == 0 else []) + wstage(2 * (p % 2)) + wstage(2 * (p % 2) + 1)
            f2 = p + 4
            if p == 11:
                S += [f's_cmp_eq_u32 s{S_LOOP}, 1', 's_cbranch_scc1 L_ld_tail0']
            for pc in range(10):
                x = xld(pc, p % 3)
                S += [x[0]] + (xaddr(f2, [pc - 1])[:1] if pc else []) + [x[1]] + (xaddr(f2, [pc - 1])[1:] if pc else [])
            S += xaddr(f2, [9])
            if p >= 10:
                S += [f'v_mov_b32_dpp v{Q + 4 * pc + c_}, v{Q + 4 * pc + c_} row_shl:3 row_mask:0xf bank_mask:0xf' for pc in range(10) for c_ in ((0, 2) if p == 10 else (1, 3))]
            if o.tch == 1 and p % o.tf == o.toff:
                S += xtouch()
            if o.tch == 1 and p % 4 == o.twoff:
                S += wtouch()
            if p == 11:
                S += [f's_add_u32 s{S_LOOP}, s{S_LOOP}, 1', f's_cmp_lt_u32 s{S_LOOP}, 2']
            return S + [WaitTag(vm_tags=['W'])]
        body = self.seq(['L_dnn_loop1:'])
        for p in range(12):
            if p == 8 and o.lpf:
                body += self.seq([f's_cmp_lg_u32 s{S_LOOP}, 1', 's_cbranch_scc1 L_nolpf'])
                self.seq([f's_mov_b64 exec, {(1 << o.lpf) - 1}', 'global_load_dword v10, v[8:9], off', 's_mov_b64 exec, -1'] + small(SRD_W2, L_W2))
                body += self.seq(['L_nolpf:'])
            lp = lpair(p)
            if p and self.probe(f'bar{p}'):
                lp = lp[:1] + [f's_cmp_lg_u32 s{S_LOOP}, 0', f's_cbranch_scc1 L_nopb{p}'] + self.probe(f'bar{p}') + [f'L_nopb{p}:'] + lp[1:]
            body += self.seq(lp + (['s_cbranch_scc1 L_dnn_loop1'] if p == 11 else []))
        tl = c0 + lpre + body * 2 + self.seq(['s_branch L_ld_tail'])
        self.ldblk = self.P.static[self.mk0:]
        del self.P.static[self.mk0:]
        tl += self.seq(['L_ld_tail0:', 's_waitcnt vmcnt(0)', 'L_ld_tail:', 's_barrier'] + self.tlb2(T) + ['s_mov_b64 exec, 1', f'buffer_load_dword v250, v{T}, {srd(SRD_DBG)}, 0 offen offset:128 sc1', 's_mov_b64 exec, -1'])
        tl += self.seq(self.probe('s50'))
        if o.walk:
            tl += self.seq([f's_cmp_eq_u32 s{lw}, 0', 's_cbranch_scc1 L_wkd', 's_mov_b64 exec, 0', f's_cmp_eq_u32 s{lw}, 1', 's_cbranch_scc1 L_wk0',
                            f's_cmp_eq_u32 s{lw}, 2', f's_cbranch_scc1 L_wk{np_ // 3}', f's_branch L_wk{2 * np_ // 3}', 'L_wkd:'])
        A = 64
        L = [f's_cmp_lg_u32 s{S_WAVE}, 4', 's_cbranch_scc1 L_end',
             f'v_lshlrev_b32 v3, 4, v0', f'v_lshlrev_b32 v4, 2, v0', f'v_add_u32 v1, {RB}, v3', f'v_add_u32 v2, {RB + 1024}, v4', f'v_add_u32 v4, 1024, v4',
             'v_mov_b32 v5, 32', f'v_mov_b32 v7, s{S_MB}',
             f's_mul_i32 s{S_T0}, s{S_MB}, 1280', f's_mul_i32 s{S_T1}, s{S_R}, {WSP}', f's_add_u32 s{S_T1}, s{S_T1}, s{S_T0}', 's_setprio 3']
        if o.sent:
            L += (self.pst() if o.skew and o.probe == 'span' else []) + [f'v_mov_b32 v{A + k}, -1' for k in range(4)] + [f'buffer_store_dwordx4 {vr(A, 4)}, v3, {srd(SRD_WS)}, s{S_T1} offen sc1',
                  f'buffer_store_dword v{A}, v4, {srd(SRD_WS)}, s{S_T1} offen sc1', 's_waitcnt vmcnt(0)'] + (self.cready('d', 250) if o.wsc else [])
        if o.pwalk:
            L += ['s_mov_b64 exec, 0', 's_branch L_pw0', 'L_pwr:', 's_mov_b64 exec, -1', f's_cmp_eq_u32 s{S_WAVE}, 0', 's_cbranch_scc1 L_pwc']
        L += self.stamp_flush() + ['s_barrier'] + self.probe('dend')
        L += [f'ds_read_b128 {vr(A, 4)}, v1', f'ds_read_b128 {vr(A + 8, 4)}, v1 offset:1280', f'ds_read2st64_b32 {vr(A + 4, 2)}, v2 offset0:0 offset1:5',
              f'v_pk_add_f32 {p2(A)}, {p2(A)}, {p2(A + 8)}', f'v_pk_add_f32 {p2(A + 2)}, {p2(A + 2)}, {p2(A + 10)}', f'v_add_f32 v{A + 4}, v{A + 4}, v{A + 5}']
        if o.sent:
            L += [f'v_min_u32 v{A + k}, -2, v{A + k}' for k in range(5)]
        L += (self.stamp(16) if o.diag else [])
        L += [f'buffer_store_dwordx4 {vr(A, 4)}, v3, {srd(SRD_WS)}, s{S_T1} offen sc1',
              f'buffer_store_dword v{A + 4}, v4, {srd(SRD_WS)}, s{S_T1} offen sc1', 's_mov_b64 exec, 1']
        tl += self.seq(L)

        L = ['L_pub:']
        if o.skew and o.probe != 'span':
            L += self.pst() + ['s_waitcnt vmcnt(0)']
        def loads():
            c = [f's_mul_i32 s{S_T0}, s{S_T3}, 1280']
            for qq in range(14):
                c += [f'buffer_load_dwordx4 {vr(A + 8 * qq, 4)}, v3, {srd(SRD_WS)}, s{S_T0} offen sc1',
                      f'buffer_load_dword v{A + 8 * qq + 4}, v4, {srd(SRD_WS)}, s{S_T0} offen sc1', f's_add_u32 s{S_T0}, s{S_T0}, {WSP}']
            return c
        R_ = 56
        hb = 0
        L += [f'v_lshlrev_b32 v6, {o.wsc or 4}, v7', f's_mov_b32 s{S_T2}, 0x60000'] + ([] if o.sent else ['s_waitcnt vmcnt(0)']) + ['v_mov_b32 v13, v5',
              f'buffer_atomic_add v5, v6, {srd(SRD_WS)}, s{S_T2} offen sc0' if o.wsc else f'buffer_atomic_add v5, v6, {srd(SRD_DBG)}, 0 offen sc0',
              'v_cmp_eq_u32 vcc, 12, v7', f'v_mov_b32 v8, {hb + 436:#x}', f'v_mov_b32 v9, {hb + 434:#x}', 'v_cndmask_b32 v8, v8, v9, vcc', 'v_sub_u32 v8, v8, v13']
        if o.spec:
            L += [f's_mov_b64 s[{S_MASK}:{S_MASK + 1}], exec', 's_mov_b64 exec, -1', f'v_readfirstlane_b32 s{S_T3}, v7'] + loads() + [f's_mov_b64 exec, s[{S_MASK}:{S_MASK + 1}]']
            L += ['s_waitcnt vmcnt(0) lgkmcnt(0)']
        else:
            L += ['s_waitcnt vmcnt(0) lgkmcnt(0)']
        L += (self.stamp(18) if o.diag else []) + self.probe('atm') + [
             f'v_cmp_eq_u32 s[{S_EX}:{S_EX + 1}], v5, v8', 's_mov_b64 exec, -1', f's_lshl_b32 s{S_BOUT}, s{S_BOUT}, 16',
             'v_lshrrev_b32 v1, 1, v3', 'v_lshrrev_b32 v2, 1, v4']
        if o.spec:
            L += [f's_bitcmp1_b32 s{S_EX}, 0', f's_bitset0_b32 s{S_EX}, 0', 's_cbranch_scc1 L_sum']
        pa = self.seq(L)
        L = ['L_fin:', f's_cmp_eq_u32 s{S_EX}, 0', 's_cbranch_scc1 L_done',
             f's_ff1_i32_b32 s{S_T2}, s{S_EX}', f's_bitset0_b32 s{S_EX}, s{S_T2}', f'v_readlane_b32 s{S_T3}, v7, s{S_T2}', 's_waitcnt vmcnt(0)', 'L_again:'] + loads()
        pb = self.seq(L)
        L = ['L_sum:', f'v_pk_add_f32 {p2(R_)}, {p2(A)}, {p2(A + 8)}', f'v_pk_add_f32 {p2(R_ + 2)}, {p2(A + 2)}, {p2(A + 10)}', f'v_add_f32 v{R_ + 4}, v{A + 4}, v{A + 12}']
        for qq in range(2, 14):
            L += [f'v_pk_add_f32 {p2(R_)}, {p2(R_)}, {p2(A + 8 * qq)}', f'v_pk_add_f32 {p2(R_ + 2)}, {p2(R_ + 2)}, {p2(A + 8 * qq + 2)}',
                  f'v_add_f32 v{R_ + 4}, v{R_ + 4}, v{A + 8 * qq + 4}']
        if o.sent:
            L += [f'v_cmp_u_f32 vcc, v{R_}, v{R_ + 1}', f'v_cmp_u_f32 s[{S_MASK}:{S_MASK + 1}], v{R_ + 2}, v{R_ + 3}', f's_or_b64 s[{S_MASK}:{S_MASK + 1}], s[{S_MASK}:{S_MASK + 1}], vcc',
                  f'v_cmp_u_f32 vcc, v{R_ + 4}, v{R_ + 4}', f's_or_b64 vcc, s[{S_MASK}:{S_MASK + 1}], vcc', 's_cbranch_vccnz L_chk', 'L_ok:']
        L += [f's_mul_i32 s{S_T3}, s{S_T3}, 640']
        A0 = A
        A = R_
        L += [f'v_add_f32 v{A + k}, s{S_BOUT}, v{A + k}' for k in range(5)]
        L += [f'v_cvt_pk_bf16_f32 v10, v{A}, v{A + 1}', f'v_cvt_pk_bf16_f32 v11, v{A + 2}, v{A + 3}', f'v_cvt_pk_bf16_f32 v12, v{A + 4}, v{A + 4}',
              f'buffer_store_dwordx2 v[10:11], v1, {srd(SRD_OUT)}, s{S_T3} offen', f'buffer_store_short v12, v2, {srd(SRD_OUT)}, s{S_T3} offen']
        if o.tailp:
            L += [f's_cmp_lg_u32 s{S_EX}, 0', 's_cbranch_scc1 L_fin', 's_waitcnt vmcnt(0)', 's_memrealtime s[86:87]', 's_waitcnt lgkmcnt(0)', 's_sub_u32 s88, s86, s88', 's_min_u32 s88, s88, 1000',
                  f's_mul_i32 s88, s88, {o.tailp - 1}', 's_add_u32 s88, s88, s86',
                  'L_spin:', 's_memrealtime s[86:87]', 's_waitcnt lgkmcnt(0)', 's_sub_u32 s89, s88, s86', 's_cmp_gt_i32 s89, 0', 's_cbranch_scc1 L_spin']
        if o.skew:
            L += [f's_cmp_lg_u32 s{S_EX}, 0', 's_cbranch_scc1 L_fin', 's_memrealtime s[84:85]', 'v_lshlrev_b32 v20, 7, v0', 's_mov_b32 s88, 0x40000']
            for k in range(4):
                L += [f'buffer_load_dwordx3 v[{32 + 4 * k}:{34 + 4 * k}], v20, {srd(SRD_WS)}, s88 offen sc1', 's_add_u32 s88, s88, 8192']
            L += ['s_waitcnt vmcnt(0)']
            if o.probe.startswith('st') or o.absol:
                L += ['s_memrealtime s[88:89]', 's_waitcnt lgkmcnt(0)', 'v_mov_b32 v26, 0', 'v_mov_b32 v27, 0']
                for k in range(4):
                    L += [f'v_sub_u32 v28, s88, v{32 + 4 * k}', 'v_cmp_gt_u32 vcc, 4500, v28', f'v_not_b32 v29, v{32 + 4 * k}', 'v_cndmask_b32 v29, 0, v29, vcc', 'v_max_u32 v27, v27, v29']
                    if o.absol:
                        L += [f'v_cndmask_b32 v29, 0, v{34 + 4 * k}, vcc', 'v_max_u32 v26, v26, v29']
                    elif str(k) in o.probe[2:]:
                        L += [f'v_cndmask_b32 v29, 0, v{32 + 4 * k}, vcc', 'v_max_u32 v26, v26, v29']
            else:
                for k in range(4):
                    L += [f'v_sub_u32 v28, v{34 + 4 * k}, v{32 + 4 * k}', f'v_cmp_gt_u32 vcc, {100000 if o.cyc else 5000}, v28', f'v_cndmask_b32 v28, 0, v28, vcc',
                          f'v_cmp_eq_u32 vcc, v{32 + 4 * k}, v{33 + 4 * k}', f'v_cndmask_b32 v{33 + 4 * k}, 0, v28, vcc']
                L += ['v_max_u32 v26, v33, v37', 'v_max3_u32 v26, v26, v41, v45', 'v_mov_b32 v27, -1']
            if o.probe == 'span':
                L += ['v_mov_b32 v26, s84']
            for (ctl, rm) in (('row_shr:1', '0xf'), ('row_shr:2', '0xf'), ('row_shr:4', '0xf'), ('row_shr:8', '0xf'), ('row_bcast:15', '0xa'), ('row_bcast:31', '0xc')):
                L += [f'v_max_u32_dpp v{r}, v{r}, v{r} {ctl} row_mask:{rm} bank_mask:0xf' for r in (26, 27)]
            L += ['v_not_b32 v27, v27', 'v_sub_u32 v22, v26, v27', 's_memrealtime s[86:87]', 'v_readlane_b32 s88, v22, 63', 's_waitcnt lgkmcnt(0)',
                  *([f's_max_u32 s88, s88, {o.cyc.split(chr(44))[2]}', f's_sub_u32 s88, s88, {o.cyc.split(chr(44))[2]}', 's_lshr_b32 s88, s88, 1'] if o.cyc else []), 's_min_u32 s88, s88, 5000', f's_mul_i32 s88, s88, {o.skew - 1}', 's_add_u32 s88, s88, s86',
                  'L_spin:', 's_memrealtime s[86:87]', 's_waitcnt lgkmcnt(0)', 's_sub_u32 s89, s88, s86', 's_cmp_gt_i32 s89, 0', 's_cbranch_scc1 L_spin']
        L += self.stamp(5) + self.stamp_flush() + ['s_branch L_fin']
        pc_ = self.seq(L)
        if o.sent:
            L = ['L_chk:', 'v_mov_b32 v14, 0', 'v_mov_b32 v15, 0']
            for qq in range(14):
                L += [f'v_max3_u32 v14, v14, v{A0 + 8 * qq}, v{A0 + 8 * qq + 1}', f'v_max3_u32 v14, v14, v{A0 + 8 * qq + 2}, v{A0 + 8 * qq + 3}', f'v_max_u32 v15, v15, v{A0 + 8 * qq + 4}']
            L += [f's_cmp_eq_u32 s{S_T3}, 12', f's_cselect_b32 s{S_T0}, 0, -1', f'v_and_b32 v15, s{S_T0}, v15', 'v_max_u32 v14, v14, v15',
                  'v_cmp_eq_u32 vcc, -1, v14', 's_cbranch_vccnz L_again', 's_branch L_ok']
            self.chk = self.seq(L)
        pe = self.seq(['L_done:', 's_endpgm'])
        self.pub = pa + pb + pc_ + pe
        self.extra_traces = [pa + pc_ + pb + pc_] + ([pa + pb + pc_[:45] + self.chk + pb[7:] + pc_] if o.sent else [])
        return [tc, tl + self.pub]

    def cinit(self, lab, skip):
        return ['s_mov_b64 exec, 0x1fff', 'v_mov_b32 v20, 1', 'v_mov_b32 v21, 0', f'v_lshlrev_b32 v22, {self.opt.wsc}, v0', 's_mov_b64 exec, 1',
                f'buffer_atomic_add v20, v21, {srd(SRD_DBG)}, 0 offen sc0', f's_mov_b32 s{S_TW}, 0x60000', 's_waitcnt vmcnt(0)',
                'v_cmp_ne_u32 vcc, 0, v20', f's_cbranch_vccnz {skip}', 's_mov_b64 exec, 0x1fff',
                f'buffer_store_dword v21, v22, {srd(SRD_WS)}, s{S_TW} offen sc1', 's_mov_b64 exec, 1', 'v_mov_b32 v20, 1', 's_waitcnt vmcnt(0)',
                f'buffer_store_dword v20, v21, {srd(SRD_DBG)}, 0 offen offset:128 sc1']

    def cready(self, tag, vr_):
        self.late += [f'L_ci{tag}:'] + self.cinit(tag, f'L_cp{tag}') + [f'L_cp{tag}:', f'buffer_load_dword v20, v21, {srd(SRD_DBG)}, 0 offen offset:128 sc1', 's_waitcnt vmcnt(0)',
                      'v_cmp_eq_u32 vcc, 0, v20', f's_cbranch_vccnz L_cp{tag}', 's_mov_b64 exec, -1', f's_branch L_cr{tag}']
        return [f'v_readfirstlane_b32 s{S_TW}, v{vr_}', f's_cmp_eq_u32 s{S_TW}, 0', f's_cbranch_scc1 L_ci{tag}', f'L_cr{tag}:']

    def pst(self):
        return ['v_mov_b32 v20, s86', 'v_mov_b32 v21, s86', 'v_mov_b32 v22, s88', 's_lshl_b32 s89, s2, 7', 's_add_u32 s89, s89, 0x40000', 'v_lshlrev_b32 v23, 26, v0', 'v_min_u32 v23, 0x40000000, v23', 'v_lshlrev_b32 v23, 1, v23', 'v_lshlrev_b32 v23, 0, v23',
                's_mov_b64 s[90:91], exec', 's_mov_b64 exec, 1', f'buffer_store_dwordx3 v[20:22], v23, {srd(SRD_WS)}, s89 offen sc1', 's_mov_b64 exec, s[90:91]']

    def pubsrd(self):
        return self.build_srd(SRD_WS, S_WS, 0x10000000) + self.build_srd(SRD_OUT, S_OUT, 8192) + self.build_srd(SRD_DBG, S_DBG, 256)

    def tables(self):
        OOB = 0x100000
        G = [[] for _ in range(11)]
        for l in range(64):
            half, i32, g, r, c = l >> 5, l & 31, l >> 4, (l >> 2) & 3, l & 3
            lin0 = g * 128 + r * XPP + c * 8
            G[0] += [lin0, lin0 + 512 if g < 3 else XOFF(27) + c * 8, (l >> 3) * 16, 0x3f803f80 if l < 32 else 0]
            G[1] += [(l & 7) * 16, 0xeeee if l & 1 else 0x4444, half * XPP + i32 * 4, IMG + half * 20 * IMGP + i32 * 4]
            tr = [IMG + cin16.IMGROW(cin16.LAB[g][2 * rp + (r >> 1)][r & 1]) * IMGP + c * 8 for rp in range(8)]
            G[2] += tr[:4]
            G[3] += tr[4:]
            row, col = 8 * half + r, (g & 1) * 32 + c * 8
            G[4] += [V3OFF + row * 64 + col, A1 + row * 1352 + col, A1 + min(row + 16, 25) * 1352 + col, A1 + min(row + 20, 25) * 1352 + col]
            t, gd, rr = (i32 >> 2) & 1, i32 >> 3, i32 & 3
            ig = 16 * t + 4 * rr + gd
            iq = 4 * rr + gd if t == 0 else 16 + ((4 * rr + gd + 4) & 15)
            pm = []
            for q in range(8):
                k0 = 16 * (q >> 2) + 8 * half + 2 * (q & 3)
                pm.append((0xffff if iq == k0 else 0xffff0000 if iq == k0 + 1 else 0) if iq < 26 else 0)
            G[5] += pm[:4]
            G[6] += pm[4:]
            ga = A2 + 52 * ig if ig < 26 else OOB
            rowp = ((l & 12) + 2 * (l & 1)) * 16 + (OOB if l & 2 else 0)
            G[7] += [ga + half * 8 * W2P, ga + half * OOB, rowp + half * 256 + (g & 1) * 8, rowp + g * 256]
            G[8] += [SG + i32 * 64 if i32 < 26 else V2S if i32 == 26 else OOB, 64 if i32 == 26 else 3328, (i32 >> 1) + 2 * half,
                     SQ + i32 * 64 + ((((i32 >> 1) & 3) ^ (2 * half)) << 4)]
            v2 = []
            for hf in range(2):
                j = 4 * g + 16 * hf + r
                v2.append(V2S + (j & 1) * 1664 + (j >> 1) * 64 + ((c ^ (((13 + j) & 3) * 2)) * 8) if j < 26 else SG + 676 * 64 + c * 8)
            wo = [L_WCO + 2 * (16 * tl_ + 4 * c + r) if 16 * tl_ + 4 * c + r < 26 else OOB for tl_ in range(2)]
            G[9] += v2 + wo
            G[10] += [L_WCO + 104 + 16 * half, L_WCO + 52 + 2 * l, V3OFF + 52 + 64 * l, SG + 676 * 64 + (l & 15) * 4]
        U = []
        for w in range(8):
            for e in range(16):
                for u in (w, w + 8, w + 16):
                    U += [SG + row * 64 + f * 8 for row, f in cin16.p2rows(u, e >> 2, e & 3)] if u < 22 else [0, 0]
        return [x for n in (4, 2, 3, 0, 5, 6, 7, 8, 9, 1, 10) for x in G[n]] + [0] * 256 + U + [0] * 256

    def cin(self):
        o = self.opt
        cw = S_CW
        vFa, vLin0, vLin1, vXi0, vXi1, vC16, vIDX, vXa, vIw, vPWL, vPXL, PXR, PFR = 1, 4, 5, 6, 7, 8, 9, 10, 11, 12, 13, 14, 15
        XI, vTR = 16, 20
        XR, P, Z, WF, D = 32, 60, 116, 164, 184
        vStg, vFR, vFw = vFa, 2, 59
        t3, t4, t5 = 29, 30, 31
        AV = [28, 58]
        PM = 216
        vA3, vBs0, vBs1a, vBs1b, vGa, vGb, vT3, vT3d = range(224, 232)
        G8, vV2r, vV2q, vWo, AD = 232, 236, 237, 238, 240
        WA = list(range(244, 250))
        vS, vMx = 250, 111
        UA, UX = 224, [232, 233, 234, 235, 240, 241]
        AFR = 112
        BALL, DALL = 60, 120
        S_F1, S_F2, S_G, S_LO, S_HI, S_CM, S_U0, S_U1, S_U2 = 74, 75, 95, 96, 97, 90, 98, 99, 100
        S_CG, S_IV = 0, 1
        OOB = 0x100000
        TA_, TB_, TC_ = SG + 35840, SQ + 26 * W2P, FRS + 2048
        GREG = [224, 20, 24, 4, 216, 220, 228, 232, 236, 8, 240]
        DPPS = (('row_shr:1', '0xf'), ('row_shr:2', '0xf'), ('row_shr:4', '0xf'), ('row_shr:8', '0xf'),
                ('row_bcast:15', '0xa'), ('row_bcast:31', '0xc'))

        K_W7, K_IMG, K_W2, K_W1, K_W12, K_H8, K_T3 = 52, 53, 54, 55, 92 - 10, 92 - 9, 91
        L = ['L_cin:', f'v_lshlrev_b32 v{vStg}, 4, v0', f's_and_b32 s{cw}, s{S_WAVE}, 3', f's_lshr_b32 s{S_GRP}, s{S_WAVE}, 2', f's_lshl_b32 s{S_STG}, s{cw}, 10',
             f's_mul_i32 s{S_MB}, s{S_T0}, 11', f's_add_u32 s{S_MB}, s{S_MB}, s{S_T1}', f's_sub_u32 s{S_MB}, s{S_MB}, 22',
             f's_cmp_eq_u32 s{S_MB}, 86', 's_cbranch_scc1 L_spare' if o.wsc and not o.nospare else 's_cbranch_scc1 L_end', f's_cmp_eq_u32 s{S_GRP}, 0', 's_cbranch_scc1 L_sc']
        c0 = self.seq(L)
        L = ['s_setprio 2', f'v_add_u32 v2, L_tables-L_pc+4096, v{vStg}', f'v_mov_b32 v3, s{S_MASK + 1}',
             f'v_add_co_u32 v2, vcc, s{S_MASK}, v2', 'v_addc_co_u32 v3, vcc, 0, v3, vcc',
             f'v_add_co_u32 v{XR}, vcc, s{S_STG}, v2', f'v_addc_co_u32 v{XR + 1}, vcc, 0, v3, vcc',
             f'global_load_dwordx4 {vr(GREG[0], 4)}, v[2:3], off offset:-4096',
             'v_add_co_u32 v2, vcc, 0x1800, v2', 'v_addc_co_u32 v3, vcc, 0, v3, vcc', f'global_load_dwordx4 {vr(GREG[10], 4)}, v[2:3], off',
             f's_cmp_lt_u32 s{cw}, 3', f's_mov_b32 s{S_T2}, {TB_ - 3072}', f's_cselect_b32 s{S_T2}, {TA_ + 4096}, s{S_T2}']
        tdma = lambda off: I(f'global_load_lds_dwordx4 {vr(XR, 2)}, off offset:{off}', tag='TAB')
        L += [f's_add_u32 m0, s{S_STG}, {TA_ + 4096}', tdma(-4096), f's_add_u32 m0, s{S_STG}, s{S_T2}', tdma(0),
              f'v_add_co_u32 v{XR}, vcc, 0x2000, v{XR}', f'v_addc_co_u32 v{XR + 1}, vcc, 0, v{XR + 1}, vcc',
              f's_add_u32 m0, s{S_STG}, {TC_}', tdma(0), f's_add_u32 m0, s{S_STG}, {TB_ + 1024 + 4096}', f's_cmp_ge_u32 s{cw}, 2', 's_cbranch_scc1 L_sc']
        g1s = self.seq(L)
        L = [tdma(-4096)]
        g1t = self.seq(L)
        L = ['L_sc:', f's_mul_i32 s{S_RC}, s{S_GRP}, 20', f's_add_u32 s{S_RC}, s{S_RC}, s{S_WAVE}',
             f's_mul_i32 s{S_SAMP}, s{S_MB}, 48', f's_add_u32 s{S_SAMP}, s{S_SAMP}, s{S_RC}', f's_mul_i32 s{S_SAMP}, s{S_SAMP}, 104',
             f'v_lshrrev_b32 v{t4}, 3, v0', f'v_lshlrev_b32 v{t4}, 4, v{t4}', f'v_and_b32 v{t3}, 0x70, v{vStg}',
             f's_mul_i32 s{S_XM0}, s{S_WAVE}, {XBSZ}', f's_add_u32 s{S_XM0}, s{S_XM0}, {XB}', f's_cmp_eq_u32 s{S_GRP}, 0', 's_cbranch_scc1 L_g0']
        csc = self.seq(L)
        SC2 = [f's_lshl_b32 s{S_RC}, s{S_RC}, 2', f's_add_u32 s{S_RC}, s{S_RC}, {RC}',
               f's_mul_i32 s{S_LOOP}, s{S_GRP}, 3', f's_sub_u32 s{S_LOOP}, 4, s{S_LOOP}', (f's_cmp_eq_u32 s{S_MB}, 85', f's_cselect_b32 s{S_LOOP}, s{S_LOOP}, 6'),
               f's_lshl_b32 s{K_W7}, s{S_WAVE}, 7', f's_mul_i32 s{K_IMG}, s{S_WAVE}, {IMGSZ}', f's_lshl_b32 s{K_W2}, s{S_WAVE}, 2', f's_lshl_b32 s{K_W1}, s{S_WAVE}, 1',
               f's_lshl_b32 s{K_W12}, s{S_WAVE}, 12',
               f's_and_b32 s{S_U0}, s{S_WAVE}, 1', f's_lshr_b32 s{S_U1}, s{S_WAVE}, 1',
               f's_mul_i32 s{S_T0}, s{S_U1}, 3072', f's_lshl_b32 s{K_H8}, s{S_U0}, 3', f's_add_u32 s{S_T0}, s{S_T0}, s{K_H8}', f'v_add_u32 v{vFw}, s{S_T0}, v{vStg}',
               f's_lshl_b32 s{S_T1}, s{S_U1}, 3', f's_lshr_b32 s{S_T1}, 0x05030200, s{S_T1}', f's_and_b32 s{S_T1}, s{S_T1}, 0xff',
               f's_lshl_b32 s{S_T1}, s{S_T1}, 9', f's_lshl_b32 s{S_T2}, s{S_U0}, 2', f's_add_u32 s{K_T3}, s{S_T1}, s{S_T2}',
               f's_mov_b32 s{S_U1}, 0x05040100', f's_mov_b32 s{S_U2}, 0x07060302',
               f'v_mov_b32 v{vFR}, {L_FLG}', 'v_mov_b32 v109, 0', 'v_mov_b32 v108, 0'] + [f'v_mov_b64 {vr(r, 2)}, 0' for r in range(XR, XR + 26, 2)]
        XJ = 104 if o.xat < 4 else 12

        def pfw(dst=3):
            return [f'buffer_load_dword v{dst}, v{vPWL}, {srd(SRD_W)}, s{S_PW} offen',
                    f's_add_u32 s{S_PW}, s{S_PW}, {o.pfne * 688 * 128}']

        def pfx_a():
            return [f'buffer_load_dword v{PXR}, v{vPXL}, {srd(SRD_IDX)}, s{S_PX} offen',
                    f's_cmp_eq_u32 s{S_PX}, s{S_PXE}', f's_cselect_b32 s{S_PXE}, 0x7000000, s{S_PXE}',
                    f's_cselect_b32 s{S_PX}, 0x7000000, s{S_PX}',
                    f's_add_u32 s{S_PX}, s{S_PX}, 24', f's_min_u32 s{S_PX}, s{S_PX}, s{S_PXE}']

        def pfx_b():
            return [f'v_lshlrev_b32 v{PXR}, 7, v{PXR}', f'buffer_load_dword v{PFR}, v{PXR}, {srd(SRD_TAB)}, 0 offen']

        def xidx(XI=XI, vXi0=vXi0):
            return [f'buffer_load_dwordx4 {vr(XI, 4)}, v{vXi0}, {srd(SRD_IDX)}, s{S_SAMP} offen', f's_add_u32 s{S_SAMP}, s{S_SAMP}, {4 * 104}']

        def xdma(XI=XI, off=0, tag='XB', vC16=vC16):
            c = [f'v_lshl_add_u32 v{XI + u}, v{XI + u}, 7, v{vC16}' for u in range(4)]
            for u in range(4):
                c += [f's_add_u32 m0, s{S_XM0}, {u * XPP + off}']
                if u % 2 == 0:
                    c.append(f's_mov_b32 exec_hi, {0xffffff if u == 0 else 0xffff:#x}')
                c.append(I(f'buffer_load_dwordx4 v{XI + u}, {srd(SRD_TAB)}, 0 offen lds', tag=tag))
            return c + ['s_mov_b32 exec_hi, -1']

        def stage(dst, goff, tag):
            st = []
            for m in range(9):
                st.append((f's_add_u32 m0, s{S_STG}, {dst + m * 4096}', f's_add_u32 s{S_TW}, s{S_STG}, {goff + m * 4096}',
                           I(f'buffer_load_dwordx4 v{vStg}, {srd(SRD_CIN)}, s{S_TW} offen lds', tag=tag)))
            return st

        def pubmax(regs_offs):
            c = []
            for (ctl, rm) in DPPS:
                for r, _ in regs_offs:
                    c.append(f'v_max_u32_dpp v{r}, v{r}, v{r} {ctl} row_mask:{rm} bank_mask:0xf')
            c += ['s_mov_b32 exec_lo, 0', 's_mov_b32 exec_hi, 0x80000000']
            c += [f'ds_max_u32 v{vFR}, v{r} offset:{16 + 4 * k}' for r, k in regs_offs]
            return c + ['s_mov_b64 exec, -1']

        def mxop(src, n, mx, first):
            return [f'v_mfma_f32_16x16x32_bf16 {vr(mx, 4)}, {vr(src + r, 4)}, {vr(src + r, 4)}, {"0" if first and r == 0 else vr(mx, 4)}' for r in range(0, n, 4)]

        def mxfin(mx):
            return [f'v_max3_f32 v{mx}, v{mx}, v{mx + 1}, 0', f'v_max3_f32 v{mx}, v{mx}, v{mx + 2}, v{mx + 3}']

        def bread(m, off):
            b = BALL + m * 8
            return [f'ds_read_b64_tr_b16 {vr(b, 2)}, v{vBs0} offset:{off}',
                    f'ds_read_b64_tr_b16 {vr(b + 2, 2)}, v{vBs0} offset:{off + 4 * 1352}',
                    f'ds_read_b64_tr_b16 {vr(b + 4, 2)}, v{vBs1a} offset:{off}',
                    f'ds_read_b64_tr_b16 {vr(b + 6, 2)}, v{vBs1b} offset:{off}']

        def mm2(d, a, b):
            return [f'v_mfma_f32_32x32x16_bf16 {vr(d, 16)}, {vr(a, 4)}, {vr(b, 4)}, 0',
                    f'v_mfma_f32_32x32x16_bf16 {vr(d, 16)}, {vr(a + 4, 4)}, {vr(b + 4, 4)}, {vr(d, 16)}']

        tA, tB = 250, 251
        if o.pfw:
            SC2 += self.build_srd(SRD_W, S_W1, 1664 * 3328) + [
                f's_lshl_b32 s{S_PW}, s{S_MB}, 3', f's_add_u32 s{S_PW}, s{S_PW}, s{S_WAVE}', f's_add_u32 s{S_PW}, s{S_PW}, {o.pfe0 * 832}', f's_lshl_b32 s{S_PW}, s{S_PW}, 7',
                f's_mov_b32 s{S_T3}, {688 * 128}', f'v_min_u32 v{vPWL}, {max(o.pfne - 1, 0)}, v0', f'v_mul_lo_u32 v{vPWL}, s{S_T3}, v{vPWL}']
        if o.pfx:
            SC2 += [f's_lshl_b32 s{S_PX}, s{S_MB}, 3', f's_add_u32 s{S_PX}, s{S_PX}, s{S_WAVE}', f's_mul_i32 s{S_PX}, s{S_PX}, {6 * 104}',
                    f's_add_u32 s{S_PXE}, s{S_PX}, 80', f's_add_u32 s{S_PX}, s{S_PX}, {4 * o.pfx0}',
                    f'v_min_u32 v{PXR}, 35, v0', f'v_mul_u32_u24 v{vPXL}, 10923, v{PXR}', f'v_lshrrev_b32 v{vPXL}, 16, v{vPXL}',
                    f'v_mul_u32_u24 v{vPXL}, {104 - 24}, v{vPXL}', f'v_lshl_add_u32 v{vPXL}, v{PXR}, 2, v{vPXL}']
        trd = lambda n: f'ds_read_b128 {vr(GREG[n], 4)}, v{tA if n < 7 else tB} offset:{(n if n < 7 else n - 7) * 1024}'
        vbs = [f'v_add_u32 v{r}, s{K_W7}, v{r}' for r in (vBs0, vBs1a, vBs1b)]

        def FX(g):
            R = [trd(n) for n in ((0,) if g == 0 else ()) + (6, 7, 3, 9, 1, 2, 4, 5, 8)]
            F = vbs + [f'v_add_u32 v{r}, s{K_W2}, v{r}' for r in (vGa, vGb)]
            F += [f'v_add_u32 v{vT3d}, s{K_H8}, v{vT3d}', f'v_add_u32 v{vT3}, s{K_T3}, v{vT3}']
            F += [f'v_mad_u32_u24 v{G8}, v{G8 + 1}, s{S_WAVE}, v{G8}', f'v_add_u32 v{G8 + 2}, s{K_W1}, v{G8 + 2}',
                  f'v_mad_u32_u24 v{G8 + 1}, v{G8 + 1}, 8, v{G8}', f'v_add_u32 v{WA[2]}, s{K_W12}, v{G8 + 3}', f'v_add_u32 v{WA[3]}, 2048, v{WA[2]}']
            for n_, (wa, bs) in enumerate(((WA[0], G8), (WA[1], G8), (WA[4], G8 + 1), (WA[5], G8 + 1))):
                F += [f'v_add_u32 v{t5}, {n_ & 1}, v{G8 + 2}', f'v_and_b32 v{t5}, 3, v{t5}', f'v_lshl_add_u32 v{wa}, v{t5}, 4, v{bs}']
                if n_ & 1:
                    F.append(f'v_add_u32 v{wa}, 1664, v{wa}')
            F += [f'v_add_u32 v{r}, s{S_XM0}, v{r}' for r in (vXa, vLin0, vLin1)] + [f'ds_write_b32 v{vXa}, v{vXi1} offset:{XOFF(26)}']
            F += [f'v_add_u32 v{r}, s{K_IMG}, v{r}' for r in [vIw] + list(range(vTR, vTR + 8))]
            return R, F
        SC2 += [f'v_add_u32 v{tA}, {TA_}, v{vStg}', f'v_add_u32 v{tB}, {TB_}, v{vStg}', f'v_lshrrev_b32 v3, 5, v0', f'v_lshl_add_u32 v3, v3, 2, v{vFR}']

        def pub2(r1, r2, off):
            c = [f'v_permlane32_swap_b32 v{r1}, v{r2}', f'v_max_u32 v{r1}, v{r1}, v{r2}']
            c += [f'v_max_u32_dpp v{r1}, v{r1}, v{r1} {ctl} row_mask:{rm} bank_mask:0xf' for ctl, rm in DPPS[:5]]
            return c + ['s_mov_b32 exec_lo, 0x80000000', 's_mov_b32 exec_hi, 0x80000000', f'ds_max_u32 v3, v{r1} offset:{16 + off}', 's_mov_b64 exec, -1']
        AV = [28, 58, 111]
        CO = [f's_sub_u32 s{S_T0}, s{S_T3}, 22', f's_min_u32 s{S_T0}, s{S_T0}, 9', f's_lshl_b32 s{S_T0}, s{S_T0}, 2', f's_add_u32 s{S_T0}, s{S_T0}, s{cw}', f's_lshl_b32 s{S_T0}, s{S_T0}, 7',
              f'v_mul_u32_u24 v{t5}, {40 * 128}, v0', 's_waitcnt lgkmcnt(0)'] + self.build_srd(SRD_CIN, S_CIN, 105456) + [
              f'buffer_load_dword v107, v{t5}, {srd(SRD_CIN)}, s{S_T0} offen']
        L = CO if o.coop in (1, 2) else []
        L += ['s_waitcnt lgkmcnt(0)'] + self.build_srd(SRD_WCO, S_WCO, 156) + [f's_mov_b32 m0, {L_WCO}', 's_mov_b64 exec, 0x7ff',
             I(f'buffer_load_dwordx4 v{vStg}, {srd(SRD_WCO)}, 0 offen lds', tag='WCO'), 's_mov_b64 exec, -1'] + (['s_barrier'] if o.coop in (2, 4) else []) + self.stamp0() + SC2
        L += self.build_srd(SRD_IDX, S_IDX, 4096 * 104) + self.build_srd(SRD_TAB, S_TAB, 100000 * 128)
        XK = 12
        if o.g1t:
            assert not o.pfx
            L += [f'v_and_b32 v13, 31, v0', f'v_min_u32 v13, 25, v13', f'v_lshrrev_b32 v14, 5, v0', f'v_mul_u32_u24 v14, {4 * 104}, v14', f'v_lshl_add_u32 v13, v13, 2, v14',
                  f'buffer_load_dword v14, v13, {srd(SRD_IDX)}, s{S_SAMP} offen']
        g1touch = [f'v_lshlrev_b32 v14, 7, v14', f'buffer_load_dword v13, v14, {srd(SRD_TAB)}, 0 offen']
        hx = []
        if o.hx:
            mg = {4: 16384, 5: 13108}[o.hx]
            assert all((d * mg) >> 16 == d // o.hx for d in range(64))
            L += [f'v_min_u32 v12, {12 * o.hx - 1}, v0', f'v_mul_u32_u24 v15, {mg}, v12', 'v_lshrrev_b32 v15, 16, v15', f'v_mul_u32_u24 v15, {104 - 4 * o.hx}, v15', 'v_lshl_add_u32 v12, v12, 2, v15',
                  f's_lshl_b32 s{S_T0}, s{S_MB}, 2', f's_add_u32 s{S_T0}, s{S_T0}, s{cw}', f's_mul_i32 s{S_T0}, s{S_T0}, {12 * 104}',
                  f'buffer_load_dword v15, v12, {srd(SRD_IDX)}, s{S_T0} offen offset:{4 * o.hx0}']
            hx = ['v_lshlrev_b32 v15, 7, v15', f'buffer_load_dword v12, v15, {srd(SRD_TAB)}, 0 offen']
        if o.hw:
            hw = self.build_srd(SRD_W, S_W1, 1664 * 3328) + [f's_lshl_b32 s{S_T0}, s{S_MB}, 2', f's_add_u32 s{S_T0}, s{S_T0}, s{cw}', f's_add_u32 s{S_T0}, s{S_T0}, {o.hw0 * 832}',
                  f's_lshl_b32 s{S_T0}, s{S_T0}, 7', f'v_mul_u32_u24 v106, {344 * 128}, v0', f's_mov_b64 exec, {(1 << o.hw) - 1}',
                  f'buffer_load_dword v{XI}, v106, {srd(SRD_W)}, s{S_T0} offen', 's_mov_b64 exec, -1']
        if o.xg1:
            L += [f's_sub_u32 s{S_T0}, s{S_SAMP}, {24 * 104}', f'buffer_load_dwordx4 {vr(XI, 4)}, v{t4}, {srd(SRD_IDX)}, s{S_T0} offen',
                  f'buffer_load_dwordx4 {vr(XK, 4)}, v{t4}, {srd(SRD_IDX)}, s{S_T0} offen offset:{4 * 104}']
        L += [f'ds_write_b128 v{vFR}, {vr(XR, 4)} offset:16', f's_lshl_b32 s{S_T0}, s{cw}, 6', f'v_add_u32 v{t3}, s{S_T0}, v0']
        for p_ in range(3):
            L += [f'v_mul_u32_u24 v{t4}, 2521, v{t3}', f'v_lshrrev_b32 v{t4}, 16, v{t4}', f'v_mul_u32_u24 v{t4}, 12, v{t4}', f'v_lshl_add_u32 v{AV[p_]}, v{t3}, 1, v{t4}']
            L += [f'v_add_u32 v{t3}, 256, v{t3}'] if p_ < 2 else [f'v_cmp_gt_u32 vcc, 676, v{t3}', f's_mov_b64 s[{S_MASK}:{S_MASK + 1}], vcc']
        L += [f'v_lshlrev_b32 v{t3}, 3, v0', 's_mov_b32 exec_hi, 0xffff', f'ds_write_b64 v{t3}, {vr(XR, 2)} offset:{V3OFF + 26 * 64}', 's_mov_b32 exec_hi, -1',
              f'ds_write_b32 v{AD + 3}, v{XR}', f'ds_write_b32 v{AD + 3}, v{XR} offset:{SSZ}', WaitTag(vm_tags=['WCO'])]
        assert V3OFF == 0
        for s2 in range(2):
            for rd in range(2):
                L.append(f'ds_read_b64 {vr(AFR + 4 * s2 + 2 * rd, 2)}, v{AD} offset:{s2 * 32 + rd * 8}')
        L += [f'ds_read_u16 v110, v{AD + 1}',
              's_mov_b64 exec, 0x3ffffff', f'ds_write_b16 v{AD + 2}, v110', 'v_lshlrev_b32 v109, 17, v110', 'v_lshrrev_b32 v109, 1, v109', 's_mov_b64 exec, -1']
        if o.cwalk:
            L += ['s_mov_b64 exec, 0'] + [x for q_ in range(3) for x in (f's_cmp_eq_u32 s{cw}, {q_}', f's_cbranch_scc1 L_WENTRY{q_}')] + ['s_branch L_WENTRY3', 'L_wret:', 's_mov_b64 exec, -1']
        L += (FX(1)[1] if o.dirt else vbs) + [WaitTag(vm_tags=['TAB'], lgkm0=True)] + self.probe('tab') + (pfw(PFR) if o.pfw and o.pfs == 1 else []) + (hw if o.hw and o.hwat == 0 else []) + (hx if o.hxat == 0 else [])
        v3p = []
        L += ['s_barrier'] + self.stamp(2) + self.probe('b0')
        vb = lambda m: A3 - A1 - 512 + (m >> 1) * 512 + (m & 1) * 64
        for m in range(3):
            L += bread(m, vb(m))
        for m in range(6):
            if m + 3 < 6:
                L += bread(m + 3, vb(m + 3))
            L += mm2(DALL + m * 16, AFR, BALL + m * 8)
            if m == 3 and not o.dirt:
                L += FX(1)[0]
        if not o.dirt:
            L += FX(1)[1][3:]
        for p_ in range(3):
            L += ['s_mov_b32 exec_lo, 0', f'v_mov_b32 v{DALL + 32 * p_}, v{DALL + 32 * p_ + 16}', 's_mov_b32 exec_lo, -1',
                  f'v_cvt_pk_bf16_f32 v{BALL + p_}, 0, v{DALL + 32 * p_}']
            if p_ == 2:
                L += [f's_mov_b64 exec, s[{S_MASK}:{S_MASK + 1}]']
            L += [f'ds_write_b16_d16_hi v{AV[p_]}, v{BALL + p_}', f'v_max_f32 v108, |v{BALL + p_}|, v108']
        L += ['s_mov_b64 exec, -1'] + pub2(108, 109, 8) + self.stamp(13) + [f's_setprio {o.g1p}'] + (hw if o.hw and o.hwat == 1 else []) + (hx if o.hxat == 1 else []) + (g1touch if o.g1t == 1 else []) + ['s_waitcnt lgkmcnt(0)', 's_barrier'] + (g1touch if o.g1t == 2 else []) + ['s_branch L_w2']
        v3 = self.seq(L)

        def stage3(dst, goff, tag, lab, mid=None, fill=()):
            st = stage(dst, goff, tag)
            a_ = st[:8] if mid is None else st[:mid[0]] + [tuple(mid[1])] + st[mid[0]:8]
            return (self.seq(interleave(a_, list(fill)) + [f's_cmp_eq_u32 s{cw}, 3', f's_cbranch_scc1 {lab}']), self.seq([st[8]]), self.seq([f'{lab}:']))
        g0 = [self.seq(['L_g0:'] + ([x.replace('v107,', 'v103,') for x in CO] if o.coop >= 3 else ['s_waitcnt lgkmcnt(0)'] + self.build_srd(SRD_CIN, S_CIN, 105456)) + (['s_barrier'] if o.coop in (2, 4) else []) + ([Touch('v103')] if o.coop == 5 else []))]
        g0.append(stage3(A3, 70304, 'W3', 'L_st3'))
        g0.append(self.seq(self.stamp0() + self.build_srd(SRD_IDX, S_IDX, 4096 * 104) + ([f's_add_u32 s{S_SAMP}, s{S_SAMP}, {8 * 104}'] if o.xg1 else xidx(XI, t4) + xidx(XJ, t4)) + self.build_srd(SRD_TAB, S_TAB, 100000 * 128)))
        def w2grp(n):
            c = []
            for k, go in enumerate((0, 1024, 1864)):
                c.append((f's_add_u32 m0, s{S_STG9}, {A2 + n * 4 * 3072 + k * 1024}', f's_add_u32 s{S_TW}, s{S_TGT}, {35152 + n * 4 * 2704 + go}',
                          I(f'buffer_load_dwordx4 v{t5 if k == 1 else vStg}, {srd(SRD_CIN)}, s{S_TW} offen lds', tag='W2')))
            return c
        g0.append((self.seq([f's_mul_i32 s{S_STG9}, s{cw}, 3072', f's_mul_i32 s{S_TGT}, s{cw}, 2704', f'v_lshrrev_b32 v{t5}, 5, v0', f'v_mul_u32_u24 v{t5}, 184, v{t5}',
                             f'v_sub_u32 v{t5}, v{vStg}, v{t5}'] + interleave(w2grp(0) + w2grp(1) + w2grp(2), SC2) + [f's_cmp_lg_u32 s{cw}, 0', 's_cbranch_scc1 L_st2']),
                   self.seq(w2grp(3)), self.seq(['L_st2:']), 1))
        xx = xdma(vC16=t3, tag='XBa') + xdma(XJ, 4 * XBSZ, vC16=t3)
        g0.append(stage3(A1, 0, 'W1', 'L_st1', (o.sigat, [WaitTag(vm_tags=['W2' if o.mrg else 'W3']), 's_barrier'] + self.stamp(2) + FX(0)[0])))
        g0.append(self.seq((xx if o.xat == 0 else xx[:len(xx) // 2] if o.xat == 3 else []) + (pfw(PFR) if o.pfw and o.pfs == 1 else []) + FX(0)[1] + (xx if o.xat == 2 else xx[:len(xx) // 2] if o.xat >= 4 else []) + self.stamp(13)
                           + [WaitTag(vm_tags=['W1']), 's_barrier'] + (xx if o.xat == 1 else xx[len(xx) // 2:] if o.xat == 3 else [])))

        def G0(w):
            r = []
            for x in g0:
                r += x if isinstance(x, list) else x[0] + (x[1] if w < (3 if len(x) == 3 else x[3]) else []) + x[2]
            return r

        def gather(dst, off):
            c = [f'v_add_u32 v{r}, {off}, v{r}' for r in (vGa, vGb)] if off else []
            for s2 in range(2):
                for e in range(0, 8, 2):
                    base = vGb if (s2 == 1 and e >= 2) else vGa
                    h = 16 * s2 + e
                    c.append(f'ds_read2st64_b32 {vr(dst + 8 * s2 + e, 2)}, v{base} offset0:{6 * h} offset1:{6 * h + 6}')
            return c

        def perms(g_, aj):
            return [f'v_perm_b32 v{aj + 8 * jj + r}, v{g_ + 2 * r + 1}, v{g_ + 2 * r}, s{S_U1 + jj}' for jj in range(2) for r in range(8)]

        def sout(t):
            d, c_ = DALL + 16 * t, DALL + 16 * t
            c = [f'v_cvt_pk_f16_f32 v{c_ + r}, v{d + 2 * r}, v{d + 2 * r + 1}' for r in range(8)]
            return c[:4] + [f'ds_write_b128 v{WA[t]}, {vr(c_, 4)}', f'v_xor_b32 v{WA[t]}, 16, v{WA[t]}'] + c[4:] + [f'ds_write_b128 v{WA[t]}, {vr(c_ + 4, 4)}']
        M1, M2 = 28, 28

        def pub1(r, off):
            c = [f'v_max_u32_dpp v{r}, v{r}, v{r} {ctl} row_mask:{rm} bank_mask:0xf' for ctl, rm in DPPS]
            return c + [('s_mov_b32 exec_lo, 0', 's_mov_b32 exec_hi, 0x80000000', f'ds_max_u32 v{vFR}, v{r} offset:{16 + off}', 's_mov_b64 exec, -1')]
        L = ['L_w2:'] + self.stamp(14) + self.probe('bw2') + gather(BALL, 0) + (pfw(PFR) if o.pfw and o.pfs == 2 else []) + (pfx_a() if o.pfx else [])
        cx = []
        if o.xg1:
            cc0 = self.seq(L + [f's_cmp_eq_u32 s{S_GRP}, 0', 's_cbranch_scc1 L_nx1'])
            cx = self.seq(xdma(XI, -4 * XBSZ) + xdma(XK))
            L = ['L_nx1:']
        else:
            cc0 = []
        L += [f's_cmp_ge_u32 s{S_WAVE}, 5', 's_cbranch_scc1 L_u0']
        cc = self.seq(L)
        M1, M2 = 28, 108
        fin2 = lambda: interleave(mxfin(M1), mxfin(M2)) + [tuple(x) if isinstance(x, list) else x for x in pub2(M1, M2, 0)[:7] + [pub2(M1, M2, 0)[7:]]]
        afr = [f'ds_read_b64_tr_b16 {vr(AFR + 4 * s2 + 2 * rd, 2)}, v{vA3} offset:{s2 * 1024 + rd * 256}' for s2 in range(2) for rd in range(2)]
        b1u = self.seq(gather(BALL + 32, 32) + bread(2, 0) + bread(3, 64) + afr + mxop(BALL, 16, M2, True) + perms(BALL, DALL + 64)[:8] + mxop(BALL + 32, 16, M2, False)
                       + mxop(BALL + 16, 16, M1, True) + perms(BALL, DALL + 64)[8:] + interleave(fin2(), perms(BALL + 32, BALL)) + ['s_branch L_u1'])
        L = ['L_u0:'] + bread(2, 0) + bread(3, 64) + bread(4, 384) + bread(5, 384 + 64) + afr + mxop(BALL, 16, M2, True) + mxop(BALL + 16, 32, M1, True)
        L += perms(BALL, DALL + 64)[:4] + interleave(fin2(), perms(BALL, DALL + 64)[4:])
        L += [f'v_add_u32 v{WA[4]}, {192 * 64}, v{WA[2]}', f'v_add_u32 v{WA[5]}, {192 * 64}, v{WA[3]}',
              f's_cmp_lg_u32 s{S_WAVE}, 7', 's_cbranch_scc1 L_u1', 's_mov_b32 exec_lo, 0xfffffff0', 's_mov_b32 exec_hi, 0xfffffff0', f'v_mov_b32 v{WA[5]}, {OOB}', 's_mov_b64 exec, -1']
        b1q = self.seq(L)
        MXR = 108
        vM = 58

        def ureads(j):
            return [f'ds_read_u16_d16_hi v{XR + 2 * j}, v{vXa} offset:{XOFF(2 * j)}',
                    f'ds_read_u16_d16_hi v{XR + 2 * j + 1}, v{vXa} offset:{XOFF(2 * j) + 2}']
        mx3 = lambda j: f'v_max3_f32 v{vM}, |v{XR + 2 * j}|, |v{XR + 2 * j + 1}|, {"0" if j == 0 else f"v{vM}"}'
        L = ['L_u1:'] + self.stamp(1) + [WaitTag(lgkm0=True), 's_barrier'] + self.stamp(7) + self.probe('b1')
        L += [f'ds_read_b128 {vr(MXR, 4)}, v{vFR} offset:16'] + (pfx_b() + pfx_a() if o.pfx and o.pf1 == 1 else [])
        hook = {}

        def mkhook(name, c0_, c1_):
            nonlocal L
            if not (c0_ or c1_):
                return
            pre_ = self.seq(L + [f's_cmp_lg_u32 s{S_GRP}, 0', f's_cbranch_scc1 L_{name}1'])
            a_ = self.seq(c0_ + [f's_branch L_{name}2'])
            b_ = self.seq([f'L_{name}1:'] + c1_)
            hook[name] = (pre_, a_, b_)
            L = [f'L_{name}2:']
        mkhook('hb', xdma(XJ, 4 * XBSZ) if o.xat == 5 else [], g1touch if o.g1t == 3 else [])
        L += [f's_mul_i32 s{S_T0}, s{S_WAVE}, 384', f'v_lshrrev_b32 v{t3}, 2, v0', f'v_mul_u32_u24 v{t3}, 24, v{t3}', f'v_add_u32 v{t3}, s{S_T0}, v{t3}',
              f'v_and_b32 v{t4}, 3, v0', f'v_lshlrev_b32 v{t4}, 3, v{t4}']
        L += [f'ds_read_b64 {vr(UA + 2 * n_, 2)}, v{t3} offset:{TC_ + 8 * n_}' for n_ in range(3)]
        q1 = [f'v_add_u32 v{MXR}, {127 << 23:#x}, v{MXR}', f'v_lshrrev_b32 v{MXR}, 24, v{MXR}', f'v_sub_u32 v{MXR}, 267, v{MXR}', f'v_min_u32 v{MXR}, 167, v{MXR}',
              f'v_readfirstlane_b32 s{S_F1}, v{MXR}', f'v_mul_u32_u24 v{MXR}, 0x800080, v{MXR}']
        sc = [f'v_add_u32 v{MXR + 1}, {127 << 23:#x}, v{MXR + 1}', f'v_lshrrev_b32 v{MXR + 1}, 24, v{MXR + 1}',
              's_mov_b32 vcc_lo, 0x4000000', 's_mov_b32 vcc_hi, 0x4000000', f'v_cndmask_b32 v{vS}, v{MXR + 2}, v{MXR + 3}, vcc', f'v_lshrrev_b32 v{vS}, 23, v{vS}',
              f'v_add_u32 v{vS}, v{vS}, v{MXR + 1}', f'v_sub_u32 v{vS}, 388, v{vS}', f's_movk_i32 s{S_U0}, 167', f'v_med3_i32 v{vS}, v{vS}, 1, s{S_U0}',
              f'v_subrev_u32 v{MXR + 2}, 127, v{vS}', f'v_lshlrev_b32 v{vS}, 23, v{vS}', f'v_cmp_gt_i32 vcc, 0, v{MXR + 2}',
              f'v_mul_u32_u24 v{MXR + 2}, 0x800080, v{MXR + 2}']
        mq = mm2(DALL + 32, PM, BALL + 16) + mm2(DALL + 48, PM, BALL + 24)
        L += interleave(q1, sc[:6]) + [f'v_and_b32 v{PM + r}, v{PM + r}, v{MXR}' for r in range(8)] + interleave([mq[0], mq[2], mq[1], mq[3]], sc[6:]) + ['s_cbranch_vccnz L_sdown']
        L += [f'v_add_u32 v{AFR + r}, v{AFR + r}, v{MXR + 2}' for r in range(8)]
        u1a = self.seq(L)
        L = ['L_scaled:'] + interleave(mm2(DALL, DALL + 64, AFR) + mm2(DALL + 16, DALL + 72, AFR), sout(2) + sout(3))
        L += [f's_cmp_ge_u32 s{S_WAVE}, 5', 's_cbranch_scc1 L_u2']
        u1 = self.seq(L)
        u2u = self.seq(interleave(mm2(DALL + 64, BALL, AFR) + mm2(DALL + 80, BALL + 8, AFR), sout(0)) + ['s_branch L_u3'])
        u2q = self.seq(['L_u2:'] + interleave(mm2(DALL + 64, PM, BALL + 32) + mm2(DALL + 80, PM, BALL + 40), sout(0)))
        L = ['L_u3:'] + xidx() + xidx(112) + (pfx_b() + pfx_a() if o.pfx and o.pf1 == 2 else [])
        mkhook('hu', xdma(XJ, 4 * XBSZ) if o.xat == 4 else [], g1touch if o.g1t == 4 else [])
        L += interleave(sout(1) + sout(4) + sout(5), [x for n_ in range(6) for x in (f'v_xor_b32 v{UA + n_}, v{UA + n_}, v{t4}', f'v_xor_b32 v{UX[n_]}, 32, v{UA + n_}')])
        L += [f'v_readlane_b32 s{S_CG}, v{vS}, 0', f'v_readlane_b32 s{S_IV}, v{vS}, 26',
              f's_sub_u32 s{S_F2}, {254 << 23:#x}, s{S_CG}', f's_sub_u32 s{S_IV}, {254 << 23:#x}, s{S_IV}',
              f's_sub_u32 s{S_F1}, 254, s{S_F1}', f's_lshl_b32 s{S_F1}, s{S_F1}, 23',
              f's_mov_b32 s{S_MASK}, 0x88888888', f's_mov_b32 s{S_MASK + 1}, 0x88888888']

        def sigma(s_):
            t = (s_ - 1) // 2
            first = (s_ - 1) % 2 == 0
            return (0 if first else 1) if t % 2 == 0 else (1 if first else 0)
        for s_ in range(1, 11):
            assert ((s_ - 1) // 2) * 1024 + sigma(s_) * 512 - (s_ // 4) * 2048 == (-1024, 0, 512, 1536)[s_ % 4]

        def p2read(n_):
            b = BALL + 16 * n_
            c = []
            UAl = list(range(UA, UA + 6))
            for x, (ar, off) in enumerate(((UAl, 0), (UX, 0), (UAl, SSZ), (UX, SSZ))):
                for y in range(2):
                    c.append(f'ds_read_b64_tr_b16 {vr(b + 4 * x + 2 * y, 2)}, v{ar[2 * n_ + y]} offset:{off}')
            return c

        def p2a(n_):
            b = BALL + 16 * n_
            c = []
            for x in range(4):
                c += [f'v_pk_add_f16 v{b + 4 * x + y}, v{b + 4 * x + y}, v{b + 4 * x + 2 + y}' for y in range(2)]
                if x in (0, 2):
                    c.append(f'ds_write_b64 v{vFw}, {vr(b + 4 * x, 2)} offset:{FR + n_ * 4 * 3072 + x * 1024}')
            c += [f'v_cndmask_b32 v{b + 4 + y}, v{b + 4 + y}, v{b + 12 + y}, s[{S_MASK}:{S_MASK + 1}]' for y in range(2)]
            c.append(f'ds_write_b64 v{vFw}, {vr(b + 4, 2)} offset:{FR + n_ * 4 * 3072 + 1024}')
            return c

        def p2s(n_):
            b = BALL + 16 * n_ + 12
            off = FRS + max(n_ * 2048 - 1024, 0)
            return ([f'v_subrev_u32 v{vT3}, 1024, v{vT3}'] if n_ == 0 else []) + [
                f'ds_write_b32 v{vT3}, v{b} offset:{off}', f'ds_write_b32 v{vT3}, v{b + 1} offset:{off + 16}']
        ec = []
        if o.econv:
            L += [f's_cmp_lg_u32 s{S_GRP}, 0', 's_cbranch_scc1 L_noec']
            u3 = self.seq(L)
            ec = self.seq([WaitTag(vm_tags=['XBa'])] + [x for j in range(13) for x in ureads(j)])
            L = ['L_noec:']
        else:
            u3 = []
        L += [WaitTag(vm_tags=['XB'] if o.xg1 else [], lgkm0=True), 's_barrier'] + self.stamp(10)
        L += p2read(0) + p2read(1) + [f's_cmp_ge_u32 s{S_WAVE}, 6', 's_cbranch_scc1 L_lin']
        b2 = self.seq(L)
        p2c = self.seq(p2read(2) + p2a(2) + p2s(2) + ['s_branch L_p2'])
        LB = BALL + 32
        ZR4 = t5
        L = ['L_lin:', f's_and_b32 s{S_U0}, s{S_WAVE}, 1', f's_cselect_b64 vcc, -1, 0', f's_lshl_b32 s{S_U1}, s{S_U0}, 5', f'v_mov_b32 v{ZR4}, 0',
             f'v_xor_b32 v{vV2r}, s{S_U1}, v{vV2r}', f'v_xor_b32 v{vV2q}, s{S_U1}, v{vV2q}', f'v_cndmask_b32 v{vWo}, v{vWo}, v{vWo + 1}, vcc',
             f'ds_read_b64_tr_b16 {vr(LB, 2)}, v{vV2r}', f'ds_read_b64_tr_b16 {vr(LB + 2, 2)}, v{vV2q}',
             f'ds_read_u16_d16_hi v{ZR4}, v{vWo}',
             f's_lshl_b32 s{S_U0}, s{S_U0}, 10', f'v_add_u32 v{t3}, s{S_U0}, v{vStg}']
        for r in range(4):
            a_, b_ = LB + 4 + 2 * r, LB + 5 + 2 * r
            L += [f'v_cvt_f32_f16 v{a_}, v{LB + r}', f'v_cvt_f32_f16_sdwa v{b_}, v{LB + r} dst_sel:DWORD dst_unused:UNUSED_PAD src0_sel:WORD_1',
                  f'v_mul_f32 v{a_}, s{S_IV}, v{a_}', f'v_mul_f32 v{b_}, s{S_IV}, v{b_}']
            if r == 3:
                L += ['s_mov_b32 exec_lo, 0', 's_mov_b32 exec_hi, 0xffff', f'v_mov_b32 v{a_}, v{ZR4}', 's_mov_b64 exec, -1']
            L += [f'v_mul_f32 v{a_}, s{S_CG}, v{a_}', f'v_mul_f32 v{b_}, s{S_CG}, v{b_}', f'v_cvt_pk_bf16_f32 v{LB + r}, v{a_}, v{b_}']
        L += [f'ds_write_b128 v{t3}, {vr(LB, 4)} offset:{FRL}']
        lin = self.seq(L)
        p2 = self.seq(['L_p2:'] + p2a(1) + p2s(1) + p2a(0) + [f's_cmp_lt_u32 s{S_WAVE}, 2', 's_cbranch_scc1 L_p2d'])
        p2e = self.seq(p2s(0) + ['s_branch L_built'])
        p2d = self.seq(['L_p2d:', f'ds_write_b64 v{vT3d}, {vr(BALL + 12, 2)} offset:{FRS + 5 * 1024}'])

        L = ['L_sdown:']
        for r in range(8):
            L += [f'v_lshlrev_b32 v{MXR}, 16, v{AFR + r}', f'v_and_b32 v{MXR + 1}, 0xffff0000, v{AFR + r}',
                  f'v_mul_f32 v{MXR}, v{MXR}, v{vS}', f'v_mul_f32 v{MXR + 1}, v{MXR + 1}, v{vS}', f'v_cvt_pk_bf16_f32 v{AFR + r}, v{MXR}, v{MXR + 1}']
        self.sdown = L + ['s_branch L_scaled']

        HK = lambda n_, g_: hook[n_][0] + hook[n_][1 + g_] if n_ in hook else []

        def PRE(w, sd=None):
            grp = w >> 2
            return (c0 + (g1s + (g1t if w < 6 else []) if grp else []) + csc + (v3p + v3 if grp else G0(w)) + cc0 + (cx if grp else []) + cc + (b1q if w >= 5 else b1u)
                    + HK('hb', grp) + (u1a if sd is None else u1a[:-8] + sd) + u1 + (u2q if w >= 5 else u2u) + HK('hu', grp) + u3 + ([] if grp else ec) + b2
                    + (lin if w >= 6 else p2c) + p2 + (p2d if w < 2 else p2e))
        L = ['L_built:'] + self.stamp(11)
        L += [f's_mov_b32 s{S_CG}, s{S_F1}', f's_mov_b32 s{S_IV}, s{S_F2}', f's_mov_b32 s{S_LO}, {f32hex(0.125)}', f's_mov_b32 s{S_HI}, {f32hex(0.0 if o.slow else 128.0)}']
        CV, vM, S_XD = 28, 58, 81

        def ureads(j):
            return [f'ds_read_u16_d16_hi v{XR + 2 * j}, v{vXa} offset:{XOFF(2 * j)}',
                    f'ds_read_u16_d16_hi v{XR + 2 * j + 1}, v{vXa} offset:{XOFF(2 * j) + 2}']
        mx3 = lambda j: f'v_max3_f32 v{vM}, |v{XR + 2 * j}|, |v{XR + 2 * j + 1}|, {"0" if j == 0 else f"v{vM}"}'
        cvt = lambda j: f'v_cvt_pk_f16_f32 v{CV + j % 4}, v{XR + 2 * j}, v{XR + 2 * j + 1}'
        iwr = lambda j: f'ds_write_b32 v{vIw}, v{CV + j % 4} offset:{j * IMGP}'
        S_SKIP = 51
        pfr = lambda: (pfx_b() + pfx_a() if o.pfx else []) + (pfw() if o.pfw == 1 else [])
        conv = lambda tag='XB': ([WaitTag(vm_tags=[tag])] + [x for j in range(13) for x in ureads(j)]
                        + [x for j in range(13) for x in (mx3(j), f'v_cvt_pk_f16_f32 v{D + j}, v{XR + 2 * j}, v{XR + 2 * j + 1}')])
        L += [f's_mov_b32 s{S_SKIP}, 1', f's_mul_i32 s{S_U0}, s{S_WAVE}, 1536', f's_add_u32 s{S_U0}, s{S_U0}, {PART}',
              f's_cmp_lg_u32 s{S_GRP}, 0', 's_cbranch_scc1 L_g1c']
        c2a = self.seq(L)
        c2g0 = self.seq([f's_sub_u32 s{S_SAMP}, s{S_SAMP}, {4 * 104}', Touch('v[112:115]')] + (conv('XBa')[27:] if o.econv else conv('XBa')) + [WaitTag(lgkm0=True), 's_barrier'] + self.probe('b4a') + self.stamp(8) + ['s_branch L_cin_go'])
        DX = XB2 - XB - 4 * XBSZ
        L = ['L_g1c:', WaitTag(vm_tags=['XB'], lgkm0=True), 's_barrier'] + self.stamp(8) + self.probe('b4')
        L += [f's_add_u32 s{S_XM0}, s{S_XM0}, {DX}'] + xdma(tag='XB0') + xdma(112, 4 * XBSZ) + xidx() + pfr() + [f'v_add_u32 v{r}, {DX}, v{r}' for r in (vXa, vLin0, vLin1)]
        L += [f'ds_write_b32 v{vXa}, v{vXi1} offset:{XOFF(26)}', f'ds_write_b32 v{vXa}, v{vXi1} offset:{XOFF(26) + 4 * XBSZ}']
        c2g1 = self.seq(L)
        c2b = []
        c2g1d = self.seq(['L_g1d:'] + conv('XB0'))
        c2c = self.seq(['L_cin_go:'] + [f'ds_write_b32 v{vIw}, v{D + j} offset:{j * IMGP}' for j in range(13)]
                       + [f's_mov_b32 s{S_XD}, {4 * XBSZ}', f's_add_u32 s{S_XM0}, s{S_XM0}, {4 * XBSZ}',
                          f'v_lshlrev_b32 v{vXi1}, 2, v0', f'v_add_u32 v{vXi1}, s{S_U0}, v{vXi1}'])

        NWF = 5
        PF = o.cpfd
        zslot = lambda s_: 1 if s_ % 2 == 0 else (0 if ((s_ - 1) // 2) % 2 == 0 else 2)
        zr = lambda T, sl: Z + 12 * T + 4 * sl
        preg = lambda T, r: P + 14 * T + (r if r < 14 else r - 14)
        acc = lambda T, tile: D + 16 * T + 4 * tile
        jobs = [('l', 0, 0), ('l', 0, 1)]
        for s_ in range(11):
            jobs += [('d', s_, 2), ('d', s_, 0), ('d', s_, 1)]
            if s_ == 0:
                jobs.append(('d', 0, 3))
            elif s_ % 2 == 0:
                jobs.append(('s', s_, 3))
        NJ = len(jobs)
        assert NJ == 41

        RES = [12, 28, 248, 252][:o.res]
        wreg = lambda n: RES[n] if n < len(RES) else WF + 4 * (n % NWF)

        def wread(n):
            kind, s_, tile = jobs[n]
            off = FRL + tile * 1024 if kind == 'l' else (FR + s_ * 3072 + tile * 1024 if tile < 3 else FRS + (5 if s_ == 0 else (s_ - 1) // 2) * 1024)
            return f'ds_read_b128 {vr(wreg(n), 4)}, v{vFa} offset:{off}'

        def mfma(n, T):
            kind, s_, tile = jobs[n]
            a = vr(wreg(n), 4)
            d = vr(acc(T, tile), 4)
            if kind == 'l':
                return f'v_mfma_f32_16x16x32_bf16 {d}, {a}, {vr(zr(T, 2), 4)}, 0'
            if kind == 's':
                lo = 0 if ((s_ - 1) // 2) % 2 == 0 else 1
                return f'v_smfmac_f32_16x16x64_f16 {d}, {a}, {vr(zr(T, lo), 8)}, v{vIDX}'
            return f'v_mfma_f32_16x16x32_f16 {d}, {a}, {vr(zr(T, zslot(s_)), 4)}, {"0" if (s_ == 0 and tile >= 2) else d}'

        def pk(T, n):
            a, b, s0, s1 = cin16.INS[n]
            return (f'v_pk_mul_f16 v{zr(T, zslot(n // 4)) + n % 4}, v{preg(T, a)}, v{preg(T, b)} '
                    f'op_sel:[{s0[0]},{s0[1]}] op_sel_hi:[{s1[0]},{s1[1]}]')

        def trp(T, rp):
            return f'ds_read_b64_tr_b16 {vr(preg(T, 2 * rp), 2)}, v{vTR + rp} offset:{32 * T}'

        LASTA = max(n for n, x in enumerate(cin16.INS) if x[0] < 2)
        S_A1, S_A2, S_PINC = 49, 50, 48
        fin = []
        for T in range(4):
            fin += [(acc(T, 0) + r, acc(T, 2) + r) for r in range(4)] + [(acc(T, 1), acc(T, 1) + 3)]
        for T in range(4):
            fin += [(acc(T, 1) + 1 + (r >> 1), acc(T, 3) + r) for r in range(4)]

        def final(f1, f2):
            c = []
            for k, (a, b) in enumerate(fin):
                d = Z + k % 4
                c.append(f'v_mul_f32 v{d}, v{a}, v{b}' if k < 4 else f'v_fmac_f32 v{d}, v{a}, v{b}')
            c += [f'v_add_f32 v{Z}, v{Z}, v{Z + 1}', f'v_add_f32 v{Z + 2}, v{Z + 2}, v{Z + 3}', f'v_add_f32 v{Z}, v{Z}, v{Z + 2}']
            c += [f'v_mul_f32 v{Z}, s{x}, v{Z}' for x in (f1, f2)]
            return c + [f'ds_write_b32 v{vXi1}, v{Z}']
        code = ['L_cin_loop:', f'v_cmp_le_f32 s[{S_CM}:{S_CM + 1}], s{S_HI}, v{vM}', f'v_cmp_le_f32 vcc, s{S_LO}, v{vM}',
                f's_mov_b32 s{S_A1}, s{S_F1}', f's_mov_b32 s{S_A2}, s{S_F2}',
                f's_cmp_lg_u64 s[{S_CM}:{S_CM + 1}], 0', 's_cbranch_scc1 L_cslow', 's_cbranch_vccz L_cslow']
        cA = self.seq(code)
        RD = []
        for rp in (0, 3, 4):
            RD += [trp(T, rp) for T in range(4)]
        for T in range(4):
            RD += [f'ds_read_b64_tr_b16 {vr(zr(T, 2), 2)}, v{vLin0} offset:{32 * T}', f'ds_read_b64_tr_b16 {vr(zr(T, 2) + 2, 2)}, v{vLin1} offset:{32 * T}']
        RD += [wread(k) for k in range(PF)]
        for rp in (5, 6, 1, 2):
            RD += [trp(T, rp) for T in range(4)]
        pfr = lambda: (pfx_b() + pfx_a() if o.pfx else []) + (pfw() if o.pfw == 1 else [])
        vm = xdma() + xidx() + pfr()
        VA = final(S_A1, S_A2) + [f'v_add_u32 v{vXi1}, 256, v{vXi1}']
        PK0 = [pk(T, n) for T in range(4) for n in range(4)]
        TG = [f'v_add_u32 v{r}, s{S_XD}, v{r}' for r in (vXa, vLin0, vLin1)] + [f's_sub_u32 s{S_XM0}, s{S_XM0}, s{S_XD}', f's_sub_u32 s{S_XD}, 0, s{S_XD}', f's_mov_b32 s{S_SKIP}, 0']
        cB0 = self.seq(['L_cconv:', f's_cmp_lg_u32 s{S_SKIP}, 0', 's_cbranch_scc1 L_first'])
        cVM = self.seq(interleave([x for x in RD if x not in [wread(k) for k in range(len(RES))]], VA) + PK0 + vm)
        self.first = ['L_first:'] + RD[:28] + interleave(RD[28:], PK0) + ['s_branch L_novm']
        code = ['L_novm:'] + TG
        LA = 1
        def lstamp(base):
            if not (o.stamps and o.cst):
                return []
            return [f's_memtime s[{S_ST}:{S_ST + 1}]', f's_memrealtime s[{S_ST + 2}:{S_ST + 3}]', f's_sub_u32 s{S_C0}, {base + 6}, s{S_LOOP}', 's_waitcnt lgkmcnt(0)',
                    f's_mov_b32 m0, s{S_C0}', f'v_writelane_b32 v252, s{S_ST}, m0', f'v_writelane_b32 v253, s{S_ST + 2}, m0']
        code += lstamp(19)
        code += [Touch(vr(wreg(0), 4)), Touch(vr(zr(3, 2), 4))] + ([f's_cmp_eq_u32 s{S_GRP}, 0', 's_cbranch_scc1 L_np1', 's_setprio 1', 'L_np1:'] if o.gprio else ['s_setprio 1'])
        MS = []
        for n in range(NJ):
            pos = [i_ for i_ in range(n + 1) if jobs[i_][1] == jobs[n][1] and (jobs[i_][0] == 'l') == (jobs[n][0] == 'l')].index(n)
            last = jobs[n][2] == 3 or (n + 1 < NJ and jobs[n + 1][1] != jobs[n][1])
            MS += [(n, 3 - T if (o.csn and pos == 1) else T) for T in range(4)]
        first_use, last_use = {}, {}
        for mi, (n, T) in enumerate(MS):
            kind, s_, tile = jobs[n]
            if kind == 'l':
                last_use[(T, 'lin')] = mi
                continue
            for su in ([s_] if kind == 'd' else [s_ - 1, s_]):
                first_use.setdefault((T, su), mi)
                last_use[(T, su)] = mi
        V = []
        for s_ in range(LA, 11):
            prev = [p_ for p_ in range(s_) if zslot(p_) == zslot(s_)]
            for T in range(4):
                rdy = last_use[(T, prev[-1])] + o.war if prev else (last_use[(T, 'lin')] if zslot(s_) == 2 else -1)
                for n in range(4 * s_, 4 * s_ + 4):
                    V.append((pk(T, n), rdy, first_use[(T, s_)], n, T))
        forced = 0
        late = []
        XL_ = [x for j in range(13) for x in ureads(j)]
        xrd = {}
        CVR = [preg(T, r) for r in (2, 3, 6, 7) for T in range(4)]
        cvrdy = max(n for n, x in enumerate(cin16.INS) if set(x[:2]) & {2, 3, 6, 7})
        cvt2 = lambda j: f'v_cvt_pk_f16_f32 v{CVR[j]}, v{XR + 2 * j}, v{XR + 2 * j + 1}'
        iwr2 = lambda j: f'ds_write_b32 v{vIw}, v{CVR[j]} offset:{j * IMGP}'
        nm = nc = nw = 0
        V.sort(key=lambda x: x[2])
        prev2 = 0
        for mi, (n, T) in enumerate(MS):
            while V and V[0][2] <= mi:
                assert V[0][1] < mi
                code.append(V.pop(0)[0]); forced += 1
            code.append(mfma(n, T))
            T = mi % 4
            t = 4
            if o.cbar and mi == len(MS) - 1 - o.cbov:
                code += ['s_setprio 3', 's_barrier']; t += 8
            if not o.cbar and mi == 4 * o.hiat - 2:
                code.append('s_setprio 2'); t += 4
            if T == 3 and n + 1 < NJ:
                code.append(Touch(vr(wreg(n + 1), 4))); t += 4
            if T == 0 and n + PF < NJ:
                code.append(wread(n + PF)); t += 8
            elif T in (1, 2) and late:
                code.append(late.pop(0)); t += 8
            elif T in (1, 2) and mi >= o.x0 and XL_:
                if len(XL_) == 26:
                    code.append(WaitTag(vm_tags=['XB']))
                code.append(XL_.pop(0)); t += 8
                if len(XL_) % 2 == 0:
                    xrd[12 - len(XL_) // 2] = mi
            elif not V and nw < nc and t == 4:
                code.append(iwr2(nw)); nw += 1; t += 12
            t = max(t, 12 if jobs[n][0] == 's' else 8)
            k = 0
            while t < 16:
                urgent = any(V[q_][2] - 1 - mi < q_ + 1 for q_ in range(min(24, len(V))))
                if k == 1 and prev2 >= o.max2 and not urgent:
                    break
                cand = [x for x in V[:32] if x[1] <= mi]
                extra = None
                if nm < 13 and nm in xrd and xrd[nm] + o.xlat <= mi:
                    extra = 'm'
                elif nc < nm and all(x[3] > cvrdy for x in V):
                    extra = 'c'
                if cand and (k == 0 or urgent or not extra) and (k == 0 or urgent or o.eager):
                    x = cand[0]
                    V.remove(x)
                    code.append(x[0])
                    if x[3] <= LASTA and all(y[3] > LASTA for y in V if y[4] == x[4]):
                        late.append(trp(x[4], 7))
                elif extra == 'm':
                    code.append(mx3(nm)); nm += 1
                elif extra == 'c':
                    code.append(cvt2(nc)); nc += 1
                else:
                    break
                t += 4; k += 1
            prev2 = prev2 + 1 if k == 2 else 0
        assert not late and not XL_ and not V
        print('left', 13 - nm, 13 - nc, 13 - nw)
        tail = [mx3(j) for j in range(nm, 13)] + [cvt2(j) for j in range(nc, 13)] + [iwr2(j) for j in range(nw, 13)]
        print('forced VALU', forced)
        code += lstamp(25)
        code.append(f's_setprio {o.p0}')
        code += [f's_sub_u32 s{S_LOOP}, s{S_LOOP}, 1', f's_cmp_eq_u32 s{S_LOOP}, 0', 's_cbranch_scc1 L_cin_done'] + tail
        ntail = len(tail) + 1
        def keep(x):
            t_ = x.text if isinstance(x, I) else x
            if isinstance(t_, tuple):
                return True
            if 'nopk' in o.dbg and t_.startswith('v_pk_mul_f16'):
                return False
            if 'nowf' in o.dbg and t_.startswith('ds_read_b128'):
                return False
            if 'nosm' in o.dbg and t_.startswith('v_smfmac'):
                return False
            return True
        code = [x for x in code if keep(x)]
        if 'bf' in o.dbg:
            code = [x.replace('x32_f16', 'x32_bf16').replace('x64_f16', 'x64_bf16') if isinstance(x, str) else x for x in code]
        cB = self.seq(code + ['s_branch L_cin_loop'])
        mark0 = len(self.P.static)
        bl = []
        if o.burn:
            bl = [f's_movk_i32 s{S_LOOP}, {o.burn // 2}', 'L_burn2:'] + [f'v_mfma_f32_16x16x32_f16 {vr(P + 4 * (k % 2), 4)}, {vr(WF + 4 * (k % 4), 4)}, {vr(Z + 4 * (k // 4), 4)}, 0' for k in range(32)]
            bl += [f's_sub_u32 s{S_LOOP}, s{S_LOOP}, 1', f's_cmp_lg_u32 s{S_LOOP}, 0', 's_cbranch_scc1 L_burn2']
        L = ['L_cin_done:', f's_mul_i32 s{S_U0}, s{S_WAVE}, 1536', f's_add_u32 s{S_U0}, s{S_U0}, {PART}',
             f'v_lshlrev_b32 v{Z + 4}, 5, v0', f'v_add_u32 v{Z + 4}, s{S_U0}, v{Z + 4}',
             f'ds_read_b128 {vr(P, 4)}, v{Z + 4}', f'ds_read_b128 {vr(P + 4, 4)}, v{Z + 4} offset:16'] + bl + final(S_F1, S_F2)[:-1]
        E = [f'v_subrev_u32 v{Z + 6}, s{S_U0}, v{vXi1}', f'v_lshrrev_b32 v{Z + 6}, 8, v{Z + 6}', f'v_lshrrev_b32 v{Z + 5}, 3, v0', f'v_cmp_gt_u32 vcc, v{Z + 6}, v{Z + 5}',
             f'v_min_u32 v{Z + 5}, v{Z + 5}, v{Z + 6}', f'v_lshlrev_b32 v{Z + 5}, 4, v{Z + 5}', f'v_add_u32 v{Z + 5}, s{S_RC}, v{Z + 5}',
             ] + [f'v_add_f32 v{P + a_}, v{P + a_}, v{P + b_}' for a_, b_ in ((0, 1), (2, 3), (4, 5), (6, 7), (0, 2), (4, 6), (0, 4))]
        E += [f'v_add_f32_dpp v{P}, v{P}, v{P} {ctl} row_mask:0xf bank_mask:0xf' for ctl in ('quad_perm:[1,0,3,2]', 'quad_perm:[2,3,0,1]', 'row_half_mirror')]
        L += interleave([f'v_add_f32_dpp v{Z}, v{Z}, v{Z} {ctl} row_mask:{rm} bank_mask:0xf' for ctl, rm in DPPS], E)
        L += [f'v_cndmask_b32 v{P}, v{Z}, v{P}, vcc', 's_bitset1_b32 vcc_hi, 31', 's_mov_b64 exec, vcc', f'ds_write_b32 v{Z + 5}, v{P}', 's_mov_b64 exec, -1']
        L += self.stamp(9) + self.stamp_flush() + self.probe('cend') + [f's_cmp_eq_u32 s{S_WAVE}, 0', 's_cbranch_scc1 L_cpub', 's_waitcnt lgkmcnt(0)', 's_barrier', 's_endpgm',
              'L_cpub:', f's_load_dword s{S_BOUT}, s[{S_BO}:{S_BO + 1}], 0'] + self.pubsrd() + (self.pst() if o.skew and o.probe == 'span' else []) + [
              'v_lshlrev_b32 v6, 2, v0', f'v_add_u32 v2, {RC}, v6', 'v_add_u32 v4, 1024, v6',
              f's_mul_i32 s{S_T1}, s{S_MB}, 192', f's_add_u32 s{S_T1}, s{S_T1}, {13 * WSP}',
              'v_mov_b32 v13, -1', 's_mov_b32 exec_hi, 0xffff', f'buffer_store_dword v13, v6, {srd(SRD_WS)}, s{S_T1} offen sc1', 's_mov_b64 exec, 1',
              f'buffer_load_dword v250, v6, {srd(SRD_OUT)}, 0 offen', f'buffer_load_dword v251, v6, {srd(SRD_DBG)}, 0 offen offset:128 sc1', 's_mov_b64 exec, -1',
              f's_mul_i32 s{S_T0}, s{S_MB}, 3', f's_mul_i32 s{S_T2}, s{S_T0}, 3277', f's_lshr_b32 s{S_T2}, s{S_T2}, 16',
              f'v_add_u32 v7, s{S_T2}, v0', f's_mul_i32 s{S_T2}, s{S_T2}, 20', f's_add_u32 s{S_T2}, s{S_T2}, 20',
              f's_sub_u32 s{S_T2}, s{S_T2}, s{S_T0}', f's_min_u32 s{S_T2}, s{S_T2}, 3', f's_sub_u32 s{S_T0}, 3, s{S_T2}',
              f'v_mov_b32 v5, s{S_T0}', f'v_writelane_b32 v5, s{S_T2}, 0',
              f's_cmp_eq_u32 s{S_T0}, 0', f's_cselect_b32 s{S_T0}, 1, 3',
              'v_lshlrev_b32 v3, 4, v0'] + (['s_mov_b64 exec, 0', 's_branch L_pw0', 'L_pwc:'] if o.pwalk else []) + ['s_waitcnt vmcnt(0) lgkmcnt(0)'] + (self.cready('c', 251) if o.wsc else []) + ['s_mov_b32 exec_hi, 0xffff', 's_barrier'] + self.probe('cend2') + ['ds_read_b32 v64, v2']
        L += (self.stamp(16) if o.diag else [])
        L += ['v_min_u32 v64, -2, v64'] if o.sent else []
        L += [f'buffer_store_dword v64, v6, {srd(SRD_WS)}, s{S_T1} offen sc1', f's_mov_b32 exec_lo, s{S_T0}', 's_mov_b32 exec_hi, 0', 's_branch L_pub']
        fin_ = self.seq(L)
        blk = self.P.static[mark0:]
        del self.P.static[mark0:]
        at = self.P.static.index(self.pub[-1]) + 1
        self.P.static[at:at] = blk + self.ldblk
        L = ['L_cslow:']
        for (ctl, rm) in (('row_shr:1', '0xf'), ('row_shr:2', '0xf'), ('row_shr:4', '0xf'), ('row_shr:8', '0xf'),
                          ('row_bcast:15', '0xa'), ('row_bcast:31', '0xc')):
            L.append(f'v_max_f32_dpp v{vM}, v{vM}, v{vM} {ctl} row_mask:{rm} bank_mask:0xf')
        L += [f'v_readlane_b32 s{S_U0}, v{vM}, 63', f's_mov_b32 s{S_HI}, 0',
              f's_lshr_b32 s{S_U0}, s{S_U0}, 23', f's_min_u32 s{S_U0}, s{S_U0}, {127 + 55}',
              f's_lshr_b32 s{S_U1}, s{S_IV}, 23', f's_sub_u32 s{S_U1}, s{S_U1}, 47', f's_lshr_b32 s{S_U1}, s{S_U1}, 1', f's_min_u32 s{S_U1}, s{S_U1}, 59',
              f's_sub_u32 s{S_U1}, 131, s{S_U1}', f's_max_u32 s{S_U0}, s{S_U0}, s{S_U1}',
              f's_sub_u32 s{S_U1}, {127 + 4 + 127}, s{S_U0}',
              f's_lshl_b32 s{S_U2}, s{S_U1}, 1', f's_sub_u32 s{S_U2}, s{S_U2}, 127',
              f's_sub_u32 s{S_G}, 254, s{S_U2}', f's_lshl_b32 s{S_G}, s{S_G}, 23',
              f'v_mov_b32 v{P}, s{S_G}', f'v_mul_f32 v{P + 1}, s{S_CG}, v{P}', f'v_mul_f32 v{P}, s{S_IV}, v{P}',
              f'v_readfirstlane_b32 s{S_F1}, v{P + 1}', f'v_readfirstlane_b32 s{S_F2}, v{P}',
              f's_lshl_b32 s{S_U1}, s{S_U1}, 23', f's_lshl_b32 s{S_U2}, s{S_U2}, 23']
        TS = P
        for j in range(13):
            L += [f'v_mul_f32 v{TS}, s{S_U1}, v{XR + 2 * j}', f'v_mul_f32 v{TS + 1}, s{S_U1}, v{XR + 2 * j + 1}',
                  f'v_mul_f32 v{TS + 2}, s{S_U2}, v{XR + 2 * j}', f'v_mul_f32 v{TS + 3}, s{S_U2}, v{XR + 2 * j + 1}',
                  f'v_cvt_pk_f16_f32 v{TS + 20 + j}, v{TS}, v{TS + 1}', f'v_cvt_pk_bf16_f32 v{TS + 4 + j}, v{TS + 2}, v{TS + 3}',
                  f'ds_write_b32 v{vIw}, v{TS + 20 + j} offset:{j * IMGP}', f'ds_write_b32 v{vXa}, v{TS + 4 + j} offset:{XOFF(2 * j)}']
        L += [f'v_mov_b32 v{TS}, s{S_U2}', f'v_cvt_pk_bf16_f32 v{TS}, v{TS}, v{TS}',
              's_mov_b32 exec_hi, 0', f'ds_write_b32 v{vXa}, v{TS} offset:{XOFF(26)}', 's_mov_b32 exec_hi, -1',
              's_waitcnt lgkmcnt(0)', 's_branch L_cconv']
        slow = self.seq(L)
        sdown = self.seq(self.sdown)
        cF = self.seq(self.first)
        traces = []
        for w in range(8):
            grp = w >> 2
            c2 = c2a + (c2g1 + (c2b if w == 4 else []) + c2g1d if grp else c2g0) + c2c
            it = lambda sl, first: cA + (slow if sl else []) + cB0 + (cF if first else cVM) + cB
            traces.append(PRE(w) + c2 + it(0, 1) + it(0, 0) + it(0, 0)[:-ntail] + fin_ + self.pub)
            if w in (0, 4):
                traces.append(PRE(w, sdown) + c2 + it(1, 1) + it(1, 0)[:-ntail] + fin_ + self.pub)
        return traces

    def build(self):
        pro = self.prologue()
        d = self.dnn()
        cs = self.cin()
        if self.opt.wsc:
            self.extra_traces.append(self.seq(self.late))
            self.extra_traces.append(self.seq(['L_spare:', f's_cmp_lg_u32 s{S_WAVE}, 0', 's_cbranch_scc1 L_end', 's_waitcnt lgkmcnt(0)'] + self.pubsrd() + self.cinit('s', 'L_end')))
        self.seq(['L_end:', 's_endpgm'])
        traces = [pro + c for c in d + cs] + self.extra_traces
        for t in traces:
            resolve_waits(t)
        for _ in range(2):
            for t in traces:
                resolve_hazards(t)
        hdr = open(os.path.join(os.path.dirname(os.path.abspath(__file__)), 'header.txt')).read()
        txt = hdr + f'; @launch grid=(256,1,1) block=(512,1,1) lds={LDS_TOTAL}\n'
        txt += f'''.amdgcn_target "amdgcn-amd-amdhsa--gfx950"
{DOC}.text
.globl {KNAME}
.p2align 8
.type {KNAME},@function
{KNAME}:
'''
        body_ = self.P.emit()
        if self.opt.align:
            for lab in ('L_dnn_loop0:', 'L_dnn_loop1:', 'L_cin_loop:', 'L_epi:'):
                pad = '  s_nop 0\n' if self.opt.align > 100 else ''
                body_ = body_.replace(lab + '\n', f'.p2align {self.opt.align % 100}\n{pad}{lab}\n')
        if self.opt.cwalk:
            lines = body_.split('\n')
            i0, i1 = lines.index('L_w2:'), lines.index('L_cslow:')
            out, k, cnt = lines[:i0], 0, 0
            seg = lines[i0:i1]
            prot = 0
            for n_, l in enumerate(seg):
                out.append(l)
                t = l.strip()
                cnt += 1
                inmain = 'L_novm:' in seg[:n_ + 1]
                nxt = seg[n_ + 1].strip() if n_ + 1 < len(seg) else ''
                ok = t.endswith(':') or (cnt >= self.opt.cwalk and ('mfma' in t and nxt.startswith('v_pk') if inmain else t.startswith(('ds_', 'v_perm', 'v_cvt_pk'))))
                if ok and t not in ('L_cin_loop:', 'L_cconv:', 'L_scaled:'):
                    out += [f'L_wp{k}:', f'  s_cbranch_execz L_wp{k + 1}']
                    k += 1; cnt = 0
            j = lines.index('L_first:')
            rest = lines[i1:j + 1] + [f'L_wp{k}:', '  s_cbranch_execz L_wret'] + lines[j + 1:]
            body_ = '\n'.join(out + rest)
            print('walk pads', k + 1)
            self.npads = k + 1
            for q_ in range(4):
                body_ = body_.replace(f'L_WENTRY{q_}', f'L_wp{q_ * (k + 1) // 4}')
        if self.opt.pwalk:
            lines = body_.split('\n')
            i0, i1 = lines.index('L_pub:'), lines.index('L_ok:')
            out, k, cnt = lines[:i0 + 1] + ['L_pw0:', '  s_cbranch_execz L_pw1'], 1, 0
            for l in lines[i0 + 1:i1 + 1]:
                out.append(l)
                cnt += 1
                if (cnt >= self.opt.pwalk and l.strip().startswith(('s_add_u32', 'v_add_f32'))) or l == 'L_ok:':
                    out += [f'L_pw{k}:', f'  s_cbranch_execz L_pw{k + 1}' if l != 'L_ok:' else '  s_cbranch_execz L_pwr']
                    k += 1; cnt = 0
            body_ = '\n'.join(out + lines[i1 + 1:])
            print('pub pads', k)
        if self.opt.fix:
            body_ = fixalign.fix(body_ + 'L_tables:\n', self.opt.fix, nops=self.opt.fixn)[:-len('L_tables:\n')]
        txt += body_
        tb = self.tables()
        assert len(tb) == 16 * 256
        txt += '.p2align 8\nL_tables:\n' + ''.join('.long ' + ', '.join(f'{x:#x}' for x in tb[i:i + 8]) + '\n' for i in range(0, len(tb), 8))
        txt += f'''.section .rodata,"a"
.p2align 6
.amdhsa_kernel {KNAME}
  .amdhsa_next_free_vgpr 256
  .amdhsa_next_free_sgpr 102
  .amdhsa_accum_offset 256
  .amdhsa_group_segment_fixed_size 0
  .amdhsa_kernarg_size 88
  .amdhsa_user_sgpr_count 2
  .amdhsa_user_sgpr_kernarg_segment_ptr 1
  .amdhsa_system_sgpr_workgroup_id_x 1
  .amdhsa_float_denorm_mode_32 {self.opt.denorm}
.end_amdhsa_kernel
'''
        return txt


def main():
    ap = argparse.ArgumentParser()
    ap.add_argument('-o', default='standalone__deep_cross_xdeepfm__recsys.s')
    ap.add_argument('--stamps', action='store_true')
    ap.add_argument('--nodma', action='store_true')
    ap.add_argument('--cpf', type=int, default=1)
    ap.add_argument('--coop', type=int, default=2)
    ap.add_argument('--coopw', type=int, default=2)
    ap.add_argument('--tbpos', type=int, default=0)
    ap.add_argument('--dbar3', type=int, default=1)
    ap.add_argument('--tlb', type=int, default=0)
    ap.add_argument('--tlb2', type=int, default=1)
    ap.add_argument('--itst', type=int, default=0)
    ap.add_argument('--diag', type=int, default=0)
    ap.add_argument('--dbg', default='')
    ap.add_argument('--lead3', type=int, default=1)
    ap.add_argument('--morder', type=int, default=0)
    ap.add_argument('--etlb', type=int, default=0)
    ap.add_argument('--lateb', type=int, default=0)
    ap.add_argument('--wfl', default='')
    ap.add_argument('--xfl', default='')
    ap.add_argument('--tag', type=int, default=0)
    ap.add_argument('--idxfirst', type=int, default=1)
    ap.add_argument('--bpos', type=int, default=2)
    ap.add_argument('--sigat', type=int, default=4)
    ap.add_argument('--epx', type=int, default=1)
    ap.add_argument('--denorm', type=int, default=3)
    ap.add_argument('--mprio', type=int, default=0)
    ap.add_argument('--swap', type=int, default=0)
    ap.add_argument('--bov', type=int, default=1)
    ap.add_argument('--rfirst', type=int, default=0)
    ap.add_argument('--g1x', type=int, default=0)
    ap.add_argument('--ldsred', type=int, default=0)
    ap.add_argument('--csnake', type=int, default=0)
    ap.add_argument('--cswap', type=int, default=0)
    ap.add_argument('--align', type=int, default=0)
    ap.add_argument('--c2', type=int, default=0)
    ap.add_argument('--d1', type=int, default=0)
    ap.add_argument('--cstr', type=int, default=3)
    ap.add_argument('--bearly', type=int, default=1)
    ap.add_argument('--w2late', type=int, default=1)
    ap.add_argument('--aov', type=int, default=5)
    ap.add_argument('--upos', type=int, default=1)
    ap.add_argument('--calt', type=int, default=1)
    ap.add_argument('--pfpos', type=int, default=1)
    ap.add_argument('--wlate', type=int, default=0)
    ap.add_argument('--dbar2', type=int, default=0)
    ap.add_argument('--dbar', type=int, default=0)
    ap.add_argument('--pfw', type=int, default=0)
    ap.add_argument('--pfx', type=int, default=0)
    ap.add_argument('--pfx0', type=int, default=4)
    ap.add_argument('--pfs', type=int, default=1)
    ap.add_argument('--dcoopx', type=int, default=1)
    ap.add_argument('--dcx0', type=int, default=0)
    ap.add_argument('--dcxpos', type=int, default=-1)
    ap.add_argument('--pfe0', type=int, default=2)
    ap.add_argument('--pfne', type=int, default=13)
    ap.add_argument('--prio47', type=int, default=0)
    ap.add_argument('--lookahead', type=int, default=5)
    ap.add_argument('--nz', type=int, default=6)
    ap.add_argument('--nwf', type=int, default=8)
    ap.add_argument('--hiat', type=int, default=8)
    ap.add_argument('--wmerge', type=int, default=0)
    ap.add_argument('--gapv', type=int, default=6)
    ap.add_argument('--slow', type=int, default=0)
    ap.add_argument('--res', type=int, default=0)
    ap.add_argument('--fixn', type=int, default=0)
    ap.add_argument('--csn', type=int, default=1)
    ap.add_argument('--pwalk', type=int, default=0)
    ap.add_argument('--wsc', type=int, default=8)
    ap.add_argument('--nospare', type=int, default=0)
    ap.add_argument('--tailp', type=int, default=0)
    ap.add_argument('--hx', type=int, default=4)
    ap.add_argument('--hx0', type=int, default=4)
    ap.add_argument('--hxat', type=int, default=1)
    ap.add_argument('--hw', type=int, default=0)
    ap.add_argument('--hw0', type=int, default=2)
    ap.add_argument('--hwat', type=int, default=0)
    ap.add_argument('--tgap', type=int, default=40)
    ap.add_argument('--tmask', type=int, default=0x15)
    ap.add_argument('--st', type=int, default=0)
    ap.add_argument('--sf0', type=int, default=2)
    ap.add_argument('--dbar0', type=int, default=2)
    ap.add_argument('--ptl', type=int, default=0)
    ap.add_argument('--ct2', default='')
    ap.add_argument('--ewat', type=int, default=0)
    ap.add_argument('--gprio', type=int, default=1)
    ap.add_argument('--g1t', type=int, default=3)
    ap.add_argument('--tf0', type=int, default=8)
    ap.add_argument('--twoff', type=int, default=0)
    ap.add_argument('--ew', type=int, default=3)
    ap.add_argument('--ew0', type=int, default=2)
    ap.add_argument('--cyc', default='')
    ap.add_argument('--rshare', type=int, default=1)
    ap.add_argument('--dwalk', type=int, default=0)
    ap.add_argument('--band', type=int, default=0)
    ap.add_argument('--absol', type=int, default=0)
    ap.add_argument('--rev', type=int, default=1)
    ap.add_argument('--xg1', type=int, default=0)
    ap.add_argument('--bou', type=int, default=1)
    ap.add_argument('--sjw', type=int, default=7)
    ap.add_argument('--cwalk', type=int, default=0)
    ap.add_argument('--few', default='')
    ap.add_argument('--econv', type=int, default=0)
    ap.add_argument('--nsh', type=int, default=16)
    ap.add_argument('--sh0', type=int, default=5)
    ap.add_argument('--dirt', type=int, default=0)
    ap.add_argument('--mrg', type=int, default=0)
    ap.add_argument('--g1p', type=int, default=0)
    ap.add_argument('--sa', type=int, default=4)
    ap.add_argument('--sbg', type=int, default=16)
    ap.add_argument('--bwat', type=int, default=0)
    ap.add_argument('--x2n', type=int, default=8)
    ap.add_argument('--sent', type=int, default=1)
    ap.add_argument('--spec', type=int, default=0)
    ap.add_argument('--probe', default='')
    ap.add_argument('--skew', type=int, default=0)
    ap.add_argument('--fix', type=int, default=64)
    ap.add_argument('--walk', type=int, default=0)
    ap.add_argument('--eal', type=int, default=3)
    ap.add_argument('--eoff', type=int, default=0)
    ap.add_argument('--ct', default='02')
    ap.add_argument('--rot', type=int, default=13)
    ap.add_argument('--i0', type=int, default=1)
    ap.add_argument('--i1', type=int, default=10)
    ap.add_argument('--burn', type=int, default=0)
    ap.add_argument('--lord', type=int, default=1)
    ap.add_argument('--lprio', type=int, default=0)
    ap.add_argument('--rsp', type=int, default=0)
    ap.add_argument('--tch', type=int, default=1)
    ap.add_argument('--tf', type=int, default=4)
    ap.add_argument('--toff', type=int, default=2)
    ap.add_argument('--tw0', type=int, default=6)
    ap.add_argument('--xat', type=int, default=4)
    ap.add_argument('--pf1', type=int, default=1)
    ap.add_argument('--lpf', type=int, default=20)
    ap.add_argument('--lpfit', type=int, default=6)
    ap.add_argument('--x1m', type=int, default=10)
    ap.add_argument('--bgap', type=int, default=6)
    ap.add_argument('--cprio', type=int, default=1)
    ap.add_argument('--x1n', type=int, default=5)
    ap.add_argument('--w0', type=int, default=2)
    ap.add_argument('--dbar1', type=int, default=1)
    ap.add_argument('--aon', type=int, default=2)
    ap.add_argument('--cbar', type=int, default=0)
    ap.add_argument('--vmpos', type=int, default=2)
    ap.add_argument('--il2', type=int, default=0)
    ap.add_argument('--p1', type=int, default=0)
    ap.add_argument('--pm', type=int, default=2)
    ap.add_argument('--cbov', type=int, default=3)
    ap.add_argument('--p0', type=int, default=0)
    ap.add_argument('--max2', type=int, default=2)
    ap.add_argument('--eager', type=int, default=0)
    ap.add_argument('--cst', type=int, default=0)
    ap.add_argument('--x0', type=int, default=60)
    ap.add_argument('--xlat', type=int, default=18)
    ap.add_argument('--xper', type=int, default=3)
    ap.add_argument('--xc0', type=int, default=0)
    ap.add_argument('--n3', type=int, default=1)
    ap.add_argument('--xi0', type=int, default=1)
    ap.add_argument('--pfsat', type=int, default=0)
    ap.add_argument('--g1prio', type=int, default=0)
    ap.add_argument('--xearly', type=int, default=1)
    ap.add_argument('--cpfd', type=int, default=4)
    ap.add_argument('--cla', type=int, default=1)
    ap.add_argument('--war', type=int, default=1)
    opt = ap.parse_args()
    resolve_waits.dbg = 'dup' in opt.dbg
    g = Gen(opt)
    txt = g.build()
    open(opt.o, 'w').write(txt)
    print('wrote', opt.o, len(txt), 'bytes')


if __name__ == '__main__':
    main()
```

```python
import sys, os, struct, argparse
sys.path.insert(0, os.path.dirname(os.path.abspath(__file__)))
from asmlib import I, WaitTag, Touch, Prog, resolve_waits, resolve_hazards
import cin16, fixalign

KNAME = 'standalone__deep_cross_xdeepfm__recsys_kernel'
LDS_TOTAL = 163840

XSLOT = 320 * 128
WR = 3 * XSLOT + 8192
WSLOT = 32 * 256
L_BIAS = 3 * XSLOT
L_W2 = L_BIAS + 256
RB = L_W2 + 256
assert WR % 32768 == 0 and WR + 4 * WSLOT <= LDS_TOTAL
WSP = 16640
assert RB + 2560 <= LDS_TOTAL

W2P = 1536
SSZ = 677 * 64
FRS = 0
V3OFF = 0
A1 = 6144
FR = A1
FRL = FR + 33 * 1024
A3 = FRL + 2048
SG = A3
A2 = SG + SSZ
SQ = A2
V2S = SQ + SSZ
L_WCO = V2S + 832
L_FLG = L_WCO + 192
L_MX = L_FLG + 16
RC = L_FLG + 64
XB = V2S + 2496
XPP = 1056
XBSZ = 3 * XPP + 7 * 128
IMG = A3
IMGP = 160
IMGSZ = 33 * IMGP
XB2 = IMG + 8 * IMGSZ
PART = XB2 + 8 * XBSZ
XOFF = lambda f: (f & 3) * XPP + (f >> 2) * 128
assert RC + 512 <= V2S + 1664
assert XB + 8 * XBSZ <= LDS_TOTAL and XB % 16 == 0 and A2 % 64 == 0 and A3 % 64 == 0 and L_WCO % 16 == 0 and V2S % 64 == 0
assert PART + 8 * 1536 <= V2S + 832 and IMGSZ % 32 == 0 and XB2 % 16 == 0

S_WAVE = 3
S_IDX, S_TAB, S_CIN, S_WCO, S_W1, S_B1, S_W2, S_BO, S_OUT, S_DBG, S_WS = 4, 6, 8, 10, 12, 14, 16, 18, 20, 22, 24
S_MB, S_R = 26, 27
SRD_IDX, SRD_TAB, SRD_CIN, SRD_WCO, SRD_W, SRD_B1, SRD_W2, SRD_OUT, SRD_WS, SRD_DBG = 28, 32, 36, 40, 44, 48, 52, 56, 60, 64
S_T0, S_T1, S_T2, S_T3 = 68, 69, 70, 71
S_LOOP, S_IDXOFF, S_WSOFF, S_WMB, S_XM0, S_N0, S_C0, S_CW, S_BOUT, S_TW = 72, 73, 74, 75, 76, 77, 78, 79, 80, 81
S_EX = 82
S_GRP, S_RC = 84, 85
S_ST = 86
S_M26, S_MASK = 90, 92
S_SAMP, S_STG, S_STG9, S_TGT = 94, 95, 96, 97
S_M26B = 98
S_GW = 100
S_TAGT = 0
S_TAG = 1
S_PW = 101
S_PX = 77
S_PXE = 73

GELU_C0 = -2.0 * 0.7978845608028654 * 1.4426950408889634
GELU_C1 = GELU_C0 * 0.044715


def f32hex(x):
    return '0x%08x' % struct.unpack('<I', struct.pack('<f', x))[0]


def vr(a, n):
    return f'v[{a}:{a + n - 1}]' if n > 1 else f'v{a}'


def srd(a):
    return f's[{a}:{a + 3}]'


def flat(gs):
    res = []
    for c in gs:
        if isinstance(c, (tuple, list)):
            res += flat(c)
        else:
            res.append(c)
    return res


def interleave(a, b):
    out = []
    ia = ib = 0
    na, nb = len(a), len(b)
    while ia < na or ib < nb:
        if ib >= nb or (ia < na and ia * nb <= ib * na):
            out.append(a[ia]); ia += 1
        else:
            out.append(b[ib]); ib += 1
    return out


SLOTS = []
for j in range(0, 26, 2):
    for s in range(0, 14 if j <= 12 else 13):
        SLOTS.append((j, (j + s) % 26))
assert len(SLOTS) == 176
DUP_SLOT = SLOTS.index((12, 25))
assert all((d * 2521) >> 16 == d // 26 for d in range(800))
assert all((d * 10923) >> 16 == d // 6 for d in range(64))
assert all((d * 5042) >> 16 == d // 13 for d in range(170))
assert all((d * 3277) >> 16 == d // 20 for d in range(264))


DOC = '''; ---------------------------------------------------------------------------------------------
; Generated by tools/gen24.py (own generator; waits / hazard nops derived from instruction traces).
;
;       U[i,j,k] = sum_h W2[h,i,j] V3[h,k]
;   Both quadratic forms use the 351 distinct products x_j x_k (j<=k) with symmetrised weights, evaluated by
;   DNN branch: full bf16 GEMM + bias + tanh-GELU (x / (1 + exp(-2u))) + dot with w_dnn2; four terms of one
;   sample share a reciprocal (common denominator; exp(-2u) saturates at 2^24, i.e. at fp32 rounding level).
;   their own producer) and arrival counters in d_ws (zeroed in this launch by the first comer, flagged in d_debug);
;   the last arriver of a row block adds up and writes d_out.
;   L_tables holds constant per-lane LDS address tables (functions of the lane id only).
; ---------------------------------------------------------------------------------------------
'''


class Gen:
    def __init__(self, opt):
        self.opt = opt
        self.P = Prog()
        self.late = []

    def seq(self, lines):
        return [self.P.add(l) for l in flat(lines)]

    def build_srd(self, dst, ptr, size):
        return [f's_mov_b32 s{dst}, s{ptr}', f's_and_b32 s{dst + 1}, s{ptr + 1}, 0xffff',
                f's_mov_b32 s{dst + 2}, {size}', f's_mov_b32 s{dst + 3}, 0x20000']

    def stamp(self, slot):
        if not self.opt.stamps or (self.opt.few and slot not in [int(x) for x in self.opt.few.split(',')]):
            return []
        return [f's_memtime s[{S_ST}:{S_ST + 1}]', f's_memrealtime s[{S_ST + 2}:{S_ST + 3}]', 's_waitcnt lgkmcnt(0)',
                f'v_writelane_b32 v252, s{S_ST}, {slot}', f'v_writelane_b32 v253, s{S_ST + 2}, {slot}']

    def probe(self, name, wave=4):
        if self.opt.tailp:
            return ['s_memrealtime s[88:89]', 's_waitcnt lgkmcnt(0)'] if name in self.opt.probe.split(',') else []
        if self.opt.cyc:
            a_, b_, _ = self.opt.cyc.split(',')
            return ['s_memtime s[86:87]', 's_waitcnt lgkmcnt(0)'] if name == a_ else ['s_memtime s[88:89]', 's_waitcnt lgkmcnt(0)'] if name == b_ else []
        if self.opt.probe != name and not (self.opt.probe == 'end' and name in ('dend', 'cend2')):
            return []
        return ['s_memrealtime s[88:89]', 's_waitcnt lgkmcnt(0)']

    def stamp_flush(self):
        if not self.opt.stamps:
            return []
        L = self.build_srd(SRD_WS, S_WS, 0x10000000)
        L += [f's_lshl_b32 s{S_C0}, s2, 3', f's_add_u32 s{S_C0}, s{S_C0}, s{S_WAVE}',
              f's_lshl_b32 s{S_C0}, s{S_C0}, 8', f's_add_u32 s{S_C0}, s{S_C0}, 0x100000',
              'v_lshlrev_b32 v254, 3, v0', 's_mov_b32 exec_hi, 0',
              f'buffer_store_dwordx2 v[252:253], v254, {srd(SRD_WS)}, s{S_C0} offen', 's_mov_b32 exec_hi, -1']
        return L

    def stamp0(self):
        if not self.opt.stamps:
            return []
        return ['v_mov_b32 v252, 0xcdcdcdcd', 'v_mov_b32 v253, 0xcdcdcdcd',
                f'v_writelane_b32 v252, s{S_ST}, 0', f'v_writelane_b32 v253, s{S_ST + 2}, 0'] + self.stamp(15)

    def tlb2(self, t):
        L = self.build_srd(SRD_WS, S_WS, 0x10000000) + self.build_srd(SRD_OUT, S_OUT, 8192) + self.build_srd(SRD_DBG, S_DBG, 256)
        L += [f's_load_dword s{S_BOUT}, s[{S_BO}:{S_BO + 1}], 0', f'v_mov_b32 v{t}, 0', 's_mov_b64 exec, 1',
              f's_mov_b32 s{S_TW}, 0x80000',
              f'buffer_load_dword v{t + 1}, v{t}, {srd(SRD_WS)}, s{S_TW} offen',
              f'buffer_load_dword v{t + 2}, v{t}, {srd(SRD_OUT)}, 0 offen',
              's_mov_b64 exec, -1']
        return L

    def tlb1(self, vtmp, vdst):
        if not self.opt.etlb:
            return self.build_srd(SRD_TAB, S_TAB, 100000 * 128)
        return self.build_srd(SRD_TAB, S_TAB, 100000 * 128) + [
            f'v_mov_b32 v{vtmp}, s{S_BOUT}', f'buffer_load_dword v{vdst}, v{vtmp}, {srd(SRD_TAB)}, 0 offen']

    def gettag(self, lab, t, VT):
        return [f's_cmp_lg_u32 s{S_WAVE}, 0', f's_cbranch_scc1 {lab}',
                f's_memrealtime s[{S_TAGT}:{S_TAGT + 1}]'] + self.build_srd(SRD_DBG, S_DBG, 256) + [
                f's_lshl_b32 s{S_TW}, s{S_MB}, 2', f'v_mov_b32 v{t}, s{S_TW}', 's_waitcnt lgkmcnt(0)',
                f's_or_b32 s{S_TAG}, s{S_TAGT}, 1', f'v_mov_b32 v{VT}, s{S_TAG}', f'v_mov_b32 v{VT + 1}, 0',
                's_mov_b64 exec, 1',
                f'buffer_atomic_cmpswap v[{VT}:{VT + 1}], v{t}, {srd(SRD_DBG)}, 0 offen offset:128 sc0',
                's_mov_b64 exec, -1', f'{lab}:']

    def prologue(self):
        L = []
        if self.opt.stamps:
            L += [f's_memtime s[{S_ST}:{S_ST + 1}]', f's_memrealtime s[{S_ST + 2}:{S_ST + 3}]']
        L += ['s_cmp_ge_u32 s2, 256', 's_cbranch_scc1 L_end',
              's_load_dwordx16 s[4:19], s[0:1], 0',
              's_load_dwordx4 s[20:23], s[0:1], 64',
              's_load_dwordx2 s[24:25], s[0:1], 80',
              'v_lshrrev_b32 v1, 6, v0']
        if self.opt.cpf:
            L += [f's_getpc_b64 s[{S_MASK}:{S_MASK + 1}]', 'L_pc:',
                  f's_and_b32 s{S_T0}, s2, 0xf8', f'v_add_u32 v2, s{S_T0}, v1', 'v_and_b32 v3, 32, v0', 'v_lshl_add_u32 v2, v3, 3, v2', 'v_lshlrev_b32 v2, 7, v2',
                  f'v_min_u32 v2, L_tables+16256-L_pc, v2',
                  f'v_mov_b32 v3, s{S_MASK + 1}',
                  f'v_add_co_u32 v2, vcc, s{S_MASK}, v2', 'v_addc_co_u32 v3, vcc, 0, v3, vcc',
                  'global_load_dword v251, v[2:3], off']
        if self.opt.skew:
            L += ['s_memtime s[86:87]' if self.opt.cyc else 's_memrealtime s[86:87]', 's_mov_b32 s88, 0']
        L += ['v_and_b32 v0, 63, v0',
              f'v_readfirstlane_b32 s{S_WAVE}, v1',
              f's_and_b32 s{S_T0}, s2, 7', f's_lshr_b32 s{S_T1}, s2, 3', f's_xor_b32 s{S_T1}, s{S_T1}, {31 * self.opt.rev}',
              f's_and_b32 s{S_BOUT}, s2, 0xf8', f's_add_u32 s{S_BOUT}, s{S_BOUT}, s{S_WAVE}', f's_lshl_b32 s{S_BOUT}, s{S_BOUT}, {self.opt.etlb}',
              f's_min_u32 s{S_T2}, s{S_T0}, 1', f's_add_u32 s{S_T3}, s{S_T1}, s{S_T2}',
              f's_cmp_ge_u32 s{S_T3}, 22', 's_cbranch_scc0 L_dnn' if self.opt.chead else 's_cbranch_scc1 L_cin', 'L_dnn:',
              f's_mul_i32 s{S_T0}, s{S_T0}, 21', f's_add_u32 s{S_T0}, s{S_T0}, s{S_T3}',
              ]
        if self.opt.band == 0:
            L += [f's_mul_i32 s{S_MB}, s{S_T0}, 5042', f's_lshr_b32 s{S_MB}, s{S_MB}, 16',
                  f's_mul_i32 s{S_T1}, s{S_MB}, 13', f's_sub_u32 s{S_R}, s{S_T0}, s{S_T1}']
        else:
            assert all((d * 9363) >> 16 == d // 7 for d in range(91)) and all((d * 10923) >> 16 == d // 6 for d in range(78))
            L += [f's_sub_u32 s{S_T1}, 168, s{S_T0}', f's_cmp_lt_u32 s{S_T0}, 91', f's_cselect_b32 s{S_T0}, s{S_T0}, s{S_T1}',
                  f's_cselect_b32 s{S_T1}, 0, 1560', f's_cselect_b32 s{S_T2}, 7, 6', f's_cselect_b32 s{S_R}, 0, 7', f's_add_u32 s{S_T1}, s{S_T1}, 9363',
                  f's_mul_i32 s{S_MB}, s{S_T0}, s{S_T1}', f's_lshr_b32 s{S_MB}, s{S_MB}, 16', f's_mul_i32 s{S_T1}, s{S_MB}, s{S_T2}',
                  f's_add_u32 s{S_R}, s{S_R}, s{S_T0}', f's_sub_u32 s{S_R}, s{S_R}, s{S_T1}']
        r = self.seq(L)
        self.cinat = [x.text for x in self.P.static].index('L_dnn:')
        return r

    def dnn(self):
        o = self.opt
        vW = [1, 2, 3, 4]
        vX = [[5, 6], [7, 8]]
        vPa, vPc = 9, 10
        WF, XA, ACC = 16, 48, 88
        W2F = WF
        KC0, KC1, KONE = 12, 14, 248
        SUMP, GT = 32, 52
        vIdxOff, vCh, vWD, vBL = 1, [2, 3], [4, 5], 11
        ST, VO = 16, 56
        T = 100
        g, i4, q = T + 16, T + 17, T + 18
        PI = T + 8

        def acc(tn, tm):
            return ACC + (tm * 4 + tn) * 4

        def small(srd_, dst):
            return [f's_mov_b32 m0, {dst}', 's_mov_b64 exec, 0xffff',
                    I(f'buffer_load_dwordx4 v{vBL}, {srd(srd_)}, s{S_N0} offen lds', tag='BIAS'), 's_mov_b64 exec, -1']
        L = [f's_lshl_b32 s{S_N0}, s{S_R}, 8', f's_mul_i32 s{S_T3}, s{S_MB}, 320',
             f'v_lshrrev_b32 v{g}, 4, v0', f'v_lshlrev_b32 v{vBL}, 4, v0', f's_and_b32 s{S_CW}, s{S_WAVE}, 3',
             f's_cmp_ge_u32 s{S_WAVE}, 4', 's_cbranch_scc1 L_ld']
        c0 = self.seq(L)
        PI = T

        RG, CG = S_T0, S_T1
        L = [f's_mul_i32 s{S_T2}, s{S_WAVE}, 13', f'v_min_u32 v{q}, 12, v0', f'v_add_u32 v{q}, s{S_T2}, v{q}',
             f'v_lshrrev_b32 v{i4}, 1, v{q}', f'v_mul_u32_u24 v{i4}, 96, v{i4}', f'v_lshl_add_u32 v{q}, v{q}, 2, v{i4}',
             f's_mul_i32 s{S_C0}, s{S_R}, 25', f's_min_u32 s{S_C0}, s{S_C0}, 294',
             f's_add_u32 s{S_C0}, s{S_C0}, s{S_T3}', f's_mul_i32 s{S_C0}, s{S_C0}, 104',
             f's_lshl_b32 s{S_T2}, s{S_MB}, 2', f's_add_u32 s{S_T2}, s{S_T2}, s{S_WAVE}', f's_add_u32 s{S_T2}, s{S_T2}, {o.ew0 * 32}',
             f's_mul_i32 s{S_T2}, s{S_T2}, 3328', f's_add_u32 s{S_T2}, s{S_T2}, s{S_N0}', f's_mov_b32 s{S_TW}, {52 * 3328}',
             f'v_lshrrev_b32 v{T + 12}, 1, v0', f'v_mul_lo_u32 v{T + 12}, s{S_TW}, v{T + 12}', f'v_and_b32 v{i4}, 1, v0', f'v_lshl_add_u32 v{T + 12}, v{i4}, 7, v{T + 12}',
             f'v_add_u32 v{T + 12}, s{S_T2}, v{T + 12}', 's_waitcnt lgkmcnt(0)']
        ct = [int(x) for x in o.ct + o.ct2]
        L += self.build_srd(SRD_IDX, S_IDX, 4096 * 104)
        if ct:
            L += [f'buffer_load_dwordx4 {vr(PI, 4)}, v{q}, {srd(SRD_IDX)}, s{S_C0} offen']
        if ct and max(ct) > 3:
            L += [f'buffer_load_dwordx4 {vr(PI + 4, 4)}, v{q}, {srd(SRD_IDX)}, s{S_C0} offen offset:16']
        L += self.tlb1(T + 14, T + 15)
        if o.ptl:
            L += [f'v_lshlrev_b32 v{T + 14}, {o.ptl}, v0', f's_lshl_b32 s{S_T2}, s{S_WAVE}, {o.ptl - 2}', f's_mov_b64 exec, {(1 << min(64, (12800000 >> o.ptl) + 1)) - 1}',
                  f'buffer_load_dword v{T + 15}, v{T + 14}, {srd(SRD_TAB)}, s{S_T2} offen', 's_mov_b64 exec, -1']
        touch = [x for k in ct for x in (f'v_lshlrev_b32 v{PI + k}, 7, v{PI + k}', f'buffer_load_dword v{acc(0, 7) + k}, v{PI + k}, {srd(SRD_TAB)}, 0 offen')]
        touch, touch2 = touch[:2 * len(o.ct)], touch[2 * len(o.ct):]
        L += self.build_srd(SRD_B1, S_B1, 3328) + small(SRD_B1, L_BIAS)
        if o.ew:
            L += self.build_srd(SRD_W, S_W1, 1664 * 3328)
            ewl = [f's_mov_b64 exec, {(1 << (2 * o.ew)) - 1}', f'buffer_load_dword v{acc(0, 7) + 9}, v{T + 12}, {srd(SRD_W)}, 0 offen', 's_mov_b64 exec, -1']
            if o.ewat == 0:
                L += ewl
            elif o.ewat == 1:
                touch = touch + ewl
            else:
                touch2 = touch2 + ewl
        chead = self.seq(L + (['s_barrier'] if o.dbar0 else []) + ['s_branch L_cmp'])
        self.ldat = len(self.P.static)
        L = ['L_cmp:'] + self.stamp0()
        L += [f's_and_b32 s{RG}, s{S_WAVE}, 1', f's_lshr_b32 s{CG}, s{S_WAVE}, 1',
              f'v_bfe_u32 v{i4}, v0, 2, 2', f'v_lshl_add_u32 v{q}, v{g}, 3, v{i4}', f'v_lshlrev_b32 v{q}, 8, v{q}',
              f'v_bfe_u32 v{i4}, v0, 2, 3', f's_lshl_b32 s{S_T2}, s{CG}, 2', f'v_xor_b32 v{i4}, s{S_T2}, v{i4}',
              f'v_lshl_add_u32 v{q}, v{i4}, 5, v{q}', f'v_and_b32 v{i4}, 3, v0', f'v_lshl_add_u32 v{q}, v{i4}, 3, v{q}',
              f'v_add_u32 v{vW[0]}, {WR}, v{q}']
        L += [f'v_xor_b32 v{vW[tn]}, {32 * tn}, v{vW[0]}' for tn in range(1, 4)]
        L += [f's_lshl_b32 s{S_T2}, s{CG}, 7', f's_add_u32 s{S_T2}, s{S_T2}, {L_BIAS}', f'v_lshlrev_b32 v{q}, 3, v{g}', f'v_add_u32 v{vPa}, s{S_T2}, v{q}',
              f'v_and_b32 v{q}, 15, v0', f'v_lshlrev_b32 v{q}, 7, v{q}',
              f'v_bfe_u32 v{i4}, v0, 1, 3', f'v_xor_b32 v{i4}, v{i4}, v{g}', f'v_lshl_add_u32 v{q}, v{i4}, 4, v{q}',
              f's_mul_i32 s{S_T2}, s{RG}, 20480', f'v_add_u32 v{vX[0][0]}, s{S_T2}, v{q}', f'v_xor_b32 v{vX[1][0]}, 64, v{vX[0][0]}',
              f'v_add_u32 v{vX[0][1]}, {2 * XSLOT}, v{vX[0][0]}', f'v_add_u32 v{vX[1][1]}, {2 * XSLOT}, v{vX[1][0]}',
              f's_mul_i32 s{S_T2}, s{S_WAVE}, 640', f's_add_u32 s{S_T2}, s{S_T2}, {RB}',
              f'v_and_b32 v{q}, 15, v0', f'v_lshlrev_b32 v{q}, 2, v{q}', f'v_add_u32 v{q}, s{S_T2}, v{q}',
              f'v_lshrrev_b32 v{i4}, 5, v0', f'v_lshl_add_u32 v{q}, v{i4}, 6, v{q}', f'v_bfe_u32 v{i4}, v0, 4, 1', f'v_lshl_add_u32 v{vPc}, v{i4}, 7, v{q}',
              f's_mov_b32 s{S_LOOP}, 0',
              f'v_mov_b32 v{KC0}, {f32hex(GELU_C0)}', f'v_mov_b32 v{KC0 + 1}, {f32hex(GELU_C0)}',
              f'v_mov_b32 v{KC1}, {f32hex(GELU_C1)}', f'v_mov_b32 v{KC1 + 1}, {f32hex(GELU_C1)}']

        def pkreads(off, dst):
            return [f'ds_read_b64 {vr(dst + 4 * tn + 2, 2)}, v{vPa} offset:{off + 32 * tn}' for tn in range(4)]

        def unp(dst):
            c = []
            for tn in range(4):
                r = dst + 4 * tn
                c += [f'v_lshlrev_b32 v{r}, 16, v{r + 2}', f'v_and_b32 v{r + 1}, 0xffff0000, v{r + 2}',
                      f'v_lshlrev_b32 v{r + 2}, 16, v{r + 3}', f'v_and_b32 v{r + 3}, 0xffff0000, v{r + 3}']
            return c
        L += touch + self.stamp(6)
        CT_, CW_, CD_ = 248, 11, 251
        if o.tch == 2:
            L += [f's_mul_i32 s{S_T2}, s{S_WAVE}, 13', f's_add_u32 s{S_T2}, s{S_T2}, s{S_R}', f's_min_u32 s{S_T2}, s{S_T2}, 39', f's_lshl_b32 s{S_T2}, s{S_T2}, 3',
                  f's_add_u32 s{S_T2}, s{S_T2}, s{S_T3}', f's_mul_i32 s{S_T2}, s{S_T2}, 104',
                  f'v_lshrrev_b32 v{q}, 3, v0', f'v_mul_u32_u24 v{q}, 72, v{q}', f'v_lshl_add_u32 v{q}, v0, 2, v{q}']
            L += [f'buffer_load_dword v{CT_ + r}, v{q}, {srd(SRD_IDX)}, s{S_T2} offen offset:{4 * min(o.tf0 + 8 * r, 18)}' for r in range(3)]
            L += [f'v_add_u32 v{CW_}, {(o.tw0 - o.ew0) * 32 * 3328}, v{T + 12}', f's_mov_b32 s{S_RC}, 0']
            touch2 = touch2 + [f'v_lshlrev_b32 v{CT_ + r}, 7, v{CT_ + r}' for r in range(3)] + [Touch(f'v{CD_}')]
        if o.st:
            SR = [36, 40, 52, 56, 60, 64, 96]
            L += [f's_mul_i32 s{S_T2}, s{S_WAVE}, 13', f's_lshr_b32 s{S_T2}, s{S_T2}, 1', f's_mul_i32 s{S_T2}, s{S_T2}, 104', f's_add_u32 s{S_T2}, s{S_T2}, s{S_C0}', f's_add_u32 s{S_T2}, s{S_T2}, {4 * o.sf0}']
            for r in range(7):
                L += [f's_buffer_load_dwordx4 s[{SR[r]}:{SR[r] + 3}], {srd(SRD_IDX)}, s{S_T2}', f's_add_u32 s{S_T2}, s{S_T2}, 104']
            L += ['s_waitcnt lgkmcnt(0)']
            for f_ in range(o.st):
                for r in range(7):
                    L += [f's_lshl_b32 s{SR[r] + f_}, s{SR[r] + f_}, 7', f's_buffer_load_dword s{SR[r] + f_}, {srd(SRD_TAB)}, s{SR[r] + f_}']
        BI = [WaitTag(vm_tags=['BIAS'])] + pkreads(0, acc(0, 9)) + unp(acc(0, 9)) + [f'v_mov_b64 {vr(acc(0, 8) + r, 2)}, {vr(acc(0, 9) + r, 2)}' for r in range(0, 16, 2)]

        def rX(p, k):
            xs = p % 3
            return f'ds_read_b128 {vr(XA + 4 * (k % 10), 4)}, v{vX[k % 2][xs // 2]} offset:{(xs % 2) * XSLOT + (k // 2) * 2048}'

        def rW(tn):
            return [f'ds_read_b64_tr_b16 {vr(WF + 16 * par + 4 * tn + 2 * rd, 2)}, v{vW[tn]} offset:{par * WSLOT + rd * 1024}' for par in range(2) for rd in range(2)]
        tog = lambda tn: f'v_xor_b32 v{vW[tn]}, {2 * WSLOT}, v{vW[tn]}'

        def dec(gi):
            G, tn, a_, par = gi // 16, (gi // 4) % 4, (gi // 2) % 2, gi % 2
            if o.bou:
                par ^= a_ ^ (G == 4)
                a_ ^= tn & 1
            return G, tn, a_, par
        lastx = {4 * dec(gi)[0] + 2 * dec(gi)[2] + dec(gi)[3]: gi for gi in range(80)}

        def mf(gi, first=False):
            G, tn, a_, par = dec(gi)
            d = acc(tn, 2 * G + a_)
            if first and gi % 2 == 0 and G < 4:
                return f'v_mfma_f32_16x16x32_bf16 {vr(d, 4)}, {vr(WF + 16 * par + 4 * tn, 4)}, {vr(XA + 4 * ((4 * G + 2 * a_ + par) % 10), 4)}, {vr(acc(tn, 9), 4)}'
            return f'v_mfma_f32_16x16x32_bf16 {vr(d, 4)}, {vr(WF + 16 * par + 4 * tn, 4)}, {vr(XA + 4 * ((4 * G + 2 * a_ + par) % 10), 4)}, {vr(d, 4)}'
        SH = [11, 248, 249, 250]
        nsh = o.nsh

        def shadow():
            c = []
            for b0 in range(0, nsh, 4):
                E = [(ACC + e, SH[e - b0]) for e in range(b0, min(b0 + 4, nsh))]
                for op in ('v_mul_f32 T, X, X', f'v_fma_f32 T, T, v{KC1}, v{KC0}', 'v_mul_f32 T, T, X', 'v_exp_f32 T, T', 'v_add_f32 T, 1.0, T', 'v_rcp_f32 T, T', 'v_mul_f32 X, X, T'):
                    c += [(op.replace('T', f'v{t}').replace('X', f'v{x}'), 8 if ('exp' in op or 'rcp' in op) else 4) for x, t in E]
            return c

        def U_(t):
            i_ = I(t)
            i_.wr = []
            return i_

        def cpair(p, kind, loopend=False):
            S = []
            ev = {}
            if kind == 'first':
                g_ = o.sbg + 1
                for k in range(2 * o.sa, 10):
                    ev[g_] = rX(p, k); g_ += 1
            else:
                for i_, x in enumerate(rW(3)[2:]):
                    ev[i_] = x
                for i_, k in enumerate(range(6, 10)):
                    ev[2 + i_] = rX(p, k)
            for k in range(10):
                g_ = lastx[k]
                while g_ in ev or (kind == 'first' and g_ <= o.sbg):
                    g_ += 1
                ev[g_] = rX(p, k + 10)
            BG = 48 + o.bgap if o.bou else 46 + o.bgap
            if kind != 'last':
                ev[BG], ev[BG + 1] = rX(p + 1, 0), rX(p + 1, 1)
                for k in range(2, 6):
                    ev[lastx[10 + k]] = rX(p + 1, k)
                for tn in range(4):
                    for i_, x in enumerate(rW(tn)):
                        if 66 + 4 * tn + i_ < 80:
                            ev[66 + 4 * tn + i_] = x
            sh_ = shadow() if kind == 'last' else []
            for gi in range(80):
                S.append(mf(gi, kind == 'first'))
                t = 4
                if o.dwalk and kind != 'last' and gi in (24, 40, 64, 7):
                    S += [f'L_dw{self.ndw}:', f's_cbranch_execz L_dw{self.ndw + 1}']
                    self.ndw += 1
                if kind == 'first' and gi == o.sbg:
                    S += (self.stamp(20) if o.itst == 2 else []) + ['s_barrier'] + (self.stamp(21) if o.itst == 2 else [])
                if kind != 'last' and gi == BG - 1:
                    st_ = lambda k: ([f's_cmp_lg_u32 s{S_LOOP}, 0', f's_cbranch_scc1 L_ns{k}'] + self.stamp(k) + [f'L_ns{k}:']) if (o.itst == 2 and p < 3) else []
                    S += ['s_waitcnt lgkmcnt(0)'] + st_(22 + 2 * p) + ['s_barrier'] + st_(23 + 2 * p)
                if gi in ev:
                    S.append(ev[gi]); t += 8
                if kind != 'last' and 8 <= gi < 12:
                    S.append(tog(gi - 8))
                if o.tch == 2 and kind == 'mid' and gi == o.tgap:
                    if p == 1:
                        S += [f's_bitcmp1_b32 {o.tmask:#x}, s{S_LOOP}', 's_cbranch_scc1 L_ctx', 'L_ctxr:']
                    if p == 2:
                        S += ['s_mov_b64 exec, 0xff', U_(f'buffer_load_dword v{CD_}, v{CW_}, {srd(SRD_W)}, s{S_RC} offen'), 's_mov_b64 exec, -1', f's_add_u32 s{S_RC}, s{S_RC}, {208 * 3328}']
                if o.tch == 2 and kind == 'first' and gi == o.tgap:
                    S += ['s_mov_b64 exec, 0xff', U_(f'buffer_load_dword v{CD_}, v{CW_}, {srd(SRD_W)}, s{S_RC} offen'), 's_mov_b64 exec, -1', f's_add_u32 s{S_RC}, s{S_RC}, {208 * 3328}']
                if gi % 2 == 0 and gi + 2 < 80:
                    n_ = gi + 2
                    G, tn, a_ = n_ // 16, (n_ // 4) % 4, (n_ // 2) % 2
                    if tn == 0:
                        S.append(Touch(vr(XA + 4 * ((4 * G + 2 * a_) % 10), 8)))
                    if G == 0 and a_ == 0:
                        S.append(Touch(vr(WF + 16 + 4 * tn, 4)))
                if gi == 78 and kind != 'last':
                    S.append(Touch(vr(WF + 16, 4)))
                if loopend and gi == 48:
                    S += [f's_add_u32 s{S_LOOP}, s{S_LOOP}, 1', f's_cmp_lt_u32 s{S_LOOP}, 8']
                t = max(t, 8)
                while sh_ and gi >= o.sh0 and t + sh_[0][1] <= 16:
                    x, c_ = sh_.pop(0)
                    S.append(x); t += c_
            S += [x for x, _ in sh_]
            if kind == 'last':
                print('shadow left', len(sh_))
            return S
        self.ndw = 0
        if o.dwalk:
            L += ['s_mov_b64 exec, 0'] + [x for q_ in range(3) for x in (f's_cmp_eq_u32 s{S_WAVE}, {q_}', f's_cbranch_scc1 L_dw{4 * q_}')] + ['s_branch L_dw12', 'L_dw16:', 's_mov_b64 exec, -1']
        L += self.stamp(1) + ['s_barrier'] + [x for tn in range(4) for x in rW(tn)] + BI + touch2 + ['s_waitcnt lgkmcnt(0)', f's_setprio {o.cprio}', 's_barrier'] + self.stamp(2)
        L += [rX(0, k) for k in range(2 * o.sa)] + cpair(0, 'first')
        cpre = self.seq(L)
        body = self.seq(['L_dnn_loop0:'])
        for p in range(1, 4):
            S = cpair(p, 'mid', p == 3)
            if p == 3:
                if o.stamps and o.itst == 1:
                    i_ = S.index('s_barrier')
                    S = S[:i_] + [f's_memtime s[{S_ST}:{S_ST + 1}]', f's_memrealtime s[{S_ST + 2}:{S_ST + 3}]', f's_or_b32 m0, s{S_LOOP}, 16', 's_waitcnt lgkmcnt(0)',
                                  f'v_writelane_b32 v252, s{S_ST}, m0', f'v_writelane_b32 v253, s{S_ST + 2}, m0', f's_cmp_lt_u32 s{S_LOOP}, 8'] + S[i_:]
                S += ['s_cbranch_scc1 L_dnn_loop0']
            body += self.seq(S)
        tc = c0 + chead + cpre + body * 2 + self.seq(['L_tail:'])
        tc += self.seq((['s_waitcnt vmcnt(0)'] if o.tch == 2 else []) + cpair(25, 'last') + pkreads(256, W2F) + [f'v_mov_b32 v{KONE}, 1.0', f'v_mov_b32 v{KONE + 1}, 1.0'])
        if o.burn:
            bl = [f's_movk_i32 s{S_LOOP}, {o.burn}', 'L_burn:'] + [f'v_mfma_f32_16x16x32_bf16 {vr(XA + 32 + 4 * (k % 2), 4)}, {vr(WF + 16 + 4 * (k % 4), 4)}, {vr(XA + 4 * (k // 4), 4)}, 0' for k in range(32)]
            tc += self.seq(bl + [f's_sub_u32 s{S_LOOP}, s{S_LOOP}, 1', f's_cmp_lg_u32 s{S_LOOP}, 0', 's_cbranch_scc1 L_burn'])
        tc += self.seq(['L_epi:'] + self.stamp(3))

        p2 = lambda r: vr(r, 2)
        seen = set()

        def gelu(groups):
            L = []
            for k, vals in enumerate(groups):
                tb = GT + (k % 2) * 16
                V_ = [(x, w, s_, tb + 4 * i_, tb + 4 * i_ + 2) for i_, (x, w, s_) in enumerate(vals)]
                for (x, w, s_, t, u) in V_:
                    L.append(f'v_pk_mul_f32 {p2(t)}, {p2(x)}, {p2(x)}')
                for (x, w, s_, t, u) in V_:
                    L.append(f'v_pk_fma_f32 {p2(t)}, {p2(t)}, {p2(KC1)}, {p2(KC0)}')
                for (x, w, s_, t, u) in V_:
                    L.append(f'v_pk_mul_f32 {p2(t)}, {p2(t)}, {p2(x)}')
                for (x, w, s_, t, u) in V_:
                    L += [f'v_exp_f32 v{t}, v{t}', f'v_exp_f32 v{t + 1}, v{t + 1}']
                for (x, w, s_, t, u) in V_:
                    L.append(f'v_pk_mul_f32 {p2(u)}, {p2(x)}, {p2(w)}')
                for (x, w, s_, t, u) in V_:
                    L.append(f'v_pk_add_f32 {p2(t)}, {p2(t)}, {p2(KONE)}')
                for (x, w, s_, t, u) in V_:
                    L += [f'v_rcp_f32 v{t}, v{t}', f'v_rcp_f32 v{t + 1}, v{t + 1}']
                for (x, w, s_, t, u) in V_:
                    if s_ in seen:
                        L.append(f'v_pk_fma_f32 {p2(s_)}, {p2(t)}, {p2(u)}, {p2(s_)}')
                    else:
                        L.append(f'v_pk_mul_f32 {p2(s_)}, {p2(t)}, {p2(u)}')
                        seen.add(s_)
            return L
        el = lambda tn, tm, d: (acc(tn, tm) + 2 * d, W2F + 4 * tn + 2 * d, SUMP + 2 * tm)
        allel = [el(tn, 2 * tp + a_, d) for tp in range(5) for tn in range(4) for d in range(2) for a_ in range(2)]
        rest = [e for e in allel if e[0] >= ACC + nsh]
        if o.rshare:
            assert nsh % 8 == 0
            KS = 84
            quads = [[el(2 * h + t_, tm, d) for t_ in range(2) for d in range(2)] for tm in range(10) for h in range(2)]
            quads = [q_ for q_ in quads if q_[0][0] >= ACC + nsh]
            order = sorted(range(len(quads)), key=lambda i_: (i_ // 4, i_ % 2, i_))
            quads = [quads[i_] for i_ in order]
            L = [f'v_mov_b32 v{KS}, {f32hex(-24.0)}', f'v_mov_b32 v{KS + 1}, {f32hex(-24.0)}', f'v_mov_b32 v{KS + 2}, {f32hex(2.0 ** 24)}', f'v_mov_b32 v{KS + 3}, {f32hex(2.0 ** 24)}']
            for k in range(0, len(quads), 2):
                Qs = quads[k:k + 2]
                V_ = [(x, w, GT + 16 * j_ + 4 * i_, GT + 16 * j_ + 4 * i_ + 2) for j_, q_ in enumerate(Qs) for i_, (x, w, s_) in enumerate(q_)]
                L += [f'v_pk_mul_f32 {p2(t)}, {p2(x)}, {p2(x)}' for (x, w, t, u) in V_]
                L += [f'v_pk_fma_f32 {p2(t)}, {p2(t)}, {p2(KC1)}, {p2(KC0)}' for (x, w, t, u) in V_]
                L += [f'v_pk_fma_f32 {p2(t)}, {p2(t)}, {p2(x)}, {p2(KS)}' for (x, w, t, u) in V_]
                L += [f'v_exp_f32 v{t + e_}, v{t + e_} clamp' for (x, w, t, u) in V_ for e_ in range(2)]
                if k == 0:
                    L += unp(W2F)
                L += [f'v_pk_mul_f32 {p2(u)}, {p2(x)}, {p2(w)}' for (x, w, t, u) in V_]
                L += [f'v_pk_fma_f32 {p2(t)}, {p2(t)}, {p2(KS + 2)}, {p2(KONE)}' for (x, w, t, u) in V_]
                for prs in ([(0, 1), (2, 3)], [(0, 2)]):
                    M_ = [(V_[4 * j_ + a_], V_[4 * j_ + b_]) for j_ in range(len(Qs)) for a_, b_ in prs]
                    L += [f'v_pk_mul_f32 {p2(A_[3])}, {p2(A_[3])}, {p2(B_[2])}' for A_, B_ in M_]
                    L += [f'v_pk_fma_f32 {p2(A_[3])}, {p2(B_[3])}, {p2(A_[2])}, {p2(A_[3])}' for A_, B_ in M_]
                    L += [f'v_pk_mul_f32 {p2(A_[2])}, {p2(A_[2])}, {p2(B_[2])}' for A_, B_ in M_]
                L += [f'v_rcp_f32 v{V_[4 * j_][2] + e_}, v{V_[4 * j_][2] + e_}' for j_ in range(len(Qs)) for e_ in range(2)]
                for j_, q_ in enumerate(Qs):
                    s_, t, u = q_[0][2], V_[4 * j_][2], V_[4 * j_][3]
                    L.append(f'v_pk_fma_f32 {p2(s_)}, {p2(t)}, {p2(u)}, {p2(s_)}' if s_ in seen else f'v_pk_mul_f32 {p2(s_)}, {p2(t)}, {p2(u)}')
                    seen.add(s_)
        else:
            L = gelu([rest[i:i + 4] for i in range(0, len(rest), 4)])
            L = L[:20] + unp(W2F) + L[20:]
        for (x, w, s_) in allel:
            if x < ACC + nsh:
                L.append(f'v_pk_fma_f32 {p2(s_)}, {p2(x)}, {p2(w)}, {p2(s_)}' if s_ in seen else f'v_pk_mul_f32 {p2(s_)}, {p2(x)}, {p2(w)}')
                seen.add(s_)
        sm = lambda tm: SUMP + 2 * tm
        L += [f'v_add_f32 v{sm(tm)}, v{sm(tm)}, v{sm(tm) + 1}' for tm in range(10)]
        L += [f'v_permlane32_swap_b32 v{sm(tm)}, v{sm(tm + 1)}' for tm in range(0, 10, 2)]
        L += [f'v_add_f32 v{sm(tm)}, v{sm(tm)}, v{sm(tm + 1)}' for tm in (8, 0, 2, 4, 6)]
        L += [f'v_mov_b32 v{sm(9)}, v{sm(8)}', f'v_permlane16_swap_b32 v{sm(0)}, v{sm(2)}', f'v_permlane16_swap_b32 v{sm(4)}, v{sm(6)}',
              f'v_permlane16_swap_b32 v{sm(8)}, v{sm(9)}',
              f'v_add_f32 v{sm(0)}, v{sm(0)}, v{sm(2)}', f'v_add_f32 v{sm(4)}, v{sm(4)}, v{sm(6)}', f'v_add_f32 v{sm(8)}, v{sm(8)}, v{sm(9)}',
              f'ds_write_b32 v{vPc}, v{sm(0)}', f'ds_write_b32 v{vPc}, v{sm(4)} offset:256',
              's_mov_b32 exec_lo, 0xffff', 's_mov_b32 exec_hi, 0xffff', f'ds_write_b32 v{vPc}, v{sm(8)} offset:512', 's_mov_b64 exec, -1']
        L += ['s_waitcnt lgkmcnt(0)'] + self.stamp(4) + self.stamp_flush() + ['s_barrier', 's_endpgm']
        tc += self.seq(L)

        if o.tch == 2:
            self.seq(['L_ctx:', U_(f'buffer_load_dword v{CD_}, v{CT_}, {srd(SRD_TAB)}, 0 offen'), f'v_mov_b32 v{CT_}, v{CT_ + 1}', f'v_mov_b32 v{CT_ + 1}, v{CT_ + 2}', 's_branch L_ctxr'])
        def wstage(slot):
            c = []
            for u in range(2):
                c += [f's_add_u32 m0, s{S_WMB}, {WR + slot * WSLOT + u * 1024}',
                      I(f'buffer_load_dwordx4 v{vWD[u]}, {srd(SRD_W)}, s{S_WSOFF} offen lds', tag='W')]
            return c + [f's_add_u32 s{S_WSOFF}, s{S_WSOFF}, {32 * 3328}']

        Q, TM, BP = 16, 56, [12, 13]
        TI, vWT = 70, 84
        SP = [36, 37, 38, 39, 40, 41, 42, 43, 48, 49]
        SI = [94, 95, 96, 97, 98, 99, 100, 101, 82, 83]

        def xaddr(f, pcs):
            c = []
            for odd in range(2):
                p_ = f + 26 * odd
                for pc in pcs:
                    c.append(f'v_add_u32_dpp v{TM + pc}, v{Q + 4 * pc + p_ % 4}, v{vCh[0]} row_newbcast:{p_ >> 2} row_mask:0xf bank_mask:{(3, 12)[odd]:#x}')
            return c

        def xld(pc, slot, tag='X'):
            return [f's_add_u32 m0, s{S_XM0}, {slot * XSLOT + pc * 2048}',
                    I(f'buffer_load_dwordx4 v{TM + pc}, {srd(SRD_TAB)}, 0 offen lds', tag=tag)]
        idxl = [f'buffer_load_dwordx4 {vr(Q + 4 * pc, 4)}, v{BP[0]}, {srd(SRD_IDX)}, s{SI[pc // 2]} offen offset:{(pc % 2) * 1664}' for pc in range(10)]
        LO, HI = range(5), range(5, 10)
        NR = (22 + o.tf - 1) // o.tf
        lw = S_CW
        self.mk0 = len(self.P.static)
        L = ['L_ld:', f's_lshr_b32 s{S_T0}, s{lw}, 1', f's_mul_i32 s{S_T0}, s{S_T0}, 20', f's_and_b32 s{S_T1}, s{lw}, 1', f's_add_u32 s{S_T0}, s{S_T0}, s{S_T1}',
             f's_lshl_b32 s{S_XM0}, s{S_T0}, 10', f's_mul_i32 s{S_C0}, s{S_T3}, 104', f's_mul_i32 s{S_T0}, s{S_T0}, 832', f's_add_u32 s{SI[0]}, s{S_C0}, s{S_T0}',
             f'v_mul_u32_u24 v{q}, 48, v{g}', f'v_sub_u32 v{BP[0]}, v{vBL}, v{q}']
        L += [f's_add_u32 s{SI[k]}, s{SI[0]}, {k * 2 * 1664}' for k in range(1, 5)]
        L += [f's_and_b32 s{S_T2}, s{lw}, 1', f's_lshl_b32 s{S_T2}, s{S_T2}, 3',
              f'v_lshlrev_b32 v{i4}, 1, v{g}', f'v_or_b32 v{i4}, s{S_T2}, v{i4}', f'v_xor_b32 v{i4}, v{i4}, v0', f'v_and_b32 v{i4}, 15, v{i4}',
              f'v_mul_u32_u24 v{vWD[0]}, 3328, v{g}', f'v_lshl_add_u32 v{vWD[0]}, v{i4}, 4, v{vWD[0]}', f'v_add_u32 v{vWD[1]}, {4 * 3328}, v{vWD[0]}',
              f's_mul_i32 s{S_WSOFF}, s{lw}, {8 * 3328}', f's_add_u32 s{S_WSOFF}, s{S_WSOFF}, s{S_N0}', f's_lshl_b32 s{S_WMB}, s{lw}, 11',
              's_waitcnt lgkmcnt(0)']
        L += self.build_srd(SRD_IDX, S_IDX, 4096 * 104) + (['s_barrier'] if o.dbar0 == 1 else []) + idxl[:o.i0] + self.tlb1(T + 14, T + 15) + self.build_srd(SRD_W, S_W1, 1664 * 3328)
        for sl in range(o.w0):
            L += wstage(sl)
        L += self.stamp0() + (['s_barrier'] if o.dbar0 >= 2 else []) + ([Touch(vr(Q, 4))] if o.dbar0 == 3 else []) + idxl[o.i0:]
        for sl in range(o.w0, 2):
            L += wstage(sl)
        L += [f's_lshl_b32 s{S_T2}, s{S_T1}, 6',
              f'v_and_b32 v{q}, 7, v0', f'v_xor_b32 v{q}, v{q}, v{g}', f'v_lshlrev_b32 v{q}, 4, v{q}', f'v_xor_b32 v{vCh[0]}, s{S_T2}, v{q}', f'v_xor_b32 v{vCh[1]}, 64, v{vCh[0]}',
              f's_mov_b32 s{S_LOOP}, 0',
              f's_mul_i32 s{S_T2}, s{lw}, 13', f's_add_u32 s{S_T2}, s{S_T2}, s{S_R}', f's_min_u32 s{S_T2}, s{S_T2}, 39', f's_lshl_b32 s{S_T2}, s{S_T2}, 3',
              f's_add_u32 s{S_T2}, s{S_T2}, s{S_T3}', f's_mul_i32 s{S_GRP}, s{S_T2}, 104',
              f'v_lshrrev_b32 v{q}, {o.tf.bit_length() - 1}, v0', f'v_min_u32 v{q}, 7, v{q}', f'v_mul_u32_u24 v{q}, 104, v{q}',
              f'v_and_b32 v{i4}, {o.tf - 1}, v0', f'v_lshl_add_u32 v7, v{i4}, 2, v{q}',
              f's_lshl_b32 s{S_T2}, s{S_MB}, 2', f's_add_u32 s{S_T2}, s{S_T2}, s{lw}', f's_add_u32 s{S_T2}, s{S_T2}, {o.tw0 * 32}', f's_mul_i32 s{S_RC}, s{S_T2}, 3328',
              f's_add_u32 s{S_RC}, s{S_RC}, s{S_N0}', f's_mov_b32 s{S_T2}, {52 * 3328}',
              f'v_lshrrev_b32 v{q}, 1, v0', f'v_mul_lo_u32 v{q}, s{S_T2}, v{q}', f'v_and_b32 v{i4}, 1, v0', f'v_lshl_add_u32 v{vWT}, v{i4}, 7, v{q}']
        L += self.build_srd(SRD_W2, S_W2, 3328)
        L += [f's_mul_i32 s{S_T2}, s{lw}, {o.lpf * 128}', f's_add_u32 s{S_T2}, s{S_T2}, L_tail-L_pc', f'v_lshlrev_b32 v8, 7, v0', f'v_add_u32 v8, s{S_T2}, v8',
              f'v_mov_b32 v9, s{S_MASK + 1}', f'v_add_co_u32 v8, vcc, s{S_MASK}, v8', 'v_addc_co_u32 v9, vcc, 0, v9, vcc']
        sh = lambda pc, c_: f'v_lshlrev_b32 v{Q + 4 * pc + c_}, 7, v{Q + 4 * pc + c_}'
        for pc in range(10):
            L += [sh(pc, 0), sh(pc, 2), sh(pc, 1), sh(pc, 3)] + xaddr(0, [pc]) + xld(pc, 0, 'X0a' if pc < o.sa else 'X0')
            if pc == 0:
                L += self.stamp(6) + self.probe('i0')
            if pc == o.bwat:
                L += [WaitTag(vm_tags=['W']), 's_barrier']
        L += self.stamp(7) + self.probe('x0i')
        x1 = [x for pc in range(10) for x in xaddr(1, [pc]) + xld(pc, 1)]
        L += x1[:4 * o.x1n] + [WaitTag(vm_tags=['X0a'])] + self.stamp(1) + ['s_barrier'] + self.probe('s0') + x1[4 * o.x1n:4 * o.x1m]
        L += [WaitTag(vm_tags=['X0']), 's_barrier'] + x1[4 * o.x1m:] + wstage(2) + wstage(3) + xaddr(2, range(10))
        x2 = [x for pc in range(10) for x in xld(pc, 2)]
        NR = (26 - o.tf0 + o.tf - 1) // o.tf
        tex = (1 << (8 * o.tf)) - 1
        texec = [f's_mov_b32 exec_lo, {tex & 0xffffffff:#x}', f's_mov_b32 exec_hi, {tex >> 32:#x}']
        if o.tch == 1:
            L += [f'buffer_load_dword v{TI + r}, v7, {srd(SRD_IDX)}, s{S_GRP} offen offset:{4 * min(o.tf0 + o.tf * r, 26 - o.tf)}' for r in range(NR)]

        def xtouch():
            t_ = [f'v_lshlrev_b32 v{T + 1}, 7, v{TI}'] + texec + [f'buffer_load_dword v{T + 2}, v{T + 1}, {srd(SRD_TAB)}, 0 offen', 's_mov_b64 exec, -1']
            return t_ + [f'v_mov_b32 v{TI + r}, v{TI + r + 1}' for r in range(NR - 1)] + [f'v_mov_b32 v{TI + NR - 1}, 0xffffff']

        def wtouch():
            return ['s_mov_b64 exec, 0x3ff', f'buffer_load_dword v{T + 3}, v{vWT}, {srd(SRD_W)}, s{S_RC} offen', 's_mov_b64 exec, -1', f's_add_u32 s{S_RC}, s{S_RC}, {260 * 3328}']
        L += x2[:2 * o.x2n] + [WaitTag(vm_tags=['W']), 's_barrier'] + self.probe('bar0') + x2[2 * o.x2n:] + xaddr(3, range(10))
        lpre = self.seq(L + [f's_setprio {o.lprio}', 's_branch L_ld_in'])
        del self.P.static[self.mk0:]
        self.P.static[self.ldat:self.ldat] = lpre
        self.mk0 = len(self.P.static)

        def lpair(p):
            S = ['s_barrier'] + (['L_ld_in:'] if p == 0 else []) + wstage(2 * (p % 2)) + wstage(2 * (p % 2) + 1)
            f2 = p + 4
            if p == 11:
                S += [f's_cmp_eq_u32 s{S_LOOP}, 1', 's_cbranch_scc1 L_ld_tail0']
            for pc in range(10):
                x = xld(pc, p % 3)
                S += [x[0]] + (xaddr(f2, [pc - 1])[:1] if pc else []) + [x[1]] + (xaddr(f2, [pc - 1])[1:] if pc else [])
            S += xaddr(f2, [9])
            if p >= 10:
                S += [f'v_mov_b32_dpp v{Q + 4 * pc + c_}, v{Q + 4 * pc + c_} row_shl:3 row_mask:0xf bank_mask:0xf' for pc in range(10) for c_ in ((0, 2) if p == 10 else (1, 3))]
            if o.tch == 1 and p % o.tf == o.toff:
                S += xtouch()
            if o.tch == 1 and p % 4 == o.twoff:
                S += wtouch()
            if p == 11:
                S += [f's_add_u32 s{S_LOOP}, s{S_LOOP}, 1', f's_cmp_lt_u32 s{S_LOOP}, 2']
            return S + [WaitTag(vm_tags=['W'])]
        body = self.seq(['L_dnn_loop1:'])
        for p in range(12):
            if p == 8 and o.lpf:
                body += self.seq([f's_cmp_lg_u32 s{S_LOOP}, 1', 's_cbranch_scc1 L_nolpf'])
                self.seq([f's_mov_b64 exec, {(1 << o.lpf) - 1}', 'global_load_dword v10, v[8:9], off', 's_mov_b64 exec, -1'] + small(SRD_W2, L_W2))
                body += self.seq(['L_nolpf:'])
            lp = lpair(p)
            if p and self.probe(f'bar{p}'):
                lp = lp[:1] + [f's_cmp_lg_u32 s{S_LOOP}, 0', f's_cbranch_scc1 L_nopb{p}'] + self.probe(f'bar{p}') + [f'L_nopb{p}:'] + lp[1:]
            body += self.seq(lp + (['s_cbranch_scc1 L_dnn_loop1'] if p == 11 else []))
        tl = c0 + lpre + body * 2 + self.seq(['s_branch L_ld_tail'])
        self.ldblk = self.P.static[self.mk0:]
        del self.P.static[self.mk0:]
        tl += self.seq(['L_ld_tail0:', 's_waitcnt vmcnt(0)', 'L_ld_tail:', 's_barrier'] + self.tlb2(T) + ['s_mov_b64 exec, 1', f'buffer_load_dword v250, v{T}, {srd(SRD_DBG)}, 0 offen offset:128 sc1', 's_mov_b64 exec, -1'])
        tl += self.seq(self.probe('s50'))
        if o.walk:
            tl += self.seq([f's_cmp_eq_u32 s{lw}, 0', 's_cbranch_scc1 L_wkd', 's_mov_b64 exec, 0', f's_cmp_eq_u32 s{lw}, 1', 's_cbranch_scc1 L_wk0',
                            f's_cmp_eq_u32 s{lw}, 2', f's_cbranch_scc1 L_wk{np_ // 3}', f's_branch L_wk{2 * np_ // 3}', 'L_wkd:'])
        A = 64
        L = [f's_cmp_lg_u32 s{S_WAVE}, 4', 's_cbranch_scc1 L_end',
             f'v_lshlrev_b32 v3, 4, v0', f'v_lshlrev_b32 v4, 2, v0', f'v_add_u32 v1, {RB}, v3', f'v_add_u32 v2, {RB + 1024}, v4', f'v_add_u32 v4, 1024, v4',
             'v_mov_b32 v5, 32', f'v_mov_b32 v7, s{S_MB}',
             f's_mul_i32 s{S_T0}, s{S_MB}, 1280', f's_mul_i32 s{S_T1}, s{S_R}, {WSP}', f's_add_u32 s{S_T1}, s{S_T1}, s{S_T0}', 's_setprio 3']
        if o.sent:
            L += (self.pst() if o.skew and o.probe == 'span' else []) + [f'v_mov_b32 v{A + k}, -1' for k in range(4)] + [f'buffer_store_dwordx4 {vr(A, 4)}, v3, {srd(SRD_WS)}, s{S_T1} offen sc1',
                  f'buffer_store_dword v{A}, v4, {srd(SRD_WS)}, s{S_T1} offen sc1', 's_waitcnt vmcnt(0)'] + (self.cready('d', 250) if o.wsc else [])
        if o.pwalk:
            L += ['s_mov_b64 exec, 0', 's_branch L_pw0', 'L_pwr:', 's_mov_b64 exec, -1', f's_cmp_eq_u32 s{S_WAVE}, 0', 's_cbranch_scc1 L_pwc']
        L += self.stamp_flush() + ['s_barrier'] + self.probe('dend')
        L += [f'ds_read_b128 {vr(A, 4)}, v1', f'ds_read_b128 {vr(A + 8, 4)}, v1 offset:1280', f'ds_read2st64_b32 {vr(A + 4, 2)}, v2 offset0:0 offset1:5',
              f'v_pk_add_f32 {p2(A)}, {p2(A)}, {p2(A + 8)}', f'v_pk_add_f32 {p2(A + 2)}, {p2(A + 2)}, {p2(A + 10)}', f'v_add_f32 v{A + 4}, v{A + 4}, v{A + 5}']
        if o.sent:
            L += [f'v_min_u32 v{A + k}, -2, v{A + k}' for k in range(5)]
        L += (self.stamp(16) if o.diag else [])
        L += [f'buffer_store_dwordx4 {vr(A, 4)}, v3, {srd(SRD_WS)}, s{S_T1} offen sc1',
              f'buffer_store_dword v{A + 4}, v4, {srd(SRD_WS)}, s{S_T1} offen sc1', 's_mov_b64 exec, 1']
        tl += self.seq(L)

        L = ['L_pub:']
        if o.skew and o.probe != 'span':
            L += self.pst() + ['s_waitcnt vmcnt(0)']
        def loads():
            c = [f's_mul_i32 s{S_T0}, s{S_T3}, 1280']
            for qq in range(14):
                c += [f'buffer_load_dwordx4 {vr(A + 8 * qq, 4)}, v3, {srd(SRD_WS)}, s{S_T0} offen sc1',
                      f'buffer_load_dword v{A + 8 * qq + 4}, v4, {srd(SRD_WS)}, s{S_T0} offen sc1', f's_add_u32 s{S_T0}, s{S_T0}, {WSP}']
            return c
        R_ = 56
        hb = 0
        L += [f'v_lshlrev_b32 v6, {o.wsc or 4}, v7', f's_mov_b32 s{S_T2}, 0x60000'] + ([] if o.sent else ['s_waitcnt vmcnt(0)']) + ['v_mov_b32 v13, v5',
              f'buffer_atomic_add v5, v6, {srd(SRD_WS)}, s{S_T2} offen sc0' if o.wsc else f'buffer_atomic_add v5, v6, {srd(SRD_DBG)}, 0 offen sc0',
              'v_cmp_eq_u32 vcc, 12, v7', f'v_mov_b32 v8, {hb + 436:#x}', f'v_mov_b32 v9, {hb + 434:#x}', 'v_cndmask_b32 v8, v8, v9, vcc', 'v_sub_u32 v8, v8, v13']
        if o.spec:
            L += [f's_mov_b64 s[{S_MASK}:{S_MASK + 1}], exec', 's_mov_b64 exec, -1', f'v_readfirstlane_b32 s{S_T3}, v7'] + loads() + [f's_mov_b64 exec, s[{S_MASK}:{S_MASK + 1}]']
            L += ['s_waitcnt vmcnt(0) lgkmcnt(0)']
        else:
            L += ['s_waitcnt vmcnt(0) lgkmcnt(0)']
        L += (self.stamp(18) if o.diag else []) + self.probe('atm') + [
             f'v_cmp_eq_u32 s[{S_EX}:{S_EX + 1}], v5, v8', 's_mov_b64 exec, -1', f's_lshl_b32 s{S_BOUT}, s{S_BOUT}, 16',
             'v_lshrrev_b32 v1, 1, v3', 'v_lshrrev_b32 v2, 1, v4']
        if o.spec:
            L += [f's_bitcmp1_b32 s{S_EX}, 0', f's_bitset0_b32 s{S_EX}, 0', 's_cbranch_scc1 L_sum']
        pa = self.seq(L)
        L = ['L_fin:', f's_cmp_eq_u32 s{S_EX}, 0', 's_cbranch_scc1 L_done',
             f's_ff1_i32_b32 s{S_T2}, s{S_EX}', f's_bitset0_b32 s{S_EX}, s{S_T2}', f'v_readlane_b32 s{S_T3}, v7, s{S_T2}', 's_waitcnt vmcnt(0)', 'L_again:'] + loads()
        pb = self.seq(L)
        L = ['L_sum:', f'v_pk_add_f32 {p2(R_)}, {p2(A)}, {p2(A + 8)}', f'v_pk_add_f32 {p2(R_ + 2)}, {p2(A + 2)}, {p2(A + 10)}', f'v_add_f32 v{R_ + 4}, v{A + 4}, v{A + 12}']
        for qq in range(2, 14):
            L += [f'v_pk_add_f32 {p2(R_)}, {p2(R_)}, {p2(A + 8 * qq)}', f'v_pk_add_f32 {p2(R_ + 2)}, {p2(R_ + 2)}, {p2(A + 8 * qq + 2)}',
                  f'v_add_f32 v{R_ + 4}, v{R_ + 4}, v{A + 8 * qq + 4}']
        if o.sent:
            L += [f'v_cmp_u_f32 vcc, v{R_}, v{R_ + 1}', f'v_cmp_u_f32 s[{S_MASK}:{S_MASK + 1}], v{R_ + 2}, v{R_ + 3}', f's_or_b64 s[{S_MASK}:{S_MASK + 1}], s[{S_MASK}:{S_MASK + 1}], vcc',
                  f'v_cmp_u_f32 vcc, v{R_ + 4}, v{R_ + 4}', f's_or_b64 vcc, s[{S_MASK}:{S_MASK + 1}], vcc', 's_cbranch_vccnz L_chk', 'L_ok:']
        L += [f's_mul_i32 s{S_T3}, s{S_T3}, 640']
        A0 = A
        A = R_
        L += [f'v_add_f32 v{A + k}, s{S_BOUT}, v{A + k}' for k in range(5)]
        L += [f'v_cvt_pk_bf16_f32 v10, v{A}, v{A + 1}', f'v_cvt_pk_bf16_f32 v11, v{A + 2}, v{A + 3}', f'v_cvt_pk_bf16_f32 v12, v{A + 4}, v{A + 4}',
              f'buffer_store_dwordx2 v[10:11], v1, {srd(SRD_OUT)}, s{S_T3} offen', f'buffer_store_short v12, v2, {srd(SRD_OUT)}, s{S_T3} offen']
        if o.tailp:
            L += [f's_cmp_lg_u32 s{S_EX}, 0', 's_cbranch_scc1 L_fin', 's_waitcnt vmcnt(0)', 's_memrealtime s[86:87]', 's_waitcnt lgkmcnt(0)', 's_sub_u32 s88, s86, s88', 's_min_u32 s88, s88, 1000',
                  f's_mul_i32 s88, s88, {o.tailp - 1}', 's_add_u32 s88, s88, s86',
                  'L_spin:', 's_memrealtime s[86:87]', 's_waitcnt lgkmcnt(0)', 's_sub_u32 s89, s88, s86', 's_cmp_gt_i32 s89, 0', 's_cbranch_scc1 L_spin']
        if o.skew:
            L += [f's_cmp_lg_u32 s{S_EX}, 0', 's_cbranch_scc1 L_fin', 's_memrealtime s[84:85]', 'v_lshlrev_b32 v20, 7, v0', 's_mov_b32 s88, 0x40000']
            for k in range(4):
                L += [f'buffer_load_dwordx3 v[{32 + 4 * k}:{34 + 4 * k}], v20, {srd(SRD_WS)}, s88 offen sc1', 's_add_u32 s88, s88, 8192']
            L += ['s_waitcnt vmcnt(0)']
            if o.probe.startswith('st') or o.absol:
                L += ['s_memrealtime s[88:89]', 's_waitcnt lgkmcnt(0)', 'v_mov_b32 v26, 0', 'v_mov_b32 v27, 0']
                for k in range(4):
                    L += [f'v_sub_u32 v28, s88, v{32 + 4 * k}', 'v_cmp_gt_u32 vcc, 4500, v28', f'v_not_b32 v29, v{32 + 4 * k}', 'v_cndmask_b32 v29, 0, v29, vcc', 'v_max_u32 v27, v27, v29']
                    if o.absol:
                        L += [f'v_cndmask_b32 v29, 0, v{34 + 4 * k}, vcc', 'v_max_u32 v26, v26, v29']
                    elif str(k) in o.probe[2:]:
                        L += [f'v_cndmask_b32 v29, 0, v{32 + 4 * k}, vcc', 'v_max_u32 v26, v26, v29']
            else:
                for k in range(4):
                    L += [f'v_sub_u32 v28, v{34 + 4 * k}, v{32 + 4 * k}', f'v_cmp_gt_u32 vcc, {100000 if o.cyc else 5000}, v28', f'v_cndmask_b32 v28, 0, v28, vcc',
                          f'v_cmp_eq_u32 vcc, v{32 + 4 * k}, v{33 + 4 * k}', f'v_cndmask_b32 v{33 + 4 * k}, 0, v28, vcc']
                L += ['v_max_u32 v26, v33, v37', 'v_max3_u32 v26, v26, v41, v45', 'v_mov_b32 v27, -1']
            if o.probe == 'span':
                L += ['v_mov_b32 v26, s84']
            for (ctl, rm) in (('row_shr:1', '0xf'), ('row_shr:2', '0xf'), ('row_shr:4', '0xf'), ('row_shr:8', '0xf'), ('row_bcast:15', '0xa'), ('row_bcast:31', '0xc')):
                L += [f'v_max_u32_dpp v{r}, v{r}, v{r} {ctl} row_mask:{rm} bank_mask:0xf' for r in (26, 27)]
            L += ['v_not_b32 v27, v27', 'v_sub_u32 v22, v26, v27', 's_memrealtime s[86:87]', 'v_readlane_b32 s88, v22, 63', 's_waitcnt lgkmcnt(0)',
                  *([f's_max_u32 s88, s88, {o.cyc.split(chr(44))[2]}', f's_sub_u32 s88, s88, {o.cyc.split(chr(44))[2]}', 's_lshr_b32 s88, s88, 1'] if o.cyc else []), 's_min_u32 s88, s88, 5000', f's_mul_i32 s88, s88, {o.skew - 1}', 's_add_u32 s88, s88, s86',
                  'L_spin:', 's_memrealtime s[86:87]', 's_waitcnt lgkmcnt(0)', 's_sub_u32 s89, s88, s86', 's_cmp_gt_i32 s89, 0', 's_cbranch_scc1 L_spin']
        L += self.stamp(5) + self.stamp_flush() + ['s_branch L_fin']
        pc_ = self.seq(L)
        if o.sent:
            L = ['L_chk:', 'v_mov_b32 v14, 0', 'v_mov_b32 v15, 0']
            for qq in range(14):
                L += [f'v_max3_u32 v14, v14, v{A0 + 8 * qq}, v{A0 + 8 * qq + 1}', f'v_max3_u32 v14, v14, v{A0 + 8 * qq + 2}, v{A0 + 8 * qq + 3}', f'v_max_u32 v15, v15, v{A0 + 8 * qq + 4}']
            L += [f's_cmp_eq_u32 s{S_T3}, 12', f's_cselect_b32 s{S_T0}, 0, -1', f'v_and_b32 v15, s{S_T0}, v15', 'v_max_u32 v14, v14, v15',
                  'v_cmp_eq_u32 vcc, -1, v14', 's_cbranch_vccnz L_again', 's_branch L_ok']
            self.chk = self.seq(L)
        pe = self.seq(['L_done:', 's_endpgm'])
        self.pub = pa + pb + pc_ + pe
        self.extra_traces = [pa + pc_ + pb + pc_] + ([pa + pb + pc_[:45] + self.chk + pb[7:] + pc_] if o.sent else [])
        return [tc, tl + self.pub]

    def cinit(self, lab, skip):
        return ['s_mov_b64 exec, 0x1fff', 'v_mov_b32 v20, 1', 'v_mov_b32 v21, 0', f'v_lshlrev_b32 v22, {self.opt.wsc}, v0', 's_mov_b64 exec, 1',
                f'buffer_atomic_add v20, v21, {srd(SRD_DBG)}, 0 offen sc0', f's_mov_b32 s{S_TW}, 0x60000', 's_waitcnt vmcnt(0)',
                'v_cmp_ne_u32 vcc, 0, v20', f's_cbranch_vccnz {skip}', 's_mov_b64 exec, 0x1fff',
                f'buffer_store_dword v21, v22, {srd(SRD_WS)}, s{S_TW} offen sc1', 's_mov_b64 exec, 1', 'v_mov_b32 v20, 1', 's_waitcnt vmcnt(0)',
                f'buffer_store_dword v20, v21, {srd(SRD_DBG)}, 0 offen offset:128 sc1']

    def cready(self, tag, vr_):
        self.late += [f'L_ci{tag}:'] + self.cinit(tag, f'L_cp{tag}') + [f'L_cp{tag}:', f'buffer_load_dword v20, v21, {srd(SRD_DBG)}, 0 offen offset:128 sc1', 's_waitcnt vmcnt(0)',
                      'v_cmp_eq_u32 vcc, 0, v20', f's_cbranch_vccnz L_cp{tag}', 's_mov_b64 exec, -1', f's_branch L_cr{tag}']
        return [f'v_readfirstlane_b32 s{S_TW}, v{vr_}', f's_cmp_eq_u32 s{S_TW}, 0', f's_cbranch_scc1 L_ci{tag}', f'L_cr{tag}:']

    def pst(self):
        return ['v_mov_b32 v20, s86', 'v_mov_b32 v21, s86', 'v_mov_b32 v22, s88', 's_lshl_b32 s89, s2, 7', 's_add_u32 s89, s89, 0x40000', 'v_lshlrev_b32 v23, 26, v0', 'v_min_u32 v23, 0x40000000, v23', 'v_lshlrev_b32 v23, 1, v23', 'v_lshlrev_b32 v23, 0, v23',
                's_mov_b64 s[90:91], exec', 's_mov_b64 exec, 1', f'buffer_store_dwordx3 v[20:22], v23, {srd(SRD_WS)}, s89 offen sc1', 's_mov_b64 exec, s[90:91]']

    def pubsrd(self):
        return self.build_srd(SRD_WS, S_WS, 0x10000000) + self.build_srd(SRD_OUT, S_OUT, 8192) + self.build_srd(SRD_DBG, S_DBG, 256)

    def tables(self):
        OOB = 0x100000
        G = [[] for _ in range(11)]
        for l in range(64):
            half, i32, g, r, c = l >> 5, l & 31, l >> 4, (l >> 2) & 3, l & 3
            lin0 = g * 128 + r * XPP + c * 8
            G[0] += [lin0, lin0 + 512 if g < 3 else XOFF(27) + c * 8, (l >> 3) * 16, 0x3f803f80 if l < 32 else 0]
            G[1] += [(l & 7) * 16, 0xeeee if l & 1 else 0x4444, half * XPP + i32 * 4, IMG + half * 20 * IMGP + i32 * 4]
            tr = [IMG + cin16.IMGROW(cin16.LAB[g][2 * rp + (r >> 1)][r & 1]) * IMGP + c * 8 for rp in range(8)]
            G[2] += tr[:4]
            G[3] += tr[4:]
            row, col = 8 * half + r, (g & 1) * 32 + c * 8
            G[4] += [V3OFF + row * 64 + col, A1 + row * 1352 + col, A1 + min(row + 16, 25) * 1352 + col, A1 + min(row + 20, 25) * 1352 + col]
            t, gd, rr = (i32 >> 2) & 1, i32 >> 3, i32 & 3
            ig = 16 * t + 4 * rr + gd
            iq = 4 * rr + gd if t == 0 else 16 + ((4 * rr + gd + 4) & 15)
            pm = []
            for q in range(8):
                k0 = 16 * (q >> 2) + 8 * half + 2 * (q & 3)
                pm.append((0xffff if iq == k0 else 0xffff0000 if iq == k0 + 1 else 0) if iq < 26 else 0)
            G[5] += pm[:4]
            G[6] += pm[4:]
            ga = A2 + 52 * ig if ig < 26 else OOB
            rowp = ((l & 12) + 2 * (l & 1)) * 16 + (OOB if l & 2 else 0)
            G[7] += [ga + half * 8 * W2P, ga + half * OOB, rowp + half * 256 + (g & 1) * 8, rowp + g * 256]
            G[8] += [SG + i32 * 64 if i32 < 26 else V2S if i32 == 26 else OOB, 64 if i32 == 26 else 3328, (i32 >> 1) + 2 * half,
                     SQ + i32 * 64 + ((((i32 >> 1) & 3) ^ (2 * half)) << 4)]
            v2 = []
            for hf in range(2):
                j = 4 * g + 16 * hf + r
                v2.append(V2S + (j & 1) * 1664 + (j >> 1) * 64 + ((c ^ (((13 + j) & 3) * 2)) * 8) if j < 26 else SG + 676 * 64 + c * 8)
            wo = [L_WCO + 2 * (16 * tl_ + 4 * c + r) if 16 * tl_ + 4 * c + r < 26 else OOB for tl_ in range(2)]
            G[9] += v2 + wo
            G[10] += [L_WCO + 104 + 16 * half, L_WCO + 52 + 2 * l, V3OFF + 52 + 64 * l, SG + 676 * 64 + (l & 15) * 4]
        U = []
        for w in range(8):
            for e in range(16):
                for u in (w, w + 8, w + 16):
                    U += [SG + row * 64 + f * 8 for row, f in cin16.p2rows(u, e >> 2, e & 3)] if u < 22 else [0, 0]
        return [x for n in (4, 2, 3, 0, 5, 6, 7, 8, 9, 1, 10) for x in G[n]] + [0] * 256 + U + [0] * 256

    def cin(self):
        o = self.opt
        cw = S_CW
        vFa, vLin0, vLin1, vXi0, vXi1, vC16, vIDX, vXa, vIw, vPWL, vPXL, PXR, PFR = 1, 4, 5, 6, 7, 8, 9, 10, 11, 12, 13, 14, 15
        XI, vTR = 16, 20
        XR, P, Z, WF, D = 32, 60, 116, 164, 184
        vStg, vFR, vFw = vFa, 2, 59
        t3, t4, t5 = 29, 30, 31
        AV = [28, 58]
        PM = 216
        vA3, vBs0, vBs1a, vBs1b, vGa, vGb, vT3, vT3d = range(224, 232)
        G8, vV2r, vV2q, vWo, AD = 232, 236, 237, 238, 240
        WA = list(range(244, 250))
        vS, vMx = 250, 111
        UA, UX = 224, [232, 233, 234, 235, 240, 241]
        AFR = 112
        BALL, DALL = 60, 120
        S_F1, S_F2, S_G, S_LO, S_HI, S_CM, S_U0, S_U1, S_U2 = 74, 75, 95, 96, 97, 90, 98, 99, 100
        S_CG, S_IV = 0, 1
        OOB = 0x100000
        TA_, TB_, TC_ = SG + 35840, SQ + 26 * W2P, FRS + 2048
        GREG = [224, 20, 24, 4, 216, 220, 228, 232, 236, 8, 240]
        DPPS = (('row_shr:1', '0xf'), ('row_shr:2', '0xf'), ('row_shr:4', '0xf'), ('row_shr:8', '0xf'),
                ('row_bcast:15', '0xa'), ('row_bcast:31', '0xc'))

        K_W7, K_IMG, K_W2, K_W1, K_W12, K_H8, K_T3 = 52, 53, 54, 55, 92 - 10, 92 - 9, 91
        L = ['L_cin:', f'v_lshlrev_b32 v{vStg}, 4, v0', f's_and_b32 s{cw}, s{S_WAVE}, 3', f's_lshr_b32 s{S_GRP}, s{S_WAVE}, 2', f's_lshl_b32 s{S_STG}, s{cw}, 10',
             f's_mul_i32 s{S_MB}, s{S_T0}, 11', f's_add_u32 s{S_MB}, s{S_MB}, s{S_T1}', f's_sub_u32 s{S_MB}, s{S_MB}, 22',
             f's_cmp_eq_u32 s{S_MB}, 86', 's_cbranch_scc1 L_spare' if o.wsc and not o.nospare else 's_cbranch_scc1 L_end', f's_cmp_eq_u32 s{S_GRP}, 0', 's_cbranch_scc1 L_sc']
        c0 = self.seq(L)
        L = ['s_setprio 2', f'v_add_u32 v2, L_tables-L_pc+4096, v{vStg}', f'v_mov_b32 v3, s{S_MASK + 1}',
             f'v_add_co_u32 v2, vcc, s{S_MASK}, v2', 'v_addc_co_u32 v3, vcc, 0, v3, vcc',
             f'v_add_co_u32 v{XR}, vcc, s{S_STG}, v2', f'v_addc_co_u32 v{XR + 1}, vcc, 0, v3, vcc',
             f'global_load_dwordx4 {vr(GREG[0], 4)}, v[2:3], off offset:-4096',
             'v_add_co_u32 v2, vcc, 0x1800, v2', 'v_addc_co_u32 v3, vcc, 0, v3, vcc', f'global_load_dwordx4 {vr(GREG[10], 4)}, v[2:3], off',
             f's_cmp_lt_u32 s{cw}, 3', f's_mov_b32 s{S_T2}, {TB_ - 3072}', f's_cselect_b32 s{S_T2}, {TA_ + 4096}, s{S_T2}']
        tdma = lambda off: I(f'global_load_lds_dwordx4 {vr(XR, 2)}, off offset:{off}', tag='TAB')
        L += [f's_add_u32 m0, s{S_STG}, {TA_ + 4096}', tdma(-4096), f's_add_u32 m0, s{S_STG}, s{S_T2}', tdma(0),
              f'v_add_co_u32 v{XR}, vcc, 0x2000, v{XR}', f'v_addc_co_u32 v{XR + 1}, vcc, 0, v{XR + 1}, vcc',
              f's_add_u32 m0, s{S_STG}, {TC_}', tdma(0), f's_add_u32 m0, s{S_STG}, {TB_ + 1024 + 4096}', f's_cmp_ge_u32 s{cw}, 2', 's_cbranch_scc1 L_sc']
        g1s = self.seq(L)
        L = [tdma(-4096)]
        g1t = self.seq(L)
        L = ['L_sc:', f's_mul_i32 s{S_RC}, s{S_GRP}, 20', f's_add_u32 s{S_RC}, s{S_RC}, s{S_WAVE}',
             f's_mul_i32 s{S_SAMP}, s{S_MB}, 48', f's_add_u32 s{S_SAMP}, s{S_SAMP}, s{S_RC}', f's_mul_i32 s{S_SAMP}, s{S_SAMP}, 104',
             f'v_lshrrev_b32 v{t4}, 3, v0', f'v_lshlrev_b32 v{t4}, 4, v{t4}', f'v_and_b32 v{t3}, 0x70, v{vStg}',
             f's_mul_i32 s{S_XM0}, s{S_WAVE}, {XBSZ}', f's_add_u32 s{S_XM0}, s{S_XM0}, {XB}', f's_cmp_eq_u32 s{S_GRP}, 0', 's_cbranch_scc1 L_g0']
        csc = self.seq(L)
        SC2 = [f's_lshl_b32 s{S_RC}, s{S_RC}, 2', f's_add_u32 s{S_RC}, s{S_RC}, {RC}',
               f's_mul_i32 s{S_LOOP}, s{S_GRP}, 3', f's_sub_u32 s{S_LOOP}, 4, s{S_LOOP}', (f's_cmp_eq_u32 s{S_MB}, 85', f's_cselect_b32 s{S_LOOP}, s{S_LOOP}, 6'),
               f's_lshl_b32 s{K_W7}, s{S_WAVE}, 7', f's_mul_i32 s{K_IMG}, s{S_WAVE}, {IMGSZ}', f's_lshl_b32 s{K_W2}, s{S_WAVE}, 2', f's_lshl_b32 s{K_W1}, s{S_WAVE}, 1',
               f's_lshl_b32 s{K_W12}, s{S_WAVE}, 12',
               f's_and_b32 s{S_U0}, s{S_WAVE}, 1', f's_lshr_b32 s{S_U1}, s{S_WAVE}, 1',
               f's_mul_i32 s{S_T0}, s{S_U1}, 3072', f's_lshl_b32 s{K_H8}, s{S_U0}, 3', f's_add_u32 s{S_T0}, s{S_T0}, s{K_H8}', f'v_add_u32 v{vFw}, s{S_T0}, v{vStg}',
               f's_lshl_b32 s{S_T1}, s{S_U1}, 3', f's_lshr_b32 s{S_T1}, 0x05030200, s{S_T1}', f's_and_b32 s{S_T1}, s{S_T1}, 0xff',
               f's_lshl_b32 s{S_T1}, s{S_T1}, 9', f's_lshl_b32 s{S_T2}, s{S_U0}, 2', f's_add_u32 s{K_T3}, s{S_T1}, s{S_T2}',
               f's_mov_b32 s{S_U1}, 0x05040100', f's_mov_b32 s{S_U2}, 0x07060302',
               f'v_mov_b32 v{vFR}, {L_FLG}', 'v_mov_b32 v109, 0', 'v_mov_b32 v108, 0'] + [f'v_mov_b64 {vr(r, 2)}, 0' for r in range(XR, XR + 26, 2)]
        XJ = 104 if o.xat < 4 else 12

        def pfw(dst=3):
            return [f'buffer_load_dword v{dst}, v{vPWL}, {srd(SRD_W)}, s{S_PW} offen',
                    f's_add_u32 s{S_PW}, s{S_PW}, {o.pfne * 688 * 128}']

        def pfx_a():
            return [f'buffer_load_dword v{PXR}, v{vPXL}, {srd(SRD_IDX)}, s{S_PX} offen',
                    f's_cmp_eq_u32 s{S_PX}, s{S_PXE}', f's_cselect_b32 s{S_PXE}, 0x7000000, s{S_PXE}',
                    f's_cselect_b32 s{S_PX}, 0x7000000, s{S_PX}',
                    f's_add_u32 s{S_PX}, s{S_PX}, 24', f's_min_u32 s{S_PX}, s{S_PX}, s{S_PXE}']

        def pfx_b():
            return [f'v_lshlrev_b32 v{PXR}, 7, v{PXR}', f'buffer_load_dword v{PFR}, v{PXR}, {srd(SRD_TAB)}, 0 offen']

        def xidx(XI=XI, vXi0=vXi0):
            return [f'buffer_load_dwordx4 {vr(XI, 4)}, v{vXi0}, {srd(SRD_IDX)}, s{S_SAMP} offen', f's_add_u32 s{S_SAMP}, s{S_SAMP}, {4 * 104}']

        def xdma(XI=XI, off=0, tag='XB', vC16=vC16):
            c = [f'v_lshl_add_u32 v{XI + u}, v{XI + u}, 7, v{vC16}' for u in range(4)]
            for u in range(4):
                c += [f's_add_u32 m0, s{S_XM0}, {u * XPP + off}']
                if u % 2 == 0:
                    c.append(f's_mov_b32 exec_hi, {0xffffff if u == 0 else 0xffff:#x}')
                c.append(I(f'buffer_load_dwordx4 v{XI + u}, {srd(SRD_TAB)}, 0 offen lds', tag=tag))
            return c + ['s_mov_b32 exec_hi, -1']

        def stage(dst, goff, tag):
            st = []
            for m in range(9):
                st.append((f's_add_u32 m0, s{S_STG}, {dst + m * 4096}', f's_add_u32 s{S_TW}, s{S_STG}, {goff + m * 4096}',
                           I(f'buffer_load_dwordx4 v{vStg}, {srd(SRD_CIN)}, s{S_TW} offen lds', tag=tag)))
            return st

        def pubmax(regs_offs):
            c = []
            for (ctl, rm) in DPPS:
                for r, _ in regs_offs:
                    c.append(f'v_max_u32_dpp v{r}, v{r}, v{r} {ctl} row_mask:{rm} bank_mask:0xf')
            c += ['s_mov_b32 exec_lo, 0', 's_mov_b32 exec_hi, 0x80000000']
            c += [f'ds_max_u32 v{vFR}, v{r} offset:{16 + 4 * k}' for r, k in regs_offs]
            return c + ['s_mov_b64 exec, -1']

        def mxop(src, n, mx, first):
            return [f'v_mfma_f32_16x16x32_bf16 {vr(mx, 4)}, {vr(src + r, 4)}, {vr(src + r, 4)}, {"0" if first and r == 0 else vr(mx, 4)}' for r in range(0, n, 4)]

        def mxfin(mx):
            return [f'v_max3_f32 v{mx}, v{mx}, v{mx + 1}, 0', f'v_max3_f32 v{mx}, v{mx}, v{mx + 2}, v{mx + 3}']

        def bread(m, off):
            b = BALL + m * 8
            return [f'ds_read_b64_tr_b16 {vr(b, 2)}, v{vBs0} offset:{off}',
                    f'ds_read_b64_tr_b16 {vr(b + 2, 2)}, v{vBs0} offset:{off + 4 * 1352}',
                    f'ds_read_b64_tr_b16 {vr(b + 4, 2)}, v{vBs1a} offset:{off}',
                    f'ds_read_b64_tr_b16 {vr(b + 6, 2)}, v{vBs1b} offset:{off}']

        def mm2(d, a, b):
            return [f'v_mfma_f32_32x32x16_bf16 {vr(d, 16)}, {vr(a, 4)}, {vr(b, 4)}, 0',
                    f'v_mfma_f32_32x32x16_bf16 {vr(d, 16)}, {vr(a + 4, 4)}, {vr(b + 4, 4)}, {vr(d, 16)}']

        tA, tB = 250, 251
        if o.pfw:
            SC2 += self.build_srd(SRD_W, S_W1, 1664 * 3328) + [
                f's_lshl_b32 s{S_PW}, s{S_MB}, 3', f's_add_u32 s{S_PW}, s{S_PW}, s{S_WAVE}', f's_add_u32 s{S_PW}, s{S_PW}, {o.pfe0 * 832}', f's_lshl_b32 s{S_PW}, s{S_PW}, 7',
                f's_mov_b32 s{S_T3}, {688 * 128}', f'v_min_u32 v{vPWL}, {max(o.pfne - 1, 0)}, v0', f'v_mul_lo_u32 v{vPWL}, s{S_T3}, v{vPWL}']
        if o.pfx:
            SC2 += [f's_lshl_b32 s{S_PX}, s{S_MB}, 3', f's_add_u32 s{S_PX}, s{S_PX}, s{S_WAVE}', f's_mul_i32 s{S_PX}, s{S_PX}, {6 * 104}',
                    f's_add_u32 s{S_PXE}, s{S_PX}, 80', f's_add_u32 s{S_PX}, s{S_PX}, {4 * o.pfx0}',
                    f'v_min_u32 v{PXR}, 35, v0', f'v_mul_u32_u24 v{vPXL}, 10923, v{PXR}', f'v_lshrrev_b32 v{vPXL}, 16, v{vPXL}',
                    f'v_mul_u32_u24 v{vPXL}, {104 - 24}, v{vPXL}', f'v_lshl_add_u32 v{vPXL}, v{PXR}, 2, v{vPXL}']
        trd = lambda n: f'ds_read_b128 {vr(GREG[n], 4)}, v{tA if n < 7 else tB} offset:{(n if n < 7 else n - 7) * 1024}'
        vbs = [f'v_add_u32 v{r}, s{K_W7}, v{r}' for r in (vBs0, vBs1a, vBs1b)]

        def FX(g):
            R = [trd(n) for n in ((0,) if g == 0 else ()) + (6, 7, 3, 9, 1, 2, 4, 5, 8)]
            F = vbs + [f'v_add_u32 v{r}, s{K_W2}, v{r}' for r in (vGa, vGb)]
            F += [f'v_add_u32 v{vT3d}, s{K_H8}, v{vT3d}', f'v_add_u32 v{vT3}, s{K_T3}, v{vT3}']
            F += [f'v_mad_u32_u24 v{G8}, v{G8 + 1}, s{S_WAVE}, v{G8}', f'v_add_u32 v{G8 + 2}, s{K_W1}, v{G8 + 2}',
                  f'v_mad_u32_u24 v{G8 + 1}, v{G8 + 1}, 8, v{G8}', f'v_add_u32 v{WA[2]}, s{K_W12}, v{G8 + 3}', f'v_add_u32 v{WA[3]}, 2048, v{WA[2]}']
            for n_, (wa, bs) in enumerate(((WA[0], G8), (WA[1], G8), (WA[4], G8 + 1), (WA[5], G8 + 1))):
                F += [f'v_add_u32 v{t5}, {n_ & 1}, v{G8 + 2}', f'v_and_b32 v{t5}, 3, v{t5}', f'v_lshl_add_u32 v{wa}, v{t5}, 4, v{bs}']
                if n_ & 1:
                    F.append(f'v_add_u32 v{wa}, 1664, v{wa}')
            F += [f'v_add_u32 v{r}, s{S_XM0}, v{r}' for r in (vXa, vLin0, vLin1)] + [f'ds_write_b32 v{vXa}, v{vXi1} offset:{XOFF(26)}']
            F += [f'v_add_u32 v{r}, s{K_IMG}, v{r}' for r in [vIw] + list(range(vTR, vTR + 8))]
            return R, F
        SC2 += [f'v_add_u32 v{tA}, {TA_}, v{vStg}', f'v_add_u32 v{tB}, {TB_}, v{vStg}', f'v_lshrrev_b32 v3, 5, v0', f'v_lshl_add_u32 v3, v3, 2, v{vFR}']

        def pub2(r1, r2, off):
            c = [f'v_permlane32_swap_b32 v{r1}, v{r2}', f'v_max_u32 v{r1}, v{r1}, v{r2}']
            c += [f'v_max_u32_dpp v{r1}, v{r1}, v{r1} {ctl} row_mask:{rm} bank_mask:0xf' for ctl, rm in DPPS[:5]]
            return c + ['s_mov_b32 exec_lo, 0x80000000', 's_mov_b32 exec_hi, 0x80000000', f'ds_max_u32 v3, v{r1} offset:{16 + off}', 's_mov_b64 exec, -1']
        AV = [28, 58, 111]
        CO = [f's_sub_u32 s{S_T0}, s{S_T3}, 22', f's_min_u32 s{S_T0}, s{S_T0}, 9', f's_lshl_b32 s{S_T0}, s{S_T0}, 2', f's_add_u32 s{S_T0}, s{S_T0}, s{cw}', f's_lshl_b32 s{S_T0}, s{S_T0}, 7',
              f'v_mul_u32_u24 v{t5}, {40 * 128}, v0', 's_waitcnt lgkmcnt(0)'] + self.build_srd(SRD_CIN, S_CIN, 105456) + [
              f'buffer_load_dword v107, v{t5}, {srd(SRD_CIN)}, s{S_T0} offen']
        L = CO if o.coop in (1, 2) else []
        L += ['s_waitcnt lgkmcnt(0)'] + self.build_srd(SRD_WCO, S_WCO, 156) + [f's_mov_b32 m0, {L_WCO}', 's_mov_b64 exec, 0x7ff',
             I(f'buffer_load_dwordx4 v{vStg}, {srd(SRD_WCO)}, 0 offen lds', tag='WCO'), 's_mov_b64 exec, -1'] + (['s_barrier'] if o.coop in (2, 4) else [])
        v3h = self.seq(L + (['s_branch L_v3b'] if o.chead else []))
        L = ['L_v3b:'] + self.stamp0() + SC2
        L += self.build_srd(SRD_IDX, S_IDX, 4096 * 104) + self.build_srd(SRD_TAB, S_TAB, 100000 * 128)
        XK = 12
        if o.g1t:
            assert not o.pfx
            L += [f'v_and_b32 v13, 31, v0', f'v_min_u32 v13, 25, v13', f'v_lshrrev_b32 v14, 5, v0', f'v_mul_u32_u24 v14, {4 * 104}, v14', f'v_lshl_add_u32 v13, v13, 2, v14',
                  f'buffer_load_dword v14, v13, {srd(SRD_IDX)}, s{S_SAMP} offen']
        g1touch = [f'v_lshlrev_b32 v14, 7, v14', f'buffer_load_dword v13, v14, {srd(SRD_TAB)}, 0 offen']
        hx = []
        if o.hx:
            mg = {4: 16384, 5: 13108}[o.hx]
            assert all((d * mg) >> 16 == d // o.hx for d in range(64))
            L += [f'v_min_u32 v12, {12 * o.hx - 1}, v0', f'v_mul_u32_u24 v15, {mg}, v12', 'v_lshrrev_b32 v15, 16, v15', f'v_mul_u32_u24 v15, {104 - 4 * o.hx}, v15', 'v_lshl_add_u32 v12, v12, 2, v15',
                  f's_lshl_b32 s{S_T0}, s{S_MB}, 2', f's_add_u32 s{S_T0}, s{S_T0}, s{cw}', f's_mul_i32 s{S_T0}, s{S_T0}, {12 * 104}',
                  f'buffer_load_dword v15, v12, {srd(SRD_IDX)}, s{S_T0} offen offset:{4 * o.hx0}']
            hx = ['v_lshlrev_b32 v15, 7, v15', f'buffer_load_dword v12, v15, {srd(SRD_TAB)}, 0 offen']
        if o.hw:
            hw = self.build_srd(SRD_W, S_W1, 1664 * 3328) + [f's_lshl_b32 s{S_T0}, s{S_MB}, 2', f's_add_u32 s{S_T0}, s{S_T0}, s{cw}', f's_add_u32 s{S_T0}, s{S_T0}, {o.hw0 * 832}',
                  f's_lshl_b32 s{S_T0}, s{S_T0}, 7', f'v_mul_u32_u24 v106, {344 * 128}, v0', f's_mov_b64 exec, {(1 << o.hw) - 1}',
                  f'buffer_load_dword v{XI}, v106, {srd(SRD_W)}, s{S_T0} offen', 's_mov_b64 exec, -1']
        if o.xg1:
            L += [f's_sub_u32 s{S_T0}, s{S_SAMP}, {24 * 104}', f'buffer_load_dwordx4 {vr(XI, 4)}, v{t4}, {srd(SRD_IDX)}, s{S_T0} offen',
                  f'buffer_load_dwordx4 {vr(XK, 4)}, v{t4}, {srd(SRD_IDX)}, s{S_T0} offen offset:{4 * 104}']
        L += [f'ds_write_b128 v{vFR}, {vr(XR, 4)} offset:16', f's_lshl_b32 s{S_T0}, s{cw}, 6', f'v_add_u32 v{t3}, s{S_T0}, v0']
        for p_ in range(3):
            L += [f'v_mul_u32_u24 v{t4}, 2521, v{t3}', f'v_lshrrev_b32 v{t4}, 16, v{t4}', f'v_mul_u32_u24 v{t4}, 12, v{t4}', f'v_lshl_add_u32 v{AV[p_]}, v{t3}, 1, v{t4}']
            L += [f'v_add_u32 v{t3}, 256, v{t3}'] if p_ < 2 else [f'v_cmp_gt_u32 vcc, 676, v{t3}', f's_mov_b64 s[{S_MASK}:{S_MASK + 1}], vcc']
        L += [f'v_lshlrev_b32 v{t3}, 3, v0', 's_mov_b32 exec_hi, 0xffff', f'ds_write_b64 v{t3}, {vr(XR, 2)} offset:{V3OFF + 26 * 64}', 's_mov_b32 exec_hi, -1',
              f'ds_write_b32 v{AD + 3}, v{XR}', f'ds_write_b32 v{AD + 3}, v{XR} offset:{SSZ}', WaitTag(vm_tags=['WCO'])]
        assert V3OFF == 0
        for s2 in range(2):
            for rd in range(2):
                L.append(f'ds_read_b64 {vr(AFR + 4 * s2 + 2 * rd, 2)}, v{AD} offset:{s2 * 32 + rd * 8}')
        L += [f'ds_read_u16 v110, v{AD + 1}',
              's_mov_b64 exec, 0x3ffffff', f'ds_write_b16 v{AD + 2}, v110', 'v_lshlrev_b32 v109, 17, v110', 'v_lshrrev_b32 v109, 1, v109', 's_mov_b64 exec, -1']
        if o.cwalk:
            L += ['s_mov_b64 exec, 0'] + [x for q_ in range(3) for x in (f's_cmp_eq_u32 s{cw}, {q_}', f's_cbranch_scc1 L_WENTRY{q_}')] + ['s_branch L_WENTRY3', 'L_wret:', 's_mov_b64 exec, -1']
        L += (FX(1)[1] if o.dirt else vbs) + [WaitTag(vm_tags=['TAB'], lgkm0=True)] + self.probe('tab') + (pfw(PFR) if o.pfw and o.pfs == 1 else []) + (hw if o.hw and o.hwat == 0 else []) + (hx if o.hxat == 0 else [])
        v3p = []
        L += ['s_barrier'] + self.stamp(2) + self.probe('b0')
        vb = lambda m: A3 - A1 - 512 + (m >> 1) * 512 + (m & 1) * 64
        for m in range(3):
            L += bread(m, vb(m))
        for m in range(6):
            if m + 3 < 6:
                L += bread(m + 3, vb(m + 3))
            L += mm2(DALL + m * 16, AFR, BALL + m * 8)
            if m == 3 and not o.dirt:
                L += FX(1)[0]
        if not o.dirt:
            L += FX(1)[1][3:]
        for p_ in range(3):
            L += ['s_mov_b32 exec_lo, 0', f'v_mov_b32 v{DALL + 32 * p_}, v{DALL + 32 * p_ + 16}', 's_mov_b32 exec_lo, -1',
                  f'v_cvt_pk_bf16_f32 v{BALL + p_}, 0, v{DALL + 32 * p_}']
            if p_ == 2:
                L += [f's_mov_b64 exec, s[{S_MASK}:{S_MASK + 1}]']
            L += [f'ds_write_b16_d16_hi v{AV[p_]}, v{BALL + p_}', f'v_max_f32 v108, |v{BALL + p_}|, v108']
        L += ['s_mov_b64 exec, -1'] + pub2(108, 109, 8) + self.stamp(13) + [f's_setprio {o.g1p}'] + (hw if o.hw and o.hwat == 1 else []) + (hx if o.hxat == 1 else []) + (g1touch if o.g1t == 1 else []) + ['s_waitcnt lgkmcnt(0)', 's_barrier'] + (g1touch if o.g1t == 2 else []) + ['s_branch L_w2']
        v3 = self.seq(L)

        def stage3(dst, goff, tag, lab, mid=None, fill=()):
            st = stage(dst, goff, tag)
            a_ = st[:8] if mid is None else st[:mid[0]] + [tuple(mid[1])] + st[mid[0]:8]
            return (self.seq(interleave(a_, list(fill)) + [f's_cmp_eq_u32 s{cw}, 3', f's_cbranch_scc1 {lab}']), self.seq([st[8]]), self.seq([f'{lab}:']))
        g0 = [self.seq(['L_g0:'] + ([x.replace('v107,', 'v103,') for x in CO] if o.coop >= 3 else ['s_waitcnt lgkmcnt(0)'] + self.build_srd(SRD_CIN, S_CIN, 105456)) + (['s_barrier'] if o.coop in (2, 4) else []) + ([Touch('v103')] if o.coop == 5 else []))]
        g0.append(stage3(A3, 70304, 'W3', 'L_st3'))
        if o.chead:
            g0.append(self.seq(['s_branch L_g0b']))
            mv = c0 + g1s + g1t + csc + v3h + g0[0] + g0[1][0] + g0[1][1] + g0[1][2] + g0[2]
            ids = set(id(x) for x in mv)
            self.P.static = [x for x in self.P.static if id(x) not in ids]
            self.P.static[self.cinat:self.cinat] = mv
        g0.append(self.seq(['L_g0b:'] + self.stamp0() + self.build_srd(SRD_IDX, S_IDX, 4096 * 104) + ([f's_add_u32 s{S_SAMP}, s{S_SAMP}, {8 * 104}'] if o.xg1 else xidx(XI, t4) + xidx(XJ, t4)) + self.build_srd(SRD_TAB, S_TAB, 100000 * 128)))
        def w2grp(n):
            c = []
            for k, go in enumerate((0, 1024, 1864)):
                c.append((f's_add_u32 m0, s{S_STG9}, {A2 + n * 4 * 3072 + k * 1024}', f's_add_u32 s{S_TW}, s{S_TGT}, {35152 + n * 4 * 2704 + go}',
                          I(f'buffer_load_dwordx4 v{t5 if k == 1 else vStg}, {srd(SRD_CIN)}, s{S_TW} offen lds', tag='W2')))
            return c
        g0.append((self.seq([f's_mul_i32 s{S_STG9}, s{cw}, 3072', f's_mul_i32 s{S_TGT}, s{cw}, 2704', f'v_lshrrev_b32 v{t5}, 5, v0', f'v_mul_u32_u24 v{t5}, 184, v{t5}',
                             f'v_sub_u32 v{t5}, v{vStg}, v{t5}'] + interleave(w2grp(0) + w2grp(1) + w2grp(2), SC2) + [f's_cmp_lg_u32 s{cw}, 0', 's_cbranch_scc1 L_st2']),
                   self.seq(w2grp(3)), self.seq(['L_st2:']), 1))
        xx = xdma(vC16=t3, tag='XBa') + xdma(XJ, 4 * XBSZ, vC16=t3)
        g0.append(stage3(A1, 0, 'W1', 'L_st1', (o.sigat, [WaitTag(vm_tags=['W2' if o.mrg else 'W3']), 's_barrier'] + self.stamp(2) + FX(0)[0])))
        g0.append(self.seq((xx if o.xat == 0 else xx[:len(xx) // 2] if o.xat == 3 else []) + (pfw(PFR) if o.pfw and o.pfs == 1 else []) + FX(0)[1] + (xx if o.xat == 2 else xx[:len(xx) // 2] if o.xat >= 4 else []) + self.stamp(13)
                           + [WaitTag(vm_tags=['W1']), 's_barrier'] + (xx if o.xat == 1 else xx[len(xx) // 2:] if o.xat == 3 else [])))

        def G0(w):
            r = []
            for x in g0:
                r += x if isinstance(x, list) else x[0] + (x[1] if w < (3 if len(x) == 3 else x[3]) else []) + x[2]
            return r

        def gather(dst, off):
            c = [f'v_add_u32 v{r}, {off}, v{r}' for r in (vGa, vGb)] if off else []
            for s2 in range(2):
                for e in range(0, 8, 2):
                    base = vGb if (s2 == 1 and e >= 2) else vGa
                    h = 16 * s2 + e
                    c.append(f'ds_read2st64_b32 {vr(dst + 8 * s2 + e, 2)}, v{base} offset0:{6 * h} offset1:{6 * h + 6}')
            return c

        def perms(g_, aj):
            return [f'v_perm_b32 v{aj + 8 * jj + r}, v{g_ + 2 * r + 1}, v{g_ + 2 * r}, s{S_U1 + jj}' for jj in range(2) for r in range(8)]

        def sout(t):
            d, c_ = DALL + 16 * t, DALL + 16 * t
            c = [f'v_cvt_pk_f16_f32 v{c_ + r}, v{d + 2 * r}, v{d + 2 * r + 1}' for r in range(8)]
            return c[:4] + [f'ds_write_b128 v{WA[t]}, {vr(c_, 4)}', f'v_xor_b32 v{WA[t]}, 16, v{WA[t]}'] + c[4:] + [f'ds_write_b128 v{WA[t]}, {vr(c_ + 4, 4)}']
        M1, M2 = 28, 28

        def pub1(r, off):
            c = [f'v_max_u32_dpp v{r}, v{r}, v{r} {ctl} row_mask:{rm} bank_mask:0xf' for ctl, rm in DPPS]
            return c + [('s_mov_b32 exec_lo, 0', 's_mov_b32 exec_hi, 0x80000000', f'ds_max_u32 v{vFR}, v{r} offset:{16 + off}', 's_mov_b64 exec, -1')]
        L = ['L_w2:'] + self.stamp(14) + self.probe('bw2') + gather(BALL, 0) + (pfw(PFR) if o.pfw and o.pfs == 2 else []) + (pfx_a() if o.pfx else [])
        cx = []
        if o.xg1:
            cc0 = self.seq(L + [f's_cmp_eq_u32 s{S_GRP}, 0', 's_cbranch_scc1 L_nx1'])
            cx = self.seq(xdma(XI, -4 * XBSZ) + xdma(XK))
            L = ['L_nx1:']
        else:
            cc0 = []
        L += [f's_cmp_ge_u32 s{S_WAVE}, 5', 's_cbranch_scc1 L_u0']
        cc = self.seq(L)
        M1, M2 = 28, 108
        fin2 = lambda: interleave(mxfin(M1), mxfin(M2)) + [tuple(x) if isinstance(x, list) else x for x in pub2(M1, M2, 0)[:7] + [pub2(M1, M2, 0)[7:]]]
        afr = [f'ds_read_b64_tr_b16 {vr(AFR + 4 * s2 + 2 * rd, 2)}, v{vA3} offset:{s2 * 1024 + rd * 256}' for s2 in range(2) for rd in range(2)]
        b1u = self.seq(gather(BALL + 32, 32) + bread(2, 0) + bread(3, 64) + afr + mxop(BALL, 16, M2, True) + perms(BALL, DALL + 64)[:8] + mxop(BALL + 32, 16, M2, False)
                       + mxop(BALL + 16, 16, M1, True) + perms(BALL, DALL + 64)[8:] + interleave(fin2(), perms(BALL + 32, BALL)) + ['s_branch L_u1'])
        L = ['L_u0:'] + bread(2, 0) + bread(3, 64) + bread(4, 384) + bread(5, 384 + 64) + afr + mxop(BALL, 16, M2, True) + mxop(BALL + 16, 32, M1, True)
        L += perms(BALL, DALL + 64)[:4] + interleave(fin2(), perms(BALL, DALL + 64)[4:])
        L += [f'v_add_u32 v{WA[4]}, {192 * 64}, v{WA[2]}', f'v_add_u32 v{WA[5]}, {192 * 64}, v{WA[3]}',
              f's_cmp_lg_u32 s{S_WAVE}, 7', 's_cbranch_scc1 L_u1', 's_mov_b32 exec_lo, 0xfffffff0', 's_mov_b32 exec_hi, 0xfffffff0', f'v_mov_b32 v{WA[5]}, {OOB}', 's_mov_b64 exec, -1']
        b1q = self.seq(L)
        MXR = 108
        vM = 58

        def ureads(j):
            return [f'ds_read_u16_d16_hi v{XR + 2 * j}, v{vXa} offset:{XOFF(2 * j)}',
                    f'ds_read_u16_d16_hi v{XR + 2 * j + 1}, v{vXa} offset:{XOFF(2 * j) + 2}']
        mx3 = lambda j: f'v_max3_f32 v{vM}, |v{XR + 2 * j}|, |v{XR + 2 * j + 1}|, {"0" if j == 0 else f"v{vM}"}'
        L = ['L_u1:'] + self.stamp(1) + [WaitTag(lgkm0=True), 's_barrier'] + self.stamp(7) + self.probe('b1')
        L += [f'ds_read_b128 {vr(MXR, 4)}, v{vFR} offset:16'] + (pfx_b() + pfx_a() if o.pfx and o.pf1 == 1 else [])
        hook = {}

        def mkhook(name, c0_, c1_):
            nonlocal L
            if not (c0_ or c1_):
                return
            pre_ = self.seq(L + [f's_cmp_lg_u32 s{S_GRP}, 0', f's_cbranch_scc1 L_{name}1'])
            a_ = self.seq(c0_ + [f's_branch L_{name}2'])
            b_ = self.seq([f'L_{name}1:'] + c1_)
            hook[name] = (pre_, a_, b_)
            L = [f'L_{name}2:']
        mkhook('hb', xdma(XJ, 4 * XBSZ) if o.xat == 5 else [], g1touch if o.g1t == 3 else [])
        L += [f's_mul_i32 s{S_T0}, s{S_WAVE}, 384', f'v_lshrrev_b32 v{t3}, 2, v0', f'v_mul_u32_u24 v{t3}, 24, v{t3}', f'v_add_u32 v{t3}, s{S_T0}, v{t3}',
              f'v_and_b32 v{t4}, 3, v0', f'v_lshlrev_b32 v{t4}, 3, v{t4}']
        L += [f'ds_read_b64 {vr(UA + 2 * n_, 2)}, v{t3} offset:{TC_ + 8 * n_}' for n_ in range(3)]
        q1 = [f'v_add_u32 v{MXR}, {127 << 23:#x}, v{MXR}', f'v_lshrrev_b32 v{MXR}, 24, v{MXR}', f'v_sub_u32 v{MXR}, 267, v{MXR}', f'v_min_u32 v{MXR}, 167, v{MXR}',
              f'v_readfirstlane_b32 s{S_F1}, v{MXR}', f'v_mul_u32_u24 v{MXR}, 0x800080, v{MXR}']
        sc = [f'v_add_u32 v{MXR + 1}, {127 << 23:#x}, v{MXR + 1}', f'v_lshrrev_b32 v{MXR + 1}, 24, v{MXR + 1}',
              's_mov_b32 vcc_lo, 0x4000000', 's_mov_b32 vcc_hi, 0x4000000', f'v_cndmask_b32 v{vS}, v{MXR + 2}, v{MXR + 3}, vcc', f'v_lshrrev_b32 v{vS}, 23, v{vS}',
              f'v_add_u32 v{vS}, v{vS}, v{MXR + 1}', f'v_sub_u32 v{vS}, 388, v{vS}', f's_movk_i32 s{S_U0}, 167', f'v_med3_i32 v{vS}, v{vS}, 1, s{S_U0}',
              f'v_subrev_u32 v{MXR + 2}, 127, v{vS}', f'v_lshlrev_b32 v{vS}, 23, v{vS}', f'v_cmp_gt_i32 vcc, 0, v{MXR + 2}',
              f'v_mul_u32_u24 v{MXR + 2}, 0x800080, v{MXR + 2}']
        mq = mm2(DALL + 32, PM, BALL + 16) + mm2(DALL + 48, PM, BALL + 24)
        L += interleave(q1, sc[:6]) + [f'v_and_b32 v{PM + r}, v{PM + r}, v{MXR}' for r in range(8)] + interleave([mq[0], mq[2], mq[1], mq[3]], sc[6:]) + ['s_cbranch_vccnz L_sdown']
        L += [f'v_add_u32 v{AFR + r}, v{AFR + r}, v{MXR + 2}' for r in range(8)]
        u1a = self.seq(L)
        L = ['L_scaled:'] + interleave(mm2(DALL, DALL + 64, AFR) + mm2(DALL + 16, DALL + 72, AFR), sout(2) + sout(3))
        L += [f's_cmp_ge_u32 s{S_WAVE}, 5', 's_cbranch_scc1 L_u2']
        u1 = self.seq(L)
        u2u = self.seq(interleave(mm2(DALL + 64, BALL, AFR) + mm2(DALL + 80, BALL + 8, AFR), sout(0)) + ['s_branch L_u3'])
        u2q = self.seq(['L_u2:'] + interleave(mm2(DALL + 64, PM, BALL + 32) + mm2(DALL + 80, PM, BALL + 40), sout(0)))
        L = ['L_u3:'] + xidx() + xidx(112) + (pfx_b() + pfx_a() if o.pfx and o.pf1 == 2 else [])
        mkhook('hu', xdma(XJ, 4 * XBSZ) if o.xat == 4 else [], g1touch if o.g1t == 4 else [])
        L += interleave(sout(1) + sout(4) + sout(5), [x for n_ in range(6) for x in (f'v_xor_b32 v{UA + n_}, v{UA + n_}, v{t4}', f'v_xor_b32 v{UX[n_]}, 32, v{UA + n_}')])
        L += [f'v_readlane_b32 s{S_CG}, v{vS}, 0', f'v_readlane_b32 s{S_IV}, v{vS}, 26',
              f's_sub_u32 s{S_F2}, {254 << 23:#x}, s{S_CG}', f's_sub_u32 s{S_IV}, {254 << 23:#x}, s{S_IV}',
              f's_sub_u32 s{S_F1}, 254, s{S_F1}', f's_lshl_b32 s{S_F1}, s{S_F1}, 23',
              f's_mov_b32 s{S_MASK}, 0x88888888', f's_mov_b32 s{S_MASK + 1}, 0x88888888']

        def sigma(s_):
            t = (s_ - 1) // 2
            first = (s_ - 1) % 2 == 0
            return (0 if first else 1) if t % 2 == 0 else (1 if first else 0)
        for s_ in range(1, 11):
            assert ((s_ - 1) // 2) * 1024 + sigma(s_) * 512 - (s_ // 4) * 2048 == (-1024, 0, 512, 1536)[s_ % 4]

        def p2read(n_):
            b = BALL + 16 * n_
            c = []
            UAl = list(range(UA, UA + 6))
            for x, (ar, off) in enumerate(((UAl, 0), (UX, 0), (UAl, SSZ), (UX, SSZ))):
                for y in range(2):
                    c.append(f'ds_read_b64_tr_b16 {vr(b + 4 * x + 2 * y, 2)}, v{ar[2 * n_ + y]} offset:{off}')
            return c

        def p2a(n_):
            b = BALL + 16 * n_
            c = []
            for x in range(4):
                c += [f'v_pk_add_f16 v{b + 4 * x + y}, v{b + 4 * x + y}, v{b + 4 * x + 2 + y}' for y in range(2)]
                if x in (0, 2):
                    c.append(f'ds_write_b64 v{vFw}, {vr(b + 4 * x, 2)} offset:{FR + n_ * 4 * 3072 + x * 1024}')
            c += [f'v_cndmask_b32 v{b + 4 + y}, v{b + 4 + y}, v{b + 12 + y}, s[{S_MASK}:{S_MASK + 1}]' for y in range(2)]
            c.append(f'ds_write_b64 v{vFw}, {vr(b + 4, 2)} offset:{FR + n_ * 4 * 3072 + 1024}')
            return c

        def p2s(n_):
            b = BALL + 16 * n_ + 12
            off = FRS + max(n_ * 2048 - 1024, 0)
            return ([f'v_subrev_u32 v{vT3}, 1024, v{vT3}'] if n_ == 0 else []) + [
                f'ds_write_b32 v{vT3}, v{b} offset:{off}', f'ds_write_b32 v{vT3}, v{b + 1} offset:{off + 16}']
        ec = []
        if o.econv:
            L += [f's_cmp_lg_u32 s{S_GRP}, 0', 's_cbranch_scc1 L_noec']
            u3 = self.seq(L)
            ec = self.seq([WaitTag(vm_tags=['XBa'])] + [x for j in range(13) for x in ureads(j)])
            L = ['L_noec:']
        else:
            u3 = []
        L += [WaitTag(vm_tags=['XB'] if o.xg1 else [], lgkm0=True), 's_barrier'] + self.stamp(10)
        L += p2read(0) + p2read(1) + [f's_cmp_ge_u32 s{S_WAVE}, 6', 's_cbranch_scc1 L_lin']
        b2 = self.seq(L)
        p2c = self.seq(p2read(2) + p2a(2) + p2s(2) + ['s_branch L_p2'])
        LB = BALL + 32
        ZR4 = t5
        L = ['L_lin:', f's_and_b32 s{S_U0}, s{S_WAVE}, 1', f's_cselect_b64 vcc, -1, 0', f's_lshl_b32 s{S_U1}, s{S_U0}, 5', f'v_mov_b32 v{ZR4}, 0',
             f'v_xor_b32 v{vV2r}, s{S_U1}, v{vV2r}', f'v_xor_b32 v{vV2q}, s{S_U1}, v{vV2q}', f'v_cndmask_b32 v{vWo}, v{vWo}, v{vWo + 1}, vcc',
             f'ds_read_b64_tr_b16 {vr(LB, 2)}, v{vV2r}', f'ds_read_b64_tr_b16 {vr(LB + 2, 2)}, v{vV2q}',
             f'ds_read_u16_d16_hi v{ZR4}, v{vWo}',
             f's_lshl_b32 s{S_U0}, s{S_U0}, 10', f'v_add_u32 v{t3}, s{S_U0}, v{vStg}']
        for r in range(4):
            a_, b_ = LB + 4 + 2 * r, LB + 5 + 2 * r
            L += [f'v_cvt_f32_f16 v{a_}, v{LB + r}', f'v_cvt_f32_f16_sdwa v{b_}, v{LB + r} dst_sel:DWORD dst_unused:UNUSED_PAD src0_sel:WORD_1',
                  f'v_mul_f32 v{a_}, s{S_IV}, v{a_}', f'v_mul_f32 v{b_}, s{S_IV}, v{b_}']
            if r == 3:
                L += ['s_mov_b32 exec_lo, 0', 's_mov_b32 exec_hi, 0xffff', f'v_mov_b32 v{a_}, v{ZR4}', 's_mov_b64 exec, -1']
            L += [f'v_mul_f32 v{a_}, s{S_CG}, v{a_}', f'v_mul_f32 v{b_}, s{S_CG}, v{b_}', f'v_cvt_pk_bf16_f32 v{LB + r}, v{a_}, v{b_}']
        L += [f'ds_write_b128 v{t3}, {vr(LB, 4)} offset:{FRL}']
        lin = self.seq(L)
        p2 = self.seq(['L_p2:'] + p2a(1) + p2s(1) + p2a(0) + [f's_cmp_lt_u32 s{S_WAVE}, 2', 's_cbranch_scc1 L_p2d'])
        p2e = self.seq(p2s(0) + ['s_branch L_built'])
        p2d = self.seq(['L_p2d:', f'ds_write_b64 v{vT3d}, {vr(BALL + 12, 2)} offset:{FRS + 5 * 1024}'])

        L = ['L_sdown:']
        for r in range(8):
            L += [f'v_lshlrev_b32 v{MXR}, 16, v{AFR + r}', f'v_and_b32 v{MXR + 1}, 0xffff0000, v{AFR + r}',
                  f'v_mul_f32 v{MXR}, v{MXR}, v{vS}', f'v_mul_f32 v{MXR + 1}, v{MXR + 1}, v{vS}', f'v_cvt_pk_bf16_f32 v{AFR + r}, v{MXR}, v{MXR + 1}']
        self.sdown = L + ['s_branch L_scaled']

        HK = lambda n_, g_: hook[n_][0] + hook[n_][1 + g_] if n_ in hook else []

        def PRE(w, sd=None):
            grp = w >> 2
            return (c0 + (g1s + (g1t if w < 6 else []) if grp else []) + csc + (v3h + v3p + v3 if grp else G0(w)) + cc0 + (cx if grp else []) + cc + (b1q if w >= 5 else b1u)
                    + HK('hb', grp) + (u1a if sd is None else u1a[:-8] + sd) + u1 + (u2q if w >= 5 else u2u) + HK('hu', grp) + u3 + ([] if grp else ec) + b2
                    + (lin if w >= 6 else p2c) + p2 + (p2d if w < 2 else p2e))
        L = ['L_built:'] + self.stamp(11)
        L += [f's_mov_b32 s{S_CG}, s{S_F1}', f's_mov_b32 s{S_IV}, s{S_F2}', f's_mov_b32 s{S_LO}, {f32hex(0.125)}', f's_mov_b32 s{S_HI}, {f32hex(0.0 if o.slow else 128.0)}']
        CV, vM, S_XD = 28, 58, 81

        def ureads(j):
            return [f'ds_read_u16_d16_hi v{XR + 2 * j}, v{vXa} offset:{XOFF(2 * j)}',
                    f'ds_read_u16_d16_hi v{XR + 2 * j + 1}, v{vXa} offset:{XOFF(2 * j) + 2}']
        mx3 = lambda j: f'v_max3_f32 v{vM}, |v{XR + 2 * j}|, |v{XR + 2 * j + 1}|, {"0" if j == 0 else f"v{vM}"}'
        cvt = lambda j: f'v_cvt_pk_f16_f32 v{CV + j % 4}, v{XR + 2 * j}, v{XR + 2 * j + 1}'
        iwr = lambda j: f'ds_write_b32 v{vIw}, v{CV + j % 4} offset:{j * IMGP}'
        S_SKIP = 51
        pfr = lambda: (pfx_b() + pfx_a() if o.pfx else []) + (pfw() if o.pfw == 1 else [])
        conv = lambda tag='XB': ([WaitTag(vm_tags=[tag])] + [x for j in range(13) for x in ureads(j)]
                        + [x for j in range(13) for x in (mx3(j), f'v_cvt_pk_f16_f32 v{D + j}, v{XR + 2 * j}, v{XR + 2 * j + 1}')])
        L += [f's_mov_b32 s{S_SKIP}, 1', f's_mul_i32 s{S_U0}, s{S_WAVE}, 1536', f's_add_u32 s{S_U0}, s{S_U0}, {PART}',
              f's_cmp_lg_u32 s{S_GRP}, 0', 's_cbranch_scc1 L_g1c']
        c2a = self.seq(L)
        c2g0 = self.seq([f's_sub_u32 s{S_SAMP}, s{S_SAMP}, {4 * 104}', Touch('v[112:115]')] + (conv('XBa')[27:] if o.econv else conv('XBa')) + [WaitTag(lgkm0=True), 's_barrier'] + self.probe('b4a') + self.stamp(8) + ['s_branch L_cin_go'])
        DX = XB2 - XB - 4 * XBSZ
        L = ['L_g1c:', WaitTag(vm_tags=['XB'], lgkm0=True), 's_barrier'] + self.stamp(8) + self.probe('b4')
        L += [f's_add_u32 s{S_XM0}, s{S_XM0}, {DX}'] + xdma(tag='XB0') + xdma(112, 4 * XBSZ) + xidx() + pfr() + [f'v_add_u32 v{r}, {DX}, v{r}' for r in (vXa, vLin0, vLin1)]
        L += [f'ds_write_b32 v{vXa}, v{vXi1} offset:{XOFF(26)}', f'ds_write_b32 v{vXa}, v{vXi1} offset:{XOFF(26) + 4 * XBSZ}']
        c2g1 = self.seq(L)
        c2b = []
        c2g1d = self.seq(['L_g1d:'] + conv('XB0'))
        c2c = self.seq(['L_cin_go:'] + [f'ds_write_b32 v{vIw}, v{D + j} offset:{j * IMGP}' for j in range(13)]
                       + [f's_mov_b32 s{S_XD}, {4 * XBSZ}', f's_add_u32 s{S_XM0}, s{S_XM0}, {4 * XBSZ}',
                          f'v_lshlrev_b32 v{vXi1}, 2, v0', f'v_add_u32 v{vXi1}, s{S_U0}, v{vXi1}'])

        NWF = 5
        PF = o.cpfd
        zslot = lambda s_: 1 if s_ % 2 == 0 else (0 if ((s_ - 1) // 2) % 2 == 0 else 2)
        zr = lambda T, sl: Z + 12 * T + 4 * sl
        preg = lambda T, r: P + 14 * T + (r if r < 14 else r - 14)
        acc = lambda T, tile: D + 16 * T + 4 * tile
        jobs = [('l', 0, 0), ('l', 0, 1)]
        for s_ in range(11):
            jobs += [('d', s_, 2), ('d', s_, 0), ('d', s_, 1)]
            if s_ == 0:
                jobs.append(('d', 0, 3))
            elif s_ % 2 == 0:
                jobs.append(('s', s_, 3))
        NJ = len(jobs)
        assert NJ == 41

        RES = [12, 28, 248, 252][:o.res]
        wreg = lambda n: RES[n] if n < len(RES) else WF + 4 * (n % NWF)

        def wread(n):
            kind, s_, tile = jobs[n]
            off = FRL + tile * 1024 if kind == 'l' else (FR + s_ * 3072 + tile * 1024 if tile < 3 else FRS + (5 if s_ == 0 else (s_ - 1) // 2) * 1024)
            return f'ds_read_b128 {vr(wreg(n), 4)}, v{vFa} offset:{off}'

        def mfma(n, T):
            kind, s_, tile = jobs[n]
            a = vr(wreg(n), 4)
            d = vr(acc(T, tile), 4)
            if kind == 'l':
                return f'v_mfma_f32_16x16x32_bf16 {d}, {a}, {vr(zr(T, 2), 4)}, 0'
            if kind == 's':
                lo = 0 if ((s_ - 1) // 2) % 2 == 0 else 1
                return f'v_smfmac_f32_16x16x64_f16 {d}, {a}, {vr(zr(T, lo), 8)}, v{vIDX}'
            return f'v_mfma_f32_16x16x32_f16 {d}, {a}, {vr(zr(T, zslot(s_)), 4)}, {"0" if (s_ == 0 and tile >= 2) else d}'

        def pk(T, n):
            a, b, s0, s1 = cin16.INS[n]
            return (f'v_pk_mul_f16 v{zr(T, zslot(n // 4)) + n % 4}, v{preg(T, a)}, v{preg(T, b)} '
                    f'op_sel:[{s0[0]},{s0[1]}] op_sel_hi:[{s1[0]},{s1[1]}]')

        def trp(T, rp):
            return f'ds_read_b64_tr_b16 {vr(preg(T, 2 * rp), 2)}, v{vTR + rp} offset:{32 * T}'

        LASTA = max(n for n, x in enumerate(cin16.INS) if x[0] < 2)
        S_A1, S_A2, S_PINC = 49, 50, 48
        fin = []
        for T in range(4):
            fin += [(acc(T, 0) + r, acc(T, 2) + r) for r in range(4)] + [(acc(T, 1), acc(T, 1) + 3)]
        for T in range(4):
            fin += [(acc(T, 1) + 1 + (r >> 1), acc(T, 3) + r) for r in range(4)]

        def final(f1, f2):
            c = []
            for k, (a, b) in enumerate(fin):
                d = Z + k % 4
                c.append(f'v_mul_f32 v{d}, v{a}, v{b}' if k < 4 else f'v_fmac_f32 v{d}, v{a}, v{b}')
            c += [f'v_add_f32 v{Z}, v{Z}, v{Z + 1}', f'v_add_f32 v{Z + 2}, v{Z + 2}, v{Z + 3}', f'v_add_f32 v{Z}, v{Z}, v{Z + 2}']
            c += [f'v_mul_f32 v{Z}, s{x}, v{Z}' for x in (f1, f2)]
            return c + [f'ds_write_b32 v{vXi1}, v{Z}']
        code = ['L_cin_loop:', f'v_cmp_le_f32 s[{S_CM}:{S_CM + 1}], s{S_HI}, v{vM}', f'v_cmp_le_f32 vcc, s{S_LO}, v{vM}',
                f's_mov_b32 s{S_A1}, s{S_F1}', f's_mov_b32 s{S_A2}, s{S_F2}',
                f's_cmp_lg_u64 s[{S_CM}:{S_CM + 1}], 0', 's_cbranch_scc1 L_cslow', 's_cbranch_vccz L_cslow']
        cA = self.seq(code)
        RD = []
        for rp in (0, 3, 4):
            RD += [trp(T, rp) for T in range(4)]
        for T in range(4):
            RD += [f'ds_read_b64_tr_b16 {vr(zr(T, 2), 2)}, v{vLin0} offset:{32 * T}', f'ds_read_b64_tr_b16 {vr(zr(T, 2) + 2, 2)}, v{vLin1} offset:{32 * T}']
        RD += [wread(k) for k in range(PF)]
        for rp in (5, 6, 1, 2):
            RD += [trp(T, rp) for T in range(4)]
        pfr = lambda: (pfx_b() + pfx_a() if o.pfx else []) + (pfw() if o.pfw == 1 else [])
        vm = xdma() + xidx() + pfr()
        VA = final(S_A1, S_A2) + [f'v_add_u32 v{vXi1}, 256, v{vXi1}']
        PK0 = [pk(T, n) for T in range(4) for n in range(4)]
        TG = [f'v_add_u32 v{r}, s{S_XD}, v{r}' for r in (vXa, vLin0, vLin1)] + [f's_sub_u32 s{S_XM0}, s{S_XM0}, s{S_XD}', f's_sub_u32 s{S_XD}, 0, s{S_XD}', f's_mov_b32 s{S_SKIP}, 0']
        cB0 = self.seq(['L_cconv:', f's_cmp_lg_u32 s{S_SKIP}, 0', 's_cbranch_scc1 L_first'])
        cVM = self.seq(interleave([x for x in RD if x not in [wread(k) for k in range(len(RES))]], VA) + PK0 + vm)
        self.first = ['L_first:'] + RD[:28] + interleave(RD[28:], PK0) + ['s_branch L_novm']
        code = ['L_novm:'] + TG
        LA = 1
        def lstamp(base):
            if not (o.stamps and o.cst):
                return []
            return [f's_memtime s[{S_ST}:{S_ST + 1}]', f's_memrealtime s[{S_ST + 2}:{S_ST + 3}]', f's_sub_u32 s{S_C0}, {base + 6}, s{S_LOOP}', 's_waitcnt lgkmcnt(0)',
                    f's_mov_b32 m0, s{S_C0}', f'v_writelane_b32 v252, s{S_ST}, m0', f'v_writelane_b32 v253, s{S_ST + 2}, m0']
        code += lstamp(19)
        code += [Touch(vr(wreg(0), 4)), Touch(vr(zr(3, 2), 4))] + ([f's_cmp_eq_u32 s{S_GRP}, 0', 's_cbranch_scc1 L_np1', 's_setprio 1', 'L_np1:'] if o.gprio else ['s_setprio 1'])
        MS = []
        for n in range(NJ):
            pos = [i_ for i_ in range(n + 1) if jobs[i_][1] == jobs[n][1] and (jobs[i_][0] == 'l') == (jobs[n][0] == 'l')].index(n)
            last = jobs[n][2] == 3 or (n + 1 < NJ and jobs[n + 1][1] != jobs[n][1])
            MS += [(n, 3 - T if (o.csn and pos == 1) else T) for T in range(4)]
        first_use, last_use = {}, {}
        for mi, (n, T) in enumerate(MS):
            kind, s_, tile = jobs[n]
            if kind == 'l':
                last_use[(T, 'lin')] = mi
                continue
            for su in ([s_] if kind == 'd' else [s_ - 1, s_]):
                first_use.setdefault((T, su), mi)
                last_use[(T, su)] = mi
        V = []
        for s_ in range(LA, 11):
            prev = [p_ for p_ in range(s_) if zslot(p_) == zslot(s_)]
            for T in range(4):
                rdy = last_use[(T, prev[-1])] + o.war if prev else (last_use[(T, 'lin')] if zslot(s_) == 2 else -1)
                for n in range(4 * s_, 4 * s_ + 4):
                    V.append((pk(T, n), rdy, first_use[(T, s_)], n, T))
        forced = 0
        late = []
        XL_ = [x for j in range(13) for x in ureads(j)]
        xrd = {}
        CVR = [preg(T, r) for r in (2, 3, 6, 7) for T in range(4)]
        cvrdy = max(n for n, x in enumerate(cin16.INS) if set(x[:2]) & {2, 3, 6, 7})
        cvt2 = lambda j: f'v_cvt_pk_f16_f32 v{CVR[j]}, v{XR + 2 * j}, v{XR + 2 * j + 1}'
        iwr2 = lambda j: f'ds_write_b32 v{vIw}, v{CVR[j]} offset:{j * IMGP}'
        nm = nc = nw = 0
        V.sort(key=lambda x: x[2])
        prev2 = 0
        for mi, (n, T) in enumerate(MS):
            while V and V[0][2] <= mi:
                assert V[0][1] < mi
                code.append(V.pop(0)[0]); forced += 1
            code.append(mfma(n, T))
            T = mi % 4
            t = 4
            if o.cbar and mi == len(MS) - 1 - o.cbov:
                code += ['s_setprio 3', 's_barrier']; t += 8
            if not o.cbar and mi == 4 * o.hiat - 2:
                code.append('s_setprio 2'); t += 4
            if T == 3 and n + 1 < NJ:
                code.append(Touch(vr(wreg(n + 1), 4))); t += 4
            if T == 0 and n + PF < NJ:
                code.append(wread(n + PF)); t += 8
            elif T in (1, 2) and late:
                code.append(late.pop(0)); t += 8
            elif T in (1, 2) and mi >= o.x0 and XL_:
                if len(XL_) == 26:
                    code.append(WaitTag(vm_tags=['XB']))
                code.append(XL_.pop(0)); t += 8
                if len(XL_) % 2 == 0:
                    xrd[12 - len(XL_) // 2] = mi
            elif not V and nw < nc and t == 4:
                code.append(iwr2(nw)); nw += 1; t += 12
            t = max(t, 12 if jobs[n][0] == 's' else 8)
            k = 0
            while t < 16:
                urgent = any(V[q_][2] - 1 - mi < q_ + 1 for q_ in range(min(24, len(V))))
                if k == 1 and prev2 >= o.max2 and not urgent:
                    break
                cand = [x for x in V[:32] if x[1] <= mi]
                extra = None
                if nm < 13 and nm in xrd and xrd[nm] + o.xlat <= mi:
                    extra = 'm'
                elif nc < nm and all(x[3] > cvrdy for x in V):
                    extra = 'c'
                if cand and (k == 0 or urgent or not extra) and (k == 0 or urgent or o.eager):
                    x = cand[0]
                    V.remove(x)
                    code.append(x[0])
                    if x[3] <= LASTA and all(y[3] > LASTA for y in V if y[4] == x[4]):
                        late.append(trp(x[4], 7))
                elif extra == 'm':
                    code.append(mx3(nm)); nm += 1
                elif extra == 'c':
                    code.append(cvt2(nc)); nc += 1
                else:
                    break
                t += 4; k += 1
            prev2 = prev2 + 1 if k == 2 else 0
        assert not late and not XL_ and not V
        print('left', 13 - nm, 13 - nc, 13 - nw)
        tail = [mx3(j) for j in range(nm, 13)] + [cvt2(j) for j in range(nc, 13)] + [iwr2(j) for j in range(nw, 13)]
        print('forced VALU', forced)
        code += lstamp(25)
        code.append(f's_setprio {o.p0}')
        code += [f's_sub_u32 s{S_LOOP}, s{S_LOOP}, 1', f's_cmp_eq_u32 s{S_LOOP}, 0', 's_cbranch_scc1 L_cin_done'] + tail
        ntail = len(tail) + 1
        def keep(x):
            t_ = x.text if isinstance(x, I) else x
            if isinstance(t_, tuple):
                return True
            if 'nopk' in o.dbg and t_.startswith('v_pk_mul_f16'):
                return False
            if 'nowf' in o.dbg and t_.startswith('ds_read_b128'):
                return False
            if 'nosm' in o.dbg and t_.startswith('v_smfmac'):
                return False
            return True
        code = [x for x in code if keep(x)]
        if 'bf' in o.dbg:
            code = [x.replace('x32_f16', 'x32_bf16').replace('x64_f16', 'x64_bf16') if isinstance(x, str) else x for x in code]
        cB = self.seq(code + ['s_branch L_cin_loop'])
        mark0 = len(self.P.static)
        bl = []
        if o.burn:
            bl = [f's_movk_i32 s{S_LOOP}, {o.burn // 2}', 'L_burn2:'] + [f'v_mfma_f32_16x16x32_f16 {vr(P + 4 * (k % 2), 4)}, {vr(WF + 4 * (k % 4), 4)}, {vr(Z + 4 * (k // 4), 4)}, 0' for k in range(32)]
            bl += [f's_sub_u32 s{S_LOOP}, s{S_LOOP}, 1', f's_cmp_lg_u32 s{S_LOOP}, 0', 's_cbranch_scc1 L_burn2']
        L = ['L_cin_done:', f's_mul_i32 s{S_U0}, s{S_WAVE}, 1536', f's_add_u32 s{S_U0}, s{S_U0}, {PART}',
             f'v_lshlrev_b32 v{Z + 4}, 5, v0', f'v_add_u32 v{Z + 4}, s{S_U0}, v{Z + 4}',
             f'ds_read_b128 {vr(P, 4)}, v{Z + 4}', f'ds_read_b128 {vr(P + 4, 4)}, v{Z + 4} offset:16'] + bl + final(S_F1, S_F2)[:-1]
        E = [f'v_subrev_u32 v{Z + 6}, s{S_U0}, v{vXi1}', f'v_lshrrev_b32 v{Z + 6}, 8, v{Z + 6}', f'v_lshrrev_b32 v{Z + 5}, 3, v0', f'v_cmp_gt_u32 vcc, v{Z + 6}, v{Z + 5}',
             f'v_min_u32 v{Z + 5}, v{Z + 5}, v{Z + 6}', f'v_lshlrev_b32 v{Z + 5}, 4, v{Z + 5}', f'v_add_u32 v{Z + 5}, s{S_RC}, v{Z + 5}',
             ] + [f'v_add_f32 v{P + a_}, v{P + a_}, v{P + b_}' for a_, b_ in ((0, 1), (2, 3), (4, 5), (6, 7), (0, 2), (4, 6), (0, 4))]
        E += [f'v_add_f32_dpp v{P}, v{P}, v{P} {ctl} row_mask:0xf bank_mask:0xf' for ctl in ('quad_perm:[1,0,3,2]', 'quad_perm:[2,3,0,1]', 'row_half_mirror')]
        L += interleave([f'v_add_f32_dpp v{Z}, v{Z}, v{Z} {ctl} row_mask:{rm} bank_mask:0xf' for ctl, rm in DPPS], E)
        L += [f'v_cndmask_b32 v{P}, v{Z}, v{P}, vcc', 's_bitset1_b32 vcc_hi, 31', 's_mov_b64 exec, vcc', f'ds_write_b32 v{Z + 5}, v{P}', 's_mov_b64 exec, -1']
        L += self.stamp(9) + self.stamp_flush() + self.probe('cend') + [f's_cmp_eq_u32 s{S_WAVE}, 0', 's_cbranch_scc1 L_cpub', 's_waitcnt lgkmcnt(0)', 's_barrier', 's_endpgm',
              'L_cpub:', f's_load_dword s{S_BOUT}, s[{S_BO}:{S_BO + 1}], 0'] + self.pubsrd() + (self.pst() if o.skew and o.probe == 'span' else []) + [
              'v_lshlrev_b32 v6, 2, v0', f'v_add_u32 v2, {RC}, v6', 'v_add_u32 v4, 1024, v6',
              f's_mul_i32 s{S_T1}, s{S_MB}, 192', f's_add_u32 s{S_T1}, s{S_T1}, {13 * WSP}',
              'v_mov_b32 v13, -1', 's_mov_b32 exec_hi, 0xffff', f'buffer_store_dword v13, v6, {srd(SRD_WS)}, s{S_T1} offen sc1', 's_mov_b64 exec, 1',
              f'buffer_load_dword v250, v6, {srd(SRD_OUT)}, 0 offen', f'buffer_load_dword v251, v6, {srd(SRD_DBG)}, 0 offen offset:128 sc1', 's_mov_b64 exec, -1',
              f's_mul_i32 s{S_T0}, s{S_MB}, 3', f's_mul_i32 s{S_T2}, s{S_T0}, 3277', f's_lshr_b32 s{S_T2}, s{S_T2}, 16',
              f'v_add_u32 v7, s{S_T2}, v0', f's_mul_i32 s{S_T2}, s{S_T2}, 20', f's_add_u32 s{S_T2}, s{S_T2}, 20',
              f's_sub_u32 s{S_T2}, s{S_T2}, s{S_T0}', f's_min_u32 s{S_T2}, s{S_T2}, 3', f's_sub_u32 s{S_T0}, 3, s{S_T2}',
              f'v_mov_b32 v5, s{S_T0}', f'v_writelane_b32 v5, s{S_T2}, 0',
              f's_cmp_eq_u32 s{S_T0}, 0', f's_cselect_b32 s{S_T0}, 1, 3',
              'v_lshlrev_b32 v3, 4, v0'] + (['s_mov_b64 exec, 0', 's_branch L_pw0', 'L_pwc:'] if o.pwalk else []) + ['s_waitcnt vmcnt(0) lgkmcnt(0)'] + (self.cready('c', 251) if o.wsc else []) + ['s_mov_b32 exec_hi, 0xffff', 's_barrier'] + self.probe('cend2') + ['ds_read_b32 v64, v2']
        L += (self.stamp(16) if o.diag else [])
        L += ['v_min_u32 v64, -2, v64'] if o.sent else []
        L += [f'buffer_store_dword v64, v6, {srd(SRD_WS)}, s{S_T1} offen sc1', f's_mov_b32 exec_lo, s{S_T0}', 's_mov_b32 exec_hi, 0', 's_branch L_pub']
        fin_ = self.seq(L)
        blk = self.P.static[mark0:]
        del self.P.static[mark0:]
        at = self.P.static.index(self.pub[-1]) + 1
        self.P.static[at:at] = blk + self.ldblk
        L = ['L_cslow:']
        for (ctl, rm) in (('row_shr:1', '0xf'), ('row_shr:2', '0xf'), ('row_shr:4', '0xf'), ('row_shr:8', '0xf'),
                          ('row_bcast:15', '0xa'), ('row_bcast:31', '0xc')):
            L.append(f'v_max_f32_dpp v{vM}, v{vM}, v{vM} {ctl} row_mask:{rm} bank_mask:0xf')
        L += [f'v_readlane_b32 s{S_U0}, v{vM}, 63', f's_mov_b32 s{S_HI}, 0',
              f's_lshr_b32 s{S_U0}, s{S_U0}, 23', f's_min_u32 s{S_U0}, s{S_U0}, {127 + 55}',
              f's_lshr_b32 s{S_U1}, s{S_IV}, 23', f's_sub_u32 s{S_U1}, s{S_U1}, 47', f's_lshr_b32 s{S_U1}, s{S_U1}, 1', f's_min_u32 s{S_U1}, s{S_U1}, 59',
              f's_sub_u32 s{S_U1}, 131, s{S_U1}', f's_max_u32 s{S_U0}, s{S_U0}, s{S_U1}',
              f's_sub_u32 s{S_U1}, {127 + 4 + 127}, s{S_U0}',
              f's_lshl_b32 s{S_U2}, s{S_U1}, 1', f's_sub_u32 s{S_U2}, s{S_U2}, 127',
              f's_sub_u32 s{S_G}, 254, s{S_U2}', f's_lshl_b32 s{S_G}, s{S_G}, 23',
              f'v_mov_b32 v{P}, s{S_G}', f'v_mul_f32 v{P + 1}, s{S_CG}, v{P}', f'v_mul_f32 v{P}, s{S_IV}, v{P}',
              f'v_readfirstlane_b32 s{S_F1}, v{P + 1}', f'v_readfirstlane_b32 s{S_F2}, v{P}',
              f's_lshl_b32 s{S_U1}, s{S_U1}, 23', f's_lshl_b32 s{S_U2}, s{S_U2}, 23']
        TS = P
        for j in range(13):
            L += [f'v_mul_f32 v{TS}, s{S_U1}, v{XR + 2 * j}', f'v_mul_f32 v{TS + 1}, s{S_U1}, v{XR + 2 * j + 1}',
                  f'v_mul_f32 v{TS + 2}, s{S_U2}, v{XR + 2 * j}', f'v_mul_f32 v{TS + 3}, s{S_U2}, v{XR + 2 * j + 1}',
                  f'v_cvt_pk_f16_f32 v{TS + 20 + j}, v{TS}, v{TS + 1}', f'v_cvt_pk_bf16_f32 v{TS + 4 + j}, v{TS + 2}, v{TS + 3}',
                  f'ds_write_b32 v{vIw}, v{TS + 20 + j} offset:{j * IMGP}', f'ds_write_b32 v{vXa}, v{TS + 4 + j} offset:{XOFF(2 * j)}']
        L += [f'v_mov_b32 v{TS}, s{S_U2}', f'v_cvt_pk_bf16_f32 v{TS}, v{TS}, v{TS}',
              's_mov_b32 exec_hi, 0', f'ds_write_b32 v{vXa}, v{TS} offset:{XOFF(26)}', 's_mov_b32 exec_hi, -1',
              's_waitcnt lgkmcnt(0)', 's_branch L_cconv']
        slow = self.seq(L)
        sdown = self.seq(self.sdown)
        cF = self.seq(self.first)
        traces = []
        for w in range(8):
            grp = w >> 2
            c2 = c2a + (c2g1 + (c2b if w == 4 else []) + c2g1d if grp else c2g0) + c2c
            it = lambda sl, first: cA + (slow if sl else []) + cB0 + (cF if first else cVM) + cB
            traces.append(PRE(w) + c2 + it(0, 1) + it(0, 0) + it(0, 0)[:-ntail] + fin_ + self.pub)
            if w in (0, 4):
                traces.append(PRE(w, sdown) + c2 + it(1, 1) + it(1, 0)[:-ntail] + fin_ + self.pub)
        return traces

    def build(self):
        pro = self.prologue()
        d = self.dnn()
        cs = self.cin()
        if self.opt.wsc:
            self.extra_traces.append(self.seq(self.late))
            self.extra_traces.append(self.seq(['L_spare:', f's_cmp_lg_u32 s{S_WAVE}, 0', 's_cbranch_scc1 L_end', 's_waitcnt lgkmcnt(0)'] + self.pubsrd() + self.cinit('s', 'L_end')))
        self.seq(['L_end:', 's_endpgm'])
        traces = [pro + c for c in d + cs] + self.extra_traces
        for t in traces:
            resolve_waits(t)
        for _ in range(2):
            for t in traces:
                resolve_hazards(t)
        hdr = open(os.path.join(os.path.dirname(os.path.abspath(__file__)), 'header.txt')).read()
        txt = hdr + f'; @launch grid=(256,1,1) block=(512,1,1) lds={LDS_TOTAL}\n'
        txt += f'''.amdgcn_target "amdgcn-amd-amdhsa--gfx950"
{DOC}.text
.globl {KNAME}
.p2align 8
.type {KNAME},@function
{KNAME}:
'''
        body_ = self.P.emit()
        if self.opt.align:
            for lab in ('L_dnn_loop0:', 'L_dnn_loop1:', 'L_cin_loop:', 'L_epi:'):
                pad = '  s_nop 0\n' if self.opt.align > 100 else ''
                body_ = body_.replace(lab + '\n', f'.p2align {self.opt.align % 100}\n{pad}{lab}\n')
        if self.opt.cwalk:
            lines = body_.split('\n')
            i0, i1 = lines.index('L_w2:'), lines.index('L_cslow:')
            out, k, cnt = lines[:i0], 0, 0
            seg = lines[i0:i1]
            prot = 0
            for n_, l in enumerate(seg):
                out.append(l)
                t = l.strip()
                cnt += 1
                inmain = 'L_novm:' in seg[:n_ + 1]
                nxt = seg[n_ + 1].strip() if n_ + 1 < len(seg) else ''
                ok = t.endswith(':') or (cnt >= self.opt.cwalk and ('mfma' in t and nxt.startswith('v_pk') if inmain else t.startswith(('ds_', 'v_perm', 'v_cvt_pk'))))
                if ok and t not in ('L_cin_loop:', 'L_cconv:', 'L_scaled:'):
                    out += [f'L_wp{k}:', f'  s_cbranch_execz L_wp{k + 1}']
                    k += 1; cnt = 0
            j = lines.index('L_first:')
            rest = lines[i1:j + 1] + [f'L_wp{k}:', '  s_cbranch_execz L_wret'] + lines[j + 1:]
            body_ = '\n'.join(out + rest)
            print('walk pads', k + 1)
            self.npads = k + 1
            for q_ in range(4):
                body_ = body_.replace(f'L_WENTRY{q_}', f'L_wp{q_ * (k + 1) // 4}')
        if self.opt.pwalk:
            lines = body_.split('\n')
            i0, i1 = lines.index('L_pub:'), lines.index('L_ok:')
            out, k, cnt = lines[:i0 + 1] + ['L_pw0:', '  s_cbranch_execz L_pw1'], 1, 0
            for l in lines[i0 + 1:i1 + 1]:
                out.append(l)
                cnt += 1
                if (cnt >= self.opt.pwalk and l.strip().startswith(('s_add_u32', 'v_add_f32'))) or l == 'L_ok:':
                    out += [f'L_pw{k}:', f'  s_cbranch_execz L_pw{k + 1}' if l != 'L_ok:' else '  s_cbranch_execz L_pwr']
                    k += 1; cnt = 0
            body_ = '\n'.join(out + lines[i1 + 1:])
            print('pub pads', k)
        if self.opt.fix:
            body_ = fixalign.fix(body_ + 'L_tables:\n', self.opt.fix, nops=self.opt.fixn)[:-len('L_tables:\n')]
        txt += body_
        tb = self.tables()
        assert len(tb) == 16 * 256
        txt += '.p2align 8\nL_tables:\n' + ''.join('.long ' + ', '.join(f'{x:#x}' for x in tb[i:i + 8]) + '\n' for i in range(0, len(tb), 8))
        txt += f'''.section .rodata,"a"
.p2align 6
.amdhsa_kernel {KNAME}
  .amdhsa_next_free_vgpr 256
  .amdhsa_next_free_sgpr 102
  .amdhsa_accum_offset 256
  .amdhsa_group_segment_fixed_size 0
  .amdhsa_kernarg_size 88
  .amdhsa_user_sgpr_count 2
  .amdhsa_user_sgpr_kernarg_segment_ptr 1
  .amdhsa_system_sgpr_workgroup_id_x 1
  .amdhsa_float_denorm_mode_32 {self.opt.denorm}
.end_amdhsa_kernel
'''
        return txt


def main():
    ap = argparse.ArgumentParser()
    ap.add_argument('-o', default='standalone__deep_cross_xdeepfm__recsys.s')
    ap.add_argument('--stamps', action='store_true')
    ap.add_argument('--nodma', action='store_true')
    ap.add_argument('--cpf', type=int, default=1)
    ap.add_argument('--coop', type=int, default=2)
    ap.add_argument('--coopw', type=int, default=2)
    ap.add_argument('--tbpos', type=int, default=0)
    ap.add_argument('--dbar3', type=int, default=1)
    ap.add_argument('--tlb', type=int, default=0)
    ap.add_argument('--tlb2', type=int, default=1)
    ap.add_argument('--itst', type=int, default=0)
    ap.add_argument('--diag', type=int, default=0)
    ap.add_argument('--dbg', default='')
    ap.add_argument('--lead3', type=int, default=1)
    ap.add_argument('--morder', type=int, default=0)
    ap.add_argument('--etlb', type=int, default=0)
    ap.add_argument('--lateb', type=int, default=0)
    ap.add_argument('--wfl', default='')
    ap.add_argument('--xfl', default='')
    ap.add_argument('--tag', type=int, default=0)
    ap.add_argument('--idxfirst', type=int, default=1)
    ap.add_argument('--bpos', type=int, default=2)
    ap.add_argument('--sigat', type=int, default=4)
    ap.add_argument('--epx', type=int, default=1)
    ap.add_argument('--denorm', type=int, default=3)
    ap.add_argument('--mprio', type=int, default=0)
    ap.add_argument('--swap', type=int, default=0)
    ap.add_argument('--bov', type=int, default=1)
    ap.add_argument('--rfirst', type=int, default=0)
    ap.add_argument('--g1x', type=int, default=0)
    ap.add_argument('--ldsred', type=int, default=0)
    ap.add_argument('--csnake', type=int, default=0)
    ap.add_argument('--cswap', type=int, default=0)
    ap.add_argument('--align', type=int, default=0)
    ap.add_argument('--c2', type=int, default=0)
    ap.add_argument('--d1', type=int, default=0)
    ap.add_argument('--cstr', type=int, default=3)
    ap.add_argument('--bearly', type=int, default=1)
    ap.add_argument('--w2late', type=int, default=1)
    ap.add_argument('--aov', type=int, default=5)
    ap.add_argument('--upos', type=int, default=1)
    ap.add_argument('--calt', type=int, default=1)
    ap.add_argument('--pfpos', type=int, default=1)
    ap.add_argument('--wlate', type=int, default=0)
    ap.add_argument('--dbar2', type=int, default=0)
    ap.add_argument('--dbar', type=int, default=0)
    ap.add_argument('--pfw', type=int, default=0)
    ap.add_argument('--pfx', type=int, default=0)
    ap.add_argument('--pfx0', type=int, default=4)
    ap.add_argument('--pfs', type=int, default=1)
    ap.add_argument('--dcoopx', type=int, default=1)
    ap.add_argument('--dcx0', type=int, default=0)
    ap.add_argument('--dcxpos', type=int, default=-1)
    ap.add_argument('--pfe0', type=int, default=2)
    ap.add_argument('--pfne', type=int, default=13)
    ap.add_argument('--prio47', type=int, default=0)
    ap.add_argument('--lookahead', type=int, default=5)
    ap.add_argument('--nz', type=int, default=6)
    ap.add_argument('--nwf', type=int, default=8)
    ap.add_argument('--hiat', type=int, default=8)
    ap.add_argument('--wmerge', type=int, default=0)
    ap.add_argument('--gapv', type=int, default=6)
    ap.add_argument('--slow', type=int, default=0)
    ap.add_argument('--chead', type=int, default=0)
    ap.add_argument('--res', type=int, default=0)
    ap.add_argument('--fixn', type=int, default=0)
    ap.add_argument('--csn', type=int, default=1)
    ap.add_argument('--pwalk', type=int, default=0)
    ap.add_argument('--wsc', type=int, default=8)
    ap.add_argument('--nospare', type=int, default=0)
    ap.add_argument('--tailp', type=int, default=0)
    ap.add_argument('--hx', type=int, default=4)
    ap.add_argument('--hx0', type=int, default=4)
    ap.add_argument('--hxat', type=int, default=1)
    ap.add_argument('--hw', type=int, default=0)
    ap.add_argument('--hw0', type=int, default=2)
    ap.add_argument('--hwat', type=int, default=0)
    ap.add_argument('--tgap', type=int, default=40)
    ap.add_argument('--tmask', type=int, default=0x15)
    ap.add_argument('--st', type=int, default=0)
    ap.add_argument('--sf0', type=int, default=2)
    ap.add_argument('--dbar0', type=int, default=2)
    ap.add_argument('--ptl', type=int, default=0)
    ap.add_argument('--ct2', default='')
    ap.add_argument('--ewat', type=int, default=0)
    ap.add_argument('--gprio', type=int, default=1)
    ap.add_argument('--g1t', type=int, default=3)
    ap.add_argument('--tf0', type=int, default=8)
    ap.add_argument('--twoff', type=int, default=0)
    ap.add_argument('--ew', type=int, default=3)
    ap.add_argument('--ew0', type=int, default=2)
    ap.add_argument('--cyc', default='')
    ap.add_argument('--rshare', type=int, default=1)
    ap.add_argument('--dwalk', type=int, default=0)
    ap.add_argument('--band', type=int, default=0)
    ap.add_argument('--absol', type=int, default=0)
    ap.add_argument('--rev', type=int, default=1)
    ap.add_argument('--xg1', type=int, default=0)
    ap.add_argument('--bou', type=int, default=1)
    ap.add_argument('--sjw', type=int, default=7)
    ap.add_argument('--cwalk', type=int, default=0)
    ap.add_argument('--few', default='')
    ap.add_argument('--econv', type=int, default=0)
    ap.add_argument('--nsh', type=int, default=16)
    ap.add_argument('--sh0', type=int, default=5)
    ap.add_argument('--dirt', type=int, default=0)
    ap.add_argument('--mrg', type=int, default=0)
    ap.add_argument('--g1p', type=int, default=0)
    ap.add_argument('--sa', type=int, default=4)
    ap.add_argument('--sbg', type=int, default=16)
    ap.add_argument('--bwat', type=int, default=0)
    ap.add_argument('--x2n', type=int, default=8)
    ap.add_argument('--sent', type=int, default=1)
    ap.add_argument('--spec', type=int, default=0)
    ap.add_argument('--probe', default='')
    ap.add_argument('--skew', type=int, default=0)
    ap.add_argument('--fix', type=int, default=64)
    ap.add_argument('--walk', type=int, default=0)
    ap.add_argument('--eal', type=int, default=3)
    ap.add_argument('--eoff', type=int, default=0)
    ap.add_argument('--ct', default='02')
    ap.add_argument('--rot', type=int, default=13)
    ap.add_argument('--i0', type=int, default=1)
    ap.add_argument('--i1', type=int, default=10)
    ap.add_argument('--burn', type=int, default=0)
    ap.add_argument('--lord', type=int, default=1)
    ap.add_argument('--lprio', type=int, default=0)
    ap.add_argument('--rsp', type=int, default=0)
    ap.add_argument('--tch', type=int, default=1)
    ap.add_argument('--tf', type=int, default=4)
    ap.add_argument('--toff', type=int, default=2)
    ap.add_argument('--tw0', type=int, default=6)
    ap.add_argument('--xat', type=int, default=4)
    ap.add_argument('--pf1', type=int, default=1)
    ap.add_argument('--lpf', type=int, default=20)
    ap.add_argument('--lpfit', type=int, default=6)
    ap.add_argument('--x1m', type=int, default=10)
    ap.add_argument('--bgap', type=int, default=6)
    ap.add_argument('--cprio', type=int, default=1)
    ap.add_argument('--x1n', type=int, default=5)
    ap.add_argument('--w0', type=int, default=2)
    ap.add_argument('--dbar1', type=int, default=1)
    ap.add_argument('--aon', type=int, default=2)
    ap.add_argument('--cbar', type=int, default=0)
    ap.add_argument('--vmpos', type=int, default=2)
    ap.add_argument('--il2', type=int, default=0)
    ap.add_argument('--p1', type=int, default=0)
    ap.add_argument('--pm', type=int, default=2)
    ap.add_argument('--cbov', type=int, default=3)
    ap.add_argument('--p0', type=int, default=0)
    ap.add_argument('--max2', type=int, default=2)
    ap.add_argument('--eager', type=int, default=0)
    ap.add_argument('--cst', type=int, default=0)
    ap.add_argument('--x0', type=int, default=60)
    ap.add_argument('--xlat', type=int, default=18)
    ap.add_argument('--xper', type=int, default=3)
    ap.add_argument('--xc0', type=int, default=0)
    ap.add_argument('--n3', type=int, default=1)
    ap.add_argument('--xi0', type=int, default=1)
    ap.add_argument('--pfsat', type=int, default=0)
    ap.add_argument('--g1prio', type=int, default=0)
    ap.add_argument('--xearly', type=int, default=1)
    ap.add_argument('--cpfd', type=int, default=4)
    ap.add_argument('--cla', type=int, default=1)
    ap.add_argument('--war', type=int, default=1)
    opt = ap.parse_args()
    resolve_waits.dbg = 'dup' in opt.dbg
    g = Gen(opt)
    txt = g.build()
    open(opt.o, 'w').write(txt)
    print('wrote', opt.o, len(txt), 'bytes')


if __name__ == '__main__':
    main()
```
